```python
import torch

def _softmax(x, axis=-1):
    return torch.softmax(x, dim=axis)
def _gelu(x):
    return torch.nn.functional.gelu(x, approximate="tanh")
def _silu(x):
    return torch.nn.functional.silu(x)
def _sigmoid(x):
    return torch.sigmoid(x)
def _layernorm(x, axis=-1, eps=1e-5):
    m = x.mean(dim=axis, keepdim=True)
    v = x.var(dim=axis, keepdim=True, unbiased=False)
    return (x - m) / torch.sqrt(v + eps)
def _scatter_add(tgt, idx, src, axis=0):
    return tgt.clone().index_add_(axis, idx, src)
def _segment_sum(src, seg, n):
    out = torch.zeros((n,) + src.shape[1:], dtype=src.dtype)
    return out.index_add_(0, seg, src)
def _pad(x, pw):
    flat = tuple(v for pair in reversed(pw) for v in pair)
    return torch.nn.functional.pad(x, flat)

kernel_name = 'interleave_layers__linear_kernel_hedgehog__sliding_local_dilated__prompt'

def setup_inputs():

    _w = (lambda a: (lambda t: t.to(torch.bfloat16) if t.is_floating_point() else t)(torch.as_tensor(a)))
    def _A_setup():
        B, S, D, H = 1, 2048, 1024, 32
        Dh = D // H
        return {
            "x": _w((lambda *s: torch.randn(*s, dtype=torch.bfloat16) * 0.05)(B, S, D)),
            "wqkv": _w((lambda *s: torch.randn(*s, dtype=torch.bfloat16) * 0.2)(D, 3 * D)),
            "w_phi": _w((lambda *s: torch.randn(*s, dtype=torch.bfloat16) * 0.2)(H, Dh, Dh) * (Dh ** -0.5)),
            "wo": _w((lambda *s: torch.randn(*s, dtype=torch.bfloat16) * 0.05)(D, D)),
        }
    _A_in = _A_setup()

    def _B_setup():
        B, S, D = 1, 2048, 1024
        return {
            "x": _w((lambda *s: torch.randn(*s, dtype=torch.bfloat16) * 0.05)(B, S, D)),
            "wqkv": _w((lambda *s: torch.randn(*s, dtype=torch.bfloat16) * 0.1)(D, 3 * D)),
            "wo": _w((lambda *s: torch.randn(*s, dtype=torch.bfloat16) * 0.05)(D, D)),
        }
    _B_in = _B_setup()

    return {
        "A_x": _A_in["x"],
        "A_wqkv": _A_in["wqkv"],
        "A_w_phi": _A_in["w_phi"],
        "A_wo": _A_in["wo"],
        "B_x": _B_in["x"],
        "B_wqkv": _B_in["wqkv"],
        "B_wo": _B_in["wo"],
    }

def reference(A_x, A_wqkv, A_w_phi, A_wo, B_x, B_wqkv, B_wo):
    def _A_ref(x, wqkv, w_phi, wo):
        B, S, D = x.shape
        H = 32; Dh = D // H
        qkv = (lambda x, *d: x.permute(*d))((x @ wqkv).reshape(B, S, 3, H, Dh), 2, 0, 3, 1, 4)
        q, k, v = qkv[0], qkv[1], qkv[2]
        pq = torch.einsum("bhsd,hdf->bhsf", q, w_phi)
        pk = torch.einsum("bhsd,hdf->bhsf", k, w_phi)
        phi_q = torch.concatenate([_softmax(pq, axis=-1), _softmax(-pq, axis=-1)], axis=-1)
        phi_k = torch.concatenate([_softmax(pk, axis=-1), _softmax(-pk, axis=-1)], axis=-1)
        kv = torch.einsum("bhsf,bhsd->bhfd", phi_k, v)
        z  = torch.einsum("bhsf->bhf", phi_k)
        num = torch.einsum("bhqf,bhfd->bhqd", phi_q, kv)
        den = torch.einsum("bhqf,bhf->bhq", phi_q, z)[..., None] + 1e-6
        o = num / den
        return (lambda x, *d: x.permute(*d))(o, 0, 2, 1, 3).reshape(B, S, D) @ wo

    def _B_ref(x, wqkv, wo):
        B, S, D = x.shape
        H = 32; Dh = D // H
        W, dil = 8, 2
        qkv = (lambda x, *d: x.permute(*d))((x @ wqkv).reshape(B, S, 3, H, Dh), 2, 0, 3, 1, 4)
        q, k, v = qkv[0], qkv[1], qkv[2]
        scale = Dh ** -0.5
        pos = torch.arange(S)
        off = torch.arange(W) * dil
        idx = pos[:, None] - off[None, :]
        mask = idx >= 0
        idx_c = torch.where(mask, idx, 0).reshape(-1)
        kg = k[:, :, idx_c, :].reshape(B, H, S, W, Dh)
        vg = v[:, :, idx_c, :].reshape(B, H, S, W, Dh)
        logits = torch.einsum("bhsd,bhswd->bhsw", q, kg) * scale
        logits = torch.where(mask[None, None, :, :], logits, -1e9)
        attn = _softmax(logits, axis=-1)
        o = torch.einsum("bhsw,bhswd->bhsd", attn, vg)
        return (lambda x, *d: x.permute(*d))(o, 0, 2, 1, 3).reshape(B, S, D) @ wo

    x = A_x
    x = x + _A_ref(_layernorm(x, axis=-1), A_wqkv, A_w_phi, A_wo)
    x = x + _B_ref(_layernorm(x, axis=-1), B_wqkv, B_wo)
    x = x + _A_ref(_layernorm(x, axis=-1), A_wqkv, A_w_phi, A_wo)
    x = x + _B_ref(_layernorm(x, axis=-1), B_wqkv, B_wo)
    return x
```

```python
import re

_REG = re.compile(r'^(-|\|)?(abs\()?([vas])(?:(\d+)|\[(\d+):(\d+)\])\)?\|?$')
TRANS = ("v_exp_f32", "v_log_f32", "v_rcp_f32", "v_rsq_f32", "v_sqrt_f32", "v_sin_f32", "v_cos_f32")

def regs_of(op):
    op = op.strip()
    if op == "vcc": return {("s", "vcc")}
    if op in ("exec", "exec_lo", "exec_hi"): return {("s", "exec")}
    if op == "m0": return {("s", "m0")}
    m = _REG.match(op)
    if not m: return set()
    k = m.group(3)
    if m.group(4) is not None: return {(k, int(m.group(4)))}
    return {(k, i) for i in range(int(m.group(5)), int(m.group(6)) + 1)}

class Ins:
    def __init__(self, text):
        self.text = text
        t = text.split(";")[0].strip()
        parts = t.split(None, 1)
        self.mn = parts[0]
        rest = parts[1] if len(parts) > 1 else ""
        ops = [o.strip() for o in re.split(r',(?![^\[]*\])', rest)] if rest else []
        mods = ""
        if ops:
            l = ops[-1].split(None, 1)
            ops[-1] = l[0]
            mods = l[1] if len(l) > 1 else ""
        self.ops = ops; self.mods = mods
        mn = self.mn
        R = [regs_of(o) for o in ops]
        U = lambda xs: set().union(*xs) if xs else set()
        self.kind = "other"; self.w = set(); self.r = set()
        self.srcab = set(); self.srcc = set(); self.stdata = set()
        if mn.startswith("v_mfma"):
            self.kind = "mfma"; self.w = R[0]; self.srcab = R[1] | R[2]; self.srcc = R[3]; self.r = self.srcab | self.srcc
            self.passes = 4 if "16x16x32" in mn else 8
        elif mn.startswith("v_"):
            self.kind = "valu"
            self.w = R[0]; self.r = U(R[1:])
            if "swap" in mn: self.w = R[0] | R[1]; self.r = R[0] | R[1]
            if mn.startswith(("v_fmac", "v_dot2c", "v_writelane")) or mn.endswith("_dpp"): self.r |= R[0]
        elif mn.startswith("ds_"):
            self.kind = "ds"
            if mn.startswith(("ds_read", "ds_bpermute", "ds_swizzle")): self.w = R[0]; self.r = U(R[1:])
            else: self.r = U(R)
        elif mn.startswith(("buffer_", "global_")):
            self.kind = "vmem"
            lds = " lds" in (" " + mods)
            if lds: self.r = U(R) | {("s", "m0")}; self.kind = "dma"
            elif "load" in mn: self.w = R[0]; self.r = U(R[1:])
            elif "atomic" in mn:
                self.r = U(R)
                if "sc0" in mods: self.w = R[0]
            else:
                self.r = U(R)
                if mn.endswith(("x3", "x4")): self.stdata = R[0] if mn.startswith("buffer_") else R[1]
        elif mn.startswith("s_"):
            self.kind = "salu"
            if not mn.startswith(("s_cmp", "s_bitcmp", "s_waitcnt", "s_nop", "s_barrier", "s_branch", "s_cbranch", "s_sleep", "s_setprio", "s_endpgm", "s_setpc")):
                self.w = R[0] if R else set()
                self.r = U(R[1:])
            else: self.r = U(R)
        self.states = 1
        if mn == "s_nop": self.states = int(ops[0]) + 1

def isv(s): return {x for x in s if x[0] in "va"}
def iss(s): return {x for x in s if x[0] == "s"}

def need(p, c):
    n = 0
    if p.kind == "valu":
        pw = isv(p.w); ps = iss(p.w)
        if c.kind == "mfma" and pw & c.r: n = max(n, 2)
        if c.kind == "valu":
            if "permlane" in c.mn and pw & c.r: n = max(n, 2)
            if c.mn.endswith("_dpp") and pw & c.r: n = max(n, 2)
            if c.mn.startswith(("v_readlane", "v_readfirstlane")) and pw & c.r: n = max(n, 1)
            if p.mn in TRANS and pw & c.r: n = max(n, 1)
            if ps & c.r: n = max(n, 4 if c.mn.startswith(("v_readlane", "v_writelane")) else 2)
        if c.kind in ("vmem", "dma") and ps & c.r: n = max(n, 5)
        if c.kind in ("vmem", "dma", "ds") and p.mn in TRANS and pw & c.r: n = max(n, 1)
    if p.kind == "mfma":
        big = {4: 8, 8: 12}[p.passes]
        if c.kind == "mfma":
            if p.w & c.srcab: n = max(n, big)
            if p.w & c.srcc and not (p.w == c.srcc and p.passes == c.passes): n = max(n, big - 2)
            if p.w & c.w and not (p.w == c.srcc): n = max(n, big - 2)
        elif c.kind in ("valu", "vmem", "dma", "ds"):
            if p.w & (c.r | c.w): n = max(n, big)
            if c.kind == "valu" and p.srcc & c.w: n = max(n, {4: 3, 8: 7}[p.passes])
    if p.kind == "salu" and ("s", "m0") in p.w and c.kind == "dma": n = max(n, 1)
    if p.stdata and p.stdata & c.w: n = max(n, 2)
    return n

class Asm:
    def __init__(self):
        self.out = []; self.hist = []; self.nops = 0; self.uid = 0
    def raw(self, t): self.out.append(t)
    def label(self, name): self.out.append(name + ":")
    def new(self, base):
        self.uid += 1; return f"L_{base}_{self.uid}"
    def e(self, text):
        if "\n" in text:
            for t in text.split("\n"):
                if t.strip(): self.e(t.strip())
            return
        c = Ins(text)
        dist = 0; pad = 0
        for p in reversed(self.hist):
            nd = need(p, c)
            if nd > dist: pad = max(pad, nd - dist)
            dist += p.states
            if dist >= 20: break
        if pad:
            self.nops += pad
            nop = Ins(f"s_nop {pad-1}")
            self.out.append("    " + nop.text); self.hist.append(nop)
        self.out.append("    " + text); self.hist.append(c)
        if len(self.hist) > 64: self.hist = self.hist[-32:]
    def fence(self):
        self.e("s_nop 7"); self.e("s_nop 3")
    def text(self): return "\n".join(self.out) + "\n"

def v(a, n=1): return f"v{a}" if n == 1 else f"v[{a}:{a+n-1}]"
def a(x, n=1): return f"a{x}" if n == 1 else f"a[{x}:{x+n-1}]"
def s(x, n=1): return f"s{x}" if n == 1 else f"s[{x}:{x+n-1}]"
```

```python
import sys
from asmlib import *

KNAME = "interleave_layers__linear_kernel_hedgehog__sliding_local_dilated__prompt_kernel"

WS_FLAGA = 0x0000000
WS_FLAGB = 0x0008000
WS_FLAGO = 0x0009000
WS_FLAGX = 0x000A000
WS_STAMP = 0x000C000
WS_CS    = 0x0010000
WS_ST0   = 0x0080000
WS_ST1   = 0x00C0000
WS_HALO  = 0x0100000
WS_KVP   = 0x0200000
WS_ZP    = 0x0600000
WS_STAMPS= 0x0700000
WS_W1A   = 0x0800000
WS_W1B   = 0x0E00000
WS_W2A   = 0x1400000
WS_W2B   = 0x1600000
WS_X0    = 0x1800000
WS_X     = 0x1C00000
WS_O     = 0x2000000
WS_SIZE  = 0x10000000

SLOT = 24576
M      = 147456
M_ROLE = M
M_CS   = M + 64
M_ST   = M + 1024
M_RS   = M + 3072
M_KX   = M + 4096
M_HV   = M + 9216
M_ZF   = M + 10240
M_PHI  = M + 11264
LDS_SIZE = 163840
VB_LDS = 57344
RAW1A, RAW1B, RAW2A, RAW2B = 0, 24576, 49152, 57344

SRD = "s[4:7]"; SRT = "s[8:11]"
SW, SGRP, SMEM, SMODE, SLAY, SCB, SRB = 12, 13, 14, 15, 16, 17, 18
T0, T1, T2, T3, T4, T5, T6, T7 = 19, 20, 21, 22, 23, 24, 25, 26
SHI, SLO, SXCC = 27, 28, 29
sFOc, sFOp, sFXc, sFXp = 30, 31, 32, 33
sO, sXs = 34, 35
mPAR, mB1, mDIAG, mM0, mOWN0, mOWN1, mM1, mFIRST = 36, 38, 40, 42, 44, 46, 48, 50
sW1, sW2, sX, sST, sSTs, sLW, sKV, sZP, sHALO, sTMO, sAo, sWo = 52, 53, 54, 55, 56, 57, 58, 59, 60, 61, 62, 63
P_AX, P_AW1, P_PHI, P_AW2, P_BX, P_BW1, P_BW2, P_OUT, P_DBG, P_WS = 64, 66, 68, 70, 72, 74, 76, 78, 80, 82
sSTAMP = 84
sC0 = 86

vL16, vL64, vL128 = 1, 2, 3
vA = 4; vB = 8; vW1 = 10; vW2 = 11; vFP = 12; vSTl = 13; vSTs = 14; vSTAMP = 15
RES = 16; PHI = 32; ONES = 40; MP0, MP1, MO0, MO1 = 44, 45, 46, 47
vXW, vE0, vE1, vRSW, vRSR, vVo, vVp, vKX, vGM, vZW, vSW, vSR, vG16, vOut, vTR, vVal = range(48, 64)
ACC = 64
def acc(c, i): return ACC + 16*c + 4*i
def acc2(b, i): return ACC + 8*b + 4*i
STP = 160; CSR = 168
LOG2E = 0x3fb8aa3b
MF = "v_mfma_f32_16x16x32_bf16"

def f32hex(x):
    import struct
    return "0x%08x" % struct.unpack("<I", struct.pack("<f", x))[0]

class Opts:
    stamps = False
    last = 3
    force_slow = False
    npre = 2
    adepth = 4
    g2depth = 10
    codepf = True

def gen(o):
    A = Asm(); e = A.e
    ool = []
    nstamp = [0]
    def stamp(name):
        if not o.stamps: return
        e(f"s_memrealtime s[{sSTAMP}:{sSTAMP+1}]")
        e(f"s_lshl_b32 s{T7}, s{SLAY}, 4"); e(f"s_add_u32 s{T7}, s{T7}, {name}"); e(f"s_mov_b32 m0, s{T7}")
        e("s_waitcnt lgkmcnt(0)")
        e(f"v_writelane_b32 v{vSTAMP}, s{sSTAMP}, m0")
    def srt(p, size):
        e(f"s_mov_b32 s8, s{p}"); e(f"s_mov_b32 s9, s{p+1}"); e(f"s_mov_b32 s10, {size}"); e("s_mov_b32 s11, 0x20000")
    def mask64(r, val):
        e(f"s_mov_b32 s{r}, 0x{val & 0xffffffff:08x}"); e(f"s_mov_b32 s{r+1}, 0x{val >> 32:08x}")
    def bc(r): return (v(r & ~1, 2), r & 1)
    def pk_fma(d, x, y, z, negx=False):
        yp, ys = bc(y)
        if z[0] == 'p': zp, zl, zh = v(z[1], 2), 0, 1
        else:
            zp, zs = bc(z[1]); zl = zh = zs
        t = f"v_pk_fma_f32 {v(d,2)}, {v(x,2)}, {yp}, {zp} op_sel:[0,{ys},{zl}] op_sel_hi:[1,{ys},{zh}]"
        if negx: t += " neg_lo:[1,0,0] neg_hi:[1,0,0]"
        e(t)
    def pk_mul(d, x, y):
        yp, ys = bc(y)
        e(f"v_pk_mul_f32 {v(d,2)}, {v(x,2)}, {yp} op_sel:[0,{ys}] op_sel_hi:[1,{ys}]")
    def cvt4(d, x0, x1):
        e(f"v_cvt_pk_bf16_f32 v{d}, v{x0}, v{x0+1}"); e(f"v_cvt_pk_bf16_f32 v{d+1}, v{x0+2}, v{x0+3}")
        e(f"v_cvt_pk_bf16_f32 v{d+2}, v{x1}, v{x1+1}"); e(f"v_cvt_pk_bf16_f32 v{d+3}, v{x1+2}, v{x1+3}")
    def st_mode(lines):
        ls, ld = A.new("slow"), A.new("done")
        e(f"s_cmp_lg_u32 s{SMODE}, 0"); e(f"s_cbranch_scc1 {ls}")
        for t in lines: e(t)
        A.label(ld)
        def blk():
            A.label(ls); A.fence()
            for t in lines: e(t + (" sc1" if t.startswith("buffer_store") else ""))
            e("s_nop 1"); e(f"s_branch {ld}")
        ool.append(blk)
    def poll_ge(vaddr, soff, sval, vt=0):
        l, d = A.new("poll"), A.new("polld")
        e(f"s_mov_b32 s{sTMO}, 0")
        A.label(l)
        e(f"buffer_load_dword v{vt}, v{vaddr}, {SRD}, s{soff} offen sc1")
        e("s_waitcnt vmcnt(0)")
        e(f"v_cmp_gt_u32 vcc, s{sval}, v{vt}")
        e(f"s_cbranch_vccz {d}")
        e(f"s_add_u32 s{sTMO}, s{sTMO}, 1"); e(f"s_cmp_lt_u32 s{sTMO}, 0x100000"); e(f"s_cbranch_scc1 {l}")
        A.label(d)
    def xreduce(groups):
        for op, q, t in groups: e(f"v_permlane32_swap_b32 v{q[0]}, v{q[1]}"); e(f"v_permlane32_swap_b32 v{q[2]}, v{q[3]}")
        for op, q, t in groups: e(f"{op} v{q[0]}, v{q[0]}, v{q[1]}"); e(f"{op} v{q[2]}, v{q[2]}, v{q[3]}")
        for op, q, t in groups: e(f"v_permlane16_swap_b32 v{q[0]}, v{q[2]}")
        for op, q, t in groups: e(f"{op} v{q[0]}, v{q[0]}, v{q[2]}")
        for op, q, t in groups: e(f"v_mov_b32 v{q[2]}, v{q[0]}")
        for op, q, t in groups: e(f"v_permlane16_swap_b32 v{q[0]}, v{q[2]}")
        for op, q, t in groups: e(f"v_mov_b32 v{q[1]}, v{q[0]}"); e(f"v_mov_b32 v{q[3]}, v{q[2]}")
        for op, q, t in groups: e(f"v_permlane32_swap_b32 v{q[0]}, v{q[1]}"); e(f"v_permlane32_swap_b32 v{q[2]}, v{q[3]}")
    def xtile(R, tmp, soffx, soffst, always_sc1):
        st = [f"buffer_store_dwordx4 {v(R+8*i+4*kk,4)}, v{vB+i}, {SRD}, s{soffx} offen offset:{kk*1024}" for i in range(2) for kk in range(2)]
        if always_sc1:
            for t in st: e(t + " sc1")
        else: st_mode(st)
        for kk in range(2):
            for i in range(2):
                f = v(R+8*i+4*kk, 4)
                e(f"{MF} {v(tmp+8*i,4)}, {v(ONES,4)}, {f}, {'0' if kk == 0 else v(tmp+8*i,4)}")
                e(f"{MF} {v(tmp+8*i+4,4)}, {f}, {f}, {'0' if kk == 0 else v(tmp+8*i+4,4)}")
        for i in range(2):
            g0 = tmp+8*i+4
            e(f"v_cndmask_b32 v{g0}, v{g0}, v{g0+1}, s[{mPAR}:{mPAR+1}]")
            e(f"v_cndmask_b32 v{g0+2}, v{g0+2}, v{g0+3}, s[{mPAR}:{mPAR+1}]")
            e(f"v_cndmask_b32 v{tmp+8*i+1}, v{g0}, v{g0+2}, s[{mB1}:{mB1+1}]")
        st = [f"buffer_store_dwordx2 {v(tmp+8*i,2)}, v{vSTs}, {SRD}, s{soffst} offen offset:{i*256}" for i in range(2)]
        e(f"s_mov_b64 exec, s[{mDIAG}:{mDIAG+1}]")
        if always_sc1:
            for t in st: e(t + " sc1")
        else: st_mode(st)
        e("s_mov_b64 exec, -1")
    def role_addrs(srb, scb):
        e(f"s_lshl_b32 s{T0}, s{srb}, 3"); e(f"s_lshl_b32 s{T1}, s{SW}, 1"); e(f"s_add_u32 s{T0}, s{T0}, s{T1}")
        e(f"s_lshl_b32 s{T1}, s{T0}, 15")
        e(f"v_add_u32 v{vB}, s{T1}, v{vL16}"); e(f"v_add_u32 v{vB+1}, 0x8000, v{vB}")
        e(f"s_lshl_b32 s{T0}, s{T0}, 4")
        e(f"v_add_u32 v{vOut}, s{T0}, v0")
        e(f"v_lshlrev_b32 v{vSTs}, 4, v{vOut}")
        e(f"s_lshl_b32 s{T1}, s{scb}, 7")
        e(f"v_lshlrev_b32 v{vOut}, 11, v{vOut}")
        e(f"v_add3_u32 v{vOut}, v{vOut}, s{T1}, v{vG16}")
    def st_soff(dst, base, scb):
        e(f"s_lshr_b32 s{T0}, s{scb}, 1"); e(f"s_lshl_b32 s{T0}, s{T0}, 15"); e(f"s_and_b32 s{T1}, s{scb}, 1"); e(f"s_lshl_b32 s{T1}, s{T1}, 3")
        e(f"s_add_u32 s{T0}, s{T0}, s{T1}"); e(f"s_add_u32 s{dst}, s{T0}, {base}")
    def w1_piece(stage, i):
        r = []
        slot = (stage + 1) % 6
        if i % 4 == 0:
            r.append(f"s_add_u32 m0, s{sLW}, {slot*SLOT + (i//4)*4096}")
            r.append(f"s_add_u32 s{sWo}, s{sW1}, {stage*SLOT + (i//4)*4096}")
        r.append(f"buffer_load_dwordx4 v{vW1}, {SRD}, s{sWo} offen offset:{(i%4)*1024} lds")
        return r
    def w2_piece(part, i):
        r = []
        if i % 4 == 0:
            r.append(f"s_add_u32 m0, s{sLW}, {(3+part)*SLOT + (i//4)*4096}")
            r.append(f"s_add_u32 s{sWo}, s{sW2}, {part*SLOT + (i//4)*4096}")
        r.append(f"buffer_load_dwordx4 v{vW2}, {SRD}, s{sWo} offen offset:{(i%4)*1024} lds")
        return r
    def w2_late():
        e(f"s_mul_i32 s{T0}, s{SW}, 14336"); e(f"s_lshl_b32 s{T1}, s{SW}, 13"); e(f"s_add_u32 s{T1}, s{T1}, s{sW2}")
        for i in range(14):
            if i % 4 == 0:
                e(f"s_add_u32 m0, s{T0}, {(i//4)*4096}")
                e(f"s_add_u32 s{sWo}, s{T1}, {3*SLOT + (i//4)*4096}")
            e(f"buffer_load_dwordx4 v{vW2}, {SRD}, s{sWo} offen offset:{(i%4)*1024} lds")
    def ldsrd(dst, addr):
        base = {0: vL16, 1: vL64, 2: vL128}[addr >> 16]
        return f"ds_read_b128 {dst}, v{base} offset:{addr & 0xffff}"
    def cs_load(which, d):
        e(f"s_mul_i32 s{T0}, s{SMEM}, 384"); e(f"s_add_u32 s{T0}, s{T0}, {WS_CS + which*196608}")
        e(f"s_lshl_b32 s{T1}, s{SW}, 6"); e(f"s_add_u32 s{T2}, s{SW}, 4"); e(f"s_min_u32 s{T2}, s{T2}, 5"); e(f"s_lshl_b32 s{T2}, s{T2}, 6")
        e(f"s_add_u32 s{T3}, s{T0}, s{T1}"); e(f"s_add_u32 s{T4}, s{T0}, s{T2}")
        e(f"v_bfe_u32 v{d+8}, v{vL16}, 4, 4"); e(f"v_mul_u32_u24 v{d+8}, 12288, v{d+8}"); e(f"v_add_u32 v{d+8}, v{d+8}, v{vG16}")
        e(f"buffer_load_dwordx4 {v(d,4)}, v{d+8}, {SRD}, s{T3} offen sc1")
        e(f"buffer_load_dwordx4 {v(d+4,4)}, v{d+8}, {SRD}, s{T4} offen sc1")
        e(f"v_add_u32 v{d+8}, s{T1}, v{vGM}"); e(f"v_add_u32 v{d+9}, s{T2}, v{vGM}")
    def cs_proc(which, d):
        for sh in (8, 4, 2, 1):
            for r in range(8): e(f"v_add_f32_dpp v{d+r}, v{d+r}, v{d+r} row_ror:{sh} row_mask:0xf bank_mask:0xf")
        e(f"s_mov_b64 exec, s[{mM0}:{mM0+1}]")
        e(f"ds_write_b128 v{d+8}, {v(d,4)} offset:{M_CS-M+which*384}")
        e(f"ds_write_b128 v{d+9}, {v(d+4,4)} offset:{M_CS-M+which*384}")
        e("s_mov_b64 exec, -1")

    A.raw(f"; @launch grid=(256,1,1) block=(256,1,1) lds={LDS_SIZE}")
    A.raw('.amdgcn_target "amdgcn-amd-amdhsa--gfx950"'); A.raw(".text")
    A.raw(f".globl {KNAME}"); A.raw(".p2align 8"); A.raw(f".type {KNAME},@function"); A.label(KNAME)
    e("s_cmp_lt_u32 s2, 256"); e("s_cbranch_scc1 L_go"); e("s_endpgm"); A.label("L_go")
    e("s_load_dwordx16 s[64:79], s[0:1], 0"); e("s_load_dwordx4 s[80:83], s[0:1], 64")
    e(f"s_mov_b32 s{SLAY}, 0")
    if o.stamps: e(f"v_mov_b32 v{vSTAMP}, 0"); stamp(12)
    if o.codepf:
        e(f"s_getpc_b64 s[{T1}:{T1+1}]"); e(f"s_and_b32 s{T1}, s{T1}, 0xffffff00")
        e("v_lshlrev_b32 v1, 7, v0"); e("v_min_u32 v2, L_codeend-%s-4, v1" % KNAME)
        e(f"global_load_dword v255, v2, s[{T1}:{T1+1}]")
        e("v_add_u32 v1, 0x8000, v1"); e("v_min_u32 v2, L_codeend-%s-4, v1" % KNAME)
        e(f"global_load_dword v255, v2, s[{T1}:{T1+1}]")
    e(f"s_getreg_b32 s{SXCC}, hwreg(HW_REG_XCC_ID, 0, 4)")
    e("v_lshrrev_b32 v1, 6, v0"); e(f"v_readfirstlane_b32 s{SW}, v1")
    e("v_and_b32 v2, 63, v0")
    e(f"v_lshlrev_b32 v{vL16}, 4, v2")
    e(f"v_and_b32 v{vG16}, 48, v2")
    e("v_and_b32 v0, 15, v2")
    e(f"v_lshrrev_b32 v200, 3, v2"); e("v_and_b32 v201, 7, v2"); e("v_lshlrev_b32 v201, 4, v201")
    e("v_mul_u32_u24 v202, 6144, v200"); e("v_add_u32 v202, v202, v201")
    e("v_lshl_add_u32 v203, v200, 11, v201")
    e("v_bfe_u32 v200, v2, 2, 2"); e(f"v_lshrrev_b32 v201, 1, v{vG16}"); e("v_add_u32 v200, v200, v201")
    e("v_and_b32 v201, 3, v2")
    e("v_lshlrev_b32 v204, 7, v200"); e("v_lshl_add_u32 v204, v201, 4, v204")
    e("v_lshlrev_b32 v205, 6, v200"); e("v_lshl_add_u32 v205, v201, 3, v205"); e(f"v_add_u32 v205, {M_PHI}, v205")
    e(f"v_lshrrev_b32 v200, 2, v2"); e("v_lshlrev_b32 v200, 4, v200"); e("v_and_b32 v206, 1, v2"); e("v_lshlrev_b32 v206, 7, v206")
    e("v_xor_b32 v200, v200, v206"); e(f"v_lshl_add_u32 v{vTR}, v201, 8, v200")
    e(f"v_and_b32 v{vFP}, 31, v2"); e(f"v_lshlrev_b32 v{vFP}, 2, v{vFP}")
    e(f"v_add_u32 v{vL64}, 0x10000, v{vL16}"); e(f"v_add_u32 v{vL128}, 0x20000, v{vL16}")
    for r in range(4): e(f"v_mov_b32 v{ONES+r}, 0x3f803f80")
    e(f"s_lshr_b32 s{SHI}, s2, 4"); e(f"s_and_b32 s{SLO}, s2, 15")
    e(f"s_mul_i32 s{sLW}, s{SW}, 6144")
    mask64(mPAR, 0xAAAAAAAAAAAAAAAA); mask64(mB1, 0xCCCCCCCCCCCCCCCC); mask64(mDIAG, 0xF0000F0000F0000F)
    mask64(mM0, 0x0001000100010001); mask64(mM1, 0x2222222222222222)
    own0 = sum(1 << l for l in range(64) if 4*(l >> 4) + (l & 1) <= (l & 15))
    own1 = sum(1 << l for l in range(64) if 4*(l >> 4) + 2 + (l & 1) <= (l & 15))
    mask64(mOWN0, own0); mask64(mOWN1, own1)
    role_addrs(SHI, SLO)
    e("s_waitcnt lgkmcnt(0)")
    e(f"s_mov_b32 s4, s{P_WS}"); e(f"s_mov_b32 s5, s{P_WS+1}"); e(f"s_mov_b32 s6, {WS_SIZE}"); e("s_mov_b32 s7, 0x20000")
    e(f"v_mov_b32 v{vVal}, 0")
    e(f"s_cmp_lg_u32 s{SW}, 0"); e("s_cbranch_scc1 L_p0a")
    e(f"s_lshl_b32 s{T0}, s2, 7"); e(f"s_lshl_b32 s{T1}, s2, 2"); e(f"s_add_u32 s{T1}, s{T1}, {WS_FLAGB}")
    e("s_mov_b64 exec, 1")
    e(f"buffer_store_dword v{vVal}, off, {SRD}, s{T0} sc1"); e(f"buffer_store_dword v{vVal}, off, {SRD}, s{T1} sc1")
    e("s_mov_b64 exec, -1")
    A.label("L_p0a")
    srt(P_AX, 0x400000); e(f"s_mov_b32 s{T0}, 0x8000")
    for i in range(2):
        for kk in range(2):
            e(f"buffer_load_dwordx4 {v(RES+8*i+4*kk,4)}, v{vOut}, {SRT}, {'0' if i == 0 else 's%d' % T0} offen offset:{kk*64}")
    def raw1(p, ldsb):
        srt(p, 0x600000)
        e(f"s_mul_i32 s{T0}, s{SHI}, {64*6144}"); e(f"s_lshl_b32 s{T1}, s{SLO}, 7"); e(f"s_add_u32 s{T0}, s{T0}, s{T1}")
        e(f"s_mul_i32 s{T1}, s{SW}, 6")
        for i in range(6):
            e(f"s_add_u32 s{T2}, s{T1}, {i}"); e(f"s_lshr_b32 s{T3}, s{T2}, 3"); e(f"s_lshl_b32 s{T3}, s{T3}, 11")
            e(f"s_and_b32 s{T2}, s{T2}, 7"); e(f"s_mul_i32 s{T2}, s{T2}, {8*6144}"); e(f"s_add_u32 s{T2}, s{T2}, s{T3}")
            e(f"s_add_u32 m0, s{sLW}, {ldsb + i*1024}"); e(f"s_add_u32 s{T2}, s{T2}, s{T0}")
            e(f"buffer_load_dwordx4 v202, {SRT}, s{T2} offen lds")
    def raw2(p, ldsb):
        srt(p, 0x200000)
        e(f"s_lshl_b32 s{T0}, s{SHI}, 17"); e(f"s_lshl_b32 s{T1}, s{SLO}, 7"); e(f"s_add_u32 s{T0}, s{T0}, s{T1}")
        e(f"s_lshl_b32 s{T1}, s{SW}, 15"); e(f"s_add_u32 s{T0}, s{T0}, s{T1}"); e(f"s_lshl_b32 s{T1}, s{SW}, 11")
        for i in range(2):
            e(f"s_add_u32 m0, s{T1}, {ldsb + i*1024}"); e(f"s_add_u32 s{T2}, s{T0}, {i*16384}")
            e(f"buffer_load_dwordx4 v203, {SRT}, s{T2} offen lds")
    raw1(P_AW1, RAW1A)
    e(f"s_cmp_lg_u32 s{SW}, 0"); e("s_cbranch_scc1 L_p0b")
    srt(P_DBG, 256)
    e(f"s_lshl_b32 s{T0}, s{SXCC}, 4"); e("v_mov_b32 v254, 1")
    e("s_waitcnt vmcnt(10)")
    e("s_mov_b64 exec, 1")
    e(f"buffer_atomic_add v254, off, {SRT}, s{T0} sc0 sc1")
    e("s_mov_b64 exec, -1")
    A.label("L_p0b")
    e(f"s_and_b32 s{T0}, s{SW}, 1"); e(f"s_mul_i32 s{T0}, s{T0}, 3"); e(f"s_lshr_b32 s{T1}, s{SW}, 1")
    for idx in range(3):
        e(f"s_add_u32 s{T2}, s{T0}, {idx}"); e(f"s_lshr_b32 s{T3}, s{T2}, 1"); e(f"s_lshl_b32 s{T3}, s{T3}, 13")
        e(f"s_and_b32 s{T2}, s{T2}, 1"); e(f"s_lshl_b32 s{T2}, s{T2}, 3"); e(f"s_add_u32 s{T2}, s{T2}, s{T3}")
        e(f"s_lshl_b32 s{T3}, s{T1}, 6"); e(f"s_add_u32 s{T2}, s{T2}, s{T3}")
        e(f"v_add_u32 v{207+idx}, s{T2}, v204")
    e(f"s_lshl_b32 s{T2}, s{T1}, 6"); e(f"s_and_b32 s{T3}, s{SW}, 1"); e(f"s_lshl_b32 s{T3}, s{T3}, 3"); e(f"s_add_u32 s{T2}, s{T2}, s{T3}")
    e(f"v_add_u32 v210, s{T2}, v204")
    e(f"s_lshl_b32 s{T5}, s{SLO}, 11"); e(f"s_add_u32 s{T5}, s{T5}, {WS_X0}")
    st_soff(T6, WS_ST0, SLO)
    e("s_waitcnt vmcnt(6)")
    xtile(RES, 160, T5, T6, True)
    def retile1(ldsb, wsb, which, R):
        for idx in range(3):
            for kk in range(2):
                for t in range(2):
                    e(f"ds_read_b64_tr_b16 {v(R+8*idx+4*kk+2*t,2)}, v{207+idx} offset:{ldsb + kk*4096 + t*512}")
        e(f"s_lshl_b32 s{T0}, s{SLO}, 1"); e(f"s_lshr_b32 s{T1}, s{SW}, 1"); e(f"s_add_u32 s{T0}, s{T0}, s{T1}")
        e(f"s_and_b32 s{T1}, s{SW}, 1")
        e(f"s_mul_i32 s{T2}, s{T0}, 196608"); e(f"s_mul_i32 s{T3}, s{SHI}, 12288"); e(f"s_add_u32 s{T2}, s{T2}, s{T3}")
        e(f"s_mul_i32 s{T4}, s{T1}, 3072"); e(f"s_add_u32 s{T2}, s{T2}, s{T4}"); e(f"s_add_u32 s{T2}, s{T2}, {wsb}")
        e(f"s_add_u32 s{T4}, s{T2}, 6144")
        e(f"s_mul_i32 s{T0}, s{T0}, 384"); e(f"s_add_u32 s{T0}, s{T0}, s{T3}"); e(f"s_mul_i32 s{T1}, s{T1}, 192")
        e(f"s_add_u32 s{T0}, s{T0}, s{T1}"); e(f"s_add_u32 s{T0}, s{T0}, {WS_CS + which*196608}")
        e("s_waitcnt lgkmcnt(0)")
        for idx in range(3):
            for kk in range(2):
                e(f"buffer_store_dwordx4 {v(R+8*idx+4*kk,4)}, v{vL16}, {SRD}, s{T2 if kk == 0 else T4} offen offset:{idx*1024} sc1")
        for kk in range(2):
            for idx in range(3):
                e(f"{MF} {v(R+24+4*idx,4)}, {v(R+8*idx+4*kk,4)}, {v(ONES,4)}, {'0' if kk == 0 else v(R+24+4*idx,4)}")
        e(f"s_mov_b64 exec, s[{mM0}:{mM0+1}]")
        for idx in range(3):
            e(f"buffer_store_dwordx4 {v(R+24+4*idx,4)}, v{vG16}, {SRD}, s{T0} offen offset:{idx*64} sc1")
        e("s_mov_b64 exec, -1")
    def retile2(ldsb, wsb, R):
        for kk in range(2):
            for t in range(2):
                e(f"ds_read_b64_tr_b16 {v(R+4*kk+2*t,2)}, v210 offset:{ldsb + kk*4096 + t*512}")
        e(f"s_lshl_b32 s{T0}, s{SLO}, 17"); e(f"s_lshl_b32 s{T1}, s{SHI}, 13"); e(f"s_add_u32 s{T0}, s{T0}, s{T1}")
        e(f"s_lshl_b32 s{T1}, s{SW}, 10"); e(f"s_add_u32 s{T0}, s{T0}, s{T1}"); e(f"s_add_u32 s{T0}, s{T0}, {wsb}")
        e(f"s_add_u32 s{T1}, s{T0}, 4096")
        e("s_waitcnt lgkmcnt(0)")
        for kk in range(2):
            e(f"buffer_store_dwordx4 {v(R+4*kk,4)}, v{vL16}, {SRD}, s{T0 if kk == 0 else T1} offen sc1")
    e("s_waitcnt vmcnt(6)"); e("s_barrier")
    stamp(13)
    retile1(RAW1A, WS_W1A, 0, 64)
    raw1(P_BW1, RAW1B); raw2(P_AW2, RAW2A); raw2(P_BW2, RAW2B)
    e(f"v_mov_b32 v{vVal}, 1")
    e("s_waitcnt vmcnt(10)"); e("s_barrier")
    e(f"s_cmp_lg_u32 s{SW}, 0"); e("s_cbranch_scc1 L_p0c")
    e(f"s_lshl_b32 s{T0}, s2, 7")
    e("s_mov_b64 exec, 1"); e(f"buffer_store_dword v{vVal}, off, {SRD}, s{T0} sc1"); e("s_mov_b64 exec, -1")
    A.label("L_p0c")
    stamp(14)
    for r in range(4): e(f"v_mov_b32 v{100+r}, -1")
    e(f"s_lshl_b32 s{T0}, s2, 2"); e(f"s_add_u32 s{T0}, s{T0}, s{SW}")
    e(f"s_mul_i32 s{T1}, s{T0}, 5120"); e(f"s_add_u32 s{T1}, s{T1}, {WS_HALO}"); e(f"s_add_u32 s{T2}, s{T1}, 4096")
    e(f"s_lshl_b32 s{T0}, s{T0}, 8"); e(f"s_add_u32 s{T0}, s{T0}, {WS_ZP}")
    e(f"v_lshrrev_b32 v104, 2, v{vL16}")
    for i in range(4): e(f"buffer_store_dwordx4 v[100:103], v{vL16}, {SRD}, s{T1} offen offset:{i*1024} sc1")
    e(f"buffer_store_dwordx4 v[100:103], v{vL16}, {SRD}, s{T2} offen sc1")
    e(f"buffer_store_dword v100, v104, {SRD}, s{T0} offen sc1")
    e("s_waitcnt vmcnt(6)"); e("s_barrier")
    retile1(RAW1B, WS_W1B, 1, 108)
    retile2(RAW2A, WS_W2A, 144); retile2(RAW2B, WS_W2B, 152)
    e(f"s_cmp_lg_u32 s{SW}, 0"); e("s_cbranch_scc1 L_p0d")
    srt(P_DBG, 256)
    e("v_lshlrev_b32 v200, 4, v0"); e(f"v_readfirstlane_b32 s{T5}, v254")
    e(f"s_mov_b32 s{sTMO}, 0")
    A.label("L_tk")
    e(f"buffer_load_dword v201, v200, {SRT}, 0 offen sc1")
    e("s_waitcnt vmcnt(0)")
    for x in range(16): e(f"v_readlane_b32 s{sC0+x}, v201, {x}")
    e(f"s_mov_b32 s{T0}, 0"); e(f"s_mov_b32 s{T1}, 0"); e(f"s_mov_b32 s{T2}, 0")
    for x in range(16):
        e(f"s_add_u32 s{T0}, s{T0}, s{sC0+x}"); e(f"s_or_b32 s{T1}, s{T1}, s{sC0+x}")
        e(f"s_cmp_gt_u32 s{SXCC}, {x}"); e(f"s_cselect_b32 s{T3}, s{sC0+x}, 0"); e(f"s_add_u32 s{T2}, s{T2}, s{T3}")
    e(f"s_cmp_ge_u32 s{T0}, 256"); e("s_cbranch_scc1 L_tkd")
    e(f"s_add_u32 s{sTMO}, s{sTMO}, 1"); e(f"s_cmp_lt_u32 s{sTMO}, 0x100000"); e("s_cbranch_scc1 L_tk")
    A.label("L_tkd")
    e(f"s_add_u32 s{T2}, s{T2}, s{T5}"); e(f"s_and_b32 s{T2}, s{T2}, 255"); e(f"s_and_b32 s{T1}, s{T1}, 31")
    if o.force_slow:
        e(f"s_mov_b32 s{T2}, s2"); e(f"s_mov_b32 s{T1}, 1")
    e(f"v_mov_b32 v200, s{T2}"); e(f"v_mov_b32 v201, s{T1}"); e(f"v_mov_b32 v202, {M_ROLE}")
    e("ds_write_b64 v202, v[200:201]")
    e("s_waitcnt lgkmcnt(0)")
    A.label("L_p0d")
    e("s_barrier")
    e(f"v_mov_b32 v202, {M_ROLE}"); e("ds_read_b64 v[200:201], v202"); e("s_waitcnt lgkmcnt(0)")
    e(f"v_readfirstlane_b32 s{T0}, v200"); e(f"v_readfirstlane_b32 s{SMODE}, v201")
    e(f"s_lshr_b32 s{SGRP}, s{T0}, 5"); e(f"s_and_b32 s{SMEM}, s{T0}, 31")
    e(f"s_lshr_b32 s{SRB}, s{T0}, 4"); e(f"s_and_b32 s{SCB}, s{T0}, 15")
    role_addrs(SRB, SCB)
    e(f"s_lshl_b32 s{T0}, s{SGRP}, 2"); e(f"s_add_u32 s{T0}, s{T0}, s{SW}")
    e(f"s_lshl_b32 s{T1}, s{T0}, 17"); e(f"v_add_u32 v{vA}, s{T1}, v{vL16}")
    for i in range(1, 4): e(f"v_add_u32 v{vA+i}, {i*0x8000}, v{vA}")
    e(f"s_lshl_b32 s{T1}, s{T0}, 10"); e(f"v_add_u32 v{vSTl}, s{T1}, v{vL16}")
    e(f"s_lshl_b32 s{T1}, s{T0}, 7"); e(f"s_add_u32 s{sFXc}, s{T1}, {WS_FLAGX}")
    e(f"s_lshl_b32 s{T2}, s{SMEM}, 2"); e(f"s_add_u32 s{T1}, s{T1}, s{T2}"); e(f"s_add_u32 s{sFOp}, s{T1}, {WS_FLAGO}")
    e(f"s_lshl_b32 s{T1}, s{SRB}, 1"); e(f"s_lshr_b32 s{T2}, s{SW}, 1"); e(f"s_add_u32 s{T1}, s{T1}, s{T2}"); e(f"s_lshl_b32 s{T1}, s{T1}, 7")
    e(f"s_add_u32 s{sFOc}, s{T1}, {WS_FLAGO}")
    e(f"s_lshl_b32 s{T2}, s{SCB}, 3"); e(f"s_and_b32 s{T3}, s{SW}, 1"); e(f"s_lshl_b32 s{T4}, s{T3}, 2")
    e(f"s_add_u32 s{T1}, s{T1}, s{T2}"); e(f"s_add_u32 s{T1}, s{T1}, s{T4}"); e(f"s_add_u32 s{sFXp}, s{T1}, {WS_FLAGX}")
    e(f"v_mov_b32 v200, 0")
    e("s_mov_b64 exec, 1")
    e(f"buffer_store_dword v200, off, {SRD}, s{sFOp} sc1"); e(f"buffer_store_dword v200, off, {SRD}, s{sFXp} sc1")
    e("s_mov_b64 exec, -1")
    srt(P_PHI, 0x10000)
    e(f"s_lshl_b32 s{T1}, s{T3}, 10"); e(f"s_add_u32 m0, s{T1}, {M_PHI}"); e(f"s_lshl_b32 s{T2}, s{SMEM}, 11"); e(f"s_add_u32 s{T1}, s{T1}, s{T2}")
    e(f"buffer_load_dwordx4 v{vL16}, {SRT}, s{T1} offen lds")
    e(f"s_mul_i32 s{T1}, s{SMEM}, 196608"); e(f"s_add_u32 s{T1}, s{T1}, s{sLW}"); e(f"v_add_u32 v{vW1}, s{T1}, v{vL16}")
    e(f"s_lshl_b32 s{T1}, s{SCB}, 17"); e(f"s_add_u32 s{T1}, s{T1}, s{sLW}"); e(f"v_add_u32 v{vW2}, s{T1}, v{vL16}")
    e(f"s_lshl_b32 s{T1}, s{SMEM}, 10"); e(f"s_add_u32 s{sO}, s{T1}, {WS_O}")
    e(f"s_lshl_b32 s{T1}, s{SCB}, 11"); e(f"s_add_u32 s{sXs}, s{T1}, {WS_X}")
    st_soff(sSTs, WS_ST1, SCB)
    e(f"s_mov_b32 s{sW1}, {WS_W1A}"); e(f"s_mov_b32 s{sW2}, {WS_W2A}"); e(f"s_mov_b32 s{sX}, {WS_X0}"); e(f"s_mov_b32 s{sST}, {WS_ST0}")
    e(f"s_lshl_b32 s{T1}, s{SMEM}, 16"); e(f"s_lshl_b32 s{T2}, s{SW}, 11"); e(f"s_add_u32 s{T1}, s{T1}, s{T2}"); e(f"s_add_u32 s{sKV}, s{T1}, {WS_KVP}")
    e(f"s_lshr_b32 s{T1}, s{T1}, 5"); e(f"s_add_u32 s{sZP}, s{T1}, {WS_ZP}")
    e(f"s_lshl_b32 s{T1}, s{SGRP}, 5"); e(f"s_add_u32 s{T1}, s{T1}, s{SMEM}"); e(f"s_lshl_b32 s{T1}, s{T1}, 11"); e(f"s_add_u32 s{sHALO}, s{T1}, {WS_HALO}")
    e(f"s_and_b32 s{T3}, s{SW}, 1"); e(f"s_lshr_b32 s{T4}, s{SW}, 1"); e(f"s_lshl_b32 s{T5}, s{SW}, 12")
    e(f"v_and_b32 v200, 16, v{vG16}"); e("v_lshlrev_b32 v200, 3, v200"); e(f"v_xor_b32 v200, v200, v{vL16}"); e(f"v_add_u32 v{vXW}, s{T5}, v200")
    e(f"s_lshl_b32 s{T0}, s{T4}, 14"); e(f"s_lshl_b32 s{T1}, s{T3}, 3"); e(f"s_add_u32 s{T2}, s{T0}, s{T1}"); e(f"v_add_u32 v{vE0}, s{T2}, v{vTR}")
    e(f"s_xor_b32 s{T2}, s{T2}, 8"); e(f"v_add_u32 v{vE1}, s{T2}, v{vTR}")
    e(f"v_add_u32 v{vGM}, {M}, v{vG16}")
    e(f"s_lshl_b32 s{T0}, s{T4}, 9"); e(f"v_add_u32 v{vRSR}, s{T0}, v{vGM}")
    e(f"s_lshl_b32 s{T0}, s{T4}, 6"); e(f"s_add_u32 s{T0}, s{T0}, s{T1}"); e(f"v_add_u32 v{vZW}, s{T0}, v{vGM}")
    e("v_lshrrev_b32 v200, 2, v0"); e("v_lshlrev_b32 v200, 4, v200"); e("v_and_b32 v201, 3, v0"); e("v_lshl_add_u32 v200, v201, 1, v200")
    e(f"s_lshl_b32 s{T0}, s{SW}, 7"); e(f"s_add_u32 s{T0}, s{T0}, {M_RS}"); e(f"v_add_u32 v{vRSW}, s{T0}, v200")
    e(f"v_add_u32 v{vVo}, s{T5}, v{vTR}")
    e(f"s_add_u32 s{T0}, s{T5}, {VB_LDS - 1024}"); e(f"s_cmp_eq_u32 s{SW}, 0"); e(f"s_cselect_b32 s{T0}, {M_HV}, s{T0}"); e(f"v_add_u32 v{vVp}, s{T0}, v{vTR}")
    e(f"s_lshl_b32 s{T0}, s{SW}, 10"); e(f"s_add_u32 s{T0}, s{T0}, {M_KX}"); e(f"v_add_u32 v{vKX}, s{T0}, v{vL16}")
    e(f"s_lshl_b32 s{T0}, s{SW}, 9"); e(f"s_add_u32 s{T0}, s{T0}, {M_ST}")
    e(f"v_lshrrev_b32 v200, 1, v{vL16}"); e(f"v_add_u32 v{vSW}, s{T0}, v200"); e(f"v_lshl_add_u32 v{vSR}, v0, 3, s{T0}")
    e("v_mov_b32 v200, 0xffff"); e("v_mov_b32 v201, 0xffff0000"); e(f"v_cndmask_b32 v200, v200, v201, s[{mPAR}:{mPAR+1}]")
    e(f"v_cndmask_b32 v{MO0}, 0, v200, s[{mOWN0}:{mOWN0+1}]"); e(f"v_cndmask_b32 v{MO1}, 0, v200, s[{mOWN1}:{mOWN1+1}]")
    e(f"v_xor_b32 v{MP0}, v200, v{MO0}"); e(f"v_xor_b32 v{MP1}, v200, v{MO1}")
    e(f"s_or_b32 s{T0}, s{SGRP}, s{SW}"); e(f"s_cmp_eq_u32 s{T0}, 0"); e(f"s_cselect_b64 s[{mFIRST}:{mFIRST+1}], -1, 0")
    e(f"s_cmp_lg_u32 s{SW}, 0"); e("s_cbranch_scc1 L_p0e")
    e(f"s_lshl_b32 s{T0}, s{SGRP}, 5"); e(f"v_lshrrev_b32 v200, 4, v{vL16}"); e(f"v_add_u32 v200, s{T0}, v200")
    e(f"s_lshr_b32 s{T0}, s{SMEM}, 1"); e(f"v_lshl_add_u32 v201, v0, 4, s{T0}")
    e(f"v_cmp_gt_u32 s[{T1}:{T1+1}], 32, v{vG16}"); e(f"v_cndmask_b32 v200, v201, v200, s[{T1}:{T1+1}]"); e("v_lshlrev_b32 v200, 7, v200")
    e(f"s_mov_b32 s{T3}, 0"); e(f"s_mov_b32 s{T4}, 1")
    poll_ge(200, T3, T4, 201)
    A.label("L_p0e")
    e("s_waitcnt vmcnt(0)"); e("s_barrier")
    e(f"s_cmp_lg_u32 s{SW}, 0"); e("s_cbranch_scc1 L_p0f")
    e(f"s_lshl_b32 s{T1}, s2, 2"); e(f"s_add_u32 s{T1}, s{T1}, {WS_FLAGB}")
    e("s_mov_b64 exec, 1"); e(f"buffer_store_dword v{vVal}, off, {SRD}, s{T1} sc1"); e("s_mov_b64 exec, -1")
    A.label("L_p0f")
    stamp(15)
    cs_load(0, 192)
    for st in range(o.npre):
        for i in range(6):
            for t in w1_piece(st, i): e(t)
    e(f"s_lshl_b32 s{T0}, s{SCB}, 11"); e(f"s_add_u32 s{T0}, s{T0}, {WS_X0}")
    for i in range(2):
        for kk in range(2):
            e(f"buffer_load_dwordx4 {v(RES+8*i+4*kk,4)}, v{vB+i}, {SRD}, s{T0} offen offset:{kk*1024} sc1")
    for fb in range(2):
        for t in range(2):
            e(f"ds_read_b64_tr_b16 {v(PHI+4*fb+2*t,2)}, v205 offset:{fb*32 + t*256}")
    e(f"s_waitcnt vmcnt({6*o.npre + 4})")
    cs_proc(0, 192)
    e("s_waitcnt lgkmcnt(0)")

    A.label("L_g1")
    stamp(0)
    WF = 0; AF = 32; AD = o.adepth
    q = [("W", st) for st in range(o.npre) for i in range(6)]
    def waitfor(tags):
        idx = max([i for i, t in enumerate(q) if t in tags], default=-1)
        if idx < 0: return []
        n = len(q) - 1 - idx
        del q[:idx+1]
        return [f"s_waitcnt vmcnt({min(n, 63)})"]
    def aload(step, i):
        d = AF + 16*(step % AD) + 4*i
        r = []
        if i == 0 and step % 4 == 0: r.append(f"s_add_u32 s{sAo}, s{sX}, {step*1024}")
        return r + [f"buffer_load_dwordx4 {a(d,4)}, v{vA+i}, {SRD}, s{sAo} offen offset:{(step%4)*1024} sc1"]
    for st in range(AD-1):
        for i in range(4):
            for t in aload(st, i): e(t)
            q.append(("A", st))
    for t in waitfor({("W", 0)}): e(t)
    e("s_barrier")
    def w1rd(step, c):
        return ldsrd(a(WF+4*c, 4), ((step//4 + 1) % 6)*SLOT + (step % 4)*6144 + c*1024)
    for c in range(6): e(w1rd(0, c))
    pend = [("W", st, i) for st in range(o.npre, 8) for i in range(6)] + [("W2", p, i) for p in range(3) for i in range(6)]
    def allowed(p, step):
        if p[0] == "W": return p[1] < 6 or step >= 4*(p[1]-5) + 3
        return step >= 4*(p[1]+3) + 3
    for step in range(32):
        stage = step // 4
        fill = []; pre = []
        pre += waitfor({("A", step)})
        if step % 4 == 3 and stage < 7:
            pre += waitfor({("W", stage+1)}); pre += ["s_barrier"]
        if step + AD - 1 < 32:
            for i in range(4): fill.append(aload(step+AD-1, i)); q.append(("A", step+AD-1))
        n = 0
        while pend and allowed(pend[0], step) and n < 2:
            p = pend.pop(0); n += 1
            fill.append(w1_piece(p[1], p[2]) if p[0] == "W" else w2_piece(p[1], p[2])); q.append((p[0], p[1]))
        if step == 8:
            fill.append([f"s_mov_b32 s{T0}, {WS_FLAGB}", f"buffer_load_dwordx4 v[192:195], v{vL16}, {SRD}, s{T0} offen sc1"]); q.append(("F", 0))
        if 20 <= step < 28:
            j = step - 20
            fill.append([f"s_add_u32 s{T0}, s{sST}, {j*32768}", f"buffer_load_dwordx4 {v(160+4*j,4)}, v{vSTl}, {SRD}, s{T0} offen sc1"]); q.append(("S", j))
        if step == 14:
            pre += waitfor({("F", 0)})
            fill.append(["L_fbchk:", "v_and_b32 v192, v192, v193", "v_and_b32 v194, v194, v195"])
            fill.append(["v_and_b32 v192, v192, v194", "v_cmp_ne_u32 vcc, 1, v192"])
            fill.append(["s_cbranch_vccnz L_fbslow", "L_fbok:"])
        for t in pre: e(t)
        nf = len(fill)
        slots = {}
        for j in range(nf): slots.setdefault(int((j + 0.3) * 24 / nf), []).append(j)
        a0 = AF + 16*(step % AD)
        seq = [(c, i) for c in range(6) for i in (range(4) if c % 2 == 0 else reversed(range(4)))]
        for n, (c, i) in enumerate(seq):
            if n % 4 == 0: e(f"s_waitcnt lgkmcnt({5 if step < 31 else 5-c})")
            e(f"{MF} {v(acc(c,i),4)}, {a(WF+4*c,4)}, {a(a0+4*i,4)}, {'0' if step == 0 else v(acc(c,i),4)}")
            if n % 4 == 3 and step < 31: e(w1rd(step+1, c))
            for j in slots.get(n, []):
                for t in fill[j]:
                    if t.endswith(":"):
                        if t != "L_fbchk:": A.label(t[:-1])
                    else: e(t)
    assert not pend
    def fbslow():
        A.label("L_fbslow")
        e(f"s_mov_b32 s{sTMO}, 0"); e(f"s_mov_b32 s{T0}, {WS_FLAGB}")
        A.label("L_fbl")
        e(f"buffer_load_dwordx4 v[192:195], v{vL16}, {SRD}, s{T0} offen sc1"); e("s_waitcnt vmcnt(0)")
        e("v_and_b32 v192, v192, v193"); e("v_and_b32 v194, v194, v195"); e("v_and_b32 v192, v192, v194"); e("v_cmp_ne_u32 vcc, 1, v192")
        e("s_cbranch_vccz L_fbok")
        e(f"s_add_u32 s{sTMO}, s{sTMO}, 1"); e(f"s_cmp_lt_u32 s{sTMO}, 0x100000"); e("s_cbranch_scc1 L_fbl")
        e("s_branch L_fbok")
    ool.append(fbslow)
    stamp(1)
    for t in waitfor({("S", 7)}): e(t)
    for st in (16, 8, 4, 2):
        for r in range(0, st, 2): e(f"v_pk_add_f32 {v(160+r,2)}, {v(160+r,2)}, {v(160+r+st,2)}")
    e(f"v_mul_f32 v163, {f32hex(-1.0/1024)}, v160")
    e(f"v_mul_f32 v161, {f32hex(1.0/1024)}, v161")
    e("v_fma_f32 v161, -v163, v163, v161"); e("v_max_f32 v161, 0, v161"); e(f"v_add_f32 v161, {f32hex(1e-5)}, v161")
    e("v_rsq_f32 v162, v161")
    e(f"s_and_b32 s{T0}, s{SLAY}, 1"); e(f"s_mul_i32 s{T1}, s{T0}, 384"); e(f"v_add_u32 v192, s{T1}, v{vGM}")
    e(f"ds_write_b64 v{vSW}, v[162:163]")
    for i in range(4): e(f"ds_read_b64 {v(STP+2*i,2)}, v{vSR} offset:{i*128}")
    for c in range(6): e(f"ds_read_b128 {v(CSR+4*c,4)}, v192 offset:{M_CS-M+c*64}")
    e("s_barrier")
    e("s_waitcnt lgkmcnt(0)")
    e(f"s_cmp_lg_u32 s{T0}, 0"); e("s_cbranch_scc1 L_epiB")
    def fixmean(c, i):
        for h in range(2): pk_fma(acc(c,i)+2*h, CSR+4*c+2*h, STP+2*i+1, ('p', acc(c,i)+2*h))
    def fixrstd(c, i):
        for h in range(2): pk_mul(acc(c,i)+2*h, acc(c,i)+2*h, STP+2*i)

    CI = 204
    def features(c0, F, tmp, mid=None):
        for i in range(4):
            fixmean(c0, i); fixmean(c0+1, i)
        for i in range(4): cvt4(F+4*i, acc(c0,i), acc(c0+1,i))
        for i in range(4):
            for fb in range(2): e(f"{MF} {v(acc(c0+fb,i),4)}, {v(PHI+4*fb,4)}, {v(F+4*i,4)}, 0")
        if mid: mid()
        MX, MN = tmp, tmp+4
        for i in range(4):
            p0, p1 = acc(c0,i), acc(c0+1,i)
            for op, op2, d in (("v_max3_f32", "v_max_f32", MX+i), ("v_min3_f32", "v_min_f32", MN+i)):
                e(f"{op} v{d}, v{p0}, v{p0+1}, v{p0+2}"); e(f"{op} v{d}, v{d}, v{p0+3}, v{p1}")
                e(f"{op} v{d}, v{d}, v{p1+1}, v{p1+2}"); e(f"{op2} v{d}, v{d}, v{p1+3}")
        xreduce([("v_max_f32", [MX, MX+1, MX+2, MX+3], None), ("v_min_f32", [MN, MN+1, MN+2, MN+3], None)])
        for i in range(4):
            e(f"v_mul_f32 v{MX+i}, -v{MX+i}, v{CI+i}"); e(f"v_mul_f32 v{MN+i}, v{MN+i}, v{CI+i}")
        for i in range(4):
            for fb in range(2):
                for h in range(2):
                    pk_fma(224+8*i+4*fb+2*h, acc(c0+fb,i)+2*h, CI+i, ('b', MX+i))
                    pk_fma(acc(c0+fb,i)+2*h, acc(c0+fb,i)+2*h, CI+i, ('b', MN+i), negx=True)
        for i in range(4):
            for r in range(8): e(f"v_exp_f32 v{224+8*i+r}, v{224+8*i+r}")
            for fb in range(2):
                for r in range(4): e(f"v_exp_f32 v{acc(c0+fb,i)+r}, v{acc(c0+fb,i)+r}")
            cvt4(F+4*i, 224+8*i, 224+8*i+4)
            cvt4(224+8*i, acc(c0,i), acc(c0+1,i))
    CI = 220
    for i in range(4): e(f"v_mul_f32 v{CI+i}, {LOG2E}, v{STP+2*i}")
    def vmid():
        for i in range(4): fixmean(4, i); fixmean(5, i)
    features(2, 192, 208, vmid)
    for i in range(4):
        e(f"{MF} {v(acc(2,i),4)}, {v(ONES,4)}, {v(192+4*i,4)}, 0")
        e(f"{MF} {v(acc(3,i),4)}, {v(ONES,4)}, {v(224+8*i,4)}, 0")
        e(f"ds_write_b128 v{vXW}, {v(192+4*i,4)} offset:{i*1024}")
        e(f"ds_write_b128 v{vXW}, {v(224+8*i,4)} offset:{16384 + i*1024}")
    for i in range(4):
        e(f"v_rcp_f32 v{208+2*i}, v{acc(2,i)}"); e(f"v_rcp_f32 v{209+2*i}, v{acc(3,i)}")
    for i in range(4):
        e(f"v_cvt_pk_bf16_f32 v{216+i}, v{208+2*i}, v{209+2*i}")
        pk_mul(208+2*i, 208+2*i, STP+2*i)
    for i in range(4):
        off = (i >> 1)*64 + (i & 1)*8
        e(f"ds_write_b16 v{vRSW}, v{216+i} offset:{off}"); e(f"ds_write_b16_d16_hi v{vRSW}, v{216+i} offset:{off+512}")
    for i in range(4):
        for b in range(2):
            for h in range(2):
                pk_mul(acc(2+b,i)+2*h, acc(4+b,i)+2*h, 208+2*i)
                pk_mul(acc(4+b,i)+2*h, acc(4+b,i)+2*h, 209+2*i)
        cvt4(228+8*i, acc(2,i), acc(3,i))
        cvt4(192+4*i, acc(4,i), acc(5,i))
        e(f"ds_write_b128 v{vXW}, {v(228+8*i,4)} offset:{32768 + i*1024}")
        e(f"ds_write_b128 v{vXW}, {v(192+4*i,4)} offset:{49152 + i*1024}")
    e("s_waitcnt lgkmcnt(0)"); e("s_barrier")
    stamp(2)
    def kvreads(p):
        b = 16*p
        for t in range(2):
            e(f"ds_read_b64_tr_b16 {a(b+2*t,2)}, v{vE0} offset:{(2*p+t)*1024}")
            e(f"ds_read_b64_tr_b16 {a(b+4+2*t,2)}, v{vE1} offset:{(2*p+t)*1024}")
            e(f"ds_read_b64_tr_b16 {a(b+8+2*t,2)}, v{vE0} offset:{32768 + (2*p+t)*1024}")
        e(f"ds_read_b128 {a(b+12,4)}, v{vRSR} offset:{M_RS-M + p*64}")
    kvreads(0); kvreads(1)
    for p in range(8):
        if p + 2 < 8:
            e("s_waitcnt lgkmcnt(7)")
        else: e(f"s_waitcnt lgkmcnt({7*(7-p)})")
        b = 16*p
        e(f"{MF} v[192:195], {a(b,4)}, {a(b+8,4)}, {'0' if p == 0 else 'v[192:195]'}")
        e(f"{MF} v[196:199], {a(b+4,4)}, {a(b+8,4)}, {'0' if p == 0 else 'v[196:199]'}")
        e(f"{MF} v[200:203], {a(b,4)}, {a(b+12,4)}, {'0' if p == 0 else 'v[200:203]'}")
        if p + 2 < 8: kvreads(p+2)
    e(f"s_lshl_b32 s{T0}, s{SGRP}, 13"); e(f"s_add_u32 s{T0}, s{T0}, s{sKV}"); e(f"s_and_b32 s{T1}, s{SW}, 1"); e(f"s_lshl_b32 s{T1}, s{T1}, 10")
    e(f"s_add_u32 s{T2}, s{T0}, s{T1}"); e(f"s_xor_b32 s{T1}, s{T1}, 1024"); e(f"s_add_u32 s{T3}, s{T0}, s{T1}")
    e(f"s_lshl_b32 s{T4}, s{SGRP}, 8"); e(f"s_add_u32 s{T4}, s{T4}, s{sZP}")
    e(f"buffer_store_dwordx4 v[192:195], v{vL16}, {SRD}, s{T2} offen sc1")
    e(f"buffer_store_dwordx4 v[196:199], v{vL16}, {SRD}, s{T3} offen sc1")
    e(f"s_mov_b64 exec, s[{mM0}:{mM0+1}]")
    e(f"buffer_store_dwordx4 v[200:203], v{vG16}, {SRD}, s{T4} offen sc1")
    e("s_mov_b64 exec, -1")
    e("s_barrier")
    w2_late()
    stamp(3)
    features(0, 204, 96)
    stamp(4)
    e(f"s_mov_b32 s{sTMO}, 0")
    A.label("L_kvpoll")
    for p in range(8):
        e(f"s_add_u32 s{T0}, s{sKV}, {p*8192}")
        e(f"buffer_load_dwordx4 {v(64+12*p,4)}, v{vL16}, {SRD}, s{T0} offen sc1")
        e(f"buffer_load_dwordx4 {v(68+12*p,4)}, v{vL16}, {SRD}, s{T0} offen offset:1024 sc1")
        e(f"buffer_load_dwordx4 {v(72+12*p,4)}, v{vG16}, {SRD}, s{sZP} offen offset:{p*256} sc1")
    for p in range(8):
        e(f"s_waitcnt vmcnt({3*(7-p)})")
        e(f"v_max3_u32 v{192+p}, v{64+12*p}, v{68+12*p}, v{72+12*p}")
        if p:
            for r in range(0, 12, 2): e(f"v_pk_add_f32 {v(64+r,2)}, {v(64+r,2)}, {v(64+12*p+r,2)}")
    e("v_max3_u32 v192, v192, v193, v194"); e("v_max3_u32 v195, v195, v196, v197"); e("v_max3_u32 v192, v192, v198, v199"); e("v_max_u32 v192, v192, v195")
    e("v_cmp_eq_u32 vcc, -1, v192"); e("s_cbranch_vccz L_kvok")
    e(f"s_add_u32 s{sTMO}, s{sTMO}, 1"); e(f"s_cmp_lt_u32 s{sTMO}, 0x40000"); e("s_cbranch_scc1 L_kvpoll")
    A.label("L_kvok")
    cvt4(192, 64, 68)
    e("v_cvt_pk_bf16_f32 v196, v72, v73"); e("v_cvt_pk_bf16_f32 v197, v74, v75")
    e(f"ds_write_b128 v{vKX}, v[192:195]")
    e(f"ds_write_b64 v{vZW}, v[196:197] offset:{M_ZF-M}")
    e("s_waitcnt lgkmcnt(0)"); e("s_barrier")
    stamp(5)
    for j in range(4): e(ldsrd(v(168+4*j,4), M_KX + j*1024))
    for t in range(2): e(f"ds_read_b128 {v(184+4*t,4)}, v{vGM} offset:{M_ZF-M + t*64}")
    e(f"s_add_u32 s{sKV}, s{sKV}, 0x200000"); e(f"s_add_u32 s{sZP}, s{sZP}, 0x10000")
    e("s_waitcnt lgkmcnt(0)")
    for r in range(8): e(f"v_cndmask_b32 v{184+r}, v{184+r}, v{ONES}, s[{mM1}:{mM1+1}]")
    for i in range(4):
        b = 64+24*i; ep, en = v(204+4*i,4), v(224+8*i,4)
        e(f"{MF} {v(b,4)}, v[184:187], {ep}, 0"); e(f"{MF} {v(b+4,4)}, v[188:191], {en}, 0")
        e(f"{MF} {v(b+8,4)}, v[168:171], {ep}, 0"); e(f"{MF} {v(b+12,4)}, v[172:175], {ep}, 0")
        e(f"{MF} {v(b+16,4)}, v[176:179], {en}, 0"); e(f"{MF} {v(b+20,4)}, v[180:183], {en}, 0")
    for i in range(4):
        b = 64+24*i
        e(f"v_rcp_f32 v{b+2}, v{b+1}"); e(f"v_rcp_f32 v{b+3}, v{b+5}")
    for i in range(4):
        b = 64+24*i
        e(f"v_mul_f32 v{b}, v{b}, v{b+2}"); e(f"v_fmac_f32 v{b}, v{b+4}, v{b+3}"); e(f"v_add_f32 v{b}, {f32hex(1e-6)}, v{b}")
    for i in range(4): e(f"v_rcp_f32 v{64+24*i}, v{64+24*i}")
    for i in range(4): pk_mul(64+24*i+2, 64+24*i+2, 64+24*i)
    for i in range(4):
        b = 64+24*i
        for r in range(0, 8, 2): pk_mul(b+8+r, b+8+r, b+2)
        for r in range(0, 8, 2): pk_fma(b+8+r, b+16+r, b+3, ('p', b+8+r))
        cvt4(208+4*i, b+8, b+12)
    e("s_branch L_g2")

    A.label("L_epiB")
    A.fence()
    for i in (3, 2, 1, 0):
        for c in (2, 3, 4, 5): fixmean(c, i)
        for c in (2, 3, 4, 5): fixrstd(c, i)
        cvt4(192+4*i, acc(2,i), acc(3,i)); cvt4(208+4*i, acc(4,i), acc(5,i))
        if i == 3:
            e(f"s_cmp_lg_u32 s{SW}, 3"); e("s_cbranch_scc1 L_nohalo")
            e(f"buffer_store_dwordx4 v[204:207], v{vL16}, {SRD}, s{sHALO} offen sc1")
            e(f"buffer_store_dwordx4 v[220:223], v{vL16}, {SRD}, s{sHALO} offen offset:1024 sc1")
            A.label("L_nohalo")
            e(f"ds_write_b128 v{vKX}, v[204:207] offset:1024")
        e(f"ds_write_b128 v{vXW}, {v(208+4*i,4)} offset:{VB_LDS + i*1024}")
    for i in range(4):
        fixmean(0, i); fixmean(1, i)
        cvt4(224+4*i, acc(0,i), acc(1,i))
        e(f"v_mul_f32 v{240+i}, {f32hex(1.4426950408889634 * 32 ** -0.5)}, v{STP+2*i}")
    e(f"s_cmp_lg_u32 s{SW}, 0"); e("s_cbranch_scc1 L_halod")
    for r in range(8): e(f"v_mov_b32 v{244+r}, 0")
    e(f"s_cmp_eq_u32 s{SGRP}, 0"); e("s_cbranch_scc1 L_halow")
    e(f"s_sub_u32 s{T0}, s{sHALO}, 0x10000"); e(f"s_mov_b32 s{sTMO}, 0")
    A.label("L_halop")
    e(f"buffer_load_dwordx4 v[244:247], v{vL16}, {SRD}, s{T0} offen sc1")
    e(f"buffer_load_dwordx4 v[248:251], v{vL16}, {SRD}, s{T0} offen offset:1024 sc1")
    e("s_waitcnt vmcnt(0)")
    e("v_max_u32 v252, v244, v248"); e("v_cmp_eq_u32 vcc, -1, v252"); e("s_cbranch_vccz L_halow")
    e(f"s_add_u32 s{sTMO}, s{sTMO}, 1"); e(f"s_cmp_lt_u32 s{sTMO}, 0x100000"); e("s_cbranch_scc1 L_halop")
    A.label("L_halow")
    e(f"v_add_u32 v252, {M_HV}, v{vXW}")
    e(f"ds_write_b128 v{vKX}, v[244:247]"); e("ds_write_b128 v252, v[248:251]")
    A.label("L_halod")
    e(f"s_add_u32 s{sHALO}, s{sHALO}, 0x80000")
    e("s_waitcnt lgkmcnt(0)"); e("s_barrier")
    stamp(2)
    e(f"ds_read_b128 v[244:247], v{vKX}")
    for db in range(2):
        e(f"ds_read_b64_tr_b16 {v(64+10*db,2)}, v{vVp} offset:{db*8}")
        for i in range(4): e(f"ds_read_b64_tr_b16 {v(66+10*db+2*i,2)}, v{vVo} offset:{VB_LDS + i*1024 + db*8}")
    w2_late()
    for i in (3, 2, 1, 0):
        if i == 0: e("s_waitcnt lgkmcnt(10)")
        e(f"{MF} {v(96+8*i,4)}, {v(192+4*i,4)}, {v(224+4*i,4)}, 0")
        e(f"{MF} {v(100+8*i,4)}, {v(192+4*(i-1),4) if i else 'v[244:247]'}, {v(224+4*i,4)}, 0")
    e(f"v_mov_b32 v252, {f32hex(-3.0e38)}")
    for i in (3, 2, 1, 0):
        b = 96+8*i
        for r in range(0, 8, 2): e(f"v_cndmask_b32 v{b+r}, v{b+r}, v{b+r+1}, s[{mPAR}:{mPAR+1}]")
        if i == 0:
            e(f"v_cndmask_b32 v{b+4}, v{b+4}, v252, s[{mFIRST}:{mFIRST+1}]"); e(f"v_cndmask_b32 v{b+6}, v{b+6}, v252, s[{mFIRST}:{mFIRST+1}]")
        e(f"v_cndmask_b32 v{128+2*i}, v{b+4}, v{b}, s[{mOWN0}:{mOWN0+1}]")
        e(f"v_cndmask_b32 v{129+2*i}, v{b+6}, v{b+2}, s[{mOWN1}:{mOWN1+1}]")
        e(f"v_max_f32 v{136+i}, v{128+2*i}, v{129+2*i}")
    xreduce([("v_max_f32", [136, 137, 138, 139], None)])
    for i in range(4):
        e(f"v_sub_f32 v{128+2*i}, v{128+2*i}, v{136+i}"); e(f"v_sub_f32 v{129+2*i}, v{129+2*i}, v{136+i}")
    for i in range(4): pk_mul(128+2*i, 128+2*i, 240+i)
    for r in range(8): e(f"v_exp_f32 v{128+r}, v{128+r}")
    for r in range(8): e(f"v_cvt_pk_bf16_f32 v{128+r}, v{128+r}, v{128+r}")
    for i in range(4):
        e(f"v_and_b32 v{192+4*i}, v{128+2*i}, v{MP0}"); e(f"v_and_b32 v{193+4*i}, v{129+2*i}, v{MP1}")
        e(f"v_and_b32 v{194+4*i}, v{128+2*i}, v{MO0}"); e(f"v_and_b32 v{195+4*i}, v{129+2*i}, v{MO1}")
    e("s_waitcnt lgkmcnt(0)")
    for i in range(4): e(f"{MF} {v(144+4*i,4)}, {v(ONES,4)}, {v(192+4*i,4)}, 0")
    for i in range(4):
        for db in range(2): e(f"{MF} {v(96+8*i+4*db,4)}, {v(64+10*db+2*i,4)}, {v(192+4*i,4)}, 0")
    for i in range(4): e(f"v_rcp_f32 v{144+4*i}, v{144+4*i}")
    for i in range(4):
        for r in range(0, 8, 2): pk_mul(96+8*i+r, 96+8*i+r, 144+4*i)
        cvt4(208+4*i, 96+8*i, 100+8*i)

    A.label("L_g2")
    e("s_nop 1")
    st_mode([f"buffer_store_dwordx4 {v(208+4*i,4)}, v{vA+i}, {SRD}, s{sO} offen" for i in range(4)])
    stamp(6)
    for i in range(2):
        for kk in range(2):
            for r in range(4):
                d = acc2(2*kk + (r >> 1), i) + 2*(r & 1); x = RES+8*i+4*kk+r
                e(f"v_lshlrev_b32 v{d}, 16, v{x}"); e(f"v_and_b32 v{d+1}, 0xffff0000, v{x}")
    e(f"s_add_u32 s{T6}, s{SLAY}, 1"); e(f"v_mov_b32 v{vVal}, s{T6}")
    e("s_waitcnt vmcnt(0)")
    e("s_mov_b64 exec, 1")
    st_mode([f"buffer_store_dword v{vVal}, off, {SRD}, s{sFOp}"])
    e("s_mov_b64 exec, -1")
    e("s_barrier")
    stamp(7)
    def w2rd(step, b):
        ad = (3*SLOT + step*4096 if step < 18 else (step-18)*4096) + b*1024
        return ldsrd(a(16*(step % 2) + 4*b, 4), ad)
    for st in range(2):
        for b in range(4): e(w2rd(st, b))
    poll_ge(vFP, sFOc, T6, 192)
    stamp(8)
    GD = o.g2depth
    q = []
    def bload(step, i):
        d = AF + 8*(step % GD) + 4*i; r = []
        if i == 0 and step % 4 == 0: r.append(f"s_mov_b32 s{sAo}, {WS_O + step*1024}")
        return r + [f"buffer_load_dwordx4 {a(d,4)}, v{vB+i}, {SRD}, s{sAo} offen offset:{(step%4)*1024} sc1"]
    for st in range(GD-1):
        for i in range(2):
            for t in bload(st, i): e(t)
            q.append(("A", st))
    for step in range(32):
        for t in waitfor({("A", step)}): e(t)
        a0 = AF + 8*(step % GD)
        for b in range(4):
            rem = 7 if step < 30 else (7 - b if step == 30 else 3 - b)
            e(f"s_waitcnt lgkmcnt({rem})")
            for i in (range(2) if b % 2 == 0 else (1, 0)):
                e(f"{MF} {v(acc2(b,i),4)}, {a(16*(step%2)+4*b,4)}, {a(a0+4*i,4)}, {v(acc2(b,i),4)}")
                if b % 2 == 0 and i == 0 and step + GD - 1 < 32:
                    for t in bload(step+GD-1, b//2): e(t)
                    q.append(("A", step+GD-1))
            if step + 2 < 32: e(w2rd(step+2, b))
    stamp(9)
    for i in range(2):
        for kk in range(2): cvt4(RES+8*i+4*kk, acc2(2*kk,i), acc2(2*kk+1,i))
    e(f"s_cmp_eq_u32 s{SLAY}, {o.last}"); e("s_cbranch_scc1 L_final")
    xtile(RES, 160, sXs, sSTs, False)
    e(f"s_xor_b32 s{sW1}, s{sW1}, {WS_W1A ^ WS_W1B}"); e(f"s_xor_b32 s{sW2}, s{sW2}, {WS_W2A ^ WS_W2B}")
    e(f"s_mov_b32 s{sX}, {WS_X}"); e(f"s_mov_b32 s{sST}, {WS_ST1}")
    e("s_barrier")
    e(f"s_cmp_lg_u32 s{SLAY}, 0"); e("s_cbranch_scc1 L_nocs1")
    cs_load(1, 192)
    A.label("L_nocs1")
    for st in range(o.npre):
        for i in range(6):
            for t in w1_piece(st, i): e(t)
    e(f"s_waitcnt vmcnt({6*o.npre})")
    e("s_mov_b64 exec, 1")
    st_mode([f"buffer_store_dword v{vVal}, off, {SRD}, s{sFXp}"])
    e("s_mov_b64 exec, -1")
    stamp(10)
    e(f"s_cmp_lg_u32 s{SLAY}, 0"); e("s_cbranch_scc1 L_nocs2")
    cs_proc(1, 192)
    e("s_waitcnt lgkmcnt(0)")
    A.label("L_nocs2")
    poll_ge(vFP, sFXc, T6, 192)
    e(f"s_add_u32 s{SLAY}, s{SLAY}, 1")
    e("s_branch L_g1")
    A.label("L_final")
    srt(P_OUT, 0x400000); e(f"s_mov_b32 s{T0}, 0x8000")
    for i in range(2):
        for kk in range(2):
            e(f"buffer_store_dwordx4 {v(RES+8*i+4*kk,4)}, v{vOut}, {SRT}, {'0' if i == 0 else 's%d' % T0} offen offset:{kk*64}")
    if o.stamps:
        e("s_waitcnt vmcnt(0)")
        stamp(10)
        e(f"s_lshl_b32 s{T0}, s{SGRP}, 5"); e(f"s_add_u32 s{T0}, s{T0}, s{SMEM}"); e(f"s_lshl_b32 s{T0}, s{T0}, 2"); e(f"s_add_u32 s{T0}, s{T0}, s{SW}")
        e(f"s_lshl_b32 s{T0}, s{T0}, 8"); e(f"s_add_u32 s{T0}, s{T0}, {WS_STAMPS}")
        e(f"v_lshrrev_b32 v200, 2, v{vL16}")
        e(f"buffer_store_dword v{vSTAMP}, v200, {SRD}, s{T0} offen")
    e("s_endpgm")
    for blk in ool: blk()
    A.label("L_codeend")
    e("s_endpgm")
    A.raw('.section .rodata,"a"'); A.raw(".p2align 6"); A.raw(f".amdhsa_kernel {KNAME}")
    for t in ("next_free_vgpr 512", "next_free_sgpr 102", "accum_offset 256", "group_segment_fixed_size 0", "kernarg_size 80",
              "user_sgpr_count 2", "user_sgpr_kernarg_segment_ptr 1", "system_sgpr_workgroup_id_x 1"):
        A.raw("  .amdhsa_" + t)
    A.raw(".end_amdhsa_kernel")
    return A.text()

if __name__ == "__main__":
    o = Opts()
    out = sys.argv[1]
    for kv in sys.argv[2:]:
        k, val = kv.split("=")
        setattr(o, k, int(val))
    open(out, "w").write(gen(o))
```

```python
import sys, struct
from asmlib import *

KNAME = "interleave_layers__linear_kernel_hedgehog__sliding_local_dilated__prompt_kernel"

WS_FLAGA = 0x0000000
WS_FLAGB = 0x0008000
WS_FLAGO = 0x0009000
WS_FLAGX = 0x000A000
WS_CS    = 0x0010000
CS_SZ    = 393216
WS_ST    = 0x0100000
WS_ZP    = 0x0140000
WS_STAMPS= 0x0180000
WS_HALO  = 0x0200000
WS_KVP   = 0x0400000
WS_W1A   = 0x0800000
WS_W1B   = 0x0E00000
WS_W2A   = 0x1400000
WS_W2B   = 0x1600000
WS_X     = 0x1800000
WS_X0    = WS_X
WS_O     = 0x1C00000
WS_SIZE  = 0x10000000
OOR      = 0x40000000

SLOT = 24576
M      = 147456
M_MODE = M
M_CS   = M + 64
M_ST   = M + 1024
M_RS   = M + 3072
M_KX   = M + 4096
M_HV   = M + 9216
M_ZF   = M + 10240
M_PHI  = M + 11264
LDS_SIZE = 163840
VB_LDS = 57344
RAW1A, RAW1B, RAW2 = 3*SLOT, 4*SLOT, 5*SLOT

SRD = "s[4:7]"; SRT = "s[8:11]"
SW, SGRP, SMEM, SMODE, SLAY, SCB, SRB = 12, 13, 14, 15, 16, 17, 18
T0, T1, T2, T3, T4, T5, T6, T7 = 19, 20, 21, 22, 23, 24, 25, 26
SIDX, sCK, SXCC = 27, 28, 29
sFOc, sFOp, sFXc, sFXp = 30, 31, 32, 33
sO, sXs = 34, 35
mPAR, mB1, mDIAG, mM0, mOWN0, mOWN1, mM1, mFIRST = 36, 38, 40, 42, 44, 46, 48, 50
sW1, sW2, sCSL, sFBp, sSTs, sLW, sKV, sZP, sHALO, sTMO, sAo, sWo = 52, 53, 54, 55, 56, 57, 58, 59, 60, 61, 62, 63
P_AX, P_AW1, P_PHI, P_AW2, P_BX, P_BW1, P_BW2, P_OUT, P_DBG, P_WS = 64, 66, 68, 70, 72, 74, 76, 78, 80, 82
sCL0, sCL1, sCL2, sL14, sW2l = 72, 73, 3, 2, 0
sSTAMP = 84
ROTA, ROTW = 86, 94

vL16, vL64, vL128 = 1, 2, 3
vA = 4; vB = 8; vW1 = 10; vW2 = 11; vFP = 12; vSTl = 13; vSTs = 14; vSTAMP = 15
RES = 16; PHI = 32; ONES = 40; MP0, MP1, MO0, MO1 = 44, 45, 46, 47
vXW, vE0, vE1, vRSW, vRSR, vVo, vVp, vKX, vGM, vZW, vSW, vSR, vG16, vOut, vZL, vVal = range(48, 64)
vLW = 0
ACC = 64
def acc(c, i): return ACC + 16*c + 4*i
def acc2(b, i): return ACC + 8*b + 4*i
STP = 160; CSR = 168; WFV = 192; FBV = 216; CI = 220
RA, RB, RING = 0, 24, 48
MF = "v_mfma_f32_16x16x32_bf16"
def f32hex(x): return "0x%08x" % struct.unpack("<I", struct.pack("<f", x))[0]
CK_A = f32hex(1.4426950408889634); CK_B = f32hex(1.4426950408889634 * 32 ** -0.5)

class Opts:
    stamps = 0
    last = 3
    force_slow = 0
    ND = 8
    LA = 4
    APRE = 3
    wrate = 150
    w2rate = 200
    g2depth = 10
    brate = 5
    bfirst = 1
    gpos = 2
    dbgout = 0
    codepf = 1

class Q:
    def __init__(self, name, mx): self.q = []; self.name = name; self.mx = mx; self.seen = set(); self.ghost = set()
    def add(self, tag, ghost=False):
        self.q.append(tag); self.seen.add(tag)
        if ghost: self.ghost.add(tag)
    def wait(self, *tags, keep=False):
        assert all(t in self.seen for t in tags), tags
        idx = max([i for i, t in enumerate(self.q) if t in tags], default=-1)
        if idx < 0: return []
        n = sum(1 for t in self.q[idx+1:] if t not in self.ghost)
        if not keep: del self.q[:idx+1]
        return [f"s_waitcnt {self.name}({min(n, self.mx)})"]
    def clear(self): self.q = []; self.seen = set(); self.ghost = set()

def gen(o):
    A = Asm(); e = A.e
    ool = []
    ND = o.ND; AD = ND
    WQ = RING + 16*AD
    assert WQ + 8*ND <= 256
    def E(lst):
        for t in lst:
            if t.endswith(":"): A.label(t[:-1])
            else: e(t)
    def stamp(name):
        if not o.stamps: return
        if o.stamps == 2 and name not in (12, 11): return
        e(f"s_memrealtime s[{sSTAMP}:{sSTAMP+1}]")
        e(f"s_mov_b32 s{T7}, m0"); e(f"s_lshl_b32 m0, s{SLAY}, 4"); e(f"s_add_u32 m0, m0, {name}")
        e("s_waitcnt lgkmcnt(0)")
        e(f"v_writelane_b32 v{vSTAMP}, s{sSTAMP}, m0"); e(f"s_mov_b32 m0, s{T7}")
    def srt(p, size):
        e(f"s_mov_b32 s8, s{p}"); e(f"s_mov_b32 s9, s{p+1}"); e(f"s_mov_b32 s10, {size}"); e("s_mov_b32 s11, 0x20000")
    def mask64(r, val):
        e(f"s_mov_b32 s{r}, 0x{val & 0xffffffff:08x}"); e(f"s_mov_b32 s{r+1}, 0x{val >> 32:08x}")
    def sm(r): return f"s[{r}:{r+1}]"
    def bc(r): return (v(r & ~1, 2), r & 1)
    def pk_fma(d, x, y, z, negx=False):
        yp, ys = bc(y)
        if z[0] == 'p': zp, zl, zh = v(z[1], 2), 0, 1
        else:
            zp, zs = bc(z[1]); zl = zh = zs
        t = f"v_pk_fma_f32 {v(d,2)}, {v(x,2)}, {yp}, {zp} op_sel:[0,{ys},{zl}] op_sel_hi:[1,{ys},{zh}]"
        if negx: t += " neg_lo:[1,0,0] neg_hi:[1,0,0]"
        e(t)
    def pk_mul(d, x, y):
        yp, ys = bc(y)
        e(f"v_pk_mul_f32 {v(d,2)}, {v(x,2)}, {yp} op_sel:[0,{ys}] op_sel_hi:[1,{ys}]")
    def cvt4l(d, x0, x1):
        return [f"v_cvt_pk_bf16_f32 v{d}, v{x0}, v{x0+1}", f"v_cvt_pk_bf16_f32 v{d+1}, v{x0+2}, v{x0+3}",
                f"v_cvt_pk_bf16_f32 v{d+2}, v{x1}, v{x1+1}", f"v_cvt_pk_bf16_f32 v{d+3}, v{x1+2}, v{x1+3}"]
    def cvt4(d, x0, x1): E(cvt4l(d, x0, x1))
    def st_mode(lines, reg=SMODE):
        ls, ld = A.new("slow"), A.new("done")
        e(f"s_cmp_lg_u32 s{reg}, 0"); e(f"s_cbranch_scc1 {ls}")
        for t in lines: e(t)
        A.label(ld)
        def blk():
            A.label(ls); A.fence()
            for t in lines: e(t + (" sc1" if t.startswith("buffer_store") else ""))
            e("s_nop 1"); e(f"s_branch {ld}")
        ool.append(blk)
    def tmo(lbl, lim=0x100000):
        e(f"s_add_u32 s{sTMO}, s{sTMO}, 1"); e(f"s_cmp_lt_u32 s{sTMO}, {lim}"); e(f"s_cbranch_scc1 {lbl}")
    def poll_ge(vaddr, soff, sval, vt):
        l, d = A.new("poll"), A.new("polld")
        e(f"s_mov_b32 s{sTMO}, 0")
        A.label(l)
        e(f"buffer_load_dword v{vt}, v{vaddr}, {SRD}, s{soff} offen sc1")
        e("s_waitcnt vmcnt(0)")
        e(f"v_cmp_gt_u32 vcc, s{sval}, v{vt}")
        e(f"s_cbranch_vccz {d}")
        tmo(l)
        A.label(d)
    def xreduce(groups):
        for op, q in groups: e(f"v_permlane32_swap_b32 v{q[0]}, v{q[1]}"); e(f"v_permlane32_swap_b32 v{q[2]}, v{q[3]}")
        for op, q in groups: e(f"{op} v{q[0]}, v{q[0]}, v{q[1]}"); e(f"{op} v{q[2]}, v{q[2]}, v{q[3]}")
        for op, q in groups: e(f"v_permlane16_swap_b32 v{q[0]}, v{q[2]}")
        for op, q in groups: e(f"{op} v{q[1]}, v{q[0]}, v{q[2]}"); e(f"{op} v{q[2]}, v{q[0]}, v{q[2]}")
        for op, q in groups: e(f"v_permlane16_swap_b32 v{q[1]}, v{q[2]}")
        for op, q in groups: e(f"v_mov_b32 v{q[0]}, v{q[1]}"); e(f"v_mov_b32 v{q[3]}, v{q[2]}")
        for op, q in groups: e(f"v_permlane32_swap_b32 v{q[0]}, v{q[1]}"); e(f"v_permlane32_swap_b32 v{q[2]}, v{q[3]}")
    def xtile(R, tmp, always_sc1):
        st = [f"buffer_store_dwordx4 {v(R+8*i+4*kk,4)}, v{vB+i}, {SRD}, s{sXs} offen offset:{kk*1024}" for i in range(2) for kk in range(2)]
        for kk in range(2):
            for i in range(2):
                f = v(R+8*i+4*kk, 4)
                e(f"{MF} {v(tmp+8*i,4)}, {v(ONES,4)}, {f}, {'0' if kk == 0 else v(tmp+8*i,4)}")
                e(f"{MF} {v(tmp+8*i+4,4)}, {f}, {f}, {'0' if kk == 0 else v(tmp+8*i+4,4)}")
        if always_sc1:
            for t in st: e(t + " sc1")
        else: st_mode(st)
        for i in range(2):
            g0 = tmp+8*i+4
            e(f"v_cndmask_b32 v{g0}, v{g0}, v{g0+1}, {sm(mPAR)}")
            e(f"v_cndmask_b32 v{g0+2}, v{g0+2}, v{g0+3}, {sm(mPAR)}")
            e(f"v_cndmask_b32 v{tmp+8*i+1}, v{g0}, v{g0+2}, {sm(mB1)}")
        st = [f"buffer_store_dwordx2 {v(tmp+8*i,2)}, v{vSTs}, {SRD}, s{sSTs} offen offset:{i*128}" for i in range(2)]
        e(f"s_mov_b64 exec, {sm(mDIAG)}")
        if always_sc1:
            for t in st: e(t + " sc1")
        else: st_mode(st)
        e("s_mov_b64 exec, -1")
    def w1_piece(stage, i):
        r = []
        slot = (stage + 1) % 6
        if i == 0: r += [f"s_add_u32 m0, s{sLW}, {slot*SLOT}", f"s_add_u32 s{sWo}, s{sW1}, s{ROTW+stage}"]
        if i == 4: r += [f"s_add_u32 m0, s{sLW}, {slot*SLOT + 4096}", f"s_add_u32 s{sWo}, s{sWo}, 4096"]
        return r + [f"buffer_load_dwordx4 v{vW1}, {SRD}, s{sWo} offen offset:{(i%4)*1024} lds"]
    def w2_piece(part, i):
        r = []
        if i % 4 == 0:
            r += [f"s_add_u32 m0, s{sLW}, {(3+part)*SLOT + (i//4)*4096}", f"s_add_u32 s{sWo}, s{sW2}, {57344 + part*SLOT + (i//4)*4096}"]
        return r + [f"buffer_load_dwordx4 v{vW2}, {SRD}, s{sWo} offen offset:{(i%4)*1024} lds"]
    def w2_late(i):
        r = []
        if i == 0: r += [f"s_add_u32 s{T5}, s{sW2}, s{sW2l}"]
        if i % 4 == 0:
            r += [f"s_add_u32 m0, s{sL14}, {(i//4)*4096}", f"s_add_u32 s{sWo}, s{T5}, {(i//4)*4096}"]
        return r + [f"buffer_load_dwordx4 v{vW2}, {SRD}, s{sWo} offen offset:{(i%4)*1024} lds"]
    def ldsrd(dst, addr):
        base = {0: vL16, 1: vL64, 2: vL128}[addr >> 16]
        return f"ds_read_b128 {dst}, v{base} offset:{addr & 0xffff}"
    def cs_load(d):
        r = [f"s_mul_i32 s{T0}, s{SMEM}, 384", f"s_lshl_b32 s{T1}, s{sCSL}, 10", f"s_add_u32 s{T0}, s{T0}, s{T1}", f"s_add_u32 s{T0}, s{T0}, {WS_CS}",
             f"s_lshl_b32 s{T1}, s{SW}, 6", f"s_add_u32 s{T2}, s{SW}, 4", f"s_min_u32 s{T2}, s{T2}, 5", f"s_lshl_b32 s{T2}, s{T2}, 6",
             f"s_add_u32 s{T3}, s{T0}, s{T1}", f"s_add_u32 s{T4}, s{T0}, s{T2}",
             f"v_bfe_u32 v{d+16}, v{vL16}, 4, 4", f"v_mul_u32_u24 v{d+16}, 12288, v{d+16}", f"v_add_u32 v{d+16}, v{d+16}, v{vG16}",
             f"v_add_u32 v{d+17}, {16*12288}, v{d+16}"]
        for j in range(2):
            r += [f"buffer_load_dwordx4 {v(d+8*j,4)}, v{d+16+j}, {SRD}, s{T3} offen sc1",
                  f"buffer_load_dwordx4 {v(d+8*j+4,4)}, v{d+16+j}, {SRD}, s{T4} offen sc1"]
        r += [f"s_add_u32 s{T1}, s{T1}, s{sCSL}", f"s_add_u32 s{T2}, s{T2}, s{sCSL}",
              f"v_add_u32 v{d+16}, s{T1}, v{vGM}", f"v_add_u32 v{d+17}, s{T2}, v{vGM}"]
        return r
    def cs_proc(d):
        r = [f"v_add_f32 v{d+j}, v{d+j}, v{d+8+j}" for j in range(8)]
        for sh in (8, 4, 2, 1):
            r += [f"v_add_f32_dpp v{d+j}, v{d+j}, v{d+j} row_ror:{sh} row_mask:0xf bank_mask:0xf" for j in range(8)]
        r += [f"s_mov_b64 exec, {sm(mM0)}", f"ds_write_b128 v{d+16}, {v(d,4)} offset:{M_CS-M}",
              f"ds_write_b128 v{d+17}, {v(d+4,4)} offset:{M_CS-M}", "s_mov_b64 exec, -1"]
        return r

    A.raw(f"; @launch grid=(256,1,1) block=(256,1,1) lds={LDS_SIZE}")
    A.raw('.amdgcn_target "amdgcn-amd-amdhsa--gfx950"'); A.raw(".text")
    A.raw(f".globl {KNAME}"); A.raw(".p2align 8"); A.raw(f".type {KNAME},@function"); A.label(KNAME)
    e("s_cmp_lt_u32 s2, 256"); e("s_cbranch_scc1 L_go"); e("s_endpgm"); A.label("L_go")
    e("s_load_dwordx16 s[64:79], s[0:1], 0"); e("s_load_dwordx4 s[80:83], s[0:1], 64")
    e(f"s_getpc_b64 s[{T1}:{T1+1}]"); e(f"s_and_b32 s{T1}, s{T1}, 0xffffff00")
    e(f"s_mov_b32 s{SLAY}, 0")
    e("v_lshlrev_b32 v253, 7, v0")
    e("v_lshrrev_b32 v1, 6, v0"); e("v_and_b32 v254, 63, v0"); e(f"v_readfirstlane_b32 s{SW}, v1")
    if o.stamps: e(f"v_mov_b32 v{vSTAMP}, 0"); stamp(12)
    if o.force_slow:
        e(f"s_lshr_b32 s{SGRP}, s2, 5"); e(f"s_and_b32 s{SMEM}, s2, 31")
    else:
        e(f"s_and_b32 s{SGRP}, s2, 7"); e(f"s_lshr_b32 s{SMEM}, s2, 3")
    e(f"s_lshl_b32 s{SIDX}, s{SGRP}, 5"); e(f"s_add_u32 s{SIDX}, s{SIDX}, s{SMEM}")
    e(f"s_lshr_b32 s{SRB}, s{SIDX}, 4"); e(f"s_and_b32 s{SCB}, s{SIDX}, 15")
    e(f"v_lshlrev_b32 v{vL16}, 4, v254"); e(f"v_and_b32 v{vG16}, 48, v254"); e("v_and_b32 v0, 15, v254")
    e(f"s_mul_i32 s{sLW}, s{SW}, 6144")
    e(f"s_lshl_b32 s{T3}, s{SRB}, 3"); e(f"s_lshl_b32 s{T4}, s{SW}, 1"); e(f"s_add_u32 s{T3}, s{T3}, s{T4}")
    e(f"s_lshl_b32 s{T4}, s{T3}, 4"); e(f"v_add_u32 v{vOut}, s{T4}, v0"); e(f"v_lshlrev_b32 v{vSTs}, 3, v{vOut}")
    e(f"s_lshl_b32 s{T4}, s{SCB}, 7"); e(f"v_lshlrev_b32 v{vOut}, 11, v{vOut}"); e(f"v_add3_u32 v{vOut}, v{vOut}, s{T4}, v{vG16}")
    e(f"s_lshl_b32 s{T3}, s{T3}, 15"); e(f"v_add_u32 v{vB}, s{T3}, v{vL16}"); e(f"v_add_u32 v{vB+1}, 0x8000, v{vB}")
    e("v_lshrrev_b32 v200, 2, v254"); e("v_and_b32 v201, 3, v254")
    e("v_mul_u32_u24 v202, 6144, v200"); e("v_lshl_add_u32 v202, v201, 4, v202")
    e("v_lshrrev_b32 v203, 3, v254"); e("v_and_b32 v204, 7, v254"); e("v_lshlrev_b32 v204, 4, v204"); e("v_lshl_add_u32 v210, v203, 11, v204")
    e(f"s_lshl_b32 s{T6}, s{SGRP}, 2"); e(f"s_add_u32 s{T6}, s{T6}, s{SW}")
    e(f"s_mul_i32 s{T5}, s{T6}, {32*6144}"); e(f"s_lshl_b32 s{T4}, s{SMEM}, 6"); e(f"s_add_u32 s{T5}, s{T5}, s{T4}")
    e(f"v_mov_b32 v{vVal}, 0")
    e("s_waitcnt lgkmcnt(0)")
    e(f"s_mov_b32 s4, s{P_WS}"); e(f"s_mov_b32 s5, s{P_WS+1}"); e(f"s_mov_b32 s6, {WS_SIZE}"); e("s_mov_b32 s7, 0x20000")
    e(f"s_or_b32 s{T0}, s{SIDX}, s{SW}"); e(f"s_cmp_lg_u32 s{T0}, 0"); e("s_cbranch_scc1 L_p0a")
    for r in range(4): e(f"v_mov_b32 v{204+r}, 0")
    for j in range(4):
        e(f"s_mov_b32 s{T0}, {j*8192}"); e(f"buffer_store_dword v204, v253, {SRD}, s{T0} offen sc1")
    e(f"s_mov_b32 s{T0}, {WS_FLAGB}"); e(f"buffer_store_dwordx4 v[204:207], v{vL16}, {SRD}, s{T0} offen sc1")
    A.label("L_p0a")
    srt(P_AX, 0x400000)
    e(f"s_lshl_b32 s{T4}, s{SCB}, 7"); e(f"s_add_u32 s{T3}, s{T3}, s{T4}")
    for i in range(4):
        e(f"s_add_u32 m0, s{sLW}, {i*1024}"); e(f"s_add_u32 s{T0}, s{T3}, {i*16384}")
        e(f"buffer_load_dwordx4 v210, {SRT}, s{T0} offen lds")
    def raw1(p, ldsb):
        srt(p, 0x600000)
        for seg in range(3):
            for hf in range(2):
                e(f"s_add_u32 m0, s{sLW}, {ldsb + seg*2048 + hf*1024}"); e(f"s_add_u32 s{T0}, s{T5}, {seg*2048 + hf*16*6144}")
                e(f"buffer_load_dwordx4 v202, {SRT}, s{T0} offen lds")
    raw1(P_AW1, RAW1A)
    e(f"s_or_b32 s{T0}, s{SIDX}, s{SW}"); e(f"s_cmp_lg_u32 s{T0}, 0"); e("s_cbranch_scc1 L_p0b")
    srt(P_DBG, 256); e("v_mov_b32 v204, 1")
    e("s_waitcnt vmcnt(10)")
    e("s_mov_b64 exec, 1"); e(f"buffer_store_dword v204, off, {SRT}, 0 sc1"); e("s_mov_b64 exec, -1")
    A.label("L_p0b")
    vq = Q("vmcnt", 63)
    for i in range(4): vq.add("x")
    for i in range(6): vq.add("ra")
    if o.codepf:
        e(f"s_lshl_b32 s{T0}, s{SMEM}, 2"); e(f"s_add_u32 s{T0}, s{T0}, s{SW}"); e(f"s_mul_i32 s{T0}, s{T0}, 384")
        e(f"v_lshl_add_u32 v252, v254, 7, s{T0}"); e("v_min_u32 v252, L_codeend-%s-4, v252" % KNAME)
        e("s_mov_b64 exec, 7"); e(f"global_load_dword v251, v252, s[{T1}:{T1+1}]"); e("s_mov_b64 exec, -1"); vq.add("pf")
    srt(P_PHI, 0x10000)
    e(f"s_and_b32 s{T3}, s{SW}, 1"); e(f"s_lshl_b32 s{T1}, s{T3}, 10"); e(f"s_add_u32 m0, s{T1}, {M_PHI}"); e(f"s_lshl_b32 s{T2}, s{SMEM}, 11"); e(f"s_add_u32 s{T1}, s{T1}, s{T2}")
    e(f"buffer_load_dwordx4 v{vL16}, {SRT}, s{T1} offen lds"); vq.add("phi")
    def rawb():
        raw1(P_BW1, RAW1B)
        e(f"s_cmp_lt_u32 s{SW}, 2"); e(f"s_cselect_b32 s8, s{P_AW2}, s{P_BW2}"); e(f"s_cselect_b32 s9, s{P_AW2+1}, s{P_BW2+1}"); e("s_mov_b32 s10, 0x200000")
        e(f"s_lshl_b32 s{T0}, s{SRB}, 1"); e(f"s_and_b32 s{T1}, s{SW}, 1"); e(f"s_add_u32 s{T0}, s{T0}, s{T1}")
        e(f"s_lshl_b32 s{T0}, s{T0}, 16"); e(f"s_lshl_b32 s{T1}, s{SCB}, 7"); e(f"s_add_u32 s{T0}, s{T0}, s{T1}")
        for i in range(4):
            e(f"s_add_u32 m0, s{sLW}, {RAW2 + i*1024}"); e(f"s_add_u32 s{T1}, s{T0}, {i*16384}")
            e(f"buffer_load_dwordx4 v210, {SRT}, s{T1} offen lds")
        for i in range(10): vq.add("rb")
    e(f"s_getreg_b32 s{SXCC}, hwreg(HW_REG_XCC_ID, 0, 4)"); e(f"s_or_b32 s{SXCC}, s{SXCC}, 0x100")
    mask64(mPAR, 0xAAAAAAAAAAAAAAAA); mask64(mB1, 0xCCCCCCCCCCCCCCCC); mask64(mDIAG, 0xF0000F0000F0000F)
    mask64(mM0, 0x0001000100010001); mask64(mM1, 0x2222222222222222)
    mask64(mOWN0, sum(1 << l for l in range(64) if 4*(l >> 4) + (l & 1) <= (l & 15)))
    mask64(mOWN1, sum(1 << l for l in range(64) if 4*(l >> 4) + 2 + (l & 1) <= (l & 15)))
    e(f"s_lshl_b32 s{T1}, s{SMEM}, 15"); e(f"s_lshl_b32 s{T2}, s{SW}, 10"); e(f"s_add_u32 s{T1}, s{T1}, s{T2}"); e(f"s_add_u32 s{sKV}, s{T1}, {WS_KVP - WS_X + (1<<32)}")
    e(f"s_lshr_b32 s{T1}, s{T1}, 4"); e(f"s_add_u32 s{sZP}, s{T1}, {WS_ZP}")
    e(f"s_lshl_b32 s{T1}, s{T6}, 7"); e(f"s_add_u32 s{sFXc}, s{T1}, {WS_FLAGX}")
    e(f"s_lshl_b32 s{T2}, s{SMEM}, 2"); e(f"s_add_u32 s{T1}, s{T1}, s{T2}"); e(f"s_add_u32 s{sFOp}, s{T1}, {WS_FLAGO}")
    e(f"s_lshl_b32 s{T1}, s{SRB}, 1"); e(f"s_lshr_b32 s{T2}, s{SW}, 1"); e(f"s_add_u32 s{T1}, s{T1}, s{T2}"); e(f"s_lshl_b32 s{T1}, s{T1}, 7")
    e(f"s_add_u32 s{sFOc}, s{T1}, {WS_FLAGO}")
    e(f"s_lshl_b32 s{T2}, s{SCB}, 3"); e(f"s_and_b32 s{T3}, s{SW}, 1"); e(f"s_lshl_b32 s{T4}, s{T3}, 2")
    e(f"s_add_u32 s{T1}, s{T1}, s{T2}"); e(f"s_add_u32 s{T1}, s{T1}, s{T4}"); e(f"s_add_u32 s{sFXp}, s{T1}, {WS_FLAGX}")
    e(f"s_lshl_b32 s{T0}, s{SGRP}, 8"); e(f"s_add_u32 s{sCL1}, s{T0}, s{sZP}")
    e(f"s_lshl_b32 s{T1}, s{SIDX}, 11"); e(f"s_add_u32 s{sHALO}, s{T1}, {WS_HALO}")
    e(f"s_lshl_b32 s{T1}, s{T3}, 10"); e(f"s_lshr_b32 s{T4}, s{SW}, 1"); e(f"s_lshl_b32 s{T2}, s{T4}, 19")
    e(f"s_add_u32 s{T1}, s{T1}, s{T2}"); e(f"s_add_u32 s{sCL2}, s{T1}, s{sHALO}")
    e(f"s_lshl_b32 s{T1}, s{SIDX}, 2"); e(f"s_add_u32 s{T1}, s{T1}, {WS_FLAGB}"); e(f"s_cmp_eq_u32 s{SW}, 0"); e(f"s_cselect_b32 s{sFBp}, s{T1}, {OOR}")
    for s_ in range(8):
        e(f"s_add_u32 s{T1}, s{SGRP}, {s_}"); e(f"s_and_b32 s{T1}, s{T1}, 7")
        e(f"s_mul_i32 s{ROTW+s_}, s{T1}, {SLOT}"); e(f"s_lshl_b32 s{T1}, s{T1}, 12"); e(f"s_add_u32 s{ROTA+s_}, s{T1}, {WS_X}")
    e(f"s_mul_i32 s{sL14}, s{SW}, 14336"); e(f"s_lshl_b32 s{sW2l}, s{SW}, 13")
    e(f"s_lshl_b32 s{T1}, s{SMEM}, 10"); e(f"s_add_u32 s{sO}, s{T1}, {WS_O}")
    e(f"s_lshl_b32 s{T1}, s{SCB}, 11"); e(f"s_add_u32 s{sXs}, s{T1}, {WS_X}")
    e(f"s_lshl_b32 s{T0}, s{SCB}, 14"); e(f"s_add_u32 s{sSTs}, s{T0}, {WS_ST}")
    e(f"s_mov_b32 s{sW1}, {WS_W1A}"); e(f"s_mov_b32 s{sW2}, {WS_W2A}"); e(f"s_mov_b32 s{sCSL}, 0"); e(f"s_mov_b32 s{sCK}, {CK_A}")
    e(f"s_or_b32 s{T0}, s{SGRP}, s{SW}"); e(f"s_cmp_eq_u32 s{T0}, 0"); e(f"s_cselect_b64 {sm(mFIRST)}, -1, 0")
    for r in range(4): e(f"v_mov_b32 v{ONES+r}, 0x3f803f80")
    e(f"v_add_u32 v{vL64}, 0x10000, v{vL16}"); e(f"v_add_u32 v{vL128}, 0x20000, v{vL16}")
    e(f"v_and_b32 v{vFP}, 31, v254"); e(f"v_lshlrev_b32 v{vFP}, 2, v{vFP}")
    e(f"s_lshl_b32 s{T1}, s{T6}, 17"); e(f"v_add_u32 v{vA}, s{T1}, v{vL16}")
    for i in range(1, 4): e(f"v_add_u32 v{vA+i}, {i*0x8000}, v{vA}")
    e(f"s_lshl_b32 s{T1}, s{T6}, 9"); e("v_lshrrev_b32 v213, 5, v254"); e(f"v_lshl_add_u32 v{vSTl}, v213, 17, s{T1}"); e(f"v_lshl_add_u32 v{vSTl}, v{vFP}, 2, v{vSTl}")
    e(f"s_mul_i32 s{T1}, s{SMEM}, 196608"); e(f"s_add_u32 s{T1}, s{T1}, s{sLW}"); e(f"v_add_u32 v{vW1}, s{T1}, v{vL16}")
    e(f"s_lshl_b32 s{T1}, s{SCB}, 17"); e(f"s_add_u32 s{T1}, s{T1}, s{sLW}"); e(f"v_add_u32 v{vW2}, s{T1}, v{vL16}")
    e("v_lshlrev_b32 v203, 4, v200"); e("v_and_b32 v204, 1, v254"); e("v_lshlrev_b32 v204, 7, v204"); e("v_xor_b32 v203, v203, v204")
    e("v_lshl_add_u32 v208, v201, 8, v203")
    e("v_and_b32 v209, 3, v200"); e(f"v_lshrrev_b32 v203, 1, v{vG16}"); e("v_add_u32 v209, v209, v203")
    e("v_lshlrev_b32 v203, 6, v209"); e("v_lshl_add_u32 v205, v201, 3, v203"); e(f"v_add_u32 v205, {M_PHI}, v205")
    e("v_lshl_add_u32 v206, v201, 4, v203"); e(f"s_add_u32 s{T1}, s{sLW}, {RAW1A}"); e(f"v_add_u32 v206, s{T1}, v206")
    e("v_lshlrev_b32 v203, 7, v209"); e("v_lshl_add_u32 v207, v201, 4, v203"); e(f"s_add_u32 s{T1}, s{sLW}, {RAW2}"); e(f"v_add_u32 v207, s{T1}, v207")
    e(f"s_lshl_b32 s{T2}, s{SW}, 12")
    e(f"v_and_b32 v203, 16, v{vG16}"); e("v_lshlrev_b32 v203, 3, v203"); e(f"v_xor_b32 v203, v203, v{vL16}"); e(f"v_add_u32 v{vXW}, s{T2}, v203")
    e(f"v_add_u32 v{vVo}, s{T2}, v208")
    e(f"s_add_u32 s{T0}, s{T2}, {VB_LDS - 1024}"); e(f"s_cmp_eq_u32 s{SW}, 0"); e(f"s_cselect_b32 s{T0}, {M_HV}, s{T0}"); e(f"v_add_u32 v{vVp}, s{T0}, v208")
    e(f"s_lshl_b32 s{T0}, s{T4}, 14"); e(f"s_lshl_b32 s{T1}, s{T3}, 3"); e(f"s_add_u32 s{T2}, s{T0}, s{T1}"); e(f"v_add_u32 v{vE0}, s{T2}, v208")
    e(f"s_xor_b32 s{T2}, s{T2}, 8"); e(f"v_add_u32 v{vE1}, s{T2}, v208")
    e(f"v_add_u32 v{vGM}, {M}, v{vG16}")
    e(f"s_lshl_b32 s{T0}, s{T4}, 9"); e(f"v_add_u32 v{vRSR}, s{T0}, v{vGM}")
    e(f"s_lshl_b32 s{T0}, s{T4}, 6"); e(f"s_add_u32 s{T0}, s{T0}, s{T1}"); e(f"v_add_u32 v{vZW}, s{T0}, v{vGM}")
    e("v_lshrrev_b32 v203, 2, v0"); e("v_lshlrev_b32 v203, 4, v203"); e("v_lshl_add_u32 v203, v201, 1, v203")
    e(f"s_lshl_b32 s{T0}, s{SW}, 7"); e(f"s_add_u32 s{T0}, s{T0}, {M_RS}"); e(f"v_add_u32 v{vRSW}, s{T0}, v203")
    e(f"s_lshl_b32 s{T0}, s{SW}, 10"); e(f"s_add_u32 s{T0}, s{T0}, {M_KX}"); e(f"v_add_u32 v{vKX}, s{T0}, v{vL16}")
    e(f"s_lshl_b32 s{T0}, s{SW}, 9"); e(f"s_add_u32 s{T0}, s{T0}, {M_ST}")
    e(f"v_lshl_add_u32 v203, v213, 3, s{T0}"); e(f"v_lshl_add_u32 v{vSW}, v{vFP}, 2, v203"); e(f"v_lshl_add_u32 v{vSR}, v0, 3, s{T0}")
    e("v_and_b32 v203, 7, v0"); e(f"v_lshl_add_u32 v{vZL}, v203, 8, v{vG16}")
    e("v_mov_b32 v203, 0xffff"); e("v_mov_b32 v204, 0xffff0000"); e(f"v_cndmask_b32 v203, v203, v204, {sm(mPAR)}")
    e(f"v_cndmask_b32 v{MO0}, 0, v203, {sm(mOWN0)}"); e(f"v_cndmask_b32 v{MO1}, 0, v203, {sm(mOWN1)}")
    e(f"v_xor_b32 v{MP0}, v203, v{MO0}"); e(f"v_xor_b32 v{MP1}, v203, v{MO1}")
    e(f"s_lshl_b32 s{T0}, s{SGRP}, 5"); e(f"v_add_u32 v203, s{T0}, v254")
    e("v_and_b32 v204, 7, v254"); e(f"v_lshl_add_u32 v204, v204, 5, s{SMEM}")
    e(f"v_cmp_gt_u32 {sm(T1)}, 32, v254"); e(f"v_cndmask_b32 v211, v204, v203, {sm(T1)}"); e("v_lshlrev_b32 v211, 7, v211")
    e(f"v_lshl_add_u32 v214, v0, 7, v{vG16}"); e(f"v_add_u32 v214, s{sLW}, v214")
    e(f"v_lshl_add_u32 v215, v0, 6, v{vG16}")
    for blk in range(6):
        e(f"v_cmp_eq_u32 vcc, {blk}, v0")
        e(f"v_cndmask_b32 v{96+4*blk}, 0, v{ONES}, vcc")
        for r in range(1, 4): e(f"v_mov_b32 v{96+4*blk+r}, v{96+4*blk}")
    e(f"v_add_u32 v{vLW}, s{sLW}, v{vL16}")
    if o.bfirst: rawb()
    stamp(28)
    E(vq.wait("x"))
    for i in range(2):
        for kk in range(2): e(f"ds_read_b128 {v(RES+8*i+4*kk,4)}, v214 offset:{i*2048 + kk*64}")
    e("s_waitcnt lgkmcnt(0)")
    stamp(29)
    xtile(RES, 160, True)
    for i in range(6): vq.add("st")
    def w1st(R, blk, sa, sb): return f"buffer_store_dwordx4 {a(R+4*blk,4)}, v{vW1}, {SRD}, s{sa if blk < 4 else sb} offen offset:{(blk%4)*1024} sc1"
    def csst(C, sreg): return [f"s_mov_b32 exec_lo, 0x003f003f", "s_mov_b32 exec_hi, 0x003f003f",
                               f"buffer_store_dwordx4 {v(C,4)}, v{C+4}, {SRD}, s{sreg} offen sc1", "s_mov_b64 exec, -1"]
    def retile1(rawoff, R, C, store):
        for blk in range(6):
            for t in range(2):
                e(f"ds_read_b64_tr_b16 {a(R+4*blk+2*t,2)}, v206 offset:{rawoff + (blk>>1)*2048 + t*256 + (blk&1)*8}")
        e(f"v_mov_b32 v{C+4}, v215")
        for blk in range(6):
            e(f"s_waitcnt lgkmcnt({10-2*blk})")
            if store: e(w1st(R, blk, T2, T4)); vq.add("st")
            e(f"{MF} {v(C,4)}, {a(R+4*blk,4)}, {v(96+4*blk,4)}, {'0' if blk == 0 else v(C,4)}")
    e(f"s_add_u32 s{T2}, s{ROTW}, {WS_W1A}"); e(f"s_add_u32 s{T4}, s{T2}, 4096")
    e(f"s_mul_i32 s{T0}, s{T6}, 12288"); e(f"s_mul_i32 s{T1}, s{SMEM}, 384"); e(f"s_add_u32 s{T0}, s{T0}, s{T1}"); e(f"s_add_u32 s{sCL0}, s{T0}, {WS_CS}")
    E(vq.wait("ra"))
    stamp(13)
    retile1(0, RA, 64, True)
    for blk in range(6): e(f"ds_write_b128 v{vLW}, {a(RA+4*blk,4)} offset:{SLOT + blk*1024}")
    E(csst(64, sCL0)); vq.add("st")
    srt(P_DBG, 256)
    e(f"buffer_load_dword v212, off, {SRT}, 0 sc1"); vq.add("go")
    if not o.bfirst: rawb()
    e(f"v_mov_b32 v{vVal}, s{SXCC}")
    stamp(30)
    E(vq.wait("go"))
    stamp(31)
    e("v_cmp_ne_u32 vcc, 1, v212"); e("s_cbranch_vccnz L_goslow")
    A.label("L_gook")
    def goslow():
        A.label("L_goslow"); srt(P_DBG, 256); e(f"s_mov_b32 s{sTMO}, 0")
        A.label("L_gol")
        e(f"buffer_load_dword v212, off, {SRT}, 0 sc1"); e("s_waitcnt vmcnt(0)")
        e("v_cmp_ne_u32 vcc, 1, v212"); e("s_cbranch_vccz L_gook")
        tmo("L_gol"); e("s_branch L_gook")
    ool.append(goslow)
    e("s_barrier")
    e(f"s_lshl_b32 s{T0}, s{SIDX}, 7"); e(f"s_cmp_eq_u32 s{SW}, 0"); e(f"s_cselect_b32 s{T0}, s{T0}, {OOR}")
    e("s_mov_b64 exec, 1"); e(f"buffer_store_dword v{vVal}, off, {SRD}, s{T0} sc1"); e("s_mov_b64 exec, -1"); vq.add("fa")
    stamp(14)
    for fb in range(2):
        for t in range(2):
            e(f"ds_read_b64_tr_b16 {v(PHI+4*fb+2*t,2)}, v205 offset:{fb*32 + t*256}")
    E(vq.wait("rb"))
    stamp(44)
    for blk in range(4):
        for t in range(2):
            e(f"ds_read_b64_tr_b16 {v(224+4*blk+2*t,2)}, v207 offset:{t*512 + (blk>>1)*64 + (blk&1)*8}")
    e("s_waitcnt lgkmcnt(0)")
    retile1(SLOT, RB, 240, False)
    stamp(45)
    e(f"s_cmp_lg_u32 s{SW}, 0"); e("s_cbranch_scc1 L_faok")
    e(f"s_mov_b32 s{sTMO}, 0")
    A.label("L_fal")
    e(f"buffer_load_dword v212, v211, {SRD}, 0 offen sc1"); e("s_waitcnt vmcnt(0)")
    e("v_cmp_eq_u32 vcc, 0, v212"); e("s_cbranch_vccz L_fad")
    tmo("L_fal")
    A.label("L_fad")
    e(f"v_cmp_ne_u32 {sm(T1)}, s{SXCC}, v212"); e(f"v_mov_b32 v212, s{T1}")
    e(f"ds_write_b32 v{vGM}, v212"); e("s_waitcnt lgkmcnt(0)")
    A.label("L_faok")
    e("s_barrier")
    stamp(15)
    e(f"ds_read_b32 v212, v{vGM}")
    for i in range(6): E(w1_piece(1, i))
    e("s_waitcnt lgkmcnt(0)")
    e(f"v_readfirstlane_b32 s{SMODE}, v212")
    e("s_branch L_g1rd")

    A.label("L_g1pre")
    e("s_waitcnt lgkmcnt(0)"); e("s_barrier")
    A.label("L_g1rd")
    lq = Q("lgkmcnt", 15)
    def wdst(step, c):
        if c < 2 and step >= 32 - ND: return a(WQ + 8*(step - (32-ND)) + 4*c, 4)
        return v(WFV + 4*c, 4)
    def w1rd(step, c):
        lq.add(("W", step, c))
        return ldsrd(wdst(step, c), ((step//4 + 1) % 6)*SLOT + (step % 4)*6144 + c*1024)
    for c in range(6): e(w1rd(0, c))
    e(f"s_cmp_eq_u32 s{SLAY}, 0"); e("s_cbranch_scc1 L_g1")
    poll_ge(vFP, sFXc, SLAY, FBV)
    A.label("L_g1")
    stamp(0)
    vq.clear()
    for i in range(6): vq.add(("W", 1))
    def aload(step, i):
        d = RING + 16*(step % AD) + 4*i
        vq.add(("A", step))
        return [f"buffer_load_dwordx4 {a(d,4)}, v{vA+i}, {SRD}, s{ROTA + step//4} offen offset:{(step%4)*1024} sc1"]
    anext = [(st, i) for st in range(32) for i in range(4)]
    for j in range(4*o.APRE): E(aload(*anext.pop(0)))
    pend = [("W", st, i) for st in range(2, 8) for i in range(6)] + [("W2", p, i) for p in range(3) for i in range(6)]
    def allowed(p, step):
        if p[0] == "W": return p[1] < 6 or step >= 4*(p[1]-5) + 3
        return step >= max(4*(p[1]+3) + 3, 25)
    misc = []
    for j in range(8):
        misc.append((2*j, ("S", j), [f"s_mov_b32 s{T0}, {WS_ST + j*16384}"], f"buffer_load_dwordx4 {v(160+4*j,4)}, v{vSTl}, {SRD}, s{T0} offen sc1"))
    sh = []
    def S(step, *ins): sh.append((step, lambda ins=ins: list(ins)))
    oq = []
    def once(step, name, body, nl=1):
        def f():
            ins = body()
            def blk():
                A.label(f"L_{name}"); e("s_nop 1"); E(ins); e(f"s_branch L_{name}_r")
            ool.append(blk)
            return [f"s_cmp_lt_u32 s{SLAY}, {nl}", f"s_cbranch_scc1 L_{name}", f"L_{name}_r:"]
        oq.append((step, f))
    def G(tag, ins):
        def f(): vq.add(tag, ghost=True); return ins
        return f
    w2s = [f"buffer_store_dwordx4 {v(224+4*blk,4)}, v{vL16}, {SRD}, s{T1} offen offset:{blk*1024} sc1" for blk in range(4)]
    once(0, "d0", G("C", [f"s_lshl_b32 s{T1}, s{SRB}, 1", f"s_and_b32 s{T2}, s{SW}, 1", f"s_add_u32 s{T1}, s{T1}, s{T2}", f"s_lshl_b32 s{T1}, s{T1}, 12",
                          f"s_lshl_b32 s{T2}, s{SCB}, 17", f"s_add_u32 s{T1}, s{T1}, s{T2}", f"s_cmp_lt_u32 s{SW}, 2", f"s_cselect_b32 s{T2}, 0, {WS_W2B - WS_W2A}",
                          f"s_add_u32 s{T1}, s{T1}, s{T2}", f"s_add_u32 s{T1}, s{T1}, {WS_W2A}"] + w2s[:3]))
    once(1, "d1", G("C", w2s[3:] + [f"s_add_u32 s{T1}, s{sCL0}, {CS_SZ}"] + csst(240, T1) +
                         [f"s_add_u32 s{T2}, s{ROTW}, {WS_W1B}", f"s_add_u32 s{T4}, s{T2}, 4096", w1st(RB, 0, T2, T4)]))
    once(2, "d2", G("C", [w1st(RB, b_, T2, T4) for b_ in (1, 2, 3)]))
    once(3, "d3", G("C", [w1st(RB, b_, T2, T4) for b_ in (4, 5)] + [f"v_mov_b32 v{FBV+r}, -1" for r in range(4)] +
                         [f"buffer_store_dwordx4 {v(FBV,4)}, v{vL16}, {SRD}, s{sCL2} offen sc1"]))
    once(4, "d4", G("C", [f"s_add_u32 s{T1}, s{sKV}, s{ROTA}", f"s_add_u32 s{T2}, s{T1}, 0x100000",
                          f"buffer_store_dwordx4 {v(FBV,4)}, v{vL16}, {SRD}, s{T1} offen sc1", f"buffer_store_dwordx4 {v(FBV,4)}, v{vL16}, {SRD}, s{T2} offen sc1"]))
    once(5, "d5", G("C", [f"s_add_u32 s{T1}, s{sCL1}, 0x10000", f"v_mov_b32 v{vVal}, 0", f"s_mov_b64 exec, {sm(mM0)}",
                          f"buffer_store_dwordx4 {v(FBV,4)}, v{vG16}, {SRD}, s{sCL1} offen sc1", f"buffer_store_dwordx4 {v(FBV,4)}, v{vG16}, {SRD}, s{T1} offen sc1",
                          "s_mov_b64 exec, 1", f"buffer_store_dword v{vVal}, off, {SRD}, s{sFOp} sc1", f"buffer_store_dword v{vVal}, off, {SRD}, s{sFXp} sc1", "s_mov_b64 exec, -1"]))
    once(6, "csl", G("CS", cs_load(224)), nl=2)
    def b_csp():
        lq.add("csw", ghost=True)
        return vq.wait("CS", keep=True) + cs_proc(224)
    once(10, "csp", b_csp, nl=2)
    def b_set():
        assert cdone[0]
        return [f"v_mov_b32 v{vVal}, 1", "s_mov_b64 exec, 1", f"buffer_store_dword v{vVal}, off, {SRD}, s{sFBp} sc1", "s_mov_b64 exec, -1"]
    cdone = [False]
    def b_chk():
        return vq.wait("F", keep=True) + [f"s_mov_b32 s{sTMO}, 0", "L_fbl:",
            f"v_and_b32 v{FBV}, v{FBV}, v{FBV+1}", f"v_and_b32 v{FBV+2}, v{FBV+2}, v{FBV+3}", f"v_and_b32 v{FBV}, v{FBV}, v{FBV+2}",
            f"v_cmp_ne_u32 vcc, 1, v{FBV}", "s_cbranch_vccz L_fbchk_r",
            f"buffer_load_dwordx4 {v(FBV,4)}, v{vL16}, {SRD}, s{T1} offen sc1", "s_waitcnt vmcnt(0)",
            f"s_add_u32 s{sTMO}, s{sTMO}, 1", f"s_cmp_lt_u32 s{sTMO}, 0x100000", "s_cbranch_scc1 L_fbl"]
    once(12, "fbset", b_set)
    once(20, "fbld", G("F", [f"s_mov_b32 s{T1}, {WS_FLAGB}", f"buffer_load_dwordx4 {v(FBV,4)}, v{vL16}, {SRD}, s{T1} offen sc1"]))
    once(24, "fbchk", b_chk)
    first = True
    for st in (16, 8, 4):
        for r in range(0, st, 2):
            ins = [f"v_add_f32 v{160+r}, v{160+r}, v{160+r+st}", f"v_add_f32 v{161+r}, v{161+r}, v{161+r+st}"]
            if first: sh.append((17, lambda ins=ins: vq.wait(("S", 7)) + ins)); first = False
            else: S(17, *ins)
    S(17, "s_nop 0"); S(17, "v_permlane32_swap_b32 v160, v162"); S(17, "v_permlane32_swap_b32 v161, v163")
    S(17, "v_add_f32 v160, v160, v162", "v_add_f32 v161, v161, v163")
    S(17, f"v_mul_f32 v163, {f32hex(-1.0/1024)}, v160", f"v_mul_f32 v161, {f32hex(1.0/1024)}, v161")
    S(17, "v_fma_f32 v161, -v163, v163, v161", "v_max_f32 v161, 0, v161")
    S(17, f"v_add_f32 v161, {f32hex(1e-5)}, v161", f"v_add_u32 v{CI}, s{sCSL}, v{vGM}")
    S(17, "v_rsq_f32 v162, v161")
    def L(tag, ins):
        def f(): lq.add(tag); return [ins]
        sh.append((17, f))
    L("sw", f"ds_write_b64 v{vSW}, v[162:163]")
    for i in range(4): L("st", f"ds_read_b64 {v(STP+2*i,2)}, v{vSR} offset:{i*128}")
    for c in range(6): L("cs", f"ds_read_b128 {v(CSR+4*c,4)}, v{CI} offset:{M_CS-M+c*64}")
    fix = None
    credit = 0.0
    for step in range(32):
        stage = step // 4
        deferred = step >= 32 - ND
        cs_ = range(2, 6) if deferred else range(6)
        ng = len(cs_)
        assert not anext or anext[0][0] > step
        E(vq.wait(("A", step)))
        if step % 4 == 3 and stage < 7:
            assert not any(p[0] == "W" and p[1] <= stage+1 for p in pend)
            E(vq.wait(("W", stage+1))); e("s_barrier")
            if step > 6 and "C" not in vq.q: cdone[0] = True
            if step == 15: assert "csw" in lq.seen and "csw" not in lq.q
        plan = []
        na = 0
        while len(plan) < ng and na < len(anext) and anext[na][0] <= step + o.LA and na < (4 if anext[na][0] >= step + o.APRE else 6):
            plan.append("A"); na += 1
        credit = min(credit + (o.wrate if (pend and pend[0][0] == "W") else o.w2rate) / 100.0, 3.0)
        nw = 0
        while len(plan) < ng and nw < len(pend) and allowed(pend[nw], step) and credit >= 1:
            plan.append("W"); nw += 1; credit -= 1
        nm = 0
        while len(plan) < ng and nm < len(misc) and misc[nm][0] <= step:
            plan.append("M"); nm += 1
        while len(plan) < ng and na < len(anext) and anext[na][0] <= step + o.LA:
            plan.append("A"); na += 1
        oth = [p for p in plan if p != "A"]; aa = [p for p in plan if p == "A"]; plan = []
        while oth or aa:
            if aa: plan.append(aa.pop())
            if aa and len(aa) >= 2*len(oth): plan.append(aa.pop())
            if oth: plan.append(oth.pop(0))
        a0 = RING + 16*(step % AD)
        for gi, c in enumerate(cs_):
            vm = None
            order = range(4) if c % 2 == 0 else reversed(range(4))
            for p, i in enumerate(order):
                if p == 0: E(lq.wait(("W", step, c)))
                e(f"{MF} {v(acc(c,i),4)}, {wdst(step,c)}, {a(a0+4*i,4)}, {'0' if step == 0 else v(acc(c,i),4)}")
                busy = False
                if p == 0 and gi < len(plan):
                    k = plan[gi]
                    if k == "A": vm = lambda: aload(*anext.pop(0))
                    elif k == "W":
                        pc = pend.pop(0); ins = w1_piece(pc[1], pc[2]) if pc[0] == "W" else w2_piece(pc[1], pc[2])
                        E(ins[:-1]); busy = len(ins) > 1
                        vm = lambda pc=pc, ins=ins: (vq.add((pc[0], pc[1])), ins[-1:])[1]
                    else:
                        mi = misc.pop(0); E(mi[2]); busy = len(mi[2]) > 0
                        vm = lambda mi=mi: (vq.add(mi[1]), [mi[3]])[1]
                if p == 1 and vm: E(vm()); busy = True
                if p == 3:
                    busy = True
                    if step < 31: e(w1rd(step+1, c))
                if p == 2 and step < 31 and step + 1 >= 32 - ND and deferred and gi < 2:
                    e(w1rd(step+1, gi)); busy = True
                if not busy and p == 2 and oq and oq[0][0] <= step:
                    E(oq.pop(0)[1]()); busy = True
                if not busy:
                    if sh and sh[0][0] <= step: E(sh.pop(0)[1]())
                    elif not sh:
                        if fix is None:
                            E(lq.wait("cs"))
                            fix = {cc: [f"v_fmac_f32 v{acc(cc,ii)+j}, v{CSR+4*cc+j}, v{STP+2*ii+1}" for ii in range(4) for j in range(4)] for cc in range(6)}
                            fix["ci"] = [f"v_mul_f32 v{CI+ii}, s{sCK}, v{STP+2*ii}" for ii in range(4)]
                        lst = list(cs_)
                        cand = [lst[(gi + ng//2) % ng]] + ([0, 1] if deferred and step > 32 - ND else []) + ["ci"]
                        for cc in cand:
                            if fix[cc]:
                                E(fix[cc][:2]); fix[cc] = fix[cc][2:]; break
    assert not anext and not misc and not sh and not oq and all(p[0] == "W2" for p in pend), (pend, anext, misc, len(sh))
    left = [w2_piece(p[1], p[2]) for p in pend]
    assert all(not x for x in fix.values()), {k: len(x) for k, x in fix.items()}
    e("s_waitcnt lgkmcnt(0)"); e("s_barrier")
    stamp(1)
    e(f"s_bitcmp1_b32 s{SLAY}, 0"); e("s_cbranch_scc1 L_epiB")
    qm = [f"{MF} {v(acc(c,i),4)}, {wdst(step,c)}, {a(RING+16*(step%AD)+4*i,4)}, {v(acc(c,i),4)}"
          for step in range(32-ND, 32) for c in range(2) for i in (range(4) if c == 0 else reversed(range(4)))]

    def features(c0, F, tmp, hooks):
        hk = iter(hooks)
        def H():
            f = next(hk, None)
            if f: f()
        for i in range(4): cvt4(F+4*i, acc(c0,i), acc(c0+1,i))
        for i in range(4):
            for fb in range(2): e(f"{MF} {v(acc(c0+fb,i),4)}, {v(PHI+4*fb,4)}, {v(F+4*i,4)}, 0")
        H()
        MX, MN = tmp, tmp+4
        for i in range(4):
            p0, p1 = acc(c0,i), acc(c0+1,i)
            for op, op2, d in (("v_max3_f32", "v_max_f32", MX+i), ("v_min3_f32", "v_min_f32", MN+i)):
                e(f"{op} v{d}, v{p0}, v{p0+1}, v{p0+2}"); e(f"{op} v{d}, v{d}, v{p0+3}, v{p1}")
                e(f"{op} v{d}, v{d}, v{p1+1}, v{p1+2}"); e(f"{op2} v{d}, v{d}, v{p1+3}")
        H()
        xreduce([("v_max_f32", [MX, MX+1, MX+2, MX+3]), ("v_min_f32", [MN, MN+1, MN+2, MN+3])])
        for i in range(4):
            e(f"v_mul_f32 v{MX+i}, -v{MX+i}, v{CI+i}"); e(f"v_mul_f32 v{MN+i}, v{MN+i}, v{CI+i}")
        H()
        for i in range(4):
            for fb in range(2):
                for h in range(2):
                    pk_fma(224+8*i+4*fb+2*h, acc(c0+fb,i)+2*h, CI+i, ('b', MX+i))
                    pk_fma(acc(c0+fb,i)+2*h, acc(c0+fb,i)+2*h, CI+i, ('b', MN+i), negx=True)
        for i in range(4):
            H()
            for r in range(8): e(f"v_exp_f32 v{224+8*i+r}, v{224+8*i+r}")
            for fb in range(2):
                for r in range(4): e(f"v_exp_f32 v{acc(c0+fb,i)+r}, v{acc(c0+fb,i)+r}")
            cvt4(F+4*i, 224+8*i, 224+8*i+4)
            cvt4(224+8*i, acc(c0,i), acc(c0+1,i))
            if c0 == 2:
                e(f"{MF} {v(acc(2,i),4)}, {v(ONES,4)}, {v(192+4*i,4)}, 0")
                e(f"ds_write_b128 v{vXW}, {v(192+4*i,4)} offset:{i*1024}")
                e(f"{MF} {v(acc(3,i),4)}, {v(ONES,4)}, {v(224+8*i,4)}, 0")
                e(f"ds_write_b128 v{vXW}, {v(224+8*i,4)} offset:{16384 + i*1024}")
    la_ = list(left)
    def hk_left(n):
        def f():
            for j in range(n):
                if la_: E(la_.pop(0))
        return f
    features(2, 192, 208, [hk_left(2)]*6 + [hk_left(99)])
    for i in range(4):
        e(f"v_rcp_f32 v{208+2*i}, v{acc(2,i)}"); e(f"v_rcp_f32 v{209+2*i}, v{acc(3,i)}")
    for i in range(4):
        e(f"v_cvt_pk_bf16_f32 v{216+i}, v{208+2*i}, v{209+2*i}")
        pk_mul(208+2*i, 208+2*i, STP+2*i)
    for i in range(4):
        off = (i >> 1)*64 + (i & 1)*8
        for b in range(2):
            for h in range(2): pk_mul(acc(2+b,i)+2*h, acc(4+b,i)+2*h, 208+2*i)
        e(f"ds_write_b16 v{vRSW}, v{216+i} offset:{off}")
        cvt4(228+8*i, acc(2,i), acc(3,i))
        e(f"ds_write_b128 v{vXW}, {v(228+8*i,4)} offset:{32768 + i*1024}")
        for b in range(2):
            for h in range(2): pk_mul(acc(4+b,i)+2*h, acc(4+b,i)+2*h, 209+2*i)
        e(f"ds_write_b16_d16_hi v{vRSW}, v{216+i} offset:{off+512}")
        cvt4(192+4*i, acc(4,i), acc(5,i))
        e(f"ds_write_b128 v{vXW}, {v(192+4*i,4)} offset:{49152 + i*1024}")
    e(f"s_add_u32 s{T2}, s{sKV}, s{ROTA}")
    e(f"s_lshl_b32 s{T4}, s{SGRP}, 8"); e(f"s_add_u32 s{T4}, s{T4}, s{sZP}")
    e("s_waitcnt lgkmcnt(0)"); e("s_barrier")
    stamp(2)
    def kvreads(p):
        b = 96 + 16*(p % 4)
        for t in range(2):
            e(f"ds_read_b64_tr_b16 {v(b+2*t,2)}, v{vE0} offset:{(2*p+t)*1024}")
            e(f"ds_read_b64_tr_b16 {v(b+4+2*t,2)}, v{vE1} offset:{(2*p+t)*1024}")
            e(f"ds_read_b64_tr_b16 {v(b+8+2*t,2)}, v{vE0} offset:{32768 + (2*p+t)*1024}")
        e(f"ds_read_b128 {v(b+12,4)}, v{vRSR} offset:{M_RS-M + p*64}")
    kvreads(0); kvreads(1)
    for p in range(8):
        e(f"s_waitcnt lgkmcnt({7 if p < 7 else 0})")
        b = 96 + 16*(p % 4)
        e(f"{MF} v[168:171], {v(b,4)}, {v(b+8,4)}, {'0' if p == 0 else 'v[168:171]'}")
        e(f"{MF} v[172:175], {v(b+4,4)}, {v(b+8,4)}, {'0' if p == 0 else 'v[172:175]'}")
        e(f"{MF} v[200:203], {v(b,4)}, {v(b+12,4)}, {'0' if p == 0 else 'v[200:203]'}")
        if p + 2 < 8: kvreads(p+2)
    e("s_barrier")
    qa = list(qm)
    for j in range(3): e(qa.pop(0))
    cv = cvt4l(192, 168, 172)
    E(cv[:2]); e(qa.pop(0)); E(cv[2:]); e(qa.pop(0))
    e(f"buffer_store_dwordx4 v[192:195], v{vL16}, {SRD}, s{T2} offen sc1"); e(qa.pop(0))
    e(f"s_mov_b64 exec, {sm(mM0)}")
    e(f"buffer_store_dwordx4 v[200:203], v{vG16}, {SRD}, s{T4} offen sc1")
    e("s_mov_b64 exec, -1")
    stamp(3)
    late = list(range(14))
    n = 0
    while qa:
        e(qa.pop(0)); n += 1
        if n % 6 == 1 and late:
            ins = w2_late(late[0]); E(ins[:-1])
        if n % 6 == 2 and late:
            E(w2_late(late.pop(0))[-1:])
    def hk_late():
        for j in range(2):
            if late: E(w2_late(late.pop(0)))
    def g1(p): return [f"s_add_u32 s{T0}, s{sKV}, s{ROTA+1+p}", f"buffer_load_dwordx4 {v(96+4*p,4)}, v{vL16}, {SRD}, s{T0} offen sc1"]
    gz = f"buffer_load_dwordx4 v[192:195], v{vZL}, {SRD}, s{sZP} offen sc1"
    def gather():
        for p in range(7): E(g1(p))
        e(gz)
        e(f"s_andn2_b64 {sm(T1)}, {sm(mDIAG)}, {sm(mB1)}"); e(f"s_and_b64 {sm(T3)}, {sm(mDIAG)}, {sm(mB1)}")
        e(f"v_or_b32 v128, v{MO0}, v{MP0}"); e(f"v_and_b32 v128, v128, v{ONES}")
        e(f"v_cndmask_b32 v130, 0, v128, {sm(T1)}"); e(f"v_cndmask_b32 v131, 0, v128, {sm(T3)}")
        for r in (128, 129, 132, 133): e(f"v_mov_b32 v{r}, 0")
    def hk_rest():
        while late: E(w2_late(late.pop(0)))
    features(0, 204, 196, [hk_late]*(o.gpos-1) + [hk_rest, gather])
    stamp(4)
    e(f"s_mov_b32 s{sTMO}, 0")
    for p in range(8):
        r0 = 96+4*p if p < 7 else 192
        e(f"s_waitcnt vmcnt({7-p})")
        A.label(f"L_kvc{p}")
        e(f"v_cmp_eq_u32 vcc, -1, v{r0}"); e(f"s_cbranch_vccnz L_kvs{p}")
        A.label(f"L_kvo{p}")
        if p < 7:
            e(f"{MF} v[168:171], v[130:133], {v(r0,4)}, v[168:171]"); e(f"{MF} v[172:175], v[128:131], {v(r0,4)}, v[172:175]")
        def kvslow(p=p):
            A.label(f"L_kvs{p}")
            e(f"s_add_u32 s{sTMO}, s{sTMO}, 1"); e(f"s_cmp_ge_u32 s{sTMO}, 0x100000"); e(f"s_cbranch_scc1 L_kvo{p}")
            e("s_waitcnt vmcnt(0)")
            for p2 in range(p, 7):
                if p2 > p:
                    e(f"v_cmp_eq_u32 vcc, -1, v{96+4*p2}"); e(f"s_cbranch_vccz L_kvn{p}_{p2}")
                E(g1(p2))
                if p2 > p: A.label(f"L_kvn{p}_{p2}")
            e(gz); e("s_waitcnt vmcnt(0)"); e(f"s_branch L_kvc{p}")
        ool.append(kvslow)
    for sh_ in (4, 2, 1):
        for r in range(4): e(f"v_add_f32_dpp v{192+r}, v{192+r}, v{192+r} row_ror:{sh_} row_mask:0xf bank_mask:0xf")
    e("v_cvt_pk_bf16_f32 v192, v192, v193"); e("v_cvt_pk_bf16_f32 v193, v194, v195")
    e(f"v_and_b32 v200, 8, v{vZW}"); e(f"v_add_u32 v200, v200, v{vKX}"); e("v_xor_b32 v201, 8, v200")
    cvt4(196, 168, 172)
    e("ds_write_b64 v200, v[196:197]"); e("ds_write_b64 v201, v[198:199]")
    e(f"s_mov_b64 exec, {sm(mM0)}")
    e(f"ds_write_b64 v{vZW}, v[192:193] offset:{M_ZF-M}")
    e("s_mov_b64 exec, -1")
    e("s_waitcnt lgkmcnt(0)"); e("s_barrier")
    stamp(5)
    for t in range(2): e(f"ds_read_b128 {v(184+4*t,4)}, v{vGM} offset:{M_ZF-M + t*64}")
    for j in range(4): e(ldsrd(v(168+4*j,4), M_KX + j*1024))
    e(f"s_add_u32 s{sKV}, s{sKV}, 0x100000"); e(f"s_add_u32 s{sZP}, s{sZP}, 0x10000")
    e("s_waitcnt lgkmcnt(4)")
    for r in range(8): e(f"v_cndmask_b32 v{184+r}, v{184+r}, v{ONES}, {sm(mM1)}")
    for i in range(4):
        b = 64+24*i
        e(f"{MF} {v(b,4)}, v[184:187], {v(204+4*i,4)}, 0"); e(f"{MF} {v(b+4,4)}, v[188:191], {v(224+8*i,4)}, 0")
    e("s_waitcnt lgkmcnt(0)")
    sc = []
    for i in range(4):
        b = 64+24*i
        sc += [[f"v_rcp_f32 v{b+2}, v{b+1}"], [f"v_rcp_f32 v{b+3}, v{b+5}"]]
    for i in range(4):
        b = 64+24*i
        sc += [[f"v_mul_f32 v{b}, v{b}, v{b+2}", f"v_fmac_f32 v{b}, v{b+4}, v{b+3}"], [f"v_add_f32 v{b}, {f32hex(1e-6)}, v{b}", f"v_rcp_f32 v{b}, v{b}"]]
    for i in range(4):
        b = 64+24*i; ep, en = v(204+4*i,4), v(224+8*i,4)
        for t in (f"{MF} {v(b+8,4)}, v[168:171], {ep}, 0", f"{MF} {v(b+12,4)}, v[172:175], {ep}, 0",
                  f"{MF} {v(b+16,4)}, v[176:179], {en}, 0", f"{MF} {v(b+20,4)}, v[180:183], {en}, 0"):
            e(t); E(sc.pop(0))
    for i in range(4): pk_mul(64+24*i+2, 64+24*i+2, 64+24*i)
    for i in range(4):
        b = 64+24*i
        for r in range(0, 8, 2): pk_mul(b+8+r, b+8+r, b+2)
        for r in range(0, 8, 2): pk_fma(b+8+r, b+16+r, b+3, ('p', b+8+r))
        cvt4(208+4*i, b+8, b+12)
    e("s_branch L_g2")

    A.label("L_epiB")
    fl = []
    for i in (3, 2, 1, 0):
        for c0, F in ((2, 192), (4, 224)):
            ms = [f"v_mul_f32 v{acc(c,i)+j}, v{acc(c,i)+j}, v{STP+2*i}" for c in (c0, c0+1) for j in range(4)]
            ms += cvt4l(F+4*i, acc(c0,i), acc(c0+1,i))
            fl += [ms[j:j+2] for j in range(0, 12, 2)]
        if i == 3:
            fl.append([f"buffer_store_dwordx4 v[204:207], v{vL16}, {SRD}, s{T0} offen sc1"])
            fl.append([f"ds_write_b128 v{vKX}, v[204:207] offset:1024"])
            fl.append([f"buffer_store_dwordx4 v[236:239], v{vL16}, {SRD}, s{T0} offen offset:1024 sc1"])
        fl.append([f"ds_write_b128 v{vXW}, {v(224+4*i,4)} offset:{VB_LDS + i*1024}"])
    fl.append([f"buffer_load_dwordx4 v[168:171], v{vL16}, {SRD}, s{T1} offen sc1"])
    fl.append([f"buffer_load_dwordx4 v[172:175], v{vL16}, {SRD}, s{T1} offen offset:1024 sc1"])
    e(f"s_cmp_eq_u32 s{SW}, 3"); e(f"s_cselect_b32 s{T0}, s{sHALO}, {OOR}")
    e(f"s_sub_u32 s{T1}, s{sHALO}, 0x10000"); e(f"s_cmp_eq_u32 s{SW}, 0"); e(f"s_cselect_b32 s{T1}, s{T1}, {OOR}")
    e(f"s_cmp_eq_u32 s{SGRP}, 0"); e(f"s_cselect_b32 s{T1}, {OOR}, s{T1}")
    e(f"s_add_u32 s{sHALO}, s{sHALO}, 0x80000")
    qb = list(qm); late = list(left) + [w2_late(i) for i in range(14)]
    for j in range(2): e(qb.pop(0))
    n = 0
    while qb or fl:
        if qb: e(qb.pop(0))
        n += 1
        if n % o.brate == 0 and late and len(fl) > 4: E(late.pop(0))
        elif fl: E(fl.pop(0))
    for i in range(4): cvt4(240+4*i, acc(0,i), acc(1,i))
    e("s_waitcnt lgkmcnt(0)"); e("s_barrier")
    stamp(2)
    e(f"ds_read_b128 v[208:211], v{vKX}")
    for db in range(2):
        e(f"ds_read_b64_tr_b16 {v(96+10*db,2)}, v{vVp} offset:{db*8}")
        for i in range(4): e(f"ds_read_b64_tr_b16 {v(98+10*db+2*i,2)}, v{vVo} offset:{VB_LDS + i*1024 + db*8}")
    nlate0 = len(late)
    def LT():
        if late: E(late.pop(0))
    for i in (3, 2, 1, 0):
        e(f"{MF} {v(128+8*i,4)}, {v(192+4*i,4)}, {v(240+4*i,4)}, 0")
        if i: e(f"{MF} {v(132+8*i,4)}, {v(192+4*(i-1),4)}, {v(240+4*i,4)}, 0")
        if i % 2: LT()
    e(f"v_mov_b32 v217, {f32hex(-3.0e38)}")
    for i in (3, 2, 1, 0):
        b = 128+8*i
        if i == 0:
            e("s_waitcnt lgkmcnt(0)")
            e(f"s_cmp_eq_u32 s{SW}, 0"); e("s_cbranch_scc1 L_halo")
            A.label("L_halod")
            def halo(n=nlate0-len(late)):
                A.label("L_halo")
                e(f"s_mov_b32 s{sTMO}, 0"); e(f"v_add_u32 v216, {M_HV}, v{vXW}"); e(f"s_waitcnt vmcnt({n})")
                A.label("L_halop")
                e("v_max_u32 v218, v168, v172"); e("v_cmp_eq_u32 vcc, -1, v218"); e("s_cbranch_vccz L_halow")
                e(f"buffer_load_dwordx4 v[168:171], v{vL16}, {SRD}, s{T1} offen sc1")
                e(f"buffer_load_dwordx4 v[172:175], v{vL16}, {SRD}, s{T1} offen offset:1024 sc1")
                e("s_waitcnt vmcnt(0)")
                tmo("L_halop")
                A.label("L_halow")
                e("ds_write_b128 v216, v[172:175]")
                for db in range(2): e(f"ds_read_b64_tr_b16 {v(96+10*db,2)}, v{vVp} offset:{db*8}")
                for r in range(4): e(f"v_mov_b32 v{208+r}, v{168+r}")
                e("s_nop 1"); e("s_branch L_halod")
            ool.append(halo)
            e(f"{MF} v[132:135], v[208:211], v[240:243], 0")
        for r in range(0, 8, 2): e(f"v_cndmask_b32 v{b+r}, v{b+r}, v{b+r+1}, {sm(mPAR)}")
        if i == 0:
            e(f"v_cndmask_b32 v{b+4}, v{b+4}, v217, {sm(mFIRST)}"); e(f"v_cndmask_b32 v{b+6}, v{b+6}, v217, {sm(mFIRST)}")
        e(f"v_cndmask_b32 v{116+2*i}, v{b+4}, v{b}, {sm(mOWN0)}")
        e(f"v_cndmask_b32 v{117+2*i}, v{b+6}, v{b+2}, {sm(mOWN1)}")
        e(f"v_max_f32 v{124+i}, v{116+2*i}, v{117+2*i}")
        LT()
    xreduce([("v_max_f32", [124, 125, 126, 127])])
    LT()
    for i in range(4):
        e(f"v_sub_f32 v{116+2*i}, v{116+2*i}, v{124+i}"); e(f"v_sub_f32 v{117+2*i}, v{117+2*i}, v{124+i}")
    for i in range(4): pk_mul(116+2*i, 116+2*i, CI+i)
    LT()
    for r in range(8): e(f"v_exp_f32 v{116+r}, v{116+r}")
    while late: LT()
    for r in range(8): e(f"v_cvt_pk_bf16_f32 v{116+r}, v{116+r}, v{116+r}")
    e("s_waitcnt lgkmcnt(0)")
    for i in range(4):
        e(f"v_and_b32 v{192+4*i}, v{116+2*i}, v{MP0}"); e(f"v_and_b32 v{193+4*i}, v{117+2*i}, v{MP1}")
        e(f"v_and_b32 v{194+4*i}, v{116+2*i}, v{MO0}"); e(f"v_and_b32 v{195+4*i}, v{117+2*i}, v{MO1}")
    for i in range(4): e(f"{MF} {v(128+4*i,4)}, {v(ONES,4)}, {v(192+4*i,4)}, 0")
    for i in range(4):
        for db in range(2): e(f"{MF} {v(64+8*i+4*db,4)}, {v(96+10*db+2*i,4)}, {v(192+4*i,4)}, 0")
    for i in range(4): e(f"v_rcp_f32 v{128+4*i}, v{128+4*i}")
    for i in range(4):
        for r in range(0, 8, 2): pk_mul(64+8*i+r, 64+8*i+r, 128+4*i)
        cvt4(208+4*i, 64+8*i, 68+8*i)

    A.label("L_g2")
    e(f"s_cmp_eq_u32 s{SLAY}, 0"); e(f"s_cselect_b32 s{T0}, 1, s{SMODE}")
    st_mode([f"buffer_store_dwordx4 {v(208+4*i,4)}, v{vA+i}, {SRD}, s{sO} offen" for i in range(4)], T0)
    stamp(6)
    for i in range(2):
        for kk in range(2):
            for r in range(4):
                d = acc2(2*kk + (r >> 1), i) + 2*(r & 1); x = RES+8*i+4*kk+r
                e(f"v_lshlrev_b32 v{d}, 16, v{x}"); e(f"v_and_b32 v{d+1}, 0xffff0000, v{x}")
    e(f"s_add_u32 s{T6}, s{SLAY}, 1"); e(f"v_mov_b32 v{vVal}, s{T6}")
    e(f"s_xor_b32 s{sW1}, s{sW1}, {WS_W1A ^ WS_W1B}"); e(f"s_xor_b32 s{sW2}, s{sW2}, {WS_W2A ^ WS_W2B}")
    e(f"s_xor_b32 s{sCSL}, s{sCSL}, 384"); e(f"s_xor_b32 s{sCK}, s{sCK}, {int(CK_A,16) ^ int(CK_B,16)}")
    e(f"s_cmp_eq_u32 s{SLAY}, {o.last}"); e(f"s_cselect_b32 s{sW1}, {OOR}, s{sW1}")
    e("s_waitcnt vmcnt(0)")
    e("s_mov_b64 exec, 1")
    st_mode([f"buffer_store_dword v{vVal}, off, {SRD}, s{sFOp}"])
    e("s_mov_b64 exec, -1")
    e("s_barrier")
    stamp(7)
    lq.clear(); vq.clear()
    W2F = RING; AF2 = RING + 32; GD = o.g2depth
    def w2rd(step, b):
        lq.add(("W", step, b))
        ad = (step*4096 if step < 14 else 3*SLOT + (step-14)*4096) + b*1024
        return ldsrd(a(W2F + 16*(step % 2) + 4*b, 4), ad)
    for st in range(2):
        for b in range(4): e(w2rd(st, b))
    poll_ge(vFP, sFOc, T6, FBV)
    stamp(8)
    def bload(step, i):
        d = AF2 + 8*(step % GD) + 4*i; r = []
        if i == 0 and step % 4 == 0: r.append(f"s_mov_b32 s{sAo}, {WS_O + step*1024}")
        vq.add(("A", step))
        return r + [f"buffer_load_dwordx4 {a(d,4)}, v{vB+i}, {SRD}, s{sAo} offen offset:{(step%4)*1024} sc1"]
    for st in range(GD-1):
        for i in range(2): E(bload(st, i))
    w1n = list(range(6))
    for step in range(32):
        E(vq.wait(("A", step)))
        if step == 18: e("s_barrier")
        a0 = AF2 + 8*(step % GD)
        for b in range(4):
            E(lq.wait(("W", step, b)))
            for p, i in enumerate(range(2) if b % 2 == 0 else (1, 0)):
                e(f"{MF} {v(acc2(b,i),4)}, {a(W2F+16*(step%2)+4*b,4)}, {a(a0+4*i,4)}, {v(acc2(b,i),4)}")
                if b % 2 == 0 and p == 0:
                    if step + GD - 1 < 32: E(bload(step+GD-1, b//2))
                    elif w1n and b == 0 and step >= 18:
                        E(w1_piece(1, w1n.pop(0))); vq.add("W")
            if step + 2 < 32: e(w2rd(step+2, b))
            if step == 19 and b == 3:
                la, ld = A.new("resA"), A.new("resd")
                e(f"s_bitcmp1_b32 s{SLAY}, 0"); e(f"s_cbranch_scc1 {la}")
                for blk in range(6): e(f"ds_write_b128 v{vLW}, {a(RB+4*blk,4)} offset:{SLOT + blk*1024}"); lq.add("rw")
                A.label(ld)
                def resA(la=la, ld=ld):
                    A.label(la)
                    for blk in range(6): e(f"ds_write_b128 v{vLW}, {a(RA+4*blk,4)} offset:{SLOT + blk*1024}")
                    e(f"s_branch {ld}")
                ool.append(resA)
    assert not w1n
    stamp(9)
    for i in range(2):
        for kk in range(2): cvt4(RES+8*i+4*kk, acc2(2*kk,i), acc2(2*kk+1,i))
    e(f"s_cmp_eq_u32 s{SLAY}, {o.last}"); e("s_cbranch_scc1 L_final")
    xtile(RES, 160, False)
    e("s_waitcnt vmcnt(0)")
    e("s_mov_b64 exec, 1")
    st_mode([f"buffer_store_dword v{vVal}, off, {SRD}, s{sFXp}"])
    e("s_mov_b64 exec, -1")
    stamp(10)
    e(f"s_add_u32 s{SLAY}, s{SLAY}, 1")
    e("s_branch L_g1pre")
    A.label("L_final")
    srt(P_OUT, 0x400000); e(f"s_mov_b32 s{T0}, 0x8000")
    for i in range(2):
        for kk in range(2):
            e(f"buffer_store_dwordx4 {v(RES+8*i+4*kk,4)}, v{vOut}, {SRT}, {'0' if i == 0 else 's%d' % T0} offen offset:{kk*64}")
    if o.stamps:
        e("s_waitcnt vmcnt(0)")
        stamp(11)
        e(f"s_lshl_b32 s{T0}, s{SIDX}, 2"); e(f"s_add_u32 s{T0}, s{T0}, s{SW}")
        e(f"s_lshl_b32 s{T0}, s{T0}, 8"); e(f"s_add_u32 s{T0}, s{T0}, {WS_STAMPS}")
        e(f"v_lshrrev_b32 v200, 2, v{vL16}")
        e(f"buffer_store_dword v{vSTAMP}, v200, {SRD}, s{T0} offen")
        if o.dbgout:
            e(f"s_lshl_b32 s{T0}, s{SIDX}, 2"); e(f"s_add_u32 s{T0}, s{T0}, s{SW}"); e(f"s_cmp_lg_u32 s{T0}, {o.dbgout}"); e("s_cbranch_scc1 L_nodbg")
            srt(P_DBG, 256)
            e(f"v_readlane_b32 s{T1}, v{vSTAMP}, 12")
            for j, idx in enumerate((28, 13, 31, 14, 15, 1, 5, 8, 9, 17, 25, 33, 41, 49, 59)):
                e(f"v_readlane_b32 s{T2}, v{vSTAMP}, {idx}"); e(f"s_sub_u32 s{T2}, s{T2}, s{T1}"); e(f"v_mov_b32 v201, s{T2}")
                e(f"buffer_store_dword v201, off, {SRT}, 0 offset:{4+4*j}")
            A.label("L_nodbg")
    e("s_endpgm")
    for blk in ool: blk()
    A.label("L_codeend")
    e("s_endpgm")
    A.raw('.section .rodata,"a"'); A.raw(".p2align 6"); A.raw(f".amdhsa_kernel {KNAME}")
    for t in ("next_free_vgpr 512", "next_free_sgpr 102", "accum_offset 256", "group_segment_fixed_size 0", "kernarg_size 80",
              "user_sgpr_count 2", "user_sgpr_kernarg_segment_ptr 1", "system_sgpr_workgroup_id_x 1"):
        A.raw("  .amdhsa_" + t)
    A.raw(".end_amdhsa_kernel")
    return A.text()

if __name__ == "__main__":
    o = Opts()
    out = sys.argv[1]
    for kv in sys.argv[2:]:
        k, val = kv.split("=")
        setattr(o, k, int(val))
    open(out, "w").write(gen(o))
```

```python
import sys, struct
from asmlib import *

KNAME = "interleave_layers__linear_kernel_hedgehog__sliding_local_dilated__prompt_kernel"

WS_FLAGA = 0x0000000
WS_FLAGB = 0x0008000
WS_FLAGO = 0x0009000
WS_FLAGX = 0x000A000
WS_CS    = 0x0010000
CS_SZ    = 393216
WS_ST    = 0x0100000
WS_ZP    = 0x0140000
WS_STAMPS= 0x0180000
WS_HALO  = 0x0200000
WS_KVP   = 0x0400000
WS_W1A   = 0x0800000
WS_W1B   = 0x0E00000
WS_W2A   = 0x1400000
WS_W2B   = 0x1600000
WS_X     = 0x1800000
WS_X0    = WS_X
WS_O     = 0x1C00000
WS_SIZE  = 0x10000000
OOR      = 0x40000000

SLOT = 24576
M      = 147456
M_MODE = M
M_CS   = M + 64
M_ST   = M + 1024
M_RS   = M + 3072
M_KX   = M + 4096
M_HV   = M + 9216
M_ZF   = M + 10240
M_PHI  = M + 11264
LDS_SIZE = 163840
VB_LDS = 57344
RAW1A, RAW1B, RAW2 = 3*SLOT, 4*SLOT, 5*SLOT

SRD = "s[4:7]"; SRT = "s[8:11]"
SW, SGRP, SMEM, SMODE, SLAY, SCB, SRB = 12, 13, 14, 15, 16, 17, 18
T0, T1, T2, T3, T4, T5, T6, T7 = 19, 20, 21, 22, 23, 24, 25, 26
SIDX, sCK, SXCC = 27, 28, 29
sFOc, sFOp, sFXc, sFXp = 30, 31, 32, 33
sO, sXs = 34, 35
mPAR, mB1, mDIAG, mM0, mOWN0, mOWN1, mM1, mFIRST = 36, 38, 40, 42, 44, 46, 48, 50
sW1, sW2, sCSL, sFBp, sSTs, sLW, sKV, sZP, sHALO, sTMO, sAo, sWo = 52, 53, 54, 55, 56, 57, 58, 59, 60, 61, 62, 63
P_AX, P_AW1, P_PHI, P_AW2, P_BX, P_BW1, P_BW2, P_OUT, P_DBG, P_WS = 64, 66, 68, 70, 72, 74, 76, 78, 80, 82
sCL0, sCL1, sCL2, sL14, sW2l = 72, 73, 3, 2, 0
sSTAMP = 84
ROTA, ROTW = 86, 94

vL16, vL64, vL128 = 1, 2, 3
vA = 4; vB = 8; vW1 = 10; vW2 = 11; vFP = 12; vSTl = 13; vSTs = 14; vSTAMP = 15
RES = 16; PHI = 32; ONES = 40; MP0, MP1, MO0, MO1 = 44, 45, 46, 47
vXW, vE0, vE1, vRSW, vRSR, vVo, vVp, vKX, vGM, vZW, vSW, vSR, vG16, vOut, vZL, vVal = range(48, 64)
vLW = 0
ACC = 64
def acc(c, i): return ACC + 16*c + 4*i
def acc2(b, i): return ACC + 8*b + 4*i
STP = 160; CSR = 168; WFV = 192; FBV = 216; CI = 220
RA, RB, RING = 0, 24, 48
MF = "v_mfma_f32_16x16x32_bf16"
def f32hex(x): return "0x%08x" % struct.unpack("<I", struct.pack("<f", x))[0]
CK_A = f32hex(1.4426950408889634); CK_B = f32hex(1.4426950408889634 * 32 ** -0.5)

class Opts:
    stamps = 0
    last = 3
    force_slow = 0
    ND = 8
    LA = 4
    APRE = 3
    wrate = 150
    w2rate = 200
    g2depth = 10
    brate = 5
    bfirst = 1
    gpos = 2
    dbgout = 0
    outsc = 0
    x_bx = 0
    x_now1 = 0
    x_nost = 0
    x_norot = 0
    x_noa = 0
    w2start = 25
    x_samew = 0
    o4sc = 0
    codepf = 1

class Q:
    def __init__(self, name, mx): self.q = []; self.name = name; self.mx = mx; self.seen = set(); self.ghost = set()
    def add(self, tag, ghost=False):
        self.q.append(tag); self.seen.add(tag)
        if ghost: self.ghost.add(tag)
    def wait(self, *tags, keep=False):
        assert all(t in self.seen for t in tags), tags
        idx = max([i for i, t in enumerate(self.q) if t in tags], default=-1)
        if idx < 0: return []
        n = sum(1 for t in self.q[idx+1:] if t not in self.ghost)
        if not keep: del self.q[:idx+1]
        return [f"s_waitcnt {self.name}({min(n, self.mx)})"]
    def clear(self): self.q = []; self.seen = set(); self.ghost = set()

def gen(o):
    A = Asm(); e = A.e
    ool = []
    ND = o.ND; AD = ND
    WQ = RING + 16*AD
    assert WQ + 8*ND <= 256
    def E(lst):
        for t in lst:
            if t.endswith(":"): A.label(t[:-1])
            else: e(t)
    def stamp(name):
        if not o.stamps: return
        if o.stamps == 2 and name not in (12, 11): return
        e(f"{'s_memtime' if o.stamps == 3 else 's_memrealtime'} s[{sSTAMP}:{sSTAMP+1}]")
        e(f"s_mov_b32 s{T7}, m0"); e(f"s_lshl_b32 m0, s{SLAY}, 4"); e(f"s_add_u32 m0, m0, {name}")
        e("s_waitcnt lgkmcnt(0)")
        e(f"v_writelane_b32 v{vSTAMP}, s{sSTAMP}, m0"); e(f"s_mov_b32 m0, s{T7}")
    def srt(p, size):
        e(f"s_mov_b32 s8, s{p}"); e(f"s_mov_b32 s9, s{p+1}"); e(f"s_mov_b32 s10, {size}"); e("s_mov_b32 s11, 0x20000")
    def mask64(r, val):
        e(f"s_mov_b32 s{r}, 0x{val & 0xffffffff:08x}"); e(f"s_mov_b32 s{r+1}, 0x{val >> 32:08x}")
    def sm(r): return f"s[{r}:{r+1}]"
    def bc(r): return (v(r & ~1, 2), r & 1)
    def pk_fma(d, x, y, z, negx=False):
        yp, ys = bc(y)
        if z[0] == 'p': zp, zl, zh = v(z[1], 2), 0, 1
        else:
            zp, zs = bc(z[1]); zl = zh = zs
        t = f"v_pk_fma_f32 {v(d,2)}, {v(x,2)}, {yp}, {zp} op_sel:[0,{ys},{zl}] op_sel_hi:[1,{ys},{zh}]"
        if negx: t += " neg_lo:[1,0,0] neg_hi:[1,0,0]"
        e(t)
    def pk_mul(d, x, y):
        yp, ys = bc(y)
        e(f"v_pk_mul_f32 {v(d,2)}, {v(x,2)}, {yp} op_sel:[0,{ys}] op_sel_hi:[1,{ys}]")
    def cvt4l(d, x0, x1):
        return [f"v_cvt_pk_bf16_f32 v{d}, v{x0}, v{x0+1}", f"v_cvt_pk_bf16_f32 v{d+1}, v{x0+2}, v{x0+3}",
                f"v_cvt_pk_bf16_f32 v{d+2}, v{x1}, v{x1+1}", f"v_cvt_pk_bf16_f32 v{d+3}, v{x1+2}, v{x1+3}"]
    def cvt4(d, x0, x1): E(cvt4l(d, x0, x1))
    def st_mode(lines, reg=SMODE):
        ls, ld = A.new("slow"), A.new("done")
        e(f"s_cmp_lg_u32 s{reg}, 0"); e(f"s_cbranch_scc1 {ls}")
        for t in lines: e(t)
        A.label(ld)
        def blk():
            A.label(ls); A.fence()
            for t in lines: e(t + (" sc1" if t.startswith("buffer_store") else ""))
            e("s_nop 1"); e(f"s_branch {ld}")
        ool.append(blk)
    def tmo(lbl, lim=0x100000):
        e(f"s_add_u32 s{sTMO}, s{sTMO}, 1"); e(f"s_cmp_lt_u32 s{sTMO}, {lim}"); e(f"s_cbranch_scc1 {lbl}")
    def poll_ge(vaddr, soff, sval, vt):
        l, d = A.new("poll"), A.new("polld")
        e(f"s_mov_b32 s{sTMO}, 0")
        A.label(l)
        e(f"buffer_load_dword v{vt}, v{vaddr}, {SRD}, s{soff} offen sc1")
        e("s_waitcnt vmcnt(0)")
        e(f"v_cmp_gt_u32 vcc, s{sval}, v{vt}")
        e(f"s_cbranch_vccz {d}")
        tmo(l)
        A.label(d)
    def xreduce(groups):
        for op, q in groups: e(f"v_permlane32_swap_b32 v{q[0]}, v{q[1]}"); e(f"v_permlane32_swap_b32 v{q[2]}, v{q[3]}")
        for op, q in groups: e(f"{op} v{q[0]}, v{q[0]}, v{q[1]}"); e(f"{op} v{q[2]}, v{q[2]}, v{q[3]}")
        for op, q in groups: e(f"v_permlane16_swap_b32 v{q[0]}, v{q[2]}")
        for op, q in groups: e(f"{op} v{q[1]}, v{q[0]}, v{q[2]}"); e(f"{op} v{q[2]}, v{q[0]}, v{q[2]}")
        for op, q in groups: e(f"v_permlane16_swap_b32 v{q[1]}, v{q[2]}")
        for op, q in groups: e(f"v_mov_b32 v{q[0]}, v{q[1]}"); e(f"v_mov_b32 v{q[3]}, v{q[2]}")
        for op, q in groups: e(f"v_permlane32_swap_b32 v{q[0]}, v{q[1]}"); e(f"v_permlane32_swap_b32 v{q[2]}, v{q[3]}")
    def xtile(R, tmp, always_sc1):
        st = [f"buffer_store_dwordx4 {v(R+8*i+4*kk,4)}, v{vB+i}, {SRD}, s{sXs} offen offset:{kk*1024}" for i in range(2) for kk in range(2)]
        for kk in range(2):
            for i in range(2):
                f = v(R+8*i+4*kk, 4)
                e(f"{MF} {v(tmp+8*i,4)}, {v(ONES,4)}, {f}, {'0' if kk == 0 else v(tmp+8*i,4)}")
                e(f"{MF} {v(tmp+8*i+4,4)}, {f}, {f}, {'0' if kk == 0 else v(tmp+8*i+4,4)}")
        if always_sc1:
            for t in st: e(t + " sc1")
        else: st_mode(st)
        for i in range(2):
            g0 = tmp+8*i+4
            e(f"v_cndmask_b32 v{g0}, v{g0}, v{g0+1}, {sm(mPAR)}")
            e(f"v_cndmask_b32 v{g0+2}, v{g0+2}, v{g0+3}, {sm(mPAR)}")
            e(f"v_cndmask_b32 v{tmp+8*i+1}, v{g0}, v{g0+2}, {sm(mB1)}")
        st = [f"buffer_store_dwordx2 {v(tmp+8*i,2)}, v{vSTs}, {SRD}, s{sSTs} offen offset:{i*128}" for i in range(2)]
        e(f"s_mov_b64 exec, {sm(mDIAG)}")
        if always_sc1:
            for t in st: e(t + " sc1")
        else: st_mode(st)
        e("s_mov_b64 exec, -1")
    def w1_piece(stage, i):
        r = []
        slot = (stage + 1) % 6
        if i == 0: r += [f"s_add_u32 m0, s{sLW}, {slot*SLOT}", f"s_add_u32 s{sWo}, s{sW1}, s{ROTW+stage}"]
        if i == 4: r += [f"s_add_u32 m0, s{sLW}, {slot*SLOT + 4096}", f"s_add_u32 s{sWo}, s{sWo}, 4096"]
        if o.x_now1 and stage >= 2: return r + ["s_nop 0"]
        if o.x_samew: return r + [f"buffer_load_dwordx4 v{vLW}, {SRD}, s{sWo} offen offset:{(i%4)*1024} lds"]
        return r + [f"buffer_load_dwordx4 v{vW1}, {SRD}, s{sWo} offen offset:{(i%4)*1024} lds"]
    def w2_piece(part, i):
        r = []
        if i % 4 == 0:
            r += [f"s_add_u32 m0, s{sLW}, {(3+part)*SLOT + (i//4)*4096}", f"s_add_u32 s{sWo}, s{sW2}, {57344 + part*SLOT + (i//4)*4096}"]
        return r + [f"buffer_load_dwordx4 v{vW2}, {SRD}, s{sWo} offen offset:{(i%4)*1024} lds"]
    def w2_late(i):
        r = []
        if i == 0: r += [f"s_add_u32 s{T5}, s{sW2}, s{sW2l}"]
        if i % 4 == 0:
            r += [f"s_add_u32 m0, s{sL14}, {(i//4)*4096}", f"s_add_u32 s{sWo}, s{T5}, {(i//4)*4096}"]
        return r + [f"buffer_load_dwordx4 v{vW2}, {SRD}, s{sWo} offen offset:{(i%4)*1024} lds"]
    def ldsrd(dst, addr):
        base = {0: vL16, 1: vL64, 2: vL128}[addr >> 16]
        return f"ds_read_b128 {dst}, v{base} offset:{addr & 0xffff}"
    def cs_load(d):
        r = [f"s_mul_i32 s{T0}, s{SMEM}, 384", f"s_lshl_b32 s{T1}, s{sCSL}, 10", f"s_add_u32 s{T0}, s{T0}, s{T1}", f"s_add_u32 s{T0}, s{T0}, {WS_CS}",
             f"s_lshl_b32 s{T1}, s{SW}, 6", f"s_add_u32 s{T2}, s{SW}, 4", f"s_min_u32 s{T2}, s{T2}, 5", f"s_lshl_b32 s{T2}, s{T2}, 6",
             f"s_add_u32 s{T3}, s{T0}, s{T1}", f"s_add_u32 s{T4}, s{T0}, s{T2}",
             f"v_bfe_u32 v{d+16}, v{vL16}, 4, 4", f"v_mul_u32_u24 v{d+16}, 12288, v{d+16}", f"v_add_u32 v{d+16}, v{d+16}, v{vG16}",
             f"v_add_u32 v{d+17}, {16*12288}, v{d+16}"]
        for j in range(2):
            r += [f"buffer_load_dwordx4 {v(d+8*j,4)}, v{d+16+j}, {SRD}, s{T3} offen sc1",
                  f"buffer_load_dwordx4 {v(d+8*j+4,4)}, v{d+16+j}, {SRD}, s{T4} offen sc1"]
        r += [f"s_add_u32 s{T1}, s{T1}, s{sCSL}", f"s_add_u32 s{T2}, s{T2}, s{sCSL}",
              f"v_add_u32 v{d+16}, s{T1}, v{vGM}", f"v_add_u32 v{d+17}, s{T2}, v{vGM}"]
        return r
    def cs_proc(d):
        r = [f"v_add_f32 v{d+j}, v{d+j}, v{d+8+j}" for j in range(8)]
        for sh in (8, 4, 2, 1):
            r += [f"v_add_f32_dpp v{d+j}, v{d+j}, v{d+j} row_ror:{sh} row_mask:0xf bank_mask:0xf" for j in range(8)]
        r += [f"s_mov_b64 exec, {sm(mM0)}", f"ds_write_b128 v{d+16}, {v(d,4)} offset:{M_CS-M}",
              f"ds_write_b128 v{d+17}, {v(d+4,4)} offset:{M_CS-M}", "s_mov_b64 exec, -1"]
        return r

    A.raw(f"; @launch grid=(256,1,1) block=(256,1,1) lds={LDS_SIZE}")
    A.raw('.amdgcn_target "amdgcn-amd-amdhsa--gfx950"'); A.raw(".text")
    A.raw(f".globl {KNAME}"); A.raw(".p2align 8"); A.raw(f".type {KNAME},@function"); A.label(KNAME)
    e("s_cmp_lt_u32 s2, 256"); e("s_cbranch_scc1 L_go"); e("s_endpgm"); A.label("L_go")
    e("s_load_dwordx16 s[64:79], s[0:1], 0"); e("s_load_dwordx4 s[80:83], s[0:1], 64")
    e(f"s_getpc_b64 s[{T1}:{T1+1}]"); e(f"s_and_b32 s{T1}, s{T1}, 0xffffff00")
    e(f"s_mov_b32 s{SLAY}, 0")
    e("v_lshlrev_b32 v253, 7, v0")
    e("v_lshrrev_b32 v1, 6, v0"); e("v_and_b32 v254, 63, v0"); e(f"v_readfirstlane_b32 s{SW}, v1")
    if o.stamps: e(f"v_mov_b32 v{vSTAMP}, 0"); stamp(12)
    if o.force_slow:
        e(f"s_lshr_b32 s{SGRP}, s2, 5"); e(f"s_and_b32 s{SMEM}, s2, 31")
    else:
        e(f"s_and_b32 s{SGRP}, s2, 7"); e(f"s_lshr_b32 s{SMEM}, s2, 3")
    e(f"s_lshl_b32 s{SIDX}, s{SGRP}, 5"); e(f"s_add_u32 s{SIDX}, s{SIDX}, s{SMEM}")
    e(f"s_lshr_b32 s{SRB}, s{SIDX}, 4"); e(f"s_and_b32 s{SCB}, s{SIDX}, 15")
    e(f"v_lshlrev_b32 v{vL16}, 4, v254"); e(f"v_and_b32 v{vG16}, 48, v254"); e("v_and_b32 v0, 15, v254")
    e(f"s_mul_i32 s{sLW}, s{SW}, 6144")
    e(f"s_lshl_b32 s{T3}, s{SRB}, 3"); e(f"s_lshl_b32 s{T4}, s{SW}, 1"); e(f"s_add_u32 s{T3}, s{T3}, s{T4}")
    e(f"s_lshl_b32 s{T4}, s{T3}, 4"); e(f"v_add_u32 v{vOut}, s{T4}, v0"); e(f"v_lshlrev_b32 v{vSTs}, 3, v{vOut}")
    e(f"s_lshl_b32 s{T4}, s{SCB}, 7"); e(f"v_lshlrev_b32 v{vOut}, 11, v{vOut}"); e(f"v_add3_u32 v{vOut}, v{vOut}, s{T4}, v{vG16}")
    e(f"s_lshl_b32 s{T3}, s{T3}, 15"); e(f"v_add_u32 v{vB}, s{T3}, v{vL16}"); e(f"v_add_u32 v{vB+1}, 0x8000, v{vB}")
    e("v_lshrrev_b32 v200, 2, v254"); e("v_and_b32 v201, 3, v254")
    e("v_mul_u32_u24 v202, 6144, v200"); e("v_lshl_add_u32 v202, v201, 4, v202")
    e("v_lshrrev_b32 v203, 3, v254"); e("v_and_b32 v204, 7, v254"); e("v_lshlrev_b32 v204, 4, v204"); e("v_lshl_add_u32 v210, v203, 11, v204")
    e(f"s_lshl_b32 s{T6}, s{SGRP}, 2"); e(f"s_add_u32 s{T6}, s{T6}, s{SW}")
    e(f"s_mul_i32 s{T5}, s{T6}, {32*6144}"); e(f"s_lshl_b32 s{T4}, s{SMEM}, 6"); e(f"s_add_u32 s{T5}, s{T5}, s{T4}")
    e(f"v_mov_b32 v{vVal}, 0")
    e("s_waitcnt lgkmcnt(0)")
    e(f"s_mov_b32 s4, s{P_WS}"); e(f"s_mov_b32 s5, s{P_WS+1}"); e(f"s_mov_b32 s6, {WS_SIZE}"); e("s_mov_b32 s7, 0x20000")
    e(f"s_or_b32 s{T0}, s{SIDX}, s{SW}"); e(f"s_cmp_lg_u32 s{T0}, 0"); e("s_cbranch_scc1 L_p0a")
    for r in range(4): e(f"v_mov_b32 v{204+r}, 0")
    for j in range(4):
        e(f"s_mov_b32 s{T0}, {j*8192}"); e(f"buffer_store_dword v204, v253, {SRD}, s{T0} offen sc1")
    e(f"s_mov_b32 s{T0}, {WS_FLAGB}"); e(f"buffer_store_dwordx4 v[204:207], v{vL16}, {SRD}, s{T0} offen sc1")
    A.label("L_p0a")
    if o.x_bx:
        srt(P_BX, 0x400000); e(f"s_lshl_b32 s{T0}, s{SIDX}, 2"); e(f"s_add_u32 s{T0}, s{T0}, s{SW}"); e(f"s_lshl_b32 s{T0}, s{T0}, 12")
        for rep_ in range(o.x_bx):
            for i in range(4): e(f"buffer_load_dwordx4 v[240:243], v{vL16}, {SRT}, s{T0} offen offset:{i*1024}")
            e("s_waitcnt vmcnt(0)")
            if rep_ == 0 and o.x_bx > 1:
                e(f"s_mov_b32 s8, s{P_OUT}"); e(f"s_mov_b32 s9, s{P_OUT+1}")
    srt(P_AX, 0x400000)
    e(f"s_lshl_b32 s{T4}, s{SCB}, 7"); e(f"s_add_u32 s{T3}, s{T3}, s{T4}")
    for i in range(4):
        e(f"s_add_u32 m0, s{sLW}, {i*1024}"); e(f"s_add_u32 s{T0}, s{T3}, {i*16384}")
        e(f"buffer_load_dwordx4 v210, {SRT}, s{T0} offen lds")
    def raw1(p, ldsb):
        srt(p, 0x600000)
        for seg in range(3):
            for hf in range(2):
                e(f"s_add_u32 m0, s{sLW}, {ldsb + seg*2048 + hf*1024}"); e(f"s_add_u32 s{T0}, s{T5}, {seg*2048 + hf*16*6144}")
                e(f"buffer_load_dwordx4 v202, {SRT}, s{T0} offen lds")
    raw1(P_AW1, RAW1A)
    e(f"s_or_b32 s{T0}, s{SIDX}, s{SW}"); e(f"s_cmp_lg_u32 s{T0}, 0"); e("s_cbranch_scc1 L_p0b")
    srt(P_DBG, 256); e("v_mov_b32 v204, 1")
    e("s_waitcnt vmcnt(10)")
    e("s_mov_b64 exec, 1"); e(f"buffer_store_dword v204, off, {SRT}, 0 sc1"); e("s_mov_b64 exec, -1")
    A.label("L_p0b")
    vq = Q("vmcnt", 63)
    for i in range(4): vq.add("x")
    for i in range(6): vq.add("ra")
    if o.codepf:
        e(f"s_lshl_b32 s{T0}, s{SMEM}, 2"); e(f"s_add_u32 s{T0}, s{T0}, s{SW}"); e(f"s_mul_i32 s{T0}, s{T0}, 384")
        e(f"v_lshl_add_u32 v252, v254, 7, s{T0}"); e("v_min_u32 v252, L_codeend-%s-4, v252" % KNAME)
        e("s_mov_b64 exec, 7"); e(f"global_load_dword v251, v252, s[{T1}:{T1+1}]"); e("s_mov_b64 exec, -1"); vq.add("pf")
    srt(P_PHI, 0x10000)
    e(f"s_and_b32 s{T3}, s{SW}, 1"); e(f"s_lshl_b32 s{T1}, s{T3}, 10"); e(f"s_add_u32 m0, s{T1}, {M_PHI}"); e(f"s_lshl_b32 s{T2}, s{SMEM}, 11"); e(f"s_add_u32 s{T1}, s{T1}, s{T2}")
    e(f"buffer_load_dwordx4 v{vL16}, {SRT}, s{T1} offen lds"); vq.add("phi")
    def rawb():
        raw1(P_BW1, RAW1B)
        e(f"s_cmp_lt_u32 s{SW}, 2"); e(f"s_cselect_b32 s8, s{P_AW2}, s{P_BW2}"); e(f"s_cselect_b32 s9, s{P_AW2+1}, s{P_BW2+1}"); e("s_mov_b32 s10, 0x200000")
        e(f"s_lshl_b32 s{T0}, s{SRB}, 1"); e(f"s_and_b32 s{T1}, s{SW}, 1"); e(f"s_add_u32 s{T0}, s{T0}, s{T1}")
        e(f"s_lshl_b32 s{T0}, s{T0}, 16"); e(f"s_lshl_b32 s{T1}, s{SCB}, 7"); e(f"s_add_u32 s{T0}, s{T0}, s{T1}")
        for i in range(4):
            e(f"s_add_u32 m0, s{sLW}, {RAW2 + i*1024}"); e(f"s_add_u32 s{T1}, s{T0}, {i*16384}")
            e(f"buffer_load_dwordx4 v210, {SRT}, s{T1} offen lds")
        for i in range(10): vq.add("rb")
    e(f"s_getreg_b32 s{SXCC}, hwreg(HW_REG_XCC_ID, 0, 4)"); e(f"s_or_b32 s{SXCC}, s{SXCC}, 0x100")
    mask64(mPAR, 0xAAAAAAAAAAAAAAAA); mask64(mB1, 0xCCCCCCCCCCCCCCCC); mask64(mDIAG, 0xF0000F0000F0000F)
    mask64(mM0, 0x0001000100010001); mask64(mM1, 0x2222222222222222)
    mask64(mOWN0, sum(1 << l for l in range(64) if 4*(l >> 4) + (l & 1) <= (l & 15)))
    mask64(mOWN1, sum(1 << l for l in range(64) if 4*(l >> 4) + 2 + (l & 1) <= (l & 15)))
    e(f"s_lshl_b32 s{T1}, s{SMEM}, 15"); e(f"s_lshl_b32 s{T2}, s{SW}, 10"); e(f"s_add_u32 s{T1}, s{T1}, s{T2}"); e(f"s_add_u32 s{sKV}, s{T1}, {WS_KVP - WS_X + (1<<32)}")
    e(f"s_lshr_b32 s{T1}, s{T1}, 4"); e(f"s_add_u32 s{sZP}, s{T1}, {WS_ZP}")
    e(f"s_lshl_b32 s{T1}, s{T6}, 7"); e(f"s_add_u32 s{sFXc}, s{T1}, {WS_FLAGX}")
    e(f"s_lshl_b32 s{T2}, s{SMEM}, 2"); e(f"s_add_u32 s{T1}, s{T1}, s{T2}"); e(f"s_add_u32 s{sFOp}, s{T1}, {WS_FLAGO}")
    e(f"s_lshl_b32 s{T1}, s{SRB}, 1"); e(f"s_lshr_b32 s{T2}, s{SW}, 1"); e(f"s_add_u32 s{T1}, s{T1}, s{T2}"); e(f"s_lshl_b32 s{T1}, s{T1}, 7")
    e(f"s_add_u32 s{sFOc}, s{T1}, {WS_FLAGO}")
    e(f"s_lshl_b32 s{T2}, s{SCB}, 3"); e(f"s_and_b32 s{T3}, s{SW}, 1"); e(f"s_lshl_b32 s{T4}, s{T3}, 2")
    e(f"s_add_u32 s{T1}, s{T1}, s{T2}"); e(f"s_add_u32 s{T1}, s{T1}, s{T4}"); e(f"s_add_u32 s{sFXp}, s{T1}, {WS_FLAGX}")
    e(f"s_lshl_b32 s{T0}, s{SGRP}, 8"); e(f"s_add_u32 s{sCL1}, s{T0}, s{sZP}")
    e(f"s_lshl_b32 s{T1}, s{SIDX}, 11"); e(f"s_add_u32 s{sHALO}, s{T1}, {WS_HALO}")
    e(f"s_lshl_b32 s{T1}, s{T3}, 10"); e(f"s_lshr_b32 s{T4}, s{SW}, 1"); e(f"s_lshl_b32 s{T2}, s{T4}, 19")
    e(f"s_add_u32 s{T1}, s{T1}, s{T2}"); e(f"s_add_u32 s{sCL2}, s{T1}, s{sHALO}")
    e(f"s_lshl_b32 s{T1}, s{SIDX}, 2"); e(f"s_add_u32 s{T1}, s{T1}, {WS_FLAGB}"); e(f"s_cmp_eq_u32 s{SW}, 0"); e(f"s_cselect_b32 s{sFBp}, s{T1}, {OOR}")
    for s_ in range(8):
        e(f"s_add_u32 s{T1}, s{SGRP}, {s_}"); e(f"s_and_b32 s{T1}, s{T1}, 7")
        if o.x_norot and s_ > 0: e(f"s_cmp_eq_u32 s{SGRP}, {s_}"); e(f"s_cselect_b32 s{T1}, 0, {s_}")
        e(f"s_mul_i32 s{ROTW+s_}, s{T1}, {SLOT}"); e(f"s_lshl_b32 s{T1}, s{T1}, 12"); e(f"s_add_u32 s{ROTA+s_}, s{T1}, {WS_X}")
    e(f"s_mul_i32 s{sL14}, s{SW}, 14336"); e(f"s_lshl_b32 s{sW2l}, s{SW}, 13")
    e(f"s_lshl_b32 s{T1}, s{SMEM}, 10"); e(f"s_add_u32 s{sO}, s{T1}, {WS_O}")
    e(f"s_lshl_b32 s{T1}, s{SCB}, 11"); e(f"s_add_u32 s{sXs}, s{T1}, {WS_X}")
    e(f"s_lshl_b32 s{T0}, s{SCB}, 14"); e(f"s_add_u32 s{sSTs}, s{T0}, {WS_ST}")
    e(f"s_mov_b32 s{sW1}, {WS_W1A}"); e(f"s_mov_b32 s{sW2}, {WS_W2A}"); e(f"s_mov_b32 s{sCSL}, 0"); e(f"s_mov_b32 s{sCK}, {CK_A}")
    e(f"s_or_b32 s{T0}, s{SGRP}, s{SW}"); e(f"s_cmp_eq_u32 s{T0}, 0"); e(f"s_cselect_b64 {sm(mFIRST)}, -1, 0")
    for r in range(4): e(f"v_mov_b32 v{ONES+r}, 0x3f803f80")
    e(f"v_add_u32 v{vL64}, 0x10000, v{vL16}"); e(f"v_add_u32 v{vL128}, 0x20000, v{vL16}")
    e(f"v_and_b32 v{vFP}, 31, v254"); e(f"v_lshlrev_b32 v{vFP}, 2, v{vFP}")
    e(f"s_lshl_b32 s{T1}, s{T6}, 17"); e(f"v_add_u32 v{vA}, s{T1}, v{vL16}")
    for i in range(1, 4): e(f"v_add_u32 v{vA+i}, {i*0x8000}, v{vA}")
    e(f"s_lshl_b32 s{T1}, s{T6}, 9"); e("v_lshrrev_b32 v213, 5, v254"); e(f"v_lshl_add_u32 v{vSTl}, v213, 17, s{T1}"); e(f"v_lshl_add_u32 v{vSTl}, v{vFP}, 2, v{vSTl}")
    e(f"s_mul_i32 s{T1}, s{SMEM}, 196608"); e(f"s_add_u32 s{T1}, s{T1}, s{sLW}"); e(f"v_add_u32 v{vW1}, s{T1}, v{vL16}")
    e(f"s_lshl_b32 s{T1}, s{SCB}, 17"); e(f"s_add_u32 s{T1}, s{T1}, s{sLW}"); e(f"v_add_u32 v{vW2}, s{T1}, v{vL16}")
    e("v_lshlrev_b32 v203, 4, v200"); e("v_and_b32 v204, 1, v254"); e("v_lshlrev_b32 v204, 7, v204"); e("v_xor_b32 v203, v203, v204")
    e("v_lshl_add_u32 v208, v201, 8, v203")
    e("v_and_b32 v209, 3, v200"); e(f"v_lshrrev_b32 v203, 1, v{vG16}"); e("v_add_u32 v209, v209, v203")
    e("v_lshlrev_b32 v203, 6, v209"); e("v_lshl_add_u32 v205, v201, 3, v203"); e(f"v_add_u32 v205, {M_PHI}, v205")
    e("v_lshl_add_u32 v206, v201, 4, v203"); e(f"s_add_u32 s{T1}, s{sLW}, {RAW1A}"); e(f"v_add_u32 v206, s{T1}, v206")
    e("v_lshlrev_b32 v203, 7, v209"); e("v_lshl_add_u32 v207, v201, 4, v203"); e(f"s_add_u32 s{T1}, s{sLW}, {RAW2}"); e(f"v_add_u32 v207, s{T1}, v207")
    e(f"s_lshl_b32 s{T2}, s{SW}, 12")
    e(f"v_and_b32 v203, 16, v{vG16}"); e("v_lshlrev_b32 v203, 3, v203"); e(f"v_xor_b32 v203, v203, v{vL16}"); e(f"v_add_u32 v{vXW}, s{T2}, v203")
    e(f"v_add_u32 v{vVo}, s{T2}, v208")
    e(f"s_add_u32 s{T0}, s{T2}, {VB_LDS - 1024}"); e(f"s_cmp_eq_u32 s{SW}, 0"); e(f"s_cselect_b32 s{T0}, {M_HV}, s{T0}"); e(f"v_add_u32 v{vVp}, s{T0}, v208")
    e(f"s_lshl_b32 s{T0}, s{T4}, 14"); e(f"s_lshl_b32 s{T1}, s{T3}, 3"); e(f"s_add_u32 s{T2}, s{T0}, s{T1}"); e(f"v_add_u32 v{vE0}, s{T2}, v208")
    e(f"s_xor_b32 s{T2}, s{T2}, 8"); e(f"v_add_u32 v{vE1}, s{T2}, v208")
    e(f"v_add_u32 v{vGM}, {M}, v{vG16}")
    e(f"s_lshl_b32 s{T0}, s{T4}, 9"); e(f"v_add_u32 v{vRSR}, s{T0}, v{vGM}")
    e(f"s_lshl_b32 s{T0}, s{T4}, 6"); e(f"s_add_u32 s{T0}, s{T0}, s{T1}"); e(f"v_add_u32 v{vZW}, s{T0}, v{vGM}")
    e("v_lshrrev_b32 v203, 2, v0"); e("v_lshlrev_b32 v203, 4, v203"); e("v_lshl_add_u32 v203, v201, 1, v203")
    e(f"s_lshl_b32 s{T0}, s{SW}, 7"); e(f"s_add_u32 s{T0}, s{T0}, {M_RS}"); e(f"v_add_u32 v{vRSW}, s{T0}, v203")
    e(f"s_lshl_b32 s{T0}, s{SW}, 10"); e(f"s_add_u32 s{T0}, s{T0}, {M_KX}"); e(f"v_add_u32 v{vKX}, s{T0}, v{vL16}")
    e(f"s_lshl_b32 s{T0}, s{SW}, 9"); e(f"s_add_u32 s{T0}, s{T0}, {M_ST}")
    e(f"v_lshl_add_u32 v203, v213, 3, s{T0}"); e(f"v_lshl_add_u32 v{vSW}, v{vFP}, 2, v203"); e(f"v_lshl_add_u32 v{vSR}, v0, 3, s{T0}")
    e("v_and_b32 v203, 7, v0"); e(f"v_lshl_add_u32 v{vZL}, v203, 8, v{vG16}")
    e("v_mov_b32 v203, 0xffff"); e("v_mov_b32 v204, 0xffff0000"); e(f"v_cndmask_b32 v203, v203, v204, {sm(mPAR)}")
    e(f"v_cndmask_b32 v{MO0}, 0, v203, {sm(mOWN0)}"); e(f"v_cndmask_b32 v{MO1}, 0, v203, {sm(mOWN1)}")
    e(f"v_xor_b32 v{MP0}, v203, v{MO0}"); e(f"v_xor_b32 v{MP1}, v203, v{MO1}")
    e(f"s_lshl_b32 s{T0}, s{SGRP}, 5"); e(f"v_add_u32 v203, s{T0}, v254")
    e("v_and_b32 v204, 7, v254"); e(f"v_lshl_add_u32 v204, v204, 5, s{SMEM}")
    e(f"v_cmp_gt_u32 {sm(T1)}, 32, v254"); e(f"v_cndmask_b32 v211, v204, v203, {sm(T1)}"); e("v_lshlrev_b32 v211, 7, v211")
    e(f"v_lshl_add_u32 v214, v0, 7, v{vG16}"); e(f"v_add_u32 v214, s{sLW}, v214")
    e(f"v_lshl_add_u32 v215, v0, 6, v{vG16}")
    for blk in range(6):
        e(f"v_cmp_eq_u32 vcc, {blk}, v0")
        e(f"v_cndmask_b32 v{96+4*blk}, 0, v{ONES}, vcc")
        for r in range(1, 4): e(f"v_mov_b32 v{96+4*blk+r}, v{96+4*blk}")
    e(f"v_add_u32 v{vLW}, s{sLW}, v{vL16}")
    if o.bfirst: rawb()
    stamp(28)
    E(vq.wait("x"))
    for i in range(2):
        for kk in range(2): e(f"ds_read_b128 {v(RES+8*i+4*kk,4)}, v214 offset:{i*2048 + kk*64}")
    e("s_waitcnt lgkmcnt(0)")
    stamp(29)
    xtile(RES, 160, True)
    for i in range(6): vq.add("st")
    def w1st(R, blk, sa, sb): return f"buffer_store_dwordx4 {a(R+4*blk,4)}, v{vW1}, {SRD}, s{sa if blk < 4 else sb} offen offset:{(blk%4)*1024} sc1"
    def csst(C, sreg): return [f"s_mov_b32 exec_lo, 0x003f003f", "s_mov_b32 exec_hi, 0x003f003f",
                               f"buffer_store_dwordx4 {v(C,4)}, v{C+4}, {SRD}, s{sreg} offen sc1", "s_mov_b64 exec, -1"]
    def retile1(rawoff, R, C, store):
        for blk in range(6):
            for t in range(2):
                e(f"ds_read_b64_tr_b16 {a(R+4*blk+2*t,2)}, v206 offset:{rawoff + (blk>>1)*2048 + t*256 + (blk&1)*8}")
        e(f"v_mov_b32 v{C+4}, v215")
        for blk in range(6):
            e(f"s_waitcnt lgkmcnt({10-2*blk})")
            if store: e(w1st(R, blk, T2, T4)); vq.add("st")
            e(f"{MF} {v(C,4)}, {a(R+4*blk,4)}, {v(96+4*blk,4)}, {'0' if blk == 0 else v(C,4)}")
    e(f"s_add_u32 s{T2}, s{ROTW}, {WS_W1A}"); e(f"s_add_u32 s{T4}, s{T2}, 4096")
    e(f"s_mul_i32 s{T0}, s{T6}, 12288"); e(f"s_mul_i32 s{T1}, s{SMEM}, 384"); e(f"s_add_u32 s{T0}, s{T0}, s{T1}"); e(f"s_add_u32 s{sCL0}, s{T0}, {WS_CS}")
    E(vq.wait("ra"))
    stamp(13)
    retile1(0, RA, 64, True)
    for blk in range(6): e(f"ds_write_b128 v{vLW}, {a(RA+4*blk,4)} offset:{SLOT + blk*1024}")
    E(csst(64, sCL0)); vq.add("st")
    srt(P_DBG, 256)
    e(f"buffer_load_dword v212, off, {SRT}, 0 sc1"); vq.add("go")
    if not o.bfirst: rawb()
    e(f"v_mov_b32 v{vVal}, s{SXCC}")
    stamp(30)
    E(vq.wait("go"))
    stamp(31)
    e("v_cmp_ne_u32 vcc, 1, v212"); e("s_cbranch_vccnz L_goslow")
    A.label("L_gook")
    def goslow():
        A.label("L_goslow"); srt(P_DBG, 256); e(f"s_mov_b32 s{sTMO}, 0")
        A.label("L_gol")
        e(f"buffer_load_dword v212, off, {SRT}, 0 sc1"); e("s_waitcnt vmcnt(0)")
        e("v_cmp_ne_u32 vcc, 1, v212"); e("s_cbranch_vccz L_gook")
        tmo("L_gol"); e("s_branch L_gook")
    ool.append(goslow)
    e("s_barrier")
    e(f"s_lshl_b32 s{T0}, s{SIDX}, 7"); e(f"s_cmp_eq_u32 s{SW}, 0"); e(f"s_cselect_b32 s{T0}, s{T0}, {OOR}")
    e("s_mov_b64 exec, 1"); e(f"buffer_store_dword v{vVal}, off, {SRD}, s{T0} sc1"); e("s_mov_b64 exec, -1"); vq.add("fa")
    stamp(14)
    for fb in range(2):
        for t in range(2):
            e(f"ds_read_b64_tr_b16 {v(PHI+4*fb+2*t,2)}, v205 offset:{fb*32 + t*256}")
    E(vq.wait("rb"))
    stamp(44)
    for blk in range(4):
        for t in range(2):
            e(f"ds_read_b64_tr_b16 {v(224+4*blk+2*t,2)}, v207 offset:{t*512 + (blk>>1)*64 + (blk&1)*8}")
    e("s_waitcnt lgkmcnt(0)")
    retile1(SLOT, RB, 240, False)
    stamp(45)
    e(f"s_cmp_lg_u32 s{SW}, 0"); e("s_cbranch_scc1 L_faok")
    e(f"s_mov_b32 s{sTMO}, 0")
    A.label("L_fal")
    e(f"buffer_load_dword v212, v211, {SRD}, 0 offen sc1"); e("s_waitcnt vmcnt(0)")
    e("v_cmp_eq_u32 vcc, 0, v212"); e("s_cbranch_vccz L_fad")
    tmo("L_fal")
    A.label("L_fad")
    e(f"v_cmp_ne_u32 {sm(T1)}, s{SXCC}, v212"); e(f"v_mov_b32 v212, s{T1}")
    e(f"ds_write_b32 v{vGM}, v212"); e("s_waitcnt lgkmcnt(0)")
    A.label("L_faok")
    e("s_barrier")
    stamp(15)
    e(f"ds_read_b32 v212, v{vGM}")
    for i in range(6): E(w1_piece(1, i))
    e("s_waitcnt lgkmcnt(0)")
    e(f"v_readfirstlane_b32 s{SMODE}, v212")
    e("s_branch L_g1rd")

    A.label("L_g1pre")
    e("s_waitcnt lgkmcnt(0)"); e("s_barrier")
    A.label("L_g1rd")
    lq = Q("lgkmcnt", 15)
    def wdst(step, c):
        if c < 2 and step >= 32 - ND: return a(WQ + 8*(step - (32-ND)) + 4*c, 4)
        return v(WFV + 4*c, 4)
    def w1rd(step, c):
        lq.add(("W", step, c))
        return ldsrd(wdst(step, c), ((step//4 + 1) % 6)*SLOT + (step % 4)*6144 + c*1024)
    for c in range(6): e(w1rd(0, c))
    e(f"s_cmp_eq_u32 s{SLAY}, 0"); e("s_cbranch_scc1 L_g1")
    poll_ge(vFP, sFXc, SLAY, FBV)
    A.label("L_g1")
    stamp(0)
    vq.clear()
    for i in range(6): vq.add(("W", 1))
    def aload(step, i):
        d = RING + 16*(step % AD) + 4*i
        vq.add(("A", step))
        return [f"buffer_load_dwordx4 {a(d,4)}, v{vA+i}, {SRD}, s{ROTA + step//4} offen offset:{(step%4)*1024} sc1"]
    anext = [(st, i) for st in range(32) for i in range(4)]
    for j in range(4*o.APRE): E(aload(*anext.pop(0)))
    pend = [("W", st, i) for st in range(2, 8) for i in range(6)] + [("W2", p, i) for p in range(3) for i in range(6)]
    def allowed(p, step):
        if p[0] == "W": return p[1] < 6 or step >= 4*(p[1]-5) + 3
        return step >= max(4*(p[1]+3) + 3, o.w2start)
    misc = []
    for j in range(8):
        misc.append((2*j, ("S", j), [f"s_mov_b32 s{T0}, {WS_ST + j*16384}"], f"buffer_load_dwordx4 {v(160+4*j,4)}, v{vSTl}, {SRD}, s{T0} offen sc1"))
    sh = []
    def S(step, *ins): sh.append((step, lambda ins=ins: list(ins)))
    oq = []
    def once(step, name, body, nl=1):
        def f():
            ins = body()
            def blk():
                A.label(f"L_{name}"); e("s_nop 1"); E(ins); e(f"s_branch L_{name}_r")
            ool.append(blk)
            return [f"s_cmp_lt_u32 s{SLAY}, {nl}", f"s_cbranch_scc1 L_{name}", f"L_{name}_r:"]
        oq.append((step, f))
    def G(tag, ins):
        def f(): vq.add(tag, ghost=True); return ins
        return f
    w2s = [f"buffer_store_dwordx4 {v(224+4*blk,4)}, v{vL16}, {SRD}, s{T1} offen offset:{blk*1024} sc1" for blk in range(4)]
    once(0, "d0", G("C", [f"s_lshl_b32 s{T1}, s{SRB}, 1", f"s_and_b32 s{T2}, s{SW}, 1", f"s_add_u32 s{T1}, s{T1}, s{T2}", f"s_lshl_b32 s{T1}, s{T1}, 12",
                          f"s_lshl_b32 s{T2}, s{SCB}, 17", f"s_add_u32 s{T1}, s{T1}, s{T2}", f"s_cmp_lt_u32 s{SW}, 2", f"s_cselect_b32 s{T2}, 0, {WS_W2B - WS_W2A}",
                          f"s_add_u32 s{T1}, s{T1}, s{T2}", f"s_add_u32 s{T1}, s{T1}, {WS_W2A}"] + w2s[:3]))
    once(1, "d1", G("C", w2s[3:] + [f"s_add_u32 s{T1}, s{sCL0}, {CS_SZ}"] + csst(240, T1) +
                         [f"s_add_u32 s{T2}, s{ROTW}, {WS_W1B}", f"s_add_u32 s{T4}, s{T2}, 4096", w1st(RB, 0, T2, T4)]))
    once(2, "d2", G("C", [w1st(RB, b_, T2, T4) for b_ in (1, 2, 3)]))
    once(3, "d3", G("C", [w1st(RB, b_, T2, T4) for b_ in (4, 5)] + [f"v_mov_b32 v{FBV+r}, -1" for r in range(4)] +
                         [f"buffer_store_dwordx4 {v(FBV,4)}, v{vL16}, {SRD}, s{sCL2} offen sc1"]))
    once(4, "d4", G("C", [f"s_add_u32 s{T1}, s{sKV}, s{ROTA}", f"s_add_u32 s{T2}, s{T1}, 0x100000",
                          f"buffer_store_dwordx4 {v(FBV,4)}, v{vL16}, {SRD}, s{T1} offen sc1", f"buffer_store_dwordx4 {v(FBV,4)}, v{vL16}, {SRD}, s{T2} offen sc1"]))
    once(5, "d5", G("C", [f"s_add_u32 s{T1}, s{sCL1}, 0x10000", f"v_mov_b32 v{vVal}, 0", f"s_mov_b64 exec, {sm(mM0)}",
                          f"buffer_store_dwordx4 {v(FBV,4)}, v{vG16}, {SRD}, s{sCL1} offen sc1", f"buffer_store_dwordx4 {v(FBV,4)}, v{vG16}, {SRD}, s{T1} offen sc1",
                          "s_mov_b64 exec, 1", f"buffer_store_dword v{vVal}, off, {SRD}, s{sFOp} sc1", f"buffer_store_dword v{vVal}, off, {SRD}, s{sFXp} sc1", "s_mov_b64 exec, -1"]))
    once(6, "csl", G("CS", cs_load(224)), nl=2)
    def b_csp():
        lq.add("csw", ghost=True)
        return vq.wait("CS", keep=True) + cs_proc(224)
    once(10, "csp", b_csp, nl=2)
    def b_set():
        assert cdone[0]
        return [f"v_mov_b32 v{vVal}, 1", "s_mov_b64 exec, 1", f"buffer_store_dword v{vVal}, off, {SRD}, s{sFBp} sc1", "s_mov_b64 exec, -1"]
    cdone = [False]
    def b_chk():
        return vq.wait("F", keep=True) + [f"s_mov_b32 s{sTMO}, 0", "L_fbl:",
            f"v_and_b32 v{FBV}, v{FBV}, v{FBV+1}", f"v_and_b32 v{FBV+2}, v{FBV+2}, v{FBV+3}", f"v_and_b32 v{FBV}, v{FBV}, v{FBV+2}",
            f"v_cmp_ne_u32 vcc, 1, v{FBV}", "s_cbranch_vccz L_fbchk_r",
            f"buffer_load_dwordx4 {v(FBV,4)}, v{vL16}, {SRD}, s{T1} offen sc1", "s_waitcnt vmcnt(0)",
            f"s_add_u32 s{sTMO}, s{sTMO}, 1", f"s_cmp_lt_u32 s{sTMO}, 0x100000", "s_cbranch_scc1 L_fbl"]
    once(12, "fbset", b_set)
    once(20, "fbld", G("F", [f"s_mov_b32 s{T1}, {WS_FLAGB}", f"buffer_load_dwordx4 {v(FBV,4)}, v{vL16}, {SRD}, s{T1} offen sc1"]))
    once(24, "fbchk", b_chk)
    first = True
    for st in (16, 8, 4):
        for r in range(0, st, 2):
            ins = [f"v_add_f32 v{160+r}, v{160+r}, v{160+r+st}", f"v_add_f32 v{161+r}, v{161+r}, v{161+r+st}"]
            if first: sh.append((17, lambda ins=ins: vq.wait(("S", 7)) + ins)); first = False
            else: S(17, *ins)
    S(17, "s_nop 0"); S(17, "v_permlane32_swap_b32 v160, v162"); S(17, "v_permlane32_swap_b32 v161, v163")
    S(17, "v_add_f32 v160, v160, v162", "v_add_f32 v161, v161, v163")
    S(17, f"v_mul_f32 v163, {f32hex(-1.0/1024)}, v160", f"v_mul_f32 v161, {f32hex(1.0/1024)}, v161")
    S(17, "v_fma_f32 v161, -v163, v163, v161", "v_max_f32 v161, 0, v161")
    S(17, f"v_add_f32 v161, {f32hex(1e-5)}, v161", f"v_add_u32 v{CI}, s{sCSL}, v{vGM}")
    S(17, "v_rsq_f32 v162, v161")
    def L(tag, ins):
        def f(): lq.add(tag); return [ins]
        sh.append((17, f))
    L("sw", f"ds_write_b64 v{vSW}, v[162:163]")
    for i in range(4): L("st", f"ds_read_b64 {v(STP+2*i,2)}, v{vSR} offset:{i*128}")
    for c in range(6): L("cs", f"ds_read_b128 {v(CSR+4*c,4)}, v{CI} offset:{M_CS-M+c*64}")
    fix = None
    credit = 0.0
    for step in range(32):
        stage = step // 4
        deferred = step >= 32 - ND
        cs_ = range(2, 6) if deferred else range(6)
        ng = len(cs_)
        assert not anext or anext[0][0] > step
        E(vq.wait(("A", step)))
        if step % 4 == 3 and stage < 7:
            assert not any(p[0] == "W" and p[1] <= stage+1 for p in pend)
            E(vq.wait(("W", stage+1))); e("s_barrier")
            if step > 6 and "C" not in vq.q: cdone[0] = True
            if step == 15: assert "csw" in lq.seen and "csw" not in lq.q
        plan = []
        na = 0
        while len(plan) < ng and na < len(anext) and anext[na][0] <= step + o.LA and na < (4 if anext[na][0] >= step + o.APRE else 6):
            plan.append("A"); na += 1
        credit = min(credit + (o.wrate if (pend and pend[0][0] == "W") else o.w2rate) / 100.0, 3.0)
        nw = 0
        while len(plan) < ng and nw < len(pend) and allowed(pend[nw], step) and credit >= 1:
            plan.append("W"); nw += 1; credit -= 1
        nm = 0
        while len(plan) < ng and nm < len(misc) and misc[nm][0] <= step:
            plan.append("M"); nm += 1
        while len(plan) < ng and na < len(anext) and anext[na][0] <= step + o.LA:
            plan.append("A"); na += 1
        oth = [p for p in plan if p != "A"]; aa = [p for p in plan if p == "A"]; plan = []
        while oth or aa:
            if aa: plan.append(aa.pop())
            if aa and len(aa) >= 2*len(oth): plan.append(aa.pop())
            if oth: plan.append(oth.pop(0))
        a0 = RING + 16*(step % AD)
        for gi, c in enumerate(cs_):
            vm = None
            order = range(4) if c % 2 == 0 else reversed(range(4))
            for p, i in enumerate(order):
                if p == 0: E(lq.wait(("W", step, c)))
                e(f"{MF} {v(acc(c,i),4)}, {wdst(step,c)}, {a(a0+4*i,4)}, {'0' if step == 0 else v(acc(c,i),4)}")
                busy = False
                if p == 0 and gi < len(plan):
                    k = plan[gi]
                    if k == "A": vm = lambda: aload(*anext.pop(0))
                    elif k == "W":
                        pc = pend.pop(0); ins = w1_piece(pc[1], pc[2]) if pc[0] == "W" else w2_piece(pc[1], pc[2])
                        E(ins[:-1]); busy = len(ins) > 1
                        vm = lambda pc=pc, ins=ins: (vq.add((pc[0], pc[1]), ghost=ins[-1].startswith("s_nop")), ins[-1:])[1]
                    else:
                        mi = misc.pop(0); E(mi[2]); busy = len(mi[2]) > 0
                        vm = lambda mi=mi: (vq.add(mi[1], ghost=o.x_nost), ["s_nop 0" if o.x_nost else mi[3]])[1]
                if p == 1 and vm: E(vm()); busy = True
                if p == 3:
                    busy = True
                    if step < 31: e(w1rd(step+1, c))
                if p == 2 and step < 31 and step + 1 >= 32 - ND and deferred and gi < 2:
                    e(w1rd(step+1, gi)); busy = True
                if not busy and p == 2 and oq and oq[0][0] <= step:
                    E(oq.pop(0)[1]()); busy = True
                if not busy:
                    if sh and sh[0][0] <= step: E(sh.pop(0)[1]())
                    elif not sh:
                        if fix is None:
                            E(lq.wait("cs"))
                            fix = {cc: [f"v_fmac_f32 v{acc(cc,ii)+j}, v{CSR+4*cc+j}, v{STP+2*ii+1}" for ii in range(4) for j in range(4)] for cc in range(6)}
                            fix["ci"] = [f"v_mul_f32 v{CI+ii}, s{sCK}, v{STP+2*ii}" for ii in range(4)]
                        lst = list(cs_)
                        cand = [lst[(gi + ng//2) % ng]] + ([0, 1] if deferred and step > 32 - ND else []) + ["ci"]
                        for cc in cand:
                            if fix[cc]:
                                E(fix[cc][:2]); fix[cc] = fix[cc][2:]; break
    assert not anext and not misc and not sh and not oq and all(p[0] == "W2" for p in pend), (pend, anext, misc, len(sh))
    left = [w2_piece(p[1], p[2]) for p in pend]
    assert all(not x for x in fix.values()), {k: len(x) for k, x in fix.items()}
    e("s_waitcnt lgkmcnt(0)"); e("s_barrier")
    stamp(1)
    e(f"s_bitcmp1_b32 s{SLAY}, 0"); e("s_cbranch_scc1 L_epiB")
    qm = [f"{MF} {v(acc(c,i),4)}, {wdst(step,c)}, {a(RING+16*(step%AD)+4*i,4)}, {v(acc(c,i),4)}"
          for step in range(32-ND, 32) for c in range(2) for i in (range(4) if c == 0 else reversed(range(4)))]

    def features(c0, F, tmp, hooks):
        hk = iter(hooks)
        def H():
            f = next(hk, None)
            if f: f()
        for i in range(4): cvt4(F+4*i, acc(c0,i), acc(c0+1,i))
        for i in range(4):
            for fb in range(2): e(f"{MF} {v(acc(c0+fb,i),4)}, {v(PHI+4*fb,4)}, {v(F+4*i,4)}, 0")
        H()
        MX, MN = tmp, tmp+4
        for i in range(4):
            p0, p1 = acc(c0,i), acc(c0+1,i)
            for op, op2, d in (("v_max3_f32", "v_max_f32", MX+i), ("v_min3_f32", "v_min_f32", MN+i)):
                e(f"{op} v{d}, v{p0}, v{p0+1}, v{p0+2}"); e(f"{op} v{d}, v{d}, v{p0+3}, v{p1}")
                e(f"{op} v{d}, v{d}, v{p1+1}, v{p1+2}"); e(f"{op2} v{d}, v{d}, v{p1+3}")
        H()
        xreduce([("v_max_f32", [MX, MX+1, MX+2, MX+3]), ("v_min_f32", [MN, MN+1, MN+2, MN+3])])
        for i in range(4):
            e(f"v_mul_f32 v{MX+i}, -v{MX+i}, v{CI+i}"); e(f"v_mul_f32 v{MN+i}, v{MN+i}, v{CI+i}")
        H()
        for i in range(4):
            for fb in range(2):
                for h in range(2):
                    pk_fma(224+8*i+4*fb+2*h, acc(c0+fb,i)+2*h, CI+i, ('b', MX+i))
                    pk_fma(acc(c0+fb,i)+2*h, acc(c0+fb,i)+2*h, CI+i, ('b', MN+i), negx=True)
        for i in range(4):
            H()
            for r in range(8): e(f"v_exp_f32 v{224+8*i+r}, v{224+8*i+r}")
            for fb in range(2):
                for r in range(4): e(f"v_exp_f32 v{acc(c0+fb,i)+r}, v{acc(c0+fb,i)+r}")
            cvt4(F+4*i, 224+8*i, 224+8*i+4)
            cvt4(224+8*i, acc(c0,i), acc(c0+1,i))
            if c0 == 2:
                e(f"{MF} {v(acc(2,i),4)}, {v(ONES,4)}, {v(192+4*i,4)}, 0")
                e(f"ds_write_b128 v{vXW}, {v(192+4*i,4)} offset:{i*1024}")
                e(f"{MF} {v(acc(3,i),4)}, {v(ONES,4)}, {v(224+8*i,4)}, 0")
                e(f"ds_write_b128 v{vXW}, {v(224+8*i,4)} offset:{16384 + i*1024}")
    la_ = list(left)
    def hk_left(n):
        def f():
            for j in range(n):
                if la_: E(la_.pop(0))
        return f
    features(2, 192, 208, [hk_left(2)]*6 + [hk_left(99)])
    for i in range(4):
        e(f"v_rcp_f32 v{208+2*i}, v{acc(2,i)}"); e(f"v_rcp_f32 v{209+2*i}, v{acc(3,i)}")
    for i in range(4):
        e(f"v_cvt_pk_bf16_f32 v{216+i}, v{208+2*i}, v{209+2*i}")
        pk_mul(208+2*i, 208+2*i, STP+2*i)
    for i in range(4):
        off = (i >> 1)*64 + (i & 1)*8
        for b in range(2):
            for h in range(2): pk_mul(acc(2+b,i)+2*h, acc(4+b,i)+2*h, 208+2*i)
        e(f"ds_write_b16 v{vRSW}, v{216+i} offset:{off}")
        cvt4(228+8*i, acc(2,i), acc(3,i))
        e(f"ds_write_b128 v{vXW}, {v(228+8*i,4)} offset:{32768 + i*1024}")
        for b in range(2):
            for h in range(2): pk_mul(acc(4+b,i)+2*h, acc(4+b,i)+2*h, 209+2*i)
        e(f"ds_write_b16_d16_hi v{vRSW}, v{216+i} offset:{off+512}")
        cvt4(192+4*i, acc(4,i), acc(5,i))
        e(f"ds_write_b128 v{vXW}, {v(192+4*i,4)} offset:{49152 + i*1024}")
    e(f"s_add_u32 s{T2}, s{sKV}, s{ROTA}")
    e(f"s_lshl_b32 s{T4}, s{SGRP}, 8"); e(f"s_add_u32 s{T4}, s{T4}, s{sZP}")
    e("s_waitcnt lgkmcnt(0)"); e("s_barrier")
    stamp(2)
    def kvreads(p):
        b = 96 + 16*(p % 4)
        for t in range(2):
            e(f"ds_read_b64_tr_b16 {v(b+2*t,2)}, v{vE0} offset:{(2*p+t)*1024}")
            e(f"ds_read_b64_tr_b16 {v(b+4+2*t,2)}, v{vE1} offset:{(2*p+t)*1024}")
            e(f"ds_read_b64_tr_b16 {v(b+8+2*t,2)}, v{vE0} offset:{32768 + (2*p+t)*1024}")
        e(f"ds_read_b128 {v(b+12,4)}, v{vRSR} offset:{M_RS-M + p*64}")
    kvreads(0); kvreads(1)
    for p in range(8):
        e(f"s_waitcnt lgkmcnt({7 if p < 7 else 0})")
        b = 96 + 16*(p % 4)
        e(f"{MF} v[168:171], {v(b,4)}, {v(b+8,4)}, {'0' if p == 0 else 'v[168:171]'}")
        e(f"{MF} v[172:175], {v(b+4,4)}, {v(b+8,4)}, {'0' if p == 0 else 'v[172:175]'}")
        e(f"{MF} v[200:203], {v(b,4)}, {v(b+12,4)}, {'0' if p == 0 else 'v[200:203]'}")
        if p + 2 < 8: kvreads(p+2)
    e("s_barrier")
    qa = list(qm)
    for j in range(3): e(qa.pop(0))
    cv = cvt4l(192, 168, 172)
    E(cv[:2]); e(qa.pop(0)); E(cv[2:]); e(qa.pop(0))
    e(f"buffer_store_dwordx4 v[192:195], v{vL16}, {SRD}, s{T2} offen sc1"); e(qa.pop(0))
    e(f"s_mov_b64 exec, {sm(mM0)}")
    e(f"buffer_store_dwordx4 v[200:203], v{vG16}, {SRD}, s{T4} offen sc1")
    e("s_mov_b64 exec, -1")
    stamp(3)
    late = list(range(14))
    n = 0
    while qa:
        e(qa.pop(0)); n += 1
        if n % 6 == 1 and late:
            ins = w2_late(late[0]); E(ins[:-1])
        if n % 6 == 2 and late:
            E(w2_late(late.pop(0))[-1:])
    def hk_late():
        for j in range(2):
            if late: E(w2_late(late.pop(0)))
    def g1(p): return [f"s_add_u32 s{T0}, s{sKV}, s{ROTA+1+p}", f"buffer_load_dwordx4 {v(96+4*p,4)}, v{vL16}, {SRD}, s{T0} offen sc1"]
    gz = f"buffer_load_dwordx4 v[192:195], v{vZL}, {SRD}, s{sZP} offen sc1"
    def gather():
        for p in range(7): E(g1(p))
        e(gz)
        e(f"s_andn2_b64 {sm(T1)}, {sm(mDIAG)}, {sm(mB1)}"); e(f"s_and_b64 {sm(T3)}, {sm(mDIAG)}, {sm(mB1)}")
        e(f"v_or_b32 v128, v{MO0}, v{MP0}"); e(f"v_and_b32 v128, v128, v{ONES}")
        e(f"v_cndmask_b32 v130, 0, v128, {sm(T1)}"); e(f"v_cndmask_b32 v131, 0, v128, {sm(T3)}")
        for r in (128, 129, 132, 133): e(f"v_mov_b32 v{r}, 0")
    def hk_rest():
        while late: E(w2_late(late.pop(0)))
    features(0, 204, 196, [hk_late]*(o.gpos-1) + [hk_rest, gather])
    stamp(4)
    e(f"s_mov_b32 s{sTMO}, 0")
    for p in range(8):
        r0 = 96+4*p if p < 7 else 192
        e(f"s_waitcnt vmcnt({7-p})")
        A.label(f"L_kvc{p}")
        e(f"v_cmp_eq_u32 vcc, -1, v{r0}"); e(f"s_cbranch_vccnz L_kvs{p}")
        A.label(f"L_kvo{p}")
        if p < 7:
            e(f"{MF} v[168:171], v[130:133], {v(r0,4)}, v[168:171]"); e(f"{MF} v[172:175], v[128:131], {v(r0,4)}, v[172:175]")
        def kvslow(p=p):
            A.label(f"L_kvs{p}")
            e(f"s_add_u32 s{sTMO}, s{sTMO}, 1"); e(f"s_cmp_ge_u32 s{sTMO}, 0x100000"); e(f"s_cbranch_scc1 L_kvo{p}")
            e("s_waitcnt vmcnt(0)")
            for p2 in range(p, 7):
                if p2 > p:
                    e(f"v_cmp_eq_u32 vcc, -1, v{96+4*p2}"); e(f"s_cbranch_vccz L_kvn{p}_{p2}")
                E(g1(p2))
                if p2 > p: A.label(f"L_kvn{p}_{p2}")
            e(gz); e("s_waitcnt vmcnt(0)"); e(f"s_branch L_kvc{p}")
        ool.append(kvslow)
    for sh_ in (4, 2, 1):
        for r in range(4): e(f"v_add_f32_dpp v{192+r}, v{192+r}, v{192+r} row_ror:{sh_} row_mask:0xf bank_mask:0xf")
    e("v_cvt_pk_bf16_f32 v192, v192, v193"); e("v_cvt_pk_bf16_f32 v193, v194, v195")
    e(f"v_and_b32 v200, 8, v{vZW}"); e(f"v_add_u32 v200, v200, v{vKX}"); e("v_xor_b32 v201, 8, v200")
    cvt4(196, 168, 172)
    e("ds_write_b64 v200, v[196:197]"); e("ds_write_b64 v201, v[198:199]")
    e(f"s_mov_b64 exec, {sm(mM0)}")
    e(f"ds_write_b64 v{vZW}, v[192:193] offset:{M_ZF-M}")
    e("s_mov_b64 exec, -1")
    e("s_waitcnt lgkmcnt(0)"); e("s_barrier")
    stamp(5)
    for t in range(2): e(f"ds_read_b128 {v(184+4*t,4)}, v{vGM} offset:{M_ZF-M + t*64}")
    for j in range(4): e(ldsrd(v(168+4*j,4), M_KX + j*1024))
    e(f"s_add_u32 s{sKV}, s{sKV}, 0x100000"); e(f"s_add_u32 s{sZP}, s{sZP}, 0x10000")
    e("s_waitcnt lgkmcnt(4)")
    for r in range(8): e(f"v_cndmask_b32 v{184+r}, v{184+r}, v{ONES}, {sm(mM1)}")
    for i in range(4):
        b = 64+24*i
        e(f"{MF} {v(b,4)}, v[184:187], {v(204+4*i,4)}, 0"); e(f"{MF} {v(b+4,4)}, v[188:191], {v(224+8*i,4)}, 0")
    e("s_waitcnt lgkmcnt(0)")
    sc = []
    for i in range(4):
        b = 64+24*i
        sc += [[f"v_rcp_f32 v{b+2}, v{b+1}"], [f"v_rcp_f32 v{b+3}, v{b+5}"]]
    for i in range(4):
        b = 64+24*i
        sc += [[f"v_mul_f32 v{b}, v{b}, v{b+2}", f"v_fmac_f32 v{b}, v{b+4}, v{b+3}"], [f"v_add_f32 v{b}, {f32hex(1e-6)}, v{b}", f"v_rcp_f32 v{b}, v{b}"]]
    for i in range(4):
        b = 64+24*i; ep, en = v(204+4*i,4), v(224+8*i,4)
        for t in (f"{MF} {v(b+8,4)}, v[168:171], {ep}, 0", f"{MF} {v(b+12,4)}, v[172:175], {ep}, 0",
                  f"{MF} {v(b+16,4)}, v[176:179], {en}, 0", f"{MF} {v(b+20,4)}, v[180:183], {en}, 0"):
            e(t); E(sc.pop(0))
    for i in range(4): pk_mul(64+24*i+2, 64+24*i+2, 64+24*i)
    for i in range(4):
        b = 64+24*i
        for r in range(0, 8, 2): pk_mul(b+8+r, b+8+r, b+2)
        for r in range(0, 8, 2): pk_fma(b+8+r, b+16+r, b+3, ('p', b+8+r))
        cvt4(208+4*i, b+8, b+12)
    e("s_branch L_g2")

    A.label("L_epiB")
    fl = []
    for i in (3, 2, 1, 0):
        for c0, F in ((2, 192), (4, 224)):
            ms = [f"v_mul_f32 v{acc(c,i)+j}, v{acc(c,i)+j}, v{STP+2*i}" for c in (c0, c0+1) for j in range(4)]
            ms += cvt4l(F+4*i, acc(c0,i), acc(c0+1,i))
            fl += [ms[j:j+2] for j in range(0, 12, 2)]
        if i == 3:
            fl.append([f"buffer_store_dwordx4 v[204:207], v{vL16}, {SRD}, s{T0} offen sc1"])
            fl.append([f"ds_write_b128 v{vKX}, v[204:207] offset:1024"])
            fl.append([f"buffer_store_dwordx4 v[236:239], v{vL16}, {SRD}, s{T0} offen offset:1024 sc1"])
        fl.append([f"ds_write_b128 v{vXW}, {v(224+4*i,4)} offset:{VB_LDS + i*1024}"])
    fl.append([f"buffer_load_dwordx4 v[168:171], v{vL16}, {SRD}, s{T1} offen sc1"])
    fl.append([f"buffer_load_dwordx4 v[172:175], v{vL16}, {SRD}, s{T1} offen offset:1024 sc1"])
    e(f"s_cmp_eq_u32 s{SW}, 3"); e(f"s_cselect_b32 s{T0}, s{sHALO}, {OOR}")
    e(f"s_sub_u32 s{T1}, s{sHALO}, 0x10000"); e(f"s_cmp_eq_u32 s{SW}, 0"); e(f"s_cselect_b32 s{T1}, s{T1}, {OOR}")
    e(f"s_cmp_eq_u32 s{SGRP}, 0"); e(f"s_cselect_b32 s{T1}, {OOR}, s{T1}")
    e(f"s_add_u32 s{sHALO}, s{sHALO}, 0x80000")
    qb = list(qm); late = list(left) + [w2_late(i) for i in range(14)]
    for j in range(2): e(qb.pop(0))
    n = 0
    while qb or fl:
        if qb: e(qb.pop(0))
        n += 1
        if n % o.brate == 0 and late and len(fl) > 4: E(late.pop(0))
        elif fl: E(fl.pop(0))
    for i in range(4): cvt4(240+4*i, acc(0,i), acc(1,i))
    e("s_waitcnt lgkmcnt(0)"); e("s_barrier")
    stamp(2)
    e(f"ds_read_b128 v[208:211], v{vKX}")
    for db in range(2):
        e(f"ds_read_b64_tr_b16 {v(96+10*db,2)}, v{vVp} offset:{db*8}")
        for i in range(4): e(f"ds_read_b64_tr_b16 {v(98+10*db+2*i,2)}, v{vVo} offset:{VB_LDS + i*1024 + db*8}")
    nlate0 = len(late)
    def LT():
        if late: E(late.pop(0))
    for i in (3, 2, 1, 0):
        e(f"{MF} {v(128+8*i,4)}, {v(192+4*i,4)}, {v(240+4*i,4)}, 0")
        if i: e(f"{MF} {v(132+8*i,4)}, {v(192+4*(i-1),4)}, {v(240+4*i,4)}, 0")
        if i % 2: LT()
    e(f"v_mov_b32 v217, {f32hex(-3.0e38)}")
    for i in (3, 2, 1, 0):
        b = 128+8*i
        if i == 0:
            e("s_waitcnt lgkmcnt(0)")
            e(f"s_cmp_eq_u32 s{SW}, 0"); e("s_cbranch_scc1 L_halo")
            A.label("L_halod")
            def halo(n=nlate0-len(late)):
                A.label("L_halo")
                e(f"s_mov_b32 s{sTMO}, 0"); e(f"v_add_u32 v216, {M_HV}, v{vXW}"); e(f"s_waitcnt vmcnt({n})")
                A.label("L_halop")
                e("v_max_u32 v218, v168, v172"); e("v_cmp_eq_u32 vcc, -1, v218"); e("s_cbranch_vccz L_halow")
                e(f"buffer_load_dwordx4 v[168:171], v{vL16}, {SRD}, s{T1} offen sc1")
                e(f"buffer_load_dwordx4 v[172:175], v{vL16}, {SRD}, s{T1} offen offset:1024 sc1")
                e("s_waitcnt vmcnt(0)")
                tmo("L_halop")
                A.label("L_halow")
                e("ds_write_b128 v216, v[172:175]")
                for db in range(2): e(f"ds_read_b64_tr_b16 {v(96+10*db,2)}, v{vVp} offset:{db*8}")
                for r in range(4): e(f"v_mov_b32 v{208+r}, v{168+r}")
                e("s_nop 1"); e("s_branch L_halod")
            ool.append(halo)
            e(f"{MF} v[132:135], v[208:211], v[240:243], 0")
        for r in range(0, 8, 2): e(f"v_cndmask_b32 v{b+r}, v{b+r}, v{b+r+1}, {sm(mPAR)}")
        if i == 0:
            e(f"v_cndmask_b32 v{b+4}, v{b+4}, v217, {sm(mFIRST)}"); e(f"v_cndmask_b32 v{b+6}, v{b+6}, v217, {sm(mFIRST)}")
        e(f"v_cndmask_b32 v{116+2*i}, v{b+4}, v{b}, {sm(mOWN0)}")
        e(f"v_cndmask_b32 v{117+2*i}, v{b+6}, v{b+2}, {sm(mOWN1)}")
        e(f"v_max_f32 v{124+i}, v{116+2*i}, v{117+2*i}")
        LT()
    xreduce([("v_max_f32", [124, 125, 126, 127])])
    LT()
    for i in range(4):
        e(f"v_sub_f32 v{116+2*i}, v{116+2*i}, v{124+i}"); e(f"v_sub_f32 v{117+2*i}, v{117+2*i}, v{124+i}")
    for i in range(4): pk_mul(116+2*i, 116+2*i, CI+i)
    LT()
    for r in range(8): e(f"v_exp_f32 v{116+r}, v{116+r}")
    while late: LT()
    for r in range(8): e(f"v_cvt_pk_bf16_f32 v{116+r}, v{116+r}, v{116+r}")
    e("s_waitcnt lgkmcnt(0)")
    for i in range(4):
        e(f"v_and_b32 v{192+4*i}, v{116+2*i}, v{MP0}"); e(f"v_and_b32 v{193+4*i}, v{117+2*i}, v{MP1}")
        e(f"v_and_b32 v{194+4*i}, v{116+2*i}, v{MO0}"); e(f"v_and_b32 v{195+4*i}, v{117+2*i}, v{MO1}")
    for i in range(4): e(f"{MF} {v(128+4*i,4)}, {v(ONES,4)}, {v(192+4*i,4)}, 0")
    for i in range(4):
        for db in range(2): e(f"{MF} {v(64+8*i+4*db,4)}, {v(96+10*db+2*i,4)}, {v(192+4*i,4)}, 0")
    for i in range(4): e(f"v_rcp_f32 v{128+4*i}, v{128+4*i}")
    for i in range(4):
        for r in range(0, 8, 2): pk_mul(64+8*i+r, 64+8*i+r, 128+4*i)
        cvt4(208+4*i, 64+8*i, 68+8*i)

    A.label("L_g2")
    e(f"s_cmp_eq_u32 s{SLAY}, 0"); e(f"s_cselect_b32 s{T0}, 1, s{SMODE}")
    if o.o4sc: e(f"s_cmp_eq_u32 s{SLAY}, 3"); e(f"s_cselect_b32 s{T0}, 1, s{T0}")
    st_mode([f"buffer_store_dwordx4 {v(208+4*i,4)}, v{vA+i}, {SRD}, s{sO} offen" for i in range(4)], T0)
    stamp(6)
    for i in range(2):
        for kk in range(2):
            for r in range(4):
                d = acc2(2*kk + (r >> 1), i) + 2*(r & 1); x = RES+8*i+4*kk+r
                e(f"v_lshlrev_b32 v{d}, 16, v{x}"); e(f"v_and_b32 v{d+1}, 0xffff0000, v{x}")
    e(f"s_add_u32 s{T6}, s{SLAY}, 1"); e(f"v_mov_b32 v{vVal}, s{T6}")
    e(f"s_xor_b32 s{sW1}, s{sW1}, {WS_W1A ^ WS_W1B}"); e(f"s_xor_b32 s{sW2}, s{sW2}, {WS_W2A ^ WS_W2B}")
    e(f"s_xor_b32 s{sCSL}, s{sCSL}, 384"); e(f"s_xor_b32 s{sCK}, s{sCK}, {int(CK_A,16) ^ int(CK_B,16)}")
    e(f"s_cmp_eq_u32 s{SLAY}, {o.last}"); e(f"s_cselect_b32 s{sW1}, {OOR}, s{sW1}")
    e("s_waitcnt vmcnt(0)")
    e("s_mov_b64 exec, 1")
    st_mode([f"buffer_store_dword v{vVal}, off, {SRD}, s{sFOp}"])
    e("s_mov_b64 exec, -1")
    e("s_barrier")
    stamp(7)
    lq.clear(); vq.clear()
    W2F = RING; AF2 = RING + 32; GD = o.g2depth
    def w2rd(step, b):
        lq.add(("W", step, b))
        ad = (step*4096 if step < 14 else 3*SLOT + (step-14)*4096) + b*1024
        return ldsrd(a(W2F + 16*(step % 2) + 4*b, 4), ad)
    for st in range(2):
        for b in range(4): e(w2rd(st, b))
    poll_ge(vFP, sFOc, T6, FBV)
    stamp(8)
    def bload(step, i):
        d = AF2 + 8*(step % GD) + 4*i; r = []
        if i == 0 and step % 4 == 0: r.append(f"s_mov_b32 s{sAo}, {WS_O + step*1024}")
        vq.add(("A", step))
        return r + [f"buffer_load_dwordx4 {a(d,4)}, v{vB+i}, {SRD}, s{sAo} offen offset:{(step%4)*1024} sc1"]
    for st in range(GD-1):
        for i in range(2): E(bload(st, i))
    w1n = list(range(6))
    for step in range(32):
        E(vq.wait(("A", step)))
        if step == 18: e("s_barrier")
        a0 = AF2 + 8*(step % GD)
        for b in range(4):
            E(lq.wait(("W", step, b)))
            for p, i in enumerate(range(2) if b % 2 == 0 else (1, 0)):
                e(f"{MF} {v(acc2(b,i),4)}, {a(W2F+16*(step%2)+4*b,4)}, {a(a0+4*i,4)}, {v(acc2(b,i),4)}")
                if b % 2 == 0 and p == 0:
                    if step + GD - 1 < 32: E(bload(step+GD-1, b//2))
                    elif w1n and b == 0 and step >= 18:
                        E(w1_piece(1, w1n.pop(0))); vq.add("W")
            if step + 2 < 32: e(w2rd(step+2, b))
            if step == 19 and b == 3:
                la, ld = A.new("resA"), A.new("resd")
                e(f"s_bitcmp1_b32 s{SLAY}, 0"); e(f"s_cbranch_scc1 {la}")
                for blk in range(6): e(f"ds_write_b128 v{vLW}, {a(RB+4*blk,4)} offset:{SLOT + blk*1024}"); lq.add("rw")
                A.label(ld)
                def resA(la=la, ld=ld):
                    A.label(la)
                    for blk in range(6): e(f"ds_write_b128 v{vLW}, {a(RA+4*blk,4)} offset:{SLOT + blk*1024}")
                    e(f"s_branch {ld}")
                ool.append(resA)
    assert not w1n
    stamp(9)
    for i in range(2):
        for kk in range(2): cvt4(RES+8*i+4*kk, acc2(2*kk,i), acc2(2*kk+1,i))
    e(f"s_cmp_eq_u32 s{SLAY}, {o.last}"); e("s_cbranch_scc1 L_final")
    xtile(RES, 160, False)
    e("s_waitcnt vmcnt(0)")
    e("s_mov_b64 exec, 1")
    st_mode([f"buffer_store_dword v{vVal}, off, {SRD}, s{sFXp}"])
    e("s_mov_b64 exec, -1")
    stamp(10)
    e(f"s_add_u32 s{SLAY}, s{SLAY}, 1")
    e("s_branch L_g1pre")
    A.label("L_final")
    srt(P_OUT, 0x400000); e(f"s_mov_b32 s{T0}, 0x8000")
    for i in range(2):
        for kk in range(2):
            e(f"buffer_store_dwordx4 {v(RES+8*i+4*kk,4)}, v{vOut}, {SRT}, {'0' if i == 0 else 's%d' % T0} offen offset:{kk*64} {['', 'sc1', 'nt', 'sc0 sc1'][o.outsc]}")
    if o.stamps:
        e("s_waitcnt vmcnt(0)")
        stamp(11)
        e(f"s_lshl_b32 s{T0}, s{SIDX}, 2"); e(f"s_add_u32 s{T0}, s{T0}, s{SW}")
        e(f"s_lshl_b32 s{T0}, s{T0}, 8"); e(f"s_add_u32 s{T0}, s{T0}, {WS_STAMPS}")
        e(f"v_lshrrev_b32 v200, 2, v{vL16}")
        e(f"buffer_store_dword v{vSTAMP}, v200, {SRD}, s{T0} offen")
        if o.dbgout:
            e(f"s_lshl_b32 s{T0}, s{SIDX}, 2"); e(f"s_add_u32 s{T0}, s{T0}, s{SW}"); e(f"s_cmp_lg_u32 s{T0}, {o.dbgout}"); e("s_cbranch_scc1 L_nodbg")
            srt(P_DBG, 256)
            e(f"v_readlane_b32 s{T1}, v{vSTAMP}, 12")
            for j, idx in enumerate((28, 13, 31, 14, 15, 1, 5, 8, 9, 17, 25, 33, 41, 49, 59)):
                e(f"v_readlane_b32 s{T2}, v{vSTAMP}, {idx}"); e(f"s_sub_u32 s{T2}, s{T2}, s{T1}"); e(f"v_mov_b32 v201, s{T2}")
                e(f"buffer_store_dword v201, off, {SRT}, 0 offset:{4+4*j}")
            A.label("L_nodbg")
    e("s_endpgm")
    for blk in ool: blk()
    A.label("L_codeend")
    e("s_endpgm")
    A.raw('.section .rodata,"a"'); A.raw(".p2align 6"); A.raw(f".amdhsa_kernel {KNAME}")
    for t in ("next_free_vgpr 512", "next_free_sgpr 102", "accum_offset 256", "group_segment_fixed_size 0", "kernarg_size 80",
              "user_sgpr_count 2", "user_sgpr_kernarg_segment_ptr 1", "system_sgpr_workgroup_id_x 1"):
        A.raw("  .amdhsa_" + t)
    A.raw(".end_amdhsa_kernel")
    return A.text()

if __name__ == "__main__":
    o = Opts()
    out = sys.argv[1]
    for kv in sys.argv[2:]:
        k, val = kv.split("=")
        setattr(o, k, int(val))
    open(out, "w").write(gen(o))
```

```python
import sys, struct
from asmlib import *

KNAME = "interleave_layers__linear_kernel_hedgehog__sliding_local_dilated__prompt_kernel"

WS_FLAGA = 0x0000000
WS_FLAGB = 0x0008000
WS_FLAGO = 0x0009000
WS_FLAGX = 0x000A000
WS_CS    = 0x0010000
CS_SZ    = 393216
WS_ST    = 0x0100000
WS_ZP    = 0x0140000
WS_STAMPS= 0x0180000
WS_HALO  = 0x0200000
WS_KVP   = 0x0400000
WS_W1A   = 0x0800000
WS_W1B   = 0x0E00000
WS_W2A   = 0x1400000
WS_W2B   = 0x1600000
WS_X     = 0x1800000
WS_X0    = WS_X
WS_O     = 0x1C00000
WS_SIZE  = 0x10000000
OOR      = 0x40000000

SLOT = 24576
M      = 147456
M_MODE = M
M_CS   = M + 64
M_ST   = M + 1024
M_RS   = M + 3072
M_KX   = M + 4096
M_HV   = M + 9216
M_ZF   = M + 10240
M_PHI  = M + 11264
LDS_SIZE = 163840
VB_LDS = 57344
RAW1A, RAW1B, RAW2 = 3*SLOT, 4*SLOT, 5*SLOT

SRD = "s[4:7]"; SRT = "s[8:11]"
SW, SGRP, SMEM, SMODE, SLAY, SCB, SRB = 12, 13, 14, 15, 16, 17, 18
T0, T1, T2, T3, T4, T5, T6, T7 = 19, 20, 21, 22, 23, 24, 25, 26
SIDX, sCK, SXCC = 27, 28, 29
sFOc, sFOp, sFXc, sFXp = 30, 31, 32, 33
sO, sXs = 34, 35
mPAR, mB1, mDIAG, mM0, mOWN0, mOWN1, mM1, mFIRST = 36, 38, 40, 42, 44, 46, 48, 50
sW1, sW2, sCSL, sFBp, sSTs, sLW, sKV, sZP, sHALO, sTMO, sAo, sWo = 52, 53, 54, 55, 56, 57, 58, 59, 60, 61, 62, 63
P_AX, P_AW1, P_PHI, P_AW2, P_BX, P_BW1, P_BW2, P_OUT, P_DBG, P_WS = 64, 66, 68, 70, 72, 74, 76, 78, 80, 82
sCL0, sCL1, sCL2, sL14, sW2l = 72, 73, 3, 2, 0
sSTAMP = 84
ROTA, ROTW = 86, 94

vL16, vL64, vL128 = 1, 2, 3
vA = 4; vB = 8; vW1 = 10; vW2 = 11; vFP = 12; vSTl = 13; vSTs = 14; vSTAMP = 15
RES = 16; PHI = 32; ONES = 40; MP0, MP1, MO0, MO1 = 44, 45, 46, 47
vXW, vE0, vE1, vRSW, vRSR, vVo, vVp, vKX, vGM, vZW, vSW, vSR, vG16, vOut, vZL, vVal = range(48, 64)
vLW = 0
ACC = 64
def acc(c, i): return ACC + 16*c + 4*i
def acc2(b, i): return ACC + 8*b + 4*i
STP = 160; CSR = 168; WFV = 192; FBV = 216; CI = 220
RA, RB, RING = 0, 24, 48
MF = "v_mfma_f32_16x16x32_bf16"
def f32hex(x): return "0x%08x" % struct.unpack("<I", struct.pack("<f", x))[0]
CK_A = f32hex(1.4426950408889634); CK_B = f32hex(1.4426950408889634 * 32 ** -0.5)

class Opts:
    stamps = 0
    last = 3
    force_slow = 0
    ND = 8
    LA = 4
    APRE = 3
    wrate = 150
    w2rate = 200
    g2depth = 10
    brate = 5
    bfirst = 1
    gpos = 2
    dbgout = 0
    outsc = 0
    echo_a = -1
    echo_b = -1
    x_bx = 0
    x_now1 = 0
    x_nost = 0
    x_norot = 0
    x_noa = 0
    w2start = 25
    x_samew = 0
    o4sc = 0
    codepf = 1

class Q:
    def __init__(self, name, mx): self.q = []; self.name = name; self.mx = mx; self.seen = set(); self.ghost = set()
    def add(self, tag, ghost=False):
        self.q.append(tag); self.seen.add(tag)
        if ghost: self.ghost.add(tag)
    def wait(self, *tags, keep=False):
        assert all(t in self.seen for t in tags), tags
        idx = max([i for i, t in enumerate(self.q) if t in tags], default=-1)
        if idx < 0: return []
        n = sum(1 for t in self.q[idx+1:] if t not in self.ghost)
        if not keep: del self.q[:idx+1]
        return [f"s_waitcnt {self.name}({min(n, self.mx)})"]
    def clear(self): self.q = []; self.seen = set(); self.ghost = set()

def gen(o):
    A = Asm(); e = A.e
    ool = []
    ND = o.ND; AD = ND
    WQ = RING + 16*AD
    assert WQ + 8*ND <= 256
    def E(lst):
        for t in lst:
            if t.endswith(":"): A.label(t[:-1])
            else: e(t)
    def stamp(name):
        if not o.stamps: return
        if o.stamps == 2 and name not in (12, 11, o.echo_a % 16, o.echo_b % 16, o.echo_a, o.echo_b): return
        e(f"{'s_memtime' if o.stamps == 3 else 's_memrealtime'} s[{sSTAMP}:{sSTAMP+1}]")
        e(f"s_mov_b32 s{T7}, m0"); e(f"s_lshl_b32 m0, s{SLAY}, 4"); e(f"s_add_u32 m0, m0, {name}")
        e("s_waitcnt lgkmcnt(0)")
        e(f"v_writelane_b32 v{vSTAMP}, s{sSTAMP}, m0"); e(f"s_mov_b32 m0, s{T7}")
    def srt(p, size):
        e(f"s_mov_b32 s8, s{p}"); e(f"s_mov_b32 s9, s{p+1}"); e(f"s_mov_b32 s10, {size}"); e("s_mov_b32 s11, 0x20000")
    def mask64(r, val):
        e(f"s_mov_b32 s{r}, 0x{val & 0xffffffff:08x}"); e(f"s_mov_b32 s{r+1}, 0x{val >> 32:08x}")
    def sm(r): return f"s[{r}:{r+1}]"
    def bc(r): return (v(r & ~1, 2), r & 1)
    def pk_fma(d, x, y, z, negx=False):
        yp, ys = bc(y)
        if z[0] == 'p': zp, zl, zh = v(z[1], 2), 0, 1
        else:
            zp, zs = bc(z[1]); zl = zh = zs
        t = f"v_pk_fma_f32 {v(d,2)}, {v(x,2)}, {yp}, {zp} op_sel:[0,{ys},{zl}] op_sel_hi:[1,{ys},{zh}]"
        if negx: t += " neg_lo:[1,0,0] neg_hi:[1,0,0]"
        e(t)
    def pk_mul(d, x, y):
        yp, ys = bc(y)
        e(f"v_pk_mul_f32 {v(d,2)}, {v(x,2)}, {yp} op_sel:[0,{ys}] op_sel_hi:[1,{ys}]")
    def cvt4l(d, x0, x1):
        return [f"v_cvt_pk_bf16_f32 v{d}, v{x0}, v{x0+1}", f"v_cvt_pk_bf16_f32 v{d+1}, v{x0+2}, v{x0+3}",
                f"v_cvt_pk_bf16_f32 v{d+2}, v{x1}, v{x1+1}", f"v_cvt_pk_bf16_f32 v{d+3}, v{x1+2}, v{x1+3}"]
    def cvt4(d, x0, x1): E(cvt4l(d, x0, x1))
    def st_mode(lines, reg=SMODE):
        ls, ld = A.new("slow"), A.new("done")
        e(f"s_cmp_lg_u32 s{reg}, 0"); e(f"s_cbranch_scc1 {ls}")
        for t in lines: e(t)
        A.label(ld)
        def blk():
            A.label(ls); A.fence()
            for t in lines: e(t + (" sc1" if t.startswith("buffer_store") else ""))
            e("s_nop 1"); e(f"s_branch {ld}")
        ool.append(blk)
    def tmo(lbl, lim=0x100000):
        e(f"s_add_u32 s{sTMO}, s{sTMO}, 1"); e(f"s_cmp_lt_u32 s{sTMO}, {lim}"); e(f"s_cbranch_scc1 {lbl}")
    def poll_ge(vaddr, soff, sval, vt):
        l, d = A.new("poll"), A.new("polld")
        e(f"s_mov_b32 s{sTMO}, 0")
        A.label(l)
        e(f"buffer_load_dword v{vt}, v{vaddr}, {SRD}, s{soff} offen sc1")
        e("s_waitcnt vmcnt(0)")
        e(f"v_cmp_gt_u32 vcc, s{sval}, v{vt}")
        e(f"s_cbranch_vccz {d}")
        tmo(l)
        A.label(d)
    def xreduce(groups):
        for op, q in groups: e(f"v_permlane32_swap_b32 v{q[0]}, v{q[1]}"); e(f"v_permlane32_swap_b32 v{q[2]}, v{q[3]}")
        for op, q in groups: e(f"{op} v{q[0]}, v{q[0]}, v{q[1]}"); e(f"{op} v{q[2]}, v{q[2]}, v{q[3]}")
        for op, q in groups: e(f"v_permlane16_swap_b32 v{q[0]}, v{q[2]}")
        for op, q in groups: e(f"{op} v{q[1]}, v{q[0]}, v{q[2]}"); e(f"{op} v{q[2]}, v{q[0]}, v{q[2]}")
        for op, q in groups: e(f"v_permlane16_swap_b32 v{q[1]}, v{q[2]}")
        for op, q in groups: e(f"v_mov_b32 v{q[0]}, v{q[1]}"); e(f"v_mov_b32 v{q[3]}, v{q[2]}")
        for op, q in groups: e(f"v_permlane32_swap_b32 v{q[0]}, v{q[1]}"); e(f"v_permlane32_swap_b32 v{q[2]}, v{q[3]}")
    def xtile(R, tmp, always_sc1):
        st = [f"buffer_store_dwordx4 {v(R+8*i+4*kk,4)}, v{vB+i}, {SRD}, s{sXs} offen offset:{kk*1024}" for i in range(2) for kk in range(2)]
        for kk in range(2):
            for i in range(2):
                f = v(R+8*i+4*kk, 4)
                e(f"{MF} {v(tmp+8*i,4)}, {v(ONES,4)}, {f}, {'0' if kk == 0 else v(tmp+8*i,4)}")
                e(f"{MF} {v(tmp+8*i+4,4)}, {f}, {f}, {'0' if kk == 0 else v(tmp+8*i+4,4)}")
        if always_sc1:
            for t in st: e(t + " sc1")
        else: st_mode(st)
        for i in range(2):
            g0 = tmp+8*i+4
            e(f"v_cndmask_b32 v{g0}, v{g0}, v{g0+1}, {sm(mPAR)}")
            e(f"v_cndmask_b32 v{g0+2}, v{g0+2}, v{g0+3}, {sm(mPAR)}")
            e(f"v_cndmask_b32 v{tmp+8*i+1}, v{g0}, v{g0+2}, {sm(mB1)}")
        st = [f"buffer_store_dwordx2 {v(tmp+8*i,2)}, v{vSTs}, {SRD}, s{sSTs} offen offset:{i*128}" for i in range(2)]
        e(f"s_mov_b64 exec, {sm(mDIAG)}")
        if always_sc1:
            for t in st: e(t + " sc1")
        else: st_mode(st)
        e("s_mov_b64 exec, -1")
    def w1_piece(stage, i):
        r = []
        slot = (stage + 1) % 6
        if i == 0: r += [f"s_add_u32 m0, s{sLW}, {slot*SLOT}", f"s_add_u32 s{sWo}, s{sW1}, s{ROTW+stage}"]
        if i == 4: r += [f"s_add_u32 m0, s{sLW}, {slot*SLOT + 4096}", f"s_add_u32 s{sWo}, s{sWo}, 4096"]
        if o.x_now1 and stage >= 2: return r + ["s_nop 0"]
        if o.x_samew: return r + [f"buffer_load_dwordx4 v{vLW}, {SRD}, s{sWo} offen offset:{(i%4)*1024} lds"]
        return r + [f"buffer_load_dwordx4 v{vW1}, {SRD}, s{sWo} offen offset:{(i%4)*1024} lds"]
    def w2_piece(part, i):
        r = []
        if i % 4 == 0:
            r += [f"s_add_u32 m0, s{sLW}, {(3+part)*SLOT + (i//4)*4096}", f"s_add_u32 s{sWo}, s{sW2}, {57344 + part*SLOT + (i//4)*4096}"]
        return r + [f"buffer_load_dwordx4 v{vW2}, {SRD}, s{sWo} offen offset:{(i%4)*1024} lds"]
    def w2_late(i):
        r = []
        if i == 0: r += [f"s_add_u32 s{T5}, s{sW2}, s{sW2l}"]
        if i % 4 == 0:
            r += [f"s_add_u32 m0, s{sL14}, {(i//4)*4096}", f"s_add_u32 s{sWo}, s{T5}, {(i//4)*4096}"]
        return r + [f"buffer_load_dwordx4 v{vW2}, {SRD}, s{sWo} offen offset:{(i%4)*1024} lds"]
    def ldsrd(dst, addr):
        base = {0: vL16, 1: vL64, 2: vL128}[addr >> 16]
        return f"ds_read_b128 {dst}, v{base} offset:{addr & 0xffff}"
    def cs_load(d):
        r = [f"s_mul_i32 s{T0}, s{SMEM}, 384", f"s_lshl_b32 s{T1}, s{sCSL}, 10", f"s_add_u32 s{T0}, s{T0}, s{T1}", f"s_add_u32 s{T0}, s{T0}, {WS_CS}",
             f"s_lshl_b32 s{T1}, s{SW}, 6", f"s_add_u32 s{T2}, s{SW}, 4", f"s_min_u32 s{T2}, s{T2}, 5", f"s_lshl_b32 s{T2}, s{T2}, 6",
             f"s_add_u32 s{T3}, s{T0}, s{T1}", f"s_add_u32 s{T4}, s{T0}, s{T2}",
             f"v_bfe_u32 v{d+16}, v{vL16}, 4, 4", f"v_mul_u32_u24 v{d+16}, 12288, v{d+16}", f"v_add_u32 v{d+16}, v{d+16}, v{vG16}",
             f"v_add_u32 v{d+17}, {16*12288}, v{d+16}"]
        for j in range(2):
            r += [f"buffer_load_dwordx4 {v(d+8*j,4)}, v{d+16+j}, {SRD}, s{T3} offen sc1",
                  f"buffer_load_dwordx4 {v(d+8*j+4,4)}, v{d+16+j}, {SRD}, s{T4} offen sc1"]
        r += [f"s_add_u32 s{T1}, s{T1}, s{sCSL}", f"s_add_u32 s{T2}, s{T2}, s{sCSL}",
              f"v_add_u32 v{d+16}, s{T1}, v{vGM}", f"v_add_u32 v{d+17}, s{T2}, v{vGM}"]
        return r
    def cs_proc(d):
        r = [f"v_add_f32 v{d+j}, v{d+j}, v{d+8+j}" for j in range(8)]
        for sh in (8, 4, 2, 1):
            r += [f"v_add_f32_dpp v{d+j}, v{d+j}, v{d+j} row_ror:{sh} row_mask:0xf bank_mask:0xf" for j in range(8)]
        r += [f"s_mov_b64 exec, {sm(mM0)}", f"ds_write_b128 v{d+16}, {v(d,4)} offset:{M_CS-M}",
              f"ds_write_b128 v{d+17}, {v(d+4,4)} offset:{M_CS-M}", "s_mov_b64 exec, -1"]
        return r

    A.raw(f"; @launch grid=(256,1,1) block=(256,1,1) lds={LDS_SIZE}")
    A.raw('.amdgcn_target "amdgcn-amd-amdhsa--gfx950"'); A.raw(".text")
    A.raw(f".globl {KNAME}"); A.raw(".p2align 8"); A.raw(f".type {KNAME},@function"); A.label(KNAME)
    e("s_cmp_lt_u32 s2, 256"); e("s_cbranch_scc1 L_go"); e("s_endpgm"); A.label("L_go")
    e("s_load_dwordx16 s[64:79], s[0:1], 0"); e("s_load_dwordx4 s[80:83], s[0:1], 64")
    e(f"s_getpc_b64 s[{T1}:{T1+1}]"); e(f"s_and_b32 s{T1}, s{T1}, 0xffffff00")
    e(f"s_mov_b32 s{SLAY}, 0")
    e("v_lshlrev_b32 v253, 7, v0")
    e("v_lshrrev_b32 v1, 6, v0"); e("v_and_b32 v254, 63, v0"); e(f"v_readfirstlane_b32 s{SW}, v1")
    if o.stamps: e(f"v_mov_b32 v{vSTAMP}, 0"); stamp(12)
    if o.force_slow:
        e(f"s_lshr_b32 s{SGRP}, s2, 5"); e(f"s_and_b32 s{SMEM}, s2, 31")
    else:
        e(f"s_and_b32 s{SGRP}, s2, 7"); e(f"s_lshr_b32 s{SMEM}, s2, 3")
    e(f"s_lshl_b32 s{SIDX}, s{SGRP}, 5"); e(f"s_add_u32 s{SIDX}, s{SIDX}, s{SMEM}")
    e(f"s_lshr_b32 s{SRB}, s{SIDX}, 4"); e(f"s_and_b32 s{SCB}, s{SIDX}, 15")
    e(f"v_lshlrev_b32 v{vL16}, 4, v254"); e(f"v_and_b32 v{vG16}, 48, v254"); e("v_and_b32 v0, 15, v254")
    e(f"s_mul_i32 s{sLW}, s{SW}, 6144")
    e(f"s_lshl_b32 s{T3}, s{SRB}, 3"); e(f"s_lshl_b32 s{T4}, s{SW}, 1"); e(f"s_add_u32 s{T3}, s{T3}, s{T4}")
    e(f"s_lshl_b32 s{T4}, s{T3}, 4"); e(f"v_add_u32 v{vOut}, s{T4}, v0"); e(f"v_lshlrev_b32 v{vSTs}, 3, v{vOut}")
    e(f"s_lshl_b32 s{T4}, s{SCB}, 7"); e(f"v_lshlrev_b32 v{vOut}, 11, v{vOut}"); e(f"v_add3_u32 v{vOut}, v{vOut}, s{T4}, v{vG16}")
    e(f"s_lshl_b32 s{T3}, s{T3}, 15"); e(f"v_add_u32 v{vB}, s{T3}, v{vL16}"); e(f"v_add_u32 v{vB+1}, 0x8000, v{vB}")
    e("v_lshrrev_b32 v200, 2, v254"); e("v_and_b32 v201, 3, v254")
    e("v_mul_u32_u24 v202, 6144, v200"); e("v_lshl_add_u32 v202, v201, 4, v202")
    e("v_lshrrev_b32 v203, 3, v254"); e("v_and_b32 v204, 7, v254"); e("v_lshlrev_b32 v204, 4, v204"); e("v_lshl_add_u32 v210, v203, 11, v204")
    e(f"s_lshl_b32 s{T6}, s{SGRP}, 2"); e(f"s_add_u32 s{T6}, s{T6}, s{SW}")
    e(f"s_mul_i32 s{T5}, s{T6}, {32*6144}"); e(f"s_lshl_b32 s{T4}, s{SMEM}, 6"); e(f"s_add_u32 s{T5}, s{T5}, s{T4}")
    e(f"v_mov_b32 v{vVal}, 0")
    e("s_waitcnt lgkmcnt(0)")
    e(f"s_mov_b32 s4, s{P_WS}"); e(f"s_mov_b32 s5, s{P_WS+1}"); e(f"s_mov_b32 s6, {WS_SIZE}"); e("s_mov_b32 s7, 0x20000")
    e(f"s_or_b32 s{T0}, s{SIDX}, s{SW}"); e(f"s_cmp_lg_u32 s{T0}, 0"); e("s_cbranch_scc1 L_p0a")
    for r in range(4): e(f"v_mov_b32 v{204+r}, 0")
    for j in range(4):
        e(f"s_mov_b32 s{T0}, {j*8192}"); e(f"buffer_store_dword v204, v253, {SRD}, s{T0} offen sc1")
    e(f"s_mov_b32 s{T0}, {WS_FLAGB}"); e(f"buffer_store_dwordx4 v[204:207], v{vL16}, {SRD}, s{T0} offen sc1")
    A.label("L_p0a")
    if o.x_bx:
        srt(P_BX, 0x400000); e(f"s_lshl_b32 s{T0}, s{SIDX}, 2"); e(f"s_add_u32 s{T0}, s{T0}, s{SW}"); e(f"s_lshl_b32 s{T0}, s{T0}, 12")
        for rep_ in range(o.x_bx):
            for i in range(4): e(f"buffer_load_dwordx4 v[240:243], v{vL16}, {SRT}, s{T0} offen offset:{i*1024}")
            e("s_waitcnt vmcnt(0)")
            if rep_ == 0 and o.x_bx > 1:
                e(f"s_mov_b32 s8, s{P_OUT}"); e(f"s_mov_b32 s9, s{P_OUT+1}")
    srt(P_AX, 0x400000)
    e(f"s_lshl_b32 s{T4}, s{SCB}, 7"); e(f"s_add_u32 s{T3}, s{T3}, s{T4}")
    for i in range(4):
        e(f"s_add_u32 m0, s{sLW}, {i*1024}"); e(f"s_add_u32 s{T0}, s{T3}, {i*16384}")
        e(f"buffer_load_dwordx4 v210, {SRT}, s{T0} offen lds")
    def raw1(p, ldsb):
        srt(p, 0x600000)
        for seg in range(3):
            for hf in range(2):
                e(f"s_add_u32 m0, s{sLW}, {ldsb + seg*2048 + hf*1024}"); e(f"s_add_u32 s{T0}, s{T5}, {seg*2048 + hf*16*6144}")
                e(f"buffer_load_dwordx4 v202, {SRT}, s{T0} offen lds")
    raw1(P_AW1, RAW1A)
    e(f"s_or_b32 s{T0}, s{SIDX}, s{SW}"); e(f"s_cmp_lg_u32 s{T0}, 0"); e("s_cbranch_scc1 L_p0b")
    srt(P_DBG, 256); e("v_mov_b32 v204, 1")
    e("s_waitcnt vmcnt(10)")
    e("s_mov_b64 exec, 1"); e(f"buffer_store_dword v204, off, {SRT}, 0 sc1"); e("s_mov_b64 exec, -1")
    A.label("L_p0b")
    vq = Q("vmcnt", 63)
    for i in range(4): vq.add("x")
    for i in range(6): vq.add("ra")
    if o.codepf:
        e(f"s_lshl_b32 s{T0}, s{SMEM}, 2"); e(f"s_add_u32 s{T0}, s{T0}, s{SW}"); e(f"s_mul_i32 s{T0}, s{T0}, 384")
        e(f"v_lshl_add_u32 v252, v254, 7, s{T0}"); e("v_min_u32 v252, L_codeend-%s-4, v252" % KNAME)
        e("s_mov_b64 exec, 7"); e(f"global_load_dword v251, v252, s[{T1}:{T1+1}]"); e("s_mov_b64 exec, -1"); vq.add("pf")
    srt(P_PHI, 0x10000)
    e(f"s_and_b32 s{T3}, s{SW}, 1"); e(f"s_lshl_b32 s{T1}, s{T3}, 10"); e(f"s_add_u32 m0, s{T1}, {M_PHI}"); e(f"s_lshl_b32 s{T2}, s{SMEM}, 11"); e(f"s_add_u32 s{T1}, s{T1}, s{T2}")
    e(f"buffer_load_dwordx4 v{vL16}, {SRT}, s{T1} offen lds"); vq.add("phi")
    def rawb():
        raw1(P_BW1, RAW1B)
        e(f"s_cmp_lt_u32 s{SW}, 2"); e(f"s_cselect_b32 s8, s{P_AW2}, s{P_BW2}"); e(f"s_cselect_b32 s9, s{P_AW2+1}, s{P_BW2+1}"); e("s_mov_b32 s10, 0x200000")
        e(f"s_lshl_b32 s{T0}, s{SRB}, 1"); e(f"s_and_b32 s{T1}, s{SW}, 1"); e(f"s_add_u32 s{T0}, s{T0}, s{T1}")
        e(f"s_lshl_b32 s{T0}, s{T0}, 16"); e(f"s_lshl_b32 s{T1}, s{SCB}, 7"); e(f"s_add_u32 s{T0}, s{T0}, s{T1}")
        for i in range(4):
            e(f"s_add_u32 m0, s{sLW}, {RAW2 + i*1024}"); e(f"s_add_u32 s{T1}, s{T0}, {i*16384}")
            e(f"buffer_load_dwordx4 v210, {SRT}, s{T1} offen lds")
        for i in range(10): vq.add("rb")
    e(f"s_getreg_b32 s{SXCC}, hwreg(HW_REG_XCC_ID, 0, 4)"); e(f"s_or_b32 s{SXCC}, s{SXCC}, 0x100")
    mask64(mPAR, 0xAAAAAAAAAAAAAAAA); mask64(mB1, 0xCCCCCCCCCCCCCCCC); mask64(mDIAG, 0xF0000F0000F0000F)
    mask64(mM0, 0x0001000100010001); mask64(mM1, 0x2222222222222222)
    mask64(mOWN0, sum(1 << l for l in range(64) if 4*(l >> 4) + (l & 1) <= (l & 15)))
    mask64(mOWN1, sum(1 << l for l in range(64) if 4*(l >> 4) + 2 + (l & 1) <= (l & 15)))
    e(f"s_lshl_b32 s{T1}, s{SMEM}, 15"); e(f"s_lshl_b32 s{T2}, s{SW}, 10"); e(f"s_add_u32 s{T1}, s{T1}, s{T2}"); e(f"s_add_u32 s{sKV}, s{T1}, {WS_KVP - WS_X + (1<<32)}")
    e(f"s_lshr_b32 s{T1}, s{T1}, 4"); e(f"s_add_u32 s{sZP}, s{T1}, {WS_ZP}")
    e(f"s_lshl_b32 s{T1}, s{T6}, 7"); e(f"s_add_u32 s{sFXc}, s{T1}, {WS_FLAGX}")
    e(f"s_lshl_b32 s{T2}, s{SMEM}, 2"); e(f"s_add_u32 s{T1}, s{T1}, s{T2}"); e(f"s_add_u32 s{sFOp}, s{T1}, {WS_FLAGO}")
    e(f"s_lshl_b32 s{T1}, s{SRB}, 1"); e(f"s_lshr_b32 s{T2}, s{SW}, 1"); e(f"s_add_u32 s{T1}, s{T1}, s{T2}"); e(f"s_lshl_b32 s{T1}, s{T1}, 7")
    e(f"s_add_u32 s{sFOc}, s{T1}, {WS_FLAGO}")
    e(f"s_lshl_b32 s{T2}, s{SCB}, 3"); e(f"s_and_b32 s{T3}, s{SW}, 1"); e(f"s_lshl_b32 s{T4}, s{T3}, 2")
    e(f"s_add_u32 s{T1}, s{T1}, s{T2}"); e(f"s_add_u32 s{T1}, s{T1}, s{T4}"); e(f"s_add_u32 s{sFXp}, s{T1}, {WS_FLAGX}")
    e(f"s_lshl_b32 s{T0}, s{SGRP}, 8"); e(f"s_add_u32 s{sCL1}, s{T0}, s{sZP}")
    e(f"s_lshl_b32 s{T1}, s{SIDX}, 11"); e(f"s_add_u32 s{sHALO}, s{T1}, {WS_HALO}")
    e(f"s_lshl_b32 s{T1}, s{T3}, 10"); e(f"s_lshr_b32 s{T4}, s{SW}, 1"); e(f"s_lshl_b32 s{T2}, s{T4}, 19")
    e(f"s_add_u32 s{T1}, s{T1}, s{T2}"); e(f"s_add_u32 s{sCL2}, s{T1}, s{sHALO}")
    e(f"s_lshl_b32 s{T1}, s{SIDX}, 2"); e(f"s_add_u32 s{T1}, s{T1}, {WS_FLAGB}"); e(f"s_cmp_eq_u32 s{SW}, 0"); e(f"s_cselect_b32 s{sFBp}, s{T1}, {OOR}")
    for s_ in range(8):
        e(f"s_add_u32 s{T1}, s{SGRP}, {s_}"); e(f"s_and_b32 s{T1}, s{T1}, 7")
        if o.x_norot and s_ > 0: e(f"s_cmp_eq_u32 s{SGRP}, {s_}"); e(f"s_cselect_b32 s{T1}, 0, {s_}")
        e(f"s_mul_i32 s{ROTW+s_}, s{T1}, {SLOT}"); e(f"s_lshl_b32 s{T1}, s{T1}, 12"); e(f"s_add_u32 s{ROTA+s_}, s{T1}, {WS_X}")
    e(f"s_mul_i32 s{sL14}, s{SW}, 14336"); e(f"s_lshl_b32 s{sW2l}, s{SW}, 13")
    e(f"s_lshl_b32 s{T1}, s{SMEM}, 10"); e(f"s_add_u32 s{sO}, s{T1}, {WS_O}")
    e(f"s_lshl_b32 s{T1}, s{SCB}, 11"); e(f"s_add_u32 s{sXs}, s{T1}, {WS_X}")
    e(f"s_lshl_b32 s{T0}, s{SCB}, 14"); e(f"s_add_u32 s{sSTs}, s{T0}, {WS_ST}")
    e(f"s_mov_b32 s{sW1}, {WS_W1A}"); e(f"s_mov_b32 s{sW2}, {WS_W2A}"); e(f"s_mov_b32 s{sCSL}, 0"); e(f"s_mov_b32 s{sCK}, {CK_A}")
    e(f"s_or_b32 s{T0}, s{SGRP}, s{SW}"); e(f"s_cmp_eq_u32 s{T0}, 0"); e(f"s_cselect_b64 {sm(mFIRST)}, -1, 0")
    for r in range(4): e(f"v_mov_b32 v{ONES+r}, 0x3f803f80")
    e(f"v_add_u32 v{vL64}, 0x10000, v{vL16}"); e(f"v_add_u32 v{vL128}, 0x20000, v{vL16}")
    e(f"v_and_b32 v{vFP}, 31, v254"); e(f"v_lshlrev_b32 v{vFP}, 2, v{vFP}")
    e(f"s_lshl_b32 s{T1}, s{T6}, 17"); e(f"v_add_u32 v{vA}, s{T1}, v{vL16}")
    for i in range(1, 4): e(f"v_add_u32 v{vA+i}, {i*0x8000}, v{vA}")
    e(f"s_lshl_b32 s{T1}, s{T6}, 9"); e("v_lshrrev_b32 v213, 5, v254"); e(f"v_lshl_add_u32 v{vSTl}, v213, 17, s{T1}"); e(f"v_lshl_add_u32 v{vSTl}, v{vFP}, 2, v{vSTl}")
    e(f"s_mul_i32 s{T1}, s{SMEM}, 196608"); e(f"s_add_u32 s{T1}, s{T1}, s{sLW}"); e(f"v_add_u32 v{vW1}, s{T1}, v{vL16}")
    e(f"s_lshl_b32 s{T1}, s{SCB}, 17"); e(f"s_add_u32 s{T1}, s{T1}, s{sLW}"); e(f"v_add_u32 v{vW2}, s{T1}, v{vL16}")
    e("v_lshlrev_b32 v203, 4, v200"); e("v_and_b32 v204, 1, v254"); e("v_lshlrev_b32 v204, 7, v204"); e("v_xor_b32 v203, v203, v204")
    e("v_lshl_add_u32 v208, v201, 8, v203")
    e("v_and_b32 v209, 3, v200"); e(f"v_lshrrev_b32 v203, 1, v{vG16}"); e("v_add_u32 v209, v209, v203")
    e("v_lshlrev_b32 v203, 6, v209"); e("v_lshl_add_u32 v205, v201, 3, v203"); e(f"v_add_u32 v205, {M_PHI}, v205")
    e("v_lshl_add_u32 v206, v201, 4, v203"); e(f"s_add_u32 s{T1}, s{sLW}, {RAW1A}"); e(f"v_add_u32 v206, s{T1}, v206")
    e("v_lshlrev_b32 v203, 7, v209"); e("v_lshl_add_u32 v207, v201, 4, v203"); e(f"s_add_u32 s{T1}, s{sLW}, {RAW2}"); e(f"v_add_u32 v207, s{T1}, v207")
    e(f"s_lshl_b32 s{T2}, s{SW}, 12")
    e(f"v_and_b32 v203, 16, v{vG16}"); e("v_lshlrev_b32 v203, 3, v203"); e(f"v_xor_b32 v203, v203, v{vL16}"); e(f"v_add_u32 v{vXW}, s{T2}, v203")
    e(f"v_add_u32 v{vVo}, s{T2}, v208")
    e(f"s_add_u32 s{T0}, s{T2}, {VB_LDS - 1024}"); e(f"s_cmp_eq_u32 s{SW}, 0"); e(f"s_cselect_b32 s{T0}, {M_HV}, s{T0}"); e(f"v_add_u32 v{vVp}, s{T0}, v208")
    e(f"s_lshl_b32 s{T0}, s{T4}, 14"); e(f"s_lshl_b32 s{T1}, s{T3}, 3"); e(f"s_add_u32 s{T2}, s{T0}, s{T1}"); e(f"v_add_u32 v{vE0}, s{T2}, v208")
    e(f"s_xor_b32 s{T2}, s{T2}, 8"); e(f"v_add_u32 v{vE1}, s{T2}, v208")
    e(f"v_add_u32 v{vGM}, {M}, v{vG16}")
    e(f"s_lshl_b32 s{T0}, s{T4}, 9"); e(f"v_add_u32 v{vRSR}, s{T0}, v{vGM}")
    e(f"s_lshl_b32 s{T0}, s{T4}, 6"); e(f"s_add_u32 s{T0}, s{T0}, s{T1}"); e(f"v_add_u32 v{vZW}, s{T0}, v{vGM}")
    e("v_lshrrev_b32 v203, 2, v0"); e("v_lshlrev_b32 v203, 4, v203"); e("v_lshl_add_u32 v203, v201, 1, v203")
    e(f"s_lshl_b32 s{T0}, s{SW}, 7"); e(f"s_add_u32 s{T0}, s{T0}, {M_RS}"); e(f"v_add_u32 v{vRSW}, s{T0}, v203")
    e(f"s_lshl_b32 s{T0}, s{SW}, 10"); e(f"s_add_u32 s{T0}, s{T0}, {M_KX}"); e(f"v_add_u32 v{vKX}, s{T0}, v{vL16}")
    e(f"s_lshl_b32 s{T0}, s{SW}, 9"); e(f"s_add_u32 s{T0}, s{T0}, {M_ST}")
    e(f"v_lshl_add_u32 v203, v213, 3, s{T0}"); e(f"v_lshl_add_u32 v{vSW}, v{vFP}, 2, v203"); e(f"v_lshl_add_u32 v{vSR}, v0, 3, s{T0}")
    e("v_and_b32 v203, 7, v0"); e(f"v_lshl_add_u32 v{vZL}, v203, 8, v{vG16}")
    e("v_mov_b32 v203, 0xffff"); e("v_mov_b32 v204, 0xffff0000"); e(f"v_cndmask_b32 v203, v203, v204, {sm(mPAR)}")
    e(f"v_cndmask_b32 v{MO0}, 0, v203, {sm(mOWN0)}"); e(f"v_cndmask_b32 v{MO1}, 0, v203, {sm(mOWN1)}")
    e(f"v_xor_b32 v{MP0}, v203, v{MO0}"); e(f"v_xor_b32 v{MP1}, v203, v{MO1}")
    e(f"s_lshl_b32 s{T0}, s{SGRP}, 5"); e(f"v_add_u32 v203, s{T0}, v254")
    e("v_and_b32 v204, 7, v254"); e(f"v_lshl_add_u32 v204, v204, 5, s{SMEM}")
    e(f"v_cmp_gt_u32 {sm(T1)}, 32, v254"); e(f"v_cndmask_b32 v211, v204, v203, {sm(T1)}"); e("v_lshlrev_b32 v211, 7, v211")
    e(f"v_lshl_add_u32 v214, v0, 7, v{vG16}"); e(f"v_add_u32 v214, s{sLW}, v214")
    e(f"v_lshl_add_u32 v215, v0, 6, v{vG16}")
    for blk in range(6):
        e(f"v_cmp_eq_u32 vcc, {blk}, v0")
        e(f"v_cndmask_b32 v{96+4*blk}, 0, v{ONES}, vcc")
        for r in range(1, 4): e(f"v_mov_b32 v{96+4*blk+r}, v{96+4*blk}")
    e(f"v_add_u32 v{vLW}, s{sLW}, v{vL16}")
    if o.bfirst: rawb()
    stamp(28)
    E(vq.wait("x"))
    for i in range(2):
        for kk in range(2): e(f"ds_read_b128 {v(RES+8*i+4*kk,4)}, v214 offset:{i*2048 + kk*64}")
    e("s_waitcnt lgkmcnt(0)")
    stamp(29)
    xtile(RES, 160, True)
    for i in range(6): vq.add("st")
    def w1st(R, blk, sa, sb): return f"buffer_store_dwordx4 {a(R+4*blk,4)}, v{vW1}, {SRD}, s{sa if blk < 4 else sb} offen offset:{(blk%4)*1024} sc1"
    def csst(C, sreg): return [f"s_mov_b32 exec_lo, 0x003f003f", "s_mov_b32 exec_hi, 0x003f003f",
                               f"buffer_store_dwordx4 {v(C,4)}, v{C+4}, {SRD}, s{sreg} offen sc1", "s_mov_b64 exec, -1"]
    def retile1(rawoff, R, C, store):
        for blk in range(6):
            for t in range(2):
                e(f"ds_read_b64_tr_b16 {a(R+4*blk+2*t,2)}, v206 offset:{rawoff + (blk>>1)*2048 + t*256 + (blk&1)*8}")
        e(f"v_mov_b32 v{C+4}, v215")
        for blk in range(6):
            e(f"s_waitcnt lgkmcnt({10-2*blk})")
            if store: e(w1st(R, blk, T2, T4)); vq.add("st")
            e(f"{MF} {v(C,4)}, {a(R+4*blk,4)}, {v(96+4*blk,4)}, {'0' if blk == 0 else v(C,4)}")
    e(f"s_add_u32 s{T2}, s{ROTW}, {WS_W1A}"); e(f"s_add_u32 s{T4}, s{T2}, 4096")
    e(f"s_mul_i32 s{T0}, s{T6}, 12288"); e(f"s_mul_i32 s{T1}, s{SMEM}, 384"); e(f"s_add_u32 s{T0}, s{T0}, s{T1}"); e(f"s_add_u32 s{sCL0}, s{T0}, {WS_CS}")
    E(vq.wait("ra"))
    stamp(13)
    retile1(0, RA, 64, True)
    for blk in range(6): e(f"ds_write_b128 v{vLW}, {a(RA+4*blk,4)} offset:{SLOT + blk*1024}")
    E(csst(64, sCL0)); vq.add("st")
    srt(P_DBG, 256)
    e(f"buffer_load_dword v212, off, {SRT}, 0 sc1"); vq.add("go")
    if not o.bfirst: rawb()
    e(f"v_mov_b32 v{vVal}, s{SXCC}")
    stamp(30)
    E(vq.wait("go"))
    stamp(31)
    e("v_cmp_ne_u32 vcc, 1, v212"); e("s_cbranch_vccnz L_goslow")
    A.label("L_gook")
    def goslow():
        A.label("L_goslow"); srt(P_DBG, 256); e(f"s_mov_b32 s{sTMO}, 0")
        A.label("L_gol")
        e(f"buffer_load_dword v212, off, {SRT}, 0 sc1"); e("s_waitcnt vmcnt(0)")
        e("v_cmp_ne_u32 vcc, 1, v212"); e("s_cbranch_vccz L_gook")
        tmo("L_gol"); e("s_branch L_gook")
    ool.append(goslow)
    e("s_barrier")
    e(f"s_lshl_b32 s{T0}, s{SIDX}, 7"); e(f"s_cmp_eq_u32 s{SW}, 0"); e(f"s_cselect_b32 s{T0}, s{T0}, {OOR}")
    e("s_mov_b64 exec, 1"); e(f"buffer_store_dword v{vVal}, off, {SRD}, s{T0} sc1"); e("s_mov_b64 exec, -1"); vq.add("fa")
    stamp(14)
    for fb in range(2):
        for t in range(2):
            e(f"ds_read_b64_tr_b16 {v(PHI+4*fb+2*t,2)}, v205 offset:{fb*32 + t*256}")
    E(vq.wait("rb"))
    stamp(44)
    for blk in range(4):
        for t in range(2):
            e(f"ds_read_b64_tr_b16 {v(224+4*blk+2*t,2)}, v207 offset:{t*512 + (blk>>1)*64 + (blk&1)*8}")
    e("s_waitcnt lgkmcnt(0)")
    retile1(SLOT, RB, 240, False)
    stamp(45)
    e(f"s_cmp_lg_u32 s{SW}, 0"); e("s_cbranch_scc1 L_faok")
    e(f"s_mov_b32 s{sTMO}, 0")
    A.label("L_fal")
    e(f"buffer_load_dword v212, v211, {SRD}, 0 offen sc1"); e("s_waitcnt vmcnt(0)")
    e("v_cmp_eq_u32 vcc, 0, v212"); e("s_cbranch_vccz L_fad")
    tmo("L_fal")
    A.label("L_fad")
    e(f"v_cmp_ne_u32 {sm(T1)}, s{SXCC}, v212"); e(f"v_mov_b32 v212, s{T1}")
    e(f"ds_write_b32 v{vGM}, v212"); e("s_waitcnt lgkmcnt(0)")
    A.label("L_faok")
    e("s_barrier")
    stamp(15)
    e(f"ds_read_b32 v212, v{vGM}")
    for i in range(6): E(w1_piece(1, i))
    e("s_waitcnt lgkmcnt(0)")
    e(f"v_readfirstlane_b32 s{SMODE}, v212")
    e("s_branch L_g1rd")

    A.label("L_g1pre")
    e("s_waitcnt lgkmcnt(0)"); e("s_barrier")
    A.label("L_g1rd")
    lq = Q("lgkmcnt", 15)
    def wdst(step, c):
        if c < 2 and step >= 32 - ND: return a(WQ + 8*(step - (32-ND)) + 4*c, 4)
        return v(WFV + 4*c, 4)
    def w1rd(step, c):
        lq.add(("W", step, c))
        return ldsrd(wdst(step, c), ((step//4 + 1) % 6)*SLOT + (step % 4)*6144 + c*1024)
    for c in range(6): e(w1rd(0, c))
    e(f"s_cmp_eq_u32 s{SLAY}, 0"); e("s_cbranch_scc1 L_g1")
    poll_ge(vFP, sFXc, SLAY, FBV)
    A.label("L_g1")
    stamp(0)
    vq.clear()
    for i in range(6): vq.add(("W", 1))
    def aload(step, i):
        d = RING + 16*(step % AD) + 4*i
        vq.add(("A", step))
        return [f"buffer_load_dwordx4 {a(d,4)}, v{vA+i}, {SRD}, s{ROTA + step//4} offen offset:{(step%4)*1024} sc1"]
    anext = [(st, i) for st in range(32) for i in range(4)]
    for j in range(4*o.APRE): E(aload(*anext.pop(0)))
    pend = [("W", st, i) for st in range(2, 8) for i in range(6)] + [("W2", p, i) for p in range(3) for i in range(6)]
    def allowed(p, step):
        if p[0] == "W": return p[1] < 6 or step >= 4*(p[1]-5) + 3
        return step >= max(4*(p[1]+3) + 3, o.w2start)
    misc = []
    for j in range(8):
        misc.append((2*j, ("S", j), [f"s_mov_b32 s{T0}, {WS_ST + j*16384}"], f"buffer_load_dwordx4 {v(160+4*j,4)}, v{vSTl}, {SRD}, s{T0} offen sc1"))
    sh = []
    def S(step, *ins): sh.append((step, lambda ins=ins: list(ins)))
    oq = []
    def once(step, name, body, nl=1):
        def f():
            ins = body()
            def blk():
                A.label(f"L_{name}"); e("s_nop 1"); E(ins); e(f"s_branch L_{name}_r")
            ool.append(blk)
            return [f"s_cmp_lt_u32 s{SLAY}, {nl}", f"s_cbranch_scc1 L_{name}", f"L_{name}_r:"]
        oq.append((step, f))
    def G(tag, ins):
        def f(): vq.add(tag, ghost=True); return ins
        return f
    w2s = [f"buffer_store_dwordx4 {v(224+4*blk,4)}, v{vL16}, {SRD}, s{T1} offen offset:{blk*1024} sc1" for blk in range(4)]
    once(0, "d0", G("C", [f"s_lshl_b32 s{T1}, s{SRB}, 1", f"s_and_b32 s{T2}, s{SW}, 1", f"s_add_u32 s{T1}, s{T1}, s{T2}", f"s_lshl_b32 s{T1}, s{T1}, 12",
                          f"s_lshl_b32 s{T2}, s{SCB}, 17", f"s_add_u32 s{T1}, s{T1}, s{T2}", f"s_cmp_lt_u32 s{SW}, 2", f"s_cselect_b32 s{T2}, 0, {WS_W2B - WS_W2A}",
                          f"s_add_u32 s{T1}, s{T1}, s{T2}", f"s_add_u32 s{T1}, s{T1}, {WS_W2A}"] + w2s[:3]))
    once(1, "d1", G("C", w2s[3:] + [f"s_add_u32 s{T1}, s{sCL0}, {CS_SZ}"] + csst(240, T1) +
                         [f"s_add_u32 s{T2}, s{ROTW}, {WS_W1B}", f"s_add_u32 s{T4}, s{T2}, 4096", w1st(RB, 0, T2, T4)]))
    once(2, "d2", G("C", [w1st(RB, b_, T2, T4) for b_ in (1, 2, 3)]))
    once(3, "d3", G("C", [w1st(RB, b_, T2, T4) for b_ in (4, 5)] + [f"v_mov_b32 v{FBV+r}, -1" for r in range(4)] +
                         [f"buffer_store_dwordx4 {v(FBV,4)}, v{vL16}, {SRD}, s{sCL2} offen sc1"]))
    once(4, "d4", G("C", [f"s_add_u32 s{T1}, s{sKV}, s{ROTA}", f"s_add_u32 s{T2}, s{T1}, 0x100000",
                          f"buffer_store_dwordx4 {v(FBV,4)}, v{vL16}, {SRD}, s{T1} offen sc1", f"buffer_store_dwordx4 {v(FBV,4)}, v{vL16}, {SRD}, s{T2} offen sc1"]))
    once(5, "d5", G("C", [f"s_add_u32 s{T1}, s{sCL1}, 0x10000", f"v_mov_b32 v{vVal}, 0", f"s_mov_b64 exec, {sm(mM0)}",
                          f"buffer_store_dwordx4 {v(FBV,4)}, v{vG16}, {SRD}, s{sCL1} offen sc1", f"buffer_store_dwordx4 {v(FBV,4)}, v{vG16}, {SRD}, s{T1} offen sc1",
                          "s_mov_b64 exec, 1", f"buffer_store_dword v{vVal}, off, {SRD}, s{sFOp} sc1", f"buffer_store_dword v{vVal}, off, {SRD}, s{sFXp} sc1", "s_mov_b64 exec, -1"]))
    once(6, "csl", G("CS", cs_load(224)), nl=2)
    def b_csp():
        lq.add("csw", ghost=True)
        return vq.wait("CS", keep=True) + cs_proc(224)
    once(10, "csp", b_csp, nl=2)
    def b_set():
        assert cdone[0]
        return [f"v_mov_b32 v{vVal}, 1", "s_mov_b64 exec, 1", f"buffer_store_dword v{vVal}, off, {SRD}, s{sFBp} sc1", "s_mov_b64 exec, -1"]
    cdone = [False]
    def b_chk():
        return vq.wait("F", keep=True) + [f"s_mov_b32 s{sTMO}, 0", "L_fbl:",
            f"v_and_b32 v{FBV}, v{FBV}, v{FBV+1}", f"v_and_b32 v{FBV+2}, v{FBV+2}, v{FBV+3}", f"v_and_b32 v{FBV}, v{FBV}, v{FBV+2}",
            f"v_cmp_ne_u32 vcc, 1, v{FBV}", "s_cbranch_vccz L_fbchk_r",
            f"buffer_load_dwordx4 {v(FBV,4)}, v{vL16}, {SRD}, s{T1} offen sc1", "s_waitcnt vmcnt(0)",
            f"s_add_u32 s{sTMO}, s{sTMO}, 1", f"s_cmp_lt_u32 s{sTMO}, 0x100000", "s_cbranch_scc1 L_fbl"]
    once(12, "fbset", b_set)
    once(20, "fbld", G("F", [f"s_mov_b32 s{T1}, {WS_FLAGB}", f"buffer_load_dwordx4 {v(FBV,4)}, v{vL16}, {SRD}, s{T1} offen sc1"]))
    once(24, "fbchk", b_chk)
    first = True
    for st in (16, 8, 4):
        for r in range(0, st, 2):
            ins = [f"v_add_f32 v{160+r}, v{160+r}, v{160+r+st}", f"v_add_f32 v{161+r}, v{161+r}, v{161+r+st}"]
            if first: sh.append((17, lambda ins=ins: vq.wait(("S", 7)) + ins)); first = False
            else: S(17, *ins)
    S(17, "s_nop 0"); S(17, "v_permlane32_swap_b32 v160, v162"); S(17, "v_permlane32_swap_b32 v161, v163")
    S(17, "v_add_f32 v160, v160, v162", "v_add_f32 v161, v161, v163")
    S(17, f"v_mul_f32 v163, {f32hex(-1.0/1024)}, v160", f"v_mul_f32 v161, {f32hex(1.0/1024)}, v161")
    S(17, "v_fma_f32 v161, -v163, v163, v161", "v_max_f32 v161, 0, v161")
    S(17, f"v_add_f32 v161, {f32hex(1e-5)}, v161", f"v_add_u32 v{CI}, s{sCSL}, v{vGM}")
    S(17, "v_rsq_f32 v162, v161")
    def L(tag, ins):
        def f(): lq.add(tag); return [ins]
        sh.append((17, f))
    L("sw", f"ds_write_b64 v{vSW}, v[162:163]")
    for i in range(4): L("st", f"ds_read_b64 {v(STP+2*i,2)}, v{vSR} offset:{i*128}")
    for c in range(6): L("cs", f"ds_read_b128 {v(CSR+4*c,4)}, v{CI} offset:{M_CS-M+c*64}")
    fix = None
    credit = 0.0
    for step in range(32):
        stage = step // 4
        deferred = step >= 32 - ND
        cs_ = range(2, 6) if deferred else range(6)
        ng = len(cs_)
        assert not anext or anext[0][0] > step
        E(vq.wait(("A", step)))
        if step % 4 == 3 and stage < 7:
            assert not any(p[0] == "W" and p[1] <= stage+1 for p in pend)
            E(vq.wait(("W", stage+1))); e("s_barrier")
            if step > 6 and "C" not in vq.q: cdone[0] = True
            if step == 15: assert "csw" in lq.seen and "csw" not in lq.q
        plan = []
        na = 0
        while len(plan) < ng and na < len(anext) and anext[na][0] <= step + o.LA and na < (4 if anext[na][0] >= step + o.APRE else 6):
            plan.append("A"); na += 1
        credit = min(credit + (o.wrate if (pend and pend[0][0] == "W") else o.w2rate) / 100.0, 3.0)
        nw = 0
        while len(plan) < ng and nw < len(pend) and allowed(pend[nw], step) and credit >= 1:
            plan.append("W"); nw += 1; credit -= 1
        nm = 0
        while len(plan) < ng and nm < len(misc) and misc[nm][0] <= step:
            plan.append("M"); nm += 1
        while len(plan) < ng and na < len(anext) and anext[na][0] <= step + o.LA:
            plan.append("A"); na += 1
        oth = [p for p in plan if p != "A"]; aa = [p for p in plan if p == "A"]; plan = []
        while oth or aa:
            if aa: plan.append(aa.pop())
            if aa and len(aa) >= 2*len(oth): plan.append(aa.pop())
            if oth: plan.append(oth.pop(0))
        a0 = RING + 16*(step % AD)
        for gi, c in enumerate(cs_):
            vm = None
            order = range(4) if c % 2 == 0 else reversed(range(4))
            for p, i in enumerate(order):
                if p == 0: E(lq.wait(("W", step, c)))
                e(f"{MF} {v(acc(c,i),4)}, {wdst(step,c)}, {a(a0+4*i,4)}, {'0' if step == 0 else v(acc(c,i),4)}")
                busy = False
                if p == 0 and gi < len(plan):
                    k = plan[gi]
                    if k == "A": vm = lambda: aload(*anext.pop(0))
                    elif k == "W":
                        pc = pend.pop(0); ins = w1_piece(pc[1], pc[2]) if pc[0] == "W" else w2_piece(pc[1], pc[2])
                        E(ins[:-1]); busy = len(ins) > 1
                        vm = lambda pc=pc, ins=ins: (vq.add((pc[0], pc[1]), ghost=ins[-1].startswith("s_nop")), ins[-1:])[1]
                    else:
                        mi = misc.pop(0); E(mi[2]); busy = len(mi[2]) > 0
                        vm = lambda mi=mi: (vq.add(mi[1], ghost=o.x_nost), ["s_nop 0" if o.x_nost else mi[3]])[1]
                if p == 1 and vm: E(vm()); busy = True
                if p == 3:
                    busy = True
                    if step < 31: e(w1rd(step+1, c))
                if p == 2 and step < 31 and step + 1 >= 32 - ND and deferred and gi < 2:
                    e(w1rd(step+1, gi)); busy = True
                if not busy and p == 2 and oq and oq[0][0] <= step:
                    E(oq.pop(0)[1]()); busy = True
                if not busy:
                    if sh and sh[0][0] <= step: E(sh.pop(0)[1]())
                    elif not sh:
                        if fix is None:
                            E(lq.wait("cs"))
                            fix = {cc: [f"v_fmac_f32 v{acc(cc,ii)+j}, v{CSR+4*cc+j}, v{STP+2*ii+1}" for ii in range(4) for j in range(4)] for cc in range(6)}
                            fix["ci"] = [f"v_mul_f32 v{CI+ii}, s{sCK}, v{STP+2*ii}" for ii in range(4)]
                        lst = list(cs_)
                        cand = [lst[(gi + ng//2) % ng]] + ([0, 1] if deferred and step > 32 - ND else []) + ["ci"]
                        for cc in cand:
                            if fix[cc]:
                                E(fix[cc][:2]); fix[cc] = fix[cc][2:]; break
    assert not anext and not misc and not sh and not oq and all(p[0] == "W2" for p in pend), (pend, anext, misc, len(sh))
    left = [w2_piece(p[1], p[2]) for p in pend]
    assert all(not x for x in fix.values()), {k: len(x) for k, x in fix.items()}
    e("s_waitcnt lgkmcnt(0)"); e("s_barrier")
    stamp(1)
    e(f"s_bitcmp1_b32 s{SLAY}, 0"); e("s_cbranch_scc1 L_epiB")
    qm = [f"{MF} {v(acc(c,i),4)}, {wdst(step,c)}, {a(RING+16*(step%AD)+4*i,4)}, {v(acc(c,i),4)}"
          for step in range(32-ND, 32) for c in range(2) for i in (range(4) if c == 0 else reversed(range(4)))]

    def features(c0, F, tmp, hooks):
        hk = iter(hooks)
        def H():
            f = next(hk, None)
            if f: f()
        for i in range(4): cvt4(F+4*i, acc(c0,i), acc(c0+1,i))
        for i in range(4):
            for fb in range(2): e(f"{MF} {v(acc(c0+fb,i),4)}, {v(PHI+4*fb,4)}, {v(F+4*i,4)}, 0")
        H()
        MX, MN = tmp, tmp+4
        for i in range(4):
            p0, p1 = acc(c0,i), acc(c0+1,i)
            for op, op2, d in (("v_max3_f32", "v_max_f32", MX+i), ("v_min3_f32", "v_min_f32", MN+i)):
                e(f"{op} v{d}, v{p0}, v{p0+1}, v{p0+2}"); e(f"{op} v{d}, v{d}, v{p0+3}, v{p1}")
                e(f"{op} v{d}, v{d}, v{p1+1}, v{p1+2}"); e(f"{op2} v{d}, v{d}, v{p1+3}")
        H()
        xreduce([("v_max_f32", [MX, MX+1, MX+2, MX+3]), ("v_min_f32", [MN, MN+1, MN+2, MN+3])])
        for i in range(4):
            e(f"v_mul_f32 v{MX+i}, -v{MX+i}, v{CI+i}"); e(f"v_mul_f32 v{MN+i}, v{MN+i}, v{CI+i}")
        H()
        for i in range(4):
            for fb in range(2):
                for h in range(2):
                    pk_fma(224+8*i+4*fb+2*h, acc(c0+fb,i)+2*h, CI+i, ('b', MX+i))
                    pk_fma(acc(c0+fb,i)+2*h, acc(c0+fb,i)+2*h, CI+i, ('b', MN+i), negx=True)
        for i in range(4):
            H()
            for r in range(8): e(f"v_exp_f32 v{224+8*i+r}, v{224+8*i+r}")
            for fb in range(2):
                for r in range(4): e(f"v_exp_f32 v{acc(c0+fb,i)+r}, v{acc(c0+fb,i)+r}")
            cvt4(F+4*i, 224+8*i, 224+8*i+4)
            cvt4(224+8*i, acc(c0,i), acc(c0+1,i))
            if c0 == 2:
                e(f"{MF} {v(acc(2,i),4)}, {v(ONES,4)}, {v(192+4*i,4)}, 0")
                e(f"ds_write_b128 v{vXW}, {v(192+4*i,4)} offset:{i*1024}")
                e(f"{MF} {v(acc(3,i),4)}, {v(ONES,4)}, {v(224+8*i,4)}, 0")
                e(f"ds_write_b128 v{vXW}, {v(224+8*i,4)} offset:{16384 + i*1024}")
    la_ = list(left)
    def hk_left(n):
        def f():
            for j in range(n):
                if la_: E(la_.pop(0))
        return f
    features(2, 192, 208, [hk_left(2)]*6 + [hk_left(99)])
    for i in range(4):
        e(f"v_rcp_f32 v{208+2*i}, v{acc(2,i)}"); e(f"v_rcp_f32 v{209+2*i}, v{acc(3,i)}")
    for i in range(4):
        e(f"v_cvt_pk_bf16_f32 v{216+i}, v{208+2*i}, v{209+2*i}")
        pk_mul(208+2*i, 208+2*i, STP+2*i)
    for i in range(4):
        off = (i >> 1)*64 + (i & 1)*8
        for b in range(2):
            for h in range(2): pk_mul(acc(2+b,i)+2*h, acc(4+b,i)+2*h, 208+2*i)
        e(f"ds_write_b16 v{vRSW}, v{216+i} offset:{off}")
        cvt4(228+8*i, acc(2,i), acc(3,i))
        e(f"ds_write_b128 v{vXW}, {v(228+8*i,4)} offset:{32768 + i*1024}")
        for b in range(2):
            for h in range(2): pk_mul(acc(4+b,i)+2*h, acc(4+b,i)+2*h, 209+2*i)
        e(f"ds_write_b16_d16_hi v{vRSW}, v{216+i} offset:{off+512}")
        cvt4(192+4*i, acc(4,i), acc(5,i))
        e(f"ds_write_b128 v{vXW}, {v(192+4*i,4)} offset:{49152 + i*1024}")
    e(f"s_add_u32 s{T2}, s{sKV}, s{ROTA}")
    e(f"s_lshl_b32 s{T4}, s{SGRP}, 8"); e(f"s_add_u32 s{T4}, s{T4}, s{sZP}")
    e("s_waitcnt lgkmcnt(0)"); e("s_barrier")
    stamp(2)
    def kvreads(p):
        b = 96 + 16*(p % 4)
        for t in range(2):
            e(f"ds_read_b64_tr_b16 {v(b+2*t,2)}, v{vE0} offset:{(2*p+t)*1024}")
            e(f"ds_read_b64_tr_b16 {v(b+4+2*t,2)}, v{vE1} offset:{(2*p+t)*1024}")
            e(f"ds_read_b64_tr_b16 {v(b+8+2*t,2)}, v{vE0} offset:{32768 + (2*p+t)*1024}")
        e(f"ds_read_b128 {v(b+12,4)}, v{vRSR} offset:{M_RS-M + p*64}")
    kvreads(0); kvreads(1)
    for p in range(8):
        e(f"s_waitcnt lgkmcnt({7 if p < 7 else 0})")
        b = 96 + 16*(p % 4)
        e(f"{MF} v[168:171], {v(b,4)}, {v(b+8,4)}, {'0' if p == 0 else 'v[168:171]'}")
        e(f"{MF} v[172:175], {v(b+4,4)}, {v(b+8,4)}, {'0' if p == 0 else 'v[172:175]'}")
        e(f"{MF} v[200:203], {v(b,4)}, {v(b+12,4)}, {'0' if p == 0 else 'v[200:203]'}")
        if p + 2 < 8: kvreads(p+2)
    e("s_barrier")
    qa = list(qm)
    for j in range(3): e(qa.pop(0))
    cv = cvt4l(192, 168, 172)
    E(cv[:2]); e(qa.pop(0)); E(cv[2:]); e(qa.pop(0))
    e(f"buffer_store_dwordx4 v[192:195], v{vL16}, {SRD}, s{T2} offen sc1"); e(qa.pop(0))
    e(f"s_mov_b64 exec, {sm(mM0)}")
    e(f"buffer_store_dwordx4 v[200:203], v{vG16}, {SRD}, s{T4} offen sc1")
    e("s_mov_b64 exec, -1")
    stamp(3)
    late = list(range(14))
    n = 0
    while qa:
        e(qa.pop(0)); n += 1
        if n % 6 == 1 and late:
            ins = w2_late(late[0]); E(ins[:-1])
        if n % 6 == 2 and late:
            E(w2_late(late.pop(0))[-1:])
    def hk_late():
        for j in range(2):
            if late: E(w2_late(late.pop(0)))
    def g1(p): return [f"s_add_u32 s{T0}, s{sKV}, s{ROTA+1+p}", f"buffer_load_dwordx4 {v(96+4*p,4)}, v{vL16}, {SRD}, s{T0} offen sc1"]
    gz = f"buffer_load_dwordx4 v[192:195], v{vZL}, {SRD}, s{sZP} offen sc1"
    def gather():
        for p in range(7): E(g1(p))
        e(gz)
        e(f"s_andn2_b64 {sm(T1)}, {sm(mDIAG)}, {sm(mB1)}"); e(f"s_and_b64 {sm(T3)}, {sm(mDIAG)}, {sm(mB1)}")
        e(f"v_or_b32 v128, v{MO0}, v{MP0}"); e(f"v_and_b32 v128, v128, v{ONES}")
        e(f"v_cndmask_b32 v130, 0, v128, {sm(T1)}"); e(f"v_cndmask_b32 v131, 0, v128, {sm(T3)}")
        for r in (128, 129, 132, 133): e(f"v_mov_b32 v{r}, 0")
    def hk_rest():
        while late: E(w2_late(late.pop(0)))
    features(0, 204, 196, [hk_late]*(o.gpos-1) + [hk_rest, gather])
    stamp(4)
    e(f"s_mov_b32 s{sTMO}, 0")
    for p in range(8):
        r0 = 96+4*p if p < 7 else 192
        e(f"s_waitcnt vmcnt({7-p})")
        A.label(f"L_kvc{p}")
        e(f"v_cmp_eq_u32 vcc, -1, v{r0}"); e(f"s_cbranch_vccnz L_kvs{p}")
        A.label(f"L_kvo{p}")
        if p < 7:
            e(f"{MF} v[168:171], v[130:133], {v(r0,4)}, v[168:171]"); e(f"{MF} v[172:175], v[128:131], {v(r0,4)}, v[172:175]")
        def kvslow(p=p):
            A.label(f"L_kvs{p}")
            e(f"s_add_u32 s{sTMO}, s{sTMO}, 1"); e(f"s_cmp_ge_u32 s{sTMO}, 0x100000"); e(f"s_cbranch_scc1 L_kvo{p}")
            e("s_waitcnt vmcnt(0)")
            for p2 in range(p, 7):
                if p2 > p:
                    e(f"v_cmp_eq_u32 vcc, -1, v{96+4*p2}"); e(f"s_cbranch_vccz L_kvn{p}_{p2}")
                E(g1(p2))
                if p2 > p: A.label(f"L_kvn{p}_{p2}")
            e(gz); e("s_waitcnt vmcnt(0)"); e(f"s_branch L_kvc{p}")
        ool.append(kvslow)
    for sh_ in (4, 2, 1):
        for r in range(4): e(f"v_add_f32_dpp v{192+r}, v{192+r}, v{192+r} row_ror:{sh_} row_mask:0xf bank_mask:0xf")
    e("v_cvt_pk_bf16_f32 v192, v192, v193"); e("v_cvt_pk_bf16_f32 v193, v194, v195")
    e(f"v_and_b32 v200, 8, v{vZW}"); e(f"v_add_u32 v200, v200, v{vKX}"); e("v_xor_b32 v201, 8, v200")
    cvt4(196, 168, 172)
    e("ds_write_b64 v200, v[196:197]"); e("ds_write_b64 v201, v[198:199]")
    e(f"s_mov_b64 exec, {sm(mM0)}")
    e(f"ds_write_b64 v{vZW}, v[192:193] offset:{M_ZF-M}")
    e("s_mov_b64 exec, -1")
    e("s_waitcnt lgkmcnt(0)"); e("s_barrier")
    stamp(5)
    for t in range(2): e(f"ds_read_b128 {v(184+4*t,4)}, v{vGM} offset:{M_ZF-M + t*64}")
    for j in range(4): e(ldsrd(v(168+4*j,4), M_KX + j*1024))
    e(f"s_add_u32 s{sKV}, s{sKV}, 0x100000"); e(f"s_add_u32 s{sZP}, s{sZP}, 0x10000")
    e("s_waitcnt lgkmcnt(4)")
    for r in range(8): e(f"v_cndmask_b32 v{184+r}, v{184+r}, v{ONES}, {sm(mM1)}")
    for i in range(4):
        b = 64+24*i
        e(f"{MF} {v(b,4)}, v[184:187], {v(204+4*i,4)}, 0"); e(f"{MF} {v(b+4,4)}, v[188:191], {v(224+8*i,4)}, 0")
    e("s_waitcnt lgkmcnt(0)")
    sc = []
    for i in range(4):
        b = 64+24*i
        sc += [[f"v_rcp_f32 v{b+2}, v{b+1}"], [f"v_rcp_f32 v{b+3}, v{b+5}"]]
    for i in range(4):
        b = 64+24*i
        sc += [[f"v_mul_f32 v{b}, v{b}, v{b+2}", f"v_fmac_f32 v{b}, v{b+4}, v{b+3}"], [f"v_add_f32 v{b}, {f32hex(1e-6)}, v{b}", f"v_rcp_f32 v{b}, v{b}"]]
    for i in range(4):
        b = 64+24*i; ep, en = v(204+4*i,4), v(224+8*i,4)
        for t in (f"{MF} {v(b+8,4)}, v[168:171], {ep}, 0", f"{MF} {v(b+12,4)}, v[172:175], {ep}, 0",
                  f"{MF} {v(b+16,4)}, v[176:179], {en}, 0", f"{MF} {v(b+20,4)}, v[180:183], {en}, 0"):
            e(t); E(sc.pop(0))
    for i in range(4): pk_mul(64+24*i+2, 64+24*i+2, 64+24*i)
    for i in range(4):
        b = 64+24*i
        for r in range(0, 8, 2): pk_mul(b+8+r, b+8+r, b+2)
        for r in range(0, 8, 2): pk_fma(b+8+r, b+16+r, b+3, ('p', b+8+r))
        cvt4(208+4*i, b+8, b+12)
    e("s_branch L_g2")

    A.label("L_epiB")
    fl = []
    for i in (3, 2, 1, 0):
        for c0, F in ((2, 192), (4, 224)):
            ms = [f"v_mul_f32 v{acc(c,i)+j}, v{acc(c,i)+j}, v{STP+2*i}" for c in (c0, c0+1) for j in range(4)]
            ms += cvt4l(F+4*i, acc(c0,i), acc(c0+1,i))
            fl += [ms[j:j+2] for j in range(0, 12, 2)]
        if i == 3:
            fl.append([f"buffer_store_dwordx4 v[204:207], v{vL16}, {SRD}, s{T0} offen sc1"])
            fl.append([f"ds_write_b128 v{vKX}, v[204:207] offset:1024"])
            fl.append([f"buffer_store_dwordx4 v[236:239], v{vL16}, {SRD}, s{T0} offen offset:1024 sc1"])
        fl.append([f"ds_write_b128 v{vXW}, {v(224+4*i,4)} offset:{VB_LDS + i*1024}"])
    fl.append([f"buffer_load_dwordx4 v[168:171], v{vL16}, {SRD}, s{T1} offen sc1"])
    fl.append([f"buffer_load_dwordx4 v[172:175], v{vL16}, {SRD}, s{T1} offen offset:1024 sc1"])
    e(f"s_cmp_eq_u32 s{SW}, 3"); e(f"s_cselect_b32 s{T0}, s{sHALO}, {OOR}")
    e(f"s_sub_u32 s{T1}, s{sHALO}, 0x10000"); e(f"s_cmp_eq_u32 s{SW}, 0"); e(f"s_cselect_b32 s{T1}, s{T1}, {OOR}")
    e(f"s_cmp_eq_u32 s{SGRP}, 0"); e(f"s_cselect_b32 s{T1}, {OOR}, s{T1}")
    e(f"s_add_u32 s{sHALO}, s{sHALO}, 0x80000")
    qb = list(qm); late = list(left) + [w2_late(i) for i in range(14)]
    for j in range(2): e(qb.pop(0))
    n = 0
    while qb or fl:
        if qb: e(qb.pop(0))
        n += 1
        if n % o.brate == 0 and late and len(fl) > 4: E(late.pop(0))
        elif fl: E(fl.pop(0))
    for i in range(4): cvt4(240+4*i, acc(0,i), acc(1,i))
    e("s_waitcnt lgkmcnt(0)"); e("s_barrier")
    stamp(2)
    e(f"ds_read_b128 v[208:211], v{vKX}")
    for db in range(2):
        e(f"ds_read_b64_tr_b16 {v(96+10*db,2)}, v{vVp} offset:{db*8}")
        for i in range(4): e(f"ds_read_b64_tr_b16 {v(98+10*db+2*i,2)}, v{vVo} offset:{VB_LDS + i*1024 + db*8}")
    nlate0 = len(late)
    def LT():
        if late: E(late.pop(0))
    for i in (3, 2, 1, 0):
        e(f"{MF} {v(128+8*i,4)}, {v(192+4*i,4)}, {v(240+4*i,4)}, 0")
        if i: e(f"{MF} {v(132+8*i,4)}, {v(192+4*(i-1),4)}, {v(240+4*i,4)}, 0")
        if i % 2: LT()
    e(f"v_mov_b32 v217, {f32hex(-3.0e38)}")
    for i in (3, 2, 1, 0):
        b = 128+8*i
        if i == 0:
            e("s_waitcnt lgkmcnt(0)")
            e(f"s_cmp_eq_u32 s{SW}, 0"); e("s_cbranch_scc1 L_halo")
            A.label("L_halod")
            def halo(n=nlate0-len(late)):
                A.label("L_halo")
                e(f"s_mov_b32 s{sTMO}, 0"); e(f"v_add_u32 v216, {M_HV}, v{vXW}"); e(f"s_waitcnt vmcnt({n})")
                A.label("L_halop")
                e("v_max_u32 v218, v168, v172"); e("v_cmp_eq_u32 vcc, -1, v218"); e("s_cbranch_vccz L_halow")
                e(f"buffer_load_dwordx4 v[168:171], v{vL16}, {SRD}, s{T1} offen sc1")
                e(f"buffer_load_dwordx4 v[172:175], v{vL16}, {SRD}, s{T1} offen offset:1024 sc1")
                e("s_waitcnt vmcnt(0)")
                tmo("L_halop")
                A.label("L_halow")
                e("ds_write_b128 v216, v[172:175]")
                for db in range(2): e(f"ds_read_b64_tr_b16 {v(96+10*db,2)}, v{vVp} offset:{db*8}")
                for r in range(4): e(f"v_mov_b32 v{208+r}, v{168+r}")
                e("s_nop 1"); e("s_branch L_halod")
            ool.append(halo)
            e(f"{MF} v[132:135], v[208:211], v[240:243], 0")
        for r in range(0, 8, 2): e(f"v_cndmask_b32 v{b+r}, v{b+r}, v{b+r+1}, {sm(mPAR)}")
        if i == 0:
            e(f"v_cndmask_b32 v{b+4}, v{b+4}, v217, {sm(mFIRST)}"); e(f"v_cndmask_b32 v{b+6}, v{b+6}, v217, {sm(mFIRST)}")
        e(f"v_cndmask_b32 v{116+2*i}, v{b+4}, v{b}, {sm(mOWN0)}")
        e(f"v_cndmask_b32 v{117+2*i}, v{b+6}, v{b+2}, {sm(mOWN1)}")
        e(f"v_max_f32 v{124+i}, v{116+2*i}, v{117+2*i}")
        LT()
    xreduce([("v_max_f32", [124, 125, 126, 127])])
    LT()
    for i in range(4):
        e(f"v_sub_f32 v{116+2*i}, v{116+2*i}, v{124+i}"); e(f"v_sub_f32 v{117+2*i}, v{117+2*i}, v{124+i}")
    for i in range(4): pk_mul(116+2*i, 116+2*i, CI+i)
    LT()
    for r in range(8): e(f"v_exp_f32 v{116+r}, v{116+r}")
    while late: LT()
    for r in range(8): e(f"v_cvt_pk_bf16_f32 v{116+r}, v{116+r}, v{116+r}")
    e("s_waitcnt lgkmcnt(0)")
    for i in range(4):
        e(f"v_and_b32 v{192+4*i}, v{116+2*i}, v{MP0}"); e(f"v_and_b32 v{193+4*i}, v{117+2*i}, v{MP1}")
        e(f"v_and_b32 v{194+4*i}, v{116+2*i}, v{MO0}"); e(f"v_and_b32 v{195+4*i}, v{117+2*i}, v{MO1}")
    for i in range(4): e(f"{MF} {v(128+4*i,4)}, {v(ONES,4)}, {v(192+4*i,4)}, 0")
    for i in range(4):
        for db in range(2): e(f"{MF} {v(64+8*i+4*db,4)}, {v(96+10*db+2*i,4)}, {v(192+4*i,4)}, 0")
    for i in range(4): e(f"v_rcp_f32 v{128+4*i}, v{128+4*i}")
    for i in range(4):
        for r in range(0, 8, 2): pk_mul(64+8*i+r, 64+8*i+r, 128+4*i)
        cvt4(208+4*i, 64+8*i, 68+8*i)

    A.label("L_g2")
    e(f"s_cmp_eq_u32 s{SLAY}, 0"); e(f"s_cselect_b32 s{T0}, 1, s{SMODE}")
    if o.o4sc: e(f"s_cmp_eq_u32 s{SLAY}, 3"); e(f"s_cselect_b32 s{T0}, 1, s{T0}")
    st_mode([f"buffer_store_dwordx4 {v(208+4*i,4)}, v{vA+i}, {SRD}, s{sO} offen" for i in range(4)], T0)
    stamp(6)
    for i in range(2):
        for kk in range(2):
            for r in range(4):
                d = acc2(2*kk + (r >> 1), i) + 2*(r & 1); x = RES+8*i+4*kk+r
                e(f"v_lshlrev_b32 v{d}, 16, v{x}"); e(f"v_and_b32 v{d+1}, 0xffff0000, v{x}")
    e(f"s_add_u32 s{T6}, s{SLAY}, 1"); e(f"v_mov_b32 v{vVal}, s{T6}")
    e(f"s_xor_b32 s{sW1}, s{sW1}, {WS_W1A ^ WS_W1B}"); e(f"s_xor_b32 s{sW2}, s{sW2}, {WS_W2A ^ WS_W2B}")
    e(f"s_xor_b32 s{sCSL}, s{sCSL}, 384"); e(f"s_xor_b32 s{sCK}, s{sCK}, {int(CK_A,16) ^ int(CK_B,16)}")
    e(f"s_cmp_eq_u32 s{SLAY}, {o.last}"); e(f"s_cselect_b32 s{sW1}, {OOR}, s{sW1}")
    e("s_waitcnt vmcnt(0)")
    e("s_mov_b64 exec, 1")
    st_mode([f"buffer_store_dword v{vVal}, off, {SRD}, s{sFOp}"])
    e("s_mov_b64 exec, -1")
    e("s_barrier")
    stamp(7)
    lq.clear(); vq.clear()
    W2F = RING; AF2 = RING + 32; GD = o.g2depth
    def w2rd(step, b):
        lq.add(("W", step, b))
        ad = (step*4096 if step < 14 else 3*SLOT + (step-14)*4096) + b*1024
        return ldsrd(a(W2F + 16*(step % 2) + 4*b, 4), ad)
    for st in range(2):
        for b in range(4): e(w2rd(st, b))
    poll_ge(vFP, sFOc, T6, FBV)
    stamp(8)
    def bload(step, i):
        d = AF2 + 8*(step % GD) + 4*i; r = []
        if i == 0 and step % 4 == 0: r.append(f"s_mov_b32 s{sAo}, {WS_O + step*1024}")
        vq.add(("A", step))
        return r + [f"buffer_load_dwordx4 {a(d,4)}, v{vB+i}, {SRD}, s{sAo} offen offset:{(step%4)*1024} sc1"]
    for st in range(GD-1):
        for i in range(2): E(bload(st, i))
    w1n = list(range(6))
    for step in range(32):
        E(vq.wait(("A", step)))
        if step == 18: e("s_barrier")
        a0 = AF2 + 8*(step % GD)
        for b in range(4):
            E(lq.wait(("W", step, b)))
            for p, i in enumerate(range(2) if b % 2 == 0 else (1, 0)):
                e(f"{MF} {v(acc2(b,i),4)}, {a(W2F+16*(step%2)+4*b,4)}, {a(a0+4*i,4)}, {v(acc2(b,i),4)}")
                if b % 2 == 0 and p == 0:
                    if step + GD - 1 < 32: E(bload(step+GD-1, b//2))
                    elif w1n and b == 0 and step >= 18:
                        E(w1_piece(1, w1n.pop(0))); vq.add("W")
            if step + 2 < 32: e(w2rd(step+2, b))
            if step == 19 and b == 3:
                la, ld = A.new("resA"), A.new("resd")
                e(f"s_bitcmp1_b32 s{SLAY}, 0"); e(f"s_cbranch_scc1 {la}")
                for blk in range(6): e(f"ds_write_b128 v{vLW}, {a(RB+4*blk,4)} offset:{SLOT + blk*1024}"); lq.add("rw")
                A.label(ld)
                def resA(la=la, ld=ld):
                    A.label(la)
                    for blk in range(6): e(f"ds_write_b128 v{vLW}, {a(RA+4*blk,4)} offset:{SLOT + blk*1024}")
                    e(f"s_branch {ld}")
                ool.append(resA)
    assert not w1n
    stamp(9)
    for i in range(2):
        for kk in range(2): cvt4(RES+8*i+4*kk, acc2(2*kk,i), acc2(2*kk+1,i))
    e(f"s_cmp_eq_u32 s{SLAY}, {o.last}"); e("s_cbranch_scc1 L_final")
    xtile(RES, 160, False)
    e("s_waitcnt vmcnt(0)")
    e("s_mov_b64 exec, 1")
    st_mode([f"buffer_store_dword v{vVal}, off, {SRD}, s{sFXp}"])
    e("s_mov_b64 exec, -1")
    stamp(10)
    e(f"s_add_u32 s{SLAY}, s{SLAY}, 1")
    e("s_branch L_g1pre")
    A.label("L_final")
    srt(P_OUT, 0x400000); e(f"s_mov_b32 s{T0}, 0x8000")
    for i in range(2):
        for kk in range(2):
            e(f"buffer_store_dwordx4 {v(RES+8*i+4*kk,4)}, v{vOut}, {SRT}, {'0' if i == 0 else 's%d' % T0} offen offset:{kk*64} {['', 'sc1', 'nt', 'sc0 sc1'][o.outsc]}")
    if o.stamps:
        e("s_waitcnt vmcnt(0)")
        stamp(11)
        e(f"s_lshl_b32 s{T0}, s{SIDX}, 2"); e(f"s_add_u32 s{T0}, s{T0}, s{SW}")
        e(f"s_lshl_b32 s{T0}, s{T0}, 8"); e(f"s_add_u32 s{T0}, s{T0}, {WS_STAMPS}")
        e(f"v_lshrrev_b32 v200, 2, v{vL16}")
        e(f"buffer_store_dword v{vSTAMP}, v200, {SRD}, s{T0} offen")
        if o.echo_a >= 0:
            e(f"v_readlane_b32 s{T1}, v{vSTAMP}, {o.echo_a}"); e(f"v_readlane_b32 s{T2}, v{vSTAMP}, {o.echo_b}"); e(f"v_readlane_b32 s{T3}, v{vSTAMP}, 59")
            e(f"s_sub_u32 s{T2}, s{T2}, s{T1}"); e(f"s_min_u32 s{T2}, s{T2}, 20000")
            A.label("L_echo")
            e(f"s_memrealtime s[{sSTAMP}:{sSTAMP+1}]"); e("s_waitcnt lgkmcnt(0)")
            e(f"s_sub_u32 s{T4}, s{sSTAMP}, s{T3}"); e(f"s_cmp_lt_u32 s{T4}, s{T2}"); e("s_cbranch_scc1 L_echo")
        if o.dbgout:
            e(f"s_lshl_b32 s{T0}, s{SIDX}, 2"); e(f"s_add_u32 s{T0}, s{T0}, s{SW}"); e(f"s_cmp_lg_u32 s{T0}, {o.dbgout}"); e("s_cbranch_scc1 L_nodbg")
            srt(P_DBG, 256)
            e(f"v_readlane_b32 s{T1}, v{vSTAMP}, 12")
            for j, idx in enumerate((28, 13, 31, 14, 15, 1, 5, 8, 9, 17, 25, 33, 41, 49, 59)):
                e(f"v_readlane_b32 s{T2}, v{vSTAMP}, {idx}"); e(f"s_sub_u32 s{T2}, s{T2}, s{T1}"); e(f"v_mov_b32 v201, s{T2}")
                e(f"buffer_store_dword v201, off, {SRT}, 0 offset:{4+4*j}")
            A.label("L_nodbg")
    e("s_endpgm")
    for blk in ool: blk()
    A.label("L_codeend")
    e("s_endpgm")
    A.raw('.section .rodata,"a"'); A.raw(".p2align 6"); A.raw(f".amdhsa_kernel {KNAME}")
    for t in ("next_free_vgpr 512", "next_free_sgpr 102", "accum_offset 256", "group_segment_fixed_size 0", "kernarg_size 80",
              "user_sgpr_count 2", "user_sgpr_kernarg_segment_ptr 1", "system_sgpr_workgroup_id_x 1"):
        A.raw("  .amdhsa_" + t)
    A.raw(".end_amdhsa_kernel")
    return A.text()

if __name__ == "__main__":
    o = Opts()
    out = sys.argv[1]
    for kv in sys.argv[2:]:
        k, val = kv.split("=")
        setattr(o, k, int(val))
    open(out, "w").write(gen(o))
```

```python
import re

_REG = re.compile(r'^(-|\|)?(abs\()?([vas])(?:(\d+)|\[(\d+):(\d+)\])\)?\|?$')
TRANS = ("v_exp_f32", "v_log_f32", "v_rcp_f32", "v_rsq_f32", "v_sqrt_f32", "v_sin_f32", "v_cos_f32")

def regs_of(op):
    op = op.strip()
    if op == "vcc": return {("s", "vcc")}
    if op in ("exec", "exec_lo", "exec_hi"): return {("s", "exec")}
    if op == "m0": return {("s", "m0")}
    m = _REG.match(op)
    if not m: return set()
    k = m.group(3)
    if m.group(4) is not None: return {(k, int(m.group(4)))}
    return {(k, i) for i in range(int(m.group(5)), int(m.group(6)) + 1)}

class Ins:
    def __init__(self, text):
        self.text = text
        t = text.split(";")[0].strip()
        parts = t.split(None, 1)
        self.mn = parts[0]
        rest = parts[1] if len(parts) > 1 else ""
        ops = [o.strip() for o in re.split(r',(?![^\[]*\])', rest)] if rest else []
        mods = ""
        if ops:
            l = ops[-1].split(None, 1)
            ops[-1] = l[0]
            mods = l[1] if len(l) > 1 else ""
        self.ops = ops; self.mods = mods
        mn = self.mn
        R = [regs_of(o) for o in ops]
        U = lambda xs: set().union(*xs) if xs else set()
        self.kind = "other"; self.w = set(); self.r = set()
        self.srcab = set(); self.srcc = set(); self.stdata = set()
        if mn.startswith("v_mfma"):
            self.kind = "mfma"; self.w = R[0]; self.srcab = R[1] | R[2]; self.srcc = R[3]; self.r = self.srcab | self.srcc
            self.passes = 4 if "16x16x32" in mn else 8
        elif mn.startswith("v_"):
            self.kind = "valu"
            self.w = R[0]; self.r = U(R[1:])
            if "swap" in mn: self.w = R[0] | R[1]; self.r = R[0] | R[1]
            if mn.startswith(("v_fmac", "v_dot2c", "v_writelane")) or mn.endswith("_dpp"): self.r |= R[0]
        elif mn.startswith("ds_"):
            self.kind = "ds"
            if mn.startswith(("ds_read", "ds_bpermute", "ds_swizzle")): self.w = R[0]; self.r = U(R[1:])
            else: self.r = U(R)
        elif mn.startswith(("buffer_", "global_")):
            self.kind = "vmem"
            lds = " lds" in (" " + mods)
            if lds: self.r = U(R) | {("s", "m0")}; self.kind = "dma"
            elif "load" in mn: self.w = R[0]; self.r = U(R[1:])
            elif "atomic" in mn:
                self.r = U(R)
                if "sc0" in mods: self.w = R[0]
            else:
                self.r = U(R)
                if mn.endswith(("x3", "x4")): self.stdata = R[0] if mn.startswith("buffer_") else R[1]
        elif mn.startswith("s_"):
            self.kind = "salu"
            if not mn.startswith(("s_cmp", "s_bitcmp", "s_waitcnt", "s_nop", "s_barrier", "s_branch", "s_cbranch", "s_sleep", "s_setprio", "s_endpgm", "s_setpc")):
                self.w = R[0] if R else set()
                self.r = U(R[1:])
            else: self.r = U(R)
        self.states = 1
        if mn == "s_nop": self.states = int(ops[0]) + 1

def isv(s): return {x for x in s if x[0] in "va"}
def iss(s): return {x for x in s if x[0] == "s"}

def need(p, c):
    n = 0
    if p.kind == "valu":
        pw = isv(p.w); ps = iss(p.w)
        if c.kind == "mfma" and pw & c.r: n = max(n, 2)
        if c.kind == "valu":
            if "permlane" in c.mn and pw & c.r: n = max(n, 2)
            if c.mn.endswith("_dpp") and pw & c.r: n = max(n, 2)
            if c.mn.startswith(("v_readlane", "v_readfirstlane")) and pw & c.r: n = max(n, 1)
            if p.mn in TRANS and pw & c.r: n = max(n, 1)
            if ps & c.r: n = max(n, 4 if c.mn.startswith(("v_readlane", "v_writelane")) else 2)
        if c.kind in ("vmem", "dma") and ps & c.r: n = max(n, 5)
        if c.kind in ("vmem", "dma", "ds") and p.mn in TRANS and pw & c.r: n = max(n, 1)
    if p.kind == "mfma":
        big = {4: 8, 8: 12}[p.passes]
        if c.kind == "mfma":
            if p.w & c.srcab: n = max(n, big)
            if p.w & c.srcc and not (p.w == c.srcc and p.passes == c.passes): n = max(n, big - 2)
            if p.w & c.w and not (p.w == c.srcc): n = max(n, big - 2)
        elif c.kind in ("valu", "vmem", "dma", "ds"):
            if p.w & (c.r | c.w): n = max(n, big)
            if c.kind == "valu" and p.srcc & c.w: n = max(n, {4: 3, 8: 7}[p.passes])
    if p.kind == "salu" and ("s", "m0") in p.w and c.kind == "dma": n = max(n, 1)
    if p.stdata and p.stdata & c.w: n = max(n, 2)
    return n

class Asm:
    def __init__(self):
        self.out = []; self.hist = []; self.nops = 0; self.uid = 0
        self.bg = []; self.bgper = 0; self.bgacc = 0; self.bgn = 0; self.execfull = True; self._inbg = False
    def raw(self, t): self.out.append(t)
    def label(self, name):
        for i, p in enumerate(self.hist):
            if p.mn.startswith(("s_cbranch", "s_branch")) and p.ops and p.ops[0] == name:
                for q in self.hist[i+1:]: q.states = 0
                break
        self.out.append(name + ":")
    def new(self, base):
        self.uid += 1; return f"L_{base}_{self.uid}"
    def e(self, text):
        if "\n" in text:
            for t in text.split("\n"):
                if t.strip(): self.e(t.strip())
            return
        c = Ins(text)
        if self.bg and not self._inbg:
            if self.bgacc >= self.bgper and self.execfull and c.kind in ("valu", "mfma") and not c.mn.startswith(("v_cmp", "v_readf")):
                self.bgacc = 0; self.bgflush(1)
            self.bgacc += 16 if c.kind == "mfma" else 8 if (c.mn in TRANS or "permlane" in c.mn) else 4
        if ("s", "exec") in c.w: self.execfull = c.ops[-1] == "-1"
        dist = 0; pad = 0
        for p in reversed(self.hist):
            nd = need(p, c)
            if nd > dist: pad = max(pad, nd - dist)
            dist += p.states
            if dist >= 20: break
        if pad:
            self.nops += pad
            nop = Ins(f"s_nop {pad-1}")
            self.out.append("    " + nop.text); self.hist.append(nop)
        self.out.append("    " + text); self.hist.append(c)
        if len(self.hist) > 200: self.hist = self.hist[-100:]
    def bgset(self, groups, period, acc=0):
        self.bg = self.bg + list(groups); self.bgper = period; self.bgacc = acc
    def bgflush(self, n=999):
        self._inbg = True
        while self.bg and n > 0:
            for t in self.bg.pop(0):
                if t.endswith(":"): self.label(t[:-1])
                else: self.e(t)
            self.bgn += 1; n -= 1
        self._inbg = False
    def fence(self):
        self.e("s_nop 7"); self.e("s_nop 3")
    def text(self): return "\n".join(self.out) + "\n"

def v(a, n=1): return f"v{a}" if n == 1 else f"v[{a}:{a+n-1}]"
def a(x, n=1): return f"a{x}" if n == 1 else f"a[{x}:{x+n-1}]"
def s(x, n=1): return f"s{x}" if n == 1 else f"s[{x}:{x+n-1}]"
```

```python
import sys, struct
from asmlib import *

KNAME = "interleave_layers__linear_kernel_hedgehog__sliding_local_dilated__prompt_kernel"

WS_FLAGA = 0x0000000
WS_FLAGB = 0x0008000
WS_FLAGO = 0x0009000
WS_FLAGX = 0x000A000
WS_CS    = 0x0010000
CS_SZ    = 393216
WS_ST    = 0x0100000
WS_ZP    = 0x0140000
WS_STAMPS= 0x0180000
WS_HALO  = 0x0200000
WS_KVP   = 0x0400000
WS_W1A   = 0x0800000
WS_W1B   = 0x0E00000
WS_W2A   = 0x1400000
WS_W2B   = 0x1600000
WS_X     = 0x1800000
WS_X0    = WS_X
WS_O     = 0x1C00000
WS_SIZE  = 0x10000000
OOR      = 0x40000000

SLOT = 24576
M      = 147456
M_MODE = M
M_CS   = M + 64
M_ST   = M + 1024
M_RS   = M + 3072
M_KX   = M + 4096
M_HV   = M + 9216
M_ZF   = M + 10240
M_PHI  = M + 11264
LDS_SIZE = 163840
VB_LDS = 57344
RAW1A, RAW1B, RAW2 = 3*SLOT, 4*SLOT, 5*SLOT

SRD = "s[4:7]"; SRT = "s[8:11]"
SW, SGRP, SMEM, SMODE, SLAY, SCB, SRB = 12, 13, 14, 15, 16, 17, 18
T0, T1, T2, T3, T4, T5, T6, T7 = 19, 20, 21, 22, 23, 24, 25, 26
SIDX, sCK, SXCC = 27, 28, 29
sFOc, sFOp, sFXc, sFXp = 30, 31, 32, 33
sO, sXs = 34, 35
mPAR, mB1, mDIAG, mM0, mOWN0, mOWN1, mM1, mFIRST = 36, 38, 40, 42, 44, 46, 48, 50
sW1, sW2, sCSL, sFBp, sSTs, sLW, sKV, sZP, sHALO, sTMO, sAo, sWo = 52, 53, 54, 55, 56, 57, 58, 59, 60, 61, 62, 63
P_AX, P_AW1, P_PHI, P_AW2, P_BX, P_BW1, P_BW2, P_OUT, P_DBG, P_WS = 64, 66, 68, 70, 72, 74, 76, 78, 80, 82
sCL0, sCL1, sCL2, sL14, sW2l = 72, 73, 3, 2, 0
sW2s = 68
mG0, mG1 = 64, 66
sSTAMP = 84
ROTA, ROTW = 86, 94

vL16, vL64, vL128 = 1, 2, 3
vA = 4; vB = 8; vW1 = 10; vW2 = 11; vFP = 12; vSTl = 13; vSTs = 14; vSTAMP = 15
RES = 16; PHI = 32; ONES = 40; MP0, MP1, MO0, MO1 = 44, 45, 46, 47
vXW, vE0, vE1, vRSW, vRSR, vVo, vVp, vKX, vGM, vZW, vSW, vSR, vG16, vOut, vZL, vVal = range(48, 64)
vLW = 0
ACC = 64
def acc(c, i): return ACC + 16*c + 4*i
def acc2(b, i): return ACC + 8*b + 4*i
STP = 160; CSR = 168; WFV = 192; FBV = 216; CI = 220
RA, RB, RING, HW2, HCS = 0, 24, 48, 240, 248
MF = "v_mfma_f32_16x16x32_bf16"
def f32hex(x): return "0x%08x" % struct.unpack("<I", struct.pack("<f", x))[0]
CK_A = f32hex(1.4426950408889634); CK_B = f32hex(1.4426950408889634 * 32 ** -0.5)

class Opts:
    stamps = 0
    last = 3
    force_slow = 0
    ND = 8
    LA = 4
    APRE = 3
    wrate = 150
    w2rate = 200
    g2depth = 10
    brate = 5
    bfirst = 0
    bbar = 1
    tlb = 1
    cs0 = 6
    gpos = 2
    aper = 200
    aper2 = 130
    alate = 14
    bper = 90
    hpos = 1
    osc = 0
    ntouch = 0
    tl = 4
    t0 = 0
    tstep = 2
    dbgout = 0
    outsc = 1
    echo_a = -1
    echo_b = -1
    x_bx = 0
    x_now1 = 0
    x_nost = 0
    x_norot = 0
    x_noa = 0
    w2start = 25
    d0 = 1
    g1prof = 0
    w1sc = 0
    dstep = 35
    x_samew = 0
    o4sc = 1
    codepf = 1

class Q:
    def __init__(self, name, mx): self.q = []; self.name = name; self.mx = mx; self.seen = set(); self.ghost = set()
    def add(self, tag, ghost=False):
        self.q.append(tag); self.seen.add(tag)
        if ghost: self.ghost.add(tag)
    def wait(self, *tags, keep=False):
        assert all(t in self.seen for t in tags), tags
        idx = max([i for i, t in enumerate(self.q) if t in tags], default=-1)
        if idx < 0: return []
        n = sum(1 for t in self.q[idx+1:] if t not in self.ghost)
        if not keep: del self.q[:idx+1]
        return [f"s_waitcnt {self.name}({min(n, self.mx)})"]
    def clear(self): self.q = []; self.seen = set(); self.ghost = set()

def gen(o):
    A = Asm(); e = A.e
    ool = []
    ND = o.ND; AD = ND
    WQ = RING + 16*AD
    assert WQ + 8*ND <= 240
    def E(lst):
        for t in lst:
            if t.endswith(":"): A.label(t[:-1])
            else: e(t)
    def stamp(name, force=0):
        if not o.stamps: return
        if o.g1prof and (name in range(2, 11)) != (force == 1) and name in range(2, 11): return
        if o.stamps == 2 and name not in (12, 11, o.echo_a % 16, o.echo_b % 16, o.echo_a, o.echo_b): return
        e(f"{'s_memtime' if o.stamps == 3 else 's_memrealtime'} s[{sSTAMP}:{sSTAMP+1}]")
        e(f"s_mov_b32 s{T7}, m0"); e(f"s_lshl_b32 m0, s{SLAY}, 4"); e(f"s_add_u32 m0, m0, {name}")
        e("s_waitcnt lgkmcnt(0)")
        e(f"v_writelane_b32 v{vSTAMP}, s{sSTAMP}, m0"); e(f"s_mov_b32 m0, s{T7}")
    def srt(p, size):
        e(f"s_mov_b32 s8, s{p}"); e(f"s_mov_b32 s9, s{p+1}"); e(f"s_mov_b32 s10, {size}"); e("s_mov_b32 s11, 0x20000")
    def mask64(r, val):
        e(f"s_mov_b32 s{r}, 0x{val & 0xffffffff:08x}"); e(f"s_mov_b32 s{r+1}, 0x{val >> 32:08x}")
    def sm(r): return f"s[{r}:{r+1}]"
    def bc(r): return (v(r & ~1, 2), r & 1)
    def pk_fma(d, x, y, z, negx=False):
        yp, ys = bc(y)
        if z[0] == 'p': zp, zl, zh = v(z[1], 2), 0, 1
        else:
            zp, zs = bc(z[1]); zl = zh = zs
        t = f"v_pk_fma_f32 {v(d,2)}, {v(x,2)}, {yp}, {zp} op_sel:[0,{ys},{zl}] op_sel_hi:[1,{ys},{zh}]"
        if negx: t += " neg_lo:[1,0,0] neg_hi:[1,0,0]"
        e(t)
    def pk_mul(d, x, y):
        yp, ys = bc(y)
        e(f"v_pk_mul_f32 {v(d,2)}, {v(x,2)}, {yp} op_sel:[0,{ys}] op_sel_hi:[1,{ys}]")
    def cvt4l(d, x0, x1):
        return [f"v_cvt_pk_bf16_f32 v{d}, v{x0}, v{x0+1}", f"v_cvt_pk_bf16_f32 v{d+1}, v{x0+2}, v{x0+3}",
                f"v_cvt_pk_bf16_f32 v{d+2}, v{x1}, v{x1+1}", f"v_cvt_pk_bf16_f32 v{d+3}, v{x1+2}, v{x1+3}"]
    def cvt4(d, x0, x1): E(cvt4l(d, x0, x1))
    def st_mode(lines, reg=SMODE):
        ls, ld = A.new("slow"), A.new("done")
        e(f"s_cmp_lg_u32 s{reg}, 0"); e(f"s_cbranch_scc1 {ls}")
        for t in lines: e(t)
        A.label(ld)
        def blk():
            A.label(ls); A.fence()
            for t in lines: e(t + (" sc1" if t.startswith("buffer_store") else ""))
            e("s_nop 1"); e(f"s_branch {ld}")
        ool.append(blk)
    def tmo(lbl, lim=0x100000):
        e(f"s_add_u32 s{sTMO}, s{sTMO}, 1"); e(f"s_cmp_lt_u32 s{sTMO}, {lim}"); e(f"s_cbranch_scc1 {lbl}")
    def poll_ge(vaddr, soff, sval, vt):
        l, d = A.new("poll"), A.new("polld")
        e(f"s_mov_b32 s{sTMO}, 0")
        A.label(l)
        e(f"buffer_load_dword v{vt}, v{vaddr}, {SRD}, s{soff} offen sc1")
        e("s_waitcnt vmcnt(0)")
        e(f"v_cmp_gt_u32 vcc, s{sval}, v{vt}")
        e(f"s_cbranch_vccz {d}")
        tmo(l)
        A.label(d)
    def xreduce(groups):
        for op, q in groups: e(f"v_permlane32_swap_b32 v{q[0]}, v{q[1]}"); e(f"v_permlane32_swap_b32 v{q[2]}, v{q[3]}")
        for op, q in groups: e(f"{op} v{q[0]}, v{q[0]}, v{q[1]}"); e(f"{op} v{q[2]}, v{q[2]}, v{q[3]}")
        for op, q in groups: e(f"v_permlane16_swap_b32 v{q[0]}, v{q[2]}")
        for op, q in groups: e(f"{op} v{q[1]}, v{q[0]}, v{q[2]}"); e(f"{op} v{q[2]}, v{q[0]}, v{q[2]}")
        for op, q in groups: e(f"v_permlane16_swap_b32 v{q[1]}, v{q[2]}")
        for op, q in groups: e(f"v_mov_b32 v{q[0]}, v{q[1]}"); e(f"v_mov_b32 v{q[3]}, v{q[2]}")
        for op, q in groups: e(f"v_permlane32_swap_b32 v{q[0]}, v{q[1]}"); e(f"v_permlane32_swap_b32 v{q[2]}, v{q[3]}")
    def xtile(R, tmp, always_sc1):
        st = [f"buffer_store_dwordx4 {v(R+8*i+4*kk,4)}, v{vB+i}, {SRD}, s{sXs} offen offset:{kk*1024}" for i in range(2) for kk in range(2)]
        for kk in range(2):
            for i in range(2):
                f = v(R+8*i+4*kk, 4)
                e(f"{MF} {v(tmp+8*i,4)}, {v(ONES,4)}, {f}, {'0' if kk == 0 else v(tmp+8*i,4)}")
                e(f"{MF} {v(tmp+8*i+4,4)}, {f}, {f}, {'0' if kk == 0 else v(tmp+8*i+4,4)}")
        if always_sc1:
            for t in st: e(t + " sc1")
        else: st_mode(st)
        for i in range(2):
            g0 = tmp+8*i+4
            e(f"v_cndmask_b32 v{g0}, v{g0}, v{g0+1}, {sm(mPAR)}")
            e(f"v_cndmask_b32 v{g0+2}, v{g0+2}, v{g0+3}, {sm(mPAR)}")
            e(f"v_cndmask_b32 v{tmp+8*i+1}, v{g0}, v{g0+2}, {sm(mB1)}")
        st = [f"buffer_store_dwordx2 {v(tmp+8*i,2)}, v{vSTs}, {SRD}, s{sSTs} offen offset:{i*128}" for i in range(2)]
        e(f"s_mov_b64 exec, {sm(mDIAG)}")
        if always_sc1:
            for t in st: e(t + " sc1")
        else: st_mode(st)
        e("s_mov_b64 exec, -1")
    def w1_piece(stage, i):
        r = []
        slot = (stage + 1) % 6
        if i == 0: r += [f"s_add_u32 m0, s{sLW}, {slot*SLOT}", f"s_add_u32 s{sWo}, s{sW1}, s{ROTW+stage}"]
        if i == 4: r += [f"s_add_u32 m0, s{sLW}, {slot*SLOT + 4096}", f"s_add_u32 s{sWo}, s{sWo}, 4096"]
        if o.x_now1 and stage >= 2: return r + ["s_nop 0"]
        if o.x_samew: return r + [f"buffer_load_dwordx4 v{vLW}, {SRD}, s{sWo} offen offset:{(i%4)*1024} lds"]
        return r + [f"buffer_load_dwordx4 v{vW1}, {SRD}, s{sWo} offen offset:{(i%4)*1024} {['', 'sc1', 'sc0 sc1', 'nt', 'sc0', 'sc1 nt', 'sc0 sc1 nt'][o.w1sc]} lds"]
    def w2_piece(part, i):
        r = []
        if i % 4 == 0:
            r += [f"s_add_u32 m0, s{sLW}, {(3+part)*SLOT + (i//4)*4096}", f"s_add_u32 s{sWo}, s{sW2}, {57344 + part*SLOT + (i//4)*4096}"]
        return r + [f"buffer_load_dwordx4 v{vW2}, {SRD}, s{sWo} offen offset:{(i%4)*1024} lds"]
    def w2_late(i):
        r = []
        if i == 0: r += [f"s_add_u32 s{T5}, s{sW2}, s{sW2l}"]
        if i % 4 == 0:
            r += [f"s_add_u32 m0, s{sL14}, {(i//4)*4096}", f"s_add_u32 s{sWo}, s{T5}, {(i//4)*4096}"]
        return r + [f"buffer_load_dwordx4 v{vW2}, {SRD}, s{sWo} offen offset:{(i%4)*1024} lds"]
    def ldsrd(dst, addr):
        base = {0: vL16, 1: vL64, 2: vL128}[addr >> 16]
        return f"ds_read_b128 {dst}, v{base} offset:{addr & 0xffff}"
    def cs_load(d):
        r = [f"s_mul_i32 s{T0}, s{SMEM}, 384", f"s_lshl_b32 s{T1}, s{sCSL}, 10", f"s_add_u32 s{T0}, s{T0}, s{T1}", f"s_add_u32 s{T0}, s{T0}, {WS_CS}",
             f"s_lshl_b32 s{T1}, s{SW}, 6", f"s_add_u32 s{T2}, s{SW}, 4", f"s_min_u32 s{T2}, s{T2}, 5", f"s_lshl_b32 s{T2}, s{T2}, 6",
             f"s_add_u32 s{T3}, s{T0}, s{T1}", f"s_add_u32 s{T4}, s{T0}, s{T2}",
             f"v_bfe_u32 v{d+16}, v{vL16}, 4, 4", f"v_mul_u32_u24 v{d+16}, 12288, v{d+16}", f"v_add_u32 v{d+16}, v{d+16}, v{vG16}",
             f"v_add_u32 v{d+17}, {16*12288}, v{d+16}"]
        for j in range(2):
            r += [f"buffer_load_dwordx4 {v(d+8*j,4)}, v{d+16+j}, {SRD}, s{T3} offen sc1",
                  f"buffer_load_dwordx4 {v(d+8*j+4,4)}, v{d+16+j}, {SRD}, s{T4} offen sc1"]
        r += [f"s_add_u32 s{T1}, s{T1}, s{sCSL}", f"s_add_u32 s{T2}, s{T2}, s{sCSL}",
              f"v_add_u32 v{d+16}, s{T1}, v{vGM}", f"v_add_u32 v{d+17}, s{T2}, v{vGM}"]
        return r
    def cs_proc(d):
        r = [f"v_add_f32 v{d+j}, v{d+j}, v{d+8+j}" for j in range(8)]
        for sh in (8, 4, 2, 1):
            r += [f"v_add_f32_dpp v{d+j}, v{d+j}, v{d+j} row_ror:{sh} row_mask:0xf bank_mask:0xf" for j in range(8)]
        r += [f"s_mov_b64 exec, {sm(mM0)}", f"ds_write_b128 v{d+16}, {v(d,4)} offset:{M_CS-M}",
              f"ds_write_b128 v{d+17}, {v(d+4,4)} offset:{M_CS-M}", "s_mov_b64 exec, -1"]
        return r

    A.raw(f"; @launch grid=(256,1,1) block=(256,1,1) lds={LDS_SIZE}")
    A.raw('.amdgcn_target "amdgcn-amd-amdhsa--gfx950"'); A.raw(".text")
    A.raw(f".globl {KNAME}"); A.raw(".p2align 8"); A.raw(f".type {KNAME},@function"); A.label(KNAME)
    e("s_cmp_lt_u32 s2, 256"); e("s_cbranch_scc1 L_go"); e("s_endpgm"); A.label("L_go")
    e("s_load_dwordx16 s[64:79], s[0:1], 0"); e("s_load_dwordx4 s[80:83], s[0:1], 64")
    e(f"s_getpc_b64 s[{T1}:{T1+1}]"); e(f"s_and_b32 s{T1}, s{T1}, 0xffffff00")
    e(f"s_mov_b32 s{SLAY}, 0")
    e("v_lshlrev_b32 v253, 7, v0")
    e("v_lshrrev_b32 v1, 6, v0"); e("v_and_b32 v254, 63, v0"); e(f"v_readfirstlane_b32 s{SW}, v1")
    if o.stamps: e(f"v_mov_b32 v{vSTAMP}, 0"); stamp(12)
    if o.force_slow:
        e(f"s_lshr_b32 s{SGRP}, s2, 5"); e(f"s_and_b32 s{SMEM}, s2, 31")
    else:
        e(f"s_and_b32 s{SGRP}, s2, 7"); e(f"s_lshr_b32 s{SMEM}, s2, 3")
    e(f"s_lshl_b32 s{SIDX}, s{SGRP}, 5"); e(f"s_add_u32 s{SIDX}, s{SIDX}, s{SMEM}")
    e(f"s_lshr_b32 s{SRB}, s{SIDX}, 4"); e(f"s_and_b32 s{SCB}, s{SIDX}, 15")
    e(f"v_lshlrev_b32 v{vL16}, 4, v254"); e(f"v_and_b32 v{vG16}, 48, v254"); e("v_and_b32 v0, 15, v254")
    e(f"s_mul_i32 s{sLW}, s{SW}, 6144")
    e(f"s_lshl_b32 s{T3}, s{SRB}, 3"); e(f"s_lshl_b32 s{T4}, s{SW}, 1"); e(f"s_add_u32 s{T3}, s{T3}, s{T4}")
    e(f"s_lshl_b32 s{T4}, s{T3}, 4"); e(f"v_add_u32 v{vOut}, s{T4}, v0"); e(f"v_lshlrev_b32 v{vSTs}, 3, v{vOut}")
    e(f"s_lshl_b32 s{T4}, s{SCB}, 7"); e(f"v_lshlrev_b32 v{vOut}, 11, v{vOut}"); e(f"v_add3_u32 v{vOut}, v{vOut}, s{T4}, v{vG16}")
    e(f"s_lshl_b32 s{T3}, s{T3}, 15"); e(f"v_add_u32 v{vB}, s{T3}, v{vL16}"); e(f"v_add_u32 v{vB+1}, 0x8000, v{vB}")
    e("v_lshrrev_b32 v200, 2, v254"); e("v_and_b32 v201, 3, v254")
    e("v_mul_u32_u24 v202, 6144, v200"); e("v_lshl_add_u32 v202, v201, 4, v202")
    e("v_lshrrev_b32 v203, 3, v254"); e("v_and_b32 v204, 7, v254"); e("v_lshlrev_b32 v204, 4, v204"); e("v_lshl_add_u32 v210, v203, 11, v204")
    e(f"s_lshl_b32 s{T6}, s{SGRP}, 2"); e(f"s_add_u32 s{T6}, s{T6}, s{SW}")
    e(f"s_mul_i32 s{T5}, s{T6}, {32*6144}"); e(f"s_lshl_b32 s{T4}, s{SMEM}, 6"); e(f"s_add_u32 s{T5}, s{T5}, s{T4}")
    e(f"v_mov_b32 v{vVal}, 0")
    e("s_waitcnt lgkmcnt(0)")
    e(f"s_mov_b32 s4, s{P_WS}"); e(f"s_mov_b32 s5, s{P_WS+1}"); e(f"s_mov_b32 s6, {WS_SIZE}"); e("s_mov_b32 s7, 0x20000")
    if o.tlb:
        e(f"s_lshl_b32 s{T0}, s{SW}, 23")
        for j in range(4):
            e(f"s_load_dword s{sTMO}, s[{P_WS}:{P_WS+1}], s{T0}")
            if j < 3: e(f"s_add_u32 s{T0}, s{T0}, 0x200000")
        e(f"s_and_b32 s{T0}, s{SW}, 1"); e(f"s_lshl_b32 s{T0}, s{T0}, 21"); e(f"s_load_dword s{sTMO}, s[{P_OUT}:{P_OUT+1}], s{T0}")
    e(f"s_or_b32 s{T0}, s{SIDX}, s{SW}"); e(f"s_cmp_lg_u32 s{T0}, 0"); e("s_cbranch_scc1 L_p0a")
    for r in range(4): e(f"v_mov_b32 v{204+r}, 0")
    for j in range(4):
        e(f"s_mov_b32 s{T0}, {j*8192}"); e(f"buffer_store_dword v204, v253, {SRD}, s{T0} offen sc1")
    e(f"s_mov_b32 s{T0}, {WS_FLAGB}"); e(f"buffer_store_dwordx4 v[204:207], v{vL16}, {SRD}, s{T0} offen sc1")
    e(f"buffer_store_dwordx4 v[204:207], v{vL16}, {SRD}, s{T0} offen offset:1024 sc1")
    A.label("L_p0a")
    if o.x_bx:
        srt(P_BX, 0x400000); e(f"s_lshl_b32 s{T0}, s{SIDX}, 2"); e(f"s_add_u32 s{T0}, s{T0}, s{SW}"); e(f"s_lshl_b32 s{T0}, s{T0}, 12")
        for rep_ in range(o.x_bx):
            for i in range(4): e(f"buffer_load_dwordx4 v[240:243], v{vL16}, {SRT}, s{T0} offen offset:{i*1024}")
            e("s_waitcnt vmcnt(0)")
            if rep_ == 0 and o.x_bx > 1:
                e(f"s_mov_b32 s8, s{P_OUT}"); e(f"s_mov_b32 s9, s{P_OUT+1}")
    srt(P_AX, 0x400000)
    e(f"s_lshl_b32 s{T4}, s{SCB}, 7"); e(f"s_add_u32 s{T3}, s{T3}, s{T4}")
    for i in range(4):
        e(f"s_add_u32 m0, s{sLW}, {i*1024}"); e(f"s_add_u32 s{T0}, s{T3}, {i*16384}")
        e(f"buffer_load_dwordx4 v210, {SRT}, s{T0} offen lds")
    def raw1(p, ldsb):
        srt(p, 0x600000)
        for seg in range(3):
            for hf in range(2):
                e(f"s_add_u32 m0, s{sLW}, {ldsb + seg*2048 + hf*1024}"); e(f"s_add_u32 s{T0}, s{T5}, {seg*2048 + hf*16*6144}")
                e(f"buffer_load_dwordx4 v202, {SRT}, s{T0} offen lds")
    raw1(P_AW1, RAW1A)
    e(f"s_or_b32 s{T0}, s{SIDX}, s{SW}"); e(f"s_cmp_lg_u32 s{T0}, 0"); e("s_cbranch_scc1 L_p0b")
    srt(P_DBG, 256); e("v_mov_b32 v204, 1")
    e("s_waitcnt vmcnt(10)")
    e("s_mov_b64 exec, 1"); e(f"buffer_store_dword v204, off, {SRT}, 0 sc1"); e("s_mov_b64 exec, -1")
    A.label("L_p0b")
    vq = Q("vmcnt", 63)
    for i in range(4): vq.add("x")
    for i in range(6): vq.add("ra")
    if o.codepf:
        e(f"s_lshl_b32 s{T0}, s{SMEM}, 2"); e(f"s_add_u32 s{T0}, s{T0}, s{SW}"); e(f"s_mul_i32 s{T0}, s{T0}, 384")
        e(f"v_lshl_add_u32 v252, v254, 7, s{T0}"); e("v_min_u32 v252, L_codeend-%s-4, v252" % KNAME)
        e("s_mov_b64 exec, 7"); e(f"global_load_dword v251, v252, s[{T1}:{T1+1}]"); e("s_mov_b64 exec, -1"); vq.add("pf")
    srt(P_PHI, 0x10000)
    e(f"s_and_b32 s{T3}, s{SW}, 1"); e(f"s_lshl_b32 s{T1}, s{T3}, 10"); e(f"s_add_u32 m0, s{T1}, {M_PHI}"); e(f"s_lshl_b32 s{T2}, s{SMEM}, 11"); e(f"s_add_u32 s{T1}, s{T1}, s{T2}")
    e(f"buffer_load_dwordx4 v{vL16}, {SRT}, s{T1} offen lds"); vq.add("phi")
    def rawb():
        raw1(P_BW1, RAW1B)
        e(f"s_lshl_b32 s{T0}, s{SRB}, 1"); e(f"s_and_b32 s{T1}, s{SW}, 1"); e(f"s_add_u32 s{T0}, s{T0}, s{T1}")
        e(f"s_lshl_b32 s{T1}, s{SCB}, 1"); e(f"s_lshr_b32 s{T3}, s{SW}, 1"); e(f"s_add_u32 s{T1}, s{T1}, s{T3}"); e(f"s_lshl_b32 s{T1}, s{T1}, 6")
        e(f"s_lshl_b32 s{sW2s}, s{T0}, 12"); e(f"s_lshl_b32 s{T0}, s{T0}, 16"); e(f"s_add_u32 s{T0}, s{T0}, s{T1}"); e(f"s_add_u32 s{T1}, s{T0}, 0x8000")
        for wt, p in enumerate((P_AW2, P_BW2)):
            srt(p, 0x200000)
            for i in range(2):
                e(f"s_add_u32 m0, s{sLW}, {RAW2 + wt*2048 + i*1024}")
                e(f"buffer_load_dwordx4 v207, {SRT}, s{T0 + i} offen lds")
        e(f"s_lshl_b32 s{T3}, s{T3}, 11"); e(f"s_add_u32 s{sW2s}, s{sW2s}, s{T3}"); e(f"s_lshl_b32 s{T3}, s{SCB}, 17")
        e(f"s_add_u32 s{sW2s}, s{sW2s}, s{T3}"); e(f"s_add_u32 s{sW2s}, s{sW2s}, {WS_W2A}")
        for i in range(10): vq.add("rb")
    e(f"s_getreg_b32 s{SXCC}, hwreg(HW_REG_XCC_ID, 0, 4)"); e(f"s_or_b32 s{SXCC}, s{SXCC}, 0x100")
    mask64(mPAR, 0xAAAAAAAAAAAAAAAA); mask64(mB1, 0xCCCCCCCCCCCCCCCC); mask64(mDIAG, 0xF0000F0000F0000F)
    mask64(mM0, 0x0001000100010001); mask64(mM1, 0x2222222222222222)
    mask64(mOWN0, sum(1 << l for l in range(64) if 4*(l >> 4) + (l & 1) <= (l & 15)))
    mask64(mOWN1, sum(1 << l for l in range(64) if 4*(l >> 4) + 2 + (l & 1) <= (l & 15)))
    e(f"s_lshl_b32 s{T1}, s{SMEM}, 15"); e(f"s_lshl_b32 s{T2}, s{SW}, 10"); e(f"s_add_u32 s{T1}, s{T1}, s{T2}"); e(f"s_add_u32 s{sKV}, s{T1}, {WS_KVP - WS_X + (1<<32)}")
    e(f"s_lshr_b32 s{T1}, s{T1}, 4"); e(f"s_add_u32 s{sZP}, s{T1}, {WS_ZP}")
    e(f"s_lshl_b32 s{T1}, s{T6}, 7"); e(f"s_add_u32 s{sFXc}, s{T1}, {WS_FLAGX}")
    e(f"s_lshl_b32 s{T2}, s{SMEM}, 2"); e(f"s_add_u32 s{T1}, s{T1}, s{T2}"); e(f"s_add_u32 s{sFOp}, s{T1}, {WS_FLAGO}")
    e(f"s_lshl_b32 s{T1}, s{SRB}, 1"); e(f"s_lshr_b32 s{T2}, s{SW}, 1"); e(f"s_add_u32 s{T1}, s{T1}, s{T2}"); e(f"s_lshl_b32 s{T1}, s{T1}, 7")
    e(f"s_add_u32 s{sFOc}, s{T1}, {WS_FLAGO}")
    e(f"s_lshl_b32 s{T2}, s{SCB}, 3"); e(f"s_and_b32 s{T3}, s{SW}, 1"); e(f"s_lshl_b32 s{T4}, s{T3}, 2")
    e(f"s_add_u32 s{T1}, s{T1}, s{T2}"); e(f"s_add_u32 s{T1}, s{T1}, s{T4}"); e(f"s_add_u32 s{sFXp}, s{T1}, {WS_FLAGX}")
    e(f"s_lshl_b32 s{T0}, s{SGRP}, 8"); e(f"s_add_u32 s{sCL1}, s{T0}, s{sZP}")
    e(f"s_lshl_b32 s{T1}, s{SIDX}, 11"); e(f"s_add_u32 s{sHALO}, s{T1}, {WS_HALO}")
    e(f"s_lshl_b32 s{T1}, s{T3}, 10"); e(f"s_lshr_b32 s{T4}, s{SW}, 1"); e(f"s_lshl_b32 s{T2}, s{T4}, 19")
    e(f"s_add_u32 s{T1}, s{T1}, s{T2}"); e(f"s_add_u32 s{sCL2}, s{T1}, s{sHALO}")
    e(f"s_lshl_b32 s{T1}, s{SIDX}, 2"); e(f"s_add_u32 s{T1}, s{T1}, {WS_FLAGB}"); e(f"s_cmp_eq_u32 s{SW}, 0"); e(f"s_cselect_b32 s{sFBp}, s{T1}, {OOR}")
    for s_ in range(8):
        e(f"s_add_u32 s{T1}, s{SGRP}, {s_}"); e(f"s_and_b32 s{T1}, s{T1}, 7")
        if o.x_norot and s_ > 0: e(f"s_cmp_eq_u32 s{SGRP}, {s_}"); e(f"s_cselect_b32 s{T1}, 0, {s_}")
        e(f"s_mul_i32 s{ROTW+s_}, s{T1}, {SLOT}"); e(f"s_lshl_b32 s{T1}, s{T1}, 12"); e(f"s_add_u32 s{ROTA+s_}, s{T1}, {WS_X}")
    e(f"s_mul_i32 s{sL14}, s{SW}, 14336"); e(f"s_lshl_b32 s{sW2l}, s{SW}, 13")
    e(f"s_lshl_b32 s{T1}, s{SMEM}, 10"); e(f"s_add_u32 s{sO}, s{T1}, {WS_O}")
    e(f"s_lshl_b32 s{T1}, s{SCB}, 11"); e(f"s_add_u32 s{sXs}, s{T1}, {WS_X}")
    e(f"s_lshl_b32 s{T0}, s{SCB}, 14"); e(f"s_add_u32 s{sSTs}, s{T0}, {WS_ST}")
    e(f"s_mov_b32 s{sW1}, {WS_W1A}"); e(f"s_mov_b32 s{sW2}, {WS_W2A}"); e(f"s_mov_b32 s{sCSL}, 0"); e(f"s_mov_b32 s{sCK}, {CK_A}")
    e(f"s_or_b32 s{T0}, s{SGRP}, s{SW}"); e(f"s_cmp_eq_u32 s{T0}, 0"); e(f"s_cselect_b64 {sm(mFIRST)}, -1, 0")
    for r in range(4): e(f"v_mov_b32 v{ONES+r}, 0x3f803f80")
    e(f"v_add_u32 v{vL64}, 0x10000, v{vL16}"); e(f"v_add_u32 v{vL128}, 0x20000, v{vL16}")
    e(f"v_and_b32 v{vFP}, 31, v254"); e(f"v_lshlrev_b32 v{vFP}, 2, v{vFP}")
    e(f"s_lshl_b32 s{T1}, s{T6}, 17"); e(f"v_add_u32 v{vA}, s{T1}, v{vL16}")
    for i in range(1, 4): e(f"v_add_u32 v{vA+i}, {i*0x8000}, v{vA}")
    e(f"s_lshl_b32 s{T1}, s{T6}, 9"); e("v_lshrrev_b32 v213, 5, v254"); e(f"v_lshl_add_u32 v{vSTl}, v213, 17, s{T1}"); e(f"v_lshl_add_u32 v{vSTl}, v{vFP}, 2, v{vSTl}")
    e(f"s_mul_i32 s{T1}, s{SMEM}, 196608"); e(f"s_add_u32 s{T1}, s{T1}, s{sLW}"); e(f"v_add_u32 v{vW1}, s{T1}, v{vL16}")
    e(f"s_lshl_b32 s{T1}, s{SCB}, 17"); e(f"s_add_u32 s{T1}, s{T1}, s{sLW}"); e(f"v_add_u32 v{vW2}, s{T1}, v{vL16}")
    e("v_lshrrev_b32 v203, 4, v254"); e("v_xor_b32 v204, v203, v201"); e("v_lshlrev_b32 v204, 3, v204"); e("v_lshl_add_u32 v208, v200, 5, v204")
    e("v_and_b32 v209, 3, v200"); e(f"v_lshrrev_b32 v203, 1, v{vG16}"); e("v_add_u32 v209, v209, v203")
    e("v_lshlrev_b32 v203, 6, v209"); e("v_lshl_add_u32 v205, v201, 3, v203"); e(f"v_add_u32 v205, {M_PHI}, v205")
    e("v_lshl_add_u32 v206, v201, 4, v203"); e(f"s_add_u32 s{T1}, s{sLW}, {RAW1A}"); e(f"v_add_u32 v206, s{T1}, v206")
    e("v_lshlrev_b32 v203, 11, v200"); e("v_lshl_add_u32 v207, v201, 4, v203")
    e(f"s_lshl_b32 s{T2}, s{SW}, 12")
    e("v_lshrrev_b32 v203, 4, v254"); e("v_lshrrev_b32 v204, 2, v0"); e("v_xor_b32 v203, v203, v204"); e("v_lshlrev_b32 v203, 3, v203")
    e("v_lshl_add_u32 v203, v0, 5, v203"); e(f"v_add_u32 v{vXW}, s{T2}, v203")
    e(f"v_add_u32 v{vVo}, s{T2}, v208")
    e(f"s_add_u32 s{T0}, s{T2}, {VB_LDS - 1024}"); e(f"s_cmp_eq_u32 s{SW}, 0"); e(f"s_cselect_b32 s{T0}, {M_HV}, s{T0}"); e(f"v_add_u32 v{vVp}, s{T0}, v208")
    e(f"s_lshl_b32 s{T0}, s{T4}, 14"); e(f"s_lshl_b32 s{T1}, s{T3}, 9"); e(f"s_add_u32 s{T2}, s{T0}, s{T1}"); e(f"v_add_u32 v{vE0}, s{T2}, v208")
    e(f"s_xor_b32 s{T2}, s{T2}, 512"); e(f"v_add_u32 v{vE1}, s{T2}, v208"); e(f"s_lshl_b32 s{T1}, s{T3}, 3")
    e(f"v_add_u32 v{vGM}, {M}, v{vG16}")
    e(f"s_lshl_b32 s{T0}, s{T4}, 9"); e(f"v_add_u32 v{vRSR}, s{T0}, v{vGM}")
    e(f"s_lshl_b32 s{T0}, s{T4}, 6"); e(f"s_add_u32 s{T0}, s{T0}, s{T1}"); e(f"v_add_u32 v{vZW}, s{T0}, v{vGM}")
    e("v_lshrrev_b32 v203, 2, v0"); e("v_lshlrev_b32 v203, 4, v203"); e("v_lshl_add_u32 v203, v201, 1, v203")
    e("v_lshl_add_u32 v203, v213, 6, v203"); e("v_bfe_u32 v204, v254, 4, 1"); e("v_lshl_add_u32 v203, v204, 3, v203")
    e(f"s_lshl_b32 s{T0}, s{SW}, 7"); e(f"s_add_u32 s{T0}, s{T0}, {M_RS}"); e(f"v_add_u32 v{vRSW}, s{T0}, v203")
    e(f"s_lshl_b32 s{T0}, s{SW}, 10"); e(f"s_add_u32 s{T0}, s{T0}, {M_KX}"); e(f"v_add_u32 v{vKX}, s{T0}, v{vL16}")
    e(f"s_lshl_b32 s{T0}, s{SW}, 9"); e(f"s_add_u32 s{T0}, s{T0}, {M_ST}")
    e(f"v_lshl_add_u32 v203, v213, 3, s{T0}"); e(f"v_lshl_add_u32 v{vSW}, v{vFP}, 2, v203"); e(f"v_lshl_add_u32 v{vSR}, v0, 3, s{T0}")
    e("v_and_b32 v203, 7, v0"); e(f"v_lshl_add_u32 v{vZL}, v203, 8, v{vG16}")
    e("v_mov_b32 v203, 0xffff"); e("v_mov_b32 v204, 0xffff0000"); e(f"v_cndmask_b32 v203, v203, v204, {sm(mPAR)}")
    e(f"v_cndmask_b32 v{MO0}, 0, v203, {sm(mOWN0)}"); e(f"v_cndmask_b32 v{MO1}, 0, v203, {sm(mOWN1)}")
    e(f"v_xor_b32 v{MP0}, v203, v{MO0}"); e(f"v_xor_b32 v{MP1}, v203, v{MO1}")
    e(f"s_lshl_b32 s{T0}, s{SGRP}, 5"); e(f"v_add_u32 v203, s{T0}, v254")
    e("v_and_b32 v204, 7, v254"); e(f"v_lshl_add_u32 v204, v204, 5, s{SMEM}")
    e(f"v_cmp_gt_u32 {sm(T1)}, 32, v254"); e(f"v_cndmask_b32 v211, v204, v203, {sm(T1)}"); e("v_lshlrev_b32 v211, 7, v211")
    e(f"v_lshl_add_u32 v214, v0, 7, v{vG16}"); e(f"v_add_u32 v214, s{sLW}, v214")
    e(f"v_lshl_add_u32 v{vOut}, v0, 6, v{vG16}")
    for blk in range(6):
        e(f"v_cmp_eq_u32 vcc, {blk}, v0")
        e(f"v_cndmask_b32 v{96+4*blk}, 0, v{ONES}, vcc")
        for r in range(1, 4): e(f"v_mov_b32 v{96+4*blk+r}, v{96+4*blk}")
    e(f"v_add_u32 v{vLW}, s{sLW}, v{vL16}")
    if o.bfirst == 1: rawb()
    stamp(28)
    E(vq.wait("x"))
    for i in range(2):
        for kk in range(2): e(f"ds_read_b128 {v(RES+8*i+4*kk,4)}, v214 offset:{i*2048 + kk*64}")
    if o.bfirst == 2: rawb()
    e("s_waitcnt lgkmcnt(0)")
    stamp(29)
    xtile(RES, 160, True)
    for i in range(6): vq.add("st")
    def w1st(R, blk, sa, sb): return f"buffer_store_dwordx4 {a(R+4*blk,4)}, v{vW1}, {SRD}, s{sa if blk < 4 else sb} offen offset:{(blk%4)*1024} sc1"
    def csst(C, ad, sreg): return [f"s_mov_b32 exec_lo, 0x003f003f", "s_mov_b32 exec_hi, 0x003f003f",
                                   f"buffer_store_dwordx4 {C}, v{ad}, {SRD}, s{sreg} offen sc1", "s_mov_b64 exec, -1"]
    def retile1(rawoff, R, C, store):
        for blk in range(6):
            for t in range(2):
                e(f"ds_read_b64_tr_b16 {a(R+4*blk+2*t,2)}, v206 offset:{rawoff + (blk>>1)*2048 + t*256 + (blk&1)*8}")
        for blk in range(6):
            e(f"s_waitcnt lgkmcnt({10-2*blk})")
            if store: e(w1st(R, blk, T2, T4)); vq.add("st")
            e(f"{MF} {C}, {a(R+4*blk,4)}, {v(96+4*blk,4)}, {'0' if blk == 0 else C}")
    e(f"s_add_u32 s{T2}, s{ROTW}, {WS_W1A}"); e(f"s_add_u32 s{T4}, s{T2}, 4096")
    e(f"s_mul_i32 s{T0}, s{T6}, 12288"); e(f"s_mul_i32 s{T1}, s{SMEM}, 384"); e(f"s_add_u32 s{T0}, s{T0}, s{T1}"); e(f"s_add_u32 s{sCL0}, s{T0}, {WS_CS}")
    E(vq.wait("ra"))
    if o.bfirst == 3: rawb()
    stamp(13)
    retile1(0, RA, v(64,4), True)
    for blk in range(6): e(f"ds_write_b128 v{vLW}, {a(RA+4*blk,4)} offset:{SLOT + blk*1024}")
    E(csst(v(64,4), vOut, sCL0)); vq.add("st")
    srt(P_DBG, 256)
    e(f"buffer_load_dword v212, off, {SRT}, 0 sc1"); vq.add("go")
    if not o.bfirst:
        if o.bbar: e("s_barrier")
        rawb()
    e(f"v_mov_b32 v{vVal}, s{SXCC}")
    stamp(30)
    E(vq.wait("go"))
    stamp(31)
    e("v_cmp_ne_u32 vcc, 1, v212"); e("s_cbranch_vccnz L_goslow")
    A.label("L_gook")
    def goslow():
        A.label("L_goslow"); srt(P_DBG, 256); e(f"s_mov_b32 s{sTMO}, 0")
        A.label("L_gol")
        e(f"buffer_load_dword v212, off, {SRT}, 0 sc1"); e("s_waitcnt vmcnt(0)")
        e("v_cmp_ne_u32 vcc, 1, v212"); e("s_cbranch_vccz L_gook")
        tmo("L_gol"); e("s_branch L_gook")
    ool.append(goslow)
    e("s_barrier")
    e(f"s_lshl_b32 s{T0}, s{SIDX}, 7"); e(f"s_cmp_eq_u32 s{SW}, 0"); e(f"s_cselect_b32 s{T0}, s{T0}, {OOR}")
    e("s_mov_b64 exec, 1"); e(f"buffer_store_dword v{vVal}, off, {SRD}, s{T0} sc1"); e("s_mov_b64 exec, -1"); vq.add("fa")
    stamp(14)
    for fb in range(2):
        for t in range(2):
            e(f"ds_read_b64_tr_b16 {v(PHI+4*fb+2*t,2)}, v205 offset:{fb*32 + t*256}")
    E(vq.wait("rb"))
    stamp(44)
    for wt in range(2):
        for b_ in range(2):
            for t in range(2):
                d_ = v(224+4*b_+2*t, 2) if wt == 0 else a(HW2+4*b_+2*t, 2)
                e(f"ds_read_b64_tr_b16 {d_}, v206 offset:{2*SLOT + wt*2048 + t*256 + b_*8}")
    for r in range(4): e(f"v_mov_b32 v{FBV+r}, -1")
    e(f"v_mov_b32 v{vVal}, 0"); e(f"s_add_u32 s{T0}, s{sKV}, s{ROTA}")
    e("s_waitcnt lgkmcnt(0)")
    for b_ in range(2): e(f"buffer_store_dwordx4 {v(224+4*b_,4)}, v{vL16}, {SRD}, s{sW2s} offen offset:{b_*1024} sc1")
    e(f"buffer_store_dwordx4 {v(FBV,4)}, v{vL16}, {SRD}, s{T0} offen sc1")
    e(f"s_mov_b64 exec, {sm(mM0)}"); e(f"buffer_store_dwordx4 {v(FBV,4)}, v{vG16}, {SRD}, s{sCL1} offen sc1")
    e("s_mov_b64 exec, 1"); e(f"buffer_store_dword v{vVal}, off, {SRD}, s{sFOp} sc1"); e(f"buffer_store_dword v{vVal}, off, {SRD}, s{sFXp} sc1"); e("s_mov_b64 exec, -1")
    retile1(SLOT, RB, a(HCS,4), False)
    stamp(45)
    e(f"s_cmp_lg_u32 s{SW}, 0"); e("s_cbranch_scc1 L_faok")
    e(f"s_mov_b32 s{sTMO}, 0")
    A.label("L_fal")
    e(f"buffer_load_dword v212, v211, {SRD}, 0 offen sc1"); e("s_waitcnt vmcnt(0)")
    e("v_cmp_eq_u32 vcc, 0, v212"); e("s_cbranch_vccz L_fad")
    tmo("L_fal")
    A.label("L_fad")
    e(f"v_cmp_ne_u32 {sm(T1)}, s{SXCC}, v212"); e(f"v_mov_b32 v212, s{T1}")
    e(f"ds_write_b32 v{vGM}, v212"); e("s_waitcnt lgkmcnt(0)")
    A.label("L_faok")
    e("s_barrier")
    stamp(15)
    e(f"ds_read_b32 v212, v{vGM}")
    for i in range(6): E(w1_piece(1, i))
    e("s_waitcnt lgkmcnt(0)")
    e(f"v_readfirstlane_b32 s{SMODE}, v212")
    mask64(mG0, 0xFFFF0000FFFF0000); mask64(mG1, 0xFFFFFFFF00000000)
    e("s_branch L_g1rd")

    A.label("L_g1pre")
    e("s_waitcnt lgkmcnt(0)"); e("s_barrier")
    A.label("L_g1rd")
    lq = Q("lgkmcnt", 15)
    def wdst(step, c):
        if c < 2 and step >= 32 - ND: return a(WQ + 8*(step - (32-ND)) + 4*c, 4)
        return v(WFV + 4*c, 4)
    def w1rd(step, c):
        lq.add(("W", step, c))
        return ldsrd(wdst(step, c), ((step//4 + 1) % 6)*SLOT + (step % 4)*6144 + c*1024)
    for c in range(6): e(w1rd(0, c))
    e(f"s_cmp_eq_u32 s{SLAY}, 0"); e("s_cbranch_scc1 L_g1")
    poll_ge(vFP, sFXc, SLAY, FBV)
    A.label("L_g1")
    stamp(0)
    vq.clear()
    for i in range(6): vq.add(("W", 1))
    def aload(step, i):
        d = RING + 16*(step % AD) + 4*i
        vq.add(("A", step))
        return [f"buffer_load_dwordx4 {a(d,4)}, v{vA+i}, {SRD}, s{ROTA + step//4} offen offset:{(step%4)*1024} sc1"]
    anext = [(st, i) for st in range(32) for i in range(4)]
    for j in range(4*o.APRE): E(aload(*anext.pop(0)))
    pend = [("W", st, i) for st in range(2, 8) for i in range(6)] + [("W2", p, i) for p in range(3) for i in range(6)]
    def allowed(p, step):
        if p[0] == "W": return p[1] < 6 or step >= 4*(p[1]-5) + 3
        return step >= max(4*(p[1]+3) + 3, o.w2start)
    misc = []
    for j in range(8):
        misc.append((2*j, ("S", j), [f"s_mov_b32 s{T0}, {WS_ST + j*16384}"], f"buffer_load_dwordx4 {v(160+4*j,4)}, v{vSTl}, {SRD}, s{T0} offen sc1"))
    sh = []
    def S(step, *ins): sh.append((step, lambda ins=ins: list(ins)))
    oq = []
    def once(step, name, body, nl=1):
        def f():
            ins = body()
            def blk():
                A.label(f"L_{name}"); e("s_nop 1"); E(ins); e(f"s_branch L_{name}_r")
            ool.append(blk)
            return [f"s_cmp_lt_u32 s{SLAY}, {nl}", f"s_cbranch_scc1 L_{name}", f"L_{name}_r:"]
        oq.append((step, f))
    def G(tag, ins):
        def f(): vq.add(tag, ghost=True); return ins
        return f
    dlast = -1
    once(o.cs0, "csl", G("CS", cs_load(224)), nl=2)
    def b_csp():
        lq.add("csw", ghost=True)
        return vq.wait("CS", keep=True) + cs_proc(224)
    once(o.cs0 + 5, "csp", b_csp, nl=2)
    def b_set():
        assert cdone[0]
        return [f"v_mov_b32 v{vVal}, 1", "s_mov_b64 exec, 1", f"buffer_store_dword v{vVal}, off, {SRD}, s{sFBp} sc1", "s_mov_b64 exec, -1"]
    cdone = [False]
    def fb_ld(off): return [f"s_mov_b32 s{T1}, {WS_FLAGB + off}", f"buffer_load_dwordx4 {v(FBV,4)}, v{vL16}, {SRD}, s{T1} offen sc1"]
    def fb_chk(name):
        return vq.wait("F", keep=True) + [f"s_mov_b32 s{sTMO}, 0", f"L_{name}_l:",
            f"v_and_b32 v{FBV}, v{FBV}, v{FBV+1}", f"v_and_b32 v{FBV+2}, v{FBV+2}, v{FBV+3}", f"v_and_b32 v{FBV}, v{FBV}, v{FBV+2}",
            f"v_cmp_ne_u32 vcc, 1, v{FBV}", f"s_cbranch_vccz L_{name}_r",
            f"buffer_load_dwordx4 {v(FBV,4)}, v{vL16}, {SRD}, s{T1} offen sc1", "s_waitcnt vmcnt(0)",
            f"s_add_u32 s{sTMO}, s{sTMO}, 1", f"s_cmp_lt_u32 s{sTMO}, 0x100000", f"s_cbranch_scc1 L_{name}_l"]
    once(4, "fbset", b_set)
    once(18, "fbld", G("F", fb_ld(0)))
    once(23, "fbchk", lambda: fb_chk("fbchk"))
    fbs = 13
    assert o.w2start > min(fbs + 10, 31)
    oq.sort(key=lambda x: x[0])
    first = True
    for st in (16, 8, 4):
        for r in range(0, st, 2):
            ins = [f"v_add_f32 v{160+r}, v{160+r}, v{160+r+st}", f"v_add_f32 v{161+r}, v{161+r}, v{161+r+st}"]
            if first: sh.append((17, lambda ins=ins: vq.wait(("S", 7)) + ins)); first = False
            else: S(17, *ins)
    S(17, "s_nop 0"); S(17, "v_permlane32_swap_b32 v160, v162"); S(17, "v_permlane32_swap_b32 v161, v163")
    S(17, "v_add_f32 v160, v160, v162", "v_add_f32 v161, v161, v163")
    S(17, f"v_mul_f32 v163, {f32hex(-1.0/1024)}, v160", f"v_mul_f32 v161, {f32hex(1.0/1024)}, v161")
    S(17, "v_fma_f32 v161, -v163, v163, v161", "v_max_f32 v161, 0, v161")
    S(17, f"v_add_f32 v161, {f32hex(1e-5)}, v161", f"v_add_u32 v{CI}, s{sCSL}, v{vGM}")
    S(17, "v_rsq_f32 v162, v161")
    def L(tag, ins):
        def f(): lq.add(tag); return [ins]
        sh.append((17, f))
    L("sw", f"ds_write_b64 v{vSW}, v[162:163]")
    for i in range(4): L("st", f"ds_read_b64 {v(STP+2*i,2)}, v{vSR} offset:{i*128}")
    for c in range(6): L("cs", f"ds_read_b128 {v(CSR+4*c,4)}, v{CI} offset:{M_CS-M+c*64}")
    fix = None
    credit = 0.0
    for step in range(32):
        stage = step // 4
        deferred = step >= 32 - ND
        cs_ = range(2, 6) if deferred else range(6)
        ng = len(cs_)
        assert not anext or anext[0][0] > step
        E(vq.wait(("A", step)))
        if o.g1prof and step == 0: stamp(2, 1)
        if step % 4 == 3 and stage < 7:
            assert not any(p[0] == "W" and p[1] <= stage+1 for p in pend)
            E(vq.wait(("W", stage+1))); e("s_barrier")
            if o.g1prof: stamp(3 + stage, 1)
            if step > dlast and "C" not in vq.q: cdone[0] = True
            if step == 15: assert "csw" in lq.seen and "csw" not in lq.q
        plan = []
        na = 0
        while len(plan) < ng and na < len(anext) and anext[na][0] <= step + o.LA and na < (4 if anext[na][0] >= step + o.APRE else 6):
            plan.append("A"); na += 1
        credit = min(credit + (o.wrate if (pend and pend[0][0] == "W") else o.w2rate) / 100.0, 3.0)
        nw = 0
        while len(plan) < ng and nw < len(pend) and allowed(pend[nw], step) and credit >= 1:
            plan.append("W"); nw += 1; credit -= 1
        nm = 0
        while len(plan) < ng and nm < len(misc) and misc[nm][0] <= step:
            plan.append("M"); nm += 1
        while len(plan) < ng and na < len(anext) and anext[na][0] <= step + o.LA:
            plan.append("A"); na += 1
        oth = [p for p in plan if p != "A"]; aa = [p for p in plan if p == "A"]; plan = []
        while oth or aa:
            if aa: plan.append(aa.pop())
            if aa and len(aa) >= 2*len(oth): plan.append(aa.pop())
            if oth: plan.append(oth.pop(0))
        a0 = RING + 16*(step % AD)
        for gi, c in enumerate(cs_):
            vm = None
            order = range(4) if c % 2 == 0 else reversed(range(4))
            for p, i in enumerate(order):
                if p == 0: E(lq.wait(("W", step, c)))
                e(f"{MF} {v(acc(c,i),4)}, {wdst(step,c)}, {a(a0+4*i,4)}, {'0' if step == 0 else v(acc(c,i),4)}")
                busy = False
                if p == 0 and gi < len(plan):
                    k = plan[gi]
                    if k == "A": vm = lambda: aload(*anext.pop(0))
                    elif k == "W":
                        pc = pend.pop(0); ins = w1_piece(pc[1], pc[2]) if pc[0] == "W" else w2_piece(pc[1], pc[2])
                        E(ins[:-1]); busy = len(ins) > 1
                        vm = lambda pc=pc, ins=ins: (vq.add((pc[0], pc[1]), ghost=ins[-1].startswith("s_nop")), ins[-1:])[1]
                    else:
                        mi = misc.pop(0); E(mi[2]); busy = len(mi[2]) > 0
                        vm = lambda mi=mi: (vq.add(mi[1], ghost=o.x_nost), ["s_nop 0" if o.x_nost else mi[3]])[1]
                if p == 1 and vm: E(vm()); busy = True
                if p == 3:
                    busy = True
                    if step < 31: e(w1rd(step+1, c))
                if p == 2 and step < 31 and step + 1 >= 32 - ND and deferred and gi < 2:
                    e(w1rd(step+1, gi)); busy = True
                if not busy and p == 2 and oq and oq[0][0] <= step:
                    E(oq.pop(0)[1]()); busy = True
                if not busy:
                    if sh and sh[0][0] <= step: E(sh.pop(0)[1]())
                    elif not sh:
                        if fix is None:
                            E(lq.wait("cs"))
                            fix = {cc: [f"v_fmac_f32 v{acc(cc,ii)+j}, v{CSR+4*cc+j}, v{STP+2*ii+1}" for ii in range(4) for j in range(4)] for cc in range(6)}
                            fix["ci"] = [f"v_mul_f32 v{CI+ii}, s{sCK}, v{STP+2*ii}" for ii in range(4)]
                        lst = list(cs_)
                        cand = [lst[(gi + ng//2) % ng]] + ([0, 1] if deferred and step > 32 - ND else []) + ["ci"]
                        for cc in cand:
                            if fix[cc]:
                                E(fix[cc][:2]); fix[cc] = fix[cc][2:]; break
    assert not anext and not misc and not sh and not oq and all(p[0] == "W2" for p in pend), (pend, anext, misc, len(sh))
    left = [w2_piece(p[1], p[2]) for p in pend]
    assert all(not x for x in fix.values()), {k: len(x) for k, x in fix.items()}
    e("s_waitcnt lgkmcnt(0)"); e("s_barrier")
    stamp(1)
    e(f"s_bitcmp1_b32 s{SLAY}, 0"); e("s_cbranch_scc1 L_epiB")
    qm = [f"{MF} {v(acc(c,i),4)}, {wdst(step,c)}, {a(RING+16*(step%AD)+4*i,4)}, {v(acc(c,i),4)}"
          for step in range(32-ND, 32) for c in range(2) for i in (range(4) if c == 0 else reversed(range(4)))]

    def xw(r, kb, ad=vXW): return f"ds_write2st64_b64 v{ad}, {v(r,2)}, {v(r+2,2)} offset0:{2*kb} offset1:{2*kb+1}"
    def ostore(i, r): st_mode([f"buffer_store_dwordx4 {v(r,4)}, v{vA+i}, {SRD}, s{sO} offen {['', '', 'nt', 'sc0', 'sc0 nt'][o.osc]}"], T6)
    def omode():
        e(f"s_cmp_eq_u32 s{SLAY}, 0"); e(f"s_cselect_b32 s{T6}, {0 if o.osc else 1}, s{SMODE}")
        if o.o4sc: e(f"s_cmp_eq_u32 s{SLAY}, 3"); e(f"s_cselect_b32 s{T6}, 1, s{T6}")
    lates = [w2_late(i) for i in range(14)]

    def feat_head(c0, F, tmp, hook=None):
        for i in range(5):
            if i < 4: cvt4(F+4*i, acc(c0,i), acc(c0+1,i))
            if i > 0:
                for fb in range(2): e(f"{MF} {v(acc(c0+fb,i-1),4)}, {v(PHI+4*fb,4)}, {v(F+4*(i-1),4)}, 0")
        MX, MN = tmp, tmp+4
        for i in range(4):
            p0, p1 = acc(c0,i), acc(c0+1,i)
            for op, op2, d in (("v_max3_f32", "v_max_f32", MX+i), ("v_min3_f32", "v_min_f32", MN+i)):
                e(f"{op} v{d}, v{p0}, v{p0+1}, v{p0+2}"); e(f"{op} v{d}, v{d}, v{p0+3}, v{p1}")
                e(f"{op} v{d}, v{d}, v{p1+1}, v{p1+2}"); e(f"{op2} v{d}, v{d}, v{p1+3}")
        if hook: hook()
        xreduce([("v_max_f32", [MX, MX+1, MX+2, MX+3]), ("v_min_f32", [MN, MN+1, MN+2, MN+3])])
        for i in range(4):
            e(f"v_mul_f32 v{MX+i}, -v{MX+i}, v{CI+i}"); e(f"v_mul_f32 v{MN+i}, v{MN+i}, v{CI+i}")
        for i in range(4):
            for fb in range(2):
                for h in range(2):
                    pk_fma(224+8*i+4*fb+2*h, acc(c0+fb,i)+2*h, CI+i, ('b', MX+i))
                    pk_fma(acc(c0+fb,i)+2*h, acc(c0+fb,i)+2*h, CI+i, ('b', MN+i), negx=True)
    def exps(c0, i):
        for r in range(8): e(f"v_exp_f32 v{224+8*i+r}, v{224+8*i+r}")
        for fb in range(2):
            for r in range(4): e(f"v_exp_f32 v{acc(c0+fb,i)+r}, v{acc(c0+fb,i)+r}")
    def first_only(ins):
        l = A.new("fo")
        return [f"s_cmp_lg_u32 s{SLAY}, 0", f"s_cbranch_scc1 {l}"] + ins + [l + ":"]
    dl = [[f"s_add_u32 s{T2}, s{ROTW}, {WS_W1B}", f"s_add_u32 s{T4}, s{T2}, 4096", w1st(RB, 0, T2, T4)]] + [[w1st(RB, b_, T2, T4)] for b_ in range(1, 6)]
    dl += [[f"s_add_u32 s{T1}, s{sW2s}, {WS_W2B - WS_W2A}", f"buffer_store_dwordx4 {a(HW2,4)}, v{vL16}, {SRD}, s{T1} offen sc1"],
           [f"buffer_store_dwordx4 {a(HW2+4,4)}, v{vL16}, {SRD}, s{T1} offen offset:1024 sc1", f"s_add_u32 s{T1}, s{sCL0}, {CS_SZ}"] + csst(a(HCS,4), vOut, T1),
           [f"v_accvgpr_write_b32 a{252+r}, -1" for r in range(4)] + [f"buffer_store_dwordx4 a[252:255], v{vL16}, {SRD}, s{sCL2} offen sc1"],
           [f"s_add_u32 s{T1}, s{sKV}, s{ROTA}", f"s_add_u32 s{T1}, s{T1}, 0x100000", f"buffer_store_dwordx4 a[252:255], v{vL16}, {SRD}, s{T1} offen sc1",
            f"s_add_u32 s{T1}, s{sCL1}, 0x10000", f"s_mov_b64 exec, {sm(mM0)}", f"buffer_store_dwordx4 a[252:255], v{vG16}, {SRD}, s{T1} offen sc1", "s_mov_b64 exec, -1"]]
    mix = []
    for j_ in range(max(len(left), len(dl))):
        mix.append((left[j_] if j_ < len(left) else []) + (first_only(dl[j_]) if j_ < len(dl) else []))
    A.bgset(mix, o.aper, o.aper)
    feat_head(2, 192, 208)
    def vpart(i):
        e(f"v_rcp_f32 v{176+2*i}, v{acc(2,i)}"); e(f"v_rcp_f32 v{177+2*i}, v{acc(3,i)}")
        e(f"v_mul_f32 v{208+2*i}, v{176+2*i}, v{STP+2*i}"); e(f"v_mul_f32 v{209+2*i}, v{177+2*i}, v{STP+2*i}")
        e(f"v_cvt_pk_bf16_f32 v{216+i}, v{176+2*i}, v{177+2*i}")
        for b in range(2):
            for h in range(2): pk_mul(acc(2+b,i)+2*h, acc(4+b,i)+2*h, 208+2*i)
        cvt4(228+8*i, acc(2,i), acc(3,i))
        e(xw(228+8*i, 32+i))
        for b in range(2):
            for h in range(2): pk_mul(acc(4+b,i)+2*h, acc(4+b,i)+2*h, 209+2*i)
        cvt4(192+4*i, acc(4,i), acc(5,i))
        e(xw(192+4*i, 48+i))
    for i in range(4):
        exps(2, i)
        if 0 < i < 3: vpart(i-1)
        cvt4(192+4*i, 224+8*i, 224+8*i+4)
        cvt4(224+8*i, acc(2,i), acc(3,i))
        e(xw(192+4*i, i))
        e(f"{MF} {v(acc(2,i),4)}, {v(ONES,4)}, {v(192+4*i,4)}, 0")
        e(f"{MF} {v(acc(3,i),4)}, {v(ONES,4)}, {v(224+8*i,4)}, 0")
        e(xw(224+8*i, 16+i))
    vpart(2); vpart(3)
    A.bgflush()
    e(f"v_cndmask_b32 v216, v216, v217, {sm(mG0)}"); e(f"v_cndmask_b32 v218, v218, v219, {sm(mG0)}"); e(f"v_cndmask_b32 v216, v216, v218, {sm(mG1)}")
    e(f"ds_write_b16 v{vRSW}, v216"); e(f"ds_write_b16_d16_hi v{vRSW}, v216 offset:512")
    e(f"s_add_u32 s{T2}, s{sKV}, s{ROTA}")
    e(f"s_lshl_b32 s{T4}, s{SGRP}, 8"); e(f"s_add_u32 s{T4}, s{T4}, s{sZP}")
    e("s_waitcnt lgkmcnt(0)"); e("s_barrier")
    stamp(2)
    def kvreads(p):
        b = 96 + 16*(p % 4); r = []
        for t in range(2):
            r += [f"ds_read_b64_tr_b16 {v(b+2*t,2)}, v{vE0} offset:{(2*p+t)*1024}", f"ds_read_b64_tr_b16 {v(b+8+2*t,2)}, v{vE0} offset:{32768 + (2*p+t)*1024}"]
        for t in range(2): r += [f"ds_read_b64_tr_b16 {v(b+4+2*t,2)}, v{vE1} offset:{(2*p+t)*1024}"]
        return r + [f"ds_read_b128 {v(b+12,4)}, v{vRSR} offset:{M_RS-M + p*64}"]
    qa = list(qm)
    E(kvreads(0)); E(kvreads(1))
    for j in range(4): e(qa.pop(0))
    for p in range(8):
        e(f"s_waitcnt lgkmcnt({7 if p < 7 else 0})")
        b = 96 + 16*(p % 4)
        rd = kvreads(p+2) if p + 2 < 8 else []
        e(f"{MF} v[168:171], {v(b,4)}, {v(b+8,4)}, {'0' if p == 0 else 'v[168:171]'}"); E(rd[0:3])
        e(f"{MF} v[172:175], {v(b+4,4)}, {v(b+8,4)}, {'0' if p == 0 else 'v[172:175]'}"); E(rd[3:5])
        e(f"{MF} v[200:203], {v(b,4)}, {v(b+12,4)}, {'0' if p == 0 else 'v[200:203]'}"); E(rd[5:7])
    for j in range(2): e(qa.pop(0))
    e("s_barrier")
    for j in range(2): e(qa.pop(0))
    cv = cvt4l(192, 168, 172)
    E(cv[:2]); e(qa.pop(0)); E(cv[2:]); e(qa.pop(0))
    e(f"buffer_store_dwordx4 v[192:195], v{vL16}, {SRD}, s{T2} offen sc1"); e(qa.pop(0))
    e(f"s_mov_b64 exec, {sm(mM0)}")
    e(f"buffer_store_dwordx4 v[200:203], v{vG16}, {SRD}, s{T4} offen sc1")
    e("s_mov_b64 exec, -1")
    stamp(3)
    A.bgset(lates[:o.alate], o.aper2, 0)
    while qa: e(qa.pop(0))
    def g1(p): return [f"s_add_u32 s{T0}, s{sKV}, s{ROTA+1+p}", f"buffer_load_dwordx4 {v(96+4*p,4)}, v{vL16}, {SRD}, s{T0} offen sc1"]
    gz = f"buffer_load_dwordx4 v[192:195], v{vZL}, {SRD}, s{sZP} offen sc1"
    gbase = [0]
    def gather():
        A.bgflush()
        for p in range(7): E(g1(p))
        e(gz)
        gbase[0] = A.bgn
        A.bgset(lates[o.alate:], o.aper2, 0)
    if o.gpos == 0: gather()
    feat_head(0, 204, 196, gather if o.gpos == 1 else None)
    if o.gpos == 2: gather()
    def qnorm(i):
        sq = 152 if i % 2 == 0 else 176
        e(f"v_rcp_f32 v{184+2*i}, v{sq}"); e(f"v_rcp_f32 v{185+2*i}, v{sq+4}")
        for r in range(0, 8, 2): pk_mul(224+8*i+r, 224+8*i+r, 184+2*i)
        for fb in range(2):
            for h in range(2): pk_mul(acc(fb,i)+2*h, acc(fb,i)+2*h, 185+2*i)
        cvt4(204+4*i, 224+8*i, 224+8*i+4); cvt4(136+4*i, acc(0,i), acc(1,i))
    for i in range(4):
        exps(0, i)
        if i > 0: qnorm(i-1)
        sq = 152 if i % 2 == 0 else 176
        cvt4(204+4*i, 224+8*i, 224+8*i+4); cvt4(136+4*i, acc(0,i), acc(1,i))
        e(f"{MF} {v(sq,4)}, {v(ONES,4)}, {v(204+4*i,4)}, 0"); e(f"{MF} {v(sq+4,4)}, {v(ONES,4)}, {v(136+4*i,4)}, 0")
    e(f"s_andn2_b64 {sm(T1)}, {sm(mDIAG)}, {sm(mB1)}"); e(f"s_and_b64 {sm(T3)}, {sm(mDIAG)}, {sm(mB1)}")
    e(f"v_or_b32 v128, v{MO0}, v{MP0}"); e(f"v_and_b32 v128, v128, v{ONES}")
    e(f"v_cndmask_b32 v130, 0, v128, {sm(T1)}"); e(f"v_cndmask_b32 v131, 0, v128, {sm(T3)}")
    for r in (128, 129, 132, 133): e(f"v_mov_b32 v{r}, 0")
    e(f"v_and_b32 v200, 8, v{vZW}"); e(f"v_add_u32 v200, v200, v{vKX}"); e("v_xor_b32 v201, 8, v200")
    qnorm(3)
    A.bgflush()
    nafter = A.bgn - gbase[0]
    omode()
    stamp(4)
    e(f"s_mov_b32 s{sTMO}, 0")
    for p in range(8):
        r0 = 96+4*p if p < 7 else 192
        e(f"s_waitcnt vmcnt({7-p+nafter})")
        A.label(f"L_kvc{p}")
        e(f"v_cmp_eq_u32 vcc, -1, v{r0}"); e(f"s_cbranch_vccnz L_kvs{p}")
        A.label(f"L_kvo{p}")
        if p < 7:
            e(f"{MF} v[168:171], v[130:133], {v(r0,4)}, v[168:171]"); e(f"{MF} v[172:175], v[128:131], {v(r0,4)}, v[172:175]")
        def kvslow(p=p):
            A.label(f"L_kvs{p}")
            e(f"s_add_u32 s{sTMO}, s{sTMO}, 1"); e(f"s_cmp_ge_u32 s{sTMO}, 0x100000"); e(f"s_cbranch_scc1 L_kvo{p}")
            e(f"s_waitcnt vmcnt({nafter})")
            for p2 in range(p, 7):
                if p2 > p:
                    e(f"v_cmp_eq_u32 vcc, -1, v{96+4*p2}"); e(f"s_cbranch_vccz L_kvn{p}_{p2}")
                E(g1(p2))
                if p2 > p: A.label(f"L_kvn{p}_{p2}")
            e(gz); e("s_waitcnt vmcnt(0)"); e(f"s_branch L_kvc{p}")
        ool.append(kvslow)
    for sh_ in (4, 2, 1):
        for r in range(4): e(f"v_add_f32_dpp v{192+r}, v{192+r}, v{192+r} row_ror:{sh_} row_mask:0xf bank_mask:0xf")
        if sh_ == 2:
            cvt4(196, 168, 172)
            e("ds_write_b64 v200, v[196:197]"); e("ds_write_b64 v201, v[198:199]")
    e("v_cvt_pk_bf16_f32 v192, v192, v193"); e("v_cvt_pk_bf16_f32 v193, v194, v195")
    e(f"s_mov_b64 exec, {sm(mM0)}")
    e(f"ds_write_b64 v{vZW}, v[192:193] offset:{M_ZF-M}")
    e("s_mov_b64 exec, -1")
    e("s_waitcnt lgkmcnt(0)"); e("s_barrier")
    stamp(5)
    for t in range(2): e(f"ds_read_b128 {v(184+4*t,4)}, v{vGM} offset:{M_ZF-M + t*64}")
    for j in range(4): e(ldsrd(v(168+4*j,4), M_KX + j*1024))
    e(f"s_add_u32 s{sKV}, s{sKV}, 0x100000"); e(f"s_add_u32 s{sZP}, s{sZP}, 0x10000")
    e("s_waitcnt lgkmcnt(4)")
    for t in range(2):
        for i in range(4):
            e(f"{MF} {v(64+4*i,4)}, {v(184+4*t,4)}, {v((204 if t == 0 else 136)+4*i,4)}, {'0' if t == 0 else v(64+4*i,4)}")
    e("s_waitcnt lgkmcnt(0)")
    def fin(i):
        r = [f"v_mul_f32 v{96+8*i+j}, v{96+8*i+j}, v{64+4*i}" for j in range(8)] + cvt4l(224+4*i, 96+8*i, 100+8*i)
        return [r[j:j+3] for j in range(0, 12, 3)]
    sc = [[f"v_add_f32 v{64+4*i}, {f32hex(1e-6)}, v{64+4*i}", f"v_rcp_f32 v{64+4*i}, v{64+4*i}"] for i in range(4)]
    fills = {0: [[], [], [], []], 1: sc, 2: fin(0), 3: fin(1)}
    for i in range(4):
        n = 0
        for t in range(2):
            for db in range(2):
                d = v(96+8*i+4*db, 4)
                e(f"{MF} {d}, {v(168+8*t+4*db,4)}, {v((204 if t == 0 else 136)+4*i,4)}, {'0' if t == 0 else d}")
                E(fills[i][n]); n += 1
        if i >= 2: ostore(i-2, 224+4*(i-2))
    for i in (2, 3):
        for r in range(0, 8, 2): pk_mul(96+8*i+r, 96+8*i+r, 64+4*i)
        cvt4(224+4*i, 96+8*i, 100+8*i)
        ostore(i, 224+4*i)
    e("s_branch L_g2")

    A.label("L_epiB")
    fl = []
    for i in (3, 2, 1, 0):
        for c0, F in ((2, 192), (4, 224)):
            ms = [f"v_mul_f32 v{acc(c,i)+j}, v{acc(c,i)+j}, v{STP+2*i}" for c in (c0, c0+1) for j in range(4)]
            ms += cvt4l(F+4*i, acc(c0,i), acc(c0+1,i))
            fl += [ms[j:j+2] for j in range(0, 12, 2)]
            if i == 3: fl.append([f"buffer_store_dwordx4 {v(F+12,4)}, v{vL16}, {SRD}, s{T0} offen offset:{(c0-2)*512} sc1"])
        if i == 3: fl.append([f"ds_write_b128 v{vKX}, v[204:207] offset:1024"])
        fl.append([xw(224+4*i, VB_LDS//1024 + i)])
    fl.append(["s_waitcnt lgkmcnt(0)", "s_barrier"])
    fl.append([f"ds_read_b128 v[208:211], v{vKX}"])
    for db in range(2):
        rd = [f"ds_read_b64_tr_b16 {v(96+10*db,2)}, v{vVp} offset:{db*512}"]
        rd += [f"ds_read_b64_tr_b16 {v(98+10*db+2*i,2)}, v{vVo} offset:{VB_LDS + i*1024 + db*512}" for i in range(4)]
        fl += [rd[:3], rd[3:]]
    e(f"s_cmp_eq_u32 s{SW}, 3"); e(f"s_cselect_b32 s{T0}, s{sHALO}, {OOR}")
    e(f"s_sub_u32 s{T1}, s{sHALO}, 0x10000"); e(f"s_cmp_eq_u32 s{SW}, 0"); e(f"s_cselect_b32 s{T1}, s{T1}, {OOR}")
    e(f"s_cmp_eq_u32 s{SGRP}, 0"); e(f"s_cselect_b32 s{T1}, {OOR}, s{T1}")
    e(f"s_add_u32 s{sHALO}, s{sHALO}, 0x80000")
    omode()
    qb = list(qm); late = list(left) + lates
    n = 0
    while qb or fl:
        if n < 14 and n % 2: pass
        elif qb: e(qb.pop(0))
        n += 1
        if n % o.brate == 0 and n > 14 and late and qb: E(late.pop(0))
        elif fl: E(fl.pop(0))
    stamp(2)
    A.bgset(late, o.bper, 0)
    for i in (3, 2, 1, 0):
        cvt4(240+4*i, acc(0,i), acc(1,i))
        if i < 3:
            e(f"{MF} {v(136+8*i,4)}, {v(196+4*i,4)}, {v(244+4*i,4)}, 0"); e(f"{MF} {v(140+8*i,4)}, {v(192+4*i,4)}, {v(244+4*i,4)}, 0")
    e(f"{MF} v[128:131], v[192:195], v[240:243], 0")
    def sel(i):
        b = 128+8*i
        for r in range(0, 8, 2): e(f"v_cndmask_b32 v{b+r}, v{b+r}, v{b+r+1}, {sm(mPAR)}")
        if i == 0:
            e(f"v_cndmask_b32 v{b+4}, v{b+4}, v217, {sm(mFIRST)}"); e(f"v_cndmask_b32 v{b+6}, v{b+6}, v217, {sm(mFIRST)}")
        e(f"v_cndmask_b32 v{116+2*i}, v{b+4}, v{b}, {sm(mOWN0)}")
        e(f"v_cndmask_b32 v{117+2*i}, v{b+6}, v{b+2}, {sm(mOWN1)}")
        e(f"v_max_f32 v{124+i}, v{116+2*i}, v{117+2*i}")
    def soft(blks):
        for i in blks:
            e(f"v_sub_f32 v{116+2*i}, v{116+2*i}, v{124+i}"); e(f"v_sub_f32 v{117+2*i}, v{117+2*i}, v{124+i}")
        for i in blks: pk_mul(116+2*i, 116+2*i, CI+i)
        for i in blks: e(f"v_exp_f32 v{116+2*i}, v{116+2*i}"); e(f"v_exp_f32 v{117+2*i}, v{117+2*i}")
        for i in blks:
            for r in (116+2*i, 117+2*i): e(f"v_cvt_pk_bf16_f32 v{r}, v{r}, v{r}")
        e("s_waitcnt lgkmcnt(0)")
        for i in blks:
            e(f"v_and_b32 v{192+4*i}, v{116+2*i}, v{MP0}"); e(f"v_and_b32 v{193+4*i}, v{117+2*i}, v{MP1}")
            e(f"v_and_b32 v{194+4*i}, v{116+2*i}, v{MO0}"); e(f"v_and_b32 v{195+4*i}, v{117+2*i}, v{MO1}")
        for i in blks:
            e(f"{MF} {v(176+4*i,4)}, {v(ONES,4)}, {v(192+4*i,4)}, 0")
            for db in range(2): e(f"{MF} {v(128+8*i+4*db,4)}, {v(96+10*db+2*i,4)}, {v(192+4*i,4)}, 0")
    def norm(i):
        e(f"v_rcp_f32 v{176+4*i}, v{176+4*i}")
        for r in range(0, 8, 2): pk_mul(128+8*i+r, 128+8*i+r, 176+4*i)
        cvt4(224+4*i, 128+8*i, 132+8*i)
        ostore(i, 224+4*i)
    hl = [f"buffer_load_dwordx4 v[168:171], v{vL16}, {SRD}, s{T1} offen sc1", f"buffer_load_dwordx4 v[172:175], v{vL16}, {SRD}, s{T1} offen offset:1024 sc1"]
    for i in (3, 2, 1): sel(i)
    if o.hpos == 0: E(hl); hb = A.bgn
    xreduce([("v_max_f32", [124, 125, 126, 127])])
    if o.hpos == 1: E(hl); hb = A.bgn
    soft((3, 2, 1))
    e(f"v_mov_b32 v217, {f32hex(-3.0e38)}")
    norm(3); norm(2)
    e(f"s_cmp_eq_u32 s{SW}, 0"); e("s_cbranch_scc1 L_halo")
    A.label("L_halod")
    def halo(n=A.bgn - hb + 2):
        A.label("L_halo")
        e(f"s_mov_b32 s{sTMO}, 0"); e(f"v_add_u32 v216, {M_HV}, v{vXW}"); e(f"s_waitcnt vmcnt({n})")
        A.label("L_halop")
        e("v_max_u32 v218, v168, v172"); e("v_cmp_eq_u32 vcc, -1, v218"); e("s_cbranch_vccz L_halow")
        E(hl); e("s_waitcnt vmcnt(0)")
        tmo("L_halop")
        A.label("L_halow")
        e(xw(172, 0, 216))
        for db in range(2): e(f"ds_read_b64_tr_b16 {v(96+10*db,2)}, v{vVp} offset:{db*512}")
        for r in range(4): e(f"v_mov_b32 v{208+r}, v{168+r}")
        e("s_nop 1"); e("s_branch L_halod")
    ool.append(halo)
    e(f"{MF} v[132:135], v[208:211], v[240:243], 0")
    A.bgflush()
    norm(1)
    sel(0)
    e("v_mov_b32 v125, v124"); e("v_permlane32_swap_b32 v124, v125"); e("v_max_f32 v124, v124, v125")
    e("v_mov_b32 v125, v124"); e("v_permlane16_swap_b32 v124, v125"); e("v_max_f32 v124, v124, v125")
    soft((0,))
    norm(0)

    A.label("L_g2")
    stamp(6)
    for i in range(2):
        for kk in range(2):
            for r in range(4):
                d = acc2(2*kk + (r >> 1), i) + 2*(r & 1); x = RES+8*i+4*kk+r
                e(f"v_lshlrev_b32 v{d}, 16, v{x}"); e(f"v_and_b32 v{d+1}, 0xffff0000, v{x}")
    e(f"s_add_u32 s{T6}, s{SLAY}, 1"); e(f"v_mov_b32 v{vVal}, s{T6}")
    e(f"s_xor_b32 s{sW1}, s{sW1}, {WS_W1A ^ WS_W1B}"); e(f"s_xor_b32 s{sW2}, s{sW2}, {WS_W2A ^ WS_W2B}")
    e(f"s_xor_b32 s{sCSL}, s{sCSL}, 384"); e(f"s_xor_b32 s{sCK}, s{sCK}, {int(CK_A,16) ^ int(CK_B,16)}")
    e(f"s_cmp_eq_u32 s{SLAY}, {o.last}"); e(f"s_cselect_b32 s{sW1}, {OOR}, s{sW1}")
    e("s_waitcnt vmcnt(0)")
    e("s_mov_b64 exec, 1")
    st_mode([f"buffer_store_dword v{vVal}, off, {SRD}, s{sFOp}"])
    e("s_mov_b64 exec, -1")
    e("s_barrier")
    E(first_only(["s_mov_b64 exec, 1", f"buffer_store_dword v{vVal}, off, {SRD}, s{sFBp} offset:1024 sc1", "s_mov_b64 exec, -1"]))
    stamp(7)
    lq.clear(); vq.clear()
    W2F = RING; AF2 = RING + 32; GD = o.g2depth
    def w2rd(step, b):
        lq.add(("W", step, b))
        ad = (step*4096 if step < 14 else 3*SLOT + (step-14)*4096) + b*1024
        return ldsrd(a(W2F + 16*(step % 2) + 4*b, 4), ad)
    for st in range(2):
        for b in range(4): e(w2rd(st, b))
    if o.ntouch:
        e(f"v_lshrrev_b32 v{FBV+1}, {4 + {4: 4, 8: 3, 2: 5}[o.tl]}, v{vL16}"); e(f"v_lshlrev_b32 v{FBV+1}, 7, v{FBV+1}"); e(f"v_sub_u32 v{FBV+2}, v{vW1}, v{vL16}"); e(f"v_add_u32 v{FBV+1}, v{FBV+1}, v{FBV+2}")
    poll_ge(vFP, sFOc, T6, FBV)
    stamp(8)
    def bload(step, i):
        d = AF2 + 8*(step % GD) + 4*i; r = []
        if i == 0 and step % 4 == 0: r.append(f"s_mov_b32 s{sAo}, {WS_O + step*1024}")
        vq.add(("A", step))
        return r + [f"buffer_load_dwordx4 {a(d,4)}, v{vB+i}, {SRD}, s{sAo} offen offset:{(step%4)*1024} sc1"]
    for st in range(GD-1):
        for i in range(2): E(bload(st, i))
    w1n = list(range(6))
    tl = [(2+j, h_) for j in range(o.ntouch) for h_ in range(48//o.tl)]
    tsteps = {((2*o.t0 + j*o.tstep)//2, 1 + 2*((j*o.tstep) % 2)): t_ for j, t_ in enumerate(tl)}
    assert all(k[0] < 32 for k in tsteps)
    for step in range(32):
        E(vq.wait(("A", step)))
        if step == 18: e("s_barrier")
        if step == 13: once(0, "fb2ld", G("F", fb_ld(1024))); E(oq.pop()[1]())
        if step == 33 - GD: once(0, "fb2chk", lambda: fb_chk("fb2chk")); E(oq.pop()[1]())
        a0 = AF2 + 8*(step % GD)
        for b in range(4):
            E(lq.wait(("W", step, b)))
            for p, i in enumerate(range(2) if b % 2 == 0 else (1, 0)):
                e(f"{MF} {v(acc2(b,i),4)}, {a(W2F+16*(step%2)+4*b,4)}, {a(a0+4*i,4)}, {v(acc2(b,i),4)}")
                if b % 2 == 0 and p == 0:
                    if step + GD - 1 < 32: E(bload(step+GD-1, b//2))
                    elif w1n and b == 0 and step >= 18:
                        E(w1_piece(1, w1n.pop(0))); vq.add("W")
            if step + 2 < 32: e(w2rd(step+2, b))
            if b % 2 == 1 and (step, b) in tsteps:
                ts, th = tsteps[(step, b)]
                off = th*128*o.tl
                if off % 4096 == 0 or th == 0:
                    e(f"s_add_u32 s{T0}, s{sW1}, s{ROTW+ts}")
                    if off: e(f"s_add_u32 s{T0}, s{T0}, 4096")
                e(f"buffer_load_dword v{FBV}, v{FBV+1}, {SRD}, s{T0} offen offset:{off % 4096}"); vq.add("T")
            if step == 19 and b == 3:
                la, ld = A.new("resA"), A.new("resd")
                e(f"s_bitcmp1_b32 s{SLAY}, 0"); e(f"s_cbranch_scc1 {la}")
                for blk in range(6): e(f"ds_write_b128 v{vLW}, {a(RB+4*blk,4)} offset:{SLOT + blk*1024}"); lq.add("rw")
                A.label(ld)
                def resA(la=la, ld=ld):
                    A.label(la)
                    for blk in range(6): e(f"ds_write_b128 v{vLW}, {a(RA+4*blk,4)} offset:{SLOT + blk*1024}")
                    e(f"s_branch {ld}")
                ool.append(resA)
    assert not w1n
    stamp(9)
    for i in range(2):
        for kk in range(2): cvt4(RES+8*i+4*kk, acc2(2*kk,i), acc2(2*kk+1,i))
    e(f"s_cmp_eq_u32 s{SLAY}, {o.last}"); e("s_cbranch_scc1 L_final")
    xtile(RES, 160, False)
    e("s_waitcnt vmcnt(0)")
    e("s_mov_b64 exec, 1")
    st_mode([f"buffer_store_dword v{vVal}, off, {SRD}, s{sFXp}"])
    e("s_mov_b64 exec, -1")
    stamp(10)
    e(f"s_add_u32 s{SLAY}, s{SLAY}, 1")
    e("s_branch L_g1pre")
    A.label("L_final")
    e(f"v_bfe_u32 v200, v{vL16}, 4, 4"); e(f"v_and_b32 v201, 0x70, v{vL16}"); e(f"v_xor_b32 v201, v201, v{vG16}")
    e("v_lshl_add_u32 v200, v200, 7, v201"); e(f"v_add_u32 v200, s{sLW}, v200"); e("v_xor_b32 v201, 64, v200")
    for i in range(2):
        for kk in range(2): e(f"ds_write_b128 v{200+kk}, {v(RES+8*i+4*kk,4)} offset:{i*2048}")
    for j in range(4): e(f"ds_read_b128 {v(64+4*j,4)}, v{vLW} offset:{j*1024}")
    srt(P_OUT, 0x400000)
    e(f"v_lshrrev_b32 v200, 7, v{vL16}"); e(f"v_and_b32 v201, 0x70, v{vL16}"); e("v_lshlrev_b32 v202, 4, v200"); e("v_xor_b32 v201, v201, v202")
    e("v_lshl_add_u32 v200, v200, 11, v201")
    e(f"s_lshl_b32 s{T0}, s{SRB}, 2"); e(f"s_add_u32 s{T0}, s{T0}, s{SW}"); e(f"s_lshl_b32 s{T0}, s{T0}, 16"); e(f"s_lshl_b32 s{T1}, s{SCB}, 7"); e(f"s_add_u32 s{T0}, s{T0}, s{T1}")
    for j in range(4):
        e(f"s_waitcnt lgkmcnt({3-j})")
        e(f"buffer_store_dwordx4 {v(64+4*j,4)}, v200, {SRT}, s{T0} offen {['', 'sc1', 'nt', 'sc0 sc1'][o.outsc]}")
        if j < 3: e(f"s_add_u32 s{T0}, s{T0}, 16384")
    if o.stamps:
        e("s_waitcnt vmcnt(0)")
        stamp(11)
        e(f"s_lshl_b32 s{T0}, s{SIDX}, 2"); e(f"s_add_u32 s{T0}, s{T0}, s{SW}")
        e(f"s_lshl_b32 s{T0}, s{T0}, 8"); e(f"s_add_u32 s{T0}, s{T0}, {WS_STAMPS}")
        e(f"v_lshrrev_b32 v200, 2, v{vL16}")
        e(f"buffer_store_dword v{vSTAMP}, v200, {SRD}, s{T0} offen")
        if o.echo_a >= 0:
            e(f"v_readlane_b32 s{T1}, v{vSTAMP}, {o.echo_a}"); e(f"v_readlane_b32 s{T2}, v{vSTAMP}, {o.echo_b}"); e(f"v_readlane_b32 s{T3}, v{vSTAMP}, 59")
            e(f"s_sub_u32 s{T2}, s{T2}, s{T1}"); e(f"s_min_u32 s{T2}, s{T2}, 20000")
            A.label("L_echo")
            e(f"s_memrealtime s[{sSTAMP}:{sSTAMP+1}]"); e("s_waitcnt lgkmcnt(0)")
            e(f"s_sub_u32 s{T4}, s{sSTAMP}, s{T3}"); e(f"s_cmp_lt_u32 s{T4}, s{T2}"); e("s_cbranch_scc1 L_echo")
        if o.dbgout:
            e(f"s_lshl_b32 s{T0}, s{SIDX}, 2"); e(f"s_add_u32 s{T0}, s{T0}, s{SW}"); e(f"s_cmp_lg_u32 s{T0}, {o.dbgout}"); e("s_cbranch_scc1 L_nodbg")
            srt(P_DBG, 256)
            e(f"v_readlane_b32 s{T1}, v{vSTAMP}, 12")
            for j, idx in enumerate((28, 13, 31, 14, 15, 1, 5, 8, 9, 17, 25, 33, 41, 49, 59)):
                e(f"v_readlane_b32 s{T2}, v{vSTAMP}, {idx}"); e(f"s_sub_u32 s{T2}, s{T2}, s{T1}"); e(f"v_mov_b32 v201, s{T2}")
                e(f"buffer_store_dword v201, off, {SRT}, 0 offset:{4+4*j}")
            A.label("L_nodbg")
    e("s_endpgm")
    for blk in ool: blk()
    A.label("L_codeend")
    e("s_endpgm")
    A.raw('.section .rodata,"a"'); A.raw(".p2align 6"); A.raw(f".amdhsa_kernel {KNAME}")
    for t in ("next_free_vgpr 512", "next_free_sgpr 102", "accum_offset 256", "group_segment_fixed_size 0", "kernarg_size 80",
              "user_sgpr_count 2", "user_sgpr_kernarg_segment_ptr 1", "system_sgpr_workgroup_id_x 1"):
        A.raw("  .amdhsa_" + t)
    A.raw(".end_amdhsa_kernel")
    return A.text()

if __name__ == "__main__":
    o = Opts()
    out = sys.argv[1]
    for kv in sys.argv[2:]:
        k, val = kv.split("=")
        setattr(o, k, int(val))
    open(out, "w").write(gen(o))
```

```python
import sys, struct
from asmlib import *

KNAME = "interleave_layers__linear_kernel_hedgehog__sliding_local_dilated__prompt_kernel"

WS_FLAGA = 0x0000000
WS_FLAGB = 0x0008000
WS_FLAGO = 0x0009000
WS_FLAGX = 0x000A000
WS_CS    = 0x0010000
CS_SZ    = 393216
WS_ST    = 0x0100000
WS_ZP    = 0x0140000
WS_STAMPS= 0x0180000
WS_HALO  = 0x0200000
WS_KVP   = 0x0400000
WS_W1A   = 0x0800000
WS_W1B   = 0x0E00000
WS_W2A   = 0x1400000
WS_W2B   = 0x1600000
WS_X     = 0x1800000
WS_X0    = WS_X
WS_O     = 0x1C00000
WS_SIZE  = 0x2000000
OOR      = 0x40000000

SLOT = 24576
M      = 147456
M_MODE = M
M_CS   = M + 64
M_ST   = M + 1024
M_RS   = M + 3072
M_KX   = M + 4096
M_HV   = M + 9216
M_ZF   = M + 10240
M_PHI  = M + 11264
LDS_SIZE = 163840
VB_LDS = 57344
RAW1A, RAW1B, RAW2 = 3*SLOT, 4*SLOT, 5*SLOT

SRD = "s[4:7]"; SRT = "s[8:11]"
SW, SGRP, SMEM, SMODE, SLAY, SCB, SRB = 12, 13, 14, 15, 16, 17, 18
T0, T1, T2, T3, T4, T5, T6, T7 = 19, 20, 21, 22, 23, 24, 25, 26
SIDX, sCK, SXCC = 27, 28, 29
sFOc, sFOp, sFXc, sFXp = 30, 31, 32, 33
sO, sXs = 34, 35
mPAR, mB1, mDIAG, mM0, mOWN0, mOWN1, mM1, mFIRST = 36, 38, 40, 42, 44, 46, 48, 50
sW1, sW2, sCSL, sFBp, sSTs, sLW, sKV, sZP, sHALO, sTMO, sAo, sWo = 52, 53, 54, 55, 56, 57, 58, 59, 60, 61, 62, 63
P_AX, P_AW1, P_PHI, P_AW2, P_BX, P_BW1, P_BW2, P_OUT, P_DBG, P_WS = 64, 66, 68, 70, 72, 74, 76, 78, 80, 82
sCL0, sCL1, sCL2, sL14, sW2l = 72, 73, 3, 2, 0
sW2s = 68
mG0, mG1 = 64, 66
sSTAMP = 84
ROTA, ROTW = 86, 94

vL16, vL64, vL128 = 1, 2, 3
vA = 4; vB = 8; vW1 = 10; vW2 = 11; vFP = 12; vSTl = 13; vSTs = 14; vSTAMP = 15
RES = 16; PHI = 32; ONES = 40; MP0, MP1, MO0, MO1 = 44, 45, 46, 47
vE1, vRSR = 204, 205
vXW, vE0, vTCH, vRSW, vJUNK, vVo, vVp, vKX, vGM, vZW, vSW, vSR, vG16, vOut, vZL, vVal = range(48, 64)
vLW = 0
ACC = 64
def acc(c, i): return ACC + 16*c + 4*i
def acc2(b, i): return ACC + 8*b + 4*i
STP = 160; CSR = 168; WFV = 192; FBV = 216; CI = 220
RA, RB, RING, HW2, HCS = 0, 24, 48, 240, 248
MF = "v_mfma_f32_16x16x32_bf16"
def f32hex(x): return "0x%08x" % struct.unpack("<I", struct.pack("<f", x))[0]
CK_A = f32hex(1.4426950408889634); CK_B = f32hex(1.4426950408889634 * 32 ** -0.5)

class Opts:
    stamps = 0
    last = 3
    force_slow = 0
    ND = 8
    LA = 6
    APRE = 3
    wrate = 150
    w2rate = 300
    g2depth = 7
    brate = 5
    bfirst = 0
    bbar = 1
    bpre = 2
    wsoff = 0
    apoll = 0
    tlb = 1
    cs0 = 6
    gpos = 2
    aper = 200
    aper2 = 130
    alate = 14
    bper = 90
    hpos = 1
    osc = 0
    x_rot2 = 0
    g2pre = 9
    g2w = 2
    touch = 0
    oall = 0
    oa = 1
    dmerge = 2
    xord = 1
    xall = 0
    tstep0 = 29
    ntouch = 0
    tl = 4
    t0 = 0
    tstep = 2
    dbgout = 0
    outsc = 1
    echo_a = -1
    echo_b = -1
    x_bx = 0
    x_now1 = 0
    x_nost = 0
    x_norot = 0
    x_noa = 0
    w2start = 25
    d0 = 1
    g1prof = 0
    w1sc = 0
    dstep = 35
    x_samew = 0
    o4sc = 0
    codepf = 1

class Q:
    def __init__(self, name, mx): self.q = []; self.name = name; self.mx = mx; self.seen = set(); self.ghost = set()
    def add(self, tag, ghost=False):
        self.q.append(tag); self.seen.add(tag)
        if ghost: self.ghost.add(tag)
    def wait(self, *tags, keep=False):
        assert all(t in self.seen for t in tags), tags
        idx = max([i for i, t in enumerate(self.q) if t in tags], default=-1)
        if idx < 0: return []
        n = sum(1 for t in self.q[idx+1:] if t not in self.ghost)
        if not keep: del self.q[:idx+1]
        return [f"s_waitcnt {self.name}({min(n, self.mx)})"]
    def clear(self): self.q = []; self.seen = set(); self.ghost = set()

def gen(o):
    A = Asm(); e = A.e
    ool = []
    ND = o.ND; AD = ND
    WQ = RING + 16*AD
    assert WQ + 8*ND <= 240
    def E(lst):
        for t in lst:
            if t.endswith(":"): A.label(t[:-1])
            else: e(t)
    def stamp(name, force=0):
        if not o.stamps: return
        if o.g1prof and (name in range(2, 11)) != (force == 1) and name in range(2, 11): return
        if o.stamps == 2 and name not in (12, 11, o.echo_a % 16, o.echo_b % 16, o.echo_a, o.echo_b): return
        e(f"{'s_memtime' if o.stamps == 3 else 's_memrealtime'} s[{sSTAMP}:{sSTAMP+1}]")
        e(f"s_mov_b32 s{T7}, m0"); e(f"s_lshl_b32 m0, s{SLAY}, 4"); e(f"s_add_u32 m0, m0, {name}")
        e("s_waitcnt lgkmcnt(0)")
        e(f"v_writelane_b32 v{vSTAMP}, s{sSTAMP}, m0"); e(f"s_mov_b32 m0, s{T7}")
    def srt(p, size):
        e(f"s_mov_b32 s8, s{p}"); e(f"s_mov_b32 s9, s{p+1}"); e(f"s_mov_b32 s10, {size}"); e("s_mov_b32 s11, 0x20000")
    def mask64(r, val):
        e(f"s_mov_b32 s{r}, 0x{val & 0xffffffff:08x}"); e(f"s_mov_b32 s{r+1}, 0x{val >> 32:08x}")
    def sm(r): return f"s[{r}:{r+1}]"
    def bc(r): return (v(r & ~1, 2), r & 1)
    def pk_fma(d, x, y, z, negx=False):
        yp, ys = bc(y)
        if z[0] == 'p': zp, zl, zh = v(z[1], 2), 0, 1
        else:
            zp, zs = bc(z[1]); zl = zh = zs
        t = f"v_pk_fma_f32 {v(d,2)}, {v(x,2)}, {yp}, {zp} op_sel:[0,{ys},{zl}] op_sel_hi:[1,{ys},{zh}]"
        if negx: t += " neg_lo:[1,0,0] neg_hi:[1,0,0]"
        e(t)
    def pk_mul(d, x, y):
        yp, ys = bc(y)
        e(f"v_pk_mul_f32 {v(d,2)}, {v(x,2)}, {yp} op_sel:[0,{ys}] op_sel_hi:[1,{ys}]")
    def cvt4l(d, x0, x1):
        return [f"v_cvt_pk_bf16_f32 v{d}, v{x0}, v{x0+1}", f"v_cvt_pk_bf16_f32 v{d+1}, v{x0+2}, v{x0+3}",
                f"v_cvt_pk_bf16_f32 v{d+2}, v{x1}, v{x1+1}", f"v_cvt_pk_bf16_f32 v{d+3}, v{x1+2}, v{x1+3}"]
    def cvt4(d, x0, x1): E(cvt4l(d, x0, x1))
    def st_mode(lines, reg=SMODE):
        ls, ld = A.new("slow"), A.new("done")
        e(f"s_cmp_lg_u32 s{reg}, 0"); e(f"s_cbranch_scc1 {ls}")
        for t in lines: e(t)
        A.label(ld)
        def blk():
            A.label(ls); A.fence()
            for t in lines: e(t + (" sc1" if t.startswith("buffer_store") else ""))
            e("s_nop 7"); e(f"s_branch {ld}")
        ool.append(blk)
    def tmo(lbl, lim=0x100000):
        e(f"s_add_u32 s{sTMO}, s{sTMO}, 1"); e(f"s_cmp_lt_u32 s{sTMO}, {lim}"); e(f"s_cbranch_scc1 {lbl}")
    def poll_ge(vaddr, soff, sval, vt):
        l, d = A.new("poll"), A.new("polld")
        e(f"s_mov_b32 s{sTMO}, 0")
        A.label(l)
        e(f"buffer_load_dword v{vt}, v{vaddr}, {SRD}, s{soff} offen sc1")
        e("s_waitcnt vmcnt(0)")
        e(f"v_cmp_gt_u32 vcc, s{sval}, v{vt}")
        e(f"s_cbranch_vccz {d}")
        tmo(l)
        A.label(d)
    def xreduce(groups):
        for op, q in groups: e(f"v_permlane32_swap_b32 v{q[0]}, v{q[1]}"); e(f"v_permlane32_swap_b32 v{q[2]}, v{q[3]}")
        for op, q in groups: e(f"{op} v{q[0]}, v{q[0]}, v{q[1]}"); e(f"{op} v{q[2]}, v{q[2]}, v{q[3]}")
        for op, q in groups: e(f"v_permlane16_swap_b32 v{q[0]}, v{q[2]}")
        for op, q in groups: e(f"{op} v{q[1]}, v{q[0]}, v{q[2]}"); e(f"{op} v{q[2]}, v{q[0]}, v{q[2]}")
        for op, q in groups: e(f"v_permlane16_swap_b32 v{q[1]}, v{q[2]}")
        for op, q in groups: e(f"v_mov_b32 v{q[0]}, v{q[1]}"); e(f"v_mov_b32 v{q[3]}, v{q[2]}")
        for op, q in groups: e(f"v_permlane32_swap_b32 v{q[0]}, v{q[1]}"); e(f"v_permlane32_swap_b32 v{q[2]}, v{q[3]}")
    def xtile(R, tmp, always_sc1):
        st = [f"buffer_store_dwordx4 {v(R+8*i+4*kk,4)}, v{vB+i}, {SRD}, s{sXs} offen offset:{kk*1024}" for i in range(2) for kk in range(2)]
        mm = []
        for kk in range(2):
            for i in range(2):
                f = v(R+8*i+4*kk, 4)
                mm.append(f"{MF} {v(tmp+8*i+4,4)}, {f}, {f}, {'0' if kk == 0 else v(tmp+8*i+4,4)}")
                mm.append(f"{MF} {v(tmp+8*i,4)}, {v(ONES,4)}, {f}, {'0' if kk == 0 else v(tmp+8*i,4)}")
        if o.xord:
            st = [x for j in range(4) for x in (mm[2*j], st[j], mm[2*j+1])]
        else: E(mm)
        if always_sc1:
            for t in st: e(t + (" sc1" if t.startswith("buffer") else ""))
        else: st_mode(st)
        for i in range(2):
            g0 = tmp+8*i+4
            e(f"v_cndmask_b32 v{g0}, v{g0}, v{g0+1}, {sm(mPAR)}")
            e(f"v_cndmask_b32 v{g0+2}, v{g0+2}, v{g0+3}, {sm(mPAR)}")
            e(f"v_cndmask_b32 v{tmp+8*i+1}, v{g0}, v{g0+2}, {sm(mB1)}")
        st = [f"buffer_store_dwordx2 {v(tmp+8*i,2)}, v{vSTs}, {SRD}, s{sSTs} offen offset:{i*128}" for i in range(2)]
        e(f"s_mov_b64 exec, {sm(mDIAG)}")
        if always_sc1:
            for t in st: e(t + " sc1")
        else: st_mode(st)
        e("s_mov_b64 exec, -1")
    def w1_piece(stage, i):
        r = []
        slot = (stage + 1) % 6
        if i == 0: r += [f"s_add_u32 m0, s{sLW}, {slot*SLOT}", f"s_add_u32 s{sWo}, s{sW1}, s{ROTW+stage}"]
        if i == 4: r += [f"s_add_u32 m0, s{sLW}, {slot*SLOT + 4096}", f"s_add_u32 s{sWo}, s{sWo}, 4096"]
        if o.x_now1 and stage >= 2: return r + ["s_nop 0"]
        if o.x_samew: return r + [f"buffer_load_dwordx4 v{vLW}, {SRD}, s{sWo} offen offset:{(i%4)*1024} lds"]
        return r + [f"buffer_load_dwordx4 v{vW1}, {SRD}, s{sWo} offen offset:{(i%4)*1024} {['', 'sc1', 'sc0 sc1', 'nt', 'sc0', 'sc1 nt', 'sc0 sc1 nt'][o.w1sc]} lds"]
    def w2_piece(part, i):
        r = []
        if i % 4 == 0:
            r += [f"s_add_u32 m0, s{sLW}, {(3+part)*SLOT + (i//4)*4096}", f"s_add_u32 s{sWo}, s{sW2}, {57344 + part*SLOT + (i//4)*4096}"]
        return r + [f"buffer_load_dwordx4 v{vW2}, {SRD}, s{sWo} offen offset:{(i%4)*1024} lds"]
    def w2_late(i):
        r = []
        if i == 0: r += [f"s_add_u32 s{T5}, s{sW2}, s{sW2l}"]
        if i % 4 == 0:
            r += [f"s_add_u32 m0, s{sL14}, {(i//4)*4096}", f"s_add_u32 s{sWo}, s{T5}, {(i//4)*4096}"]
        return r + [f"buffer_load_dwordx4 v{vW2}, {SRD}, s{sWo} offen offset:{(i%4)*1024} lds"]
    def ldsrd(dst, addr):
        base = {0: vL16, 1: vL64, 2: vL128}[addr >> 16]
        return f"ds_read_b128 {dst}, v{base} offset:{addr & 0xffff}"
    def cs_load(d):
        r = [f"s_mul_i32 s{T0}, s{SMEM}, 12288", f"s_lshl_b32 s{T1}, s{sCSL}, 10", f"s_add_u32 s{T0}, s{T0}, s{T1}", f"s_add_u32 s{T0}, s{T0}, {WS_CS}",
             f"s_add_u32 s{T2}, s{SW}, 4", f"s_min_u32 s{T2}, s{T2}, 5", f"s_lshl_b32 s{T3}, s{SW}, 11", f"s_lshl_b32 s{T4}, s{T2}, 11",
             f"s_add_u32 s{T3}, s{T0}, s{T3}", f"s_add_u32 s{T4}, s{T0}, s{T4}"]
        for j in range(2):
            r += [f"buffer_load_dwordx4 {v(d+8*j,4)}, v{vL16}, {SRD}, s{T3} offen offset:{j*1024} sc1",
                  f"buffer_load_dwordx4 {v(d+8*j+4,4)}, v{vL16}, {SRD}, s{T4} offen offset:{j*1024} sc1"]
        return r
    def cs_proc(d):
        r = [f"v_add_f32 v{d+j}, v{d+j}, v{d+8+j}" for j in range(8)]
        for sh in (8, 4):
            r += [f"v_add_f32_dpp v{d+j}, v{d+j}, v{d+j} row_ror:{sh} row_mask:0xf bank_mask:0xf" for j in range(8)]
        r += [f"s_lshl_b32 s{T1}, s{SW}, 6", f"s_lshl_b32 s{T2}, s{T2}, 6"]
        r += [f"v_permlane32_swap_b32 v{d+j}, v{d+j+1}" for j in range(0, 8, 2)]
        r += [f"v_add_f32 v{d+j}, v{d+j}, v{d+j+1}" for j in range(0, 8, 2)]
        r += [f"v_and_b32 v{d+8}, 48, v{vL16}", f"v_bfe_u32 v{d+9}, v{vL16}, 8, 1", f"v_lshl_add_u32 v{d+8}, v{d+9}, 3, v{d+8}",
              f"v_permlane16_swap_b32 v{d}, v{d+2}", f"v_permlane16_swap_b32 v{d+4}, v{d+6}",
              f"v_lshrrev_b32 v{d+9}, 9, v{vL16}", f"v_lshl_add_u32 v{d+8}, v{d+9}, 2, v{d+8}", f"v_add_u32 v{d+8}, s{sCSL}, v{d+8}", f"v_add_u32 v{d+8}, {M_CS}, v{d+8}",
              f"v_add_f32 v{d}, v{d}, v{d+2}", f"v_add_f32 v{d+4}, v{d+4}, v{d+6}",
              f"v_add_u32 v{d+9}, s{T2}, v{d+8}", f"v_add_u32 v{d+8}, s{T1}, v{d+8}",
              "s_mov_b32 exec_lo, 0x000f000f", "s_mov_b32 exec_hi, 0x000f000f",
              f"ds_write_b32 v{d+8}, v{d}", f"ds_write_b32 v{d+9}, v{d+4}", "s_mov_b64 exec, -1"]
        return r

    A.raw(f"; @launch grid=(256,1,1) block=(256,1,1) lds={LDS_SIZE}")
    A.raw('.amdgcn_target "amdgcn-amd-amdhsa--gfx950"'); A.raw(".text")
    A.raw(f".globl {KNAME}"); A.raw(".p2align 8"); A.raw(f".type {KNAME},@function"); A.label(KNAME)
    e("s_cmp_lt_u32 s2, 256"); e("s_cbranch_scc1 L_go"); e("s_endpgm"); A.label("L_go")
    e("s_load_dwordx16 s[64:79], s[0:1], 0"); e("s_load_dwordx4 s[80:83], s[0:1], 64")
    e(f"s_getpc_b64 s[{T1}:{T1+1}]"); e(f"s_and_b32 s{T1}, s{T1}, 0xffffff00")
    e("v_lshrrev_b32 v1, 6, v0"); e("v_and_b32 v254, 63, v0"); e(f"v_readfirstlane_b32 s{SW}, v1")
    if o.force_slow:
        e(f"s_lshr_b32 s{SGRP}, s2, 5"); e(f"s_and_b32 s{SMEM}, s2, 31")
    else:
        e(f"s_and_b32 s{SGRP}, s2, 7"); e(f"s_lshr_b32 s{SMEM}, s2, 3")
    vq = Q("vmcnt", 63)
    if o.codepf:
        e(f"s_lshl_b32 s{T0}, s{SMEM}, 2"); e(f"s_add_u32 s{T0}, s{T0}, s{SW}"); e(f"s_mul_i32 s{T0}, s{T0}, 384")
        e(f"v_lshl_add_u32 v252, v254, 7, s{T0}"); e("v_min_u32 v252, L_codeend-%s-4, v252" % KNAME)
        e("s_mov_b64 exec, 7"); e(f"global_load_dword v251, v252, s[{T1}:{T1+1}]"); e("s_mov_b64 exec, -1")
    e(f"s_mov_b32 s{SLAY}, 0")
    if o.stamps: e(f"v_mov_b32 v{vSTAMP}, 0"); stamp(12)
    VM = 215
    e(f"s_lshl_b32 s{SIDX}, s{SGRP}, 5"); e(f"s_add_u32 s{SIDX}, s{SIDX}, s{SMEM}")
    e(f"s_lshr_b32 s{SRB}, s{SIDX}, 4"); e(f"s_and_b32 s{SCB}, s{SIDX}, 15")
    e(f"s_mul_i32 s{sLW}, s{SW}, 6144")
    e("v_lshrrev_b32 v203, 3, v254"); e("v_and_b32 v204, 7, v254"); e("v_lshlrev_b32 v204, 4, v204"); e("v_lshl_add_u32 v210, v203, 11, v204")
    e("v_lshrrev_b32 v200, 2, v254"); e("v_and_b32 v201, 3, v254")
    e("v_mul_u32_u24 v202, 6144, v200"); e("v_lshl_add_u32 v202, v201, 4, v202")
    e(f"s_lshl_b32 s{T2}, s{SRB}, 2"); e(f"s_add_u32 s{T2}, s{T2}, s{SW}"); e(f"s_lshl_b32 s{T2}, s{T2}, 16")
    e(f"s_lshl_b32 s{T4}, s{SCB}, 7"); e(f"s_add_u32 s{T3}, s{T2}, s{T4}")
    e(f"s_lshl_b32 s{T6}, s{SGRP}, 2"); e(f"s_add_u32 s{T6}, s{T6}, s{SW}")
    e(f"s_mul_i32 s{T5}, s{T6}, {32*6144}"); e(f"s_lshl_b32 s{T4}, s{SMEM}, 6"); e(f"s_add_u32 s{T5}, s{T5}, s{T4}")
    e(f"v_lshlrev_b32 v{vL16}, 4, v254"); e(f"v_and_b32 v{vG16}, 48, v254"); e(f"v_and_b32 v{VM}, 15, v254")
    e(f"s_lshl_b32 s{T1}, s{SCB}, 11"); e(f"s_add_u32 s{sXs}, s{T1}, {WS_X}")
    e(f"s_mul_i32 s{sAo}, s{SMEM}, 196608"); e(f"s_add_u32 s{sAo}, s{sAo}, s{sLW}"); e(f"s_mul_i32 s{ROTW}, s{SGRP}, {SLOT}")
    e("s_waitcnt lgkmcnt(0)")
    if o.wsoff: e(f"s_add_u32 s{P_WS}, s{P_WS}, {o.wsoff << 20}"); e(f"s_addc_u32 s{P_WS+1}, s{P_WS+1}, 0")
    e(f"s_mov_b32 s4, s{P_WS}"); e(f"s_mov_b32 s5, s{P_WS+1}"); e(f"s_mov_b32 s6, {WS_SIZE}"); e("s_mov_b32 s7, 0x20000")
    e(f"s_or_b32 s{T0}, s{SMEM}, s{SW}"); e(f"s_cmp_eq_u32 s{T0}, 0"); e("s_cbranch_scc1 L_clr")
    A.label("L_p0a")
    srt(P_AX, 0x400000)
    for i in range(4):
        e(f"s_add_u32 m0, s{sLW}, {i*1024}"); e(f"s_add_u32 s{T0}, s{T3}, {i*16384}")
        e(f"buffer_load_dwordx4 v210, {SRT}, s{T0} offen lds"); vq.add("x")
    def touch(p, *calc):
        if o.tlb: E(list(calc)); e(f"s_load_dword s{sTMO}, s[{p}:{p+1}], s{T0}")
    touch(P_WS, f"s_add_u32 s{T0}, s{T2}, s{sXs}")
    touch(P_WS, f"s_add_u32 s{T0}, s{sAo}, s{ROTW}", f"s_add_u32 s{T0}, s{T0}, {WS_W1A}")
    touch(P_WS, f"s_mov_b32 s{T0}, 0x1f0000")
    def clr():
        A.label("L_clr")
        for r in range(4): e(f"v_mov_b32 v{204+r}, 0")
        e(f"s_lshl_b32 s{T0}, s{SGRP}, 12")
        for j in range(4): e(f"buffer_store_dwordx4 v[204:207], v{vL16}, {SRD}, s{T0} offen offset:{j*1024} sc1")
        e(f"s_lshl_b32 s{T0}, s{SGRP}, 7"); e(f"s_add_u32 s{T0}, s{T0}, {WS_FLAGB}")
        e("s_mov_b64 exec, 0xff")
        for j in range(2): e(f"buffer_store_dwordx4 v[204:207], v{vL16}, {SRD}, s{T0} offen offset:{j*1024} sc1")
        e("s_mov_b64 exec, -1")
        e("s_nop 1"); e("s_branch L_p0a")
        A.label("L_setgo")
        srt(P_DBG, 256); e("v_mov_b32 v204, 1"); e(f"s_lshl_b32 s{T0}, s{SGRP}, 5")
        e("s_waitcnt vmcnt(10)")
        e("s_mov_b64 exec, 1"); e(f"buffer_store_dword v204, off, {SRT}, s{T0} sc1"); e("s_mov_b64 exec, -1")
        e("s_branch L_p0b")
    ool.append(clr)
    def raw1(p, ldsb, tag):
        srt(p, 0x600000)
        for seg in range(3):
            for hf in range(2):
                e(f"s_add_u32 m0, s{sLW}, {ldsb + seg*2048 + hf*1024}"); e(f"s_add_u32 s{T0}, s{T5}, {seg*2048 + hf*16*6144}")
                e(f"buffer_load_dwordx4 v202, {SRT}, s{T0} offen lds"); vq.add(tag)
    raw1(P_AW1, RAW1A, "ra")
    e(f"s_or_b32 s{T0}, s{SMEM}, s{SW}"); e(f"s_cmp_eq_u32 s{T0}, 0"); e("s_cbranch_scc1 L_setgo")
    A.label("L_p0b")
    e(f"v_lshl_add_u32 v214, v{VM}, 7, v{vG16}"); e(f"v_add_u32 v214, s{sLW}, v214")
    e(f"v_add_u32 v{vB}, s{T2}, v{vL16}"); e(f"v_add_u32 v{vB+1}, 0x8000, v{vB}")
    e(f"s_lshr_b32 s{T2}, s{T2}, 8"); e(f"v_lshl_add_u32 v{vSTs}, v{VM}, 3, s{T2}")
    e(f"s_lshl_b32 s{T0}, s{SCB}, 14"); e(f"s_add_u32 s{sSTs}, s{T0}, {WS_ST}")
    mask64(mPAR, 0xAAAAAAAAAAAAAAAA); mask64(mB1, 0xCCCCCCCCCCCCCCCC); mask64(mDIAG, 0xF0000F0000F0000F)
    for r in range(4): e(f"v_mov_b32 v{ONES+r}, 0x3f803f80")
    stamp(28)
    E(vq.wait("x"))
    for i in range(2):
        for kk in range(2): e(f"ds_read_b128 {v(RES+8*i+4*kk,4)}, v214 offset:{i*2048 + kk*64}")
    e(f"v_add_u32 v{vW1}, s{sAo}, v{vL16}"); e(f"v_add_u32 v{vLW}, s{sLW}, v{vL16}")
    e("v_and_b32 v209, 3, v200"); e(f"v_lshrrev_b32 v203, 1, v{vG16}"); e("v_add_u32 v209, v209, v203")
    e("v_lshlrev_b32 v203, 6, v209"); e("v_lshl_add_u32 v205, v201, 3, v203"); e(f"v_add_u32 v205, {M_PHI}, v205")
    e("v_lshl_add_u32 v206, v201, 4, v203"); e(f"s_add_u32 s{T1}, s{sLW}, {RAW1A}"); e(f"v_add_u32 v206, s{T1}, v206")
    e(f"v_lshl_add_u32 v{vOut}, v{VM}, 11, v{vG16}")
    e("s_waitcnt lgkmcnt(0)")
    stamp(29)
    xtile(RES, 160, True)
    for i in range(6): vq.add("st")
    for blk in range(6):
        mask64(T1, 0x0001000100010001 << blk)
        for r in range(4): e(f"v_cndmask_b32 v{96+4*blk+r}, 0, v{ONES}, {sm(T1)}")
    def w1st(R, blk, sa, sb): return f"buffer_store_dwordx4 {a(R+4*blk,4)}, v{vW1}, {SRD}, s{sa if blk < 4 else sb} offen offset:{(blk%4)*1024} sc1"
    def csst(C, ad, sreg): return [f"s_mov_b32 exec_lo, 0x003f003f", "s_mov_b32 exec_hi, 0x003f003f",
                                   f"buffer_store_dwordx4 {C}, v{ad}, {SRD}, s{sreg} offen sc1", "s_mov_b64 exec, -1"]
    def retile1(rawoff, R, C, store):
        for blk in range(6):
            for t in range(2):
                e(f"ds_read_b64_tr_b16 {a(R+4*blk+2*t,2)}, v206 offset:{rawoff + (blk>>1)*2048 + t*256 + (blk&1)*8}")
        for blk in range(6):
            e(f"s_waitcnt lgkmcnt({10-2*blk})")
            if store: e(w1st(R, blk, T2, T4)); vq.add("st")
            e(f"{MF} {C}, {a(R+4*blk,4)}, {v(96+4*blk,4)}, {'0' if blk == 0 else C}")
    e(f"s_add_u32 s{T2}, s{ROTW}, {WS_W1A}"); e(f"s_add_u32 s{T4}, s{T2}, 4096")
    e(f"s_lshl_b32 s{T0}, s{T6}, 6"); e(f"s_mul_i32 s{T1}, s{SMEM}, 12288"); e(f"s_add_u32 s{T0}, s{T0}, s{T1}"); e(f"s_add_u32 s{sCL0}, s{T0}, {WS_CS}")
    E(vq.wait("ra"))
    stamp(13)
    retile1(0, RA, v(64,4), True)
    for blk in range(6): e(f"ds_write_b128 v{vLW}, {a(RA+4*blk,4)} offset:{SLOT + blk*1024}")
    E(csst(v(64,4), vOut, sCL0)); vq.add("st")
    srt(P_PHI, 0x10000)
    e(f"s_and_b32 s{T3}, s{SW}, 1"); e(f"s_lshl_b32 s{T1}, s{T3}, 10"); e(f"s_add_u32 m0, s{T1}, {M_PHI}"); e(f"s_lshl_b32 s{T2}, s{SMEM}, 11"); e(f"s_add_u32 s{T1}, s{T1}, s{T2}")
    e(f"buffer_load_dwordx4 v{vL16}, {SRT}, s{T1} offen lds"); vq.add("phi")
    srt(P_DBG, 256)
    e("v_and_b32 v253, 7, v254"); e("v_lshlrev_b32 v253, 5, v253"); e(f"s_cmp_eq_u32 s{SW}, 0"); e(f"s_cselect_b32 s{T0}, 0, {OOR}")
    e(f"buffer_load_dword v212, v253, {SRT}, s{T0} offen sc1"); vq.add("go")
    def raw2():
        e(f"s_lshl_b32 s{T0}, s{SRB}, 1"); e(f"s_and_b32 s{T1}, s{SW}, 1"); e(f"s_add_u32 s{T0}, s{T0}, s{T1}")
        e(f"s_lshl_b32 s{T1}, s{SCB}, 1"); e(f"s_lshr_b32 s{T3}, s{SW}, 1"); e(f"s_add_u32 s{T1}, s{T1}, s{T3}"); e(f"s_lshl_b32 s{T1}, s{T1}, 6")
        e(f"s_lshl_b32 s{T0}, s{T0}, 16"); e(f"s_add_u32 s{T0}, s{T0}, s{T1}"); e(f"s_add_u32 s{T1}, s{T0}, 0x8000")
        e("v_lshlrev_b32 v203, 11, v200"); e("v_lshl_add_u32 v207, v201, 4, v203")
        for wt, p in enumerate((P_AW2, P_BW2)):
            srt(p, 0x200000)
            for i in range(2):
                e(f"s_add_u32 m0, s{sLW}, {RAW2 + wt*2048 + i*1024}")
                e(f"buffer_load_dwordx4 v207, {SRT}, s{T0 + i} offen lds"); vq.add("rb")
    if o.bbar: e("s_barrier")
    if o.bpre == 1: raw1(P_BW1, RAW1B, "rb")
    if o.bpre == 2: raw2()
    stamp(30)
    e(f"s_getreg_b32 s{SXCC}, hwreg(HW_REG_XCC_ID, 0, 4)"); e(f"s_or_b32 s{SXCC}, s{SXCC}, 0x100")
    e(f"v_mov_b32 v{vVal}, s{SXCC}")
    e(f"s_and_b32 s{T3}, s{SW}, 1"); e(f"s_lshr_b32 s{T4}, s{SW}, 1")
    e(f"s_lshl_b32 s{T0}, s{SRB}, 1"); e(f"s_add_u32 s{T0}, s{T0}, s{T3}"); e(f"s_lshl_b32 s{sW2s}, s{T0}, 12"); e(f"s_lshl_b32 s{T0}, s{T4}, 11")
    e(f"s_add_u32 s{sW2s}, s{sW2s}, s{T0}"); e(f"s_lshl_b32 s{T0}, s{SCB}, 17"); e(f"s_add_u32 s{sW2s}, s{sW2s}, s{T0}"); e(f"s_add_u32 s{sW2s}, s{sW2s}, {WS_W2A}")
    e(f"s_lshl_b32 s{T1}, s{SMEM}, 15"); e(f"s_lshl_b32 s{T2}, s{SW}, 10"); e(f"s_add_u32 s{T1}, s{T1}, s{T2}"); e(f"s_add_u32 s{sKV}, s{T1}, {WS_KVP - WS_X + (1<<32)}")
    e(f"s_lshr_b32 s{T1}, s{T1}, 4"); e(f"s_add_u32 s{sZP}, s{T1}, {WS_ZP}")
    for s_ in range(8):
        e(f"s_add_u32 s{T1}, s{SGRP}, {s_}"); e(f"s_and_b32 s{T1}, s{T1}, 7")
        e(f"s_mul_i32 s{ROTW+s_}, s{T1}, {SLOT}"); e(f"s_lshl_b32 s{T1}, s{T1}, 12"); e(f"s_add_u32 s{ROTA+s_}, s{T1}, {WS_X}")
    e(f"s_lshl_b32 s{T1}, s{SIDX}, 11"); e(f"s_add_u32 s{sHALO}, s{T1}, {WS_HALO}")
    e(f"s_lshl_b32 s{T1}, s{SMEM}, 10"); e(f"s_add_u32 s{sO}, s{T1}, {WS_O}")
    touch(P_WS, f"s_mov_b32 s{T0}, s{sW2s}")
    touch(P_WS, f"s_add_u32 s{T0}, s{sKV}, s{ROTA}")
    touch(P_WS, f"s_add_u32 s{T0}, s{sW2s}, {WS_W2B - WS_W2A}")
    touch(P_WS, f"s_add_u32 s{T0}, s{sAo}, s{ROTW}", f"s_add_u32 s{T0}, s{T0}, {WS_W1B}")
    touch(P_WS, f"s_mov_b32 s{T0}, s{sHALO}")
    touch(P_WS, f"s_lshl_b32 s{T0}, s{T6}, 17", f"s_add_u32 s{T0}, s{T0}, s{sO}")
    touch(P_OUT, f"s_lshl_b32 s{T0}, s{SRB}, 18", f"s_lshl_b32 s{T1}, s{SCB}, 7", f"s_add_u32 s{T0}, s{T0}, s{T1}")
    e(f"s_lshl_b32 s{T0}, s{SGRP}, 5"); e(f"v_add_u32 v203, s{T0}, v254")
    e("v_and_b32 v204, 7, v254"); e(f"v_lshl_add_u32 v204, v204, 5, s{SMEM}")
    mask64(T1, 0x00000000FFFFFFFF); e(f"v_cndmask_b32 v211, v204, v203, {sm(T1)}"); e("v_lshlrev_b32 v211, 7, v211")
    E(vq.wait("go"))
    stamp(31)
    e(f"s_cmp_eq_u32 s{SW}, 0"); e(f"s_cselect_b32 s{T0}, 1, 0")
    e(f"v_cmp_ne_u32 vcc, s{T0}, v212"); e("s_cbranch_vccnz L_goslow")
    A.label("L_gook")
    def goslow():
        A.label("L_goslow"); srt(P_DBG, 256); e("s_waitcnt lgkmcnt(0)"); e(f"s_mov_b32 s{sTMO}, 0")
        A.label("L_gol")
        e(f"buffer_load_dword v212, v253, {SRT}, 0 offen sc1"); e("s_waitcnt vmcnt(0)")
        e("v_cmp_ne_u32 vcc, 1, v212"); e("s_cbranch_vccz L_gook")
        tmo("L_gol"); e("s_branch L_gook")
    ool.append(goslow)
    e(f"s_lshl_b32 s{T0}, s{SIDX}, 7"); e(f"s_cmp_eq_u32 s{SW}, 0"); e(f"s_cselect_b32 s{T0}, s{T0}, {OOR}")
    e("s_barrier")
    e("s_mov_b64 exec, 1"); e(f"buffer_store_dword v{vVal}, off, {SRD}, s{T0} sc1"); e("s_mov_b64 exec, -1"); vq.add("fa")
    stamp(14)
    if o.bpre != 2: raw2()
    if o.bpre != 1: raw1(P_BW1, RAW1B, "rb")
    e(f"s_and_b32 s{T3}, s{SW}, 1"); e(f"s_lshr_b32 s{T4}, s{SW}, 1")
    mask64(mM0, 0x0001000100010001); mask64(mG0, 0xFFFF0000FFFF0000); mask64(mG1, 0xFFFFFFFF00000000)
    mask64(mOWN0, sum(1 << l for l in range(64) if 4*(l >> 4) + (l & 1) <= (l & 15)))
    mask64(mOWN1, sum(1 << l for l in range(64) if 4*(l >> 4) + 2 + (l & 1) <= (l & 15)))
    e(f"s_lshl_b32 s{T1}, s{T6}, 7"); e(f"s_add_u32 s{sFXc}, s{T1}, {WS_FLAGX}")
    e(f"s_lshl_b32 s{T2}, s{SMEM}, 2"); e(f"s_add_u32 s{T1}, s{T1}, s{T2}"); e(f"s_add_u32 s{sFOp}, s{T1}, {WS_FLAGO}")
    e(f"s_lshl_b32 s{T1}, s{SRB}, 1"); e(f"s_add_u32 s{T1}, s{T1}, s{T4}"); e(f"s_lshl_b32 s{T1}, s{T1}, 7")
    e(f"s_add_u32 s{sFOc}, s{T1}, {WS_FLAGO}")
    e(f"s_lshl_b32 s{T2}, s{SCB}, 3"); e(f"s_lshl_b32 s{T0}, s{T3}, 2")
    e(f"s_add_u32 s{T1}, s{T1}, s{T2}"); e(f"s_add_u32 s{T1}, s{T1}, s{T0}"); e(f"s_add_u32 s{sFXp}, s{T1}, {WS_FLAGX}")
    e(f"s_lshl_b32 s{T0}, s{SGRP}, 8"); e(f"s_add_u32 s{sCL1}, s{T0}, s{sZP}")
    e(f"s_lshl_b32 s{T1}, s{T3}, 10"); e(f"s_lshl_b32 s{T2}, s{T4}, 19")
    e(f"s_add_u32 s{T1}, s{T1}, s{T2}"); e(f"s_add_u32 s{sCL2}, s{T1}, s{sHALO}")
    e(f"s_lshl_b32 s{T1}, s{SIDX}, 2"); e(f"s_add_u32 s{T1}, s{T1}, {WS_FLAGB}"); e(f"s_cmp_eq_u32 s{SW}, 0"); e(f"s_cselect_b32 s{sFBp}, s{T1}, {OOR}")
    e(f"s_mul_i32 s{sL14}, s{SW}, 14336"); e(f"s_lshl_b32 s{sW2l}, s{SW}, 13")
    e(f"s_mov_b32 s{sW1}, {WS_W1A}"); e(f"s_mov_b32 s{sW2}, {WS_W2A}"); e(f"s_mov_b32 s{sCSL}, 0"); e(f"s_mov_b32 s{sCK}, {CK_A}")
    e(f"s_or_b32 s{T0}, s{SGRP}, s{SW}"); e(f"s_cmp_eq_u32 s{T0}, 0"); e(f"s_cselect_b64 {sm(mFIRST)}, -1, 0")
    e(f"v_add_u32 v{vL64}, 0x10000, v{vL16}"); e(f"v_add_u32 v{vL128}, 0x20000, v{vL16}")
    e(f"v_and_b32 v{vFP}, 31, v254"); e(f"v_lshlrev_b32 v{vFP}, 2, v{vFP}")
    e(f"s_lshl_b32 s{T1}, s{T6}, 17"); e(f"v_add_u32 v{vA}, s{T1}, v{vL16}")
    for i in range(1, 4): e(f"v_add_u32 v{vA+i}, {i*0x8000}, v{vA}")
    e(f"s_lshl_b32 s{T1}, s{T6}, 9"); e("v_lshrrev_b32 v213, 5, v254"); e(f"v_lshl_add_u32 v{vSTl}, v213, 17, s{T1}"); e(f"v_lshl_add_u32 v{vSTl}, v{vFP}, 2, v{vSTl}")
    e(f"s_lshl_b32 s{T1}, s{SCB}, 17"); e(f"s_add_u32 s{T1}, s{T1}, s{sLW}"); e(f"v_add_u32 v{vW2}, s{T1}, v{vL16}")
    e("v_lshrrev_b32 v203, 4, v254"); e("v_xor_b32 v204, v203, v201"); e("v_lshlrev_b32 v204, 3, v204"); e("v_lshl_add_u32 v208, v200, 5, v204")
    e(f"s_lshl_b32 s{T2}, s{SW}, 12")
    e(f"v_lshrrev_b32 v204, 2, v{VM}"); e("v_xor_b32 v203, v203, v204"); e("v_lshlrev_b32 v203, 3, v203")
    e(f"v_lshl_add_u32 v203, v{VM}, 5, v203"); e(f"v_add_u32 v{vXW}, s{T2}, v203")
    e(f"v_add_u32 v{vVo}, s{T2}, v208")
    e(f"s_add_u32 s{T0}, s{T2}, {VB_LDS - 1024}"); e(f"s_cmp_eq_u32 s{SW}, 0"); e(f"s_cselect_b32 s{T0}, {M_HV}, s{T0}"); e(f"v_add_u32 v{vVp}, s{T0}, v208")
    e(f"s_lshl_b32 s{T0}, s{T4}, 14"); e(f"s_lshl_b32 s{T1}, s{T3}, 9"); e(f"s_add_u32 s{T2}, s{T0}, s{T1}"); e(f"v_add_u32 v{vE0}, s{T2}, v208")
    e(f"s_lshl_b32 s{T1}, s{T3}, 3")
    e(f"v_add_u32 v{vGM}, {M}, v{vG16}")
    e(f"s_lshl_b32 s{T0}, s{T4}, 6"); e(f"s_add_u32 s{T0}, s{T0}, s{T1}"); e(f"v_add_u32 v{vZW}, s{T0}, v{vGM}")
    e("v_lshlrev_b32 v203, 4, v204"); e("v_lshl_add_u32 v203, v201, 1, v203")
    e("v_lshl_add_u32 v203, v213, 6, v203"); e("v_bfe_u32 v204, v254, 4, 1"); e("v_lshl_add_u32 v203, v204, 3, v203")
    e(f"s_lshl_b32 s{T0}, s{SW}, 7"); e(f"s_add_u32 s{T0}, s{T0}, {M_RS}"); e(f"v_add_u32 v{vRSW}, s{T0}, v203")
    e(f"s_lshl_b32 s{T0}, s{SW}, 10"); e(f"s_add_u32 s{T0}, s{T0}, {M_KX}"); e(f"v_add_u32 v{vKX}, s{T0}, v{vL16}")
    e(f"s_lshl_b32 s{T0}, s{SW}, 9"); e(f"s_add_u32 s{T0}, s{T0}, {M_ST}")
    e(f"v_lshl_add_u32 v203, v213, 3, s{T0}"); e(f"v_lshl_add_u32 v{vSW}, v{vFP}, 2, v203"); e(f"v_lshl_add_u32 v{vSR}, v{VM}, 3, s{T0}")
    e(f"v_and_b32 v203, 7, v{VM}"); e(f"v_lshl_add_u32 v{vZL}, v203, 8, v{vG16}")
    e("v_mov_b32 v203, 0xffff"); e("v_mov_b32 v204, 0xffff0000"); e(f"v_cndmask_b32 v203, v203, v204, {sm(mPAR)}")
    e(f"v_cndmask_b32 v{MO0}, 0, v203, {sm(mOWN0)}"); e(f"v_cndmask_b32 v{MO1}, 0, v203, {sm(mOWN1)}")
    e(f"v_xor_b32 v{MP0}, v203, v{MO0}"); e(f"v_xor_b32 v{MP1}, v203, v{MO1}")
    for fb in range(2):
        for t in range(2):
            e(f"ds_read_b64_tr_b16 {v(PHI+4*fb+2*t,2)}, v205 offset:{fb*32 + t*256}")
    for r in range(4): e(f"v_mov_b32 v{FBV+r}, -1")
    e(f"v_mov_b32 v{vVal}, 0"); e(f"s_add_u32 s{T0}, s{sKV}, s{ROTA}")
    e(f"buffer_store_dwordx4 {v(FBV,4)}, v{vL16}, {SRD}, s{T0} offen sc1")
    e(f"s_mov_b64 exec, {sm(mM0)}"); e(f"buffer_store_dwordx4 {v(FBV,4)}, v{vG16}, {SRD}, s{sCL1} offen sc1")
    e("s_mov_b64 exec, 1"); e(f"buffer_store_dword v{vVal}, off, {SRD}, s{sFOp} sc1"); e(f"buffer_store_dword v{vVal}, off, {SRD}, s{sFXp} sc1"); e("s_mov_b64 exec, -1")
    for i in range(4): vq.add("st")
    e(f"s_cmp_eq_u32 s{SW}, 0"); e(f"s_cselect_b32 s{T5}, 0, {OOR}")
    E(vq.wait("rb"))
    stamp(44)
    pl = ["v_mov_b32 v212, 0", "s_mov_b32 exec_hi, 0xff", f"buffer_atomic_or v212, v211, {SRD}, s{T5} offen sc0 sc1", "s_mov_b64 exec, -1"] if o.apoll else \
         [f"buffer_load_dword v212, v211, {SRD}, s{T5} offen sc1"]
    E(pl); vq.add("poll")
    for wt in range(2):
        for b_ in range(2):
            for t in range(2):
                d_ = v(224+4*b_+2*t, 2) if wt == 0 else a(HW2+4*b_+2*t, 2)
                e(f"ds_read_b64_tr_b16 {d_}, v206 offset:{2*SLOT + wt*2048 + t*256 + b_*8}")
    e("s_waitcnt lgkmcnt(0)")
    for b_ in range(2): e(f"buffer_store_dwordx4 {v(224+4*b_,4)}, v{vL16}, {SRD}, s{sW2s} offen offset:{b_*1024} sc1"); vq.add("st")
    retile1(SLOT, RB, a(HCS,4), False)
    stamp(45)
    E(vq.wait("poll"))
    e(f"s_cmp_lg_u32 s{SW}, 0"); e("s_cbranch_scc1 L_faok")
    e(f"s_mov_b32 s{sTMO}, 0")
    A.label("L_fal")
    e("s_mov_b32 exec_hi, 0xff"); e("v_cmp_eq_u32 vcc, 0, v212"); e("s_mov_b64 exec, -1"); e("s_cbranch_vccz L_fad")
    E(pl); e("s_waitcnt vmcnt(0)")
    tmo("L_fal")
    A.label("L_fad")
    e(f"v_cmp_ne_u32 {sm(T1)}, s{SXCC}, v212"); e(f"v_mov_b32 v212, s{T1}")
    e(f"ds_write_b32 v{vGM}, v212"); e("s_waitcnt lgkmcnt(0)")
    A.label("L_faok")
    e("s_barrier")
    stamp(15)
    e(f"ds_read_b32 v212, v{vGM}")
    for i in range(6): E(w1_piece(1, i))
    e("s_waitcnt lgkmcnt(0)")
    e(f"v_readfirstlane_b32 s{SMODE}, v212")
    e("s_branch L_g1rd")

    A.label("L_g1pre")
    e("s_waitcnt lgkmcnt(0)"); e("s_barrier")
    A.label("L_g1rd")
    lq = Q("lgkmcnt", 15)
    def wdst(step, c):
        if c < 2 and step >= 32 - ND: return a(WQ + 8*(step - (32-ND)) + 4*c, 4)
        return v(WFV + 4*c, 4)
    def w1rd(step, c):
        lq.add(("W", step, c))
        return ldsrd(wdst(step, c), ((step//4 + 1) % 6)*SLOT + (step % 4)*6144 + c*1024)
    for c in range(6): e(w1rd(0, c))
    e(f"s_cmp_eq_u32 s{SLAY}, 0"); e("s_cbranch_scc1 L_g1")
    poll_ge(vFP, sFXc, SLAY, FBV)
    A.label("L_g1")
    stamp(0)
    vq.clear()
    for i in range(6): vq.add(("W", 1))
    def aload(step, i):
        d = RING + 16*(step % AD) + 4*i
        vq.add(("A", step))
        return [f"buffer_load_dwordx4 {a(d,4)}, v{vA+i}, {SRD}, s{ROTA + step//4} offen offset:{(step%4)*1024} sc1"]
    anext = [(st, i) for st in range(32) for i in range(4)]
    for j in range(4*o.APRE): E(aload(*anext.pop(0)))
    pend = [("W", st, i) for st in range(2, 8) for i in range(6)] + [("W2", p, i) for p in range(3) for i in range(6)]
    def allowed(p, step):
        if p[0] == "W": return p[1] < 6 or step >= 4*(p[1]-5) + 3
        return step >= max(4*(p[1]+3) + 3, o.w2start)
    misc = []
    for j in range(8):
        misc.append((2*j, ("S", j), [f"s_mov_b32 s{T0}, {WS_ST + j*16384}"], f"buffer_load_dwordx4 {v(160+4*j,4)}, v{vSTl}, {SRD}, s{T0} offen sc1"))
    if o.touch: misc.append((o.tstep0, "T", [], f"buffer_load_dword v{vJUNK}, v{vTCH}, {SRD}, 0 offen sc1"))
    sh = []
    def S(step, *ins): sh.append((step, lambda ins=ins: list(ins)))
    oq = []
    def once(step, name, body, nl=1):
        def f():
            ins = body()
            def blk():
                A.label(f"L_{name}"); e("s_nop 1"); E(ins); e(f"s_branch L_{name}_r")
            ool.append(blk)
            return [f"s_cmp_lt_u32 s{SLAY}, {nl}", f"s_cbranch_scc1 L_{name}", f"L_{name}_r:"]
        oq.append((step, f))
    def G(tag, ins):
        def f(): vq.add(tag, ghost=True); return ins
        return f
    dlast = -1
    once(o.cs0, "csl", G("CS", cs_load(224)), nl=2)
    def b_csp():
        lq.add("csw", ghost=True)
        return vq.wait("CS", keep=True) + cs_proc(224)
    once(o.cs0 + 5, "csp", b_csp, nl=2)
    def b_set():
        assert cdone[0]
        return [f"v_mov_b32 v{vVal}, 1", "s_mov_b64 exec, 1", f"buffer_store_dword v{vVal}, off, {SRD}, s{sFBp} sc1", "s_mov_b64 exec, -1"]
    cdone = [False]
    def fb_ld(off): return [f"s_mov_b32 s{T1}, {WS_FLAGB + off}", f"buffer_load_dwordx4 {v(FBV,4)}, v{vL16}, {SRD}, s{T1} offen sc1"]
    def fb_chk(name):
        return vq.wait("F", keep=True) + [f"s_mov_b32 s{sTMO}, 0", f"L_{name}_l:",
            f"v_and_b32 v{FBV}, v{FBV}, v{FBV+1}", f"v_and_b32 v{FBV+2}, v{FBV+2}, v{FBV+3}", f"v_and_b32 v{FBV}, v{FBV}, v{FBV+2}",
            f"v_cmp_ne_u32 vcc, 1, v{FBV}", f"s_cbranch_vccz L_{name}_r",
            f"buffer_load_dwordx4 {v(FBV,4)}, v{vL16}, {SRD}, s{T1} offen sc1", "s_waitcnt vmcnt(0)",
            f"s_add_u32 s{sTMO}, s{sTMO}, 1", f"s_cmp_lt_u32 s{sTMO}, 0x100000", f"s_cbranch_scc1 L_{name}_l"]
    once(4, "fbset", b_set)
    once(18, "fbld", G("F", fb_ld(0)))
    once(23, "fbchk", lambda: fb_chk("fbchk"))
    fbs = 13
    assert o.w2start > min(fbs + 10, 31)
    oq.sort(key=lambda x: x[0])
    first = True
    for st in (16, 8, 4):
        for r in range(0, st, 2):
            ins = [f"v_add_f32 v{160+r}, v{160+r}, v{160+r+st}", f"v_add_f32 v{161+r}, v{161+r}, v{161+r+st}"]
            if first: sh.append((17, lambda ins=ins: vq.wait(("S", 7)) + ins)); first = False
            else: S(17, *ins)
    S(17, "s_nop 0"); S(17, "v_permlane32_swap_b32 v160, v162"); S(17, "v_permlane32_swap_b32 v161, v163")
    S(17, "v_add_f32 v160, v160, v162", "v_add_f32 v161, v161, v163")
    S(17, f"v_mul_f32 v163, {f32hex(-1.0/1024)}, v160", f"v_mul_f32 v161, {f32hex(1.0/1024)}, v161")
    S(17, "v_fma_f32 v161, -v163, v163, v161", "v_max_f32 v161, 0, v161")
    S(17, f"v_add_f32 v161, {f32hex(1e-5)}, v161", f"v_add_u32 v{CI}, s{sCSL}, v{vGM}")
    S(17, "v_rsq_f32 v162, v161")
    def L(tag, ins):
        def f(): lq.add(tag); return [ins]
        sh.append((17, f))
    L("sw", f"ds_write_b64 v{vSW}, v[162:163]")
    for i in range(4): L("st", f"ds_read_b64 {v(STP+2*i,2)}, v{vSR} offset:{i*128}")
    for c in range(6): L("cs", f"ds_read_b128 {v(CSR+4*c,4)}, v{CI} offset:{M_CS-M+c*64}")
    fix = None
    credit = 0.0
    for step in range(32):
        stage = step // 4
        deferred = step >= 32 - ND
        cs_ = range(2, 6) if deferred else range(6)
        ng = len(cs_)
        assert not anext or anext[0][0] > step
        E(vq.wait(("A", step)))
        if o.g1prof and step == 0: stamp(2, 1)
        if step % 4 == 3 and stage < 7:
            assert not any(p[0] == "W" and p[1] <= stage+1 for p in pend)
            E(vq.wait(("W", stage+1))); e("s_barrier")
            if o.g1prof: stamp(3 + stage, 1)
            if step > dlast and "C" not in vq.q: cdone[0] = True
            if step == 15: assert "csw" in lq.seen and "csw" not in lq.q
        plan = []
        na = 0
        while len(plan) < ng and na < len(anext) and anext[na][0] <= step + o.LA and na < (4 if anext[na][0] >= step + o.APRE else 6):
            plan.append("A"); na += 1
        credit = min(credit + (o.wrate if (pend and pend[0][0] == "W") else o.w2rate) / 100.0, max(3.0, o.w2rate/100.0))
        nw = 0
        while len(plan) < ng and nw < len(pend) and allowed(pend[nw], step) and credit >= 1:
            plan.append("W"); nw += 1; credit -= 1
        nm = 0
        while len(plan) < ng and nm < len(misc) and misc[nm][0] <= step:
            plan.append("M"); nm += 1
        while len(plan) < ng and na < len(anext) and anext[na][0] <= step + o.LA:
            plan.append("A"); na += 1
        oth = [p for p in plan if p != "A"]; aa = [p for p in plan if p == "A"]; plan = []
        while oth or aa:
            if aa: plan.append(aa.pop())
            if aa and len(aa) >= 2*len(oth): plan.append(aa.pop())
            if oth: plan.append(oth.pop(0))
        a0 = RING + 16*(step % AD)
        for gi, c in enumerate(cs_):
            vm = None
            order = range(4) if c % 2 == 0 else reversed(range(4))
            for p, i in enumerate(order):
                if p == 0: E(lq.wait(("W", step, c)))
                e(f"{MF} {v(acc(c,i),4)}, {wdst(step,c)}, {a(a0+4*i,4)}, {'0' if step == 0 else v(acc(c,i),4)}")
                busy = False
                if p == 0 and gi < len(plan):
                    k = plan[gi]
                    if k == "A": vm = lambda: aload(*anext.pop(0))
                    elif k == "W":
                        pc = pend.pop(0); ins = w1_piece(pc[1], pc[2]) if pc[0] == "W" else w2_piece(pc[1], pc[2])
                        E(ins[:-1]); busy = len(ins) > 1
                        vm = lambda pc=pc, ins=ins: (vq.add((pc[0], pc[1]), ghost=ins[-1].startswith("s_nop")), ins[-1:])[1]
                    else:
                        mi = misc.pop(0); E(mi[2]); busy = len(mi[2]) > 0
                        vm = lambda mi=mi: (vq.add(mi[1], ghost=o.x_nost), ["s_nop 0" if o.x_nost else mi[3]])[1]
                if p == 1 and vm: E(vm()); busy = True
                if p == 3:
                    busy = True
                    if step < 31: e(w1rd(step+1, c))
                if p == 2 and step < 31 and step + 1 >= 32 - ND and deferred and gi < 2:
                    e(w1rd(step+1, gi)); busy = True
                if not busy and p == 2 and oq and oq[0][0] <= step:
                    E(oq.pop(0)[1]()); busy = True
                if not busy:
                    if sh and sh[0][0] <= step: E(sh.pop(0)[1]())
                    elif not sh:
                        if fix is None:
                            E(lq.wait("cs"))
                            fix = {cc: [f"v_fmac_f32 v{acc(cc,ii)+j}, v{CSR+4*cc+j}, v{STP+2*ii+1}" for ii in range(4) for j in range(4)] for cc in range(6)}
                            fix["ci"] = [f"v_mul_f32 v{CI+ii}, s{sCK}, v{STP+2*ii}" for ii in range(4)]
                        lst = list(cs_)
                        cand = [lst[(gi + ng//2) % ng]] + ([0, 1] if deferred and step > 32 - ND else []) + ["ci"]
                        for cc in cand:
                            if fix[cc]:
                                E(fix[cc][:2]); fix[cc] = fix[cc][2:]; break
    assert not anext and not misc and not sh and not oq and all(p[0] == "W2" for p in pend), (pend, anext, misc, len(sh))
    left = [w2_piece(p[1], p[2]) for p in pend]
    assert all(not x for x in fix.values()), {k: len(x) for k, x in fix.items()}
    e("s_waitcnt lgkmcnt(0)"); e("s_barrier")
    stamp(1)
    e(f"s_bitcmp1_b32 s{SLAY}, 0"); e("s_cbranch_scc1 L_epiB")
    qm = [f"{MF} {v(acc(c,i),4)}, {wdst(step,c)}, {a(RING+16*(step%AD)+4*i,4)}, {v(acc(c,i),4)}"
          for step in range(32-ND, 32) for c in range(2) for i in (range(4) if c == 0 else reversed(range(4)))]

    def xw(r, kb, ad=vXW): return f"ds_write2st64_b64 v{ad}, {v(r,2)}, {v(r+2,2)} offset0:{2*kb} offset1:{2*kb+1}"
    def ostore(i, r, wt=False):
        if o.oall or wt: e(f"buffer_store_dwordx4 {v(r,4)}, v{vA+i}, {SRD}, s{sO} offen sc1")
        else: st_mode([f"buffer_store_dwordx4 {v(r,4)}, v{vA+i}, {SRD}, s{sO} offen {['', '', 'nt', 'sc0', 'sc0 nt'][o.osc]}"], T6)
    def omode():
        e(f"s_cmp_eq_u32 s{SLAY}, 0"); e(f"s_cselect_b32 s{T6}, {0 if o.osc else 1}, s{SMODE}")
        if o.o4sc: e(f"s_cmp_eq_u32 s{SLAY}, 3"); e(f"s_cselect_b32 s{T6}, 1, s{T6}")
    lates = [w2_late(i) for i in range(14)]

    def feat_head(c0, F, tmp, hook=None):
        for i in range(5):
            if i < 4: cvt4(F+4*i, acc(c0,i), acc(c0+1,i))
            if i > 0:
                for fb in range(2): e(f"{MF} {v(acc(c0+fb,i-1),4)}, {v(PHI+4*fb,4)}, {v(F+4*(i-1),4)}, 0")
        MX, MN = tmp, tmp+4
        for i in range(4):
            p0, p1 = acc(c0,i), acc(c0+1,i)
            for op, op2, d in (("v_max3_f32", "v_max_f32", MX+i), ("v_min3_f32", "v_min_f32", MN+i)):
                e(f"{op} v{d}, v{p0}, v{p0+1}, v{p0+2}"); e(f"{op} v{d}, v{d}, v{p0+3}, v{p1}")
                e(f"{op} v{d}, v{d}, v{p1+1}, v{p1+2}"); e(f"{op2} v{d}, v{d}, v{p1+3}")
        if hook: hook()
        xreduce([("v_max_f32", [MX, MX+1, MX+2, MX+3]), ("v_min_f32", [MN, MN+1, MN+2, MN+3])])
        for i in range(4):
            e(f"v_mul_f32 v{MX+i}, -v{MX+i}, v{CI+i}"); e(f"v_mul_f32 v{MN+i}, v{MN+i}, v{CI+i}")
        for i in range(4):
            for fb in range(2):
                for h in range(2):
                    pk_fma(224+8*i+4*fb+2*h, acc(c0+fb,i)+2*h, CI+i, ('b', MX+i))
                    pk_fma(acc(c0+fb,i)+2*h, acc(c0+fb,i)+2*h, CI+i, ('b', MN+i), negx=True)
    def exps(c0, i):
        for r in range(8): e(f"v_exp_f32 v{224+8*i+r}, v{224+8*i+r}")
        for fb in range(2):
            for r in range(4): e(f"v_exp_f32 v{acc(c0+fb,i)+r}, v{acc(c0+fb,i)+r}")
    def first_only(ins):
        l = A.new("fo")
        def blk():
            A.label(l); E(ins); e(f"s_branch {l}_r")
        ool.append(blk)
        return [f"s_cmp_eq_u32 s{SLAY}, 0", f"s_cbranch_scc1 {l}", l + "_r:"]
    dl = [[f"s_add_u32 s{T2}, s{ROTW}, {WS_W1B}", f"s_add_u32 s{T4}, s{T2}, 4096", w1st(RB, 0, T2, T4)]] + [[w1st(RB, b_, T2, T4)] for b_ in range(1, 6)]
    dl += [[f"s_add_u32 s{T1}, s{sW2s}, {WS_W2B - WS_W2A}", f"buffer_store_dwordx4 {a(HW2,4)}, v{vL16}, {SRD}, s{T1} offen sc1"],
           [f"buffer_store_dwordx4 {a(HW2+4,4)}, v{vL16}, {SRD}, s{T1} offen offset:1024 sc1", f"s_add_u32 s{T1}, s{sCL0}, {CS_SZ}"] + csst(a(HCS,4), vOut, T1),
           [f"v_accvgpr_write_b32 a{252+r}, -1" for r in range(4)] + [f"buffer_store_dwordx4 a[252:255], v{vL16}, {SRD}, s{sCL2} offen sc1"],
           [f"s_add_u32 s{T1}, s{sKV}, s{ROTA}", f"s_add_u32 s{T1}, s{T1}, 0x100000", f"buffer_store_dwordx4 a[252:255], v{vL16}, {SRD}, s{T1} offen sc1",
            f"s_add_u32 s{T1}, s{sCL1}, 0x10000", f"s_mov_b64 exec, {sm(mM0)}", f"buffer_store_dwordx4 a[252:255], v{vG16}, {SRD}, s{T1} offen sc1", "s_mov_b64 exec, -1"]]
    dl = [sum(dl[j_:j_+o.dmerge], []) if j_ % o.dmerge == 0 else None for j_ in range(len(dl))]
    mix = []
    for j_ in range(max(len(left), len(dl))):
        mix.append((left[j_] if j_ < len(left) else []) + (first_only(dl[j_]) if j_ < len(dl) and dl[j_] else []))
    A.bgset(mix, o.aper, o.aper)
    feat_head(2, 192, 208)
    def vpart(i):
        e(f"v_rcp_f32 v{176+2*i}, v{acc(2,i)}"); e(f"v_rcp_f32 v{177+2*i}, v{acc(3,i)}")
        e(f"v_mul_f32 v{208+2*i}, v{176+2*i}, v{STP+2*i}"); e(f"v_mul_f32 v{209+2*i}, v{177+2*i}, v{STP+2*i}")
        e(f"v_cvt_pk_bf16_f32 v{216+i}, v{176+2*i}, v{177+2*i}")
        for b in range(2):
            for h in range(2): pk_mul(acc(2+b,i)+2*h, acc(4+b,i)+2*h, 208+2*i)
        cvt4(228+8*i, acc(2,i), acc(3,i))
        e(xw(228+8*i, 32+i))
        for b in range(2):
            for h in range(2): pk_mul(acc(4+b,i)+2*h, acc(4+b,i)+2*h, 209+2*i)
        cvt4(192+4*i, acc(4,i), acc(5,i))
        e(xw(192+4*i, 48+i))
    for i in range(4):
        exps(2, i)
        if 0 < i < 3: vpart(i-1)
        cvt4(192+4*i, 224+8*i, 224+8*i+4)
        cvt4(224+8*i, acc(2,i), acc(3,i))
        e(xw(192+4*i, i))
        e(f"{MF} {v(acc(2,i),4)}, {v(ONES,4)}, {v(192+4*i,4)}, 0")
        e(f"{MF} {v(acc(3,i),4)}, {v(ONES,4)}, {v(224+8*i,4)}, 0")
        e(xw(224+8*i, 16+i))
    vpart(2); vpart(3)
    A.bgflush()
    e(f"v_cndmask_b32 v216, v216, v217, {sm(mG0)}"); e(f"v_cndmask_b32 v218, v218, v219, {sm(mG0)}"); e(f"v_cndmask_b32 v216, v216, v218, {sm(mG1)}")
    e(f"ds_write_b16 v{vRSW}, v216"); e(f"ds_write_b16_d16_hi v{vRSW}, v216 offset:512")
    e(f"s_add_u32 s{T2}, s{sKV}, s{ROTA}")
    e(f"s_lshl_b32 s{T4}, s{SGRP}, 8"); e(f"s_add_u32 s{T4}, s{T4}, s{sZP}")
    e(f"s_lshr_b32 s{T0}, s{SW}, 1"); e(f"s_lshl_b32 s{T0}, s{T0}, 9")
    e("s_waitcnt lgkmcnt(0)")
    e(f"v_xor_b32 v{vE1}, 512, v{vE0}"); e(f"v_add_u32 v{vRSR}, s{T0}, v{vGM}")
    e("s_barrier")
    stamp(2)
    def kvreads(p):
        b = 96 + 16*(p % 4); r = []
        for t in range(2):
            r += [f"ds_read_b64_tr_b16 {v(b+2*t,2)}, v{vE0} offset:{(2*p+t)*1024}", f"ds_read_b64_tr_b16 {v(b+8+2*t,2)}, v{vE0} offset:{32768 + (2*p+t)*1024}"]
        for t in range(2): r += [f"ds_read_b64_tr_b16 {v(b+4+2*t,2)}, v{vE1} offset:{(2*p+t)*1024}"]
        return r + [f"ds_read_b128 {v(b+12,4)}, v{vRSR} offset:{M_RS-M + p*64}"]
    qa = list(qm)
    E(kvreads(0)); E(kvreads(1))
    for j in range(4): e(qa.pop(0))
    for p in range(8):
        e(f"s_waitcnt lgkmcnt({7 if p < 7 else 0})")
        b = 96 + 16*(p % 4)
        rd = kvreads(p+2) if p + 2 < 8 else []
        e(f"{MF} v[168:171], {v(b,4)}, {v(b+8,4)}, {'0' if p == 0 else 'v[168:171]'}"); E(rd[0:3])
        e(f"{MF} v[172:175], {v(b+4,4)}, {v(b+8,4)}, {'0' if p == 0 else 'v[172:175]'}"); E(rd[3:5])
        e(f"{MF} v[200:203], {v(b,4)}, {v(b+12,4)}, {'0' if p == 0 else 'v[200:203]'}"); E(rd[5:7])
    for j in range(2): e(qa.pop(0))
    e("s_barrier")
    for j in range(2): e(qa.pop(0))
    cv = cvt4l(192, 168, 172)
    E(cv[:2]); e(qa.pop(0)); E(cv[2:]); e(qa.pop(0))
    e(f"buffer_store_dwordx4 v[192:195], v{vL16}, {SRD}, s{T2} offen sc1"); e(qa.pop(0))
    e(f"s_mov_b64 exec, {sm(mM0)}")
    e(f"buffer_store_dwordx4 v[200:203], v{vG16}, {SRD}, s{T4} offen sc1")
    e("s_mov_b64 exec, -1")
    stamp(3)
    A.bgset(lates[:o.alate], o.aper2, 0)
    while qa: e(qa.pop(0))
    def g1(p): return [f"s_add_u32 s{T0}, s{sKV}, s{ROTA+1+p}", f"buffer_load_dwordx4 {v(96+4*p,4)}, v{vL16}, {SRD}, s{T0} offen sc1"]
    gz = f"buffer_load_dwordx4 v[192:195], v{vZL}, {SRD}, s{sZP} offen sc1"
    gbase = [0]
    def gather():
        A.bgflush()
        for p in range(7): E(g1(p))
        e(gz)
        gbase[0] = A.bgn
        A.bgset(lates[o.alate:], o.aper2, 0)
    if o.gpos == 0: gather()
    feat_head(0, 204, 196, gather if o.gpos == 1 else None)
    if o.gpos == 2: gather()
    def qnorm(i):
        sq = 152 if i % 2 == 0 else 176
        e(f"v_rcp_f32 v{184+2*i}, v{sq}"); e(f"v_rcp_f32 v{185+2*i}, v{sq+4}")
        for r in range(0, 8, 2): pk_mul(224+8*i+r, 224+8*i+r, 184+2*i)
        for fb in range(2):
            for h in range(2): pk_mul(acc(fb,i)+2*h, acc(fb,i)+2*h, 185+2*i)
        cvt4(204+4*i, 224+8*i, 224+8*i+4); cvt4(136+4*i, acc(0,i), acc(1,i))
    for i in range(4):
        exps(0, i)
        if i > 0: qnorm(i-1)
        sq = 152 if i % 2 == 0 else 176
        cvt4(204+4*i, 224+8*i, 224+8*i+4); cvt4(136+4*i, acc(0,i), acc(1,i))
        e(f"{MF} {v(sq,4)}, {v(ONES,4)}, {v(204+4*i,4)}, 0"); e(f"{MF} {v(sq+4,4)}, {v(ONES,4)}, {v(136+4*i,4)}, 0")
    e(f"s_andn2_b64 {sm(T1)}, {sm(mDIAG)}, {sm(mB1)}"); e(f"s_and_b64 {sm(T3)}, {sm(mDIAG)}, {sm(mB1)}")
    e(f"v_or_b32 v128, v{MO0}, v{MP0}"); e(f"v_and_b32 v128, v128, v{ONES}")
    e(f"v_cndmask_b32 v130, 0, v128, {sm(T1)}"); e(f"v_cndmask_b32 v131, 0, v128, {sm(T3)}")
    for r in (128, 129, 132, 133): e(f"v_mov_b32 v{r}, 0")
    e(f"v_and_b32 v200, 8, v{vZW}"); e(f"v_add_u32 v200, v200, v{vKX}"); e("v_xor_b32 v201, 8, v200")
    qnorm(3)
    A.bgflush()
    nafter = A.bgn - gbase[0]
    omode()
    stamp(4)
    e(f"s_mov_b32 s{sTMO}, 0")
    for p in range(8):
        r0 = 96+4*p if p < 7 else 192
        e(f"s_waitcnt vmcnt({7-p+nafter})")
        A.label(f"L_kvc{p}")
        e(f"v_cmp_eq_u32 vcc, -1, v{r0}"); e(f"s_cbranch_vccnz L_kvs{p}")
        A.label(f"L_kvo{p}")
        if p < 7:
            e(f"{MF} v[168:171], v[130:133], {v(r0,4)}, v[168:171]"); e(f"{MF} v[172:175], v[128:131], {v(r0,4)}, v[172:175]")
        def kvslow(p=p):
            A.label(f"L_kvs{p}")
            e(f"s_add_u32 s{sTMO}, s{sTMO}, 1"); e(f"s_cmp_ge_u32 s{sTMO}, 0x100000"); e(f"s_cbranch_scc1 L_kvo{p}")
            e(f"s_waitcnt vmcnt({nafter})")
            for p2 in range(p, 7):
                if p2 > p:
                    e(f"v_cmp_eq_u32 vcc, -1, v{96+4*p2}"); e(f"s_cbranch_vccz L_kvn{p}_{p2}")
                E(g1(p2))
                if p2 > p: A.label(f"L_kvn{p}_{p2}")
            e(gz); e("s_waitcnt vmcnt(0)"); e(f"s_branch L_kvc{p}")
        ool.append(kvslow)
    for sh_ in (4, 2, 1):
        for r in range(4): e(f"v_add_f32_dpp v{192+r}, v{192+r}, v{192+r} row_ror:{sh_} row_mask:0xf bank_mask:0xf")
        if sh_ == 2:
            cvt4(196, 168, 172)
            e("ds_write_b64 v200, v[196:197]"); e("ds_write_b64 v201, v[198:199]")
    e("v_cvt_pk_bf16_f32 v192, v192, v193"); e("v_cvt_pk_bf16_f32 v193, v194, v195")
    e(f"s_mov_b64 exec, {sm(mM0)}")
    e(f"ds_write_b64 v{vZW}, v[192:193] offset:{M_ZF-M}")
    e("s_mov_b64 exec, -1")
    e("s_waitcnt lgkmcnt(0)"); e("s_barrier")
    stamp(5)
    for t in range(2): e(f"ds_read_b128 {v(184+4*t,4)}, v{vGM} offset:{M_ZF-M + t*64}")
    for j in range(4): e(ldsrd(v(168+4*j,4), M_KX + j*1024))
    e(f"s_add_u32 s{sKV}, s{sKV}, 0x100000"); e(f"s_add_u32 s{sZP}, s{sZP}, 0x10000")
    e("s_waitcnt lgkmcnt(4)")
    for t in range(2):
        for i in range(4):
            e(f"{MF} {v(64+4*i,4)}, {v(184+4*t,4)}, {v((204 if t == 0 else 136)+4*i,4)}, {'0' if t == 0 else v(64+4*i,4)}")
    e("s_waitcnt lgkmcnt(0)")
    def fin(i):
        r = [f"v_mul_f32 v{96+8*i+j}, v{96+8*i+j}, v{64+4*i}" for j in range(8)] + cvt4l(224+4*i, 96+8*i, 100+8*i)
        return [r[j:j+3] for j in range(0, 12, 3)]
    sc = [[f"v_add_f32 v{64+4*i}, {f32hex(1e-6)}, v{64+4*i}", f"v_rcp_f32 v{64+4*i}, v{64+4*i}"] for i in range(4)]
    fills = {0: [[], [], [], []], 1: sc, 2: fin(0), 3: fin(1)}
    for i in range(4):
        n = 0
        for t in range(2):
            for db in range(2):
                d = v(96+8*i+4*db, 4)
                e(f"{MF} {d}, {v(168+8*t+4*db,4)}, {v((204 if t == 0 else 136)+4*i,4)}, {'0' if t == 0 else d}")
                E(fills[i][n]); n += 1
        if i >= 2: ostore(i-2, 224+4*(i-2), o.oa)
    for i in (2, 3):
        for r in range(0, 8, 2): pk_mul(96+8*i+r, 96+8*i+r, 64+4*i)
        cvt4(224+4*i, 96+8*i, 100+8*i)
        ostore(i, 224+4*i, o.oa)
    e("s_branch L_g2")

    A.label("L_epiB")
    fl = []
    for i in (3, 2, 1, 0):
        for c0, F in ((2, 192), (4, 224)):
            ms = [f"v_mul_f32 v{acc(c,i)+j}, v{acc(c,i)+j}, v{STP+2*i}" for c in (c0, c0+1) for j in range(4)]
            ms += cvt4l(F+4*i, acc(c0,i), acc(c0+1,i))
            fl += [ms[j:j+2] for j in range(0, 12, 2)]
            if i == 3: fl.append([f"buffer_store_dwordx4 {v(F+12,4)}, v{vL16}, {SRD}, s{T0} offen offset:{(c0-2)*512} sc1"])
        if i == 3: fl.append([f"ds_write_b128 v{vKX}, v[204:207] offset:1024"])
        fl.append([xw(224+4*i, VB_LDS//1024 + i)])
    fl.append(["s_waitcnt lgkmcnt(0)", "s_barrier"])
    fl.append([f"ds_read_b128 v[208:211], v{vKX}"])
    for db in range(2):
        rd = [f"ds_read_b64_tr_b16 {v(96+10*db,2)}, v{vVp} offset:{db*512}"]
        rd += [f"ds_read_b64_tr_b16 {v(98+10*db+2*i,2)}, v{vVo} offset:{VB_LDS + i*1024 + db*512}" for i in range(4)]
        fl += [rd[:3], rd[3:]]
    e(f"s_cmp_eq_u32 s{SW}, 3"); e(f"s_cselect_b32 s{T0}, s{sHALO}, {OOR}")
    e(f"s_sub_u32 s{T1}, s{sHALO}, 0x10000"); e(f"s_cmp_eq_u32 s{SW}, 0"); e(f"s_cselect_b32 s{T1}, s{T1}, {OOR}")
    e(f"s_cmp_eq_u32 s{SGRP}, 0"); e(f"s_cselect_b32 s{T1}, {OOR}, s{T1}")
    e(f"s_add_u32 s{sHALO}, s{sHALO}, 0x80000")
    omode()
    qb = list(qm); late = list(left) + lates
    n = 0
    while qb or fl:
        if n < 14 and n % 2: pass
        elif qb: e(qb.pop(0))
        n += 1
        if n % o.brate == 0 and n > 14 and late and qb: E(late.pop(0))
        elif fl: E(fl.pop(0))
    stamp(2)
    A.bgset(late, o.bper, 0)
    for i in (3, 2, 1, 0):
        cvt4(240+4*i, acc(0,i), acc(1,i))
        if i < 3:
            e(f"{MF} {v(136+8*i,4)}, {v(196+4*i,4)}, {v(244+4*i,4)}, 0"); e(f"{MF} {v(140+8*i,4)}, {v(192+4*i,4)}, {v(244+4*i,4)}, 0")
    e(f"{MF} v[128:131], v[192:195], v[240:243], 0")
    def sel(i):
        b = 128+8*i
        for r in range(0, 8, 2): e(f"v_cndmask_b32 v{b+r}, v{b+r}, v{b+r+1}, {sm(mPAR)}")
        if i == 0:
            e(f"v_cndmask_b32 v{b+4}, v{b+4}, v217, {sm(mFIRST)}"); e(f"v_cndmask_b32 v{b+6}, v{b+6}, v217, {sm(mFIRST)}")
        e(f"v_cndmask_b32 v{116+2*i}, v{b+4}, v{b}, {sm(mOWN0)}")
        e(f"v_cndmask_b32 v{117+2*i}, v{b+6}, v{b+2}, {sm(mOWN1)}")
        e(f"v_max_f32 v{124+i}, v{116+2*i}, v{117+2*i}")
    def soft(blks):
        for i in blks:
            e(f"v_sub_f32 v{116+2*i}, v{116+2*i}, v{124+i}"); e(f"v_sub_f32 v{117+2*i}, v{117+2*i}, v{124+i}")
        for i in blks: pk_mul(116+2*i, 116+2*i, CI+i)
        for i in blks: e(f"v_exp_f32 v{116+2*i}, v{116+2*i}"); e(f"v_exp_f32 v{117+2*i}, v{117+2*i}")
        for i in blks:
            for r in (116+2*i, 117+2*i): e(f"v_cvt_pk_bf16_f32 v{r}, v{r}, v{r}")
        e("s_waitcnt lgkmcnt(0)")
        for i in blks:
            e(f"v_and_b32 v{192+4*i}, v{116+2*i}, v{MP0}"); e(f"v_and_b32 v{193+4*i}, v{117+2*i}, v{MP1}")
            e(f"v_and_b32 v{194+4*i}, v{116+2*i}, v{MO0}"); e(f"v_and_b32 v{195+4*i}, v{117+2*i}, v{MO1}")
        for i in blks:
            e(f"{MF} {v(176+4*i,4)}, {v(ONES,4)}, {v(192+4*i,4)}, 0")
            for db in range(2): e(f"{MF} {v(128+8*i+4*db,4)}, {v(96+10*db+2*i,4)}, {v(192+4*i,4)}, 0")
    def norm(i):
        e(f"v_rcp_f32 v{176+4*i}, v{176+4*i}")
        for r in range(0, 8, 2): pk_mul(128+8*i+r, 128+8*i+r, 176+4*i)
        cvt4(224+4*i, 128+8*i, 132+8*i)
        ostore(i, 224+4*i)
    hl = [f"buffer_load_dwordx4 v[168:171], v{vL16}, {SRD}, s{T1} offen sc1", f"buffer_load_dwordx4 v[172:175], v{vL16}, {SRD}, s{T1} offen offset:1024 sc1"]
    for i in (3, 2, 1): sel(i)
    if o.hpos == 0: E(hl); hb = A.bgn
    xreduce([("v_max_f32", [124, 125, 126, 127])])
    if o.hpos == 1: E(hl); hb = A.bgn
    soft((3, 2, 1))
    e(f"v_mov_b32 v217, {f32hex(-3.0e38)}")
    norm(3); norm(2)
    e(f"s_cmp_eq_u32 s{SW}, 0"); e("s_cbranch_scc1 L_halo")
    A.label("L_halod")
    def halo(n=A.bgn - hb + 2):
        A.label("L_halo")
        e(f"s_mov_b32 s{sTMO}, 0"); e(f"v_add_u32 v216, {M_HV}, v{vXW}"); e(f"s_waitcnt vmcnt({n})")
        A.label("L_halop")
        e("v_max_u32 v218, v168, v172"); e("v_cmp_eq_u32 vcc, -1, v218"); e("s_cbranch_vccz L_halow")
        E(hl); e("s_waitcnt vmcnt(0)")
        tmo("L_halop")
        A.label("L_halow")
        e(xw(172, 0, 216))
        for db in range(2): e(f"ds_read_b64_tr_b16 {v(96+10*db,2)}, v{vVp} offset:{db*512}")
        for r in range(4): e(f"v_mov_b32 v{208+r}, v{168+r}")
        e("s_nop 1"); e("s_branch L_halod")
    ool.append(halo)
    e(f"{MF} v[132:135], v[208:211], v[240:243], 0")
    A.bgflush()
    norm(1)
    sel(0)
    e("v_mov_b32 v125, v124"); e("v_permlane32_swap_b32 v124, v125"); e("v_max_f32 v124, v124, v125")
    e("v_mov_b32 v125, v124"); e("v_permlane16_swap_b32 v124, v125"); e("v_max_f32 v124, v124, v125")
    soft((0,))
    norm(0)

    A.label("L_g2")
    stamp(6)
    for i in range(2):
        for kk in range(2):
            for r in range(4):
                d = acc2(2*kk + (r >> 1), i) + 2*(r & 1); x = RES+8*i+4*kk+r
                e(f"v_lshlrev_b32 v{d}, 16, v{x}"); e(f"v_and_b32 v{d+1}, 0xffff0000, v{x}")
    e(f"s_add_u32 s{T6}, s{SLAY}, 1"); e(f"v_mov_b32 v{vVal}, s{T6}")
    e(f"s_xor_b32 s{sW1}, s{sW1}, {WS_W1A ^ WS_W1B}"); e(f"s_xor_b32 s{sW2}, s{sW2}, {WS_W2A ^ WS_W2B}")
    e(f"s_xor_b32 s{sCSL}, s{sCSL}, 384"); e(f"s_xor_b32 s{sCK}, s{sCK}, {int(CK_A,16) ^ int(CK_B,16)}")
    e(f"s_cmp_eq_u32 s{SLAY}, {o.last}"); e(f"s_cselect_b32 s{sW1}, {OOR}, s{sW1}")
    e("s_waitcnt vmcnt(0)")
    e("s_mov_b64 exec, 1")
    st_mode([f"buffer_store_dword v{vVal}, off, {SRD}, s{sFOp}"])
    e("s_mov_b64 exec, -1")
    e("s_barrier")
    E(first_only(["s_mov_b64 exec, 1", f"buffer_store_dword v{vVal}, off, {SRD}, s{sFBp} offset:1024 sc1", "s_mov_b64 exec, -1"]))
    stamp(7)
    lq.clear(); vq.clear()
    W2F = RING; AF2 = RING + 32; GD = o.g2depth
    def w2rd(step, b):
        lq.add(("W", step, b))
        ad = (step*4096 if step < 14 else 3*SLOT + (step-14)*4096) + b*1024
        return ldsrd(a(W2F + 16*(step % 2) + 4*b, 4), ad)
    for st in range(2):
        for b in range(4): e(w2rd(st, b))
    if o.ntouch:
        e(f"v_lshrrev_b32 v{FBV+1}, {4 + {4: 4, 8: 3, 2: 5}[o.tl]}, v{vL16}"); e(f"v_lshlrev_b32 v{FBV+1}, 7, v{FBV+1}"); e(f"v_sub_u32 v{FBV+2}, v{vW1}, v{vL16}"); e(f"v_add_u32 v{FBV+1}, v{FBV+1}, v{FBV+2}")
    poll_ge(vFP, sFOc, T6, FBV)
    stamp(8)
    def bload(step, i):
        d = AF2 + 8*(step % GD) + 4*i; r = []
        if i == 0 and step % 4 == 0:
            if o.x_rot2: r += [f"s_lshl_b32 s{sAo}, s{SCB}, {11 + o.x_rot2}", f"s_add_u32 s{sAo}, s{sAo}, {step*1024}", f"s_and_b32 s{sAo}, s{sAo}, 0x7000", f"s_add_u32 s{sAo}, s{sAo}, {WS_O}"]
            else: r.append(f"s_mov_b32 s{sAo}, {WS_O + step*1024}")
        vq.add(("A", step))
        return r + [f"buffer_load_dwordx4 {a(d,4)}, v{vB+i}, {SRD}, s{sAo} offen offset:{(step%4)*1024} sc1"]
    bn = [(st, i) for st in range(32) for i in range(2)]
    for j in range(2*min(o.g2pre, GD-1)): E(bload(*bn.pop(0)))
    w1n = list(range(6))
    tl = [(2+j, h_) for j in range(o.ntouch) for h_ in range(48//o.tl)]
    tsteps = {((2*o.t0 + j*o.tstep)//2, 1 + 2*((j*o.tstep) % 2)): t_ for j, t_ in enumerate(tl)}
    assert all(k[0] < 32 for k in tsteps)
    for step in range(32):
        E(vq.wait(("A", step)))
        if step == 18: e("s_barrier")
        if step == 13: once(0, "fb2ld", G("F", fb_ld(1024))); E(oq.pop()[1]())
        if step == 33 - GD: once(0, "fb2chk", lambda: fb_chk("fb2chk")); E(oq.pop()[1]())
        a0 = AF2 + 8*(step % GD)
        for b in range(4):
            E(lq.wait(("W", step, b)))
            for p, i in enumerate(range(2) if b % 2 == 0 else (1, 0)):
                e(f"{MF} {v(acc2(b,i),4)}, {a(W2F+16*(step%2)+4*b,4)}, {a(a0+4*i,4)}, {v(acc2(b,i),4)}")
                if p == 0:
                    if bn and bn[0][0] <= step + GD - 1 and (b % 2 == 0 or bn[0][0] < step + GD - 1): E(bload(*bn.pop(0)))
                    elif not bn and w1n and (b % o.g2w == 0) and step >= 33 - GD:
                        E(w1_piece(1, w1n.pop(0))); vq.add("W")
            if step + 2 < 32: e(w2rd(step+2, b))
            if b % 2 == 1 and (step, b) in tsteps:
                ts, th = tsteps[(step, b)]
                off = th*128*o.tl
                if off % 4096 == 0 or th == 0:
                    e(f"s_add_u32 s{T0}, s{sW1}, s{ROTW+ts}")
                    if off: e(f"s_add_u32 s{T0}, s{T0}, 4096")
                e(f"buffer_load_dword v{FBV}, v{FBV+1}, {SRD}, s{T0} offen offset:{off % 4096}"); vq.add("T")
            if step == 19 and b == 3:
                la, ld = A.new("resA"), A.new("resd")
                e(f"s_bitcmp1_b32 s{SLAY}, 0"); e(f"s_cbranch_scc1 {la}")
                for blk in range(6): e(f"ds_write_b128 v{vLW}, {a(RB+4*blk,4)} offset:{SLOT + blk*1024}"); lq.add("rw")
                A.label(ld)
                def resA(la=la, ld=ld):
                    A.label(la)
                    for blk in range(6): e(f"ds_write_b128 v{vLW}, {a(RA+4*blk,4)} offset:{SLOT + blk*1024}")
                    e(f"s_branch {ld}")
                ool.append(resA)
    assert not w1n
    stamp(9)
    for kk in range(2):
        for i in range(2): cvt4(RES+8*i+4*kk, acc2(2*kk,i), acc2(2*kk+1,i))
    e(f"s_cmp_eq_u32 s{SLAY}, {o.last}"); e("s_cbranch_scc1 L_final")
    xtile(RES, 160, o.xall)
    e("s_waitcnt vmcnt(0)")
    e("s_mov_b64 exec, 1")
    st_mode([f"buffer_store_dword v{vVal}, off, {SRD}, s{sFXp}"])
    e("s_mov_b64 exec, -1")
    stamp(10)
    e(f"s_add_u32 s{SLAY}, s{SLAY}, 1")
    e("s_branch L_g1pre")
    A.label("L_final")
    e(f"v_bfe_u32 v200, v{vL16}, 4, 4"); e(f"v_and_b32 v201, 0x70, v{vL16}"); e(f"v_xor_b32 v201, v201, v{vG16}")
    e("v_lshl_add_u32 v200, v200, 7, v201"); e(f"v_add_u32 v200, s{sLW}, v200"); e("v_xor_b32 v201, 64, v200")
    for i in range(2):
        for kk in range(2): e(f"ds_write_b128 v{200+kk}, {v(RES+8*i+4*kk,4)} offset:{i*2048}")
    for j in range(4): e(f"ds_read_b128 {v(64+4*j,4)}, v{vLW} offset:{j*1024}")
    srt(P_OUT, 0x400000)
    e(f"v_lshrrev_b32 v200, 7, v{vL16}"); e(f"v_and_b32 v201, 0x70, v{vL16}"); e("v_lshlrev_b32 v202, 4, v200"); e("v_xor_b32 v201, v201, v202")
    e("v_lshl_add_u32 v200, v200, 11, v201")
    e(f"s_lshl_b32 s{T0}, s{SRB}, 2"); e(f"s_add_u32 s{T0}, s{T0}, s{SW}"); e(f"s_lshl_b32 s{T0}, s{T0}, 16"); e(f"s_lshl_b32 s{T1}, s{SCB}, 7"); e(f"s_add_u32 s{T0}, s{T0}, s{T1}")
    for j in range(4):
        e(f"s_waitcnt lgkmcnt({3-j})")
        e(f"buffer_store_dwordx4 {v(64+4*j,4)}, v200, {SRT}, s{T0} offen {['', 'sc1', 'nt', 'sc0 sc1'][o.outsc]}")
        if j < 3: e(f"s_add_u32 s{T0}, s{T0}, 16384")
    if o.stamps:
        e("s_waitcnt vmcnt(0)")
        stamp(11)
        e(f"s_lshl_b32 s{T0}, s{SIDX}, 2"); e(f"s_add_u32 s{T0}, s{T0}, s{SW}")
        e(f"s_lshl_b32 s{T0}, s{T0}, 8"); e(f"s_add_u32 s{T0}, s{T0}, {WS_STAMPS}")
        e(f"v_lshrrev_b32 v200, 2, v{vL16}")
        e(f"buffer_store_dword v{vSTAMP}, v200, {SRD}, s{T0} offen")
        if o.echo_a >= 0:
            e(f"v_readlane_b32 s{T1}, v{vSTAMP}, {o.echo_a}"); e(f"v_readlane_b32 s{T2}, v{vSTAMP}, {o.echo_b}"); e(f"v_readlane_b32 s{T3}, v{vSTAMP}, 59")
            e(f"s_sub_u32 s{T2}, s{T2}, s{T1}"); e(f"s_min_u32 s{T2}, s{T2}, 20000")
            A.label("L_echo")
            e(f"s_memrealtime s[{sSTAMP}:{sSTAMP+1}]"); e("s_waitcnt lgkmcnt(0)")
            e(f"s_sub_u32 s{T4}, s{sSTAMP}, s{T3}"); e(f"s_cmp_lt_u32 s{T4}, s{T2}"); e("s_cbranch_scc1 L_echo")
        if o.dbgout:
            e(f"s_lshl_b32 s{T0}, s{SIDX}, 2"); e(f"s_add_u32 s{T0}, s{T0}, s{SW}"); e(f"s_cmp_lg_u32 s{T0}, {o.dbgout}"); e("s_cbranch_scc1 L_nodbg")
            srt(P_DBG, 256)
            e(f"v_readlane_b32 s{T1}, v{vSTAMP}, 12")
            for j, idx in enumerate((28, 13, 31, 14, 15, 1, 5, 8, 9, 17, 25, 33, 41, 49, 59)):
                e(f"v_readlane_b32 s{T2}, v{vSTAMP}, {idx}"); e(f"s_sub_u32 s{T2}, s{T2}, s{T1}"); e(f"v_mov_b32 v201, s{T2}")
                e(f"buffer_store_dword v201, off, {SRT}, 0 offset:{4+4*j}")
            A.label("L_nodbg")
    e("s_endpgm")
    for blk in ool: blk()
    A.label("L_codeend")
    e("s_endpgm")
    A.raw('.section .rodata,"a"'); A.raw(".p2align 6"); A.raw(f".amdhsa_kernel {KNAME}")
    for t in ("next_free_vgpr 512", "next_free_sgpr 102", "accum_offset 256", "group_segment_fixed_size 0", "kernarg_size 80",
              "user_sgpr_count 2", "user_sgpr_kernarg_segment_ptr 1", "system_sgpr_workgroup_id_x 1"):
        A.raw("  .amdhsa_" + t)
    A.raw(".end_amdhsa_kernel")
    return A.text()

if __name__ == "__main__":
    o = Opts()
    out = sys.argv[1]
    for kv in sys.argv[2:]:
        k, val = kv.split("=")
        setattr(o, k, int(val))
    open(out, "w").write(gen(o))
```

```python
import sys, struct
from asmlib import *

KNAME = "interleave_layers__linear_kernel_hedgehog__sliding_local_dilated__prompt_kernel"

WS_FLAGA = 0x0000000
WS_FLAGB = 0x0008000
WS_FLAGO = 0x0009000
WS_FLAGX = 0x000A000
WS_CS    = 0x0010000
CS_SZ    = 393216
WS_ST    = 0x0100000
WS_ZP    = 0x0140000
WS_STAMPS= 0x0180000
WS_HALO  = 0x0200000
WS_KVP   = 0x0400000
WS_W1A   = 0x0800000
WS_W1B   = 0x0E00000
WS_W2A   = 0x1400000
WS_W2B   = 0x1600000
WS_X     = 0x1800000
WS_X0    = WS_X
WS_O     = 0x1C00000
WS_SIZE  = 0x2000000
OOR      = 0x40000000

SLOT = 24576
M      = 147456
M_MODE = M
M_CS   = M + 64
M_ST   = M + 1024
M_RS   = M + 3072
M_KX   = M + 4096
M_HV   = M + 9216
M_ZF   = M + 10240
M_PHI  = M + 11264
LDS_SIZE = 163840
VB_LDS = 57344
RAW1A, RAW1B, RAW2 = 3*SLOT, 4*SLOT, 5*SLOT

SRD = "s[4:7]"; SRT = "s[8:11]"
SW, SGRP, SMEM, SMODE, SLAY, SCB, SRB = 12, 13, 14, 15, 16, 17, 18
T0, T1, T2, T3, T4, T5, T6, T7 = 19, 20, 21, 22, 23, 24, 25, 26
SIDX, sCK, SXCC = 27, 28, 29
sFOc, sFOp, sFXc, sFXp = 30, 31, 32, 33
sO, sXs = 34, 35
mPAR, mB1, mDIAG, mM0, mOWN0, mOWN1, mM1, mFIRST = 36, 38, 40, 42, 44, 46, 48, 50
sW1, sW2, sCSL, sFBp, sSTs, sLW, sKV, sZP, sHALO, sTMO, sAo, sWo = 52, 53, 54, 55, 56, 57, 58, 59, 60, 61, 62, 63
P_AX, P_AW1, P_PHI, P_AW2, P_BX, P_BW1, P_BW2, P_OUT, P_DBG, P_WS = 64, 66, 68, 70, 72, 74, 76, 78, 80, 82
sCL0, sCL1, sCL2, sL14, sW2l = 72, 73, 3, 2, 0
sW2s = 68
mG0, mG1 = 64, 66
sSTAMP = 84
ROTA, ROTW = 86, 94

vL16, vL64, vL128 = 1, 2, 3
vA = 4; vB = 8; vW1 = 10; vW2 = 11; vFP = 12; vSTl = 13; vSTs = 14; vSTAMP = 15
RES = 16; PHI = 32; ONES = 40; MP0, MP1, MO0, MO1 = 44, 45, 46, 47
vE1, vRSR = 204, 205
vXW, vE0, vTCH, vRSW, vJUNK, vVo, vVp, vKX, vGM, vZW, vSW, vSR, vG16, vOut, vZL, vVal = range(48, 64)
vLW = 0
ACC = 64
def acc(c, i): return ACC + 16*c + 4*i
def acc2(b, i): return ACC + 8*b + 4*i
STP = 160; CSR = 168; WFV = 192; FBV = 216; CI = 220
RA, RB, RING, HW2, HCS = 0, 24, 48, 240, 248
CPL = 9
MF = "v_mfma_f32_16x16x32_bf16"
def f32hex(x): return "0x%08x" % struct.unpack("<I", struct.pack("<f", x))[0]
CK_A = f32hex(1.4426950408889634); CK_B = f32hex(1.4426950408889634 * 32 ** -0.5)

class Opts:
    stamps = 0
    last = 3
    force_slow = 0
    ND = 8
    LA = 6
    APRE = 3
    wrate = 150
    w2rate = 300
    g2depth = 7
    brate = 5
    bfirst = 0
    bbar = 1
    bpre = 2
    wsoff = 0
    apoll = 0
    tlb = 1
    cs0 = 6
    gpos = 2
    aper = 200
    aper2 = 130
    alate = 14
    bper = 90
    hpos = 1
    osc = 0
    x_rot2 = 0
    g2pre = 9
    g2w = 2
    touch = 0
    oall = 0
    oa = 1
    dmerge = 2
    xord = 1
    xall = 0
    tstep0 = 29
    ntouch = 0
    tl = 4
    t0 = 0
    tstep = 2
    dbgout = 0
    outsc = 1
    echo_a = -1
    echo_b = -1
    x_bx = 0
    x_now1 = 0
    x_nost = 0
    x_norot = 0
    x_noa = 0
    w2start = 25
    d0 = 1
    g1prof = 0
    w1sc = 0
    dstep = 35
    x_samew = 0
    o4sc = 0
    codepf = 2

class Q:
    def __init__(self, name, mx): self.q = []; self.name = name; self.mx = mx; self.seen = set(); self.ghost = set()
    def add(self, tag, ghost=False):
        self.q.append(tag); self.seen.add(tag)
        if ghost: self.ghost.add(tag)
    def wait(self, *tags, keep=False):
        assert all(t in self.seen for t in tags), tags
        idx = max([i for i, t in enumerate(self.q) if t in tags], default=-1)
        if idx < 0: return []
        n = sum(1 for t in self.q[idx+1:] if t not in self.ghost)
        if not keep: del self.q[:idx+1]
        return [f"s_waitcnt {self.name}({min(n, self.mx)})"]
    def clear(self): self.q = []; self.seen = set(); self.ghost = set()

def gen(o):
    A = Asm(); e = A.e
    ool = []
    ND = o.ND; AD = ND
    WQ = RING + 16*AD
    assert WQ + 8*ND <= 240
    def E(lst):
        for t in lst:
            if t.endswith(":"): A.label(t[:-1])
            else: e(t)
    def stamp(name, force=0):
        if not o.stamps: return
        if o.g1prof and (name in range(2, 11)) != (force == 1) and name in range(2, 11): return
        if o.stamps == 2 and name not in (12, 11, o.echo_a % 16, o.echo_b % 16, o.echo_a, o.echo_b): return
        e(f"{'s_memtime' if o.stamps == 3 else 's_memrealtime'} s[{sSTAMP}:{sSTAMP+1}]")
        e(f"s_mov_b32 s{T7}, m0"); e(f"s_lshl_b32 m0, s{SLAY}, 4"); e(f"s_add_u32 m0, m0, {name}")
        e("s_waitcnt lgkmcnt(0)")
        e(f"v_writelane_b32 v{vSTAMP}, s{sSTAMP}, m0"); e(f"s_mov_b32 m0, s{T7}")
    def srt(p, size):
        e(f"s_mov_b32 s8, s{p}"); e(f"s_mov_b32 s9, s{p+1}"); e(f"s_mov_b32 s10, {size}"); e("s_mov_b32 s11, 0x20000")
    def mask64(r, val):
        e(f"s_mov_b32 s{r}, 0x{val & 0xffffffff:08x}"); e(f"s_mov_b32 s{r+1}, 0x{val >> 32:08x}")
    def sm(r): return f"s[{r}:{r+1}]"
    def bc(r): return (v(r & ~1, 2), r & 1)
    def pk_fma(d, x, y, z, negx=False):
        yp, ys = bc(y)
        if z[0] == 'p': zp, zl, zh = v(z[1], 2), 0, 1
        else:
            zp, zs = bc(z[1]); zl = zh = zs
        t = f"v_pk_fma_f32 {v(d,2)}, {v(x,2)}, {yp}, {zp} op_sel:[0,{ys},{zl}] op_sel_hi:[1,{ys},{zh}]"
        if negx: t += " neg_lo:[1,0,0] neg_hi:[1,0,0]"
        e(t)
    def pk_mul(d, x, y):
        yp, ys = bc(y)
        e(f"v_pk_mul_f32 {v(d,2)}, {v(x,2)}, {yp} op_sel:[0,{ys}] op_sel_hi:[1,{ys}]")
    def cvt4l(d, x0, x1):
        return [f"v_cvt_pk_bf16_f32 v{d}, v{x0}, v{x0+1}", f"v_cvt_pk_bf16_f32 v{d+1}, v{x0+2}, v{x0+3}",
                f"v_cvt_pk_bf16_f32 v{d+2}, v{x1}, v{x1+1}", f"v_cvt_pk_bf16_f32 v{d+3}, v{x1+2}, v{x1+3}"]
    def cvt4(d, x0, x1): E(cvt4l(d, x0, x1))
    def st_mode(lines, reg=SMODE):
        ls, ld = A.new("slow"), A.new("done")
        e(f"s_cmp_lg_u32 s{reg}, 0"); e(f"s_cbranch_scc1 {ls}")
        for t in lines: e(t)
        A.label(ld)
        def blk():
            A.label(ls); A.fence()
            for t in lines: e(t + (" sc1" if t.startswith("buffer_store") else ""))
            e("s_nop 7"); e(f"s_branch {ld}")
        ool.append(blk)
    def tmo(lbl, lim=0x100000):
        e(f"s_add_u32 s{sTMO}, s{sTMO}, 1"); e(f"s_cmp_lt_u32 s{sTMO}, {lim}"); e(f"s_cbranch_scc1 {lbl}")
    def poll_ge(vaddr, soff, sval, vt):
        l, d = A.new("poll"), A.new("polld")
        e(f"s_mov_b32 s{sTMO}, 0")
        A.label(l)
        e(f"buffer_load_dword v{vt}, v{vaddr}, {SRD}, s{soff} offen sc1")
        e("s_waitcnt vmcnt(0)")
        e(f"v_cmp_gt_u32 vcc, s{sval}, v{vt}")
        e(f"s_cbranch_vccz {d}")
        tmo(l)
        A.label(d)
    def xreduce(groups):
        for op, q in groups: e(f"v_permlane32_swap_b32 v{q[0]}, v{q[1]}"); e(f"v_permlane32_swap_b32 v{q[2]}, v{q[3]}")
        for op, q in groups: e(f"{op} v{q[0]}, v{q[0]}, v{q[1]}"); e(f"{op} v{q[2]}, v{q[2]}, v{q[3]}")
        for op, q in groups: e(f"v_permlane16_swap_b32 v{q[0]}, v{q[2]}")
        for op, q in groups: e(f"{op} v{q[1]}, v{q[0]}, v{q[2]}"); e(f"{op} v{q[2]}, v{q[0]}, v{q[2]}")
        for op, q in groups: e(f"v_permlane16_swap_b32 v{q[1]}, v{q[2]}")
        for op, q in groups: e(f"v_mov_b32 v{q[0]}, v{q[1]}"); e(f"v_mov_b32 v{q[3]}, v{q[2]}")
        for op, q in groups: e(f"v_permlane32_swap_b32 v{q[0]}, v{q[1]}"); e(f"v_permlane32_swap_b32 v{q[2]}, v{q[3]}")
    def xtile(R, tmp, always_sc1):
        st = [f"buffer_store_dwordx4 {v(R+8*i+4*kk,4)}, v{vB+i}, {SRD}, s{sXs} offen offset:{kk*1024}" for i in range(2) for kk in range(2)]
        mm = []
        for kk in range(2):
            for i in range(2):
                f = v(R+8*i+4*kk, 4)
                mm.append(f"{MF} {v(tmp+8*i+4,4)}, {f}, {f}, {'0' if kk == 0 else v(tmp+8*i+4,4)}")
                mm.append(f"{MF} {v(tmp+8*i,4)}, {v(ONES,4)}, {f}, {'0' if kk == 0 else v(tmp+8*i,4)}")
        if o.xord:
            st = [x for j in range(4) for x in (mm[2*j], st[j], mm[2*j+1])]
        else: E(mm)
        if always_sc1:
            for t in st: e(t + (" sc1" if t.startswith("buffer") else ""))
        else: st_mode(st)
        for i in range(2):
            g0 = tmp+8*i+4
            e(f"v_cndmask_b32 v{g0}, v{g0}, v{g0+1}, {sm(mPAR)}")
            e(f"v_cndmask_b32 v{g0+2}, v{g0+2}, v{g0+3}, {sm(mPAR)}")
            e(f"v_cndmask_b32 v{tmp+8*i+1}, v{g0}, v{g0+2}, {sm(mB1)}")
        st = [f"buffer_store_dwordx2 {v(tmp+8*i,2)}, v{vSTs}, {SRD}, s{sSTs} offen offset:{i*128}" for i in range(2)]
        e(f"s_mov_b64 exec, {sm(mDIAG)}")
        if always_sc1:
            for t in st: e(t + " sc1")
        else: st_mode(st)
        e("s_mov_b64 exec, -1")
    def w1_piece(stage, i):
        r = []
        slot = (stage + 1) % 6
        if i == 0: r += [f"s_add_u32 m0, s{sLW}, {slot*SLOT}", f"s_add_u32 s{sWo}, s{sW1}, s{ROTW+stage}"]
        if i == 4: r += [f"s_add_u32 m0, s{sLW}, {slot*SLOT + 4096}", f"s_add_u32 s{sWo}, s{sWo}, 4096"]
        if o.x_now1 and stage >= 2: return r + ["s_nop 0"]
        if o.x_samew: return r + [f"buffer_load_dwordx4 v{vLW}, {SRD}, s{sWo} offen offset:{(i%4)*1024} lds"]
        return r + [f"buffer_load_dwordx4 v{vW1}, {SRD}, s{sWo} offen offset:{(i%4)*1024} {['', 'sc1', 'sc0 sc1', 'nt', 'sc0', 'sc1 nt', 'sc0 sc1 nt'][o.w1sc]} lds"]
    def w2_piece(part, i):
        r = []
        if i % 4 == 0:
            r += [f"s_add_u32 m0, s{sLW}, {(3+part)*SLOT + (i//4)*4096}", f"s_add_u32 s{sWo}, s{sW2}, {57344 + part*SLOT + (i//4)*4096}"]
        return r + [f"buffer_load_dwordx4 v{vW2}, {SRD}, s{sWo} offen offset:{(i%4)*1024} lds"]
    def w2_late(i):
        r = []
        if i == 0: r += [f"s_add_u32 s{T5}, s{sW2}, s{sW2l}"]
        if i % 4 == 0:
            r += [f"s_add_u32 m0, s{sL14}, {(i//4)*4096}", f"s_add_u32 s{sWo}, s{T5}, {(i//4)*4096}"]
        return r + [f"buffer_load_dwordx4 v{vW2}, {SRD}, s{sWo} offen offset:{(i%4)*1024} lds"]
    def ldsrd(dst, addr):
        base = {0: vL16, 1: vL64, 2: vL128}[addr >> 16]
        return f"ds_read_b128 {dst}, v{base} offset:{addr & 0xffff}"
    def cs_load(d):
        r = [f"s_mul_i32 s{T0}, s{SMEM}, 12288", f"s_lshl_b32 s{T1}, s{sCSL}, 10", f"s_add_u32 s{T0}, s{T0}, s{T1}", f"s_add_u32 s{T0}, s{T0}, {WS_CS}",
             f"s_add_u32 s{T2}, s{SW}, 4", f"s_min_u32 s{T2}, s{T2}, 5", f"s_lshl_b32 s{T3}, s{SW}, 11", f"s_lshl_b32 s{T4}, s{T2}, 11",
             f"s_add_u32 s{T3}, s{T0}, s{T3}", f"s_add_u32 s{T4}, s{T0}, s{T4}"]
        for j in range(2):
            r += [f"buffer_load_dwordx4 {v(d+8*j,4)}, v{vL16}, {SRD}, s{T3} offen offset:{j*1024} sc1",
                  f"buffer_load_dwordx4 {v(d+8*j+4,4)}, v{vL16}, {SRD}, s{T4} offen offset:{j*1024} sc1"]
        return r
    def cs_proc(d):
        r = [f"v_add_f32 v{d+j}, v{d+j}, v{d+8+j}" for j in range(8)]
        for sh in (8, 4):
            r += [f"v_add_f32_dpp v{d+j}, v{d+j}, v{d+j} row_ror:{sh} row_mask:0xf bank_mask:0xf" for j in range(8)]
        r += [f"s_lshl_b32 s{T1}, s{SW}, 6", f"s_lshl_b32 s{T2}, s{T2}, 6"]
        r += [f"v_permlane32_swap_b32 v{d+j}, v{d+j+1}" for j in range(0, 8, 2)]
        r += [f"v_add_f32 v{d+j}, v{d+j}, v{d+j+1}" for j in range(0, 8, 2)]
        r += [f"v_and_b32 v{d+8}, 48, v{vL16}", f"v_bfe_u32 v{d+9}, v{vL16}, 8, 1", f"v_lshl_add_u32 v{d+8}, v{d+9}, 3, v{d+8}",
              f"v_permlane16_swap_b32 v{d}, v{d+2}", f"v_permlane16_swap_b32 v{d+4}, v{d+6}",
              f"v_lshrrev_b32 v{d+9}, 9, v{vL16}", f"v_lshl_add_u32 v{d+8}, v{d+9}, 2, v{d+8}", f"v_add_u32 v{d+8}, s{sCSL}, v{d+8}", f"v_add_u32 v{d+8}, {M_CS}, v{d+8}",
              f"v_add_f32 v{d}, v{d}, v{d+2}", f"v_add_f32 v{d+4}, v{d+4}, v{d+6}",
              f"v_add_u32 v{d+9}, s{T2}, v{d+8}", f"v_add_u32 v{d+8}, s{T1}, v{d+8}",
              "s_mov_b32 exec_lo, 0x000f000f", "s_mov_b32 exec_hi, 0x000f000f",
              f"ds_write_b32 v{d+8}, v{d}", f"ds_write_b32 v{d+9}, v{d+4}", "s_mov_b64 exec, -1"]
        return r

    A.raw(f"; @launch grid=(256,1,1) block=(256,1,1) lds={LDS_SIZE}")
    A.raw('.amdgcn_target "amdgcn-amd-amdhsa--gfx950"'); A.raw(".text")
    A.raw(f".globl {KNAME}"); A.raw(".p2align 8"); A.raw(f".type {KNAME},@function"); A.label(KNAME)
    if o.stamps: e("s_memrealtime s[86:87]")
    e("s_cmp_ge_u32 s2, 256"); e("s_cbranch_scc1 L_exit")
    e(f"s_getpc_b64 s[{T1}:{T1+1}]")
    if o.codepf == 2:
        e(f"s_lshr_b32 s{T0}, s2, 3"); e(f"s_mulk_i32 s{T0}, {CPL*128}"); e(f"v_min_u32 v252, {CPL-1}, v0"); e(f"v_lshl_add_u32 v252, v252, 7, s{T0}")
        e(f"global_load_dword v251, v252, s[{T1}:{T1+1}]")
    e("s_load_dwordx16 s[64:79], s[0:1], 0"); e("s_load_dwordx4 s[80:83], s[0:1], 64")
    if o.codepf == 1: e(f"s_and_b32 s{T1}, s{T1}, 0xffffff00")
    e("v_lshrrev_b32 v1, 6, v0"); e("v_and_b32 v254, 63, v0"); e(f"v_readfirstlane_b32 s{SW}, v1")
    if o.force_slow:
        e(f"s_lshr_b32 s{SGRP}, s2, 5"); e(f"s_and_b32 s{SMEM}, s2, 31")
    else:
        e(f"s_and_b32 s{SGRP}, s2, 7"); e(f"s_lshr_b32 s{SMEM}, s2, 3")
    vq = Q("vmcnt", 63)
    if o.codepf == 1:
        e(f"s_lshl_b32 s{T0}, s{SMEM}, 2"); e(f"s_add_u32 s{T0}, s{T0}, s{SW}"); e(f"s_mul_i32 s{T0}, s{T0}, 384")
        e(f"v_lshl_add_u32 v252, v254, 7, s{T0}"); e("v_min_u32 v252, L_codeend-%s-4, v252" % KNAME)
        e("s_mov_b64 exec, 7"); e(f"global_load_dword v251, v252, s[{T1}:{T1+1}]"); e("s_mov_b64 exec, -1")
    e(f"s_mov_b32 s{SLAY}, 0")
    if o.stamps:
        e(f"v_mov_b32 v{vSTAMP}, 0"); stamp(60); e("s_waitcnt lgkmcnt(0)"); e(f"v_writelane_b32 v{vSTAMP}, s86, 12"); stamp(61)
    VM = 215
    e(f"s_lshl_b32 s{SIDX}, s{SGRP}, 5"); e(f"s_add_u32 s{SIDX}, s{SIDX}, s{SMEM}")
    e(f"s_lshr_b32 s{SRB}, s{SIDX}, 4"); e(f"s_and_b32 s{SCB}, s{SIDX}, 15")
    e(f"s_mul_i32 s{sLW}, s{SW}, 6144")
    e("v_lshrrev_b32 v203, 3, v254"); e("v_and_b32 v204, 7, v254"); e("v_lshlrev_b32 v204, 4, v204"); e("v_lshl_add_u32 v210, v203, 11, v204")
    e("v_lshrrev_b32 v200, 2, v254"); e("v_and_b32 v201, 3, v254")
    e("v_mul_u32_u24 v202, 6144, v200"); e("v_lshl_add_u32 v202, v201, 4, v202")
    e(f"s_lshl_b32 s{T2}, s{SRB}, 2"); e(f"s_add_u32 s{T2}, s{T2}, s{SW}"); e(f"s_lshl_b32 s{T2}, s{T2}, 16")
    e(f"s_lshl_b32 s{T4}, s{SCB}, 7"); e(f"s_add_u32 s{T3}, s{T2}, s{T4}")
    e(f"s_lshl_b32 s{T6}, s{SGRP}, 2"); e(f"s_add_u32 s{T6}, s{T6}, s{SW}")
    e(f"s_mul_i32 s{T5}, s{T6}, {32*6144}"); e(f"s_lshl_b32 s{T4}, s{SMEM}, 6"); e(f"s_add_u32 s{T5}, s{T5}, s{T4}")
    e(f"v_lshlrev_b32 v{vL16}, 4, v254"); e(f"v_and_b32 v{vG16}, 48, v254"); e(f"v_and_b32 v{VM}, 15, v254")
    e(f"s_lshl_b32 s{T1}, s{SCB}, 11"); e(f"s_add_u32 s{sXs}, s{T1}, {WS_X}")
    e(f"s_mul_i32 s{sAo}, s{SMEM}, 196608"); e(f"s_add_u32 s{sAo}, s{sAo}, s{sLW}"); e(f"s_mul_i32 s{ROTW}, s{SGRP}, {SLOT}")
    e("s_waitcnt lgkmcnt(0)")
    if o.wsoff: e(f"s_add_u32 s{P_WS}, s{P_WS}, {o.wsoff << 20}"); e(f"s_addc_u32 s{P_WS+1}, s{P_WS+1}, 0")
    e(f"s_mov_b32 s4, s{P_WS}"); e(f"s_mov_b32 s5, s{P_WS+1}"); e(f"s_mov_b32 s6, {WS_SIZE}"); e("s_mov_b32 s7, 0x20000")
    e(f"s_or_b32 s{T0}, s{SMEM}, s{SW}"); e(f"s_cmp_eq_u32 s{T0}, 0"); e("s_cbranch_scc1 L_clr")
    A.label("L_p0a")
    srt(P_AX, 0x400000)
    for i in range(4):
        e(f"s_add_u32 m0, s{sLW}, {i*1024}"); e(f"s_add_u32 s{T0}, s{T3}, {i*16384}")
        e(f"buffer_load_dwordx4 v210, {SRT}, s{T0} offen lds"); vq.add("x")
    def touch(p, *calc):
        if o.tlb: E(list(calc)); e(f"s_load_dword s{sTMO}, s[{p}:{p+1}], s{T0}")
    touch(P_WS, f"s_add_u32 s{T0}, s{T2}, s{sXs}")
    touch(P_WS, f"s_add_u32 s{T0}, s{sAo}, s{ROTW}", f"s_add_u32 s{T0}, s{T0}, {WS_W1A}")
    touch(P_WS, f"s_mov_b32 s{T0}, 0x1f0000")
    def clr():
        A.label("L_clr")
        for r in range(4): e(f"v_mov_b32 v{204+r}, 0")
        e(f"s_lshl_b32 s{T0}, s{SGRP}, 12")
        for j in range(4): e(f"buffer_store_dwordx4 v[204:207], v{vL16}, {SRD}, s{T0} offen offset:{j*1024} sc1")
        e(f"s_lshl_b32 s{T0}, s{SGRP}, 7"); e(f"s_add_u32 s{T0}, s{T0}, {WS_FLAGB}")
        e("s_mov_b64 exec, 0xff")
        for j in range(2): e(f"buffer_store_dwordx4 v[204:207], v{vL16}, {SRD}, s{T0} offen offset:{j*1024} sc1")
        e("s_mov_b64 exec, -1")
        e("s_nop 1"); e("s_branch L_p0a")
        A.label("L_setgo")
        srt(P_DBG, 256); e("v_mov_b32 v204, 1"); e(f"s_lshl_b32 s{T0}, s{SGRP}, 5")
        e("s_waitcnt vmcnt(10)")
        e("s_mov_b64 exec, 1"); e(f"buffer_store_dword v204, off, {SRT}, s{T0} sc1"); e("s_mov_b64 exec, -1")
        e("s_branch L_p0b")
    ool.append(clr)
    def raw1(p, ldsb, tag):
        srt(p, 0x600000)
        for seg in range(3):
            for hf in range(2):
                e(f"s_add_u32 m0, s{sLW}, {ldsb + seg*2048 + hf*1024}"); e(f"s_add_u32 s{T0}, s{T5}, {seg*2048 + hf*16*6144}")
                e(f"buffer_load_dwordx4 v202, {SRT}, s{T0} offen lds"); vq.add(tag)
    raw1(P_AW1, RAW1A, "ra")
    e(f"s_or_b32 s{T0}, s{SMEM}, s{SW}"); e(f"s_cmp_eq_u32 s{T0}, 0"); e("s_cbranch_scc1 L_setgo")
    A.label("L_p0b")
    e(f"v_lshl_add_u32 v214, v{VM}, 7, v{vG16}"); e(f"v_add_u32 v214, s{sLW}, v214")
    e(f"v_add_u32 v{vB}, s{T2}, v{vL16}"); e(f"v_add_u32 v{vB+1}, 0x8000, v{vB}")
    e(f"s_lshr_b32 s{T2}, s{T2}, 8"); e(f"v_lshl_add_u32 v{vSTs}, v{VM}, 3, s{T2}")
    e(f"s_lshl_b32 s{T0}, s{SCB}, 14"); e(f"s_add_u32 s{sSTs}, s{T0}, {WS_ST}")
    mask64(mPAR, 0xAAAAAAAAAAAAAAAA); mask64(mB1, 0xCCCCCCCCCCCCCCCC); mask64(mDIAG, 0xF0000F0000F0000F)
    for r in range(4): e(f"v_mov_b32 v{ONES+r}, 0x3f803f80")
    stamp(28)
    E(vq.wait("x"))
    for i in range(2):
        for kk in range(2): e(f"ds_read_b128 {v(RES+8*i+4*kk,4)}, v214 offset:{i*2048 + kk*64}")
    e(f"v_add_u32 v{vW1}, s{sAo}, v{vL16}"); e(f"v_add_u32 v{vLW}, s{sLW}, v{vL16}")
    e("v_and_b32 v209, 3, v200"); e(f"v_lshrrev_b32 v203, 1, v{vG16}"); e("v_add_u32 v209, v209, v203")
    e("v_lshlrev_b32 v203, 6, v209"); e("v_lshl_add_u32 v205, v201, 3, v203"); e(f"v_add_u32 v205, {M_PHI}, v205")
    e("v_lshl_add_u32 v206, v201, 4, v203"); e(f"s_add_u32 s{T1}, s{sLW}, {RAW1A}"); e(f"v_add_u32 v206, s{T1}, v206")
    e(f"v_lshl_add_u32 v{vOut}, v{VM}, 11, v{vG16}")
    e("s_waitcnt lgkmcnt(0)")
    stamp(29)
    xtile(RES, 160, True)
    for i in range(6): vq.add("st")
    for blk in range(6):
        mask64(T1, 0x0001000100010001 << blk)
        for r in range(4): e(f"v_cndmask_b32 v{96+4*blk+r}, 0, v{ONES}, {sm(T1)}")
    def w1st(R, blk, sa, sb): return f"buffer_store_dwordx4 {a(R+4*blk,4)}, v{vW1}, {SRD}, s{sa if blk < 4 else sb} offen offset:{(blk%4)*1024} sc1"
    def csst(C, ad, sreg): return [f"s_mov_b32 exec_lo, 0x003f003f", "s_mov_b32 exec_hi, 0x003f003f",
                                   f"buffer_store_dwordx4 {C}, v{ad}, {SRD}, s{sreg} offen sc1", "s_mov_b64 exec, -1"]
    def retile1(rawoff, R, C, store):
        for blk in range(6):
            for t in range(2):
                e(f"ds_read_b64_tr_b16 {a(R+4*blk+2*t,2)}, v206 offset:{rawoff + (blk>>1)*2048 + t*256 + (blk&1)*8}")
        for blk in range(6):
            e(f"s_waitcnt lgkmcnt({10-2*blk})")
            if store: e(w1st(R, blk, T2, T4)); vq.add("st")
            e(f"{MF} {C}, {a(R+4*blk,4)}, {v(96+4*blk,4)}, {'0' if blk == 0 else C}")
    e(f"s_add_u32 s{T2}, s{ROTW}, {WS_W1A}"); e(f"s_add_u32 s{T4}, s{T2}, 4096")
    e(f"s_lshl_b32 s{T0}, s{T6}, 6"); e(f"s_mul_i32 s{T1}, s{SMEM}, 12288"); e(f"s_add_u32 s{T0}, s{T0}, s{T1}"); e(f"s_add_u32 s{sCL0}, s{T0}, {WS_CS}")
    E(vq.wait("ra"))
    stamp(13)
    retile1(0, RA, v(64,4), True)
    for blk in range(6): e(f"ds_write_b128 v{vLW}, {a(RA+4*blk,4)} offset:{SLOT + blk*1024}")
    E(csst(v(64,4), vOut, sCL0)); vq.add("st")
    srt(P_PHI, 0x10000)
    e(f"s_and_b32 s{T3}, s{SW}, 1"); e(f"s_lshl_b32 s{T1}, s{T3}, 10"); e(f"s_add_u32 m0, s{T1}, {M_PHI}"); e(f"s_lshl_b32 s{T2}, s{SMEM}, 11"); e(f"s_add_u32 s{T1}, s{T1}, s{T2}")
    e(f"buffer_load_dwordx4 v{vL16}, {SRT}, s{T1} offen lds"); vq.add("phi")
    srt(P_DBG, 256)
    e("v_and_b32 v253, 7, v254"); e("v_lshlrev_b32 v253, 5, v253"); e(f"s_cmp_eq_u32 s{SW}, 0"); e(f"s_cselect_b32 s{T0}, 0, {OOR}")
    e(f"buffer_load_dword v212, v253, {SRT}, s{T0} offen sc1"); vq.add("go")
    def raw2():
        e(f"s_lshl_b32 s{T0}, s{SRB}, 1"); e(f"s_and_b32 s{T1}, s{SW}, 1"); e(f"s_add_u32 s{T0}, s{T0}, s{T1}")
        e(f"s_lshl_b32 s{T1}, s{SCB}, 1"); e(f"s_lshr_b32 s{T3}, s{SW}, 1"); e(f"s_add_u32 s{T1}, s{T1}, s{T3}"); e(f"s_lshl_b32 s{T1}, s{T1}, 6")
        e(f"s_lshl_b32 s{T0}, s{T0}, 16"); e(f"s_add_u32 s{T0}, s{T0}, s{T1}"); e(f"s_add_u32 s{T1}, s{T0}, 0x8000")
        e("v_lshlrev_b32 v203, 11, v200"); e("v_lshl_add_u32 v207, v201, 4, v203")
        for wt, p in enumerate((P_AW2, P_BW2)):
            srt(p, 0x200000)
            for i in range(2):
                e(f"s_add_u32 m0, s{sLW}, {RAW2 + wt*2048 + i*1024}")
                e(f"buffer_load_dwordx4 v207, {SRT}, s{T0 + i} offen lds"); vq.add("rb")
    if o.bbar: e("s_barrier")
    if o.bpre == 1: raw1(P_BW1, RAW1B, "rb")
    if o.bpre == 2: raw2()
    stamp(30)
    e(f"s_getreg_b32 s{SXCC}, hwreg(HW_REG_XCC_ID, 0, 4)"); e(f"s_or_b32 s{SXCC}, s{SXCC}, 0x100")
    e(f"v_mov_b32 v{vVal}, s{SXCC}")
    e(f"s_and_b32 s{T3}, s{SW}, 1"); e(f"s_lshr_b32 s{T4}, s{SW}, 1")
    e(f"s_lshl_b32 s{T0}, s{SRB}, 1"); e(f"s_add_u32 s{T0}, s{T0}, s{T3}"); e(f"s_lshl_b32 s{sW2s}, s{T0}, 12"); e(f"s_lshl_b32 s{T0}, s{T4}, 11")
    e(f"s_add_u32 s{sW2s}, s{sW2s}, s{T0}"); e(f"s_lshl_b32 s{T0}, s{SCB}, 17"); e(f"s_add_u32 s{sW2s}, s{sW2s}, s{T0}"); e(f"s_add_u32 s{sW2s}, s{sW2s}, {WS_W2A}")
    e(f"s_lshl_b32 s{T1}, s{SMEM}, 15"); e(f"s_lshl_b32 s{T2}, s{SW}, 10"); e(f"s_add_u32 s{T1}, s{T1}, s{T2}"); e(f"s_add_u32 s{sKV}, s{T1}, {WS_KVP - WS_X + (1<<32)}")
    e(f"s_lshr_b32 s{T1}, s{T1}, 4"); e(f"s_add_u32 s{sZP}, s{T1}, {WS_ZP}")
    for s_ in range(8):
        e(f"s_add_u32 s{T1}, s{SGRP}, {s_}"); e(f"s_and_b32 s{T1}, s{T1}, 7")
        e(f"s_mul_i32 s{ROTW+s_}, s{T1}, {SLOT}"); e(f"s_lshl_b32 s{T1}, s{T1}, 12"); e(f"s_add_u32 s{ROTA+s_}, s{T1}, {WS_X}")
    e(f"s_lshl_b32 s{T1}, s{SIDX}, 11"); e(f"s_add_u32 s{sHALO}, s{T1}, {WS_HALO}")
    e(f"s_lshl_b32 s{T1}, s{SMEM}, 10"); e(f"s_add_u32 s{sO}, s{T1}, {WS_O}")
    touch(P_WS, f"s_mov_b32 s{T0}, s{sW2s}")
    touch(P_WS, f"s_add_u32 s{T0}, s{sKV}, s{ROTA}")
    touch(P_WS, f"s_add_u32 s{T0}, s{sW2s}, {WS_W2B - WS_W2A}")
    touch(P_WS, f"s_add_u32 s{T0}, s{sAo}, s{ROTW}", f"s_add_u32 s{T0}, s{T0}, {WS_W1B}")
    touch(P_WS, f"s_mov_b32 s{T0}, s{sHALO}")
    touch(P_WS, f"s_lshl_b32 s{T0}, s{T6}, 17", f"s_add_u32 s{T0}, s{T0}, s{sO}")
    touch(P_OUT, f"s_lshl_b32 s{T0}, s{SRB}, 18", f"s_lshl_b32 s{T1}, s{SCB}, 7", f"s_add_u32 s{T0}, s{T0}, s{T1}")
    e(f"s_lshl_b32 s{T0}, s{SGRP}, 5"); e(f"v_add_u32 v203, s{T0}, v254")
    e("v_and_b32 v204, 7, v254"); e(f"v_lshl_add_u32 v204, v204, 5, s{SMEM}")
    mask64(T1, 0x00000000FFFFFFFF); e(f"v_cndmask_b32 v211, v204, v203, {sm(T1)}"); e("v_lshlrev_b32 v211, 7, v211")
    E(vq.wait("go"))
    stamp(31)
    e(f"s_cmp_eq_u32 s{SW}, 0"); e(f"s_cselect_b32 s{T0}, 1, 0")
    e(f"v_cmp_ne_u32 vcc, s{T0}, v212"); e("s_cbranch_vccnz L_goslow")
    A.label("L_gook")
    def goslow():
        A.label("L_goslow"); srt(P_DBG, 256); e("s_waitcnt lgkmcnt(0)"); e(f"s_mov_b32 s{sTMO}, 0")
        A.label("L_gol")
        e(f"buffer_load_dword v212, v253, {SRT}, 0 offen sc1"); e("s_waitcnt vmcnt(0)")
        e("v_cmp_ne_u32 vcc, 1, v212"); e("s_cbranch_vccz L_gook")
        tmo("L_gol"); e("s_branch L_gook")
    ool.append(goslow)
    e(f"s_lshl_b32 s{T0}, s{SIDX}, 7"); e(f"s_cmp_eq_u32 s{SW}, 0"); e(f"s_cselect_b32 s{T0}, s{T0}, {OOR}")
    e("s_barrier")
    e("s_mov_b64 exec, 1"); e(f"buffer_store_dword v{vVal}, off, {SRD}, s{T0} sc1"); e("s_mov_b64 exec, -1"); vq.add("fa")
    stamp(14)
    if o.bpre != 2: raw2()
    if o.bpre != 1: raw1(P_BW1, RAW1B, "rb")
    e(f"s_and_b32 s{T3}, s{SW}, 1"); e(f"s_lshr_b32 s{T4}, s{SW}, 1")
    mask64(mM0, 0x0001000100010001); mask64(mG0, 0xFFFF0000FFFF0000); mask64(mG1, 0xFFFFFFFF00000000)
    mask64(mOWN0, sum(1 << l for l in range(64) if 4*(l >> 4) + (l & 1) <= (l & 15)))
    mask64(mOWN1, sum(1 << l for l in range(64) if 4*(l >> 4) + 2 + (l & 1) <= (l & 15)))
    e(f"s_lshl_b32 s{T1}, s{T6}, 7"); e(f"s_add_u32 s{sFXc}, s{T1}, {WS_FLAGX}")
    e(f"s_lshl_b32 s{T2}, s{SMEM}, 2"); e(f"s_add_u32 s{T1}, s{T1}, s{T2}"); e(f"s_add_u32 s{sFOp}, s{T1}, {WS_FLAGO}")
    e(f"s_lshl_b32 s{T1}, s{SRB}, 1"); e(f"s_add_u32 s{T1}, s{T1}, s{T4}"); e(f"s_lshl_b32 s{T1}, s{T1}, 7")
    e(f"s_add_u32 s{sFOc}, s{T1}, {WS_FLAGO}")
    e(f"s_lshl_b32 s{T2}, s{SCB}, 3"); e(f"s_lshl_b32 s{T0}, s{T3}, 2")
    e(f"s_add_u32 s{T1}, s{T1}, s{T2}"); e(f"s_add_u32 s{T1}, s{T1}, s{T0}"); e(f"s_add_u32 s{sFXp}, s{T1}, {WS_FLAGX}")
    e(f"s_lshl_b32 s{T0}, s{SGRP}, 8"); e(f"s_add_u32 s{sCL1}, s{T0}, s{sZP}")
    e(f"s_lshl_b32 s{T1}, s{T3}, 10"); e(f"s_lshl_b32 s{T2}, s{T4}, 19")
    e(f"s_add_u32 s{T1}, s{T1}, s{T2}"); e(f"s_add_u32 s{sCL2}, s{T1}, s{sHALO}")
    e(f"s_lshl_b32 s{T1}, s{SIDX}, 2"); e(f"s_add_u32 s{T1}, s{T1}, {WS_FLAGB}"); e(f"s_cmp_eq_u32 s{SW}, 0"); e(f"s_cselect_b32 s{sFBp}, s{T1}, {OOR}")
    e(f"s_mul_i32 s{sL14}, s{SW}, 14336"); e(f"s_lshl_b32 s{sW2l}, s{SW}, 13")
    e(f"s_mov_b32 s{sW1}, {WS_W1A}"); e(f"s_mov_b32 s{sW2}, {WS_W2A}"); e(f"s_mov_b32 s{sCSL}, 0"); e(f"s_mov_b32 s{sCK}, {CK_A}")
    e(f"s_or_b32 s{T0}, s{SGRP}, s{SW}"); e(f"s_cmp_eq_u32 s{T0}, 0"); e(f"s_cselect_b64 {sm(mFIRST)}, -1, 0")
    e(f"v_add_u32 v{vL64}, 0x10000, v{vL16}"); e(f"v_add_u32 v{vL128}, 0x20000, v{vL16}")
    e(f"v_and_b32 v{vFP}, 31, v254"); e(f"v_lshlrev_b32 v{vFP}, 2, v{vFP}")
    e(f"s_lshl_b32 s{T1}, s{T6}, 17"); e(f"v_add_u32 v{vA}, s{T1}, v{vL16}")
    for i in range(1, 4): e(f"v_add_u32 v{vA+i}, {i*0x8000}, v{vA}")
    e(f"s_lshl_b32 s{T1}, s{T6}, 9"); e("v_lshrrev_b32 v213, 5, v254"); e(f"v_lshl_add_u32 v{vSTl}, v213, 17, s{T1}"); e(f"v_lshl_add_u32 v{vSTl}, v{vFP}, 2, v{vSTl}")
    e(f"s_lshl_b32 s{T1}, s{SCB}, 17"); e(f"s_add_u32 s{T1}, s{T1}, s{sLW}"); e(f"v_add_u32 v{vW2}, s{T1}, v{vL16}")
    e("v_lshrrev_b32 v203, 4, v254"); e("v_xor_b32 v204, v203, v201"); e("v_lshlrev_b32 v204, 3, v204"); e("v_lshl_add_u32 v208, v200, 5, v204")
    e(f"s_lshl_b32 s{T2}, s{SW}, 12")
    e(f"v_lshrrev_b32 v204, 2, v{VM}"); e("v_xor_b32 v203, v203, v204"); e("v_lshlrev_b32 v203, 3, v203")
    e(f"v_lshl_add_u32 v203, v{VM}, 5, v203"); e(f"v_add_u32 v{vXW}, s{T2}, v203")
    e(f"v_add_u32 v{vVo}, s{T2}, v208")
    e(f"s_add_u32 s{T0}, s{T2}, {VB_LDS - 1024}"); e(f"s_cmp_eq_u32 s{SW}, 0"); e(f"s_cselect_b32 s{T0}, {M_HV}, s{T0}"); e(f"v_add_u32 v{vVp}, s{T0}, v208")
    e(f"s_lshl_b32 s{T0}, s{T4}, 14"); e(f"s_lshl_b32 s{T1}, s{T3}, 9"); e(f"s_add_u32 s{T2}, s{T0}, s{T1}"); e(f"v_add_u32 v{vE0}, s{T2}, v208")
    e(f"s_lshl_b32 s{T1}, s{T3}, 3")
    e(f"v_add_u32 v{vGM}, {M}, v{vG16}")
    e(f"s_lshl_b32 s{T0}, s{T4}, 6"); e(f"s_add_u32 s{T0}, s{T0}, s{T1}"); e(f"v_add_u32 v{vZW}, s{T0}, v{vGM}")
    e("v_lshlrev_b32 v203, 4, v204"); e("v_lshl_add_u32 v203, v201, 1, v203")
    e("v_lshl_add_u32 v203, v213, 6, v203"); e("v_bfe_u32 v204, v254, 4, 1"); e("v_lshl_add_u32 v203, v204, 3, v203")
    e(f"s_lshl_b32 s{T0}, s{SW}, 7"); e(f"s_add_u32 s{T0}, s{T0}, {M_RS}"); e(f"v_add_u32 v{vRSW}, s{T0}, v203")
    e(f"s_lshl_b32 s{T0}, s{SW}, 10"); e(f"s_add_u32 s{T0}, s{T0}, {M_KX}"); e(f"v_add_u32 v{vKX}, s{T0}, v{vL16}")
    e(f"s_lshl_b32 s{T0}, s{SW}, 9"); e(f"s_add_u32 s{T0}, s{T0}, {M_ST}")
    e(f"v_lshl_add_u32 v203, v213, 3, s{T0}"); e(f"v_lshl_add_u32 v{vSW}, v{vFP}, 2, v203"); e(f"v_lshl_add_u32 v{vSR}, v{VM}, 3, s{T0}")
    e(f"v_and_b32 v203, 7, v{VM}"); e(f"v_lshl_add_u32 v{vZL}, v203, 8, v{vG16}")
    e("v_mov_b32 v203, 0xffff"); e("v_mov_b32 v204, 0xffff0000"); e(f"v_cndmask_b32 v203, v203, v204, {sm(mPAR)}")
    e(f"v_cndmask_b32 v{MO0}, 0, v203, {sm(mOWN0)}"); e(f"v_cndmask_b32 v{MO1}, 0, v203, {sm(mOWN1)}")
    e(f"v_xor_b32 v{MP0}, v203, v{MO0}"); e(f"v_xor_b32 v{MP1}, v203, v{MO1}")
    for fb in range(2):
        for t in range(2):
            e(f"ds_read_b64_tr_b16 {v(PHI+4*fb+2*t,2)}, v205 offset:{fb*32 + t*256}")
    for r in range(4): e(f"v_mov_b32 v{FBV+r}, -1")
    e(f"v_mov_b32 v{vVal}, 0"); e(f"s_add_u32 s{T0}, s{sKV}, s{ROTA}")
    e(f"buffer_store_dwordx4 {v(FBV,4)}, v{vL16}, {SRD}, s{T0} offen sc1")
    e(f"s_mov_b64 exec, {sm(mM0)}"); e(f"buffer_store_dwordx4 {v(FBV,4)}, v{vG16}, {SRD}, s{sCL1} offen sc1")
    e("s_mov_b64 exec, 1"); e(f"buffer_store_dword v{vVal}, off, {SRD}, s{sFOp} sc1"); e(f"buffer_store_dword v{vVal}, off, {SRD}, s{sFXp} sc1"); e("s_mov_b64 exec, -1")
    for i in range(4): vq.add("st")
    e(f"s_cmp_eq_u32 s{SW}, 0"); e(f"s_cselect_b32 s{T5}, 0, {OOR}")
    E(vq.wait("rb"))
    stamp(44)
    pl = ["v_mov_b32 v212, 0", "s_mov_b32 exec_hi, 0xff", f"buffer_atomic_or v212, v211, {SRD}, s{T5} offen sc0 sc1", "s_mov_b64 exec, -1"] if o.apoll else \
         [f"buffer_load_dword v212, v211, {SRD}, s{T5} offen sc1"]
    E(pl); vq.add("poll")
    for wt in range(2):
        for b_ in range(2):
            for t in range(2):
                d_ = v(224+4*b_+2*t, 2) if wt == 0 else a(HW2+4*b_+2*t, 2)
                e(f"ds_read_b64_tr_b16 {d_}, v206 offset:{2*SLOT + wt*2048 + t*256 + b_*8}")
    e("s_waitcnt lgkmcnt(0)")
    for b_ in range(2): e(f"buffer_store_dwordx4 {v(224+4*b_,4)}, v{vL16}, {SRD}, s{sW2s} offen offset:{b_*1024} sc1"); vq.add("st")
    retile1(SLOT, RB, a(HCS,4), False)
    stamp(45)
    E(vq.wait("poll"))
    e(f"s_cmp_lg_u32 s{SW}, 0"); e("s_cbranch_scc1 L_faok")
    e(f"s_mov_b32 s{sTMO}, 0")
    A.label("L_fal")
    e("s_mov_b32 exec_hi, 0xff"); e("v_cmp_eq_u32 vcc, 0, v212"); e("s_mov_b64 exec, -1"); e("s_cbranch_vccz L_fad")
    E(pl); e("s_waitcnt vmcnt(0)")
    tmo("L_fal")
    A.label("L_fad")
    e(f"v_cmp_ne_u32 {sm(T1)}, s{SXCC}, v212"); e(f"v_mov_b32 v212, s{T1}")
    e(f"ds_write_b32 v{vGM}, v212"); e("s_waitcnt lgkmcnt(0)")
    A.label("L_faok")
    e("s_barrier")
    stamp(15)
    e(f"ds_read_b32 v212, v{vGM}")
    for i in range(6): E(w1_piece(1, i))
    e("s_waitcnt lgkmcnt(0)")
    e(f"v_readfirstlane_b32 s{SMODE}, v212")
    e("s_branch L_g1rd")

    A.label("L_g1pre")
    e("s_waitcnt lgkmcnt(0)"); e("s_barrier")
    A.label("L_g1rd")
    lq = Q("lgkmcnt", 15)
    def wdst(step, c):
        if c < 2 and step >= 32 - ND: return a(WQ + 8*(step - (32-ND)) + 4*c, 4)
        return v(WFV + 4*c, 4)
    def w1rd(step, c):
        lq.add(("W", step, c))
        return ldsrd(wdst(step, c), ((step//4 + 1) % 6)*SLOT + (step % 4)*6144 + c*1024)
    for c in range(6): e(w1rd(0, c))
    e(f"s_cmp_eq_u32 s{SLAY}, 0"); e("s_cbranch_scc1 L_g1")
    poll_ge(vFP, sFXc, SLAY, FBV)
    A.label("L_g1")
    stamp(0)
    vq.clear()
    for i in range(6): vq.add(("W", 1))
    def aload(step, i):
        d = RING + 16*(step % AD) + 4*i
        vq.add(("A", step))
        return [f"buffer_load_dwordx4 {a(d,4)}, v{vA+i}, {SRD}, s{ROTA + step//4} offen offset:{(step%4)*1024} sc1"]
    anext = [(st, i) for st in range(32) for i in range(4)]
    for j in range(4*o.APRE): E(aload(*anext.pop(0)))
    pend = [("W", st, i) for st in range(2, 8) for i in range(6)] + [("W2", p, i) for p in range(3) for i in range(6)]
    def allowed(p, step):
        if p[0] == "W": return p[1] < 6 or step >= 4*(p[1]-5) + 3
        return step >= max(4*(p[1]+3) + 3, o.w2start)
    misc = []
    for j in range(8):
        misc.append((2*j, ("S", j), [f"s_mov_b32 s{T0}, {WS_ST + j*16384}"], f"buffer_load_dwordx4 {v(160+4*j,4)}, v{vSTl}, {SRD}, s{T0} offen sc1"))
    if o.touch: misc.append((o.tstep0, "T", [], f"buffer_load_dword v{vJUNK}, v{vTCH}, {SRD}, 0 offen sc1"))
    sh = []
    def S(step, *ins): sh.append((step, lambda ins=ins: list(ins)))
    oq = []
    def once(step, name, body, nl=1):
        def f():
            ins = body()
            def blk():
                A.label(f"L_{name}"); e("s_nop 1"); E(ins); e(f"s_branch L_{name}_r")
            ool.append(blk)
            return [f"s_cmp_lt_u32 s{SLAY}, {nl}", f"s_cbranch_scc1 L_{name}", f"L_{name}_r:"]
        oq.append((step, f))
    def G(tag, ins):
        def f(): vq.add(tag, ghost=True); return ins
        return f
    dlast = -1
    once(o.cs0, "csl", G("CS", cs_load(224)), nl=2)
    def b_csp():
        lq.add("csw", ghost=True)
        return vq.wait("CS", keep=True) + cs_proc(224)
    once(o.cs0 + 5, "csp", b_csp, nl=2)
    def b_set():
        assert cdone[0]
        return [f"v_mov_b32 v{vVal}, 1", "s_mov_b64 exec, 1", f"buffer_store_dword v{vVal}, off, {SRD}, s{sFBp} sc1", "s_mov_b64 exec, -1"]
    cdone = [False]
    def fb_ld(off): return [f"s_mov_b32 s{T1}, {WS_FLAGB + off}", f"buffer_load_dwordx4 {v(FBV,4)}, v{vL16}, {SRD}, s{T1} offen sc1"]
    def fb_chk(name):
        return vq.wait("F", keep=True) + [f"s_mov_b32 s{sTMO}, 0", f"L_{name}_l:",
            f"v_and_b32 v{FBV}, v{FBV}, v{FBV+1}", f"v_and_b32 v{FBV+2}, v{FBV+2}, v{FBV+3}", f"v_and_b32 v{FBV}, v{FBV}, v{FBV+2}",
            f"v_cmp_ne_u32 vcc, 1, v{FBV}", f"s_cbranch_vccz L_{name}_r",
            f"buffer_load_dwordx4 {v(FBV,4)}, v{vL16}, {SRD}, s{T1} offen sc1", "s_waitcnt vmcnt(0)",
            f"s_add_u32 s{sTMO}, s{sTMO}, 1", f"s_cmp_lt_u32 s{sTMO}, 0x100000", f"s_cbranch_scc1 L_{name}_l"]
    once(4, "fbset", b_set)
    once(18, "fbld", G("F", fb_ld(0)))
    once(23, "fbchk", lambda: fb_chk("fbchk"))
    fbs = 13
    assert o.w2start > min(fbs + 10, 31)
    oq.sort(key=lambda x: x[0])
    first = True
    for st in (16, 8, 4):
        for r in range(0, st, 2):
            ins = [f"v_add_f32 v{160+r}, v{160+r}, v{160+r+st}", f"v_add_f32 v{161+r}, v{161+r}, v{161+r+st}"]
            if first: sh.append((17, lambda ins=ins: vq.wait(("S", 7)) + ins)); first = False
            else: S(17, *ins)
    S(17, "s_nop 0"); S(17, "v_permlane32_swap_b32 v160, v162"); S(17, "v_permlane32_swap_b32 v161, v163")
    S(17, "v_add_f32 v160, v160, v162", "v_add_f32 v161, v161, v163")
    S(17, f"v_mul_f32 v163, {f32hex(-1.0/1024)}, v160", f"v_mul_f32 v161, {f32hex(1.0/1024)}, v161")
    S(17, "v_fma_f32 v161, -v163, v163, v161", "v_max_f32 v161, 0, v161")
    S(17, f"v_add_f32 v161, {f32hex(1e-5)}, v161", f"v_add_u32 v{CI}, s{sCSL}, v{vGM}")
    S(17, "v_rsq_f32 v162, v161")
    def L(tag, ins):
        def f(): lq.add(tag); return [ins]
        sh.append((17, f))
    L("sw", f"ds_write_b64 v{vSW}, v[162:163]")
    for i in range(4): L("st", f"ds_read_b64 {v(STP+2*i,2)}, v{vSR} offset:{i*128}")
    for c in range(6): L("cs", f"ds_read_b128 {v(CSR+4*c,4)}, v{CI} offset:{M_CS-M+c*64}")
    fix = None
    credit = 0.0
    for step in range(32):
        stage = step // 4
        deferred = step >= 32 - ND
        cs_ = range(2, 6) if deferred else range(6)
        ng = len(cs_)
        assert not anext or anext[0][0] > step
        E(vq.wait(("A", step)))
        if o.g1prof and step == 0: stamp(2, 1)
        if step % 4 == 3 and stage < 7:
            assert not any(p[0] == "W" and p[1] <= stage+1 for p in pend)
            E(vq.wait(("W", stage+1))); e("s_barrier")
            if o.g1prof: stamp(3 + stage, 1)
            if step > dlast and "C" not in vq.q: cdone[0] = True
            if step == 15: assert "csw" in lq.seen and "csw" not in lq.q
        plan = []
        na = 0
        while len(plan) < ng and na < len(anext) and anext[na][0] <= step + o.LA and na < (4 if anext[na][0] >= step + o.APRE else 6):
            plan.append("A"); na += 1
        credit = min(credit + (o.wrate if (pend and pend[0][0] == "W") else o.w2rate) / 100.0, max(3.0, o.w2rate/100.0))
        nw = 0
        while len(plan) < ng and nw < len(pend) and allowed(pend[nw], step) and credit >= 1:
            plan.append("W"); nw += 1; credit -= 1
        nm = 0
        while len(plan) < ng and nm < len(misc) and misc[nm][0] <= step:
            plan.append("M"); nm += 1
        while len(plan) < ng and na < len(anext) and anext[na][0] <= step + o.LA:
            plan.append("A"); na += 1
        oth = [p for p in plan if p != "A"]; aa = [p for p in plan if p == "A"]; plan = []
        while oth or aa:
            if aa: plan.append(aa.pop())
            if aa and len(aa) >= 2*len(oth): plan.append(aa.pop())
            if oth: plan.append(oth.pop(0))
        a0 = RING + 16*(step % AD)
        for gi, c in enumerate(cs_):
            vm = None
            order = range(4) if c % 2 == 0 else reversed(range(4))
            for p, i in enumerate(order):
                if p == 0: E(lq.wait(("W", step, c)))
                e(f"{MF} {v(acc(c,i),4)}, {wdst(step,c)}, {a(a0+4*i,4)}, {'0' if step == 0 else v(acc(c,i),4)}")
                busy = False
                if p == 0 and gi < len(plan):
                    k = plan[gi]
                    if k == "A": vm = lambda: aload(*anext.pop(0))
                    elif k == "W":
                        pc = pend.pop(0); ins = w1_piece(pc[1], pc[2]) if pc[0] == "W" else w2_piece(pc[1], pc[2])
                        E(ins[:-1]); busy = len(ins) > 1
                        vm = lambda pc=pc, ins=ins: (vq.add((pc[0], pc[1]), ghost=ins[-1].startswith("s_nop")), ins[-1:])[1]
                    else:
                        mi = misc.pop(0); E(mi[2]); busy = len(mi[2]) > 0
                        vm = lambda mi=mi: (vq.add(mi[1], ghost=o.x_nost), ["s_nop 0" if o.x_nost else mi[3]])[1]
                if p == 1 and vm: E(vm()); busy = True
                if p == 3:
                    busy = True
                    if step < 31: e(w1rd(step+1, c))
                if p == 2 and step < 31 and step + 1 >= 32 - ND and deferred and gi < 2:
                    e(w1rd(step+1, gi)); busy = True
                if not busy and p == 2 and oq and oq[0][0] <= step:
                    E(oq.pop(0)[1]()); busy = True
                if not busy:
                    if sh and sh[0][0] <= step: E(sh.pop(0)[1]())
                    elif not sh:
                        if fix is None:
                            E(lq.wait("cs"))
                            fix = {cc: [f"v_fmac_f32 v{acc(cc,ii)+j}, v{CSR+4*cc+j}, v{STP+2*ii+1}" for ii in range(4) for j in range(4)] for cc in range(6)}
                            fix["ci"] = [f"v_mul_f32 v{CI+ii}, s{sCK}, v{STP+2*ii}" for ii in range(4)]
                        lst = list(cs_)
                        cand = [lst[(gi + ng//2) % ng]] + ([0, 1] if deferred and step > 32 - ND else []) + ["ci"]
                        for cc in cand:
                            if fix[cc]:
                                E(fix[cc][:2]); fix[cc] = fix[cc][2:]; break
    assert not anext and not misc and not sh and not oq and all(p[0] == "W2" for p in pend), (pend, anext, misc, len(sh))
    left = [w2_piece(p[1], p[2]) for p in pend]
    assert all(not x for x in fix.values()), {k: len(x) for k, x in fix.items()}
    e("s_waitcnt lgkmcnt(0)"); e("s_barrier")
    stamp(1)
    e(f"s_bitcmp1_b32 s{SLAY}, 0"); e("s_cbranch_scc1 L_epiB")
    qm = [f"{MF} {v(acc(c,i),4)}, {wdst(step,c)}, {a(RING+16*(step%AD)+4*i,4)}, {v(acc(c,i),4)}"
          for step in range(32-ND, 32) for c in range(2) for i in (range(4) if c == 0 else reversed(range(4)))]

    def xw(r, kb, ad=vXW): return f"ds_write2st64_b64 v{ad}, {v(r,2)}, {v(r+2,2)} offset0:{2*kb} offset1:{2*kb+1}"
    def ostore(i, r, wt=False):
        if o.oall or wt: e(f"buffer_store_dwordx4 {v(r,4)}, v{vA+i}, {SRD}, s{sO} offen sc1")
        else: st_mode([f"buffer_store_dwordx4 {v(r,4)}, v{vA+i}, {SRD}, s{sO} offen {['', '', 'nt', 'sc0', 'sc0 nt'][o.osc]}"], T6)
    def omode():
        e(f"s_cmp_eq_u32 s{SLAY}, 0"); e(f"s_cselect_b32 s{T6}, {0 if o.osc else 1}, s{SMODE}")
        if o.o4sc: e(f"s_cmp_eq_u32 s{SLAY}, 3"); e(f"s_cselect_b32 s{T6}, 1, s{T6}")
    lates = [w2_late(i) for i in range(14)]

    def feat_head(c0, F, tmp, hook=None):
        for i in range(5):
            if i < 4: cvt4(F+4*i, acc(c0,i), acc(c0+1,i))
            if i > 0:
                for fb in range(2): e(f"{MF} {v(acc(c0+fb,i-1),4)}, {v(PHI+4*fb,4)}, {v(F+4*(i-1),4)}, 0")
        MX, MN = tmp, tmp+4
        for i in range(4):
            p0, p1 = acc(c0,i), acc(c0+1,i)
            for op, op2, d in (("v_max3_f32", "v_max_f32", MX+i), ("v_min3_f32", "v_min_f32", MN+i)):
                e(f"{op} v{d}, v{p0}, v{p0+1}, v{p0+2}"); e(f"{op} v{d}, v{d}, v{p0+3}, v{p1}")
                e(f"{op} v{d}, v{d}, v{p1+1}, v{p1+2}"); e(f"{op2} v{d}, v{d}, v{p1+3}")
        if hook: hook()
        xreduce([("v_max_f32", [MX, MX+1, MX+2, MX+3]), ("v_min_f32", [MN, MN+1, MN+2, MN+3])])
        for i in range(4):
            e(f"v_mul_f32 v{MX+i}, -v{MX+i}, v{CI+i}"); e(f"v_mul_f32 v{MN+i}, v{MN+i}, v{CI+i}")
        for i in range(4):
            for fb in range(2):
                for h in range(2):
                    pk_fma(224+8*i+4*fb+2*h, acc(c0+fb,i)+2*h, CI+i, ('b', MX+i))
                    pk_fma(acc(c0+fb,i)+2*h, acc(c0+fb,i)+2*h, CI+i, ('b', MN+i), negx=True)
    def exps(c0, i):
        for r in range(8): e(f"v_exp_f32 v{224+8*i+r}, v{224+8*i+r}")
        for fb in range(2):
            for r in range(4): e(f"v_exp_f32 v{acc(c0+fb,i)+r}, v{acc(c0+fb,i)+r}")
    def first_only(ins):
        l = A.new("fo")
        def blk():
            A.label(l); E(ins); e(f"s_branch {l}_r")
        ool.append(blk)
        return [f"s_cmp_eq_u32 s{SLAY}, 0", f"s_cbranch_scc1 {l}", l + "_r:"]
    dl = [[f"s_add_u32 s{T2}, s{ROTW}, {WS_W1B}", f"s_add_u32 s{T4}, s{T2}, 4096", w1st(RB, 0, T2, T4)]] + [[w1st(RB, b_, T2, T4)] for b_ in range(1, 6)]
    dl += [[f"s_add_u32 s{T1}, s{sW2s}, {WS_W2B - WS_W2A}", f"buffer_store_dwordx4 {a(HW2,4)}, v{vL16}, {SRD}, s{T1} offen sc1"],
           [f"buffer_store_dwordx4 {a(HW2+4,4)}, v{vL16}, {SRD}, s{T1} offen offset:1024 sc1", f"s_add_u32 s{T1}, s{sCL0}, {CS_SZ}"] + csst(a(HCS,4), vOut, T1),
           [f"v_accvgpr_write_b32 a{252+r}, -1" for r in range(4)] + [f"buffer_store_dwordx4 a[252:255], v{vL16}, {SRD}, s{sCL2} offen sc1"],
           [f"s_add_u32 s{T1}, s{sKV}, s{ROTA}", f"s_add_u32 s{T1}, s{T1}, 0x100000", f"buffer_store_dwordx4 a[252:255], v{vL16}, {SRD}, s{T1} offen sc1",
            f"s_add_u32 s{T1}, s{sCL1}, 0x10000", f"s_mov_b64 exec, {sm(mM0)}", f"buffer_store_dwordx4 a[252:255], v{vG16}, {SRD}, s{T1} offen sc1", "s_mov_b64 exec, -1"]]
    dl = [sum(dl[j_:j_+o.dmerge], []) if j_ % o.dmerge == 0 else None for j_ in range(len(dl))]
    mix = []
    for j_ in range(max(len(left), len(dl))):
        mix.append((left[j_] if j_ < len(left) else []) + (first_only(dl[j_]) if j_ < len(dl) and dl[j_] else []))
    A.bgset(mix, o.aper, o.aper)
    feat_head(2, 192, 208)
    def vpart(i):
        e(f"v_rcp_f32 v{176+2*i}, v{acc(2,i)}"); e(f"v_rcp_f32 v{177+2*i}, v{acc(3,i)}")
        e(f"v_mul_f32 v{208+2*i}, v{176+2*i}, v{STP+2*i}"); e(f"v_mul_f32 v{209+2*i}, v{177+2*i}, v{STP+2*i}")
        e(f"v_cvt_pk_bf16_f32 v{216+i}, v{176+2*i}, v{177+2*i}")
        for b in range(2):
            for h in range(2): pk_mul(acc(2+b,i)+2*h, acc(4+b,i)+2*h, 208+2*i)
        cvt4(228+8*i, acc(2,i), acc(3,i))
        e(xw(228+8*i, 32+i))
        for b in range(2):
            for h in range(2): pk_mul(acc(4+b,i)+2*h, acc(4+b,i)+2*h, 209+2*i)
        cvt4(192+4*i, acc(4,i), acc(5,i))
        e(xw(192+4*i, 48+i))
    for i in range(4):
        exps(2, i)
        if 0 < i < 3: vpart(i-1)
        cvt4(192+4*i, 224+8*i, 224+8*i+4)
        cvt4(224+8*i, acc(2,i), acc(3,i))
        e(xw(192+4*i, i))
        e(f"{MF} {v(acc(2,i),4)}, {v(ONES,4)}, {v(192+4*i,4)}, 0")
        e(f"{MF} {v(acc(3,i),4)}, {v(ONES,4)}, {v(224+8*i,4)}, 0")
        e(xw(224+8*i, 16+i))
    vpart(2); vpart(3)
    A.bgflush()
    e(f"v_cndmask_b32 v216, v216, v217, {sm(mG0)}"); e(f"v_cndmask_b32 v218, v218, v219, {sm(mG0)}"); e(f"v_cndmask_b32 v216, v216, v218, {sm(mG1)}")
    e(f"ds_write_b16 v{vRSW}, v216"); e(f"ds_write_b16_d16_hi v{vRSW}, v216 offset:512")
    e(f"s_add_u32 s{T2}, s{sKV}, s{ROTA}")
    e(f"s_lshl_b32 s{T4}, s{SGRP}, 8"); e(f"s_add_u32 s{T4}, s{T4}, s{sZP}")
    e(f"s_lshr_b32 s{T0}, s{SW}, 1"); e(f"s_lshl_b32 s{T0}, s{T0}, 9")
    e("s_waitcnt lgkmcnt(0)")
    e(f"v_xor_b32 v{vE1}, 512, v{vE0}"); e(f"v_add_u32 v{vRSR}, s{T0}, v{vGM}")
    e("s_barrier")
    stamp(2)
    def kvreads(p):
        b = 96 + 16*(p % 4); r = []
        for t in range(2):
            r += [f"ds_read_b64_tr_b16 {v(b+2*t,2)}, v{vE0} offset:{(2*p+t)*1024}", f"ds_read_b64_tr_b16 {v(b+8+2*t,2)}, v{vE0} offset:{32768 + (2*p+t)*1024}"]
        for t in range(2): r += [f"ds_read_b64_tr_b16 {v(b+4+2*t,2)}, v{vE1} offset:{(2*p+t)*1024}"]
        return r + [f"ds_read_b128 {v(b+12,4)}, v{vRSR} offset:{M_RS-M + p*64}"]
    qa = list(qm)
    E(kvreads(0)); E(kvreads(1))
    for j in range(4): e(qa.pop(0))
    for p in range(8):
        e(f"s_waitcnt lgkmcnt({7 if p < 7 else 0})")
        b = 96 + 16*(p % 4)
        rd = kvreads(p+2) if p + 2 < 8 else []
        e(f"{MF} v[168:171], {v(b,4)}, {v(b+8,4)}, {'0' if p == 0 else 'v[168:171]'}"); E(rd[0:3])
        e(f"{MF} v[172:175], {v(b+4,4)}, {v(b+8,4)}, {'0' if p == 0 else 'v[172:175]'}"); E(rd[3:5])
        e(f"{MF} v[200:203], {v(b,4)}, {v(b+12,4)}, {'0' if p == 0 else 'v[200:203]'}"); E(rd[5:7])
    for j in range(2): e(qa.pop(0))
    e("s_barrier")
    for j in range(2): e(qa.pop(0))
    cv = cvt4l(192, 168, 172)
    E(cv[:2]); e(qa.pop(0)); E(cv[2:]); e(qa.pop(0))
    e(f"buffer_store_dwordx4 v[192:195], v{vL16}, {SRD}, s{T2} offen sc1"); e(qa.pop(0))
    e(f"s_mov_b64 exec, {sm(mM0)}")
    e(f"buffer_store_dwordx4 v[200:203], v{vG16}, {SRD}, s{T4} offen sc1")
    e("s_mov_b64 exec, -1")
    stamp(3)
    A.bgset(lates[:o.alate], o.aper2, 0)
    while qa: e(qa.pop(0))
    def g1(p): return [f"s_add_u32 s{T0}, s{sKV}, s{ROTA+1+p}", f"buffer_load_dwordx4 {v(96+4*p,4)}, v{vL16}, {SRD}, s{T0} offen sc1"]
    gz = f"buffer_load_dwordx4 v[192:195], v{vZL}, {SRD}, s{sZP} offen sc1"
    gbase = [0]
    def gather():
        A.bgflush()
        for p in range(7): E(g1(p))
        e(gz)
        gbase[0] = A.bgn
        A.bgset(lates[o.alate:], o.aper2, 0)
    if o.gpos == 0: gather()
    feat_head(0, 204, 196, gather if o.gpos == 1 else None)
    if o.gpos == 2: gather()
    def qnorm(i):
        sq = 152 if i % 2 == 0 else 176
        e(f"v_rcp_f32 v{184+2*i}, v{sq}"); e(f"v_rcp_f32 v{185+2*i}, v{sq+4}")
        for r in range(0, 8, 2): pk_mul(224+8*i+r, 224+8*i+r, 184+2*i)
        for fb in range(2):
            for h in range(2): pk_mul(acc(fb,i)+2*h, acc(fb,i)+2*h, 185+2*i)
        cvt4(204+4*i, 224+8*i, 224+8*i+4); cvt4(136+4*i, acc(0,i), acc(1,i))
    for i in range(4):
        exps(0, i)
        if i > 0: qnorm(i-1)
        sq = 152 if i % 2 == 0 else 176
        cvt4(204+4*i, 224+8*i, 224+8*i+4); cvt4(136+4*i, acc(0,i), acc(1,i))
        e(f"{MF} {v(sq,4)}, {v(ONES,4)}, {v(204+4*i,4)}, 0"); e(f"{MF} {v(sq+4,4)}, {v(ONES,4)}, {v(136+4*i,4)}, 0")
    e(f"s_andn2_b64 {sm(T1)}, {sm(mDIAG)}, {sm(mB1)}"); e(f"s_and_b64 {sm(T3)}, {sm(mDIAG)}, {sm(mB1)}")
    e(f"v_or_b32 v128, v{MO0}, v{MP0}"); e(f"v_and_b32 v128, v128, v{ONES}")
    e(f"v_cndmask_b32 v130, 0, v128, {sm(T1)}"); e(f"v_cndmask_b32 v131, 0, v128, {sm(T3)}")
    for r in (128, 129, 132, 133): e(f"v_mov_b32 v{r}, 0")
    e(f"v_and_b32 v200, 8, v{vZW}"); e(f"v_add_u32 v200, v200, v{vKX}"); e("v_xor_b32 v201, 8, v200")
    qnorm(3)
    A.bgflush()
    nafter = A.bgn - gbase[0]
    omode()
    stamp(4)
    e(f"s_mov_b32 s{sTMO}, 0")
    for p in range(8):
        r0 = 96+4*p if p < 7 else 192
        e(f"s_waitcnt vmcnt({7-p+nafter})")
        A.label(f"L_kvc{p}")
        e(f"v_cmp_eq_u32 vcc, -1, v{r0}"); e(f"s_cbranch_vccnz L_kvs{p}")
        A.label(f"L_kvo{p}")
        if p < 7:
            e(f"{MF} v[168:171], v[130:133], {v(r0,4)}, v[168:171]"); e(f"{MF} v[172:175], v[128:131], {v(r0,4)}, v[172:175]")
        def kvslow(p=p):
            A.label(f"L_kvs{p}")
            e(f"s_add_u32 s{sTMO}, s{sTMO}, 1"); e(f"s_cmp_ge_u32 s{sTMO}, 0x100000"); e(f"s_cbranch_scc1 L_kvo{p}")
            e(f"s_waitcnt vmcnt({nafter})")
            for p2 in range(p, 7):
                if p2 > p:
                    e(f"v_cmp_eq_u32 vcc, -1, v{96+4*p2}"); e(f"s_cbranch_vccz L_kvn{p}_{p2}")
                E(g1(p2))
                if p2 > p: A.label(f"L_kvn{p}_{p2}")
            e(gz); e("s_waitcnt vmcnt(0)"); e(f"s_branch L_kvc{p}")
        ool.append(kvslow)
    for sh_ in (4, 2, 1):
        for r in range(4): e(f"v_add_f32_dpp v{192+r}, v{192+r}, v{192+r} row_ror:{sh_} row_mask:0xf bank_mask:0xf")
        if sh_ == 2:
            cvt4(196, 168, 172)
            e("ds_write_b64 v200, v[196:197]"); e("ds_write_b64 v201, v[198:199]")
    e("v_cvt_pk_bf16_f32 v192, v192, v193"); e("v_cvt_pk_bf16_f32 v193, v194, v195")
    e(f"s_mov_b64 exec, {sm(mM0)}")
    e(f"ds_write_b64 v{vZW}, v[192:193] offset:{M_ZF-M}")
    e("s_mov_b64 exec, -1")
    e("s_waitcnt lgkmcnt(0)"); e("s_barrier")
    stamp(5)
    for t in range(2): e(f"ds_read_b128 {v(184+4*t,4)}, v{vGM} offset:{M_ZF-M + t*64}")
    for j in range(4): e(ldsrd(v(168+4*j,4), M_KX + j*1024))
    e(f"s_add_u32 s{sKV}, s{sKV}, 0x100000"); e(f"s_add_u32 s{sZP}, s{sZP}, 0x10000")
    e("s_waitcnt lgkmcnt(4)")
    for t in range(2):
        for i in range(4):
            e(f"{MF} {v(64+4*i,4)}, {v(184+4*t,4)}, {v((204 if t == 0 else 136)+4*i,4)}, {'0' if t == 0 else v(64+4*i,4)}")
    e("s_waitcnt lgkmcnt(0)")
    def fin(i):
        r = [f"v_mul_f32 v{96+8*i+j}, v{96+8*i+j}, v{64+4*i}" for j in range(8)] + cvt4l(224+4*i, 96+8*i, 100+8*i)
        return [r[j:j+3] for j in range(0, 12, 3)]
    sc = [[f"v_add_f32 v{64+4*i}, {f32hex(1e-6)}, v{64+4*i}", f"v_rcp_f32 v{64+4*i}, v{64+4*i}"] for i in range(4)]
    fills = {0: [[], [], [], []], 1: sc, 2: fin(0), 3: fin(1)}
    for i in range(4):
        n = 0
        for t in range(2):
            for db in range(2):
                d = v(96+8*i+4*db, 4)
                e(f"{MF} {d}, {v(168+8*t+4*db,4)}, {v((204 if t == 0 else 136)+4*i,4)}, {'0' if t == 0 else d}")
                E(fills[i][n]); n += 1
        if i >= 2: ostore(i-2, 224+4*(i-2), o.oa)
    for i in (2, 3):
        for r in range(0, 8, 2): pk_mul(96+8*i+r, 96+8*i+r, 64+4*i)
        cvt4(224+4*i, 96+8*i, 100+8*i)
        ostore(i, 224+4*i, o.oa)
    e("s_branch L_g2")

    A.label("L_epiB")
    fl = []
    for i in (3, 2, 1, 0):
        for c0, F in ((2, 192), (4, 224)):
            ms = [f"v_mul_f32 v{acc(c,i)+j}, v{acc(c,i)+j}, v{STP+2*i}" for c in (c0, c0+1) for j in range(4)]
            ms += cvt4l(F+4*i, acc(c0,i), acc(c0+1,i))
            fl += [ms[j:j+2] for j in range(0, 12, 2)]
            if i == 3: fl.append([f"buffer_store_dwordx4 {v(F+12,4)}, v{vL16}, {SRD}, s{T0} offen offset:{(c0-2)*512} sc1"])
        if i == 3: fl.append([f"ds_write_b128 v{vKX}, v[204:207] offset:1024"])
        fl.append([xw(224+4*i, VB_LDS//1024 + i)])
    fl.append(["s_waitcnt lgkmcnt(0)", "s_barrier"])
    fl.append([f"ds_read_b128 v[208:211], v{vKX}"])
    for db in range(2):
        rd = [f"ds_read_b64_tr_b16 {v(96+10*db,2)}, v{vVp} offset:{db*512}"]
        rd += [f"ds_read_b64_tr_b16 {v(98+10*db+2*i,2)}, v{vVo} offset:{VB_LDS + i*1024 + db*512}" for i in range(4)]
        fl += [rd[:3], rd[3:]]
    e(f"s_cmp_eq_u32 s{SW}, 3"); e(f"s_cselect_b32 s{T0}, s{sHALO}, {OOR}")
    e(f"s_sub_u32 s{T1}, s{sHALO}, 0x10000"); e(f"s_cmp_eq_u32 s{SW}, 0"); e(f"s_cselect_b32 s{T1}, s{T1}, {OOR}")
    e(f"s_cmp_eq_u32 s{SGRP}, 0"); e(f"s_cselect_b32 s{T1}, {OOR}, s{T1}")
    e(f"s_add_u32 s{sHALO}, s{sHALO}, 0x80000")
    omode()
    qb = list(qm); late = list(left) + lates
    n = 0
    while qb or fl:
        if n < 14 and n % 2: pass
        elif qb: e(qb.pop(0))
        n += 1
        if n % o.brate == 0 and n > 14 and late and qb: E(late.pop(0))
        elif fl: E(fl.pop(0))
    stamp(2)
    A.bgset(late, o.bper, 0)
    for i in (3, 2, 1, 0):
        cvt4(240+4*i, acc(0,i), acc(1,i))
        if i < 3:
            e(f"{MF} {v(136+8*i,4)}, {v(196+4*i,4)}, {v(244+4*i,4)}, 0"); e(f"{MF} {v(140+8*i,4)}, {v(192+4*i,4)}, {v(244+4*i,4)}, 0")
    e(f"{MF} v[128:131], v[192:195], v[240:243], 0")
    def sel(i):
        b = 128+8*i
        for r in range(0, 8, 2): e(f"v_cndmask_b32 v{b+r}, v{b+r}, v{b+r+1}, {sm(mPAR)}")
        if i == 0:
            e(f"v_cndmask_b32 v{b+4}, v{b+4}, v217, {sm(mFIRST)}"); e(f"v_cndmask_b32 v{b+6}, v{b+6}, v217, {sm(mFIRST)}")
        e(f"v_cndmask_b32 v{116+2*i}, v{b+4}, v{b}, {sm(mOWN0)}")
        e(f"v_cndmask_b32 v{117+2*i}, v{b+6}, v{b+2}, {sm(mOWN1)}")
        e(f"v_max_f32 v{124+i}, v{116+2*i}, v{117+2*i}")
    def soft(blks):
        for i in blks:
            e(f"v_sub_f32 v{116+2*i}, v{116+2*i}, v{124+i}"); e(f"v_sub_f32 v{117+2*i}, v{117+2*i}, v{124+i}")
        for i in blks: pk_mul(116+2*i, 116+2*i, CI+i)
        for i in blks: e(f"v_exp_f32 v{116+2*i}, v{116+2*i}"); e(f"v_exp_f32 v{117+2*i}, v{117+2*i}")
        for i in blks:
            for r in (116+2*i, 117+2*i): e(f"v_cvt_pk_bf16_f32 v{r}, v{r}, v{r}")
        e("s_waitcnt lgkmcnt(0)")
        for i in blks:
            e(f"v_and_b32 v{192+4*i}, v{116+2*i}, v{MP0}"); e(f"v_and_b32 v{193+4*i}, v{117+2*i}, v{MP1}")
            e(f"v_and_b32 v{194+4*i}, v{116+2*i}, v{MO0}"); e(f"v_and_b32 v{195+4*i}, v{117+2*i}, v{MO1}")
        for i in blks:
            e(f"{MF} {v(176+4*i,4)}, {v(ONES,4)}, {v(192+4*i,4)}, 0")
            for db in range(2): e(f"{MF} {v(128+8*i+4*db,4)}, {v(96+10*db+2*i,4)}, {v(192+4*i,4)}, 0")
    def norm(i):
        e(f"v_rcp_f32 v{176+4*i}, v{176+4*i}")
        for r in range(0, 8, 2): pk_mul(128+8*i+r, 128+8*i+r, 176+4*i)
        cvt4(224+4*i, 128+8*i, 132+8*i)
        ostore(i, 224+4*i)
    hl = [f"buffer_load_dwordx4 v[168:171], v{vL16}, {SRD}, s{T1} offen sc1", f"buffer_load_dwordx4 v[172:175], v{vL16}, {SRD}, s{T1} offen offset:1024 sc1"]
    for i in (3, 2, 1): sel(i)
    if o.hpos == 0: E(hl); hb = A.bgn
    xreduce([("v_max_f32", [124, 125, 126, 127])])
    if o.hpos == 1: E(hl); hb = A.bgn
    soft((3, 2, 1))
    e(f"v_mov_b32 v217, {f32hex(-3.0e38)}")
    norm(3); norm(2)
    e(f"s_cmp_eq_u32 s{SW}, 0"); e("s_cbranch_scc1 L_halo")
    A.label("L_halod")
    def halo(n=A.bgn - hb + 2):
        A.label("L_halo")
        e(f"s_mov_b32 s{sTMO}, 0"); e(f"v_add_u32 v216, {M_HV}, v{vXW}"); e(f"s_waitcnt vmcnt({n})")
        A.label("L_halop")
        e("v_max_u32 v218, v168, v172"); e("v_cmp_eq_u32 vcc, -1, v218"); e("s_cbranch_vccz L_halow")
        E(hl); e("s_waitcnt vmcnt(0)")
        tmo("L_halop")
        A.label("L_halow")
        e(xw(172, 0, 216))
        for db in range(2): e(f"ds_read_b64_tr_b16 {v(96+10*db,2)}, v{vVp} offset:{db*512}")
        for r in range(4): e(f"v_mov_b32 v{208+r}, v{168+r}")
        e("s_nop 1"); e("s_branch L_halod")
    ool.append(halo)
    e(f"{MF} v[132:135], v[208:211], v[240:243], 0")
    A.bgflush()
    norm(1)
    sel(0)
    e("v_mov_b32 v125, v124"); e("v_permlane32_swap_b32 v124, v125"); e("v_max_f32 v124, v124, v125")
    e("v_mov_b32 v125, v124"); e("v_permlane16_swap_b32 v124, v125"); e("v_max_f32 v124, v124, v125")
    soft((0,))
    norm(0)

    A.label("L_g2")
    stamp(6)
    for i in range(2):
        for kk in range(2):
            for r in range(4):
                d = acc2(2*kk + (r >> 1), i) + 2*(r & 1); x = RES+8*i+4*kk+r
                e(f"v_lshlrev_b32 v{d}, 16, v{x}"); e(f"v_and_b32 v{d+1}, 0xffff0000, v{x}")
    e(f"s_add_u32 s{T6}, s{SLAY}, 1"); e(f"v_mov_b32 v{vVal}, s{T6}")
    e(f"s_xor_b32 s{sW1}, s{sW1}, {WS_W1A ^ WS_W1B}"); e(f"s_xor_b32 s{sW2}, s{sW2}, {WS_W2A ^ WS_W2B}")
    e(f"s_xor_b32 s{sCSL}, s{sCSL}, 384"); e(f"s_xor_b32 s{sCK}, s{sCK}, {int(CK_A,16) ^ int(CK_B,16)}")
    e(f"s_cmp_eq_u32 s{SLAY}, {o.last}"); e(f"s_cselect_b32 s{sW1}, {OOR}, s{sW1}")
    e("s_waitcnt vmcnt(0)")
    e("s_mov_b64 exec, 1")
    st_mode([f"buffer_store_dword v{vVal}, off, {SRD}, s{sFOp}"])
    e("s_mov_b64 exec, -1")
    e("s_barrier")
    E(first_only(["s_mov_b64 exec, 1", f"buffer_store_dword v{vVal}, off, {SRD}, s{sFBp} offset:1024 sc1", "s_mov_b64 exec, -1"]))
    stamp(7)
    lq.clear(); vq.clear()
    W2F = RING; AF2 = RING + 32; GD = o.g2depth
    def w2rd(step, b):
        lq.add(("W", step, b))
        ad = (step*4096 if step < 14 else 3*SLOT + (step-14)*4096) + b*1024
        return ldsrd(a(W2F + 16*(step % 2) + 4*b, 4), ad)
    for st in range(2):
        for b in range(4): e(w2rd(st, b))
    if o.ntouch:
        e(f"v_lshrrev_b32 v{FBV+1}, {4 + {4: 4, 8: 3, 2: 5}[o.tl]}, v{vL16}"); e(f"v_lshlrev_b32 v{FBV+1}, 7, v{FBV+1}"); e(f"v_sub_u32 v{FBV+2}, v{vW1}, v{vL16}"); e(f"v_add_u32 v{FBV+1}, v{FBV+1}, v{FBV+2}")
    poll_ge(vFP, sFOc, T6, FBV)
    stamp(8)
    def bload(step, i):
        d = AF2 + 8*(step % GD) + 4*i; r = []
        if i == 0 and step % 4 == 0:
            if o.x_rot2: r += [f"s_lshl_b32 s{sAo}, s{SCB}, {11 + o.x_rot2}", f"s_add_u32 s{sAo}, s{sAo}, {step*1024}", f"s_and_b32 s{sAo}, s{sAo}, 0x7000", f"s_add_u32 s{sAo}, s{sAo}, {WS_O}"]
            else: r.append(f"s_mov_b32 s{sAo}, {WS_O + step*1024}")
        vq.add(("A", step))
        return r + [f"buffer_load_dwordx4 {a(d,4)}, v{vB+i}, {SRD}, s{sAo} offen offset:{(step%4)*1024} sc1"]
    bn = [(st, i) for st in range(32) for i in range(2)]
    for j in range(2*min(o.g2pre, GD-1)): E(bload(*bn.pop(0)))
    w1n = list(range(6))
    tl = [(2+j, h_) for j in range(o.ntouch) for h_ in range(48//o.tl)]
    tsteps = {((2*o.t0 + j*o.tstep)//2, 1 + 2*((j*o.tstep) % 2)): t_ for j, t_ in enumerate(tl)}
    assert all(k[0] < 32 for k in tsteps)
    for step in range(32):
        E(vq.wait(("A", step)))
        if step == 18: e("s_barrier")
        if step == 13: once(0, "fb2ld", G("F", fb_ld(1024))); E(oq.pop()[1]())
        if step == 33 - GD: once(0, "fb2chk", lambda: fb_chk("fb2chk")); E(oq.pop()[1]())
        a0 = AF2 + 8*(step % GD)
        for b in range(4):
            E(lq.wait(("W", step, b)))
            for p, i in enumerate(range(2) if b % 2 == 0 else (1, 0)):
                e(f"{MF} {v(acc2(b,i),4)}, {a(W2F+16*(step%2)+4*b,4)}, {a(a0+4*i,4)}, {v(acc2(b,i),4)}")
                if p == 0:
                    if bn and bn[0][0] <= step + GD - 1 and (b % 2 == 0 or bn[0][0] < step + GD - 1): E(bload(*bn.pop(0)))
                    elif not bn and w1n and (b % o.g2w == 0) and step >= 33 - GD:
                        E(w1_piece(1, w1n.pop(0))); vq.add("W")
            if step + 2 < 32: e(w2rd(step+2, b))
            if b % 2 == 1 and (step, b) in tsteps:
                ts, th = tsteps[(step, b)]
                off = th*128*o.tl
                if off % 4096 == 0 or th == 0:
                    e(f"s_add_u32 s{T0}, s{sW1}, s{ROTW+ts}")
                    if off: e(f"s_add_u32 s{T0}, s{T0}, 4096")
                e(f"buffer_load_dword v{FBV}, v{FBV+1}, {SRD}, s{T0} offen offset:{off % 4096}"); vq.add("T")
            if step == 19 and b == 3:
                la, ld = A.new("resA"), A.new("resd")
                e(f"s_bitcmp1_b32 s{SLAY}, 0"); e(f"s_cbranch_scc1 {la}")
                for blk in range(6): e(f"ds_write_b128 v{vLW}, {a(RB+4*blk,4)} offset:{SLOT + blk*1024}"); lq.add("rw")
                A.label(ld)
                def resA(la=la, ld=ld):
                    A.label(la)
                    for blk in range(6): e(f"ds_write_b128 v{vLW}, {a(RA+4*blk,4)} offset:{SLOT + blk*1024}")
                    e(f"s_branch {ld}")
                ool.append(resA)
    assert not w1n
    stamp(9)
    for kk in range(2):
        for i in range(2): cvt4(RES+8*i+4*kk, acc2(2*kk,i), acc2(2*kk+1,i))
    e(f"s_cmp_eq_u32 s{SLAY}, {o.last}"); e("s_cbranch_scc1 L_final")
    xtile(RES, 160, o.xall)
    e("s_waitcnt vmcnt(0)")
    e("s_mov_b64 exec, 1")
    st_mode([f"buffer_store_dword v{vVal}, off, {SRD}, s{sFXp}"])
    e("s_mov_b64 exec, -1")
    stamp(10)
    e(f"s_add_u32 s{SLAY}, s{SLAY}, 1")
    e("s_branch L_g1pre")
    A.label("L_final")
    e(f"v_bfe_u32 v200, v{vL16}, 4, 4"); e(f"v_and_b32 v201, 0x70, v{vL16}"); e(f"v_xor_b32 v201, v201, v{vG16}")
    e("v_lshl_add_u32 v200, v200, 7, v201"); e(f"v_add_u32 v200, s{sLW}, v200"); e("v_xor_b32 v201, 64, v200")
    for i in range(2):
        for kk in range(2): e(f"ds_write_b128 v{200+kk}, {v(RES+8*i+4*kk,4)} offset:{i*2048}")
    for j in range(4): e(f"ds_read_b128 {v(64+4*j,4)}, v{vLW} offset:{j*1024}")
    srt(P_OUT, 0x400000)
    e(f"v_lshrrev_b32 v200, 7, v{vL16}"); e(f"v_and_b32 v201, 0x70, v{vL16}"); e("v_lshlrev_b32 v202, 4, v200"); e("v_xor_b32 v201, v201, v202")
    e("v_lshl_add_u32 v200, v200, 11, v201")
    e(f"s_lshl_b32 s{T0}, s{SRB}, 2"); e(f"s_add_u32 s{T0}, s{T0}, s{SW}"); e(f"s_lshl_b32 s{T0}, s{T0}, 16"); e(f"s_lshl_b32 s{T1}, s{SCB}, 7"); e(f"s_add_u32 s{T0}, s{T0}, s{T1}")
    for j in range(4):
        e(f"s_waitcnt lgkmcnt({3-j})")
        e(f"buffer_store_dwordx4 {v(64+4*j,4)}, v200, {SRT}, s{T0} offen {['', 'sc1', 'nt', 'sc0 sc1'][o.outsc]}")
        if j < 3: e(f"s_add_u32 s{T0}, s{T0}, 16384")
    if o.stamps:
        e("s_waitcnt vmcnt(0)")
        stamp(11)
        e(f"s_lshl_b32 s{T0}, s{SIDX}, 2"); e(f"s_add_u32 s{T0}, s{T0}, s{SW}")
        e(f"s_lshl_b32 s{T0}, s{T0}, 8"); e(f"s_add_u32 s{T0}, s{T0}, {WS_STAMPS}")
        e(f"v_lshrrev_b32 v200, 2, v{vL16}")
        e(f"buffer_store_dword v{vSTAMP}, v200, {SRD}, s{T0} offen")
        if o.echo_a >= 0:
            e(f"v_readlane_b32 s{T1}, v{vSTAMP}, {o.echo_a}"); e(f"v_readlane_b32 s{T2}, v{vSTAMP}, {o.echo_b}"); e(f"v_readlane_b32 s{T3}, v{vSTAMP}, 59")
            e(f"s_sub_u32 s{T2}, s{T2}, s{T1}"); e(f"s_min_u32 s{T2}, s{T2}, 20000")
            A.label("L_echo")
            e(f"s_memrealtime s[{sSTAMP}:{sSTAMP+1}]"); e("s_waitcnt lgkmcnt(0)")
            e(f"s_sub_u32 s{T4}, s{sSTAMP}, s{T3}"); e(f"s_cmp_lt_u32 s{T4}, s{T2}"); e("s_cbranch_scc1 L_echo")
        if o.dbgout:
            e(f"s_lshl_b32 s{T0}, s{SIDX}, 2"); e(f"s_add_u32 s{T0}, s{T0}, s{SW}"); e(f"s_cmp_lg_u32 s{T0}, {o.dbgout}"); e("s_cbranch_scc1 L_nodbg")
            srt(P_DBG, 256)
            e(f"v_readlane_b32 s{T1}, v{vSTAMP}, 12")
            for j, idx in enumerate((28, 13, 31, 14, 15, 1, 5, 8, 9, 17, 25, 33, 41, 49, 59)):
                e(f"v_readlane_b32 s{T2}, v{vSTAMP}, {idx}"); e(f"s_sub_u32 s{T2}, s{T2}, s{T1}"); e(f"v_mov_b32 v201, s{T2}")
                e(f"buffer_store_dword v201, off, {SRT}, 0 offset:{4+4*j}")
            A.label("L_nodbg")
    e("s_endpgm")
    for blk in ool: blk()
    A.label("L_codeend"); A.label("L_exit")
    e("s_endpgm")
    if o.codepf == 2: A.raw(f".fill ({CPL*4096 + 256} - (. - {KNAME}))/4, 4, 0xbf810000")
    A.raw('.section .rodata,"a"'); A.raw(".p2align 6"); A.raw(f".amdhsa_kernel {KNAME}")
    for t in ("next_free_vgpr 512", "next_free_sgpr 102", "accum_offset 256", "group_segment_fixed_size 0", "kernarg_size 80",
              "user_sgpr_count 2", "user_sgpr_kernarg_segment_ptr 1", "system_sgpr_workgroup_id_x 1"):
        A.raw("  .amdhsa_" + t)
    A.raw(".end_amdhsa_kernel")
    return A.text()

if __name__ == "__main__":
    o = Opts()
    out = sys.argv[1]
    for kv in sys.argv[2:]:
        k, val = kv.split("=")
        setattr(o, k, int(val))
    open(out, "w").write(gen(o))
```

```python
import sys, struct
from asmlib import *

KNAME = "interleave_layers__linear_kernel_hedgehog__sliding_local_dilated__prompt_kernel"

WS_FLAGA = 0x0000000
WS_FLAGB = 0x0008000
WS_FLAGO = 0x0009000
WS_FLAGX = 0x000A000
WS_CS    = 0x0010000
CS_SZ    = 393216
WS_ST    = 0x0100000
WS_ZP    = 0x0140000
WS_STAMPS= 0x0180000
WS_HALO  = 0x0200000
WS_KVP   = 0x0400000
WS_W1A   = 0x0800000
WS_W1B   = 0x0E00000
WS_W2A   = 0x1400000
WS_W2B   = 0x1600000
WS_X     = 0x1800000
WS_X0    = WS_X
WS_O     = 0x1C00000
WS_SIZE  = 0x2000000
OOR      = 0x40000000

SLOT = 24576
M      = 147456
M_MODE = M
M_CS   = M + 64
M_ST   = M + 1024
M_RS   = M + 3072
M_KX   = M + 4096
M_HV   = M + 9216
M_ZF   = M + 10240
M_PHI  = M + 11264
LDS_SIZE = 163840
VB_LDS = 57344
RAW1A, RAW1B, RAW2 = 3*SLOT, 4*SLOT, 5*SLOT

SRD = "s[4:7]"; SRT = "s[8:11]"
SW, SGRP, SMEM, SMODE, SLAY, SCB, SRB = 12, 13, 14, 15, 16, 17, 18
T0, T1, T2, T3, T4, T5, T6, T7 = 19, 20, 21, 22, 23, 24, 25, 26
SIDX, sCK, SXCC = 27, 28, 29
sFOc, sFOp, sFXc, sFXp = 30, 31, 32, 33
sO, sXs = 34, 35
mPAR, mB1, mDIAG, mM0, mOWN0, mOWN1, mM1, mFIRST = 36, 38, 40, 42, 44, 46, 48, 50
sW1, sW2, sCSL, sFBp, sSTs, sLW, sKV, sZP, sHALO, sTMO, sAo, sWo = 52, 53, 54, 55, 56, 57, 58, 59, 60, 61, 62, 63
P_AX, P_AW1, P_PHI, P_AW2, P_BX, P_BW1, P_BW2, P_OUT, P_DBG, P_WS = 64, 66, 68, 70, 72, 74, 76, 78, 80, 82
sCL0, sCL1, sCL2, sL14, sW2l = 72, 73, 3, 2, 0
sW2s = 68
sRX, sRO = 69, 1
mG0, mG1 = 64, 66
sSTAMP = 84
ROTA, ROTW = 86, 94

vL16, vL64, vL128 = 1, 2, 3
vA = 4; vB = 8; vW1 = 10; vW2 = 11; vFP = 12; vSTl = 13; vSTs = 14; vSTAMP = 15
RES = 16; PHI = 32; ONES = 40; MP0, MP1, MO0, MO1 = 44, 45, 46, 47
vE1, vVr = 216, 217
vXW, vE0, vTCH, vRSW, vJUNK, vVo, vVp, vKX, vGM, vZW, vSW, vSR, vG16, vOut, vZL, vVal = range(48, 64)
vLW = 0
ACC = 64
def acc(c, i): return ACC + 16*c + 4*i
def acc2(b, i): return ACC + 8*b + 4*i
STP = 160; CSR = 168; WFV = 192; FBV = 216; CI = 220
RA, RB, RING, HW2, HCS = 0, 24, 48, 240, 248
CPL = 9
MF = "v_mfma_f32_16x16x32_bf16"
def f32hex(x): return "0x%08x" % struct.unpack("<I", struct.pack("<f", x))[0]
CK_A = f32hex(1.4426950408889634); CK_B = f32hex(1.4426950408889634 * 32 ** -0.5)

class Opts:
    stamps = 0
    last = 3
    force_slow = 0
    ND = 6
    LA = 5
    APRE = 3
    wrate = 135
    w2rate = 300
    g2depth = 7
    brate = 5
    bfirst = 0
    bbar = 1
    bpre = 2
    wsoff = 0
    stouch = 1
    sfull = 1
    afirst = 1
    bpos = 12
    pad = 0
    plan = 0
    rlate = 1
    xf = 1
    x_now2b = 0
    x_nohalo = 0
    fb2e = 1
    hatom = 0
    xt = 0
    xt0 = 8
    rex = 0
    reo = 0
    re0 = 0
    reper = 2
    res2 = 1
    w1start = 3
    x_skip = 0
    sper = 2
    x_nobg = 0
    x_nods = 0
    apoll = 1
    tlb = 1
    cs0 = 6
    gpos = 1
    aper = 150
    aper2 = 130
    alate = 8
    bper = 90
    hpos = 1
    osc = 0
    x_rot2 = 0
    g2pre = 9
    g2w = 2
    touch = 0
    oall = 0
    oa = 1
    dmerge = 2
    xord = 1
    xall = 0
    tstep0 = 29
    ntouch = 0
    tl = 4
    t0 = 0
    tstep = 2
    dbgout = 0
    outsc = 1
    echo_a = -1
    echo_b = -1
    x_bx = 0
    x_now1 = 0
    x_nost = 0
    x_norot = 0
    x_noa = 0
    w2start = 25
    d0 = 1
    g1prof = 0
    w1sc = 0
    dstep = 35
    x_samew = 0
    o4sc = 0
    codepf = 2

class Q:
    def __init__(self, name, mx): self.q = []; self.name = name; self.mx = mx; self.seen = set(); self.ghost = set()
    def add(self, tag, ghost=False):
        self.q.append(tag); self.seen.add(tag)
        if ghost: self.ghost.add(tag)
    def wait(self, *tags, keep=False):
        assert all(t in self.seen for t in tags), tags
        idx = max([i for i, t in enumerate(self.q) if t in tags], default=-1)
        if idx < 0: return []
        n = sum(1 for t in self.q[idx+1:] if t not in self.ghost)
        if not keep: del self.q[:idx+1]
        return [f"s_waitcnt {self.name}({min(n, self.mx)})"]
    def clear(self): self.q = []; self.seen = set(); self.ghost = set()

def gen(o):
    A = Asm(); e = A.e
    ool = []
    ND = o.ND; AD = ND
    WQ = RING + 16*AD
    RA2, RB2 = 192, 216
    assert WQ + 8*ND <= (192 if o.res2 else 240)
    def E(lst):
        for t in lst:
            if t.endswith(":"): A.label(t[:-1])
            else: e(t)
    def stamp(name, force=0):
        if not o.stamps: return
        if o.g1prof and (name in range(2, 11)) != (force == 1) and name in range(2, 11): return
        if o.stamps == 2 and name not in (12, 11, o.echo_a % 16, o.echo_b % 16, o.echo_a, o.echo_b): return
        e(f"{'s_memtime' if o.stamps == 3 else 's_memrealtime'} s[{sSTAMP}:{sSTAMP+1}]")
        e(f"s_mov_b32 s{T7}, m0"); e(f"s_lshl_b32 m0, s{SLAY}, 4"); e(f"s_add_u32 m0, m0, {name}")
        e("s_waitcnt lgkmcnt(0)")
        e(f"v_writelane_b32 v{vSTAMP}, s{sSTAMP}, m0"); e(f"s_mov_b32 m0, s{T7}")
    def srt(p, size):
        e(f"s_mov_b32 s8, s{p}"); e(f"s_mov_b32 s9, s{p+1}"); e(f"s_mov_b32 s10, {size}"); e("s_mov_b32 s11, 0x20000")
    def mask64(r, val):
        e(f"s_mov_b32 s{r}, 0x{val & 0xffffffff:08x}"); e(f"s_mov_b32 s{r+1}, 0x{val >> 32:08x}")
    def sm(r): return f"s[{r}:{r+1}]"
    def bc(r): return (v(r & ~1, 2), r & 1)
    def pk_fma(d, x, y, z, negx=False):
        yp, ys = bc(y)
        if z[0] == 'p': zp, zl, zh = v(z[1], 2), 0, 1
        else:
            zp, zs = bc(z[1]); zl = zh = zs
        t = f"v_pk_fma_f32 {v(d,2)}, {v(x,2)}, {yp}, {zp} op_sel:[0,{ys},{zl}] op_sel_hi:[1,{ys},{zh}]"
        if negx: t += " neg_lo:[1,0,0] neg_hi:[1,0,0]"
        e(t)
    def pk_mul(d, x, y):
        yp, ys = bc(y)
        e(f"v_pk_mul_f32 {v(d,2)}, {v(x,2)}, {yp} op_sel:[0,{ys}] op_sel_hi:[1,{ys}]")
    def cvt4l(d, x0, x1):
        return [f"v_cvt_pk_bf16_f32 v{d}, v{x0}, v{x0+1}", f"v_cvt_pk_bf16_f32 v{d+1}, v{x0+2}, v{x0+3}",
                f"v_cvt_pk_bf16_f32 v{d+2}, v{x1}, v{x1+1}", f"v_cvt_pk_bf16_f32 v{d+3}, v{x1+2}, v{x1+3}"]
    def cvt4(d, x0, x1): E(cvt4l(d, x0, x1))
    def st_mode(lines, reg=SMODE):
        ls, ld = A.new("slow"), A.new("done")
        e(f"s_cmp_lg_u32 s{reg}, 0"); e(f"s_cbranch_scc1 {ls}")
        for t in lines: e(t)
        A.label(ld)
        def blk():
            A.label(ls); A.fence()
            for t in lines: e(t + (" sc1" if t.startswith("buffer_store") else ""))
            e("s_nop 7"); e(f"s_branch {ld}")
        ool.append(blk)
    def tmo(lbl, lim=0x100000):
        e(f"s_add_u32 s{sTMO}, s{sTMO}, 1"); e(f"s_cmp_lt_u32 s{sTMO}, {lim}"); e(f"s_cbranch_scc1 {lbl}")
    def poll_ge(vaddr, soff, sval, vt):
        l, d = A.new("poll"), A.new("polld")
        body = [f"buffer_load_dword v{vt}, v{vaddr}, {SRD}, s{soff} offen sc1", "s_waitcnt vmcnt(0)", f"v_cmp_gt_u32 vcc, s{sval}, v{vt}"]
        E(body); e(f"s_cbranch_vccnz {l}_0")
        A.label(d)
        def blk():
            A.label(f"{l}_0"); e(f"s_mov_b32 s{sTMO}, 0")
            A.label(l); E(body); e(f"s_cbranch_vccz {d}")
            tmo(l); e(f"s_branch {d}")
        ool.append(blk)
    def first_only(ins):
        l = A.new("fo")
        def blk():
            A.label(l); E(ins); e(f"s_branch {l}_r")
        ool.append(blk)
        return [f"s_cmp_eq_u32 s{SLAY}, 0", f"s_cbranch_scc1 {l}", l + "_r:"]
    def xreduce(groups):
        for op, q in groups: e(f"v_permlane32_swap_b32 v{q[0]}, v{q[1]}"); e(f"v_permlane32_swap_b32 v{q[2]}, v{q[3]}")
        for op, q in groups: e(f"{op} v{q[0]}, v{q[0]}, v{q[1]}"); e(f"{op} v{q[2]}, v{q[2]}, v{q[3]}")
        for op, q in groups: e(f"v_permlane16_swap_b32 v{q[0]}, v{q[2]}")
        for op, q in groups: e(f"{op} v{q[1]}, v{q[0]}, v{q[2]}"); e(f"{op} v{q[2]}, v{q[0]}, v{q[2]}")
        for op, q in groups: e(f"v_permlane16_swap_b32 v{q[1]}, v{q[2]}")
        for op, q in groups: e(f"v_mov_b32 v{q[0]}, v{q[1]}"); e(f"v_mov_b32 v{q[3]}, v{q[2]}")
        for op, q in groups: e(f"v_permlane32_swap_b32 v{q[0]}, v{q[1]}"); e(f"v_permlane32_swap_b32 v{q[2]}, v{q[3]}")
    def xtile(R, tmp, always_sc1):
        st = [f"buffer_store_dwordx4 {v(R+8*i+4*kk,4)}, v{vB+i}, {SRD}, s{sXs} offen offset:{kk*1024}" for i in range(2) for kk in range(2)]
        mm = []
        for kk in range(2):
            for i in range(2):
                f = v(R+8*i+4*kk, 4)
                mm.append(f"{MF} {v(tmp+8*i+4,4)}, {f}, {f}, {'0' if kk == 0 else v(tmp+8*i+4,4)}")
                mm.append(f"{MF} {v(tmp+8*i,4)}, {v(ONES,4)}, {f}, {'0' if kk == 0 else v(tmp+8*i,4)}")
        if o.xord:
            st = [x for j in range(4) for x in (mm[2*j], st[j], mm[2*j+1])]
        else: E(mm)
        if always_sc1:
            for t in st: e(t + (" sc1" if t.startswith("buffer") else ""))
        else: st_mode(st)
        for i in range(2):
            g0 = tmp+8*i+4
            e(f"v_cndmask_b32 v{g0}, v{g0}, v{g0+1}, {sm(mPAR)}")
            e(f"v_cndmask_b32 v{g0+2}, v{g0+2}, v{g0+3}, {sm(mPAR)}")
            e(f"v_cndmask_b32 v{tmp+8*i+1}, v{g0}, v{g0+2}, {sm(mB1)}")
        st = [f"buffer_store_dwordx2 {v(tmp+8*i,2)}, v{vSTs}, {SRD}, s{sSTs} offen offset:{i*128}" for i in range(2)]
        e(f"s_mov_b64 exec, {sm(mDIAG)}")
        if always_sc1:
            for t in st: e(t + " sc1")
        else: st_mode(st)
        e("s_mov_b64 exec, -1")
    def w1_piece(stage, i):
        r = []
        slot = (stage + 1) % 6
        if i == 0: r += [f"s_add_u32 m0, s{sLW}, {slot*SLOT}", f"s_add_u32 s{sWo}, s{sW1}, s{ROTW+stage}"]
        if i == 4: r += [f"s_add_u32 m0, s{sLW}, {slot*SLOT + 4096}", f"s_add_u32 s{sWo}, s{sWo}, 4096"]
        if o.x_now1 and stage >= 2: return r + ["s_nop 0"]
        if o.x_samew: return r + [f"buffer_load_dwordx4 v{vLW}, {SRD}, s{sWo} offen offset:{(i%4)*1024} lds"]
        return r + [f"buffer_load_dwordx4 v{vW1}, {SRD}, s{sWo} offen offset:{(i%4)*1024} {['', 'sc1', 'sc0 sc1', 'nt', 'sc0', 'sc1 nt', 'sc0 sc1 nt'][o.w1sc]} lds"]
    def w2_piece(part, i):
        r = []
        lb, sb = ((3+part)*SLOT, 57344 + part*SLOT) if part < 3 else (0, 0)
        if i % 4 == 0:
            r += [f"s_add_u32 m0, s{sLW}, {lb + (i//4)*4096}", f"s_add_u32 s{sWo}, s{sW2}, {sb + (i//4)*4096}"]
        return r + [f"buffer_load_dwordx4 v{vW2}, {SRD}, s{sWo} offen offset:{(i%4)*1024} lds"]
    def w2_late(i):
        r = []
        if i == 0: r += [f"s_add_u32 s{T5}, s{sW2}, s{sW2l}"]
        if i % 4 == 0:
            r += [f"s_add_u32 m0, s{sL14}, {SLOT + (i//4)*4096}", f"s_add_u32 s{sWo}, s{T5}, {SLOT + (i//4)*4096}"]
        return r + [f"buffer_load_dwordx4 v{vW2}, {SRD}, s{sWo} offen offset:{(i%4)*1024} lds"]
    def ldsrd(dst, addr):
        base = {0: vL16, 1: vL64, 2: vL128}[addr >> 16]
        return f"ds_read_b128 {dst}, v{base} offset:{addr & 0xffff}"
    def cs_load(d):
        r = [f"s_mul_i32 s{T0}, s{SMEM}, 12288", f"s_lshl_b32 s{T1}, s{sCSL}, 10", f"s_add_u32 s{T0}, s{T0}, s{T1}", f"s_add_u32 s{T0}, s{T0}, {WS_CS}",
             f"s_add_u32 s{T2}, s{SW}, 4", f"s_min_u32 s{T2}, s{T2}, 5", f"s_lshl_b32 s{T3}, s{SW}, 11", f"s_lshl_b32 s{T4}, s{T2}, 11",
             f"s_add_u32 s{T3}, s{T0}, s{T3}", f"s_add_u32 s{T4}, s{T0}, s{T4}"]
        for j in range(2):
            r += [f"buffer_load_dwordx4 {v(d+8*j,4)}, v{vL16}, {SRD}, s{T3} offen offset:{j*1024} sc1",
                  f"buffer_load_dwordx4 {v(d+8*j+4,4)}, v{vL16}, {SRD}, s{T4} offen offset:{j*1024} sc1"]
        return r
    def cs_proc(d):
        r = [f"v_add_f32 v{d+j}, v{d+j}, v{d+8+j}" for j in range(8)]
        for sh in (8, 4):
            r += [f"v_add_f32_dpp v{d+j}, v{d+j}, v{d+j} row_ror:{sh} row_mask:0xf bank_mask:0xf" for j in range(8)]
        r += [f"s_lshl_b32 s{T1}, s{SW}, 6", f"s_lshl_b32 s{T2}, s{T2}, 6"]
        r += [f"v_permlane32_swap_b32 v{d+j}, v{d+j+1}" for j in range(0, 8, 2)]
        r += [f"v_add_f32 v{d+j}, v{d+j}, v{d+j+1}" for j in range(0, 8, 2)]
        r += [f"v_and_b32 v{d+8}, 48, v{vL16}", f"v_bfe_u32 v{d+9}, v{vL16}, 8, 1", f"v_lshl_add_u32 v{d+8}, v{d+9}, 3, v{d+8}",
              f"v_permlane16_swap_b32 v{d}, v{d+2}", f"v_permlane16_swap_b32 v{d+4}, v{d+6}",
              f"v_lshrrev_b32 v{d+9}, 9, v{vL16}", f"v_lshl_add_u32 v{d+8}, v{d+9}, 2, v{d+8}", f"v_add_u32 v{d+8}, s{sCSL}, v{d+8}", f"v_add_u32 v{d+8}, {M_CS}, v{d+8}",
              f"v_add_f32 v{d}, v{d}, v{d+2}", f"v_add_f32 v{d+4}, v{d+4}, v{d+6}",
              f"v_add_u32 v{d+9}, s{T2}, v{d+8}", f"v_add_u32 v{d+8}, s{T1}, v{d+8}",
              "s_mov_b32 exec_lo, 0x000f000f", "s_mov_b32 exec_hi, 0x000f000f",
              f"ds_write_b32 v{d+8}, v{d}", f"ds_write_b32 v{d+9}, v{d+4}", "s_mov_b64 exec, -1"]
        return r

    A.raw(f"; @launch grid=(256,1,1) block=(256,1,1) lds={LDS_SIZE}")
    A.raw('.amdgcn_target "amdgcn-amd-amdhsa--gfx950"'); A.raw(".text")
    A.raw(f".globl {KNAME}"); A.raw(".p2align 8"); A.raw(f".type {KNAME},@function"); A.label(KNAME)
    if o.stamps: e("s_memrealtime s[86:87]")
    e("s_cmp_ge_u32 s2, 256"); e("s_cbranch_scc1 L_exit")
    e(f"s_getpc_b64 s[{T1}:{T1+1}]")
    if o.codepf == 2:
        e(f"s_lshr_b32 s{T0}, s2, 3"); e(f"s_mulk_i32 s{T0}, {CPL*128}"); e(f"v_min_u32 v252, {CPL-1}, v0"); e(f"v_lshl_add_u32 v252, v252, 7, s{T0}")
        e(f"global_load_dword v251, v252, s[{T1}:{T1+1}]")
    e("s_load_dwordx16 s[64:79], s[0:1], 0"); e("s_load_dwordx4 s[80:83], s[0:1], 64")
    if o.codepf == 1: e(f"s_and_b32 s{T1}, s{T1}, 0xffffff00")
    e("v_lshrrev_b32 v1, 6, v0"); e("v_and_b32 v254, 63, v0"); e(f"v_readfirstlane_b32 s{SW}, v1")
    if o.force_slow:
        e(f"s_lshr_b32 s{SGRP}, s2, 5"); e(f"s_and_b32 s{SMEM}, s2, 31")
    else:
        e(f"s_and_b32 s{SGRP}, s2, 7"); e(f"s_lshr_b32 s{SMEM}, s2, 3")
    vq = Q("vmcnt", 63)
    if o.codepf == 1:
        e(f"s_lshl_b32 s{T0}, s{SMEM}, 2"); e(f"s_add_u32 s{T0}, s{T0}, s{SW}"); e(f"s_mul_i32 s{T0}, s{T0}, 384")
        e(f"v_lshl_add_u32 v252, v254, 7, s{T0}"); e("v_min_u32 v252, L_codeend-%s-4, v252" % KNAME)
        e("s_mov_b64 exec, 7"); e(f"global_load_dword v251, v252, s[{T1}:{T1+1}]"); e("s_mov_b64 exec, -1")
    e(f"s_mov_b32 s{SLAY}, 0")
    if o.stamps:
        e(f"v_mov_b32 v{vSTAMP}, 0"); stamp(60); e("s_waitcnt lgkmcnt(0)"); e(f"v_writelane_b32 v{vSTAMP}, s86, 12"); stamp(61)
    VM = 215
    e(f"s_lshl_b32 s{SIDX}, s{SGRP}, 5"); e(f"s_add_u32 s{SIDX}, s{SIDX}, s{SMEM}")
    e(f"s_lshr_b32 s{SRB}, s{SIDX}, 4"); e(f"s_and_b32 s{SCB}, s{SIDX}, 15")
    e(f"s_mul_i32 s{sLW}, s{SW}, 6144")
    e("v_lshrrev_b32 v203, 3, v254"); e("v_and_b32 v204, 7, v254"); e("v_lshlrev_b32 v204, 4, v204"); e("v_lshl_add_u32 v210, v203, 11, v204")
    e("v_lshrrev_b32 v200, 2, v254"); e("v_and_b32 v201, 3, v254")
    e("v_mul_u32_u24 v202, 6144, v200"); e("v_lshl_add_u32 v202, v201, 4, v202")
    e(f"s_lshl_b32 s{T2}, s{SRB}, 2"); e(f"s_add_u32 s{T2}, s{T2}, s{SW}"); e(f"s_lshl_b32 s{T2}, s{T2}, 16")
    e(f"s_lshl_b32 s{T4}, s{SCB}, 7"); e(f"s_add_u32 s{T3}, s{T2}, s{T4}")
    e(f"s_lshl_b32 s{T6}, s{SGRP}, 2"); e(f"s_add_u32 s{T6}, s{T6}, s{SW}")
    e(f"s_mul_i32 s{T5}, s{T6}, {32*6144}"); e(f"s_lshl_b32 s{T4}, s{SMEM}, 6"); e(f"s_add_u32 s{T5}, s{T5}, s{T4}")
    e(f"v_lshlrev_b32 v{vL16}, 4, v254"); e(f"v_and_b32 v{vG16}, 48, v254"); e(f"v_and_b32 v{VM}, 15, v254")
    e(f"s_lshl_b32 s{T1}, s{SCB}, 11"); e(f"s_add_u32 s{sXs}, s{T1}, {WS_X}")
    e(f"s_mul_i32 s{sAo}, s{SMEM}, 196608"); e(f"s_add_u32 s{sAo}, s{sAo}, s{sLW}"); e(f"s_mul_i32 s{ROTW}, s{SGRP}, {SLOT}")
    e("s_waitcnt lgkmcnt(0)")
    if o.wsoff: e(f"s_add_u32 s{P_WS}, s{P_WS}, {o.wsoff << 20}"); e(f"s_addc_u32 s{P_WS+1}, s{P_WS+1}, 0")
    e(f"s_mov_b32 s4, s{P_WS}"); e(f"s_mov_b32 s5, s{P_WS+1}"); e(f"s_mov_b32 s6, {WS_SIZE}"); e("s_mov_b32 s7, 0x20000")
    e(f"s_or_b32 s{T0}, s{SMEM}, s{SW}"); e(f"s_cmp_eq_u32 s{T0}, 0"); e("s_cbranch_scc1 L_clr")
    A.label("L_p0a")
    def slowtouch(p):
        srt(p, 0x600000)
        e("s_mov_b32 exec_hi, 0xffff" if o.sfull else "s_mov_b64 exec, 0x3f"); e(f"buffer_load_dword v250, v249, {SRT}, s{sWo} offen"); e("s_mov_b64 exec, -1"); vq.add("t")
    if o.stouch:
        if o.sfull: e("v_lshlrev_b32 v249, 7, v254")
        else: e("v_lshlrev_b32 v249, 10, v254"); e("v_add_u32 v249, 384, v249")
        e(f"s_lshl_b32 s{T0}, s{SIDX}, 2"); e(f"s_add_u32 s{T0}, s{T0}, s{SW}"); e(f"s_mul_i32 s{sWo}, s{T0}, 6144")
        slowtouch(P_AW1)
        if o.stouch == 2: slowtouch(P_BW1)
    srt(P_AX, 0x400000)
    for i in range(4):
        e(f"s_add_u32 m0, s{sLW}, {i*1024}"); e(f"s_add_u32 s{T0}, s{T3}, {i*16384}")
        e(f"buffer_load_dwordx4 v210, {SRT}, s{T0} offen lds"); vq.add("x")
    def touch(p, *calc):
        if o.tlb: E(list(calc)); e(f"s_load_dword s{sTMO}, s[{p}:{p+1}], s{T0}")
    touch(P_WS, f"s_add_u32 s{T0}, s{T2}, s{sXs}")
    touch(P_WS, f"s_add_u32 s{T0}, s{sAo}, s{ROTW}", f"s_add_u32 s{T0}, s{T0}, {WS_W1A}")
    touch(P_WS, f"s_mov_b32 s{T0}, 0x1f0000")
    if o.tlb > 1:
        touch(P_BW1, f"s_mov_b32 s{T0}, s{T5}"); touch(P_AW2, f"s_lshl_b32 s{T0}, s{SRB}, 17"); touch(P_BW2)
    def clr():
        A.label("L_clr")
        for r in range(4): e(f"v_mov_b32 v{204+r}, 0")
        e(f"s_lshl_b32 s{T0}, s{SGRP}, 12")
        for j in range(4): e(f"buffer_store_dwordx4 v[204:207], v{vL16}, {SRD}, s{T0} offen offset:{j*1024} sc1")
        e(f"s_lshl_b32 s{T0}, s{SGRP}, 7"); e(f"s_add_u32 s{T0}, s{T0}, {WS_FLAGB}")
        e("s_mov_b64 exec, 0xff")
        for j in range(2): e(f"buffer_store_dwordx4 v[204:207], v{vL16}, {SRD}, s{T0} offen offset:{j*1024} sc1")
        e("s_mov_b64 exec, -1")
        e("s_nop 1"); e("s_branch L_p0a")
        A.label("L_setgo")
        srt(P_DBG, 256); e("v_mov_b32 v204, 1"); e(f"s_lshl_b32 s{T0}, s{SGRP}, 5")
        e("s_waitcnt vmcnt(12)")
        e("s_mov_b64 exec, 1"); e(f"buffer_store_dword v204, off, {SRT}, s{T0} sc1"); e("s_mov_b64 exec, -1")
        e("s_branch L_p0b")
    ool.append(clr)
    def raw1(p, ldsb, tag):
        srt(p, 0x600000)
        for seg in range(3):
            for hf in range(2):
                e(f"s_add_u32 m0, s{sLW}, {ldsb + seg*2048 + hf*1024}"); e(f"s_add_u32 s{T0}, s{T5}, {seg*2048 + hf*16*6144}")
                e(f"buffer_load_dwordx4 v202, {SRT}, s{T0} offen lds"); vq.add(tag)
    srt(P_PHI, 0x10000)
    e(f"s_add_u32 m0, s{sLW}, 4096"); e(f"s_lshl_b32 s{T0}, s{SMEM}, 11")
    for j in range(2): e(f"buffer_load_dwordx4 v{vL16}, {SRT}, s{T0} offen offset:{j*1024} lds"); vq.add("phi")
    raw1(P_AW1, RAW1A, "ra")
    e(f"s_or_b32 s{T0}, s{SMEM}, s{SW}"); e(f"s_cmp_eq_u32 s{T0}, 0"); e("s_cbranch_scc1 L_setgo")
    A.label("L_p0b")
    e(f"v_lshl_add_u32 v214, v{VM}, 7, v{vG16}"); e(f"v_add_u32 v214, s{sLW}, v214")
    e(f"v_add_u32 v{vB}, s{T2}, v{vL16}"); e(f"v_add_u32 v{vB+1}, 0x8000, v{vB}")
    e(f"s_lshr_b32 s{T2}, s{T2}, 8"); e(f"v_lshl_add_u32 v{vSTs}, v{VM}, 3, s{T2}")
    e(f"s_lshl_b32 s{T0}, s{SCB}, 14"); e(f"s_add_u32 s{sSTs}, s{T0}, {WS_ST}")
    mask64(mPAR, 0xAAAAAAAAAAAAAAAA); mask64(mB1, 0xCCCCCCCCCCCCCCCC); mask64(mDIAG, 0xF0000F0000F0000F)
    for r in range(4): e(f"v_mov_b32 v{ONES+r}, 0x3f803f80")
    stamp(28)
    E(vq.wait("x"))
    for i in range(2):
        for kk in range(2): e(f"ds_read_b128 {v(RES+8*i+4*kk,4)}, v214 offset:{i*2048 + kk*64}")
    e(f"v_add_u32 v{vW1}, s{sAo}, v{vL16}"); e(f"v_add_u32 v{vLW}, s{sLW}, v{vL16}")
    e("v_and_b32 v209, 3, v200"); e(f"v_lshrrev_b32 v203, 1, v{vG16}"); e("v_add_u32 v209, v209, v203")
    e("v_lshlrev_b32 v203, 6, v209"); e("v_lshl_add_u32 v205, v201, 3, v203"); e(f"v_add_u32 v205, s{sLW}, v205")
    e("v_lshl_add_u32 v206, v201, 4, v203"); e(f"s_add_u32 s{T1}, s{sLW}, {RAW1A}"); e(f"v_add_u32 v206, s{T1}, v206")
    e(f"v_lshrrev_b32 v203, 2, v{VM}"); e("v_lshl_add_u32 v203, v203, 3, v201"); e(f"v_lshl_add_u32 v203, v203, 6, v{vG16}"); e(f"v_add_u32 v208, s{T1}, v203")
    e(f"v_lshl_add_u32 v{vOut}, v{VM}, 11, v{vG16}")
    e("s_waitcnt lgkmcnt(0)")
    stamp(29)
    if o.stouch == 1: slowtouch(P_BW1)
    xtile(RES, 160, True)
    for i in range(6): vq.add("st")
    for blk in range(6):
        mask64(T1, 0x0001000100010001 << blk)
        for r in range(4): e(f"v_cndmask_b32 v{96+4*blk+r}, 0, v{ONES}, {sm(T1)}")
    def w1st(R, blk, sa, sb): return f"buffer_store_dwordx4 {a(R+4*blk,4)}, v{vW1}, {SRD}, s{sa if blk < 4 else sb} offen offset:{(blk%4)*1024} sc1"
    def csst(C, ad, sreg): return [f"s_mov_b32 exec_lo, 0x003f003f", "s_mov_b32 exec_hi, 0x003f003f",
                                   f"buffer_store_dwordx4 {C}, v{ad}, {SRD}, s{sreg} offen sc1", "s_mov_b64 exec, -1"]
    def retile1(rawoff, R, C, store):
        for blk in range(6):
            for t in range(2):
                e(f"ds_read_b64_tr_b16 {a(R+4*blk+2*t,2)}, v206 offset:{rawoff + (blk>>1)*2048 + t*256 + (blk&1)*8}")
        for blk in range(6):
            e(f"s_waitcnt lgkmcnt({10-2*blk})")
            if store: e(w1st(R, blk, T2, T4)); vq.add("st")
            e(f"{MF} {C}, {a(R+4*blk,4)}, {v(96+4*blk,4)}, {'0' if blk == 0 else C}")
    e(f"s_add_u32 s{T2}, s{ROTW}, {WS_W1A}"); e(f"s_add_u32 s{T4}, s{T2}, 4096")
    e(f"s_lshl_b32 s{T0}, s{T6}, 6"); e(f"s_mul_i32 s{T1}, s{SMEM}, 12288"); e(f"s_add_u32 s{T0}, s{T0}, s{T1}"); e(f"s_add_u32 s{sCL0}, s{T0}, {WS_CS}")
    E(vq.wait("phi"))
    for fb in range(2):
        for t in range(2): e(f"ds_read_b64_tr_b16 {v(PHI+4*fb+2*t,2)}, v205 offset:{4096 + fb*32 + t*256}")
    if o.bpre == 3: raw1(P_BW1, RAW1B, "rb")
    E(vq.wait("ra"))
    if o.bpre == 4: raw1(P_BW1, RAW1B, "rb")
    stamp(13)
    for seg in range(2):
        for kb in range(2): e(f"ds_read_b128 {v(120+8*seg+4*kb,4)}, v208 offset:{seg*2048 + kb*256}")
    for blk in (4, 5):
        for t in range(2): e(f"ds_read_b64_tr_b16 {a(RA+4*blk+2*t,2)}, v206 offset:{4096 + t*256 + (blk&1)*8}")
    for seg in range(2):
        e(f"s_waitcnt lgkmcnt({6-2*seg})")
        for fb in range(2):
            for kb in range(2): e(f"{MF} {v(160+16*seg+8*fb+4*kb,4)}, {v(120+8*seg+4*kb,4)}, {v(PHI+4*fb,4)}, 0")
    e("s_waitcnt lgkmcnt(0)")
    for blk in (4, 5):
        e(w1st(RA, blk, T2, T4)); vq.add("st")
        e(f"{MF} v[64:67], {a(RA+4*blk,4)}, {v(96+4*blk,4)}, {'0' if blk == 4 else 'v[64:67]'}")
    for blk in range(4):
        cvt4(136+4*blk, 160+8*blk, 164+8*blk)
        e(w1st(RA, blk, T2, T4).replace(a(RA+4*blk,4), v(136+4*blk,4))); vq.add("st")
        e(f"{MF} v[64:67], {v(136+4*blk,4)}, {v(96+4*blk,4)}, v[64:67]")
    for r in range(16): e(f"v_accvgpr_write_b32 a{RA+r}, v{136+r}")
    for blk in range(6): e(f"ds_write_b128 v{vLW}, {a(RA+4*blk,4)} offset:{SLOT + blk*1024}")
    E(csst(v(64,4), vOut, sCL0)); vq.add("st")
    srt(P_DBG, 256)
    e("v_and_b32 v253, 7, v254"); e("v_lshlrev_b32 v253, 5, v253"); e(f"s_cmp_eq_u32 s{SW}, 0"); e(f"s_cselect_b32 s{T0}, 0, {OOR}")
    e(f"buffer_load_dword v212, v253, {SRT}, s{T0} offen sc1"); vq.add("go")
    def raw2():
        e(f"s_lshl_b32 s{T0}, s{SRB}, 1"); e(f"s_and_b32 s{T1}, s{SW}, 1"); e(f"s_add_u32 s{T0}, s{T0}, s{T1}")
        e(f"s_lshl_b32 s{T1}, s{SCB}, 1"); e(f"s_lshr_b32 s{T3}, s{SW}, 1"); e(f"s_add_u32 s{T1}, s{T1}, s{T3}"); e(f"s_lshl_b32 s{T1}, s{T1}, 6")
        e(f"s_lshl_b32 s{T0}, s{T0}, 16"); e(f"s_add_u32 s{T0}, s{T0}, s{T1}"); e(f"s_add_u32 s{T1}, s{T0}, 0x8000")
        e("v_lshlrev_b32 v203, 11, v200"); e("v_lshl_add_u32 v207, v201, 4, v203")
        for wt, p in enumerate((P_AW2, P_BW2)):
            srt(p, 0x200000)
            for i in range(2):
                e(f"s_add_u32 m0, s{sLW}, {RAW2 + wt*2048 + i*1024}")
                e(f"buffer_load_dwordx4 v207, {SRT}, s{T0 + i} offen lds"); vq.add("rb")
    if o.bbar: e("s_barrier")
    if o.stouch == 3: slowtouch(P_BW1)
    if o.bpre == 1: raw1(P_BW1, RAW1B, "rb")
    if o.bpre >= 2: raw2()
    if o.bpre == 5: raw1(P_BW1, RAW1B, "rb")
    stamp(30)
    e(f"s_getreg_b32 s{SXCC}, hwreg(HW_REG_XCC_ID, 0, 4)"); e(f"s_or_b32 s{SXCC}, s{SXCC}, 0x100")
    e(f"v_mov_b32 v{vVal}, s{SXCC}")
    e(f"s_and_b32 s{T3}, s{SW}, 1"); e(f"s_lshr_b32 s{T4}, s{SW}, 1")
    e(f"s_lshl_b32 s{T0}, s{SRB}, 1"); e(f"s_add_u32 s{T0}, s{T0}, s{T3}"); e(f"s_lshl_b32 s{sW2s}, s{T0}, 12"); e(f"s_lshl_b32 s{T0}, s{T4}, 11")
    e(f"s_add_u32 s{sW2s}, s{sW2s}, s{T0}"); e(f"s_lshl_b32 s{T0}, s{SCB}, 17"); e(f"s_add_u32 s{sW2s}, s{sW2s}, s{T0}"); e(f"s_add_u32 s{sW2s}, s{sW2s}, {WS_W2A}")
    e(f"s_lshl_b32 s{T1}, s{SMEM}, 15"); e(f"s_lshl_b32 s{T2}, s{SW}, 10"); e(f"s_add_u32 s{T1}, s{T1}, s{T2}"); e(f"s_add_u32 s{sKV}, s{T1}, {WS_KVP - WS_X + (1<<32)}")
    e(f"s_lshr_b32 s{T1}, s{T1}, 4"); e(f"s_add_u32 s{sZP}, s{T1}, {WS_ZP}")
    for s_ in range(8):
        e(f"s_add_u32 s{T1}, s{SGRP}, {s_}"); e(f"s_and_b32 s{T1}, s{T1}, 7")
        e(f"s_mul_i32 s{ROTW+s_}, s{T1}, {SLOT}"); e(f"s_lshl_b32 s{T1}, s{T1}, 12"); e(f"s_add_u32 s{ROTA+s_}, s{T1}, {WS_X}")
    e(f"s_lshl_b32 s{T1}, s{SIDX}, 11"); e(f"s_add_u32 s{sHALO}, s{T1}, {WS_HALO}")
    e(f"s_lshl_b32 s{T1}, s{SMEM}, 10"); e(f"s_add_u32 s{sO}, s{T1}, {WS_O}")
    touch(P_WS, f"s_mov_b32 s{T0}, s{sW2s}")
    touch(P_WS, f"s_add_u32 s{T0}, s{sKV}, s{ROTA}")
    touch(P_WS, f"s_add_u32 s{T0}, s{sW2s}, {WS_W2B - WS_W2A}")
    touch(P_WS, f"s_add_u32 s{T0}, s{sAo}, s{ROTW}", f"s_add_u32 s{T0}, s{T0}, {WS_W1B}")
    touch(P_WS, f"s_mov_b32 s{T0}, s{sHALO}")
    touch(P_WS, f"s_lshl_b32 s{T0}, s{T6}, 17", f"s_add_u32 s{T0}, s{T0}, s{sO}")
    touch(P_OUT, f"s_lshl_b32 s{T0}, s{SRB}, 18", f"s_lshl_b32 s{T1}, s{SCB}, 7", f"s_add_u32 s{T0}, s{T0}, s{T1}")
    e(f"s_lshl_b32 s{T0}, s{SGRP}, 5"); e(f"v_add_u32 v203, s{T0}, v254")
    e("v_and_b32 v204, 7, v254"); e(f"v_lshl_add_u32 v204, v204, 5, s{SMEM}")
    mask64(T1, 0x00000000FFFFFFFF); e(f"v_cndmask_b32 v211, v204, v203, {sm(T1)}"); e("v_lshlrev_b32 v211, 7, v211")
    E(vq.wait("go"))
    stamp(31)
    e(f"s_cmp_eq_u32 s{SW}, 0"); e(f"s_cselect_b32 s{T0}, 1, 0")
    e(f"v_cmp_ne_u32 vcc, s{T0}, v212"); e("s_cbranch_vccnz L_goslow")
    A.label("L_gook")
    def goslow():
        A.label("L_goslow"); srt(P_DBG, 256); e("s_waitcnt lgkmcnt(0)"); e(f"s_mov_b32 s{sTMO}, 0")
        A.label("L_gol")
        e(f"buffer_load_dword v212, v253, {SRT}, 0 offen sc1"); e("s_waitcnt vmcnt(0)")
        e("v_cmp_ne_u32 vcc, 1, v212"); e("s_cbranch_vccz L_gook")
        tmo("L_gol"); e("s_branch L_gook")
    ool.append(goslow)
    e(f"s_lshl_b32 s{T0}, s{SIDX}, 7"); e(f"s_cmp_eq_u32 s{SW}, 0"); e(f"s_cselect_b32 s{T0}, s{T0}, {OOR}")
    e("s_barrier")
    e("s_mov_b64 exec, 1"); e(f"buffer_store_dword v{vVal}, off, {SRD}, s{T0} sc1"); e("s_mov_b64 exec, -1"); vq.add("fa")
    stamp(14)
    if o.bpre < 2: raw2()
    if o.bpre in (0, 2): raw1(P_BW1, RAW1B, "rb")
    e(f"s_and_b32 s{T3}, s{SW}, 1"); e(f"s_lshr_b32 s{T4}, s{SW}, 1")
    mask64(mM0, 0x0001000100010001); mask64(mG0, 0xFFFF0000FFFF0000); mask64(mG1, 0xFFFFFFFF00000000)
    mask64(mOWN0, sum(1 << l for l in range(64) if 4*(l >> 4) + (l & 1) <= (l & 15)))
    mask64(mOWN1, sum(1 << l for l in range(64) if 4*(l >> 4) + 2 + (l & 1) <= (l & 15)))
    e(f"s_lshl_b32 s{T1}, s{T6}, 7"); e(f"s_add_u32 s{sFXc}, s{T1}, {WS_FLAGX}")
    e(f"s_lshl_b32 s{T2}, s{SMEM}, 2"); e(f"s_add_u32 s{T1}, s{T1}, s{T2}"); e(f"s_add_u32 s{sFOp}, s{T1}, {WS_FLAGO}")
    e(f"s_lshl_b32 s{T1}, s{SRB}, 1"); e(f"s_add_u32 s{T1}, s{T1}, s{T4}"); e(f"s_lshl_b32 s{T1}, s{T1}, 7")
    e(f"s_add_u32 s{sFOc}, s{T1}, {WS_FLAGO}")
    e(f"s_lshl_b32 s{T2}, s{SCB}, 3"); e(f"s_lshl_b32 s{T0}, s{T3}, 2")
    e(f"s_add_u32 s{T1}, s{T1}, s{T2}"); e(f"s_add_u32 s{T1}, s{T1}, s{T0}"); e(f"s_add_u32 s{sFXp}, s{T1}, {WS_FLAGX}")
    e(f"s_lshl_b32 s{T0}, s{SGRP}, 8"); e(f"s_add_u32 s{sCL1}, s{T0}, s{sZP}")
    e(f"s_lshl_b32 s{T1}, s{T3}, 10"); e(f"s_lshl_b32 s{T2}, s{T4}, 19")
    e(f"s_add_u32 s{T1}, s{T1}, s{T2}"); e(f"s_add_u32 s{sCL2}, s{T1}, s{sHALO}")
    e(f"s_lshl_b32 s{T1}, s{SIDX}, 2"); e(f"s_add_u32 s{T1}, s{T1}, {WS_FLAGB}"); e(f"s_cmp_eq_u32 s{SW}, 0"); e(f"s_cselect_b32 s{sFBp}, s{T1}, {OOR}")
    e(f"s_lshl_b32 s{sL14}, s{SW}, 13"); e(f"s_lshl_b32 s{sW2l}, s{SW}, 11")
    e(f"s_mov_b32 s{sRX}, {OOR}"); e(f"s_mov_b32 s{sRO}, {OOR}")
    e(f"s_mov_b32 s{sW1}, {WS_W1A}"); e(f"s_mov_b32 s{sW2}, {WS_W2A}"); e(f"s_mov_b32 s{sCSL}, 0"); e(f"s_mov_b32 s{sCK}, {CK_A}")
    e(f"s_or_b32 s{T0}, s{SGRP}, s{SW}"); e(f"s_cmp_eq_u32 s{T0}, 0"); e(f"s_cselect_b64 {sm(mFIRST)}, -1, 0")
    e(f"v_add_u32 v{vL64}, 0x10000, v{vL16}"); e(f"v_add_u32 v{vL128}, 0x20000, v{vL16}")
    e(f"v_and_b32 v{vFP}, 31, v254"); e(f"v_lshlrev_b32 v{vFP}, 2, v{vFP}")
    e(f"s_lshl_b32 s{T1}, s{T6}, 17"); e(f"v_add_u32 v{vA}, s{T1}, v{vL16}")
    for i in range(1, 4): e(f"v_add_u32 v{vA+i}, {i*0x8000}, v{vA}")
    e(f"s_lshl_b32 s{T1}, s{T6}, 9"); e("v_lshrrev_b32 v213, 5, v254"); e(f"v_lshl_add_u32 v{vSTl}, v213, 17, s{T1}"); e(f"v_lshl_add_u32 v{vSTl}, v{vFP}, 2, v{vSTl}")
    e(f"s_lshl_b32 s{T1}, s{SCB}, 17"); e(f"s_add_u32 s{T1}, s{T1}, s{sLW}"); e(f"v_add_u32 v{vW2}, s{T1}, v{vL16}")
    e("v_lshrrev_b32 v203, 4, v254"); e("v_xor_b32 v204, v203, v201"); e("v_lshlrev_b32 v204, 3, v204"); e("v_lshl_add_u32 v208, v200, 5, v204")
    e(f"s_lshl_b32 s{T2}, s{SW}, 12")
    e(f"v_lshrrev_b32 v204, 2, v{VM}"); e("v_xor_b32 v203, v203, v204"); e("v_lshlrev_b32 v203, 3, v203")
    e(f"v_lshl_add_u32 v203, v{VM}, 5, v203"); e(f"v_add_u32 v{vXW}, s{T2}, v203")
    e(f"v_add_u32 v{vVo}, s{T2}, v208")
    e(f"s_add_u32 s{T0}, s{T2}, {VB_LDS - 1024}"); e(f"s_cmp_eq_u32 s{SW}, 0"); e(f"s_cselect_b32 s{T0}, {M_HV}, s{T0}"); e(f"v_add_u32 v{vVp}, s{T0}, v208")
    e(f"s_lshl_b32 s{T0}, s{T4}, 14"); e(f"s_lshl_b32 s{T1}, s{T3}, 9"); e(f"s_add_u32 s{T2}, s{T0}, s{T1}"); e(f"v_add_u32 v{vE0}, s{T2}, v208")
    e(f"s_lshl_b32 s{T1}, s{T3}, 3")
    e(f"v_add_u32 v{vGM}, {M}, v{vG16}")
    e(f"s_lshl_b32 s{T0}, s{T4}, 6"); e(f"s_add_u32 s{T0}, s{T0}, s{T1}"); e(f"v_add_u32 v{vZW}, s{T0}, v{vGM}")
    e(f"s_lshl_b32 s{T0}, s{SW}, 10"); e(f"s_add_u32 s{T0}, s{T0}, {M_KX}"); e(f"v_add_u32 v{vKX}, s{T0}, v{vL16}")
    e(f"s_lshl_b32 s{T0}, s{SW}, 9"); e(f"s_add_u32 s{T0}, s{T0}, {M_ST}")
    e(f"v_lshl_add_u32 v203, v213, 3, s{T0}"); e(f"v_lshl_add_u32 v{vSW}, v{vFP}, 2, v203"); e(f"v_lshl_add_u32 v{vSR}, v{VM}, 3, s{T0}")
    e(f"v_and_b32 v203, 7, v{VM}"); e(f"v_lshl_add_u32 v{vZL}, v203, 8, v{vG16}")
    e("v_mov_b32 v203, 0xffff"); e("v_mov_b32 v204, 0xffff0000"); e(f"v_cndmask_b32 v203, v203, v204, {sm(mPAR)}")
    e(f"v_cndmask_b32 v{MO0}, 0, v203, {sm(mOWN0)}"); e(f"v_cndmask_b32 v{MO1}, 0, v203, {sm(mOWN1)}")
    e(f"v_xor_b32 v{MP0}, v203, v{MO0}"); e(f"v_xor_b32 v{MP1}, v203, v{MO1}")
    if o.xf:
        e(f"s_lshl_b32 s{T0}, s{SMEM}, 2"); e(f"s_add_u32 s{T0}, s{T0}, s{SW}"); e(f"s_lshr_b32 s{T1}, s{T0}, 3"); e(f"s_and_b32 s{T0}, s{T0}, 7")
        e(f"s_lshl_b32 s{T2}, s{SGRP}, 4"); e(f"s_add_u32 s{T1}, s{T1}, s{T2}"); e(f"s_lshl_b32 s{T1}, s{T1}, 15"); e(f"s_lshl_b32 s{T0}, s{T0}, 9"); e(f"s_add_u32 s{T0}, s{T0}, s{T1}")
        e(f"v_lshl_add_u32 v{vTCH}, v{vG16}, 3, s{T0}")
    if o.xt:
        e(f"v_sub_u32 v203, v{vB}, v{vL16}"); e("v_lshrrev_b32 v204, 3, v254"); e(f"v_lshl_add_u32 v{vTCH}, v204, 7, v203")
    for r in range(4): e(f"v_mov_b32 v{FBV+r}, -1")
    e(f"v_mov_b32 v{vVal}, 0"); e(f"s_add_u32 s{T0}, s{sKV}, s{ROTA}")
    e(f"buffer_store_dwordx4 {v(FBV,4)}, v{vL16}, {SRD}, s{T0} offen sc1")
    e(f"s_mov_b64 exec, {sm(mM0)}"); e(f"buffer_store_dwordx4 {v(FBV,4)}, v{vG16}, {SRD}, s{sCL1} offen sc1")
    e("s_mov_b64 exec, 1"); e(f"buffer_store_dword v{vVal}, off, {SRD}, s{sFOp} sc1"); e(f"buffer_store_dword v{vVal}, off, {SRD}, s{sFXp} sc1"); e("s_mov_b64 exec, -1")
    for i in range(4): vq.add("st")
    e(f"s_cmp_eq_u32 s{SW}, 0"); e(f"s_cselect_b32 s{T5}, 0, {OOR}")
    E(vq.wait("rb"))
    stamp(44)
    pl = ["v_mov_b32 v212, 0", "s_mov_b32 exec_hi, 0xff", f"buffer_atomic_or v212, v211, {SRD}, s{T5} offen sc0 sc1", "s_mov_b64 exec, -1"] if o.apoll else \
         [f"buffer_load_dword v212, v211, {SRD}, s{T5} offen sc1"]
    E(pl); vq.add("poll")
    for wt in range(2):
        for b_ in range(2):
            for t in range(2):
                d_ = v(224+4*b_+2*t, 2) if wt == 0 else a(HW2+4*b_+2*t, 2)
                e(f"ds_read_b64_tr_b16 {d_}, v206 offset:{2*SLOT + wt*2048 + t*256 + b_*8}")
    e("s_waitcnt lgkmcnt(0)")
    for b_ in range(2): e(f"buffer_store_dwordx4 {v(224+4*b_,4)}, v{vL16}, {SRD}, s{sW2s} offen offset:{b_*1024} sc1"); vq.add("st")
    retile1(SLOT, RB, a(HCS,4), False)
    stamp(45)
    E(vq.wait("poll"))
    e(f"s_cmp_lg_u32 s{SW}, 0"); e("s_cbranch_scc1 L_faok")
    e(f"s_mov_b32 s{sTMO}, 0")
    A.label("L_fal")
    e("s_mov_b32 exec_hi, 0xff"); e("v_cmp_eq_u32 vcc, 0, v212"); e("s_mov_b64 exec, -1"); e("s_cbranch_vccz L_fad")
    E(pl); e("s_waitcnt vmcnt(0)")
    tmo("L_fal")
    A.label("L_fad")
    e(f"v_cmp_ne_u32 {sm(T1)}, s{SXCC}, v212"); e(f"v_mov_b32 v212, s{T1}")
    e(f"ds_write_b32 v{vGM}, v212"); e("s_waitcnt lgkmcnt(0)")
    A.label("L_faok")
    e("s_barrier")
    stamp(15)
    e(f"ds_read_b32 v{FBV}, v{vGM}")
    if not o.afirst:
        for i in range(6): E(w1_piece(1, i))
    e("s_branch L_g1")

    A.raw(".p2align 6")
    for j in range(o.pad): A.raw("    s_nop 0")
    A.label("L_g1pre")
    e("s_mov_b64 exec, 1")
    e("s_waitcnt vmcnt(0)")
    st_mode([f"buffer_store_dword v{vVal}, off, {SRD}, s{sFXp}"])
    e("s_mov_b64 exec, -1")
    stamp(10)
    e(f"s_add_u32 s{SLAY}, s{SLAY}, 1")
    poll_ge(vFP, sFXc, SLAY, FBV)
    lq = Q("lgkmcnt", 15)
    def wdst(step, c):
        if c < 2 and step >= 32 - ND: return a(WQ + 8*(step - (32-ND)) + 4*c, 4)
        return v(WFV + 4*c, 4)
    def w1rd(step, c):
        lq.add(("W", step, c))
        return ldsrd(wdst(step, c), ((step//4 + 1) % 6)*SLOT + (step % 4)*6144 + c*1024)
    A.label("L_g1")
    stamp(0)
    vq.clear()
    if not o.afirst:
        for i in range(6): vq.add(("W", 1))
    def aload(step, i):
        d = RING + 16*(step % AD) + 4*i
        vq.add(("A", step))
        return [f"buffer_load_dwordx4 {a(d,4)}, v{vA+i}, {SRD}, s{ROTA + step//4} offen offset:{(step%4)*1024} sc1"]
    anext = [(st, i) for st in range(32) for i in range(4)]
    for j in range(o.bpos): E(aload(*anext.pop(0)))
    e("s_waitcnt lgkmcnt(0)")
    e("s_barrier")
    for c in range(6): e(w1rd(0, c))
    for j in range(4*o.APRE - o.bpos): E(aload(*anext.pop(0)))
    E(first_only([f"v_readfirstlane_b32 s{SMODE}, v{FBV}"] + (sum((w1_piece(1, i) for i in range(6)), []) if o.afirst else [])))
    if o.afirst: vq.add(("W", 1), ghost=True)
    pend = [("W", st, i) for st in range(2 + o.x_skip + o.res2, 8) for i in range(6)] + [("W2", p, i) for p in range(4) for i in range(6)]
    def allowed(p, step):
        if p[0] == "W": return step >= o.w1start and (p[1] < 6 or step >= 4*(p[1]-5) + 3)
        return step >= max(4*(p[1]+3) + 3, o.w2start)
    misc = []
    for j in range(8):
        misc.append((o.sper*j, ("S", j), [f"s_mov_b32 s{T0}, {WS_ST + j*16384}"], f"buffer_load_dwordx4 {v(160+4*j,4)}, v{vSTl}, {SRD}, s{T0} offen sc1"))
    rs = []
    if o.rex: rs += [f"buffer_store_dwordx4 {v(RES+8*i+4*kk,4)}, v{vB+i}, {SRD}, s{sRX} offen offset:{kk*1024} sc1" for i in range(2) for kk in range(2)]
    if o.reo: rs += [f"buffer_store_dwordx4 {v(224+4*i,4)}, v{vA+i}, {SRD}, s{sRO} offen sc1" for i in range(4)]
    rsq = [(o.re0 + (j*o.reper)//2, t_) for j, t_ in enumerate(rs)]
    if o.touch: misc.append((o.tstep0, "T", [], f"buffer_load_dword v{vJUNK}, v{vTCH}, {SRD}, 0 offen sc1"))
    sh = []
    def S(step, *ins): sh.append((step, lambda ins=ins: list(ins)))
    oq = []
    def once(step, name, body, nl=1, eq=None):
        def f():
            ins = body()
            def blk():
                A.label(f"L_{name}"); e("s_nop 1"); E(ins); e(f"s_branch L_{name}_r")
            ool.append(blk)
            return [f"s_cmp_lt_u32 s{SLAY}, {nl}" if eq is None else f"s_cmp_eq_u32 s{SLAY}, {eq}", f"s_cbranch_scc1 L_{name}", f"L_{name}_r:"]
        oq.append((step, f))
    def G(tag, ins):
        def f(): vq.add(tag, ghost=True); return ins
        return f
    dlast = -1
    if o.res2:
        n2 = 6 // o.w1start
        for j_ in range(o.w1start): once(j_, f"s2_{j_}", G(("W", 2), sum((w1_piece(2, i) for i in range(n2*j_, n2*(j_+1))), [])), nl=2)
        for par, R in enumerate((RA2, RB2)):
            def cap(R=R):
                lq.add("cap", ghost=True)
                return [f"v_add_u32 v{FBV}, {3*SLOT}, v{vLW}"] + [f"ds_read_b128 {a(R+4*b_,4)}, v{FBV} offset:{b_*1024}" for b_ in range(6)]
            once(8, f"cap{par}", cap, eq=par)
    once(o.cs0, "csl", G("CS", cs_load(224)), nl=2)
    def b_csp():
        lq.add("csw", ghost=True)
        return vq.wait("CS", keep=True) + cs_proc(224)
    once(o.cs0 + 5, "csp", b_csp, nl=2)
    def b_set():
        assert cdone[0]
        return [f"v_mov_b32 v{vVal}, 1", "s_mov_b64 exec, 1", f"buffer_store_dword v{vVal}, off, {SRD}, s{sFBp} sc1", "s_mov_b64 exec, -1"]
    cdone = [False]
    def fb_ld(off): return [f"s_mov_b32 s{T1}, {WS_FLAGB + off}", f"buffer_load_dwordx4 {v(FBV,4)}, v{vL16}, {SRD}, s{T1} offen sc1"]
    def fb_chk(name):
        return vq.wait("F", keep=True) + [f"s_mov_b32 s{sTMO}, 0", f"L_{name}_l:",
            f"v_and_b32 v{FBV}, v{FBV}, v{FBV+1}", f"v_and_b32 v{FBV+2}, v{FBV+2}, v{FBV+3}", f"v_and_b32 v{FBV}, v{FBV}, v{FBV+2}",
            f"v_cmp_ne_u32 vcc, 1, v{FBV}", f"s_cbranch_vccz L_{name}_r",
            f"buffer_load_dwordx4 {v(FBV,4)}, v{vL16}, {SRD}, s{T1} offen sc1", "s_waitcnt vmcnt(0)",
            f"s_add_u32 s{sTMO}, s{sTMO}, 1", f"s_cmp_lt_u32 s{sTMO}, 0x100000", f"s_cbranch_scc1 L_{name}_l"]
    once(4, "fbset", b_set)
    once(o.w2start - 7, "fbld", G("F", fb_ld(0)))
    once(o.w2start - 2, "fbchk", lambda: fb_chk("fbchk"))
    fbs = o.w2start - 12
    assert o.w2start > min(fbs + 10, 31)
    oq.sort(key=lambda x: x[0])
    first = True
    for st in (16, 8, 4):
        for r in range(0, st, 2):
            ins = [f"v_add_f32 v{160+r}, v{160+r}, v{160+r+st}", f"v_add_f32 v{161+r}, v{161+r}, v{161+r+st}"]
            if first: sh.append((17, lambda ins=ins: vq.wait(("S", 7)) + ins)); first = False
            else: S(17, *ins)
    S(17, "s_nop 0"); S(17, "v_permlane32_swap_b32 v160, v162"); S(17, "v_permlane32_swap_b32 v161, v163")
    S(17, "v_add_f32 v160, v160, v162", "v_add_f32 v161, v161, v163")
    S(17, f"v_mul_f32 v163, {f32hex(-1.0/1024)}, v160", f"v_mul_f32 v161, {f32hex(1.0/1024)}, v161")
    S(17, "v_fma_f32 v161, -v163, v163, v161", "v_max_f32 v161, 0, v161")
    S(17, f"v_add_f32 v161, {f32hex(1e-5)}, v161", f"v_add_u32 v{CI}, s{sCSL}, v{vGM}")
    S(17, "v_rsq_f32 v162, v161")
    def L(tag, ins):
        def f(): lq.add(tag); return [ins]
        sh.append((17, f))
    L("sw", f"ds_write_b64 v{vSW}, v[162:163]")
    for i in range(4): L("st", f"ds_read_b64 {v(STP+2*i,2)}, v{vSR} offset:{i*128}")
    for c in range(6): L("cs", f"ds_read_b128 {v(CSR+4*c,4)}, v{CI} offset:{M_CS-M+c*64}")
    fix = None
    credit = 0.0
    for step in range(32):
        stage = step // 4
        deferred = step >= 32 - ND
        cs_ = range(2, 6) if deferred else range(6)
        ng = len(cs_)
        assert not anext or anext[0][0] > step
        E(vq.wait(("A", step)))
        if o.g1prof and step == 0: stamp(2, 1)
        if step % 4 == 3 and stage < 7:
            assert not any(p[0] == "W" and p[1] <= stage+1 for p in pend)
            if ("W", stage+1) in vq.seen: E(vq.wait(("W", stage+1)))
            e("s_barrier")
            if o.g1prof: stamp(3 + stage, 1)
            if step > dlast and "C" not in vq.q: cdone[0] = True
            if step == 15: assert "csw" in lq.seen and "csw" not in lq.q
        plan = []
        na = 0
        while len(plan) < ng and na < len(anext) and ((anext[na][0] <= step + o.LA and na < (4 if anext[na][0] >= step + o.APRE else 6)) if not o.plan else anext[na][0] <= step + o.APRE):
            plan.append("A"); na += 1
        if step >= o.w1start: credit = min(credit + (o.wrate if (pend and pend[0][0] == "W") else o.w2rate) / 100.0, max(3.0, o.w2rate/100.0))
        nw = 0
        while len(plan) < ng and nw < len(pend) and allowed(pend[nw], step) and credit >= 1:
            plan.append("W"); nw += 1; credit -= 1
        nm = 0
        while len(plan) < ng and nm < len(misc) and misc[nm][0] <= step:
            plan.append("M"); nm += 1
        while len(plan) < ng and na < len(anext) and anext[na][0] <= step + o.LA:
            plan.append("A"); na += 1
        oth = [p for p in plan if p != "A"]; aa = [p for p in plan if p == "A"]; plan = []
        while oth or aa:
            if aa: plan.append(aa.pop())
            if aa and len(aa) >= 2*len(oth): plan.append(aa.pop())
            if oth: plan.append(oth.pop(0))
        a0 = RING + 16*(step % AD)
        for gi, c in enumerate(cs_):
            vm = None
            order = range(4) if c % 2 == 0 else reversed(range(4))
            for p, i in enumerate(order):
                if p == 0: E(lq.wait(("W", step, c)))
                e(f"{MF} {v(acc(c,i),4)}, {wdst(step,c)}, {a(a0+4*i,4)}, {'0' if step == 0 else v(acc(c,i),4)}")
                busy = False
                if p == 0 and gi < len(plan):
                    k = plan[gi]
                    if k == "A": vm = lambda: aload(*anext.pop(0))
                    elif k == "W":
                        pc = pend.pop(0); ins = w1_piece(pc[1], pc[2]) if pc[0] == "W" else w2_piece(pc[1], pc[2])
                        E(ins[:-1]); busy = len(ins) > 1
                        vm = lambda pc=pc, ins=ins: (vq.add((pc[0], pc[1]), ghost=ins[-1].startswith("s_nop")), ins[-1:])[1]
                    else:
                        mi = misc.pop(0); E(mi[2]); busy = len(mi[2]) > 0
                        vm = lambda mi=mi: (vq.add(mi[1], ghost=o.x_nost), ["s_nop 0" if o.x_nost else mi[3]])[1]
                if p == 1 and vm: E(vm()); busy = True
                if p == 3:
                    busy = True
                    if step < 31: e(w1rd(step+1, c))
                if p == 2 and step < 31 and step + 1 >= 32 - ND and deferred and gi < 2:
                    e(w1rd(step+1, gi)); busy = True
                if not busy and p == 2 and gi % 3 == 1 and rsq and rsq[0][0] <= step:
                    e(rsq.pop(0)[1]); vq.add("R"); busy = True
                if not busy and p == 2 and oq and oq[0][0] <= step:
                    E(oq.pop(0)[1]()); busy = True
                if not busy:
                    if sh and sh[0][0] <= step: E(sh.pop(0)[1]())
                    elif not sh:
                        if fix is None:
                            E(lq.wait("cs"))
                            fix = {cc: [f"v_fmac_f32 v{acc(cc,ii)+j}, v{CSR+4*cc+j}, v{STP+2*ii+1}" for ii in range(4) for j in range(4)] for cc in range(6)}
                            fix["ci"] = [f"v_mul_f32 v{CI+ii}, s{sCK}, v{STP+2*ii}" for ii in range(4)]
                        lst = list(cs_)
                        cand = [lst[(gi + ng//2) % ng]] + ([0, 1] if deferred and step > 32 - ND else []) + ["ci"]
                        for cc in cand:
                            if fix[cc]:
                                E(fix[cc][:2]); fix[cc] = fix[cc][2:]; break
    assert not anext and not misc and not sh and not oq and all(p[0] == "W2" for p in pend), (pend, anext, misc, len(sh))
    left = [w2_piece(p[1], p[2]) for p in pend]
    assert all(not x for x in fix.values()), {k: len(x) for k, x in fix.items()}
    e("s_waitcnt lgkmcnt(0)"); e("s_barrier")
    stamp(1)
    e(f"s_bitcmp1_b32 s{SLAY}, 0"); e("s_cbranch_scc1 L_epiB")
    qm = [f"{MF} {v(acc(c,i),4)}, {wdst(step,c)}, {a(RING+16*(step%AD)+4*i,4)}, {v(acc(c,i),4)}"
          for step in range(32-ND, 32) for c in range(2) for i in (range(4) if c == 0 else reversed(range(4)))]

    def xw(r, kb, ad=vXW): return "s_nop 0" if o.x_nods else f"ds_write2st64_b64 v{ad}, {v(r,2)}, {v(r+2,2)} offset0:{2*kb} offset1:{2*kb+1}"
    def ostore(i, r, wt=False):
        if o.oall or wt: e(f"buffer_store_dwordx4 {v(r,4)}, v{vA+i}, {SRD}, s{sO} offen sc1")
        else: st_mode([f"buffer_store_dwordx4 {v(r,4)}, v{vA+i}, {SRD}, s{sO} offen {['', '', 'nt', 'sc0', 'sc0 nt'][o.osc]}"], T6)
    def omode():
        e(f"s_cmp_eq_u32 s{SLAY}, 0"); e(f"s_cselect_b32 s{T6}, {0 if o.osc else 1}, s{SMODE}")
        if o.o4sc: e(f"s_cmp_eq_u32 s{SLAY}, 3"); e(f"s_cselect_b32 s{T6}, 1, s{T6}")
    lates = [w2_late(i) for i in range(8)]

    def feat_head(c0, F, tmp, hook=None):
        MX, MN = tmp, tmp+4
        for i in (3, 2, 1, 0):
            p0, p1 = acc(c0,i), acc(c0+1,i)
            for op, op2, d in (("v_max3_f32", "v_max_f32", MX+i), ("v_min3_f32", "v_min_f32", MN+i)):
                e(f"{op} v{d}, v{p0}, v{p0+1}, v{p0+2}"); e(f"{op} v{d}, v{d}, v{p0+3}, v{p1}")
                e(f"{op} v{d}, v{d}, v{p1+1}, v{p1+2}"); e(f"{op2} v{d}, v{d}, v{p1+3}")
        if hook: hook()
        xreduce([("v_max_f32", [MX, MX+1, MX+2, MX+3]), ("v_min_f32", [MN, MN+1, MN+2, MN+3])])
        for i in range(4):
            e(f"v_mul_f32 v{MX+i}, -v{MX+i}, v{CI+i}"); e(f"v_mul_f32 v{MN+i}, v{MN+i}, v{CI+i}")
        for i in range(4):
            for fb in range(2):
                for h in range(2):
                    pk_fma(224+8*i+4*fb+2*h, acc(c0+fb,i)+2*h, CI+i, ('b', MX+i))
                    pk_fma(acc(c0+fb,i)+2*h, acc(c0+fb,i)+2*h, CI+i, ('b', MN+i), negx=True)
    def exps(c0, i):
        for r in range(8): e(f"v_exp_f32 v{224+8*i+r}, v{224+8*i+r}")
        for fb in range(2):
            for r in range(4): e(f"v_exp_f32 v{acc(c0+fb,i)+r}, v{acc(c0+fb,i)+r}")
    dl = [[f"s_add_u32 s{T2}, s{ROTW}, {WS_W1B}", f"s_add_u32 s{T4}, s{T2}, 4096", w1st(RB, 0, T2, T4)]] + [[w1st(RB, b_, T2, T4)] for b_ in range(1, 6)]
    dl += [[f"s_add_u32 s{T1}, s{sW2s}, {WS_W2B - WS_W2A}", f"buffer_store_dwordx4 {a(HW2,4)}, v{vL16}, {SRD}, s{T1} offen sc1"],
           [f"buffer_store_dwordx4 {a(HW2+4,4)}, v{vL16}, {SRD}, s{T1} offen offset:1024 sc1", f"s_add_u32 s{T1}, s{sCL0}, {CS_SZ}"] + csst(a(HCS,4), vOut, T1),
           [f"v_accvgpr_write_b32 a{252+r}, -1" for r in range(4)] + [f"buffer_store_dwordx4 a[252:255], v{vL16}, {SRD}, s{sCL2} offen sc1"],
           [f"s_add_u32 s{T1}, s{sKV}, s{ROTA}", f"s_add_u32 s{T1}, s{T1}, 0x100000", f"buffer_store_dwordx4 a[252:255], v{vL16}, {SRD}, s{T1} offen sc1",
            f"s_add_u32 s{T1}, s{sCL1}, 0x10000", f"s_mov_b64 exec, {sm(mM0)}", f"buffer_store_dwordx4 a[252:255], v{vG16}, {SRD}, s{T1} offen sc1", "s_mov_b64 exec, -1"]]
    dl = [sum(dl[j_:j_+o.dmerge], []) if j_ % o.dmerge == 0 else None for j_ in range(len(dl))]
    mix = []
    for j_ in range(max(len(left), len(dl))):
        mix.append((left[j_] if j_ < len(left) and not o.x_nobg else []) + (first_only(dl[j_]) if j_ < len(dl) and dl[j_] else []))
    A.bgset(mix, o.aper, o.aper)
    def feat_tail(c0, F, G_, S0, S1, post, mid=None):
        def norm_(i):
            sq = S0 if i % 2 == 0 else S1
            e(f"v_rcp_f32 v{184+2*i}, v{sq}"); e(f"v_rcp_f32 v{185+2*i}, v{sq+4}")
            for r in range(0, 8, 2): pk_mul(224+8*i+r, 224+8*i+r, 184+2*i)
            cvt4(F+4*i, 224+8*i, 224+8*i+4)
            if post: e(post(i, 0))
            for fb in range(2):
                for h in range(2): pk_mul(acc(c0+fb,i)+2*h, acc(c0+fb,i)+2*h, 185+2*i)
            cvt4(G_+4*i, acc(c0,i), acc(c0+1,i))
            if post: e(post(i, 1))
        for i in range(4):
            exps(c0, i)
            if 0 < i < 3: norm_(i-1)
            sq = S0 if i % 2 == 0 else S1
            cvt4(F+4*i, 224+8*i, 224+8*i+4); cvt4(G_+4*i, acc(c0,i), acc(c0+1,i))
            e(f"{MF} {v(sq,4)}, {v(ONES,4)}, {v(F+4*i,4)}, 0"); e(f"{MF} {v(sq+4,4)}, {v(ONES,4)}, {v(G_+4*i,4)}, 0")
        if mid: mid()
        norm_(2); norm_(3)
    def vall():
        for i in range(4):
            for b in range(2):
                for h in range(2): pk_mul(acc(4+b,i)+2*h, acc(4+b,i)+2*h, STP+2*i)
            cvt4(acc(4,i), acc(4,i), acc(5,i))
            e(xw(acc(4,i), VB_LDS//1024 + i))
    feat_head(2, 192, 208, vall)
    def kmid():
        e(f"s_add_u32 s{T0}, s{SW}, {2*VB_LDS//1024}"); e(f"s_and_b32 s{T0}, s{T0}, {~2 & 0xffffffff}"); e(f"s_lshl_b32 s{T0}, s{T0}, 9")
        e(f"v_xor_b32 v{vE1}, 512, v{vE0}"); e(f"v_and_b32 v{vVr}, 511, v{vE0}"); e(f"v_add_u32 v{vVr}, s{T0}, v{vVr}")
    feat_tail(2, 192, 144, 168, 176, lambda i, sg: xw((192 if sg == 0 else 144)+4*i, 24 + 16*sg + i), kmid)
    A.bgflush()
    e(f"s_add_u32 s{T2}, s{sKV}, s{ROTA}")
    e(f"s_lshl_b32 s{T4}, s{SGRP}, 8"); e(f"s_add_u32 s{T4}, s{T4}, s{sZP}")
    e("s_waitcnt lgkmcnt(0)")
    e("s_barrier")
    stamp(2)
    def kvreads(p):
        b = 96 + 16*(p % 4); r = []
        for t in range(2):
            r += [f"ds_read_b64_tr_b16 {v(b+2*t,2)}, v{vE0} offset:{SLOT + (2*p+t)*1024}", f"ds_read_b64_tr_b16 {v(b+8+2*t,2)}, v{vVr} offset:{(2*p+t)*1024}"]
        for t in range(2): r += [f"ds_read_b64_tr_b16 {v(b+4+2*t,2)}, v{vE1} offset:{SLOT + (2*p+t)*1024}"]
        return r
    qa = list(qm)
    E(kvreads(0)); E(kvreads(1))
    for j in range(4): e(qa.pop(0))
    for p in range(8):
        e(f"s_waitcnt lgkmcnt({6 if p < 7 else 0})")
        b = 96 + 16*(p % 4)
        rd = kvreads(p+2) if p + 2 < 8 else []
        e(f"{MF} v[168:171], {v(b,4)}, {v(b+8,4)}, {'0' if p == 0 else 'v[168:171]'}"); E(rd[0:2])
        e(f"{MF} v[172:175], {v(b+4,4)}, {v(b+8,4)}, {'0' if p == 0 else 'v[172:175]'}"); E(rd[2:4])
        e(f"{MF} v[200:203], {v(b,4)}, {v(ONES,4)}, {'0' if p == 0 else 'v[200:203]'}"); E(rd[4:6])
    for j in range(2): e(qa.pop(0))
    e("s_barrier")
    for j in range(2): e(qa.pop(0))
    cv = cvt4l(192, 168, 172)
    E(cv[:2]); e(qa.pop(0)); E(cv[2:]); e(qa.pop(0))
    e(f"buffer_store_dwordx4 v[192:195], v{vL16}, {SRD}, s{T2} offen sc1"); e(qa.pop(0))
    e(f"s_mov_b64 exec, {sm(mM0)}")
    e(f"buffer_store_dwordx4 v[200:203], v{vG16}, {SRD}, s{T4} offen sc1")
    e("s_mov_b64 exec, -1")
    stamp(3)
    A.bgset(lates[:o.alate], o.aper2, 0)
    while qa: e(qa.pop(0))
    def g1(p): return [f"s_add_u32 s{T0}, s{sKV}, s{ROTA+1+p}", f"buffer_load_dwordx4 {v(96+4*p,4)}, v{vL16}, {SRD}, s{T0} offen sc1"]
    gz = f"buffer_load_dwordx4 v[192:195], v{vZL}, {SRD}, s{sZP} offen sc1"
    gbase = [0]
    def gather():
        A.bgflush()
        for p in range(7): E(g1(p))
        e(gz)
        gbase[0] = A.bgn
        A.bgset(lates[o.alate:], o.aper2, 0)
    if o.gpos == 0: gather()
    feat_head(0, 204, 196, gather if o.gpos == 1 else None)
    if o.gpos == 2: gather()
    def qmid():
        e(f"s_andn2_b64 {sm(T1)}, {sm(mDIAG)}, {sm(mB1)}"); e(f"s_and_b64 {sm(T3)}, {sm(mDIAG)}, {sm(mB1)}")
        e(f"v_or_b32 v128, v{MO0}, v{MP0}"); e(f"v_and_b32 v128, v128, v{ONES}")
        e(f"v_cndmask_b32 v130, 0, v128, {sm(T1)}"); e(f"v_cndmask_b32 v131, 0, v128, {sm(T3)}")
        for r in (128, 129, 132, 133): e(f"v_mov_b32 v{r}, 0")
        e(f"v_and_b32 v200, 8, v{vZW}"); e(f"v_add_u32 v200, v200, v{vKX}"); e("v_xor_b32 v201, 8, v200")
    feat_tail(0, 204, 136, 152, 176, None, qmid)
    A.bgflush()
    nafter = A.bgn - gbase[0]
    omode()
    stamp(4)
    e(f"s_mov_b32 s{sTMO}, 0")
    for p in range(8):
        r0 = 96+4*p if p < 7 else 192
        e(f"s_waitcnt vmcnt({7-p+nafter})")
        A.label(f"L_kvc{p}")
        e(f"v_cmp_eq_u32 vcc, -1, v{r0}"); e(f"s_cbranch_vccnz L_kvs{p}")
        A.label(f"L_kvo{p}")
        if p < 7:
            e(f"{MF} v[168:171], v[130:133], {v(r0,4)}, v[168:171]"); e(f"{MF} v[172:175], v[128:131], {v(r0,4)}, v[172:175]")
        def kvslow(p=p):
            A.label(f"L_kvs{p}")
            e(f"s_add_u32 s{sTMO}, s{sTMO}, 1"); e(f"s_cmp_ge_u32 s{sTMO}, 0x100000"); e(f"s_cbranch_scc1 L_kvo{p}")
            e(f"s_waitcnt vmcnt({nafter})")
            for p2 in range(p, 7):
                if p2 > p:
                    e(f"v_cmp_eq_u32 vcc, -1, v{96+4*p2}"); e(f"s_cbranch_vccz L_kvn{p}_{p2}")
                E(g1(p2))
                if p2 > p: A.label(f"L_kvn{p}_{p2}")
            e(gz); e("s_waitcnt vmcnt(0)"); e(f"s_branch L_kvc{p}")
        ool.append(kvslow)
    for sh_ in (4, 2, 1):
        for r in range(4): e(f"v_add_f32_dpp v{192+r}, v{192+r}, v{192+r} row_ror:{sh_} row_mask:0xf bank_mask:0xf")
        if sh_ == 2:
            cvt4(196, 168, 172)
            e("ds_write_b64 v200, v[196:197]"); e("ds_write_b64 v201, v[198:199]")
    e("v_cvt_pk_bf16_f32 v192, v192, v193"); e("v_cvt_pk_bf16_f32 v193, v194, v195")
    e(f"s_mov_b64 exec, {sm(mM0)}")
    e(f"ds_write_b64 v{vZW}, v[192:193] offset:{M_ZF-M}")
    e("s_mov_b64 exec, -1")
    e("s_waitcnt lgkmcnt(0)"); e("s_barrier")
    stamp(5)
    for t in range(2): e(f"ds_read_b128 {v(184+4*t,4)}, v{vGM} offset:{M_ZF-M + t*64}")
    for j in range(4): e(ldsrd(v(168+4*j,4), M_KX + j*1024))
    e(f"s_add_u32 s{sKV}, s{sKV}, 0x100000"); e(f"s_add_u32 s{sZP}, s{sZP}, 0x10000")
    if o.fb2e:
        e("s_mov_b64 exec, 1"); e(f"buffer_store_dword v{vVal}, off, {SRD}, s{sFBp} offset:1024 sc1"); e("s_mov_b64 exec, -1"); e(f"s_mov_b32 s{sFBp}, {OOR}")
    e("s_waitcnt lgkmcnt(4)")
    for t in range(2):
        for i in range(4):
            e(f"{MF} {v(64+4*i,4)}, {v(184+4*t,4)}, {v((204 if t == 0 else 136)+4*i,4)}, {'0' if t == 0 else v(64+4*i,4)}")
    e("s_waitcnt lgkmcnt(0)")
    def fin(i):
        r = [f"v_mul_f32 v{96+8*i+j}, v{96+8*i+j}, v{64+4*i}" for j in range(8)] + cvt4l(224+4*i, 96+8*i, 100+8*i)
        return [r[j:j+3] for j in range(0, 12, 3)]
    sc = [[f"v_add_f32 v{64+4*i}, {f32hex(1e-6)}, v{64+4*i}", f"v_rcp_f32 v{64+4*i}, v{64+4*i}"] for i in range(4)]
    fills = {0: [[], [], [], []], 1: sc, 2: fin(0), 3: fin(1)}
    for i in range(4):
        n = 0
        for t in range(2):
            for db in range(2):
                d = v(96+8*i+4*db, 4)
                e(f"{MF} {d}, {v(168+8*t+4*db,4)}, {v((204 if t == 0 else 136)+4*i,4)}, {'0' if t == 0 else d}")
                E(fills[i][n]); n += 1
        if i >= 2: ostore(i-2, 224+4*(i-2), o.oa)
    for i in (2, 3):
        for r in range(0, 8, 2): pk_mul(96+8*i+r, 96+8*i+r, 64+4*i)
        cvt4(224+4*i, 96+8*i, 100+8*i)
        ostore(i, 224+4*i, o.oa)
    e("s_branch L_g2")

    A.label("L_epiB")
    fl = []
    for i in (3, 2, 1, 0):
        for c0, F in ((2, 192), (4, 224)):
            ms = [f"v_mul_f32 v{acc(c,i)+j}, v{acc(c,i)+j}, v{STP+2*i}" for c in (c0, c0+1) for j in range(4)]
            ms += cvt4l(F+4*i, acc(c0,i), acc(c0+1,i))
            fl += [ms[j:j+2] for j in range(0, 12, 2)]
            if i == 3: fl.append([f"buffer_store_dwordx4 {v(F+12,4)}, v{vL16}, {SRD}, s{T0} offen offset:{(c0-2)*512} sc1"])
        if i == 3: fl.append([f"ds_write_b128 v{vKX}, v[204:207] offset:1024"])
        fl.append([xw(224+4*i, VB_LDS//1024 + i)])
    fl.append(["s_waitcnt lgkmcnt(0)", "s_barrier"])
    fl.append([f"ds_read_b128 v[208:211], v{vKX}"])
    for db in range(2):
        rd = [f"ds_read_b64_tr_b16 {v(96+10*db,2)}, v{vVp} offset:{db*512}"]
        rd += [f"ds_read_b64_tr_b16 {v(98+10*db+2*i,2)}, v{vVo} offset:{VB_LDS + i*1024 + db*512}" for i in range(4)]
        fl += [rd[:3], rd[3:]]
    e(f"s_cmp_eq_u32 s{SW}, 3"); e(f"s_cselect_b32 s{T0}, s{sHALO}, {OOR}")
    e(f"s_sub_u32 s{T1}, s{sHALO}, 0x10000"); e(f"s_cmp_eq_u32 s{SW}, 0"); e(f"s_cselect_b32 s{T1}, s{T1}, {OOR}")
    e(f"s_cmp_eq_u32 s{SGRP}, 0"); e(f"s_cselect_b32 s{T1}, {OOR}, s{T1}")
    if o.x_nohalo: e(f"s_mov_b32 s{T1}, {OOR}")
    e(f"s_add_u32 s{sHALO}, s{sHALO}, 0x80000")
    omode()
    qb = list(qm); late = [] if o.x_now2b else list(left) + lates
    n = 0
    while qb or fl:
        if n < 14 and n % 2: pass
        elif qb: e(qb.pop(0))
        n += 1
        if n % o.brate == 0 and n > 14 and late and qb: E(late.pop(0))
        elif fl: E(fl.pop(0))
    stamp(2)
    A.bgset(late, o.bper, 0)
    for i in (3, 2, 1, 0):
        cvt4(240+4*i, acc(0,i), acc(1,i))
        if i < 3:
            e(f"{MF} {v(136+8*i,4)}, {v(196+4*i,4)}, {v(244+4*i,4)}, 0"); e(f"{MF} {v(140+8*i,4)}, {v(192+4*i,4)}, {v(244+4*i,4)}, 0")
    e(f"{MF} v[128:131], v[192:195], v[240:243], 0")
    def sel(i):
        b = 128+8*i
        for r in range(0, 8, 2): e(f"v_cndmask_b32 v{b+r}, v{b+r}, v{b+r+1}, {sm(mPAR)}")
        if i == 0:
            e(f"v_cndmask_b32 v{b+4}, v{b+4}, v217, {sm(mFIRST)}"); e(f"v_cndmask_b32 v{b+6}, v{b+6}, v217, {sm(mFIRST)}")
        e(f"v_cndmask_b32 v{116+2*i}, v{b+4}, v{b}, {sm(mOWN0)}")
        e(f"v_cndmask_b32 v{117+2*i}, v{b+6}, v{b+2}, {sm(mOWN1)}")
        e(f"v_max_f32 v{124+i}, v{116+2*i}, v{117+2*i}")
    def soft(blks):
        for i in blks:
            e(f"v_sub_f32 v{116+2*i}, v{116+2*i}, v{124+i}"); e(f"v_sub_f32 v{117+2*i}, v{117+2*i}, v{124+i}")
        for i in blks: pk_mul(116+2*i, 116+2*i, CI+i)
        for i in blks: e(f"v_exp_f32 v{116+2*i}, v{116+2*i}"); e(f"v_exp_f32 v{117+2*i}, v{117+2*i}")
        for i in blks:
            for r in (116+2*i, 117+2*i): e(f"v_cvt_pk_bf16_f32 v{r}, v{r}, v{r}")
        e("s_waitcnt lgkmcnt(0)")
        for i in blks:
            e(f"v_and_b32 v{192+4*i}, v{116+2*i}, v{MP0}"); e(f"v_and_b32 v{193+4*i}, v{117+2*i}, v{MP1}")
            e(f"v_and_b32 v{194+4*i}, v{116+2*i}, v{MO0}"); e(f"v_and_b32 v{195+4*i}, v{117+2*i}, v{MO1}")
        for i in blks:
            e(f"{MF} {v(176+4*i,4)}, {v(ONES,4)}, {v(192+4*i,4)}, 0")
            for db in range(2): e(f"{MF} {v(128+8*i+4*db,4)}, {v(96+10*db+2*i,4)}, {v(192+4*i,4)}, 0")
    def norm(i):
        e(f"v_rcp_f32 v{176+4*i}, v{176+4*i}")
        for r in range(0, 8, 2): pk_mul(128+8*i+r, 128+8*i+r, 176+4*i)
        cvt4(224+4*i, 128+8*i, 132+8*i)
        ostore(i, 224+4*i)
    if o.hatom:
        hl = [f"v_mov_b32 v{168+r}, 0" for r in range(8)] + [f"buffer_atomic_or_x2 {v(168+2*j,2)}, v{vL16}, {SRD}, s{T1} offen offset:{(j//2)*1024 + (j%2)*8} sc0 sc1" for j in range(4)]
    else: hl = [f"buffer_load_dwordx4 v[168:171], v{vL16}, {SRD}, s{T1} offen sc1", f"buffer_load_dwordx4 v[172:175], v{vL16}, {SRD}, s{T1} offen offset:1024 sc1"]
    for i in (3, 2, 1): sel(i)
    if o.hpos == 0: E(hl); hb = A.bgn
    xreduce([("v_max_f32", [124, 125, 126, 127])])
    if o.hpos == 1: E(hl); hb = A.bgn
    soft((3, 2, 1))
    e(f"v_mov_b32 v217, {f32hex(-3.0e38)}")
    norm(3); norm(2)
    e(f"s_cmp_eq_u32 s{SW}, 0"); e("s_cbranch_scc1 L_halo")
    A.label("L_halod")
    def halo(n=A.bgn - hb + 2):
        A.label("L_halo")
        e(f"s_mov_b32 s{sTMO}, 0"); e(f"v_add_u32 v216, {M_HV}, v{vXW}"); e(f"s_waitcnt vmcnt({n})")
        A.label("L_halop")
        e("v_max_u32 v218, v168, v172"); e("v_max3_u32 v218, v218, v170, v174"); e("v_cmp_eq_u32 vcc, -1, v218"); e("s_cbranch_vccz L_halow")
        E(hl); e("s_waitcnt vmcnt(0)")
        tmo("L_halop")
        A.label("L_halow")
        e(xw(172, 0, 216))
        for db in range(2): e(f"ds_read_b64_tr_b16 {v(96+10*db,2)}, v{vVp} offset:{db*512}")
        for r in range(4): e(f"v_mov_b32 v{208+r}, v{168+r}")
        e("s_nop 1"); e("s_branch L_halod")
    ool.append(halo)
    e(f"{MF} v[132:135], v[208:211], v[240:243], 0")
    A.bgflush()
    norm(1)
    sel(0)
    e("v_mov_b32 v125, v124"); e("v_permlane32_swap_b32 v124, v125"); e("v_max_f32 v124, v124, v125")
    e("v_mov_b32 v125, v124"); e("v_permlane16_swap_b32 v124, v125"); e("v_max_f32 v124, v124, v125")
    soft((0,))
    norm(0)

    A.label("L_g2")
    stamp(6)
    for i in range(2):
        for kk in range(2):
            for r in range(4):
                d = acc2(2*kk + (r >> 1), i) + 2*(r & 1); x = RES+8*i+4*kk+r
                e(f"v_lshlrev_b32 v{d}, 16, v{x}"); e(f"v_and_b32 v{d+1}, 0xffff0000, v{x}")
    e(f"s_add_u32 s{T6}, s{SLAY}, 1"); e(f"v_mov_b32 v{vVal}, s{T6}")
    e(f"s_xor_b32 s{sW1}, s{sW1}, {WS_W1A ^ WS_W1B}"); e(f"s_xor_b32 s{sW2}, s{sW2}, {WS_W2A ^ WS_W2B}")
    e(f"s_xor_b32 s{sCSL}, s{sCSL}, 384"); e(f"s_xor_b32 s{sCK}, s{sCK}, {int(CK_A,16) ^ int(CK_B,16)}")
    e(f"s_cmp_eq_u32 s{SLAY}, {o.last}"); e(f"s_cselect_b32 s{sW1}, {OOR}, s{sW1}")
    e(f"s_mov_b32 s{sRX}, s{sXs}")
    if o.oa: e(f"s_bitcmp1_b32 s{SLAY}, 0")
    else: e(f"s_cmp_lg_u32 s{SLAY}, 0")
    e(f"s_cselect_b32 s{sRO}, s{sO}, {OOR}")
    e("s_mov_b64 exec, 1")
    e("s_waitcnt vmcnt(0)")
    st_mode([f"buffer_store_dword v{vVal}, off, {SRD}, s{sFOp}"])
    e("s_mov_b64 exec, -1")
    stamp(7)
    lq.clear(); vq.clear()
    W2F = RING; AF2 = RING + 32; GD = o.g2depth
    def w2rd(step, b):
        lq.add(("W", step, b))
        ad = (step*4096 if step < 14 else 3*SLOT + (step-14)*4096) + b*1024
        return ldsrd(a(W2F + 16*(step % 2) + 4*b, 4), ad)
    poll_ge(vFP, sFOc, T6, FBV)
    stamp(8)
    def bload(step, i):
        d = AF2 + 8*(step % GD) + 4*i; r = []
        if i == 0 and step % 4 == 0:
            if o.x_rot2: r += [f"s_lshl_b32 s{sAo}, s{SCB}, {11 + o.x_rot2}", f"s_add_u32 s{sAo}, s{sAo}, {step*1024}", f"s_and_b32 s{sAo}, s{sAo}, 0x7000", f"s_add_u32 s{sAo}, s{sAo}, {WS_O}"]
            else: r.append(f"s_mov_b32 s{sAo}, {WS_O + step*1024}")
        vq.add(("A", step))
        return r + [f"buffer_load_dwordx4 {a(d,4)}, v{vB+i}, {SRD}, s{sAo} offen offset:{(step%4)*1024} sc1"]
    bn = [(st, i) for st in range(32) for i in range(2)]
    for j in range(o.bpos): E(bload(*bn.pop(0)))
    e("s_barrier")
    for st in range(2):
        for b in range(4): e(w2rd(st, b))
    for j in range(2*min(o.g2pre, GD-1) - o.bpos): E(bload(*bn.pop(0)))
    if not o.fb2e: E(first_only(["s_mov_b64 exec, 1", f"buffer_store_dword v{vVal}, off, {SRD}, s{sFBp} offset:1024 sc1", "s_mov_b64 exec, -1"]))
    w1n = list(range(6))
    tl = [(2+j, h_) for j in range(o.ntouch) for h_ in range(48//o.tl)]
    tsteps = {((2*o.t0 + j*o.tstep)//2, 1 + 2*((j*o.tstep) % 2)): t_ for j, t_ in enumerate(tl)}
    assert all(k[0] < 32 for k in tsteps)
    for step in range(32):
        E(vq.wait(("A", step)))
        if step == (21 if o.res2 else 18): e("s_barrier")
        if step == 13: once(0, "fb2ld", G("F", fb_ld(1024))); E(oq.pop()[1]())
        if step == 33 - GD: once(0, "fb2chk", lambda: fb_chk("fb2chk")); E(oq.pop()[1]())
        a0 = AF2 + 8*(step % GD)
        for b in range(4):
            E(lq.wait(("W", step, b)))
            for p, i in enumerate(range(2) if b % 2 == 0 else (1, 0)):
                e(f"{MF} {v(acc2(b,i),4)}, {a(W2F+16*(step%2)+4*b,4)}, {a(a0+4*i,4)}, {v(acc2(b,i),4)}")
                if p == 0:
                    if bn and bn[0][0] <= step + GD - 1 and (b % 2 == 0 or bn[0][0] < step + GD - 1): E(bload(*bn.pop(0)))
                    elif not bn and w1n and (b % o.g2w == 0) and step >= 33 - GD:
                        E(w1_piece(1, w1n.pop(0))); vq.add("W")
            if step + 2 < 32: e(w2rd(step+2, b))
            if o.xf and b == 1 and step >= o.xt0 and (step - o.xt0) % 4 == 0 and (step - o.xt0) // 4 < o.xf:
                e(f"buffer_load_dword v{vJUNK}, v{vTCH}, {SRD}, s{ROTA + (step - o.xt0) // 4} offen sc1"); vq.add("T")
            if o.xt and b == 1 and step >= o.xt0 and (step - o.xt0) % o.xt == 0 and (step - o.xt0) // o.xt < 4:
                j_ = (step - o.xt0) // o.xt
                if j_ == 2: e(f"s_add_u32 s{T2}, s{sXs}, 0x8000")
                e(f"buffer_load_dword v{vJUNK}, v{vTCH}, {SRD}, s{sXs if j_ < 2 else T2} offen offset:{(j_ % 2)*1024} sc1"); vq.add("T")
            if b % 2 == 1 and (step, b) in tsteps:
                ts, th = tsteps[(step, b)]
                off = th*128*o.tl
                if off % 4096 == 0 or th == 0:
                    e(f"s_add_u32 s{T0}, s{sW1}, s{ROTW+ts}")
                    if off: e(f"s_add_u32 s{T0}, s{T0}, 4096")
                e(f"buffer_load_dword v{FBV}, v{FBV+1}, {SRD}, s{T0} offen offset:{off % 4096}"); vq.add("T")
            if step == (21 if o.res2 else 19) and b == 3 and not o.rlate:
                la, ld = A.new("resA"), A.new("resd")
                e(f"s_bitcmp1_b32 s{SLAY}, 0"); e(f"s_cbranch_scc1 {la}")
                for blk in range(6): e(f"ds_write_b128 v{vLW}, {a(RB+4*blk,4)} offset:{SLOT + blk*1024}"); lq.add("rw")
                A.label(ld)
                def resA(la=la, ld=ld):
                    A.label(la)
                    for blk in range(6): e(f"ds_write_b128 v{vLW}, {a(RA+4*blk,4)} offset:{SLOT + blk*1024}")
                    e(f"s_branch {ld}")
                ool.append(resA)
    assert not w1n
    stamp(9)
    for kk in range(2):
        for i in range(2): cvt4(RES+8*i+4*kk, acc2(2*kk,i), acc2(2*kk+1,i))
    e(f"s_cmp_eq_u32 s{SLAY}, {o.last}"); e("s_cbranch_scc1 L_final")
    xtile(RES, 160, o.xall)
    if o.res2 or o.rlate:
        if o.res2: e(f"v_add_u32 v{FBV}, {3*SLOT}, v{vLW}")
        e(f"s_bitcmp1_b32 s{SLAY}, 0"); e("s_cbranch_scc1 L_res2A")
        for R, R2 in ((RB, RB2), (RA, RA2)):
            if R == RA: A.label("L_res2A")
            if o.rlate:
                for b_ in range(6): e(f"ds_write_b128 v{vLW}, {a(R+4*b_,4)} offset:{SLOT + b_*1024}")
            if o.res2:
                if R == RB: e(f"s_cmp_eq_u32 s{SLAY}, 0"); e("s_cbranch_scc1 L_g1pre")
                for b_ in range(6): e(f"ds_write_b128 v{FBV}, {a(R2+4*b_,4)} offset:{b_*1024}")
            if R == RB: e("s_branch L_g1pre")
    e("s_branch L_g1pre")
    A.label("L_final")
    e(f"v_bfe_u32 v200, v{vL16}, 4, 4"); e(f"v_and_b32 v201, 0x70, v{vL16}"); e(f"v_xor_b32 v201, v201, v{vG16}")
    e("v_lshl_add_u32 v200, v200, 7, v201"); e(f"v_add_u32 v200, s{sLW}, v200"); e("v_xor_b32 v201, 64, v200")
    for i in range(2):
        for kk in range(2): e(f"ds_write_b128 v{200+kk}, {v(RES+8*i+4*kk,4)} offset:{i*2048}")
    for j in range(4): e(f"ds_read_b128 {v(64+4*j,4)}, v{vLW} offset:{j*1024}")
    srt(P_OUT, 0x400000)
    e(f"v_lshrrev_b32 v200, 7, v{vL16}"); e(f"v_and_b32 v201, 0x70, v{vL16}"); e("v_lshlrev_b32 v202, 4, v200"); e("v_xor_b32 v201, v201, v202")
    e("v_lshl_add_u32 v200, v200, 11, v201")
    e(f"s_lshl_b32 s{T0}, s{SRB}, 2"); e(f"s_add_u32 s{T0}, s{T0}, s{SW}"); e(f"s_lshl_b32 s{T0}, s{T0}, 16"); e(f"s_lshl_b32 s{T1}, s{SCB}, 7"); e(f"s_add_u32 s{T0}, s{T0}, s{T1}")
    for j in range(4):
        e(f"s_waitcnt lgkmcnt({3-j})")
        e(f"buffer_store_dwordx4 {v(64+4*j,4)}, v200, {SRT}, s{T0} offen {['', 'sc1', 'nt', 'sc0 sc1'][o.outsc]}")
        if j < 3: e(f"s_add_u32 s{T0}, s{T0}, 16384")
    if o.stamps:
        e("s_waitcnt vmcnt(0)")
        stamp(11)
        e(f"s_lshl_b32 s{T0}, s{SIDX}, 2"); e(f"s_add_u32 s{T0}, s{T0}, s{SW}")
        e(f"s_lshl_b32 s{T0}, s{T0}, 8"); e(f"s_add_u32 s{T0}, s{T0}, {WS_STAMPS}")
        e(f"v_lshrrev_b32 v200, 2, v{vL16}")
        e(f"buffer_store_dword v{vSTAMP}, v200, {SRD}, s{T0} offen")
        if o.echo_a >= 0:
            e(f"v_readlane_b32 s{T1}, v{vSTAMP}, {o.echo_a}"); e(f"v_readlane_b32 s{T2}, v{vSTAMP}, {o.echo_b}"); e(f"v_readlane_b32 s{T3}, v{vSTAMP}, 59")
            e(f"s_sub_u32 s{T2}, s{T2}, s{T1}"); e(f"s_min_u32 s{T2}, s{T2}, 20000")
            A.label("L_echo")
            e(f"s_memrealtime s[{sSTAMP}:{sSTAMP+1}]"); e("s_waitcnt lgkmcnt(0)")
            e(f"s_sub_u32 s{T4}, s{sSTAMP}, s{T3}"); e(f"s_cmp_lt_u32 s{T4}, s{T2}"); e("s_cbranch_scc1 L_echo")
        if o.dbgout:
            e(f"s_lshl_b32 s{T0}, s{SIDX}, 2"); e(f"s_add_u32 s{T0}, s{T0}, s{SW}"); e(f"s_cmp_lg_u32 s{T0}, {o.dbgout}"); e("s_cbranch_scc1 L_nodbg")
            srt(P_DBG, 256)
            e(f"v_readlane_b32 s{T1}, v{vSTAMP}, 12")
            for j, idx in enumerate((28, 13, 31, 14, 15, 1, 5, 8, 9, 17, 25, 33, 41, 49, 59)):
                e(f"v_readlane_b32 s{T2}, v{vSTAMP}, {idx}"); e(f"s_sub_u32 s{T2}, s{T2}, s{T1}"); e(f"v_mov_b32 v201, s{T2}")
                e(f"buffer_store_dword v201, off, {SRT}, 0 offset:{4+4*j}")
            A.label("L_nodbg")
    e("s_endpgm")
    for blk in ool: blk()
    A.label("L_codeend"); A.label("L_exit")
    e("s_endpgm")
    if o.codepf == 2: A.raw(f".fill ({CPL*4096 + 256} - (. - {KNAME}))/4, 4, 0xbf810000")
    A.raw('.section .rodata,"a"'); A.raw(".p2align 6"); A.raw(f".amdhsa_kernel {KNAME}")
    for t in ("next_free_vgpr 512", "next_free_sgpr 102", "accum_offset 256", "group_segment_fixed_size 0", "kernarg_size 80",
              "user_sgpr_count 2", "user_sgpr_kernarg_segment_ptr 1", "system_sgpr_workgroup_id_x 1"):
        A.raw("  .amdhsa_" + t)
    A.raw(".end_amdhsa_kernel")
    return A.text()

if __name__ == "__main__":
    o = Opts()
    out = sys.argv[1]
    for kv in sys.argv[2:]:
        k, val = kv.split("=")
        setattr(o, k, int(val))
    open(out, "w").write(gen(o))
```

```python
import re

_REG = re.compile(r'^(-|\|)?(abs\()?([vas])(?:(\d+)|\[(\d+):(\d+)\])\)?\|?$')
TRANS = ("v_exp_f32", "v_log_f32", "v_rcp_f32", "v_rsq_f32", "v_sqrt_f32", "v_sin_f32", "v_cos_f32")

def regs_of(op):
    op = op.strip()
    if op == "vcc": return {("s", "vcc")}
    if op in ("exec", "exec_lo", "exec_hi"): return {("s", "exec")}
    if op == "m0": return {("s", "m0")}
    m = _REG.match(op)
    if not m: return set()
    k = m.group(3)
    if m.group(4) is not None: return {(k, int(m.group(4)))}
    return {(k, i) for i in range(int(m.group(5)), int(m.group(6)) + 1)}

class Ins:
    def __init__(self, text):
        self.text = text
        t = text.split(";")[0].strip()
        parts = t.split(None, 1)
        self.mn = parts[0]
        rest = parts[1] if len(parts) > 1 else ""
        ops = [o.strip() for o in re.split(r',(?![^\[]*\])', rest)] if rest else []
        mods = ""
        if ops:
            l = ops[-1].split(None, 1)
            ops[-1] = l[0]
            mods = l[1] if len(l) > 1 else ""
        self.ops = ops; self.mods = mods
        mn = self.mn
        R = [regs_of(o) for o in ops]
        U = lambda xs: set().union(*xs) if xs else set()
        self.kind = "other"; self.w = set(); self.r = set()
        self.srcab = set(); self.srcc = set(); self.stdata = set()
        if mn.startswith("v_mfma"):
            self.kind = "mfma"; self.w = R[0]; self.srcab = R[1] | R[2]; self.srcc = R[3]; self.r = self.srcab | self.srcc
            self.passes = 4 if "16x16x32" in mn else 8
        elif mn.startswith("v_"):
            self.kind = "valu"
            self.w = R[0]; self.r = U(R[1:])
            if "swap" in mn: self.w = R[0] | R[1]; self.r = R[0] | R[1]
            if mn.startswith(("v_fmac", "v_dot2c", "v_writelane")) or mn.endswith("_dpp"): self.r |= R[0]
        elif mn.startswith("ds_"):
            self.kind = "ds"
            if mn.startswith(("ds_read", "ds_bpermute", "ds_swizzle")): self.w = R[0]; self.r = U(R[1:])
            else: self.r = U(R)
        elif mn.startswith(("buffer_", "global_")):
            self.kind = "vmem"
            lds = " lds" in (" " + mods)
            if lds: self.r = U(R) | {("s", "m0")}; self.kind = "dma"
            elif "load" in mn: self.w = R[0]; self.r = U(R[1:])
            elif "atomic" in mn:
                self.r = U(R)
                if "sc0" in mods: self.w = R[0]
            else:
                self.r = U(R)
                if mn.endswith(("x3", "x4")): self.stdata = R[0] if mn.startswith("buffer_") else R[1]
        elif mn.startswith("s_"):
            self.kind = "salu"
            if not mn.startswith(("s_cmp", "s_bitcmp", "s_waitcnt", "s_nop", "s_barrier", "s_branch", "s_cbranch", "s_sleep", "s_setprio", "s_endpgm", "s_setpc")):
                self.w = R[0] if R else set()
                self.r = U(R[1:])
            else: self.r = U(R)
        self.states = 1
        if mn == "s_nop": self.states = int(ops[0]) + 1

def isv(s): return {x for x in s if x[0] in "va"}
def iss(s): return {x for x in s if x[0] == "s"}

def need(p, c):
    n = 0
    if p.kind == "valu":
        pw = isv(p.w); ps = iss(p.w)
        if c.kind == "mfma" and pw & c.r: n = max(n, 2)
        if c.kind == "valu":
            if "permlane" in c.mn and pw & c.r: n = max(n, 2)
            if c.mn.endswith("_dpp") and pw & c.r: n = max(n, 2)
            if c.mn.startswith(("v_readlane", "v_readfirstlane")) and pw & c.r: n = max(n, 1)
            if p.mn in TRANS and pw & c.r: n = max(n, 1)
            if ps & c.r: n = max(n, 4 if c.mn.startswith(("v_readlane", "v_writelane")) else 2)
        if c.kind in ("vmem", "dma") and ps & c.r: n = max(n, 5)
        if c.kind in ("vmem", "dma", "ds") and p.mn in TRANS and pw & c.r: n = max(n, 1)
    if p.kind == "mfma":
        big = {4: 8, 8: 12}[p.passes]
        if c.kind == "mfma":
            if p.w & c.srcab: n = max(n, big)
            if p.w & c.srcc and not (p.w == c.srcc and p.passes == c.passes): n = max(n, big - 2)
            if p.w & c.w and not (p.w == c.srcc): n = max(n, big - 2)
        elif c.kind in ("valu", "vmem", "dma", "ds"):
            if p.w & (c.r | c.w): n = max(n, big)
            if c.kind == "valu" and p.srcc & c.w: n = max(n, {4: 3, 8: 7}[p.passes])
    if p.kind == "salu" and ("s", "m0") in p.w and c.kind == "dma": n = max(n, 1)
    if p.stdata and p.stdata & c.w: n = max(n, 2)
    return n

class Asm:
    def __init__(self):
        self.out = []; self.hist = []; self.nops = 0; self.uid = 0
        self.bg = []; self.bgper = 0; self.bgacc = 0; self.bgn = 0; self.execfull = True; self._inbg = False
    def raw(self, t): self.out.append(t)
    def label(self, name):
        for i, p in enumerate(self.hist):
            if p.mn.startswith(("s_cbranch", "s_branch")) and p.ops and p.ops[0] == name:
                for q in self.hist[i+1:]: q.states = 0
                break
        self.out.append(name + ":")
    def new(self, base):
        self.uid += 1; return f"L_{base}_{self.uid}"
    def e(self, text):
        if "\n" in text:
            for t in text.split("\n"):
                if t.strip(): self.e(t.strip())
            return
        c = Ins(text)
        if self.bg and not self._inbg:
            if self.bgacc >= self.bgper and self.execfull and c.kind in ("valu", "mfma") and not c.mn.startswith(("v_cmp", "v_readf")):
                self.bgacc = 0; self.bgflush(1)
            self.bgacc += 16 if c.kind == "mfma" else 8 if (c.mn in TRANS or "permlane" in c.mn) else 4
        if ("s", "exec") in c.w: self.execfull = c.ops[-1] == "-1"
        dist = 0; pad = 0
        for p in reversed(self.hist):
            nd = need(p, c)
            if nd > dist: pad = max(pad, nd - dist)
            dist += p.states
            if dist >= 20: break
        if pad:
            self.nops += pad
            nop = Ins(f"s_nop {pad-1}")
            self.out.append("    " + nop.text); self.hist.append(nop)
        self.out.append("    " + text); self.hist.append(c)
        if len(self.hist) > 200: self.hist = self.hist[-100:]
    def bgset(self, groups, period, acc=0):
        self.bg = self.bg + list(groups); self.bgper = period; self.bgacc = acc
    def bgflush(self, n=999):
        self._inbg = True
        while self.bg and n > 0:
            for t in self.bg.pop(0):
                if t.endswith(":"): self.label(t[:-1])
                else: self.e(t)
            self.bgn += 1; n -= 1
        self._inbg = False
    def fence(self):
        self.e("s_nop 7"); self.e("s_nop 3")
    def text(self): return "\n".join(self.out) + "\n"

def v(a, n=1): return f"v{a}" if n == 1 else f"v[{a}:{a+n-1}]"
def a(x, n=1): return f"a{x}" if n == 1 else f"a[{x}:{x+n-1}]"
def s(x, n=1): return f"s{x}" if n == 1 else f"s[{x}:{x+n-1}]"


class Asm2(Asm):
    def __init__(self):
        super().__init__(); self.vq = []; self.lq = []; self.seen = set(); self.track = True; self.smem = False
    def pending(self, tag): return tag in self.vq or tag in self.lq
    def after(self, tag):
        return len(self.vq) - 1 - max(i for i, t in enumerate(self.vq) if t == tag)
    def e(self, text):
        if text.endswith(":"):
            self.label(text[:-1]); return
        if text.startswith(("WAITV ", "WAITL ")):
            assert self.track
            q, name, mx = (self.vq, "vmcnt", 63) if text[4] == "V" else (self.lq, "lgkmcnt", 15)
            tags = text.split()[1:]
            assert all(t in self.seen for t in tags), text
            idx = max([i for i, t in enumerate(q) if t in tags], default=-1)
            if idx < 0: return
            n = len(q) - 1 - idx
            assert name == "vmcnt" or not self.smem or n == 0, "counted lgkm wait with scalar loads in flight"
            self.e(f"s_waitcnt {name}({min(n, mx)})"); return
        tag = None
        if ";@" in text: text, tag = text.split(";@"); text = text.rstrip(); tag = tag.strip()
        super().e(text)
        if not self.track: return
        c = self.hist[-1]
        if c.kind in ("vmem", "dma"): self.vq.append(tag); self.seen.add(tag)
        elif c.kind == "ds": self.lq.append(tag); self.seen.add(tag)
        elif c.mn.startswith(("s_load", "s_memtime", "s_memrealtime")): self.smem = True
        elif c.mn == "s_waitcnt":
            for name, n in re.findall(r"(vmcnt|lgkmcnt)\((\d+)\)", text):
                n = int(n); q = self.vq if name == "vmcnt" else self.lq
                if name == "lgkmcnt":
                    assert n == 0 or not self.smem, "counted lgkm wait with scalar loads in flight"
                    if n == 0: self.smem = False
                del q[:max(0, len(q) - n)]
```

```python
import sys, struct
from asmlib import *

KNAME = "interleave_layers__linear_kernel_hedgehog__sliding_local_dilated__prompt_kernel"

WS_FLAGA = 0x0000000
WS_FLAGB = 0x0008000
WS_FLAGO = 0x0009000
WS_FLAGX = 0x000A000
WS_CS    = 0x0010000
CS_SZ    = 393216
WS_ST    = 0x0100000
WS_ZP    = 0x0140000
WS_STAMPS= 0x0180000
WS_HALO  = 0x0200000
WS_KVP   = 0x0400000
WS_W1    = (0x0800000, 0x0E00000)
WS_W2    = (0x1400000, 0x1600000)
WS_X     = 0x1800000
WS_X0    = WS_X
WS_O     = 0x1C00000
WS_SIZE  = 0x2000000
OOR      = 0x40000000

SLOT = 24576
M      = 147456
M_CS   = M + 64
M_ST   = M + 1024
M_KX   = M + 4096
M_HV   = M + 9216
M_ZF   = M + 10240
LDS_SIZE = 163840
VB_LDS = 57344
RAW1A, RAW1B, RAW2 = 3*SLOT, 4*SLOT, 5*SLOT

SRD = "s[4:7]"; SRT = "s[8:11]"
SW, SGRP, SMEM, SMODE, SCB, SRB = 12, 13, 14, 15, 17, 18
T0, T1, T2, T3, T4, T5, T6, T7 = 19, 20, 21, 22, 23, 24, 25, 26
SIDX, SXCC = 27, 29
sFOc, sFOp, sFXc, sFXp = 30, 31, 32, 33
sO, sXs = 34, 35
mPAR, mB1, mDIAG, mM0, mOWN0, mOWN1, sPC, mFIRST = 36, 38, 40, 42, 44, 46, 48, 50
sCSa, sCSb, sZo, sFBp, sSTs, sLW, sKV, sZP, sHALO, sTMO, sAo, sWo = 52, 53, 54, 55, 56, 57, 58, 59, 60, 61, 62, 63
P_AX, P_AW1, P_PHI, P_AW2, P_BX, P_BW1, P_BW2, P_OUT, P_DBG, P_WS = 64, 66, 68, 70, 72, 74, 76, 78, 80, 82
sCL0, sCL2, sL8, sW2l, sW2s, sHst, sHld = 72, 73, 2, 0, 3, 16, 28
D1, D2, D4 = 64, 65, 66
sSTAMP = 84
ROTA, ROTW = 86, 94

vLW = 0; vL16, vL64, vL128 = 1, 2, 3
vA = 4; vB = 8; vW1 = 10; vW2 = 11; vFP = 12; vSTl = 13; vSTs = 14; vSTAMP = 15
RES = 16; PHI = 32; ONES = 40; MP0, MP1, MO0, MO1 = 44, 45, 46, 47
vE1, vVr, vLW3, vCPF, vKX0, vKX1, vCSa, vCSb = range(32, 40)
vXW, vE0, vTCH, vHVw, vJUNK, vVo, vVp, vKX, vGM, vZW, vSW, vSR, vG16, vOut, vZL, vVal = range(48, 64)
ACC = 64
def acc(c, i): return ACC + 16*c + 4*i
def acc2(b, i): return ACC + 8*b + 4*i
STP = 160; CSR = 168; WFV = 192; FBV = 216; CI = 220
RING, HW2, HCS = 48, 240, 248
def RS(par, k): return 24*par if k == 0 else 240 - 48*k + 24*par
MF = "v_mfma_f32_16x16x32_bf16"
def f32hex(x): return "0x%08x" % struct.unpack("<I", struct.pack("<f", x))[0]
CK = (f32hex(1.4426950408889634), f32hex(1.4426950408889634 * 32 ** -0.5))
LIM = 0x100000

class Opts:
    stamps = 0; last = 3; force_slow = 0; echo_a = -1; echo_b = -1; g1prof = 0
    NRES = 2
    ND = 4
    LA = 3
    APRE = 3
    wrE = 150; wrL = 110; w1sE = 0; w1sL = 1
    w2E = 300; w2L = 200; w2sE = 25; w2sL = 20
    sper = 2; s0 = 0
    g2depth = 7; g2w = 2; bpos = 12
    brate = 7; bper = 110
    aper = 150; aper0 = 110; aper2 = 130; aper3 = 200; gpos = 2; dk = 5
    rw = 12
    xf = 1; xt0 = 8
    outsc = 1; oall = 0
    CPL = 22; cpf = 1; cpf2 = 24; cpf3 = 26

def gen(o):
    A = Asm2(); e = A.e
    ool = []
    ND = o.ND; AD = ND; WQ = RING + 16*AD
    assert WQ + 8*ND <= 240 - 48*o.NRES and o.LA < AD
    lay = 0
    o.CPL = min(o.CPL, 5*o.last + 7)
    def E(lst):
        for t in lst: e(t)
    def stamp(name, force=0):
        if not o.stamps: return
        if o.g1prof and name in range(2, 11) and not force: return
        idx = name + 16*lay
        if o.stamps == 2 and name != 11 and idx not in (o.echo_a, o.echo_b): return
        e(f"{'s_memtime' if o.stamps == 3 else 's_memrealtime'} s[{sSTAMP}:{sSTAMP+1}]")
        e("s_waitcnt lgkmcnt(0)")
        e(f"v_writelane_b32 v{vSTAMP}, s{sSTAMP}, {59 if name == 11 else idx}")
    def srt(p, size):
        e(f"s_mov_b32 s8, s{p}"); e(f"s_mov_b32 s9, s{p+1}"); e(f"s_mov_b32 s10, {size}"); e("s_mov_b32 s11, 0x20000")
    def mask64(r, val):
        e(f"s_mov_b32 s{r}, 0x{val & 0xffffffff:08x}"); e(f"s_mov_b32 s{r+1}, 0x{val >> 32:08x}")
    def sm(r): return f"s[{r}:{r+1}]"
    def bc(r): return (v(r & ~1, 2), r & 1)
    def pk_fma(d, x, y, z, negx=False):
        yp, ys = bc(y); zp, zs = bc(z)
        e(f"v_pk_fma_f32 {v(d,2)}, {v(x,2)}, {yp}, {zp} op_sel:[0,{ys},{zs}] op_sel_hi:[1,{ys},{zs}]" + (" neg_lo:[1,0,0] neg_hi:[1,0,0]" if negx else ""))
    def pk_mul(d, x, y):
        yp, ys = bc(y)
        e(f"v_pk_mul_f32 {v(d,2)}, {v(x,2)}, {yp} op_sel:[0,{ys}] op_sel_hi:[1,{ys}]")
    def cvt4l(d, x0, x1):
        return [f"v_cvt_pk_bf16_f32 v{d}, v{x0}, v{x0+1}", f"v_cvt_pk_bf16_f32 v{d+1}, v{x0+2}, v{x0+3}",
                f"v_cvt_pk_bf16_f32 v{d+2}, v{x1}, v{x1+1}", f"v_cvt_pk_bf16_f32 v{d+3}, v{x1+2}, v{x1+3}"]
    def cvt4(d, x0, x1): E(cvt4l(d, x0, x1))
    def wt(t): return t + (" sc1" if t.startswith("buffer_store") else "")
    def st_mode(lines):
        ls, ld = A.new("slow"), A.new("done")
        e(f"s_cmp_lg_u32 s{SMODE}, 0"); e(f"s_cbranch_scc1 {ls}")
        E(lines); A.label(ld)
        def blk():
            A.label(ls); A.fence(); E([wt(t) for t in lines]); e("s_nop 7"); e(f"s_branch {ld}")
        ool.append(blk)
    def spin(body, cond, first=None):
        l, d = A.new("spin"), A.new("spind")
        e(f"s_mov_b32 s{sTMO}, {LIM}")
        if first:
            E(body); E(first); e("s_waitcnt vmcnt(0)"); E(cond); e(f"s_cbranch_vccz {d}")
        A.label(l); E(body); e(f"s_sub_u32 s{sTMO}, s{sTMO}, 1"); e("s_waitcnt vmcnt(0)"); E(cond)
        e(f"s_cbranch_scc1 {d}"); e(f"s_cbranch_vccnz {l}"); A.label(d)
    def retry(body, cond):
        l, d = A.new("rt"), A.new("rtd")
        def blk():
            A.label(l); spin(body, cond); e(f"s_branch {d}")
        ool.append(blk)
        return [f"s_cbranch_vccnz {l}", d + ":"]
    def signal(sreg):
        e("s_mov_b64 exec, 1"); e("s_waitcnt vmcnt(0)")
        st_mode([f"buffer_store_dword v{vVal}, off, {SRD}, s{sreg}"])
        e("s_mov_b64 exec, -1")
    def poll(sreg, val, first=None):
        spin([f"buffer_load_dword v{FBV}, v{vFP}, {SRD}, s{sreg} offen sc1"], [f"v_cmp_gt_u32 vcc, {val}, v{FBV}"], first)
    def xreduce(groups):
        for op, q in groups: e(f"v_permlane32_swap_b32 v{q[0]}, v{q[1]}"); e(f"v_permlane32_swap_b32 v{q[2]}, v{q[3]}")
        for op, q in groups: e(f"{op} v{q[0]}, v{q[0]}, v{q[1]}"); e(f"{op} v{q[2]}, v{q[2]}, v{q[3]}")
        for op, q in groups: e(f"v_permlane16_swap_b32 v{q[0]}, v{q[2]}")
        for op, q in groups: e(f"{op} v{q[1]}, v{q[0]}, v{q[2]}"); e(f"{op} v{q[2]}, v{q[0]}, v{q[2]}")
        for op, q in groups: e(f"v_permlane16_swap_b32 v{q[1]}, v{q[2]}")
        for op, q in groups: e(f"v_mov_b32 v{q[0]}, v{q[1]}"); e(f"v_mov_b32 v{q[3]}, v{q[2]}")
        for op, q in groups: e(f"v_permlane32_swap_b32 v{q[0]}, v{q[1]}"); e(f"v_permlane32_swap_b32 v{q[2]}, v{q[3]}")
    def xtile(through):
        tmp = 160; st = []
        for kk in range(2):
            for i in range(2):
                f = v(RES+8*i+4*kk, 4)
                st += [f"{MF} {v(tmp+8*i+4,4)}, {f}, {f}, {'0' if kk == 0 else v(tmp+8*i+4,4)}",
                       f"buffer_store_dwordx4 {f}, v{vB+i}, {SRD}, s{sXs} offen offset:{kk*1024}",
                       f"{MF} {v(tmp+8*i,4)}, {v(ONES,4)}, {f}, {'0' if kk == 0 else v(tmp+8*i,4)}"]
        for i in range(2):
            g0 = tmp+8*i+4
            st += [f"v_cndmask_b32 v{g0}, v{g0}, v{g0+1}, {sm(mPAR)}", f"v_cndmask_b32 v{g0+2}, v{g0+2}, v{g0+3}, {sm(mPAR)}",
                   f"v_cndmask_b32 v{tmp+8*i+1}, v{g0}, v{g0+2}, {sm(mB1)}"]
        st += [f"s_mov_b64 exec, {sm(mDIAG)}"]
        st += [f"buffer_store_dwordx2 {v(tmp+8*i,2)}, v{vSTs}, {SRD}, s{sSTs} offen offset:{i*128}" for i in range(2)]
        st += ["s_mov_b64 exec, -1"]
        if through: E([wt(t) for t in st])
        else: st_mode(st)
    def w1_piece(par, stage, i):
        r = []; slot = (stage + 1) % 6
        if i % 4 == 0: r += [f"s_add_u32 m0, s{sLW}, {slot*SLOT + i*1024}", f"s_add_u32 s{sWo}, s{ROTW+stage}, {WS_W1[par] + i*1024}"]
        return r + [f"buffer_load_dwordx4 v{vW1}, {SRD}, s{sWo} offen offset:{(i%4)*1024} lds ;@W{stage}"]
    def w2_piece(par, part, i):
        r = []
        if i % 4 == 0:
            if part < 4:
                lb, sb = ((3+part)*SLOT, 57344 + part*SLOT) if part < 3 else (0, 0)
                r += [f"s_add_u32 m0, s{sLW}, {lb + i*1024}", f"s_mov_b32 s{sWo}, {WS_W2[par] + sb + i*1024}"]
            else: r += [f"s_add_u32 m0, s{sL8}, {SLOT + i*1024}", f"s_add_u32 s{sWo}, s{sW2l}, {WS_W2[par] + SLOT + i*1024}"]
        return r + [f"buffer_load_dwordx4 v{vW2}, {SRD}, s{sWo} offen offset:{(i%4)*1024} lds"]
    def ldsrd(dst, addr):
        base = {0: vL16, 1: vL64, 2: vL128}[addr >> 16]
        return f"ds_read_b128 {dst}, v{base} offset:{addr & 0xffff}"
    def w1st(R, blk, sa, sb): return f"buffer_store_dwordx4 {R}, v{vW1}, {SRD}, s{sa if blk < 4 else sb} offen offset:{(blk%4)*1024} sc1"
    def csst(C, sreg): return ["s_mov_b32 exec_lo, 0x003f003f", "s_mov_b32 exec_hi, 0x003f003f", f"buffer_store_dwordx4 {C}, v{vOut}, {SRD}, s{sreg} offen sc1", "s_mov_b64 exec, -1"]
    def fb_body(k): return [f"s_mov_b32 s{T1}, {WS_FLAGB + 1024*k}", f"buffer_load_dwordx4 {v(FBV,4)}, v{vL16}, {SRD}, s{T1} offen sc1"]
    fb_cond = [f"v_and_b32 v{FBV}, v{FBV}, v{FBV+1}", f"v_and_b32 v{FBV+2}, v{FBV+2}, v{FBV+3}", f"v_and_b32 v{FBV}, v{FBV}, v{FBV+2}", f"v_cmp_ne_u32 vcc, 1, v{FBV}"]
    def fb_set(k): return ["s_mov_b64 exec, 1", f"buffer_store_dword v{vVal}, off, {SRD}, s{sFBp} offset:{1024*k} sc1", "s_mov_b64 exec, -1"]
    def xw(r, kb, ad=vXW): return f"ds_write2st64_b64 v{ad}, {v(r,2)}, {v(r+2,2)} offset0:{2*kb} offset1:{2*kb+1}"

    A.raw(f"; @launch grid=(256,1,1) block=(256,1,1) lds={LDS_SIZE}")
    A.raw('.amdgcn_target "amdgcn-amd-amdhsa--gfx950"'); A.raw(".text")
    A.raw(f".globl {KNAME}"); A.raw(".p2align 8"); A.raw(f".type {KNAME},@function"); A.label(KNAME)
    if o.stamps: e("s_memrealtime s[86:87]")
    e("s_cmp_ge_u32 s2, 256"); e("s_cbranch_scc1 L_exit")
    e(f"s_getpc_b64 {sm(sPC)}"); A.label("L_pc")
    e(f"s_lshr_b32 s{T0}, s2, 3"); e(f"s_mulk_i32 s{T0}, {o.CPL*128}"); e(f"v_min_u32 v252, {o.CPL-1}, v0"); e(f"v_lshl_add_u32 v252, v252, 7, s{T0}")
    e(f"global_load_dword v{vJUNK}, v252, {sm(sPC)}")
    e("s_load_dwordx16 s[64:79], s[0:1], 0"); e("s_load_dwordx4 s[80:83], s[0:1], 64")
    e("v_lshrrev_b32 v1, 6, v0"); e("v_and_b32 v254, 63, v0"); e(f"v_readfirstlane_b32 s{SW}, v1")
    if o.force_slow: e(f"s_lshr_b32 s{SGRP}, s2, 5"); e(f"s_and_b32 s{SMEM}, s2, 31")
    else: e(f"s_and_b32 s{SGRP}, s2, 7"); e(f"s_lshr_b32 s{SMEM}, s2, 3")
    if o.stamps: e(f"v_mov_b32 v{vSTAMP}, 0"); e("s_waitcnt lgkmcnt(0)"); e(f"v_writelane_b32 v{vSTAMP}, s86, 12")
    VM = 215
    e(f"s_lshl_b32 s{SIDX}, s{SGRP}, 5"); e(f"s_add_u32 s{SIDX}, s{SIDX}, s{SMEM}")
    e(f"s_lshr_b32 s{SRB}, s{SIDX}, 4"); e(f"s_and_b32 s{SCB}, s{SIDX}, 15")
    e(f"s_mul_i32 s{sLW}, s{SW}, 6144")
    e("v_lshrrev_b32 v203, 3, v254"); e("v_and_b32 v204, 7, v254"); e("v_lshlrev_b32 v204, 4, v204"); e("v_lshl_add_u32 v210, v203, 11, v204")
    e("v_lshrrev_b32 v200, 2, v254"); e("v_and_b32 v201, 3, v254")
    e("v_mul_u32_u24 v202, 6144, v200"); e("v_lshl_add_u32 v202, v201, 4, v202")
    e(f"s_lshl_b32 s{T2}, s{SRB}, 2"); e(f"s_add_u32 s{T2}, s{T2}, s{SW}"); e(f"s_lshl_b32 s{T2}, s{T2}, 16")
    e(f"s_lshl_b32 s{T4}, s{SCB}, 7"); e(f"s_add_u32 s{T3}, s{T2}, s{T4}")
    e(f"s_lshl_b32 s{T6}, s{SGRP}, 2"); e(f"s_add_u32 s{T6}, s{T6}, s{SW}")
    e(f"s_mul_i32 s{T5}, s{T6}, {32*6144}"); e(f"s_lshl_b32 s{T4}, s{SMEM}, 6"); e(f"s_add_u32 s{T5}, s{T5}, s{T4}")
    e(f"v_lshlrev_b32 v{vL16}, 4, v254"); e(f"v_and_b32 v{vG16}, 48, v254"); e(f"v_and_b32 v{VM}, 15, v254")
    e(f"s_lshl_b32 s{T1}, s{SCB}, 11"); e(f"s_add_u32 s{sXs}, s{T1}, {WS_X}")
    e(f"s_mul_i32 s{sAo}, s{SMEM}, 196608"); e(f"s_add_u32 s{sAo}, s{sAo}, s{sLW}"); e(f"s_mul_i32 s{ROTW}, s{SGRP}, {SLOT}")
    e("v_lshlrev_b32 v249, 7, v254")
    e(f"s_lshl_b32 s{T0}, s{SIDX}, 2"); e(f"s_add_u32 s{T0}, s{T0}, s{SW}"); e(f"s_mul_i32 s{sWo}, s{T0}, 6144")
    e("s_waitcnt lgkmcnt(0)")
    e(f"s_mov_b32 s4, s{P_WS}"); e(f"s_mov_b32 s5, s{P_WS+1}"); e(f"s_mov_b32 s6, {WS_SIZE}"); e("s_mov_b32 s7, 0x20000")
    e(f"s_or_b32 s{T0}, s{SMEM}, s{SW}"); e(f"s_cmp_lg_u32 s{T0}, 0"); e("s_cbranch_scc1 L_p0a")
    A.track = False
    for r in range(4): e(f"v_mov_b32 v{204+r}, 0")
    e(f"s_lshl_b32 s{T0}, s{SGRP}, 12")
    for j in range(4): e(f"buffer_store_dwordx4 v[204:207], v{vL16}, {SRD}, s{T0} offen offset:{j*1024} sc1")
    e(f"s_lshl_b32 s{T0}, s{SGRP}, 7"); e(f"s_add_u32 s{T0}, s{T0}, {WS_FLAGB}")
    e("s_mov_b64 exec, 0xff")
    for j in range(2): e(f"buffer_store_dwordx4 v[204:207], v{vL16}, {SRD}, s{T0} offen offset:{j*1024} sc1")
    e("s_mov_b64 exec, -1")
    A.track = True
    A.label("L_p0a")
    n0 = len(A.vq)
    def rowtouch(p):
        srt(p, 0x600000)
        e("s_mov_b32 exec_hi, 0xffff"); e(f"buffer_load_dword v{vJUNK}, v249, {SRT}, s{sWo} offen"); e("s_mov_b64 exec, -1")
    rowtouch(P_AW1)
    srt(P_AX, 0x400000)
    for i in range(4):
        e(f"s_add_u32 m0, s{sLW}, {i*1024}"); e(f"s_add_u32 s{T0}, s{T3}, {i*16384}")
        e(f"buffer_load_dwordx4 v210, {SRT}, s{T0} offen lds ;@x")
    def touch(p, *calc):
        E(list(calc)); e(f"s_load_dword s{sTMO}, s[{p}:{p+1}], s{T0}")
    touch(P_WS, f"s_add_u32 s{T0}, s{T2}, s{sXs}")
    touch(P_WS, f"s_add_u32 s{T0}, s{sAo}, s{ROTW}", f"s_add_u32 s{T0}, s{T0}, {WS_W1[0]}")
    touch(P_WS, f"s_mov_b32 s{T0}, 0x1f0000")
    touch(P_BW1, f"s_mov_b32 s{T0}, s{T5}"); touch(P_AW2, f"s_lshl_b32 s{T0}, s{SRB}, 17"); touch(P_BW2)
    srt(P_PHI, 0x10000)
    e(f"s_add_u32 m0, s{sLW}, 4096"); e(f"s_lshl_b32 s{T0}, s{SMEM}, 11")
    for j in range(2): e(f"buffer_load_dwordx4 v{vL16}, {SRT}, s{T0} offen offset:{j*1024} lds ;@phi")
    def raw1(p, ldsb, tag):
        srt(p, 0x600000)
        for seg in range(3):
            for hf in range(2):
                e(f"s_add_u32 m0, s{sLW}, {ldsb + seg*2048 + hf*1024}"); e(f"s_add_u32 s{T0}, s{T5}, {seg*2048 + hf*16*6144}")
                e(f"buffer_load_dwordx4 v202, {SRT}, s{T0} offen lds ;@{tag}")
    raw1(P_AW1, RAW1A, "ra")
    e(f"s_or_b32 s{T0}, s{SMEM}, s{SW}"); e(f"s_cmp_lg_u32 s{T0}, 0"); e("s_cbranch_scc1 L_p0b")
    A.track = False
    srt(P_DBG, 256); e("v_mov_b32 v204, 1"); e(f"s_lshl_b32 s{T0}, s{SGRP}, 5")
    e(f"s_waitcnt vmcnt({len(A.vq) - n0})")
    e("s_mov_b64 exec, 1"); e(f"buffer_store_dword v204, off, {SRT}, s{T0} sc1"); e("s_mov_b64 exec, -1")
    A.track = True
    A.label("L_p0b")
    e(f"v_lshl_add_u32 v214, v{VM}, 7, v{vG16}"); e(f"v_add_u32 v214, s{sLW}, v214")
    e(f"v_add_u32 v{vB}, s{T2}, v{vL16}"); e(f"v_add_u32 v{vB+1}, 0x8000, v{vB}")
    e(f"s_lshr_b32 s{T2}, s{T2}, 8"); e(f"v_lshl_add_u32 v{vSTs}, v{VM}, 3, s{T2}")
    e(f"s_lshl_b32 s{T0}, s{SCB}, 14"); e(f"s_add_u32 s{sSTs}, s{T0}, {WS_ST}")
    mask64(mPAR, 0xAAAAAAAAAAAAAAAA); mask64(mB1, 0xCCCCCCCCCCCCCCCC); mask64(mDIAG, 0xF0000F0000F0000F)
    for r in range(4): e(f"v_mov_b32 v{ONES+r}, 0x3f803f80")
    stamp(28)
    e("WAITV x")
    for i in range(2):
        for kk in range(2): e(f"ds_read_b128 {v(RES+8*i+4*kk,4)}, v214 offset:{i*2048 + kk*64}")
    e(f"v_add_u32 v{vW1}, s{sAo}, v{vL16}"); e(f"v_add_u32 v{vLW}, s{sLW}, v{vL16}")
    e("v_and_b32 v209, 3, v200"); e(f"v_lshrrev_b32 v203, 1, v{vG16}"); e("v_add_u32 v209, v209, v203")
    e("v_lshlrev_b32 v203, 6, v209"); e("v_lshl_add_u32 v205, v201, 3, v203"); e(f"v_add_u32 v205, s{sLW}, v205")
    e("v_lshl_add_u32 v206, v201, 4, v203"); e(f"s_add_u32 s{T1}, s{sLW}, {RAW1A}"); e(f"v_add_u32 v206, s{T1}, v206")
    e(f"v_lshrrev_b32 v203, 2, v{VM}"); e("v_lshl_add_u32 v203, v203, 3, v201"); e(f"v_lshl_add_u32 v203, v203, 6, v{vG16}"); e(f"v_add_u32 v208, s{T1}, v203")
    e(f"v_lshl_add_u32 v{vOut}, v{VM}, 11, v{vG16}")
    e("s_waitcnt lgkmcnt(0)")
    stamp(29)
    rowtouch(P_BW1)
    xtile(True)
    for blk in range(6):
        mask64(T1, 0x0001000100010001 << blk)
        for r in range(4): e(f"v_cndmask_b32 v{96+4*blk+r}, 0, v{ONES}, {sm(T1)}")
    e(f"s_add_u32 s{T2}, s{ROTW}, {WS_W1[0]}"); e(f"s_add_u32 s{T4}, s{T2}, 4096")
    e(f"s_lshl_b32 s{T0}, s{T6}, 6"); e(f"s_mul_i32 s{T1}, s{SMEM}, 12288"); e(f"s_add_u32 s{T0}, s{T0}, s{T1}"); e(f"s_add_u32 s{sCL0}, s{T0}, {WS_CS}")
    e("WAITV phi")
    for fb in range(2):
        for t in range(2): e(f"ds_read_b64_tr_b16 {v(PHI+4*fb+2*t,2)}, v205 offset:{4096 + fb*32 + t*256}")
    e("WAITV ra")
    stamp(13)
    RA, RB = RS(0, 0), RS(1, 0)
    for seg in range(2):
        for kb in range(2): e(f"ds_read_b128 {v(120+8*seg+4*kb,4)}, v208 offset:{seg*2048 + kb*256} ;@s{seg}")
    for blk in (4, 5):
        for t in range(2): e(f"ds_read_b64_tr_b16 {a(RA+4*blk+2*t,2)}, v206 offset:{4096 + t*256 + (blk&1)*8}")
    for seg in range(2):
        e(f"WAITL s{seg}")
        for fb in range(2):
            for kb in range(2): e(f"{MF} {v(160+16*seg+8*fb+4*kb,4)}, {v(120+8*seg+4*kb,4)}, {v(PHI+4*fb,4)}, 0")
    e("s_waitcnt lgkmcnt(0)")
    for blk in (4, 5):
        e(w1st(a(RA+4*blk,4), blk, T2, T4))
        e(f"{MF} v[64:67], {a(RA+4*blk,4)}, {v(96+4*blk,4)}, {'0' if blk == 4 else 'v[64:67]'}")
    for blk in range(4):
        cvt4(136+4*blk, 160+8*blk, 164+8*blk)
        e(w1st(v(136+4*blk,4), blk, T2, T4))
        e(f"{MF} v[64:67], {v(136+4*blk,4)}, {v(96+4*blk,4)}, v[64:67]")
    for r in range(16): e(f"v_accvgpr_write_b32 a{RA+r}, v{136+r}")
    E(csst(v(64,4), sCL0))
    srt(P_DBG, 256)
    e("v_and_b32 v253, 7, v254"); e("v_lshlrev_b32 v253, 5, v253"); e(f"s_cmp_eq_u32 s{SW}, 0"); e(f"s_cselect_b32 s{T0}, 0, {OOR}")
    e(f"buffer_load_dword v212, v253, {SRT}, s{T0} offen sc1 ;@go")
    e("s_barrier")
    e(f"s_lshl_b32 s{T0}, s{SRB}, 1"); e(f"s_and_b32 s{T3}, s{SW}, 1"); e(f"s_add_u32 s{T0}, s{T0}, s{T3}")
    e(f"s_lshl_b32 s{T1}, s{SCB}, 1"); e(f"s_lshr_b32 s{T4}, s{SW}, 1"); e(f"s_add_u32 s{T1}, s{T1}, s{T4}"); e(f"s_lshl_b32 s{T1}, s{T1}, 6")
    e(f"s_lshl_b32 s{sW2s}, s{T0}, 12"); e(f"s_lshl_b32 s{T0}, s{T0}, 16"); e(f"s_add_u32 s{T0}, s{T0}, s{T1}"); e(f"s_add_u32 s{T1}, s{T0}, 0x8000")
    e("v_lshlrev_b32 v203, 11, v200"); e("v_lshl_add_u32 v207, v201, 4, v203")
    for wt_, p in enumerate((P_AW2, P_BW2)):
        srt(p, 0x200000)
        for i in range(2):
            e(f"s_add_u32 m0, s{sLW}, {RAW2 + wt_*2048 + i*1024}")
            e(f"buffer_load_dwordx4 v207, {SRT}, s{T0 + i} offen lds")
    for blk in range(6): e(f"ds_write_b128 v{vLW}, {a(RA+4*blk,4)} offset:{SLOT + blk*1024}")
    stamp(30)
    e(f"s_getreg_b32 s{SXCC}, hwreg(HW_REG_XCC_ID, 0, 4)"); e(f"s_or_b32 s{SXCC}, s{SXCC}, 0x100")
    e(f"v_mov_b32 v{vVal}, s{SXCC}")
    e(f"s_lshl_b32 s{T0}, s{T4}, 11"); e(f"s_add_u32 s{sW2s}, s{sW2s}, s{T0}"); e(f"s_lshl_b32 s{T0}, s{SCB}, 17")
    e(f"s_add_u32 s{sW2s}, s{sW2s}, s{T0}"); e(f"s_add_u32 s{sW2s}, s{sW2s}, {WS_W2[0]}")
    e(f"s_lshl_b32 s{T1}, s{SMEM}, 15"); e(f"s_lshl_b32 s{T2}, s{SW}, 10"); e(f"s_add_u32 s{T1}, s{T1}, s{T2}"); e(f"s_add_u32 s{sKV}, s{T1}, {WS_KVP - WS_X + (1<<32)}")
    e(f"s_lshr_b32 s{T1}, s{T1}, 4"); e(f"s_add_u32 s{sZP}, s{T1}, {WS_ZP}")
    for s_ in range(8):
        e(f"s_add_u32 s{T1}, s{SGRP}, {s_}"); e(f"s_and_b32 s{T1}, s{T1}, 7")
        e(f"s_mul_i32 s{ROTW+s_}, s{T1}, {SLOT}"); e(f"s_lshl_b32 s{T1}, s{T1}, 12"); e(f"s_add_u32 s{ROTA+s_}, s{T1}, {WS_X}")
    e(f"s_lshl_b32 s{T1}, s{SIDX}, 11"); e(f"s_add_u32 s{sHALO}, s{T1}, {WS_HALO}")
    e(f"s_lshl_b32 s{T1}, s{SMEM}, 10"); e(f"s_add_u32 s{sO}, s{T1}, {WS_O}")
    touch(P_WS, f"s_mov_b32 s{T0}, s{sW2s}")
    touch(P_WS, f"s_add_u32 s{T0}, s{sKV}, s{ROTA}")
    touch(P_WS, f"s_add_u32 s{T0}, s{sW2s}, {WS_W2[1] - WS_W2[0]}")
    touch(P_WS, f"s_add_u32 s{T0}, s{sAo}, s{ROTW}", f"s_add_u32 s{T0}, s{T0}, {WS_W1[1]}")
    touch(P_WS, f"s_mov_b32 s{T0}, s{sHALO}")
    touch(P_WS, f"s_lshl_b32 s{T0}, s{T6}, 17", f"s_add_u32 s{T0}, s{T0}, s{sO}")
    touch(P_OUT, f"s_lshl_b32 s{T0}, s{SRB}, 18", f"s_lshl_b32 s{T1}, s{SCB}, 7", f"s_add_u32 s{T0}, s{T0}, s{T1}")
    e(f"s_lshl_b32 s{T0}, s{SGRP}, 5"); e(f"v_add_u32 v203, s{T0}, v254")
    e("v_and_b32 v204, 7, v254"); e(f"v_lshl_add_u32 v204, v204, 5, s{SMEM}")
    mask64(T1, 0x00000000FFFFFFFF); e(f"v_cndmask_b32 v211, v204, v203, {sm(T1)}"); e("v_lshlrev_b32 v211, 7, v211")
    e(f"s_cmp_eq_u32 s{SW}, 0"); e(f"s_cselect_b32 s{T0}, 1, 0")
    e("WAITV go")
    stamp(31)
    e(f"v_cmp_ne_u32 vcc, s{T0}, v212"); e("s_cbranch_vccnz L_goslow")
    A.label("L_gook")
    def goslow():
        A.label("L_goslow"); srt(P_DBG, 256); e("s_waitcnt lgkmcnt(0)")
        spin([f"buffer_load_dword v212, v253, {SRT}, 0 offen sc1"], ["v_cmp_ne_u32 vcc, 1, v212"]); e("s_branch L_gook")
    ool.append(goslow)
    e(f"s_lshl_b32 s{T0}, s{SIDX}, 7"); e(f"s_cmp_eq_u32 s{SW}, 0"); e(f"s_cselect_b32 s{T0}, s{T0}, {OOR}")
    e("s_barrier")
    e("s_mov_b64 exec, 1"); e(f"buffer_store_dword v{vVal}, off, {SRD}, s{T0} sc1"); e("s_mov_b64 exec, -1")
    stamp(14)
    raw1(P_BW1, RAW1B, "rb")
    mask64(mM0, 0x0001000100010001)
    mask64(mOWN0, sum(1 << l for l in range(64) if 4*(l >> 4) + (l & 1) <= (l & 15)))
    mask64(mOWN1, sum(1 << l for l in range(64) if 4*(l >> 4) + 2 + (l & 1) <= (l & 15)))
    e(f"s_lshl_b32 s{T1}, s{T6}, 7"); e(f"s_add_u32 s{sFXc}, s{T1}, {WS_FLAGX}")
    e(f"s_lshl_b32 s{T2}, s{SMEM}, 2"); e(f"s_add_u32 s{T1}, s{T1}, s{T2}"); e(f"s_add_u32 s{sFOp}, s{T1}, {WS_FLAGO}")
    e(f"s_lshl_b32 s{T1}, s{SRB}, 1"); e(f"s_add_u32 s{T1}, s{T1}, s{T4}"); e(f"s_lshl_b32 s{T1}, s{T1}, 7")
    e(f"s_add_u32 s{sFOc}, s{T1}, {WS_FLAGO}")
    e(f"s_lshl_b32 s{T2}, s{SCB}, 3"); e(f"s_lshl_b32 s{T0}, s{T3}, 2")
    e(f"s_add_u32 s{T1}, s{T1}, s{T2}"); e(f"s_add_u32 s{T1}, s{T1}, s{T0}"); e(f"s_add_u32 s{sFXp}, s{T1}, {WS_FLAGX}")
    e(f"s_lshl_b32 s{T0}, s{SGRP}, 8"); e(f"s_add_u32 s{sZo}, s{T0}, s{sZP}")
    e(f"s_lshl_b32 s{T1}, s{T3}, 10"); e(f"s_lshl_b32 s{T2}, s{T4}, 19")
    e(f"s_add_u32 s{T1}, s{T1}, s{T2}"); e(f"s_add_u32 s{sCL2}, s{T1}, s{sHALO}")
    e(f"s_lshl_b32 s{T1}, s{SIDX}, 2"); e(f"s_add_u32 s{T1}, s{T1}, {WS_FLAGB}"); e(f"s_cmp_eq_u32 s{SW}, 0"); e(f"s_cselect_b32 s{sFBp}, s{T1}, {OOR}")
    e(f"s_cmp_eq_u32 s{SW}, 3"); e(f"s_cselect_b32 s{sHst}, s{sHALO}, {OOR}")
    e(f"s_sub_u32 s{T1}, s{sHALO}, 0x10000"); e(f"s_cmp_eq_u32 s{SW}, 0"); e(f"s_cselect_b32 s{T1}, s{T1}, {OOR}")
    e(f"s_cmp_eq_u32 s{SGRP}, 0"); e(f"s_cselect_b32 s{sHld}, {OOR}, s{T1}")
    e(f"s_lshl_b32 s{sL8}, s{SW}, 13"); e(f"s_lshl_b32 s{sW2l}, s{SW}, 11")
    e(f"s_or_b32 s{T0}, s{SGRP}, s{SW}"); e(f"s_cmp_eq_u32 s{T0}, 0"); e(f"s_cselect_b64 {sm(mFIRST)}, -1, 0")
    e(f"v_add_u32 v{vL64}, 0x10000, v{vL16}"); e(f"v_add_u32 v{vL128}, 0x20000, v{vL16}"); e(f"v_add_u32 v{vLW3}, {3*SLOT}, v{vLW}")
    e(f"v_and_b32 v{vFP}, 31, v254"); e(f"v_lshlrev_b32 v{vFP}, 2, v{vFP}")
    e(f"s_lshl_b32 s{T1}, s{T6}, 17"); e(f"v_add_u32 v{vA}, s{T1}, v{vL16}")
    for i in range(1, 4): e(f"v_add_u32 v{vA+i}, {i*0x8000}, v{vA}")
    e(f"s_lshl_b32 s{T1}, s{T6}, 9"); e("v_lshrrev_b32 v213, 5, v254"); e(f"v_lshl_add_u32 v{vSTl}, v213, 17, s{T1}"); e(f"v_lshl_add_u32 v{vSTl}, v{vFP}, 2, v{vSTl}")
    e(f"s_lshl_b32 s{T1}, s{SCB}, 17"); e(f"s_add_u32 s{T1}, s{T1}, s{sLW}"); e(f"v_add_u32 v{vW2}, s{T1}, v{vL16}")
    e("v_lshrrev_b32 v203, 4, v254"); e("v_xor_b32 v204, v203, v201"); e("v_lshlrev_b32 v204, 3, v204"); e("v_lshl_add_u32 v208, v200, 5, v204")
    e(f"s_lshl_b32 s{T2}, s{SW}, 12")
    e(f"v_lshrrev_b32 v204, 2, v{VM}"); e("v_xor_b32 v203, v203, v204"); e("v_lshlrev_b32 v203, 3, v203")
    e(f"v_lshl_add_u32 v203, v{VM}, 5, v203"); e(f"v_add_u32 v{vXW}, s{T2}, v203"); e(f"v_add_u32 v{vHVw}, {M_HV}, v203")
    e(f"v_add_u32 v{vVo}, s{T2}, v208")
    e(f"s_add_u32 s{T0}, s{T2}, {VB_LDS - 1024}"); e(f"s_cmp_eq_u32 s{SW}, 0"); e(f"s_cselect_b32 s{T0}, {M_HV}, s{T0}"); e(f"v_add_u32 v{vVp}, s{T0}, v208")
    e(f"s_lshl_b32 s{T0}, s{T4}, 14"); e(f"s_lshl_b32 s{T1}, s{T3}, 9"); e(f"s_add_u32 s{T2}, s{T0}, s{T1}"); e(f"v_add_u32 v{vE0}, s{T2}, v208")
    e(f"v_xor_b32 v{vE1}, 512, v{vE0}"); e(f"s_add_u32 s{T1}, s{T1}, {VB_LDS}"); e(f"v_add_u32 v{vVr}, s{T1}, v208")
    e(f"s_lshl_b32 s{T1}, s{T3}, 3")
    e(f"v_add_u32 v{vGM}, {M}, v{vG16}")
    e(f"s_lshl_b32 s{T0}, s{T4}, 6"); e(f"s_add_u32 s{T0}, s{T0}, s{T1}"); e(f"v_add_u32 v{vZW}, s{T0}, v{vGM}")
    e(f"s_lshl_b32 s{T0}, s{SW}, 10"); e(f"s_add_u32 s{T0}, s{T0}, {M_KX}"); e(f"v_add_u32 v{vKX}, s{T0}, v{vL16}")
    e(f"v_add_u32 v{vKX0}, s{T1}, v{vKX}"); e(f"v_xor_b32 v{vKX1}, 8, v{vKX0}")
    e(f"s_lshl_b32 s{T0}, s{SW}, 9"); e(f"s_add_u32 s{T0}, s{T0}, {M_ST}")
    e(f"v_lshl_add_u32 v203, v213, 3, s{T0}"); e(f"v_lshl_add_u32 v{vSW}, v{vFP}, 2, v203"); e(f"v_lshl_add_u32 v{vSR}, v{VM}, 3, s{T0}")
    e(f"v_and_b32 v203, 7, v{VM}"); e(f"v_lshl_add_u32 v{vZL}, v203, 8, v{vG16}")
    e("v_mov_b32 v203, 0xffff"); e("v_mov_b32 v204, 0xffff0000"); e(f"v_cndmask_b32 v203, v203, v204, {sm(mPAR)}")
    e(f"v_cndmask_b32 v{MO0}, 0, v203, {sm(mOWN0)}"); e(f"v_cndmask_b32 v{MO1}, 0, v203, {sm(mOWN1)}")
    e(f"v_xor_b32 v{MP0}, v203, v{MO0}"); e(f"v_xor_b32 v{MP1}, v203, v{MO1}")
    e(f"s_add_u32 s{T2}, s{SW}, 4"); e(f"s_min_u32 s{T2}, s{T2}, 5"); e(f"s_mul_i32 s{T0}, s{SMEM}, 12288"); e(f"s_add_u32 s{T0}, s{T0}, {WS_CS}")
    e(f"s_lshl_b32 s{T1}, s{SW}, 11"); e(f"s_add_u32 s{sCSa}, s{T0}, s{T1}"); e(f"s_lshl_b32 s{T1}, s{T2}, 11"); e(f"s_add_u32 s{sCSb}, s{T0}, s{T1}")
    e("v_bfe_u32 v203, v254, 4, 1"); e("v_lshlrev_b32 v203, 3, v203"); e("v_lshl_add_u32 v203, v213, 2, v203"); e("v_lshl_add_u32 v203, v201, 4, v203"); e(f"v_add_u32 v203, {M_CS}, v203")
    e(f"s_lshl_b32 s{T1}, s{SW}, 6"); e(f"v_add_u32 v{vCSa}, s{T1}, v203"); e(f"s_lshl_b32 s{T1}, s{T2}, 6"); e(f"v_add_u32 v{vCSb}, s{T1}, v203")
    e(f"s_lshl_b32 s{T0}, s{SMEM}, 2"); e(f"s_add_u32 s{T0}, s{T0}, s{SW}"); e(f"s_lshl_b32 s{T2}, s{T0}, 7"); e(f"v_mov_b32 v{vCPF}, s{T2}")
    e(f"s_lshr_b32 s{T1}, s{T0}, 3"); e(f"s_and_b32 s{T0}, s{T0}, 7")
    e(f"s_lshl_b32 s{T2}, s{SGRP}, 4"); e(f"s_add_u32 s{T1}, s{T1}, s{T2}"); e(f"s_lshl_b32 s{T1}, s{T1}, 15"); e(f"s_lshl_b32 s{T0}, s{T0}, 9"); e(f"s_add_u32 s{T0}, s{T0}, s{T1}")
    e(f"v_lshl_add_u32 v{vTCH}, v{vG16}, 3, s{T0}")
    for r in range(4): e(f"v_accvgpr_write_b32 a{252+r}, -1")
    e(f"v_mov_b32 v{vVal}, 0"); e(f"s_add_u32 s{T0}, s{sKV}, s{ROTA}")
    e(f"buffer_store_dwordx4 a[252:255], v{vL16}, {SRD}, s{T0} offen sc1")
    e(f"s_mov_b64 exec, {sm(mM0)}"); e(f"buffer_store_dwordx4 a[252:255], v{vG16}, {SRD}, s{sZo} offen sc1")
    e("s_mov_b64 exec, 1"); e(f"buffer_store_dword v{vVal}, off, {SRD}, s{sFOp} sc1"); e(f"buffer_store_dword v{vVal}, off, {SRD}, s{sFXp} sc1"); e("s_mov_b64 exec, -1")
    e(f"s_cmp_eq_u32 s{SW}, 0"); e(f"s_cselect_b32 s{T5}, 0, {OOR}")
    e("WAITV rb")
    stamp(44)
    pl = f"buffer_load_dword v212, v211, {SRD}, s{T5} offen sc1"
    e(pl + " ;@poll")
    for wt_ in range(2):
        for b_ in range(2):
            for t in range(2):
                d_ = v(224+4*b_+2*t, 2) if wt_ == 0 else a(HW2+4*b_+2*t, 2)
                e(f"ds_read_b64_tr_b16 {d_}, v206 offset:{2*SLOT + wt_*2048 + t*256 + b_*8}")
    e("s_waitcnt lgkmcnt(0)")
    for b_ in range(2): e(f"buffer_store_dwordx4 {v(224+4*b_,4)}, v{vL16}, {SRD}, s{sW2s} offen offset:{b_*1024} sc1 ;@b1")
    for blk in range(6):
        for t in range(2): e(f"ds_read_b64_tr_b16 {a(RB+4*blk+2*t,2)}, v206 offset:{SLOT + (blk>>1)*2048 + t*256 + (blk&1)*8} ;@r{blk}")
    for blk in range(6):
        e(f"WAITL r{blk}")
        e(f"{MF} {a(HCS,4)}, {a(RB+4*blk,4)}, {v(96+4*blk,4)}, {'0' if blk == 0 else a(HCS,4)}")
    e(f"v_mov_b32 v{vVal}, 1")
    stamp(45)
    e("WAITV poll")
    e(f"s_cmp_lg_u32 s{SW}, 0"); e("s_cbranch_scc1 L_faok")
    A.track = False
    e("v_cmp_eq_u32 vcc, 0, v212"); e("s_cbranch_vccz L_fad")
    spin([pl], ["v_cmp_eq_u32 vcc, 0, v212"])
    A.label("L_fad")
    e(f"v_cmp_ne_u32 {sm(T1)}, s{SXCC}, v212"); e(f"v_mov_b32 v212, s{T1}")
    e(f"ds_write_b32 v{vGM}, v212"); e("s_waitcnt lgkmcnt(0)")
    A.track = True
    A.label("L_faok")
    e("s_barrier")
    stamp(15)
    e(f"ds_read_b32 v{FBV}, v{vGM} ;@mode")

    for lay in range(o.last + 1):
        par = lay & 1; early = lay < 2; li = lay >> 1; last = lay == o.last
        A.label(f"L_layer{lay}")
        stamp(0)
        def wdst(step, c):
            if c < 2 and step >= 32 - ND: return a(WQ + 8*(step - (32-ND)) + 4*c, 4)
            return v(WFV + 4*c, 4)
        def w1rd(step, c): return ldsrd(wdst(step, c), ((step//4 + 1) % 6)*SLOT + (step % 4)*6144 + c*1024) + f" ;@w{step}_{c}"
        def aload(step, i):
            return f"buffer_load_dwordx4 {a(RING + 16*(step % AD) + 4*i,4)}, v{vA+i}, {SRD}, s{ROTA + step//4} offen offset:{(step%4)*1024} sc1 ;@A{step}"
        anext = [(st, i) for st in range(32) for i in range(4)]
        if lay == 0:
            for c in range(6): e(w1rd(0, c))
        for j in range(4*o.APRE): e(aload(*anext.pop(0)))
        if lay == 0:
            for i in range(6): E(w1_piece(par, 1, i))
            e("WAITL mode"); e(f"v_readfirstlane_b32 s{SMODE}, v{FBV}")
        else:
            e("s_waitcnt lgkmcnt(0)"); e("s_barrier")
            for c in range(6): e(w1rd(0, c))
        wr, w1s, w2r, w2s = (o.wrE, o.w1sE, o.w2E, o.w2sE) if early else (o.wrL, o.w1sL, o.w2L, o.w2sL)
        pend = [("W", st, i) for st in range(2 if early else 2 + o.NRES, 8) for i in range(6)] + [("W2", p, i) for p in range(4) for i in range(6)]
        def allowed(p, step):
            if p[0] == "W": return p[1] < 6 or step >= 4*(p[1]-5) + 3
            return step >= max(4*(p[1]+3) + 3, w2s) and (lay > 0 or fbdone[0])
        fbdone = [False]
        misc = [(o.s0 + o.sper*j, [f"s_mov_b32 s{T0}, {WS_ST + j*16384}", f"buffer_load_dwordx4 {v(160+4*j,4)}, v{vSTl}, {SRD}, s{T0} offen sc1 ;@S{j}"]) for j in range(8)]
        extra = []
        sh = []
        if early:
            for j in range(4):
                extra.append((4 + j, [f"buffer_load_dwordx4 {v(224+8*(j//2)+4*(j%2),4)}, v{vL16}, {SRD}, s{(sCSa, sCSb)[j%2]} offen offset:{(j//2)*1024} sc1 ;@CS{j}"]))
            d = 224
            r = [f"v_add_f32 v{d+j}, v{d+j}, v{d+8+j}" for j in range(8)]
            for s_ in (8, 4): r += [f"v_add_f32_dpp v{d+j}, v{d+j}, v{d+j} row_ror:{s_} row_mask:0xf bank_mask:0xf" for j in range(8)]
            r = [r[j:j+2] for j in range(0, len(r), 2)] + [[f"v_permlane32_swap_b32 v{d+j}, v{d+j+1}"] for j in range(0, 8, 2)]
            r += [[f"v_add_f32 v{d+j}, v{d+j}, v{d+j+1}", f"v_add_f32 v{d+j+2}, v{d+j+2}, v{d+j+3}"] for j in (0, 4)]
            r += [[f"v_permlane16_swap_b32 v{d}, v{d+2}"], [f"v_permlane16_swap_b32 v{d+4}, v{d+6}"], [f"v_add_f32 v{d}, v{d}, v{d+2}", f"v_add_f32 v{d+4}, v{d+4}, v{d+6}"],
                  ["s_mov_b32 exec_lo, 0x000f000f", "s_mov_b32 exec_hi, 0x000f000f", f"ds_write_b32 v{vCSa}, v{d} offset:{par*384}", f"ds_write_b32 v{vCSb}, v{d+4} offset:{par*384} ;@csw",
                   "s_mov_b64 exec, -1"], [f"s_add_u32 s{sCSa}, s{sCSa}, {CS_SZ}", f"s_add_u32 s{sCSb}, s{sCSb}, {CS_SZ}"]]
            caps = [[(8 + 4*k, None, [f"ds_read_b128 {a(RS(par, k+1)+4*b_,4)}, v{vLW3} offset:{k*SLOT + b_*1024}"]) for b_ in range(6)] for k in range(o.NRES)]
            sh += (caps[0] if caps else []) + [(8, "CS3", x) for x in r] + sum(caps[1:], [])
        if lay == 0:
            extra.insert(0, (4, fb_set(0)))
            extra.append((w2s - 8, [t + (" ;@F" if t.startswith("buffer") else "") for t in fb_body(0)]))
        def codepf(lbl): return [f"s_add_u32 s{T3}, s{sPC}, {lbl}-L_pc", f"s_addc_u32 s{T4}, s{sPC+1}, 0", f"global_load_dword v{vJUNK}, v{vCPF}, {sm(T3)}"]
        if o.cpf2: extra.append((o.cpf2, codepf(f"L_epi{lay}")))
        if o.cpf3 and not last: extra.append((o.cpf3, codepf("L_ool")))
        r = []
        for st in (16, 8, 4):
            r += [[f"v_add_f32 v{160+j}, v{160+j}, v{160+j+st}", f"v_add_f32 v{161+j}, v{161+j}, v{161+j+st}"] for j in range(0, st, 2)]
        r += [["s_nop 0"], ["v_permlane32_swap_b32 v160, v162"], ["v_permlane32_swap_b32 v161, v163"], ["v_add_f32 v160, v160, v162", "v_add_f32 v161, v161, v163"],
              [f"v_mul_f32 v163, {f32hex(-1.0/1024)}, v160", f"v_mul_f32 v161, {f32hex(1.0/1024)}, v161"], ["v_fma_f32 v161, -v163, v163, v161", "v_max_f32 v161, 0, v161"],
              [f"v_add_f32 v161, {f32hex(1e-5)}, v161"], ["v_rsq_f32 v162, v161"], [f"ds_write_b64 v{vSW}, v[162:163]"]]
        r += [[f"ds_read_b64 {v(STP+2*i,2)}, v{vSR} offset:{i*128}"] for i in range(4)]
        sh += [(0, "S7", x) for x in r]
        sh += [(0, "csbar", [f"ds_read_b128 {v(CSR+4*c,4)}, v{vGM} offset:{M_CS-M+par*384+c*64} ;@cs"]) for c in range(6)]
        for t_ in ["S7", "CS3", "F", "csw", "cs"] + [f"W{j}" for j in range(2, 8)]: A.seen.discard(t_)
        csbar = not early
        def ready(tag):
            if tag is None: return True
            if tag == "csbar": return csbar
            return tag in A.seen and not A.pending(tag)
        fix = {cc: [f"v_fmac_f32 v{acc(cc,ii)+j}, v{CSR+4*cc+j}, v{STP+2*ii+1}" for ii in range(4) for j in range(4)] for cc in range(6)}
        fix["ci"] = [f"v_mul_f32 v{CI+ii}, {CK[par]}, v{STP+2*ii}" for ii in range(4)]
        credit = 0.0
        for step in range(32):
            stage = step // 4
            deferred = step >= 32 - ND
            cs_ = list(range(2, 6) if deferred else range(6)); ng = len(cs_)
            assert not anext or anext[0][0] > step
            e(f"WAITV A{step}")
            if o.g1prof and step == 0: stamp(2, 1)
            if step % 4 == 3 and stage < 7:
                assert not any(p[0] == "W" and p[1] <= stage+1 for p in pend)
                if f"W{stage+1}" in A.seen: e(f"WAITV W{stage+1}")
                if lay == 0 and step == 3: assert not A.pending("b1")
                e("s_barrier")
                if ready("csw"): csbar = True
                if o.g1prof: stamp(3 + stage, 1)
            plan = []; na = nw = nm = 0
            while len(plan) < ng and na < len(anext) and anext[na][0] <= step + o.LA and na < (4 if anext[na][0] >= step + o.APRE else 6):
                plan.append("A"); na += 1
            if step >= w1s: credit = min(credit + (wr if (pend and pend[0][0] == "W") else w2r) / 100.0, max(3.0, w2r/100.0))
            while len(plan) < ng and nw < len(pend) and allowed(pend[nw], step) and credit >= 1:
                plan.append("W"); nw += 1; credit -= 1
            while len(plan) < ng and nm < len(misc) and misc[nm][0] <= step:
                plan.append("M"); nm += 1
            while len(plan) < ng and na < len(anext) and anext[na][0] <= step + o.LA:
                plan.append("A"); na += 1
            oth = [p for p in plan if p != "A"]; aa = [p for p in plan if p == "A"]; plan = []
            while oth or aa:
                if aa: plan.append(aa.pop())
                if aa and len(aa) >= 2*len(oth): plan.append(aa.pop())
                if oth: plan.append(oth.pop(0))
            a0 = RING + 16*(step % AD)
            for gi, c in enumerate(cs_):
                vm = None
                for p, i in enumerate(range(4) if c % 2 == 0 else reversed(range(4))):
                    if p == 0: e(f"WAITL w{step}_{c}")
                    e(f"{MF} {v(acc(c,i),4)}, {wdst(step,c)}, {a(a0+4*i,4)}, {'0' if step == 0 else v(acc(c,i),4)}")
                    busy = False
                    if p == 0 and gi < len(plan):
                        k = plan[gi]
                        if k == "A": vm = [aload(*anext.pop(0))]
                        elif k == "W":
                            pc = pend.pop(0); vm = w1_piece(par, pc[1], pc[2]) if pc[0] == "W" else w2_piece(par, pc[1], pc[2])
                        else: vm = misc.pop(0)[1]
                        E(vm[:-1]); busy = len(vm) > 1
                    if p == 1 and vm: e(vm[-1]); busy = True
                    if p == 3:
                        busy = True
                        if step < 31: e(w1rd(step+1, c))
                    if p == 2 and step < 31 and deferred and gi < 2:
                        e(w1rd(step+1, gi)); busy = True
                    if busy: continue
                    if p == 2 and gi == 2 and extra and extra[0][0] <= step: E(extra.pop(0)[1])
                    elif p == 2 and lay == 0 and not fbdone[0] and ready("F"):
                        E(fb_cond + retry(fb_body(0), fb_cond)); fbdone[0] = True
                    elif sh:
                        if sh[0][0] <= step and ready(sh[0][1]): E(sh.pop(0)[2])
                    elif ready("cs"):
                        for cc in [cs_[(gi + ng//2) % ng]] + ([0, 1] if step > 32 - ND else []) + ["ci"]:
                            if fix[cc]:
                                E(fix[cc][:2]); fix[cc] = fix[cc][2:]; break
        assert not anext and not misc and not sh and not extra and all(p[0] == "W2" for p in pend), (lay, pend, anext, misc, len(sh), extra)
        assert all(not x for x in fix.values()), (lay, {k: len(x) for k, x in fix.items()})
        assert lay > 0 or fbdone[0]
        left = [w2_piece(par, p[1], p[2]) for p in pend]
        lates = [w2_piece(par, 4, i) for i in range(8)]
        A.label(f"L_epi{lay}")
        e("s_waitcnt lgkmcnt(0)"); e("s_barrier")
        stamp(1)
        qm = [f"{MF} {v(acc(c,i),4)}, {wdst(step,c)}, {a(RING+16*(step%AD)+4*i,4)}, {v(acc(c,i),4)}"
              for step in range(32-ND, 32) for c in range(2) for i in (range(4) if c == 0 else reversed(range(4)))]
        def ostore(i, through):
            t = f"buffer_store_dwordx4 {v(224+4*i,4)}, v{vA+i}, {SRD}, s{sO} offen"
            if through: e(wt(t))
            else: st_mode([t])

        if par == 0:
            def feat_head(c0, tmp, hook=None):
                MX, MN = tmp, tmp+4
                for i in (3, 2, 1, 0):
                    p0, p1 = acc(c0,i), acc(c0+1,i)
                    for op, op2, d in (("v_max3_f32", "v_max_f32", MX+i), ("v_min3_f32", "v_min_f32", MN+i)):
                        e(f"{op} v{d}, v{p0}, v{p0+1}, v{p0+2}"); e(f"{op} v{d}, v{d}, v{p0+3}, v{p1}")
                        e(f"{op} v{d}, v{d}, v{p1+1}, v{p1+2}"); e(f"{op2} v{d}, v{d}, v{p1+3}")
                if hook: hook()
                xreduce([("v_max_f32", [MX, MX+1, MX+2, MX+3]), ("v_min_f32", [MN, MN+1, MN+2, MN+3])])
                for i in range(4):
                    e(f"v_mul_f32 v{MX+i}, -v{MX+i}, v{CI+i}"); e(f"v_mul_f32 v{MN+i}, v{MN+i}, v{CI+i}")
                for i in range(4):
                    for fb in range(2):
                        for h in range(2):
                            pk_fma(224+8*i+4*fb+2*h, acc(c0+fb,i)+2*h, CI+i, MX+i)
                            pk_fma(acc(c0+fb,i)+2*h, acc(c0+fb,i)+2*h, CI+i, MN+i, negx=True)
            def feat_tail(c0, F, G_, S0, S1, post, mid=None, hooks={}):
                def norm_(i):
                    sq = S0 if i % 2 == 0 else S1
                    e(f"v_rcp_f32 v{184+2*i}, v{sq}"); e(f"v_rcp_f32 v{185+2*i}, v{sq+4}")
                    for r in range(0, 8, 2): pk_mul(224+8*i+r, 224+8*i+r, 184+2*i)
                    cvt4(F+4*i, 224+8*i, 224+8*i+4)
                    if post: e(post(i, 0))
                    for fb in range(2):
                        for h in range(2): pk_mul(acc(c0+fb,i)+2*h, acc(c0+fb,i)+2*h, 185+2*i)
                    cvt4(G_+4*i, acc(c0,i), acc(c0+1,i))
                    if post: e(post(i, 1))
                for i in range(4):
                    if i in hooks: hooks[i]()
                    for r in range(8): e(f"v_exp_f32 v{224+8*i+r}, v{224+8*i+r}")
                    for fb in range(2):
                        for r in range(4): e(f"v_exp_f32 v{acc(c0+fb,i)+r}, v{acc(c0+fb,i)+r}")
                    if 0 < i < 3: norm_(i-1)
                    sq = S0 if i % 2 == 0 else S1
                    cvt4(F+4*i, 224+8*i, 224+8*i+4); cvt4(G_+4*i, acc(c0,i), acc(c0+1,i))
                    e(f"{MF} {v(sq,4)}, {v(ONES,4)}, {v(F+4*i,4)}, 0"); e(f"{MF} {v(sq+4,4)}, {v(ONES,4)}, {v(G_+4*i,4)}, 0")
                if mid: mid()
                norm_(2); norm_(3)
            dl = []
            if lay == 0:
                dl = [[f"s_add_u32 s{D2}, s{ROTW}, {WS_W1[1]}", f"s_add_u32 s{D4}, s{D2}, 4096", w1st(a(RB,4), 0, D2, D4)]] + [[w1st(a(RB+4*b_,4), b_, D2, D4)] for b_ in range(1, 6)]
                dl += [[f"s_add_u32 s{D1}, s{sW2s}, {WS_W2[1] - WS_W2[0]}", f"buffer_store_dwordx4 {a(HW2,4)}, v{vL16}, {SRD}, s{D1} offen sc1"],
                       [f"buffer_store_dwordx4 {a(HW2+4,4)}, v{vL16}, {SRD}, s{D1} offen offset:1024 sc1", f"s_add_u32 s{D1}, s{sCL0}, {CS_SZ}"] + csst(a(HCS,4), D1),
                       [f"buffer_store_dwordx4 a[252:255], v{vL16}, {SRD}, s{sCL2} offen sc1"],
                       [f"s_add_u32 s{D1}, s{sKV}, s{ROTA}", f"s_add_u32 s{D1}, s{D1}, 0x100000", f"buffer_store_dwordx4 a[252:255], v{vL16}, {SRD}, s{D1} offen sc1",
                        f"s_add_u32 s{D1}, s{sZo}, 0x10000", f"s_mov_b64 exec, {sm(mM0)}", f"buffer_store_dwordx4 a[252:255], v{vG16}, {SRD}, s{D1} offen sc1 ;@b2", "s_mov_b64 exec, -1"]]
            dl2 = dl[o.dk:]; dl = dl[:o.dk]; mix = []
            for j_ in range(max(len(left), len(dl))): mix += left[j_:j_+1] + dl[j_:j_+1]
            per = o.aper0 if dl else o.aper
            A.bgset(mix, per, per)
            def vall():
                for i in range(4):
                    for b in range(2):
                        for h in range(2): pk_mul(acc(4+b,i)+2*h, acc(4+b,i)+2*h, STP+2*i)
                    cvt4(acc(4,i), acc(4,i), acc(5,i))
                    e(xw(acc(4,i), VB_LDS//1024 + i))
            feat_head(2, 208, vall)
            feat_tail(2, 192, 144, 168, 176, lambda i, sg: xw((192 if sg == 0 else 144)+4*i, 24 + 16*sg + i))
            A.bgflush()
            e(f"s_add_u32 s{T2}, s{sKV}, s{ROTA}")
            e("s_waitcnt lgkmcnt(0)"); e("s_barrier")
            stamp(2)
            def kvreads(p):
                b = 96 + 16*(p % 4); r = []
                for t in range(2):
                    r += [f"ds_read_b64_tr_b16 {v(b+2*t,2)}, v{vE0} offset:{SLOT + (2*p+t)*1024}", f"ds_read_b64_tr_b16 {v(b+8+2*t,2)}, v{vVr} offset:{(2*p+t)*1024} ;@ka{p}"]
                return r + [f"ds_read_b64_tr_b16 {v(b+4+2*t,2)}, v{vE1} offset:{SLOT + (2*p+t)*1024} ;@kb{p}" for t in range(2)]
            rd = sum((kvreads(p) for p in range(8)), [])
            E(rd[:14]); rd = rd[14:]
            for j in range(4): e(qm.pop(0))
            for p in range(8):
                b = 96 + 16*(p % 4); z_ = p == 0
                e(f"WAITL ka{p}")
                e(f"{MF} v[168:171], {v(b,4)}, {v(b+8,4)}, {'0' if z_ else 'v[168:171]'}"); E(rd[0:2])
                e(f"{MF} v[200:203], {v(b,4)}, {v(ONES,4)}, {'0' if z_ else 'v[200:203]'}"); E(rd[2:4])
                e(f"WAITL kb{p}")
                e(f"{MF} v[172:175], {v(b+4,4)}, {v(b+8,4)}, {'0' if z_ else 'v[172:175]'}"); E(rd[4:6]); rd = rd[6:]
            for j in range(2): e(qm.pop(0))
            e("s_barrier")
            for j in range(2): e(qm.pop(0))
            cv = cvt4l(192, 168, 172)
            E(cv[:2]); e(qm.pop(0)); E(cv[2:]); e(qm.pop(0))
            e(f"buffer_store_dwordx4 v[192:195], v{vL16}, {SRD}, s{T2} offen sc1"); e(qm.pop(0))
            e(f"s_mov_b64 exec, {sm(mM0)}"); e(f"buffer_store_dwordx4 v[200:203], v{vG16}, {SRD}, s{sZo} offen sc1"); e("s_mov_b64 exec, -1")
            stamp(3)
            A.bgset(lates, o.aper2, 0)
            E(qm)
            def g1(p): return [f"s_add_u32 s{T0}, s{sKV}, s{ROTA+1+p}", f"buffer_load_dwordx4 {v(96+4*p,4)}, v{vL16}, {SRD}, s{T0} offen sc1 ;@g{p}"]
            gz = f"buffer_load_dwordx4 v[192:195], v{vZL}, {SRD}, s{sZP} offen sc1 ;@gz"
            def gather():
                A.bgflush()
                for p in range(7): E(g1(p))
                e(gz)
                A.bgset(dl2, o.aper3, 0)
            if o.gpos == 0: gather()
            feat_head(0, 196, gather if o.gpos == 1 else None)
            def qmid():
                e(f"s_andn2_b64 {sm(T1)}, {sm(mDIAG)}, {sm(mB1)}"); e(f"s_and_b64 {sm(T3)}, {sm(mDIAG)}, {sm(mB1)}")
                e(f"v_or_b32 v128, v{MO0}, v{MP0}"); e(f"v_and_b32 v128, v128, v{ONES}")
                e(f"v_cndmask_b32 v130, 0, v128, {sm(T1)}"); e(f"v_cndmask_b32 v131, 0, v128, {sm(T3)}")
                for r in (128, 129, 132, 133): e(f"v_mov_b32 v{r}, 0")
            feat_tail(0, 204, 136, 152, 176, None, qmid, {o.gpos - 2: gather})
            A.bgflush()
            nafter = A.after("gz")
            stamp(4)
            e(f"s_mov_b32 s{sTMO}, {LIM}")
            for p in range(8):
                r0 = 96+4*p if p < 7 else 192; L = f"{lay}_{p}"
                e(f"WAITV g{p if p < 7 else 'z'}")
                A.label(f"L_kvc{L}")
                e(f"v_cmp_eq_u32 vcc, -1, v{r0}"); e(f"s_cbranch_vccnz L_kvs{L}")
                A.label(f"L_kvo{L}")
                if p < 7:
                    e(f"{MF} v[168:171], v[130:133], {v(r0,4)}, v[168:171]"); e(f"{MF} v[172:175], v[128:131], {v(r0,4)}, v[172:175]")
                def kvslow(p=p, L=L, nafter=nafter, g1=g1, gz=gz):
                    A.label(f"L_kvs{L}")
                    e(f"s_sub_u32 s{sTMO}, s{sTMO}, 1"); e(f"s_cbranch_scc1 L_kvt{L}")
                    e(f"s_waitcnt vmcnt({nafter})")
                    for p2 in range(p, 7):
                        if p2 > p: e(f"v_cmp_eq_u32 vcc, -1, v{96+4*p2}"); e(f"s_cbranch_vccz L_kvn{L}_{p2}")
                        E(g1(p2))
                        if p2 > p: A.label(f"L_kvn{L}_{p2}")
                    e(gz); e("s_waitcnt vmcnt(0)"); e(f"s_branch L_kvc{L}")
                    A.label(f"L_kvt{L}"); e(f"s_mov_b32 s{sTMO}, 0"); e(f"s_branch L_kvo{L}")
                ool.append(kvslow)
            for s_ in (4, 2, 1):
                for r in range(4): e(f"v_add_f32_dpp v{192+r}, v{192+r}, v{192+r} row_ror:{s_} row_mask:0xf bank_mask:0xf")
                if s_ == 2:
                    cvt4(196, 168, 172)
                    e(f"ds_write_b64 v{vKX0}, v[196:197]"); e(f"ds_write_b64 v{vKX1}, v[198:199]")
            e("v_cvt_pk_bf16_f32 v192, v192, v193"); e("v_cvt_pk_bf16_f32 v193, v194, v195")
            e(f"s_mov_b64 exec, {sm(mM0)}"); e(f"ds_write_b64 v{vZW}, v[192:193] offset:{M_ZF-M}"); e("s_mov_b64 exec, -1")
            fb2 = lay == 0 and not A.pending("b2")
            e("s_waitcnt lgkmcnt(0)"); e("s_barrier")
            stamp(5)
            for t in range(2): e(f"ds_read_b128 {v(184+4*t,4)}, v{vGM} offset:{M_ZF-M + t*64} ;@zf")
            for j in range(4): e(ldsrd(v(168+4*j,4), M_KX + j*1024))
            if fb2: E(fb_set(1))
            if lay == 0: e(f"s_add_u32 s{sKV}, s{sKV}, 0x100000"); e(f"s_add_u32 s{sZP}, s{sZP}, 0x10000"); e(f"s_add_u32 s{sZo}, s{sZo}, 0x10000")
            e("WAITL zf")
            for t in range(2):
                for i in range(4): e(f"{MF} {v(64+4*i,4)}, {v(184+4*t,4)}, {v((204 if t == 0 else 136)+4*i,4)}, {'0' if t == 0 else v(64+4*i,4)}")
            e("s_waitcnt lgkmcnt(0)")
            def fin(i):
                r = [f"v_mul_f32 v{96+8*i+j}, v{96+8*i+j}, v{64+4*i}" for j in range(8)] + cvt4l(224+4*i, 96+8*i, 100+8*i)
                return [r[j:j+3] for j in range(0, 12, 3)]
            sc = [[f"v_add_f32 v{64+4*i}, {f32hex(1e-6)}, v{64+4*i}", f"v_rcp_f32 v{64+4*i}, v{64+4*i}"] for i in range(4)]
            fills = [[[]]*4, sc, fin(0), fin(1)]
            for i in range(4):
                for t in range(2):
                    for db in range(2):
                        d = v(96+8*i+4*db, 4)
                        e(f"{MF} {d}, {v(168+8*t+4*db,4)}, {v((204 if t == 0 else 136)+4*i,4)}, {'0' if t == 0 else d}")
                        E(fills[i][2*t+db])
                if i >= 2: ostore(i-2, True)
            for i in (2, 3):
                for r in range(0, 8, 2): pk_mul(96+8*i+r, 96+8*i+r, 64+4*i)
                cvt4(224+4*i, 96+8*i, 100+8*i)
                ostore(i, True)
        else:
            fb2 = True
            fl = []
            for i in (3, 2, 1, 0):
                for c0, F in ((2, 192), (4, 224)):
                    ms = [f"v_mul_f32 v{acc(c,i)+j}, v{acc(c,i)+j}, v{STP+2*i}" for c in (c0, c0+1) for j in range(4)]
                    ms += cvt4l(F+4*i, acc(c0,i), acc(c0+1,i))
                    fl += [ms[j:j+2] for j in range(0, 12, 2)]
                    if i == 3: fl.append([f"buffer_store_dwordx4 {v(F+12,4)}, v{vL16}, {SRD}, s{sHst} offen offset:{(c0-2)*512} sc1"])
                if i == 3: fl.append([f"ds_write_b128 v{vKX}, v[204:207] offset:1024"])
                fl.append([xw(224+4*i, VB_LDS//1024 + i)])
            fl.append(["s_waitcnt lgkmcnt(0)", "s_barrier"])
            fl.append([f"ds_read_b128 v[208:211], v{vKX}"])
            vp = [f"ds_read_b64_tr_b16 {v(96+10*db,2)}, v{vVp} offset:{db*512}" for db in range(2)]
            for db in range(2):
                rd = vp[db:db+1] + [f"ds_read_b64_tr_b16 {v(98+10*db+2*i,2)}, v{vVo} offset:{VB_LDS + i*1024 + db*512}" for i in range(4)]
                fl += [rd[:3], rd[3:]]
            late = left + lates; n = 0
            while qm or fl:
                if n < 14 and n % 2: pass
                elif qm: e(qm.pop(0))
                n += 1
                if n % o.brate == 0 and n > 14 and late and len(fl) > 5: E(late.pop(0))
                elif fl: E(fl.pop(0))
            stamp(2)
            A.bgset(late, o.bper, 0)
            for i in (3, 2, 1, 0):
                cvt4(240+4*i, acc(0,i), acc(1,i))
                if i < 3: e(f"{MF} {v(136+8*i,4)}, {v(196+4*i,4)}, {v(244+4*i,4)}, 0"); e(f"{MF} {v(140+8*i,4)}, {v(192+4*i,4)}, {v(244+4*i,4)}, 0")
            e(f"{MF} v[128:131], v[192:195], v[240:243], 0")
            def sel(i):
                b = 128+8*i
                for r in range(0, 8, 2): e(f"v_cndmask_b32 v{b+r}, v{b+r}, v{b+r+1}, {sm(mPAR)}")
                if i == 0: e(f"v_cndmask_b32 v{b+4}, v{b+4}, v217, {sm(mFIRST)}"); e(f"v_cndmask_b32 v{b+6}, v{b+6}, v217, {sm(mFIRST)}")
                e(f"v_cndmask_b32 v{116+2*i}, v{b+4}, v{b}, {sm(mOWN0)}"); e(f"v_cndmask_b32 v{117+2*i}, v{b+6}, v{b+2}, {sm(mOWN1)}")
                e(f"v_max_f32 v{124+i}, v{116+2*i}, v{117+2*i}")
            def soft(blks):
                for i in blks: e(f"v_sub_f32 v{116+2*i}, v{116+2*i}, v{124+i}"); e(f"v_sub_f32 v{117+2*i}, v{117+2*i}, v{124+i}")
                for i in blks: pk_mul(116+2*i, 116+2*i, CI+i)
                for i in blks: e(f"v_exp_f32 v{116+2*i}, v{116+2*i}"); e(f"v_exp_f32 v{117+2*i}, v{117+2*i}")
                for i in blks:
                    for r in (116+2*i, 117+2*i): e(f"v_cvt_pk_bf16_f32 v{r}, v{r}, v{r}")
                e("s_waitcnt lgkmcnt(0)")
                for i in blks:
                    e(f"v_and_b32 v{192+4*i}, v{116+2*i}, v{MP0}"); e(f"v_and_b32 v{193+4*i}, v{117+2*i}, v{MP1}")
                    e(f"v_and_b32 v{194+4*i}, v{116+2*i}, v{MO0}"); e(f"v_and_b32 v{195+4*i}, v{117+2*i}, v{MO1}")
                for i in blks:
                    e(f"{MF} {v(176+4*i,4)}, {v(ONES,4)}, {v(192+4*i,4)}, 0")
                    for db in range(2): e(f"{MF} {v(128+8*i+4*db,4)}, {v(96+10*db+2*i,4)}, {v(192+4*i,4)}, 0")
            def norm(i):
                e(f"v_rcp_f32 v{176+4*i}, v{176+4*i}")
                for r in range(0, 8, 2): pk_mul(128+8*i+r, 128+8*i+r, 176+4*i)
                cvt4(224+4*i, 128+8*i, 132+8*i)
                ostore(i, o.oall)
            hl = [f"buffer_load_dwordx4 v[168:171], v{vL16}, {SRD}, s{sHld} offen sc1", f"buffer_load_dwordx4 v[172:175], v{vL16}, {SRD}, s{sHld} offen offset:1024 sc1"]
            hc = ["v_max_u32 v218, v168, v172", "v_cmp_eq_u32 vcc, -1, v218"]
            for i in (3, 2, 1): sel(i)
            xreduce([("v_max_f32", [124, 125, 126, 127])])
            e(hl[0]); e(hl[1] + " ;@hl")
            soft((3, 2, 1))
            e(f"v_mov_b32 v217, {f32hex(-3.0e38)}")
            norm(3); norm(2)
            keep = A.bg; A.bg = []
            e(f"s_cmp_lg_u32 s{SW}, 0"); e(f"s_cbranch_scc1 L_halod{lay}")
            A.track = False
            e(f"s_waitcnt vmcnt({A.after('hl')})"); E(hc); e(f"s_cbranch_vccz L_halow{lay}")
            spin(hl, hc)
            A.label(f"L_halow{lay}")
            e(xw(172, 0, vHVw)); E(vp)
            for r in range(4): e(f"v_mov_b32 v{208+r}, v{168+r}")
            e("s_nop 1")
            A.track = True
            A.label(f"L_halod{lay}")
            e(f"{MF} v[132:135], v[208:211], v[240:243], 0")
            A.bg = keep; A.bgflush()
            if lay == 1: e(f"s_add_u32 s{sHst}, s{sHst}, 0x80000"); e(f"s_add_u32 s{sHld}, s{sHld}, 0x80000")
            norm(1)
            sel(0)
            e("v_mov_b32 v125, v124"); e("v_permlane32_swap_b32 v124, v125"); e("v_max_f32 v124, v124, v125")
            e("v_mov_b32 v125, v124"); e("v_permlane16_swap_b32 v124, v125"); e("v_max_f32 v124, v124, v125")
            soft((0,))
            norm(0)

        stamp(6)
        for i in range(2):
            for kk in range(2):
                for r in range(4):
                    d = acc2(2*kk + (r >> 1), i) + 2*(r & 1); x = RES+8*i+4*kk+r
                    e(f"v_lshlrev_b32 v{d}, 16, v{x}"); e(f"v_and_b32 v{d+1}, 0xffff0000, v{x}")
        e(f"v_mov_b32 v{vVal}, {lay+1}")
        signal(sFOp)
        stamp(7)
        poll(sFOc, lay+1)
        stamp(8)
        W2F = RING; AF2 = RING + 32; GD = o.g2depth
        assert AF2 + 8*GD <= 240 - 48*o.NRES
        def w2rd(step, b):
            return ldsrd(a(W2F + 16*(step % 2) + 4*b, 4), (step*4096 if step < 14 else 3*SLOT + (step-14)*4096) + b*1024) + f" ;@u{step}_{b}"
        def bload(step, i):
            r = [f"s_mov_b32 s{sAo}, {WS_O + step*1024}"] if i == 0 and step % 4 == 0 else []
            return r + [f"buffer_load_dwordx4 {a(AF2 + 8*(step % GD) + 4*i,4)}, v{vB+i}, {SRD}, s{sAo} offen offset:{(step%4)*1024} sc1 ;@B{step}"]
        bn = [(st, i) for st in range(32) for i in range(2)]
        for j in range(min(o.bpos, 2*GD-2)): E(bload(*bn.pop(0)))
        e("s_barrier")
        for st in range(2):
            for b in range(4): e(w2rd(st, b))
        while bn[0][0] < GD-1: E(bload(*bn.pop(0)))
        if lay == 0 and not fb2: E(fb_set(1))
        w1n = [] if last else list(range(6))
        nres = 0 if last else (1 + (o.NRES if lay >= 1 else 0))
        for step in range(32):
            e(f"WAITV B{step}")
            if step == 18 or (step == 16 + 6*(nres-1) and nres > 1): e("s_barrier")
            if lay == 0 and not last:
                if step == 13: E([t + (" ;@F" if t.startswith("buffer") else "") for t in fb_body(1)])
                if step == 33 - GD: e("WAITV F"); E(fb_cond + retry(fb_body(1), fb_cond))
            a0 = AF2 + 8*(step % GD)
            for b in range(4):
                e(f"WAITL u{step}_{b}")
                for p, i in enumerate(range(2) if b % 2 == 0 else (1, 0)):
                    e(f"{MF} {v(acc2(b,i),4)}, {a(W2F+16*(step%2)+4*b,4)}, {a(a0+4*i,4)}, {v(acc2(b,i),4)}")
                    if p == 0:
                        if bn and b % 2 == 0: E(bload(*bn.pop(0)))
                        elif not bn and w1n and b % o.g2w == 0 and step >= 33 - GD: E(w1_piece(1-par, 1, w1n.pop(0)))
                if step + 2 < 32: e(w2rd(step+2, b))
                if b == 1 and not last:
                    if o.xf and step == o.xt0: e(f"buffer_load_dword v{vJUNK}, v{vTCH}, {SRD}, s{ROTA} offen sc1")
                    if o.cpf and step == o.xt0 + 4:
                        E(codepf(f"L_layer{lay+1}"))
        assert not w1n
        stamp(9)
        for kk in range(2):
            for i in range(2): cvt4(RES+8*i+4*kk, acc2(2*kk,i), acc2(2*kk+1,i))
        if last: break
        xtile(False)
        rw = [f"ds_write_b128 v{vLW if k == 0 else vLW3}, {a(RS(1-par, k)+4*b_,4)} offset:{(SLOT if k == 0 else (k-1)*SLOT) + b_*1024}" for k in range(nres) for b_ in range(6)]
        E(rw[:o.rw])
        signal(sFXp)
        stamp(10)
        poll(sFXc, lay+1, rw[o.rw:])

    e(f"v_bfe_u32 v200, v{vL16}, 4, 4"); e(f"v_and_b32 v201, 0x70, v{vL16}"); e(f"v_xor_b32 v201, v201, v{vG16}")
    e("v_lshl_add_u32 v200, v200, 7, v201"); e(f"v_add_u32 v200, s{sLW}, v200"); e("v_xor_b32 v201, 64, v200")
    for i in range(2):
        for kk in range(2): e(f"ds_write_b128 v{200+kk}, {v(RES+8*i+4*kk,4)} offset:{i*2048}")
        for j in (2*i, 2*i+1): e(f"ds_read_b128 {v(96+4*j,4)}, v{vLW} offset:{j*1024} ;@o{j}")
    srt(P_OUT, 0x400000)
    e(f"v_lshrrev_b32 v200, 7, v{vL16}"); e(f"v_and_b32 v201, 0x70, v{vL16}"); e("v_lshlrev_b32 v202, 4, v200"); e("v_xor_b32 v201, v201, v202")
    e("v_lshl_add_u32 v200, v200, 11, v201")
    e(f"s_lshl_b32 s{T0}, s{SRB}, 2"); e(f"s_add_u32 s{T0}, s{T0}, s{SW}"); e(f"s_lshl_b32 s{T0}, s{T0}, 16"); e(f"s_lshl_b32 s{T1}, s{SCB}, 7"); e(f"s_add_u32 s{T0}, s{T0}, s{T1}")
    for j in range(4):
        e(f"WAITL o{j}")
        e(f"buffer_store_dwordx4 {v(96+4*j,4)}, v200, {SRT}, s{T0} offen" + (" sc1" if o.outsc else ""))
        if j < 3: e(f"s_add_u32 s{T0}, s{T0}, 16384")
    if o.stamps:
        e("s_waitcnt vmcnt(0)")
        stamp(11)
        e(f"s_lshl_b32 s{T0}, s{SIDX}, 2"); e(f"s_add_u32 s{T0}, s{T0}, s{SW}")
        e(f"s_lshl_b32 s{T0}, s{T0}, 8"); e(f"s_add_u32 s{T0}, s{T0}, {WS_STAMPS}")
        e(f"v_lshrrev_b32 v200, 2, v{vL16}")
        e(f"buffer_store_dword v{vSTAMP}, v200, {SRD}, s{T0} offen")
        if o.echo_a >= 0:
            e(f"v_readlane_b32 s{T1}, v{vSTAMP}, {o.echo_a}"); e(f"v_readlane_b32 s{T2}, v{vSTAMP}, {o.echo_b}"); e(f"v_readlane_b32 s{T3}, v{vSTAMP}, 59")
            e(f"s_sub_u32 s{T2}, s{T2}, s{T1}"); e(f"s_min_u32 s{T2}, s{T2}, 20000")
            A.label("L_echo")
            e(f"s_memrealtime s[{sSTAMP}:{sSTAMP+1}]"); e("s_waitcnt lgkmcnt(0)")
            e(f"s_sub_u32 s{T4}, s{sSTAMP}, s{T3}"); e(f"s_cmp_lt_u32 s{T4}, s{T2}"); e("s_cbranch_scc1 L_echo")
    e("s_endpgm")
    A.track = False
    A.label("L_ool")
    for blk in ool: blk()
    A.label("L_exit")
    e("s_endpgm")
    A.raw(f".fill (16384 + 256 - (. - L_ool))/4, 4, 0xbf810000")
    A.raw('.section .rodata,"a"'); A.raw(".p2align 6"); A.raw(f".amdhsa_kernel {KNAME}")
    for t in ("next_free_vgpr 512", "next_free_sgpr 102", "accum_offset 256", "group_segment_fixed_size 0", "kernarg_size 80",
              "user_sgpr_count 2", "user_sgpr_kernarg_segment_ptr 1", "system_sgpr_workgroup_id_x 1"):
        A.raw("  .amdhsa_" + t)
    A.raw(".end_amdhsa_kernel")
    return A.text()

if __name__ == "__main__":
    o = Opts()
    out = sys.argv[1]
    for kv in sys.argv[2:]:
        k, val = kv.split("=")
        assert hasattr(o, k), k
        setattr(o, k, int(val))
    open(out, "w").write(gen(o))
```

```python
import sys, struct
from asmlib import *

KNAME = "interleave_layers__linear_kernel_hedgehog__sliding_local_dilated__prompt_kernel"

WS_FLAGA = 0x0000000
WS_FLAGB = 0x0008000
WS_FLAGO = 0x0009000
WS_FLAGX = 0x000A000
WS_CS    = 0x0010000
CS_SZ    = 393216
WS_ST    = 0x0100000
WS_ZP    = 0x0140000
WS_STAMPS= 0x0180000
WS_HALO  = 0x0200000
WS_KVP   = 0x0400000
WS_W1    = (0x0800000, 0x0E00000)
WS_W2    = (0x1400000, 0x1600000)
WS_X     = 0x1800000
WS_X0    = WS_X
WS_O     = 0x1C00000
WS_SIZE  = 0x2000000
OOR      = 0x40000000

SLOT = 24576
M      = 147456
M_CS   = M + 64
M_ST   = M + 1024
M_KX   = M + 4096
M_VX   = M + 11264
M_ZF   = M + 10240
LDS_SIZE = 163840
VB_LDS = 57344
RAW1A, RAW1B, RAW2 = 3*SLOT, 4*SLOT, 5*SLOT

SRD = "s[4:7]"; SRT = "s[8:11]"
SW, SGRP, SMEM, SMODE, SCB, SRB = 12, 13, 14, 15, 17, 18
T0, T1, T2, T3, T4, T5, T6, T7 = 19, 20, 21, 22, 23, 24, 25, 26
SIDX, SXCC = 27, 29
sFOc, sFOp, sFXc, sFXp = 30, 31, 32, 33
sO, sXs = 34, 35
mPAR, mB1, mDIAG, mM0, mOWN0, mOWN1, sPC, mFIRST = 36, 38, 40, 42, 44, 46, 48, 50
sCSa, sCSb, sZo, sFBp, sSTs, sLW, sKV, sZP, sHALO, sTMO, sAo, sWo = 52, 53, 54, 55, 56, 57, 58, 59, 60, 61, 62, 63
P_AX, P_AW1, P_PHI, P_AW2, P_BX, P_BW1, P_BW2, P_OUT, P_DBG, P_WS = 64, 66, 68, 70, 72, 74, 76, 78, 80, 82
sCL0, sCL2, sL8, sW2l, sW2s, sHst, sHld = 72, 73, 2, 0, 3, 16, 28
D1, D2, D4 = 64, 65, 66
mX, mEO, mEX = 68, 70, 76
sSTAMP = 84
ROTA, ROTW = 86, 94

vLW = 0; vL16, vL64, vL128 = 1, 2, 3
vA = 4; vB = 8; vW1 = 10; vW2 = 11; vFP = 12; vSTl = 13; vSTs = 14; vSTAMP = 15
RES = 16; PHI = 32; ONES = 40; MP0, MP1, MO0, MO1 = 44, 45, 46, 47
vE1, vVr, vLW3, vCPF, vKX0, vKX1, vCSa, vCSb = range(32, 40)
vXW, vE0, vTCH, vSQ, vJUNK, vCV, vFree, vKX, vGM, vZW, vSW, vSR, vG16, vOut, vZL, vVal = range(48, 64)
ACC = 64
def acc(c, i): return ACC + 16*c + 4*i
def acc2(b, i): return ACC + 8*b + 4*i
STP = 160; CSR = 168; WFV = 192; FBV = 216; CI = 220
RING, HW2, HCS = 48, 240, 248
def RS(par, k): return 24*par if k == 0 else 240 - 48*k + 24*par
MF = "v_mfma_f32_16x16x32_bf16"
def f32hex(x): return "0x%08x" % struct.unpack("<I", struct.pack("<f", x))[0]
CK = (f32hex(1.4426950408889634), f32hex(1.4426950408889634 * 32 ** -0.5))
LIM = 0x100000

class Opts:
    verbose = 0; stamps = 0; last = 3; force_slow = 0; echo_a = -1; echo_b = -1; g1prof = 0
    NRES = 2
    ND = 4
    LA = 3
    APRE = 3
    wrE = 150; wrL = 100; w1sE = 1; w1sL = 2; wr0 = 150; w1s0 = 1; n1pre = 6
    w2E = 300; w2L = 200; w2sE = 25; w2sL = 20
    sper = 1; s0 = 0
    g2depth = 7; g2w = 2; bpos = 12; TG = 3
    w2BE = 400; w2sBE = 24; w2BL = 400; w2sBL = 20; wrBL = 110
    bper = 60; TB = 5; LAB = 3; hpos = 5
    aper = 150; aper0 = 110; aper2 = 130; aper3 = 200; gpos = 4; dk = 6
    rw = 12
    xf = 1; xt0 = 8
    rt = 1; rtb = 1; bbar = 1; apoll = 1; ksl = 0; kgate = 0; psl = 0; dtouch = 0
    outsc = 1; oall = 0; nopf = 0; xall = 0; rin = 0; lazy = 3; p2pos = 5; lv1 = 0; lv2 = 0; early = 3; epos = 0
    CPL = 22; cpf = 1; cpf2 = 24; cpf3 = 26

def gen(o):
    A = Asm2(); e = A.e
    ool = []
    ND = o.ND; AD = ND; WQ = RING + 16*AD
    assert WQ + 8*ND <= 240 - 48*o.NRES and o.LA < AD
    lay = 0
    o.CPL = min(o.CPL, 5*o.last + 7)
    def E(lst):
        for t in lst: e(t)
    def stamp(name, force=0):
        if not o.stamps: return
        if o.g1prof and name in range(2, 11) and not force: return
        idx = name + 16*lay
        if o.stamps == 2 and name != 11 and idx not in (o.echo_a, o.echo_b): return
        e(f"{'s_memtime' if o.stamps == 3 else 's_memrealtime'} s[{sSTAMP}:{sSTAMP+1}]")
        e("s_waitcnt lgkmcnt(0)")
        e(f"v_writelane_b32 v{vSTAMP}, s{sSTAMP}, {59 if name == 11 else idx}")
    def srt(p, size):
        e(f"s_mov_b32 s8, s{p}"); e(f"s_mov_b32 s9, s{p+1}"); e(f"s_mov_b32 s10, {size}"); e("s_mov_b32 s11, 0x20000")
    def mask64(r, val):
        e(f"s_mov_b32 s{r}, 0x{val & 0xffffffff:08x}"); e(f"s_mov_b32 s{r+1}, 0x{val >> 32:08x}")
    def sm(r): return f"s[{r}:{r+1}]"
    def bc(r): return (v(r & ~1, 2), r & 1)
    def pk_fma(d, x, y, z, negx=False):
        yp, ys = bc(y); zp, zs = bc(z)
        e(f"v_pk_fma_f32 {v(d,2)}, {v(x,2)}, {yp}, {zp} op_sel:[0,{ys},{zs}] op_sel_hi:[1,{ys},{zs}]" + (" neg_lo:[1,0,0] neg_hi:[1,0,0]" if negx else ""))
    def pk_mul(d, x, y):
        yp, ys = bc(y)
        e(f"v_pk_mul_f32 {v(d,2)}, {v(x,2)}, {yp} op_sel:[0,{ys}] op_sel_hi:[1,{ys}]")
    def cvt4l(d, x0, x1):
        return [f"v_cvt_pk_bf16_f32 v{d}, v{x0}, v{x0+1}", f"v_cvt_pk_bf16_f32 v{d+1}, v{x0+2}, v{x0+3}",
                f"v_cvt_pk_bf16_f32 v{d+2}, v{x1}, v{x1+1}", f"v_cvt_pk_bf16_f32 v{d+3}, v{x1+2}, v{x1+3}"]
    def cvt4(d, x0, x1): E(cvt4l(d, x0, x1))
    def wt(t): return t + (" sc1" if t.startswith("buffer_store") else "")
    def st_mode(lines):
        ls, ld = A.new("slow"), A.new("done")
        e(f"s_cmp_lg_u32 s{SMODE}, 0"); e(f"s_cbranch_scc1 {ls}")
        E(lines); A.label(ld)
        def blk():
            A.label(ls); A.fence(); E([wt(t) for t in lines]); e("s_nop 7"); e(f"s_branch {ld}")
        ool.append(blk)
    def spin(body, cond, first=None):
        l, d = A.new("spin"), A.new("spind")
        e(f"s_mov_b32 s{sTMO}, {LIM}")
        if first:
            E(body); E(first); e("s_waitcnt vmcnt(0)"); E(cond); e(f"s_cbranch_vccz {d}")
        A.label(l); E(body); e(f"s_sub_u32 s{sTMO}, s{sTMO}, 1"); e("s_waitcnt vmcnt(0)"); E(cond)
        e(f"s_cbranch_scc1 {d}"); e(f"s_cbranch_vccnz {l}"); A.label(d)
    def retry(body, cond):
        l, d = A.new("rt"), A.new("rtd")
        def blk():
            A.label(l); spin(body, cond); e(f"s_branch {d}")
        ool.append(blk)
        return [f"s_cbranch_vccnz {l}", d + ":"]
    def signal(sreg):
        e("s_mov_b64 exec, 1"); e("s_waitcnt vmcnt(0)")
        st_mode([f"buffer_store_dword v{vVal}, off, {SRD}, s{sreg}"])
        e("s_mov_b64 exec, -1")
    def poll(sreg, val, first=None, mask=None):
        cond = [f"v_cmp_gt_u32 vcc, {val}, v{FBV}"]
        if mask: cond = [f"s_mov_b64 exec, {mask}"] + cond + ["s_mov_b64 exec, -1"]
        spin([f"buffer_load_dword v{FBV}, v{vFP}, {SRD}, s{sreg} offen sc1"], cond, first)
    def handoff(sp, sc, val, mask, emask, pre, first):
        ld = f"buffer_load_dword v{FBV}, v{vFP}, {SRD}, s{sc} offen sc1"
        d = A.new("hd")
        E(pre[:o.epos]); e(ld + " ;@PE"); E(pre[o.epos:])
        e("s_mov_b64 exec, 1"); e("s_waitcnt vmcnt(1)")
        st_mode([f"buffer_store_dword v{vVal}, off, {SRD}, s{sp}"])
        e("s_mov_b64 exec, -1")
        E(first)
        e("WAITV PE"); e(f"s_mov_b64 exec, {sm(emask)}"); e(f"v_cmp_gt_u32 vcc, {val}, v{FBV}"); e("s_mov_b64 exec, -1"); e(f"s_cbranch_vccz {d}")
        A.track = False; poll(sc, val, None, mask); A.track = True
        A.label(d)
    def poll2(sreg): e(f"buffer_load_dword v{FBV}, v{vFP}, {SRD}, s{sreg} offen sc1 ;@P2")
    def poll2chk(sreg, val, mask=None):
        l = A.new("p2")
        e("WAITV P2")
        if mask: e(f"s_mov_b64 exec, {mask}")
        e(f"v_cmp_gt_u32 vcc, {val}, v{FBV}")
        if mask: e("s_mov_b64 exec, -1")
        e(f"s_cbranch_vccnz {l}"); A.label(l + "_r")
        def blk(): A.label(l); poll(sreg, val, None, mask); e(f"s_branch {l}_r")
        ool.append(blk)
    def xreduce(groups):
        for op, q in groups: e(f"v_permlane32_swap_b32 v{q[0]}, v{q[1]}"); e(f"v_permlane32_swap_b32 v{q[2]}, v{q[3]}")
        for op, q in groups: e(f"{op} v{q[0]}, v{q[0]}, v{q[1]}"); e(f"{op} v{q[2]}, v{q[2]}, v{q[3]}")
        for op, q in groups: e(f"v_permlane16_swap_b32 v{q[0]}, v{q[2]}")
        for op, q in groups: e(f"{op} v{q[1]}, v{q[0]}, v{q[2]}"); e(f"{op} v{q[2]}, v{q[0]}, v{q[2]}")
        for op, q in groups: e(f"v_permlane16_swap_b32 v{q[1]}, v{q[2]}")
        for op, q in groups: e(f"v_mov_b32 v{q[0]}, v{q[1]}"); e(f"v_mov_b32 v{q[3]}, v{q[2]}")
        for op, q in groups: e(f"v_permlane32_swap_b32 v{q[0]}, v{q[1]}"); e(f"v_permlane32_swap_b32 v{q[2]}, v{q[3]}")
    def xparts(i):
        t = 160+8*i; g0 = t+4; st = []
        for kk in range(2):
            f = v(RES+8*i+4*kk, 4)
            st += [[f"{MF} {v(g0,4)}, {f}, {f}, {'0' if kk == 0 else v(g0,4)}"],
                   [f"buffer_store_dwordx4 {f}, v{vB+i}, {SRD}, s{sXs} offen offset:{kk*1024}"],
                   [f"{MF} {v(t,4)}, {v(ONES,4)}, {f}, {'0' if kk == 0 else v(t,4)}"]]
        return st, [[f"v_cndmask_b32 v{g0}, v{g0}, v{g0+1}, {sm(mPAR)}", f"v_cndmask_b32 v{g0+2}, v{g0+2}, v{g0+3}, {sm(mPAR)}"],
                    [f"v_cndmask_b32 v{t+1}, v{g0}, v{g0+2}, {sm(mB1)}"],
                    [f"s_mov_b64 exec, {sm(mDIAG)}", f"buffer_store_dwordx2 {v(t,2)}, v{vSTs}, {SRD}, s{sSTs} offen offset:{i*128}", "s_mov_b64 exec, -1"]]
    def xtile(through, blocks=(0, 1)):
        ps = [xparts(i) for i in blocks]
        st = sum((sum(p[0], []) for p in ps), []) + sum((sum(p[1], []) for p in ps), [])
        if through: E([wt(t) for t in st])
        else: st_mode(st)
    def w1_piece(par, stage, i):
        r = []; slot = (stage + 1) % 6
        if i % 4 == 0: r += [f"s_add_u32 m0, s{sLW}, {slot*SLOT + i*1024}", f"s_add_u32 s{sWo}, s{ROTW+stage}, {WS_W1[par] + i*1024}"]
        return r + [f"buffer_load_dwordx4 v{vW1}, {SRD}, s{sWo} offen offset:{(i%4)*1024} lds ;@W{stage}"]
    def w2_piece(par, part, i):
        r = []
        if i % 4 == 0:
            if part < 5:
                lb, sb = ((3+part)*SLOT, 57344 + part*SLOT) if part < 3 else ((part-3)*SLOT, (part-3)*SLOT)
                r += [f"s_add_u32 m0, s{sLW}, {lb + i*1024}", f"s_mov_b32 s{sWo}, {WS_W2[par] + sb + i*1024}"]
            else: r += [f"s_add_u32 m0, s{sL8}, {2*SLOT}", f"s_sub_u32 s{sWo}, {WS_W2[par] + 2*SLOT}, s{sW2l}"]
        return r + [f"buffer_load_dwordx4 v{vW2}, {SRD}, s{sWo} offen offset:{(i%4)*1024} lds"]
    def ldsrd(dst, addr):
        base = {0: vL16, 1: vL64, 2: vL128}[addr >> 16]
        return f"ds_read_b128 {dst}, v{base} offset:{addr & 0xffff}"
    def w1st(R, blk, sa, sb): return f"buffer_store_dwordx4 {R}, v{vW1}, {SRD}, s{sa if blk < 4 else sb} offen offset:{(blk%4)*1024} sc1"
    def csst(C, sreg): return ["s_mov_b32 exec_lo, 0x003f003f", "s_mov_b32 exec_hi, 0x003f003f", f"buffer_store_dwordx4 {C}, v{vOut}, {SRD}, s{sreg} offen sc1", "s_mov_b64 exec, -1"]
    def fb_body(k): return [f"s_mov_b32 s{T1}, {WS_FLAGB + 1024*k}", f"buffer_load_dwordx4 {v(FBV,4)}, v{vL16}, {SRD}, s{T1} offen sc1"]
    fb_cond = [f"v_and_b32 v{FBV}, v{FBV}, v{FBV+1}", f"v_and_b32 v{FBV+2}, v{FBV+2}, v{FBV+3}", f"v_and_b32 v{FBV}, v{FBV}, v{FBV+2}", f"v_cmp_ne_u32 vcc, 1, v{FBV}"]
    def fb_set(k): return ["s_mov_b64 exec, 1", f"buffer_store_dword v{vVal}, off, {SRD}, s{sFBp} offset:{1024*k} sc1", "s_mov_b64 exec, -1"]
    def xw(r, kb, ad=vXW): return f"ds_write2st64_b64 v{ad}, {v(r,2)}, {v(r+2,2)} offset0:{2*kb} offset1:{2*kb+1}"

    A.raw(f"; @launch grid=(256,1,1) block=(256,1,1) lds={LDS_SIZE}")
    A.raw('.amdgcn_target "amdgcn-amd-amdhsa--gfx950"'); A.raw(".text")
    A.raw(f".globl {KNAME}"); A.raw(".p2align 8"); A.raw(f".type {KNAME},@function"); A.label(KNAME)
    if o.stamps: e("s_memrealtime s[86:87]")
    e("s_cmp_ge_u32 s2, 256"); e("s_cbranch_scc1 L_exit")
    e(f"s_getpc_b64 {sm(sPC)}"); A.label("L_pc")
    e(f"s_lshr_b32 s{T0}, s2, 3"); e(f"s_mulk_i32 s{T0}, {o.CPL*128}"); e(f"v_min_u32 v252, {o.CPL-1}, v0"); e(f"v_lshl_add_u32 v252, v252, 7, s{T0}")
    e(f"global_load_dword v{vJUNK}, v252, {sm(sPC)}")
    e("s_load_dwordx16 s[64:79], s[0:1], 0"); e("s_load_dwordx4 s[80:83], s[0:1], 64")
    e("v_lshrrev_b32 v1, 6, v0"); e("v_and_b32 v254, 63, v0"); e(f"v_readfirstlane_b32 s{SW}, v1")
    if o.force_slow: e(f"s_lshr_b32 s{SGRP}, s2, 5"); e(f"s_and_b32 s{SMEM}, s2, 31")
    else: e(f"s_and_b32 s{SGRP}, s2, 7"); e(f"s_lshr_b32 s{SMEM}, s2, 3")
    if o.stamps: e(f"v_mov_b32 v{vSTAMP}, 0"); e("s_waitcnt lgkmcnt(0)"); e(f"v_writelane_b32 v{vSTAMP}, s86, 12"); e(f"v_writelane_b32 v{vSTAMP}, s{sPC}, 63")
    VM = 215
    e(f"s_lshl_b32 s{SIDX}, s{SGRP}, 5"); e(f"s_add_u32 s{SIDX}, s{SIDX}, s{SMEM}")
    e(f"s_lshr_b32 s{SRB}, s{SIDX}, 4"); e(f"s_and_b32 s{SCB}, s{SIDX}, 15")
    e(f"s_mul_i32 s{sLW}, s{SW}, 6144")
    e("v_lshrrev_b32 v203, 3, v254"); e("v_and_b32 v204, 7, v254"); e("v_lshlrev_b32 v204, 4, v204"); e("v_lshl_add_u32 v210, v203, 11, v204")
    e("v_lshrrev_b32 v200, 2, v254"); e("v_and_b32 v201, 3, v254")
    e("v_mul_u32_u24 v202, 6144, v200"); e("v_lshl_add_u32 v202, v201, 4, v202")
    e(f"s_lshl_b32 s{T2}, s{SRB}, 2"); e(f"s_add_u32 s{T2}, s{T2}, s{SW}"); e(f"s_lshl_b32 s{T2}, s{T2}, 16")
    e(f"s_lshl_b32 s{T4}, s{SCB}, 7"); e(f"s_add_u32 s{T3}, s{T2}, s{T4}")
    e(f"s_lshl_b32 s{T6}, s{SGRP}, 2"); e(f"s_add_u32 s{T6}, s{T6}, s{SW}")
    e(f"s_mul_i32 s{T5}, s{T6}, {32*6144}"); e(f"s_lshl_b32 s{T4}, s{SMEM}, 6"); e(f"s_add_u32 s{T5}, s{T5}, s{T4}")
    e(f"v_lshlrev_b32 v{vL16}, 4, v254"); e(f"v_and_b32 v{vG16}, 48, v254"); e(f"v_and_b32 v{VM}, 15, v254")
    e(f"s_lshl_b32 s{T1}, s{SCB}, 11"); e(f"s_add_u32 s{sXs}, s{T1}, {WS_X}")
    e(f"s_mul_i32 s{sAo}, s{SMEM}, 196608"); e(f"s_add_u32 s{sAo}, s{sAo}, s{sLW}"); e(f"s_mul_i32 s{ROTW}, s{SGRP}, {SLOT}")
    e("v_lshlrev_b32 v249, 7, v254")
    e(f"s_lshl_b32 s{T0}, s{SIDX}, 2"); e(f"s_add_u32 s{T0}, s{T0}, s{SW}"); e(f"s_mul_i32 s{sWo}, s{T0}, 6144")
    e("s_waitcnt lgkmcnt(0)")
    e(f"s_mov_b32 s4, s{P_WS}"); e(f"s_mov_b32 s5, s{P_WS+1}"); e(f"s_mov_b32 s6, {WS_SIZE}"); e("s_mov_b32 s7, 0x20000")
    e(f"s_or_b32 s{T0}, s{SMEM}, s{SW}"); e(f"s_cmp_lg_u32 s{T0}, 0"); e("s_cbranch_scc1 L_p0a")
    A.track = False
    for r in range(4): e(f"v_mov_b32 v{204+r}, 0")
    e(f"s_lshl_b32 s{T0}, s{SGRP}, 12")
    for j in range(4): e(f"buffer_store_dwordx4 v[204:207], v{vL16}, {SRD}, s{T0} offen offset:{j*1024} sc1")
    e(f"s_lshl_b32 s{T0}, s{SGRP}, 7"); e(f"s_add_u32 s{T0}, s{T0}, {WS_FLAGB}")
    e("s_mov_b64 exec, 0xff")
    for j in range(2): e(f"buffer_store_dwordx4 v[204:207], v{vL16}, {SRD}, s{T0} offen offset:{j*1024} sc1")
    e("s_mov_b64 exec, -1")
    A.track = True
    A.label("L_p0a")
    n0 = len(A.vq)
    def rowtouch(p):
        srt(p, 0x600000)
        e("s_mov_b32 exec_hi, 0xffff"); e(f"buffer_load_dword v{vJUNK}, v249, {SRT}, s{sWo} offen"); e("s_mov_b64 exec, -1")
    if o.rt == 1: rowtouch(P_AW1)
    srt(P_AX, 0x400000)
    for i in range(4):
        e(f"s_add_u32 m0, s{sLW}, {i*1024}"); e(f"s_add_u32 s{T0}, s{T3}, {i*16384}")
        e(f"buffer_load_dwordx4 v210, {SRT}, s{T0} offen lds ;@x")
    if o.rt == 2: rowtouch(P_AW1)
    def touch(p, *calc):
        E(list(calc)); e(f"s_load_dword s{sTMO}, s[{p}:{p+1}], s{T0}")
    if o.dtouch: touch(P_DBG, f"s_movk_i32 s{T0}, 128")
    touch(P_WS, f"s_add_u32 s{T0}, s{T2}, s{sXs}")
    touch(P_WS, f"s_add_u32 s{T0}, s{sAo}, s{ROTW}", f"s_add_u32 s{T0}, s{T0}, {WS_W1[0]}")
    touch(P_WS, f"s_mov_b32 s{T0}, 0x1f0000")
    touch(P_BW1, f"s_mov_b32 s{T0}, s{T5}"); touch(P_AW2, f"s_lshl_b32 s{T0}, s{SRB}, 17"); touch(P_BW2)
    srt(P_PHI, 0x10000)
    e(f"s_add_u32 m0, s{sLW}, 4096"); e(f"s_lshl_b32 s{T0}, s{SMEM}, 11")
    for j in range(2): e(f"buffer_load_dwordx4 v{vL16}, {SRT}, s{T0} offen offset:{j*1024} lds ;@phi")
    def raw1(p, ldsb, tag):
        srt(p, 0x600000)
        for seg in range(3):
            for hf in range(2):
                e(f"s_add_u32 m0, s{sLW}, {ldsb + seg*2048 + hf*1024}"); e(f"s_add_u32 s{T0}, s{T5}, {seg*2048 + hf*16*6144}")
                e(f"buffer_load_dwordx4 v202, {SRT}, s{T0} offen lds ;@{tag}")
    raw1(P_AW1, RAW1A, "ra")
    e(f"s_or_b32 s{T0}, s{SMEM}, s{SW}"); e(f"s_cmp_lg_u32 s{T0}, 0"); e("s_cbranch_scc1 L_p0b")
    A.track = False
    srt(P_DBG, 256); e("v_mov_b32 v204, 1"); e(f"s_lshl_b32 s{T0}, s{SGRP}, {4 if o.dtouch else 5}")
    e(f"s_waitcnt vmcnt({len(A.vq) - n0})")
    e("s_mov_b64 exec, 1"); e(f"buffer_store_dword v204, off, {SRT}, s{T0} sc1"); e("s_mov_b64 exec, -1")
    A.track = True
    A.label("L_p0b")
    e(f"v_lshl_add_u32 v214, v{VM}, 7, v{vG16}"); e(f"v_add_u32 v214, s{sLW}, v214")
    e(f"v_add_u32 v{vB}, s{T2}, v{vL16}"); e(f"v_add_u32 v{vB+1}, 0x8000, v{vB}")
    e(f"s_lshr_b32 s{T2}, s{T2}, 8"); e(f"v_lshl_add_u32 v{vSTs}, v{VM}, 3, s{T2}")
    e(f"s_lshl_b32 s{T0}, s{SCB}, 14"); e(f"s_add_u32 s{sSTs}, s{T0}, {WS_ST}")
    mask64(mPAR, 0xAAAAAAAAAAAAAAAA); mask64(mB1, 0xCCCCCCCCCCCCCCCC); mask64(mDIAG, 0xF0000F0000F0000F)
    for r in range(4): e(f"v_mov_b32 v{ONES+r}, 0x3f803f80")
    stamp(28)
    e("WAITV x")
    for i in range(2):
        for kk in range(2): e(f"ds_read_b128 {v(RES+8*i+4*kk,4)}, v214 offset:{i*2048 + kk*64}")
    e(f"v_add_u32 v{vW1}, s{sAo}, v{vL16}"); e(f"v_add_u32 v{vLW}, s{sLW}, v{vL16}")
    e("v_and_b32 v209, 3, v200"); e(f"v_lshrrev_b32 v203, 1, v{vG16}"); e("v_add_u32 v209, v209, v203")
    e("v_lshlrev_b32 v203, 6, v209"); e("v_lshl_add_u32 v205, v201, 3, v203"); e(f"v_add_u32 v205, s{sLW}, v205")
    e("v_lshl_add_u32 v206, v201, 4, v203"); e(f"s_add_u32 s{T1}, s{sLW}, {RAW1A}"); e(f"v_add_u32 v206, s{T1}, v206")
    e(f"v_lshrrev_b32 v203, 2, v{VM}"); e("v_lshl_add_u32 v203, v203, 3, v201"); e(f"v_lshl_add_u32 v203, v203, 6, v{vG16}"); e(f"v_add_u32 v208, s{T1}, v203")
    e(f"v_lshl_add_u32 v{vOut}, v{VM}, 11, v{vG16}")
    e("s_waitcnt lgkmcnt(0)")
    stamp(29)
    if o.rtb == 1: rowtouch(P_BW1)
    xtile(True)
    if o.rtb == 2: rowtouch(P_BW1)
    for blk in range(6):
        mask64(T1, 0x0001000100010001 << blk)
        for r in range(4): e(f"v_cndmask_b32 v{96+4*blk+r}, 0, v{ONES}, {sm(T1)}")
    e(f"s_add_u32 s{T2}, s{ROTW}, {WS_W1[0]}"); e(f"s_add_u32 s{T4}, s{T2}, 4096")
    e(f"s_lshl_b32 s{T0}, s{T6}, 6"); e(f"s_mul_i32 s{T1}, s{SMEM}, 12288"); e(f"s_add_u32 s{T0}, s{T0}, s{T1}"); e(f"s_add_u32 s{sCL0}, s{T0}, {WS_CS}")
    e("WAITV phi")
    for fb in range(2):
        for t in range(2): e(f"ds_read_b64_tr_b16 {v(PHI+4*fb+2*t,2)}, v205 offset:{4096 + fb*32 + t*256}")
    e("WAITV ra")
    stamp(13)
    RA, RB = RS(0, 0), RS(1, 0)
    for seg in range(2):
        for kb in range(2): e(f"ds_read_b128 {v(120+8*seg+4*kb,4)}, v208 offset:{seg*2048 + kb*256} ;@s{seg}")
    for blk in (4, 5):
        for t in range(2): e(f"ds_read_b64_tr_b16 {a(RA+4*blk+2*t,2)}, v206 offset:{4096 + t*256 + (blk&1)*8}")
    for seg in range(2):
        e(f"WAITL s{seg}")
        for fb in range(2):
            for kb in range(2): e(f"{MF} {v(160+16*seg+8*fb+4*kb,4)}, {v(120+8*seg+4*kb,4)}, {v(PHI+4*fb,4)}, 0")
    e("s_waitcnt lgkmcnt(0)")
    for blk in (4, 5):
        e(w1st(a(RA+4*blk,4), blk, T2, T4))
        e(f"{MF} v[64:67], {a(RA+4*blk,4)}, {v(96+4*blk,4)}, {'0' if blk == 4 else 'v[64:67]'}")
    for blk in range(4):
        cvt4(136+4*blk, 160+8*blk, 164+8*blk)
        e(w1st(v(136+4*blk,4), blk, T2, T4))
        e(f"{MF} v[64:67], {v(136+4*blk,4)}, {v(96+4*blk,4)}, v[64:67]")
    for r in range(16): e(f"v_accvgpr_write_b32 a{RA+r}, v{136+r}")
    E(csst(v(64,4), sCL0))
    srt(P_DBG, 256)
    e("v_and_b32 v253, 7, v254"); e(f"v_lshlrev_b32 v253, {4 if o.dtouch else 5}, v253"); e(f"s_cmp_eq_u32 s{SW}, 0"); e(f"s_cselect_b32 s{T0}, 0, {OOR}")
    e(f"buffer_load_dword v212, v253, {SRT}, s{T0} offen sc1 ;@go")
    if o.bbar: e("s_barrier")
    if o.rtb == 3: rowtouch(P_BW1)
    e(f"s_lshl_b32 s{T0}, s{SRB}, 1"); e(f"s_and_b32 s{T3}, s{SW}, 1"); e(f"s_add_u32 s{T0}, s{T0}, s{T3}")
    e(f"s_lshl_b32 s{T1}, s{SCB}, 1"); e(f"s_lshr_b32 s{T4}, s{SW}, 1"); e(f"s_add_u32 s{T1}, s{T1}, s{T4}"); e(f"s_lshl_b32 s{T1}, s{T1}, 6")
    e(f"s_lshl_b32 s{sW2s}, s{T0}, 12"); e(f"s_lshl_b32 s{T0}, s{T0}, 16"); e(f"s_add_u32 s{T0}, s{T0}, s{T1}"); e(f"s_add_u32 s{T1}, s{T0}, 0x8000")
    e("v_lshlrev_b32 v203, 11, v200"); e("v_lshl_add_u32 v207, v201, 4, v203")
    for wt_, p in enumerate((P_AW2, P_BW2)):
        srt(p, 0x200000)
        for i in range(2):
            e(f"s_add_u32 m0, s{sLW}, {RAW2 + wt_*2048 + i*1024}")
            e(f"buffer_load_dwordx4 v207, {SRT}, s{T0 + i} offen lds")
    for blk in range(6): e(f"ds_write_b128 v{vLW}, {a(RA+4*blk,4)} offset:{SLOT + blk*1024}")
    stamp(30)
    e(f"s_getreg_b32 s{SXCC}, hwreg(HW_REG_XCC_ID, 0, 4)"); e(f"s_or_b32 s{SXCC}, s{SXCC}, 0x100")
    e(f"v_mov_b32 v{vVal}, s{SXCC}")
    e(f"s_lshl_b32 s{T0}, s{T4}, 11"); e(f"s_add_u32 s{sW2s}, s{sW2s}, s{T0}"); e(f"s_lshl_b32 s{T0}, s{SCB}, 17")
    e(f"s_add_u32 s{sW2s}, s{sW2s}, s{T0}"); e(f"s_add_u32 s{sW2s}, s{sW2s}, {WS_W2[0]}")
    e(f"s_lshl_b32 s{T1}, s{SMEM}, 15"); e(f"s_lshl_b32 s{T2}, s{SW}, 10"); e(f"s_add_u32 s{T1}, s{T1}, s{T2}"); e(f"s_add_u32 s{sKV}, s{T1}, {WS_KVP - WS_X + (1<<32)}")
    e(f"s_lshr_b32 s{T1}, s{T1}, 4"); e(f"s_add_u32 s{sZP}, s{T1}, {WS_ZP}")
    for s_ in range(8):
        e(f"s_add_u32 s{T1}, s{SGRP}, {s_}"); e(f"s_and_b32 s{T1}, s{T1}, 7")
        e(f"s_mul_i32 s{ROTW+s_}, s{T1}, {SLOT}"); e(f"s_lshl_b32 s{T1}, s{T1}, 12"); e(f"s_add_u32 s{ROTA+s_}, s{T1}, {WS_X}")
    e(f"s_lshl_b32 s{T1}, s{SIDX}, 11"); e(f"s_add_u32 s{sHALO}, s{T1}, {WS_HALO}")
    e(f"s_lshl_b32 s{T1}, s{SMEM}, 10"); e(f"s_add_u32 s{sO}, s{T1}, {WS_O}")
    touch(P_WS, f"s_mov_b32 s{T0}, s{sW2s}")
    touch(P_WS, f"s_add_u32 s{T0}, s{sKV}, s{ROTA}")
    touch(P_WS, f"s_add_u32 s{T0}, s{sW2s}, {WS_W2[1] - WS_W2[0]}")
    touch(P_WS, f"s_add_u32 s{T0}, s{sAo}, s{ROTW}", f"s_add_u32 s{T0}, s{T0}, {WS_W1[1]}")
    touch(P_WS, f"s_mov_b32 s{T0}, s{sHALO}")
    touch(P_WS, f"s_lshl_b32 s{T0}, s{T6}, 17", f"s_add_u32 s{T0}, s{T0}, s{sO}")
    touch(P_OUT, f"s_lshl_b32 s{T0}, s{SRB}, 18", f"s_lshl_b32 s{T1}, s{SCB}, 7", f"s_add_u32 s{T0}, s{T0}, s{T1}")
    e(f"s_lshl_b32 s{T0}, s{SGRP}, 5"); e(f"v_add_u32 v203, s{T0}, v254")
    e("v_and_b32 v204, 7, v254"); e(f"v_lshl_add_u32 v204, v204, 5, s{SMEM}")
    mask64(T1, 0x00000000FFFFFFFF); e(f"v_cndmask_b32 v211, v204, v203, {sm(T1)}"); e("v_lshlrev_b32 v211, 7, v211")
    e(f"s_cmp_eq_u32 s{SW}, 0"); e(f"s_cselect_b32 s{T0}, 1, 0")
    e("WAITV go")
    stamp(31)
    e(f"v_cmp_ne_u32 vcc, s{T0}, v212"); e("s_cbranch_vccnz L_goslow")
    A.label("L_gook")
    def goslow():
        A.label("L_goslow"); srt(P_DBG, 256); e("s_waitcnt lgkmcnt(0)")
        spin([f"buffer_load_dword v212, v253, {SRT}, 0 offen sc1"], ["v_cmp_ne_u32 vcc, 1, v212"]); e("s_branch L_gook")
    ool.append(goslow)
    e(f"s_lshl_b32 s{T0}, s{SIDX}, 7"); e(f"s_cmp_eq_u32 s{SW}, 0"); e(f"s_cselect_b32 s{T0}, s{T0}, {OOR}")
    e("s_barrier")
    e("s_mov_b64 exec, 1"); e(f"buffer_{'atomic_or' if o.apoll else 'store_dword'} v{vVal}, off, {SRD}, s{T0} sc1"); e("s_mov_b64 exec, -1")
    stamp(14)
    raw1(P_BW1, RAW1B, "rb")
    mask64(mM0, 0x0001000100010001)
    mask64(mOWN0, sum(1 << l for l in range(64) if 4*(l >> 4) + (l & 1) <= (l & 15)))
    mask64(mOWN1, sum(1 << l for l in range(64) if 4*(l >> 4) + 2 + (l & 1) <= (l & 15)))
    e(f"s_lshl_b32 s{T1}, s{T6}, 7"); e(f"s_add_u32 s{sFXc}, s{T1}, {WS_FLAGX}")
    e(f"s_lshl_b32 s{T2}, s{SMEM}, 2"); e(f"s_add_u32 s{T1}, s{T1}, s{T2}"); e(f"s_add_u32 s{sFOp}, s{T1}, {WS_FLAGO}")
    e(f"s_lshl_b32 s{T1}, s{SRB}, 1"); e(f"s_add_u32 s{T1}, s{T1}, s{T4}"); e(f"s_lshl_b32 s{T1}, s{T1}, 7")
    e(f"s_add_u32 s{sFOc}, s{T1}, {WS_FLAGO}")
    e(f"s_lshl_b32 s{T2}, s{SCB}, 3"); e(f"s_lshl_b32 s{T0}, s{T3}, 2")
    e(f"s_add_u32 s{T1}, s{T1}, s{T2}"); e(f"s_add_u32 s{T1}, s{T1}, s{T0}"); e(f"s_add_u32 s{sFXp}, s{T1}, {WS_FLAGX}")
    e(f"s_lshl_b32 s{T0}, s{SGRP}, 8"); e(f"s_add_u32 s{sZo}, s{T0}, s{sZP}")
    e(f"s_lshl_b32 s{T1}, s{T3}, 10"); e(f"s_lshl_b32 s{T2}, s{T4}, 19")
    e(f"s_add_u32 s{T1}, s{T1}, s{T2}"); e(f"s_add_u32 s{sCL2}, s{T1}, s{sHALO}")
    e(f"s_lshl_b32 s{T1}, s{SIDX}, 2"); e(f"s_add_u32 s{T1}, s{T1}, {WS_FLAGB}"); e(f"s_cmp_eq_u32 s{SW}, 0"); e(f"s_cselect_b32 s{sFBp}, s{T1}, {OOR}")
    e(f"s_cmp_eq_u32 s{SW}, 3"); e(f"s_cselect_b32 s{sHst}, s{sHALO}, {OOR}")
    e(f"s_sub_u32 s{T1}, s{sHALO}, 0x10000"); e(f"s_cmp_eq_u32 s{SW}, 0"); e(f"s_cselect_b32 s{T1}, s{T1}, {OOR}")
    e(f"s_cmp_eq_u32 s{SGRP}, 0"); e(f"s_cselect_b32 s{sHld}, {OOR}, s{T1}")
    e(f"s_lshl_b32 s{T0}, s{SGRP}, 2"); e(f"s_lshl_b32 s{mX}, 15, s{T0}"); e(f"s_mov_b32 s{mX+1}, 0")
    e(f"s_sub_u32 s{T0}, s{sFOp}, s{sFOc}"); e(f"s_lshr_b32 s{T1}, s{T0}, 2"); e(f"s_lshl_b32 s{T1}, 1, s{T1}"); e(f"s_cmp_lt_u32 s{T0}, 128"); e(f"s_cselect_b32 s{T1}, s{T1}, 0")
    e(f"s_andn2_b32 s{mEO}, {(1 << (o.g2depth - 1)) - 1 if o.lazy & 2 else -1}, s{T1}"); e(f"s_mov_b32 s{mEO+1}, 0")
    e(f"s_sub_u32 s{T0}, s{sFXp}, s{sFXc}"); e(f"s_lshr_b32 s{T1}, s{T0}, 2"); e(f"s_lshl_b32 s{T1}, 1, s{T1}"); e(f"s_cmp_lt_u32 s{T0}, 128"); e(f"s_cselect_b32 s{T1}, s{T1}, 0")
    e(f"s_andn2_b32 s{mEX}, {'s%d' % mX if o.lazy & 1 else -1}, s{T1}"); e(f"s_mov_b32 s{mEX+1}, 0")
    e(f"s_lshl_b32 s{sL8}, s{SW}, 11"); e(f"s_lshl_b32 s{sW2l}, s{SW}, 12")
    e(f"s_or_b32 s{T0}, s{SGRP}, s{SW}"); e(f"s_cmp_eq_u32 s{T0}, 0"); e(f"s_cselect_b64 {sm(mFIRST)}, -1, 0")
    e(f"v_add_u32 v{vL64}, 0x10000, v{vL16}"); e(f"v_add_u32 v{vL128}, 0x20000, v{vL16}"); e(f"v_add_u32 v{vLW3}, {(3-o.nopf)*SLOT}, v{vLW}")
    e(f"v_and_b32 v{vFP}, 31, v254"); e(f"v_lshlrev_b32 v{vFP}, 2, v{vFP}")
    e(f"s_lshl_b32 s{T1}, s{T6}, 17"); e(f"v_add_u32 v{vA}, s{T1}, v{vL16}")
    for i in range(1, 4): e(f"v_add_u32 v{vA+i}, {i*0x8000}, v{vA}")
    e(f"s_lshl_b32 s{T1}, s{T6}, 9"); e("v_lshrrev_b32 v213, 5, v254"); e(f"v_lshl_add_u32 v{vSTl}, v213, 17, s{T1}"); e(f"v_lshl_add_u32 v{vSTl}, v{vFP}, 2, v{vSTl}")
    e(f"s_lshl_b32 s{T1}, s{SCB}, 17"); e(f"s_add_u32 s{T1}, s{T1}, s{sLW}"); e(f"v_add_u32 v{vW2}, s{T1}, v{vL16}")
    e("v_lshrrev_b32 v203, 4, v254"); e("v_xor_b32 v204, v203, v201"); e("v_lshlrev_b32 v204, 3, v204"); e("v_lshl_add_u32 v208, v200, 5, v204")
    e(f"s_lshl_b32 s{T2}, s{SW}, 12")
    e(f"v_lshrrev_b32 v204, 2, v{VM}"); e("v_xor_b32 v203, v203, v204"); e("v_lshlrev_b32 v203, 3, v203")
    e(f"v_lshl_add_u32 v203, v{VM}, 5, v203"); e(f"v_add_u32 v{vXW}, s{T2}, v203")
    e(f"s_lshl_b32 s{T0}, s{T4}, 14"); e(f"s_lshl_b32 s{T1}, s{T3}, 9"); e(f"s_add_u32 s{T2}, s{T0}, s{T1}"); e(f"v_add_u32 v{vE0}, s{T2}, v208")
    e(f"v_xor_b32 v{vE1}, 512, v{vE0}"); e(f"s_add_u32 s{T1}, s{T1}, {VB_LDS}"); e(f"v_add_u32 v{vVr}, s{T1}, v208")
    e(f"s_lshl_b32 s{T1}, s{T3}, 3")
    e(f"v_add_u32 v{vGM}, {M}, v{vG16}")
    e(f"s_lshl_b32 s{T0}, s{T4}, 6"); e(f"s_add_u32 s{T0}, s{T0}, s{T1}"); e(f"v_add_u32 v{vZW}, s{T0}, v{vGM}")
    e(f"s_lshl_b32 s{T0}, s{SW}, 10"); e(f"s_add_u32 s{T0}, s{T0}, {M_KX}"); e(f"v_add_u32 v{vKX}, s{T0}, v{vL16}")
    e(f"v_add_u32 v{vKX0}, s{T1}, v{vKX}"); e(f"v_xor_b32 v{vKX1}, 8, v{vKX0}")
    e(f"s_lshl_b32 s{T0}, s{SW}, 9"); e(f"s_add_u32 s{T0}, s{T0}, {M_ST}")
    e(f"v_lshl_add_u32 v203, v213, 2, s{T0}"); e(f"v_lshl_add_u32 v{vSW}, v{vFP}, 1, v203"); e(f"v_lshl_add_u32 v{vSR}, v{VM}, 2, s{T0}")
    e(f"v_add_u32 v{vSQ}, s{T0}, v{vG16}"); e(f"v_lshlrev_b32 v203, 2, v{VM}"); e(f"v_add_u32 v{vCV}, {M_CS + 384}, v203")
    e(f"v_and_b32 v203, 7, v{VM}"); e(f"v_lshl_add_u32 v{vZL}, v203, 8, v{vG16}")
    e("v_mov_b32 v203, 0xffff"); e("v_mov_b32 v204, 0xffff0000"); e(f"v_cndmask_b32 v203, v203, v204, {sm(mPAR)}")
    e(f"v_cndmask_b32 v{MO0}, 0, v203, {sm(mOWN0)}"); e(f"v_cndmask_b32 v{MO1}, 0, v203, {sm(mOWN1)}")
    e(f"v_xor_b32 v{MP0}, v203, v{MO0}"); e(f"v_xor_b32 v{MP1}, v203, v{MO1}")
    e(f"s_add_u32 s{T2}, s{SW}, 4"); e(f"s_min_u32 s{T2}, s{T2}, 5"); e(f"s_mul_i32 s{T0}, s{SMEM}, 12288"); e(f"s_add_u32 s{T0}, s{T0}, {WS_CS}")
    e(f"s_lshl_b32 s{T1}, s{SW}, 11"); e(f"s_add_u32 s{sCSa}, s{T0}, s{T1}"); e(f"s_lshl_b32 s{T1}, s{T2}, 11"); e(f"s_add_u32 s{sCSb}, s{T0}, s{T1}")
    e("v_bfe_u32 v203, v254, 4, 1"); e("v_lshlrev_b32 v203, 3, v203"); e("v_lshl_add_u32 v203, v213, 2, v203"); e("v_lshl_add_u32 v203, v201, 4, v203"); e(f"v_add_u32 v203, {M_CS}, v203")
    e(f"s_lshl_b32 s{T1}, s{SW}, 6"); e(f"v_add_u32 v{vCSa}, s{T1}, v203"); e(f"s_lshl_b32 s{T1}, s{T2}, 6"); e(f"v_add_u32 v{vCSb}, s{T1}, v203")
    e(f"s_lshl_b32 s{T0}, s{SMEM}, 2"); e(f"s_add_u32 s{T0}, s{T0}, s{SW}"); e(f"s_lshl_b32 s{T2}, s{T0}, 7"); e(f"v_mov_b32 v{vCPF}, s{T2}")
    e(f"s_lshr_b32 s{T1}, s{T0}, 3"); e(f"s_and_b32 s{T0}, s{T0}, 7")
    e(f"s_lshl_b32 s{T2}, s{SGRP}, 4"); e(f"s_add_u32 s{T1}, s{T1}, s{T2}"); e(f"s_lshl_b32 s{T1}, s{T1}, 15"); e(f"s_lshl_b32 s{T0}, s{T0}, 9"); e(f"s_add_u32 s{T0}, s{T0}, s{T1}")
    e(f"v_lshl_add_u32 v{vTCH}, v{vG16}, 3, s{T0}")
    for r in range(4): e(f"v_accvgpr_write_b32 a{252+r}, -1")
    e(f"v_mov_b32 v{vVal}, 0"); e(f"s_add_u32 s{T0}, s{sKV}, s{ROTA}")
    e(f"buffer_store_dwordx4 a[252:255], v{vL16}, {SRD}, s{T0} offen sc1")
    e(f"s_mov_b64 exec, {sm(mM0)}"); e(f"buffer_store_dwordx4 a[252:255], v{vG16}, {SRD}, s{sZo} offen sc1")
    e("s_mov_b64 exec, 1"); e(f"buffer_store_dword v{vVal}, off, {SRD}, s{sFOp} sc1"); e(f"buffer_store_dword v{vVal}, off, {SRD}, s{sFXp} sc1"); e("s_mov_b64 exec, -1")
    e(f"s_cmp_eq_u32 s{SW}, 0"); e(f"s_cselect_b32 s{T5}, 0, {OOR}")
    e("WAITV rb")
    stamp(44)
    pl = [f"buffer_load_dword v212, v211, {SRD}, s{T5} offen sc1"]
    if o.apoll: pl = ["v_mov_b32 v212, -1", "s_mov_b32 exec_hi, 0xff", "v_mov_b32 v212, 0", f"buffer_atomic_or v212, v211, {SRD}, s{T5} offen sc0 sc1", "s_mov_b64 exec, -1"]
    E([t + (" ;@poll" if t.startswith("buffer") else "") for t in pl])
    for wt_ in range(2):
        for b_ in range(2):
            for t in range(2):
                d_ = v(224+4*b_+2*t, 2) if wt_ == 0 else a(HW2+4*b_+2*t, 2)
                e(f"ds_read_b64_tr_b16 {d_}, v206 offset:{2*SLOT + wt_*2048 + t*256 + b_*8}")
    e("s_waitcnt lgkmcnt(0)")
    for b_ in range(2): e(f"buffer_store_dwordx4 {v(224+4*b_,4)}, v{vL16}, {SRD}, s{sW2s} offen offset:{b_*1024} sc1 ;@b1")
    for blk in range(6):
        for t in range(2): e(f"ds_read_b64_tr_b16 {a(RB+4*blk+2*t,2)}, v206 offset:{SLOT + (blk>>1)*2048 + t*256 + (blk&1)*8} ;@r{blk}")
    for blk in range(6):
        e(f"WAITL r{blk}")
        e(f"{MF} {a(HCS,4)}, {a(RB+4*blk,4)}, {v(96+4*blk,4)}, {'0' if blk == 0 else a(HCS,4)}")
    e(f"v_mov_b32 v{vVal}, 1")
    stamp(45)
    e("WAITV poll")
    e(f"s_cmp_lg_u32 s{SW}, 0"); e("s_cbranch_scc1 L_faok")
    A.track = False
    e("v_cmp_eq_u32 vcc, 0, v212"); e("s_cbranch_vccz L_fad")
    spin(([f"s_sleep {o.psl}"] if o.psl else []) + pl, ["v_cmp_eq_u32 vcc, 0, v212"])
    A.label("L_fad")
    e(f"v_cmp_ne_u32 {sm(T1)}, s{SXCC}, v212"); e(f"v_mov_b32 v212, s{T1}")
    e(f"ds_write_b32 v{vGM}, v212"); e("s_waitcnt lgkmcnt(0)")
    A.track = True
    A.label("L_faok")
    e("s_barrier")
    stamp(15)
    e(f"ds_read_b32 v{FBV}, v{vGM} ;@mode")

    for lay in range(o.last + 1):
        par = lay & 1; early = lay < 2; li = lay >> 1; last = lay == o.last
        A.label(f"L_layer{lay}")
        stamp(0)
        nd = ND if par == 0 else 0; TB = o.TB if par else 0
        NF = 4*AD if par == 0 else 4*AD + 2*ND; LAF = 4*(o.LA if par == 0 else o.LAB)
        assert LAF + 4 <= NF
        units = [(st, (0, 1, 2, 3), list(range(2 if st >= 32 - nd else 0, 6))) for st in range(32 - TB)]
        units += [(st, bl, list(range(6))) for bl in ((2, 3), (0, 1)) for st in range(32 - TB, 32)]
        anext = [(u, st, i) for u, (st, bl, _) in enumerate(units) for i in bl]
        fidx = {(st, i): n for n, (u, st, i) in enumerate(anext)}
        def afr(step, i): return a(RING + 4*(fidx[(step, i)] % NF), 4)
        def wdst(step, c):
            if c < 2 and step >= 32 - nd: return a(WQ + 8*(step - (32-nd)) + 4*c, 4)
            return v(WFV + 4*c, 4)
        def w1rd(u, c):
            step = units[u][0]
            return ldsrd(wdst(step, c), ((step//4 + 1) % 6)*SLOT + (step % 4)*6144 + c*1024) + f" ;@w{u}_{c}"
        def aload(u, step, i):
            return f"buffer_load_dwordx4 {afr(step, i)}, v{vA+i}, {SRD}, s{ROTA + step//4} offen offset:{(step%4)*1024} sc1 ;@A{u}"
        def mma(step, c, i):
            x, y = (afr(step, i), wdst(step, c)) if (par and c >= 4) else (wdst(step, c), afr(step, i))
            return f"{MF} {v(acc(c,i),4)}, {x}, {y}, {'0' if step == 0 else v(acc(c,i),4)}"
        def ostore(i, through):
            t = f"buffer_store_dwordx4 {v(224+4*i,4)}, v{vA+i}, {SRD}, s{sO} offen"
            if through: e(wt(t))
            else: st_mode([t])
        if lay == 0:
            for c in range(6): e(w1rd(0, c))
        for j in range(4*o.APRE): e(aload(*anext.pop(0)))
        nbar = 0
        if lay == 0:
            for i in range(6): E(w1_piece(par, 1, i))
            e("WAITL mode"); e(f"v_readfirstlane_b32 s{SMODE}, v{FBV}")
        else:
            if o.lazy & 1: poll2(sFXc)
            e("s_waitcnt lgkmcnt(0)"); e("s_barrier")
            for c in range(6): e(w1rd(0, c))
        wr, w1s, w2r, w2s = (o.wrE, o.w1sE, o.w2E, o.w2sE) if early else (o.wrL, o.w1sL, o.w2L, o.w2sL)
        if par: w2r, w2s = (o.w2BE, o.w2sBE) if early else (o.w2BL, o.w2sBL)
        if lay == 3: wr = o.wrBL
        if lay == 0: wr, w1s = o.wr0, o.w1s0
        pend = [("W", st, i) for st in range(2 if early else 2 + o.NRES - o.nopf, 8) for i in range(6)] + [("W2", p, i) for p in range(4 + par) for i in range(6)]
        def allowed(p, t):
            if p[0] == "W": return p[1] < 6 or nbar >= p[1] - 4
            return nbar >= p[1] + 4 and t >= w2s and (lay > 0 or fbdone[0])
        fbdone = [False]
        misc = [(max(o.s0 + o.sper*j, o.lazy & 1), [f"s_mov_b32 s{T0}, {WS_ST + j*16384}", f"buffer_load_dwordx4 {v(160+4*j,4)}, v{vSTl}, {SRD}, s{T0} offen sc1 ;@S{j}"]) for j in range(8)]
        extra = []
        sh = []
        if early:
            for j in range(4):
                extra.append((4 + j, [f"buffer_load_dwordx4 {v(224+8*(j//2)+4*(j%2),4)}, v{vL16}, {SRD}, s{(sCSa, sCSb)[j%2]} offen offset:{(j//2)*1024} sc1 ;@CS{j}"]))
            d = 224
            r = [f"v_add_f32 v{d+j}, v{d+j}, v{d+8+j}" for j in range(8)]
            for s_ in (8, 4): r += [f"v_add_f32_dpp v{d+j}, v{d+j}, v{d+j} row_ror:{s_} row_mask:0xf bank_mask:0xf" for j in range(8)]
            r = [r[j:j+2] for j in range(0, len(r), 2)] + [[f"v_permlane32_swap_b32 v{d+j}, v{d+j+1}"] for j in range(0, 8, 2)]
            r += [[f"v_add_f32 v{d+j}, v{d+j}, v{d+j+1}", f"v_add_f32 v{d+j+2}, v{d+j+2}, v{d+j+3}"] for j in (0, 4)]
            r += [[f"v_permlane16_swap_b32 v{d}, v{d+2}"], [f"v_permlane16_swap_b32 v{d+4}, v{d+6}"], [f"v_add_f32 v{d}, v{d}, v{d+2}", f"v_add_f32 v{d+4}, v{d+4}, v{d+6}"],
                  ["s_mov_b32 exec_lo, 0x000f000f", "s_mov_b32 exec_hi, 0x000f000f", f"ds_write_b32 v{vCSa}, v{d} offset:{par*384}", f"ds_write_b32 v{vCSb}, v{d+4} offset:{par*384} ;@csw",
                   "s_mov_b64 exec, -1"], [f"s_add_u32 s{sCSa}, s{sCSa}, {CS_SZ}", f"s_add_u32 s{sCSb}, s{sCSb}, {CS_SZ}"]]
            caps = [[(8 + 4*k - 4*o.nopf, None, [f"ds_read_b128 {a(RS(par, k+1)+4*b_,4)}, v{vLW3} offset:{k*SLOT + b_*1024}"]) for b_ in range(6)] for k in range(o.NRES)]
            sh += (caps[0] if caps else []) + [(8, "CS3", x) for x in r] + sum(caps[1:], [])
        if lay == 0:
            extra.insert(0, (4, fb_set(0)))
            extra.append((w2s - 8, [t + (" ;@F" if t.startswith("buffer") else "") for t in fb_body(0)]))
        def codepf(lbl): return [f"s_add_u32 s{T3}, s{sPC}, {lbl}-L_pc", f"s_addc_u32 s{T4}, s{sPC+1}, 0", f"global_load_dword v{vJUNK}, v{vCPF}, {sm(T3)}"]
        if o.cpf2: extra.append((o.cpf2, codepf(f"L_epi{lay}")))
        if o.cpf3 and not last: extra.append((o.cpf3, codepf("L_ool")))
        r = []
        for st in (16, 8, 4):
            r += [[f"v_add_f32 v{160+j}, v{160+j}, v{160+j+st}", f"v_add_f32 v{161+j}, v{161+j}, v{161+j+st}"] for j in range(0, st, 2)]
        r += [["s_nop 0"], ["v_permlane32_swap_b32 v160, v162"], ["v_permlane32_swap_b32 v161, v163"], ["v_add_f32 v160, v160, v162", "v_add_f32 v161, v161, v163"],
              [f"v_mul_f32 v163, {f32hex(-1.0/1024)}, v160", f"v_mul_f32 v161, {f32hex(1.0/1024)}, v161"], ["v_fma_f32 v161, -v163, v163, v161", "v_max_f32 v161, 0, v161"],
              [f"v_add_f32 v161, {f32hex(1e-5)}, v161"], ["v_rsq_f32 v162, v161"], [f"ds_write2_b32 v{vSW}, v162, v163 offset0:0 offset1:64"]]
        r += [[f"ds_read2_b32 {v(STP+2*i,2)}, v{vSR} offset0:{16*i} offset1:{64+16*i}"] for i in range(4)]
        if par: r += [[f"ds_read_b128 {v(224+16*j+4*i,4)}, v{vSQ} offset:{256*j + 64*i}"] for j in range(2) for i in range(4)]
        sh += [(0, "S7", x) for x in r]
        sh += [(0, "csbar", [f"ds_read_b128 {v(CSR+4*c,4)}, v{vGM} offset:{M_CS-M+par*384+c*64} ;@cs"]) for c in range(4 if par else 6)]
        if par: sh += [(0, "csbar", [f"ds_read2_b32 {v(CSR+16,2)}, v{vCV} offset0:64 offset1:80 ;@cs"])]
        for t_ in ["S7", "CS3", "F", "csw", "cs"] + [f"W{j}" for j in range(2, 8)]: A.seen.discard(t_)
        csbar = not early
        def ready(tag):
            if tag is None: return True
            if tag == "csbar": return csbar
            return tag in A.seen and not A.pending(tag)
        fix = {(cc, ii): [f"v_fmac_f32 v{acc(cc,ii)+j}, v{CSR+12+cc}, v{240+4*ii+j}" if par and cc >= 4 else
                          f"v_fmac_f32 v{acc(cc,ii)+j}, v{CSR+4*cc+j}, v{STP+2*ii+1}" for j in range(4)] for cc in range(6) for ii in range(4)}
        fix["ci"] = [f"v_mul_f32 v{CI+ii}, {CK[par]}, v{STP+2*ii}" for ii in range(4)]
        ysh = []
        if par:
            VT = lambda db, i: 168 + 10*db + 2*(i+1)
            KP = 188
            def two(l): return [l[j:j+2] for j in range(0, len(l), 2)]
            def vcvt(i, d0, d1): return [f"v_cvt_pk_bf16_f32 v{d+h}, v{acc(4+db,i)+2*h}, v{acc(4+db,i)+2*h+1}" for db, d in enumerate((d0, d1)) for h in range(2)]
            def kmul(i): return [f"v_mul_f32 v{acc(c,i)+j}, v{acc(c,i)+j}, v{STP+2*i}" for c in (2, 3) for j in range(4)]
            def vmul(i): return [f"v_mul_f32 v{acc(c,i)+j}, v{acc(c,i)+j}, v{224+4*i+j}" for c in (4, 5) for j in range(4)]
            def kcvt(i): return cvt4l(acc(2,i), acc(2,i), acc(3,i))
            def qcvt(i): return cvt4l(acc(0,i), acc(0,i), acc(1,i))
            def sown(i): return f"{MF} {v(acc(3,i),4)}, {v(acc(2,i),4)}, {v(acc(0,i),4)}, 0"
            def sprev(i): return f"{MF} {v(acc(1,i),4)}, {v(acc(2,i-1) if i else KP,4)}, {v(acc(0,i),4)}, 0"
            def sel(i):
                so, sp, z = acc(3,i), acc(1,i), acc(5,i)
                r = [f"v_cndmask_b32 v{b}, v{b}, v{b+1}, {sm(mPAR)}" for b in (so, so+2, sp, sp+2)]
                if i == 0: r += [f"v_cndmask_b32 v{b}, v{b}, v217, {sm(mFIRST)}" for b in (sp, sp+2)]
                return r + [f"v_cndmask_b32 v{z}, v{sp}, v{so}, {sm(mOWN0)}", f"v_cndmask_b32 v{z+1}, v{sp+2}, v{so+2}, {sm(mOWN1)}", f"v_max_f32 v{z+2}, v{z}, v{z+1}"]
            def soft(blks):
                Z = [(acc(5,i), i) for i in blks]
                r = [f"v_sub_f32 v{z+h}, v{z+h}, v{z+2}" for z, i in Z for h in range(2)] + [f"v_mul_f32 v{z+h}, v{z+h}, v{CI+i}" for z, i in Z for h in range(2)]
                r += [f"v_exp_f32 v{z+h}, v{z+h}" for z, i in Z for h in range(2)] + [f"v_cvt_pk_bf16_f32 v{z+h}, v{z+h}, v{z+h}" for z, i in Z for h in range(2)]
                for z, i in Z: r += [f"v_and_b32 v{acc(4,i)+j}, v{z+(j&1)}, v{mk}" for j, mk in enumerate((MP0, MP1, MO0, MO1))]
                return r
            def pv(i): return [f"{MF} {v(acc(5,i),4)}, {v(ONES,4)}, {v(acc(4,i),4)}, 0"] + [f"{MF} {v(acc(1+2*db,i),4)}, {v(VT(db,i-1),4)}, {v(acc(4,i),4)}, 0" for db in range(2)]
            hl = [f"buffer_load_dwordx4 v[240:243], v{vL16}, {SRD}, s{sHld} offen sc1", f"buffer_load_dwordx4 v[244:247], v{vL16}, {SRD}, s{sHld} offen offset:1024 sc1"]
            z3 = acc(5,3)
            ysh += two(kmul(3) + kcvt(3)) + [[f"buffer_store_dwordx4 {v(acc(2,3),4)}, v{vL16}, {SRD}, s{sHst} offen sc1"]]
            ysh += two(vmul(3) + vcvt(3, 248, 250)) + [[f"buffer_store_dwordx4 v[248:251], v{vL16}, {SRD}, s{sHst} offen offset:1024 sc1"]]
            ysh += [[f"ds_write_b128 v{vKX}, {v(acc(2,3),4)} offset:1024"]] + two(vcvt(3, VT(0,3), VT(1,3)))
            ysh += [[f"ds_write_b128 v{vKX}, v[248:251] offset:{M_VX-M_KX+1024} ;@xw"]]
            ysh += two(kmul(2) + kcvt(2) + qcvt(3)) + [[sown(3)], [sprev(3)]] + two(vmul(2) + vcvt(2, VT(0,2), VT(1,2)))
            ysh += [["WAITL xw", "s_barrier"], [f"ds_read_b128 {v(KP,4)}, v{vKX}"]] + [[f"ds_read_b64 {v(VT(db,-1),2)}, v{vKX} offset:{M_VX-M_KX+8*db}"] for db in range(2)]
            ysh += two(sel(3)) + [[f"v_mov_b32 v{z3+3}, v{z3+2}"]] + two(qcvt(2))[:1] + [[f"v_permlane32_swap_b32 v{z3+2}, v{z3+3}"], [f"v_max_f32 v{z3+2}, v{z3+2}, v{z3+3}", f"v_mov_b32 v{z3+3}, v{z3+2}"]]
            ysh += two(qcvt(2))[1:] + [[f"v_permlane16_swap_b32 v{z3+2}, v{z3+3}"], [f"v_max_f32 v{z3+2}, v{z3+2}, v{z3+3}"], [sown(2)]]
            s3 = soft((3,))
            ysh += two(s3[:4]) + [s3[4:5], s3[5:6]] + two(s3[6:]) + [[f"v_mov_b32 v217, {f32hex(-3.0e38)}"]] + [[x] for x in pv(3)] + [[], []]
            ysh += [[f"v_rcp_f32 v{z3}, v{z3}"]] + two([f"v_mul_f32 v{acc(1+2*db,3)+j}, v{acc(1+2*db,3)+j}, v{z3}" for db in range(2) for j in range(4)] + cvt4l(236, acc(1,3), acc(3,3)))
            ysh += [lambda: ostore(3, o.oall)]
            ysh.insert(len(ysh) - o.hpos, [hl[0]]); ysh.insert(len(ysh) - o.hpos, [hl[1] + " ;@hl"])
        def Y():
            x = ysh.pop(0)
            if callable(x): x()
            else: E(x)
        credit = 0.5 if (lay == 1 and o.lazy & 1) else 0.0; t = 0.0; nbar = 0
        for u, (step, bl, cs_) in enumerate(units):
            half = len(bl) == 2; ng = len(cs_); inY = half and bl[0] == 0
            assert not anext or anext[0][0] > u
            e(f"WAITV A{u}")
            if u == 1 and lay > 0 and o.lazy & 1:
                assert anext[0][1] <= 4 and anext[0][2] == 0 and len(misc) == 8
                poll2chk(sFXc, lay)
            if o.g1prof and u == 0: stamp(2, 1)
            if u + 1 < len(units) and units[u+1][0]//4 > nbar:
                nbar += 1
                assert not any(p[0] == "W" and p[1] <= nbar for p in pend), (lay, u)
                if f"W{nbar}" in A.seen: e(f"WAITV W{nbar}")
                if lay == 0 and nbar == 1: assert not A.pending("b1")
                e("s_barrier")
                if ready("csw"): csbar = True
                if o.g1prof: stamp(2 + nbar, 1)
            if inY and step == max(28, 32 - TB):
                e("s_barrier"); nbar = 8
            if inY: assert not sh and all(not x for x in fix.values()), (lay, len(sh), {k: len(x) for k, x in fix.items() if x})
            nslot = 3 if half else ng
            cur = fidx[(step, bl[0])]
            ahead = lambda n: n < len(anext) and fidx[anext[n][1:]] < cur + len(bl) + LAF
            plan = []; na = nw = nm = 0
            while len(plan) < nslot and ahead(na) and na < len(bl):
                plan.append("A"); na += 1
            if t >= w1s: credit = min(credit + (wr if (pend and pend[0][0] == "W") else w2r) * len(bl) / 400.0, max(3.0, w2r/100.0))
            while len(plan) < nslot and nw < len(pend) and allowed(pend[nw], t) and credit >= 1:
                plan.append("W"); nw += 1; credit -= 1
            while len(plan) < nslot and nm < len(misc) and misc[nm][0] <= t:
                plan.append("M"); nm += 1
            while len(plan) < nslot and ahead(na):
                plan.append("A"); na += 1
            oth = [p for p in plan if p != "A"]; aa = [p for p in plan if p == "A"]; plan = []
            while oth or aa:
                if aa: plan.append(aa.pop())
                if aa and len(aa) >= 2*len(oth): plan.append(aa.pop())
                if oth: plan.append(oth.pop(0))
            if half: plan = sum(([p, None] for p in plan), [])
            for gi, c in enumerate(cs_):
                vm = None
                for p, i in enumerate(bl if c % 2 == 0 else bl[::-1]):
                    if p == 0: e(f"WAITL w{u}_{c}")
                    e(mma(step, c, i))
                    busy = False
                    if p == 0 and gi < len(plan) and plan[gi]:
                        k = plan[gi]
                        if k == "A": vm = [aload(*anext.pop(0))]
                        elif k == "W":
                            pc = pend.pop(0); vm = w1_piece(par, pc[1], pc[2]) if pc[0] == "W" else w2_piece(par, pc[1], pc[2])
                        else: vm = misc.pop(0)[1]
                        E(vm[:-1]); busy = len(vm) > 1
                    if p == (0 if half else 1) and vm: e(vm[-1]); busy = True
                    if p == len(bl) - 1:
                        busy = not half
                        if u + 1 < len(units): e(w1rd(u+1, c))
                    if p == 2 and ng == 4 and u + 1 < len(units) and gi < 2:
                        e(w1rd(u+1, gi)); busy = True
                    if busy: continue
                    if inY:
                        if ysh: Y()
                    elif p == (0 if half else 2) and gi == 3 and extra and extra[0][0] <= t: E(extra.pop(0)[1])
                    elif p == 2 and lay == 0 and not fbdone[0] and ready("F"):
                        E(fb_cond + retry(fb_body(0), fb_cond)); fbdone[0] = True
                    elif sh:
                        if sh[0][0] <= t and ready(sh[0][1]): E(sh.pop(0)[2])
                    elif ready("cs"):
                        cc = cs_[(gi + ng//2) % ng]
                        cand = [(cc, ii) for ii in (3, 2, 1, 0)]
                        if step > 32 - nd: cand += [(c2, ii) for c2 in (0, 1) for ii in range(4)]
                        if half and step > 32 - TB: cand += [(c2, ii) for c2 in range(6) for ii in (0, 1)]
                        for k in cand + ["ci"]:
                            if fix[k]:
                                E(fix[k][:2]); fix[k] = fix[k][2:]; break
            t += len(bl) / 4
        assert not anext and not misc and not sh and not extra and all(p[0] == "W2" for p in pend), (lay, pend, anext, misc, len(sh), extra)
        assert all(not x for x in fix.values()), (lay, {k: len(x) for k, x in fix.items()})
        assert lay > 0 or fbdone[0]
        left = [w2_piece(par, p[1], p[2]) for p in pend]
        lates = [w2_piece(par, 4, i) for i in range(6*(1-par))] + [w2_piece(par, 5, i) for i in range(2)]
        if o.verbose: print("layer", lay, "left", len(left), "ysh", len(ysh))
        A.label(f"L_epi{lay}")
        e("s_waitcnt lgkmcnt(0)"); e("s_barrier")
        stamp(1)
        qm = [mma(step, c, i) for step in range(32-nd, 32) for c in range(2) for i in (range(4) if c == 0 else reversed(range(4)))]

        if par == 0:
            def feat_head(c0, tmp, hook=None):
                MX, MN = tmp, tmp+4
                for i in (3, 2, 1, 0):
                    p0, p1 = acc(c0,i), acc(c0+1,i)
                    for op, op2, d in (("v_max3_f32", "v_max_f32", MX+i), ("v_min3_f32", "v_min_f32", MN+i)):
                        e(f"{op} v{d}, v{p0}, v{p0+1}, v{p0+2}"); e(f"{op} v{d}, v{d}, v{p0+3}, v{p1}")
                        e(f"{op} v{d}, v{d}, v{p1+1}, v{p1+2}"); e(f"{op2} v{d}, v{d}, v{p1+3}")
                if hook: hook()
                xreduce([("v_max_f32", [MX, MX+1, MX+2, MX+3]), ("v_min_f32", [MN, MN+1, MN+2, MN+3])])
                for i in range(4):
                    e(f"v_mul_f32 v{MX+i}, -v{MX+i}, v{CI+i}"); e(f"v_mul_f32 v{MN+i}, v{MN+i}, v{CI+i}")
                for i in range(4):
                    for fb in range(2):
                        for h in range(2):
                            pk_fma(224+8*i+4*fb+2*h, acc(c0+fb,i)+2*h, CI+i, MX+i)
                            pk_fma(acc(c0+fb,i)+2*h, acc(c0+fb,i)+2*h, CI+i, MN+i, negx=True)
            def feat_tail(c0, F, G_, S0, S1, post, mid=None, hooks={}):
                def norm_(i):
                    sq = S0 if i % 2 == 0 else S1
                    e(f"v_rcp_f32 v{184+2*i}, v{sq}"); e(f"v_rcp_f32 v{185+2*i}, v{sq+4}")
                    for r in range(0, 8, 2): pk_mul(224+8*i+r, 224+8*i+r, 184+2*i)
                    cvt4(F+4*i, 224+8*i, 224+8*i+4)
                    if post: e(post(i, 0))
                    for fb in range(2):
                        for h in range(2): pk_mul(acc(c0+fb,i)+2*h, acc(c0+fb,i)+2*h, 185+2*i)
                    cvt4(G_+4*i, acc(c0,i), acc(c0+1,i))
                    if post: e(post(i, 1))
                for i in range(4):
                    if i in hooks: hooks[i]()
                    for r in range(8): e(f"v_exp_f32 v{224+8*i+r}, v{224+8*i+r}")
                    for fb in range(2):
                        for r in range(4): e(f"v_exp_f32 v{acc(c0+fb,i)+r}, v{acc(c0+fb,i)+r}")
                    if 0 < i < 3: norm_(i-1)
                    sq = S0 if i % 2 == 0 else S1
                    cvt4(F+4*i, 224+8*i, 224+8*i+4); cvt4(G_+4*i, acc(c0,i), acc(c0+1,i))
                    e(f"{MF} {v(sq,4)}, {v(ONES,4)}, {v(F+4*i,4)}, 0"); e(f"{MF} {v(sq+4,4)}, {v(ONES,4)}, {v(G_+4*i,4)}, 0")
                if 4 in hooks: hooks[4]()
                if mid: mid()
                norm_(2)
                if 5 in hooks: hooks[5]()
                norm_(3)
            dl = []
            if lay == 0:
                dl = [[f"s_add_u32 s{D2}, s{ROTW}, {WS_W1[1]}", f"s_add_u32 s{D4}, s{D2}, 4096", w1st(a(RB,4), 0, D2, D4)]] + [[w1st(a(RB+4*b_,4), b_, D2, D4)] for b_ in range(1, 6)]
                dl += [[f"s_add_u32 s{D1}, s{sW2s}, {WS_W2[1] - WS_W2[0]}", f"buffer_store_dwordx4 {a(HW2,4)}, v{vL16}, {SRD}, s{D1} offen sc1"],
                       [f"buffer_store_dwordx4 {a(HW2+4,4)}, v{vL16}, {SRD}, s{D1} offen offset:1024 sc1", f"s_add_u32 s{D1}, s{sCL0}, {CS_SZ}"] + csst(a(HCS,4), D1),
                       [f"buffer_store_dwordx4 a[252:255], v{vL16}, {SRD}, s{sCL2} offen sc1"],
                       [f"s_add_u32 s{D1}, s{sKV}, s{ROTA}", f"s_add_u32 s{D1}, s{D1}, 0x100000", f"buffer_store_dwordx4 a[252:255], v{vL16}, {SRD}, s{D1} offen sc1",
                        f"s_add_u32 s{D1}, s{sZo}, 0x10000", f"s_mov_b64 exec, {sm(mM0)}", f"buffer_store_dwordx4 a[252:255], v{vG16}, {SRD}, s{D1} offen sc1 ;@b2", "s_mov_b64 exec, -1"]]
            dl2 = dl[o.dk:]; dl = dl[:o.dk]; mix = []
            for j_ in range(max(len(left), len(dl))): mix += left[j_:j_+1] + dl[j_:j_+1]
            per = o.aper0 if dl else o.aper
            A.bgset(mix, per, per)
            def vall():
                for i in range(4):
                    for b in range(2):
                        for h in range(2): pk_mul(acc(4+b,i)+2*h, acc(4+b,i)+2*h, STP+2*i)
                    cvt4(acc(4,i), acc(4,i), acc(5,i))
                    e(xw(acc(4,i), VB_LDS//1024 + i))
            feat_head(2, 208, vall)
            feat_tail(2, 192, 144, 168, 176, lambda i, sg: xw((192 if sg == 0 else 144)+4*i, 24 + 16*sg + i))
            A.bgflush()
            e(f"s_add_u32 s{T2}, s{sKV}, s{ROTA}")
            e("s_waitcnt lgkmcnt(0)"); e("s_barrier")
            stamp(2)
            def kvreads(p):
                b = 96 + 16*(p % 4); r = []
                for t in range(2):
                    r += [f"ds_read_b64_tr_b16 {v(b+2*t,2)}, v{vE0} offset:{SLOT + (2*p+t)*1024}", f"ds_read_b64_tr_b16 {v(b+8+2*t,2)}, v{vVr} offset:{(2*p+t)*1024} ;@ka{p}"]
                return r + [f"ds_read_b64_tr_b16 {v(b+4+2*t,2)}, v{vE1} offset:{SLOT + (2*p+t)*1024} ;@kb{p}" for t in range(2)]
            rd = sum((kvreads(p) for p in range(8)), [])
            E(rd[:14]); rd = rd[14:]
            for j in range(4): e(qm.pop(0))
            for p in range(8):
                b = 96 + 16*(p % 4); z_ = p == 0
                e(f"WAITL ka{p}")
                e(f"{MF} v[168:171], {v(b,4)}, {v(b+8,4)}, {'0' if z_ else 'v[168:171]'}"); E(rd[0:2])
                e(f"{MF} v[200:203], {v(b,4)}, {v(ONES,4)}, {'0' if z_ else 'v[200:203]'}"); E(rd[2:4])
                e(f"WAITL kb{p}")
                e(f"{MF} v[172:175], {v(b+4,4)}, {v(b+8,4)}, {'0' if z_ else 'v[172:175]'}"); E(rd[4:6]); rd = rd[6:]
            for j in range(2): e(qm.pop(0))
            e("s_barrier")
            for j in range(2): e(qm.pop(0))
            cv = cvt4l(192, 168, 172)
            E(cv[:2]); e(qm.pop(0)); E(cv[2:]); e(qm.pop(0))
            e(f"buffer_store_dwordx4 v[192:195], v{vL16}, {SRD}, s{T2} offen sc1"); e(qm.pop(0))
            e(f"s_mov_b64 exec, {sm(mM0)}"); e(f"buffer_store_dwordx4 v[200:203], v{vG16}, {SRD}, s{sZo} offen sc1"); e("s_mov_b64 exec, -1")
            stamp(3)
            A.bgset(lates, o.aper2, 0)
            E(qm)
            def g1(p): return [f"s_add_u32 s{T0}, s{sKV}, s{ROTA+1+p}", f"buffer_load_dwordx4 {v(96+4*p,4)}, v{vL16}, {SRD}, s{T0} offen sc1 ;@g{p}"]
            gz = f"buffer_load_dwordx4 v[192:195], v{vZL}, {SRD}, s{sZP} offen sc1 ;@gz"
            def gather():
                A.bgflush()
                for p in range(7): E(g1(p))
                e(gz)
                A.bgset(dl2, o.aper3, 0)
            if o.gpos == 0: gather()
            feat_head(0, 196, gather if o.gpos == 1 else None)
            def qmid():
                e(f"s_andn2_b64 {sm(T1)}, {sm(mDIAG)}, {sm(mB1)}"); e(f"s_and_b64 {sm(T3)}, {sm(mDIAG)}, {sm(mB1)}")
                e(f"v_or_b32 v128, v{MO0}, v{MP0}"); e(f"v_and_b32 v128, v128, v{ONES}")
                e(f"v_cndmask_b32 v130, 0, v128, {sm(T1)}"); e(f"v_cndmask_b32 v131, 0, v128, {sm(T3)}")
                for r in (128, 129, 132, 133): e(f"v_mov_b32 v{r}, 0")
            feat_tail(0, 204, 136, 152, 176, None, qmid, {o.gpos - 2: gather})
            A.bgflush()
            nafter = A.after("gz")
            stamp(4)
            e(f"s_mov_b32 s{sTMO}, {LIM}")
            for p in range(8):
                r0 = 96+4*p if p < 7 else 192; L = f"{lay}_{p}"
                e(f"WAITV g{p if p < 7 else 'z'}")
                A.label(f"L_kvc{L}")
                e(f"v_cmp_eq_u32 vcc, -1, v{r0}"); e(f"s_cbranch_vccnz L_kvs{L}")
                A.label(f"L_kvo{L}")
                if p < 7:
                    e(f"{MF} v[168:171], v[130:133], {v(r0,4)}, v[168:171]"); e(f"{MF} v[172:175], v[128:131], {v(r0,4)}, v[172:175]")
                def kvslow(p=p, L=L, nafter=nafter, g1=g1, gz=gz):
                    A.label(f"L_kvs{L}")
                    e(f"s_sub_u32 s{sTMO}, s{sTMO}, 1"); e(f"s_cbranch_scc1 L_kvt{L}")
                    if o.ksl: e(f"s_sleep {o.ksl}")
                    e(f"s_waitcnt vmcnt({nafter})")
                    if o.kgate:
                        e("v_mov_b32 v197, 0"); e("s_mov_b64 exec, 0xff"); e(f"buffer_atomic_or v197, v{vZL}, {SRD}, s{sZP} offen sc0 sc1"); e("s_mov_b64 exec, -1")
                        e("s_waitcnt vmcnt(0)"); e("v_cmp_eq_u32 vcc, -1, v197"); e(f"s_cbranch_vccnz L_kvs{L}")
                    for p2 in range(p, 7):
                        if p2 > p: e(f"v_cmp_eq_u32 vcc, -1, v{96+4*p2}"); e(f"s_cbranch_vccz L_kvn{L}_{p2}")
                        E(g1(p2))
                        if p2 > p: A.label(f"L_kvn{L}_{p2}")
                    e(gz); e("s_waitcnt vmcnt(0)"); e(f"s_branch L_kvc{L}")
                    A.label(f"L_kvt{L}"); e(f"s_mov_b32 s{sTMO}, 0"); e(f"s_branch L_kvo{L}")
                ool.append(kvslow)
            for s_ in (4, 2, 1):
                for r in range(4): e(f"v_add_f32_dpp v{192+r}, v{192+r}, v{192+r} row_ror:{s_} row_mask:0xf bank_mask:0xf")
                if s_ == 2:
                    cvt4(196, 168, 172)
                    e(f"ds_write_b64 v{vKX0}, v[196:197]"); e(f"ds_write_b64 v{vKX1}, v[198:199]")
            e("v_cvt_pk_bf16_f32 v192, v192, v193"); e("v_cvt_pk_bf16_f32 v193, v194, v195")
            e(f"s_mov_b64 exec, {sm(mM0)}"); e(f"ds_write_b64 v{vZW}, v[192:193] offset:{M_ZF-M}"); e("s_mov_b64 exec, -1")
            fb2 = lay == 0 and not A.pending("b2")
            e("s_waitcnt lgkmcnt(0)"); e("s_barrier")
            stamp(5)
            for t in range(2): e(f"ds_read_b128 {v(184+4*t,4)}, v{vGM} offset:{M_ZF-M + t*64} ;@zf")
            for j in range(4): e(ldsrd(v(168+4*j,4), M_KX + j*1024))
            if fb2: E(fb_set(1))
            if lay == 0: e(f"s_add_u32 s{sKV}, s{sKV}, 0x100000"); e(f"s_add_u32 s{sZP}, s{sZP}, 0x10000"); e(f"s_add_u32 s{sZo}, s{sZo}, 0x10000")
            e("WAITL zf")
            for t in range(2):
                for i in range(4): e(f"{MF} {v(64+4*i,4)}, {v(184+4*t,4)}, {v((204 if t == 0 else 136)+4*i,4)}, {'0' if t == 0 else v(64+4*i,4)}")
            e("s_waitcnt lgkmcnt(0)")
            def fin(i):
                r = [f"v_mul_f32 v{96+8*i+j}, v{96+8*i+j}, v{64+4*i}" for j in range(8)] + cvt4l(224+4*i, 96+8*i, 100+8*i)
                return [r[j:j+3] for j in range(0, 12, 3)]
            sc = [[f"v_add_f32 v{64+4*i}, {f32hex(1e-6)}, v{64+4*i}", f"v_rcp_f32 v{64+4*i}, v{64+4*i}"] for i in range(4)]
            fills = [[[]]*4, sc, fin(0), fin(1)]
            for i in range(4):
                for t in range(2):
                    for db in range(2):
                        d = v(96+8*i+4*db, 4)
                        e(f"{MF} {d}, {v(168+8*t+4*db,4)}, {v((204 if t == 0 else 136)+4*i,4)}, {'0' if t == 0 else d}")
                        E(fills[i][2*t+db])
                if i >= 2: ostore(i-2, True)
            for i in (2, 3):
                for r in range(0, 8, 2): pk_mul(96+8*i+r, 96+8*i+r, 64+4*i)
                cvt4(224+4*i, 96+8*i, 100+8*i)
                ostore(i, True)
        else:
            fb2 = True
            A.bgset(left + lates, o.bper, o.bper)
            while ysh: Y()
            for i in (1, 0):
                for c in (2, 3):
                    for h in range(2): pk_mul(acc(c,i)+2*h, acc(c,i)+2*h, STP+2*i)
            for i in (1, 0):
                for c in (4, 5):
                    for h in range(2): e(f"v_pk_mul_f32 {v(acc(c,i)+2*h,2)}, {v(acc(c,i)+2*h,2)}, {v(224+4*i+2*h,2)}")
            E(kcvt(1) + qcvt(1)); e(sprev(2)); E(kcvt(0)[:2]); e(sown(1)); E(kcvt(0)[2:] + qcvt(0)); e(sprev(1)); E(vcvt(1, VT(0,1), VT(1,1))[:2]); e(sown(0))
            E(vcvt(1, VT(0,1), VT(1,1))[2:] + vcvt(0, VT(0,0), VT(1,0)))
            E(sel(2))
            keep = A.bg; A.bg = []
            e("s_waitcnt lgkmcnt(0)")
            e(f"s_cmp_lg_u32 s{SW}, 0"); e(f"s_cbranch_scc1 L_halod{lay}")
            A.track = False
            hc = ["v_max_u32 v218, v240, v244", "v_cmp_eq_u32 vcc, -1, v218"]
            if A.pending("hl"): e(f"s_waitcnt vmcnt({A.after('hl')})")
            E(hc); e(f"s_cbranch_vccz L_halow{lay}")
            spin(hl, hc)
            A.label(f"L_halow{lay}")
            for r in range(4): e(f"v_mov_b32 v{KP+r}, v{240+r}"); e(f"v_mov_b32 v{VT(r//2,-1)+r%2}, v{244+r}")
            A.track = True
            A.label(f"L_halod{lay}")
            e(sprev(0))
            A.bg = keep
            stamp(2)
            if lay == 1: e(f"s_add_u32 s{sHst}, s{sHst}, 0x80000"); e(f"s_add_u32 s{sHld}, s{sHld}, 0x80000")
            E(sel(1)); E(sel(0))
            xreduce([("v_max_f32", [acc(5,i)+2 for i in range(4)])])
            E(soft((2, 1, 0)))
            A.bgflush()
            E(pv(2) + pv(1) + pv(0))
            for i in (2, 1, 0):
                e(f"v_rcp_f32 v{acc(5,i)}, v{acc(5,i)}")
                for db in range(2):
                    for h in range(2): pk_mul(acc(1+2*db,i)+2*h, acc(1+2*db,i)+2*h, acc(5,i))
                cvt4(224+4*i, acc(1,i), acc(3,i))
                ostore(i, o.oall)

        stamp(6)
        pre = [f"v_mov_b32 v{vVal}, {lay+1}"]
        for i in range(2):
            for kk in range(2):
                for r in range(4):
                    d = acc2(2*kk + (r >> 1), i) + 2*(r & 1); x = RES+8*i+4*kk+r
                    pre += [f"v_lshlrev_b32 v{d}, 16, v{x}", f"v_and_b32 v{d+1}, 0xffff0000, v{x}"]
        omask = (1 << (o.g2depth - 1)) - 1 if o.lazy & 2 else None
        if o.early & 2: handoff(sFOp, sFOc, lay+1, omask, mEO, pre, [])
        else:
            E(pre); signal(sFOp); stamp(7); poll(sFOc, lay+1, None, omask)
        stamp(8)
        W2F = RING; AF2 = RING + 32; GD = o.g2depth; T2_ = o.TG
        assert AF2 + 8*GD <= 240 - 48*o.NRES
        gun = [(st, (0, 1)) for st in range(32 - T2_)] + [(st, (i,)) for i in range(2) for st in range(32 - T2_, 32)]
        bn = [(st, i) for st, bl in gun for i in bl]
        bidx = {k: n for n, k in enumerate(bn)}
        def bfr(step, i): return a(AF2 + 4*(bidx[(step, i)] % (2*GD)), 4)
        def w2rd(u, b):
            step = gun[u][0]
            return ldsrd(a(W2F + 16*(u % 2) + 4*b, 4), (step*4096 if step < 14 else 3*SLOT + (step-14)*4096) + b*1024) + f" ;@u{u}_{b}"
        cur4 = [-1]
        def bload(step, i):
            r = [f"s_mov_b32 s{sAo}, {WS_O + (step//4)*4096}"] if step//4 != cur4[0] else []
            cur4[0] = step//4
            return r + [f"buffer_load_dwordx4 {bfr(step, i)}, v{vB+i}, {SRD}, s{sAo} offen offset:{(step%4)*1024} sc1 ;@B{step}_{i}"]
        for j in range(min(o.bpos, 2*GD-2)):
            if o.lazy & 2 and j == o.p2pos: poll2(sFOc)
            E(bload(*bn.pop(0)))
        e("s_barrier")
        for st in range(2):
            for b in range(4): e(w2rd(st, b))
        while bn[0][0] < GD-1: E(bload(*bn.pop(0)))
        lv = [x for x in (o.lv1, o.lv2) if x] + [32]
        okh = 32
        if o.lazy & 2: okh = lv.pop(0); poll2chk(sFOc, lay+1, hex((1 << okh) - 1) if okh < 32 else None)
        if lay == 0 and not fb2: E(fb_set(1))
        w1n = [] if last or (o.nopf and lay >= 1) else list(range(6))
        nres = 0 if last else (1 + (o.NRES if lay >= 1 else 0))
        def oparts(i):
            return [[f"ds_write_b128 v{200+kk}, {v(RES+8*i+4*kk,4)} offset:{i*2048}"] for kk in range(2)] + \
                   [[f"ds_read_b128 {v(96+4*j,4)}, v{vLW} offset:{j*1024} ;@o{j}"] for j in (2*i, 2*i+1)] + [[], []] + \
                   [[f"WAITL o{j}", f"buffer_store_dwordx4 {v(96+4*j,4)}, v202, {SRT}, s{T0} offen" + (" sc1" if o.outsc else ""), f"s_add_u32 s{T0}, s{T0}, 16384"] for j in (2*i, 2*i+1)]
        gsh = []
        if last:
            gsh = [[f"v_bfe_u32 v200, v{vL16}, 4, 4", f"v_and_b32 v201, 0x70, v{vL16}"], [f"v_xor_b32 v201, v201, v{vG16}", "v_lshl_add_u32 v200, v200, 7, v201"],
                   [f"v_add_u32 v200, s{sLW}, v200", f"v_lshrrev_b32 v202, 7, v{vL16}"], [f"v_and_b32 v203, 0x70, v{vL16}", "v_lshlrev_b32 v204, 4, v202"],
                   ["v_xor_b32 v201, 64, v200", "v_xor_b32 v203, v203, v204"], ["v_lshl_add_u32 v202, v202, 11, v203"],
                   [f"s_mov_b32 s8, s{P_OUT}", f"s_mov_b32 s9, s{P_OUT+1}"], ["s_mov_b32 s10, 0x400000", "s_mov_b32 s11, 0x20000"],
                   [f"s_lshl_b32 s{T0}, s{SRB}, 2", f"s_add_u32 s{T0}, s{T0}, s{SW}"], [f"s_lshl_b32 s{T0}, s{T0}, 16", f"s_lshl_b32 s{T1}, s{SCB}, 7"], [f"s_add_u32 s{T0}, s{T0}, s{T1}"]]
        def xcvt(i): return sum((cvt4l(RES+8*i+4*kk, acc2(2*kk,i), acc2(2*kk+1,i)) for kk in range(2)), [])
        fbchk = not (lay == 0 and not last)
        rw = [f"ds_write_b128 v{vLW if k == 0 else vLW3}, {a(RS(1-par, k)+4*b_,4)} offset:{(SLOT if k == 0 else (k-1)*SLOT) + b_*1024}" for k in range(nres) for b_ in range(6)]
        rslot = [1 if k == 0 else 2 + k - o.nopf for k in range(nres) for b_ in range(6)]
        freeslot = -1
        for u, (step, bl) in enumerate(gun):
            e("WAITV " + " ".join(f"B{step}_{i}" for i in bl))
            if okh < 32:
                if bn[0][0] == okh - GD + 1: poll2(sFOc)
                if bn[0][0] == okh: okh = lv.pop(0); poll2chk(sFOc, lay+1, hex((1 << okh) - 1) if okh < 32 else None)
                assert bn[1][0] < okh
            nsl = nres - 1 - o.nopf if nres > 1 else 0
            if u in [15 + 6*j for j in range(nsl + 1) if o.rin or j == nsl or (j == 0 and w1n)]:
                freeslot = 2 + (u - 15)//6
                assert min(st for st, _ in gun[u-1:]) >= u - 1
                e("s_barrier")
            if lay == 0 and not last and u == 19: assert okh == 32; E([t + (" ;@F" if t.startswith("buffer") else "") for t in fb_body(1)])
            if not fbchk and len(bn) <= 2: e("WAITV F"); E(fb_cond + retry(fb_body(1), fb_cond)); fbchk = True
            if bl == (1,) and step == 32 - T2_:
                assert not gsh
                c_ = xcvt(0); gsh = [[]] + [c_[j:j+2] for j in range(0, 8, 2)]
                if last: gsh += oparts(0)
                else:
                    p_ = xparts(0); gsh += p_[0] + [[], []] + p_[1]
            for b in range(4):
                e(f"WAITL u{u}_{b}")
                for p, i in enumerate(bl if b % 2 == 0 else bl[::-1]):
                    e(f"{MF} {v(acc2(b,i),4)}, {a(W2F+16*(u%2)+4*b,4)}, {bfr(step, i)}, {v(acc2(b,i),4)}")
                    if p == 0:
                        if bn and b % (4//len(bl)) == 0: E(bload(*bn.pop(0)))
                        elif not bn and w1n and b % (o.g2w*2//len(bl)) == 0: E(w1_piece(1-par, 1, w1n.pop(0)))
                        elif gsh and (len(bl) == 1 or b % 2):
                            g_ = gsh.pop(0)
                            if o.xall and lay >= 1 and not last: E([wt(t) for t in g_])
                            elif any(t.startswith("buffer_store") for t in g_) and not last: st_mode(g_)
                            else: E(g_)
                if o.rin and rw and rslot[0] <= freeslot and b % (4//o.rin) == 4//o.rin - 1 and (len(bl) == 2 or (bl == (0,) and b == 3 and (u % 2 or o.rin > 1))):
                    e(rw.pop(0)); rslot.pop(0)
                if u + 2 < len(gun): e(w2rd(u+2, b))
                if b == 1 and not last:
                    if o.xf and u == o.xt0: e(f"buffer_load_dword v{vJUNK}, v{vTCH}, {SRD}, s{ROTA} offen sc1")
                    if o.cpf and u == o.xt0 + 4: E(codepf(f"L_layer{lay+1}"))
        assert not w1n
        stamp(9)
        rest = sum(gsh, [])
        if last or not any(t.startswith("buffer_store") for t in rest): E(rest)
        else: st_mode(rest)
        todo = (1,) if T2_ else (0, 1)
        for i in todo: E(xcvt(i))
        if last:
            for i in todo: E(sum(oparts(i)[:4], []))
            for i in todo: E(sum(oparts(i)[4:], []))
            break
        xtile(o.xall and lay >= 1, todo)
        assert not rw or max(rslot) <= freeslot
        if o.verbose: print("layer", lay, "resident writes left", len(rw))
        if o.early & 1: handoff(sFXp, sFXc, lay+1, sm(mX) if o.lazy & 1 else None, mEX, rw[:o.rw], rw[o.rw:])
        else:
            E(rw[:o.rw]); signal(sFXp); stamp(10); poll(sFXc, lay+1, rw[o.rw:], sm(mX) if o.lazy & 1 else None)

    if o.stamps:
        e("s_waitcnt vmcnt(0)")
        stamp(11)
        e(f"s_lshl_b32 s{T0}, s{SIDX}, 2"); e(f"s_add_u32 s{T0}, s{T0}, s{SW}")
        e(f"s_lshl_b32 s{T0}, s{T0}, 8"); e(f"s_add_u32 s{T0}, s{T0}, {WS_STAMPS}")
        e(f"v_lshrrev_b32 v200, 2, v{vL16}")
        e(f"buffer_store_dword v{vSTAMP}, v200, {SRD}, s{T0} offen")
        if o.echo_a >= 0:
            e(f"v_readlane_b32 s{T1}, v{vSTAMP}, {o.echo_a}"); e(f"v_readlane_b32 s{T2}, v{vSTAMP}, {o.echo_b}"); e(f"v_readlane_b32 s{T3}, v{vSTAMP}, 59")
            e(f"s_sub_u32 s{T2}, s{T2}, s{T1}"); e(f"s_min_u32 s{T2}, s{T2}, 20000")
            A.label("L_echo")
            e(f"s_memrealtime s[{sSTAMP}:{sSTAMP+1}]"); e("s_waitcnt lgkmcnt(0)")
            e(f"s_sub_u32 s{T4}, s{sSTAMP}, s{T3}"); e(f"s_cmp_lt_u32 s{T4}, s{T2}"); e("s_cbranch_scc1 L_echo")
    e("s_endpgm")
    A.track = False
    A.label("L_ool")
    for blk in ool: blk()
    A.label("L_exit")
    e("s_endpgm")
    A.raw(f".fill (16384 + 256 - (. - L_ool))/4, 4, 0xbf810000")
    A.raw('.section .rodata,"a"'); A.raw(".p2align 6"); A.raw(f".amdhsa_kernel {KNAME}")
    for t in ("next_free_vgpr 512", "next_free_sgpr 102", "accum_offset 256", "group_segment_fixed_size 0", "kernarg_size 80",
              "user_sgpr_count 2", "user_sgpr_kernarg_segment_ptr 1", "system_sgpr_workgroup_id_x 1"):
        A.raw("  .amdhsa_" + t)
    A.raw(".end_amdhsa_kernel")
    return A.text()

if __name__ == "__main__":
    o = Opts()
    out = sys.argv[1]
    for kv in sys.argv[2:]:
        k, val = kv.split("=")
        assert hasattr(o, k), k
        setattr(o, k, int(val))
    open(out, "w").write(gen(o))
```

```python
import sys, struct
from asmlib import *

KNAME = "interleave_layers__linear_kernel_hedgehog__sliding_local_dilated__prompt_kernel"

WS_FLAGA = 0x0000000
WS_FLAGB = 0x0008000
WS_FLAGO = 0x0009000
WS_FLAGX = 0x000A000
WS_CS    = 0x0010000
CS_SZ    = 393216
WS_ST    = 0x0100000
WS_ZP    = 0x0140000
WS_STAMPS= 0x0180000
WS_HALO  = 0x0200000
WS_KVP   = 0x0400000
WS_W1    = (0x0800000, 0x0E00000)
WS_W2    = (0x1400000, 0x1600000)
WS_X     = 0x1800000
WS_X0    = WS_X
WS_O     = 0x1C00000
WS_SIZE  = 0x2000000
OOR      = 0x40000000

SLOT = 24576
M      = 147456
M_CS   = M + 64
M_ST   = M + 1024
M_KX   = M + 4096
M_VX   = M + 11264
M_ZF   = M + 10240
LDS_SIZE = 163840
VB_LDS = 57344
RAW1A, RAW1B, RAW2 = 3*SLOT, 4*SLOT, 5*SLOT

SRD = "s[4:7]"; SRT = "s[8:11]"
SW, SGRP, SMEM, SMODE, SCB, SRB = 12, 13, 14, 15, 17, 18
T0, T1, T2, T3, T4, T5, T6, T7 = 19, 20, 21, 22, 23, 24, 25, 26
SIDX, SXCC = 27, 29
sFOc, sFOp, sFXc, sFXp = 30, 31, 32, 33
sO, sXs = 34, 35
mPAR, mB1, mDIAG, mM0, mOWN0, mOWN1, sPC, mFIRST = 36, 38, 40, 42, 44, 46, 48, 50
sCSa, sCSb, sZo, sFBp, sSTs, sLW, sKV, sZP, sHALO, sTMO, sAo, sWo = 52, 53, 54, 55, 56, 57, 58, 59, 60, 61, 62, 63
P_AX, P_AW1, P_PHI, P_AW2, P_BX, P_BW1, P_BW2, P_OUT, P_DBG, P_WS = 64, 66, 68, 70, 72, 74, 76, 78, 80, 82
sCL0, sCL2, sL8, sW2l, sW2s, sHst, sHld = 72, 73, 2, 0, 3, 16, 28
D1, D2, D4 = 64, 65, 66
mX, mEO, mEX = 68, 70, 76
sSTAMP = 84
ROTA, ROTW = 86, 94

vLW = 0; vL16, vL64, vL128 = 1, 2, 3
vA = 4; vB = 8; vW1 = 10; vW2 = 11; vFP = 12; vSTl = 13; vSTs = 14; vSTAMP = 15
RES = 16; PHI = 32; ONES = 40; MP0, MP1, MO0, MO1 = 44, 45, 46, 47
vE1, vVr, vLW3, vCPF, vKX0, vKX1, vCSa, vCSb = range(32, 40)
vXW, vE0, vTCH, vSQ, vJUNK, vCV, vFree, vKX, vGM, vZW, vSW, vSR, vG16, vOut, vZL, vVal = range(48, 64)
ACC = 64
def acc(c, i): return ACC + 16*c + 4*i
def acc2(b, i): return ACC + 8*b + 4*i
STP = 160; CSR = 168; WFV = 192; FBV = 216; CI = 220
RING, HW2, HCS = 48, 240, 248
def RS(par, k): return 24*par if k == 0 else 240 - 48*k + 24*par
MF = "v_mfma_f32_16x16x32_bf16"
def f32hex(x): return "0x%08x" % struct.unpack("<I", struct.pack("<f", x))[0]
CK = (f32hex(1.4426950408889634), f32hex(1.4426950408889634 * 32 ** -0.5))
LIM = 0x100000

class Opts:
    verbose = 0; stamps = 0; last = 3; force_slow = 0; echo_a = -1; echo_b = -1; echo_mul = 1; echo_idx = -1; g1prof = 0
    NRES = 2
    ND = 4
    LA = 3
    APRE = 3
    wrE = 150; wrL = 100; w1sE = 1; w1sL = 2; wr0 = 150; w1s0 = 1; n1pre = 6
    w2E = 300; w2L = 200; w2sE = 25; w2sL = 20
    sper = 1; s0 = 0
    g2depth = 7; g2w = 2; bpos = 12; TG = 3
    w2BE = 400; w2sBE = 24; w2BL = 400; w2sBL = 20; wrBL = 110
    bper = 60; TB = 5; LAB = 3; hpos = 5
    aper = 150; aper0 = 110; aper2 = 130; aper3 = 200; gpos = 4; dk = 6
    rw = 12
    xf = 1; xt0 = 8
    rt = 1; rtb = 1; bbar = 1; tlb = 1; apoll = 1; ksl = 0; kgate = 0; psl = 0; dtouch = 0
    outsc = 1; oall = 0; nopf = 0; xall = 0; rin = 0; lazy = 3; p2pos = 5; lv1 = 0; lv2 = 0; early = 3; epos = 0
    CPL = 22; cpf = 1; cpf2 = 24; cpf3 = 26

def gen(o):
    A = Asm2(); e = A.e
    ool = []
    ND = o.ND; AD = ND; WQ = RING + 16*AD
    assert WQ + 8*ND <= 240 - 48*o.NRES and o.LA < AD
    lay = 0
    o.CPL = min(o.CPL, 5*o.last + 7)
    def E(lst):
        for t in lst: e(t)
    def stamp(name, force=0):
        if not o.stamps: return
        if o.g1prof and name in range(2, 11) and not force: return
        idx = name + 16*lay
        if o.stamps == 2 and name != 11 and idx not in (o.echo_a, o.echo_b): return
        e(f"{'s_memtime' if o.stamps == 3 else 's_memrealtime'} s[{sSTAMP}:{sSTAMP+1}]")
        e("s_waitcnt lgkmcnt(0)")
        e(f"v_writelane_b32 v{vSTAMP}, s{sSTAMP}, {59 if name == 11 else idx}")
    def srt(p, size):
        e(f"s_mov_b32 s8, s{p}"); e(f"s_mov_b32 s9, s{p+1}"); e(f"s_mov_b32 s10, {size}"); e("s_mov_b32 s11, 0x20000")
    def mask64(r, val):
        e(f"s_mov_b32 s{r}, 0x{val & 0xffffffff:08x}"); e(f"s_mov_b32 s{r+1}, 0x{val >> 32:08x}")
    def sm(r): return f"s[{r}:{r+1}]"
    def bc(r): return (v(r & ~1, 2), r & 1)
    def pk_fma(d, x, y, z, negx=False):
        yp, ys = bc(y); zp, zs = bc(z)
        e(f"v_pk_fma_f32 {v(d,2)}, {v(x,2)}, {yp}, {zp} op_sel:[0,{ys},{zs}] op_sel_hi:[1,{ys},{zs}]" + (" neg_lo:[1,0,0] neg_hi:[1,0,0]" if negx else ""))
    def pk_mul(d, x, y):
        yp, ys = bc(y)
        e(f"v_pk_mul_f32 {v(d,2)}, {v(x,2)}, {yp} op_sel:[0,{ys}] op_sel_hi:[1,{ys}]")
    def cvt4l(d, x0, x1):
        return [f"v_cvt_pk_bf16_f32 v{d}, v{x0}, v{x0+1}", f"v_cvt_pk_bf16_f32 v{d+1}, v{x0+2}, v{x0+3}",
                f"v_cvt_pk_bf16_f32 v{d+2}, v{x1}, v{x1+1}", f"v_cvt_pk_bf16_f32 v{d+3}, v{x1+2}, v{x1+3}"]
    def cvt4(d, x0, x1): E(cvt4l(d, x0, x1))
    def wt(t): return t + (" sc1" if t.startswith("buffer_store") else "")
    def st_mode(lines):
        ls, ld = A.new("slow"), A.new("done")
        e(f"s_cmp_lg_u32 s{SMODE}, 0"); e(f"s_cbranch_scc1 {ls}")
        E(lines); A.label(ld)
        def blk():
            A.label(ls); A.fence(); E([wt(t) for t in lines]); e("s_nop 7"); e(f"s_branch {ld}")
        ool.append(blk)
    def spin(body, cond, first=None):
        l, d = A.new("spin"), A.new("spind")
        e(f"s_mov_b32 s{sTMO}, {LIM}")
        if first:
            E(body); E(first); e("s_waitcnt vmcnt(0)"); E(cond); e(f"s_cbranch_vccz {d}")
        A.label(l); E(body); e(f"s_sub_u32 s{sTMO}, s{sTMO}, 1"); e("s_waitcnt vmcnt(0)"); E(cond)
        e(f"s_cbranch_scc1 {d}"); e(f"s_cbranch_vccnz {l}"); A.label(d)
    def retry(body, cond):
        l, d = A.new("rt"), A.new("rtd")
        def blk():
            A.label(l); spin(body, cond); e(f"s_branch {d}")
        ool.append(blk)
        return [f"s_cbranch_vccnz {l}", d + ":"]
    def signal(sreg):
        e("s_mov_b64 exec, 1"); e("s_waitcnt vmcnt(0)")
        st_mode([f"buffer_store_dword v{vVal}, off, {SRD}, s{sreg}"])
        e("s_mov_b64 exec, -1")
    def poll(sreg, val, first=None, mask=None):
        cond = [f"v_cmp_gt_u32 vcc, {val}, v{FBV}"]
        if mask: cond = [f"s_mov_b64 exec, {mask}"] + cond + ["s_mov_b64 exec, -1"]
        spin([f"buffer_load_dword v{FBV}, v{vFP}, {SRD}, s{sreg} offen sc1"], cond, first)
    def handoff(sp, sc, val, mask, emask, pre, first):
        ld = f"buffer_load_dword v{FBV}, v{vFP}, {SRD}, s{sc} offen sc1"
        d = A.new("hd")
        E(pre[:o.epos]); e(ld + " ;@PE"); E(pre[o.epos:])
        e("s_mov_b64 exec, 1"); e("s_waitcnt vmcnt(1)")
        st_mode([f"buffer_store_dword v{vVal}, off, {SRD}, s{sp}"])
        e("s_mov_b64 exec, -1")
        E(first)
        e("WAITV PE"); e(f"s_mov_b64 exec, {sm(emask)}"); e(f"v_cmp_gt_u32 vcc, {val}, v{FBV}"); e("s_mov_b64 exec, -1"); e(f"s_cbranch_vccz {d}")
        A.track = False; poll(sc, val, None, mask); A.track = True
        A.label(d)
    def poll2(sreg): e(f"buffer_load_dword v{FBV}, v{vFP}, {SRD}, s{sreg} offen sc1 ;@P2")
    def poll2chk(sreg, val, mask=None):
        l = A.new("p2")
        e("WAITV P2")
        if mask: e(f"s_mov_b64 exec, {mask}")
        e(f"v_cmp_gt_u32 vcc, {val}, v{FBV}")
        if mask: e("s_mov_b64 exec, -1")
        e(f"s_cbranch_vccnz {l}"); A.label(l + "_r")
        def blk(): A.label(l); poll(sreg, val, None, mask); e(f"s_branch {l}_r")
        ool.append(blk)
    def xreduce(groups):
        for op, q in groups: e(f"v_permlane32_swap_b32 v{q[0]}, v{q[1]}"); e(f"v_permlane32_swap_b32 v{q[2]}, v{q[3]}")
        for op, q in groups: e(f"{op} v{q[0]}, v{q[0]}, v{q[1]}"); e(f"{op} v{q[2]}, v{q[2]}, v{q[3]}")
        for op, q in groups: e(f"v_permlane16_swap_b32 v{q[0]}, v{q[2]}")
        for op, q in groups: e(f"{op} v{q[1]}, v{q[0]}, v{q[2]}"); e(f"{op} v{q[2]}, v{q[0]}, v{q[2]}")
        for op, q in groups: e(f"v_permlane16_swap_b32 v{q[1]}, v{q[2]}")
        for op, q in groups: e(f"v_mov_b32 v{q[0]}, v{q[1]}"); e(f"v_mov_b32 v{q[3]}, v{q[2]}")
        for op, q in groups: e(f"v_permlane32_swap_b32 v{q[0]}, v{q[1]}"); e(f"v_permlane32_swap_b32 v{q[2]}, v{q[3]}")
    def xparts(i):
        t = 160+8*i; g0 = t+4; st = []
        for kk in range(2):
            f = v(RES+8*i+4*kk, 4)
            st += [[f"{MF} {v(g0,4)}, {f}, {f}, {'0' if kk == 0 else v(g0,4)}"],
                   [f"buffer_store_dwordx4 {f}, v{vB+i}, {SRD}, s{sXs} offen offset:{kk*1024}"],
                   [f"{MF} {v(t,4)}, {v(ONES,4)}, {f}, {'0' if kk == 0 else v(t,4)}"]]
        return st, [[f"v_cndmask_b32 v{g0}, v{g0}, v{g0+1}, {sm(mPAR)}", f"v_cndmask_b32 v{g0+2}, v{g0+2}, v{g0+3}, {sm(mPAR)}"],
                    [f"v_cndmask_b32 v{t+1}, v{g0}, v{g0+2}, {sm(mB1)}"],
                    [f"s_mov_b64 exec, {sm(mDIAG)}", f"buffer_store_dwordx2 {v(t,2)}, v{vSTs}, {SRD}, s{sSTs} offen offset:{i*128}", "s_mov_b64 exec, -1"]]
    def xtile(through, blocks=(0, 1)):
        ps = [xparts(i) for i in blocks]
        st = sum((sum(p[0], []) for p in ps), []) + sum((sum(p[1], []) for p in ps), [])
        if through: E([wt(t) for t in st])
        else: st_mode(st)
    def w1_piece(par, stage, i):
        r = []; slot = (stage + 1) % 6
        if i % 4 == 0: r += [f"s_add_u32 m0, s{sLW}, {slot*SLOT + i*1024}", f"s_add_u32 s{sWo}, s{ROTW+stage}, {WS_W1[par] + i*1024}"]
        return r + [f"buffer_load_dwordx4 v{vW1}, {SRD}, s{sWo} offen offset:{(i%4)*1024} lds ;@W{stage}"]
    def w2_piece(par, part, i):
        r = []
        if i % 4 == 0:
            if part < 5:
                lb, sb = ((3+part)*SLOT, 57344 + part*SLOT) if part < 3 else ((part-3)*SLOT, (part-3)*SLOT)
                r += [f"s_add_u32 m0, s{sLW}, {lb + i*1024}", f"s_mov_b32 s{sWo}, {WS_W2[par] + sb + i*1024}"]
            else: r += [f"s_add_u32 m0, s{sL8}, {2*SLOT}", f"s_sub_u32 s{sWo}, {WS_W2[par] + 2*SLOT}, s{sW2l}"]
        return r + [f"buffer_load_dwordx4 v{vW2}, {SRD}, s{sWo} offen offset:{(i%4)*1024} lds"]
    def ldsrd(dst, addr):
        base = {0: vL16, 1: vL64, 2: vL128}[addr >> 16]
        return f"ds_read_b128 {dst}, v{base} offset:{addr & 0xffff}"
    def w1st(R, blk, sa, sb): return f"buffer_store_dwordx4 {R}, v{vW1}, {SRD}, s{sa if blk < 4 else sb} offen offset:{(blk%4)*1024} sc1"
    def csst(C, sreg): return ["s_mov_b32 exec_lo, 0x003f003f", "s_mov_b32 exec_hi, 0x003f003f", f"buffer_store_dwordx4 {C}, v{vOut}, {SRD}, s{sreg} offen sc1", "s_mov_b64 exec, -1"]
    def fb_body(k): return [f"s_mov_b32 s{T1}, {WS_FLAGB + 1024*k}", f"buffer_load_dwordx4 {v(FBV,4)}, v{vL16}, {SRD}, s{T1} offen sc1"]
    fb_cond = [f"v_and_b32 v{FBV}, v{FBV}, v{FBV+1}", f"v_and_b32 v{FBV+2}, v{FBV+2}, v{FBV+3}", f"v_and_b32 v{FBV}, v{FBV}, v{FBV+2}", f"v_cmp_ne_u32 vcc, 1, v{FBV}"]
    def fb_set(k): return ["s_mov_b64 exec, 1", f"buffer_store_dword v{vVal}, off, {SRD}, s{sFBp} offset:{1024*k} sc1", "s_mov_b64 exec, -1"]
    def xw(r, kb, ad=vXW): return f"ds_write2st64_b64 v{ad}, {v(r,2)}, {v(r+2,2)} offset0:{2*kb} offset1:{2*kb+1}"

    A.raw(f"; @launch grid=(256,1,1) block=(256,1,1) lds={LDS_SIZE}")
    A.raw('.amdgcn_target "amdgcn-amd-amdhsa--gfx950"'); A.raw(".text")
    A.raw(f".globl {KNAME}"); A.raw(".p2align 8"); A.raw(f".type {KNAME},@function"); A.label(KNAME)
    if o.stamps: e("s_memrealtime s[86:87]")
    e("s_cmp_ge_u32 s2, 256"); e("s_cbranch_scc1 L_exit")
    e(f"s_getpc_b64 {sm(sPC)}"); A.label("L_pc")
    e(f"s_lshr_b32 s{T0}, s2, 3"); e(f"s_mulk_i32 s{T0}, {o.CPL*128}"); e(f"v_min_u32 v252, {o.CPL-1}, v0"); e(f"v_lshl_add_u32 v252, v252, 7, s{T0}")
    e(f"global_load_dword v{vJUNK}, v252, {sm(sPC)}")
    e("s_load_dwordx16 s[64:79], s[0:1], 0"); e("s_load_dwordx4 s[80:83], s[0:1], 64")
    e("v_lshrrev_b32 v1, 6, v0"); e("v_and_b32 v254, 63, v0"); e(f"v_readfirstlane_b32 s{SW}, v1")
    if o.force_slow: e(f"s_lshr_b32 s{SGRP}, s2, 5"); e(f"s_and_b32 s{SMEM}, s2, 31")
    else: e(f"s_and_b32 s{SGRP}, s2, 7"); e(f"s_lshr_b32 s{SMEM}, s2, 3")
    if o.stamps: e(f"v_mov_b32 v{vSTAMP}, 0"); e("s_waitcnt lgkmcnt(0)"); e(f"v_writelane_b32 v{vSTAMP}, s86, 12"); e(f"v_writelane_b32 v{vSTAMP}, s{sPC}, 63")
    VM = 215
    e(f"s_lshl_b32 s{SIDX}, s{SGRP}, 5"); e(f"s_add_u32 s{SIDX}, s{SIDX}, s{SMEM}")
    e(f"s_lshr_b32 s{SRB}, s{SIDX}, 4"); e(f"s_and_b32 s{SCB}, s{SIDX}, 15")
    e(f"s_mul_i32 s{sLW}, s{SW}, 6144")
    e("v_lshrrev_b32 v203, 3, v254"); e("v_and_b32 v204, 7, v254"); e("v_lshlrev_b32 v204, 4, v204"); e("v_lshl_add_u32 v210, v203, 11, v204")
    e("v_lshrrev_b32 v200, 2, v254"); e("v_and_b32 v201, 3, v254")
    e("v_mul_u32_u24 v202, 6144, v200"); e("v_lshl_add_u32 v202, v201, 4, v202")
    e(f"s_lshl_b32 s{T2}, s{SRB}, 2"); e(f"s_add_u32 s{T2}, s{T2}, s{SW}"); e(f"s_lshl_b32 s{T2}, s{T2}, 16")
    e(f"s_lshl_b32 s{T4}, s{SCB}, 7"); e(f"s_add_u32 s{T3}, s{T2}, s{T4}")
    e(f"s_lshl_b32 s{T6}, s{SGRP}, 2"); e(f"s_add_u32 s{T6}, s{T6}, s{SW}")
    e(f"s_mul_i32 s{T5}, s{T6}, {32*6144}"); e(f"s_lshl_b32 s{T4}, s{SMEM}, 6"); e(f"s_add_u32 s{T5}, s{T5}, s{T4}")
    e(f"v_lshlrev_b32 v{vL16}, 4, v254"); e(f"v_and_b32 v{vG16}, 48, v254"); e(f"v_and_b32 v{VM}, 15, v254")
    e(f"s_lshl_b32 s{T1}, s{SCB}, 11"); e(f"s_add_u32 s{sXs}, s{T1}, {WS_X}")
    e(f"s_mul_i32 s{sAo}, s{SMEM}, 196608"); e(f"s_add_u32 s{sAo}, s{sAo}, s{sLW}"); e(f"s_mul_i32 s{ROTW}, s{SGRP}, {SLOT}")
    e("v_lshlrev_b32 v249, 7, v254")
    e(f"s_lshl_b32 s{T0}, s{SIDX}, 2"); e(f"s_add_u32 s{T0}, s{T0}, s{SW}"); e(f"s_mul_i32 s{sWo}, s{T0}, 6144")
    e("s_waitcnt lgkmcnt(0)")
    e(f"s_mov_b32 s4, s{P_WS}"); e(f"s_mov_b32 s5, s{P_WS+1}"); e(f"s_mov_b32 s6, {WS_SIZE}"); e("s_mov_b32 s7, 0x20000")
    e(f"s_or_b32 s{T0}, s{SMEM}, s{SW}"); e(f"s_cmp_lg_u32 s{T0}, 0"); e("s_cbranch_scc1 L_p0a")
    A.track = False
    for r in range(4): e(f"v_mov_b32 v{204+r}, 0")
    e(f"s_lshl_b32 s{T0}, s{SGRP}, 12")
    for j in range(4): e(f"buffer_store_dwordx4 v[204:207], v{vL16}, {SRD}, s{T0} offen offset:{j*1024} sc1")
    e(f"s_lshl_b32 s{T0}, s{SGRP}, 7"); e(f"s_add_u32 s{T0}, s{T0}, {WS_FLAGB}")
    e("s_mov_b64 exec, 0xff")
    for j in range(2): e(f"buffer_store_dwordx4 v[204:207], v{vL16}, {SRD}, s{T0} offen offset:{j*1024} sc1")
    e("s_mov_b64 exec, -1")
    A.track = True
    A.label("L_p0a")
    n0 = len(A.vq)
    def rowtouch(p):
        srt(p, 0x600000)
        e("s_mov_b32 exec_hi, 0xffff"); e(f"buffer_load_dword v{vJUNK}, v249, {SRT}, s{sWo} offen"); e("s_mov_b64 exec, -1")
    if o.rt == 1: rowtouch(P_AW1)
    srt(P_AX, 0x400000)
    for i in range(4):
        e(f"s_add_u32 m0, s{sLW}, {i*1024}"); e(f"s_add_u32 s{T0}, s{T3}, {i*16384}")
        e(f"buffer_load_dwordx4 v210, {SRT}, s{T0} offen lds ;@x")
    if o.rt == 2: rowtouch(P_AW1)
    def touch(p, *calc):
        if o.tlb: E(list(calc)); e(f"s_load_dword s{sTMO}, s[{p}:{p+1}], s{T0}")
    if o.dtouch: touch(P_DBG, f"s_movk_i32 s{T0}, 128")
    touch(P_WS, f"s_add_u32 s{T0}, s{T2}, s{sXs}")
    touch(P_WS, f"s_add_u32 s{T0}, s{sAo}, s{ROTW}", f"s_add_u32 s{T0}, s{T0}, {WS_W1[0]}")
    touch(P_WS, f"s_mov_b32 s{T0}, 0x1f0000")
    touch(P_BW1, f"s_mov_b32 s{T0}, s{T5}"); touch(P_AW2, f"s_lshl_b32 s{T0}, s{SRB}, 17"); touch(P_BW2)
    srt(P_PHI, 0x10000)
    e(f"s_add_u32 m0, s{sLW}, 4096"); e(f"s_lshl_b32 s{T0}, s{SMEM}, 11")
    for j in range(2): e(f"buffer_load_dwordx4 v{vL16}, {SRT}, s{T0} offen offset:{j*1024} lds ;@phi")
    def raw1(p, ldsb, tag):
        srt(p, 0x600000)
        for seg in range(3):
            for hf in range(2):
                e(f"s_add_u32 m0, s{sLW}, {ldsb + seg*2048 + hf*1024}"); e(f"s_add_u32 s{T0}, s{T5}, {seg*2048 + hf*16*6144}")
                e(f"buffer_load_dwordx4 v202, {SRT}, s{T0} offen lds ;@{tag}")
    raw1(P_AW1, RAW1A, "ra")
    e(f"s_or_b32 s{T0}, s{SMEM}, s{SW}"); e(f"s_cmp_lg_u32 s{T0}, 0"); e("s_cbranch_scc1 L_p0b")
    A.track = False
    srt(P_DBG, 256); e("v_mov_b32 v204, 1"); e(f"s_lshl_b32 s{T0}, s{SGRP}, {4 if o.dtouch else 5}")
    e(f"s_waitcnt vmcnt({len(A.vq) - n0})")
    e("s_mov_b64 exec, 1"); e(f"buffer_store_dword v204, off, {SRT}, s{T0} sc1"); e("s_mov_b64 exec, -1")
    A.track = True
    A.label("L_p0b")
    e(f"v_lshl_add_u32 v214, v{VM}, 7, v{vG16}"); e(f"v_add_u32 v214, s{sLW}, v214")
    e(f"v_add_u32 v{vB}, s{T2}, v{vL16}"); e(f"v_add_u32 v{vB+1}, 0x8000, v{vB}")
    e(f"s_lshr_b32 s{T2}, s{T2}, 8"); e(f"v_lshl_add_u32 v{vSTs}, v{VM}, 3, s{T2}")
    e(f"s_lshl_b32 s{T0}, s{SCB}, 14"); e(f"s_add_u32 s{sSTs}, s{T0}, {WS_ST}")
    mask64(mPAR, 0xAAAAAAAAAAAAAAAA); mask64(mB1, 0xCCCCCCCCCCCCCCCC); mask64(mDIAG, 0xF0000F0000F0000F)
    for r in range(4): e(f"v_mov_b32 v{ONES+r}, 0x3f803f80")
    stamp(28)
    e("WAITV x")
    for i in range(2):
        for kk in range(2): e(f"ds_read_b128 {v(RES+8*i+4*kk,4)}, v214 offset:{i*2048 + kk*64}")
    e(f"v_add_u32 v{vW1}, s{sAo}, v{vL16}"); e(f"v_add_u32 v{vLW}, s{sLW}, v{vL16}")
    e("v_and_b32 v209, 3, v200"); e(f"v_lshrrev_b32 v203, 1, v{vG16}"); e("v_add_u32 v209, v209, v203")
    e("v_lshlrev_b32 v203, 6, v209"); e("v_lshl_add_u32 v205, v201, 3, v203"); e(f"v_add_u32 v205, s{sLW}, v205")
    e("v_lshl_add_u32 v206, v201, 4, v203"); e(f"s_add_u32 s{T1}, s{sLW}, {RAW1A}"); e(f"v_add_u32 v206, s{T1}, v206")
    e(f"v_lshrrev_b32 v203, 2, v{VM}"); e("v_lshl_add_u32 v203, v203, 3, v201"); e(f"v_lshl_add_u32 v203, v203, 6, v{vG16}"); e(f"v_add_u32 v208, s{T1}, v203")
    e(f"v_lshl_add_u32 v{vOut}, v{VM}, 11, v{vG16}")
    e("s_waitcnt lgkmcnt(0)")
    stamp(29)
    if o.rtb == 1: rowtouch(P_BW1)
    xtile(True)
    if o.rtb == 2: rowtouch(P_BW1)
    for blk in range(6):
        mask64(T1, 0x0001000100010001 << blk)
        for r in range(4): e(f"v_cndmask_b32 v{96+4*blk+r}, 0, v{ONES}, {sm(T1)}")
    e(f"s_add_u32 s{T2}, s{ROTW}, {WS_W1[0]}"); e(f"s_add_u32 s{T4}, s{T2}, 4096")
    e(f"s_lshl_b32 s{T0}, s{T6}, 6"); e(f"s_mul_i32 s{T1}, s{SMEM}, 12288"); e(f"s_add_u32 s{T0}, s{T0}, s{T1}"); e(f"s_add_u32 s{sCL0}, s{T0}, {WS_CS}")
    e("WAITV phi")
    for fb in range(2):
        for t in range(2): e(f"ds_read_b64_tr_b16 {v(PHI+4*fb+2*t,2)}, v205 offset:{4096 + fb*32 + t*256}")
    e("WAITV ra")
    stamp(13)
    RA, RB = RS(0, 0), RS(1, 0)
    for seg in range(2):
        for kb in range(2): e(f"ds_read_b128 {v(120+8*seg+4*kb,4)}, v208 offset:{seg*2048 + kb*256} ;@s{seg}")
    for blk in (4, 5):
        for t in range(2): e(f"ds_read_b64_tr_b16 {a(RA+4*blk+2*t,2)}, v206 offset:{4096 + t*256 + (blk&1)*8}")
    for seg in range(2):
        e(f"WAITL s{seg}")
        for fb in range(2):
            for kb in range(2): e(f"{MF} {v(160+16*seg+8*fb+4*kb,4)}, {v(120+8*seg+4*kb,4)}, {v(PHI+4*fb,4)}, 0")
    e("s_waitcnt lgkmcnt(0)")
    for blk in (4, 5):
        e(w1st(a(RA+4*blk,4), blk, T2, T4))
        e(f"{MF} v[64:67], {a(RA+4*blk,4)}, {v(96+4*blk,4)}, {'0' if blk == 4 else 'v[64:67]'}")
    for blk in range(4):
        cvt4(136+4*blk, 160+8*blk, 164+8*blk)
        e(w1st(v(136+4*blk,4), blk, T2, T4))
        e(f"{MF} v[64:67], {v(136+4*blk,4)}, {v(96+4*blk,4)}, v[64:67]")
    for r in range(16): e(f"v_accvgpr_write_b32 a{RA+r}, v{136+r}")
    E(csst(v(64,4), sCL0))
    srt(P_DBG, 256)
    e("v_and_b32 v253, 7, v254"); e(f"v_lshlrev_b32 v253, {4 if o.dtouch else 5}, v253"); e(f"s_cmp_eq_u32 s{SW}, 0"); e(f"s_cselect_b32 s{T0}, 0, {OOR}")
    e(f"buffer_load_dword v212, v253, {SRT}, s{T0} offen sc1 ;@go")
    if o.bbar: e("s_barrier")
    if o.rtb == 3: rowtouch(P_BW1)
    e(f"s_lshl_b32 s{T0}, s{SRB}, 1"); e(f"s_and_b32 s{T3}, s{SW}, 1"); e(f"s_add_u32 s{T0}, s{T0}, s{T3}")
    e(f"s_lshl_b32 s{T1}, s{SCB}, 1"); e(f"s_lshr_b32 s{T4}, s{SW}, 1"); e(f"s_add_u32 s{T1}, s{T1}, s{T4}"); e(f"s_lshl_b32 s{T1}, s{T1}, 6")
    e(f"s_lshl_b32 s{sW2s}, s{T0}, 12"); e(f"s_lshl_b32 s{T0}, s{T0}, 16"); e(f"s_add_u32 s{T0}, s{T0}, s{T1}"); e(f"s_add_u32 s{T1}, s{T0}, 0x8000")
    e("v_lshlrev_b32 v203, 11, v200"); e("v_lshl_add_u32 v207, v201, 4, v203")
    for wt_, p in enumerate((P_AW2, P_BW2)):
        srt(p, 0x200000)
        for i in range(2):
            e(f"s_add_u32 m0, s{sLW}, {RAW2 + wt_*2048 + i*1024}")
            e(f"buffer_load_dwordx4 v207, {SRT}, s{T0 + i} offen lds")
    for blk in range(6): e(f"ds_write_b128 v{vLW}, {a(RA+4*blk,4)} offset:{SLOT + blk*1024}")
    stamp(30)
    e(f"s_getreg_b32 s{SXCC}, hwreg(HW_REG_XCC_ID, 0, 4)"); e(f"s_or_b32 s{SXCC}, s{SXCC}, 0x100")
    e(f"v_mov_b32 v{vVal}, s{SXCC}")
    e(f"s_lshl_b32 s{T0}, s{T4}, 11"); e(f"s_add_u32 s{sW2s}, s{sW2s}, s{T0}"); e(f"s_lshl_b32 s{T0}, s{SCB}, 17")
    e(f"s_add_u32 s{sW2s}, s{sW2s}, s{T0}"); e(f"s_add_u32 s{sW2s}, s{sW2s}, {WS_W2[0]}")
    e(f"s_lshl_b32 s{T1}, s{SMEM}, 15"); e(f"s_lshl_b32 s{T2}, s{SW}, 10"); e(f"s_add_u32 s{T1}, s{T1}, s{T2}"); e(f"s_add_u32 s{sKV}, s{T1}, {WS_KVP - WS_X + (1<<32)}")
    e(f"s_lshr_b32 s{T1}, s{T1}, 4"); e(f"s_add_u32 s{sZP}, s{T1}, {WS_ZP}")
    for s_ in range(8):
        e(f"s_add_u32 s{T1}, s{SGRP}, {s_}"); e(f"s_and_b32 s{T1}, s{T1}, 7")
        e(f"s_mul_i32 s{ROTW+s_}, s{T1}, {SLOT}"); e(f"s_lshl_b32 s{T1}, s{T1}, 12"); e(f"s_add_u32 s{ROTA+s_}, s{T1}, {WS_X}")
    e(f"s_lshl_b32 s{T1}, s{SIDX}, 11"); e(f"s_add_u32 s{sHALO}, s{T1}, {WS_HALO}")
    e(f"s_lshl_b32 s{T1}, s{SMEM}, 10"); e(f"s_add_u32 s{sO}, s{T1}, {WS_O}")
    touch(P_WS, f"s_mov_b32 s{T0}, s{sW2s}")
    touch(P_WS, f"s_add_u32 s{T0}, s{sKV}, s{ROTA}")
    touch(P_WS, f"s_add_u32 s{T0}, s{sW2s}, {WS_W2[1] - WS_W2[0]}")
    touch(P_WS, f"s_add_u32 s{T0}, s{sAo}, s{ROTW}", f"s_add_u32 s{T0}, s{T0}, {WS_W1[1]}")
    touch(P_WS, f"s_mov_b32 s{T0}, s{sHALO}")
    touch(P_WS, f"s_lshl_b32 s{T0}, s{T6}, 17", f"s_add_u32 s{T0}, s{T0}, s{sO}")
    touch(P_OUT, f"s_lshl_b32 s{T0}, s{SRB}, 18", f"s_lshl_b32 s{T1}, s{SCB}, 7", f"s_add_u32 s{T0}, s{T0}, s{T1}")
    e(f"s_lshl_b32 s{T0}, s{SGRP}, 5"); e(f"v_add_u32 v203, s{T0}, v254")
    e("v_and_b32 v204, 7, v254"); e(f"v_lshl_add_u32 v204, v204, 5, s{SMEM}")
    mask64(T1, 0x00000000FFFFFFFF); e(f"v_cndmask_b32 v211, v204, v203, {sm(T1)}"); e("v_lshlrev_b32 v211, 7, v211")
    e(f"s_cmp_eq_u32 s{SW}, 0"); e(f"s_cselect_b32 s{T0}, 1, 0")
    e("WAITV go")
    stamp(31)
    e(f"v_cmp_ne_u32 vcc, s{T0}, v212"); e("s_cbranch_vccnz L_goslow")
    A.label("L_gook")
    def goslow():
        A.label("L_goslow"); srt(P_DBG, 256); e("s_waitcnt lgkmcnt(0)")
        spin([f"buffer_load_dword v212, v253, {SRT}, 0 offen sc1"], ["v_cmp_ne_u32 vcc, 1, v212"]); e("s_branch L_gook")
    ool.append(goslow)
    e(f"s_lshl_b32 s{T0}, s{SIDX}, 7"); e(f"s_cmp_eq_u32 s{SW}, 0"); e(f"s_cselect_b32 s{T0}, s{T0}, {OOR}")
    e("s_barrier")
    e("s_mov_b64 exec, 1"); e(f"buffer_{'atomic_or' if o.apoll else 'store_dword'} v{vVal}, off, {SRD}, s{T0} sc1"); e("s_mov_b64 exec, -1")
    stamp(14)
    raw1(P_BW1, RAW1B, "rb")
    mask64(mM0, 0x0001000100010001)
    mask64(mOWN0, sum(1 << l for l in range(64) if 4*(l >> 4) + (l & 1) <= (l & 15)))
    mask64(mOWN1, sum(1 << l for l in range(64) if 4*(l >> 4) + 2 + (l & 1) <= (l & 15)))
    e(f"s_lshl_b32 s{T1}, s{T6}, 7"); e(f"s_add_u32 s{sFXc}, s{T1}, {WS_FLAGX}")
    e(f"s_lshl_b32 s{T2}, s{SMEM}, 2"); e(f"s_add_u32 s{T1}, s{T1}, s{T2}"); e(f"s_add_u32 s{sFOp}, s{T1}, {WS_FLAGO}")
    e(f"s_lshl_b32 s{T1}, s{SRB}, 1"); e(f"s_add_u32 s{T1}, s{T1}, s{T4}"); e(f"s_lshl_b32 s{T1}, s{T1}, 7")
    e(f"s_add_u32 s{sFOc}, s{T1}, {WS_FLAGO}")
    e(f"s_lshl_b32 s{T2}, s{SCB}, 3"); e(f"s_lshl_b32 s{T0}, s{T3}, 2")
    e(f"s_add_u32 s{T1}, s{T1}, s{T2}"); e(f"s_add_u32 s{T1}, s{T1}, s{T0}"); e(f"s_add_u32 s{sFXp}, s{T1}, {WS_FLAGX}")
    e(f"s_lshl_b32 s{T0}, s{SGRP}, 8"); e(f"s_add_u32 s{sZo}, s{T0}, s{sZP}")
    e(f"s_lshl_b32 s{T1}, s{T3}, 10"); e(f"s_lshl_b32 s{T2}, s{T4}, 19")
    e(f"s_add_u32 s{T1}, s{T1}, s{T2}"); e(f"s_add_u32 s{sCL2}, s{T1}, s{sHALO}")
    e(f"s_lshl_b32 s{T1}, s{SIDX}, 2"); e(f"s_add_u32 s{T1}, s{T1}, {WS_FLAGB}"); e(f"s_cmp_eq_u32 s{SW}, 0"); e(f"s_cselect_b32 s{sFBp}, s{T1}, {OOR}")
    e(f"s_cmp_eq_u32 s{SW}, 3"); e(f"s_cselect_b32 s{sHst}, s{sHALO}, {OOR}")
    e(f"s_sub_u32 s{T1}, s{sHALO}, 0x10000"); e(f"s_cmp_eq_u32 s{SW}, 0"); e(f"s_cselect_b32 s{T1}, s{T1}, {OOR}")
    e(f"s_cmp_eq_u32 s{SGRP}, 0"); e(f"s_cselect_b32 s{sHld}, {OOR}, s{T1}")
    e(f"s_lshl_b32 s{T0}, s{SGRP}, 2"); e(f"s_lshl_b32 s{mX}, 15, s{T0}"); e(f"s_mov_b32 s{mX+1}, 0")
    e(f"s_sub_u32 s{T0}, s{sFOp}, s{sFOc}"); e(f"s_lshr_b32 s{T1}, s{T0}, 2"); e(f"s_lshl_b32 s{T1}, 1, s{T1}"); e(f"s_cmp_lt_u32 s{T0}, 128"); e(f"s_cselect_b32 s{T1}, s{T1}, 0")
    e(f"s_andn2_b32 s{mEO}, {(1 << (o.g2depth - 1)) - 1 if o.lazy & 2 else -1}, s{T1}"); e(f"s_mov_b32 s{mEO+1}, 0")
    e(f"s_sub_u32 s{T0}, s{sFXp}, s{sFXc}"); e(f"s_lshr_b32 s{T1}, s{T0}, 2"); e(f"s_lshl_b32 s{T1}, 1, s{T1}"); e(f"s_cmp_lt_u32 s{T0}, 128"); e(f"s_cselect_b32 s{T1}, s{T1}, 0")
    e(f"s_andn2_b32 s{mEX}, {'s%d' % mX if o.lazy & 1 else -1}, s{T1}"); e(f"s_mov_b32 s{mEX+1}, 0")
    e(f"s_lshl_b32 s{sL8}, s{SW}, 11"); e(f"s_lshl_b32 s{sW2l}, s{SW}, 12")
    e(f"s_or_b32 s{T0}, s{SGRP}, s{SW}"); e(f"s_cmp_eq_u32 s{T0}, 0"); e(f"s_cselect_b64 {sm(mFIRST)}, -1, 0")
    e(f"v_add_u32 v{vL64}, 0x10000, v{vL16}"); e(f"v_add_u32 v{vL128}, 0x20000, v{vL16}"); e(f"v_add_u32 v{vLW3}, {(3-o.nopf)*SLOT}, v{vLW}")
    e(f"v_and_b32 v{vFP}, 31, v254"); e(f"v_lshlrev_b32 v{vFP}, 2, v{vFP}")
    e(f"s_lshl_b32 s{T1}, s{T6}, 17"); e(f"v_add_u32 v{vA}, s{T1}, v{vL16}")
    for i in range(1, 4): e(f"v_add_u32 v{vA+i}, {i*0x8000}, v{vA}")
    e(f"s_lshl_b32 s{T1}, s{T6}, 9"); e("v_lshrrev_b32 v213, 5, v254"); e(f"v_lshl_add_u32 v{vSTl}, v213, 17, s{T1}"); e(f"v_lshl_add_u32 v{vSTl}, v{vFP}, 2, v{vSTl}")
    e(f"s_lshl_b32 s{T1}, s{SCB}, 17"); e(f"s_add_u32 s{T1}, s{T1}, s{sLW}"); e(f"v_add_u32 v{vW2}, s{T1}, v{vL16}")
    e("v_lshrrev_b32 v203, 4, v254"); e("v_xor_b32 v204, v203, v201"); e("v_lshlrev_b32 v204, 3, v204"); e("v_lshl_add_u32 v208, v200, 5, v204")
    e(f"s_lshl_b32 s{T2}, s{SW}, 12")
    e(f"v_lshrrev_b32 v204, 2, v{VM}"); e("v_xor_b32 v203, v203, v204"); e("v_lshlrev_b32 v203, 3, v203")
    e(f"v_lshl_add_u32 v203, v{VM}, 5, v203"); e(f"v_add_u32 v{vXW}, s{T2}, v203")
    e(f"s_lshl_b32 s{T0}, s{T4}, 14"); e(f"s_lshl_b32 s{T1}, s{T3}, 9"); e(f"s_add_u32 s{T2}, s{T0}, s{T1}"); e(f"v_add_u32 v{vE0}, s{T2}, v208")
    e(f"v_xor_b32 v{vE1}, 512, v{vE0}"); e(f"s_add_u32 s{T1}, s{T1}, {VB_LDS}"); e(f"v_add_u32 v{vVr}, s{T1}, v208")
    e(f"s_lshl_b32 s{T1}, s{T3}, 3")
    e(f"v_add_u32 v{vGM}, {M}, v{vG16}")
    e(f"s_lshl_b32 s{T0}, s{T4}, 6"); e(f"s_add_u32 s{T0}, s{T0}, s{T1}"); e(f"v_add_u32 v{vZW}, s{T0}, v{vGM}")
    e(f"s_lshl_b32 s{T0}, s{SW}, 10"); e(f"s_add_u32 s{T0}, s{T0}, {M_KX}"); e(f"v_add_u32 v{vKX}, s{T0}, v{vL16}")
    e(f"v_add_u32 v{vKX0}, s{T1}, v{vKX}"); e(f"v_xor_b32 v{vKX1}, 8, v{vKX0}")
    e(f"s_lshl_b32 s{T0}, s{SW}, 9"); e(f"s_add_u32 s{T0}, s{T0}, {M_ST}")
    e(f"v_lshl_add_u32 v203, v213, 2, s{T0}"); e(f"v_lshl_add_u32 v{vSW}, v{vFP}, 1, v203"); e(f"v_lshl_add_u32 v{vSR}, v{VM}, 2, s{T0}")
    e(f"v_add_u32 v{vSQ}, s{T0}, v{vG16}"); e(f"v_lshlrev_b32 v203, 2, v{VM}"); e(f"v_add_u32 v{vCV}, {M_CS + 384}, v203")
    e(f"v_and_b32 v203, 7, v{VM}"); e(f"v_lshl_add_u32 v{vZL}, v203, 8, v{vG16}")
    e("v_mov_b32 v203, 0xffff"); e("v_mov_b32 v204, 0xffff0000"); e(f"v_cndmask_b32 v203, v203, v204, {sm(mPAR)}")
    e(f"v_cndmask_b32 v{MO0}, 0, v203, {sm(mOWN0)}"); e(f"v_cndmask_b32 v{MO1}, 0, v203, {sm(mOWN1)}")
    e(f"v_xor_b32 v{MP0}, v203, v{MO0}"); e(f"v_xor_b32 v{MP1}, v203, v{MO1}")
    e(f"s_add_u32 s{T2}, s{SW}, 4"); e(f"s_min_u32 s{T2}, s{T2}, 5"); e(f"s_mul_i32 s{T0}, s{SMEM}, 12288"); e(f"s_add_u32 s{T0}, s{T0}, {WS_CS}")
    e(f"s_lshl_b32 s{T1}, s{SW}, 11"); e(f"s_add_u32 s{sCSa}, s{T0}, s{T1}"); e(f"s_lshl_b32 s{T1}, s{T2}, 11"); e(f"s_add_u32 s{sCSb}, s{T0}, s{T1}")
    e("v_bfe_u32 v203, v254, 4, 1"); e("v_lshlrev_b32 v203, 3, v203"); e("v_lshl_add_u32 v203, v213, 2, v203"); e("v_lshl_add_u32 v203, v201, 4, v203"); e(f"v_add_u32 v203, {M_CS}, v203")
    e(f"s_lshl_b32 s{T1}, s{SW}, 6"); e(f"v_add_u32 v{vCSa}, s{T1}, v203"); e(f"s_lshl_b32 s{T1}, s{T2}, 6"); e(f"v_add_u32 v{vCSb}, s{T1}, v203")
    e(f"s_lshl_b32 s{T0}, s{SMEM}, 2"); e(f"s_add_u32 s{T0}, s{T0}, s{SW}"); e(f"s_lshl_b32 s{T2}, s{T0}, 7"); e(f"v_mov_b32 v{vCPF}, s{T2}")
    e(f"s_lshr_b32 s{T1}, s{T0}, 3"); e(f"s_and_b32 s{T0}, s{T0}, 7")
    e(f"s_lshl_b32 s{T2}, s{SGRP}, 4"); e(f"s_add_u32 s{T1}, s{T1}, s{T2}"); e(f"s_lshl_b32 s{T1}, s{T1}, 15"); e(f"s_lshl_b32 s{T0}, s{T0}, 9"); e(f"s_add_u32 s{T0}, s{T0}, s{T1}")
    e(f"v_lshl_add_u32 v{vTCH}, v{vG16}, 3, s{T0}")
    for r in range(4): e(f"v_accvgpr_write_b32 a{252+r}, -1")
    e(f"v_mov_b32 v{vVal}, 0"); e(f"s_add_u32 s{T0}, s{sKV}, s{ROTA}")
    e(f"buffer_store_dwordx4 a[252:255], v{vL16}, {SRD}, s{T0} offen sc1")
    e(f"s_mov_b64 exec, {sm(mM0)}"); e(f"buffer_store_dwordx4 a[252:255], v{vG16}, {SRD}, s{sZo} offen sc1")
    e("s_mov_b64 exec, 1"); e(f"buffer_store_dword v{vVal}, off, {SRD}, s{sFOp} sc1"); e(f"buffer_store_dword v{vVal}, off, {SRD}, s{sFXp} sc1"); e("s_mov_b64 exec, -1")
    e(f"s_cmp_eq_u32 s{SW}, 0"); e(f"s_cselect_b32 s{T5}, 0, {OOR}")
    e("WAITV rb")
    stamp(44)
    pl = [f"buffer_load_dword v212, v211, {SRD}, s{T5} offen sc1"]
    if o.apoll: pl = ["v_mov_b32 v212, -1", "s_mov_b32 exec_hi, 0xff", "v_mov_b32 v212, 0", f"buffer_atomic_or v212, v211, {SRD}, s{T5} offen sc0 sc1", "s_mov_b64 exec, -1"]
    E([t + (" ;@poll" if t.startswith("buffer") else "") for t in pl])
    for wt_ in range(2):
        for b_ in range(2):
            for t in range(2):
                d_ = v(224+4*b_+2*t, 2) if wt_ == 0 else a(HW2+4*b_+2*t, 2)
                e(f"ds_read_b64_tr_b16 {d_}, v206 offset:{2*SLOT + wt_*2048 + t*256 + b_*8}")
    e("s_waitcnt lgkmcnt(0)")
    for b_ in range(2): e(f"buffer_store_dwordx4 {v(224+4*b_,4)}, v{vL16}, {SRD}, s{sW2s} offen offset:{b_*1024} sc1 ;@b1")
    for blk in range(6):
        for t in range(2): e(f"ds_read_b64_tr_b16 {a(RB+4*blk+2*t,2)}, v206 offset:{SLOT + (blk>>1)*2048 + t*256 + (blk&1)*8} ;@r{blk}")
    for blk in range(6):
        e(f"WAITL r{blk}")
        e(f"{MF} {a(HCS,4)}, {a(RB+4*blk,4)}, {v(96+4*blk,4)}, {'0' if blk == 0 else a(HCS,4)}")
    e(f"v_mov_b32 v{vVal}, 1")
    stamp(45)
    e("WAITV poll")
    e(f"s_cmp_lg_u32 s{SW}, 0"); e("s_cbranch_scc1 L_faok")
    A.track = False
    e("v_cmp_eq_u32 vcc, 0, v212"); e("s_cbranch_vccz L_fad")
    spin(([f"s_sleep {o.psl}"] if o.psl else []) + pl, ["v_cmp_eq_u32 vcc, 0, v212"])
    A.label("L_fad")
    e(f"v_cmp_ne_u32 {sm(T1)}, s{SXCC}, v212"); e(f"v_mov_b32 v212, s{T1}")
    e(f"ds_write_b32 v{vGM}, v212"); e("s_waitcnt lgkmcnt(0)")
    A.track = True
    A.label("L_faok")
    e("s_barrier")
    stamp(15)
    e(f"ds_read_b32 v{FBV}, v{vGM} ;@mode")

    for lay in range(o.last + 1):
        par = lay & 1; early = lay < 2; li = lay >> 1; last = lay == o.last
        A.label(f"L_layer{lay}")
        stamp(0)
        nd = ND if par == 0 else 0; TB = o.TB if par else 0
        NF = 4*AD if par == 0 else 4*AD + 2*ND; LAF = 4*(o.LA if par == 0 else o.LAB)
        assert LAF + 4 <= NF
        units = [(st, (0, 1, 2, 3), list(range(2 if st >= 32 - nd else 0, 6))) for st in range(32 - TB)]
        units += [(st, bl, list(range(6))) for bl in ((2, 3), (0, 1)) for st in range(32 - TB, 32)]
        anext = [(u, st, i) for u, (st, bl, _) in enumerate(units) for i in bl]
        fidx = {(st, i): n for n, (u, st, i) in enumerate(anext)}
        def afr(step, i): return a(RING + 4*(fidx[(step, i)] % NF), 4)
        def wdst(step, c):
            if c < 2 and step >= 32 - nd: return a(WQ + 8*(step - (32-nd)) + 4*c, 4)
            return v(WFV + 4*c, 4)
        def w1rd(u, c):
            step = units[u][0]
            return ldsrd(wdst(step, c), ((step//4 + 1) % 6)*SLOT + (step % 4)*6144 + c*1024) + f" ;@w{u}_{c}"
        def aload(u, step, i):
            return f"buffer_load_dwordx4 {afr(step, i)}, v{vA+i}, {SRD}, s{ROTA + step//4} offen offset:{(step%4)*1024} sc1 ;@A{u}"
        def mma(step, c, i):
            x, y = (afr(step, i), wdst(step, c)) if (par and c >= 4) else (wdst(step, c), afr(step, i))
            return f"{MF} {v(acc(c,i),4)}, {x}, {y}, {'0' if step == 0 else v(acc(c,i),4)}"
        def ostore(i, through):
            t = f"buffer_store_dwordx4 {v(224+4*i,4)}, v{vA+i}, {SRD}, s{sO} offen"
            if through: e(wt(t))
            else: st_mode([t])
        if lay == 0:
            for c in range(6): e(w1rd(0, c))
        for j in range(4*o.APRE): e(aload(*anext.pop(0)))
        nbar = 0
        if lay == 0:
            for i in range(6): E(w1_piece(par, 1, i))
            e("WAITL mode"); e(f"v_readfirstlane_b32 s{SMODE}, v{FBV}")
        else:
            if o.lazy & 1: poll2(sFXc)
            e("s_waitcnt lgkmcnt(0)"); e("s_barrier")
            for c in range(6): e(w1rd(0, c))
        wr, w1s, w2r, w2s = (o.wrE, o.w1sE, o.w2E, o.w2sE) if early else (o.wrL, o.w1sL, o.w2L, o.w2sL)
        if par: w2r, w2s = (o.w2BE, o.w2sBE) if early else (o.w2BL, o.w2sBL)
        if lay == 3: wr = o.wrBL
        if lay == 0: wr, w1s = o.wr0, o.w1s0
        pend = [("W", st, i) for st in range(2 if early else 2 + o.NRES - o.nopf, 8) for i in range(6)] + [("W2", p, i) for p in range(4 + par) for i in range(6)]
        def allowed(p, t):
            if p[0] == "W": return p[1] < 6 or nbar >= p[1] - 4
            return nbar >= p[1] + 4 and t >= w2s and (lay > 0 or fbdone[0])
        fbdone = [False]
        misc = [(max(o.s0 + o.sper*j, o.lazy & 1), [f"s_mov_b32 s{T0}, {WS_ST + j*16384}", f"buffer_load_dwordx4 {v(160+4*j,4)}, v{vSTl}, {SRD}, s{T0} offen sc1 ;@S{j}"]) for j in range(8)]
        extra = []
        sh = []
        if early:
            for j in range(4):
                extra.append((4 + j, [f"buffer_load_dwordx4 {v(224+8*(j//2)+4*(j%2),4)}, v{vL16}, {SRD}, s{(sCSa, sCSb)[j%2]} offen offset:{(j//2)*1024} sc1 ;@CS{j}"]))
            d = 224
            r = [f"v_add_f32 v{d+j}, v{d+j}, v{d+8+j}" for j in range(8)]
            for s_ in (8, 4): r += [f"v_add_f32_dpp v{d+j}, v{d+j}, v{d+j} row_ror:{s_} row_mask:0xf bank_mask:0xf" for j in range(8)]
            r = [r[j:j+2] for j in range(0, len(r), 2)] + [[f"v_permlane32_swap_b32 v{d+j}, v{d+j+1}"] for j in range(0, 8, 2)]
            r += [[f"v_add_f32 v{d+j}, v{d+j}, v{d+j+1}", f"v_add_f32 v{d+j+2}, v{d+j+2}, v{d+j+3}"] for j in (0, 4)]
            r += [[f"v_permlane16_swap_b32 v{d}, v{d+2}"], [f"v_permlane16_swap_b32 v{d+4}, v{d+6}"], [f"v_add_f32 v{d}, v{d}, v{d+2}", f"v_add_f32 v{d+4}, v{d+4}, v{d+6}"],
                  ["s_mov_b32 exec_lo, 0x000f000f", "s_mov_b32 exec_hi, 0x000f000f", f"ds_write_b32 v{vCSa}, v{d} offset:{par*384}", f"ds_write_b32 v{vCSb}, v{d+4} offset:{par*384} ;@csw",
                   "s_mov_b64 exec, -1"], [f"s_add_u32 s{sCSa}, s{sCSa}, {CS_SZ}", f"s_add_u32 s{sCSb}, s{sCSb}, {CS_SZ}"]]
            caps = [[(8 + 4*k - 4*o.nopf, None, [f"ds_read_b128 {a(RS(par, k+1)+4*b_,4)}, v{vLW3} offset:{k*SLOT + b_*1024}"]) for b_ in range(6)] for k in range(o.NRES)]
            sh += (caps[0] if caps else []) + [(8, "CS3", x) for x in r] + sum(caps[1:], [])
        if lay == 0:
            extra.insert(0, (4, fb_set(0)))
            extra.append((w2s - 8, [t + (" ;@F" if t.startswith("buffer") else "") for t in fb_body(0)]))
        def codepf(lbl): return [f"s_add_u32 s{T3}, s{sPC}, {lbl}-L_pc", f"s_addc_u32 s{T4}, s{sPC+1}, 0", f"global_load_dword v{vJUNK}, v{vCPF}, {sm(T3)}"]
        if o.cpf2: extra.append((o.cpf2, codepf(f"L_epi{lay}")))
        if o.cpf3 and not last: extra.append((o.cpf3, codepf("L_ool")))
        r = []
        for st in (16, 8, 4):
            r += [[f"v_add_f32 v{160+j}, v{160+j}, v{160+j+st}", f"v_add_f32 v{161+j}, v{161+j}, v{161+j+st}"] for j in range(0, st, 2)]
        r += [["s_nop 0"], ["v_permlane32_swap_b32 v160, v162"], ["v_permlane32_swap_b32 v161, v163"], ["v_add_f32 v160, v160, v162", "v_add_f32 v161, v161, v163"],
              [f"v_mul_f32 v163, {f32hex(-1.0/1024)}, v160", f"v_mul_f32 v161, {f32hex(1.0/1024)}, v161"], ["v_fma_f32 v161, -v163, v163, v161", "v_max_f32 v161, 0, v161"],
              [f"v_add_f32 v161, {f32hex(1e-5)}, v161"], ["v_rsq_f32 v162, v161"], [f"ds_write2_b32 v{vSW}, v162, v163 offset0:0 offset1:64"]]
        r += [[f"ds_read2_b32 {v(STP+2*i,2)}, v{vSR} offset0:{16*i} offset1:{64+16*i}"] for i in range(4)]
        if par: r += [[f"ds_read_b128 {v(224+16*j+4*i,4)}, v{vSQ} offset:{256*j + 64*i}"] for j in range(2) for i in range(4)]
        sh += [(0, "S7", x) for x in r]
        sh += [(0, "csbar", [f"ds_read_b128 {v(CSR+4*c,4)}, v{vGM} offset:{M_CS-M+par*384+c*64} ;@cs"]) for c in range(4 if par else 6)]
        if par: sh += [(0, "csbar", [f"ds_read2_b32 {v(CSR+16,2)}, v{vCV} offset0:64 offset1:80 ;@cs"])]
        for t_ in ["S7", "CS3", "F", "csw", "cs"] + [f"W{j}" for j in range(2, 8)]: A.seen.discard(t_)
        csbar = not early
        def ready(tag):
            if tag is None: return True
            if tag == "csbar": return csbar
            return tag in A.seen and not A.pending(tag)
        fix = {(cc, ii): [f"v_fmac_f32 v{acc(cc,ii)+j}, v{CSR+12+cc}, v{240+4*ii+j}" if par and cc >= 4 else
                          f"v_fmac_f32 v{acc(cc,ii)+j}, v{CSR+4*cc+j}, v{STP+2*ii+1}" for j in range(4)] for cc in range(6) for ii in range(4)}
        fix["ci"] = [f"v_mul_f32 v{CI+ii}, {CK[par]}, v{STP+2*ii}" for ii in range(4)]
        ysh = []
        if par:
            VT = lambda db, i: 168 + 10*db + 2*(i+1)
            KP = 188
            def two(l): return [l[j:j+2] for j in range(0, len(l), 2)]
            def vcvt(i, d0, d1): return [f"v_cvt_pk_bf16_f32 v{d+h}, v{acc(4+db,i)+2*h}, v{acc(4+db,i)+2*h+1}" for db, d in enumerate((d0, d1)) for h in range(2)]
            def kmul(i): return [f"v_mul_f32 v{acc(c,i)+j}, v{acc(c,i)+j}, v{STP+2*i}" for c in (2, 3) for j in range(4)]
            def vmul(i): return [f"v_mul_f32 v{acc(c,i)+j}, v{acc(c,i)+j}, v{224+4*i+j}" for c in (4, 5) for j in range(4)]
            def kcvt(i): return cvt4l(acc(2,i), acc(2,i), acc(3,i))
            def qcvt(i): return cvt4l(acc(0,i), acc(0,i), acc(1,i))
            def sown(i): return f"{MF} {v(acc(3,i),4)}, {v(acc(2,i),4)}, {v(acc(0,i),4)}, 0"
            def sprev(i): return f"{MF} {v(acc(1,i),4)}, {v(acc(2,i-1) if i else KP,4)}, {v(acc(0,i),4)}, 0"
            def sel(i):
                so, sp, z = acc(3,i), acc(1,i), acc(5,i)
                r = [f"v_cndmask_b32 v{b}, v{b}, v{b+1}, {sm(mPAR)}" for b in (so, so+2, sp, sp+2)]
                if i == 0: r += [f"v_cndmask_b32 v{b}, v{b}, v217, {sm(mFIRST)}" for b in (sp, sp+2)]
                return r + [f"v_cndmask_b32 v{z}, v{sp}, v{so}, {sm(mOWN0)}", f"v_cndmask_b32 v{z+1}, v{sp+2}, v{so+2}, {sm(mOWN1)}", f"v_max_f32 v{z+2}, v{z}, v{z+1}"]
            def soft(blks):
                Z = [(acc(5,i), i) for i in blks]
                r = [f"v_sub_f32 v{z+h}, v{z+h}, v{z+2}" for z, i in Z for h in range(2)] + [f"v_mul_f32 v{z+h}, v{z+h}, v{CI+i}" for z, i in Z for h in range(2)]
                r += [f"v_exp_f32 v{z+h}, v{z+h}" for z, i in Z for h in range(2)] + [f"v_cvt_pk_bf16_f32 v{z+h}, v{z+h}, v{z+h}" for z, i in Z for h in range(2)]
                for z, i in Z: r += [f"v_and_b32 v{acc(4,i)+j}, v{z+(j&1)}, v{mk}" for j, mk in enumerate((MP0, MP1, MO0, MO1))]
                return r
            def pv(i): return [f"{MF} {v(acc(5,i),4)}, {v(ONES,4)}, {v(acc(4,i),4)}, 0"] + [f"{MF} {v(acc(1+2*db,i),4)}, {v(VT(db,i-1),4)}, {v(acc(4,i),4)}, 0" for db in range(2)]
            hl = [f"buffer_load_dwordx4 v[240:243], v{vL16}, {SRD}, s{sHld} offen sc1", f"buffer_load_dwordx4 v[244:247], v{vL16}, {SRD}, s{sHld} offen offset:1024 sc1"]
            z3 = acc(5,3)
            ysh += two(kmul(3) + kcvt(3)) + [[f"buffer_store_dwordx4 {v(acc(2,3),4)}, v{vL16}, {SRD}, s{sHst} offen sc1"]]
            ysh += two(vmul(3) + vcvt(3, 248, 250)) + [[f"buffer_store_dwordx4 v[248:251], v{vL16}, {SRD}, s{sHst} offen offset:1024 sc1"]]
            ysh += [[f"ds_write_b128 v{vKX}, {v(acc(2,3),4)} offset:1024"]] + two(vcvt(3, VT(0,3), VT(1,3)))
            ysh += [[f"ds_write_b128 v{vKX}, v[248:251] offset:{M_VX-M_KX+1024} ;@xw"]]
            ysh += two(kmul(2) + kcvt(2) + qcvt(3)) + [[sown(3)], [sprev(3)]] + two(vmul(2) + vcvt(2, VT(0,2), VT(1,2)))
            ysh += [["WAITL xw", "s_barrier"], [f"ds_read_b128 {v(KP,4)}, v{vKX}"]] + [[f"ds_read_b64 {v(VT(db,-1),2)}, v{vKX} offset:{M_VX-M_KX+8*db}"] for db in range(2)]
            ysh += two(sel(3)) + [[f"v_mov_b32 v{z3+3}, v{z3+2}"]] + two(qcvt(2))[:1] + [[f"v_permlane32_swap_b32 v{z3+2}, v{z3+3}"], [f"v_max_f32 v{z3+2}, v{z3+2}, v{z3+3}", f"v_mov_b32 v{z3+3}, v{z3+2}"]]
            ysh += two(qcvt(2))[1:] + [[f"v_permlane16_swap_b32 v{z3+2}, v{z3+3}"], [f"v_max_f32 v{z3+2}, v{z3+2}, v{z3+3}"], [sown(2)]]
            s3 = soft((3,))
            ysh += two(s3[:4]) + [s3[4:5], s3[5:6]] + two(s3[6:]) + [[f"v_mov_b32 v217, {f32hex(-3.0e38)}"]] + [[x] for x in pv(3)] + [[], []]
            ysh += [[f"v_rcp_f32 v{z3}, v{z3}"]] + two([f"v_mul_f32 v{acc(1+2*db,3)+j}, v{acc(1+2*db,3)+j}, v{z3}" for db in range(2) for j in range(4)] + cvt4l(236, acc(1,3), acc(3,3)))
            ysh += [lambda: ostore(3, o.oall)]
            ysh.insert(len(ysh) - o.hpos, [hl[0]]); ysh.insert(len(ysh) - o.hpos, [hl[1] + " ;@hl"])
        def Y():
            x = ysh.pop(0)
            if callable(x): x()
            else: E(x)
        credit = 0.5 if (lay == 1 and o.lazy & 1) else 0.0; t = 0.0; nbar = 0
        for u, (step, bl, cs_) in enumerate(units):
            half = len(bl) == 2; ng = len(cs_); inY = half and bl[0] == 0
            assert not anext or anext[0][0] > u
            e(f"WAITV A{u}")
            if u == 1 and lay > 0 and o.lazy & 1:
                assert anext[0][1] <= 4 and anext[0][2] == 0 and len(misc) == 8
                poll2chk(sFXc, lay)
            if o.g1prof and u == 0: stamp(2, 1)
            if u + 1 < len(units) and units[u+1][0]//4 > nbar:
                nbar += 1
                assert not any(p[0] == "W" and p[1] <= nbar for p in pend), (lay, u)
                if f"W{nbar}" in A.seen: e(f"WAITV W{nbar}")
                if lay == 0 and nbar == 1: assert not A.pending("b1")
                e("s_barrier")
                if ready("csw"): csbar = True
                if o.g1prof: stamp(2 + nbar, 1)
            if inY and step == max(28, 32 - TB):
                e("s_barrier"); nbar = 8
            if inY: assert not sh and all(not x for x in fix.values()), (lay, len(sh), {k: len(x) for k, x in fix.items() if x})
            nslot = 3 if half else ng
            cur = fidx[(step, bl[0])]
            ahead = lambda n: n < len(anext) and fidx[anext[n][1:]] < cur + len(bl) + LAF
            plan = []; na = nw = nm = 0
            while len(plan) < nslot and ahead(na) and na < len(bl):
                plan.append("A"); na += 1
            if t >= w1s: credit = min(credit + (wr if (pend and pend[0][0] == "W") else w2r) * len(bl) / 400.0, max(3.0, w2r/100.0))
            while len(plan) < nslot and nw < len(pend) and allowed(pend[nw], t) and credit >= 1:
                plan.append("W"); nw += 1; credit -= 1
            while len(plan) < nslot and nm < len(misc) and misc[nm][0] <= t:
                plan.append("M"); nm += 1
            while len(plan) < nslot and ahead(na):
                plan.append("A"); na += 1
            oth = [p for p in plan if p != "A"]; aa = [p for p in plan if p == "A"]; plan = []
            while oth or aa:
                if aa: plan.append(aa.pop())
                if aa and len(aa) >= 2*len(oth): plan.append(aa.pop())
                if oth: plan.append(oth.pop(0))
            if half: plan = sum(([p, None] for p in plan), [])
            for gi, c in enumerate(cs_):
                vm = None
                for p, i in enumerate(bl if c % 2 == 0 else bl[::-1]):
                    if p == 0: e(f"WAITL w{u}_{c}")
                    e(mma(step, c, i))
                    busy = False
                    if p == 0 and gi < len(plan) and plan[gi]:
                        k = plan[gi]
                        if k == "A": vm = [aload(*anext.pop(0))]
                        elif k == "W":
                            pc = pend.pop(0); vm = w1_piece(par, pc[1], pc[2]) if pc[0] == "W" else w2_piece(par, pc[1], pc[2])
                        else: vm = misc.pop(0)[1]
                        E(vm[:-1]); busy = len(vm) > 1
                    if p == (0 if half else 1) and vm: e(vm[-1]); busy = True
                    if p == len(bl) - 1:
                        busy = not half
                        if u + 1 < len(units): e(w1rd(u+1, c))
                    if p == 2 and ng == 4 and u + 1 < len(units) and gi < 2:
                        e(w1rd(u+1, gi)); busy = True
                    if busy: continue
                    if inY:
                        if ysh: Y()
                    elif p == (0 if half else 2) and gi == 3 and extra and extra[0][0] <= t: E(extra.pop(0)[1])
                    elif p == 2 and lay == 0 and not fbdone[0] and ready("F"):
                        E(fb_cond + retry(fb_body(0), fb_cond)); fbdone[0] = True
                    elif sh:
                        if sh[0][0] <= t and ready(sh[0][1]): E(sh.pop(0)[2])
                    elif ready("cs"):
                        cc = cs_[(gi + ng//2) % ng]
                        cand = [(cc, ii) for ii in (3, 2, 1, 0)]
                        if step > 32 - nd: cand += [(c2, ii) for c2 in (0, 1) for ii in range(4)]
                        if half and step > 32 - TB: cand += [(c2, ii) for c2 in range(6) for ii in (0, 1)]
                        for k in cand + ["ci"]:
                            if fix[k]:
                                E(fix[k][:2]); fix[k] = fix[k][2:]; break
            t += len(bl) / 4
        assert not anext and not misc and not sh and not extra and all(p[0] == "W2" for p in pend), (lay, pend, anext, misc, len(sh), extra)
        assert all(not x for x in fix.values()), (lay, {k: len(x) for k, x in fix.items()})
        assert lay > 0 or fbdone[0]
        left = [w2_piece(par, p[1], p[2]) for p in pend]
        lates = [w2_piece(par, 4, i) for i in range(6*(1-par))] + [w2_piece(par, 5, i) for i in range(2)]
        if o.verbose: print("layer", lay, "left", len(left), "ysh", len(ysh))
        A.label(f"L_epi{lay}")
        e("s_waitcnt lgkmcnt(0)"); e("s_barrier")
        stamp(1)
        qm = [mma(step, c, i) for step in range(32-nd, 32) for c in range(2) for i in (range(4) if c == 0 else reversed(range(4)))]

        if par == 0:
            def feat_head(c0, tmp, hook=None):
                MX, MN = tmp, tmp+4
                for i in (3, 2, 1, 0):
                    p0, p1 = acc(c0,i), acc(c0+1,i)
                    for op, op2, d in (("v_max3_f32", "v_max_f32", MX+i), ("v_min3_f32", "v_min_f32", MN+i)):
                        e(f"{op} v{d}, v{p0}, v{p0+1}, v{p0+2}"); e(f"{op} v{d}, v{d}, v{p0+3}, v{p1}")
                        e(f"{op} v{d}, v{d}, v{p1+1}, v{p1+2}"); e(f"{op2} v{d}, v{d}, v{p1+3}")
                if hook: hook()
                xreduce([("v_max_f32", [MX, MX+1, MX+2, MX+3]), ("v_min_f32", [MN, MN+1, MN+2, MN+3])])
                for i in range(4):
                    e(f"v_mul_f32 v{MX+i}, -v{MX+i}, v{CI+i}"); e(f"v_mul_f32 v{MN+i}, v{MN+i}, v{CI+i}")
                for i in range(4):
                    for fb in range(2):
                        for h in range(2):
                            pk_fma(224+8*i+4*fb+2*h, acc(c0+fb,i)+2*h, CI+i, MX+i)
                            pk_fma(acc(c0+fb,i)+2*h, acc(c0+fb,i)+2*h, CI+i, MN+i, negx=True)
            def feat_tail(c0, F, G_, S0, S1, post, mid=None, hooks={}):
                def norm_(i):
                    sq = S0 if i % 2 == 0 else S1
                    e(f"v_rcp_f32 v{184+2*i}, v{sq}"); e(f"v_rcp_f32 v{185+2*i}, v{sq+4}")
                    for r in range(0, 8, 2): pk_mul(224+8*i+r, 224+8*i+r, 184+2*i)
                    cvt4(F+4*i, 224+8*i, 224+8*i+4)
                    if post: e(post(i, 0))
                    for fb in range(2):
                        for h in range(2): pk_mul(acc(c0+fb,i)+2*h, acc(c0+fb,i)+2*h, 185+2*i)
                    cvt4(G_+4*i, acc(c0,i), acc(c0+1,i))
                    if post: e(post(i, 1))
                for i in range(4):
                    if i in hooks: hooks[i]()
                    for r in range(8): e(f"v_exp_f32 v{224+8*i+r}, v{224+8*i+r}")
                    for fb in range(2):
                        for r in range(4): e(f"v_exp_f32 v{acc(c0+fb,i)+r}, v{acc(c0+fb,i)+r}")
                    if 0 < i < 3: norm_(i-1)
                    sq = S0 if i % 2 == 0 else S1
                    cvt4(F+4*i, 224+8*i, 224+8*i+4); cvt4(G_+4*i, acc(c0,i), acc(c0+1,i))
                    e(f"{MF} {v(sq,4)}, {v(ONES,4)}, {v(F+4*i,4)}, 0"); e(f"{MF} {v(sq+4,4)}, {v(ONES,4)}, {v(G_+4*i,4)}, 0")
                if 4 in hooks: hooks[4]()
                if mid: mid()
                norm_(2)
                if 5 in hooks: hooks[5]()
                norm_(3)
            dl = []
            if lay == 0:
                dl = [[f"s_add_u32 s{D2}, s{ROTW}, {WS_W1[1]}", f"s_add_u32 s{D4}, s{D2}, 4096", w1st(a(RB,4), 0, D2, D4)]] + [[w1st(a(RB+4*b_,4), b_, D2, D4)] for b_ in range(1, 6)]
                dl += [[f"s_add_u32 s{D1}, s{sW2s}, {WS_W2[1] - WS_W2[0]}", f"buffer_store_dwordx4 {a(HW2,4)}, v{vL16}, {SRD}, s{D1} offen sc1"],
                       [f"buffer_store_dwordx4 {a(HW2+4,4)}, v{vL16}, {SRD}, s{D1} offen offset:1024 sc1", f"s_add_u32 s{D1}, s{sCL0}, {CS_SZ}"] + csst(a(HCS,4), D1),
                       [f"buffer_store_dwordx4 a[252:255], v{vL16}, {SRD}, s{sCL2} offen sc1"],
                       [f"s_add_u32 s{D1}, s{sKV}, s{ROTA}", f"s_add_u32 s{D1}, s{D1}, 0x100000", f"buffer_store_dwordx4 a[252:255], v{vL16}, {SRD}, s{D1} offen sc1",
                        f"s_add_u32 s{D1}, s{sZo}, 0x10000", f"s_mov_b64 exec, {sm(mM0)}", f"buffer_store_dwordx4 a[252:255], v{vG16}, {SRD}, s{D1} offen sc1 ;@b2", "s_mov_b64 exec, -1"]]
            dl2 = dl[o.dk:]; dl = dl[:o.dk]; mix = []
            for j_ in range(max(len(left), len(dl))): mix += left[j_:j_+1] + dl[j_:j_+1]
            per = o.aper0 if dl else o.aper
            A.bgset(mix, per, per)
            def vall():
                for i in range(4):
                    for b in range(2):
                        for h in range(2): pk_mul(acc(4+b,i)+2*h, acc(4+b,i)+2*h, STP+2*i)
                    cvt4(acc(4,i), acc(4,i), acc(5,i))
                    e(xw(acc(4,i), VB_LDS//1024 + i))
            feat_head(2, 208, vall)
            feat_tail(2, 192, 144, 168, 176, lambda i, sg: xw((192 if sg == 0 else 144)+4*i, 24 + 16*sg + i))
            A.bgflush()
            e(f"s_add_u32 s{T2}, s{sKV}, s{ROTA}")
            e("s_waitcnt lgkmcnt(0)"); e("s_barrier")
            stamp(2)
            def kvreads(p):
                b = 96 + 16*(p % 4); r = []
                for t in range(2):
                    r += [f"ds_read_b64_tr_b16 {v(b+2*t,2)}, v{vE0} offset:{SLOT + (2*p+t)*1024}", f"ds_read_b64_tr_b16 {v(b+8+2*t,2)}, v{vVr} offset:{(2*p+t)*1024} ;@ka{p}"]
                return r + [f"ds_read_b64_tr_b16 {v(b+4+2*t,2)}, v{vE1} offset:{SLOT + (2*p+t)*1024} ;@kb{p}" for t in range(2)]
            rd = sum((kvreads(p) for p in range(8)), [])
            E(rd[:14]); rd = rd[14:]
            for j in range(4): e(qm.pop(0))
            for p in range(8):
                b = 96 + 16*(p % 4); z_ = p == 0
                e(f"WAITL ka{p}")
                e(f"{MF} v[168:171], {v(b,4)}, {v(b+8,4)}, {'0' if z_ else 'v[168:171]'}"); E(rd[0:2])
                e(f"{MF} v[200:203], {v(b,4)}, {v(ONES,4)}, {'0' if z_ else 'v[200:203]'}"); E(rd[2:4])
                e(f"WAITL kb{p}")
                e(f"{MF} v[172:175], {v(b+4,4)}, {v(b+8,4)}, {'0' if z_ else 'v[172:175]'}"); E(rd[4:6]); rd = rd[6:]
            for j in range(2): e(qm.pop(0))
            e("s_barrier")
            for j in range(2): e(qm.pop(0))
            cv = cvt4l(192, 168, 172)
            E(cv[:2]); e(qm.pop(0)); E(cv[2:]); e(qm.pop(0))
            e(f"buffer_store_dwordx4 v[192:195], v{vL16}, {SRD}, s{T2} offen sc1"); e(qm.pop(0))
            e(f"s_mov_b64 exec, {sm(mM0)}"); e(f"buffer_store_dwordx4 v[200:203], v{vG16}, {SRD}, s{sZo} offen sc1"); e("s_mov_b64 exec, -1")
            stamp(3)
            A.bgset(lates, o.aper2, 0)
            E(qm)
            def g1(p): return [f"s_add_u32 s{T0}, s{sKV}, s{ROTA+1+p}", f"buffer_load_dwordx4 {v(96+4*p,4)}, v{vL16}, {SRD}, s{T0} offen sc1 ;@g{p}"]
            gz = f"buffer_load_dwordx4 v[192:195], v{vZL}, {SRD}, s{sZP} offen sc1 ;@gz"
            def gather():
                A.bgflush()
                for p in range(7): E(g1(p))
                e(gz)
                A.bgset(dl2, o.aper3, 0)
            if o.gpos == 0: gather()
            feat_head(0, 196, gather if o.gpos == 1 else None)
            def qmid():
                e(f"s_andn2_b64 {sm(T1)}, {sm(mDIAG)}, {sm(mB1)}"); e(f"s_and_b64 {sm(T3)}, {sm(mDIAG)}, {sm(mB1)}")
                e(f"v_or_b32 v128, v{MO0}, v{MP0}"); e(f"v_and_b32 v128, v128, v{ONES}")
                e(f"v_cndmask_b32 v130, 0, v128, {sm(T1)}"); e(f"v_cndmask_b32 v131, 0, v128, {sm(T3)}")
                for r in (128, 129, 132, 133): e(f"v_mov_b32 v{r}, 0")
            feat_tail(0, 204, 136, 152, 176, None, qmid, {o.gpos - 2: gather})
            A.bgflush()
            nafter = A.after("gz")
            stamp(4)
            e(f"s_mov_b32 s{sTMO}, {LIM}")
            for p in range(8):
                r0 = 96+4*p if p < 7 else 192; L = f"{lay}_{p}"
                e(f"WAITV g{p if p < 7 else 'z'}")
                A.label(f"L_kvc{L}")
                e(f"v_cmp_eq_u32 vcc, -1, v{r0}"); e(f"s_cbranch_vccnz L_kvs{L}")
                A.label(f"L_kvo{L}")
                if p < 7:
                    e(f"{MF} v[168:171], v[130:133], {v(r0,4)}, v[168:171]"); e(f"{MF} v[172:175], v[128:131], {v(r0,4)}, v[172:175]")
                def kvslow(p=p, L=L, nafter=nafter, g1=g1, gz=gz):
                    A.label(f"L_kvs{L}")
                    e(f"s_sub_u32 s{sTMO}, s{sTMO}, 1"); e(f"s_cbranch_scc1 L_kvt{L}")
                    if o.ksl: e(f"s_sleep {o.ksl}")
                    e(f"s_waitcnt vmcnt({nafter})")
                    if o.kgate:
                        e("v_mov_b32 v197, 0"); e("s_mov_b64 exec, 0xff"); e(f"buffer_atomic_or v197, v{vZL}, {SRD}, s{sZP} offen sc0 sc1"); e("s_mov_b64 exec, -1")
                        e("s_waitcnt vmcnt(0)"); e("v_cmp_eq_u32 vcc, -1, v197"); e(f"s_cbranch_vccnz L_kvs{L}")
                    for p2 in range(p, 7):
                        if p2 > p: e(f"v_cmp_eq_u32 vcc, -1, v{96+4*p2}"); e(f"s_cbranch_vccz L_kvn{L}_{p2}")
                        E(g1(p2))
                        if p2 > p: A.label(f"L_kvn{L}_{p2}")
                    e(gz); e("s_waitcnt vmcnt(0)"); e(f"s_branch L_kvc{L}")
                    A.label(f"L_kvt{L}"); e(f"s_mov_b32 s{sTMO}, 0"); e(f"s_branch L_kvo{L}")
                ool.append(kvslow)
            for s_ in (4, 2, 1):
                for r in range(4): e(f"v_add_f32_dpp v{192+r}, v{192+r}, v{192+r} row_ror:{s_} row_mask:0xf bank_mask:0xf")
                if s_ == 2:
                    cvt4(196, 168, 172)
                    e(f"ds_write_b64 v{vKX0}, v[196:197]"); e(f"ds_write_b64 v{vKX1}, v[198:199]")
            e("v_cvt_pk_bf16_f32 v192, v192, v193"); e("v_cvt_pk_bf16_f32 v193, v194, v195")
            e(f"s_mov_b64 exec, {sm(mM0)}"); e(f"ds_write_b64 v{vZW}, v[192:193] offset:{M_ZF-M}"); e("s_mov_b64 exec, -1")
            fb2 = lay == 0 and not A.pending("b2")
            e("s_waitcnt lgkmcnt(0)"); e("s_barrier")
            stamp(5)
            for t in range(2): e(f"ds_read_b128 {v(184+4*t,4)}, v{vGM} offset:{M_ZF-M + t*64} ;@zf")
            for j in range(4): e(ldsrd(v(168+4*j,4), M_KX + j*1024))
            if fb2: E(fb_set(1))
            if lay == 0: e(f"s_add_u32 s{sKV}, s{sKV}, 0x100000"); e(f"s_add_u32 s{sZP}, s{sZP}, 0x10000"); e(f"s_add_u32 s{sZo}, s{sZo}, 0x10000")
            e("WAITL zf")
            for t in range(2):
                for i in range(4): e(f"{MF} {v(64+4*i,4)}, {v(184+4*t,4)}, {v((204 if t == 0 else 136)+4*i,4)}, {'0' if t == 0 else v(64+4*i,4)}")
            e("s_waitcnt lgkmcnt(0)")
            def fin(i):
                r = [f"v_mul_f32 v{96+8*i+j}, v{96+8*i+j}, v{64+4*i}" for j in range(8)] + cvt4l(224+4*i, 96+8*i, 100+8*i)
                return [r[j:j+3] for j in range(0, 12, 3)]
            sc = [[f"v_add_f32 v{64+4*i}, {f32hex(1e-6)}, v{64+4*i}", f"v_rcp_f32 v{64+4*i}, v{64+4*i}"] for i in range(4)]
            fills = [[[]]*4, sc, fin(0), fin(1)]
            for i in range(4):
                for t in range(2):
                    for db in range(2):
                        d = v(96+8*i+4*db, 4)
                        e(f"{MF} {d}, {v(168+8*t+4*db,4)}, {v((204 if t == 0 else 136)+4*i,4)}, {'0' if t == 0 else d}")
                        E(fills[i][2*t+db])
                if i >= 2: ostore(i-2, True)
            for i in (2, 3):
                for r in range(0, 8, 2): pk_mul(96+8*i+r, 96+8*i+r, 64+4*i)
                cvt4(224+4*i, 96+8*i, 100+8*i)
                ostore(i, True)
        else:
            fb2 = True
            A.bgset(left + lates, o.bper, o.bper)
            while ysh: Y()
            for i in (1, 0):
                for c in (2, 3):
                    for h in range(2): pk_mul(acc(c,i)+2*h, acc(c,i)+2*h, STP+2*i)
            for i in (1, 0):
                for c in (4, 5):
                    for h in range(2): e(f"v_pk_mul_f32 {v(acc(c,i)+2*h,2)}, {v(acc(c,i)+2*h,2)}, {v(224+4*i+2*h,2)}")
            E(kcvt(1) + qcvt(1)); e(sprev(2)); E(kcvt(0)[:2]); e(sown(1)); E(kcvt(0)[2:] + qcvt(0)); e(sprev(1)); E(vcvt(1, VT(0,1), VT(1,1))[:2]); e(sown(0))
            E(vcvt(1, VT(0,1), VT(1,1))[2:] + vcvt(0, VT(0,0), VT(1,0)))
            E(sel(2))
            keep = A.bg; A.bg = []
            e("s_waitcnt lgkmcnt(0)")
            e(f"s_cmp_lg_u32 s{SW}, 0"); e(f"s_cbranch_scc1 L_halod{lay}")
            A.track = False
            hc = ["v_max_u32 v218, v240, v244", "v_cmp_eq_u32 vcc, -1, v218"]
            if A.pending("hl"): e(f"s_waitcnt vmcnt({A.after('hl')})")
            E(hc); e(f"s_cbranch_vccz L_halow{lay}")
            spin(hl, hc)
            A.label(f"L_halow{lay}")
            for r in range(4): e(f"v_mov_b32 v{KP+r}, v{240+r}"); e(f"v_mov_b32 v{VT(r//2,-1)+r%2}, v{244+r}")
            A.track = True
            A.label(f"L_halod{lay}")
            e(sprev(0))
            A.bg = keep
            stamp(2)
            if lay == 1: e(f"s_add_u32 s{sHst}, s{sHst}, 0x80000"); e(f"s_add_u32 s{sHld}, s{sHld}, 0x80000")
            E(sel(1)); E(sel(0))
            xreduce([("v_max_f32", [acc(5,i)+2 for i in range(4)])])
            E(soft((2, 1, 0)))
            A.bgflush()
            E(pv(2) + pv(1) + pv(0))
            for i in (2, 1, 0):
                e(f"v_rcp_f32 v{acc(5,i)}, v{acc(5,i)}")
                for db in range(2):
                    for h in range(2): pk_mul(acc(1+2*db,i)+2*h, acc(1+2*db,i)+2*h, acc(5,i))
                cvt4(224+4*i, acc(1,i), acc(3,i))
                ostore(i, o.oall)

        stamp(6)
        pre = [f"v_mov_b32 v{vVal}, {lay+1}"]
        for i in range(2):
            for kk in range(2):
                for r in range(4):
                    d = acc2(2*kk + (r >> 1), i) + 2*(r & 1); x = RES+8*i+4*kk+r
                    pre += [f"v_lshlrev_b32 v{d}, 16, v{x}", f"v_and_b32 v{d+1}, 0xffff0000, v{x}"]
        omask = (1 << (o.g2depth - 1)) - 1 if o.lazy & 2 else None
        if o.early & 2: handoff(sFOp, sFOc, lay+1, omask, mEO, pre, [])
        else:
            E(pre); signal(sFOp); stamp(7); poll(sFOc, lay+1, None, omask)
        stamp(8)
        W2F = RING; AF2 = RING + 32; GD = o.g2depth; T2_ = o.TG
        assert AF2 + 8*GD <= 240 - 48*o.NRES
        gun = [(st, (0, 1)) for st in range(32 - T2_)] + [(st, (i,)) for i in range(2) for st in range(32 - T2_, 32)]
        bn = [(st, i) for st, bl in gun for i in bl]
        bidx = {k: n for n, k in enumerate(bn)}
        def bfr(step, i): return a(AF2 + 4*(bidx[(step, i)] % (2*GD)), 4)
        def w2rd(u, b):
            step = gun[u][0]
            return ldsrd(a(W2F + 16*(u % 2) + 4*b, 4), (step*4096 if step < 14 else 3*SLOT + (step-14)*4096) + b*1024) + f" ;@u{u}_{b}"
        cur4 = [-1]
        def bload(step, i):
            r = [f"s_mov_b32 s{sAo}, {WS_O + (step//4)*4096}"] if step//4 != cur4[0] else []
            cur4[0] = step//4
            return r + [f"buffer_load_dwordx4 {bfr(step, i)}, v{vB+i}, {SRD}, s{sAo} offen offset:{(step%4)*1024} sc1 ;@B{step}_{i}"]
        for j in range(min(o.bpos, 2*GD-2)):
            if o.lazy & 2 and j == o.p2pos: poll2(sFOc)
            E(bload(*bn.pop(0)))
        e("s_barrier")
        for st in range(2):
            for b in range(4): e(w2rd(st, b))
        while bn[0][0] < GD-1: E(bload(*bn.pop(0)))
        lv = [x for x in (o.lv1, o.lv2) if x] + [32]
        okh = 32
        if o.lazy & 2: okh = lv.pop(0); poll2chk(sFOc, lay+1, hex((1 << okh) - 1) if okh < 32 else None)
        if lay == 0 and not fb2: E(fb_set(1))
        w1n = [] if last or (o.nopf and lay >= 1) else list(range(6))
        nres = 0 if last else (1 + (o.NRES if lay >= 1 else 0))
        def oparts(i):
            return [[f"ds_write_b128 v{200+kk}, {v(RES+8*i+4*kk,4)} offset:{i*2048}"] for kk in range(2)] + \
                   [[f"ds_read_b128 {v(96+4*j,4)}, v{vLW} offset:{j*1024} ;@o{j}"] for j in (2*i, 2*i+1)] + [[], []] + \
                   [[f"WAITL o{j}", f"buffer_store_dwordx4 {v(96+4*j,4)}, v202, {SRT}, s{T0} offen" + (" sc1" if o.outsc else ""), f"s_add_u32 s{T0}, s{T0}, 16384"] for j in (2*i, 2*i+1)]
        gsh = []
        if last:
            gsh = [[f"v_bfe_u32 v200, v{vL16}, 4, 4", f"v_and_b32 v201, 0x70, v{vL16}"], [f"v_xor_b32 v201, v201, v{vG16}", "v_lshl_add_u32 v200, v200, 7, v201"],
                   [f"v_add_u32 v200, s{sLW}, v200", f"v_lshrrev_b32 v202, 7, v{vL16}"], [f"v_and_b32 v203, 0x70, v{vL16}", "v_lshlrev_b32 v204, 4, v202"],
                   ["v_xor_b32 v201, 64, v200", "v_xor_b32 v203, v203, v204"], ["v_lshl_add_u32 v202, v202, 11, v203"],
                   [f"s_mov_b32 s8, s{P_OUT}", f"s_mov_b32 s9, s{P_OUT+1}"], ["s_mov_b32 s10, 0x400000", "s_mov_b32 s11, 0x20000"],
                   [f"s_lshl_b32 s{T0}, s{SRB}, 2", f"s_add_u32 s{T0}, s{T0}, s{SW}"], [f"s_lshl_b32 s{T0}, s{T0}, 16", f"s_lshl_b32 s{T1}, s{SCB}, 7"], [f"s_add_u32 s{T0}, s{T0}, s{T1}"]]
        def xcvt(i): return sum((cvt4l(RES+8*i+4*kk, acc2(2*kk,i), acc2(2*kk+1,i)) for kk in range(2)), [])
        fbchk = not (lay == 0 and not last)
        rw = [f"ds_write_b128 v{vLW if k == 0 else vLW3}, {a(RS(1-par, k)+4*b_,4)} offset:{(SLOT if k == 0 else (k-1)*SLOT) + b_*1024}" for k in range(nres) for b_ in range(6)]
        rslot = [1 if k == 0 else 2 + k - o.nopf for k in range(nres) for b_ in range(6)]
        freeslot = -1
        for u, (step, bl) in enumerate(gun):
            e("WAITV " + " ".join(f"B{step}_{i}" for i in bl))
            if okh < 32:
                if bn[0][0] == okh - GD + 1: poll2(sFOc)
                if bn[0][0] == okh: okh = lv.pop(0); poll2chk(sFOc, lay+1, hex((1 << okh) - 1) if okh < 32 else None)
                assert bn[1][0] < okh
            nsl = nres - 1 - o.nopf if nres > 1 else 0
            if u in [15 + 6*j for j in range(nsl + 1) if o.rin or j == nsl or (j == 0 and w1n)]:
                freeslot = 2 + (u - 15)//6
                assert min(st for st, _ in gun[u-1:]) >= u - 1
                e("s_barrier")
            if lay == 0 and not last and u == 19: assert okh == 32; E([t + (" ;@F" if t.startswith("buffer") else "") for t in fb_body(1)])
            if not fbchk and len(bn) <= 2: e("WAITV F"); E(fb_cond + retry(fb_body(1), fb_cond)); fbchk = True
            if bl == (1,) and step == 32 - T2_:
                assert not gsh
                c_ = xcvt(0); gsh = [[]] + [c_[j:j+2] for j in range(0, 8, 2)]
                if last: gsh += oparts(0)
                else:
                    p_ = xparts(0); gsh += p_[0] + [[], []] + p_[1]
            for b in range(4):
                e(f"WAITL u{u}_{b}")
                for p, i in enumerate(bl if b % 2 == 0 else bl[::-1]):
                    e(f"{MF} {v(acc2(b,i),4)}, {a(W2F+16*(u%2)+4*b,4)}, {bfr(step, i)}, {v(acc2(b,i),4)}")
                    if p == 0:
                        if bn and b % (4//len(bl)) == 0: E(bload(*bn.pop(0)))
                        elif not bn and w1n and b % (o.g2w*2//len(bl)) == 0: E(w1_piece(1-par, 1, w1n.pop(0)))
                        elif gsh and (len(bl) == 1 or b % 2):
                            g_ = gsh.pop(0)
                            if o.xall and lay >= 1 and not last: E([wt(t) for t in g_])
                            elif any(t.startswith("buffer_store") for t in g_) and not last: st_mode(g_)
                            else: E(g_)
                if o.rin and rw and rslot[0] <= freeslot and b % (4//o.rin) == 4//o.rin - 1 and (len(bl) == 2 or (bl == (0,) and b == 3 and (u % 2 or o.rin > 1))):
                    e(rw.pop(0)); rslot.pop(0)
                if u + 2 < len(gun): e(w2rd(u+2, b))
                if b == 1 and not last:
                    if o.xf and u == o.xt0: e(f"buffer_load_dword v{vJUNK}, v{vTCH}, {SRD}, s{ROTA} offen sc1")
                    if o.cpf and u == o.xt0 + 4: E(codepf(f"L_layer{lay+1}"))
        assert not w1n
        stamp(9)
        rest = sum(gsh, [])
        if last or not any(t.startswith("buffer_store") for t in rest): E(rest)
        else: st_mode(rest)
        todo = (1,) if T2_ else (0, 1)
        for i in todo: E(xcvt(i))
        if last:
            for i in todo: E(sum(oparts(i)[:4], []))
            for i in todo: E(sum(oparts(i)[4:], []))
            break
        xtile(o.xall and lay >= 1, todo)
        assert not rw or max(rslot) <= freeslot
        if o.verbose: print("layer", lay, "resident writes left", len(rw))
        if o.early & 1: handoff(sFXp, sFXc, lay+1, sm(mX) if o.lazy & 1 else None, mEX, rw[:o.rw], rw[o.rw:])
        else:
            E(rw[:o.rw]); signal(sFXp); stamp(10); poll(sFXc, lay+1, rw[o.rw:], sm(mX) if o.lazy & 1 else None)

    if o.stamps:
        e("s_waitcnt vmcnt(0)")
        stamp(11)
        e(f"s_lshl_b32 s{T0}, s{SIDX}, 2"); e(f"s_add_u32 s{T0}, s{T0}, s{SW}")
        e(f"s_lshl_b32 s{T0}, s{T0}, 8"); e(f"s_add_u32 s{T0}, s{T0}, {WS_STAMPS}")
        e(f"v_lshrrev_b32 v200, 2, v{vL16}")
        e(f"buffer_store_dword v{vSTAMP}, v200, {SRD}, s{T0} offen")
        if o.echo_a >= 0:
            e(f"v_readlane_b32 s{T1}, v{vSTAMP}, {o.echo_a}"); e(f"v_readlane_b32 s{T2}, v{vSTAMP}, {o.echo_b}"); e(f"v_readlane_b32 s{T3}, v{vSTAMP}, 59")
            e(f"s_sub_u32 s{T2}, s{T2}, s{T1}"); e(f"s_mul_i32 s{T2}, s{T2}, {o.echo_mul}"); e(f"s_min_u32 s{T2}, s{T2}, 20000")
            if o.echo_idx >= 0: e(f"s_cmp_eq_u32 s{SIDX}, {o.echo_idx}"); e(f"s_cselect_b32 s{T2}, s{T2}, 0")
            A.label("L_echo")
            e(f"s_memrealtime s[{sSTAMP}:{sSTAMP+1}]"); e("s_waitcnt lgkmcnt(0)")
            e(f"s_sub_u32 s{T4}, s{sSTAMP}, s{T3}"); e(f"s_cmp_lt_u32 s{T4}, s{T2}"); e("s_cbranch_scc1 L_echo")
    e("s_endpgm")
    A.track = False
    A.label("L_ool")
    for blk in ool: blk()
    A.label("L_exit")
    e("s_endpgm")
    A.raw(f".fill (16384 + 256 - (. - L_ool))/4, 4, 0xbf810000")
    A.raw('.section .rodata,"a"'); A.raw(".p2align 6"); A.raw(f".amdhsa_kernel {KNAME}")
    for t in ("next_free_vgpr 512", "next_free_sgpr 102", "accum_offset 256", "group_segment_fixed_size 0", "kernarg_size 80",
              "user_sgpr_count 2", "user_sgpr_kernarg_segment_ptr 1", "system_sgpr_workgroup_id_x 1"):
        A.raw("  .amdhsa_" + t)
    A.raw(".end_amdhsa_kernel")
    return A.text()

if __name__ == "__main__":
    o = Opts()
    out = sys.argv[1]
    for kv in sys.argv[2:]:
        k, val = kv.split("=")
        assert hasattr(o, k), k
        setattr(o, k, int(val))
    open(out, "w").write(gen(o))
```

```python
import sys, struct
from asmlib import *

KNAME = "interleave_layers__linear_kernel_hedgehog__sliding_local_dilated__prompt_kernel"

WS_FLAGA = 0x0000000
WS_FLAGB = 0x0008000
WS_FLAGO = 0x0009000
WS_FLAGX = 0x000A000
WS_CS    = 0x0010000
CS_SZ    = 393216
WS_ST    = 0x0100000
WS_ZP    = 0x0140000
WS_STAMPS= 0x0180000
WS_HALO  = 0x0200000
WS_KVP   = 0x0400000
WS_W1    = (0x0800000, 0x0E00000)
WS_W2    = (0x1400000, 0x1600000)
WS_X     = 0x1800000
WS_X0    = WS_X
WS_O     = 0x1C00000
WS_SIZE  = 0x2000000
OOR      = 0x40000000

SLOT = 24576
M      = 147456
M_CS   = M + 64
M_ST   = M + 1024
M_KX   = M + 4096
M_VX   = M + 11264
M_ZF   = M + 10240
LDS_SIZE = 163840
VB_LDS = 57344
RAW1A, RAW1B, RAW2 = 3*SLOT, 4*SLOT, 5*SLOT

SRD = "s[4:7]"; SRT = "s[8:11]"
SW, SGRP, SMEM, SMODE, SCB, SRB = 12, 13, 14, 15, 17, 18
T0, T1, T2, T3, T4, T5, T6, T7 = 19, 20, 21, 22, 23, 24, 25, 26
SIDX, SXCC = 27, 29
sFOc, sFOp, sFXc, sFXp = 30, 31, 32, 33
sO, sXs = 34, 35
mPAR, mB1, mDIAG, mM0, mOWN0, mOWN1, sPC, mFIRST = 36, 38, 40, 42, 44, 46, 48, 50
sCSa, sCSb, sZo, sFBp, sSTs, sLW, sKV, sZP, sHALO, sTMO, sAo, sWo = 52, 53, 54, 55, 56, 57, 58, 59, 60, 61, 62, 63
P_AX, P_AW1, P_PHI, P_AW2, P_BX, P_BW1, P_BW2, P_OUT, P_DBG, P_WS = 64, 66, 68, 70, 72, 74, 76, 78, 80, 82
sCL0, sCL2, sL8, sW2l, sW2s, sHst, sHld = 72, 73, 2, 0, 3, 16, 28
D1, D2, D4 = 64, 65, 66
mX, mEO, mEX = 68, 70, 76
sSTAMP = 84
ROTA, ROTW = 86, 94

vLW = 0; vL16, vL64, vL128 = 1, 2, 3
vA = 4; vB = 8; vW1 = 10; vW2 = 11; vFP = 12; vSTl = 13; vSTs = 14; vSTAMP = 15
RES = 16; PHI = 32; ONES = 40; MP0, MP1, MO0, MO1 = 44, 45, 46, 47
vE1, vVr, vLW3, vCPF, vKX0, vKX1, vCSa, vCSb = range(32, 40)
vXW, vE0, vTCH, vSQ, vJUNK, vCV, vFree, vKX, vGM, vZW, vSW, vSR, vG16, vOut, vZL, vVal = range(48, 64)
ACC = 64
def acc(c, i): return ACC + 16*c + 4*i
def acc2(b, i): return ACC + 8*b + 4*i
STP = 160; CSR = 168; WFV = 192; FBV = 216; CI = 220
RING, HW2, HCS = 48, 240, 248
def RS(par, k): return 24*par if k == 0 else 240 - 48*k + 24*par
MF = "v_mfma_f32_16x16x32_bf16"
def f32hex(x): return "0x%08x" % struct.unpack("<I", struct.pack("<f", x))[0]
CK = (f32hex(1.4426950408889634), f32hex(1.4426950408889634 * 32 ** -0.5))
LIM = 0x100000

class Opts:
    verbose = 0; stamps = 0; last = 3; force_slow = 0; echo_a = -1; echo_b = -1; echo_mul = 1; echo_idx = -1; g1prof = 0
    NRES = 2
    ND = 4
    LA = 3
    APRE = 3
    wrE = 150; wrL = 100; w1sE = 1; w1sL = 2; wr0 = 150; w1s0 = 1; n1pre = 6
    w2E = 300; w2L = 200; w2sE = 25; w2sL = 20
    sper = 1; s0 = 0
    g2depth = 7; g2w = 2; bpos = 12; TG = 3
    w2BE = 400; w2sBE = 24; w2BL = 400; w2sBL = 20; wrBL = 110
    bper = 60; TB = 5; LAB = 3; hpos = 5
    aper = 150; aper0 = 110; aper2 = 130; aper3 = 200; gpos = 4; dk = 6
    rw = 12
    xf = 1; xt0 = 8
    bin = 1; bs0 = 1; w2e = 1
    rt = 1; rtb = 4; bbar = 1; tlb = 1; apoll = 1; ksl = 0; kgate = 0; psl = 0; dtouch = 0
    outsc = 1; oall = 0; nopf = 0; xall = 0; rin = 0; lazy = 3; p2pos = 5; lv1 = 0; lv2 = 0; early = 3; epos = 0
    CPL = 22; cpf = 1; cpf2 = 24; cpf3 = 26

def gen(o):
    A = Asm2(); e = A.e
    ool = []
    ND = o.ND; AD = ND; WQ = RING + 16*AD
    assert WQ + 8*ND <= 240 - 48*o.NRES and o.LA < AD
    lay = 0
    o.CPL = min(o.CPL, 5*o.last + 7)
    def E(lst):
        for t in lst: e(t)
    def stamp(name, force=0):
        if not o.stamps: return
        if o.g1prof and name in range(2, 11) and not force: return
        idx = name + 16*lay
        if o.stamps == 2 and name != 11 and idx not in (o.echo_a, o.echo_b): return
        e(f"{'s_memtime' if o.stamps == 3 else 's_memrealtime'} s[{sSTAMP}:{sSTAMP+1}]")
        e("s_waitcnt lgkmcnt(0)")
        e(f"v_writelane_b32 v{vSTAMP}, s{sSTAMP}, {59 if name == 11 else idx}")
    def srt(p, size):
        e(f"s_mov_b32 s8, s{p}"); e(f"s_mov_b32 s9, s{p+1}"); e(f"s_mov_b32 s10, {size}"); e("s_mov_b32 s11, 0x20000")
    def mask64(r, val):
        e(f"s_mov_b32 s{r}, 0x{val & 0xffffffff:08x}"); e(f"s_mov_b32 s{r+1}, 0x{val >> 32:08x}")
    def sm(r): return f"s[{r}:{r+1}]"
    def bc(r): return (v(r & ~1, 2), r & 1)
    def pk_fma(d, x, y, z, negx=False):
        yp, ys = bc(y); zp, zs = bc(z)
        e(f"v_pk_fma_f32 {v(d,2)}, {v(x,2)}, {yp}, {zp} op_sel:[0,{ys},{zs}] op_sel_hi:[1,{ys},{zs}]" + (" neg_lo:[1,0,0] neg_hi:[1,0,0]" if negx else ""))
    def pk_mul(d, x, y):
        yp, ys = bc(y)
        e(f"v_pk_mul_f32 {v(d,2)}, {v(x,2)}, {yp} op_sel:[0,{ys}] op_sel_hi:[1,{ys}]")
    def cvt4l(d, x0, x1):
        return [f"v_cvt_pk_bf16_f32 v{d}, v{x0}, v{x0+1}", f"v_cvt_pk_bf16_f32 v{d+1}, v{x0+2}, v{x0+3}",
                f"v_cvt_pk_bf16_f32 v{d+2}, v{x1}, v{x1+1}", f"v_cvt_pk_bf16_f32 v{d+3}, v{x1+2}, v{x1+3}"]
    def cvt4(d, x0, x1): E(cvt4l(d, x0, x1))
    def wt(t): return t + (" sc1" if t.startswith("buffer_store") else "")
    def st_mode(lines):
        ls, ld = A.new("slow"), A.new("done")
        e(f"s_cmp_lg_u32 s{SMODE}, 0"); e(f"s_cbranch_scc1 {ls}")
        E(lines); A.label(ld)
        def blk():
            A.label(ls); A.fence(); E([wt(t) for t in lines]); e("s_nop 7"); e(f"s_branch {ld}")
        ool.append(blk)
    def spin(body, cond, first=None):
        l, d = A.new("spin"), A.new("spind")
        e(f"s_mov_b32 s{sTMO}, {LIM}")
        if first:
            E(body); E(first); e("s_waitcnt vmcnt(0)"); E(cond); e(f"s_cbranch_vccz {d}")
        A.label(l); E(body); e(f"s_sub_u32 s{sTMO}, s{sTMO}, 1"); e("s_waitcnt vmcnt(0)"); E(cond)
        e(f"s_cbranch_scc1 {d}"); e(f"s_cbranch_vccnz {l}"); A.label(d)
    def retry(body, cond):
        l, d = A.new("rt"), A.new("rtd")
        def blk():
            A.label(l); spin(body, cond); e(f"s_branch {d}")
        ool.append(blk)
        return [f"s_cbranch_vccnz {l}", d + ":"]
    def signal(sreg):
        e("s_mov_b64 exec, 1"); e("s_waitcnt vmcnt(0)")
        st_mode([f"buffer_store_dword v{vVal}, off, {SRD}, s{sreg}"])
        e("s_mov_b64 exec, -1")
    def poll(sreg, val, first=None, mask=None):
        cond = [f"v_cmp_gt_u32 vcc, {val}, v{FBV}"]
        if mask: cond = [f"s_mov_b64 exec, {mask}"] + cond + ["s_mov_b64 exec, -1"]
        spin([f"buffer_load_dword v{FBV}, v{vFP}, {SRD}, s{sreg} offen sc1"], cond, first)
    def handoff(sp, sc, val, mask, emask, pre, first):
        ld = f"buffer_load_dword v{FBV}, v{vFP}, {SRD}, s{sc} offen sc1"
        d = A.new("hd")
        E(pre[:o.epos]); e(ld + " ;@PE"); E(pre[o.epos:])
        e("s_mov_b64 exec, 1"); e("s_waitcnt vmcnt(1)")
        st_mode([f"buffer_store_dword v{vVal}, off, {SRD}, s{sp}"])
        e("s_mov_b64 exec, -1")
        E(first)
        e("WAITV PE"); e(f"s_mov_b64 exec, {sm(emask)}"); e(f"v_cmp_gt_u32 vcc, {val}, v{FBV}"); e("s_mov_b64 exec, -1"); e(f"s_cbranch_vccz {d}")
        A.track = False; poll(sc, val, None, mask); A.track = True
        A.label(d)
    def poll2(sreg): e(f"buffer_load_dword v{FBV}, v{vFP}, {SRD}, s{sreg} offen sc1 ;@P2")
    def poll2chk(sreg, val, mask=None):
        l = A.new("p2")
        e("WAITV P2")
        if mask: e(f"s_mov_b64 exec, {mask}")
        e(f"v_cmp_gt_u32 vcc, {val}, v{FBV}")
        if mask: e("s_mov_b64 exec, -1")
        e(f"s_cbranch_vccnz {l}"); A.label(l + "_r")
        def blk(): A.label(l); poll(sreg, val, None, mask); e(f"s_branch {l}_r")
        ool.append(blk)
    def xreduce(groups):
        for op, q in groups: e(f"v_permlane32_swap_b32 v{q[0]}, v{q[1]}"); e(f"v_permlane32_swap_b32 v{q[2]}, v{q[3]}")
        for op, q in groups: e(f"{op} v{q[0]}, v{q[0]}, v{q[1]}"); e(f"{op} v{q[2]}, v{q[2]}, v{q[3]}")
        for op, q in groups: e(f"v_permlane16_swap_b32 v{q[0]}, v{q[2]}")
        for op, q in groups: e(f"{op} v{q[1]}, v{q[0]}, v{q[2]}"); e(f"{op} v{q[2]}, v{q[0]}, v{q[2]}")
        for op, q in groups: e(f"v_permlane16_swap_b32 v{q[1]}, v{q[2]}")
        for op, q in groups: e(f"v_mov_b32 v{q[0]}, v{q[1]}"); e(f"v_mov_b32 v{q[3]}, v{q[2]}")
        for op, q in groups: e(f"v_permlane32_swap_b32 v{q[0]}, v{q[1]}"); e(f"v_permlane32_swap_b32 v{q[2]}, v{q[3]}")
    def xparts(i):
        t = 160+8*i; g0 = t+4; st = []
        for kk in range(2):
            f = v(RES+8*i+4*kk, 4)
            st += [[f"{MF} {v(g0,4)}, {f}, {f}, {'0' if kk == 0 else v(g0,4)}"],
                   [f"buffer_store_dwordx4 {f}, v{vB+i}, {SRD}, s{sXs} offen offset:{kk*1024}"],
                   [f"{MF} {v(t,4)}, {v(ONES,4)}, {f}, {'0' if kk == 0 else v(t,4)}"]]
        return st, [[f"v_cndmask_b32 v{g0}, v{g0}, v{g0+1}, {sm(mPAR)}", f"v_cndmask_b32 v{g0+2}, v{g0+2}, v{g0+3}, {sm(mPAR)}"],
                    [f"v_cndmask_b32 v{t+1}, v{g0}, v{g0+2}, {sm(mB1)}"],
                    [f"s_mov_b64 exec, {sm(mDIAG)}", f"buffer_store_dwordx2 {v(t,2)}, v{vSTs}, {SRD}, s{sSTs} offen offset:{i*128}", "s_mov_b64 exec, -1"]]
    def xtile(through, blocks=(0, 1)):
        ps = [xparts(i) for i in blocks]
        st = sum((sum(p[0], []) for p in ps), []) + sum((sum(p[1], []) for p in ps), [])
        if through: E([wt(t) for t in st])
        else: st_mode(st)
    def w1_piece(par, stage, i):
        r = []; slot = (stage + 1) % 6
        if i % 4 == 0: r += [f"s_add_u32 m0, s{sLW}, {slot*SLOT + i*1024}", f"s_add_u32 s{sWo}, s{ROTW+stage}, {WS_W1[par] + i*1024}"]
        return r + [f"buffer_load_dwordx4 v{vW1}, {SRD}, s{sWo} offen offset:{(i%4)*1024} lds ;@W{stage}"]
    def w2_piece(par, part, i):
        r = []
        if i % 4 == 0:
            if part < 5:
                lb, sb = ((3+part)*SLOT, 57344 + part*SLOT) if part < 3 else ((part-3)*SLOT, (part-3)*SLOT)
                r += [f"s_add_u32 m0, s{sLW}, {lb + i*1024}", f"s_mov_b32 s{sWo}, {WS_W2[par] + sb + i*1024}"]
            else: r += [f"s_add_u32 m0, s{sL8}, {2*SLOT}", f"s_sub_u32 s{sWo}, {WS_W2[par] + 2*SLOT}, s{sW2l}"]
        return r + [f"buffer_load_dwordx4 v{vW2}, {SRD}, s{sWo} offen offset:{(i%4)*1024} lds"]
    def ldsrd(dst, addr):
        base = {0: vL16, 1: vL64, 2: vL128}[addr >> 16]
        return f"ds_read_b128 {dst}, v{base} offset:{addr & 0xffff}"
    def w1st(R, blk, sa, sb): return f"buffer_store_dwordx4 {R}, v{vW1}, {SRD}, s{sa if blk < 4 else sb} offen offset:{(blk%4)*1024} sc1"
    def csst(C, sreg): return ["s_mov_b32 exec_lo, 0x003f003f", "s_mov_b32 exec_hi, 0x003f003f", f"buffer_store_dwordx4 {C}, v{vOut}, {SRD}, s{sreg} offen sc1", "s_mov_b64 exec, -1"]
    def fb_body(k): return [f"s_mov_b32 s{T1}, {WS_FLAGB + 1024*k}", f"buffer_load_dwordx4 {v(FBV,4)}, v{vL16}, {SRD}, s{T1} offen sc1"]
    fb_cond = [f"v_and_b32 v{FBV}, v{FBV}, v{FBV+1}", f"v_and_b32 v{FBV+2}, v{FBV+2}, v{FBV+3}", f"v_and_b32 v{FBV}, v{FBV}, v{FBV+2}", f"v_cmp_ne_u32 vcc, 1, v{FBV}"]
    def fb_set(k): return ["s_mov_b64 exec, 1", f"buffer_store_dword v{vVal}, off, {SRD}, s{sFBp} offset:{1024*k} sc1", "s_mov_b64 exec, -1"]
    def xw(r, kb, ad=vXW): return f"ds_write2st64_b64 v{ad}, {v(r,2)}, {v(r+2,2)} offset0:{2*kb} offset1:{2*kb+1}"

    A.raw(f"; @launch grid=(256,1,1) block=(256,1,1) lds={LDS_SIZE}")
    A.raw('.amdgcn_target "amdgcn-amd-amdhsa--gfx950"'); A.raw(".text")
    A.raw(f".globl {KNAME}"); A.raw(".p2align 8"); A.raw(f".type {KNAME},@function"); A.label(KNAME)
    if o.stamps: e("s_memrealtime s[86:87]")
    e("s_cmp_ge_u32 s2, 256"); e("s_cbranch_scc1 L_exit")
    e(f"s_getpc_b64 {sm(sPC)}"); A.label("L_pc")
    e(f"s_lshr_b32 s{T0}, s2, 3"); e(f"s_mulk_i32 s{T0}, {o.CPL*128}"); e(f"v_min_u32 v252, {o.CPL-1}, v0"); e(f"v_lshl_add_u32 v252, v252, 7, s{T0}")
    e(f"global_load_dword v{vJUNK}, v252, {sm(sPC)}")
    e("s_load_dwordx16 s[64:79], s[0:1], 0"); e("s_load_dwordx4 s[80:83], s[0:1], 64")
    e("v_lshrrev_b32 v1, 6, v0"); e("v_and_b32 v254, 63, v0"); e(f"v_readfirstlane_b32 s{SW}, v1")
    if o.force_slow: e(f"s_lshr_b32 s{SGRP}, s2, 5"); e(f"s_and_b32 s{SMEM}, s2, 31")
    else: e(f"s_and_b32 s{SGRP}, s2, 7"); e(f"s_lshr_b32 s{SMEM}, s2, 3")
    if o.stamps: e(f"v_mov_b32 v{vSTAMP}, 0"); e("s_waitcnt lgkmcnt(0)"); e(f"v_writelane_b32 v{vSTAMP}, s86, 12"); e(f"v_writelane_b32 v{vSTAMP}, s{sPC}, 63")
    VM = 215
    e(f"s_lshl_b32 s{SIDX}, s{SGRP}, 5"); e(f"s_add_u32 s{SIDX}, s{SIDX}, s{SMEM}")
    e(f"s_lshr_b32 s{SRB}, s{SIDX}, 4"); e(f"s_and_b32 s{SCB}, s{SIDX}, 15")
    e(f"s_mul_i32 s{sLW}, s{SW}, 6144")
    e("v_lshrrev_b32 v203, 3, v254"); e("v_and_b32 v204, 7, v254"); e("v_lshlrev_b32 v204, 4, v204"); e("v_lshl_add_u32 v210, v203, 11, v204")
    e("v_lshrrev_b32 v200, 2, v254"); e("v_and_b32 v201, 3, v254")
    e("v_mul_u32_u24 v202, 6144, v200"); e("v_lshl_add_u32 v202, v201, 4, v202")
    e(f"s_lshl_b32 s{T2}, s{SRB}, 2"); e(f"s_add_u32 s{T2}, s{T2}, s{SW}"); e(f"s_lshl_b32 s{T2}, s{T2}, 16")
    e(f"s_lshl_b32 s{T4}, s{SCB}, 7"); e(f"s_add_u32 s{T3}, s{T2}, s{T4}")
    e(f"s_lshl_b32 s{T6}, s{SGRP}, 2"); e(f"s_add_u32 s{T6}, s{T6}, s{SW}")
    e(f"s_mul_i32 s{T5}, s{T6}, {32*6144}"); e(f"s_lshl_b32 s{T4}, s{SMEM}, 6"); e(f"s_add_u32 s{T5}, s{T5}, s{T4}")
    e(f"v_lshlrev_b32 v{vL16}, 4, v254"); e(f"v_and_b32 v{vG16}, 48, v254"); e(f"v_and_b32 v{VM}, 15, v254")
    e(f"s_lshl_b32 s{T1}, s{SCB}, 11"); e(f"s_add_u32 s{sXs}, s{T1}, {WS_X}")
    e(f"s_mul_i32 s{sAo}, s{SMEM}, 196608"); e(f"s_add_u32 s{sAo}, s{sAo}, s{sLW}"); e(f"s_mul_i32 s{ROTW}, s{SGRP}, {SLOT}")
    e("v_lshlrev_b32 v249, 7, v254")
    e(f"s_lshl_b32 s{T0}, s{SIDX}, 2"); e(f"s_add_u32 s{T0}, s{T0}, s{SW}"); e(f"s_mul_i32 s{sWo}, s{T0}, 6144")
    e("s_waitcnt lgkmcnt(0)")
    e(f"s_mov_b32 s4, s{P_WS}"); e(f"s_mov_b32 s5, s{P_WS+1}"); e(f"s_mov_b32 s6, {WS_SIZE}"); e("s_mov_b32 s7, 0x20000")
    e(f"s_or_b32 s{T0}, s{SMEM}, s{SW}"); e(f"s_cmp_lg_u32 s{T0}, 0"); e("s_cbranch_scc1 L_p0a")
    A.track = False
    for r in range(4): e(f"v_mov_b32 v{204+r}, 0")
    e(f"s_lshl_b32 s{T0}, s{SGRP}, 12")
    for j in range(4): e(f"buffer_store_dwordx4 v[204:207], v{vL16}, {SRD}, s{T0} offen offset:{j*1024} sc1")
    e(f"s_lshl_b32 s{T0}, s{SGRP}, 7"); e(f"s_add_u32 s{T0}, s{T0}, {WS_FLAGB}")
    e("s_mov_b64 exec, 0xff")
    for j in range(2): e(f"buffer_store_dwordx4 v[204:207], v{vL16}, {SRD}, s{T0} offen offset:{j*1024} sc1")
    e("s_mov_b64 exec, -1")
    A.track = True
    A.label("L_p0a")
    n0 = len(A.vq)
    def rowtouch(p):
        srt(p, 0x600000)
        e("s_mov_b32 exec_hi, 0xffff"); e(f"buffer_load_dword v{vJUNK}, v249, {SRT}, s{sWo} offen"); e("s_mov_b64 exec, -1")
    if o.rt == 1: rowtouch(P_AW1)
    srt(P_AX, 0x400000)
    for i in range(4):
        e(f"s_add_u32 m0, s{sLW}, {i*1024}"); e(f"s_add_u32 s{T0}, s{T3}, {i*16384}")
        e(f"buffer_load_dwordx4 v210, {SRT}, s{T0} offen lds ;@x")
    if o.rt == 2: rowtouch(P_AW1)
    def touch(p, *calc):
        if o.tlb: E(list(calc)); e(f"s_load_dword s{sTMO}, s[{p}:{p+1}], s{T0}")
    if o.dtouch: touch(P_DBG, f"s_movk_i32 s{T0}, 128")
    touch(P_WS, f"s_add_u32 s{T0}, s{T2}, s{sXs}")
    touch(P_WS, f"s_add_u32 s{T0}, s{sAo}, s{ROTW}", f"s_add_u32 s{T0}, s{T0}, {WS_W1[0]}")
    touch(P_WS, f"s_mov_b32 s{T0}, 0x1f0000")
    touch(P_BW1, f"s_mov_b32 s{T0}, s{T5}"); touch(P_AW2, f"s_lshl_b32 s{T0}, s{SRB}, 17"); touch(P_BW2)
    srt(P_PHI, 0x10000)
    e(f"s_add_u32 m0, s{sLW}, 4096"); e(f"s_lshl_b32 s{T0}, s{SMEM}, 11")
    for j in range(2): e(f"buffer_load_dwordx4 v{vL16}, {SRT}, s{T0} offen offset:{j*1024} lds ;@phi")
    def raw1(p, ldsb, tag):
        srt(p, 0x600000)
        for seg in range(3):
            for hf in range(2):
                e(f"s_add_u32 m0, s{sLW}, {ldsb + seg*2048 + hf*1024}"); e(f"s_add_u32 s{T0}, s{T5}, {seg*2048 + hf*16*6144}")
                e(f"buffer_load_dwordx4 v202, {SRT}, s{T0} offen lds ;@{tag}")
    raw1(P_AW1, RAW1A, "ra")
    e(f"s_or_b32 s{T0}, s{SMEM}, s{SW}"); e(f"s_cmp_lg_u32 s{T0}, 0"); e("s_cbranch_scc1 L_p0b")
    A.track = False
    srt(P_DBG, 256); e("v_mov_b32 v204, 1"); e(f"s_lshl_b32 s{T0}, s{SGRP}, {4 if o.dtouch else 5}")
    e(f"s_waitcnt vmcnt({len(A.vq) - n0})")
    e("s_mov_b64 exec, 1"); e(f"buffer_store_dword v204, off, {SRT}, s{T0} sc1"); e("s_mov_b64 exec, -1")
    A.track = True
    A.label("L_p0b")
    e(f"v_lshl_add_u32 v214, v{VM}, 7, v{vG16}"); e(f"v_add_u32 v214, s{sLW}, v214")
    e(f"v_add_u32 v{vB}, s{T2}, v{vL16}"); e(f"v_add_u32 v{vB+1}, 0x8000, v{vB}")
    e(f"s_lshr_b32 s{T2}, s{T2}, 8"); e(f"v_lshl_add_u32 v{vSTs}, v{VM}, 3, s{T2}")
    e(f"s_lshl_b32 s{T0}, s{SCB}, 14"); e(f"s_add_u32 s{sSTs}, s{T0}, {WS_ST}")
    mask64(mPAR, 0xAAAAAAAAAAAAAAAA); mask64(mB1, 0xCCCCCCCCCCCCCCCC); mask64(mDIAG, 0xF0000F0000F0000F)
    for r in range(4): e(f"v_mov_b32 v{ONES+r}, 0x3f803f80")
    stamp(28)
    e("WAITV x")
    for i in range(2):
        for kk in range(2): e(f"ds_read_b128 {v(RES+8*i+4*kk,4)}, v214 offset:{i*2048 + kk*64}")
    e(f"v_add_u32 v{vW1}, s{sAo}, v{vL16}"); e(f"v_add_u32 v{vLW}, s{sLW}, v{vL16}")
    e("v_and_b32 v209, 3, v200"); e(f"v_lshrrev_b32 v203, 1, v{vG16}"); e("v_add_u32 v209, v209, v203")
    e("v_lshlrev_b32 v203, 6, v209"); e("v_lshl_add_u32 v205, v201, 3, v203"); e(f"v_add_u32 v205, s{sLW}, v205")
    e("v_lshl_add_u32 v206, v201, 4, v203"); e(f"s_add_u32 s{T1}, s{sLW}, {RAW1A}"); e(f"v_add_u32 v206, s{T1}, v206")
    e(f"v_lshrrev_b32 v203, 2, v{VM}"); e("v_lshl_add_u32 v203, v203, 3, v201"); e(f"v_lshl_add_u32 v203, v203, 6, v{vG16}"); e(f"v_add_u32 v208, s{T1}, v203")
    e(f"v_lshl_add_u32 v{vOut}, v{VM}, 11, v{vG16}")
    e("s_waitcnt lgkmcnt(0)")
    stamp(29)
    if o.rtb == 1: rowtouch(P_BW1)
    xtile(True)
    if o.rtb == 2: rowtouch(P_BW1)
    for blk in range(6):
        mask64(T1, 0x0001000100010001 << blk)
        for r in range(4): e(f"v_cndmask_b32 v{96+4*blk+r}, 0, v{ONES}, {sm(T1)}")
    e(f"s_add_u32 s{T2}, s{ROTW}, {WS_W1[0]}"); e(f"s_add_u32 s{T4}, s{T2}, 4096")
    e(f"s_lshl_b32 s{T0}, s{T6}, 6"); e(f"s_mul_i32 s{T1}, s{SMEM}, 12288"); e(f"s_add_u32 s{T0}, s{T0}, s{T1}"); e(f"s_add_u32 s{sCL0}, s{T0}, {WS_CS}")
    e("WAITV phi")
    for fb in range(2):
        for t in range(2): e(f"ds_read_b64_tr_b16 {v(PHI+4*fb+2*t,2)}, v205 offset:{4096 + fb*32 + t*256}")
    e("WAITV ra")
    stamp(13)
    RA, RB = RS(0, 0), RS(1, 0)
    for seg in range(2):
        for kb in range(2): e(f"ds_read_b128 {v(120+8*seg+4*kb,4)}, v208 offset:{seg*2048 + kb*256} ;@s{seg}")
    for blk in (4, 5):
        for t in range(2): e(f"ds_read_b64_tr_b16 {a(RA+4*blk+2*t,2)}, v206 offset:{4096 + t*256 + (blk&1)*8}")
    for seg in range(2):
        e(f"WAITL s{seg}")
        for fb in range(2):
            for kb in range(2): e(f"{MF} {v(160+16*seg+8*fb+4*kb,4)}, {v(120+8*seg+4*kb,4)}, {v(PHI+4*fb,4)}, 0")
    e("s_waitcnt lgkmcnt(0)")
    for blk in (4, 5):
        e(w1st(a(RA+4*blk,4), blk, T2, T4))
        e(f"{MF} v[64:67], {a(RA+4*blk,4)}, {v(96+4*blk,4)}, {'0' if blk == 4 else 'v[64:67]'}")
    for blk in range(4):
        cvt4(136+4*blk, 160+8*blk, 164+8*blk)
        e(w1st(v(136+4*blk,4), blk, T2, T4))
        e(f"{MF} v[64:67], {v(136+4*blk,4)}, {v(96+4*blk,4)}, v[64:67]")
    for r in range(16): e(f"v_accvgpr_write_b32 a{RA+r}, v{136+r}")
    E(csst(v(64,4), sCL0))
    srt(P_DBG, 256)
    e("v_and_b32 v253, 7, v254"); e(f"v_lshlrev_b32 v253, {4 if o.dtouch else 5}, v253"); e(f"s_cmp_eq_u32 s{SW}, 0"); e(f"s_cselect_b32 s{T0}, 0, {OOR}")
    e(f"buffer_load_dword v212, v253, {SRT}, s{T0} offen sc1 ;@go")
    if o.bbar: e("s_barrier")
    if o.rtb == 3: rowtouch(P_BW1)
    e(f"s_lshl_b32 s{T0}, s{SRB}, 1"); e(f"s_and_b32 s{T3}, s{SW}, 1"); e(f"s_add_u32 s{T0}, s{T0}, s{T3}")
    e(f"s_lshl_b32 s{T1}, s{SCB}, 1"); e(f"s_lshr_b32 s{T4}, s{SW}, 1"); e(f"s_add_u32 s{T1}, s{T1}, s{T4}"); e(f"s_lshl_b32 s{T1}, s{T1}, 6")
    e(f"s_lshl_b32 s{sW2s}, s{T0}, 12"); e(f"s_lshl_b32 s{T0}, s{T0}, 16"); e(f"s_add_u32 s{T0}, s{T0}, s{T1}"); e(f"s_add_u32 s{T1}, s{T0}, 0x8000")
    e("v_lshlrev_b32 v203, 11, v200"); e("v_lshl_add_u32 v207, v201, 4, v203")
    e(f"s_mov_b32 s{D1}, s{T0}"); e(f"s_mov_b32 s{D2}, s{T1}")
    def raw2(wt_):
        srt((P_AW2, P_BW2)[wt_], 0x200000)
        for i in range(2):
            e(f"s_add_u32 m0, s{sLW}, {RAW2 + wt_*2048 + i*1024}")
            e(f"buffer_load_dwordx4 v207, {SRT}, s{D1 + i} offen lds ;@r2{wt_}")
    for wt_ in range(o.w2e): raw2(wt_)
    for blk in range(6): e(f"ds_write_b128 v{vLW}, {a(RA+4*blk,4)} offset:{SLOT + blk*1024}")
    stamp(30)
    e(f"s_getreg_b32 s{SXCC}, hwreg(HW_REG_XCC_ID, 0, 4)"); e(f"s_or_b32 s{SXCC}, s{SXCC}, 0x100")
    e(f"v_mov_b32 v{vVal}, s{SXCC}")
    e(f"s_lshl_b32 s{T0}, s{T4}, 11"); e(f"s_add_u32 s{sW2s}, s{sW2s}, s{T0}"); e(f"s_lshl_b32 s{T0}, s{SCB}, 17")
    e(f"s_add_u32 s{sW2s}, s{sW2s}, s{T0}"); e(f"s_add_u32 s{sW2s}, s{sW2s}, {WS_W2[0]}")
    e(f"s_lshl_b32 s{T1}, s{SMEM}, 15"); e(f"s_lshl_b32 s{T2}, s{SW}, 10"); e(f"s_add_u32 s{T1}, s{T1}, s{T2}"); e(f"s_add_u32 s{sKV}, s{T1}, {WS_KVP - WS_X + (1<<32)}")
    e(f"s_lshr_b32 s{T1}, s{T1}, 4"); e(f"s_add_u32 s{sZP}, s{T1}, {WS_ZP}")
    for s_ in range(8):
        e(f"s_add_u32 s{T1}, s{SGRP}, {s_}"); e(f"s_and_b32 s{T1}, s{T1}, 7")
        e(f"s_mul_i32 s{ROTW+s_}, s{T1}, {SLOT}"); e(f"s_lshl_b32 s{T1}, s{T1}, 12"); e(f"s_add_u32 s{ROTA+s_}, s{T1}, {WS_X}")
    e(f"s_lshl_b32 s{T1}, s{SIDX}, 11"); e(f"s_add_u32 s{sHALO}, s{T1}, {WS_HALO}")
    e(f"s_lshl_b32 s{T1}, s{SMEM}, 10"); e(f"s_add_u32 s{sO}, s{T1}, {WS_O}")
    touch(P_WS, f"s_mov_b32 s{T0}, s{sW2s}")
    touch(P_WS, f"s_add_u32 s{T0}, s{sKV}, s{ROTA}")
    touch(P_WS, f"s_add_u32 s{T0}, s{sW2s}, {WS_W2[1] - WS_W2[0]}")
    touch(P_WS, f"s_add_u32 s{T0}, s{sAo}, s{ROTW}", f"s_add_u32 s{T0}, s{T0}, {WS_W1[1]}")
    touch(P_WS, f"s_mov_b32 s{T0}, s{sHALO}")
    touch(P_WS, f"s_lshl_b32 s{T0}, s{T6}, 17", f"s_add_u32 s{T0}, s{T0}, s{sO}")
    touch(P_OUT, f"s_lshl_b32 s{T0}, s{SRB}, 18", f"s_lshl_b32 s{T1}, s{SCB}, 7", f"s_add_u32 s{T0}, s{T0}, s{T1}")
    e(f"s_lshl_b32 s{T0}, s{SGRP}, 5"); e(f"v_add_u32 v203, s{T0}, v254")
    e("v_and_b32 v204, 7, v254"); e(f"v_lshl_add_u32 v204, v204, 5, s{SMEM}")
    mask64(T1, 0x00000000FFFFFFFF); e(f"v_cndmask_b32 v211, v204, v203, {sm(T1)}"); e("v_lshlrev_b32 v211, 7, v211")
    e(f"s_cmp_eq_u32 s{SW}, 0"); e(f"s_cselect_b32 s{T0}, 1, 0")
    e("WAITV go")
    stamp(31)
    e(f"v_cmp_ne_u32 vcc, s{T0}, v212"); e("s_cbranch_vccnz L_goslow")
    A.label("L_gook")
    def goslow():
        A.label("L_goslow"); srt(P_DBG, 256); e("s_waitcnt lgkmcnt(0)")
        spin([f"buffer_load_dword v212, v253, {SRT}, 0 offen sc1"], ["v_cmp_ne_u32 vcc, 1, v212"]); e("s_branch L_gook")
    ool.append(goslow)
    e(f"s_lshl_b32 s{T0}, s{SIDX}, 7"); e(f"s_cmp_eq_u32 s{SW}, 0"); e(f"s_cselect_b32 s{T0}, s{T0}, {OOR}")
    e("s_barrier")
    e("s_mov_b64 exec, 1"); e(f"buffer_{'atomic_or' if o.apoll else 'store_dword'} v{vVal}, off, {SRD}, s{T0} sc1"); e("s_mov_b64 exec, -1")
    stamp(14)
    for wt_ in range(o.w2e, 2): raw2(wt_)
    if o.rtb == 4: rowtouch(P_BW1)
    if not o.bin: raw1(P_BW1, RAW1B, "rb")
    else: srt(P_BW1, 0x600000)
    mask64(mM0, 0x0001000100010001)
    mask64(mOWN0, sum(1 << l for l in range(64) if 4*(l >> 4) + (l & 1) <= (l & 15)))
    mask64(mOWN1, sum(1 << l for l in range(64) if 4*(l >> 4) + 2 + (l & 1) <= (l & 15)))
    e(f"s_lshl_b32 s{T1}, s{T6}, 7"); e(f"s_add_u32 s{sFXc}, s{T1}, {WS_FLAGX}")
    e(f"s_lshl_b32 s{T2}, s{SMEM}, 2"); e(f"s_add_u32 s{T1}, s{T1}, s{T2}"); e(f"s_add_u32 s{sFOp}, s{T1}, {WS_FLAGO}")
    e(f"s_lshl_b32 s{T1}, s{SRB}, 1"); e(f"s_add_u32 s{T1}, s{T1}, s{T4}"); e(f"s_lshl_b32 s{T1}, s{T1}, 7")
    e(f"s_add_u32 s{sFOc}, s{T1}, {WS_FLAGO}")
    e(f"s_lshl_b32 s{T2}, s{SCB}, 3"); e(f"s_lshl_b32 s{T0}, s{T3}, 2")
    e(f"s_add_u32 s{T1}, s{T1}, s{T2}"); e(f"s_add_u32 s{T1}, s{T1}, s{T0}"); e(f"s_add_u32 s{sFXp}, s{T1}, {WS_FLAGX}")
    e(f"s_lshl_b32 s{T0}, s{SGRP}, 8"); e(f"s_add_u32 s{sZo}, s{T0}, s{sZP}")
    e(f"s_lshl_b32 s{T1}, s{T3}, 10"); e(f"s_lshl_b32 s{T2}, s{T4}, 19")
    e(f"s_add_u32 s{T1}, s{T1}, s{T2}"); e(f"s_add_u32 s{sCL2}, s{T1}, s{sHALO}")
    e(f"s_lshl_b32 s{T1}, s{SIDX}, 2"); e(f"s_add_u32 s{T1}, s{T1}, {WS_FLAGB}"); e(f"s_cmp_eq_u32 s{SW}, 0"); e(f"s_cselect_b32 s{sFBp}, s{T1}, {OOR}")
    e(f"s_cmp_eq_u32 s{SW}, 3"); e(f"s_cselect_b32 s{sHst}, s{sHALO}, {OOR}")
    e(f"s_sub_u32 s{T1}, s{sHALO}, 0x10000"); e(f"s_cmp_eq_u32 s{SW}, 0"); e(f"s_cselect_b32 s{T1}, s{T1}, {OOR}")
    e(f"s_cmp_eq_u32 s{SGRP}, 0"); e(f"s_cselect_b32 s{sHld}, {OOR}, s{T1}")
    e(f"s_lshl_b32 s{T0}, s{SGRP}, 2"); e(f"s_lshl_b32 s{mX}, 15, s{T0}"); e(f"s_mov_b32 s{mX+1}, 0")
    e(f"s_sub_u32 s{T0}, s{sFOp}, s{sFOc}"); e(f"s_lshr_b32 s{T1}, s{T0}, 2"); e(f"s_lshl_b32 s{T1}, 1, s{T1}"); e(f"s_cmp_lt_u32 s{T0}, 128"); e(f"s_cselect_b32 s{T1}, s{T1}, 0")
    e(f"s_andn2_b32 s{mEO}, {(1 << (o.g2depth - 1)) - 1 if o.lazy & 2 else -1}, s{T1}"); e(f"s_mov_b32 s{mEO+1}, 0")
    e(f"s_sub_u32 s{T0}, s{sFXp}, s{sFXc}"); e(f"s_lshr_b32 s{T1}, s{T0}, 2"); e(f"s_lshl_b32 s{T1}, 1, s{T1}"); e(f"s_cmp_lt_u32 s{T0}, 128"); e(f"s_cselect_b32 s{T1}, s{T1}, 0")
    e(f"s_andn2_b32 s{mEX}, {'s%d' % mX if o.lazy & 1 else -1}, s{T1}"); e(f"s_mov_b32 s{mEX+1}, 0")
    e(f"s_lshl_b32 s{sL8}, s{SW}, 11"); e(f"s_lshl_b32 s{sW2l}, s{SW}, 12")
    e(f"s_or_b32 s{T0}, s{SGRP}, s{SW}"); e(f"s_cmp_eq_u32 s{T0}, 0"); e(f"s_cselect_b64 {sm(mFIRST)}, -1, 0")
    e(f"v_add_u32 v{vL64}, 0x10000, v{vL16}"); e(f"v_add_u32 v{vL128}, 0x20000, v{vL16}"); e(f"v_add_u32 v{vLW3}, {(3-o.nopf)*SLOT}, v{vLW}")
    e(f"v_and_b32 v{vFP}, 31, v254"); e(f"v_lshlrev_b32 v{vFP}, 2, v{vFP}")
    e(f"s_lshl_b32 s{T1}, s{T6}, 17"); e(f"v_add_u32 v{vA}, s{T1}, v{vL16}")
    for i in range(1, 4): e(f"v_add_u32 v{vA+i}, {i*0x8000}, v{vA}")
    e(f"s_lshl_b32 s{T1}, s{T6}, 9"); e("v_lshrrev_b32 v213, 5, v254"); e(f"v_lshl_add_u32 v{vSTl}, v213, 17, s{T1}"); e(f"v_lshl_add_u32 v{vSTl}, v{vFP}, 2, v{vSTl}")
    e(f"s_lshl_b32 s{T1}, s{SCB}, 17"); e(f"s_add_u32 s{T1}, s{T1}, s{sLW}"); e(f"v_add_u32 v{vW2}, s{T1}, v{vL16}")
    e("v_lshrrev_b32 v203, 4, v254"); e("v_xor_b32 v204, v203, v201"); e("v_lshlrev_b32 v204, 3, v204"); e("v_lshl_add_u32 v208, v200, 5, v204")
    e(f"s_lshl_b32 s{T2}, s{SW}, 12")
    e(f"v_lshrrev_b32 v204, 2, v{VM}"); e("v_xor_b32 v203, v203, v204"); e("v_lshlrev_b32 v203, 3, v203")
    e(f"v_lshl_add_u32 v203, v{VM}, 5, v203"); e(f"v_add_u32 v{vXW}, s{T2}, v203")
    e(f"s_lshl_b32 s{T0}, s{T4}, 14"); e(f"s_lshl_b32 s{T1}, s{T3}, 9"); e(f"s_add_u32 s{T2}, s{T0}, s{T1}"); e(f"v_add_u32 v{vE0}, s{T2}, v208")
    e(f"v_xor_b32 v{vE1}, 512, v{vE0}"); e(f"s_add_u32 s{T1}, s{T1}, {VB_LDS}"); e(f"v_add_u32 v{vVr}, s{T1}, v208")
    e(f"s_lshl_b32 s{T1}, s{T3}, 3")
    e(f"v_add_u32 v{vGM}, {M}, v{vG16}")
    e(f"s_lshl_b32 s{T0}, s{T4}, 6"); e(f"s_add_u32 s{T0}, s{T0}, s{T1}"); e(f"v_add_u32 v{vZW}, s{T0}, v{vGM}")
    e(f"s_lshl_b32 s{T0}, s{SW}, 10"); e(f"s_add_u32 s{T0}, s{T0}, {M_KX}"); e(f"v_add_u32 v{vKX}, s{T0}, v{vL16}")
    e(f"v_add_u32 v{vKX0}, s{T1}, v{vKX}"); e(f"v_xor_b32 v{vKX1}, 8, v{vKX0}")
    e(f"s_lshl_b32 s{T0}, s{SW}, 9"); e(f"s_add_u32 s{T0}, s{T0}, {M_ST}")
    e(f"v_lshl_add_u32 v203, v213, 2, s{T0}"); e(f"v_lshl_add_u32 v{vSW}, v{vFP}, 1, v203"); e(f"v_lshl_add_u32 v{vSR}, v{VM}, 2, s{T0}")
    e(f"v_add_u32 v{vSQ}, s{T0}, v{vG16}"); e(f"v_lshlrev_b32 v203, 2, v{VM}"); e(f"v_add_u32 v{vCV}, {M_CS + 384}, v203")
    e(f"v_and_b32 v203, 7, v{VM}"); e(f"v_lshl_add_u32 v{vZL}, v203, 8, v{vG16}")
    e("v_mov_b32 v203, 0xffff"); e("v_mov_b32 v204, 0xffff0000"); e(f"v_cndmask_b32 v203, v203, v204, {sm(mPAR)}")
    e(f"v_cndmask_b32 v{MO0}, 0, v203, {sm(mOWN0)}"); e(f"v_cndmask_b32 v{MO1}, 0, v203, {sm(mOWN1)}")
    e(f"v_xor_b32 v{MP0}, v203, v{MO0}"); e(f"v_xor_b32 v{MP1}, v203, v{MO1}")
    e(f"s_add_u32 s{T2}, s{SW}, 4"); e(f"s_min_u32 s{T2}, s{T2}, 5"); e(f"s_mul_i32 s{T0}, s{SMEM}, 12288"); e(f"s_add_u32 s{T0}, s{T0}, {WS_CS}")
    e(f"s_lshl_b32 s{T1}, s{SW}, 11"); e(f"s_add_u32 s{sCSa}, s{T0}, s{T1}"); e(f"s_lshl_b32 s{T1}, s{T2}, 11"); e(f"s_add_u32 s{sCSb}, s{T0}, s{T1}")
    e("v_bfe_u32 v203, v254, 4, 1"); e("v_lshlrev_b32 v203, 3, v203"); e("v_lshl_add_u32 v203, v213, 2, v203"); e("v_lshl_add_u32 v203, v201, 4, v203"); e(f"v_add_u32 v203, {M_CS}, v203")
    e(f"s_lshl_b32 s{T1}, s{SW}, 6"); e(f"v_add_u32 v{vCSa}, s{T1}, v203"); e(f"s_lshl_b32 s{T1}, s{T2}, 6"); e(f"v_add_u32 v{vCSb}, s{T1}, v203")
    e(f"s_lshl_b32 s{T0}, s{SMEM}, 2"); e(f"s_add_u32 s{T0}, s{T0}, s{SW}"); e(f"s_lshl_b32 s{T2}, s{T0}, 7"); e(f"v_mov_b32 v{vCPF}, s{T2}")
    e(f"s_lshr_b32 s{T1}, s{T0}, 3"); e(f"s_and_b32 s{T0}, s{T0}, 7")
    e(f"s_lshl_b32 s{T2}, s{SGRP}, 4"); e(f"s_add_u32 s{T1}, s{T1}, s{T2}"); e(f"s_lshl_b32 s{T1}, s{T1}, 15"); e(f"s_lshl_b32 s{T0}, s{T0}, 9"); e(f"s_add_u32 s{T0}, s{T0}, s{T1}")
    e(f"v_lshl_add_u32 v{vTCH}, v{vG16}, 3, s{T0}")
    for r in range(4): e(f"v_accvgpr_write_b32 a{252+r}, -1")
    e(f"v_mov_b32 v{vVal}, 0"); e(f"s_add_u32 s{T0}, s{sKV}, s{ROTA}")
    e(f"buffer_store_dwordx4 a[252:255], v{vL16}, {SRD}, s{T0} offen sc1")
    e(f"s_mov_b64 exec, {sm(mM0)}"); e(f"buffer_store_dwordx4 a[252:255], v{vG16}, {SRD}, s{sZo} offen sc1")
    e("s_mov_b64 exec, 1"); e(f"buffer_store_dword v{vVal}, off, {SRD}, s{sFOp} sc1"); e(f"buffer_store_dword v{vVal}, off, {SRD}, s{sFXp} sc1"); e("s_mov_b64 exec, -1")
    e(f"s_cmp_eq_u32 s{SW}, 0"); e(f"s_cselect_b32 s{T7}, 0, {OOR}")
    pl = [f"buffer_load_dword v212, v211, {SRD}, s{T7} offen sc1"]
    if o.apoll: pl = ["v_mov_b32 v212, -1", "s_mov_b32 exec_hi, 0xff", "v_mov_b32 v212, 0", f"buffer_atomic_or v212, v211, {SRD}, s{T7} offen sc0 sc1", "s_mov_b64 exec, -1"]
    def w2tr(wt_):
        e(f"WAITV r2{wt_}")
        for b_ in range(2):
            for t in range(2):
                d_ = v(224+4*b_+2*t, 2) if wt_ == 0 else a(HW2+4*b_+2*t, 2)
                e(f"ds_read_b64_tr_b16 {d_}, v206 offset:{2*SLOT + wt_*2048 + t*256 + b_*8}")
    def w2ast():
        e("s_waitcnt lgkmcnt(0)")
        for b_ in range(2): e(f"buffer_store_dwordx4 {v(224+4*b_,4)}, v{vL16}, {SRD}, s{sW2s} offen offset:{b_*1024} sc1 ;@b1")
    if o.bin:
        w2tr(0); w2ast()
        e("v_mov_b32 v248, v202"); e(f"v_subrev_u32 v249, {RAW1A}, v206")
        stamp(44)
        E([t + (" ;@poll" if t.startswith("buffer") else "") for t in pl])
        w2tr(1); e("s_waitcnt lgkmcnt(0)")
    else:
        e("WAITV rb")
        stamp(44)
        E([t + (" ;@poll" if t.startswith("buffer") else "") for t in pl])
        w2tr(0); w2tr(1); w2ast()
        for blk in range(6):
            for t in range(2): e(f"ds_read_b64_tr_b16 {a(RB+4*blk+2*t,2)}, v206 offset:{SLOT + (blk>>1)*2048 + t*256 + (blk&1)*8} ;@r{blk}")
        for blk in range(6):
            e(f"WAITL r{blk}")
            e(f"{MF} {a(HCS,4)}, {a(RB+4*blk,4)}, {v(96+4*blk,4)}, {'0' if blk == 0 else a(HCS,4)}")
    e(f"v_mov_b32 v{vVal}, 1")
    stamp(45)
    e("WAITV poll")
    e(f"s_cmp_lg_u32 s{SW}, 0"); e("s_cbranch_scc1 L_faok")
    A.track = False
    e("v_cmp_eq_u32 vcc, 0, v212"); e("s_cbranch_vccz L_fad")
    spin(([f"s_sleep {o.psl}"] if o.psl else []) + pl, ["v_cmp_eq_u32 vcc, 0, v212"])
    A.label("L_fad")
    e(f"v_cmp_ne_u32 {sm(T1)}, s{SXCC}, v212"); e(f"v_mov_b32 v212, s{T1}")
    e(f"ds_write_b32 v{vGM}, v212"); e("s_waitcnt lgkmcnt(0)")
    A.track = True
    A.label("L_faok")
    e("s_barrier")
    stamp(15)
    e(f"ds_read_b32 v{FBV}, v{vGM} ;@mode")

    for lay in range(o.last + 1):
        par = lay & 1; early = lay < 2; li = lay >> 1; last = lay == o.last
        A.label(f"L_layer{lay}")
        stamp(0)
        nd = ND if par == 0 else 0; TB = o.TB if par else 0
        NF = 4*AD if par == 0 else 4*AD + 2*ND; LAF = 4*(o.LA if par == 0 else o.LAB)
        assert LAF + 4 <= NF
        units = [(st, (0, 1, 2, 3), list(range(2 if st >= 32 - nd else 0, 6))) for st in range(32 - TB)]
        units += [(st, bl, list(range(6))) for bl in ((2, 3), (0, 1)) for st in range(32 - TB, 32)]
        anext = [(u, st, i) for u, (st, bl, _) in enumerate(units) for i in bl]
        fidx = {(st, i): n for n, (u, st, i) in enumerate(anext)}
        def afr(step, i): return a(RING + 4*(fidx[(step, i)] % NF), 4)
        def wdst(step, c):
            if c < 2 and step >= 32 - nd: return a(WQ + 8*(step - (32-nd)) + 4*c, 4)
            return v(WFV + 4*c, 4)
        def w1rd(u, c):
            step = units[u][0]
            return ldsrd(wdst(step, c), ((step//4 + 1) % 6)*SLOT + (step % 4)*6144 + c*1024) + f" ;@w{u}_{c}"
        def aload(u, step, i):
            return f"buffer_load_dwordx4 {afr(step, i)}, v{vA+i}, {SRD}, s{ROTA + step//4} offen offset:{(step%4)*1024} sc1 ;@A{u}"
        def mma(step, c, i):
            x, y = (afr(step, i), wdst(step, c)) if (par and c >= 4) else (wdst(step, c), afr(step, i))
            return f"{MF} {v(acc(c,i),4)}, {x}, {y}, {'0' if step == 0 else v(acc(c,i),4)}"
        def ostore(i, through):
            t = f"buffer_store_dwordx4 {v(224+4*i,4)}, v{vA+i}, {SRD}, s{sO} offen"
            if through: e(wt(t))
            else: st_mode([t])
        if lay == 0:
            for c in range(6): e(w1rd(0, c))
        for j in range(4*o.APRE): e(aload(*anext.pop(0)))
        nbar = 0
        if lay == 0:
            for i in range(6): E(w1_piece(par, 1, i))
            e("WAITL mode"); e(f"v_readfirstlane_b32 s{SMODE}, v{FBV}")
        else:
            if o.lazy & 1: poll2(sFXc)
            e("s_waitcnt lgkmcnt(0)"); e("s_barrier")
            for c in range(6): e(w1rd(0, c))
        wr, w1s, w2r, w2s = (o.wrE, o.w1sE, o.w2E, o.w2sE) if early else (o.wrL, o.w1sL, o.w2L, o.w2sL)
        if par: w2r, w2s = (o.w2BE, o.w2sBE) if early else (o.w2BL, o.w2sBL)
        if lay == 3: wr = o.wrBL
        if lay == 0: wr, w1s = o.wr0, o.w1s0
        pend = [("W", st, i) for st in range(2 if early else 2 + o.NRES - o.nopf, 8) for i in range(6)] + [("W2", p, i) for p in range(4 + par) for i in range(6)]
        def allowed(p, t):
            if p[0] == "W" and p[1] == 5 and lay == 0 and o.bin and not ready("r5"): return False
            if p[0] == "W": return p[1] < 6 or nbar >= p[1] - 4
            return nbar >= p[1] + 4 and t >= w2s and (lay > 0 or fbdone[0])
        fbdone = [False]
        misc = [(max(o.s0 + o.sper*j, o.lazy & 1), [f"s_mov_b32 s{T0}, {WS_ST + j*16384}", f"buffer_load_dwordx4 {v(160+4*j,4)}, v{vSTl}, {SRD}, s{T0} offen sc1 ;@S{j}"]) for j in range(8)]
        extra = []
        extra2 = []; sh2 = []
        sh = []
        if early:
            for j in range(4):
                extra.append((4 + j, [f"buffer_load_dwordx4 {v(224+8*(j//2)+4*(j%2),4)}, v{vL16}, {SRD}, s{(sCSa, sCSb)[j%2]} offen offset:{(j//2)*1024} sc1 ;@CS{j}"]))
            d = 224
            r = [f"v_add_f32 v{d+j}, v{d+j}, v{d+8+j}" for j in range(8)]
            for s_ in (8, 4): r += [f"v_add_f32_dpp v{d+j}, v{d+j}, v{d+j} row_ror:{s_} row_mask:0xf bank_mask:0xf" for j in range(8)]
            r = [r[j:j+2] for j in range(0, len(r), 2)] + [[f"v_permlane32_swap_b32 v{d+j}, v{d+j+1}"] for j in range(0, 8, 2)]
            r += [[f"v_add_f32 v{d+j}, v{d+j}, v{d+j+1}", f"v_add_f32 v{d+j+2}, v{d+j+2}, v{d+j+3}"] for j in (0, 4)]
            r += [[f"v_permlane16_swap_b32 v{d}, v{d+2}"], [f"v_permlane16_swap_b32 v{d+4}, v{d+6}"], [f"v_add_f32 v{d}, v{d}, v{d+2}", f"v_add_f32 v{d+4}, v{d+4}, v{d+6}"],
                  ["s_mov_b32 exec_lo, 0x000f000f", "s_mov_b32 exec_hi, 0x000f000f", f"ds_write_b32 v{vCSa}, v{d} offset:{par*384}", f"ds_write_b32 v{vCSb}, v{d+4} offset:{par*384} ;@csw",
                   "s_mov_b64 exec, -1"], [f"s_add_u32 s{sCSa}, s{sCSa}, {CS_SZ}", f"s_add_u32 s{sCSb}, s{sCSb}, {CS_SZ}"]]
            caps = [[(8 + 4*k - 4*o.nopf, None, [f"ds_read_b128 {a(RS(par, k+1)+4*b_,4)}, v{vLW3} offset:{k*SLOT + b_*1024}"]) for b_ in range(6)] for k in range(o.NRES)]
            sh += (caps[0] if caps else []) + [(8, "CS3", x) for x in r] + sum(caps[1:], [])
        if lay == 0 and o.bin:
            rbl = [[f"s_mov_b32 s{T2}, m0", f"s_add_u32 m0, s{sLW}, {j*1024}", f"s_add_u32 s{T1}, s{T5}, {(j>>1)*2048 + (j&1)*16*6144}",
                    f"buffer_load_dwordx4 v248, {SRT}, s{T1} offen lds ;@rb{j}", f"s_mov_b32 m0, s{T2}"] for j in range(6)]
            extra2 = [(o.bs0 + j, x) for j, x in enumerate(rbl)]
            r = [[f"ds_read_b64_tr_b16 {a(RB+4*blk+2*t,2)}, v249 offset:{(blk>>1)*2048 + t*256 + (blk&1)*8} ;@r{blk}" for t in range(2)] for blk in range(6)]
            for blk in range(6):
                q_ = 240 + 4*(blk & 1); mk = 0x00010001 << blk
                r += [[f"s_mov_b32 s{T3}, {mk}", f"s_mov_b32 s{T4}, {mk}"]] + [[f"v_cndmask_b32 v{q_+j}, 0, v{ONES}, {sm(T3)}" for j in jj] for jj in ((0, 1), (2, 3))]
                r += [[f"WAITL r{blk}", f"{MF} {a(HCS,4)}, {a(RB+4*blk,4)}, {v(q_,4)}, {'0' if blk == 0 else a(HCS,4)}"]]
            sh = [x for x in sh if x[0] <= 8 and x[1] is None] + [(0, "rb5", x) for x in r[:6]] + [x for x in sh if not (x[0] <= 8 and x[1] is None)]
            sh2 = r[6:]
        if lay == 0:
            extra.insert(0, (4, fb_set(0)))
            extra.append((w2s - 8, [t + (" ;@F" if t.startswith("buffer") else "") for t in fb_body(0)]))
        def codepf(lbl): return [f"s_add_u32 s{T1}, s{sPC}, {lbl}-L_pc", f"s_addc_u32 s{T2}, s{sPC+1}, 0", f"global_load_dword v{vJUNK}, v{vCPF}, {sm(T1)}"]
        if o.cpf2: extra.append((o.cpf2, codepf(f"L_epi{lay}")))
        if o.cpf3 and not last: extra.append((o.cpf3, codepf("L_ool")))
        r = []
        for st in (16, 8, 4):
            r += [[f"v_add_f32 v{160+j}, v{160+j}, v{160+j+st}", f"v_add_f32 v{161+j}, v{161+j}, v{161+j+st}"] for j in range(0, st, 2)]
        r += [["s_nop 0"], ["v_permlane32_swap_b32 v160, v162"], ["v_permlane32_swap_b32 v161, v163"], ["v_add_f32 v160, v160, v162", "v_add_f32 v161, v161, v163"],
              [f"v_mul_f32 v163, {f32hex(-1.0/1024)}, v160", f"v_mul_f32 v161, {f32hex(1.0/1024)}, v161"], ["v_fma_f32 v161, -v163, v163, v161", "v_max_f32 v161, 0, v161"],
              [f"v_add_f32 v161, {f32hex(1e-5)}, v161"], ["v_rsq_f32 v162, v161"], [f"ds_write2_b32 v{vSW}, v162, v163 offset0:0 offset1:64"]]
        r += [[f"ds_read2_b32 {v(STP+2*i,2)}, v{vSR} offset0:{16*i} offset1:{64+16*i}"] for i in range(4)]
        if par: r += [[f"ds_read_b128 {v(224+16*j+4*i,4)}, v{vSQ} offset:{256*j + 64*i}"] for j in range(2) for i in range(4)]
        sh += [(0, "S7", x) for x in r]
        sh += [(0, "csbar", [f"ds_read_b128 {v(CSR+4*c,4)}, v{vGM} offset:{M_CS-M+par*384+c*64} ;@cs"]) for c in range(4 if par else 6)]
        if par: sh += [(0, "csbar", [f"ds_read2_b32 {v(CSR+16,2)}, v{vCV} offset0:64 offset1:80 ;@cs"])]
        for t_ in ["S7", "CS3", "F", "csw", "cs"] + [f"W{j}" for j in range(2, 8)]: A.seen.discard(t_)
        csbar = not early
        def ready(tag):
            if tag is None: return True
            if tag == "csbar": return csbar
            return tag in A.seen and not A.pending(tag)
        fix = {(cc, ii): [f"v_fmac_f32 v{acc(cc,ii)+j}, v{CSR+12+cc}, v{240+4*ii+j}" if par and cc >= 4 else
                          f"v_fmac_f32 v{acc(cc,ii)+j}, v{CSR+4*cc+j}, v{STP+2*ii+1}" for j in range(4)] for cc in range(6) for ii in range(4)}
        fix["ci"] = [f"v_mul_f32 v{CI+ii}, {CK[par]}, v{STP+2*ii}" for ii in range(4)]
        ysh = []
        if par:
            VT = lambda db, i: 168 + 10*db + 2*(i+1)
            KP = 188
            def two(l): return [l[j:j+2] for j in range(0, len(l), 2)]
            def vcvt(i, d0, d1): return [f"v_cvt_pk_bf16_f32 v{d+h}, v{acc(4+db,i)+2*h}, v{acc(4+db,i)+2*h+1}" for db, d in enumerate((d0, d1)) for h in range(2)]
            def kmul(i): return [f"v_mul_f32 v{acc(c,i)+j}, v{acc(c,i)+j}, v{STP+2*i}" for c in (2, 3) for j in range(4)]
            def vmul(i): return [f"v_mul_f32 v{acc(c,i)+j}, v{acc(c,i)+j}, v{224+4*i+j}" for c in (4, 5) for j in range(4)]
            def kcvt(i): return cvt4l(acc(2,i), acc(2,i), acc(3,i))
            def qcvt(i): return cvt4l(acc(0,i), acc(0,i), acc(1,i))
            def sown(i): return f"{MF} {v(acc(3,i),4)}, {v(acc(2,i),4)}, {v(acc(0,i),4)}, 0"
            def sprev(i): return f"{MF} {v(acc(1,i),4)}, {v(acc(2,i-1) if i else KP,4)}, {v(acc(0,i),4)}, 0"
            def sel(i):
                so, sp, z = acc(3,i), acc(1,i), acc(5,i)
                r = [f"v_cndmask_b32 v{b}, v{b}, v{b+1}, {sm(mPAR)}" for b in (so, so+2, sp, sp+2)]
                if i == 0: r += [f"v_cndmask_b32 v{b}, v{b}, v217, {sm(mFIRST)}" for b in (sp, sp+2)]
                return r + [f"v_cndmask_b32 v{z}, v{sp}, v{so}, {sm(mOWN0)}", f"v_cndmask_b32 v{z+1}, v{sp+2}, v{so+2}, {sm(mOWN1)}", f"v_max_f32 v{z+2}, v{z}, v{z+1}"]
            def soft(blks):
                Z = [(acc(5,i), i) for i in blks]
                r = [f"v_sub_f32 v{z+h}, v{z+h}, v{z+2}" for z, i in Z for h in range(2)] + [f"v_mul_f32 v{z+h}, v{z+h}, v{CI+i}" for z, i in Z for h in range(2)]
                r += [f"v_exp_f32 v{z+h}, v{z+h}" for z, i in Z for h in range(2)] + [f"v_cvt_pk_bf16_f32 v{z+h}, v{z+h}, v{z+h}" for z, i in Z for h in range(2)]
                for z, i in Z: r += [f"v_and_b32 v{acc(4,i)+j}, v{z+(j&1)}, v{mk}" for j, mk in enumerate((MP0, MP1, MO0, MO1))]
                return r
            def pv(i): return [f"{MF} {v(acc(5,i),4)}, {v(ONES,4)}, {v(acc(4,i),4)}, 0"] + [f"{MF} {v(acc(1+2*db,i),4)}, {v(VT(db,i-1),4)}, {v(acc(4,i),4)}, 0" for db in range(2)]
            hl = [f"buffer_load_dwordx4 v[240:243], v{vL16}, {SRD}, s{sHld} offen sc1", f"buffer_load_dwordx4 v[244:247], v{vL16}, {SRD}, s{sHld} offen offset:1024 sc1"]
            z3 = acc(5,3)
            ysh += two(kmul(3) + kcvt(3)) + [[f"buffer_store_dwordx4 {v(acc(2,3),4)}, v{vL16}, {SRD}, s{sHst} offen sc1"]]
            ysh += two(vmul(3) + vcvt(3, 248, 250)) + [[f"buffer_store_dwordx4 v[248:251], v{vL16}, {SRD}, s{sHst} offen offset:1024 sc1"]]
            ysh += [[f"ds_write_b128 v{vKX}, {v(acc(2,3),4)} offset:1024"]] + two(vcvt(3, VT(0,3), VT(1,3)))
            ysh += [[f"ds_write_b128 v{vKX}, v[248:251] offset:{M_VX-M_KX+1024} ;@xw"]]
            ysh += two(kmul(2) + kcvt(2) + qcvt(3)) + [[sown(3)], [sprev(3)]] + two(vmul(2) + vcvt(2, VT(0,2), VT(1,2)))
            ysh += [["WAITL xw", "s_barrier"], [f"ds_read_b128 {v(KP,4)}, v{vKX}"]] + [[f"ds_read_b64 {v(VT(db,-1),2)}, v{vKX} offset:{M_VX-M_KX+8*db}"] for db in range(2)]
            ysh += two(sel(3)) + [[f"v_mov_b32 v{z3+3}, v{z3+2}"]] + two(qcvt(2))[:1] + [[f"v_permlane32_swap_b32 v{z3+2}, v{z3+3}"], [f"v_max_f32 v{z3+2}, v{z3+2}, v{z3+3}", f"v_mov_b32 v{z3+3}, v{z3+2}"]]
            ysh += two(qcvt(2))[1:] + [[f"v_permlane16_swap_b32 v{z3+2}, v{z3+3}"], [f"v_max_f32 v{z3+2}, v{z3+2}, v{z3+3}"], [sown(2)]]
            s3 = soft((3,))
            ysh += two(s3[:4]) + [s3[4:5], s3[5:6]] + two(s3[6:]) + [[f"v_mov_b32 v217, {f32hex(-3.0e38)}"]] + [[x] for x in pv(3)] + [[], []]
            ysh += [[f"v_rcp_f32 v{z3}, v{z3}"]] + two([f"v_mul_f32 v{acc(1+2*db,3)+j}, v{acc(1+2*db,3)+j}, v{z3}" for db in range(2) for j in range(4)] + cvt4l(236, acc(1,3), acc(3,3)))
            ysh += [lambda: ostore(3, o.oall)]
            ysh.insert(len(ysh) - o.hpos, [hl[0]]); ysh.insert(len(ysh) - o.hpos, [hl[1] + " ;@hl"])
        def Y():
            x = ysh.pop(0)
            if callable(x): x()
            else: E(x)
        credit = 0.5 if (lay == 1 and o.lazy & 1) else 0.0; t = 0.0; nbar = 0
        for u, (step, bl, cs_) in enumerate(units):
            half = len(bl) == 2; ng = len(cs_); inY = half and bl[0] == 0
            assert not anext or anext[0][0] > u
            e(f"WAITV A{u}")
            if u == 1 and lay > 0 and o.lazy & 1:
                assert anext[0][1] <= 4 and anext[0][2] == 0 and len(misc) == 8
                poll2chk(sFXc, lay)
            if o.g1prof and u == 0: stamp(2, 1)
            if u + 1 < len(units) and units[u+1][0]//4 > nbar:
                nbar += 1
                assert not any(p[0] == "W" and p[1] <= nbar for p in pend), (lay, u)
                if f"W{nbar}" in A.seen: e(f"WAITV W{nbar}")
                if lay == 0 and nbar == 1: assert not A.pending("b1")
                e("s_barrier")
                if ready("csw"): csbar = True
                if o.g1prof: stamp(2 + nbar, 1)
            if inY and step == max(28, 32 - TB):
                e("s_barrier"); nbar = 8
            if inY: assert not sh and all(not x for x in fix.values()), (lay, len(sh), {k: len(x) for k, x in fix.items() if x})
            nslot = 3 if half else ng
            cur = fidx[(step, bl[0])]
            ahead = lambda n: n < len(anext) and fidx[anext[n][1:]] < cur + len(bl) + LAF
            plan = []; na = nw = nm = 0
            while len(plan) < nslot and ahead(na) and na < len(bl):
                plan.append("A"); na += 1
            if t >= w1s: credit = min(credit + (wr if (pend and pend[0][0] == "W") else w2r) * len(bl) / 400.0, max(3.0, w2r/100.0))
            while len(plan) < nslot and nw < len(pend) and allowed(pend[nw], t) and credit >= 1:
                plan.append("W"); nw += 1; credit -= 1
            while len(plan) < nslot and nm < len(misc) and misc[nm][0] <= t:
                plan.append("M"); nm += 1
            while len(plan) < nslot and ahead(na):
                plan.append("A"); na += 1
            oth = [p for p in plan if p != "A"]; aa = [p for p in plan if p == "A"]; plan = []
            while oth or aa:
                if aa: plan.append(aa.pop())
                if aa and len(aa) >= 2*len(oth): plan.append(aa.pop())
                if oth: plan.append(oth.pop(0))
            if half: plan = sum(([p, None] for p in plan), [])
            for gi, c in enumerate(cs_):
                vm = None
                for p, i in enumerate(bl if c % 2 == 0 else bl[::-1]):
                    if p == 0: e(f"WAITL w{u}_{c}")
                    e(mma(step, c, i))
                    busy = False
                    if p == 0 and gi < len(plan) and plan[gi]:
                        k = plan[gi]
                        if k == "A": vm = [aload(*anext.pop(0))]
                        elif k == "W":
                            pc = pend.pop(0); vm = w1_piece(par, pc[1], pc[2]) if pc[0] == "W" else w2_piece(par, pc[1], pc[2])
                        else: vm = misc.pop(0)[1]
                        E(vm[:-1]); busy = len(vm) > 1
                    if p == (0 if half else 1) and vm: e(vm[-1]); busy = True
                    if p == len(bl) - 1:
                        busy = not half
                        if u + 1 < len(units): e(w1rd(u+1, c))
                    if p == 2 and ng == 4 and u + 1 < len(units) and gi < 2:
                        e(w1rd(u+1, gi)); busy = True
                    if busy: continue
                    if inY:
                        if ysh: Y()
                    elif p == (0 if half else 2) and gi == 3 and extra and extra[0][0] <= t: E(extra.pop(0)[1])
                    elif p == 2 and gi == 0 and extra2 and extra2[0][0] <= t: E(extra2.pop(0)[1])
                    elif p == 2 and lay == 0 and not fbdone[0] and ready("F"):
                        E(fb_cond + retry(fb_body(0), fb_cond)); fbdone[0] = True
                    elif sh:
                        if sh[0][0] <= t and ready(sh[0][1]): E(sh.pop(0)[2])
                        elif sh2 and ready("r5"): E(sh2.pop(0))
                    elif ready("cs"):
                        cc = cs_[(gi + ng//2) % ng]
                        cand = [(cc, ii) for ii in (3, 2, 1, 0)]
                        if step > 32 - nd: cand += [(c2, ii) for c2 in (0, 1) for ii in range(4)]
                        if half and step > 32 - TB: cand += [(c2, ii) for c2 in range(6) for ii in (0, 1)]
                        for k in cand + ["ci"]:
                            if fix[k]:
                                E(fix[k][:2]); fix[k] = fix[k][2:]; break
                        else:
                            if sh2: E(sh2.pop(0))
            t += len(bl) / 4
        assert not anext and not misc and not sh and not extra and not extra2 and not sh2 and all(p[0] == "W2" for p in pend), (lay, pend, anext, misc, len(sh), extra)
        assert all(not x for x in fix.values()), (lay, {k: len(x) for k, x in fix.items()})
        assert lay > 0 or fbdone[0]
        left = [w2_piece(par, p[1], p[2]) for p in pend]
        lates = [w2_piece(par, 4, i) for i in range(6*(1-par))] + [w2_piece(par, 5, i) for i in range(2)]
        if o.verbose: print("layer", lay, "left", len(left), "ysh", len(ysh))
        A.label(f"L_epi{lay}")
        e("s_waitcnt lgkmcnt(0)"); e("s_barrier")
        stamp(1)
        qm = [mma(step, c, i) for step in range(32-nd, 32) for c in range(2) for i in (range(4) if c == 0 else reversed(range(4)))]

        if par == 0:
            def feat_head(c0, tmp, hook=None):
                MX, MN = tmp, tmp+4
                for i in (3, 2, 1, 0):
                    p0, p1 = acc(c0,i), acc(c0+1,i)
                    for op, op2, d in (("v_max3_f32", "v_max_f32", MX+i), ("v_min3_f32", "v_min_f32", MN+i)):
                        e(f"{op} v{d}, v{p0}, v{p0+1}, v{p0+2}"); e(f"{op} v{d}, v{d}, v{p0+3}, v{p1}")
                        e(f"{op} v{d}, v{d}, v{p1+1}, v{p1+2}"); e(f"{op2} v{d}, v{d}, v{p1+3}")
                if hook: hook()
                xreduce([("v_max_f32", [MX, MX+1, MX+2, MX+3]), ("v_min_f32", [MN, MN+1, MN+2, MN+3])])
                for i in range(4):
                    e(f"v_mul_f32 v{MX+i}, -v{MX+i}, v{CI+i}"); e(f"v_mul_f32 v{MN+i}, v{MN+i}, v{CI+i}")
                for i in range(4):
                    for fb in range(2):
                        for h in range(2):
                            pk_fma(224+8*i+4*fb+2*h, acc(c0+fb,i)+2*h, CI+i, MX+i)
                            pk_fma(acc(c0+fb,i)+2*h, acc(c0+fb,i)+2*h, CI+i, MN+i, negx=True)
            def feat_tail(c0, F, G_, S0, S1, post, mid=None, hooks={}):
                def norm_(i):
                    sq = S0 if i % 2 == 0 else S1
                    e(f"v_rcp_f32 v{184+2*i}, v{sq}"); e(f"v_rcp_f32 v{185+2*i}, v{sq+4}")
                    for r in range(0, 8, 2): pk_mul(224+8*i+r, 224+8*i+r, 184+2*i)
                    cvt4(F+4*i, 224+8*i, 224+8*i+4)
                    if post: e(post(i, 0))
                    for fb in range(2):
                        for h in range(2): pk_mul(acc(c0+fb,i)+2*h, acc(c0+fb,i)+2*h, 185+2*i)
                    cvt4(G_+4*i, acc(c0,i), acc(c0+1,i))
                    if post: e(post(i, 1))
                for i in range(4):
                    if i in hooks: hooks[i]()
                    for r in range(8): e(f"v_exp_f32 v{224+8*i+r}, v{224+8*i+r}")
                    for fb in range(2):
                        for r in range(4): e(f"v_exp_f32 v{acc(c0+fb,i)+r}, v{acc(c0+fb,i)+r}")
                    if 0 < i < 3: norm_(i-1)
                    sq = S0 if i % 2 == 0 else S1
                    cvt4(F+4*i, 224+8*i, 224+8*i+4); cvt4(G_+4*i, acc(c0,i), acc(c0+1,i))
                    e(f"{MF} {v(sq,4)}, {v(ONES,4)}, {v(F+4*i,4)}, 0"); e(f"{MF} {v(sq+4,4)}, {v(ONES,4)}, {v(G_+4*i,4)}, 0")
                if 4 in hooks: hooks[4]()
                if mid: mid()
                norm_(2)
                if 5 in hooks: hooks[5]()
                norm_(3)
            dl = []
            if lay == 0:
                dl = [[f"s_add_u32 s{D2}, s{ROTW}, {WS_W1[1]}", f"s_add_u32 s{D4}, s{D2}, 4096", w1st(a(RB,4), 0, D2, D4)]] + [[w1st(a(RB+4*b_,4), b_, D2, D4)] for b_ in range(1, 6)]
                dl += [[f"s_add_u32 s{D1}, s{sW2s}, {WS_W2[1] - WS_W2[0]}", f"buffer_store_dwordx4 {a(HW2,4)}, v{vL16}, {SRD}, s{D1} offen sc1"],
                       [f"buffer_store_dwordx4 {a(HW2+4,4)}, v{vL16}, {SRD}, s{D1} offen offset:1024 sc1", f"s_add_u32 s{D1}, s{sCL0}, {CS_SZ}"] + csst(a(HCS,4), D1),
                       [f"buffer_store_dwordx4 a[252:255], v{vL16}, {SRD}, s{sCL2} offen sc1"],
                       [f"s_add_u32 s{D1}, s{sKV}, s{ROTA}", f"s_add_u32 s{D1}, s{D1}, 0x100000", f"buffer_store_dwordx4 a[252:255], v{vL16}, {SRD}, s{D1} offen sc1",
                        f"s_add_u32 s{D1}, s{sZo}, 0x10000", f"s_mov_b64 exec, {sm(mM0)}", f"buffer_store_dwordx4 a[252:255], v{vG16}, {SRD}, s{D1} offen sc1 ;@b2", "s_mov_b64 exec, -1"]]
            dl2 = dl[o.dk:]; dl = dl[:o.dk]; mix = []
            for j_ in range(max(len(left), len(dl))): mix += left[j_:j_+1] + dl[j_:j_+1]
            per = o.aper0 if dl else o.aper
            A.bgset(mix, per, per)
            def vall():
                for i in range(4):
                    for b in range(2):
                        for h in range(2): pk_mul(acc(4+b,i)+2*h, acc(4+b,i)+2*h, STP+2*i)
                    cvt4(acc(4,i), acc(4,i), acc(5,i))
                    e(xw(acc(4,i), VB_LDS//1024 + i))
            feat_head(2, 208, vall)
            feat_tail(2, 192, 144, 168, 176, lambda i, sg: xw((192 if sg == 0 else 144)+4*i, 24 + 16*sg + i))
            A.bgflush()
            e(f"s_add_u32 s{T2}, s{sKV}, s{ROTA}")
            e("s_waitcnt lgkmcnt(0)"); e("s_barrier")
            stamp(2)
            def kvreads(p):
                b = 96 + 16*(p % 4); r = []
                for t in range(2):
                    r += [f"ds_read_b64_tr_b16 {v(b+2*t,2)}, v{vE0} offset:{SLOT + (2*p+t)*1024}", f"ds_read_b64_tr_b16 {v(b+8+2*t,2)}, v{vVr} offset:{(2*p+t)*1024} ;@ka{p}"]
                return r + [f"ds_read_b64_tr_b16 {v(b+4+2*t,2)}, v{vE1} offset:{SLOT + (2*p+t)*1024} ;@kb{p}" for t in range(2)]
            rd = sum((kvreads(p) for p in range(8)), [])
            E(rd[:14]); rd = rd[14:]
            for j in range(4): e(qm.pop(0))
            for p in range(8):
                b = 96 + 16*(p % 4); z_ = p == 0
                e(f"WAITL ka{p}")
                e(f"{MF} v[168:171], {v(b,4)}, {v(b+8,4)}, {'0' if z_ else 'v[168:171]'}"); E(rd[0:2])
                e(f"{MF} v[200:203], {v(b,4)}, {v(ONES,4)}, {'0' if z_ else 'v[200:203]'}"); E(rd[2:4])
                e(f"WAITL kb{p}")
                e(f"{MF} v[172:175], {v(b+4,4)}, {v(b+8,4)}, {'0' if z_ else 'v[172:175]'}"); E(rd[4:6]); rd = rd[6:]
            for j in range(2): e(qm.pop(0))
            e("s_barrier")
            for j in range(2): e(qm.pop(0))
            cv = cvt4l(192, 168, 172)
            E(cv[:2]); e(qm.pop(0)); E(cv[2:]); e(qm.pop(0))
            e(f"buffer_store_dwordx4 v[192:195], v{vL16}, {SRD}, s{T2} offen sc1"); e(qm.pop(0))
            e(f"s_mov_b64 exec, {sm(mM0)}"); e(f"buffer_store_dwordx4 v[200:203], v{vG16}, {SRD}, s{sZo} offen sc1"); e("s_mov_b64 exec, -1")
            stamp(3)
            A.bgset(lates, o.aper2, 0)
            E(qm)
            def g1(p): return [f"s_add_u32 s{T0}, s{sKV}, s{ROTA+1+p}", f"buffer_load_dwordx4 {v(96+4*p,4)}, v{vL16}, {SRD}, s{T0} offen sc1 ;@g{p}"]
            gz = f"buffer_load_dwordx4 v[192:195], v{vZL}, {SRD}, s{sZP} offen sc1 ;@gz"
            def gather():
                A.bgflush()
                for p in range(7): E(g1(p))
                e(gz)
                A.bgset(dl2, o.aper3, 0)
            if o.gpos == 0: gather()
            feat_head(0, 196, gather if o.gpos == 1 else None)
            def qmid():
                e(f"s_andn2_b64 {sm(T1)}, {sm(mDIAG)}, {sm(mB1)}"); e(f"s_and_b64 {sm(T3)}, {sm(mDIAG)}, {sm(mB1)}")
                e(f"v_or_b32 v128, v{MO0}, v{MP0}"); e(f"v_and_b32 v128, v128, v{ONES}")
                e(f"v_cndmask_b32 v130, 0, v128, {sm(T1)}"); e(f"v_cndmask_b32 v131, 0, v128, {sm(T3)}")
                for r in (128, 129, 132, 133): e(f"v_mov_b32 v{r}, 0")
            feat_tail(0, 204, 136, 152, 176, None, qmid, {o.gpos - 2: gather})
            A.bgflush()
            nafter = A.after("gz")
            stamp(4)
            e(f"s_mov_b32 s{sTMO}, {LIM}")
            for p in range(8):
                r0 = 96+4*p if p < 7 else 192; L = f"{lay}_{p}"
                e(f"WAITV g{p if p < 7 else 'z'}")
                A.label(f"L_kvc{L}")
                e(f"v_cmp_eq_u32 vcc, -1, v{r0}"); e(f"s_cbranch_vccnz L_kvs{L}")
                A.label(f"L_kvo{L}")
                if p < 7:
                    e(f"{MF} v[168:171], v[130:133], {v(r0,4)}, v[168:171]"); e(f"{MF} v[172:175], v[128:131], {v(r0,4)}, v[172:175]")
                def kvslow(p=p, L=L, nafter=nafter, g1=g1, gz=gz):
                    A.label(f"L_kvs{L}")
                    e(f"s_sub_u32 s{sTMO}, s{sTMO}, 1"); e(f"s_cbranch_scc1 L_kvt{L}")
                    if o.ksl: e(f"s_sleep {o.ksl}")
                    e(f"s_waitcnt vmcnt({nafter})")
                    if o.kgate:
                        e("v_mov_b32 v197, 0"); e("s_mov_b64 exec, 0xff"); e(f"buffer_atomic_or v197, v{vZL}, {SRD}, s{sZP} offen sc0 sc1"); e("s_mov_b64 exec, -1")
                        e("s_waitcnt vmcnt(0)"); e("v_cmp_eq_u32 vcc, -1, v197"); e(f"s_cbranch_vccnz L_kvs{L}")
                    for p2 in range(p, 7):
                        if p2 > p: e(f"v_cmp_eq_u32 vcc, -1, v{96+4*p2}"); e(f"s_cbranch_vccz L_kvn{L}_{p2}")
                        E(g1(p2))
                        if p2 > p: A.label(f"L_kvn{L}_{p2}")
                    e(gz); e("s_waitcnt vmcnt(0)"); e(f"s_branch L_kvc{L}")
                    A.label(f"L_kvt{L}"); e(f"s_mov_b32 s{sTMO}, 0"); e(f"s_branch L_kvo{L}")
                ool.append(kvslow)
            for s_ in (4, 2, 1):
                for r in range(4): e(f"v_add_f32_dpp v{192+r}, v{192+r}, v{192+r} row_ror:{s_} row_mask:0xf bank_mask:0xf")
                if s_ == 2:
                    cvt4(196, 168, 172)
                    e(f"ds_write_b64 v{vKX0}, v[196:197]"); e(f"ds_write_b64 v{vKX1}, v[198:199]")
            e("v_cvt_pk_bf16_f32 v192, v192, v193"); e("v_cvt_pk_bf16_f32 v193, v194, v195")
            e(f"s_mov_b64 exec, {sm(mM0)}"); e(f"ds_write_b64 v{vZW}, v[192:193] offset:{M_ZF-M}"); e("s_mov_b64 exec, -1")
            fb2 = lay == 0 and not A.pending("b2")
            e("s_waitcnt lgkmcnt(0)"); e("s_barrier")
            stamp(5)
            for t in range(2): e(f"ds_read_b128 {v(184+4*t,4)}, v{vGM} offset:{M_ZF-M + t*64} ;@zf")
            for j in range(4): e(ldsrd(v(168+4*j,4), M_KX + j*1024))
            if fb2: E(fb_set(1))
            if lay == 0: e(f"s_add_u32 s{sKV}, s{sKV}, 0x100000"); e(f"s_add_u32 s{sZP}, s{sZP}, 0x10000"); e(f"s_add_u32 s{sZo}, s{sZo}, 0x10000")
            e("WAITL zf")
            for t in range(2):
                for i in range(4): e(f"{MF} {v(64+4*i,4)}, {v(184+4*t,4)}, {v((204 if t == 0 else 136)+4*i,4)}, {'0' if t == 0 else v(64+4*i,4)}")
            e("s_waitcnt lgkmcnt(0)")
            def fin(i):
                r = [f"v_mul_f32 v{96+8*i+j}, v{96+8*i+j}, v{64+4*i}" for j in range(8)] + cvt4l(224+4*i, 96+8*i, 100+8*i)
                return [r[j:j+3] for j in range(0, 12, 3)]
            sc = [[f"v_add_f32 v{64+4*i}, {f32hex(1e-6)}, v{64+4*i}", f"v_rcp_f32 v{64+4*i}, v{64+4*i}"] for i in range(4)]
            fills = [[[]]*4, sc, fin(0), fin(1)]
            for i in range(4):
                for t in range(2):
                    for db in range(2):
                        d = v(96+8*i+4*db, 4)
                        e(f"{MF} {d}, {v(168+8*t+4*db,4)}, {v((204 if t == 0 else 136)+4*i,4)}, {'0' if t == 0 else d}")
                        E(fills[i][2*t+db])
                if i >= 2: ostore(i-2, True)
            for i in (2, 3):
                for r in range(0, 8, 2): pk_mul(96+8*i+r, 96+8*i+r, 64+4*i)
                cvt4(224+4*i, 96+8*i, 100+8*i)
                ostore(i, True)
        else:
            fb2 = True
            A.bgset(left + lates, o.bper, o.bper)
            while ysh: Y()
            for i in (1, 0):
                for c in (2, 3):
                    for h in range(2): pk_mul(acc(c,i)+2*h, acc(c,i)+2*h, STP+2*i)
            for i in (1, 0):
                for c in (4, 5):
                    for h in range(2): e(f"v_pk_mul_f32 {v(acc(c,i)+2*h,2)}, {v(acc(c,i)+2*h,2)}, {v(224+4*i+2*h,2)}")
            E(kcvt(1) + qcvt(1)); e(sprev(2)); E(kcvt(0)[:2]); e(sown(1)); E(kcvt(0)[2:] + qcvt(0)); e(sprev(1)); E(vcvt(1, VT(0,1), VT(1,1))[:2]); e(sown(0))
            E(vcvt(1, VT(0,1), VT(1,1))[2:] + vcvt(0, VT(0,0), VT(1,0)))
            E(sel(2))
            keep = A.bg; A.bg = []
            e("s_waitcnt lgkmcnt(0)")
            e(f"s_cmp_lg_u32 s{SW}, 0"); e(f"s_cbranch_scc1 L_halod{lay}")
            A.track = False
            hc = ["v_max_u32 v218, v240, v244", "v_cmp_eq_u32 vcc, -1, v218"]
            if A.pending("hl"): e(f"s_waitcnt vmcnt({A.after('hl')})")
            E(hc); e(f"s_cbranch_vccz L_halow{lay}")
            spin(hl, hc)
            A.label(f"L_halow{lay}")
            for r in range(4): e(f"v_mov_b32 v{KP+r}, v{240+r}"); e(f"v_mov_b32 v{VT(r//2,-1)+r%2}, v{244+r}")
            A.track = True
            A.label(f"L_halod{lay}")
            e(sprev(0))
            A.bg = keep
            stamp(2)
            if lay == 1: e(f"s_add_u32 s{sHst}, s{sHst}, 0x80000"); e(f"s_add_u32 s{sHld}, s{sHld}, 0x80000")
            E(sel(1)); E(sel(0))
            xreduce([("v_max_f32", [acc(5,i)+2 for i in range(4)])])
            E(soft((2, 1, 0)))
            A.bgflush()
            E(pv(2) + pv(1) + pv(0))
            for i in (2, 1, 0):
                e(f"v_rcp_f32 v{acc(5,i)}, v{acc(5,i)}")
                for db in range(2):
                    for h in range(2): pk_mul(acc(1+2*db,i)+2*h, acc(1+2*db,i)+2*h, acc(5,i))
                cvt4(224+4*i, acc(1,i), acc(3,i))
                ostore(i, o.oall)

        stamp(6)
        pre = [f"v_mov_b32 v{vVal}, {lay+1}"]
        for i in range(2):
            for kk in range(2):
                for r in range(4):
                    d = acc2(2*kk + (r >> 1), i) + 2*(r & 1); x = RES+8*i+4*kk+r
                    pre += [f"v_lshlrev_b32 v{d}, 16, v{x}", f"v_and_b32 v{d+1}, 0xffff0000, v{x}"]
        omask = (1 << (o.g2depth - 1)) - 1 if o.lazy & 2 else None
        if o.early & 2: handoff(sFOp, sFOc, lay+1, omask, mEO, pre, [])
        else:
            E(pre); signal(sFOp); stamp(7); poll(sFOc, lay+1, None, omask)
        stamp(8)
        W2F = RING; AF2 = RING + 32; GD = o.g2depth; T2_ = o.TG
        assert AF2 + 8*GD <= 240 - 48*o.NRES
        gun = [(st, (0, 1)) for st in range(32 - T2_)] + [(st, (i,)) for i in range(2) for st in range(32 - T2_, 32)]
        bn = [(st, i) for st, bl in gun for i in bl]
        bidx = {k: n for n, k in enumerate(bn)}
        def bfr(step, i): return a(AF2 + 4*(bidx[(step, i)] % (2*GD)), 4)
        def w2rd(u, b):
            step = gun[u][0]
            return ldsrd(a(W2F + 16*(u % 2) + 4*b, 4), (step*4096 if step < 14 else 3*SLOT + (step-14)*4096) + b*1024) + f" ;@u{u}_{b}"
        cur4 = [-1]
        def bload(step, i):
            r = [f"s_mov_b32 s{sAo}, {WS_O + (step//4)*4096}"] if step//4 != cur4[0] else []
            cur4[0] = step//4
            return r + [f"buffer_load_dwordx4 {bfr(step, i)}, v{vB+i}, {SRD}, s{sAo} offen offset:{(step%4)*1024} sc1 ;@B{step}_{i}"]
        for j in range(min(o.bpos, 2*GD-2)):
            if o.lazy & 2 and j == o.p2pos: poll2(sFOc)
            E(bload(*bn.pop(0)))
        e("s_barrier")
        for st in range(2):
            for b in range(4): e(w2rd(st, b))
        while bn[0][0] < GD-1: E(bload(*bn.pop(0)))
        lv = [x for x in (o.lv1, o.lv2) if x] + [32]
        okh = 32
        if o.lazy & 2: okh = lv.pop(0); poll2chk(sFOc, lay+1, hex((1 << okh) - 1) if okh < 32 else None)
        if lay == 0 and not fb2: E(fb_set(1))
        w1n = [] if last or (o.nopf and lay >= 1) else list(range(6))
        nres = 0 if last else (1 + (o.NRES if lay >= 1 else 0))
        def oparts(i):
            return [[f"ds_write_b128 v{200+kk}, {v(RES+8*i+4*kk,4)} offset:{i*2048}"] for kk in range(2)] + \
                   [[f"ds_read_b128 {v(96+4*j,4)}, v{vLW} offset:{j*1024} ;@o{j}"] for j in (2*i, 2*i+1)] + [[], []] + \
                   [[f"WAITL o{j}", f"buffer_store_dwordx4 {v(96+4*j,4)}, v202, {SRT}, s{T0} offen" + (" sc1" if o.outsc else ""), f"s_add_u32 s{T0}, s{T0}, 16384"] for j in (2*i, 2*i+1)]
        gsh = []
        if last:
            gsh = [[f"v_bfe_u32 v200, v{vL16}, 4, 4", f"v_and_b32 v201, 0x70, v{vL16}"], [f"v_xor_b32 v201, v201, v{vG16}", "v_lshl_add_u32 v200, v200, 7, v201"],
                   [f"v_add_u32 v200, s{sLW}, v200", f"v_lshrrev_b32 v202, 7, v{vL16}"], [f"v_and_b32 v203, 0x70, v{vL16}", "v_lshlrev_b32 v204, 4, v202"],
                   ["v_xor_b32 v201, 64, v200", "v_xor_b32 v203, v203, v204"], ["v_lshl_add_u32 v202, v202, 11, v203"],
                   [f"s_mov_b32 s8, s{P_OUT}", f"s_mov_b32 s9, s{P_OUT+1}"], ["s_mov_b32 s10, 0x400000", "s_mov_b32 s11, 0x20000"],
                   [f"s_lshl_b32 s{T0}, s{SRB}, 2", f"s_add_u32 s{T0}, s{T0}, s{SW}"], [f"s_lshl_b32 s{T0}, s{T0}, 16", f"s_lshl_b32 s{T1}, s{SCB}, 7"], [f"s_add_u32 s{T0}, s{T0}, s{T1}"]]
        def xcvt(i): return sum((cvt4l(RES+8*i+4*kk, acc2(2*kk,i), acc2(2*kk+1,i)) for kk in range(2)), [])
        fbchk = not (lay == 0 and not last)
        rw = [f"ds_write_b128 v{vLW if k == 0 else vLW3}, {a(RS(1-par, k)+4*b_,4)} offset:{(SLOT if k == 0 else (k-1)*SLOT) + b_*1024}" for k in range(nres) for b_ in range(6)]
        rslot = [1 if k == 0 else 2 + k - o.nopf for k in range(nres) for b_ in range(6)]
        freeslot = -1
        for u, (step, bl) in enumerate(gun):
            e("WAITV " + " ".join(f"B{step}_{i}" for i in bl))
            if okh < 32:
                if bn[0][0] == okh - GD + 1: poll2(sFOc)
                if bn[0][0] == okh: okh = lv.pop(0); poll2chk(sFOc, lay+1, hex((1 << okh) - 1) if okh < 32 else None)
                assert bn[1][0] < okh
            nsl = nres - 1 - o.nopf if nres > 1 else 0
            if u in [15 + 6*j for j in range(nsl + 1) if o.rin or j == nsl or (j == 0 and w1n)]:
                freeslot = 2 + (u - 15)//6
                assert min(st for st, _ in gun[u-1:]) >= u - 1
                e("s_barrier")
            if lay == 0 and not last and u == 19: assert okh == 32; E([t + (" ;@F" if t.startswith("buffer") else "") for t in fb_body(1)])
            if not fbchk and len(bn) <= 2: e("WAITV F"); E(fb_cond + retry(fb_body(1), fb_cond)); fbchk = True
            if bl == (1,) and step == 32 - T2_:
                assert not gsh
                c_ = xcvt(0); gsh = [[]] + [c_[j:j+2] for j in range(0, 8, 2)]
                if last: gsh += oparts(0)
                else:
                    p_ = xparts(0); gsh += p_[0] + [[], []] + p_[1]
            for b in range(4):
                e(f"WAITL u{u}_{b}")
                for p, i in enumerate(bl if b % 2 == 0 else bl[::-1]):
                    e(f"{MF} {v(acc2(b,i),4)}, {a(W2F+16*(u%2)+4*b,4)}, {bfr(step, i)}, {v(acc2(b,i),4)}")
                    if p == 0:
                        if bn and b % (4//len(bl)) == 0: E(bload(*bn.pop(0)))
                        elif not bn and w1n and b % (o.g2w*2//len(bl)) == 0: E(w1_piece(1-par, 1, w1n.pop(0)))
                        elif gsh and (len(bl) == 1 or b % 2):
                            g_ = gsh.pop(0)
                            if o.xall and lay >= 1 and not last: E([wt(t) for t in g_])
                            elif any(t.startswith("buffer_store") for t in g_) and not last: st_mode(g_)
                            else: E(g_)
                if o.rin and rw and rslot[0] <= freeslot and b % (4//o.rin) == 4//o.rin - 1 and (len(bl) == 2 or (bl == (0,) and b == 3 and (u % 2 or o.rin > 1))):
                    e(rw.pop(0)); rslot.pop(0)
                if u + 2 < len(gun): e(w2rd(u+2, b))
                if b == 1 and not last:
                    if o.xf and u == o.xt0: e(f"buffer_load_dword v{vJUNK}, v{vTCH}, {SRD}, s{ROTA} offen sc1")
                    if o.cpf and u == o.xt0 + 4: E(codepf(f"L_layer{lay+1}"))
        assert not w1n
        stamp(9)
        rest = sum(gsh, [])
        if last or not any(t.startswith("buffer_store") for t in rest): E(rest)
        else: st_mode(rest)
        todo = (1,) if T2_ else (0, 1)
        for i in todo: E(xcvt(i))
        if last:
            for i in todo: E(sum(oparts(i)[:4], []))
            for i in todo: E(sum(oparts(i)[4:], []))
            break
        xtile(o.xall and lay >= 1, todo)
        assert not rw or max(rslot) <= freeslot
        if o.verbose: print("layer", lay, "resident writes left", len(rw))
        if o.early & 1: handoff(sFXp, sFXc, lay+1, sm(mX) if o.lazy & 1 else None, mEX, rw[:o.rw], rw[o.rw:])
        else:
            E(rw[:o.rw]); signal(sFXp); stamp(10); poll(sFXc, lay+1, rw[o.rw:], sm(mX) if o.lazy & 1 else None)

    if o.stamps:
        e("s_waitcnt vmcnt(0)")
        stamp(11)
        e(f"s_lshl_b32 s{T0}, s{SIDX}, 2"); e(f"s_add_u32 s{T0}, s{T0}, s{SW}")
        e(f"s_lshl_b32 s{T0}, s{T0}, 8"); e(f"s_add_u32 s{T0}, s{T0}, {WS_STAMPS}")
        e(f"v_lshrrev_b32 v200, 2, v{vL16}")
        e(f"buffer_store_dword v{vSTAMP}, v200, {SRD}, s{T0} offen")
        if o.echo_a >= 0:
            e(f"v_readlane_b32 s{T1}, v{vSTAMP}, {o.echo_a}"); e(f"v_readlane_b32 s{T2}, v{vSTAMP}, {o.echo_b}"); e(f"v_readlane_b32 s{T3}, v{vSTAMP}, 59")
            e(f"s_sub_u32 s{T2}, s{T2}, s{T1}"); e(f"s_mul_i32 s{T2}, s{T2}, {o.echo_mul}"); e(f"s_min_u32 s{T2}, s{T2}, 20000")
            if o.echo_idx >= 0: e(f"s_cmp_eq_u32 s{SIDX}, {o.echo_idx}"); e(f"s_cselect_b32 s{T2}, s{T2}, 0")
            A.label("L_echo")
            e(f"s_memrealtime s[{sSTAMP}:{sSTAMP+1}]"); e("s_waitcnt lgkmcnt(0)")
            e(f"s_sub_u32 s{T4}, s{sSTAMP}, s{T3}"); e(f"s_cmp_lt_u32 s{T4}, s{T2}"); e("s_cbranch_scc1 L_echo")
    e("s_endpgm")
    A.track = False
    A.label("L_ool")
    for blk in ool: blk()
    A.label("L_exit")
    e("s_endpgm")
    A.raw(f".fill (16384 + 256 - (. - L_ool))/4, 4, 0xbf810000")
    A.raw('.section .rodata,"a"'); A.raw(".p2align 6"); A.raw(f".amdhsa_kernel {KNAME}")
    for t in ("next_free_vgpr 512", "next_free_sgpr 102", "accum_offset 256", "group_segment_fixed_size 0", "kernarg_size 80",
              "user_sgpr_count 2", "user_sgpr_kernarg_segment_ptr 1", "system_sgpr_workgroup_id_x 1"):
        A.raw("  .amdhsa_" + t)
    A.raw(".end_amdhsa_kernel")
    return A.text()

if __name__ == "__main__":
    o = Opts()
    out = sys.argv[1]
    for kv in sys.argv[2:]:
        k, val = kv.split("=")
        assert hasattr(o, k), k
        setattr(o, k, int(val))
    open(out, "w").write(gen(o))
```

```python
import sys, struct
from asmlib import *

KNAME = "interleave_layers__linear_kernel_hedgehog__sliding_local_dilated__prompt_kernel"

WS_FLAGA = 0x0000000
WS_FLAGB = 0x0008000
WS_FLAGO = 0x0009000
WS_FLAGX = 0x000A000
WS_CS    = 0x0010000
CS_SZ    = 393216
WS_ST    = 0x0100000
WS_ZP    = 0x0140000
WS_STAMPS= 0x0180000
WS_HALO  = 0x0200000
WS_KVP   = 0x0400000
WS_W1    = (0x0800000, 0x0E00000)
WS_W2    = (0x1400000, 0x1600000)
WS_X     = 0x1800000
WS_X0    = WS_X
WS_O     = 0x1C00000
WS_SIZE  = 0x2000000
OOR      = 0x40000000

SLOT = 24576
M      = 147456
M_CS   = M + 64
M_ST   = M + 1024
M_KX   = M + 4096
M_VX   = M + 11264
M_ZF   = M + 10240
LDS_SIZE = 163840
VB_LDS = 57344
RAW1A, RAW1B, RAW2 = 3*SLOT, 4*SLOT, 5*SLOT

SRD = "s[4:7]"; SRT = "s[8:11]"
SW, SGRP, SMEM, SMODE, SCB, SRB = 12, 13, 14, 15, 17, 18
T0, T1, T2, T3, T4, T5, T6, T7 = 19, 20, 21, 22, 23, 24, 25, 26
SIDX, SXCC = 27, 29
sFOc, sFOp, sFXc, sFXp = 30, 31, 32, 33
sO, sXs = 34, 35
mPAR, mB1, mDIAG, mM0, mOWN0, mOWN1, sPC, mFIRST = 36, 38, 40, 42, 44, 46, 48, 50
sCSa, sCSb, sZo, sFBp, sSTs, sLW, sKV, sZP, sHALO, sTMO, sAo, sWo = 52, 53, 54, 55, 56, 57, 58, 59, 60, 61, 62, 63
P_AX, P_AW1, P_PHI, P_AW2, P_BX, P_BW1, P_BW2, P_OUT, P_DBG, P_WS = 64, 66, 68, 70, 72, 74, 76, 78, 80, 82
sCL0, sCL2, sL8, sW2l, sW2s, sHst, sHld = 72, 73, 2, 0, 3, 16, 28
D1, D2, D4 = 64, 65, 66
mX, mEO, mEX = 68, 70, 76
sSTAMP = 84
ROTA, ROTW = 86, 94

vLW = 0; vL16, vL64, vL128 = 1, 2, 3
vA = 4; vB = 8; vW1 = 10; vW2 = 11; vFP = 12; vSTl = 13; vSTs = 14; vSTAMP = 15
RES = 16; PHI = 32; ONES = 40; MP0, MP1, MO0, MO1 = 44, 45, 46, 47
vE1, vVr, vLW3, vCPF, vKX0, vKX1, vCSa, vCSb = range(32, 40)
vXW, vE0, vTCH, vSQ, vJUNK, vCV, vFree, vKX, vGM, vZW, vSW, vSR, vG16, vOut, vZL, vVal = range(48, 64)
ACC = 64
def acc(c, i): return ACC + 16*c + 4*i
def acc2(b, i): return ACC + 8*b + 4*i
STP = 160; CSR = 168; WFV = 192; FBV = 216; CI = 220
RING, HW2, HCS = 48, 240, 248
def RS(par, k): return 24*par if k == 0 else 240 - 48*k + 24*par
MF = "v_mfma_f32_16x16x32_bf16"
def f32hex(x): return "0x%08x" % struct.unpack("<I", struct.pack("<f", x))[0]
CK = (f32hex(1.4426950408889634), f32hex(1.4426950408889634 * 32 ** -0.5))
LIM = 0x100000

class Opts:
    verbose = 0; stamps = 0; last = 3; force_slow = 0; echo_a = -1; echo_b = -1; echo_mul = 1; echo_idx = -1; g1prof = 0
    NRES = 2
    ND = 4
    LA = 3
    APRE = 3
    wrE = 150; wrL = 100; w1sE = 1; w1sL = 2; wr0 = 150; w1s0 = 1; n1pre = 6
    w2E = 300; w2L = 200; w2sE = 25; w2sL = 20
    sper = 1; s0 = 0
    g2depth = 7; g2w = 2; bpos = 12; TG = 3
    w2BE = 400; w2sBE = 24; w2BL = 400; w2sBL = 20; wrBL = 110
    bper = 60; TB = 5; LAB = 3; hpos = 5
    aper = 150; aper0 = 110; aper2 = 130; aper3 = 200; gpos = 4; dk = 6
    rw = 12
    xf = 1; xt0 = 8
    bin = 0; bs0 = 1; w2e = 1; w2t = 0; of = 1; ot0 = 27
    rt = 3; rtb = 2; bbar = 1; tlb = 1; apoll = 1; ksl = 0; kgate = 0; psl = 0; dtouch = 0
    outsc = 1; oall = 0; nopf = 0; xall = 0; rin = 0; lazy = 3; p2pos = 5; lv1 = 0; lv2 = 0; early = 3; epos = 0
    gop = 1; gown = 0; gow = 0; et = 0; cp0 = 0; CPL = 22; cpf = 1; cpf2 = 24; cpf3 = 26

def gen(o):
    A = Asm2(); e = A.e
    ool = []
    ND = o.ND; AD = ND; WQ = RING + 16*AD
    assert WQ + 8*ND <= 240 - 48*o.NRES and o.LA < AD
    assert not (o.gown and o.bin)
    lay = 0
    o.CPL = min(o.CPL, 5*o.last + 7)
    def E(lst):
        for t in lst: e(t)
    def stamp(name, force=0):
        if not o.stamps: return
        if o.g1prof and name in range(2, 11) and not force: return
        idx = name + 16*lay
        if o.stamps == 2 and name != 11 and idx not in (o.echo_a, o.echo_b): return
        e(f"{'s_memtime' if o.stamps == 3 else 's_memrealtime'} s[{sSTAMP}:{sSTAMP+1}]")
        e("s_waitcnt lgkmcnt(0)")
        e(f"v_writelane_b32 v{vSTAMP}, s{sSTAMP}, {59 if name == 11 else idx}")
    def srt(p, size):
        e(f"s_mov_b32 s8, s{p}"); e(f"s_mov_b32 s9, s{p+1}"); e(f"s_mov_b32 s10, {size}"); e("s_mov_b32 s11, 0x20000")
    def mask64(r, val):
        e(f"s_mov_b32 s{r}, 0x{val & 0xffffffff:08x}"); e(f"s_mov_b32 s{r+1}, 0x{val >> 32:08x}")
    def sm(r): return f"s[{r}:{r+1}]"
    def bc(r): return (v(r & ~1, 2), r & 1)
    def pk_fma(d, x, y, z, negx=False):
        yp, ys = bc(y); zp, zs = bc(z)
        e(f"v_pk_fma_f32 {v(d,2)}, {v(x,2)}, {yp}, {zp} op_sel:[0,{ys},{zs}] op_sel_hi:[1,{ys},{zs}]" + (" neg_lo:[1,0,0] neg_hi:[1,0,0]" if negx else ""))
    def pk_mul(d, x, y):
        yp, ys = bc(y)
        e(f"v_pk_mul_f32 {v(d,2)}, {v(x,2)}, {yp} op_sel:[0,{ys}] op_sel_hi:[1,{ys}]")
    def cvt4l(d, x0, x1):
        return [f"v_cvt_pk_bf16_f32 v{d}, v{x0}, v{x0+1}", f"v_cvt_pk_bf16_f32 v{d+1}, v{x0+2}, v{x0+3}",
                f"v_cvt_pk_bf16_f32 v{d+2}, v{x1}, v{x1+1}", f"v_cvt_pk_bf16_f32 v{d+3}, v{x1+2}, v{x1+3}"]
    def cvt4(d, x0, x1): E(cvt4l(d, x0, x1))
    def wt(t): return t + (" sc1" if t.startswith("buffer_store") else "")
    def st_mode(lines):
        ls, ld = A.new("slow"), A.new("done")
        e(f"s_cmp_lg_u32 s{SMODE}, 0"); e(f"s_cbranch_scc1 {ls}")
        E(lines); A.label(ld)
        def blk():
            A.label(ls); A.fence(); E([wt(t) for t in lines]); e("s_nop 7"); e(f"s_branch {ld}")
        ool.append(blk)
    def spin(body, cond, first=None):
        l, d = A.new("spin"), A.new("spind")
        e(f"s_mov_b32 s{sTMO}, {LIM}")
        if first:
            E(body); E(first); e("s_waitcnt vmcnt(0)"); E(cond); e(f"s_cbranch_vccz {d}")
        A.label(l); E(body); e(f"s_sub_u32 s{sTMO}, s{sTMO}, 1"); e("s_waitcnt vmcnt(0)"); E(cond)
        e(f"s_cbranch_scc1 {d}"); e(f"s_cbranch_vccnz {l}"); A.label(d)
    def retry(body, cond):
        l, d = A.new("rt"), A.new("rtd")
        def blk():
            A.label(l); spin(body, cond); e(f"s_branch {d}")
        ool.append(blk)
        return [f"s_cbranch_vccnz {l}", d + ":"]
    def signal(sreg):
        e("s_mov_b64 exec, 1"); e("s_waitcnt vmcnt(0)")
        st_mode([f"buffer_store_dword v{vVal}, off, {SRD}, s{sreg}"])
        e("s_mov_b64 exec, -1")
    def poll(sreg, val, first=None, mask=None):
        cond = [f"v_cmp_gt_u32 vcc, {val}, v{FBV}"]
        if mask: cond = [f"s_mov_b64 exec, {mask}"] + cond + ["s_mov_b64 exec, -1"]
        spin([f"buffer_load_dword v{FBV}, v{vFP}, {SRD}, s{sreg} offen sc1"], cond, first)
    def handoff(sp, sc, val, mask, emask, pre, first):
        ld = f"buffer_load_dword v{FBV}, v{vFP}, {SRD}, s{sc} offen sc1"
        d = A.new("hd")
        E(pre[:o.epos]); e(ld + " ;@PE"); E(pre[o.epos:])
        e("s_mov_b64 exec, 1"); e("s_waitcnt vmcnt(1)")
        st_mode([f"buffer_store_dword v{vVal}, off, {SRD}, s{sp}"])
        e("s_mov_b64 exec, -1")
        E(first)
        e("WAITV PE"); e(f"s_mov_b64 exec, {sm(emask)}"); e(f"v_cmp_gt_u32 vcc, {val}, v{FBV}"); e("s_mov_b64 exec, -1"); e(f"s_cbranch_vccz {d}")
        A.track = False; poll(sc, val, None, mask); A.track = True
        A.label(d)
    def poll2(sreg): e(f"buffer_load_dword v{FBV}, v{vFP}, {SRD}, s{sreg} offen sc1 ;@P2")
    def poll2chk(sreg, val, mask=None):
        l = A.new("p2")
        e("WAITV P2")
        if mask: e(f"s_mov_b64 exec, {mask}")
        e(f"v_cmp_gt_u32 vcc, {val}, v{FBV}")
        if mask: e("s_mov_b64 exec, -1")
        e(f"s_cbranch_vccnz {l}"); A.label(l + "_r")
        def blk(): A.label(l); poll(sreg, val, None, mask); e(f"s_branch {l}_r")
        ool.append(blk)
    def xreduce(groups):
        for op, q in groups: e(f"v_permlane32_swap_b32 v{q[0]}, v{q[1]}"); e(f"v_permlane32_swap_b32 v{q[2]}, v{q[3]}")
        for op, q in groups: e(f"{op} v{q[0]}, v{q[0]}, v{q[1]}"); e(f"{op} v{q[2]}, v{q[2]}, v{q[3]}")
        for op, q in groups: e(f"v_permlane16_swap_b32 v{q[0]}, v{q[2]}")
        for op, q in groups: e(f"{op} v{q[1]}, v{q[0]}, v{q[2]}"); e(f"{op} v{q[2]}, v{q[0]}, v{q[2]}")
        for op, q in groups: e(f"v_permlane16_swap_b32 v{q[1]}, v{q[2]}")
        for op, q in groups: e(f"v_mov_b32 v{q[0]}, v{q[1]}"); e(f"v_mov_b32 v{q[3]}, v{q[2]}")
        for op, q in groups: e(f"v_permlane32_swap_b32 v{q[0]}, v{q[1]}"); e(f"v_permlane32_swap_b32 v{q[2]}, v{q[3]}")
    def xparts(i):
        t = 160+8*i; g0 = t+4; st = []
        for kk in range(2):
            f = v(RES+8*i+4*kk, 4)
            st += [[f"{MF} {v(g0,4)}, {f}, {f}, {'0' if kk == 0 else v(g0,4)}"],
                   [f"buffer_store_dwordx4 {f}, v{vB+i}, {SRD}, s{sXs} offen offset:{kk*1024}"],
                   [f"{MF} {v(t,4)}, {v(ONES,4)}, {f}, {'0' if kk == 0 else v(t,4)}"]]
        return st, [[f"v_cndmask_b32 v{g0}, v{g0}, v{g0+1}, {sm(mPAR)}", f"v_cndmask_b32 v{g0+2}, v{g0+2}, v{g0+3}, {sm(mPAR)}"],
                    [f"v_cndmask_b32 v{t+1}, v{g0}, v{g0+2}, {sm(mB1)}"],
                    [f"s_mov_b64 exec, {sm(mDIAG)}", f"buffer_store_dwordx2 {v(t,2)}, v{vSTs}, {SRD}, s{sSTs} offen offset:{i*128}", "s_mov_b64 exec, -1"]]
    def xtile(through, blocks=(0, 1)):
        ps = [xparts(i) for i in blocks]
        st = sum((sum(p[0], []) for p in ps), []) + sum((sum(p[1], []) for p in ps), [])
        if through: E([wt(t) for t in st])
        else: st_mode(st)
    def w1_piece(par, stage, i):
        r = []; slot = (stage + 1) % 6
        if i % 4 == 0: r += [f"s_add_u32 m0, s{sLW}, {slot*SLOT + i*1024}", f"s_add_u32 s{sWo}, s{ROTW+stage}, {WS_W1[par] + i*1024}"]
        return r + [f"buffer_load_dwordx4 v{vW1}, {SRD}, s{sWo} offen offset:{(i%4)*1024} lds ;@W{stage}"]
    def w2_piece(par, part, i):
        r = []
        if i % 4 == 0:
            if part < 5:
                lb, sb = ((3+part)*SLOT, 57344 + part*SLOT) if part < 3 else ((part-3)*SLOT, (part-3)*SLOT)
                r += [f"s_add_u32 m0, s{sLW}, {lb + i*1024}", f"s_mov_b32 s{sWo}, {WS_W2[par] + sb + i*1024}"]
            else: r += [f"s_add_u32 m0, s{sL8}, {2*SLOT}", f"s_sub_u32 s{sWo}, {WS_W2[par] + 2*SLOT}, s{sW2l}"]
        return r + [f"buffer_load_dwordx4 v{vW2}, {SRD}, s{sWo} offen offset:{(i%4)*1024} lds"]
    def ldsrd(dst, addr):
        base = {0: vL16, 1: vL64, 2: vL128}[addr >> 16]
        return f"ds_read_b128 {dst}, v{base} offset:{addr & 0xffff}"
    def w1st(R, blk, sa, sb): return f"buffer_store_dwordx4 {R}, v{vW1}, {SRD}, s{sa if blk < 4 else sb} offen offset:{(blk%4)*1024} sc1"
    def csst(C, sreg): return ["s_mov_b32 exec_lo, 0x003f003f", "s_mov_b32 exec_hi, 0x003f003f", f"buffer_store_dwordx4 {C}, v{vOut}, {SRD}, s{sreg} offen sc1", "s_mov_b64 exec, -1"]
    def fb_body(k): return [f"s_mov_b32 s{T1}, {WS_FLAGB + 1024*k}", f"buffer_load_dwordx4 {v(FBV,4)}, v{vL16}, {SRD}, s{T1} offen sc1"]
    fb_cond = [f"v_and_b32 v{FBV}, v{FBV}, v{FBV+1}", f"v_and_b32 v{FBV+2}, v{FBV+2}, v{FBV+3}", f"v_and_b32 v{FBV}, v{FBV}, v{FBV+2}", f"v_cmp_ne_u32 vcc, 1, v{FBV}"]
    def fb_set(k): return ["s_mov_b64 exec, 1", f"buffer_store_dword v{vVal}, off, {SRD}, s{sFBp} offset:{1024*k} sc1", "s_mov_b64 exec, -1"]
    def xw(r, kb, ad=vXW): return f"ds_write2st64_b64 v{ad}, {v(r,2)}, {v(r+2,2)} offset0:{2*kb} offset1:{2*kb+1}"

    A.raw(f"; @launch grid=(256,1,1) block=(256,1,1) lds={LDS_SIZE}")
    A.raw('.amdgcn_target "amdgcn-amd-amdhsa--gfx950"'); A.raw(".text")
    A.raw(f".globl {KNAME}"); A.raw(".p2align 8"); A.raw(f".type {KNAME},@function"); A.label(KNAME)
    if o.stamps: e("s_memrealtime s[86:87]")
    e("s_cmp_ge_u32 s2, 256"); e("s_cbranch_scc1 L_exit")
    e(f"s_getpc_b64 {sm(sPC)}"); A.label("L_pc")
    e(f"s_lshr_b32 s{T0}, s2, 3"); e(f"s_mulk_i32 s{T0}, {o.CPL*128}"); e(f"v_min_u32 v252, {o.CPL-1}, v0"); e(f"v_lshl_add_u32 v252, v252, 7, s{T0}")
    cpv = f"global_load_dword v{vJUNK}, v252, {sm(sPC)}"
    if o.cp0 == 0: e(cpv)
    if o.cp0 == 3: e(f"s_and_b32 s{T1}, s2, 0xf8"); e(f"s_lshl_b32 s{T1}, s{T1}, 4"); e(f"s_add_u32 s{T1}, s{T1}, 256"); e(f"s_load_dword s{sTMO}, {sm(sPC)}, s{T1}")
    e("s_load_dwordx16 s[64:79], s[0:1], 0"); e("s_load_dwordx4 s[80:83], s[0:1], 64")
    if o.force_slow: e(f"s_lshr_b32 s{SGRP}, s2, 5"); e(f"s_and_b32 s{SMEM}, s2, 31")
    else: e(f"s_and_b32 s{SGRP}, s2, 7"); e(f"s_lshr_b32 s{SMEM}, s2, 3")
    VM = 215
    e(f"s_lshl_b32 s{SIDX}, s{SGRP}, 5"); e(f"s_add_u32 s{SIDX}, s{SIDX}, s{SMEM}")
    if o.et:
        e(f"s_lshl_b32 s{T1}, s{SIDX}, 14"); e(f"v_lshl_add_u32 v250, v0, 6, s{T1}")
        if o.et > 1: e(f"s_mul_i32 s{T1}, s{SIDX}, 24576"); e(f"v_mul_u32_u24 v251, 96, v0"); e(f"v_add_u32 v251, s{T1}, v251")
        e("s_waitcnt lgkmcnt(0)")
        if o.et != 3: e(f"global_load_dword v{vJUNK}, v250, {sm(P_AX)}")
        if o.et > 1: e(f"global_load_dword v{vJUNK}, v251, {sm(P_AW1)}")
    e("v_lshrrev_b32 v1, 6, v0"); e("v_and_b32 v254, 63, v0"); e(f"v_readfirstlane_b32 s{SW}, v1")
    e(f"s_lshr_b32 s{SRB}, s{SIDX}, 4"); e(f"s_and_b32 s{SCB}, s{SIDX}, 15")
    e(f"s_mul_i32 s{sLW}, s{SW}, 6144")
    e("v_lshrrev_b32 v203, 3, v254"); e("v_and_b32 v204, 7, v254"); e("v_lshlrev_b32 v204, 4, v204"); e("v_lshl_add_u32 v210, v203, 11, v204")
    e("v_lshrrev_b32 v200, 2, v254"); e("v_and_b32 v201, 3, v254")
    e("v_mul_u32_u24 v202, 6144, v200"); e("v_lshl_add_u32 v202, v201, 4, v202")
    e(f"s_lshl_b32 s{T2}, s{SRB}, 2"); e(f"s_add_u32 s{T2}, s{T2}, s{SW}"); e(f"s_lshl_b32 s{T2}, s{T2}, 16")
    e(f"s_lshl_b32 s{T4}, s{SCB}, 7"); e(f"s_add_u32 s{T3}, s{T2}, s{T4}")
    e(f"s_lshl_b32 s{T6}, s{SGRP}, 2"); e(f"s_add_u32 s{T6}, s{T6}, s{SW}")
    e(f"s_mul_i32 s{T5}, s{T6}, {32*6144}"); e(f"s_lshl_b32 s{T4}, s{SMEM}, 6"); e(f"s_add_u32 s{T5}, s{T5}, s{T4}")
    e(f"v_lshlrev_b32 v{vL16}, 4, v254"); e(f"v_and_b32 v{vG16}, 48, v254"); e(f"v_and_b32 v{VM}, 15, v254")
    e(f"s_lshl_b32 s{T1}, s{SCB}, 11"); e(f"s_add_u32 s{sXs}, s{T1}, {WS_X}")
    e(f"s_mul_i32 s{sAo}, s{SMEM}, 196608"); e(f"s_add_u32 s{sAo}, s{sAo}, s{sLW}"); e(f"s_mul_i32 s{ROTW}, s{SGRP}, {SLOT}")
    e("v_lshlrev_b32 v249, 7, v254")
    e(f"s_lshl_b32 s{T0}, s{SIDX}, 2"); e(f"s_add_u32 s{T0}, s{T0}, s{SW}"); e(f"s_mul_i32 s{sWo}, s{T0}, 6144")
    if o.stamps == 1: e("s_memrealtime s[88:89]")
    e("s_waitcnt lgkmcnt(0)")
    if o.stamps == 1: e("s_memrealtime s[90:91]")
    e(f"s_mov_b32 s4, s{P_WS}"); e(f"s_mov_b32 s5, s{P_WS+1}"); e(f"s_mov_b32 s6, {WS_SIZE}"); e("s_mov_b32 s7, 0x20000")
    if o.cp0 in (2, 4):
        e(f"s_lshl_b32 s{T0}, s{SMEM}, 2"); e(f"s_add_u32 s{T0}, s{T0}, s{SW}"); e(f"s_lshl_b32 s{T0}, s{T0}, 7")
        for j in range((o.CPL + 3)//4 if o.cp0 == 2 else 1):
            e(f"s_load_dword s{sTMO}, {sm(sPC)}, s{T0}"); e(f"s_add_u32 s{T0}, s{T0}, 16384")
    e(f"s_xor_b32 s{T7}, s{SW}, {o.gow}")
    e(f"s_or_b32 s{T0}, s{SMEM}, s{T7}"); e(f"s_cmp_lg_u32 s{T0}, 0"); e("s_cbranch_scc1 L_p0a")
    A.track = False
    for r in range(4): e(f"v_mov_b32 v{204+r}, 0")
    e(f"s_lshl_b32 s{T0}, s{SGRP}, 12")
    for j in range(4): e(f"buffer_store_dwordx4 v[204:207], v{vL16}, {SRD}, s{T0} offen offset:{j*1024} sc1")
    e(f"s_lshl_b32 s{T0}, s{SGRP}, 7"); e(f"s_add_u32 s{T0}, s{T0}, {WS_FLAGB}")
    e("s_mov_b64 exec, 0xff")
    for j in range(2): e(f"buffer_store_dwordx4 v[204:207], v{vL16}, {SRD}, s{T0} offen offset:{j*1024} sc1")
    e("s_mov_b64 exec, -1")
    A.track = True
    A.label("L_p0a")
    n0 = len(A.vq)
    def setgo():
        e(f"s_or_b32 s{T0}, s{SMEM}, s{T7}"); e(f"s_cmp_lg_u32 s{T0}, 0"); e("s_cbranch_scc1 L_p0b")
        A.track = False
        srt(P_DBG, 256); e("v_mov_b32 v204, 1"); e(f"s_lshl_b32 s{T0}, s{SGRP}, {4 if o.dtouch else 5}")
        e(f"s_waitcnt vmcnt({len(A.vq) - n0})")
        e("s_mov_b64 exec, 1"); e(f"buffer_store_dword v204, off, {SRT}, s{T0} sc1"); e("s_mov_b64 exec, -1")
        A.track = True
        A.label("L_p0b")
    if o.gop == 2: setgo()
    def rowtouch(p, few=False):
        srt(p, 0x600000)
        if few: e("s_mov_b32 exec_lo, 0x08080808")
        e("s_mov_b32 exec_hi, 0x0808" if few else "s_mov_b32 exec_hi, 0xffff"); e(f"buffer_load_dword v{vJUNK}, v249, {SRT}, s{sWo} offen"); e("s_mov_b64 exec, -1")
    if o.rt in (1, 3): rowtouch(P_AW1, o.rt == 3)
    srt(P_AX, 0x400000)
    for i in range(4):
        e(f"s_add_u32 m0, s{sLW}, {i*1024}"); e(f"s_add_u32 s{T0}, s{T3}, {i*16384}")
        e(f"buffer_load_dwordx4 v210, {SRT}, s{T0} offen lds ;@x")
    if o.rt == 2: rowtouch(P_AW1)
    if o.stamps == 1: e("s_memrealtime s[92:93]")
    def touch(p, *calc):
        if o.tlb: E(list(calc)); e(f"s_load_dword s{sTMO}, s[{p}:{p+1}], s{T0}")
    if o.dtouch: touch(P_DBG, f"s_movk_i32 s{T0}, 128")
    touch(P_WS, f"s_add_u32 s{T0}, s{T2}, s{sXs}")
    touch(P_WS, f"s_add_u32 s{T0}, s{sAo}, s{ROTW}", f"s_add_u32 s{T0}, s{T0}, {WS_W1[0]}")
    touch(P_WS, f"s_mov_b32 s{T0}, 0x1f0000")
    touch(P_BW1, f"s_mov_b32 s{T0}, s{T5}"); touch(P_AW2, f"s_lshl_b32 s{T0}, s{SRB}, 17"); touch(P_BW2)
    if o.gop == 1: setgo()
    srt(P_PHI, 0x10000)
    e(f"s_add_u32 m0, s{sLW}, 4096"); e(f"s_lshl_b32 s{T0}, s{SMEM}, 11")
    for j in range(2): e(f"buffer_load_dwordx4 v{vL16}, {SRT}, s{T0} offen offset:{j*1024} lds ;@phi")
    def raw1(p, ldsb, tag):
        srt(p, 0x600000)
        for seg in range(3):
            for hf in range(2):
                e(f"s_add_u32 m0, s{sLW}, {ldsb + seg*2048 + hf*1024}"); e(f"s_add_u32 s{T0}, s{T5}, {seg*2048 + hf*16*6144}")
                e(f"buffer_load_dwordx4 v202, {SRT}, s{T0} offen lds ;@{tag}")
    raw1(P_AW1, RAW1A, "ra")
    if o.rtb == 5: rowtouch(P_BW1)
    if o.cp0 in (1, 3): e(cpv)
    if o.gop == 0: setgo()
    e(f"v_lshl_add_u32 v214, v{VM}, 7, v{vG16}"); e(f"v_add_u32 v214, s{sLW}, v214")
    e(f"v_add_u32 v{vB}, s{T2}, v{vL16}"); e(f"v_add_u32 v{vB+1}, 0x8000, v{vB}")
    e(f"s_lshr_b32 s{T2}, s{T2}, 8"); e(f"v_lshl_add_u32 v{vSTs}, v{VM}, 3, s{T2}")
    e(f"s_lshl_b32 s{T0}, s{SCB}, 14"); e(f"s_add_u32 s{sSTs}, s{T0}, {WS_ST}")
    mask64(mPAR, 0xAAAAAAAAAAAAAAAA); mask64(mB1, 0xCCCCCCCCCCCCCCCC); mask64(mDIAG, 0xF0000F0000F0000F)
    for r in range(4): e(f"v_mov_b32 v{ONES+r}, 0x3f803f80")
    if o.stamps:
        e(f"v_mov_b32 v{vSTAMP}, 0"); e(f"v_writelane_b32 v{vSTAMP}, s86, 12"); e(f"v_writelane_b32 v{vSTAMP}, s{sPC}, 63")
    stamp(28)
    if o.stamps == 1:
        for j in range(3): e(f"v_writelane_b32 v{vSTAMP}, s{88+2*j}, {60+j}")
    e("WAITV x")
    for i in range(2):
        for kk in range(2): e(f"ds_read_b128 {v(RES+8*i+4*kk,4)}, v214 offset:{i*2048 + kk*64}")
    e(f"v_add_u32 v{vW1}, s{sAo}, v{vL16}"); e(f"v_add_u32 v{vLW}, s{sLW}, v{vL16}")
    e("v_and_b32 v209, 3, v200"); e(f"v_lshrrev_b32 v203, 1, v{vG16}"); e("v_add_u32 v209, v209, v203")
    e("v_lshlrev_b32 v203, 6, v209"); e("v_lshl_add_u32 v205, v201, 3, v203"); e(f"v_add_u32 v205, s{sLW}, v205")
    e("v_lshl_add_u32 v206, v201, 4, v203"); e(f"s_add_u32 s{T1}, s{sLW}, {RAW1A}"); e(f"v_add_u32 v206, s{T1}, v206")
    e(f"v_lshrrev_b32 v203, 2, v{VM}"); e("v_lshl_add_u32 v203, v203, 3, v201"); e(f"v_lshl_add_u32 v203, v203, 6, v{vG16}"); e(f"v_add_u32 v208, s{T1}, v203")
    e(f"v_lshl_add_u32 v{vOut}, v{VM}, 11, v{vG16}")
    e("s_waitcnt lgkmcnt(0)")
    stamp(29)
    if o.cp0 == 4: e(cpv)
    if o.rtb == 1: rowtouch(P_BW1)
    xtile(True)
    if o.rtb == 2: rowtouch(P_BW1)
    if o.w2t:
        e(f"s_lshl_b32 s{T0}, s{SIDX}, 2"); e(f"s_add_u32 s{T0}, s{T0}, s{SW}"); e(f"s_lshl_b32 s{T0}, s{T0}, 11"); e("s_mov_b64 exec, 0xffff")
        for p in (P_BW2, P_AW2)[:o.w2t]:
            srt(p, 0x200000); e(f"buffer_load_dword v{vJUNK}, v249, {SRT}, s{T0} offen")
        e("s_mov_b64 exec, -1")
    for blk in range(6):
        mask64(T1, 0x0001000100010001 << blk)
        for r in range(4): e(f"v_cndmask_b32 v{96+4*blk+r}, 0, v{ONES}, {sm(T1)}")
    e(f"s_add_u32 s{T2}, s{ROTW}, {WS_W1[0]}"); e(f"s_add_u32 s{T4}, s{T2}, 4096")
    e(f"s_lshl_b32 s{T0}, s{T6}, 6"); e(f"s_mul_i32 s{T1}, s{SMEM}, 12288"); e(f"s_add_u32 s{T0}, s{T0}, s{T1}"); e(f"s_add_u32 s{sCL0}, s{T0}, {WS_CS}")
    e("WAITV phi")
    for fb in range(2):
        for t in range(2): e(f"ds_read_b64_tr_b16 {v(PHI+4*fb+2*t,2)}, v205 offset:{4096 + fb*32 + t*256}")
    e("WAITV ra")
    if o.rtb == 6: rowtouch(P_BW1)
    stamp(13)
    RA, RB = RS(0, 0), RS(1, 0)
    for seg in range(2):
        for kb in range(2): e(f"ds_read_b128 {v(120+8*seg+4*kb,4)}, v208 offset:{seg*2048 + kb*256} ;@s{seg}")
    for blk in (4, 5):
        for t in range(2): e(f"ds_read_b64_tr_b16 {a(RA+4*blk+2*t,2)}, v206 offset:{4096 + t*256 + (blk&1)*8}")
    for seg in range(2):
        e(f"WAITL s{seg}")
        for fb in range(2):
            for kb in range(2): e(f"{MF} {v(160+16*seg+8*fb+4*kb,4)}, {v(120+8*seg+4*kb,4)}, {v(PHI+4*fb,4)}, 0")
    e("s_waitcnt lgkmcnt(0)")
    for blk in (4, 5):
        e(w1st(a(RA+4*blk,4), blk, T2, T4))
        e(f"{MF} v[64:67], {a(RA+4*blk,4)}, {v(96+4*blk,4)}, {'0' if blk == 4 else 'v[64:67]'}")
    for blk in range(4):
        cvt4(136+4*blk, 160+8*blk, 164+8*blk)
        e(w1st(v(136+4*blk,4), blk, T2, T4))
        e(f"{MF} v[64:67], {v(136+4*blk,4)}, {v(96+4*blk,4)}, v[64:67]")
    for r in range(16): e(f"v_accvgpr_write_b32 a{RA+r}, v{136+r}")
    E(csst(v(64,4), sCL0))
    srt(P_DBG, 256)
    e("v_and_b32 v253, 7, v254"); e(f"v_lshlrev_b32 v253, {4 if o.dtouch else 5}, v253"); e(f"s_cmp_eq_u32 s{SW}, 0"); e(f"s_cselect_b32 s{T0}, 0, {OOR}")
    e(f"buffer_load_dword v212, v253, {SRT}, s{T0} offen sc1 ;@go")
    if o.bbar: e("s_barrier")
    if o.rtb == 3: rowtouch(P_BW1)
    e(f"s_lshl_b32 s{T0}, s{SRB}, 1"); e(f"s_and_b32 s{T3}, s{SW}, 1"); e(f"s_add_u32 s{T0}, s{T0}, s{T3}")
    e(f"s_lshl_b32 s{T1}, s{SCB}, 1"); e(f"s_lshr_b32 s{T4}, s{SW}, 1"); e(f"s_add_u32 s{T1}, s{T1}, s{T4}"); e(f"s_lshl_b32 s{T1}, s{T1}, 6")
    e(f"s_lshl_b32 s{sW2s}, s{T0}, 12"); e(f"s_lshl_b32 s{T0}, s{T0}, 16"); e(f"s_add_u32 s{T0}, s{T0}, s{T1}"); e(f"s_add_u32 s{T1}, s{T0}, 0x8000")
    e("v_lshlrev_b32 v203, 11, v200"); e("v_lshl_add_u32 v207, v201, 4, v203")
    e(f"s_mov_b32 s{D1}, s{T0}"); e(f"s_mov_b32 s{D2}, s{T1}")
    def raw2(wt_):
        srt((P_AW2, P_BW2)[wt_], 0x200000)
        for i in range(2):
            e(f"s_add_u32 m0, s{sLW}, {RAW2 + wt_*2048 + i*1024}")
            e(f"buffer_load_dwordx4 v207, {SRT}, s{D1 + i} offen lds ;@r2{wt_}")
    for wt_ in range(o.w2e): raw2(wt_)
    for blk in range(6): e(f"ds_write_b128 v{vLW}, {a(RA+4*blk,4)} offset:{SLOT + blk*1024}")
    stamp(30)
    e(f"s_getreg_b32 s{SXCC}, hwreg(HW_REG_XCC_ID, 0, 4)"); e(f"s_or_b32 s{SXCC}, s{SXCC}, 0x100")
    e(f"v_mov_b32 v{vVal}, s{SXCC}")
    e(f"s_lshl_b32 s{T0}, s{T4}, 11"); e(f"s_add_u32 s{sW2s}, s{sW2s}, s{T0}"); e(f"s_lshl_b32 s{T0}, s{SCB}, 17")
    e(f"s_add_u32 s{sW2s}, s{sW2s}, s{T0}"); e(f"s_add_u32 s{sW2s}, s{sW2s}, {WS_W2[0]}")
    e(f"s_lshl_b32 s{T1}, s{SMEM}, 15"); e(f"s_lshl_b32 s{T2}, s{SW}, 10"); e(f"s_add_u32 s{T1}, s{T1}, s{T2}"); e(f"s_add_u32 s{sKV}, s{T1}, {WS_KVP - WS_X + (1<<32)}")
    e(f"s_lshr_b32 s{T1}, s{T1}, 4"); e(f"s_add_u32 s{sZP}, s{T1}, {WS_ZP}")
    for s_ in range(8):
        e(f"s_add_u32 s{T1}, s{SGRP}, {s_}"); e(f"s_and_b32 s{T1}, s{T1}, 7")
        e(f"s_mul_i32 s{ROTW+s_}, s{T1}, {SLOT}"); e(f"s_lshl_b32 s{T1}, s{T1}, 12"); e(f"s_add_u32 s{ROTA+s_}, s{T1}, {WS_X}")
    e(f"s_lshl_b32 s{T1}, s{SIDX}, 11"); e(f"s_add_u32 s{sHALO}, s{T1}, {WS_HALO}")
    e(f"s_lshl_b32 s{T1}, s{SMEM}, 10"); e(f"s_add_u32 s{sO}, s{T1}, {WS_O}")
    touch(P_WS, f"s_mov_b32 s{T0}, s{sW2s}")
    touch(P_WS, f"s_add_u32 s{T0}, s{sKV}, s{ROTA}")
    touch(P_WS, f"s_add_u32 s{T0}, s{sW2s}, {WS_W2[1] - WS_W2[0]}")
    touch(P_WS, f"s_add_u32 s{T0}, s{sAo}, s{ROTW}", f"s_add_u32 s{T0}, s{T0}, {WS_W1[1]}")
    touch(P_WS, f"s_mov_b32 s{T0}, s{sHALO}")
    touch(P_WS, f"s_lshl_b32 s{T0}, s{T6}, 17", f"s_add_u32 s{T0}, s{T0}, s{sO}")
    touch(P_OUT, f"s_lshl_b32 s{T0}, s{SRB}, 18", f"s_lshl_b32 s{T1}, s{SCB}, 7", f"s_add_u32 s{T0}, s{T0}, s{T1}")
    e(f"s_lshl_b32 s{T0}, s{SGRP}, 5"); e(f"v_add_u32 v203, s{T0}, v254")
    e("v_and_b32 v204, 7, v254"); e(f"v_lshl_add_u32 v204, v204, 5, s{SMEM}")
    mask64(T1, 0x00000000FFFFFFFF); e(f"v_cndmask_b32 v211, v204, v203, {sm(T1)}"); e("v_lshlrev_b32 v211, 7, v211")
    e(f"s_cmp_eq_u32 s{SW}, 0"); e(f"s_cselect_b32 s{T0}, 1, 0")
    e("WAITV go")
    stamp(31)
    gm = ([f"s_lshl_b64 exec, 1, s{SGRP}"], ["s_mov_b64 exec, -1"]) if o.gown else ([], [])
    E(gm[0]); e(f"v_cmp_ne_u32 vcc, s{T0}, v212"); E(gm[1]); e("s_cbranch_vccnz L_goslow")
    A.label("L_gook")
    def goslow():
        A.label("L_goslow"); srt(P_DBG, 256); e("s_waitcnt lgkmcnt(0)")
        E(gm[0]); spin([f"buffer_load_dword v212, v253, {SRT}, 0 offen sc1"], ["v_cmp_ne_u32 vcc, 1, v212"]); E(gm[1]); e("s_branch L_gook")
    ool.append(goslow)
    e(f"s_lshl_b32 s{T0}, s{SIDX}, 7"); e(f"s_cmp_eq_u32 s{SW}, 0"); e(f"s_cselect_b32 s{T0}, s{T0}, {OOR}")
    e("s_barrier")
    e("s_mov_b64 exec, 1"); e(f"buffer_{'atomic_or' if o.apoll else 'store_dword'} v{vVal}, off, {SRD}, s{T0} sc1"); e("s_mov_b64 exec, -1")
    stamp(14)
    for wt_ in range(o.w2e, 2): raw2(wt_)
    if o.rtb == 4: rowtouch(P_BW1)
    if not o.bin: raw1(P_BW1, RAW1B, "rb")
    else: srt(P_BW1, 0x600000)
    e(f"s_cmp_eq_u32 s{SW}, 0"); e(f"s_cselect_b32 s{T7}, 0, {OOR}")
    if o.gown: srt(P_DBG, 256); e(f"buffer_load_dword v250, v253, {SRT}, s{T7} offen sc1 ;@go2")
    mask64(mM0, 0x0001000100010001)
    mask64(mOWN0, sum(1 << l for l in range(64) if 4*(l >> 4) + (l & 1) <= (l & 15)))
    mask64(mOWN1, sum(1 << l for l in range(64) if 4*(l >> 4) + 2 + (l & 1) <= (l & 15)))
    e(f"s_lshl_b32 s{T1}, s{T6}, 7"); e(f"s_add_u32 s{sFXc}, s{T1}, {WS_FLAGX}")
    e(f"s_lshl_b32 s{T2}, s{SMEM}, 2"); e(f"s_add_u32 s{T1}, s{T1}, s{T2}"); e(f"s_add_u32 s{sFOp}, s{T1}, {WS_FLAGO}")
    e(f"s_lshl_b32 s{T1}, s{SRB}, 1"); e(f"s_add_u32 s{T1}, s{T1}, s{T4}"); e(f"s_lshl_b32 s{T1}, s{T1}, 7")
    e(f"s_add_u32 s{sFOc}, s{T1}, {WS_FLAGO}")
    e(f"s_lshl_b32 s{T2}, s{SCB}, 3"); e(f"s_lshl_b32 s{T0}, s{T3}, 2")
    e(f"s_add_u32 s{T1}, s{T1}, s{T2}"); e(f"s_add_u32 s{T1}, s{T1}, s{T0}"); e(f"s_add_u32 s{sFXp}, s{T1}, {WS_FLAGX}")
    e(f"s_lshl_b32 s{T0}, s{SGRP}, 8"); e(f"s_add_u32 s{sZo}, s{T0}, s{sZP}")
    e(f"s_lshl_b32 s{T1}, s{T3}, 10"); e(f"s_lshl_b32 s{T2}, s{T4}, 19")
    e(f"s_add_u32 s{T1}, s{T1}, s{T2}"); e(f"s_add_u32 s{sCL2}, s{T1}, s{sHALO}")
    e(f"s_lshl_b32 s{T1}, s{SIDX}, 2"); e(f"s_add_u32 s{T1}, s{T1}, {WS_FLAGB}"); e(f"s_cmp_eq_u32 s{SW}, 0"); e(f"s_cselect_b32 s{sFBp}, s{T1}, {OOR}")
    e(f"s_cmp_eq_u32 s{SW}, 3"); e(f"s_cselect_b32 s{sHst}, s{sHALO}, {OOR}")
    e(f"s_sub_u32 s{T1}, s{sHALO}, 0x10000"); e(f"s_cmp_eq_u32 s{SW}, 0"); e(f"s_cselect_b32 s{T1}, s{T1}, {OOR}")
    e(f"s_cmp_eq_u32 s{SGRP}, 0"); e(f"s_cselect_b32 s{sHld}, {OOR}, s{T1}")
    e(f"s_lshl_b32 s{T0}, s{SGRP}, 2"); e(f"s_lshl_b32 s{mX}, 15, s{T0}"); e(f"s_mov_b32 s{mX+1}, 0")
    e(f"s_sub_u32 s{T0}, s{sFOp}, s{sFOc}"); e(f"s_lshr_b32 s{T1}, s{T0}, 2"); e(f"s_lshl_b32 s{T1}, 1, s{T1}"); e(f"s_cmp_lt_u32 s{T0}, 128"); e(f"s_cselect_b32 s{T1}, s{T1}, 0")
    e(f"s_andn2_b32 s{mEO}, {(1 << (o.g2depth - 1)) - 1 if o.lazy & 2 else -1}, s{T1}"); e(f"s_mov_b32 s{mEO+1}, 0")
    e(f"s_sub_u32 s{T0}, s{sFXp}, s{sFXc}"); e(f"s_lshr_b32 s{T1}, s{T0}, 2"); e(f"s_lshl_b32 s{T1}, 1, s{T1}"); e(f"s_cmp_lt_u32 s{T0}, 128"); e(f"s_cselect_b32 s{T1}, s{T1}, 0")
    e(f"s_andn2_b32 s{mEX}, {'s%d' % mX if o.lazy & 1 else -1}, s{T1}"); e(f"s_mov_b32 s{mEX+1}, 0")
    e(f"s_lshl_b32 s{sL8}, s{SW}, 11"); e(f"s_lshl_b32 s{sW2l}, s{SW}, 12")
    e(f"s_or_b32 s{T0}, s{SGRP}, s{SW}"); e(f"s_cmp_eq_u32 s{T0}, 0"); e(f"s_cselect_b64 {sm(mFIRST)}, -1, 0")
    e(f"v_add_u32 v{vL64}, 0x10000, v{vL16}"); e(f"v_add_u32 v{vL128}, 0x20000, v{vL16}"); e(f"v_add_u32 v{vLW3}, {(3-o.nopf)*SLOT}, v{vLW}")
    e(f"v_and_b32 v{vFP}, 31, v254"); e(f"v_lshlrev_b32 v{vFP}, 2, v{vFP}")
    e(f"s_lshl_b32 s{T1}, s{T6}, 17"); e(f"v_add_u32 v{vA}, s{T1}, v{vL16}")
    for i in range(1, 4): e(f"v_add_u32 v{vA+i}, {i*0x8000}, v{vA}")
    e(f"s_lshl_b32 s{T1}, s{T6}, 9"); e("v_lshrrev_b32 v213, 5, v254"); e(f"v_lshl_add_u32 v{vSTl}, v213, 17, s{T1}"); e(f"v_lshl_add_u32 v{vSTl}, v{vFP}, 2, v{vSTl}")
    e(f"s_lshl_b32 s{T1}, s{SCB}, 17"); e(f"s_add_u32 s{T1}, s{T1}, s{sLW}"); e(f"v_add_u32 v{vW2}, s{T1}, v{vL16}")
    e("v_lshrrev_b32 v203, 4, v254"); e("v_xor_b32 v204, v203, v201"); e("v_lshlrev_b32 v204, 3, v204"); e("v_lshl_add_u32 v208, v200, 5, v204")
    e(f"s_lshl_b32 s{T2}, s{SW}, 12")
    e(f"v_lshrrev_b32 v204, 2, v{VM}"); e("v_xor_b32 v203, v203, v204"); e("v_lshlrev_b32 v203, 3, v203")
    e(f"v_lshl_add_u32 v203, v{VM}, 5, v203"); e(f"v_add_u32 v{vXW}, s{T2}, v203")
    e(f"s_lshl_b32 s{T0}, s{T4}, 14"); e(f"s_lshl_b32 s{T1}, s{T3}, 9"); e(f"s_add_u32 s{T2}, s{T0}, s{T1}"); e(f"v_add_u32 v{vE0}, s{T2}, v208")
    e(f"v_xor_b32 v{vE1}, 512, v{vE0}"); e(f"s_add_u32 s{T1}, s{T1}, {VB_LDS}"); e(f"v_add_u32 v{vVr}, s{T1}, v208")
    e(f"s_lshl_b32 s{T1}, s{T3}, 3")
    e(f"v_add_u32 v{vGM}, {M}, v{vG16}")
    e(f"s_lshl_b32 s{T0}, s{T4}, 6"); e(f"s_add_u32 s{T0}, s{T0}, s{T1}"); e(f"v_add_u32 v{vZW}, s{T0}, v{vGM}")
    e(f"s_lshl_b32 s{T0}, s{SW}, 10"); e(f"s_add_u32 s{T0}, s{T0}, {M_KX}"); e(f"v_add_u32 v{vKX}, s{T0}, v{vL16}")
    e(f"v_add_u32 v{vKX0}, s{T1}, v{vKX}"); e(f"v_xor_b32 v{vKX1}, 8, v{vKX0}")
    e(f"s_lshl_b32 s{T0}, s{SW}, 9"); e(f"s_add_u32 s{T0}, s{T0}, {M_ST}")
    e(f"v_lshl_add_u32 v203, v213, 2, s{T0}"); e(f"v_lshl_add_u32 v{vSW}, v{vFP}, 1, v203"); e(f"v_lshl_add_u32 v{vSR}, v{VM}, 2, s{T0}")
    e(f"v_add_u32 v{vSQ}, s{T0}, v{vG16}"); e(f"v_lshlrev_b32 v203, 2, v{VM}"); e(f"v_add_u32 v{vCV}, {M_CS + 384}, v203")
    e(f"v_and_b32 v203, 7, v{VM}"); e(f"v_lshl_add_u32 v{vZL}, v203, 8, v{vG16}")
    e("v_mov_b32 v203, 0xffff"); e("v_mov_b32 v204, 0xffff0000"); e(f"v_cndmask_b32 v203, v203, v204, {sm(mPAR)}")
    e(f"v_cndmask_b32 v{MO0}, 0, v203, {sm(mOWN0)}"); e(f"v_cndmask_b32 v{MO1}, 0, v203, {sm(mOWN1)}")
    e(f"v_xor_b32 v{MP0}, v203, v{MO0}"); e(f"v_xor_b32 v{MP1}, v203, v{MO1}")
    e(f"s_add_u32 s{T2}, s{SW}, 4"); e(f"s_min_u32 s{T2}, s{T2}, 5"); e(f"s_mul_i32 s{T0}, s{SMEM}, 12288"); e(f"s_add_u32 s{T0}, s{T0}, {WS_CS}")
    e(f"s_lshl_b32 s{T1}, s{SW}, 11"); e(f"s_add_u32 s{sCSa}, s{T0}, s{T1}"); e(f"s_lshl_b32 s{T1}, s{T2}, 11"); e(f"s_add_u32 s{sCSb}, s{T0}, s{T1}")
    e("v_bfe_u32 v203, v254, 4, 1"); e("v_lshlrev_b32 v203, 3, v203"); e("v_lshl_add_u32 v203, v213, 2, v203"); e("v_lshl_add_u32 v203, v201, 4, v203"); e(f"v_add_u32 v203, {M_CS}, v203")
    e(f"s_lshl_b32 s{T1}, s{SW}, 6"); e(f"v_add_u32 v{vCSa}, s{T1}, v203"); e(f"s_lshl_b32 s{T1}, s{T2}, 6"); e(f"v_add_u32 v{vCSb}, s{T1}, v203")
    e(f"s_lshl_b32 s{T0}, s{SMEM}, 2"); e(f"s_add_u32 s{T0}, s{T0}, s{SW}"); e(f"s_lshl_b32 s{T2}, s{T0}, 7"); e(f"v_mov_b32 v{vCPF}, s{T2}")
    e(f"s_lshr_b32 s{T1}, s{T0}, 3"); e(f"s_and_b32 s{T0}, s{T0}, 7")
    e(f"s_lshl_b32 s{T2}, s{SGRP}, 4"); e(f"s_add_u32 s{T1}, s{T1}, s{T2}"); e(f"s_lshl_b32 s{T1}, s{T1}, 15"); e(f"s_lshl_b32 s{T0}, s{T0}, 9"); e(f"s_add_u32 s{T0}, s{T0}, s{T1}")
    e(f"v_lshl_add_u32 v{vTCH}, v{vG16}, 3, s{T0}")
    for r in range(4): e(f"v_accvgpr_write_b32 a{252+r}, -1")
    e(f"v_mov_b32 v{vVal}, 0"); e(f"s_add_u32 s{T0}, s{sKV}, s{ROTA}")
    e(f"buffer_store_dwordx4 a[252:255], v{vL16}, {SRD}, s{T0} offen sc1")
    e(f"s_mov_b64 exec, {sm(mM0)}"); e(f"buffer_store_dwordx4 a[252:255], v{vG16}, {SRD}, s{sZo} offen sc1")
    e("s_mov_b64 exec, 1"); e(f"buffer_store_dword v{vVal}, off, {SRD}, s{sFOp} sc1"); e(f"buffer_store_dword v{vVal}, off, {SRD}, s{sFXp} sc1"); e("s_mov_b64 exec, -1")
    pl = [f"buffer_load_dword v212, v211, {SRD}, s{T7} offen sc1"]
    if o.apoll: pl = ["v_mov_b32 v212, -1", "s_mov_b32 exec_hi, 0xff", "v_mov_b32 v212, 0", f"buffer_atomic_or v212, v211, {SRD}, s{T7} offen sc0 sc1", "s_mov_b64 exec, -1"]
    def w2tr(wt_):
        e(f"WAITV r2{wt_}")
        for b_ in range(2):
            for t in range(2):
                d_ = v(224+4*b_+2*t, 2) if wt_ == 0 else a(HW2+4*b_+2*t, 2)
                e(f"ds_read_b64_tr_b16 {d_}, v206 offset:{2*SLOT + wt_*2048 + t*256 + b_*8}")
    def w2ast():
        e("s_waitcnt lgkmcnt(0)")
        for b_ in range(2): e(f"buffer_store_dwordx4 {v(224+4*b_,4)}, v{vL16}, {SRD}, s{sW2s} offen offset:{b_*1024} sc1 ;@b1")
    if o.bin:
        w2tr(0); w2ast()
        e("v_mov_b32 v248, v202"); e(f"v_subrev_u32 v249, {RAW1A}, v206")
        stamp(44)
        E([t + (" ;@poll" if t.startswith("buffer") else "") for t in pl])
        w2tr(1); e("s_waitcnt lgkmcnt(0)")
    else:
        e("WAITV rb")
        if o.gown:
            e(f"s_cmp_eq_u32 s{SW}, 0"); e(f"s_cselect_b32 s{T0}, 1, 0"); e("WAITV go2"); e("s_waitcnt lgkmcnt(0)"); e(f"v_cmp_ne_u32 vcc, s{T0}, v250")
            E(retry([f"buffer_load_dword v250, v253, {SRT}, 0 offen sc1"], ["v_cmp_ne_u32 vcc, 1, v250"]))
        stamp(44)
        E([t + (" ;@poll" if t.startswith("buffer") else "") for t in pl])
        w2tr(0); w2tr(1); w2ast()
        for blk in range(6):
            for t in range(2): e(f"ds_read_b64_tr_b16 {a(RB+4*blk+2*t,2)}, v206 offset:{SLOT + (blk>>1)*2048 + t*256 + (blk&1)*8} ;@r{blk}")
        for blk in range(6):
            e(f"WAITL r{blk}")
            e(f"{MF} {a(HCS,4)}, {a(RB+4*blk,4)}, {v(96+4*blk,4)}, {'0' if blk == 0 else a(HCS,4)}")
    e(f"v_mov_b32 v{vVal}, 1")
    stamp(45)
    e("WAITV poll")
    e(f"s_cmp_lg_u32 s{SW}, 0"); e("s_cbranch_scc1 L_faok")
    A.track = False
    e("v_cmp_eq_u32 vcc, 0, v212"); e("s_cbranch_vccz L_fad")
    spin(([f"s_sleep {o.psl}"] if o.psl else []) + pl, ["v_cmp_eq_u32 vcc, 0, v212"])
    A.label("L_fad")
    e(f"v_cmp_ne_u32 {sm(T1)}, s{SXCC}, v212"); e(f"v_mov_b32 v212, s{T1}")
    e(f"ds_write_b32 v{vGM}, v212"); e("s_waitcnt lgkmcnt(0)")
    A.track = True
    A.label("L_faok")
    e("s_barrier")
    stamp(15)
    e(f"ds_read_b32 v{FBV}, v{vGM} ;@mode")

    for lay in range(o.last + 1):
        par = lay & 1; early = lay < 2; li = lay >> 1; last = lay == o.last
        A.label(f"L_layer{lay}")
        stamp(0)
        nd = ND if par == 0 else 0; TB = o.TB if par else 0
        NF = 4*AD if par == 0 else 4*AD + 2*ND; LAF = 4*(o.LA if par == 0 else o.LAB)
        assert LAF + 4 <= NF
        units = [(st, (0, 1, 2, 3), list(range(2 if st >= 32 - nd else 0, 6))) for st in range(32 - TB)]
        units += [(st, bl, list(range(6))) for bl in ((2, 3), (0, 1)) for st in range(32 - TB, 32)]
        anext = [(u, st, i) for u, (st, bl, _) in enumerate(units) for i in bl]
        fidx = {(st, i): n for n, (u, st, i) in enumerate(anext)}
        def afr(step, i): return a(RING + 4*(fidx[(step, i)] % NF), 4)
        def wdst(step, c):
            if c < 2 and step >= 32 - nd: return a(WQ + 8*(step - (32-nd)) + 4*c, 4)
            return v(WFV + 4*c, 4)
        def w1rd(u, c):
            step = units[u][0]
            return ldsrd(wdst(step, c), ((step//4 + 1) % 6)*SLOT + (step % 4)*6144 + c*1024) + f" ;@w{u}_{c}"
        def aload(u, step, i):
            return f"buffer_load_dwordx4 {afr(step, i)}, v{vA+i}, {SRD}, s{ROTA + step//4} offen offset:{(step%4)*1024} sc1 ;@A{u}"
        def mma(step, c, i):
            x, y = (afr(step, i), wdst(step, c)) if (par and c >= 4) else (wdst(step, c), afr(step, i))
            return f"{MF} {v(acc(c,i),4)}, {x}, {y}, {'0' if step == 0 else v(acc(c,i),4)}"
        def ostore(i, through):
            t = f"buffer_store_dwordx4 {v(224+4*i,4)}, v{vA+i}, {SRD}, s{sO} offen"
            if through: e(wt(t))
            else: st_mode([t])
        if lay == 0:
            for c in range(6): e(w1rd(0, c))
        for j in range(4*o.APRE): e(aload(*anext.pop(0)))
        nbar = 0
        if lay == 0:
            for i in range(6): E(w1_piece(par, 1, i))
            e("WAITL mode"); e(f"v_readfirstlane_b32 s{SMODE}, v{FBV}")
        else:
            if o.lazy & 1: poll2(sFXc)
            e("s_waitcnt lgkmcnt(0)"); e("s_barrier")
            for c in range(6): e(w1rd(0, c))
        wr, w1s, w2r, w2s = (o.wrE, o.w1sE, o.w2E, o.w2sE) if early else (o.wrL, o.w1sL, o.w2L, o.w2sL)
        if par: w2r, w2s = (o.w2BE, o.w2sBE) if early else (o.w2BL, o.w2sBL)
        if lay == 3: wr = o.wrBL
        if lay == 0: wr, w1s = o.wr0, o.w1s0
        pend = [("W", st, i) for st in range(2 if early else 2 + o.NRES - o.nopf, 8) for i in range(6)] + [("W2", p, i) for p in range(4 + par) for i in range(6)]
        def allowed(p, t):
            if p[0] == "W" and p[1] == 5 and lay == 0 and o.bin and not ready("r5"): return False
            if p[0] == "W": return p[1] < 6 or nbar >= p[1] - 4
            return nbar >= p[1] + 4 and t >= w2s and (lay > 0 or fbdone[0])
        fbdone = [False]
        misc = [(max(o.s0 + o.sper*j, o.lazy & 1), [f"s_mov_b32 s{T0}, {WS_ST + j*16384}", f"buffer_load_dwordx4 {v(160+4*j,4)}, v{vSTl}, {SRD}, s{T0} offen sc1 ;@S{j}"]) for j in range(8)]
        extra = []
        extra2 = []; sh2 = []
        sh = []
        if early:
            for j in range(4):
                extra.append((4 + j, [f"buffer_load_dwordx4 {v(224+8*(j//2)+4*(j%2),4)}, v{vL16}, {SRD}, s{(sCSa, sCSb)[j%2]} offen offset:{(j//2)*1024} sc1 ;@CS{j}"]))
            d = 224
            r = [f"v_add_f32 v{d+j}, v{d+j}, v{d+8+j}" for j in range(8)]
            for s_ in (8, 4): r += [f"v_add_f32_dpp v{d+j}, v{d+j}, v{d+j} row_ror:{s_} row_mask:0xf bank_mask:0xf" for j in range(8)]
            r = [r[j:j+2] for j in range(0, len(r), 2)] + [[f"v_permlane32_swap_b32 v{d+j}, v{d+j+1}"] for j in range(0, 8, 2)]
            r += [[f"v_add_f32 v{d+j}, v{d+j}, v{d+j+1}", f"v_add_f32 v{d+j+2}, v{d+j+2}, v{d+j+3}"] for j in (0, 4)]
            r += [[f"v_permlane16_swap_b32 v{d}, v{d+2}"], [f"v_permlane16_swap_b32 v{d+4}, v{d+6}"], [f"v_add_f32 v{d}, v{d}, v{d+2}", f"v_add_f32 v{d+4}, v{d+4}, v{d+6}"],
                  ["s_mov_b32 exec_lo, 0x000f000f", "s_mov_b32 exec_hi, 0x000f000f", f"ds_write_b32 v{vCSa}, v{d} offset:{par*384}", f"ds_write_b32 v{vCSb}, v{d+4} offset:{par*384} ;@csw",
                   "s_mov_b64 exec, -1"], [f"s_add_u32 s{sCSa}, s{sCSa}, {CS_SZ}", f"s_add_u32 s{sCSb}, s{sCSb}, {CS_SZ}"]]
            caps = [[(8 + 4*k - 4*o.nopf, None, [f"ds_read_b128 {a(RS(par, k+1)+4*b_,4)}, v{vLW3} offset:{k*SLOT + b_*1024}"]) for b_ in range(6)] for k in range(o.NRES)]
            sh += (caps[0] if caps else []) + [(8, "CS3", x) for x in r] + sum(caps[1:], [])
        if lay == 0 and o.bin:
            rbl = [[f"s_mov_b32 s{T2}, m0", f"s_add_u32 m0, s{sLW}, {j*1024}", f"s_add_u32 s{T1}, s{T5}, {(j>>1)*2048 + (j&1)*16*6144}",
                    f"buffer_load_dwordx4 v248, {SRT}, s{T1} offen lds ;@rb{j}", f"s_mov_b32 m0, s{T2}"] for j in range(6)]
            extra2 = [(o.bs0 + j, x) for j, x in enumerate(rbl)]
            r = [[f"ds_read_b64_tr_b16 {a(RB+4*blk+2*t,2)}, v249 offset:{(blk>>1)*2048 + t*256 + (blk&1)*8} ;@r{blk}" for t in range(2)] for blk in range(6)]
            for blk in range(6):
                q_ = 240 + 4*(blk & 1); mk = 0x00010001 << blk
                r += [[f"s_mov_b32 s{T3}, {mk}", f"s_mov_b32 s{T4}, {mk}"]] + [[f"v_cndmask_b32 v{q_+j}, 0, v{ONES}, {sm(T3)}" for j in jj] for jj in ((0, 1), (2, 3))]
                r += [[f"WAITL r{blk}", f"{MF} {a(HCS,4)}, {a(RB+4*blk,4)}, {v(q_,4)}, {'0' if blk == 0 else a(HCS,4)}"]]
            sh = [x for x in sh if x[0] <= 8 and x[1] is None] + [(0, "rb5", x) for x in r[:6]] + [x for x in sh if not (x[0] <= 8 and x[1] is None)]
            sh2 = r[6:]
        if lay == 0:
            extra.insert(0, (4, fb_set(0)))
            extra.append((w2s - 8, [t + (" ;@F" if t.startswith("buffer") else "") for t in fb_body(0)]))
        def codepf(lbl): return [f"s_add_u32 s{T1}, s{sPC}, {lbl}-L_pc", f"s_addc_u32 s{T2}, s{sPC+1}, 0", f"global_load_dword v{vJUNK}, v{vCPF}, {sm(T1)}"]
        if o.cpf2: extra.append((o.cpf2, codepf(f"L_epi{lay}")))
        if o.cpf3 and not last: extra.append((o.cpf3, codepf("L_ool")))
        if par:
            for j_ in range(o.of): extra.append((o.ot0 + j_, [f"s_mov_b32 s{T1}, {WS_O + 4096*j_}", f"buffer_load_dword v{vJUNK}, v{vTCH}, {SRD}, s{T1} offen sc1"]))
            extra.sort(key=lambda x: x[0])
        r = []
        for st in (16, 8, 4):
            r += [[f"v_add_f32 v{160+j}, v{160+j}, v{160+j+st}", f"v_add_f32 v{161+j}, v{161+j}, v{161+j+st}"] for j in range(0, st, 2)]
        r += [["s_nop 0"], ["v_permlane32_swap_b32 v160, v162"], ["v_permlane32_swap_b32 v161, v163"], ["v_add_f32 v160, v160, v162", "v_add_f32 v161, v161, v163"],
              [f"v_mul_f32 v163, {f32hex(-1.0/1024)}, v160", f"v_mul_f32 v161, {f32hex(1.0/1024)}, v161"], ["v_fma_f32 v161, -v163, v163, v161", "v_max_f32 v161, 0, v161"],
              [f"v_add_f32 v161, {f32hex(1e-5)}, v161"], ["v_rsq_f32 v162, v161"], [f"ds_write2_b32 v{vSW}, v162, v163 offset0:0 offset1:64"]]
        r += [[f"ds_read2_b32 {v(STP+2*i,2)}, v{vSR} offset0:{16*i} offset1:{64+16*i}"] for i in range(4)]
        if par: r += [[f"ds_read_b128 {v(224+16*j+4*i,4)}, v{vSQ} offset:{256*j + 64*i}"] for j in range(2) for i in range(4)]
        sh += [(0, "S7", x) for x in r]
        sh += [(0, "csbar", [f"ds_read_b128 {v(CSR+4*c,4)}, v{vGM} offset:{M_CS-M+par*384+c*64} ;@cs"]) for c in range(4 if par else 6)]
        if par: sh += [(0, "csbar", [f"ds_read2_b32 {v(CSR+16,2)}, v{vCV} offset0:64 offset1:80 ;@cs"])]
        for t_ in ["S7", "CS3", "F", "csw", "cs"] + [f"W{j}" for j in range(2, 8)]: A.seen.discard(t_)
        csbar = not early
        def ready(tag):
            if tag is None: return True
            if tag == "csbar": return csbar
            return tag in A.seen and not A.pending(tag)
        fix = {(cc, ii): [f"v_fmac_f32 v{acc(cc,ii)+j}, v{CSR+12+cc}, v{240+4*ii+j}" if par and cc >= 4 else
                          f"v_fmac_f32 v{acc(cc,ii)+j}, v{CSR+4*cc+j}, v{STP+2*ii+1}" for j in range(4)] for cc in range(6) for ii in range(4)}
        fix["ci"] = [f"v_mul_f32 v{CI+ii}, {CK[par]}, v{STP+2*ii}" for ii in range(4)]
        ysh = []
        if par:
            VT = lambda db, i: 168 + 10*db + 2*(i+1)
            KP = 188
            def two(l): return [l[j:j+2] for j in range(0, len(l), 2)]
            def vcvt(i, d0, d1): return [f"v_cvt_pk_bf16_f32 v{d+h}, v{acc(4+db,i)+2*h}, v{acc(4+db,i)+2*h+1}" for db, d in enumerate((d0, d1)) for h in range(2)]
            def kmul(i): return [f"v_mul_f32 v{acc(c,i)+j}, v{acc(c,i)+j}, v{STP+2*i}" for c in (2, 3) for j in range(4)]
            def vmul(i): return [f"v_mul_f32 v{acc(c,i)+j}, v{acc(c,i)+j}, v{224+4*i+j}" for c in (4, 5) for j in range(4)]
            def kcvt(i): return cvt4l(acc(2,i), acc(2,i), acc(3,i))
            def qcvt(i): return cvt4l(acc(0,i), acc(0,i), acc(1,i))
            def sown(i): return f"{MF} {v(acc(3,i),4)}, {v(acc(2,i),4)}, {v(acc(0,i),4)}, 0"
            def sprev(i): return f"{MF} {v(acc(1,i),4)}, {v(acc(2,i-1) if i else KP,4)}, {v(acc(0,i),4)}, 0"
            def sel(i):
                so, sp, z = acc(3,i), acc(1,i), acc(5,i)
                r = [f"v_cndmask_b32 v{b}, v{b}, v{b+1}, {sm(mPAR)}" for b in (so, so+2, sp, sp+2)]
                if i == 0: r += [f"v_cndmask_b32 v{b}, v{b}, v217, {sm(mFIRST)}" for b in (sp, sp+2)]
                return r + [f"v_cndmask_b32 v{z}, v{sp}, v{so}, {sm(mOWN0)}", f"v_cndmask_b32 v{z+1}, v{sp+2}, v{so+2}, {sm(mOWN1)}", f"v_max_f32 v{z+2}, v{z}, v{z+1}"]
            def soft(blks):
                Z = [(acc(5,i), i) for i in blks]
                r = [f"v_sub_f32 v{z+h}, v{z+h}, v{z+2}" for z, i in Z for h in range(2)] + [f"v_mul_f32 v{z+h}, v{z+h}, v{CI+i}" for z, i in Z for h in range(2)]
                r += [f"v_exp_f32 v{z+h}, v{z+h}" for z, i in Z for h in range(2)] + [f"v_cvt_pk_bf16_f32 v{z+h}, v{z+h}, v{z+h}" for z, i in Z for h in range(2)]
                for z, i in Z: r += [f"v_and_b32 v{acc(4,i)+j}, v{z+(j&1)}, v{mk}" for j, mk in enumerate((MP0, MP1, MO0, MO1))]
                return r
            def pv(i): return [f"{MF} {v(acc(5,i),4)}, {v(ONES,4)}, {v(acc(4,i),4)}, 0"] + [f"{MF} {v(acc(1+2*db,i),4)}, {v(VT(db,i-1),4)}, {v(acc(4,i),4)}, 0" for db in range(2)]
            hl = [f"buffer_load_dwordx4 v[240:243], v{vL16}, {SRD}, s{sHld} offen sc1", f"buffer_load_dwordx4 v[244:247], v{vL16}, {SRD}, s{sHld} offen offset:1024 sc1"]
            z3 = acc(5,3)
            ysh += two(kmul(3) + kcvt(3)) + [[f"buffer_store_dwordx4 {v(acc(2,3),4)}, v{vL16}, {SRD}, s{sHst} offen sc1"]]
            ysh += two(vmul(3) + vcvt(3, 248, 250)) + [[f"buffer_store_dwordx4 v[248:251], v{vL16}, {SRD}, s{sHst} offen offset:1024 sc1"]]
            ysh += [[f"ds_write_b128 v{vKX}, {v(acc(2,3),4)} offset:1024"]] + two(vcvt(3, VT(0,3), VT(1,3)))
            ysh += [[f"ds_write_b128 v{vKX}, v[248:251] offset:{M_VX-M_KX+1024} ;@xw"]]
            ysh += two(kmul(2) + kcvt(2) + qcvt(3)) + [[sown(3)], [sprev(3)]] + two(vmul(2) + vcvt(2, VT(0,2), VT(1,2)))
            ysh += [["WAITL xw", "s_barrier"], [f"ds_read_b128 {v(KP,4)}, v{vKX}"]] + [[f"ds_read_b64 {v(VT(db,-1),2)}, v{vKX} offset:{M_VX-M_KX+8*db}"] for db in range(2)]
            ysh += two(sel(3)) + [[f"v_mov_b32 v{z3+3}, v{z3+2}"]] + two(qcvt(2))[:1] + [[f"v_permlane32_swap_b32 v{z3+2}, v{z3+3}"], [f"v_max_f32 v{z3+2}, v{z3+2}, v{z3+3}", f"v_mov_b32 v{z3+3}, v{z3+2}"]]
            ysh += two(qcvt(2))[1:] + [[f"v_permlane16_swap_b32 v{z3+2}, v{z3+3}"], [f"v_max_f32 v{z3+2}, v{z3+2}, v{z3+3}"], [sown(2)]]
            s3 = soft((3,))
            ysh += two(s3[:4]) + [s3[4:5], s3[5:6]] + two(s3[6:]) + [[f"v_mov_b32 v217, {f32hex(-3.0e38)}"]] + [[x] for x in pv(3)] + [[], []]
            ysh += [[f"v_rcp_f32 v{z3}, v{z3}"]] + two([f"v_mul_f32 v{acc(1+2*db,3)+j}, v{acc(1+2*db,3)+j}, v{z3}" for db in range(2) for j in range(4)] + cvt4l(236, acc(1,3), acc(3,3)))
            ysh += [lambda: ostore(3, o.oall)]
            ysh.insert(len(ysh) - o.hpos, [hl[0]]); ysh.insert(len(ysh) - o.hpos, [hl[1] + " ;@hl"])
        def Y():
            x = ysh.pop(0)
            if callable(x): x()
            else: E(x)
        credit = 0.5 if (lay == 1 and o.lazy & 1) else 0.0; t = 0.0; nbar = 0
        for u, (step, bl, cs_) in enumerate(units):
            half = len(bl) == 2; ng = len(cs_); inY = half and bl[0] == 0
            assert not anext or anext[0][0] > u
            e(f"WAITV A{u}")
            if u == 1 and lay > 0 and o.lazy & 1:
                assert anext[0][1] <= 4 and anext[0][2] == 0 and len(misc) == 8
                poll2chk(sFXc, lay)
            if o.g1prof and u == 0: stamp(2, 1)
            if u + 1 < len(units) and units[u+1][0]//4 > nbar:
                nbar += 1
                assert not any(p[0] == "W" and p[1] <= nbar for p in pend), (lay, u)
                if f"W{nbar}" in A.seen: e(f"WAITV W{nbar}")
                if lay == 0 and nbar == 1: assert not A.pending("b1")
                e("s_barrier")
                if ready("csw"): csbar = True
                if o.g1prof: stamp(2 + nbar, 1)
            if inY and step == max(28, 32 - TB):
                e("s_barrier"); nbar = 8
            if inY: assert not sh and all(not x for x in fix.values()), (lay, len(sh), {k: len(x) for k, x in fix.items() if x})
            nslot = 3 if half else ng
            cur = fidx[(step, bl[0])]
            ahead = lambda n: n < len(anext) and fidx[anext[n][1:]] < cur + len(bl) + LAF
            plan = []; na = nw = nm = 0
            while len(plan) < nslot and ahead(na) and na < len(bl):
                plan.append("A"); na += 1
            if t >= w1s: credit = min(credit + (wr if (pend and pend[0][0] == "W") else w2r) * len(bl) / 400.0, max(3.0, w2r/100.0))
            while len(plan) < nslot and nw < len(pend) and allowed(pend[nw], t) and credit >= 1:
                plan.append("W"); nw += 1; credit -= 1
            while len(plan) < nslot and nm < len(misc) and misc[nm][0] <= t:
                plan.append("M"); nm += 1
            while len(plan) < nslot and ahead(na):
                plan.append("A"); na += 1
            oth = [p for p in plan if p != "A"]; aa = [p for p in plan if p == "A"]; plan = []
            while oth or aa:
                if aa: plan.append(aa.pop())
                if aa and len(aa) >= 2*len(oth): plan.append(aa.pop())
                if oth: plan.append(oth.pop(0))
            if half: plan = sum(([p, None] for p in plan), [])
            for gi, c in enumerate(cs_):
                vm = None
                for p, i in enumerate(bl if c % 2 == 0 else bl[::-1]):
                    if p == 0: e(f"WAITL w{u}_{c}")
                    e(mma(step, c, i))
                    busy = False
                    if p == 0 and gi < len(plan) and plan[gi]:
                        k = plan[gi]
                        if k == "A": vm = [aload(*anext.pop(0))]
                        elif k == "W":
                            pc = pend.pop(0); vm = w1_piece(par, pc[1], pc[2]) if pc[0] == "W" else w2_piece(par, pc[1], pc[2])
                        else: vm = misc.pop(0)[1]
                        E(vm[:-1]); busy = len(vm) > 1
                    if p == (0 if half else 1) and vm: e(vm[-1]); busy = True
                    if p == len(bl) - 1:
                        busy = not half
                        if u + 1 < len(units): e(w1rd(u+1, c))
                    if p == 2 and ng == 4 and u + 1 < len(units) and gi < 2:
                        e(w1rd(u+1, gi)); busy = True
                    if busy: continue
                    if inY:
                        if ysh: Y()
                    elif p == (0 if half else 2) and gi == 3 and extra and extra[0][0] <= t: E(extra.pop(0)[1])
                    elif p == 2 and gi == 0 and extra2 and extra2[0][0] <= t: E(extra2.pop(0)[1])
                    elif p == 2 and lay == 0 and not fbdone[0] and ready("F"):
                        E(fb_cond + retry(fb_body(0), fb_cond)); fbdone[0] = True
                    elif sh:
                        if sh[0][0] <= t and ready(sh[0][1]): E(sh.pop(0)[2])
                        elif sh2 and ready("r5"): E(sh2.pop(0))
                    elif ready("cs"):
                        cc = cs_[(gi + ng//2) % ng]
                        cand = [(cc, ii) for ii in (3, 2, 1, 0)]
                        if step > 32 - nd: cand += [(c2, ii) for c2 in (0, 1) for ii in range(4)]
                        if half and step > 32 - TB: cand += [(c2, ii) for c2 in range(6) for ii in (0, 1)]
                        for k in cand + ["ci"]:
                            if fix[k]:
                                E(fix[k][:2]); fix[k] = fix[k][2:]; break
                        else:
                            if sh2: E(sh2.pop(0))
            t += len(bl) / 4
        assert not anext and not misc and not sh and not extra and not extra2 and not sh2 and all(p[0] == "W2" for p in pend), (lay, pend, anext, misc, len(sh), extra)
        assert all(not x for x in fix.values()), (lay, {k: len(x) for k, x in fix.items()})
        assert lay > 0 or fbdone[0]
        left = [w2_piece(par, p[1], p[2]) for p in pend]
        lates = [w2_piece(par, 4, i) for i in range(6*(1-par))] + [w2_piece(par, 5, i) for i in range(2)]
        if o.verbose: print("layer", lay, "left", len(left), "ysh", len(ysh))
        A.label(f"L_epi{lay}")
        e("s_waitcnt lgkmcnt(0)"); e("s_barrier")
        stamp(1)
        qm = [mma(step, c, i) for step in range(32-nd, 32) for c in range(2) for i in (range(4) if c == 0 else reversed(range(4)))]

        if par == 0:
            def feat_head(c0, tmp, hook=None):
                MX, MN = tmp, tmp+4
                for i in (3, 2, 1, 0):
                    p0, p1 = acc(c0,i), acc(c0+1,i)
                    for op, op2, d in (("v_max3_f32", "v_max_f32", MX+i), ("v_min3_f32", "v_min_f32", MN+i)):
                        e(f"{op} v{d}, v{p0}, v{p0+1}, v{p0+2}"); e(f"{op} v{d}, v{d}, v{p0+3}, v{p1}")
                        e(f"{op} v{d}, v{d}, v{p1+1}, v{p1+2}"); e(f"{op2} v{d}, v{d}, v{p1+3}")
                if hook: hook()
                xreduce([("v_max_f32", [MX, MX+1, MX+2, MX+3]), ("v_min_f32", [MN, MN+1, MN+2, MN+3])])
                for i in range(4):
                    e(f"v_mul_f32 v{MX+i}, -v{MX+i}, v{CI+i}"); e(f"v_mul_f32 v{MN+i}, v{MN+i}, v{CI+i}")
                for i in range(4):
                    for fb in range(2):
                        for h in range(2):
                            pk_fma(224+8*i+4*fb+2*h, acc(c0+fb,i)+2*h, CI+i, MX+i)
                            pk_fma(acc(c0+fb,i)+2*h, acc(c0+fb,i)+2*h, CI+i, MN+i, negx=True)
            def feat_tail(c0, F, G_, S0, S1, post, mid=None, hooks={}):
                def norm_(i):
                    sq = S0 if i % 2 == 0 else S1
                    e(f"v_rcp_f32 v{184+2*i}, v{sq}"); e(f"v_rcp_f32 v{185+2*i}, v{sq+4}")
                    for r in range(0, 8, 2): pk_mul(224+8*i+r, 224+8*i+r, 184+2*i)
                    cvt4(F+4*i, 224+8*i, 224+8*i+4)
                    if post: e(post(i, 0))
                    for fb in range(2):
                        for h in range(2): pk_mul(acc(c0+fb,i)+2*h, acc(c0+fb,i)+2*h, 185+2*i)
                    cvt4(G_+4*i, acc(c0,i), acc(c0+1,i))
                    if post: e(post(i, 1))
                for i in range(4):
                    if i in hooks: hooks[i]()
                    for r in range(8): e(f"v_exp_f32 v{224+8*i+r}, v{224+8*i+r}")
                    for fb in range(2):
                        for r in range(4): e(f"v_exp_f32 v{acc(c0+fb,i)+r}, v{acc(c0+fb,i)+r}")
                    if 0 < i < 3: norm_(i-1)
                    sq = S0 if i % 2 == 0 else S1
                    cvt4(F+4*i, 224+8*i, 224+8*i+4); cvt4(G_+4*i, acc(c0,i), acc(c0+1,i))
                    e(f"{MF} {v(sq,4)}, {v(ONES,4)}, {v(F+4*i,4)}, 0"); e(f"{MF} {v(sq+4,4)}, {v(ONES,4)}, {v(G_+4*i,4)}, 0")
                if 4 in hooks: hooks[4]()
                if mid: mid()
                norm_(2)
                if 5 in hooks: hooks[5]()
                norm_(3)
            dl = []
            if lay == 0:
                dl = [[f"s_add_u32 s{D2}, s{ROTW}, {WS_W1[1]}", f"s_add_u32 s{D4}, s{D2}, 4096", w1st(a(RB,4), 0, D2, D4)]] + [[w1st(a(RB+4*b_,4), b_, D2, D4)] for b_ in range(1, 6)]
                dl += [[f"s_add_u32 s{D1}, s{sW2s}, {WS_W2[1] - WS_W2[0]}", f"buffer_store_dwordx4 {a(HW2,4)}, v{vL16}, {SRD}, s{D1} offen sc1"],
                       [f"buffer_store_dwordx4 {a(HW2+4,4)}, v{vL16}, {SRD}, s{D1} offen offset:1024 sc1", f"s_add_u32 s{D1}, s{sCL0}, {CS_SZ}"] + csst(a(HCS,4), D1),
                       [f"buffer_store_dwordx4 a[252:255], v{vL16}, {SRD}, s{sCL2} offen sc1"],
                       [f"s_add_u32 s{D1}, s{sKV}, s{ROTA}", f"s_add_u32 s{D1}, s{D1}, 0x100000", f"buffer_store_dwordx4 a[252:255], v{vL16}, {SRD}, s{D1} offen sc1",
                        f"s_add_u32 s{D1}, s{sZo}, 0x10000", f"s_mov_b64 exec, {sm(mM0)}", f"buffer_store_dwordx4 a[252:255], v{vG16}, {SRD}, s{D1} offen sc1 ;@b2", "s_mov_b64 exec, -1"]]
            dl2 = dl[o.dk:]; dl = dl[:o.dk]; mix = []
            for j_ in range(max(len(left), len(dl))): mix += left[j_:j_+1] + dl[j_:j_+1]
            per = o.aper0 if dl else o.aper
            A.bgset(mix, per, per)
            def vall():
                for i in range(4):
                    for b in range(2):
                        for h in range(2): pk_mul(acc(4+b,i)+2*h, acc(4+b,i)+2*h, STP+2*i)
                    cvt4(acc(4,i), acc(4,i), acc(5,i))
                    e(xw(acc(4,i), VB_LDS//1024 + i))
            feat_head(2, 208, vall)
            feat_tail(2, 192, 144, 168, 176, lambda i, sg: xw((192 if sg == 0 else 144)+4*i, 24 + 16*sg + i))
            A.bgflush()
            e(f"s_add_u32 s{T2}, s{sKV}, s{ROTA}")
            e("s_waitcnt lgkmcnt(0)"); e("s_barrier")
            stamp(2)
            def kvreads(p):
                b = 96 + 16*(p % 4); r = []
                for t in range(2):
                    r += [f"ds_read_b64_tr_b16 {v(b+2*t,2)}, v{vE0} offset:{SLOT + (2*p+t)*1024}", f"ds_read_b64_tr_b16 {v(b+8+2*t,2)}, v{vVr} offset:{(2*p+t)*1024} ;@ka{p}"]
                return r + [f"ds_read_b64_tr_b16 {v(b+4+2*t,2)}, v{vE1} offset:{SLOT + (2*p+t)*1024} ;@kb{p}" for t in range(2)]
            rd = sum((kvreads(p) for p in range(8)), [])
            E(rd[:14]); rd = rd[14:]
            for j in range(4): e(qm.pop(0))
            for p in range(8):
                b = 96 + 16*(p % 4); z_ = p == 0
                e(f"WAITL ka{p}")
                e(f"{MF} v[168:171], {v(b,4)}, {v(b+8,4)}, {'0' if z_ else 'v[168:171]'}"); E(rd[0:2])
                e(f"{MF} v[200:203], {v(b,4)}, {v(ONES,4)}, {'0' if z_ else 'v[200:203]'}"); E(rd[2:4])
                e(f"WAITL kb{p}")
                e(f"{MF} v[172:175], {v(b+4,4)}, {v(b+8,4)}, {'0' if z_ else 'v[172:175]'}"); E(rd[4:6]); rd = rd[6:]
            for j in range(2): e(qm.pop(0))
            e("s_barrier")
            for j in range(2): e(qm.pop(0))
            cv = cvt4l(192, 168, 172)
            E(cv[:2]); e(qm.pop(0)); E(cv[2:]); e(qm.pop(0))
            e(f"buffer_store_dwordx4 v[192:195], v{vL16}, {SRD}, s{T2} offen sc1"); e(qm.pop(0))
            e(f"s_mov_b64 exec, {sm(mM0)}"); e(f"buffer_store_dwordx4 v[200:203], v{vG16}, {SRD}, s{sZo} offen sc1"); e("s_mov_b64 exec, -1")
            stamp(3)
            A.bgset(lates, o.aper2, 0)
            E(qm)
            def g1(p): return [f"s_add_u32 s{T0}, s{sKV}, s{ROTA+1+p}", f"buffer_load_dwordx4 {v(96+4*p,4)}, v{vL16}, {SRD}, s{T0} offen sc1 ;@g{p}"]
            gz = f"buffer_load_dwordx4 v[192:195], v{vZL}, {SRD}, s{sZP} offen sc1 ;@gz"
            def gather():
                A.bgflush()
                for p in range(7): E(g1(p))
                e(gz)
                A.bgset(dl2, o.aper3, 0)
            if o.gpos == 0: gather()
            feat_head(0, 196, gather if o.gpos == 1 else None)
            def qmid():
                e(f"s_andn2_b64 {sm(T1)}, {sm(mDIAG)}, {sm(mB1)}"); e(f"s_and_b64 {sm(T3)}, {sm(mDIAG)}, {sm(mB1)}")
                e(f"v_or_b32 v128, v{MO0}, v{MP0}"); e(f"v_and_b32 v128, v128, v{ONES}")
                e(f"v_cndmask_b32 v130, 0, v128, {sm(T1)}"); e(f"v_cndmask_b32 v131, 0, v128, {sm(T3)}")
                for r in (128, 129, 132, 133): e(f"v_mov_b32 v{r}, 0")
            feat_tail(0, 204, 136, 152, 176, None, qmid, {o.gpos - 2: gather})
            A.bgflush()
            nafter = A.after("gz")
            stamp(4)
            e(f"s_mov_b32 s{sTMO}, {LIM}")
            for p in range(8):
                r0 = 96+4*p if p < 7 else 192; L = f"{lay}_{p}"
                e(f"WAITV g{p if p < 7 else 'z'}")
                A.label(f"L_kvc{L}")
                e(f"v_cmp_eq_u32 vcc, -1, v{r0}"); e(f"s_cbranch_vccnz L_kvs{L}")
                A.label(f"L_kvo{L}")
                if p < 7:
                    e(f"{MF} v[168:171], v[130:133], {v(r0,4)}, v[168:171]"); e(f"{MF} v[172:175], v[128:131], {v(r0,4)}, v[172:175]")
                def kvslow(p=p, L=L, nafter=nafter, g1=g1, gz=gz):
                    A.label(f"L_kvs{L}")
                    e(f"s_sub_u32 s{sTMO}, s{sTMO}, 1"); e(f"s_cbranch_scc1 L_kvt{L}")
                    if o.ksl: e(f"s_sleep {o.ksl}")
                    e(f"s_waitcnt vmcnt({nafter})")
                    if o.kgate:
                        e("v_mov_b32 v197, 0"); e("s_mov_b64 exec, 0xff"); e(f"buffer_atomic_or v197, v{vZL}, {SRD}, s{sZP} offen sc0 sc1"); e("s_mov_b64 exec, -1")
                        e("s_waitcnt vmcnt(0)"); e("v_cmp_eq_u32 vcc, -1, v197"); e(f"s_cbranch_vccnz L_kvs{L}")
                    for p2 in range(p, 7):
                        if p2 > p: e(f"v_cmp_eq_u32 vcc, -1, v{96+4*p2}"); e(f"s_cbranch_vccz L_kvn{L}_{p2}")
                        E(g1(p2))
                        if p2 > p: A.label(f"L_kvn{L}_{p2}")
                    e(gz); e("s_waitcnt vmcnt(0)"); e(f"s_branch L_kvc{L}")
                    A.label(f"L_kvt{L}"); e(f"s_mov_b32 s{sTMO}, 0"); e(f"s_branch L_kvo{L}")
                ool.append(kvslow)
            for s_ in (4, 2, 1):
                for r in range(4): e(f"v_add_f32_dpp v{192+r}, v{192+r}, v{192+r} row_ror:{s_} row_mask:0xf bank_mask:0xf")
                if s_ == 2:
                    cvt4(196, 168, 172)
                    e(f"ds_write_b64 v{vKX0}, v[196:197]"); e(f"ds_write_b64 v{vKX1}, v[198:199]")
            e("v_cvt_pk_bf16_f32 v192, v192, v193"); e("v_cvt_pk_bf16_f32 v193, v194, v195")
            e(f"s_mov_b64 exec, {sm(mM0)}"); e(f"ds_write_b64 v{vZW}, v[192:193] offset:{M_ZF-M}"); e("s_mov_b64 exec, -1")
            fb2 = lay == 0 and not A.pending("b2")
            e("s_waitcnt lgkmcnt(0)"); e("s_barrier")
            stamp(5)
            for t in range(2): e(f"ds_read_b128 {v(184+4*t,4)}, v{vGM} offset:{M_ZF-M + t*64} ;@zf")
            for j in range(4): e(ldsrd(v(168+4*j,4), M_KX + j*1024))
            if fb2: E(fb_set(1))
            if lay == 0: e(f"s_add_u32 s{sKV}, s{sKV}, 0x100000"); e(f"s_add_u32 s{sZP}, s{sZP}, 0x10000"); e(f"s_add_u32 s{sZo}, s{sZo}, 0x10000")
            e("WAITL zf")
            for t in range(2):
                for i in range(4): e(f"{MF} {v(64+4*i,4)}, {v(184+4*t,4)}, {v((204 if t == 0 else 136)+4*i,4)}, {'0' if t == 0 else v(64+4*i,4)}")
            e("s_waitcnt lgkmcnt(0)")
            def fin(i):
                r = [f"v_mul_f32 v{96+8*i+j}, v{96+8*i+j}, v{64+4*i}" for j in range(8)] + cvt4l(224+4*i, 96+8*i, 100+8*i)
                return [r[j:j+3] for j in range(0, 12, 3)]
            sc = [[f"v_add_f32 v{64+4*i}, {f32hex(1e-6)}, v{64+4*i}", f"v_rcp_f32 v{64+4*i}, v{64+4*i}"] for i in range(4)]
            fills = [[[]]*4, sc, fin(0), fin(1)]
            for i in range(4):
                for t in range(2):
                    for db in range(2):
                        d = v(96+8*i+4*db, 4)
                        e(f"{MF} {d}, {v(168+8*t+4*db,4)}, {v((204 if t == 0 else 136)+4*i,4)}, {'0' if t == 0 else d}")
                        E(fills[i][2*t+db])
                if i >= 2: ostore(i-2, True)
            for i in (2, 3):
                for r in range(0, 8, 2): pk_mul(96+8*i+r, 96+8*i+r, 64+4*i)
                cvt4(224+4*i, 96+8*i, 100+8*i)
                ostore(i, True)
        else:
            fb2 = True
            A.bgset(left + lates, o.bper, o.bper)
            while ysh: Y()
            for i in (1, 0):
                for c in (2, 3):
                    for h in range(2): pk_mul(acc(c,i)+2*h, acc(c,i)+2*h, STP+2*i)
            for i in (1, 0):
                for c in (4, 5):
                    for h in range(2): e(f"v_pk_mul_f32 {v(acc(c,i)+2*h,2)}, {v(acc(c,i)+2*h,2)}, {v(224+4*i+2*h,2)}")
            E(kcvt(1) + qcvt(1)); e(sprev(2)); E(kcvt(0)[:2]); e(sown(1)); E(kcvt(0)[2:] + qcvt(0)); e(sprev(1)); E(vcvt(1, VT(0,1), VT(1,1))[:2]); e(sown(0))
            E(vcvt(1, VT(0,1), VT(1,1))[2:] + vcvt(0, VT(0,0), VT(1,0)))
            E(sel(2))
            keep = A.bg; A.bg = []
            e("s_waitcnt lgkmcnt(0)")
            e(f"s_cmp_lg_u32 s{SW}, 0"); e(f"s_cbranch_scc1 L_halod{lay}")
            A.track = False
            hc = ["v_max_u32 v218, v240, v244", "v_cmp_eq_u32 vcc, -1, v218"]
            if A.pending("hl"): e(f"s_waitcnt vmcnt({A.after('hl')})")
            E(hc); e(f"s_cbranch_vccz L_halow{lay}")
            spin(hl, hc)
            A.label(f"L_halow{lay}")
            for r in range(4): e(f"v_mov_b32 v{KP+r}, v{240+r}"); e(f"v_mov_b32 v{VT(r//2,-1)+r%2}, v{244+r}")
            A.track = True
            A.label(f"L_halod{lay}")
            e(sprev(0))
            A.bg = keep
            stamp(2)
            if lay == 1: e(f"s_add_u32 s{sHst}, s{sHst}, 0x80000"); e(f"s_add_u32 s{sHld}, s{sHld}, 0x80000")
            E(sel(1)); E(sel(0))
            xreduce([("v_max_f32", [acc(5,i)+2 for i in range(4)])])
            E(soft((2, 1, 0)))
            A.bgflush()
            E(pv(2) + pv(1) + pv(0))
            for i in (2, 1, 0):
                e(f"v_rcp_f32 v{acc(5,i)}, v{acc(5,i)}")
                for db in range(2):
                    for h in range(2): pk_mul(acc(1+2*db,i)+2*h, acc(1+2*db,i)+2*h, acc(5,i))
                cvt4(224+4*i, acc(1,i), acc(3,i))
                ostore(i, o.oall)

        stamp(6)
        pre = [f"v_mov_b32 v{vVal}, {lay+1}"]
        for i in range(2):
            for kk in range(2):
                for r in range(4):
                    d = acc2(2*kk + (r >> 1), i) + 2*(r & 1); x = RES+8*i+4*kk+r
                    pre += [f"v_lshlrev_b32 v{d}, 16, v{x}", f"v_and_b32 v{d+1}, 0xffff0000, v{x}"]
        omask = (1 << (o.g2depth - 1)) - 1 if o.lazy & 2 else None
        if o.early & 2: handoff(sFOp, sFOc, lay+1, omask, mEO, pre, [])
        else:
            E(pre); signal(sFOp); stamp(7); poll(sFOc, lay+1, None, omask)
        stamp(8)
        W2F = RING; AF2 = RING + 32; GD = o.g2depth; T2_ = o.TG
        assert AF2 + 8*GD <= 240 - 48*o.NRES
        gun = [(st, (0, 1)) for st in range(32 - T2_)] + [(st, (i,)) for i in range(2) for st in range(32 - T2_, 32)]
        bn = [(st, i) for st, bl in gun for i in bl]
        bidx = {k: n for n, k in enumerate(bn)}
        def bfr(step, i): return a(AF2 + 4*(bidx[(step, i)] % (2*GD)), 4)
        def w2rd(u, b):
            step = gun[u][0]
            return ldsrd(a(W2F + 16*(u % 2) + 4*b, 4), (step*4096 if step < 14 else 3*SLOT + (step-14)*4096) + b*1024) + f" ;@u{u}_{b}"
        cur4 = [-1]
        def bload(step, i):
            r = [f"s_mov_b32 s{sAo}, {WS_O + (step//4)*4096}"] if step//4 != cur4[0] else []
            cur4[0] = step//4
            return r + [f"buffer_load_dwordx4 {bfr(step, i)}, v{vB+i}, {SRD}, s{sAo} offen offset:{(step%4)*1024} sc1 ;@B{step}_{i}"]
        for j in range(min(o.bpos, 2*GD-2)):
            if o.lazy & 2 and j == o.p2pos: poll2(sFOc)
            E(bload(*bn.pop(0)))
        e("s_barrier")
        for st in range(2):
            for b in range(4): e(w2rd(st, b))
        while bn[0][0] < GD-1: E(bload(*bn.pop(0)))
        lv = [x for x in (o.lv1, o.lv2) if x] + [32]
        okh = 32
        if o.lazy & 2: okh = lv.pop(0); poll2chk(sFOc, lay+1, hex((1 << okh) - 1) if okh < 32 else None)
        if lay == 0 and not fb2: E(fb_set(1))
        w1n = [] if last or (o.nopf and lay >= 1) else list(range(6))
        nres = 0 if last else (1 + (o.NRES if lay >= 1 else 0))
        def oparts(i):
            return [[f"ds_write_b128 v{200+kk}, {v(RES+8*i+4*kk,4)} offset:{i*2048}"] for kk in range(2)] + \
                   [[f"ds_read_b128 {v(96+4*j,4)}, v{vLW} offset:{j*1024} ;@o{j}"] for j in (2*i, 2*i+1)] + [[], []] + \
                   [[f"WAITL o{j}", f"buffer_store_dwordx4 {v(96+4*j,4)}, v202, {SRT}, s{T0} offen" + (" sc1" if o.outsc else ""), f"s_add_u32 s{T0}, s{T0}, 16384"] for j in (2*i, 2*i+1)]
        gsh = []
        if last:
            gsh = [[f"v_bfe_u32 v200, v{vL16}, 4, 4", f"v_and_b32 v201, 0x70, v{vL16}"], [f"v_xor_b32 v201, v201, v{vG16}", "v_lshl_add_u32 v200, v200, 7, v201"],
                   [f"v_add_u32 v200, s{sLW}, v200", f"v_lshrrev_b32 v202, 7, v{vL16}"], [f"v_and_b32 v203, 0x70, v{vL16}", "v_lshlrev_b32 v204, 4, v202"],
                   ["v_xor_b32 v201, 64, v200", "v_xor_b32 v203, v203, v204"], ["v_lshl_add_u32 v202, v202, 11, v203"],
                   [f"s_mov_b32 s8, s{P_OUT}", f"s_mov_b32 s9, s{P_OUT+1}"], ["s_mov_b32 s10, 0x400000", "s_mov_b32 s11, 0x20000"],
                   [f"s_lshl_b32 s{T0}, s{SRB}, 2", f"s_add_u32 s{T0}, s{T0}, s{SW}"], [f"s_lshl_b32 s{T0}, s{T0}, 16", f"s_lshl_b32 s{T1}, s{SCB}, 7"], [f"s_add_u32 s{T0}, s{T0}, s{T1}"]]
        def xcvt(i): return sum((cvt4l(RES+8*i+4*kk, acc2(2*kk,i), acc2(2*kk+1,i)) for kk in range(2)), [])
        fbchk = not (lay == 0 and not last)
        rw = [f"ds_write_b128 v{vLW if k == 0 else vLW3}, {a(RS(1-par, k)+4*b_,4)} offset:{(SLOT if k == 0 else (k-1)*SLOT) + b_*1024}" for k in range(nres) for b_ in range(6)]
        rslot = [1 if k == 0 else 2 + k - o.nopf for k in range(nres) for b_ in range(6)]
        freeslot = -1
        for u, (step, bl) in enumerate(gun):
            e("WAITV " + " ".join(f"B{step}_{i}" for i in bl))
            if okh < 32:
                if bn[0][0] == okh - GD + 1: poll2(sFOc)
                if bn[0][0] == okh: okh = lv.pop(0); poll2chk(sFOc, lay+1, hex((1 << okh) - 1) if okh < 32 else None)
                assert bn[1][0] < okh
            nsl = nres - 1 - o.nopf if nres > 1 else 0
            if u in [15 + 6*j for j in range(nsl + 1) if o.rin or j == nsl or (j == 0 and w1n)]:
                freeslot = 2 + (u - 15)//6
                assert min(st for st, _ in gun[u-1:]) >= u - 1
                e("s_barrier")
            if lay == 0 and not last and u == 19: assert okh == 32; E([t + (" ;@F" if t.startswith("buffer") else "") for t in fb_body(1)])
            if not fbchk and len(bn) <= 2: e("WAITV F"); E(fb_cond + retry(fb_body(1), fb_cond)); fbchk = True
            if bl == (1,) and step == 32 - T2_:
                assert not gsh
                c_ = xcvt(0); gsh = [[]] + [c_[j:j+2] for j in range(0, 8, 2)]
                if last: gsh += oparts(0)
                else:
                    p_ = xparts(0); gsh += p_[0] + [[], []] + p_[1]
            for b in range(4):
                e(f"WAITL u{u}_{b}")
                for p, i in enumerate(bl if b % 2 == 0 else bl[::-1]):
                    e(f"{MF} {v(acc2(b,i),4)}, {a(W2F+16*(u%2)+4*b,4)}, {bfr(step, i)}, {v(acc2(b,i),4)}")
                    if p == 0:
                        if bn and b % (4//len(bl)) == 0: E(bload(*bn.pop(0)))
                        elif not bn and w1n and b % (o.g2w*2//len(bl)) == 0: E(w1_piece(1-par, 1, w1n.pop(0)))
                        elif gsh and (len(bl) == 1 or b % 2):
                            g_ = gsh.pop(0)
                            if o.xall and lay >= 1 and not last: E([wt(t) for t in g_])
                            elif any(t.startswith("buffer_store") for t in g_) and not last: st_mode(g_)
                            else: E(g_)
                if o.rin and rw and rslot[0] <= freeslot and b % (4//o.rin) == 4//o.rin - 1 and (len(bl) == 2 or (bl == (0,) and b == 3 and (u % 2 or o.rin > 1))):
                    e(rw.pop(0)); rslot.pop(0)
                if u + 2 < len(gun): e(w2rd(u+2, b))
                if b == 1 and not last:
                    for j_ in range(o.xf):
                        if u == o.xt0 + 3*j_: e(f"buffer_load_dword v{vJUNK}, v{vTCH}, {SRD}, s{ROTA+j_} offen sc1")
                    if o.cpf and u == o.xt0 + 4: E(codepf(f"L_layer{lay+1}"))
        assert not w1n
        stamp(9)
        rest = sum(gsh, [])
        if last or not any(t.startswith("buffer_store") for t in rest): E(rest)
        else: st_mode(rest)
        todo = (1,) if T2_ else (0, 1)
        for i in todo: E(xcvt(i))
        if last:
            for i in todo: E(sum(oparts(i)[:4], []))
            for i in todo: E(sum(oparts(i)[4:], []))
            break
        xtile(o.xall and lay >= 1, todo)
        assert not rw or max(rslot) <= freeslot
        if o.verbose: print("layer", lay, "resident writes left", len(rw))
        if o.early & 1: handoff(sFXp, sFXc, lay+1, sm(mX) if o.lazy & 1 else None, mEX, rw[:o.rw], rw[o.rw:])
        else:
            E(rw[:o.rw]); signal(sFXp); stamp(10); poll(sFXc, lay+1, rw[o.rw:], sm(mX) if o.lazy & 1 else None)

    if o.stamps:
        e("s_waitcnt vmcnt(0)")
        stamp(11)
        e(f"s_lshl_b32 s{T0}, s{SIDX}, 2"); e(f"s_add_u32 s{T0}, s{T0}, s{SW}")
        e(f"s_lshl_b32 s{T0}, s{T0}, 8"); e(f"s_add_u32 s{T0}, s{T0}, {WS_STAMPS}")
        e(f"v_lshrrev_b32 v200, 2, v{vL16}")
        e(f"buffer_store_dword v{vSTAMP}, v200, {SRD}, s{T0} offen")
        if o.echo_a >= 0:
            e(f"v_readlane_b32 s{T1}, v{vSTAMP}, {o.echo_a}"); e(f"v_readlane_b32 s{T2}, v{vSTAMP}, {o.echo_b}"); e(f"v_readlane_b32 s{T3}, v{vSTAMP}, 59")
            e(f"s_sub_u32 s{T2}, s{T2}, s{T1}"); e(f"s_mul_i32 s{T2}, s{T2}, {o.echo_mul}"); e(f"s_min_u32 s{T2}, s{T2}, 20000")
            if o.echo_idx >= 0: e(f"s_cmp_eq_u32 s{SIDX}, {o.echo_idx}"); e(f"s_cselect_b32 s{T2}, s{T2}, 0")
            A.label("L_echo")
            e(f"s_memrealtime s[{sSTAMP}:{sSTAMP+1}]"); e("s_waitcnt lgkmcnt(0)")
            e(f"s_sub_u32 s{T4}, s{sSTAMP}, s{T3}"); e(f"s_cmp_lt_u32 s{T4}, s{T2}"); e("s_cbranch_scc1 L_echo")
    e("s_endpgm")
    A.track = False
    A.label("L_ool")
    for blk in ool: blk()
    A.label("L_exit")
    e("s_endpgm")
    A.raw(f".fill (16384 + 256 - (. - L_ool))/4, 4, 0xbf810000")
    A.raw('.section .rodata,"a"'); A.raw(".p2align 6"); A.raw(f".amdhsa_kernel {KNAME}")
    for t in ("next_free_vgpr 512", "next_free_sgpr 102", "accum_offset 256", "group_segment_fixed_size 0", "kernarg_size 80",
              "user_sgpr_count 2", "user_sgpr_kernarg_segment_ptr 1", "system_sgpr_workgroup_id_x 1"):
        A.raw("  .amdhsa_" + t)
    A.raw(".end_amdhsa_kernel")
    return A.text()

if __name__ == "__main__":
    o = Opts()
    out = sys.argv[1]
    for kv in sys.argv[2:]:
        k, val = kv.split("=")
        assert hasattr(o, k), k
        setattr(o, k, int(val))
    open(out, "w").write(gen(o))
```

```python
import sys, struct
from asmlib import *

KNAME = "interleave_layers__linear_kernel_hedgehog__sliding_local_dilated__prompt_kernel"

WS_FLAGA = 0x0000000
WS_FLAGB = 0x0008000
WS_FLAGO = 0x0009000
WS_FLAGX = 0x000A000
WS_CS    = 0x0010000
CS_SZ    = 393216
WS_ST    = 0x0100000
WS_ZP    = 0x0140000
WS_STAMPS= 0x0180000
WS_HALO  = 0x0200000
WS_KVP   = 0x0400000
WS_W1    = (0x0800000, 0x0E00000)
WS_W2    = (0x1400000, 0x1600000)
WS_X     = 0x1800000
WS_X0    = WS_X
WS_O     = 0x1C00000
WS_SIZE  = 0x2000000
OOR      = 0x40000000

SLOT = 24576
M      = 147456
M_CS   = M + 64
M_ST   = M + 1024
M_KX   = M + 4096
M_VX   = M + 11264
M_ZF   = M + 10240
LDS_SIZE = 163840
VB_LDS = 57344
RAW1A, RAW1B, RAW2 = 3*SLOT, 4*SLOT, 5*SLOT

SRD = "s[4:7]"; SRT = "s[8:11]"
SW, SGRP, SMEM, SMODE, SCB, SRB = 12, 13, 14, 15, 17, 18
T0, T1, T2, T3, T4, T5, T6, T7 = 19, 20, 21, 22, 23, 24, 25, 26
SIDX, SXCC = 27, 29
sFOc, sFOp, sFXc, sFXp = 30, 31, 32, 33
sO, sXs = 34, 35
mPAR, mB1, mDIAG, mM0, mOWN0, mOWN1, sPC, mFIRST = 36, 38, 40, 42, 44, 46, 48, 50
sCSa, sCSb, sZo, sFBp, sSTs, sLW, sKV, sZP, sHALO, sTMO, sAo, sWo = 52, 53, 54, 55, 56, 57, 58, 59, 60, 61, 62, 63
P_AX, P_AW1, P_PHI, P_AW2, P_BX, P_BW1, P_BW2, P_OUT, P_DBG, P_WS = 64, 66, 68, 70, 72, 74, 76, 78, 80, 82
sCL0, sCL2, sL8, sW2l, sW2s, sHst, sHld = 72, 73, 2, 0, 3, 16, 28
D1, D2, D4 = 64, 65, 66
mX, mEO, mEX = 68, 70, 76
sSTAMP = 84
ROTA, ROTW = 86, 94

vLW = 0; vL16, vL64, vL128 = 1, 2, 3
vA = 4; vB = 8; vW1 = 10; vW2 = 11; vFP = 12; vSTl = 13; vSTs = 14; vSTAMP = 15
RES = 16; PHI = 32; ONES = 40; MP0, MP1, MO0, MO1 = 44, 45, 46, 47
vE1, vVr, vLW3, vCPF, vKX0, vKX1, vCSa, vCSb = range(32, 40)
vXW, vE0, vTCH, vSQ, vJUNK, vCV, vFree, vKX, vGM, vZW, vSW, vSR, vG16, vOut, vZL, vVal = range(48, 64)
ACC = 64
def acc(c, i): return ACC + 16*c + 4*i
def acc2(b, i): return ACC + 8*b + 4*i
STP = 160; CSR = 168; WFV = 192; FBV = 216; CI = 220
RING, HW2, HCS = 48, 240, 248
def RS(par, k): return 24*par if k == 0 else 240 - 48*k + 24*par
MF = "v_mfma_f32_16x16x32_bf16"
def f32hex(x): return "0x%08x" % struct.unpack("<I", struct.pack("<f", x))[0]
CK = (f32hex(1.4426950408889634), f32hex(1.4426950408889634 * 32 ** -0.5))
LIM = 0x100000

class Opts:
    verbose = 0; stamps = 0; last = 3; force_slow = 0; echo_a = -1; echo_b = -1; echo_mul = 1; echo_idx = -1; g1prof = 0
    NRES = 2
    ND = 4
    LA = 3
    APRE = 3
    wrE = 150; wrL = 100; w1sE = 1; w1sL = 2; wr0 = 150; w1s0 = 1; n1pre = 6
    w2E = 300; w2L = 200; w2sE = 25; w2sL = 20
    sper = 1; s0 = 0
    g2depth = 7; g2w = 2; bpos = 12; TG = 3
    w2BE = 400; w2sBE = 24; w2BL = 400; w2sBL = 20; wrBL = 110
    bper = 60; TB = 5; LAB = 3; hpos = 5
    aper = 150; aper0 = 110; aper2 = 130; aper3 = 200; gpos = 4; dk = 6
    rw = 12
    xf = 1; xt0 = 8
    bin = 0; bs0 = 1; w2e = 1; w2t = 0; of = 1; ot0 = 27
    rt = 3; rtb = 2; bbar = 1; tlb = 1; apoll = 0; ksl = 0; kgate = 0; psl = 0; dtouch = 1
    outsc = 1; oall = 0; o4 = 0; nopf = 0; xall = 0; rin = 0; lazy = 3; p2pos = 5; lv1 = 0; lv2 = 0; early = 3; epos = 0
    gop = 1; gown = 0; gow = 0; et = 0; cp0 = 0; CPL = 22; cpf = 1; cpf2 = 24; cpf3 = 26

def gen(o):
    A = Asm2(); e = A.e
    ool = []
    ND = o.ND; AD = ND; WQ = RING + 16*AD
    assert WQ + 8*ND <= 240 - 48*o.NRES and o.LA < AD
    assert not (o.gown and o.bin)
    lay = 0
    o.CPL = min(o.CPL, 5*o.last + 7)
    def E(lst):
        for t in lst: e(t)
    def stamp(name, force=0):
        if not o.stamps: return
        if o.g1prof and name in range(2, 11) and not force: return
        idx = name + 16*lay
        if o.stamps == 2 and name != 11 and idx not in (o.echo_a, o.echo_b): return
        e(f"{'s_memtime' if o.stamps == 3 else 's_memrealtime'} s[{sSTAMP}:{sSTAMP+1}]")
        e("s_waitcnt lgkmcnt(0)")
        e(f"v_writelane_b32 v{vSTAMP}, s{sSTAMP}, {59 if name == 11 else idx}")
    def srt(p, size):
        e(f"s_mov_b32 s8, s{p}"); e(f"s_mov_b32 s9, s{p+1}"); e(f"s_mov_b32 s10, {size}"); e("s_mov_b32 s11, 0x20000")
    def mask64(r, val):
        e(f"s_mov_b32 s{r}, 0x{val & 0xffffffff:08x}"); e(f"s_mov_b32 s{r+1}, 0x{val >> 32:08x}")
    def sm(r): return f"s[{r}:{r+1}]"
    def bc(r): return (v(r & ~1, 2), r & 1)
    def pk_fma(d, x, y, z, negx=False):
        yp, ys = bc(y); zp, zs = bc(z)
        e(f"v_pk_fma_f32 {v(d,2)}, {v(x,2)}, {yp}, {zp} op_sel:[0,{ys},{zs}] op_sel_hi:[1,{ys},{zs}]" + (" neg_lo:[1,0,0] neg_hi:[1,0,0]" if negx else ""))
    def pk_mul(d, x, y):
        yp, ys = bc(y)
        e(f"v_pk_mul_f32 {v(d,2)}, {v(x,2)}, {yp} op_sel:[0,{ys}] op_sel_hi:[1,{ys}]")
    def cvt4l(d, x0, x1):
        return [f"v_cvt_pk_bf16_f32 v{d}, v{x0}, v{x0+1}", f"v_cvt_pk_bf16_f32 v{d+1}, v{x0+2}, v{x0+3}",
                f"v_cvt_pk_bf16_f32 v{d+2}, v{x1}, v{x1+1}", f"v_cvt_pk_bf16_f32 v{d+3}, v{x1+2}, v{x1+3}"]
    def cvt4(d, x0, x1): E(cvt4l(d, x0, x1))
    def wt(t): return t + (" sc1" if t.startswith("buffer_store") else "")
    def st_mode(lines):
        ls, ld = A.new("slow"), A.new("done")
        e(f"s_cmp_lg_u32 s{SMODE}, 0"); e(f"s_cbranch_scc1 {ls}")
        E(lines); A.label(ld)
        def blk():
            A.label(ls); A.fence(); E([wt(t) for t in lines]); e("s_nop 7"); e(f"s_branch {ld}")
        ool.append(blk)
    def spin(body, cond, first=None):
        l, d = A.new("spin"), A.new("spind")
        e(f"s_mov_b32 s{sTMO}, {LIM}")
        if first:
            E(body); E(first); e("s_waitcnt vmcnt(0)"); E(cond); e(f"s_cbranch_vccz {d}")
        A.label(l); E(body); e(f"s_sub_u32 s{sTMO}, s{sTMO}, 1"); e("s_waitcnt vmcnt(0)"); E(cond)
        e(f"s_cbranch_scc1 {d}"); e(f"s_cbranch_vccnz {l}"); A.label(d)
    def retry(body, cond):
        l, d = A.new("rt"), A.new("rtd")
        def blk():
            A.label(l); spin(body, cond); e(f"s_branch {d}")
        ool.append(blk)
        return [f"s_cbranch_vccnz {l}", d + ":"]
    def signal(sreg):
        e("s_mov_b64 exec, 1"); e("s_waitcnt vmcnt(0)")
        st_mode([f"buffer_store_dword v{vVal}, off, {SRD}, s{sreg}"])
        e("s_mov_b64 exec, -1")
    def poll(sreg, val, first=None, mask=None):
        cond = [f"v_cmp_gt_u32 vcc, {val}, v{FBV}"]
        if mask: cond = [f"s_mov_b64 exec, {mask}"] + cond + ["s_mov_b64 exec, -1"]
        spin([f"buffer_load_dword v{FBV}, v{vFP}, {SRD}, s{sreg} offen sc1"], cond, first)
    def handoff(sp, sc, val, mask, emask, pre, first):
        ld = f"buffer_load_dword v{FBV}, v{vFP}, {SRD}, s{sc} offen sc1"
        d = A.new("hd")
        E(pre[:o.epos]); e(ld + " ;@PE"); E(pre[o.epos:])
        e("s_mov_b64 exec, 1"); e("s_waitcnt vmcnt(1)")
        st_mode([f"buffer_store_dword v{vVal}, off, {SRD}, s{sp}"])
        e("s_mov_b64 exec, -1")
        E(first)
        e("WAITV PE"); e(f"s_mov_b64 exec, {sm(emask)}"); e(f"v_cmp_gt_u32 vcc, {val}, v{FBV}"); e("s_mov_b64 exec, -1"); e(f"s_cbranch_vccz {d}")
        A.track = False; poll(sc, val, None, mask); A.track = True
        A.label(d)
    def poll2(sreg): e(f"buffer_load_dword v{FBV}, v{vFP}, {SRD}, s{sreg} offen sc1 ;@P2")
    def poll2chk(sreg, val, mask=None):
        l = A.new("p2")
        e("WAITV P2")
        if mask: e(f"s_mov_b64 exec, {mask}")
        e(f"v_cmp_gt_u32 vcc, {val}, v{FBV}")
        if mask: e("s_mov_b64 exec, -1")
        e(f"s_cbranch_vccnz {l}"); A.label(l + "_r")
        def blk(): A.label(l); poll(sreg, val, None, mask); e(f"s_branch {l}_r")
        ool.append(blk)
    def xreduce(groups):
        for op, q in groups: e(f"v_permlane32_swap_b32 v{q[0]}, v{q[1]}"); e(f"v_permlane32_swap_b32 v{q[2]}, v{q[3]}")
        for op, q in groups: e(f"{op} v{q[0]}, v{q[0]}, v{q[1]}"); e(f"{op} v{q[2]}, v{q[2]}, v{q[3]}")
        for op, q in groups: e(f"v_permlane16_swap_b32 v{q[0]}, v{q[2]}")
        for op, q in groups: e(f"{op} v{q[1]}, v{q[0]}, v{q[2]}"); e(f"{op} v{q[2]}, v{q[0]}, v{q[2]}")
        for op, q in groups: e(f"v_permlane16_swap_b32 v{q[1]}, v{q[2]}")
        for op, q in groups: e(f"v_mov_b32 v{q[0]}, v{q[1]}"); e(f"v_mov_b32 v{q[3]}, v{q[2]}")
        for op, q in groups: e(f"v_permlane32_swap_b32 v{q[0]}, v{q[1]}"); e(f"v_permlane32_swap_b32 v{q[2]}, v{q[3]}")
    def xparts(i):
        t = 160+8*i; g0 = t+4; st = []
        for kk in range(2):
            f = v(RES+8*i+4*kk, 4)
            st += [[f"{MF} {v(g0,4)}, {f}, {f}, {'0' if kk == 0 else v(g0,4)}"],
                   [f"buffer_store_dwordx4 {f}, v{vB+i}, {SRD}, s{sXs} offen offset:{kk*1024}"],
                   [f"{MF} {v(t,4)}, {v(ONES,4)}, {f}, {'0' if kk == 0 else v(t,4)}"]]
        return st, [[f"v_cndmask_b32 v{g0}, v{g0}, v{g0+1}, {sm(mPAR)}", f"v_cndmask_b32 v{g0+2}, v{g0+2}, v{g0+3}, {sm(mPAR)}"],
                    [f"v_cndmask_b32 v{t+1}, v{g0}, v{g0+2}, {sm(mB1)}"],
                    [f"s_mov_b64 exec, {sm(mDIAG)}", f"buffer_store_dwordx2 {v(t,2)}, v{vSTs}, {SRD}, s{sSTs} offen offset:{i*128}", "s_mov_b64 exec, -1"]]
    def xtile(through, blocks=(0, 1)):
        ps = [xparts(i) for i in blocks]
        st = sum((sum(p[0], []) for p in ps), []) + sum((sum(p[1], []) for p in ps), [])
        if through: E([wt(t) for t in st])
        else: st_mode(st)
    def w1_piece(par, stage, i):
        r = []; slot = (stage + 1) % 6
        if i % 4 == 0: r += [f"s_add_u32 m0, s{sLW}, {slot*SLOT + i*1024}", f"s_add_u32 s{sWo}, s{ROTW+stage}, {WS_W1[par] + i*1024}"]
        return r + [f"buffer_load_dwordx4 v{vW1}, {SRD}, s{sWo} offen offset:{(i%4)*1024} lds ;@W{stage}"]
    def w2_piece(par, part, i):
        r = []
        if i % 4 == 0:
            if part < 5:
                lb, sb = ((3+part)*SLOT, 57344 + part*SLOT) if part < 3 else ((part-3)*SLOT, (part-3)*SLOT)
                r += [f"s_add_u32 m0, s{sLW}, {lb + i*1024}", f"s_mov_b32 s{sWo}, {WS_W2[par] + sb + i*1024}"]
            else: r += [f"s_add_u32 m0, s{sL8}, {2*SLOT}", f"s_sub_u32 s{sWo}, {WS_W2[par] + 2*SLOT}, s{sW2l}"]
        return r + [f"buffer_load_dwordx4 v{vW2}, {SRD}, s{sWo} offen offset:{(i%4)*1024} lds"]
    def ldsrd(dst, addr):
        base = {0: vL16, 1: vL64, 2: vL128}[addr >> 16]
        return f"ds_read_b128 {dst}, v{base} offset:{addr & 0xffff}"
    def w1st(R, blk, sa, sb): return f"buffer_store_dwordx4 {R}, v{vW1}, {SRD}, s{sa if blk < 4 else sb} offen offset:{(blk%4)*1024} sc1"
    def csst(C, sreg): return ["s_mov_b32 exec_lo, 0x003f003f", "s_mov_b32 exec_hi, 0x003f003f", f"buffer_store_dwordx4 {C}, v{vOut}, {SRD}, s{sreg} offen sc1", "s_mov_b64 exec, -1"]
    def fb_body(k): return [f"s_mov_b32 s{T1}, {WS_FLAGB + 1024*k}", f"buffer_load_dwordx4 {v(FBV,4)}, v{vL16}, {SRD}, s{T1} offen sc1"]
    fb_cond = [f"v_and_b32 v{FBV}, v{FBV}, v{FBV+1}", f"v_and_b32 v{FBV+2}, v{FBV+2}, v{FBV+3}", f"v_and_b32 v{FBV}, v{FBV}, v{FBV+2}", f"v_cmp_ne_u32 vcc, 1, v{FBV}"]
    def fb_set(k): return ["s_mov_b64 exec, 1", f"buffer_store_dword v{vVal}, off, {SRD}, s{sFBp} offset:{1024*k} sc1", "s_mov_b64 exec, -1"]
    def xw(r, kb, ad=vXW): return f"ds_write2st64_b64 v{ad}, {v(r,2)}, {v(r+2,2)} offset0:{2*kb} offset1:{2*kb+1}"

    A.raw(f"; @launch grid=(256,1,1) block=(256,1,1) lds={LDS_SIZE}")
    A.raw('.amdgcn_target "amdgcn-amd-amdhsa--gfx950"'); A.raw(".text")
    A.raw(f".globl {KNAME}"); A.raw(".p2align 8"); A.raw(f".type {KNAME},@function"); A.label(KNAME)
    if o.stamps: e("s_memrealtime s[86:87]")
    e("s_cmp_ge_u32 s2, 256"); e("s_cbranch_scc1 L_exit")
    e(f"s_getpc_b64 {sm(sPC)}"); A.label("L_pc")
    e(f"s_lshr_b32 s{T0}, s2, 3"); e(f"s_mulk_i32 s{T0}, {o.CPL*128}"); e(f"v_min_u32 v252, {o.CPL-1}, v0"); e(f"v_lshl_add_u32 v252, v252, 7, s{T0}")
    cpv = f"global_load_dword v{vJUNK}, v252, {sm(sPC)}"
    if o.cp0 == 0: e(cpv)
    if o.cp0 == 3: e(f"s_and_b32 s{T1}, s2, 0xf8"); e(f"s_lshl_b32 s{T1}, s{T1}, 4"); e(f"s_add_u32 s{T1}, s{T1}, 256"); e(f"s_load_dword s{sTMO}, {sm(sPC)}, s{T1}")
    e("s_load_dwordx16 s[64:79], s[0:1], 0"); e("s_load_dwordx4 s[80:83], s[0:1], 64")
    if o.force_slow: e(f"s_lshr_b32 s{SGRP}, s2, 5"); e(f"s_and_b32 s{SMEM}, s2, 31")
    else: e(f"s_and_b32 s{SGRP}, s2, 7"); e(f"s_lshr_b32 s{SMEM}, s2, 3")
    VM = 215
    e(f"s_lshl_b32 s{SIDX}, s{SGRP}, 5"); e(f"s_add_u32 s{SIDX}, s{SIDX}, s{SMEM}")
    if o.et:
        e(f"s_lshl_b32 s{T1}, s{SIDX}, 14"); e(f"v_lshl_add_u32 v250, v0, 6, s{T1}")
        if o.et > 1: e(f"s_mul_i32 s{T1}, s{SIDX}, 24576"); e(f"v_mul_u32_u24 v251, 96, v0"); e(f"v_add_u32 v251, s{T1}, v251")
        e("s_waitcnt lgkmcnt(0)")
        if o.et != 3: e(f"global_load_dword v{vJUNK}, v250, {sm(P_AX)}")
        if o.et > 1: e(f"global_load_dword v{vJUNK}, v251, {sm(P_AW1)}")
    e("v_lshrrev_b32 v1, 6, v0"); e("v_and_b32 v254, 63, v0"); e(f"v_readfirstlane_b32 s{SW}, v1")
    e(f"s_lshr_b32 s{SRB}, s{SIDX}, 4"); e(f"s_and_b32 s{SCB}, s{SIDX}, 15")
    e(f"s_mul_i32 s{sLW}, s{SW}, 6144")
    e("v_lshrrev_b32 v203, 3, v254"); e("v_and_b32 v204, 7, v254"); e("v_lshlrev_b32 v204, 4, v204"); e("v_lshl_add_u32 v210, v203, 11, v204")
    e("v_lshrrev_b32 v200, 2, v254"); e("v_and_b32 v201, 3, v254")
    e("v_mul_u32_u24 v202, 6144, v200"); e("v_lshl_add_u32 v202, v201, 4, v202")
    e(f"s_lshl_b32 s{T2}, s{SRB}, 2"); e(f"s_add_u32 s{T2}, s{T2}, s{SW}"); e(f"s_lshl_b32 s{T2}, s{T2}, 16")
    e(f"s_lshl_b32 s{T4}, s{SCB}, 7"); e(f"s_add_u32 s{T3}, s{T2}, s{T4}")
    e(f"s_lshl_b32 s{T6}, s{SGRP}, 2"); e(f"s_add_u32 s{T6}, s{T6}, s{SW}")
    e(f"s_mul_i32 s{T5}, s{T6}, {32*6144}"); e(f"s_lshl_b32 s{T4}, s{SMEM}, 6"); e(f"s_add_u32 s{T5}, s{T5}, s{T4}")
    e(f"v_lshlrev_b32 v{vL16}, 4, v254"); e(f"v_and_b32 v{vG16}, 48, v254"); e(f"v_and_b32 v{VM}, 15, v254")
    e(f"s_lshl_b32 s{T1}, s{SCB}, 11"); e(f"s_add_u32 s{sXs}, s{T1}, {WS_X}")
    e(f"s_mul_i32 s{sAo}, s{SMEM}, 196608"); e(f"s_add_u32 s{sAo}, s{sAo}, s{sLW}"); e(f"s_mul_i32 s{ROTW}, s{SGRP}, {SLOT}")
    e("v_lshlrev_b32 v249, 7, v254")
    e(f"s_lshl_b32 s{T0}, s{SIDX}, 2"); e(f"s_add_u32 s{T0}, s{T0}, s{SW}"); e(f"s_mul_i32 s{sWo}, s{T0}, 6144")
    if o.stamps == 1: e("s_memrealtime s[88:89]")
    e("s_waitcnt lgkmcnt(0)")
    if o.stamps == 1: e("s_memrealtime s[90:91]")
    e(f"s_mov_b32 s4, s{P_WS}"); e(f"s_mov_b32 s5, s{P_WS+1}"); e(f"s_mov_b32 s6, {WS_SIZE}"); e("s_mov_b32 s7, 0x20000")
    if o.cp0 in (2, 4):
        e(f"s_lshl_b32 s{T0}, s{SMEM}, 2"); e(f"s_add_u32 s{T0}, s{T0}, s{SW}"); e(f"s_lshl_b32 s{T0}, s{T0}, 7")
        for j in range((o.CPL + 3)//4 if o.cp0 == 2 else 1):
            e(f"s_load_dword s{sTMO}, {sm(sPC)}, s{T0}"); e(f"s_add_u32 s{T0}, s{T0}, 16384")
    e(f"s_xor_b32 s{T7}, s{SW}, {o.gow}")
    e(f"s_or_b32 s{T0}, s{SMEM}, s{T7}"); e(f"s_cmp_lg_u32 s{T0}, 0"); e("s_cbranch_scc1 L_p0a")
    A.track = False
    for r in range(4): e(f"v_mov_b32 v{204+r}, 0")
    e(f"s_lshl_b32 s{T0}, s{SGRP}, 12")
    for j in range(4): e(f"buffer_store_dwordx4 v[204:207], v{vL16}, {SRD}, s{T0} offen offset:{j*1024} sc1")
    e(f"s_lshl_b32 s{T0}, s{SGRP}, 7"); e(f"s_add_u32 s{T0}, s{T0}, {WS_FLAGB}")
    e("s_mov_b64 exec, 0xff")
    for j in range(2): e(f"buffer_store_dwordx4 v[204:207], v{vL16}, {SRD}, s{T0} offen offset:{j*1024} sc1")
    e("s_mov_b64 exec, -1")
    A.track = True
    A.label("L_p0a")
    n0 = len(A.vq)
    def setgo():
        e(f"s_or_b32 s{T0}, s{SMEM}, s{T7}"); e(f"s_cmp_lg_u32 s{T0}, 0"); e("s_cbranch_scc1 L_p0b")
        A.track = False
        srt(P_DBG, 256); e("v_mov_b32 v204, 1"); e(f"s_lshl_b32 s{T0}, s{SGRP}, {4 if o.dtouch else 5}")
        e(f"s_waitcnt vmcnt({len(A.vq) - n0})")
        e("s_mov_b64 exec, 1"); e(f"buffer_store_dword v204, off, {SRT}, s{T0} sc1"); e("s_mov_b64 exec, -1")
        A.track = True
        A.label("L_p0b")
    if o.gop == 2: setgo()
    def rowtouch(p, few=False):
        srt(p, 0x600000)
        if few: e("s_mov_b32 exec_lo, 0x08080808")
        e("s_mov_b32 exec_hi, 0x0808" if few else "s_mov_b32 exec_hi, 0xffff"); e(f"buffer_load_dword v{vJUNK}, v249, {SRT}, s{sWo} offen"); e("s_mov_b64 exec, -1")
    if o.rt in (1, 3): rowtouch(P_AW1, o.rt == 3)
    srt(P_AX, 0x400000)
    for i in range(4):
        e(f"s_add_u32 m0, s{sLW}, {i*1024}"); e(f"s_add_u32 s{T0}, s{T3}, {i*16384}")
        e(f"buffer_load_dwordx4 v210, {SRT}, s{T0} offen lds ;@x")
    if o.rt == 2: rowtouch(P_AW1)
    if o.stamps == 1: e("s_memrealtime s[92:93]")
    def touch(p, *calc):
        if o.tlb: E(list(calc)); e(f"s_load_dword s{sTMO}, s[{p}:{p+1}], s{T0}")
    if o.dtouch: touch(P_DBG, f"s_movk_i32 s{T0}, 128")
    touch(P_WS, f"s_add_u32 s{T0}, s{T2}, s{sXs}")
    touch(P_WS, f"s_add_u32 s{T0}, s{sAo}, s{ROTW}", f"s_add_u32 s{T0}, s{T0}, {WS_W1[0]}")
    touch(P_WS, f"s_mov_b32 s{T0}, 0x1f0000")
    touch(P_BW1, f"s_mov_b32 s{T0}, s{T5}"); touch(P_AW2, f"s_lshl_b32 s{T0}, s{SRB}, 17"); touch(P_BW2)
    if o.gop == 1: setgo()
    srt(P_PHI, 0x10000)
    e(f"s_add_u32 m0, s{sLW}, 4096"); e(f"s_lshl_b32 s{T0}, s{SMEM}, 11")
    for j in range(2): e(f"buffer_load_dwordx4 v{vL16}, {SRT}, s{T0} offen offset:{j*1024} lds ;@phi")
    def raw1(p, ldsb, tag):
        srt(p, 0x600000)
        for seg in range(3):
            for hf in range(2):
                e(f"s_add_u32 m0, s{sLW}, {ldsb + seg*2048 + hf*1024}"); e(f"s_add_u32 s{T0}, s{T5}, {seg*2048 + hf*16*6144}")
                e(f"buffer_load_dwordx4 v202, {SRT}, s{T0} offen lds ;@{tag}")
    raw1(P_AW1, RAW1A, "ra")
    if o.rtb == 5: rowtouch(P_BW1)
    if o.cp0 in (1, 3): e(cpv)
    if o.gop == 0: setgo()
    e(f"v_lshl_add_u32 v214, v{VM}, 7, v{vG16}"); e(f"v_add_u32 v214, s{sLW}, v214")
    e(f"v_add_u32 v{vB}, s{T2}, v{vL16}"); e(f"v_add_u32 v{vB+1}, 0x8000, v{vB}")
    e(f"s_lshr_b32 s{T2}, s{T2}, 8"); e(f"v_lshl_add_u32 v{vSTs}, v{VM}, 3, s{T2}")
    e(f"s_lshl_b32 s{T0}, s{SCB}, 14"); e(f"s_add_u32 s{sSTs}, s{T0}, {WS_ST}")
    mask64(mPAR, 0xAAAAAAAAAAAAAAAA); mask64(mB1, 0xCCCCCCCCCCCCCCCC); mask64(mDIAG, 0xF0000F0000F0000F)
    for r in range(4): e(f"v_mov_b32 v{ONES+r}, 0x3f803f80")
    if o.stamps:
        e(f"v_mov_b32 v{vSTAMP}, 0"); e(f"v_writelane_b32 v{vSTAMP}, s86, 12"); e(f"v_writelane_b32 v{vSTAMP}, s{sPC}, 63")
    stamp(28)
    if o.stamps == 1:
        for j in range(3): e(f"v_writelane_b32 v{vSTAMP}, s{88+2*j}, {60+j}")
    e("WAITV x")
    for i in range(2):
        for kk in range(2): e(f"ds_read_b128 {v(RES+8*i+4*kk,4)}, v214 offset:{i*2048 + kk*64}")
    e(f"v_add_u32 v{vW1}, s{sAo}, v{vL16}"); e(f"v_add_u32 v{vLW}, s{sLW}, v{vL16}")
    e("v_and_b32 v209, 3, v200"); e(f"v_lshrrev_b32 v203, 1, v{vG16}"); e("v_add_u32 v209, v209, v203")
    e("v_lshlrev_b32 v203, 6, v209"); e("v_lshl_add_u32 v205, v201, 3, v203"); e(f"v_add_u32 v205, s{sLW}, v205")
    e("v_lshl_add_u32 v206, v201, 4, v203"); e(f"s_add_u32 s{T1}, s{sLW}, {RAW1A}"); e(f"v_add_u32 v206, s{T1}, v206")
    e(f"v_lshrrev_b32 v203, 2, v{VM}"); e("v_lshl_add_u32 v203, v203, 3, v201"); e(f"v_lshl_add_u32 v203, v203, 6, v{vG16}"); e(f"v_add_u32 v208, s{T1}, v203")
    e(f"v_lshl_add_u32 v{vOut}, v{VM}, 11, v{vG16}")
    e("s_waitcnt lgkmcnt(0)")
    stamp(29)
    if o.cp0 == 4: e(cpv)
    if o.rtb == 1: rowtouch(P_BW1)
    xtile(True)
    if o.rtb == 2: rowtouch(P_BW1)
    if o.w2t:
        e(f"s_lshl_b32 s{T0}, s{SIDX}, 2"); e(f"s_add_u32 s{T0}, s{T0}, s{SW}"); e(f"s_lshl_b32 s{T0}, s{T0}, 11"); e("s_mov_b64 exec, 0xffff")
        for p in (P_BW2, P_AW2)[:o.w2t]:
            srt(p, 0x200000); e(f"buffer_load_dword v{vJUNK}, v249, {SRT}, s{T0} offen")
        e("s_mov_b64 exec, -1")
    for blk in range(6):
        mask64(T1, 0x0001000100010001 << blk)
        for r in range(4): e(f"v_cndmask_b32 v{96+4*blk+r}, 0, v{ONES}, {sm(T1)}")
    e(f"s_add_u32 s{T2}, s{ROTW}, {WS_W1[0]}"); e(f"s_add_u32 s{T4}, s{T2}, 4096")
    e(f"s_lshl_b32 s{T0}, s{T6}, 6"); e(f"s_mul_i32 s{T1}, s{SMEM}, 12288"); e(f"s_add_u32 s{T0}, s{T0}, s{T1}"); e(f"s_add_u32 s{sCL0}, s{T0}, {WS_CS}")
    e("WAITV phi")
    for fb in range(2):
        for t in range(2): e(f"ds_read_b64_tr_b16 {v(PHI+4*fb+2*t,2)}, v205 offset:{4096 + fb*32 + t*256}")
    e("WAITV ra")
    if o.rtb == 6: rowtouch(P_BW1)
    stamp(13)
    RA, RB = RS(0, 0), RS(1, 0)
    for seg in range(2):
        for kb in range(2): e(f"ds_read_b128 {v(120+8*seg+4*kb,4)}, v208 offset:{seg*2048 + kb*256} ;@s{seg}")
    for blk in (4, 5):
        for t in range(2): e(f"ds_read_b64_tr_b16 {a(RA+4*blk+2*t,2)}, v206 offset:{4096 + t*256 + (blk&1)*8}")
    for seg in range(2):
        e(f"WAITL s{seg}")
        for fb in range(2):
            for kb in range(2): e(f"{MF} {v(160+16*seg+8*fb+4*kb,4)}, {v(120+8*seg+4*kb,4)}, {v(PHI+4*fb,4)}, 0")
    e("s_waitcnt lgkmcnt(0)")
    for blk in (4, 5):
        e(w1st(a(RA+4*blk,4), blk, T2, T4))
        e(f"{MF} v[64:67], {a(RA+4*blk,4)}, {v(96+4*blk,4)}, {'0' if blk == 4 else 'v[64:67]'}")
    for blk in range(4):
        cvt4(136+4*blk, 160+8*blk, 164+8*blk)
        e(w1st(v(136+4*blk,4), blk, T2, T4))
        e(f"{MF} v[64:67], {v(136+4*blk,4)}, {v(96+4*blk,4)}, v[64:67]")
    for r in range(16): e(f"v_accvgpr_write_b32 a{RA+r}, v{136+r}")
    E(csst(v(64,4), sCL0))
    srt(P_DBG, 256)
    e("v_and_b32 v253, 7, v254"); e(f"v_lshlrev_b32 v253, {4 if o.dtouch else 5}, v253"); e(f"s_cmp_eq_u32 s{SW}, 0"); e(f"s_cselect_b32 s{T0}, 0, {OOR}")
    e(f"buffer_load_dword v212, v253, {SRT}, s{T0} offen sc1 ;@go")
    if o.bbar: e("s_barrier")
    if o.rtb == 3: rowtouch(P_BW1)
    e(f"s_lshl_b32 s{T0}, s{SRB}, 1"); e(f"s_and_b32 s{T3}, s{SW}, 1"); e(f"s_add_u32 s{T0}, s{T0}, s{T3}")
    e(f"s_lshl_b32 s{T1}, s{SCB}, 1"); e(f"s_lshr_b32 s{T4}, s{SW}, 1"); e(f"s_add_u32 s{T1}, s{T1}, s{T4}"); e(f"s_lshl_b32 s{T1}, s{T1}, 6")
    e(f"s_lshl_b32 s{sW2s}, s{T0}, 12"); e(f"s_lshl_b32 s{T0}, s{T0}, 16"); e(f"s_add_u32 s{T0}, s{T0}, s{T1}"); e(f"s_add_u32 s{T1}, s{T0}, 0x8000")
    e("v_lshlrev_b32 v203, 11, v200"); e("v_lshl_add_u32 v207, v201, 4, v203")
    e(f"s_mov_b32 s{D1}, s{T0}"); e(f"s_mov_b32 s{D2}, s{T1}")
    def raw2(wt_):
        srt((P_AW2, P_BW2)[wt_], 0x200000)
        for i in range(2):
            e(f"s_add_u32 m0, s{sLW}, {RAW2 + wt_*2048 + i*1024}")
            e(f"buffer_load_dwordx4 v207, {SRT}, s{D1 + i} offen lds ;@r2{wt_}")
    for wt_ in range(o.w2e): raw2(wt_)
    for blk in range(6): e(f"ds_write_b128 v{vLW}, {a(RA+4*blk,4)} offset:{SLOT + blk*1024}")
    stamp(30)
    e(f"s_getreg_b32 s{SXCC}, hwreg(HW_REG_XCC_ID, 0, 4)"); e(f"s_or_b32 s{SXCC}, s{SXCC}, 0x100")
    e(f"v_mov_b32 v{vVal}, s{SXCC}")
    e(f"s_lshl_b32 s{T0}, s{T4}, 11"); e(f"s_add_u32 s{sW2s}, s{sW2s}, s{T0}"); e(f"s_lshl_b32 s{T0}, s{SCB}, 17")
    e(f"s_add_u32 s{sW2s}, s{sW2s}, s{T0}"); e(f"s_add_u32 s{sW2s}, s{sW2s}, {WS_W2[0]}")
    e(f"s_lshl_b32 s{T1}, s{SMEM}, 15"); e(f"s_lshl_b32 s{T2}, s{SW}, 10"); e(f"s_add_u32 s{T1}, s{T1}, s{T2}"); e(f"s_add_u32 s{sKV}, s{T1}, {WS_KVP - WS_X + (1<<32)}")
    e(f"s_lshr_b32 s{T1}, s{T1}, 4"); e(f"s_add_u32 s{sZP}, s{T1}, {WS_ZP}")
    for s_ in range(8):
        e(f"s_add_u32 s{T1}, s{SGRP}, {s_}"); e(f"s_and_b32 s{T1}, s{T1}, 7")
        e(f"s_mul_i32 s{ROTW+s_}, s{T1}, {SLOT}"); e(f"s_lshl_b32 s{T1}, s{T1}, 12"); e(f"s_add_u32 s{ROTA+s_}, s{T1}, {WS_X}")
    e(f"s_lshl_b32 s{T1}, s{SIDX}, 11"); e(f"s_add_u32 s{sHALO}, s{T1}, {WS_HALO}")
    e(f"s_lshl_b32 s{T1}, s{SMEM}, 10"); e(f"s_add_u32 s{sO}, s{T1}, {WS_O}")
    touch(P_WS, f"s_mov_b32 s{T0}, s{sW2s}")
    touch(P_WS, f"s_add_u32 s{T0}, s{sKV}, s{ROTA}")
    touch(P_WS, f"s_add_u32 s{T0}, s{sW2s}, {WS_W2[1] - WS_W2[0]}")
    touch(P_WS, f"s_add_u32 s{T0}, s{sAo}, s{ROTW}", f"s_add_u32 s{T0}, s{T0}, {WS_W1[1]}")
    touch(P_WS, f"s_mov_b32 s{T0}, s{sHALO}")
    touch(P_WS, f"s_lshl_b32 s{T0}, s{T6}, 17", f"s_add_u32 s{T0}, s{T0}, s{sO}")
    touch(P_OUT, f"s_lshl_b32 s{T0}, s{SRB}, 18", f"s_lshl_b32 s{T1}, s{SCB}, 7", f"s_add_u32 s{T0}, s{T0}, s{T1}")
    e(f"s_lshl_b32 s{T0}, s{SGRP}, 5"); e(f"v_add_u32 v203, s{T0}, v254")
    e("v_and_b32 v204, 7, v254"); e(f"v_lshl_add_u32 v204, v204, 5, s{SMEM}")
    mask64(T1, 0x00000000FFFFFFFF); e(f"v_cndmask_b32 v211, v204, v203, {sm(T1)}"); e("v_lshlrev_b32 v211, 7, v211")
    e(f"s_cmp_eq_u32 s{SW}, 0"); e(f"s_cselect_b32 s{T0}, 1, 0")
    e("WAITV go")
    stamp(31)
    gm = ([f"s_lshl_b64 exec, 1, s{SGRP}"], ["s_mov_b64 exec, -1"]) if o.gown else ([], [])
    E(gm[0]); e(f"v_cmp_ne_u32 vcc, s{T0}, v212"); E(gm[1]); e("s_cbranch_vccnz L_goslow")
    A.label("L_gook")
    def goslow():
        A.label("L_goslow"); srt(P_DBG, 256); e("s_waitcnt lgkmcnt(0)")
        E(gm[0]); spin([f"buffer_load_dword v212, v253, {SRT}, 0 offen sc1"], ["v_cmp_ne_u32 vcc, 1, v212"]); E(gm[1]); e("s_branch L_gook")
    ool.append(goslow)
    e(f"s_lshl_b32 s{T0}, s{SIDX}, 7"); e(f"s_cmp_eq_u32 s{SW}, 0"); e(f"s_cselect_b32 s{T0}, s{T0}, {OOR}")
    e("s_barrier")
    e("s_mov_b64 exec, 1"); e(f"buffer_{'atomic_or' if o.apoll else 'store_dword'} v{vVal}, off, {SRD}, s{T0} sc1"); e("s_mov_b64 exec, -1")
    stamp(14)
    for wt_ in range(o.w2e, 2): raw2(wt_)
    if o.rtb == 4: rowtouch(P_BW1)
    if not o.bin: raw1(P_BW1, RAW1B, "rb")
    else: srt(P_BW1, 0x600000)
    e(f"s_cmp_eq_u32 s{SW}, 0"); e(f"s_cselect_b32 s{T7}, 0, {OOR}")
    if o.gown: srt(P_DBG, 256); e(f"buffer_load_dword v250, v253, {SRT}, s{T7} offen sc1 ;@go2")
    mask64(mM0, 0x0001000100010001)
    mask64(mOWN0, sum(1 << l for l in range(64) if 4*(l >> 4) + (l & 1) <= (l & 15)))
    mask64(mOWN1, sum(1 << l for l in range(64) if 4*(l >> 4) + 2 + (l & 1) <= (l & 15)))
    e(f"s_lshl_b32 s{T1}, s{T6}, 7"); e(f"s_add_u32 s{sFXc}, s{T1}, {WS_FLAGX}")
    e(f"s_lshl_b32 s{T2}, s{SMEM}, 2"); e(f"s_add_u32 s{T1}, s{T1}, s{T2}"); e(f"s_add_u32 s{sFOp}, s{T1}, {WS_FLAGO}")
    e(f"s_lshl_b32 s{T1}, s{SRB}, 1"); e(f"s_add_u32 s{T1}, s{T1}, s{T4}"); e(f"s_lshl_b32 s{T1}, s{T1}, 7")
    e(f"s_add_u32 s{sFOc}, s{T1}, {WS_FLAGO}")
    e(f"s_lshl_b32 s{T2}, s{SCB}, 3"); e(f"s_lshl_b32 s{T0}, s{T3}, 2")
    e(f"s_add_u32 s{T1}, s{T1}, s{T2}"); e(f"s_add_u32 s{T1}, s{T1}, s{T0}"); e(f"s_add_u32 s{sFXp}, s{T1}, {WS_FLAGX}")
    e(f"s_lshl_b32 s{T0}, s{SGRP}, 8"); e(f"s_add_u32 s{sZo}, s{T0}, s{sZP}")
    e(f"s_lshl_b32 s{T1}, s{T3}, 10"); e(f"s_lshl_b32 s{T2}, s{T4}, 19")
    e(f"s_add_u32 s{T1}, s{T1}, s{T2}"); e(f"s_add_u32 s{sCL2}, s{T1}, s{sHALO}")
    e(f"s_lshl_b32 s{T1}, s{SIDX}, 2"); e(f"s_add_u32 s{T1}, s{T1}, {WS_FLAGB}"); e(f"s_cmp_eq_u32 s{SW}, 0"); e(f"s_cselect_b32 s{sFBp}, s{T1}, {OOR}")
    e(f"s_cmp_eq_u32 s{SW}, 3"); e(f"s_cselect_b32 s{sHst}, s{sHALO}, {OOR}")
    e(f"s_sub_u32 s{T1}, s{sHALO}, 0x10000"); e(f"s_cmp_eq_u32 s{SW}, 0"); e(f"s_cselect_b32 s{T1}, s{T1}, {OOR}")
    e(f"s_cmp_eq_u32 s{SGRP}, 0"); e(f"s_cselect_b32 s{sHld}, {OOR}, s{T1}")
    e(f"s_lshl_b32 s{T0}, s{SGRP}, 2"); e(f"s_lshl_b32 s{mX}, 15, s{T0}"); e(f"s_mov_b32 s{mX+1}, 0")
    e(f"s_sub_u32 s{T0}, s{sFOp}, s{sFOc}"); e(f"s_lshr_b32 s{T1}, s{T0}, 2"); e(f"s_lshl_b32 s{T1}, 1, s{T1}"); e(f"s_cmp_lt_u32 s{T0}, 128"); e(f"s_cselect_b32 s{T1}, s{T1}, 0")
    e(f"s_andn2_b32 s{mEO}, {(1 << (o.g2depth - 1)) - 1 if o.lazy & 2 else -1}, s{T1}"); e(f"s_mov_b32 s{mEO+1}, 0")
    e(f"s_sub_u32 s{T0}, s{sFXp}, s{sFXc}"); e(f"s_lshr_b32 s{T1}, s{T0}, 2"); e(f"s_lshl_b32 s{T1}, 1, s{T1}"); e(f"s_cmp_lt_u32 s{T0}, 128"); e(f"s_cselect_b32 s{T1}, s{T1}, 0")
    e(f"s_andn2_b32 s{mEX}, {'s%d' % mX if o.lazy & 1 else -1}, s{T1}"); e(f"s_mov_b32 s{mEX+1}, 0")
    e(f"s_lshl_b32 s{sL8}, s{SW}, 11"); e(f"s_lshl_b32 s{sW2l}, s{SW}, 12")
    e(f"s_or_b32 s{T0}, s{SGRP}, s{SW}"); e(f"s_cmp_eq_u32 s{T0}, 0"); e(f"s_cselect_b64 {sm(mFIRST)}, -1, 0")
    e(f"v_add_u32 v{vL64}, 0x10000, v{vL16}"); e(f"v_add_u32 v{vL128}, 0x20000, v{vL16}"); e(f"v_add_u32 v{vLW3}, {(3-o.nopf)*SLOT}, v{vLW}")
    e(f"v_and_b32 v{vFP}, 31, v254"); e(f"v_lshlrev_b32 v{vFP}, 2, v{vFP}")
    e(f"s_lshl_b32 s{T1}, s{T6}, 17"); e(f"v_add_u32 v{vA}, s{T1}, v{vL16}")
    for i in range(1, 4): e(f"v_add_u32 v{vA+i}, {i*0x8000}, v{vA}")
    e(f"s_lshl_b32 s{T1}, s{T6}, 9"); e("v_lshrrev_b32 v213, 5, v254"); e(f"v_lshl_add_u32 v{vSTl}, v213, 17, s{T1}"); e(f"v_lshl_add_u32 v{vSTl}, v{vFP}, 2, v{vSTl}")
    e(f"s_lshl_b32 s{T1}, s{SCB}, 17"); e(f"s_add_u32 s{T1}, s{T1}, s{sLW}"); e(f"v_add_u32 v{vW2}, s{T1}, v{vL16}")
    e("v_lshrrev_b32 v203, 4, v254"); e("v_xor_b32 v204, v203, v201"); e("v_lshlrev_b32 v204, 3, v204"); e("v_lshl_add_u32 v208, v200, 5, v204")
    e(f"s_lshl_b32 s{T2}, s{SW}, 12")
    e(f"v_lshrrev_b32 v204, 2, v{VM}"); e("v_xor_b32 v203, v203, v204"); e("v_lshlrev_b32 v203, 3, v203")
    e(f"v_lshl_add_u32 v203, v{VM}, 5, v203"); e(f"v_add_u32 v{vXW}, s{T2}, v203")
    e(f"s_lshl_b32 s{T0}, s{T4}, 14"); e(f"s_lshl_b32 s{T1}, s{T3}, 9"); e(f"s_add_u32 s{T2}, s{T0}, s{T1}"); e(f"v_add_u32 v{vE0}, s{T2}, v208")
    e(f"v_xor_b32 v{vE1}, 512, v{vE0}"); e(f"s_add_u32 s{T1}, s{T1}, {VB_LDS}"); e(f"v_add_u32 v{vVr}, s{T1}, v208")
    e(f"s_lshl_b32 s{T1}, s{T3}, 3")
    e(f"v_add_u32 v{vGM}, {M}, v{vG16}")
    e(f"s_lshl_b32 s{T0}, s{T4}, 6"); e(f"s_add_u32 s{T0}, s{T0}, s{T1}"); e(f"v_add_u32 v{vZW}, s{T0}, v{vGM}")
    e(f"s_lshl_b32 s{T0}, s{SW}, 10"); e(f"s_add_u32 s{T0}, s{T0}, {M_KX}"); e(f"v_add_u32 v{vKX}, s{T0}, v{vL16}")
    e(f"v_add_u32 v{vKX0}, s{T1}, v{vKX}"); e(f"v_xor_b32 v{vKX1}, 8, v{vKX0}")
    e(f"s_lshl_b32 s{T0}, s{SW}, 9"); e(f"s_add_u32 s{T0}, s{T0}, {M_ST}")
    e(f"v_lshl_add_u32 v203, v213, 2, s{T0}"); e(f"v_lshl_add_u32 v{vSW}, v{vFP}, 1, v203"); e(f"v_lshl_add_u32 v{vSR}, v{VM}, 2, s{T0}")
    e(f"v_add_u32 v{vSQ}, s{T0}, v{vG16}"); e(f"v_lshlrev_b32 v203, 2, v{VM}"); e(f"v_add_u32 v{vCV}, {M_CS + 384}, v203")
    e(f"v_and_b32 v203, 7, v{VM}"); e(f"v_lshl_add_u32 v{vZL}, v203, 8, v{vG16}")
    e("v_mov_b32 v203, 0xffff"); e("v_mov_b32 v204, 0xffff0000"); e(f"v_cndmask_b32 v203, v203, v204, {sm(mPAR)}")
    e(f"v_cndmask_b32 v{MO0}, 0, v203, {sm(mOWN0)}"); e(f"v_cndmask_b32 v{MO1}, 0, v203, {sm(mOWN1)}")
    e(f"v_xor_b32 v{MP0}, v203, v{MO0}"); e(f"v_xor_b32 v{MP1}, v203, v{MO1}")
    e(f"s_add_u32 s{T2}, s{SW}, 4"); e(f"s_min_u32 s{T2}, s{T2}, 5"); e(f"s_mul_i32 s{T0}, s{SMEM}, 12288"); e(f"s_add_u32 s{T0}, s{T0}, {WS_CS}")
    e(f"s_lshl_b32 s{T1}, s{SW}, 11"); e(f"s_add_u32 s{sCSa}, s{T0}, s{T1}"); e(f"s_lshl_b32 s{T1}, s{T2}, 11"); e(f"s_add_u32 s{sCSb}, s{T0}, s{T1}")
    e("v_bfe_u32 v203, v254, 4, 1"); e("v_lshlrev_b32 v203, 3, v203"); e("v_lshl_add_u32 v203, v213, 2, v203"); e("v_lshl_add_u32 v203, v201, 4, v203"); e(f"v_add_u32 v203, {M_CS}, v203")
    e(f"s_lshl_b32 s{T1}, s{SW}, 6"); e(f"v_add_u32 v{vCSa}, s{T1}, v203"); e(f"s_lshl_b32 s{T1}, s{T2}, 6"); e(f"v_add_u32 v{vCSb}, s{T1}, v203")
    e(f"s_lshl_b32 s{T0}, s{SMEM}, 2"); e(f"s_add_u32 s{T0}, s{T0}, s{SW}"); e(f"s_lshl_b32 s{T2}, s{T0}, 7"); e(f"v_mov_b32 v{vCPF}, s{T2}")
    e(f"s_lshr_b32 s{T1}, s{T0}, 3"); e(f"s_and_b32 s{T0}, s{T0}, 7")
    e(f"s_lshl_b32 s{T2}, s{SGRP}, 4"); e(f"s_add_u32 s{T1}, s{T1}, s{T2}"); e(f"s_lshl_b32 s{T1}, s{T1}, 15"); e(f"s_lshl_b32 s{T0}, s{T0}, 9"); e(f"s_add_u32 s{T0}, s{T0}, s{T1}")
    e(f"v_lshl_add_u32 v{vTCH}, v{vG16}, 3, s{T0}")
    for r in range(4): e(f"v_accvgpr_write_b32 a{252+r}, -1")
    e(f"v_mov_b32 v{vVal}, 0"); e(f"s_add_u32 s{T0}, s{sKV}, s{ROTA}")
    e(f"buffer_store_dwordx4 a[252:255], v{vL16}, {SRD}, s{T0} offen sc1")
    e(f"s_mov_b64 exec, {sm(mM0)}"); e(f"buffer_store_dwordx4 a[252:255], v{vG16}, {SRD}, s{sZo} offen sc1")
    e("s_mov_b64 exec, 1"); e(f"buffer_store_dword v{vVal}, off, {SRD}, s{sFOp} sc1"); e(f"buffer_store_dword v{vVal}, off, {SRD}, s{sFXp} sc1"); e("s_mov_b64 exec, -1")
    pl = [f"buffer_load_dword v212, v211, {SRD}, s{T7} offen sc1"]
    if o.apoll: pl = ["v_mov_b32 v212, -1", "s_mov_b32 exec_hi, 0xff", "v_mov_b32 v212, 0", f"buffer_atomic_or v212, v211, {SRD}, s{T7} offen sc0 sc1", "s_mov_b64 exec, -1"]
    def w2tr(wt_):
        e(f"WAITV r2{wt_}")
        for b_ in range(2):
            for t in range(2):
                d_ = v(224+4*b_+2*t, 2) if wt_ == 0 else a(HW2+4*b_+2*t, 2)
                e(f"ds_read_b64_tr_b16 {d_}, v206 offset:{2*SLOT + wt_*2048 + t*256 + b_*8}")
    def w2ast():
        e("s_waitcnt lgkmcnt(0)")
        for b_ in range(2): e(f"buffer_store_dwordx4 {v(224+4*b_,4)}, v{vL16}, {SRD}, s{sW2s} offen offset:{b_*1024} sc1 ;@b1")
    if o.bin:
        w2tr(0); w2ast()
        e("v_mov_b32 v248, v202"); e(f"v_subrev_u32 v249, {RAW1A}, v206")
        stamp(44)
        E([t + (" ;@poll" if t.startswith("buffer") else "") for t in pl])
        w2tr(1); e("s_waitcnt lgkmcnt(0)")
    else:
        e("WAITV rb")
        if o.gown:
            e(f"s_cmp_eq_u32 s{SW}, 0"); e(f"s_cselect_b32 s{T0}, 1, 0"); e("WAITV go2"); e("s_waitcnt lgkmcnt(0)"); e(f"v_cmp_ne_u32 vcc, s{T0}, v250")
            E(retry([f"buffer_load_dword v250, v253, {SRT}, 0 offen sc1"], ["v_cmp_ne_u32 vcc, 1, v250"]))
        stamp(44)
        E([t + (" ;@poll" if t.startswith("buffer") else "") for t in pl])
        w2tr(0); w2tr(1); w2ast()
        for blk in range(6):
            for t in range(2): e(f"ds_read_b64_tr_b16 {a(RB+4*blk+2*t,2)}, v206 offset:{SLOT + (blk>>1)*2048 + t*256 + (blk&1)*8} ;@r{blk}")
        for blk in range(6):
            e(f"WAITL r{blk}")
            e(f"{MF} {a(HCS,4)}, {a(RB+4*blk,4)}, {v(96+4*blk,4)}, {'0' if blk == 0 else a(HCS,4)}")
    e(f"v_mov_b32 v{vVal}, 1")
    stamp(45)
    e("WAITV poll")
    e(f"s_cmp_lg_u32 s{SW}, 0"); e("s_cbranch_scc1 L_faok")
    A.track = False
    e("v_cmp_eq_u32 vcc, 0, v212"); e("s_cbranch_vccz L_fad")
    spin(([f"s_sleep {o.psl}"] if o.psl else []) + pl, ["v_cmp_eq_u32 vcc, 0, v212"])
    A.label("L_fad")
    e(f"v_cmp_ne_u32 {sm(T1)}, s{SXCC}, v212"); e(f"v_mov_b32 v212, s{T1}")
    e(f"ds_write_b32 v{vGM}, v212"); e("s_waitcnt lgkmcnt(0)")
    A.track = True
    A.label("L_faok")
    e("s_barrier")
    stamp(15)
    e(f"ds_read_b32 v{FBV}, v{vGM} ;@mode")

    for lay in range(o.last + 1):
        par = lay & 1; early = lay < 2; li = lay >> 1; last = lay == o.last
        A.label(f"L_layer{lay}")
        stamp(0)
        nd = ND if par == 0 else 0; TB = o.TB if par else 0
        NF = 4*AD if par == 0 else 4*AD + 2*ND; LAF = 4*(o.LA if par == 0 else o.LAB)
        assert LAF + 4 <= NF
        units = [(st, (0, 1, 2, 3), list(range(2 if st >= 32 - nd else 0, 6))) for st in range(32 - TB)]
        units += [(st, bl, list(range(6))) for bl in ((2, 3), (0, 1)) for st in range(32 - TB, 32)]
        anext = [(u, st, i) for u, (st, bl, _) in enumerate(units) for i in bl]
        fidx = {(st, i): n for n, (u, st, i) in enumerate(anext)}
        def afr(step, i): return a(RING + 4*(fidx[(step, i)] % NF), 4)
        def wdst(step, c):
            if c < 2 and step >= 32 - nd: return a(WQ + 8*(step - (32-nd)) + 4*c, 4)
            return v(WFV + 4*c, 4)
        def w1rd(u, c):
            step = units[u][0]
            return ldsrd(wdst(step, c), ((step//4 + 1) % 6)*SLOT + (step % 4)*6144 + c*1024) + f" ;@w{u}_{c}"
        def aload(u, step, i):
            return f"buffer_load_dwordx4 {afr(step, i)}, v{vA+i}, {SRD}, s{ROTA + step//4} offen offset:{(step%4)*1024} sc1 ;@A{u}"
        def mma(step, c, i):
            x, y = (afr(step, i), wdst(step, c)) if (par and c >= 4) else (wdst(step, c), afr(step, i))
            return f"{MF} {v(acc(c,i),4)}, {x}, {y}, {'0' if step == 0 else v(acc(c,i),4)}"
        def ostore(i, through):
            t = f"buffer_store_dwordx4 {v(224+4*i,4)}, v{vA+i}, {SRD}, s{sO} offen"
            if through: e(wt(t))
            else: st_mode([t])
        if lay == 0:
            for c in range(6): e(w1rd(0, c))
        for j in range(4*o.APRE): e(aload(*anext.pop(0)))
        nbar = 0
        if lay == 0:
            for i in range(6): E(w1_piece(par, 1, i))
            e("WAITL mode"); e(f"v_readfirstlane_b32 s{SMODE}, v{FBV}")
        else:
            if o.lazy & 1: poll2(sFXc)
            e("s_waitcnt lgkmcnt(0)"); e("s_barrier")
            for c in range(6): e(w1rd(0, c))
        wr, w1s, w2r, w2s = (o.wrE, o.w1sE, o.w2E, o.w2sE) if early else (o.wrL, o.w1sL, o.w2L, o.w2sL)
        if par: w2r, w2s = (o.w2BE, o.w2sBE) if early else (o.w2BL, o.w2sBL)
        if lay == 3: wr = o.wrBL
        if lay == 0: wr, w1s = o.wr0, o.w1s0
        pend = [("W", st, i) for st in range(2 if early else 2 + o.NRES - o.nopf, 8) for i in range(6)] + [("W2", p, i) for p in range(4 + par) for i in range(6)]
        def allowed(p, t):
            if p[0] == "W" and p[1] == 5 and lay == 0 and o.bin and not ready("r5"): return False
            if p[0] == "W": return p[1] < 6 or nbar >= p[1] - 4
            return nbar >= p[1] + 4 and t >= w2s and (lay > 0 or fbdone[0])
        fbdone = [False]
        misc = [(max(o.s0 + o.sper*j, o.lazy & 1), [f"s_mov_b32 s{T0}, {WS_ST + j*16384}", f"buffer_load_dwordx4 {v(160+4*j,4)}, v{vSTl}, {SRD}, s{T0} offen sc1 ;@S{j}"]) for j in range(8)]
        extra = []
        extra2 = []; sh2 = []
        sh = []
        if early:
            for j in range(4):
                extra.append((4 + j, [f"buffer_load_dwordx4 {v(224+8*(j//2)+4*(j%2),4)}, v{vL16}, {SRD}, s{(sCSa, sCSb)[j%2]} offen offset:{(j//2)*1024} sc1 ;@CS{j}"]))
            d = 224
            r = [f"v_add_f32 v{d+j}, v{d+j}, v{d+8+j}" for j in range(8)]
            for s_ in (8, 4): r += [f"v_add_f32_dpp v{d+j}, v{d+j}, v{d+j} row_ror:{s_} row_mask:0xf bank_mask:0xf" for j in range(8)]
            r = [r[j:j+2] for j in range(0, len(r), 2)] + [[f"v_permlane32_swap_b32 v{d+j}, v{d+j+1}"] for j in range(0, 8, 2)]
            r += [[f"v_add_f32 v{d+j}, v{d+j}, v{d+j+1}", f"v_add_f32 v{d+j+2}, v{d+j+2}, v{d+j+3}"] for j in (0, 4)]
            r += [[f"v_permlane16_swap_b32 v{d}, v{d+2}"], [f"v_permlane16_swap_b32 v{d+4}, v{d+6}"], [f"v_add_f32 v{d}, v{d}, v{d+2}", f"v_add_f32 v{d+4}, v{d+4}, v{d+6}"],
                  ["s_mov_b32 exec_lo, 0x000f000f", "s_mov_b32 exec_hi, 0x000f000f", f"ds_write_b32 v{vCSa}, v{d} offset:{par*384}", f"ds_write_b32 v{vCSb}, v{d+4} offset:{par*384} ;@csw",
                   "s_mov_b64 exec, -1"], [f"s_add_u32 s{sCSa}, s{sCSa}, {CS_SZ}", f"s_add_u32 s{sCSb}, s{sCSb}, {CS_SZ}"]]
            caps = [[(8 + 4*k - 4*o.nopf, None, [f"ds_read_b128 {a(RS(par, k+1)+4*b_,4)}, v{vLW3} offset:{k*SLOT + b_*1024}"]) for b_ in range(6)] for k in range(o.NRES)]
            sh += (caps[0] if caps else []) + [(8, "CS3", x) for x in r] + sum(caps[1:], [])
        if lay == 0 and o.bin:
            rbl = [[f"s_mov_b32 s{T2}, m0", f"s_add_u32 m0, s{sLW}, {j*1024}", f"s_add_u32 s{T1}, s{T5}, {(j>>1)*2048 + (j&1)*16*6144}",
                    f"buffer_load_dwordx4 v248, {SRT}, s{T1} offen lds ;@rb{j}", f"s_mov_b32 m0, s{T2}"] for j in range(6)]
            extra2 = [(o.bs0 + j, x) for j, x in enumerate(rbl)]
            r = [[f"ds_read_b64_tr_b16 {a(RB+4*blk+2*t,2)}, v249 offset:{(blk>>1)*2048 + t*256 + (blk&1)*8} ;@r{blk}" for t in range(2)] for blk in range(6)]
            for blk in range(6):
                q_ = 240 + 4*(blk & 1); mk = 0x00010001 << blk
                r += [[f"s_mov_b32 s{T3}, {mk}", f"s_mov_b32 s{T4}, {mk}"]] + [[f"v_cndmask_b32 v{q_+j}, 0, v{ONES}, {sm(T3)}" for j in jj] for jj in ((0, 1), (2, 3))]
                r += [[f"WAITL r{blk}", f"{MF} {a(HCS,4)}, {a(RB+4*blk,4)}, {v(q_,4)}, {'0' if blk == 0 else a(HCS,4)}"]]
            sh = [x for x in sh if x[0] <= 8 and x[1] is None] + [(0, "rb5", x) for x in r[:6]] + [x for x in sh if not (x[0] <= 8 and x[1] is None)]
            sh2 = r[6:]
        if lay == 0:
            extra.insert(0, (4, fb_set(0)))
            extra.append((w2s - 8, [t + (" ;@F" if t.startswith("buffer") else "") for t in fb_body(0)]))
        def codepf(lbl): return [f"s_add_u32 s{T1}, s{sPC}, {lbl}-L_pc", f"s_addc_u32 s{T2}, s{sPC+1}, 0", f"global_load_dword v{vJUNK}, v{vCPF}, {sm(T1)}"]
        if o.cpf2: extra.append((o.cpf2, codepf(f"L_epi{lay}")))
        if o.cpf3 and not last: extra.append((o.cpf3, codepf("L_ool")))
        if par:
            for j_ in range(0 if (o.o4 and last) else o.of): extra.append((o.ot0 + j_, [f"s_mov_b32 s{T1}, {WS_O + 4096*j_}", f"buffer_load_dword v{vJUNK}, v{vTCH}, {SRD}, s{T1} offen sc1"]))
            extra.sort(key=lambda x: x[0])
        r = []
        for st in (16, 8, 4):
            r += [[f"v_add_f32 v{160+j}, v{160+j}, v{160+j+st}", f"v_add_f32 v{161+j}, v{161+j}, v{161+j+st}"] for j in range(0, st, 2)]
        r += [["s_nop 0"], ["v_permlane32_swap_b32 v160, v162"], ["v_permlane32_swap_b32 v161, v163"], ["v_add_f32 v160, v160, v162", "v_add_f32 v161, v161, v163"],
              [f"v_mul_f32 v163, {f32hex(-1.0/1024)}, v160", f"v_mul_f32 v161, {f32hex(1.0/1024)}, v161"], ["v_fma_f32 v161, -v163, v163, v161", "v_max_f32 v161, 0, v161"],
              [f"v_add_f32 v161, {f32hex(1e-5)}, v161"], ["v_rsq_f32 v162, v161"], [f"ds_write2_b32 v{vSW}, v162, v163 offset0:0 offset1:64"]]
        r += [[f"ds_read2_b32 {v(STP+2*i,2)}, v{vSR} offset0:{16*i} offset1:{64+16*i}"] for i in range(4)]
        if par: r += [[f"ds_read_b128 {v(224+16*j+4*i,4)}, v{vSQ} offset:{256*j + 64*i}"] for j in range(2) for i in range(4)]
        sh += [(0, "S7", x) for x in r]
        sh += [(0, "csbar", [f"ds_read_b128 {v(CSR+4*c,4)}, v{vGM} offset:{M_CS-M+par*384+c*64} ;@cs"]) for c in range(4 if par else 6)]
        if par: sh += [(0, "csbar", [f"ds_read2_b32 {v(CSR+16,2)}, v{vCV} offset0:64 offset1:80 ;@cs"])]
        for t_ in ["S7", "CS3", "F", "csw", "cs"] + [f"W{j}" for j in range(2, 8)]: A.seen.discard(t_)
        csbar = not early
        def ready(tag):
            if tag is None: return True
            if tag == "csbar": return csbar
            return tag in A.seen and not A.pending(tag)
        fix = {(cc, ii): [f"v_fmac_f32 v{acc(cc,ii)+j}, v{CSR+12+cc}, v{240+4*ii+j}" if par and cc >= 4 else
                          f"v_fmac_f32 v{acc(cc,ii)+j}, v{CSR+4*cc+j}, v{STP+2*ii+1}" for j in range(4)] for cc in range(6) for ii in range(4)}
        fix["ci"] = [f"v_mul_f32 v{CI+ii}, {CK[par]}, v{STP+2*ii}" for ii in range(4)]
        ysh = []
        if par:
            VT = lambda db, i: 168 + 10*db + 2*(i+1)
            KP = 188
            def two(l): return [l[j:j+2] for j in range(0, len(l), 2)]
            def vcvt(i, d0, d1): return [f"v_cvt_pk_bf16_f32 v{d+h}, v{acc(4+db,i)+2*h}, v{acc(4+db,i)+2*h+1}" for db, d in enumerate((d0, d1)) for h in range(2)]
            def kmul(i): return [f"v_mul_f32 v{acc(c,i)+j}, v{acc(c,i)+j}, v{STP+2*i}" for c in (2, 3) for j in range(4)]
            def vmul(i): return [f"v_mul_f32 v{acc(c,i)+j}, v{acc(c,i)+j}, v{224+4*i+j}" for c in (4, 5) for j in range(4)]
            def kcvt(i): return cvt4l(acc(2,i), acc(2,i), acc(3,i))
            def qcvt(i): return cvt4l(acc(0,i), acc(0,i), acc(1,i))
            def sown(i): return f"{MF} {v(acc(3,i),4)}, {v(acc(2,i),4)}, {v(acc(0,i),4)}, 0"
            def sprev(i): return f"{MF} {v(acc(1,i),4)}, {v(acc(2,i-1) if i else KP,4)}, {v(acc(0,i),4)}, 0"
            def sel(i):
                so, sp, z = acc(3,i), acc(1,i), acc(5,i)
                r = [f"v_cndmask_b32 v{b}, v{b}, v{b+1}, {sm(mPAR)}" for b in (so, so+2, sp, sp+2)]
                if i == 0: r += [f"v_cndmask_b32 v{b}, v{b}, v217, {sm(mFIRST)}" for b in (sp, sp+2)]
                return r + [f"v_cndmask_b32 v{z}, v{sp}, v{so}, {sm(mOWN0)}", f"v_cndmask_b32 v{z+1}, v{sp+2}, v{so+2}, {sm(mOWN1)}", f"v_max_f32 v{z+2}, v{z}, v{z+1}"]
            def soft(blks):
                Z = [(acc(5,i), i) for i in blks]
                r = [f"v_sub_f32 v{z+h}, v{z+h}, v{z+2}" for z, i in Z for h in range(2)] + [f"v_mul_f32 v{z+h}, v{z+h}, v{CI+i}" for z, i in Z for h in range(2)]
                r += [f"v_exp_f32 v{z+h}, v{z+h}" for z, i in Z for h in range(2)] + [f"v_cvt_pk_bf16_f32 v{z+h}, v{z+h}, v{z+h}" for z, i in Z for h in range(2)]
                for z, i in Z: r += [f"v_and_b32 v{acc(4,i)+j}, v{z+(j&1)}, v{mk}" for j, mk in enumerate((MP0, MP1, MO0, MO1))]
                return r
            def pv(i): return [f"{MF} {v(acc(5,i),4)}, {v(ONES,4)}, {v(acc(4,i),4)}, 0"] + [f"{MF} {v(acc(1+2*db,i),4)}, {v(VT(db,i-1),4)}, {v(acc(4,i),4)}, 0" for db in range(2)]
            hl = [f"buffer_load_dwordx4 v[240:243], v{vL16}, {SRD}, s{sHld} offen sc1", f"buffer_load_dwordx4 v[244:247], v{vL16}, {SRD}, s{sHld} offen offset:1024 sc1"]
            z3 = acc(5,3)
            ysh += two(kmul(3) + kcvt(3)) + [[f"buffer_store_dwordx4 {v(acc(2,3),4)}, v{vL16}, {SRD}, s{sHst} offen sc1"]]
            ysh += two(vmul(3) + vcvt(3, 248, 250)) + [[f"buffer_store_dwordx4 v[248:251], v{vL16}, {SRD}, s{sHst} offen offset:1024 sc1"]]
            ysh += [[f"ds_write_b128 v{vKX}, {v(acc(2,3),4)} offset:1024"]] + two(vcvt(3, VT(0,3), VT(1,3)))
            ysh += [[f"ds_write_b128 v{vKX}, v[248:251] offset:{M_VX-M_KX+1024} ;@xw"]]
            ysh += two(kmul(2) + kcvt(2) + qcvt(3)) + [[sown(3)], [sprev(3)]] + two(vmul(2) + vcvt(2, VT(0,2), VT(1,2)))
            ysh += [["WAITL xw", "s_barrier"], [f"ds_read_b128 {v(KP,4)}, v{vKX}"]] + [[f"ds_read_b64 {v(VT(db,-1),2)}, v{vKX} offset:{M_VX-M_KX+8*db}"] for db in range(2)]
            ysh += two(sel(3)) + [[f"v_mov_b32 v{z3+3}, v{z3+2}"]] + two(qcvt(2))[:1] + [[f"v_permlane32_swap_b32 v{z3+2}, v{z3+3}"], [f"v_max_f32 v{z3+2}, v{z3+2}, v{z3+3}", f"v_mov_b32 v{z3+3}, v{z3+2}"]]
            ysh += two(qcvt(2))[1:] + [[f"v_permlane16_swap_b32 v{z3+2}, v{z3+3}"], [f"v_max_f32 v{z3+2}, v{z3+2}, v{z3+3}"], [sown(2)]]
            s3 = soft((3,))
            ysh += two(s3[:4]) + [s3[4:5], s3[5:6]] + two(s3[6:]) + [[f"v_mov_b32 v217, {f32hex(-3.0e38)}"]] + [[x] for x in pv(3)] + [[], []]
            ysh += [[f"v_rcp_f32 v{z3}, v{z3}"]] + two([f"v_mul_f32 v{acc(1+2*db,3)+j}, v{acc(1+2*db,3)+j}, v{z3}" for db in range(2) for j in range(4)] + cvt4l(236, acc(1,3), acc(3,3)))
            ysh += [lambda: ostore(3, o.oall or (o.o4 and last))]
            ysh.insert(len(ysh) - o.hpos, [hl[0]]); ysh.insert(len(ysh) - o.hpos, [hl[1] + " ;@hl"])
        def Y():
            x = ysh.pop(0)
            if callable(x): x()
            else: E(x)
        credit = 0.5 if (lay == 1 and o.lazy & 1) else 0.0; t = 0.0; nbar = 0
        for u, (step, bl, cs_) in enumerate(units):
            half = len(bl) == 2; ng = len(cs_); inY = half and bl[0] == 0
            assert not anext or anext[0][0] > u
            e(f"WAITV A{u}")
            if u == 1 and lay > 0 and o.lazy & 1:
                assert anext[0][1] <= 4 and anext[0][2] == 0 and len(misc) == 8
                poll2chk(sFXc, lay)
            if o.g1prof and u == 0: stamp(2, 1)
            if u + 1 < len(units) and units[u+1][0]//4 > nbar:
                nbar += 1
                assert not any(p[0] == "W" and p[1] <= nbar for p in pend), (lay, u)
                if f"W{nbar}" in A.seen: e(f"WAITV W{nbar}")
                if lay == 0 and nbar == 1: assert not A.pending("b1")
                e("s_barrier")
                if ready("csw"): csbar = True
                if o.g1prof: stamp(2 + nbar, 1)
            if inY and step == max(28, 32 - TB):
                e("s_barrier"); nbar = 8
            if inY: assert not sh and all(not x for x in fix.values()), (lay, len(sh), {k: len(x) for k, x in fix.items() if x})
            nslot = 3 if half else ng
            cur = fidx[(step, bl[0])]
            ahead = lambda n: n < len(anext) and fidx[anext[n][1:]] < cur + len(bl) + LAF
            plan = []; na = nw = nm = 0
            while len(plan) < nslot and ahead(na) and na < len(bl):
                plan.append("A"); na += 1
            if t >= w1s: credit = min(credit + (wr if (pend and pend[0][0] == "W") else w2r) * len(bl) / 400.0, max(3.0, w2r/100.0))
            while len(plan) < nslot and nw < len(pend) and allowed(pend[nw], t) and credit >= 1:
                plan.append("W"); nw += 1; credit -= 1
            while len(plan) < nslot and nm < len(misc) and misc[nm][0] <= t:
                plan.append("M"); nm += 1
            while len(plan) < nslot and ahead(na):
                plan.append("A"); na += 1
            oth = [p for p in plan if p != "A"]; aa = [p for p in plan if p == "A"]; plan = []
            while oth or aa:
                if aa: plan.append(aa.pop())
                if aa and len(aa) >= 2*len(oth): plan.append(aa.pop())
                if oth: plan.append(oth.pop(0))
            if half: plan = sum(([p, None] for p in plan), [])
            for gi, c in enumerate(cs_):
                vm = None
                for p, i in enumerate(bl if c % 2 == 0 else bl[::-1]):
                    if p == 0: e(f"WAITL w{u}_{c}")
                    e(mma(step, c, i))
                    busy = False
                    if p == 0 and gi < len(plan) and plan[gi]:
                        k = plan[gi]
                        if k == "A": vm = [aload(*anext.pop(0))]
                        elif k == "W":
                            pc = pend.pop(0); vm = w1_piece(par, pc[1], pc[2]) if pc[0] == "W" else w2_piece(par, pc[1], pc[2])
                        else: vm = misc.pop(0)[1]
                        E(vm[:-1]); busy = len(vm) > 1
                    if p == (0 if half else 1) and vm: e(vm[-1]); busy = True
                    if p == len(bl) - 1:
                        busy = not half
                        if u + 1 < len(units): e(w1rd(u+1, c))
                    if p == 2 and ng == 4 and u + 1 < len(units) and gi < 2:
                        e(w1rd(u+1, gi)); busy = True
                    if busy: continue
                    if inY:
                        if ysh: Y()
                    elif p == (0 if half else 2) and gi == 3 and extra and extra[0][0] <= t: E(extra.pop(0)[1])
                    elif p == 2 and gi == 0 and extra2 and extra2[0][0] <= t: E(extra2.pop(0)[1])
                    elif p == 2 and lay == 0 and not fbdone[0] and ready("F"):
                        E(fb_cond + retry(fb_body(0), fb_cond)); fbdone[0] = True
                    elif sh:
                        if sh[0][0] <= t and ready(sh[0][1]): E(sh.pop(0)[2])
                        elif sh2 and ready("r5"): E(sh2.pop(0))
                    elif ready("cs"):
                        cc = cs_[(gi + ng//2) % ng]
                        cand = [(cc, ii) for ii in (3, 2, 1, 0)]
                        if step > 32 - nd: cand += [(c2, ii) for c2 in (0, 1) for ii in range(4)]
                        if half and step > 32 - TB: cand += [(c2, ii) for c2 in range(6) for ii in (0, 1)]
                        for k in cand + ["ci"]:
                            if fix[k]:
                                E(fix[k][:2]); fix[k] = fix[k][2:]; break
                        else:
                            if sh2: E(sh2.pop(0))
            t += len(bl) / 4
        assert not anext and not misc and not sh and not extra and not extra2 and not sh2 and all(p[0] == "W2" for p in pend), (lay, pend, anext, misc, len(sh), extra)
        assert all(not x for x in fix.values()), (lay, {k: len(x) for k, x in fix.items()})
        assert lay > 0 or fbdone[0]
        left = [w2_piece(par, p[1], p[2]) for p in pend]
        lates = [w2_piece(par, 4, i) for i in range(6*(1-par))] + [w2_piece(par, 5, i) for i in range(2)]
        if o.verbose: print("layer", lay, "left", len(left), "ysh", len(ysh))
        A.label(f"L_epi{lay}")
        e("s_waitcnt lgkmcnt(0)"); e("s_barrier")
        stamp(1)
        qm = [mma(step, c, i) for step in range(32-nd, 32) for c in range(2) for i in (range(4) if c == 0 else reversed(range(4)))]

        if par == 0:
            def feat_head(c0, tmp, hook=None):
                MX, MN = tmp, tmp+4
                for i in (3, 2, 1, 0):
                    p0, p1 = acc(c0,i), acc(c0+1,i)
                    for op, op2, d in (("v_max3_f32", "v_max_f32", MX+i), ("v_min3_f32", "v_min_f32", MN+i)):
                        e(f"{op} v{d}, v{p0}, v{p0+1}, v{p0+2}"); e(f"{op} v{d}, v{d}, v{p0+3}, v{p1}")
                        e(f"{op} v{d}, v{d}, v{p1+1}, v{p1+2}"); e(f"{op2} v{d}, v{d}, v{p1+3}")
                if hook: hook()
                xreduce([("v_max_f32", [MX, MX+1, MX+2, MX+3]), ("v_min_f32", [MN, MN+1, MN+2, MN+3])])
                for i in range(4):
                    e(f"v_mul_f32 v{MX+i}, -v{MX+i}, v{CI+i}"); e(f"v_mul_f32 v{MN+i}, v{MN+i}, v{CI+i}")
                for i in range(4):
                    for fb in range(2):
                        for h in range(2):
                            pk_fma(224+8*i+4*fb+2*h, acc(c0+fb,i)+2*h, CI+i, MX+i)
                            pk_fma(acc(c0+fb,i)+2*h, acc(c0+fb,i)+2*h, CI+i, MN+i, negx=True)
            def feat_tail(c0, F, G_, S0, S1, post, mid=None, hooks={}):
                def norm_(i):
                    sq = S0 if i % 2 == 0 else S1
                    e(f"v_rcp_f32 v{184+2*i}, v{sq}"); e(f"v_rcp_f32 v{185+2*i}, v{sq+4}")
                    for r in range(0, 8, 2): pk_mul(224+8*i+r, 224+8*i+r, 184+2*i)
                    cvt4(F+4*i, 224+8*i, 224+8*i+4)
                    if post: e(post(i, 0))
                    for fb in range(2):
                        for h in range(2): pk_mul(acc(c0+fb,i)+2*h, acc(c0+fb,i)+2*h, 185+2*i)
                    cvt4(G_+4*i, acc(c0,i), acc(c0+1,i))
                    if post: e(post(i, 1))
                for i in range(4):
                    if i in hooks: hooks[i]()
                    for r in range(8): e(f"v_exp_f32 v{224+8*i+r}, v{224+8*i+r}")
                    for fb in range(2):
                        for r in range(4): e(f"v_exp_f32 v{acc(c0+fb,i)+r}, v{acc(c0+fb,i)+r}")
                    if 0 < i < 3: norm_(i-1)
                    sq = S0 if i % 2 == 0 else S1
                    cvt4(F+4*i, 224+8*i, 224+8*i+4); cvt4(G_+4*i, acc(c0,i), acc(c0+1,i))
                    e(f"{MF} {v(sq,4)}, {v(ONES,4)}, {v(F+4*i,4)}, 0"); e(f"{MF} {v(sq+4,4)}, {v(ONES,4)}, {v(G_+4*i,4)}, 0")
                if 4 in hooks: hooks[4]()
                if mid: mid()
                norm_(2)
                if 5 in hooks: hooks[5]()
                norm_(3)
            dl = []
            if lay == 0:
                dl = [[f"s_add_u32 s{D2}, s{ROTW}, {WS_W1[1]}", f"s_add_u32 s{D4}, s{D2}, 4096", w1st(a(RB,4), 0, D2, D4)]] + [[w1st(a(RB+4*b_,4), b_, D2, D4)] for b_ in range(1, 6)]
                dl += [[f"s_add_u32 s{D1}, s{sW2s}, {WS_W2[1] - WS_W2[0]}", f"buffer_store_dwordx4 {a(HW2,4)}, v{vL16}, {SRD}, s{D1} offen sc1"],
                       [f"buffer_store_dwordx4 {a(HW2+4,4)}, v{vL16}, {SRD}, s{D1} offen offset:1024 sc1", f"s_add_u32 s{D1}, s{sCL0}, {CS_SZ}"] + csst(a(HCS,4), D1),
                       [f"buffer_store_dwordx4 a[252:255], v{vL16}, {SRD}, s{sCL2} offen sc1"],
                       [f"s_add_u32 s{D1}, s{sKV}, s{ROTA}", f"s_add_u32 s{D1}, s{D1}, 0x100000", f"buffer_store_dwordx4 a[252:255], v{vL16}, {SRD}, s{D1} offen sc1",
                        f"s_add_u32 s{D1}, s{sZo}, 0x10000", f"s_mov_b64 exec, {sm(mM0)}", f"buffer_store_dwordx4 a[252:255], v{vG16}, {SRD}, s{D1} offen sc1 ;@b2", "s_mov_b64 exec, -1"]]
            dl2 = dl[o.dk:]; dl = dl[:o.dk]; mix = []
            for j_ in range(max(len(left), len(dl))): mix += left[j_:j_+1] + dl[j_:j_+1]
            per = o.aper0 if dl else o.aper
            A.bgset(mix, per, per)
            def vall():
                for i in range(4):
                    for b in range(2):
                        for h in range(2): pk_mul(acc(4+b,i)+2*h, acc(4+b,i)+2*h, STP+2*i)
                    cvt4(acc(4,i), acc(4,i), acc(5,i))
                    e(xw(acc(4,i), VB_LDS//1024 + i))
            feat_head(2, 208, vall)
            feat_tail(2, 192, 144, 168, 176, lambda i, sg: xw((192 if sg == 0 else 144)+4*i, 24 + 16*sg + i))
            A.bgflush()
            e(f"s_add_u32 s{T2}, s{sKV}, s{ROTA}")
            e("s_waitcnt lgkmcnt(0)"); e("s_barrier")
            stamp(2)
            def kvreads(p):
                b = 96 + 16*(p % 4); r = []
                for t in range(2):
                    r += [f"ds_read_b64_tr_b16 {v(b+2*t,2)}, v{vE0} offset:{SLOT + (2*p+t)*1024}", f"ds_read_b64_tr_b16 {v(b+8+2*t,2)}, v{vVr} offset:{(2*p+t)*1024} ;@ka{p}"]
                return r + [f"ds_read_b64_tr_b16 {v(b+4+2*t,2)}, v{vE1} offset:{SLOT + (2*p+t)*1024} ;@kb{p}" for t in range(2)]
            rd = sum((kvreads(p) for p in range(8)), [])
            E(rd[:14]); rd = rd[14:]
            for j in range(4): e(qm.pop(0))
            for p in range(8):
                b = 96 + 16*(p % 4); z_ = p == 0
                e(f"WAITL ka{p}")
                e(f"{MF} v[168:171], {v(b,4)}, {v(b+8,4)}, {'0' if z_ else 'v[168:171]'}"); E(rd[0:2])
                e(f"{MF} v[200:203], {v(b,4)}, {v(ONES,4)}, {'0' if z_ else 'v[200:203]'}"); E(rd[2:4])
                e(f"WAITL kb{p}")
                e(f"{MF} v[172:175], {v(b+4,4)}, {v(b+8,4)}, {'0' if z_ else 'v[172:175]'}"); E(rd[4:6]); rd = rd[6:]
            for j in range(2): e(qm.pop(0))
            e("s_barrier")
            for j in range(2): e(qm.pop(0))
            cv = cvt4l(192, 168, 172)
            E(cv[:2]); e(qm.pop(0)); E(cv[2:]); e(qm.pop(0))
            e(f"buffer_store_dwordx4 v[192:195], v{vL16}, {SRD}, s{T2} offen sc1"); e(qm.pop(0))
            e(f"s_mov_b64 exec, {sm(mM0)}"); e(f"buffer_store_dwordx4 v[200:203], v{vG16}, {SRD}, s{sZo} offen sc1"); e("s_mov_b64 exec, -1")
            stamp(3)
            A.bgset(lates, o.aper2, 0)
            E(qm)
            def g1(p): return [f"s_add_u32 s{T0}, s{sKV}, s{ROTA+1+p}", f"buffer_load_dwordx4 {v(96+4*p,4)}, v{vL16}, {SRD}, s{T0} offen sc1 ;@g{p}"]
            gz = f"buffer_load_dwordx4 v[192:195], v{vZL}, {SRD}, s{sZP} offen sc1 ;@gz"
            def gather():
                A.bgflush()
                for p in range(7): E(g1(p))
                e(gz)
                A.bgset(dl2, o.aper3, 0)
            if o.gpos == 0: gather()
            feat_head(0, 196, gather if o.gpos == 1 else None)
            def qmid():
                e(f"s_andn2_b64 {sm(T1)}, {sm(mDIAG)}, {sm(mB1)}"); e(f"s_and_b64 {sm(T3)}, {sm(mDIAG)}, {sm(mB1)}")
                e(f"v_or_b32 v128, v{MO0}, v{MP0}"); e(f"v_and_b32 v128, v128, v{ONES}")
                e(f"v_cndmask_b32 v130, 0, v128, {sm(T1)}"); e(f"v_cndmask_b32 v131, 0, v128, {sm(T3)}")
                for r in (128, 129, 132, 133): e(f"v_mov_b32 v{r}, 0")
            feat_tail(0, 204, 136, 152, 176, None, qmid, {o.gpos - 2: gather})
            A.bgflush()
            nafter = A.after("gz")
            stamp(4)
            e(f"s_mov_b32 s{sTMO}, {LIM}")
            for p in range(8):
                r0 = 96+4*p if p < 7 else 192; L = f"{lay}_{p}"
                e(f"WAITV g{p if p < 7 else 'z'}")
                A.label(f"L_kvc{L}")
                e(f"v_cmp_eq_u32 vcc, -1, v{r0}"); e(f"s_cbranch_vccnz L_kvs{L}")
                A.label(f"L_kvo{L}")
                if p < 7:
                    e(f"{MF} v[168:171], v[130:133], {v(r0,4)}, v[168:171]"); e(f"{MF} v[172:175], v[128:131], {v(r0,4)}, v[172:175]")
                def kvslow(p=p, L=L, nafter=nafter, g1=g1, gz=gz):
                    A.label(f"L_kvs{L}")
                    e(f"s_sub_u32 s{sTMO}, s{sTMO}, 1"); e(f"s_cbranch_scc1 L_kvt{L}")
                    if o.ksl: e(f"s_sleep {o.ksl}")
                    e(f"s_waitcnt vmcnt({nafter})")
                    if o.kgate:
                        e("v_mov_b32 v197, 0"); e("s_mov_b64 exec, 0xff"); e(f"buffer_atomic_or v197, v{vZL}, {SRD}, s{sZP} offen sc0 sc1"); e("s_mov_b64 exec, -1")
                        e("s_waitcnt vmcnt(0)"); e("v_cmp_eq_u32 vcc, -1, v197"); e(f"s_cbranch_vccnz L_kvs{L}")
                    for p2 in range(p, 7):
                        if p2 > p: e(f"v_cmp_eq_u32 vcc, -1, v{96+4*p2}"); e(f"s_cbranch_vccz L_kvn{L}_{p2}")
                        E(g1(p2))
                        if p2 > p: A.label(f"L_kvn{L}_{p2}")
                    e(gz); e("s_waitcnt vmcnt(0)"); e(f"s_branch L_kvc{L}")
                    A.label(f"L_kvt{L}"); e(f"s_mov_b32 s{sTMO}, 0"); e(f"s_branch L_kvo{L}")
                ool.append(kvslow)
            for s_ in (4, 2, 1):
                for r in range(4): e(f"v_add_f32_dpp v{192+r}, v{192+r}, v{192+r} row_ror:{s_} row_mask:0xf bank_mask:0xf")
                if s_ == 2:
                    cvt4(196, 168, 172)
                    e(f"ds_write_b64 v{vKX0}, v[196:197]"); e(f"ds_write_b64 v{vKX1}, v[198:199]")
            e("v_cvt_pk_bf16_f32 v192, v192, v193"); e("v_cvt_pk_bf16_f32 v193, v194, v195")
            e(f"s_mov_b64 exec, {sm(mM0)}"); e(f"ds_write_b64 v{vZW}, v[192:193] offset:{M_ZF-M}"); e("s_mov_b64 exec, -1")
            fb2 = lay == 0 and not A.pending("b2")
            e("s_waitcnt lgkmcnt(0)"); e("s_barrier")
            stamp(5)
            for t in range(2): e(f"ds_read_b128 {v(184+4*t,4)}, v{vGM} offset:{M_ZF-M + t*64} ;@zf")
            for j in range(4): e(ldsrd(v(168+4*j,4), M_KX + j*1024))
            if fb2: E(fb_set(1))
            if lay == 0: e(f"s_add_u32 s{sKV}, s{sKV}, 0x100000"); e(f"s_add_u32 s{sZP}, s{sZP}, 0x10000"); e(f"s_add_u32 s{sZo}, s{sZo}, 0x10000")
            e("WAITL zf")
            for t in range(2):
                for i in range(4): e(f"{MF} {v(64+4*i,4)}, {v(184+4*t,4)}, {v((204 if t == 0 else 136)+4*i,4)}, {'0' if t == 0 else v(64+4*i,4)}")
            e("s_waitcnt lgkmcnt(0)")
            def fin(i):
                r = [f"v_mul_f32 v{96+8*i+j}, v{96+8*i+j}, v{64+4*i}" for j in range(8)] + cvt4l(224+4*i, 96+8*i, 100+8*i)
                return [r[j:j+3] for j in range(0, 12, 3)]
            sc = [[f"v_add_f32 v{64+4*i}, {f32hex(1e-6)}, v{64+4*i}", f"v_rcp_f32 v{64+4*i}, v{64+4*i}"] for i in range(4)]
            fills = [[[]]*4, sc, fin(0), fin(1)]
            for i in range(4):
                for t in range(2):
                    for db in range(2):
                        d = v(96+8*i+4*db, 4)
                        e(f"{MF} {d}, {v(168+8*t+4*db,4)}, {v((204 if t == 0 else 136)+4*i,4)}, {'0' if t == 0 else d}")
                        E(fills[i][2*t+db])
                if i >= 2: ostore(i-2, True)
            for i in (2, 3):
                for r in range(0, 8, 2): pk_mul(96+8*i+r, 96+8*i+r, 64+4*i)
                cvt4(224+4*i, 96+8*i, 100+8*i)
                ostore(i, True)
        else:
            fb2 = True
            A.bgset(left + lates, o.bper, o.bper)
            while ysh: Y()
            for i in (1, 0):
                for c in (2, 3):
                    for h in range(2): pk_mul(acc(c,i)+2*h, acc(c,i)+2*h, STP+2*i)
            for i in (1, 0):
                for c in (4, 5):
                    for h in range(2): e(f"v_pk_mul_f32 {v(acc(c,i)+2*h,2)}, {v(acc(c,i)+2*h,2)}, {v(224+4*i+2*h,2)}")
            E(kcvt(1) + qcvt(1)); e(sprev(2)); E(kcvt(0)[:2]); e(sown(1)); E(kcvt(0)[2:] + qcvt(0)); e(sprev(1)); E(vcvt(1, VT(0,1), VT(1,1))[:2]); e(sown(0))
            E(vcvt(1, VT(0,1), VT(1,1))[2:] + vcvt(0, VT(0,0), VT(1,0)))
            E(sel(2))
            keep = A.bg; A.bg = []
            e("s_waitcnt lgkmcnt(0)")
            e(f"s_cmp_lg_u32 s{SW}, 0"); e(f"s_cbranch_scc1 L_halod{lay}")
            A.track = False
            hc = ["v_max_u32 v218, v240, v244", "v_cmp_eq_u32 vcc, -1, v218"]
            if A.pending("hl"): e(f"s_waitcnt vmcnt({A.after('hl')})")
            E(hc); e(f"s_cbranch_vccz L_halow{lay}")
            spin(hl, hc)
            A.label(f"L_halow{lay}")
            for r in range(4): e(f"v_mov_b32 v{KP+r}, v{240+r}"); e(f"v_mov_b32 v{VT(r//2,-1)+r%2}, v{244+r}")
            A.track = True
            A.label(f"L_halod{lay}")
            e(sprev(0))
            A.bg = keep
            stamp(2)
            if lay == 1: e(f"s_add_u32 s{sHst}, s{sHst}, 0x80000"); e(f"s_add_u32 s{sHld}, s{sHld}, 0x80000")
            E(sel(1)); E(sel(0))
            xreduce([("v_max_f32", [acc(5,i)+2 for i in range(4)])])
            E(soft((2, 1, 0)))
            A.bgflush()
            E(pv(2) + pv(1) + pv(0))
            for i in (2, 1, 0):
                e(f"v_rcp_f32 v{acc(5,i)}, v{acc(5,i)}")
                for db in range(2):
                    for h in range(2): pk_mul(acc(1+2*db,i)+2*h, acc(1+2*db,i)+2*h, acc(5,i))
                cvt4(224+4*i, acc(1,i), acc(3,i))
                ostore(i, o.oall or (o.o4 and last))

        stamp(6)
        pre = [f"v_mov_b32 v{vVal}, {lay+1}"]
        for i in range(2):
            for kk in range(2):
                for r in range(4):
                    d = acc2(2*kk + (r >> 1), i) + 2*(r & 1); x = RES+8*i+4*kk+r
                    pre += [f"v_lshlrev_b32 v{d}, 16, v{x}", f"v_and_b32 v{d+1}, 0xffff0000, v{x}"]
        omask = (1 << (o.g2depth - 1)) - 1 if o.lazy & 2 else None
        if o.early & 2: handoff(sFOp, sFOc, lay+1, omask, mEO, pre, [])
        else:
            E(pre); signal(sFOp); stamp(7); poll(sFOc, lay+1, None, omask)
        stamp(8)
        W2F = RING; AF2 = RING + 32; GD = o.g2depth; T2_ = o.TG
        assert AF2 + 8*GD <= 240 - 48*o.NRES
        gun = [(st, (0, 1)) for st in range(32 - T2_)] + [(st, (i,)) for i in range(2) for st in range(32 - T2_, 32)]
        bn = [(st, i) for st, bl in gun for i in bl]
        bidx = {k: n for n, k in enumerate(bn)}
        def bfr(step, i): return a(AF2 + 4*(bidx[(step, i)] % (2*GD)), 4)
        def w2rd(u, b):
            step = gun[u][0]
            return ldsrd(a(W2F + 16*(u % 2) + 4*b, 4), (step*4096 if step < 14 else 3*SLOT + (step-14)*4096) + b*1024) + f" ;@u{u}_{b}"
        cur4 = [-1]
        def bload(step, i):
            r = [f"s_mov_b32 s{sAo}, {WS_O + (step//4)*4096}"] if step//4 != cur4[0] else []
            cur4[0] = step//4
            return r + [f"buffer_load_dwordx4 {bfr(step, i)}, v{vB+i}, {SRD}, s{sAo} offen offset:{(step%4)*1024} sc1 ;@B{step}_{i}"]
        for j in range(min(o.bpos, 2*GD-2)):
            if o.lazy & 2 and j == o.p2pos: poll2(sFOc)
            E(bload(*bn.pop(0)))
        e("s_barrier")
        for st in range(2):
            for b in range(4): e(w2rd(st, b))
        while bn[0][0] < GD-1: E(bload(*bn.pop(0)))
        lv = [x for x in (o.lv1, o.lv2) if x] + [32]
        okh = 32
        if o.lazy & 2: okh = lv.pop(0); poll2chk(sFOc, lay+1, hex((1 << okh) - 1) if okh < 32 else None)
        if lay == 0 and not fb2: E(fb_set(1))
        w1n = [] if last or (o.nopf and lay >= 1) else list(range(6))
        nres = 0 if last else (1 + (o.NRES if lay >= 1 else 0))
        def oparts(i):
            return [[f"ds_write_b128 v{200+kk}, {v(RES+8*i+4*kk,4)} offset:{i*2048}"] for kk in range(2)] + \
                   [[f"ds_read_b128 {v(96+4*j,4)}, v{vLW} offset:{j*1024} ;@o{j}"] for j in (2*i, 2*i+1)] + [[], []] + \
                   [[f"WAITL o{j}", f"buffer_store_dwordx4 {v(96+4*j,4)}, v202, {SRT}, s{T0} offen" + (" sc1" if o.outsc else ""), f"s_add_u32 s{T0}, s{T0}, 16384"] for j in (2*i, 2*i+1)]
        gsh = []
        if last:
            gsh = [[f"v_bfe_u32 v200, v{vL16}, 4, 4", f"v_and_b32 v201, 0x70, v{vL16}"], [f"v_xor_b32 v201, v201, v{vG16}", "v_lshl_add_u32 v200, v200, 7, v201"],
                   [f"v_add_u32 v200, s{sLW}, v200", f"v_lshrrev_b32 v202, 7, v{vL16}"], [f"v_and_b32 v203, 0x70, v{vL16}", "v_lshlrev_b32 v204, 4, v202"],
                   ["v_xor_b32 v201, 64, v200", "v_xor_b32 v203, v203, v204"], ["v_lshl_add_u32 v202, v202, 11, v203"],
                   [f"s_mov_b32 s8, s{P_OUT}", f"s_mov_b32 s9, s{P_OUT+1}"], ["s_mov_b32 s10, 0x400000", "s_mov_b32 s11, 0x20000"],
                   [f"s_lshl_b32 s{T0}, s{SRB}, 2", f"s_add_u32 s{T0}, s{T0}, s{SW}"], [f"s_lshl_b32 s{T0}, s{T0}, 16", f"s_lshl_b32 s{T1}, s{SCB}, 7"], [f"s_add_u32 s{T0}, s{T0}, s{T1}"]]
        def xcvt(i): return sum((cvt4l(RES+8*i+4*kk, acc2(2*kk,i), acc2(2*kk+1,i)) for kk in range(2)), [])
        fbchk = not (lay == 0 and not last)
        rw = [f"ds_write_b128 v{vLW if k == 0 else vLW3}, {a(RS(1-par, k)+4*b_,4)} offset:{(SLOT if k == 0 else (k-1)*SLOT) + b_*1024}" for k in range(nres) for b_ in range(6)]
        rslot = [1 if k == 0 else 2 + k - o.nopf for k in range(nres) for b_ in range(6)]
        freeslot = -1
        for u, (step, bl) in enumerate(gun):
            e("WAITV " + " ".join(f"B{step}_{i}" for i in bl))
            if okh < 32:
                if bn[0][0] == okh - GD + 1: poll2(sFOc)
                if bn[0][0] == okh: okh = lv.pop(0); poll2chk(sFOc, lay+1, hex((1 << okh) - 1) if okh < 32 else None)
                assert bn[1][0] < okh
            nsl = nres - 1 - o.nopf if nres > 1 else 0
            if u in [15 + 6*j for j in range(nsl + 1) if o.rin or j == nsl or (j == 0 and w1n)]:
                freeslot = 2 + (u - 15)//6
                assert min(st for st, _ in gun[u-1:]) >= u - 1
                e("s_barrier")
            if lay == 0 and not last and u == 19: assert okh == 32; E([t + (" ;@F" if t.startswith("buffer") else "") for t in fb_body(1)])
            if not fbchk and len(bn) <= 2: e("WAITV F"); E(fb_cond + retry(fb_body(1), fb_cond)); fbchk = True
            if bl == (1,) and step == 32 - T2_:
                assert not gsh
                c_ = xcvt(0); gsh = [[]] + [c_[j:j+2] for j in range(0, 8, 2)]
                if last: gsh += oparts(0)
                else:
                    p_ = xparts(0); gsh += p_[0] + [[], []] + p_[1]
            for b in range(4):
                e(f"WAITL u{u}_{b}")
                for p, i in enumerate(bl if b % 2 == 0 else bl[::-1]):
                    e(f"{MF} {v(acc2(b,i),4)}, {a(W2F+16*(u%2)+4*b,4)}, {bfr(step, i)}, {v(acc2(b,i),4)}")
                    if p == 0:
                        if bn and b % (4//len(bl)) == 0: E(bload(*bn.pop(0)))
                        elif not bn and w1n and b % (o.g2w*2//len(bl)) == 0: E(w1_piece(1-par, 1, w1n.pop(0)))
                        elif gsh and (len(bl) == 1 or b % 2):
                            g_ = gsh.pop(0)
                            if o.xall and lay >= 1 and not last: E([wt(t) for t in g_])
                            elif any(t.startswith("buffer_store") for t in g_) and not last: st_mode(g_)
                            else: E(g_)
                if o.rin and rw and rslot[0] <= freeslot and b % (4//o.rin) == 4//o.rin - 1 and (len(bl) == 2 or (bl == (0,) and b == 3 and (u % 2 or o.rin > 1))):
                    e(rw.pop(0)); rslot.pop(0)
                if u + 2 < len(gun): e(w2rd(u+2, b))
                if b == 1 and not last:
                    for j_ in range(o.xf):
                        if u == o.xt0 + 3*j_: e(f"buffer_load_dword v{vJUNK}, v{vTCH}, {SRD}, s{ROTA+j_} offen sc1")
                    if o.cpf and u == o.xt0 + 4: E(codepf(f"L_layer{lay+1}"))
        assert not w1n
        stamp(9)
        rest = sum(gsh, [])
        if last or not any(t.startswith("buffer_store") for t in rest): E(rest)
        else: st_mode(rest)
        todo = (1,) if T2_ else (0, 1)
        for i in todo: E(xcvt(i))
        if last:
            for i in todo: E(sum(oparts(i)[:4], []))
            for i in todo: E(sum(oparts(i)[4:], []))
            break
        xtile(o.xall and lay >= 1, todo)
        assert not rw or max(rslot) <= freeslot
        if o.verbose: print("layer", lay, "resident writes left", len(rw))
        if o.early & 1: handoff(sFXp, sFXc, lay+1, sm(mX) if o.lazy & 1 else None, mEX, rw[:o.rw], rw[o.rw:])
        else:
            E(rw[:o.rw]); signal(sFXp); stamp(10); poll(sFXc, lay+1, rw[o.rw:], sm(mX) if o.lazy & 1 else None)

    if o.stamps:
        e("s_waitcnt vmcnt(0)")
        stamp(11)
        e(f"s_lshl_b32 s{T0}, s{SIDX}, 2"); e(f"s_add_u32 s{T0}, s{T0}, s{SW}")
        e(f"s_lshl_b32 s{T0}, s{T0}, 8"); e(f"s_add_u32 s{T0}, s{T0}, {WS_STAMPS}")
        e(f"v_lshrrev_b32 v200, 2, v{vL16}")
        e(f"buffer_store_dword v{vSTAMP}, v200, {SRD}, s{T0} offen")
        if o.echo_a >= 0:
            e(f"v_readlane_b32 s{T1}, v{vSTAMP}, {o.echo_a}"); e(f"v_readlane_b32 s{T2}, v{vSTAMP}, {o.echo_b}"); e(f"v_readlane_b32 s{T3}, v{vSTAMP}, 59")
            e(f"s_sub_u32 s{T2}, s{T2}, s{T1}"); e(f"s_mul_i32 s{T2}, s{T2}, {o.echo_mul}"); e(f"s_min_u32 s{T2}, s{T2}, 20000")
            if o.echo_idx >= 0: e(f"s_cmp_eq_u32 s{SIDX}, {o.echo_idx}"); e(f"s_cselect_b32 s{T2}, s{T2}, 0")
            A.label("L_echo")
            e(f"s_memrealtime s[{sSTAMP}:{sSTAMP+1}]"); e("s_waitcnt lgkmcnt(0)")
            e(f"s_sub_u32 s{T4}, s{sSTAMP}, s{T3}"); e(f"s_cmp_lt_u32 s{T4}, s{T2}"); e("s_cbranch_scc1 L_echo")
    e("s_endpgm")
    A.track = False
    A.label("L_ool")
    for blk in ool: blk()
    A.label("L_exit")
    e("s_endpgm")
    A.raw(f".fill (16384 + 256 - (. - L_ool))/4, 4, 0xbf810000")
    A.raw('.section .rodata,"a"'); A.raw(".p2align 6"); A.raw(f".amdhsa_kernel {KNAME}")
    for t in ("next_free_vgpr 512", "next_free_sgpr 102", "accum_offset 256", "group_segment_fixed_size 0", "kernarg_size 80",
              "user_sgpr_count 2", "user_sgpr_kernarg_segment_ptr 1", "system_sgpr_workgroup_id_x 1"):
        A.raw("  .amdhsa_" + t)
    A.raw(".end_amdhsa_kernel")
    return A.text()

if __name__ == "__main__":
    o = Opts()
    out = sys.argv[1]
    for kv in sys.argv[2:]:
        k, val = kv.split("=")
        assert hasattr(o, k), k
        setattr(o, k, int(val))
    open(out, "w").write(gen(o))
```

```python
import sys, struct
from asmlib import *

KNAME = "interleave_layers__linear_kernel_hedgehog__sliding_local_dilated__prompt_kernel"

WS_FLAGA = 0x0000000
WS_FLAGB = 0x0008000
WS_FLAGO = 0x0009000
WS_FLAGX = 0x000A000
WS_CS    = 0x0010000
CS_SZ    = 393216
WS_ST    = 0x0100000
WS_ZP    = 0x0140000
WS_STAMPS= 0x0180000
WS_HALO  = 0x0200000
WS_KVP   = 0x0400000
WS_W1    = (0x0800000, 0x0E00000)
WS_W2    = (0x1400000, 0x1600000)
WS_X     = 0x1800000
WS_X0    = WS_X
WS_O     = 0x1C00000
WS_SIZE  = 0x2000000
OOR      = 0x40000000

SLOT = 24576
M      = 147456
M_CS   = M + 64
M_ST   = M + 1024
M_ZX   = M + 3072
M_KX   = M + 4096
M_VX   = M + 11264
M_ZF   = M + 10240
LDS_SIZE = 163840
VB_LDS = 57344
RAW1A, RAW1B, RAW2 = 3*SLOT, 4*SLOT, 5*SLOT

SRD = "s[4:7]"; SRT = "s[8:11]"
SW, SGRP, SMEM, SMODE, SCB, SRB = 12, 13, 14, 15, 17, 18
T0, T1, T2, T3, T4, T5, T6, T7 = 19, 20, 21, 22, 23, 24, 25, 26
SIDX, SXCC = 27, 29
sFOc, sFOp, sFXc, sFXp = 30, 31, 32, 33
sO, sXs = 34, 35
mPAR, mB1, mDIAG, mM0, mOWN0, mOWN1, sPC, mFIRST = 36, 38, 40, 42, 44, 46, 48, 50
sCSa, sCSb, sZo, sFBp, sSTs, sLW, sKV, sZP, sHALO, sTMO, sAo, sWo = 52, 53, 54, 55, 56, 57, 58, 59, 60, 61, 62, 63
P_AX, P_AW1, P_PHI, P_AW2, P_BX, P_BW1, P_BW2, P_OUT, P_DBG, P_WS = 64, 66, 68, 70, 72, 74, 76, 78, 80, 82
sCL0, sCL2, sL8, sW2l, sW2s, sHst, sHld = 72, 73, 2, 0, 3, 16, 28
D1, D2, D4 = 64, 65, 66
mX, mEO, mEX = 68, 70, 76
sSTAMP = 84
ROTA, ROTW = 86, 94

vLW = 0; vL16, vL64, vL128 = 1, 2, 3
vA = 4; vB = 8; vW1 = 10; vW2 = 11; vFP = 12; vSTl = 13; vSTs = 14; vSTAMP = 15
RES = 16; PHI = 32; ONES = 40; MP0, MP1, MO0, MO1 = 44, 45, 46, 47
vE1, vVr, vLW3, vCPF, vKX0, vKX1, vCSa, vCSb = range(32, 40)
vXW, vE0, vTCH, vSQ, vJUNK, vCV, vFree, vKX, vGM, vZW, vSW, vSR, vG16, vOut, vZL, vVal = range(48, 64)
ACC = 64
def acc(c, i): return ACC + 16*c + 4*i
def acc2(b, i): return ACC + 8*b + 4*i
STP = 160; CSR = 168; WFV = 192; FBV = 216; CI = 220
RING, HW2, HCS = 48, 240, 248
def RS(par, k): return 24*par if k == 0 else 240 - 48*k + 24*par
MF = "v_mfma_f32_16x16x32_bf16"
def f32hex(x): return "0x%08x" % struct.unpack("<I", struct.pack("<f", x))[0]
CK = (f32hex(1.4426950408889634), f32hex(1.4426950408889634 * 32 ** -0.5))
LIM = 0x100000

class Opts:
    verbose = 0; stamps = 0; last = 3; force_slow = 0; echo_a = -1; echo_b = -1; echo_mul = 1; echo_idx = -1; g1prof = 0
    NRES = 2
    ND0 = 4; ND2 = 7
    LA0 = 3; LA2 = 3; LA3 = 3
    APRE = 3
    wrE = 150; wrL = 105; w1sE = 1; w1sL = 2; wr0 = 150; w1s0 = 1; n1pre = 6
    w2E = 300; w2L = 200; w2sE = 25; w2sL = 20
    sper = 1; s0 = 0
    g2depth = 7; g2w = 2; bpos = 12; TG = 3
    w2BE = 400; w2sBE = 24; w2BL = 400; w2sBL = 20; wrBL = 110
    bper = 90; TB = 6; LAB = 3; hpos = 12
    aper = 150; aper0 = 110; aper2 = 90; aper3 = 200; gpos = 5; gpos2 = 4; dk = 6
    rw = 12
    xf = 1; xt0 = 14
    bin = 0; bs0 = 1; w2e = 1; w2t = 0; of = 1; ot0 = 27
    rt = 3; rtb = 2; bbar = 1; tlb = 1; apoll = 0; ksl = 0; kgate = 0; psl = 0; dtouch = 1
    outsc = 1; oall = 0; o4 = 0; alias = 0; oa = 0; kt = 0; kl = 0; of2 = 0; kq = 1; zf = 0; nopf = 0; xall = 0; rin = 0; lazy = 3; p2pos = 3; lv1 = 0; lv2 = 0; early = 3; epos = 4
    gop = 1; gown = 0; gow = 0; et = 0; cp0 = 0; CPL = 22; cpf = 1; cpf2 = 24; cpf3 = 26

def gen(o):
    A = Asm2(); e = A.e
    ool = []
    assert not (o.gown and o.bin)
    lay = 0
    o.CPL = min(o.CPL, 5*o.last + 7)
    def E(lst):
        for t in lst: e(t)
    def stamp(name, force=0):
        if not o.stamps: return
        if o.g1prof and name in range(2, 11) and not force: return
        idx = name + 16*lay
        if o.stamps == 2 and name != 11 and idx not in (o.echo_a, o.echo_b): return
        e(f"{'s_memtime' if o.stamps == 3 else 's_memrealtime'} s[{sSTAMP}:{sSTAMP+1}]")
        e("s_waitcnt lgkmcnt(0)")
        e(f"v_writelane_b32 v{vSTAMP}, s{sSTAMP}, {59 if name == 11 else idx}")
    def srt(p, size):
        e(f"s_mov_b32 s8, s{p}"); e(f"s_mov_b32 s9, s{p+1}"); e(f"s_mov_b32 s10, {size}"); e("s_mov_b32 s11, 0x20000")
    def mask64(r, val):
        e(f"s_mov_b32 s{r}, 0x{val & 0xffffffff:08x}"); e(f"s_mov_b32 s{r+1}, 0x{val >> 32:08x}")
    def sm(r): return f"s[{r}:{r+1}]"
    def bc(r): return (v(r & ~1, 2), r & 1)
    def pk_fma(d, x, y, z, negx=False):
        yp, ys = bc(y); zp, zs = bc(z)
        e(f"v_pk_fma_f32 {v(d,2)}, {v(x,2)}, {yp}, {zp} op_sel:[0,{ys},{zs}] op_sel_hi:[1,{ys},{zs}]" + (" neg_lo:[1,0,0] neg_hi:[1,0,0]" if negx else ""))
    def pk_mul(d, x, y):
        yp, ys = bc(y)
        e(f"v_pk_mul_f32 {v(d,2)}, {v(x,2)}, {yp} op_sel:[0,{ys}] op_sel_hi:[1,{ys}]")
    def cvt4l(d, x0, x1):
        return [f"v_cvt_pk_bf16_f32 v{d}, v{x0}, v{x0+1}", f"v_cvt_pk_bf16_f32 v{d+1}, v{x0+2}, v{x0+3}",
                f"v_cvt_pk_bf16_f32 v{d+2}, v{x1}, v{x1+1}", f"v_cvt_pk_bf16_f32 v{d+3}, v{x1+2}, v{x1+3}"]
    def cvt4(d, x0, x1): E(cvt4l(d, x0, x1))
    def wt(t): return t + (" sc1" if t.startswith("buffer_store") else "")
    def st_mode(lines):
        ls, ld = A.new("slow"), A.new("done")
        e(f"s_cmp_lg_u32 s{SMODE}, 0"); e(f"s_cbranch_scc1 {ls}")
        E(lines); A.label(ld)
        def blk():
            A.label(ls); A.fence(); E([wt(t) for t in lines]); e("s_nop 7"); e(f"s_branch {ld}")
        ool.append(blk)
    def spin(body, cond, first=None):
        l, d = A.new("spin"), A.new("spind")
        e(f"s_mov_b32 s{sTMO}, {LIM}")
        if first:
            E(body); E(first); e("s_waitcnt vmcnt(0)"); E(cond); e(f"s_cbranch_vccz {d}")
        A.label(l); E(body); e(f"s_sub_u32 s{sTMO}, s{sTMO}, 1"); e("s_waitcnt vmcnt(0)"); E(cond)
        e(f"s_cbranch_scc1 {d}"); e(f"s_cbranch_vccnz {l}"); A.label(d)
    def retry(body, cond):
        l, d = A.new("rt"), A.new("rtd")
        def blk():
            A.label(l); spin(body, cond); e(f"s_branch {d}")
        ool.append(blk)
        return [f"s_cbranch_vccnz {l}", d + ":"]
    def signal(sreg):
        e("s_mov_b64 exec, 1"); e("s_waitcnt vmcnt(0)")
        st_mode([f"buffer_store_dword v{vVal}, off, {SRD}, s{sreg}"])
        e("s_mov_b64 exec, -1")
    def poll(sreg, val, first=None, mask=None):
        cond = [f"v_cmp_gt_u32 vcc, {val}, v{FBV}"]
        if mask: cond = [f"s_mov_b64 exec, {mask}"] + cond + ["s_mov_b64 exec, -1"]
        spin([f"buffer_load_dword v{FBV}, v{vFP}, {SRD}, s{sreg} offen sc1"], cond, first)
    def handoff(sp, sc, val, mask, emask, pre, first):
        ld = f"buffer_load_dword v{FBV}, v{vFP}, {SRD}, s{sc} offen sc1"
        d = A.new("hd")
        E(pre[:o.epos]); e(ld + " ;@PE"); E(pre[o.epos:])
        e("s_mov_b64 exec, 1"); e("s_waitcnt vmcnt(1)")
        st_mode([f"buffer_store_dword v{vVal}, off, {SRD}, s{sp}"])
        e("s_mov_b64 exec, -1")
        E(first)
        e("WAITV PE"); e(f"s_mov_b64 exec, {sm(emask)}"); e(f"v_cmp_gt_u32 vcc, {val}, v{FBV}"); e("s_mov_b64 exec, -1"); e(f"s_cbranch_vccz {d}")
        A.track = False; poll(sc, val, None, mask); A.track = True
        A.label(d)
    def poll2(sreg): e(f"buffer_load_dword v{FBV}, v{vFP}, {SRD}, s{sreg} offen sc1 ;@P2")
    def poll2chk(sreg, val, mask=None):
        l = A.new("p2")
        e("WAITV P2")
        if mask: e(f"s_mov_b64 exec, {mask}")
        e(f"v_cmp_gt_u32 vcc, {val}, v{FBV}")
        if mask: e("s_mov_b64 exec, -1")
        e(f"s_cbranch_vccnz {l}"); A.label(l + "_r")
        def blk(): A.label(l); poll(sreg, val, None, mask); e(f"s_branch {l}_r")
        ool.append(blk)
    def xreduce(groups):
        for op, q in groups: e(f"v_permlane32_swap_b32 v{q[0]}, v{q[1]}"); e(f"v_permlane32_swap_b32 v{q[2]}, v{q[3]}")
        for op, q in groups: e(f"{op} v{q[0]}, v{q[0]}, v{q[1]}"); e(f"{op} v{q[2]}, v{q[2]}, v{q[3]}")
        for op, q in groups: e(f"v_permlane16_swap_b32 v{q[0]}, v{q[2]}")
        for op, q in groups: e(f"{op} v{q[1]}, v{q[0]}, v{q[2]}"); e(f"{op} v{q[2]}, v{q[0]}, v{q[2]}")
        for op, q in groups: e(f"v_permlane16_swap_b32 v{q[1]}, v{q[2]}")
        for op, q in groups: e(f"v_mov_b32 v{q[0]}, v{q[1]}"); e(f"v_mov_b32 v{q[3]}, v{q[2]}")
        for op, q in groups: e(f"v_permlane32_swap_b32 v{q[0]}, v{q[1]}"); e(f"v_permlane32_swap_b32 v{q[2]}, v{q[3]}")
    def xparts(i):
        t = 160+8*i; g0 = t+4; st = []
        for kk in range(2):
            f = v(RES+8*i+4*kk, 4)
            st += [[f"{MF} {v(g0,4)}, {f}, {f}, {'0' if kk == 0 else v(g0,4)}"],
                   [f"buffer_store_dwordx4 {f}, v{vB+i}, {SRD}, s{sXs} offen offset:{kk*1024}"],
                   [f"{MF} {v(t,4)}, {v(ONES,4)}, {f}, {'0' if kk == 0 else v(t,4)}"]]
        return st, [[f"v_cndmask_b32 v{g0}, v{g0}, v{g0+1}, {sm(mPAR)}", f"v_cndmask_b32 v{g0+2}, v{g0+2}, v{g0+3}, {sm(mPAR)}"],
                    [f"v_cndmask_b32 v{t+1}, v{g0}, v{g0+2}, {sm(mB1)}"],
                    [f"s_mov_b64 exec, {sm(mDIAG)}", f"buffer_store_dwordx2 {v(t,2)}, v{vSTs}, {SRD}, s{sSTs} offen offset:{i*128}", "s_mov_b64 exec, -1"]]
    def xtile(through, blocks=(0, 1)):
        ps = [xparts(i) for i in blocks]
        st = sum((sum(p[0], []) for p in ps), []) + sum((sum(p[1], []) for p in ps), [])
        if through: E([wt(t) for t in st])
        else: st_mode(st)
    def w1_piece(par, stage, i):
        r = []; slot = (stage + 1) % 6
        if i % 4 == 0: r += [f"s_add_u32 m0, s{sLW}, {slot*SLOT + i*1024}", f"s_add_u32 s{sWo}, s{ROTW+stage}, {WS_W1[par] + i*1024}"]
        return r + [f"buffer_load_dwordx4 v{vW1}, {SRD}, s{sWo} offen offset:{(i%4)*1024} lds ;@W{stage}"]
    def w2_piece(par, part, i):
        r = []
        if i % 4 == 0:
            if part < 5:
                lb, sb = ((3+part)*SLOT, 57344 + part*SLOT) if part < 3 else ((part-3)*SLOT, (part-3)*SLOT)
                r += [f"s_add_u32 m0, s{sLW}, {lb + i*1024}", f"s_mov_b32 s{sWo}, {WS_W2[par] + sb + i*1024}"]
            else: r += [f"s_add_u32 m0, s{sL8}, {2*SLOT}", f"s_sub_u32 s{sWo}, {WS_W2[par] + 2*SLOT}, s{sW2l}"]
        return r + [f"buffer_load_dwordx4 v{vW2}, {SRD}, s{sWo} offen offset:{(i%4)*1024} lds"]
    def ldsrd(dst, addr):
        base = {0: vL16, 1: vL64, 2: vL128}[addr >> 16]
        return f"ds_read_b128 {dst}, v{base} offset:{addr & 0xffff}"
    def w1st(R, blk, sa, sb): return f"buffer_store_dwordx4 {R}, v{vW1}, {SRD}, s{sa if blk < 4 else sb} offen offset:{(blk%4)*1024} sc1"
    def csst(C, sreg): return ["s_mov_b32 exec_lo, 0x003f003f", "s_mov_b32 exec_hi, 0x003f003f", f"buffer_store_dwordx4 {C}, v{vOut}, {SRD}, s{sreg} offen sc1", "s_mov_b64 exec, -1"]
    def fb_body(k): return [f"s_mov_b32 s{T1}, {WS_FLAGB + 1024*k}", f"buffer_load_dwordx4 {v(FBV,4)}, v{vL16}, {SRD}, s{T1} offen sc1"]
    fb_cond = [f"v_and_b32 v{FBV}, v{FBV}, v{FBV+1}", f"v_and_b32 v{FBV+2}, v{FBV+2}, v{FBV+3}", f"v_and_b32 v{FBV}, v{FBV}, v{FBV+2}", f"v_cmp_ne_u32 vcc, 1, v{FBV}"]
    def fb_set(k): return ["s_mov_b64 exec, 1", f"buffer_store_dword v{vVal}, off, {SRD}, s{sFBp} offset:{1024*k} sc1", "s_mov_b64 exec, -1"]
    def xw(r, kb, ad=vXW): return f"ds_write2st64_b64 v{ad}, {v(r,2)}, {v(r+2,2)} offset0:{2*kb} offset1:{2*kb+1}"

    A.raw(f"; @launch grid=(256,1,1) block=(256,1,1) lds={LDS_SIZE}")
    A.raw('.amdgcn_target "amdgcn-amd-amdhsa--gfx950"'); A.raw(".text")
    A.raw(f".globl {KNAME}"); A.raw(".p2align 8"); A.raw(f".type {KNAME},@function"); A.label(KNAME)
    if o.stamps: e("s_memrealtime s[86:87]")
    e("s_cmp_ge_u32 s2, 256"); e("s_cbranch_scc1 L_exit")
    e(f"s_getpc_b64 {sm(sPC)}"); A.label("L_pc")
    e(f"s_lshr_b32 s{T0}, s2, 3"); e(f"s_mulk_i32 s{T0}, {o.CPL*128}"); e(f"v_min_u32 v252, {o.CPL-1}, v0"); e(f"v_lshl_add_u32 v252, v252, 7, s{T0}")
    cpv = f"global_load_dword v{vJUNK}, v252, {sm(sPC)}"
    if o.cp0 == 0: e(cpv)
    if o.cp0 == 3: e(f"s_and_b32 s{T1}, s2, 0xf8"); e(f"s_lshl_b32 s{T1}, s{T1}, 4"); e(f"s_add_u32 s{T1}, s{T1}, 256"); e(f"s_load_dword s{sTMO}, {sm(sPC)}, s{T1}")
    e("s_load_dwordx16 s[64:79], s[0:1], 0"); e("s_load_dwordx4 s[80:83], s[0:1], 64")
    if o.force_slow: e(f"s_lshr_b32 s{SGRP}, s2, 5"); e(f"s_and_b32 s{SMEM}, s2, 31")
    else: e(f"s_and_b32 s{SGRP}, s2, 7"); e(f"s_lshr_b32 s{SMEM}, s2, 3")
    VM = 215
    e(f"s_lshl_b32 s{SIDX}, s{SGRP}, 5"); e(f"s_add_u32 s{SIDX}, s{SIDX}, s{SMEM}")
    if o.et:
        e(f"s_lshl_b32 s{T1}, s{SIDX}, 14"); e(f"v_lshl_add_u32 v250, v0, 6, s{T1}")
        if o.et > 1: e(f"s_mul_i32 s{T1}, s{SIDX}, 24576"); e(f"v_mul_u32_u24 v251, 96, v0"); e(f"v_add_u32 v251, s{T1}, v251")
        e("s_waitcnt lgkmcnt(0)")
        if o.et != 3: e(f"global_load_dword v{vJUNK}, v250, {sm(P_AX)}")
        if o.et > 1: e(f"global_load_dword v{vJUNK}, v251, {sm(P_AW1)}")
    e("v_lshrrev_b32 v1, 6, v0"); e("v_and_b32 v254, 63, v0"); e(f"v_readfirstlane_b32 s{SW}, v1")
    e(f"s_lshr_b32 s{SRB}, s{SIDX}, 4"); e(f"s_and_b32 s{SCB}, s{SIDX}, 15")
    e(f"s_mul_i32 s{sLW}, s{SW}, 6144")
    e("v_lshrrev_b32 v203, 3, v254"); e("v_and_b32 v204, 7, v254"); e("v_lshlrev_b32 v204, 4, v204"); e("v_lshl_add_u32 v210, v203, 11, v204")
    e("v_lshrrev_b32 v200, 2, v254"); e("v_and_b32 v201, 3, v254")
    e("v_mul_u32_u24 v202, 6144, v200"); e("v_lshl_add_u32 v202, v201, 4, v202")
    e(f"s_lshl_b32 s{T2}, s{SRB}, 2"); e(f"s_add_u32 s{T2}, s{T2}, s{SW}"); e(f"s_lshl_b32 s{T2}, s{T2}, 16")
    e(f"s_lshl_b32 s{T4}, s{SCB}, 7"); e(f"s_add_u32 s{T3}, s{T2}, s{T4}")
    e(f"s_lshl_b32 s{T6}, s{SGRP}, 2"); e(f"s_add_u32 s{T6}, s{T6}, s{SW}")
    e(f"s_mul_i32 s{T5}, s{T6}, {32*6144}"); e(f"s_lshl_b32 s{T4}, s{SMEM}, 6"); e(f"s_add_u32 s{T5}, s{T5}, s{T4}")
    e(f"v_lshlrev_b32 v{vL16}, 4, v254"); e(f"v_and_b32 v{vG16}, 48, v254"); e(f"v_and_b32 v{VM}, 15, v254")
    e(f"s_lshl_b32 s{T1}, s{SCB}, 11"); e(f"s_add_u32 s{sXs}, s{T1}, {WS_X}")
    e(f"s_mul_i32 s{sAo}, s{SMEM}, 196608"); e(f"s_add_u32 s{sAo}, s{sAo}, s{sLW}"); e(f"s_mul_i32 s{ROTW}, s{SGRP}, {SLOT}")
    e("v_lshlrev_b32 v249, 7, v254")
    e(f"s_lshl_b32 s{T0}, s{SIDX}, 2"); e(f"s_add_u32 s{T0}, s{T0}, s{SW}"); e(f"s_mul_i32 s{sWo}, s{T0}, 6144")
    if o.stamps == 1: e("s_memrealtime s[88:89]")
    e("s_waitcnt lgkmcnt(0)")
    if o.stamps == 1: e("s_memrealtime s[90:91]")
    e(f"s_mov_b32 s4, s{P_WS}"); e(f"s_mov_b32 s5, s{P_WS+1}"); e(f"s_mov_b32 s6, {WS_SIZE}"); e("s_mov_b32 s7, 0x20000")
    if o.cp0 in (2, 4):
        e(f"s_lshl_b32 s{T0}, s{SMEM}, 2"); e(f"s_add_u32 s{T0}, s{T0}, s{SW}"); e(f"s_lshl_b32 s{T0}, s{T0}, 7")
        for j in range((o.CPL + 3)//4 if o.cp0 == 2 else 1):
            e(f"s_load_dword s{sTMO}, {sm(sPC)}, s{T0}"); e(f"s_add_u32 s{T0}, s{T0}, 16384")
    e(f"s_xor_b32 s{T7}, s{SW}, {o.gow}")
    e(f"s_or_b32 s{T0}, s{SMEM}, s{T7}"); e(f"s_cmp_lg_u32 s{T0}, 0"); e("s_cbranch_scc1 L_p0a")
    A.track = False
    for r in range(4): e(f"v_mov_b32 v{204+r}, 0")
    e(f"s_lshl_b32 s{T0}, s{SGRP}, 12")
    for j in range(4): e(f"buffer_store_dwordx4 v[204:207], v{vL16}, {SRD}, s{T0} offen offset:{j*1024} sc1")
    e(f"s_lshl_b32 s{T0}, s{SGRP}, 7"); e(f"s_add_u32 s{T0}, s{T0}, {WS_FLAGB}")
    e("s_mov_b64 exec, 0xff")
    for j in range(2): e(f"buffer_store_dwordx4 v[204:207], v{vL16}, {SRD}, s{T0} offen offset:{j*1024} sc1")
    e("s_mov_b64 exec, -1")
    A.track = True
    A.label("L_p0a")
    n0 = len(A.vq)
    def setgo():
        e(f"s_or_b32 s{T0}, s{SMEM}, s{T7}"); e(f"s_cmp_lg_u32 s{T0}, 0"); e("s_cbranch_scc1 L_p0b")
        A.track = False
        srt(P_DBG, 256); e("v_mov_b32 v204, 1"); e(f"s_lshl_b32 s{T0}, s{SGRP}, {4 if o.dtouch else 5}")
        e(f"s_waitcnt vmcnt({len(A.vq) - n0})")
        e("s_mov_b64 exec, 1"); e(f"buffer_store_dword v204, off, {SRT}, s{T0} sc1"); e("s_mov_b64 exec, -1")
        A.track = True
        A.label("L_p0b")
    if o.gop == 2: setgo()
    def rowtouch(p, few=False):
        srt(p, 0x600000)
        if few: e("s_mov_b32 exec_lo, 0x08080808")
        e("s_mov_b32 exec_hi, 0x0808" if few else "s_mov_b32 exec_hi, 0xffff"); e(f"buffer_load_dword v{vJUNK}, v249, {SRT}, s{sWo} offen"); e("s_mov_b64 exec, -1")
    if o.rt in (1, 3): rowtouch(P_AW1, o.rt == 3)
    srt(P_AX, 0x400000)
    for i in range(4):
        e(f"s_add_u32 m0, s{sLW}, {i*1024}"); e(f"s_add_u32 s{T0}, s{T3}, {i*16384}")
        e(f"buffer_load_dwordx4 v210, {SRT}, s{T0} offen lds ;@x")
    if o.rt == 2: rowtouch(P_AW1)
    if o.stamps == 1: e("s_memrealtime s[92:93]")
    def touch(p, *calc):
        if o.tlb: E(list(calc)); e(f"s_load_dword s{sTMO}, s[{p}:{p+1}], s{T0}")
    if o.dtouch: touch(P_DBG, f"s_movk_i32 s{T0}, 128")
    touch(P_WS, f"s_add_u32 s{T0}, s{T2}, s{sXs}")
    touch(P_WS, f"s_add_u32 s{T0}, s{sAo}, s{ROTW}", f"s_add_u32 s{T0}, s{T0}, {WS_W1[0]}")
    touch(P_WS, f"s_mov_b32 s{T0}, 0x1f0000")
    touch(P_BW1, f"s_mov_b32 s{T0}, s{T5}"); touch(P_AW2, f"s_lshl_b32 s{T0}, s{SRB}, 17"); touch(P_BW2)
    if o.gop == 1: setgo()
    srt(P_PHI, 0x10000)
    e(f"s_add_u32 m0, s{sLW}, 4096"); e(f"s_lshl_b32 s{T0}, s{SMEM}, 11")
    for j in range(2): e(f"buffer_load_dwordx4 v{vL16}, {SRT}, s{T0} offen offset:{j*1024} lds ;@phi")
    def raw1(p, ldsb, tag):
        srt(p, 0x600000)
        for seg in range(3):
            for hf in range(2):
                e(f"s_add_u32 m0, s{sLW}, {ldsb + seg*2048 + hf*1024}"); e(f"s_add_u32 s{T0}, s{T5}, {seg*2048 + hf*16*6144}")
                e(f"buffer_load_dwordx4 v202, {SRT}, s{T0} offen lds ;@{tag}")
    raw1(P_AW1, RAW1A, "ra")
    if o.rtb == 5: rowtouch(P_BW1)
    if o.cp0 in (1, 3): e(cpv)
    if o.gop == 0: setgo()
    e(f"v_lshl_add_u32 v214, v{VM}, 7, v{vG16}"); e(f"v_add_u32 v214, s{sLW}, v214")
    e(f"v_add_u32 v{vB}, s{T2}, v{vL16}"); e(f"v_add_u32 v{vB+1}, 0x8000, v{vB}")
    e(f"s_lshr_b32 s{T2}, s{T2}, 8"); e(f"v_lshl_add_u32 v{vSTs}, v{VM}, 3, s{T2}")
    e(f"s_lshl_b32 s{T0}, s{SCB}, 14"); e(f"s_add_u32 s{sSTs}, s{T0}, {WS_ST}")
    mask64(mPAR, 0xAAAAAAAAAAAAAAAA); mask64(mB1, 0xCCCCCCCCCCCCCCCC); mask64(mDIAG, 0xF0000F0000F0000F)
    for r in range(4): e(f"v_mov_b32 v{ONES+r}, 0x3f803f80")
    if o.stamps:
        e(f"v_mov_b32 v{vSTAMP}, 0"); e(f"v_writelane_b32 v{vSTAMP}, s86, 12"); e(f"v_writelane_b32 v{vSTAMP}, s{sPC}, 63")
    stamp(28)
    if o.stamps == 1:
        for j in range(3): e(f"v_writelane_b32 v{vSTAMP}, s{88+2*j}, {60+j}")
    e("WAITV x")
    for i in range(2):
        for kk in range(2): e(f"ds_read_b128 {v(RES+8*i+4*kk,4)}, v214 offset:{i*2048 + kk*64}")
    e(f"v_add_u32 v{vW1}, s{sAo}, v{vL16}"); e(f"v_add_u32 v{vLW}, s{sLW}, v{vL16}")
    e("v_and_b32 v209, 3, v200"); e(f"v_lshrrev_b32 v203, 1, v{vG16}"); e("v_add_u32 v209, v209, v203")
    e("v_lshlrev_b32 v203, 6, v209"); e("v_lshl_add_u32 v205, v201, 3, v203"); e(f"v_add_u32 v205, s{sLW}, v205")
    e("v_lshl_add_u32 v206, v201, 4, v203"); e(f"s_add_u32 s{T1}, s{sLW}, {RAW1A}"); e(f"v_add_u32 v206, s{T1}, v206")
    e(f"v_lshrrev_b32 v203, 2, v{VM}"); e("v_lshl_add_u32 v203, v203, 3, v201"); e(f"v_lshl_add_u32 v203, v203, 6, v{vG16}"); e(f"v_add_u32 v208, s{T1}, v203")
    e(f"v_lshl_add_u32 v{vOut}, v{VM}, 11, v{vG16}")
    e("s_waitcnt lgkmcnt(0)")
    stamp(29)
    if o.cp0 == 4: e(cpv)
    if o.rtb == 1: rowtouch(P_BW1)
    xtile(True)
    if o.rtb == 2: rowtouch(P_BW1)
    if o.w2t:
        e(f"s_lshl_b32 s{T0}, s{SIDX}, 2"); e(f"s_add_u32 s{T0}, s{T0}, s{SW}"); e(f"s_lshl_b32 s{T0}, s{T0}, 11"); e("s_mov_b64 exec, 0xffff")
        for p in (P_BW2, P_AW2)[:o.w2t]:
            srt(p, 0x200000); e(f"buffer_load_dword v{vJUNK}, v249, {SRT}, s{T0} offen")
        e("s_mov_b64 exec, -1")
    for blk in range(6):
        mask64(T1, 0x0001000100010001 << blk)
        for r in range(4): e(f"v_cndmask_b32 v{96+4*blk+r}, 0, v{ONES}, {sm(T1)}")
    e(f"s_add_u32 s{T2}, s{ROTW}, {WS_W1[0]}"); e(f"s_add_u32 s{T4}, s{T2}, 4096")
    e(f"s_lshl_b32 s{T0}, s{T6}, 6"); e(f"s_mul_i32 s{T1}, s{SMEM}, 12288"); e(f"s_add_u32 s{T0}, s{T0}, s{T1}"); e(f"s_add_u32 s{sCL0}, s{T0}, {WS_CS}")
    e("WAITV phi")
    for fb in range(2):
        for t in range(2): e(f"ds_read_b64_tr_b16 {v(PHI+4*fb+2*t,2)}, v205 offset:{4096 + fb*32 + t*256}")
    e("WAITV ra")
    if o.rtb == 6: rowtouch(P_BW1)
    stamp(13)
    RA, RB = RS(0, 0), RS(1, 0)
    for seg in range(2):
        for kb in range(2): e(f"ds_read_b128 {v(120+8*seg+4*kb,4)}, v208 offset:{seg*2048 + kb*256} ;@s{seg}")
    for blk in (4, 5):
        for t in range(2): e(f"ds_read_b64_tr_b16 {a(RA+4*blk+2*t,2)}, v206 offset:{4096 + t*256 + (blk&1)*8}")
    for seg in range(2):
        e(f"WAITL s{seg}")
        for fb in range(2):
            for kb in range(2): e(f"{MF} {v(160+16*seg+8*fb+4*kb,4)}, {v(120+8*seg+4*kb,4)}, {v(PHI+4*fb,4)}, 0")
    e("s_waitcnt lgkmcnt(0)")
    for blk in (4, 5):
        e(w1st(a(RA+4*blk,4), blk, T2, T4))
        e(f"{MF} v[64:67], {a(RA+4*blk,4)}, {v(96+4*blk,4)}, {'0' if blk == 4 else 'v[64:67]'}")
    for blk in range(4):
        cvt4(136+4*blk, 160+8*blk, 164+8*blk)
        e(w1st(v(136+4*blk,4), blk, T2, T4))
        e(f"{MF} v[64:67], {v(136+4*blk,4)}, {v(96+4*blk,4)}, v[64:67]")
    for r in range(16): e(f"v_accvgpr_write_b32 a{RA+r}, v{136+r}")
    E(csst(v(64,4), sCL0))
    srt(P_DBG, 256)
    e("v_and_b32 v253, 7, v254"); e(f"v_lshlrev_b32 v253, {4 if o.dtouch else 5}, v253"); e(f"s_cmp_eq_u32 s{SW}, 0"); e(f"s_cselect_b32 s{T0}, 0, {OOR}")
    e(f"buffer_load_dword v212, v253, {SRT}, s{T0} offen sc1 ;@go")
    if o.bbar: e("s_barrier")
    if o.rtb == 3: rowtouch(P_BW1)
    e(f"s_lshl_b32 s{T0}, s{SRB}, 1"); e(f"s_and_b32 s{T3}, s{SW}, 1"); e(f"s_add_u32 s{T0}, s{T0}, s{T3}")
    e(f"s_lshl_b32 s{T1}, s{SCB}, 1"); e(f"s_lshr_b32 s{T4}, s{SW}, 1"); e(f"s_add_u32 s{T1}, s{T1}, s{T4}"); e(f"s_lshl_b32 s{T1}, s{T1}, 6")
    e(f"s_lshl_b32 s{sW2s}, s{T0}, 12"); e(f"s_lshl_b32 s{T0}, s{T0}, 16"); e(f"s_add_u32 s{T0}, s{T0}, s{T1}"); e(f"s_add_u32 s{T1}, s{T0}, 0x8000")
    e("v_lshlrev_b32 v203, 11, v200"); e("v_lshl_add_u32 v207, v201, 4, v203")
    e(f"s_mov_b32 s{D1}, s{T0}"); e(f"s_mov_b32 s{D2}, s{T1}")
    def raw2(wt_):
        srt((P_AW2, P_BW2)[wt_], 0x200000)
        for i in range(2):
            e(f"s_add_u32 m0, s{sLW}, {RAW2 + wt_*2048 + i*1024}")
            e(f"buffer_load_dwordx4 v207, {SRT}, s{D1 + i} offen lds ;@r2{wt_}")
    for wt_ in range(o.w2e): raw2(wt_)
    for blk in range(6): e(f"ds_write_b128 v{vLW}, {a(RA+4*blk,4)} offset:{SLOT + blk*1024}")
    stamp(30)
    e(f"s_getreg_b32 s{SXCC}, hwreg(HW_REG_XCC_ID, 0, 4)"); e(f"s_or_b32 s{SXCC}, s{SXCC}, 0x100")
    e(f"v_mov_b32 v{vVal}, s{SXCC}")
    e(f"s_lshl_b32 s{T0}, s{T4}, 11"); e(f"s_add_u32 s{sW2s}, s{sW2s}, s{T0}"); e(f"s_lshl_b32 s{T0}, s{SCB}, 17")
    e(f"s_add_u32 s{sW2s}, s{sW2s}, s{T0}"); e(f"s_add_u32 s{sW2s}, s{sW2s}, {WS_W2[0]}")
    e(f"s_lshl_b32 s{T1}, s{SMEM}, 15"); e(f"s_lshl_b32 s{T2}, s{SW}, 10"); e(f"s_add_u32 s{T1}, s{T1}, s{T2}"); e(f"s_add_u32 s{sKV}, s{T1}, {WS_KVP - WS_X + (1<<32)}")
    e(f"s_lshr_b32 s{T1}, s{T1}, 4"); e(f"s_add_u32 s{sZP}, s{T1}, {WS_ZP}")
    for s_ in range(8):
        e(f"s_add_u32 s{T1}, s{SGRP}, {s_}"); e(f"s_and_b32 s{T1}, s{T1}, 7")
        e(f"s_mul_i32 s{ROTW+s_}, s{T1}, {SLOT}"); e(f"s_lshl_b32 s{T1}, s{T1}, 12"); e(f"s_add_u32 s{ROTA+s_}, s{T1}, {WS_X}")
    e(f"s_lshl_b32 s{T1}, s{SIDX}, 11"); e(f"s_add_u32 s{sHALO}, s{T1}, {WS_HALO}")
    e(f"s_lshl_b32 s{T1}, s{SMEM}, 10"); e(f"s_add_u32 s{sO}, s{T1}, {WS_X if o.alias else WS_O}")
    touch(P_WS, f"s_mov_b32 s{T0}, s{sW2s}")
    touch(P_WS, f"s_add_u32 s{T0}, s{sKV}, s{ROTA}")
    touch(P_WS, f"s_add_u32 s{T0}, s{sW2s}, {WS_W2[1] - WS_W2[0]}")
    touch(P_WS, f"s_add_u32 s{T0}, s{sAo}, s{ROTW}", f"s_add_u32 s{T0}, s{T0}, {WS_W1[1]}")
    touch(P_WS, f"s_mov_b32 s{T0}, s{sHALO}")
    touch(P_WS, f"s_lshl_b32 s{T0}, s{T6}, 17", f"s_add_u32 s{T0}, s{T0}, s{sO}")
    touch(P_OUT, f"s_lshl_b32 s{T0}, s{SRB}, 18", f"s_lshl_b32 s{T1}, s{SCB}, 7", f"s_add_u32 s{T0}, s{T0}, s{T1}")
    e(f"s_lshl_b32 s{T0}, s{SGRP}, 5"); e(f"v_add_u32 v203, s{T0}, v254")
    e("v_and_b32 v204, 7, v254"); e(f"v_lshl_add_u32 v204, v204, 5, s{SMEM}")
    mask64(T1, 0x00000000FFFFFFFF); e(f"v_cndmask_b32 v211, v204, v203, {sm(T1)}"); e("v_lshlrev_b32 v211, 7, v211")
    e(f"s_cmp_eq_u32 s{SW}, 0"); e(f"s_cselect_b32 s{T0}, 1, 0")
    e("WAITV go")
    stamp(31)
    gm = ([f"s_lshl_b64 exec, 1, s{SGRP}"], ["s_mov_b64 exec, -1"]) if o.gown else ([], [])
    E(gm[0]); e(f"v_cmp_ne_u32 vcc, s{T0}, v212"); E(gm[1]); e("s_cbranch_vccnz L_goslow")
    A.label("L_gook")
    def goslow():
        A.label("L_goslow"); srt(P_DBG, 256); e("s_waitcnt lgkmcnt(0)")
        E(gm[0]); spin([f"buffer_load_dword v212, v253, {SRT}, 0 offen sc1"], ["v_cmp_ne_u32 vcc, 1, v212"]); E(gm[1]); e("s_branch L_gook")
    ool.append(goslow)
    e(f"s_lshl_b32 s{T0}, s{SIDX}, 7"); e(f"s_cmp_eq_u32 s{SW}, 0"); e(f"s_cselect_b32 s{T0}, s{T0}, {OOR}")
    e("s_barrier")
    e("s_mov_b64 exec, 1"); e(f"buffer_{'atomic_or' if o.apoll else 'store_dword'} v{vVal}, off, {SRD}, s{T0} sc1"); e("s_mov_b64 exec, -1")
    stamp(14)
    for wt_ in range(o.w2e, 2): raw2(wt_)
    if o.rtb == 4: rowtouch(P_BW1)
    if not o.bin: raw1(P_BW1, RAW1B, "rb")
    else: srt(P_BW1, 0x600000)
    e(f"s_cmp_eq_u32 s{SW}, 0"); e(f"s_cselect_b32 s{T7}, 0, {OOR}")
    if o.gown: srt(P_DBG, 256); e(f"buffer_load_dword v250, v253, {SRT}, s{T7} offen sc1 ;@go2")
    mask64(mM0, 0x0001000100010001)
    mask64(mOWN0, sum(1 << l for l in range(64) if 4*(l >> 4) + (l & 1) <= (l & 15)))
    mask64(mOWN1, sum(1 << l for l in range(64) if 4*(l >> 4) + 2 + (l & 1) <= (l & 15)))
    e(f"s_lshl_b32 s{T1}, s{T6}, 7"); e(f"s_add_u32 s{sFXc}, s{T1}, {WS_FLAGX}")
    e(f"s_lshl_b32 s{T2}, s{SMEM}, 2"); e(f"s_add_u32 s{T1}, s{T1}, s{T2}"); e(f"s_add_u32 s{sFOp}, s{T1}, {WS_FLAGO}")
    e(f"s_lshl_b32 s{T1}, s{SRB}, 1"); e(f"s_add_u32 s{T1}, s{T1}, s{T4}"); e(f"s_lshl_b32 s{T1}, s{T1}, 7")
    e(f"s_add_u32 s{sFOc}, s{T1}, {WS_FLAGO}")
    e(f"s_lshl_b32 s{T2}, s{SCB}, 3"); e(f"s_lshl_b32 s{T0}, s{T3}, 2")
    e(f"s_add_u32 s{T1}, s{T1}, s{T2}"); e(f"s_add_u32 s{T1}, s{T1}, s{T0}"); e(f"s_add_u32 s{sFXp}, s{T1}, {WS_FLAGX}")
    e(f"s_lshl_b32 s{T0}, s{SGRP}, 8"); e(f"s_add_u32 s{sZo}, s{T0}, s{sZP}")
    e(f"s_lshl_b32 s{T1}, s{T3}, 10"); e(f"s_lshl_b32 s{T2}, s{T4}, 19")
    e(f"s_add_u32 s{T1}, s{T1}, s{T2}"); e(f"s_add_u32 s{sCL2}, s{T1}, s{sHALO}")
    e(f"s_lshl_b32 s{T1}, s{SIDX}, 2"); e(f"s_add_u32 s{T1}, s{T1}, {WS_FLAGB}"); e(f"s_cmp_eq_u32 s{SW}, 0"); e(f"s_cselect_b32 s{sFBp}, s{T1}, {OOR}")
    e(f"s_cmp_eq_u32 s{SW}, 3"); e(f"s_cselect_b32 s{sHst}, s{sHALO}, {OOR}")
    e(f"s_sub_u32 s{T1}, s{sHALO}, 0x10000"); e(f"s_cmp_eq_u32 s{SW}, 0"); e(f"s_cselect_b32 s{T1}, s{T1}, {OOR}")
    e(f"s_cmp_eq_u32 s{SGRP}, 0"); e(f"s_cselect_b32 s{sHld}, {OOR}, s{T1}")
    e(f"s_lshl_b32 s{T0}, s{SGRP}, 2"); e(f"s_lshl_b32 s{mX}, 15, s{T0}"); e(f"s_mov_b32 s{mX+1}, 0")
    e(f"s_sub_u32 s{T0}, s{sFOp}, s{sFOc}"); e(f"s_lshr_b32 s{T1}, s{T0}, 2"); e(f"s_lshl_b32 s{T1}, 1, s{T1}"); e(f"s_cmp_lt_u32 s{T0}, 128"); e(f"s_cselect_b32 s{T1}, s{T1}, 0")
    e(f"s_andn2_b32 s{mEO}, {(1 << (o.g2depth - 1)) - 1 if o.lazy & 2 else -1}, s{T1}"); e(f"s_mov_b32 s{mEO+1}, 0")
    e(f"s_sub_u32 s{T0}, s{sFXp}, s{sFXc}"); e(f"s_lshr_b32 s{T1}, s{T0}, 2"); e(f"s_lshl_b32 s{T1}, 1, s{T1}"); e(f"s_cmp_lt_u32 s{T0}, 128"); e(f"s_cselect_b32 s{T1}, s{T1}, 0")
    e(f"s_andn2_b32 s{mEX}, {'s%d' % mX if o.lazy & 1 else -1}, s{T1}"); e(f"s_mov_b32 s{mEX+1}, 0")
    e(f"s_lshl_b32 s{sL8}, s{SW}, 11"); e(f"s_lshl_b32 s{sW2l}, s{SW}, 12")
    e(f"s_or_b32 s{T0}, s{SGRP}, s{SW}"); e(f"s_cmp_eq_u32 s{T0}, 0"); e(f"s_cselect_b64 {sm(mFIRST)}, -1, 0")
    e(f"v_add_u32 v{vL64}, 0x10000, v{vL16}"); e(f"v_add_u32 v{vL128}, 0x20000, v{vL16}"); e(f"v_add_u32 v{vLW3}, {(3-o.nopf)*SLOT}, v{vLW}")
    e(f"v_and_b32 v{vFP}, 31, v254"); e(f"v_lshlrev_b32 v{vFP}, 2, v{vFP}")
    e(f"s_lshl_b32 s{T1}, s{T6}, 17"); e(f"v_add_u32 v{vA}, s{T1}, v{vL16}")
    for i in range(1, 4): e(f"v_add_u32 v{vA+i}, {i*0x8000}, v{vA}")
    e(f"s_lshl_b32 s{T1}, s{T6}, 9"); e("v_lshrrev_b32 v213, 5, v254"); e(f"v_lshl_add_u32 v{vSTl}, v213, 17, s{T1}"); e(f"v_lshl_add_u32 v{vSTl}, v{vFP}, 2, v{vSTl}")
    e(f"s_lshl_b32 s{T1}, s{SCB}, 17"); e(f"s_add_u32 s{T1}, s{T1}, s{sLW}"); e(f"v_add_u32 v{vW2}, s{T1}, v{vL16}")
    e("v_lshrrev_b32 v203, 4, v254"); e("v_xor_b32 v204, v203, v201"); e("v_lshlrev_b32 v204, 3, v204"); e("v_lshl_add_u32 v208, v200, 5, v204")
    e(f"s_lshl_b32 s{T2}, s{SW}, 12")
    e(f"v_lshrrev_b32 v204, 2, v{VM}"); e("v_xor_b32 v203, v203, v204"); e("v_lshlrev_b32 v203, 3, v203")
    e(f"v_lshl_add_u32 v203, v{VM}, 5, v203"); e(f"v_add_u32 v{vXW}, s{T2}, v203")
    e(f"s_lshl_b32 s{T0}, s{T4}, 14"); e(f"s_lshl_b32 s{T1}, s{T3}, 9"); e(f"s_add_u32 s{T2}, s{T0}, s{T1}"); e(f"v_add_u32 v{vE0}, s{T2}, v208")
    e(f"v_xor_b32 v{vE1}, 512, v{vE0}"); e(f"s_add_u32 s{T1}, s{T1}, {VB_LDS}"); e(f"v_add_u32 v{vVr}, s{T1}, v208")
    if o.kt:
        e(f"s_lshl_b32 s{T0}, s{SW}, 12"); e(f"v_add_u32 v{vXW}, s{T0}, v{vL16}")
        e(f"s_lshl_b32 s{T0}, s{SW}, 10"); e(f"s_add_u32 s{T0}, s{T0}, {VB_LDS}"); e(f"v_add_u32 v{vE0}, s{T0}, v{vL16}")
        e(f"s_lshl_b32 s{T0}, s{SW}, 8"); e(f"s_add_u32 s{T0}, s{T0}, {M_ZX}"); e(f"v_lshl_add_u32 v203, v201, 6, v{vG16}"); e(f"v_add_u32 v{vE1}, s{T0}, v203")
        e(f"s_lshl_b32 s{T0}, s{SW}, 6"); e(f"s_add_u32 s{T0}, s{T0}, {M_ZX}"); e(f"v_lshl_add_u32 v203, v201, 8, v{vG16}"); e(f"v_add_u32 v{vVr}, s{T0}, v203")
    e(f"s_lshl_b32 s{T1}, s{T3}, 3")
    e(f"v_add_u32 v{vGM}, {M}, v{vG16}")
    e(f"s_lshl_b32 s{T0}, s{T4}, 6"); e(f"s_add_u32 s{T0}, s{T0}, s{T1}"); e(f"v_add_u32 v{vZW}, s{T0}, v{vGM}")
    e(f"s_lshl_b32 s{T0}, s{SW}, 10"); e(f"s_add_u32 s{T0}, s{T0}, {M_KX}"); e(f"v_add_u32 v{vKX}, s{T0}, v{vL16}")
    e(f"v_add_u32 v{vKX0}, s{T1}, v{vKX}"); e(f"v_xor_b32 v{vKX1}, 8, v{vKX0}")
    e(f"s_lshl_b32 s{T0}, s{SW}, 9"); e(f"s_add_u32 s{T0}, s{T0}, {M_ST}")
    e(f"v_lshl_add_u32 v203, v213, 2, s{T0}"); e(f"v_lshl_add_u32 v{vSW}, v{vFP}, 1, v203"); e(f"v_lshl_add_u32 v{vSR}, v{VM}, 2, s{T0}")
    e(f"v_add_u32 v{vSQ}, s{T0}, v{vG16}"); e(f"v_lshlrev_b32 v203, 2, v{VM}"); e(f"v_add_u32 v{vCV}, {M_CS}, v203")
    e(f"v_and_b32 v203, 7, v{VM}"); e(f"v_lshl_add_u32 v{vZL}, v203, 8, v{vG16}")
    e("v_mov_b32 v203, 0xffff"); e("v_mov_b32 v204, 0xffff0000"); e(f"v_cndmask_b32 v203, v203, v204, {sm(mPAR)}")
    e(f"v_cndmask_b32 v{MO0}, 0, v203, {sm(mOWN0)}"); e(f"v_cndmask_b32 v{MO1}, 0, v203, {sm(mOWN1)}")
    e(f"v_xor_b32 v{MP0}, v203, v{MO0}"); e(f"v_xor_b32 v{MP1}, v203, v{MO1}")
    e(f"s_add_u32 s{T2}, s{SW}, 4"); e(f"s_min_u32 s{T2}, s{T2}, 5"); e(f"s_mul_i32 s{T0}, s{SMEM}, 12288"); e(f"s_add_u32 s{T0}, s{T0}, {WS_CS}")
    e(f"s_lshl_b32 s{T1}, s{SW}, 11"); e(f"s_add_u32 s{sCSa}, s{T0}, s{T1}"); e(f"s_lshl_b32 s{T1}, s{T2}, 11"); e(f"s_add_u32 s{sCSb}, s{T0}, s{T1}")
    e("v_bfe_u32 v203, v254, 4, 1"); e("v_lshlrev_b32 v203, 3, v203"); e("v_lshl_add_u32 v203, v213, 2, v203"); e("v_lshl_add_u32 v203, v201, 4, v203"); e(f"v_add_u32 v203, {M_CS}, v203")
    e(f"s_lshl_b32 s{T1}, s{SW}, 6"); e(f"v_add_u32 v{vCSa}, s{T1}, v203"); e(f"s_lshl_b32 s{T1}, s{T2}, 6"); e(f"v_add_u32 v{vCSb}, s{T1}, v203")
    e(f"s_lshl_b32 s{T0}, s{SMEM}, 2"); e(f"s_add_u32 s{T0}, s{T0}, s{SW}"); e(f"s_lshl_b32 s{T2}, s{T0}, 7"); e(f"v_mov_b32 v{vCPF}, s{T2}")
    e(f"s_lshr_b32 s{T1}, s{T0}, 3"); e(f"s_and_b32 s{T0}, s{T0}, 7")
    e(f"s_lshl_b32 s{T2}, s{SGRP}, 4"); e(f"s_add_u32 s{T1}, s{T1}, s{T2}"); e(f"s_lshl_b32 s{T1}, s{T1}, 15"); e(f"s_lshl_b32 s{T0}, s{T0}, 9"); e(f"s_add_u32 s{T0}, s{T0}, s{T1}")
    e(f"v_lshl_add_u32 v{vTCH}, v{vG16}, 3, s{T0}")
    for r in range(4): e(f"v_accvgpr_write_b32 a{252+r}, -1")
    e(f"v_mov_b32 v{vVal}, 0"); e(f"s_add_u32 s{T0}, s{sKV}, s{ROTA}")
    e(f"buffer_store_dwordx4 a[252:255], v{vL16}, {SRD}, s{T0} offen sc1")
    e(f"s_mov_b64 exec, {sm(mM0)}"); e(f"buffer_store_dwordx4 a[252:255], v{vG16}, {SRD}, s{sZo} offen sc1")
    e("s_mov_b64 exec, 1"); e(f"buffer_store_dword v{vVal}, off, {SRD}, s{sFOp} sc1"); e(f"buffer_store_dword v{vVal}, off, {SRD}, s{sFXp} sc1"); e("s_mov_b64 exec, -1")
    pl = [f"buffer_load_dword v212, v211, {SRD}, s{T7} offen sc1"]
    if o.apoll: pl = ["v_mov_b32 v212, -1", "s_mov_b32 exec_hi, 0xff", "v_mov_b32 v212, 0", f"buffer_atomic_or v212, v211, {SRD}, s{T7} offen sc0 sc1", "s_mov_b64 exec, -1"]
    def w2tr(wt_):
        e(f"WAITV r2{wt_}")
        for b_ in range(2):
            for t in range(2):
                d_ = v(224+4*b_+2*t, 2) if wt_ == 0 else a(HW2+4*b_+2*t, 2)
                e(f"ds_read_b64_tr_b16 {d_}, v206 offset:{2*SLOT + wt_*2048 + t*256 + b_*8}")
    def w2ast():
        e("s_waitcnt lgkmcnt(0)")
        for b_ in range(2): e(f"buffer_store_dwordx4 {v(224+4*b_,4)}, v{vL16}, {SRD}, s{sW2s} offen offset:{b_*1024} sc1 ;@b1")
    if o.bin:
        w2tr(0); w2ast()
        e("v_mov_b32 v248, v202"); e(f"v_subrev_u32 v249, {RAW1A}, v206")
        stamp(44)
        E([t + (" ;@poll" if t.startswith("buffer") else "") for t in pl])
        w2tr(1); e("s_waitcnt lgkmcnt(0)")
    else:
        e("WAITV rb")
        if o.gown:
            e(f"s_cmp_eq_u32 s{SW}, 0"); e(f"s_cselect_b32 s{T0}, 1, 0"); e("WAITV go2"); e("s_waitcnt lgkmcnt(0)"); e(f"v_cmp_ne_u32 vcc, s{T0}, v250")
            E(retry([f"buffer_load_dword v250, v253, {SRT}, 0 offen sc1"], ["v_cmp_ne_u32 vcc, 1, v250"]))
        stamp(44)
        E([t + (" ;@poll" if t.startswith("buffer") else "") for t in pl])
        w2tr(0); w2tr(1); w2ast()
        for blk in range(6):
            for t in range(2): e(f"ds_read_b64_tr_b16 {a(RB+4*blk+2*t,2)}, v206 offset:{SLOT + (blk>>1)*2048 + t*256 + (blk&1)*8} ;@r{blk}")
        for blk in range(6):
            e(f"WAITL r{blk}")
            e(f"{MF} {a(HCS,4)}, {a(RB+4*blk,4)}, {v(96+4*blk,4)}, {'0' if blk == 0 else a(HCS,4)}")
    e(f"v_mov_b32 v{vVal}, 1")
    stamp(45)
    e("WAITV poll")
    e(f"s_cmp_lg_u32 s{SW}, 0"); e("s_cbranch_scc1 L_faok")
    A.track = False
    e("v_cmp_eq_u32 vcc, 0, v212"); e("s_cbranch_vccz L_fad")
    spin(([f"s_sleep {o.psl}"] if o.psl else []) + pl, ["v_cmp_eq_u32 vcc, 0, v212"])
    A.label("L_fad")
    e(f"v_cmp_ne_u32 {sm(T1)}, s{SXCC}, v212"); e(f"v_mov_b32 v212, s{T1}")
    e(f"ds_write_b32 v{vGM}, v212"); e("s_waitcnt lgkmcnt(0)")
    A.track = True
    A.label("L_faok")
    e("s_barrier")
    stamp(15)
    e(f"ds_read_b32 v{FBV}, v{vGM} ;@mode")

    for lay in range(o.last + 1):
        par = lay & 1; early = lay < 2; li = lay >> 1; last = lay == o.last
        A.label(f"L_layer{lay}")
        stamp(0)
        pool = list(range(RING, 240 - 48*o.NRES, 4))
        if lay == 0: pool += [RS(1, k) + 4*j for k in range(1, o.NRES + 1) for j in range(6)]
        if lay >= 2: pool += [RS(0, k) + 4*j for k in range(o.NRES + 1) for j in range(6)]
        nd = (o.ND0, 0, o.ND2, 0)[lay]; TB = o.TB if par else 0
        LAF = 4*(o.LA0, o.LAB, o.LA2, o.LA3)[lay]; NF = max(4*nd, LAF + 4)
        assert NF + 2*nd <= len(pool)
        gpos = o.gpos if lay == 0 else o.gpos2
        vn = par or o.kt
        units = [(st, (0, 1, 2, 3), list(range(2 if st >= 32 - nd else 0, 6))) for st in range(32 - TB)]
        units += [(st, bl, list(range(6))) for bl in ((2, 3), (0, 1)) for st in range(32 - TB, 32)]
        anext = [(u, st, i) for u, (st, bl, _) in enumerate(units) for i in bl]
        fidx = {(st, i): n for n, (u, st, i) in enumerate(anext)}
        def afr(step, i): return a(pool[fidx[(step, i)] % NF], 4)
        def wdst(step, c):
            if c < 2 and step >= 32 - nd: return a(pool[NF + 2*(step - (32-nd)) + c], 4)
            return v(WFV + 4*c, 4)
        def w1rd(u, c):
            step = units[u][0]
            return ldsrd(wdst(step, c), ((step//4 + 1) % 6)*SLOT + (step % 4)*6144 + c*1024) + f" ;@w{u}_{c}"
        def aload(u, step, i):
            return f"buffer_load_dwordx4 {afr(step, i)}, v{vA+i}, {SRD}, s{ROTA + step//4} offen offset:{(step%4)*1024} sc1 ;@A{u}"
        def mma(step, c, i):
            x, y = (afr(step, i), wdst(step, c)) if (vn and c >= 4) else (wdst(step, c), afr(step, i))
            return f"{MF} {v(acc(c,i),4)}, {x}, {y}, {'0' if step == 0 else v(acc(c,i),4)}"
        def ostore(i, through):
            t = f"buffer_store_dwordx4 {v(224+4*i,4)}, v{vA+i}, {SRD}, s{sO} offen"
            if through: e(wt(t))
            else: st_mode([t])
        if lay == 0:
            for c in range(6): e(w1rd(0, c))
        for j in range(4*o.APRE): e(aload(*anext.pop(0)))
        nbar = 0
        if lay == 0:
            for i in range(6): E(w1_piece(par, 1, i))
            e("WAITL mode"); e(f"v_readfirstlane_b32 s{SMODE}, v{FBV}")
        else:
            if o.lazy & 1: poll2(sFXc)
            e("s_waitcnt lgkmcnt(0)"); e("s_barrier")
            for c in range(6): e(w1rd(0, c))
        wr, w1s, w2r, w2s = (o.wrE, o.w1sE, o.w2E, o.w2sE) if early else (o.wrL, o.w1sL, o.w2L, o.w2sL)
        if par: w2r, w2s = (o.w2BE, o.w2sBE) if early else (o.w2BL, o.w2sBL)
        if lay == 3: wr = o.wrBL
        if lay == 0: wr, w1s = o.wr0, o.w1s0
        pend = [("W", st, i) for st in range(2 if early else 2 + o.NRES - o.nopf, 8) for i in range(6)] + [("W2", p, i) for p in range(4 + par) for i in range(6)]
        def allowed(p, t):
            if p[0] == "W" and p[1] == 5 and lay == 0 and o.bin and not ready("r5"): return False
            if p[0] == "W": return p[1] < 6 or nbar >= p[1] - 4
            return nbar >= p[1] + 4 and t >= w2s and (lay > 0 or fbdone[0])
        fbdone = [False]
        misc = [(max(o.s0 + o.sper*j, o.lazy & 1), [f"s_mov_b32 s{T0}, {WS_ST + j*16384}", f"buffer_load_dwordx4 {v(160+4*j,4)}, v{vSTl}, {SRD}, s{T0} offen sc1 ;@S{j}"]) for j in range(8)]
        extra = []
        extra2 = []; sh2 = []
        sh = []
        if early:
            for j in range(4):
                extra.append((4 + j, [f"buffer_load_dwordx4 {v(224+8*(j//2)+4*(j%2),4)}, v{vL16}, {SRD}, s{(sCSa, sCSb)[j%2]} offen offset:{(j//2)*1024} sc1 ;@CS{j}"]))
            d = 224
            r = [f"v_add_f32 v{d+j}, v{d+j}, v{d+8+j}" for j in range(8)]
            for s_ in (8, 4): r += [f"v_add_f32_dpp v{d+j}, v{d+j}, v{d+j} row_ror:{s_} row_mask:0xf bank_mask:0xf" for j in range(8)]
            r = [r[j:j+2] for j in range(0, len(r), 2)] + [[f"v_permlane32_swap_b32 v{d+j}, v{d+j+1}"] for j in range(0, 8, 2)]
            r += [[f"v_add_f32 v{d+j}, v{d+j}, v{d+j+1}", f"v_add_f32 v{d+j+2}, v{d+j+2}, v{d+j+3}"] for j in (0, 4)]
            r += [[f"v_permlane16_swap_b32 v{d}, v{d+2}"], [f"v_permlane16_swap_b32 v{d+4}, v{d+6}"], [f"v_add_f32 v{d}, v{d}, v{d+2}", f"v_add_f32 v{d+4}, v{d+4}, v{d+6}"],
                  ["s_mov_b32 exec_lo, 0x000f000f", "s_mov_b32 exec_hi, 0x000f000f", f"ds_write_b32 v{vCSa}, v{d} offset:{par*384}", f"ds_write_b32 v{vCSb}, v{d+4} offset:{par*384} ;@csw",
                   "s_mov_b64 exec, -1"], [f"s_add_u32 s{sCSa}, s{sCSa}, {CS_SZ}", f"s_add_u32 s{sCSb}, s{sCSb}, {CS_SZ}"]]
            caps = [[(8 + 4*k - 4*o.nopf, None, [f"ds_read_b128 {a(RS(par, k+1)+4*b_,4)}, v{vLW3} offset:{k*SLOT + b_*1024}"]) for b_ in range(6)] for k in range(o.NRES)]
            sh += (caps[0] if caps else []) + [(8, "CS3", x) for x in r] + sum(caps[1:], [])
        if lay == 0 and o.bin:
            rbl = [[f"s_mov_b32 s{T2}, m0", f"s_add_u32 m0, s{sLW}, {j*1024}", f"s_add_u32 s{T1}, s{T5}, {(j>>1)*2048 + (j&1)*16*6144}",
                    f"buffer_load_dwordx4 v248, {SRT}, s{T1} offen lds ;@rb{j}", f"s_mov_b32 m0, s{T2}"] for j in range(6)]
            extra2 = [(o.bs0 + j, x) for j, x in enumerate(rbl)]
            r = [[f"ds_read_b64_tr_b16 {a(RB+4*blk+2*t,2)}, v249 offset:{(blk>>1)*2048 + t*256 + (blk&1)*8} ;@r{blk}" for t in range(2)] for blk in range(6)]
            for blk in range(6):
                q_ = 240 + 4*(blk & 1); mk = 0x00010001 << blk
                r += [[f"s_mov_b32 s{T3}, {mk}", f"s_mov_b32 s{T4}, {mk}"]] + [[f"v_cndmask_b32 v{q_+j}, 0, v{ONES}, {sm(T3)}" for j in jj] for jj in ((0, 1), (2, 3))]
                r += [[f"WAITL r{blk}", f"{MF} {a(HCS,4)}, {a(RB+4*blk,4)}, {v(q_,4)}, {'0' if blk == 0 else a(HCS,4)}"]]
            sh = [x for x in sh if x[0] <= 8 and x[1] is None] + [(0, "rb5", x) for x in r[:6]] + [x for x in sh if not (x[0] <= 8 and x[1] is None)]
            sh2 = r[6:]
        if lay == 0:
            extra.insert(0, (4, fb_set(0)))
            extra.append((w2s - 8, [t + (" ;@F" if t.startswith("buffer") else "") for t in fb_body(0)]))
        def codepf(lbl): return [f"s_add_u32 s{T1}, s{sPC}, {lbl}-L_pc", f"s_addc_u32 s{T2}, s{sPC+1}, 0", f"global_load_dword v{vJUNK}, v{vCPF}, {sm(T1)}"]
        if o.cpf2: extra.append((o.cpf2, codepf(f"L_epi{lay}")))
        if o.cpf3 and not last: extra.append((o.cpf3, codepf("L_ool")))
        if lay > 0:
            for j_ in range(0 if (o.o4 and last) else o.of if par else o.of2): extra.append((o.ot0 + j_, [f"s_mov_b32 s{T1}, {WS_O + 4096*j_}", f"buffer_load_dword v{vJUNK}, v{vTCH}, {SRD}, s{T1} offen sc1"]))
            extra.sort(key=lambda x: x[0])
        r = []
        for st in (16, 8, 4):
            r += [[f"v_add_f32 v{160+j}, v{160+j}, v{160+j+st}", f"v_add_f32 v{161+j}, v{161+j}, v{161+j+st}"] for j in range(0, st, 2)]
        r += [["s_nop 0"], ["v_permlane32_swap_b32 v160, v162"], ["v_permlane32_swap_b32 v161, v163"], ["v_add_f32 v160, v160, v162", "v_add_f32 v161, v161, v163"],
              [f"v_mul_f32 v163, {f32hex(-1.0/1024)}, v160", f"v_mul_f32 v161, {f32hex(1.0/1024)}, v161"], ["v_fma_f32 v161, -v163, v163, v161", "v_max_f32 v161, 0, v161"],
              [f"v_add_f32 v161, {f32hex(1e-5)}, v161"], ["v_rsq_f32 v162, v161"], [f"ds_write2_b32 v{vSW}, v162, v163 offset0:0 offset1:64"]]
        r += [[f"ds_read2_b32 {v(STP+2*i,2)}, v{vSR} offset0:{16*i} offset1:{64+16*i}"] for i in range(4)]
        if vn: r += [[f"ds_read_b128 {v(224+16*j+4*i,4)}, v{vSQ} offset:{256*j + 64*i}"] for j in range(2) for i in range(4)]
        sh += [(0, "S7", x) for x in r]
        sh += [(0, "csbar", [f"ds_read_b128 {v(CSR+4*c,4)}, v{vGM} offset:{M_CS-M+par*384+c*64} ;@cs"]) for c in range(4 if vn else 6)]
        if vn: sh += [(0, "csbar", [f"ds_read2_b32 {v(CSR+16,2)}, v{vCV} offset0:{64+96*par} offset1:{80+96*par} ;@cs"])]
        for t_ in ["S7", "CS3", "F", "csw", "cs"] + [f"W{j}" for j in range(2, 8)]: A.seen.discard(t_)
        csbar = not early
        def ready(tag):
            if tag is None: return True
            if tag == "csbar": return csbar
            return tag in A.seen and not A.pending(tag)
        fix = {(cc, ii): [f"v_fmac_f32 v{acc(cc,ii)+j}, v{CSR+12+cc}, v{240+4*ii+j}" if vn and cc >= 4 else
                          f"v_fmac_f32 v{acc(cc,ii)+j}, v{CSR+4*cc+j}, v{STP+2*ii+1}" for j in range(4)] for cc in range(6) for ii in range(4)}
        fix["ci"] = [f"v_mul_f32 v{CI+ii}, {CK[par]}, v{STP+2*ii}" for ii in range(4)]
        ysh = []
        if par:
            VT = lambda db, i: 168 + 10*db + 2*(i+1)
            KP = 188
            def two(l): return [l[j:j+2] for j in range(0, len(l), 2)]
            def vcvt(i, d0, d1): return [f"v_cvt_pk_bf16_f32 v{d+h}, v{acc(4+db,i)+2*h}, v{acc(4+db,i)+2*h+1}" for db, d in enumerate((d0, d1)) for h in range(2)]
            def kmul(i): return [f"v_mul_f32 v{acc(c,i)+j}, v{acc(c,i)+j}, v{STP+2*i}" for c in (2, 3) for j in range(4)]
            def vmul(i): return [f"v_mul_f32 v{acc(c,i)+j}, v{acc(c,i)+j}, v{224+4*i+j}" for c in (4, 5) for j in range(4)]
            def kcvt(i): return cvt4l(acc(2,i), acc(2,i), acc(3,i))
            def qcvt(i): return cvt4l(acc(0,i), acc(0,i), acc(1,i))
            def sown(i): return f"{MF} {v(acc(3,i),4)}, {v(acc(2,i),4)}, {v(acc(0,i),4)}, 0"
            def sprev(i): return f"{MF} {v(acc(1,i),4)}, {v(acc(2,i-1) if i else KP,4)}, {v(acc(0,i),4)}, 0"
            def sel(i):
                so, sp, z = acc(3,i), acc(1,i), acc(5,i)
                r = [f"v_cndmask_b32 v{b}, v{b}, v{b+1}, {sm(mPAR)}" for b in (so, so+2, sp, sp+2)]
                if i == 0: r += [f"v_cndmask_b32 v{b}, v{b}, v217, {sm(mFIRST)}" for b in (sp, sp+2)]
                return r + [f"v_cndmask_b32 v{z}, v{sp}, v{so}, {sm(mOWN0)}", f"v_cndmask_b32 v{z+1}, v{sp+2}, v{so+2}, {sm(mOWN1)}", f"v_max_f32 v{z+2}, v{z}, v{z+1}"]
            def soft(blks):
                Z = [(acc(5,i), i) for i in blks]
                r = [f"v_sub_f32 v{z+h}, v{z+h}, v{z+2}" for z, i in Z for h in range(2)] + [f"v_mul_f32 v{z+h}, v{z+h}, v{CI+i}" for z, i in Z for h in range(2)]
                r += [f"v_exp_f32 v{z+h}, v{z+h}" for z, i in Z for h in range(2)] + [f"v_cvt_pk_bf16_f32 v{z+h}, v{z+h}, v{z+h}" for z, i in Z for h in range(2)]
                for z, i in Z: r += [f"v_and_b32 v{acc(4,i)+j}, v{z+(j&1)}, v{mk}" for j, mk in enumerate((MP0, MP1, MO0, MO1))]
                return r
            def pv(i): return [f"{MF} {v(acc(5,i),4)}, {v(ONES,4)}, {v(acc(4,i),4)}, 0"] + [f"{MF} {v(acc(1+2*db,i),4)}, {v(VT(db,i-1),4)}, {v(acc(4,i),4)}, 0" for db in range(2)]
            hl = [f"buffer_load_dwordx4 v[240:243], v{vL16}, {SRD}, s{sHld} offen sc1", f"buffer_load_dwordx4 v[244:247], v{vL16}, {SRD}, s{sHld} offen offset:1024 sc1"]
            z3 = acc(5,3)
            ysh += two(kmul(3) + kcvt(3)) + [[f"buffer_store_dwordx4 {v(acc(2,3),4)}, v{vL16}, {SRD}, s{sHst} offen sc1"]]
            ysh += two(vmul(3) + vcvt(3, 248, 250)) + [[f"buffer_store_dwordx4 v[248:251], v{vL16}, {SRD}, s{sHst} offen offset:1024 sc1"]]
            ysh += [[f"ds_write_b128 v{vKX}, {v(acc(2,3),4)} offset:1024"]] + two(vcvt(3, VT(0,3), VT(1,3)))
            ysh += [[f"ds_write_b128 v{vKX}, v[248:251] offset:{M_VX-M_KX+1024} ;@xw"]]
            ysh += two(kmul(2) + kcvt(2) + qcvt(3)) + [[sown(3)], [sprev(3)]] + two(vmul(2) + vcvt(2, VT(0,2), VT(1,2)))
            ysh += [["WAITL xw", "s_barrier"], [f"ds_read_b128 {v(KP,4)}, v{vKX}"]] + [[f"ds_read_b64 {v(VT(db,-1),2)}, v{vKX} offset:{M_VX-M_KX+8*db}"] for db in range(2)]
            ysh += two(sel(3)) + [[f"v_mov_b32 v{z3+3}, v{z3+2}"]] + two(qcvt(2))[:1] + [[f"v_permlane32_swap_b32 v{z3+2}, v{z3+3}"], [f"v_max_f32 v{z3+2}, v{z3+2}, v{z3+3}", f"v_mov_b32 v{z3+3}, v{z3+2}"]]
            ysh += two(qcvt(2))[1:] + [[f"v_permlane16_swap_b32 v{z3+2}, v{z3+3}"], [f"v_max_f32 v{z3+2}, v{z3+2}, v{z3+3}"], [sown(2)]]
            s3 = soft((3,))
            ysh += two(s3[:4]) + [s3[4:5], s3[5:6]] + two(s3[6:]) + [[f"v_mov_b32 v217, {f32hex(-3.0e38)}"]] + [[x] for x in pv(3)] + [[], []]
            ysh += [[f"v_rcp_f32 v{z3}, v{z3}"]] + two([f"v_mul_f32 v{acc(1+2*db,3)+j}, v{acc(1+2*db,3)+j}, v{z3}" for db in range(2) for j in range(4)] + cvt4l(236, acc(1,3), acc(3,3)))
            ysh += [lambda: ostore(3, o.oall or (o.o4 and last))]
            ysh.insert(len(ysh) - o.hpos, [hl[0]]); ysh.insert(len(ysh) - o.hpos, [hl[1] + " ;@hl"])
        def Y():
            x = ysh.pop(0)
            if callable(x): x()
            else: E(x)
        credit = 0.5 if (lay == 1 and o.lazy & 1) else 0.0; t = 0.0; nbar = 0
        for u, (step, bl, cs_) in enumerate(units):
            half = len(bl) == 2; ng = len(cs_); inY = half and bl[0] == 0
            assert not anext or anext[0][0] > u
            e(f"WAITV A{u}")
            if u == 1 and lay > 0 and o.lazy & 1:
                assert anext[0][1] <= 4 and anext[0][2] == 0 and len(misc) == 8
                poll2chk(sFXc, lay)
            if o.g1prof and u == 0: stamp(2, 1)
            if u + 1 < len(units) and units[u+1][0]//4 > nbar:
                nbar += 1
                assert not any(p[0] == "W" and p[1] <= nbar for p in pend), (lay, u)
                if f"W{nbar}" in A.seen: e(f"WAITV W{nbar}")
                if lay == 0 and nbar == 1: assert not A.pending("b1")
                e("s_barrier")
                if ready("csw"): csbar = True
                if o.g1prof: stamp(2 + nbar, 1)
            if inY and step == max(28, 32 - TB):
                e("s_barrier"); nbar = 8
            if inY: assert not sh and all(not x for x in fix.values()), (lay, len(sh), {k: len(x) for k, x in fix.items() if x})
            nslot = 3 if half else ng
            cur = fidx[(step, bl[0])]
            ahead = lambda n: n < len(anext) and fidx[anext[n][1:]] < cur + len(bl) + (LAF if u > 0 else 4*o.APRE)
            plan = []; na = nw = nm = 0
            while len(plan) < nslot and ahead(na) and na < len(bl):
                plan.append("A"); na += 1
            if t >= w1s: credit = min(credit + (wr if (pend and pend[0][0] == "W") else w2r) * len(bl) / 400.0, max(3.0, w2r/100.0))
            while len(plan) < nslot and nw < len(pend) and allowed(pend[nw], t) and credit >= 1:
                plan.append("W"); nw += 1; credit -= 1
            while len(plan) < nslot and nm < len(misc) and misc[nm][0] <= t:
                plan.append("M"); nm += 1
            while len(plan) < nslot and ahead(na):
                plan.append("A"); na += 1
            oth = [p for p in plan if p != "A"]; aa = [p for p in plan if p == "A"]; plan = []
            while oth or aa:
                if aa: plan.append(aa.pop())
                if aa and len(aa) >= 2*len(oth): plan.append(aa.pop())
                if oth: plan.append(oth.pop(0))
            if half: plan = sum(([p, None] for p in plan), [])
            for gi, c in enumerate(cs_):
                vm = None
                for p, i in enumerate(bl if c % 2 == 0 else bl[::-1]):
                    if p == 0: e(f"WAITL w{u}_{c}")
                    e(mma(step, c, i))
                    busy = False
                    if p == 0 and gi < len(plan) and plan[gi]:
                        k = plan[gi]
                        if k == "A": vm = [aload(*anext.pop(0))]
                        elif k == "W":
                            pc = pend.pop(0); vm = w1_piece(par, pc[1], pc[2]) if pc[0] == "W" else w2_piece(par, pc[1], pc[2])
                        else: vm = misc.pop(0)[1]
                        E(vm[:-1]); busy = len(vm) > 1
                    if p == (0 if half else 1) and vm: e(vm[-1]); busy = True
                    if p == len(bl) - 1:
                        busy = not half
                        if u + 1 < len(units): e(w1rd(u+1, c))
                    if p == 2 and ng == 4 and u + 1 < len(units) and gi < 2:
                        e(w1rd(u+1, gi)); busy = True
                    if busy: continue
                    if inY:
                        if ysh: Y()
                    elif p == (0 if half else 2) and gi == 3 and extra and extra[0][0] <= t: E(extra.pop(0)[1])
                    elif p == 2 and gi == 0 and extra2 and extra2[0][0] <= t: E(extra2.pop(0)[1])
                    elif p == 2 and lay == 0 and not fbdone[0] and ready("F"):
                        E(fb_cond + retry(fb_body(0), fb_cond)); fbdone[0] = True
                    elif sh:
                        if sh[0][0] <= t and ready(sh[0][1]): E(sh.pop(0)[2])
                        elif sh2 and ready("r5"): E(sh2.pop(0))
                    elif ready("cs"):
                        cc = cs_[(gi + ng//2) % ng]
                        cand = [(cc, ii) for ii in (3, 2, 1, 0)]
                        if step > 32 - nd: cand += [(c2, ii) for c2 in (0, 1) for ii in range(4)]
                        if half and step > 32 - TB: cand += [(c2, ii) for c2 in range(6) for ii in (0, 1)]
                        for k in cand + ["ci"]:
                            if fix[k]:
                                E(fix[k][:2]); fix[k] = fix[k][2:]; break
                        else:
                            if sh2: E(sh2.pop(0))
            t += len(bl) / 4
        assert not anext and not misc and not sh and not extra and not extra2 and not sh2 and all(p[0] == "W2" for p in pend), (lay, pend, anext, misc, len(sh), extra)
        assert all(not x for x in fix.values()), (lay, {k: len(x) for k, x in fix.items()})
        assert lay > 0 or fbdone[0]
        left = [w2_piece(par, p[1], p[2]) for p in pend]
        lates = [w2_piece(par, 4, i) for i in range(6*(1-par))] + [w2_piece(par, 5, i) for i in range(2)]
        if o.verbose: print("layer", lay, "left", len(left), "ysh", len(ysh))
        A.label(f"L_epi{lay}")
        e("s_waitcnt lgkmcnt(0)"); e("s_barrier")
        stamp(1)
        qm = [mma(step, c, i) for step in range(32-nd, 32) for c in range(2) for i in (range(4) if c == 0 else reversed(range(4)))]

        if par == 0:
            def feat_head(c0, tmp, hook=None):
                MX, MN = tmp, tmp+4
                for i in (3, 2, 1, 0):
                    p0, p1 = acc(c0,i), acc(c0+1,i)
                    for op, op2, d in (("v_max3_f32", "v_max_f32", MX+i), ("v_min3_f32", "v_min_f32", MN+i)):
                        e(f"{op} v{d}, v{p0}, v{p0+1}, v{p0+2}"); e(f"{op} v{d}, v{d}, v{p0+3}, v{p1}")
                        e(f"{op} v{d}, v{d}, v{p1+1}, v{p1+2}"); e(f"{op2} v{d}, v{d}, v{p1+3}")
                if hook: hook()
                xreduce([("v_max_f32", [MX, MX+1, MX+2, MX+3]), ("v_min_f32", [MN, MN+1, MN+2, MN+3])])
                for i in range(4):
                    e(f"v_mul_f32 v{MX+i}, -v{MX+i}, v{CI+i}"); e(f"v_mul_f32 v{MN+i}, v{MN+i}, v{CI+i}")
                for i in range(4):
                    for fb in range(2):
                        for h in range(2):
                            pk_fma(224+8*i+4*fb+2*h, acc(c0+fb,i)+2*h, CI+i, MX+i)
                            pk_fma(acc(c0+fb,i)+2*h, acc(c0+fb,i)+2*h, CI+i, MN+i, negx=True)
            def feat_tail(c0, F, G_, S0, S1, post, mid=None, hooks={}):
                def norm_(i):
                    sq = S0 if i % 2 == 0 else S1
                    e(f"v_rcp_f32 v{184+2*i}, v{sq}"); e(f"v_rcp_f32 v{185+2*i}, v{sq+4}")
                    for r in range(0, 8, 2): pk_mul(224+8*i+r, 224+8*i+r, 184+2*i)
                    cvt4(F+4*i, 224+8*i, 224+8*i+4)
                    if post: e(post(i, 0))
                    for fb in range(2):
                        for h in range(2): pk_mul(acc(c0+fb,i)+2*h, acc(c0+fb,i)+2*h, 185+2*i)
                    cvt4(G_+4*i, acc(c0,i), acc(c0+1,i))
                    if post: e(post(i, 1))
                for i in range(4):
                    if i in hooks: hooks[i]()
                    for r in range(8): e(f"v_exp_f32 v{224+8*i+r}, v{224+8*i+r}")
                    for fb in range(2):
                        for r in range(4): e(f"v_exp_f32 v{acc(c0+fb,i)+r}, v{acc(c0+fb,i)+r}")
                    if 0 < i < 3: norm_(i-1)
                    sq = S0 if i % 2 == 0 else S1
                    cvt4(F+4*i, 224+8*i, 224+8*i+4); cvt4(G_+4*i, acc(c0,i), acc(c0+1,i))
                    e(f"{MF} {v(sq,4)}, {v(ONES,4)}, {v(F+4*i,4)}, 0"); e(f"{MF} {v(sq+4,4)}, {v(ONES,4)}, {v(G_+4*i,4)}, 0")
                if 4 in hooks: hooks[4]()
                if mid: mid()
                norm_(2)
                if 5 in hooks: hooks[5]()
                norm_(3)
            dl = []
            if lay == 0:
                dl = [[f"s_add_u32 s{D2}, s{ROTW}, {WS_W1[1]}", f"s_add_u32 s{D4}, s{D2}, 4096", w1st(a(RB,4), 0, D2, D4)]] + [[w1st(a(RB+4*b_,4), b_, D2, D4)] for b_ in range(1, 6)]
                dl += [[f"s_add_u32 s{D1}, s{sW2s}, {WS_W2[1] - WS_W2[0]}", f"buffer_store_dwordx4 {a(HW2,4)}, v{vL16}, {SRD}, s{D1} offen sc1"],
                       [f"buffer_store_dwordx4 {a(HW2+4,4)}, v{vL16}, {SRD}, s{D1} offen offset:1024 sc1", f"s_add_u32 s{D1}, s{sCL0}, {CS_SZ}"] + csst(a(HCS,4), D1),
                       [f"buffer_store_dwordx4 a[252:255], v{vL16}, {SRD}, s{sCL2} offen sc1"],
                       [f"s_add_u32 s{D1}, s{sKV}, s{ROTA}", f"s_add_u32 s{D1}, s{D1}, 0x100000", f"buffer_store_dwordx4 a[252:255], v{vL16}, {SRD}, s{D1} offen sc1",
                        f"s_add_u32 s{D1}, s{sZo}, 0x10000", f"s_mov_b64 exec, {sm(mM0)}", f"buffer_store_dwordx4 a[252:255], v{vG16}, {SRD}, s{D1} offen sc1 ;@b2", "s_mov_b64 exec, -1"]]
            if o.kt:
                allp = left + lates; nk = max(0, len(left) + o.kl); left, lates = allp[:nk], allp[nk:]
            dl2 = dl[o.dk:]; dl = dl[:o.dk]; mix = []
            for j_ in range(max(len(left), len(dl))): mix += left[j_:j_+1] + dl[j_:j_+1]
            per = o.aper0 if dl else o.aper
            A.bgset(mix, per, per)
            SEL = 160 if o.kt else 128
            def mksel():
                e(f"s_andn2_b64 {sm(T1)}, {sm(mDIAG)}, {sm(mB1)}"); e(f"s_and_b64 {sm(T3)}, {sm(mDIAG)}, {sm(mB1)}")
                e(f"v_or_b32 v{SEL}, v{MO0}, v{MP0}"); e(f"v_and_b32 v{SEL}, v{SEL}, v{ONES}")
                e(f"v_cndmask_b32 v{SEL+2}, 0, v{SEL}, {sm(T1)}"); e(f"v_cndmask_b32 v{SEL+3}, 0, v{SEL}, {sm(T3)}")
                for r in (0, 1, 4, 5): e(f"v_mov_b32 v{SEL+r}, 0")
            if o.kt:
                def vprep():
                    for db in range(2):
                        for i in range(4):
                            for h in range(2): e(f"v_pk_mul_f32 {v(acc(4+db,i)+2*h,2)}, {v(acc(4+db,i)+2*h,2)}, {v(224+4*i+2*h,2)}")
                        for p in range(2): cvt4(acc(4+db,2*p), acc(4+db,2*p), acc(4+db,2*p+1))
                    mksel()
                feat_head(2, 208, vprep)
                TT = lambda t, fb, i: 224+8*i+4*fb if t == 0 else acc(2+fb, i)
                FF = lambda t, i: 192+8*(i%2)+4*t
                SS = lambda t, i: 176+8*(i%2)+4*t
                ET = lambda t, fb: 132+16*t+8*fb
                KV = lambda t, fb, db: TT(t, fb, db)
                ZZ = lambda t, fb: (168, 208)[t] + 4*fb
                def ex(i): return [f"v_exp_f32 v{TT(t,fb,i)+r}, v{TT(t,fb,i)+r}" for t in range(2) for fb in range(2) for r in range(4)]
                def tr(i):
                    for t in range(2): cvt4(FF(t,i), TT(t,0,i), TT(t,1,i))
                    r = []
                    for t in range(2):
                        r += [f"{MF} {v(SS(t,i),4)}, {v(FF(t,i),4)}, {v(ONES,4)}, 0"] + [f"{MF} {v(TT(t,fb,i),4)}, {v(FF(t,i),4)}, {v(SEL+2-2*fb,4)}, 0" for fb in range(2)]
                    return r
                def ecv(i, t): return [f"v_cvt_pk_bf16_f32 v{ET(t,fb)+2*(i%2)+h}, v{TT(t,fb,i)+2*h}, v{TT(t,fb,i)+2*h+1}" for fb in range(2) for h in range(2)]
                def nrm(i, ms=[]):
                    mix2(list(ms), [f"v_rcp_f32 v{SS(t,i)+r}, v{SS(t,i)+r}" for t in range(2) for r in range(4)], 1)
                    for t in range(2):
                        for fb in range(2):
                            for h in range(2): e(f"v_pk_mul_f32 {v(TT(t,fb,i)+2*h,2)}, {v(TT(t,fb,i)+2*h,2)}, {v(SS(t,i)+2*h,2)}")
                def kvm(p, t):
                    r = [f"{MF} {v(KV(t,fb,db),4)}, {v(ET(t,fb),4)}, {v(acc(4+db,2*p),4)}, {v(KV(t,fb,db),4) if p else 0}" for db in range(2) for fb in range(2)]
                    return r + [f"{MF} {v(ZZ(t,fb),4)}, {v(ET(t,fb),4)}, {v(ONES,4)}, {v(ZZ(t,fb),4) if p else 0}" for fb in range(2)]
                def mix2(ms, fs, n):
                    while ms or fs:
                        if ms: e(ms.pop(0))
                        E(fs[:n]); fs = fs[n:]
                E(ex(0))
                mix2(tr(0), ex(1), 1); nrm(0); E(ecv(0,0) + ecv(0,1))
                mix2(tr(1), ex(2), 1); nrm(1); E(ecv(1,0) + ecv(1,1))
                k0 = kvm(0,0) + kvm(0,1)
                mix2(tr(2) + k0[:10], ex(3), 1)
                nrm(2, k0[10:] + tr(3)); E(ecv(2,0) + ecv(2,1)); nrm(3); E(ecv(3,0) + ecv(3,1)[:2])
                A.bgflush()
                def fr(t, db): return cvt4l(192+8*t+4*db, KV(t,0,db), KV(t,1,db)) + [f"ds_write_b128 v{vXW}, {v(192+8*t+4*db,4)} offset:{VB_LDS + (2*t+db)*1024}"]
                mix2(kvm(1,0), ecv(3,1)[2:], 1)
                m1 = kvm(1,1); E(m1[:2]); mix2(m1[2:], fr(0,0) + fr(0,1), 2)
                E(fr(1,0))
                for r in range(4): e(f"v_cndmask_b32 v{168+r}, v{168+r}, v{172+r}, {sm(mPAR)}")
                E(fr(1,1))
                for r in range(4): e(f"v_cndmask_b32 v{208+r}, v{208+r}, v{212+r}, {sm(mPAR)}")
                for r in range(4): e(f"v_cndmask_b32 v{168+r}, v{168+r}, v{208+r}, {sm(mB1)}")
                e(f"ds_write_b128 v{vE1}, v[168:171]")
                e(f"s_add_u32 s{T2}, s{sKV}, s{ROTA}")
                for j in range(2): e(qm.pop(0))
                e("s_waitcnt lgkmcnt(0)"); e("s_barrier")
                stamp(2)
                for j in range(4): e(f"ds_read_b128 {v(96+4*j,4)}, v{vE0} offset:{j*4096} ;@kf{j}")
                e(f"ds_read_b128 v[200:203], v{vVr} ;@kz")
                for j in range(3): e(qm.pop(0))
                for j in range(4):
                    e(f"WAITL kf{j}")
                    for fb in range(2): e(f"{MF} {v(168+4*fb,4)}, {v(SEL+2-2*fb,4)}, {v(96+4*j,4)}, {v(168+4*fb,4) if j else 0}")
                e("WAITL kz")
                for qp in ("[1,0,3,2]", "[2,3,0,1]"):
                    for r in range(4): e(f"v_add_f32_dpp v{200+r}, v{200+r}, v{200+r} quad_perm:{qp} row_mask:0xf bank_mask:0xf")
                cvt4(192, 168, 172)
                e(f"buffer_store_dwordx4 v[192:195], v{vL16}, {SRD}, s{T2} offen sc1"); e(qm.pop(0))
                E([f"s_mov_b64 exec, {sm(mM0)}", f"buffer_store_dwordx4 v[200:203], v{vG16}, {SRD}, s{sZo} offen sc1", "s_mov_b64 exec, -1"])
            else:
                def vall():
                    for i in range(4):
                        for b in range(2):
                            for h in range(2): pk_mul(acc(4+b,i)+2*h, acc(4+b,i)+2*h, STP+2*i)
                        cvt4(acc(4,i), acc(4,i), acc(5,i))
                        e(xw(acc(4,i), VB_LDS//1024 + i))
                feat_head(2, 208, vall)
                feat_tail(2, 192, 144, 168, 176, lambda i, sg: xw((192 if sg == 0 else 144)+4*i, 24 + 16*sg + i))
                A.bgflush()
                e(f"s_add_u32 s{T2}, s{sKV}, s{ROTA}")
                e("s_waitcnt lgkmcnt(0)"); e("s_barrier")
                stamp(2)
                def kvreads(p):
                    b = 96 + 16*(p % 4); r = []
                    for t in range(2):
                        r += [f"ds_read_b64_tr_b16 {v(b+2*t,2)}, v{vE0} offset:{SLOT + (2*p+t)*1024}", f"ds_read_b64_tr_b16 {v(b+8+2*t,2)}, v{vVr} offset:{(2*p+t)*1024} ;@ka{p}"]
                    return r + [f"ds_read_b64_tr_b16 {v(b+4+2*t,2)}, v{vE1} offset:{SLOT + (2*p+t)*1024} ;@kb{p}" for t in range(2)]
                rd = sum((kvreads(p) for p in range(8)), [])
                E(rd[:14]); rd = rd[14:]
                for j in range(4 if o.kq else 2): e(qm.pop(0))
                for p in range(8):
                    b = 96 + 16*(p % 4); z_ = p == 0
                    e(f"WAITL ka{p}")
                    e(f"{MF} v[168:171], {v(b,4)}, {v(b+8,4)}, {'0' if z_ else 'v[168:171]'}"); E(rd[0:2])
                    e(f"{MF} v[200:203], {v(b,4)}, {v(ONES,4)}, {'0' if z_ else 'v[200:203]'}"); E(rd[2:4])
                    e(f"WAITL kb{p}")
                    e(f"{MF} v[172:175], {v(b+4,4)}, {v(b+8,4)}, {'0' if z_ else 'v[172:175]'}"); E(rd[4:6]); rd = rd[6:]
                cv = cvt4l(192, 168, 172)
                zst = [f"s_mov_b64 exec, {sm(mM0)}", f"buffer_store_dwordx4 v[200:203], v{vG16}, {SRD}, s{sZo} offen sc1", "s_mov_b64 exec, -1"]
                kst = f"buffer_store_dwordx4 v[192:195], v{vL16}, {SRD}, s{T2} offen sc1"
                if o.kq:
                    for j in range(2): e(qm.pop(0))
                    e("s_barrier")
                    for j in range(2): e(qm.pop(0))
                    E(cv[:2]); e(qm.pop(0)); E(cv[2:]); e(qm.pop(0))
                    e(kst); e(qm.pop(0)); E(zst)
                else:
                    e(qm.pop(0)); E(cv); e(kst); e(qm.pop(0)); E(zst); e("s_barrier")
            stamp(3)
            A.bgset(lates, o.aper2, 0)
            E(qm)
            def g1(p): return [f"s_add_u32 s{T0}, s{sKV}, s{ROTA+1+p}", f"buffer_load_dwordx4 {v(96+4*p,4)}, v{vL16}, {SRD}, s{T0} offen sc1 ;@g{p}"]
            gz = f"buffer_load_dwordx4 v[192:195], v{vZL}, {SRD}, s{sZP} offen sc1 ;@gz"
            def gather():
                A.bgflush()
                if o.zf: e(gz)
                for p in range(7): E(g1(p))
                if not o.zf: e(gz)
                A.bgset(dl2, o.aper3, 0)
            if gpos == 0: gather()
            feat_head(0, 196, gather if gpos == 1 else None)
            qmid = None if o.kt else mksel
            feat_tail(0, 204, 136, 152, 176, None, qmid, {gpos - 2: gather})
            A.bgflush()
            nafter = A.after("g6" if o.zf else "gz")
            stamp(4)
            e(f"s_mov_b32 s{sTMO}, {LIM}")
            def kvw():
                cvt4(196, 168, 172)
                if o.kt: e(f"ds_write_b128 v{vKX}, v[196:199]")
                else: e(f"ds_write_b64 v{vKX0}, v[196:197]"); e(f"ds_write_b64 v{vKX1}, v[198:199]")
            def zred(mid=None):
                for s_ in (4, 2, 1):
                    for r in range(4): e(f"v_add_f32_dpp v{192+r}, v{192+r}, v{192+r} row_ror:{s_} row_mask:0xf bank_mask:0xf")
                    if s_ == 2 and mid: mid()
                e("v_cvt_pk_bf16_f32 v192, v192, v193"); e("v_cvt_pk_bf16_f32 v193, v194, v195")
                e(f"s_mov_b64 exec, {sm(mM0)}"); e(f"ds_write_b64 v{vZW}, v[192:193] offset:{M_ZF-M}"); e("s_mov_b64 exec, -1")
            for p in ([7] + list(range(7)) if o.zf else range(8)):
                r0 = 96+4*p if p < 7 else 192; L = f"{lay}_{p}"
                e(f"WAITV g{p if p < 7 else 'z'}")
                A.label(f"L_kvc{L}")
                e(f"v_cmp_eq_u32 vcc, -1, v{r0}"); e(f"s_cbranch_vccnz L_kvs{L}")
                A.label(f"L_kvo{L}")
                if p < 7:
                    e(f"{MF} v[168:171], {v(SEL+2,4)}, {v(r0,4)}, v[168:171]"); e(f"{MF} v[172:175], {v(SEL,4)}, {v(r0,4)}, v[172:175]")
                elif o.zf: zred()
                def kvslow(p=p, L=L, nafter=nafter, g1=g1, gz=gz):
                    A.label(f"L_kvs{L}")
                    e(f"s_sub_u32 s{sTMO}, s{sTMO}, 1"); e(f"s_cbranch_scc1 L_kvt{L}")
                    if o.ksl: e(f"s_sleep {o.ksl}")
                    e(f"s_waitcnt vmcnt({nafter})")
                    if o.kgate:
                        e("v_mov_b32 v197, 0"); e("s_mov_b64 exec, 0xff"); e(f"buffer_atomic_or v197, v{vZL}, {SRD}, s{sZP} offen sc0 sc1"); e("s_mov_b64 exec, -1")
                        e("s_waitcnt vmcnt(0)"); e("v_cmp_eq_u32 vcc, -1, v197"); e(f"s_cbranch_vccnz L_kvs{L}")
                    for p2 in range(0 if (o.zf and p == 7) else p, 7):
                        if p2 != p: e(f"v_cmp_eq_u32 vcc, -1, v{96+4*p2}"); e(f"s_cbranch_vccz L_kvn{L}_{p2}")
                        E(g1(p2))
                        if p2 != p: A.label(f"L_kvn{L}_{p2}")
                    if p == 7 or not o.zf: e(gz)
                    e("s_waitcnt vmcnt(0)"); e(f"s_branch L_kvc{L}")
                    A.label(f"L_kvt{L}"); e(f"s_mov_b32 s{sTMO}, 0"); e(f"s_branch L_kvo{L}")
                ool.append(kvslow)
            if o.zf: kvw()
            else: zred(kvw)
            fb2 = lay == 0 and not A.pending("b2")
            e("s_waitcnt lgkmcnt(0)"); e("s_barrier")
            stamp(5)
            for t in range(2): e(f"ds_read_b128 {v(184+4*t,4)}, v{vGM} offset:{M_ZF-M + t*64} ;@zf")
            for j in range(4): e(ldsrd(v(168+4*j,4), M_KX + j*1024))
            if fb2: E(fb_set(1))
            if lay == 0: e(f"s_add_u32 s{sKV}, s{sKV}, 0x100000"); e(f"s_add_u32 s{sZP}, s{sZP}, 0x10000"); e(f"s_add_u32 s{sZo}, s{sZo}, 0x10000")
            e("WAITL zf")
            for t in range(2):
                for i in range(4): e(f"{MF} {v(64+4*i,4)}, {v(184+4*t,4)}, {v((204 if t == 0 else 136)+4*i,4)}, {'0' if t == 0 else v(64+4*i,4)}")
            e("s_waitcnt lgkmcnt(0)")
            def fin(i):
                r = [f"v_mul_f32 v{96+8*i+j}, v{96+8*i+j}, v{64+4*i}" for j in range(8)] + cvt4l(224+4*i, 96+8*i, 100+8*i)
                return [r[j:j+3] for j in range(0, 12, 3)]
            sc = [[f"v_add_f32 v{64+4*i}, {f32hex(1e-6)}, v{64+4*i}", f"v_rcp_f32 v{64+4*i}, v{64+4*i}"] for i in range(4)]
            fills = [[[]]*4, sc, fin(0), fin(1)]
            for i in range(4):
                for t in range(2):
                    for db in range(2):
                        d = v(96+8*i+4*db, 4)
                        e(f"{MF} {d}, {v(168+8*t+4*db,4)}, {v((204 if t == 0 else 136)+4*i,4)}, {'0' if t == 0 else d}")
                        E(fills[i][2*t+db])
                if i >= 2: ostore(i-2, o.oa or lay == 0)
            for i in (2, 3):
                for r in range(0, 8, 2): pk_mul(96+8*i+r, 96+8*i+r, 64+4*i)
                cvt4(224+4*i, 96+8*i, 100+8*i)
                ostore(i, o.oa or lay == 0)
        else:
            fb2 = True
            A.bgset(left + lates, o.bper, o.bper)
            while ysh: Y()
            for i in (1, 0):
                for c in (2, 3):
                    for h in range(2): pk_mul(acc(c,i)+2*h, acc(c,i)+2*h, STP+2*i)
            for i in (1, 0):
                for c in (4, 5):
                    for h in range(2): e(f"v_pk_mul_f32 {v(acc(c,i)+2*h,2)}, {v(acc(c,i)+2*h,2)}, {v(224+4*i+2*h,2)}")
            E(kcvt(1) + qcvt(1)); e(sprev(2)); E(kcvt(0)[:2]); e(sown(1)); E(kcvt(0)[2:] + qcvt(0)); e(sprev(1)); E(vcvt(1, VT(0,1), VT(1,1))[:2]); e(sown(0))
            E(vcvt(1, VT(0,1), VT(1,1))[2:] + vcvt(0, VT(0,0), VT(1,0)))
            E(sel(2))
            keep = A.bg; A.bg = []
            e("s_waitcnt lgkmcnt(0)")
            e(f"s_cmp_lg_u32 s{SW}, 0"); e(f"s_cbranch_scc1 L_halod{lay}")
            A.track = False
            hc = ["v_max_u32 v218, v240, v244", "v_cmp_eq_u32 vcc, -1, v218"]
            if A.pending("hl"): e(f"s_waitcnt vmcnt({A.after('hl')})")
            E(hc); e(f"s_cbranch_vccz L_halow{lay}")
            spin(hl, hc)
            A.label(f"L_halow{lay}")
            for r in range(4): e(f"v_mov_b32 v{KP+r}, v{240+r}"); e(f"v_mov_b32 v{VT(r//2,-1)+r%2}, v{244+r}")
            A.track = True
            A.label(f"L_halod{lay}")
            e(sprev(0))
            A.bg = keep
            stamp(2)
            if lay == 1: e(f"s_add_u32 s{sHst}, s{sHst}, 0x80000"); e(f"s_add_u32 s{sHld}, s{sHld}, 0x80000")
            E(sel(1)); E(sel(0))
            xreduce([("v_max_f32", [acc(5,i)+2 for i in range(4)])])
            E(soft((2, 1, 0)))
            A.bgflush()
            E(pv(2) + pv(1) + pv(0))
            for i in (2, 1, 0):
                e(f"v_rcp_f32 v{acc(5,i)}, v{acc(5,i)}")
                for db in range(2):
                    for h in range(2): pk_mul(acc(1+2*db,i)+2*h, acc(1+2*db,i)+2*h, acc(5,i))
                cvt4(224+4*i, acc(1,i), acc(3,i))
                ostore(i, o.oall or (o.o4 and last))

        stamp(6)
        pre = [f"v_mov_b32 v{vVal}, {lay+1}"]
        OB = WS_O
        if o.alias:
            OB = (WS_X, WS_O)[par]
            pre += [f"s_xor_b32 s{r}, s{r}, {WS_X ^ WS_O}" for r in [sO, sXs] + list(range(ROTA, ROTA+8))]
        for i in range(2):
            for kk in range(2):
                for r in range(4):
                    d = acc2(2*kk + (r >> 1), i) + 2*(r & 1); x = RES+8*i+4*kk+r
                    pre += [f"v_lshlrev_b32 v{d}, 16, v{x}", f"v_and_b32 v{d+1}, 0xffff0000, v{x}"]
        omask = (1 << (o.g2depth - 1)) - 1 if o.lazy & 2 else None
        if o.early & 2: handoff(sFOp, sFOc, lay+1, omask, mEO, pre, [])
        else:
            E(pre); signal(sFOp); stamp(7); poll(sFOc, lay+1, None, omask)
        stamp(8)
        W2F = RING; AF2 = RING + 32; GD = o.g2depth; T2_ = o.TG
        assert AF2 + 8*GD <= 240 - 48*o.NRES
        gun = [(st, (0, 1)) for st in range(32 - T2_)] + [(st, (i,)) for i in range(2) for st in range(32 - T2_, 32)]
        bn = [(st, i) for st, bl in gun for i in bl]
        bidx = {k: n for n, k in enumerate(bn)}
        def bfr(step, i): return a(AF2 + 4*(bidx[(step, i)] % (2*GD)), 4)
        def w2rd(u, b):
            step = gun[u][0]
            return ldsrd(a(W2F + 16*(u % 2) + 4*b, 4), (step*4096 if step < 14 else 3*SLOT + (step-14)*4096) + b*1024) + f" ;@u{u}_{b}"
        cur4 = [-1]
        def bload(step, i):
            r = [f"s_mov_b32 s{sAo}, {OB + (step//4)*4096}"] if step//4 != cur4[0] else []
            cur4[0] = step//4
            return r + [f"buffer_load_dwordx4 {bfr(step, i)}, v{vB+i}, {SRD}, s{sAo} offen offset:{(step%4)*1024} sc1 ;@B{step}_{i}"]
        for j in range(min(o.bpos, 2*GD-2)):
            if o.lazy & 2 and j == o.p2pos: poll2(sFOc)
            E(bload(*bn.pop(0)))
        e("s_barrier")
        for st in range(2):
            for b in range(4): e(w2rd(st, b))
        while bn[0][0] < GD-1: E(bload(*bn.pop(0)))
        lv = [x for x in (o.lv1, o.lv2) if x] + [32]
        okh = 32
        if o.lazy & 2: okh = lv.pop(0); poll2chk(sFOc, lay+1, hex((1 << okh) - 1) if okh < 32 else None)
        if lay == 0 and not fb2: E(fb_set(1))
        w1n = [] if last or (o.nopf and lay >= 1) else list(range(6))
        nres = 0 if last else (1 + (o.NRES if lay >= 1 else 0))
        def oparts(i):
            return [[f"ds_write_b128 v{200+kk}, {v(RES+8*i+4*kk,4)} offset:{i*2048}"] for kk in range(2)] + \
                   [[f"ds_read_b128 {v(96+4*j,4)}, v{vLW} offset:{j*1024} ;@o{j}"] for j in (2*i, 2*i+1)] + [[], []] + \
                   [[f"WAITL o{j}", f"buffer_store_dwordx4 {v(96+4*j,4)}, v202, {SRT}, s{T0} offen" + (" sc1" if o.outsc else ""), f"s_add_u32 s{T0}, s{T0}, 16384"] for j in (2*i, 2*i+1)]
        gsh = []
        if last:
            gsh = [[f"v_bfe_u32 v200, v{vL16}, 4, 4", f"v_and_b32 v201, 0x70, v{vL16}"], [f"v_xor_b32 v201, v201, v{vG16}", "v_lshl_add_u32 v200, v200, 7, v201"],
                   [f"v_add_u32 v200, s{sLW}, v200", f"v_lshrrev_b32 v202, 7, v{vL16}"], [f"v_and_b32 v203, 0x70, v{vL16}", "v_lshlrev_b32 v204, 4, v202"],
                   ["v_xor_b32 v201, 64, v200", "v_xor_b32 v203, v203, v204"], ["v_lshl_add_u32 v202, v202, 11, v203"],
                   [f"s_mov_b32 s8, s{P_OUT}", f"s_mov_b32 s9, s{P_OUT+1}"], ["s_mov_b32 s10, 0x400000", "s_mov_b32 s11, 0x20000"],
                   [f"s_lshl_b32 s{T0}, s{SRB}, 2", f"s_add_u32 s{T0}, s{T0}, s{SW}"], [f"s_lshl_b32 s{T0}, s{T0}, 16", f"s_lshl_b32 s{T1}, s{SCB}, 7"], [f"s_add_u32 s{T0}, s{T0}, s{T1}"]]
        def xcvt(i): return sum((cvt4l(RES+8*i+4*kk, acc2(2*kk,i), acc2(2*kk+1,i)) for kk in range(2)), [])
        fbchk = not (lay == 0 and not last)
        rw = [f"ds_write_b128 v{vLW if k == 0 else vLW3}, {a(RS(1-par, k)+4*b_,4)} offset:{(SLOT if k == 0 else (k-1)*SLOT) + b_*1024}" for k in range(nres) for b_ in range(6)]
        rslot = [1 if k == 0 else 2 + k - o.nopf for k in range(nres) for b_ in range(6)]
        freeslot = -1
        for u, (step, bl) in enumerate(gun):
            e("WAITV " + " ".join(f"B{step}_{i}" for i in bl))
            if okh < 32:
                if bn[0][0] == okh - GD + 1: poll2(sFOc)
                if bn[0][0] == okh: okh = lv.pop(0); poll2chk(sFOc, lay+1, hex((1 << okh) - 1) if okh < 32 else None)
                assert bn[1][0] < okh
            nsl = nres - 1 - o.nopf if nres > 1 else 0
            if u in [15 + 6*j for j in range(nsl + 1) if o.rin or j == nsl or (j == 0 and w1n)]:
                freeslot = 2 + (u - 15)//6
                assert min(st for st, _ in gun[u-1:]) >= u - 1
                e("s_barrier")
            if lay == 0 and not last and u == 19: assert okh == 32; E([t + (" ;@F" if t.startswith("buffer") else "") for t in fb_body(1)])
            if not fbchk and len(bn) <= 2: e("WAITV F"); E(fb_cond + retry(fb_body(1), fb_cond)); fbchk = True
            if bl == (1,) and step == 32 - T2_:
                assert not gsh
                c_ = xcvt(0); gsh = [[]] + [c_[j:j+2] for j in range(0, 8, 2)]
                if last: gsh += oparts(0)
                else:
                    p_ = xparts(0); gsh += p_[0] + [[], []] + p_[1]
            for b in range(4):
                e(f"WAITL u{u}_{b}")
                for p, i in enumerate(bl if b % 2 == 0 else bl[::-1]):
                    e(f"{MF} {v(acc2(b,i),4)}, {a(W2F+16*(u%2)+4*b,4)}, {bfr(step, i)}, {v(acc2(b,i),4)}")
                    if p == 0:
                        if bn and b % (4//len(bl)) == 0: E(bload(*bn.pop(0)))
                        elif not bn and w1n and b % (o.g2w*2//len(bl)) == 0: E(w1_piece(1-par, 1, w1n.pop(0)))
                        elif gsh and (len(bl) == 1 or b % 2):
                            g_ = gsh.pop(0)
                            if ((o.xall and lay >= 1) or (o.alias and lay == 0)) and not last: E([wt(t) for t in g_])
                            elif any(t.startswith("buffer_store") for t in g_) and not last: st_mode(g_)
                            else: E(g_)
                if o.rin and rw and rslot[0] <= freeslot and b % (4//o.rin) == 4//o.rin - 1 and (len(bl) == 2 or (bl == (0,) and b == 3 and (u % 2 or o.rin > 1))):
                    e(rw.pop(0)); rslot.pop(0)
                if u + 2 < len(gun): e(w2rd(u+2, b))
                if b == 1 and not last:
                    for j_ in range(o.xf):
                        if u == o.xt0 + 3*j_: e(f"buffer_load_dword v{vJUNK}, v{vTCH}, {SRD}, s{ROTA+j_} offen sc1")
                    if o.cpf and u == o.xt0 + 4: E(codepf(f"L_layer{lay+1}"))
        assert not w1n
        stamp(9)
        rest = sum(gsh, [])
        if last or not any(t.startswith("buffer_store") for t in rest): E(rest)
        elif (o.xall and lay >= 1) or (o.alias and lay == 0): E([wt(t) for t in rest])
        else: st_mode(rest)
        todo = (1,) if T2_ else (0, 1)
        for i in todo: E(xcvt(i))
        if last:
            for i in todo: E(sum(oparts(i)[:4], []))
            for i in todo: E(sum(oparts(i)[4:], []))
            break
        xtile((o.xall and lay >= 1) or (o.alias and lay == 0), todo)
        assert not rw or max(rslot) <= freeslot
        if o.verbose: print("layer", lay, "resident writes left", len(rw))
        if o.early & 1: handoff(sFXp, sFXc, lay+1, sm(mX) if o.lazy & 1 else None, mEX, rw[:o.rw], rw[o.rw:])
        else:
            E(rw[:o.rw]); signal(sFXp); stamp(10); poll(sFXc, lay+1, rw[o.rw:], sm(mX) if o.lazy & 1 else None)

    if o.stamps:
        e("s_waitcnt vmcnt(0)")
        stamp(11)
        e(f"s_lshl_b32 s{T0}, s{SIDX}, 2"); e(f"s_add_u32 s{T0}, s{T0}, s{SW}")
        e(f"s_lshl_b32 s{T0}, s{T0}, 8"); e(f"s_add_u32 s{T0}, s{T0}, {WS_STAMPS}")
        e(f"v_lshrrev_b32 v200, 2, v{vL16}")
        e(f"buffer_store_dword v{vSTAMP}, v200, {SRD}, s{T0} offen")
        if o.echo_a >= 0:
            e(f"v_readlane_b32 s{T1}, v{vSTAMP}, {o.echo_a}"); e(f"v_readlane_b32 s{T2}, v{vSTAMP}, {o.echo_b}"); e(f"v_readlane_b32 s{T3}, v{vSTAMP}, 59")
            e(f"s_sub_u32 s{T2}, s{T2}, s{T1}"); e(f"s_mul_i32 s{T2}, s{T2}, {o.echo_mul}"); e(f"s_min_u32 s{T2}, s{T2}, 20000")
            if o.echo_idx >= 0: e(f"s_cmp_eq_u32 s{SIDX}, {o.echo_idx}"); e(f"s_cselect_b32 s{T2}, s{T2}, 0")
            A.label("L_echo")
            e(f"s_memrealtime s[{sSTAMP}:{sSTAMP+1}]"); e("s_waitcnt lgkmcnt(0)")
            e(f"s_sub_u32 s{T4}, s{sSTAMP}, s{T3}"); e(f"s_cmp_lt_u32 s{T4}, s{T2}"); e("s_cbranch_scc1 L_echo")
    e("s_endpgm")
    A.track = False
    A.label("L_ool")
    for blk in ool: blk()
    A.label("L_exit")
    e("s_endpgm")
    A.raw(f".fill (16384 + 256 - (. - L_ool))/4, 4, 0xbf810000")
    A.raw('.section .rodata,"a"'); A.raw(".p2align 6"); A.raw(f".amdhsa_kernel {KNAME}")
    for t in ("next_free_vgpr 512", "next_free_sgpr 102", "accum_offset 256", "group_segment_fixed_size 0", "kernarg_size 80",
              "user_sgpr_count 2", "user_sgpr_kernarg_segment_ptr 1", "system_sgpr_workgroup_id_x 1"):
        A.raw("  .amdhsa_" + t)
    A.raw(".end_amdhsa_kernel")
    return A.text()

if __name__ == "__main__":
    o = Opts()
    out = sys.argv[1]
    for kv in sys.argv[2:]:
        k, val = kv.split("=")
        assert hasattr(o, k), k
        setattr(o, k, int(val))
    open(out, "w").write(gen(o))
```

```python
import sys, struct
from asmlib import *

KNAME = "interleave_layers__linear_kernel_hedgehog__sliding_local_dilated__prompt_kernel"

WS_FLAGA = 0x0000000
WS_FLAGB = 0x0008000
WS_FLAGO = 0x0009000
WS_FLAGX = 0x000A000
WS_CS    = 0x0010000
CS_SZ    = 393216
WS_ST    = 0x0100000
WS_ZP    = 0x0140000
WS_STAMPS= 0x0180000
WS_HALO  = 0x0200000
WS_KVP   = 0x0400000
WS_W1    = (0x0800000, 0x0E00000)
WS_W2    = (0x1400000, 0x1600000)
WS_X     = 0x1800000
WS_X0    = WS_X
WS_O     = 0x1C00000
WS_SIZE  = 0x2000000
OOR      = 0x40000000

SLOT = 24576
M      = 147456
M_CS   = M + 64
M_ST   = M + 1024
M_ZX   = M + 3072
M_KX   = M + 4096
M_VX   = M + 11264
M_ZF   = M + 10240
LDS_SIZE = 163840
VB_LDS = 57344
RAW1A, RAW1B, RAW2 = 3*SLOT, 4*SLOT, 5*SLOT

SRD = "s[4:7]"; SRT = "s[8:11]"
SW, SGRP, SMEM, SMODE, SCB, SRB = 12, 13, 14, 15, 17, 18
T0, T1, T2, T3, T4, T5, T6, T7 = 19, 20, 21, 22, 23, 24, 25, 26
SIDX, SXCC = 27, 29
sFOc, sFOp, sFXc, sFXp = 30, 31, 32, 33
sO, sXs = 34, 35
mPAR, mB1, mDIAG, mM0, mOWN0, mOWN1, sPC, mFIRST = 36, 38, 40, 42, 44, 46, 48, 50
sCSa, sCSb, sZo, sFBp, sSTs, sLW, sKV, sZP, sHALO, sTMO, sAo, sWo = 52, 53, 54, 55, 56, 57, 58, 59, 60, 61, 62, 63
P_AX, P_AW1, P_PHI, P_AW2, P_BX, P_BW1, P_BW2, P_OUT, P_DBG, P_WS = 64, 66, 68, 70, 72, 74, 76, 78, 80, 82
sCL0, sCL2, sL8, sW2l, sW2s, sHst, sHld = 72, 73, 2, 0, 3, 16, 28
D1, D2, D4 = 64, 65, 1
mX, mEO, mEX = 68, 82, 66
sSTAMP = 84
ROTA, ROTW = 86, 94

vLW = 0; vL16, vL64, vL128 = 1, 2, 3
vA = 4; vB = 8; vW1 = 10; vW2 = 11; vFP = 12; vSTl = 13; vSTs = 14; vSTAMP = 15
RES = 16; PHI = 32; ONES = 40; MP0, MP1, MO0, MO1 = 44, 45, 46, 47
vE1, vVr, vLW3, vCPF, vKX0, vKX1, vCSa, vCSb = range(32, 40)
vXW, vE0, vTCH, vSQ, vJUNK, vCV, vFree, vKX, vGM, vZW, vSW, vSR, vG16, vOut, vZL, vVal = range(48, 64)
ACC = 64
def acc(c, i): return ACC + 16*c + 4*i
def acc2(b, i): return ACC + 8*b + 4*i
STP = 160; CSR = 168; WFV = 192; FBV = 216; CI = 220
RING, HW2, HCS = 48, 240, 248
def RS(par, k): return 24*par if k == 0 else 240 - 48*k + 24*par
MF = "v_mfma_f32_16x16x32_bf16"
def f32hex(x): return "0x%08x" % struct.unpack("<I", struct.pack("<f", x))[0]
CK = (f32hex(1.4426950408889634), f32hex(1.4426950408889634 * 32 ** -0.5))
LIM = 0x100000

HEADER = """
Kernarg (80 bytes, pointers): A_x, A_wqkv, A_w_phi, A_wo, B_x, B_wqkv, B_wo, d_out, d_debug, d_ws.
One persistent launch, 256 workgroups (one per CU) x 4 waves; written by gen/gen2.py, straight-line code per layer.
Roles: group = id & 7 owns 256 rows; member = id >> 3 is the head in the QKV GEMM (256 x 96 tile) and
the (row half, column block) in the output GEMM (128 x 64 tile, residual kept in registers).
P0     x and all weights are re-tiled into MFMA fragment order in d_ws (w_phi folded into the q/k columns),
       with column sums of the QKV weights and per-row (sum, sum of squares) partials for the LayerNorm.
G1     QKV GEMM on raw x: x fragments go straight to registers, weights through an LDS ring;
       LayerNorm is applied as rstd * (acc - mean * colsum).
Epi A  dual softmax features (true row max / min), kv and z partials exchanged between the 8 groups, o = num / den.
Epi B  dilated window attention with MFMA; the 16-row halo comes from the previous group.
G2     output GEMM + residual.
Hand-offs inside a group use plain stores only after the members have checked (XCC id in the start-up flags) that
they share one L2; otherwise, and between groups, stores are write-through. Every flag and sentinel is cleared inside
the launch before it is used; every wait is bounded.
"""

class Opts:
    jit = 0; jitn = 1; verbose = 0; stamps = 0; last = 3; force_slow = 0; echo_a = -1; echo_b = -1; echo_mul = 1; echo_idx = -1; g1prof = 0
    NRES = 2
    ND0 = 4; ND2 = 7
    LA0 = 3; LA2 = 3; LA3 = 3
    APRE = 3
    wrE = 150; wrL = 105; w1sE = 1; w1sL = 2; wr0 = 150; w1s0 = 1; n1pre = 6
    w2E = 300; w2L = 200; w2sE = 25; w2sL = 20
    sper = 1; s0 = 0
    g2depth = 7; g2w = 2; bpos = 12; TG = 3
    w2BE = 400; w2sBE = 24; w2BL = 400; w2sBL = 20; wrBL = 110
    bper = 90; TB = 6; LAB = 3; hpos = 12
    aper = 150; aper0 = 110; aper2 = 90; aper3 = 200; gpos = 5; gpos2 = 4; dk = 6
    rw = 12
    xf = 1; xt0 = 14
    bin = 0; bs0 = 1; w2e = 1; w2t = 0; of = 1; ot0 = 27
    rt = 3; rtb = 2; bbar = 1; tlb = 1; apoll = 0; ksl = 0; kgate = 0; psl = 0; dtouch = 1
    outsc = 1; oall = 0; o4 = 0; alias = 0; oa = 0; kt = 0; kl = 0; of2 = 0; kq = 1; zf = 0; nopf = 0; xall = 0; rin = 0; lazy = 3; p2pos = 3; lv1 = 0; lv2 = 0; early = 3; epos = 4
    sf = 0; sfp = 0; sfu = 2; gop = 1; gown = 0; gow = 0; et = 0; cp0 = 0; CPL = 22; cpf = 1; cpf2 = 24; cpf3 = 26

def gen(o):
    A = Asm2(); e = A.e
    ool = []
    assert not (o.gown and o.bin)
    lay = 0
    o.CPL = min(o.CPL, 5*o.last + 7)
    def E(lst):
        for t in lst: e(t)
    def stamp(name, force=0):
        if o.jit and name not in (11, 28):
            l = A.new("jit")
            e(f"s_memtime s[{sSTAMP}:{sSTAMP+1}]"); e("s_waitcnt lgkmcnt(0)")
            e(f"s_lshr_b32 s{sSTAMP}, s{sSTAMP}, 2"); e(f"s_mul_i32 s{sSTAMP}, s{sSTAMP}, 0x9e3779b1"); e(f"s_lshr_b32 s{sSTAMP}, s{sSTAMP}, {32 - o.jit}")
            e(f"s_cmp_lg_u32 s{sSTAMP}, 0"); e(f"s_cbranch_scc1 {l}")
            for j in range(o.jitn): e("s_sleep 100")
            A.label(l)
        if not o.stamps: return
        if o.g1prof and name in range(2, 11) and not force: return
        idx = name + 16*lay
        if o.stamps == 2 and name != 11 and idx not in (o.echo_a, o.echo_b): return
        e(f"{'s_memtime' if o.stamps == 3 else 's_memrealtime'} s[{sSTAMP}:{sSTAMP+1}]")
        e("s_waitcnt lgkmcnt(0)")
        e(f"v_writelane_b32 v{vSTAMP}, s{sSTAMP}, {59 if name == 11 else idx}")
    def srt(p, size):
        e(f"s_mov_b32 s8, s{p}"); e(f"s_mov_b32 s9, s{p+1}"); e(f"s_mov_b32 s10, {size}"); e("s_mov_b32 s11, 0x20000")
    def mask64(r, val):
        e(f"s_mov_b32 s{r}, 0x{val & 0xffffffff:08x}"); e(f"s_mov_b32 s{r+1}, 0x{val >> 32:08x}")
    def sm(r): return f"s[{r}:{r+1}]"
    def bc(r): return (v(r & ~1, 2), r & 1)
    def pk_fma(d, x, y, z, negx=False):
        yp, ys = bc(y); zp, zs = bc(z)
        e(f"v_pk_fma_f32 {v(d,2)}, {v(x,2)}, {yp}, {zp} op_sel:[0,{ys},{zs}] op_sel_hi:[1,{ys},{zs}]" + (" neg_lo:[1,0,0] neg_hi:[1,0,0]" if negx else ""))
    def pk_mul(d, x, y):
        yp, ys = bc(y)
        e(f"v_pk_mul_f32 {v(d,2)}, {v(x,2)}, {yp} op_sel:[0,{ys}] op_sel_hi:[1,{ys}]")
    def cvt4l(d, x0, x1):
        return [f"v_cvt_pk_bf16_f32 v{d}, v{x0}, v{x0+1}", f"v_cvt_pk_bf16_f32 v{d+1}, v{x0+2}, v{x0+3}",
                f"v_cvt_pk_bf16_f32 v{d+2}, v{x1}, v{x1+1}", f"v_cvt_pk_bf16_f32 v{d+3}, v{x1+2}, v{x1+3}"]
    def cvt4(d, x0, x1): E(cvt4l(d, x0, x1))
    def wt(t): return t + (" sc1" if t.startswith("buffer_store") else "")
    def st_mode(lines):
        ls, ld = A.new("slow"), A.new("done")
        e(f"s_cmp_lg_u32 s{SMODE}, 0"); e(f"s_cbranch_scc1 {ls}")
        E(lines); A.label(ld)
        def blk():
            A.label(ls); A.fence(); E([wt(t) for t in lines]); e("s_nop 7"); e(f"s_branch {ld}")
        ool.append(blk)
    def spin(body, cond, first=None):
        l, d = A.new("spin"), A.new("spind")
        e(f"s_mov_b32 s{sTMO}, {LIM}")
        if first:
            E(body); E(first); e("s_waitcnt vmcnt(0)"); E(cond); e(f"s_cbranch_vccz {d}")
        A.label(l); E(body); e(f"s_sub_u32 s{sTMO}, s{sTMO}, 1"); e("s_waitcnt vmcnt(0)"); E(cond)
        e(f"s_cbranch_scc1 {d}"); e(f"s_cbranch_vccnz {l}"); A.label(d)
    def retry(body, cond):
        l, d = A.new("rt"), A.new("rtd")
        def blk():
            A.label(l); spin(body, cond); e(f"s_branch {d}")
        ool.append(blk)
        return [f"s_cbranch_vccnz {l}", d + ":"]
    def signal(sreg):
        e("s_mov_b64 exec, 1"); e("s_waitcnt vmcnt(0)")
        st_mode([f"buffer_store_dword v{vVal}, off, {SRD}, s{sreg}"])
        e("s_mov_b64 exec, -1")
    def poll(sreg, val, first=None, mask=None):
        cond = [f"v_cmp_gt_u32 vcc, {val}, v{FBV}"]
        if mask: cond = [f"s_mov_b64 exec, {mask}"] + cond + ["s_mov_b64 exec, -1"]
        spin([f"buffer_load_dword v{FBV}, v{vFP}, {SRD}, s{sreg} offen sc1"], cond, first)
    def handoff(sp, sc, val, mask, emask, pre, first):
        ld = f"buffer_load_dword v{FBV}, v{vFP}, {SRD}, s{sc} offen sc1"
        d = A.new("hd")
        E(pre[:o.epos]); e(ld + " ;@PE"); E(pre[o.epos:])
        if o.jit: stamp(7)
        e("s_mov_b64 exec, 1"); e("s_waitcnt vmcnt(1)")
        st_mode([f"buffer_store_dword v{vVal}, off, {SRD}, s{sp}"])
        e("s_mov_b64 exec, -1")
        E(first)
        e("WAITV PE"); e(f"s_mov_b64 exec, {sm(emask)}"); e(f"v_cmp_gt_u32 vcc, {val}, v{FBV}"); e("s_mov_b64 exec, -1"); e(f"s_cbranch_vccz {d}")
        A.track = False; poll(sc, val, None, mask); A.track = True
        A.label(d)
    def poll2(sreg): e(f"buffer_load_dword v{FBV}, v{vFP}, {SRD}, s{sreg} offen sc1 ;@P2")
    def poll2chk(sreg, val, mask=None):
        l = A.new("p2")
        e("WAITV P2")
        if mask: e(f"s_mov_b64 exec, {mask}")
        e(f"v_cmp_gt_u32 vcc, {val}, v{FBV}")
        if mask: e("s_mov_b64 exec, -1")
        e(f"s_cbranch_vccnz {l}"); A.label(l + "_r")
        def blk(): A.label(l); poll(sreg, val, None, mask); e(f"s_branch {l}_r")
        ool.append(blk)
    def xreduce(groups):
        for op, q in groups: e(f"v_permlane32_swap_b32 v{q[0]}, v{q[1]}"); e(f"v_permlane32_swap_b32 v{q[2]}, v{q[3]}")
        for op, q in groups: e(f"{op} v{q[0]}, v{q[0]}, v{q[1]}"); e(f"{op} v{q[2]}, v{q[2]}, v{q[3]}")
        for op, q in groups: e(f"v_permlane16_swap_b32 v{q[0]}, v{q[2]}")
        for op, q in groups: e(f"{op} v{q[1]}, v{q[0]}, v{q[2]}"); e(f"{op} v{q[2]}, v{q[0]}, v{q[2]}")
        for op, q in groups: e(f"v_permlane16_swap_b32 v{q[1]}, v{q[2]}")
        for op, q in groups: e(f"v_mov_b32 v{q[0]}, v{q[1]}"); e(f"v_mov_b32 v{q[3]}, v{q[2]}")
        for op, q in groups: e(f"v_permlane32_swap_b32 v{q[0]}, v{q[1]}"); e(f"v_permlane32_swap_b32 v{q[2]}, v{q[3]}")
    def xparts(i):
        t = 160+8*i; g0 = t+4; st = []
        for kk in range(2):
            f = v(RES+8*i+4*kk, 4)
            st += [[f"{MF} {v(g0,4)}, {f}, {f}, {'0' if kk == 0 else v(g0,4)}"],
                   [f"buffer_store_dwordx4 {f}, v{vB+i}, {SRD}, s{sXs} offen offset:{kk*1024}"],
                   [f"{MF} {v(t,4)}, {v(ONES,4)}, {f}, {'0' if kk == 0 else v(t,4)}"]]
        return st, [[f"v_cndmask_b32 v{g0}, v{g0}, v{g0+1}, {sm(mPAR)}", f"v_cndmask_b32 v{g0+2}, v{g0+2}, v{g0+3}, {sm(mPAR)}"],
                    [f"v_cndmask_b32 v{t+1}, v{g0}, v{g0+2}, {sm(mB1)}"],
                    [f"s_mov_b64 exec, {sm(mDIAG)}", f"buffer_store_dwordx2 {v(t,2)}, v{vSTs}, {SRD}, s{sSTs} offen offset:{i*128}", "s_mov_b64 exec, -1"]]
    def xtile(through, blocks=(0, 1)):
        ps = [xparts(i) for i in blocks]
        st = sum((sum(p[0], []) for p in ps), []) + sum((sum(p[1], []) for p in ps), [])
        if through: E([wt(t) for t in st])
        else: st_mode(st)
    def w1_piece(par, stage, i):
        r = []; slot = (stage + 1) % 6
        if i % 4 == 0: r += [f"s_add_u32 m0, s{sLW}, {slot*SLOT + i*1024}", f"s_add_u32 s{sWo}, s{ROTW+stage}, {WS_W1[par] + i*1024}"]
        return r + [f"buffer_load_dwordx4 v{vW1}, {SRD}, s{sWo} offen offset:{(i%4)*1024} lds ;@W{stage}"]
    def w2_piece(par, part, i):
        r = []
        if i % 4 == 0:
            if part < 5:
                lb, sb = ((3+part)*SLOT, 57344 + part*SLOT) if part < 3 else ((part-3)*SLOT, (part-3)*SLOT)
                r += [f"s_add_u32 m0, s{sLW}, {lb + i*1024}", f"s_mov_b32 s{sWo}, {WS_W2[par] + sb + i*1024}"]
            else: r += [f"s_add_u32 m0, s{sL8}, {2*SLOT}", f"s_sub_u32 s{sWo}, {WS_W2[par] + 2*SLOT}, s{sW2l}"]
        return r + [f"buffer_load_dwordx4 v{vW2}, {SRD}, s{sWo} offen offset:{(i%4)*1024} lds"]
    def ldsrd(dst, addr):
        base = {0: vL16, 1: vL64, 2: vL128}[addr >> 16]
        return f"ds_read_b128 {dst}, v{base} offset:{addr & 0xffff}"
    def w1st(R, blk, sa, sb): return f"buffer_store_dwordx4 {R}, v{vW1}, {SRD}, s{sa if blk < 4 else sb} offen offset:{(blk%4)*1024} sc1"
    def csst(C, sreg): return ["s_mov_b32 exec_lo, 0x003f003f", "s_mov_b32 exec_hi, 0x003f003f", f"buffer_store_dwordx4 {C}, v{vOut}, {SRD}, s{sreg} offen sc1", "s_mov_b64 exec, -1"]
    def fb_body(k): return [f"s_mov_b32 s{T1}, {WS_FLAGB + 1024*k}", f"buffer_load_dwordx4 {v(FBV,4)}, v{vL16}, {SRD}, s{T1} offen sc1"]
    fb_cond = [f"v_and_b32 v{FBV}, v{FBV}, v{FBV+1}", f"v_and_b32 v{FBV+2}, v{FBV+2}, v{FBV+3}", f"v_and_b32 v{FBV}, v{FBV}, v{FBV+2}", f"v_cmp_ne_u32 vcc, 1, v{FBV}"]
    def fb_set(k): return ["s_mov_b64 exec, 1", f"buffer_store_dword v{vVal}, off, {SRD}, s{sFBp} offset:{1024*k} sc1", "s_mov_b64 exec, -1"]
    def xw(r, kb, ad=vXW): return f"ds_write2st64_b64 v{ad}, {v(r,2)}, {v(r+2,2)} offset0:{2*kb} offset1:{2*kb+1}"

    for t in HEADER.strip("\n").split("\n"): A.raw(("; " + t).rstrip())
    A.raw(f"; @launch grid=(256,1,1) block=(256,1,1) lds={LDS_SIZE}")
    A.raw('.amdgcn_target "amdgcn-amd-amdhsa--gfx950"'); A.raw(".text")
    A.raw(f".globl {KNAME}"); A.raw(".p2align 8"); A.raw(f".type {KNAME},@function"); A.label(KNAME)
    if o.stamps: e("s_memrealtime s[86:87]")
    e("s_cmp_ge_u32 s2, 256"); e("s_cbranch_scc1 L_exit")
    e(f"s_getpc_b64 {sm(sPC)}"); A.label("L_pc")
    e(f"s_lshr_b32 s{T0}, s2, 3"); e(f"s_mulk_i32 s{T0}, {o.CPL*128}"); e(f"v_min_u32 v252, {o.CPL-1}, v0"); e(f"v_lshl_add_u32 v252, v252, 7, s{T0}")
    cpv = f"global_load_dword v{vJUNK}, v252, {sm(sPC)}"
    if o.cp0 == 0: e(cpv)
    if o.cp0 == 3: e(f"s_and_b32 s{T1}, s2, 0xf8"); e(f"s_lshl_b32 s{T1}, s{T1}, 4"); e(f"s_add_u32 s{T1}, s{T1}, 256"); e(f"s_load_dword s{sTMO}, {sm(sPC)}, s{T1}")
    e("s_load_dwordx16 s[64:79], s[0:1], 0"); e("s_load_dwordx4 s[80:83], s[0:1], 64")
    if o.force_slow: e(f"s_lshr_b32 s{SGRP}, s2, 5"); e(f"s_and_b32 s{SMEM}, s2, 31")
    else: e(f"s_and_b32 s{SGRP}, s2, 7"); e(f"s_lshr_b32 s{SMEM}, s2, 3")
    VM = 215
    e(f"s_lshl_b32 s{SIDX}, s{SGRP}, 5"); e(f"s_add_u32 s{SIDX}, s{SIDX}, s{SMEM}")
    if o.et:
        e(f"s_lshl_b32 s{T1}, s{SIDX}, 14"); e(f"v_lshl_add_u32 v250, v0, 6, s{T1}")
        if o.et > 1: e(f"s_mul_i32 s{T1}, s{SIDX}, 24576"); e(f"v_mul_u32_u24 v251, 96, v0"); e(f"v_add_u32 v251, s{T1}, v251")
        e("s_waitcnt lgkmcnt(0)")
        if o.et != 3: e(f"global_load_dword v{vJUNK}, v250, {sm(P_AX)}")
        if o.et > 1: e(f"global_load_dword v{vJUNK}, v251, {sm(P_AW1)}")
    e("v_lshrrev_b32 v1, 6, v0"); e("v_and_b32 v254, 63, v0"); e(f"v_readfirstlane_b32 s{SW}, v1")
    e(f"s_lshr_b32 s{SRB}, s{SIDX}, 4"); e(f"s_and_b32 s{SCB}, s{SIDX}, 15")
    e(f"s_mul_i32 s{sLW}, s{SW}, 6144")
    e("v_lshrrev_b32 v203, 3, v254"); e("v_and_b32 v204, 7, v254"); e("v_lshlrev_b32 v204, 4, v204"); e("v_lshl_add_u32 v210, v203, 11, v204")
    e("v_lshrrev_b32 v200, 2, v254"); e("v_and_b32 v201, 3, v254")
    e("v_mul_u32_u24 v202, 6144, v200"); e("v_lshl_add_u32 v202, v201, 4, v202")
    e(f"s_lshl_b32 s{T2}, s{SRB}, 2"); e(f"s_add_u32 s{T2}, s{T2}, s{SW}"); e(f"s_lshl_b32 s{T2}, s{T2}, 16")
    e(f"s_lshl_b32 s{T4}, s{SCB}, 7"); e(f"s_add_u32 s{T3}, s{T2}, s{T4}")
    e(f"s_lshl_b32 s{T6}, s{SGRP}, 2"); e(f"s_add_u32 s{T6}, s{T6}, s{SW}")
    e(f"s_mul_i32 s{T5}, s{T6}, {32*6144}"); e(f"s_lshl_b32 s{T4}, s{SMEM}, 6"); e(f"s_add_u32 s{T5}, s{T5}, s{T4}")
    e(f"v_lshlrev_b32 v{vL16}, 4, v254"); e(f"v_and_b32 v{vG16}, 48, v254"); e(f"v_and_b32 v{VM}, 15, v254")
    e(f"s_lshl_b32 s{T1}, s{SCB}, 11"); e(f"s_add_u32 s{sXs}, s{T1}, {WS_X}")
    e(f"s_mul_i32 s{sAo}, s{SMEM}, 196608"); e(f"s_add_u32 s{sAo}, s{sAo}, s{sLW}"); e(f"s_mul_i32 s{ROTW}, s{SGRP}, {SLOT}")
    e("v_lshlrev_b32 v249, 7, v254")
    e(f"s_lshl_b32 s{T0}, s{SIDX}, 2"); e(f"s_add_u32 s{T0}, s{T0}, s{SW}"); e(f"s_mul_i32 s{sWo}, s{T0}, 6144")
    if o.stamps == 1: e("s_memrealtime s[88:89]")
    e("s_waitcnt lgkmcnt(0)")
    if o.stamps == 1: e("s_memrealtime s[90:91]")
    e(f"s_mov_b32 s4, s{P_WS}"); e(f"s_mov_b32 s5, s{P_WS+1}"); e(f"s_mov_b32 s6, {WS_SIZE}"); e("s_mov_b32 s7, 0x20000")
    if o.cp0 in (2, 4):
        e(f"s_lshl_b32 s{T0}, s{SMEM}, 2"); e(f"s_add_u32 s{T0}, s{T0}, s{SW}"); e(f"s_lshl_b32 s{T0}, s{T0}, 7")
        for j in range((o.CPL + 3)//4 if o.cp0 == 2 else 1):
            e(f"s_load_dword s{sTMO}, {sm(sPC)}, s{T0}"); e(f"s_add_u32 s{T0}, s{T0}, 16384")
    e(f"s_xor_b32 s{T7}, s{SW}, {o.gow}")
    e(f"s_or_b32 s{T0}, s{SMEM}, s{T7}"); e(f"s_cmp_lg_u32 s{T0}, 0"); e("s_cbranch_scc1 L_p0a")
    A.track = False
    for r in range(4): e(f"v_mov_b32 v{204+r}, 0")
    e(f"s_lshl_b32 s{T0}, s{SGRP}, 12")
    for j in range(4): e(f"buffer_store_dwordx4 v[204:207], v{vL16}, {SRD}, s{T0} offen offset:{j*1024} sc1")
    e(f"s_lshl_b32 s{T0}, s{SGRP}, 7"); e(f"s_add_u32 s{T0}, s{T0}, {WS_FLAGB}")
    e("s_mov_b64 exec, 0xff")
    for j in range(2 + o.sf): e(f"buffer_store_dwordx4 v[204:207], v{vL16}, {SRD}, s{T0} offen offset:{j*1024} sc1")
    e("s_mov_b64 exec, -1")
    A.track = True
    A.label("L_p0a")
    n0 = len(A.vq)
    def setgo():
        e(f"s_or_b32 s{T0}, s{SMEM}, s{T7}"); e(f"s_cmp_lg_u32 s{T0}, 0"); e("s_cbranch_scc1 L_p0b")
        A.track = False
        srt(P_DBG, 256); e("v_mov_b32 v204, 1"); e(f"s_lshl_b32 s{T0}, s{SGRP}, {4 if o.dtouch else 5}")
        e(f"s_waitcnt vmcnt({len(A.vq) - n0})")
        e("s_mov_b64 exec, 1"); e(f"buffer_store_dword v204, off, {SRT}, s{T0} sc1"); e("s_mov_b64 exec, -1")
        A.track = True
        A.label("L_p0b")
    if o.gop == 2: setgo()
    def rowtouch(p, few=False):
        srt(p, 0x600000)
        if few: e("s_mov_b32 exec_lo, 0x08080808")
        e("s_mov_b32 exec_hi, 0x0808" if few else "s_mov_b32 exec_hi, 0xffff"); e(f"buffer_load_dword v{vJUNK}, v249, {SRT}, s{sWo} offen"); e("s_mov_b64 exec, -1")
    if o.rt in (1, 3): rowtouch(P_AW1, o.rt == 3)
    srt(P_AX, 0x400000)
    for i in range(4):
        e(f"s_add_u32 m0, s{sLW}, {i*1024}"); e(f"s_add_u32 s{T0}, s{T3}, {i*16384}")
        e(f"buffer_load_dwordx4 v210, {SRT}, s{T0} offen lds ;@x")
    if o.rt == 2: rowtouch(P_AW1)
    if o.stamps == 1: e("s_memrealtime s[92:93]")
    def touch(p, *calc):
        if o.tlb: E(list(calc)); e(f"s_load_dword s{sTMO}, s[{p}:{p+1}], s{T0}")
    if o.dtouch: touch(P_DBG, f"s_movk_i32 s{T0}, 128")
    touch(P_WS, f"s_add_u32 s{T0}, s{T2}, s{sXs}")
    touch(P_WS, f"s_add_u32 s{T0}, s{sAo}, s{ROTW}", f"s_add_u32 s{T0}, s{T0}, {WS_W1[0]}")
    touch(P_WS, f"s_mov_b32 s{T0}, 0x1f0000")
    touch(P_BW1, f"s_mov_b32 s{T0}, s{T5}"); touch(P_AW2, f"s_lshl_b32 s{T0}, s{SRB}, 17"); touch(P_BW2)
    if o.gop == 1: setgo()
    srt(P_PHI, 0x10000)
    e(f"s_add_u32 m0, s{sLW}, 4096"); e(f"s_lshl_b32 s{T0}, s{SMEM}, 11")
    for j in range(2): e(f"buffer_load_dwordx4 v{vL16}, {SRT}, s{T0} offen offset:{j*1024} lds ;@phi")
    def raw1(p, ldsb, tag):
        srt(p, 0x600000)
        for seg in range(3):
            for hf in range(2):
                e(f"s_add_u32 m0, s{sLW}, {ldsb + seg*2048 + hf*1024}"); e(f"s_add_u32 s{T0}, s{T5}, {seg*2048 + hf*16*6144}")
                e(f"buffer_load_dwordx4 v202, {SRT}, s{T0} offen lds ;@{tag}")
    raw1(P_AW1, RAW1A, "ra")
    if o.rtb == 5: rowtouch(P_BW1)
    if o.cp0 in (1, 3): e(cpv)
    if o.gop == 0: setgo()
    e(f"v_lshl_add_u32 v214, v{VM}, 7, v{vG16}"); e(f"v_add_u32 v214, s{sLW}, v214")
    e(f"v_add_u32 v{vB}, s{T2}, v{vL16}"); e(f"v_add_u32 v{vB+1}, 0x8000, v{vB}")
    e(f"s_lshr_b32 s{T2}, s{T2}, 8"); e(f"v_lshl_add_u32 v{vSTs}, v{VM}, 3, s{T2}")
    e(f"s_lshl_b32 s{T0}, s{SCB}, 14"); e(f"s_add_u32 s{sSTs}, s{T0}, {WS_ST}")
    mask64(mPAR, 0xAAAAAAAAAAAAAAAA); mask64(mB1, 0xCCCCCCCCCCCCCCCC); mask64(mDIAG, 0xF0000F0000F0000F)
    for r in range(4): e(f"v_mov_b32 v{ONES+r}, 0x3f803f80")
    if o.stamps:
        e(f"v_mov_b32 v{vSTAMP}, 0"); e(f"v_writelane_b32 v{vSTAMP}, s86, 12"); e(f"v_writelane_b32 v{vSTAMP}, s{sPC}, 63")
    stamp(28)
    if o.stamps == 1:
        for j in range(3): e(f"v_writelane_b32 v{vSTAMP}, s{88+2*j}, {60+j}")
    e("WAITV x")
    for i in range(2):
        for kk in range(2): e(f"ds_read_b128 {v(RES+8*i+4*kk,4)}, v214 offset:{i*2048 + kk*64}")
    e(f"v_add_u32 v{vW1}, s{sAo}, v{vL16}"); e(f"v_add_u32 v{vLW}, s{sLW}, v{vL16}")
    e("v_and_b32 v209, 3, v200"); e(f"v_lshrrev_b32 v203, 1, v{vG16}"); e("v_add_u32 v209, v209, v203")
    e("v_lshlrev_b32 v203, 6, v209"); e("v_lshl_add_u32 v205, v201, 3, v203"); e(f"v_add_u32 v205, s{sLW}, v205")
    e("v_lshl_add_u32 v206, v201, 4, v203"); e(f"s_add_u32 s{T1}, s{sLW}, {RAW1A}"); e(f"v_add_u32 v206, s{T1}, v206")
    e(f"v_lshrrev_b32 v203, 2, v{VM}"); e("v_lshl_add_u32 v203, v203, 3, v201"); e(f"v_lshl_add_u32 v203, v203, 6, v{vG16}"); e(f"v_add_u32 v208, s{T1}, v203")
    e(f"v_lshl_add_u32 v{vOut}, v{VM}, 11, v{vG16}")
    e("s_waitcnt lgkmcnt(0)")
    stamp(29)
    if o.cp0 == 4: e(cpv)
    if o.rtb == 1: rowtouch(P_BW1)
    xtile(True)
    def goload():
        srt(P_DBG, 256)
        e("v_and_b32 v253, 7, v254"); e(f"v_lshlrev_b32 v253, {4 if o.dtouch else 5}, v253"); e(f"s_cmp_eq_u32 s{SW}, 0"); e(f"s_cselect_b32 s{T0}, 0, {OOR}")
        e(f"buffer_load_dword v212, v253, {SRT}, s{T0} offen sc1 ;@go")
    gm = ([f"s_lshl_b64 exec, 1, s{SGRP}"], ["s_mov_b64 exec, -1"]) if o.gown else ([], [])
    def gocheck():
        e(f"s_cmp_eq_u32 s{SW}, 0"); e(f"s_cselect_b32 s{T0}, 1, 0")
        e("WAITV go")
        stamp(31)
        E(gm[0]); e(f"v_cmp_ne_u32 vcc, s{T0}, v212"); E(gm[1]); e("s_cbranch_vccnz L_goslow")
        A.label("L_gook")
        def goslow():
            A.label("L_goslow"); srt(P_DBG, 256); e("s_waitcnt lgkmcnt(0)")
            E(gm[0]); spin([f"buffer_load_dword v212, v253, {SRT}, 0 offen sc1"], ["v_cmp_ne_u32 vcc, 1, v212"]); E(gm[1]); e("s_branch L_gook")
        ool.append(goslow)
    def xcc():
        e(f"s_getreg_b32 s{SXCC}, hwreg(HW_REG_XCC_ID, 0, 4)"); e(f"s_or_b32 s{SXCC}, s{SXCC}, 0x100"); e(f"v_mov_b32 v{vVal}, s{SXCC}")
        e(f"s_lshl_b32 s{T1}, s{SIDX}, 2"); e(f"s_add_u32 s{T1}, s{T1}, {WS_FLAGB}"); e(f"s_cmp_eq_u32 s{SW}, 0"); e(f"s_cselect_b32 s{sFBp}, s{T1}, {OOR}")
    def flagx():
        gocheck(); e("s_barrier"); E(fb_set(2))
    SB = 224 if o.sf else 96
    if o.sf: goload(); xcc()
    if o.rtb == 2: rowtouch(P_BW1)
    if o.w2t:
        e(f"s_lshl_b32 s{T0}, s{SIDX}, 2"); e(f"s_add_u32 s{T0}, s{T0}, s{SW}"); e(f"s_lshl_b32 s{T0}, s{T0}, 11"); e("s_mov_b64 exec, 0xffff")
        for p in (P_BW2, P_AW2)[:o.w2t]:
            srt(p, 0x200000); e(f"buffer_load_dword v{vJUNK}, v249, {SRT}, s{T0} offen")
        e("s_mov_b64 exec, -1")
    for blk in range(6):
        mask64(T1, 0x0001000100010001 << blk)
        for r in range(4): e(f"v_cndmask_b32 v{SB+4*blk+r}, 0, v{ONES}, {sm(T1)}")
    e(f"s_add_u32 s{T2}, s{ROTW}, {WS_W1[0]}"); e(f"s_add_u32 s{T4}, s{T2}, 4096")
    e(f"s_lshl_b32 s{T0}, s{T6}, 6"); e(f"s_mul_i32 s{T1}, s{SMEM}, 12288"); e(f"s_add_u32 s{T0}, s{T0}, s{T1}"); e(f"s_add_u32 s{sCL0}, s{T0}, {WS_CS}")
    e("WAITV phi")
    for fb in range(2):
        for t in range(2): e(f"ds_read_b64_tr_b16 {v(PHI+4*fb+2*t,2)}, v205 offset:{4096 + fb*32 + t*256}")
    e("WAITV ra")
    if o.rtb == 6: rowtouch(P_BW1)
    stamp(13)
    if o.sf and o.sfp == 0: flagx()
    RA, RB = RS(0, 0), RS(1, 0)
    for seg in range(2):
        for kb in range(2): e(f"ds_read_b128 {v(120+8*seg+4*kb,4)}, v208 offset:{seg*2048 + kb*256} ;@s{seg}")
    for blk in (4, 5):
        for t in range(2): e(f"ds_read_b64_tr_b16 {a(RA+4*blk+2*t,2)}, v206 offset:{4096 + t*256 + (blk&1)*8}")
    for seg in range(2):
        e(f"WAITL s{seg}")
        for fb in range(2):
            for kb in range(2): e(f"{MF} {v(160+16*seg+8*fb+4*kb,4)}, {v(120+8*seg+4*kb,4)}, {v(PHI+4*fb,4)}, 0")
    e("s_waitcnt lgkmcnt(0)")
    for blk in (4, 5):
        e(w1st(a(RA+4*blk,4), blk, T2, T4))
        e(f"{MF} v[64:67], {a(RA+4*blk,4)}, {v(SB+4*blk,4)}, {'0' if blk == 4 else 'v[64:67]'}")
    for blk in range(4):
        cvt4(136+4*blk, 160+8*blk, 164+8*blk)
        e(w1st(v(136+4*blk,4), blk, T2, T4))
        e(f"{MF} v[64:67], {v(136+4*blk,4)}, {v(SB+4*blk,4)}, v[64:67]")
    for r in range(16): e(f"v_accvgpr_write_b32 a{RA+r}, v{136+r}")
    E(csst(v(64,4), sCL0))
    if not o.sf: goload()
    if o.sf and o.sfp == 1: flagx()
    elif o.bbar: e("s_barrier")
    if o.rtb == 3: rowtouch(P_BW1)
    e(f"s_lshl_b32 s{T0}, s{SRB}, 1"); e(f"s_and_b32 s{T3}, s{SW}, 1"); e(f"s_add_u32 s{T0}, s{T0}, s{T3}")
    e(f"s_lshl_b32 s{T1}, s{SCB}, 1"); e(f"s_lshr_b32 s{T4}, s{SW}, 1"); e(f"s_add_u32 s{T1}, s{T1}, s{T4}"); e(f"s_lshl_b32 s{T1}, s{T1}, 6")
    e(f"s_lshl_b32 s{sW2s}, s{T0}, 12"); e(f"s_lshl_b32 s{T0}, s{T0}, 16"); e(f"s_add_u32 s{T0}, s{T0}, s{T1}"); e(f"s_add_u32 s{T1}, s{T0}, 0x8000")
    e("v_lshlrev_b32 v203, 11, v200"); e("v_lshl_add_u32 v207, v201, 4, v203")
    e(f"s_mov_b32 s{D1}, s{T0}"); e(f"s_mov_b32 s{D2}, s{T1}")
    def raw2(wt_):
        srt((P_AW2, P_BW2)[wt_], 0x200000)
        for i in range(2):
            e(f"s_add_u32 m0, s{sLW}, {RAW2 + wt_*2048 + i*1024}")
            e(f"buffer_load_dwordx4 v207, {SRT}, s{D1 + i} offen lds ;@r2{wt_}")
    for wt_ in range(o.w2e): raw2(wt_)
    for blk in range(6): e(f"ds_write_b128 v{vLW}, {a(RA+4*blk,4)} offset:{SLOT + blk*1024}")
    stamp(30)
    if not o.sf: xcc()
    e(f"s_lshl_b32 s{T0}, s{T4}, 11"); e(f"s_add_u32 s{sW2s}, s{sW2s}, s{T0}"); e(f"s_lshl_b32 s{T0}, s{SCB}, 17")
    e(f"s_add_u32 s{sW2s}, s{sW2s}, s{T0}"); e(f"s_add_u32 s{sW2s}, s{sW2s}, {WS_W2[0]}")
    e(f"s_lshl_b32 s{T1}, s{SMEM}, 15"); e(f"s_lshl_b32 s{T2}, s{SW}, 10"); e(f"s_add_u32 s{T1}, s{T1}, s{T2}"); e(f"s_add_u32 s{sKV}, s{T1}, {WS_KVP - WS_X + (1<<32)}")
    e(f"s_lshr_b32 s{T1}, s{T1}, 4"); e(f"s_add_u32 s{sZP}, s{T1}, {WS_ZP}")
    for s_ in range(8):
        e(f"s_add_u32 s{T1}, s{SGRP}, {s_}"); e(f"s_and_b32 s{T1}, s{T1}, 7")
        e(f"s_mul_i32 s{ROTW+s_}, s{T1}, {SLOT}"); e(f"s_lshl_b32 s{T1}, s{T1}, 12"); e(f"s_add_u32 s{ROTA+s_}, s{T1}, {WS_X}")
    e(f"s_lshl_b32 s{T1}, s{SIDX}, 11"); e(f"s_add_u32 s{sHALO}, s{T1}, {WS_HALO}")
    e(f"s_lshl_b32 s{T1}, s{SMEM}, 10"); e(f"s_add_u32 s{sO}, s{T1}, {WS_X if o.alias else WS_O}")
    touch(P_WS, f"s_mov_b32 s{T0}, s{sW2s}")
    touch(P_WS, f"s_add_u32 s{T0}, s{sKV}, s{ROTA}")
    touch(P_WS, f"s_add_u32 s{T0}, s{sW2s}, {WS_W2[1] - WS_W2[0]}")
    touch(P_WS, f"s_add_u32 s{T0}, s{sAo}, s{ROTW}", f"s_add_u32 s{T0}, s{T0}, {WS_W1[1]}")
    touch(P_WS, f"s_mov_b32 s{T0}, s{sHALO}")
    touch(P_WS, f"s_lshl_b32 s{T0}, s{T6}, 17", f"s_add_u32 s{T0}, s{T0}, s{sO}")
    touch(P_OUT, f"s_lshl_b32 s{T0}, s{SRB}, 18", f"s_lshl_b32 s{T1}, s{SCB}, 7", f"s_add_u32 s{T0}, s{T0}, s{T1}")
    e(f"s_lshl_b32 s{T0}, s{SGRP}, 5"); e(f"v_add_u32 v203, s{T0}, v254")
    e("v_and_b32 v204, 7, v254"); e(f"v_lshl_add_u32 v204, v204, 5, s{SMEM}")
    mask64(T1, 0x00000000FFFFFFFF); e(f"v_cndmask_b32 v211, v204, v203, {sm(T1)}"); e("v_lshlrev_b32 v211, 7, v211")
    if o.sf: e("v_lshlrev_b32 v250, 7, v204")
    def flaga():
        e(f"s_lshl_b32 s{T0}, s{SIDX}, 7"); e(f"s_cmp_eq_u32 s{SW}, 0"); e(f"s_cselect_b32 s{T0}, s{T0}, {OOR}")
        e("s_barrier")
        e("s_mov_b64 exec, 1"); e(f"buffer_{'atomic_or' if o.apoll else 'store_dword'} v{vVal}, off, {SRD}, s{T0} sc1"); e("s_mov_b64 exec, -1")
        stamp(14)
    def bloads():
        for wt_ in range(o.w2e, 2): raw2(wt_)
        if o.rtb == 4: rowtouch(P_BW1)
        if not o.bin: raw1(P_BW1, RAW1B, "rb")
        else: srt(P_BW1, 0x600000)
    if not o.sf: gocheck(); flaga(); bloads()
    e(f"s_cmp_eq_u32 s{SW}, 0"); e(f"s_cselect_b32 s{T7}, 0, {OOR}")
    if o.gown: srt(P_DBG, 256); e(f"buffer_load_dword v250, v253, {SRT}, s{T7} offen sc1 ;@go2")
    mask64(mM0, 0x0001000100010001)
    mask64(mOWN0, sum(1 << l for l in range(64) if 4*(l >> 4) + (l & 1) <= (l & 15)))
    mask64(mOWN1, sum(1 << l for l in range(64) if 4*(l >> 4) + 2 + (l & 1) <= (l & 15)))
    e(f"s_lshl_b32 s{T1}, s{T6}, 7"); e(f"s_add_u32 s{sFXc}, s{T1}, {WS_FLAGX}")
    e(f"s_lshl_b32 s{T2}, s{SMEM}, 2"); e(f"s_add_u32 s{T1}, s{T1}, s{T2}"); e(f"s_add_u32 s{sFOp}, s{T1}, {WS_FLAGO}")
    e(f"s_lshl_b32 s{T1}, s{SRB}, 1"); e(f"s_add_u32 s{T1}, s{T1}, s{T4}"); e(f"s_lshl_b32 s{T1}, s{T1}, 7")
    e(f"s_add_u32 s{sFOc}, s{T1}, {WS_FLAGO}")
    e(f"s_lshl_b32 s{T2}, s{SCB}, 3"); e(f"s_lshl_b32 s{T0}, s{T3}, 2")
    e(f"s_add_u32 s{T1}, s{T1}, s{T2}"); e(f"s_add_u32 s{T1}, s{T1}, s{T0}"); e(f"s_add_u32 s{sFXp}, s{T1}, {WS_FLAGX}")
    e(f"s_lshl_b32 s{T0}, s{SGRP}, 8"); e(f"s_add_u32 s{sZo}, s{T0}, s{sZP}")
    e(f"s_lshl_b32 s{T1}, s{T3}, 10"); e(f"s_lshl_b32 s{T2}, s{T4}, 19")
    e(f"s_add_u32 s{T1}, s{T1}, s{T2}"); e(f"s_add_u32 s{sCL2}, s{T1}, s{sHALO}")
    e(f"s_cmp_eq_u32 s{SW}, 3"); e(f"s_cselect_b32 s{sHst}, s{sHALO}, {OOR}")
    e(f"s_sub_u32 s{T1}, s{sHALO}, 0x10000"); e(f"s_cmp_eq_u32 s{SW}, 0"); e(f"s_cselect_b32 s{T1}, s{T1}, {OOR}")
    e(f"s_cmp_eq_u32 s{SGRP}, 0"); e(f"s_cselect_b32 s{sHld}, {OOR}, s{T1}")
    e(f"s_lshl_b32 s{T0}, s{SGRP}, 2"); e(f"s_lshl_b32 s{mX}, 15, s{T0}"); e(f"s_mov_b32 s{mX+1}, 0")
    e(f"s_sub_u32 s{T0}, s{sFOp}, s{sFOc}"); e(f"s_lshr_b32 s{T1}, s{T0}, 2"); e(f"s_lshl_b32 s{T1}, 1, s{T1}"); e(f"s_cmp_lt_u32 s{T0}, 128"); e(f"s_cselect_b32 s{T1}, s{T1}, 0")
    e(f"s_andn2_b32 s{mEO}, {(1 << (o.g2depth - 1)) - 1 if o.lazy & 2 else -1}, s{T1}"); e(f"s_mov_b32 s{mEO+1}, 0")
    e(f"s_sub_u32 s{T0}, s{sFXp}, s{sFXc}"); e(f"s_lshr_b32 s{T1}, s{T0}, 2"); e(f"s_lshl_b32 s{T1}, 1, s{T1}"); e(f"s_cmp_lt_u32 s{T0}, 128"); e(f"s_cselect_b32 s{T1}, s{T1}, 0")
    e(f"s_andn2_b32 s{mEX}, {'s%d' % mX if o.lazy & 1 else -1}, s{T1}"); e(f"s_mov_b32 s{mEX+1}, 0")
    e(f"s_lshl_b32 s{sL8}, s{SW}, 11"); e(f"s_lshl_b32 s{sW2l}, s{SW}, 12")
    e(f"s_or_b32 s{T0}, s{SGRP}, s{SW}"); e(f"s_cmp_eq_u32 s{T0}, 0"); e(f"s_cselect_b64 {sm(mFIRST)}, -1, 0")
    e(f"v_add_u32 v{vL64}, 0x10000, v{vL16}"); e(f"v_add_u32 v{vL128}, 0x20000, v{vL16}"); e(f"v_add_u32 v{vLW3}, {(3-o.nopf)*SLOT}, v{vLW}")
    e(f"v_and_b32 v{vFP}, 31, v254"); e(f"v_lshlrev_b32 v{vFP}, 2, v{vFP}")
    e(f"s_lshl_b32 s{T1}, s{T6}, 17"); e(f"v_add_u32 v{vA}, s{T1}, v{vL16}")
    for i in range(1, 4): e(f"v_add_u32 v{vA+i}, {i*0x8000}, v{vA}")
    e(f"s_lshl_b32 s{T1}, s{T6}, 9"); e("v_lshrrev_b32 v213, 5, v254"); e(f"v_lshl_add_u32 v{vSTl}, v213, 17, s{T1}"); e(f"v_lshl_add_u32 v{vSTl}, v{vFP}, 2, v{vSTl}")
    e(f"s_lshl_b32 s{T1}, s{SCB}, 17"); e(f"s_add_u32 s{T1}, s{T1}, s{sLW}"); e(f"v_add_u32 v{vW2}, s{T1}, v{vL16}")
    e("v_lshrrev_b32 v203, 4, v254"); e("v_xor_b32 v204, v203, v201"); e("v_lshlrev_b32 v204, 3, v204"); e("v_lshl_add_u32 v208, v200, 5, v204")
    e(f"s_lshl_b32 s{T2}, s{SW}, 12")
    e(f"v_lshrrev_b32 v204, 2, v{VM}"); e("v_xor_b32 v203, v203, v204"); e("v_lshlrev_b32 v203, 3, v203")
    e(f"v_lshl_add_u32 v203, v{VM}, 5, v203"); e(f"v_add_u32 v{vXW}, s{T2}, v203")
    e(f"s_lshl_b32 s{T0}, s{T4}, 14"); e(f"s_lshl_b32 s{T1}, s{T3}, 9"); e(f"s_add_u32 s{T2}, s{T0}, s{T1}"); e(f"v_add_u32 v{vE0}, s{T2}, v208")
    e(f"v_xor_b32 v{vE1}, 512, v{vE0}"); e(f"s_add_u32 s{T1}, s{T1}, {VB_LDS}"); e(f"v_add_u32 v{vVr}, s{T1}, v208")
    if o.kt:
        e(f"s_lshl_b32 s{T0}, s{SW}, 12"); e(f"v_add_u32 v{vXW}, s{T0}, v{vL16}")
        e(f"s_lshl_b32 s{T0}, s{SW}, 10"); e(f"s_add_u32 s{T0}, s{T0}, {VB_LDS}"); e(f"v_add_u32 v{vE0}, s{T0}, v{vL16}")
        e(f"s_lshl_b32 s{T0}, s{SW}, 8"); e(f"s_add_u32 s{T0}, s{T0}, {M_ZX}"); e(f"v_lshl_add_u32 v203, v201, 6, v{vG16}"); e(f"v_add_u32 v{vE1}, s{T0}, v203")
        e(f"s_lshl_b32 s{T0}, s{SW}, 6"); e(f"s_add_u32 s{T0}, s{T0}, {M_ZX}"); e(f"v_lshl_add_u32 v203, v201, 8, v{vG16}"); e(f"v_add_u32 v{vVr}, s{T0}, v203")
    e(f"s_lshl_b32 s{T1}, s{T3}, 3")
    e(f"v_add_u32 v{vGM}, {M}, v{vG16}")
    e(f"s_lshl_b32 s{T0}, s{T4}, 6"); e(f"s_add_u32 s{T0}, s{T0}, s{T1}"); e(f"v_add_u32 v{vZW}, s{T0}, v{vGM}")
    e(f"s_lshl_b32 s{T0}, s{SW}, 10"); e(f"s_add_u32 s{T0}, s{T0}, {M_KX}"); e(f"v_add_u32 v{vKX}, s{T0}, v{vL16}")
    e(f"v_add_u32 v{vKX0}, s{T1}, v{vKX}"); e(f"v_xor_b32 v{vKX1}, 8, v{vKX0}")
    e(f"s_lshl_b32 s{T0}, s{SW}, 9"); e(f"s_add_u32 s{T0}, s{T0}, {M_ST}")
    e(f"v_lshl_add_u32 v203, v213, 2, s{T0}"); e(f"v_lshl_add_u32 v{vSW}, v{vFP}, 1, v203"); e(f"v_lshl_add_u32 v{vSR}, v{VM}, 2, s{T0}")
    e(f"v_add_u32 v{vSQ}, s{T0}, v{vG16}"); e(f"v_lshlrev_b32 v203, 2, v{VM}"); e(f"v_add_u32 v{vCV}, {M_CS}, v203")
    e(f"v_and_b32 v203, 7, v{VM}"); e(f"v_lshl_add_u32 v{vZL}, v203, 8, v{vG16}")
    e("v_mov_b32 v203, 0xffff"); e("v_mov_b32 v204, 0xffff0000"); e(f"v_cndmask_b32 v203, v203, v204, {sm(mPAR)}")
    e(f"v_cndmask_b32 v{MO0}, 0, v203, {sm(mOWN0)}"); e(f"v_cndmask_b32 v{MO1}, 0, v203, {sm(mOWN1)}")
    e(f"v_xor_b32 v{MP0}, v203, v{MO0}"); e(f"v_xor_b32 v{MP1}, v203, v{MO1}")
    e(f"s_add_u32 s{T2}, s{SW}, 4"); e(f"s_min_u32 s{T2}, s{T2}, 5"); e(f"s_mul_i32 s{T0}, s{SMEM}, 12288"); e(f"s_add_u32 s{T0}, s{T0}, {WS_CS}")
    e(f"s_lshl_b32 s{T1}, s{SW}, 11"); e(f"s_add_u32 s{sCSa}, s{T0}, s{T1}"); e(f"s_lshl_b32 s{T1}, s{T2}, 11"); e(f"s_add_u32 s{sCSb}, s{T0}, s{T1}")
    e("v_bfe_u32 v203, v254, 4, 1"); e("v_lshlrev_b32 v203, 3, v203"); e("v_lshl_add_u32 v203, v213, 2, v203"); e("v_lshl_add_u32 v203, v201, 4, v203"); e(f"v_add_u32 v203, {M_CS}, v203")
    e(f"s_lshl_b32 s{T1}, s{SW}, 6"); e(f"v_add_u32 v{vCSa}, s{T1}, v203"); e(f"s_lshl_b32 s{T1}, s{T2}, 6"); e(f"v_add_u32 v{vCSb}, s{T1}, v203")
    e(f"s_lshl_b32 s{T0}, s{SMEM}, 2"); e(f"s_add_u32 s{T0}, s{T0}, s{SW}"); e(f"s_lshl_b32 s{T2}, s{T0}, 7"); e(f"v_mov_b32 v{vCPF}, s{T2}")
    e(f"s_lshr_b32 s{T1}, s{T0}, 3"); e(f"s_and_b32 s{T0}, s{T0}, 7")
    e(f"s_lshl_b32 s{T2}, s{SGRP}, 4"); e(f"s_add_u32 s{T1}, s{T1}, s{T2}"); e(f"s_lshl_b32 s{T1}, s{T1}, 15"); e(f"s_lshl_b32 s{T0}, s{T0}, 9"); e(f"s_add_u32 s{T0}, s{T0}, s{T1}")
    e(f"v_lshl_add_u32 v{vTCH}, v{vG16}, 3, s{T0}")
    for r in range(4): e(f"v_accvgpr_write_b32 a{252+r}, -1")
    def clears():
        e(f"v_mov_b32 v{vVal}, 0"); e(f"s_add_u32 s{T0}, s{sKV}, s{ROTA}")
        e(f"buffer_store_dwordx4 a[252:255], v{vL16}, {SRD}, s{T0} offen sc1")
        e(f"s_mov_b64 exec, {sm(mM0)}"); e(f"buffer_store_dwordx4 a[252:255], v{vG16}, {SRD}, s{sZo} offen sc1")
        e("s_mov_b64 exec, 1"); e(f"buffer_store_dword v{vVal}, off, {SRD}, s{sFOp} sc1"); e(f"buffer_store_dword v{vVal}, off, {SRD}, s{sFXp} sc1"); e("s_mov_b64 exec, -1")
    if not o.sf: clears()
    pl = [f"buffer_load_dword v212, v211, {SRD}, s{T7} offen sc1"]
    if o.apoll: pl = ["v_mov_b32 v212, -1", "s_mov_b32 exec_hi, 0xff", "v_mov_b32 v212, 0", f"buffer_atomic_or v212, v211, {SRD}, s{T7} offen sc0 sc1", "s_mov_b64 exec, -1"]
    W2T, vTRB = (160, 249) if o.sf else (224, 206)
    def w2tr(wt_):
        e(f"WAITV r2{wt_}")
        for b_ in range(2):
            for t in range(2):
                d_ = v(W2T+4*b_+2*t, 2) if wt_ == 0 else a(HW2+4*b_+2*t, 2)
                e(f"ds_read_b64_tr_b16 {d_}, v{vTRB} offset:{2*SLOT + wt_*2048 + t*256 + b_*8}")
    def w2ast():
        e("s_waitcnt lgkmcnt(0)")
        for b_ in range(2): e(f"buffer_store_dwordx4 {v(W2T+4*b_,4)}, v{vL16}, {SRD}, s{sW2s} offen offset:{b_*1024} sc1 ;@b1")
    def retb():
        for blk in range(6):
            for t in range(2): e(f"ds_read_b64_tr_b16 {a(RB+4*blk+2*t,2)}, v{vTRB} offset:{SLOT + (blk>>1)*2048 + t*256 + (blk&1)*8} ;@r{blk}")
        for blk in range(6):
            e(f"WAITL r{blk}")
            e(f"{MF} {a(HCS,4)}, {a(RB+4*blk,4)}, {v(SB+4*blk,4)}, {'0' if blk == 0 else a(HCS,4)}")
    if o.sf:
        assert o.w2e >= 1 and not o.bin and not o.gown and not o.apoll
        e(f"s_lshl_b32 s{T0}, s{SGRP}, 7"); e(f"s_add_u32 s{T0}, s{T0}, {WS_FLAGB + 2048}"); e(f"v_add_u32 v211, s{T0}, v{vFP}")
        e("v_mov_b32 v249, v206")
        stamp(44)
        e(pl[0] + " ;@poll")
        w2tr(0); e("s_waitcnt lgkmcnt(0)")
    elif o.bin:
        w2tr(0); w2ast()
        e("v_mov_b32 v248, v202"); e(f"v_subrev_u32 v249, {RAW1A}, v206")
        stamp(44)
        E([t + (" ;@poll" if t.startswith("buffer") else "") for t in pl])
        w2tr(1); e("s_waitcnt lgkmcnt(0)")
    else:
        e("WAITV rb")
        if o.gown:
            e(f"s_cmp_eq_u32 s{SW}, 0"); e(f"s_cselect_b32 s{T0}, 1, 0"); e("WAITV go2"); e("s_waitcnt lgkmcnt(0)"); e(f"v_cmp_ne_u32 vcc, s{T0}, v250")
            E(retry([f"buffer_load_dword v250, v253, {SRT}, 0 offen sc1"], ["v_cmp_ne_u32 vcc, 1, v250"]))
        stamp(44)
        E([t + (" ;@poll" if t.startswith("buffer") else "") for t in pl])
        w2tr(0); w2tr(1); w2ast()
        retb()
    if not o.sf: e(f"v_mov_b32 v{vVal}, 1")
    stamp(45)
    e("WAITV poll")
    e(f"s_cmp_lg_u32 s{SW}, 0"); e("s_cbranch_scc1 L_faok")
    A.track = False
    e("v_cmp_eq_u32 vcc, 0, v212"); e("s_cbranch_vccz L_fad")
    spin(([f"s_sleep {o.psl}"] if o.psl else []) + pl, ["v_cmp_eq_u32 vcc, 0, v212"])
    A.label("L_fad")
    e(f"v_cmp_ne_u32 {sm(T1)}, s{SXCC}, v212"); e(f"v_mov_b32 v212, s{T1}")
    e(f"ds_write_b32 v{vGM}, v212"); e("s_waitcnt lgkmcnt(0)")
    A.track = True
    A.label("L_faok")
    if o.sf: flaga()
    else: e("s_barrier")
    stamp(15)
    e(f"ds_read_b32 v{FBV}, v{vGM} ;@mode")

    for lay in range(o.last + 1):
        par = lay & 1; early = lay < 2; li = lay >> 1; last = lay == o.last
        A.label(f"L_layer{lay}")
        stamp(0)
        pool = list(range(RING, 240 - 48*o.NRES, 4))
        if lay == 0: pool += [RS(1, k) + 4*j for k in range(1, o.NRES + 1) for j in range(6)]
        if lay >= 2: pool += [RS(0, k) + 4*j for k in range(o.NRES + 1) for j in range(6)]
        nd = (o.ND0, 0, o.ND2, 0)[lay]; TB = o.TB if par else 0
        LAF = 4*(o.LA0, o.LAB, o.LA2, o.LA3)[lay]; NF = max(4*nd, LAF + 4)
        assert NF + 2*nd <= len(pool)
        gpos = o.gpos if lay == 0 else o.gpos2
        vn = par or o.kt
        units = [(st, (0, 1, 2, 3), list(range(2 if st >= 32 - nd else 0, 6))) for st in range(32 - TB)]
        units += [(st, bl, list(range(6))) for bl in ((2, 3), (0, 1)) for st in range(32 - TB, 32)]
        anext = [(u, st, i) for u, (st, bl, _) in enumerate(units) for i in bl]
        fidx = {(st, i): n for n, (u, st, i) in enumerate(anext)}
        def afr(step, i): return a(pool[fidx[(step, i)] % NF], 4)
        def wdst(step, c):
            if c < 2 and step >= 32 - nd: return a(pool[NF + 2*(step - (32-nd)) + c], 4)
            return v(WFV + 4*c, 4)
        def w1rd(u, c):
            step = units[u][0]
            return ldsrd(wdst(step, c), ((step//4 + 1) % 6)*SLOT + (step % 4)*6144 + c*1024) + f" ;@w{u}_{c}"
        def aload(u, step, i):
            return f"buffer_load_dwordx4 {afr(step, i)}, v{vA+i}, {SRD}, s{ROTA + step//4} offen offset:{(step%4)*1024} sc1 ;@A{u}"
        def mma(step, c, i):
            x, y = (afr(step, i), wdst(step, c)) if (vn and c >= 4) else (wdst(step, c), afr(step, i))
            return f"{MF} {v(acc(c,i),4)}, {x}, {y}, {'0' if step == 0 else v(acc(c,i),4)}"
        def ostore(i, through):
            t = f"buffer_store_dwordx4 {v(224+4*i,4)}, v{vA+i}, {SRD}, s{sO} offen"
            if through: e(wt(t))
            else: st_mode([t])
        if lay == 0 and not o.sf:
            for c in range(6): e(w1rd(0, c))
        for j in range(4*o.APRE): e(aload(*anext.pop(0)))
        nbar = 0
        if lay == 0 and o.sf:
            bloads(); clears(); w2ast(); e(f"v_mov_b32 v{vVal}, 1")
            e(f"v_readfirstlane_b32 s{SMODE}, v{FBV}")
            for c in range(6): e(w1rd(0, c))
        elif lay == 0:
            for i in range(6): E(w1_piece(par, 1, i))
            e("WAITL mode"); e(f"v_readfirstlane_b32 s{SMODE}, v{FBV}")
        else:
            if o.lazy & 1: poll2(sFXc)
            e("s_waitcnt lgkmcnt(0)"); e("s_barrier")
            for c in range(6): e(w1rd(0, c))
        wr, w1s, w2r, w2s = (o.wrE, o.w1sE, o.w2E, o.w2sE) if early else (o.wrL, o.w1sL, o.w2L, o.w2sL)
        if par: w2r, w2s = (o.w2BE, o.w2sBE) if early else (o.w2BL, o.w2sBL)
        if lay == 3: wr = o.wrBL
        if lay == 0: wr, w1s = o.wr0, max(o.w1s0, o.sfu*o.sf)
        pend = [("W", st, i) for st in range(2 if early else 2 + o.NRES - o.nopf, 8) for i in range(6)] + [("W2", p, i) for p in range(4 + par) for i in range(6)]
        def allowed(p, t):
            if p[0] == "W" and p[1] == 5 and lay == 0 and o.bin and not ready("r5"): return False
            if p[0] == "W": return p[1] < 6 or nbar >= p[1] - 4
            return nbar >= p[1] + 4 and t >= w2s and (lay > 0 or fbdone[0])
        fbdone = [False]
        misc = [(max(o.s0 + o.sper*j, o.lazy & 1), [f"s_mov_b32 s{T0}, {WS_ST + j*16384}", f"buffer_load_dwordx4 {v(160+4*j,4)}, v{vSTl}, {SRD}, s{T0} offen sc1 ;@S{j}"]) for j in range(8)]
        extra = []
        extra2 = []; sh2 = []
        sh = []
        if early:
            for j in range(4):
                extra.append((4 + j, [f"buffer_load_dwordx4 {v(224+8*(j//2)+4*(j%2),4)}, v{vL16}, {SRD}, s{(sCSa, sCSb)[j%2]} offen offset:{(j//2)*1024} sc1 ;@CS{j}"]))
            d = 224
            r = [f"v_add_f32 v{d+j}, v{d+j}, v{d+8+j}" for j in range(8)]
            for s_ in (8, 4): r += [f"v_add_f32_dpp v{d+j}, v{d+j}, v{d+j} row_ror:{s_} row_mask:0xf bank_mask:0xf" for j in range(8)]
            r = [r[j:j+2] for j in range(0, len(r), 2)] + [[f"v_permlane32_swap_b32 v{d+j}, v{d+j+1}"] for j in range(0, 8, 2)]
            r += [[f"v_add_f32 v{d+j}, v{d+j}, v{d+j+1}", f"v_add_f32 v{d+j+2}, v{d+j+2}, v{d+j+3}"] for j in (0, 4)]
            r += [[f"v_permlane16_swap_b32 v{d}, v{d+2}"], [f"v_permlane16_swap_b32 v{d+4}, v{d+6}"], [f"v_add_f32 v{d}, v{d}, v{d+2}", f"v_add_f32 v{d+4}, v{d+4}, v{d+6}"],
                  ["s_mov_b32 exec_lo, 0x000f000f", "s_mov_b32 exec_hi, 0x000f000f", f"ds_write_b32 v{vCSa}, v{d} offset:{par*384}", f"ds_write_b32 v{vCSb}, v{d+4} offset:{par*384} ;@csw",
                   "s_mov_b64 exec, -1"], [f"s_add_u32 s{sCSa}, s{sCSa}, {CS_SZ}", f"s_add_u32 s{sCSb}, s{sCSb}, {CS_SZ}"]]
            caps = [[(8 + 4*k - 4*o.nopf, None, [f"ds_read_b128 {a(RS(par, k+1)+4*b_,4)}, v{vLW3} offset:{k*SLOT + b_*1024}"]) for b_ in range(6)] for k in range(o.NRES)]
            sh += (caps[0] if caps else []) + [(8, "CS3", x) for x in r] + sum(caps[1:], [])
        if lay == 0 and o.bin:
            rbl = [[f"s_mov_b32 s{T2}, m0", f"s_add_u32 m0, s{sLW}, {j*1024}", f"s_add_u32 s{T1}, s{T5}, {(j>>1)*2048 + (j&1)*16*6144}",
                    f"buffer_load_dwordx4 v248, {SRT}, s{T1} offen lds ;@rb{j}", f"s_mov_b32 m0, s{T2}"] for j in range(6)]
            extra2 = [(o.bs0 + j, x) for j, x in enumerate(rbl)]
            r = [[f"ds_read_b64_tr_b16 {a(RB+4*blk+2*t,2)}, v249 offset:{(blk>>1)*2048 + t*256 + (blk&1)*8} ;@r{blk}" for t in range(2)] for blk in range(6)]
            for blk in range(6):
                q_ = 240 + 4*(blk & 1); mk = 0x00010001 << blk
                r += [[f"s_mov_b32 s{T3}, {mk}", f"s_mov_b32 s{T4}, {mk}"]] + [[f"v_cndmask_b32 v{q_+j}, 0, v{ONES}, {sm(T3)}" for j in jj] for jj in ((0, 1), (2, 3))]
                r += [[f"WAITL r{blk}", f"{MF} {a(HCS,4)}, {a(RB+4*blk,4)}, {v(q_,4)}, {'0' if blk == 0 else a(HCS,4)}"]]
            sh = [x for x in sh if x[0] <= 8 and x[1] is None] + [(0, "rb5", x) for x in r[:6]] + [x for x in sh if not (x[0] <= 8 and x[1] is None)]
            sh2 = r[6:]
        if lay == 0:
            extra.insert(0, (4, fb_set(0)))
            extra.append((w2s - 8, [t + (" ;@F" if t.startswith("buffer") else "") for t in fb_body(0)]))
        def codepf(lbl): return [f"s_add_u32 s{T1}, s{sPC}, {lbl}-L_pc", f"s_addc_u32 s{T2}, s{sPC+1}, 0", f"global_load_dword v{vJUNK}, v{vCPF}, {sm(T1)}"]
        if o.cpf2: extra.append((o.cpf2, codepf(f"L_epi{lay}")))
        if o.cpf3 and not last: extra.append((o.cpf3, codepf("L_ool")))
        if lay > 0:
            for j_ in range(0 if (o.o4 and last) else o.of if par else o.of2): extra.append((o.ot0 + j_, [f"s_mov_b32 s{T1}, {WS_O + 4096*j_}", f"buffer_load_dword v{vJUNK}, v{vTCH}, {SRD}, s{T1} offen sc1"]))
            extra.sort(key=lambda x: x[0])
        r = []
        for st in (16, 8, 4):
            r += [[f"v_add_f32 v{160+j}, v{160+j}, v{160+j+st}", f"v_add_f32 v{161+j}, v{161+j}, v{161+j+st}"] for j in range(0, st, 2)]
        r += [["s_nop 0"], ["v_permlane32_swap_b32 v160, v162"], ["v_permlane32_swap_b32 v161, v163"], ["v_add_f32 v160, v160, v162", "v_add_f32 v161, v161, v163"],
              [f"v_mul_f32 v163, {f32hex(-1.0/1024)}, v160", f"v_mul_f32 v161, {f32hex(1.0/1024)}, v161"], ["v_fma_f32 v161, -v163, v163, v161", "v_max_f32 v161, 0, v161"],
              [f"v_add_f32 v161, {f32hex(1e-5)}, v161"], ["v_rsq_f32 v162, v161"], [f"ds_write2_b32 v{vSW}, v162, v163 offset0:0 offset1:64"]]
        r += [[f"ds_read2_b32 {v(STP+2*i,2)}, v{vSR} offset0:{16*i} offset1:{64+16*i}"] for i in range(4)]
        if vn: r += [[f"ds_read_b128 {v(224+16*j+4*i,4)}, v{vSQ} offset:{256*j + 64*i}"] for j in range(2) for i in range(4)]
        sh += [(0, "S7", x) for x in r]
        sh += [(0, "csbar", [f"ds_read_b128 {v(CSR+4*c,4)}, v{vGM} offset:{M_CS-M+par*384+c*64} ;@cs"]) for c in range(4 if vn else 6)]
        if vn: sh += [(0, "csbar", [f"ds_read2_b32 {v(CSR+16,2)}, v{vCV} offset0:{64+96*par} offset1:{80+96*par} ;@cs"])]
        for t_ in ["S7", "CS3", "F", "csw", "cs"] + [f"W{j}" for j in range(2, 8)]: A.seen.discard(t_)
        csbar = not early
        def ready(tag):
            if tag is None: return True
            if tag == "csbar": return csbar
            return tag in A.seen and not A.pending(tag)
        fix = {(cc, ii): [f"v_fmac_f32 v{acc(cc,ii)+j}, v{CSR+12+cc}, v{240+4*ii+j}" if vn and cc >= 4 else
                          f"v_fmac_f32 v{acc(cc,ii)+j}, v{CSR+4*cc+j}, v{STP+2*ii+1}" for j in range(4)] for cc in range(6) for ii in range(4)}
        fix["ci"] = [f"v_mul_f32 v{CI+ii}, {CK[par]}, v{STP+2*ii}" for ii in range(4)]
        ysh = []
        if par:
            VT = lambda db, i: 168 + 10*db + 2*(i+1)
            KP = 188
            def two(l): return [l[j:j+2] for j in range(0, len(l), 2)]
            def vcvt(i, d0, d1): return [f"v_cvt_pk_bf16_f32 v{d+h}, v{acc(4+db,i)+2*h}, v{acc(4+db,i)+2*h+1}" for db, d in enumerate((d0, d1)) for h in range(2)]
            def kmul(i): return [f"v_mul_f32 v{acc(c,i)+j}, v{acc(c,i)+j}, v{STP+2*i}" for c in (2, 3) for j in range(4)]
            def vmul(i): return [f"v_mul_f32 v{acc(c,i)+j}, v{acc(c,i)+j}, v{224+4*i+j}" for c in (4, 5) for j in range(4)]
            def kcvt(i): return cvt4l(acc(2,i), acc(2,i), acc(3,i))
            def qcvt(i): return cvt4l(acc(0,i), acc(0,i), acc(1,i))
            def sown(i): return f"{MF} {v(acc(3,i),4)}, {v(acc(2,i),4)}, {v(acc(0,i),4)}, 0"
            def sprev(i): return f"{MF} {v(acc(1,i),4)}, {v(acc(2,i-1) if i else KP,4)}, {v(acc(0,i),4)}, 0"
            def sel(i):
                so, sp, z = acc(3,i), acc(1,i), acc(5,i)
                r = [f"v_cndmask_b32 v{b}, v{b}, v{b+1}, {sm(mPAR)}" for b in (so, so+2, sp, sp+2)]
                if i == 0: r += [f"v_cndmask_b32 v{b}, v{b}, v217, {sm(mFIRST)}" for b in (sp, sp+2)]
                return r + [f"v_cndmask_b32 v{z}, v{sp}, v{so}, {sm(mOWN0)}", f"v_cndmask_b32 v{z+1}, v{sp+2}, v{so+2}, {sm(mOWN1)}", f"v_max_f32 v{z+2}, v{z}, v{z+1}"]
            def soft(blks):
                Z = [(acc(5,i), i) for i in blks]
                r = [f"v_sub_f32 v{z+h}, v{z+h}, v{z+2}" for z, i in Z for h in range(2)] + [f"v_mul_f32 v{z+h}, v{z+h}, v{CI+i}" for z, i in Z for h in range(2)]
                r += [f"v_exp_f32 v{z+h}, v{z+h}" for z, i in Z for h in range(2)] + [f"v_cvt_pk_bf16_f32 v{z+h}, v{z+h}, v{z+h}" for z, i in Z for h in range(2)]
                for z, i in Z: r += [f"v_and_b32 v{acc(4,i)+j}, v{z+(j&1)}, v{mk}" for j, mk in enumerate((MP0, MP1, MO0, MO1))]
                return r
            def pv(i): return [f"{MF} {v(acc(5,i),4)}, {v(ONES,4)}, {v(acc(4,i),4)}, 0"] + [f"{MF} {v(acc(1+2*db,i),4)}, {v(VT(db,i-1),4)}, {v(acc(4,i),4)}, 0" for db in range(2)]
            hl = [f"buffer_load_dwordx4 v[240:243], v{vL16}, {SRD}, s{sHld} offen sc1", f"buffer_load_dwordx4 v[244:247], v{vL16}, {SRD}, s{sHld} offen offset:1024 sc1"]
            z3 = acc(5,3)
            ysh += two(kmul(3) + kcvt(3)) + [[f"buffer_store_dwordx4 {v(acc(2,3),4)}, v{vL16}, {SRD}, s{sHst} offen sc1"]]
            ysh += two(vmul(3) + vcvt(3, 248, 250)) + [[f"buffer_store_dwordx4 v[248:251], v{vL16}, {SRD}, s{sHst} offen offset:1024 sc1"]]
            ysh += [[f"ds_write_b128 v{vKX}, {v(acc(2,3),4)} offset:1024"]] + two(vcvt(3, VT(0,3), VT(1,3)))
            ysh += [[f"ds_write_b128 v{vKX}, v[248:251] offset:{M_VX-M_KX+1024} ;@xw"]]
            ysh += two(kmul(2) + kcvt(2) + qcvt(3)) + [[sown(3)], [sprev(3)]] + two(vmul(2) + vcvt(2, VT(0,2), VT(1,2)))
            ysh += [["WAITL xw", "s_barrier"], [f"ds_read_b128 {v(KP,4)}, v{vKX}"]] + [[f"ds_read_b64 {v(VT(db,-1),2)}, v{vKX} offset:{M_VX-M_KX+8*db}"] for db in range(2)]
            ysh += two(sel(3)) + [[f"v_mov_b32 v{z3+3}, v{z3+2}"]] + two(qcvt(2))[:1] + [[f"v_permlane32_swap_b32 v{z3+2}, v{z3+3}"], [f"v_max_f32 v{z3+2}, v{z3+2}, v{z3+3}", f"v_mov_b32 v{z3+3}, v{z3+2}"]]
            ysh += two(qcvt(2))[1:] + [[f"v_permlane16_swap_b32 v{z3+2}, v{z3+3}"], [f"v_max_f32 v{z3+2}, v{z3+2}, v{z3+3}"], [sown(2)]]
            s3 = soft((3,))
            ysh += two(s3[:4]) + [s3[4:5], s3[5:6]] + two(s3[6:]) + [[f"v_mov_b32 v217, {f32hex(-3.0e38)}"]] + [[x] for x in pv(3)] + [[], []]
            ysh += [[f"v_rcp_f32 v{z3}, v{z3}"]] + two([f"v_mul_f32 v{acc(1+2*db,3)+j}, v{acc(1+2*db,3)+j}, v{z3}" for db in range(2) for j in range(4)] + cvt4l(236, acc(1,3), acc(3,3)))
            ysh += [lambda: ostore(3, o.oall or (o.o4 and last))]
            ysh.insert(len(ysh) - o.hpos, [hl[0]]); ysh.insert(len(ysh) - o.hpos, [hl[1] + " ;@hl"])
        def Y():
            x = ysh.pop(0)
            if callable(x): x()
            else: E(x)
        credit = 0.5 if (lay == 1 and o.lazy & 1) else 0.0; t = 0.0; nbar = 0
        for u, (step, bl, cs_) in enumerate(units):
            half = len(bl) == 2; ng = len(cs_); inY = half and bl[0] == 0
            assert not anext or anext[0][0] > u
            e(f"WAITV A{u}")
            if lay == 0 and o.sf:
                pw = f"buffer_load_dword v{FBV}, v250, {SRD}, s{T7} offen sc1"
                if u == o.sfu - 1: e(pw + " ;@pw")
                if u == o.sfu:
                    e("WAITV pw rb"); e(f"s_cmp_lg_u32 s{SW}, 0"); e("s_cbranch_scc1 L_pwok")
                    A.track = False
                    e(f"v_cmp_eq_u32 vcc, 0, v{FBV}"); e("s_cbranch_vccz L_pwok"); spin([pw], [f"v_cmp_eq_u32 vcc, 0, v{FBV}"])
                    A.track = True
                    A.label("L_pwok"); e("s_barrier")
                    for i in range(6): E(w1_piece(par, 1, i))
                    e("s_waitcnt lgkmcnt(0)"); w2tr(1); e("s_waitcnt lgkmcnt(0)"); retb()
            if u == 1 and lay > 0 and o.lazy & 1:
                assert anext[0][1] <= 4 and anext[0][2] == 0 and len(misc) == 8
                poll2chk(sFXc, lay)
            if o.jit and u % 5 == 2: stamp(2)
            if o.g1prof and u == 0: stamp(2, 1)
            if u + 1 < len(units) and units[u+1][0]//4 > nbar:
                nbar += 1
                assert not any(p[0] == "W" and p[1] <= nbar for p in pend), (lay, u)
                if f"W{nbar}" in A.seen: e(f"WAITV W{nbar}")
                if lay == 0 and nbar == 1: assert not A.pending("b1")
                e("s_barrier")
                if ready("csw"): csbar = True
                if o.g1prof: stamp(2 + nbar, 1)
            if inY and step == max(28, 32 - TB):
                e("s_barrier"); nbar = 8
            if inY: assert not sh and all(not x for x in fix.values()), (lay, len(sh), {k: len(x) for k, x in fix.items() if x})
            nslot = 3 if half else ng
            cur = fidx[(step, bl[0])]
            ahead = lambda n: n < len(anext) and fidx[anext[n][1:]] < cur + len(bl) + (LAF if u > 0 else 4*o.APRE)
            plan = []; na = nw = nm = 0
            while len(plan) < nslot and ahead(na) and na < len(bl):
                plan.append("A"); na += 1
            if t >= w1s: credit = min(credit + (wr if (pend and pend[0][0] == "W") else w2r) * len(bl) / 400.0, max(3.0, w2r/100.0))
            while len(plan) < nslot and nw < len(pend) and allowed(pend[nw], t) and credit >= 1:
                plan.append("W"); nw += 1; credit -= 1
            while len(plan) < nslot and nm < len(misc) and misc[nm][0] <= t:
                plan.append("M"); nm += 1
            while len(plan) < nslot and ahead(na):
                plan.append("A"); na += 1
            oth = [p for p in plan if p != "A"]; aa = [p for p in plan if p == "A"]; plan = []
            while oth or aa:
                if aa: plan.append(aa.pop())
                if aa and len(aa) >= 2*len(oth): plan.append(aa.pop())
                if oth: plan.append(oth.pop(0))
            if half: plan = sum(([p, None] for p in plan), [])
            for gi, c in enumerate(cs_):
                vm = None
                for p, i in enumerate(bl if c % 2 == 0 else bl[::-1]):
                    if p == 0: e(f"WAITL w{u}_{c}")
                    e(mma(step, c, i))
                    busy = False
                    if p == 0 and gi < len(plan) and plan[gi]:
                        k = plan[gi]
                        if k == "A": vm = [aload(*anext.pop(0))]
                        elif k == "W":
                            pc = pend.pop(0); vm = w1_piece(par, pc[1], pc[2]) if pc[0] == "W" else w2_piece(par, pc[1], pc[2])
                        else: vm = misc.pop(0)[1]
                        E(vm[:-1]); busy = len(vm) > 1
                    if p == (0 if half else 1) and vm: e(vm[-1]); busy = True
                    if p == len(bl) - 1:
                        busy = not half
                        if u + 1 < len(units): e(w1rd(u+1, c))
                    if p == 2 and ng == 4 and u + 1 < len(units) and gi < 2:
                        e(w1rd(u+1, gi)); busy = True
                    if busy: continue
                    if inY:
                        if ysh: Y()
                    elif p == (0 if half else 2) and gi == 3 and extra and extra[0][0] <= t: E(extra.pop(0)[1])
                    elif p == 2 and gi == 0 and extra2 and extra2[0][0] <= t: E(extra2.pop(0)[1])
                    elif p == 2 and lay == 0 and not fbdone[0] and ready("F"):
                        E(fb_cond + retry(fb_body(0), fb_cond)); fbdone[0] = True
                    elif sh:
                        if sh[0][0] <= t and ready(sh[0][1]): E(sh.pop(0)[2])
                        elif sh2 and ready("r5"): E(sh2.pop(0))
                    elif ready("cs"):
                        cc = cs_[(gi + ng//2) % ng]
                        cand = [(cc, ii) for ii in (3, 2, 1, 0)]
                        if step > 32 - nd: cand += [(c2, ii) for c2 in (0, 1) for ii in range(4)]
                        if half and step > 32 - TB: cand += [(c2, ii) for c2 in range(6) for ii in (0, 1)]
                        for k in cand + ["ci"]:
                            if fix[k]:
                                E(fix[k][:2]); fix[k] = fix[k][2:]; break
                        else:
                            if sh2: E(sh2.pop(0))
            t += len(bl) / 4
        assert not anext and not misc and not sh and not extra and not extra2 and not sh2 and all(p[0] == "W2" for p in pend), (lay, pend, anext, misc, len(sh), extra)
        assert all(not x for x in fix.values()), (lay, {k: len(x) for k, x in fix.items()})
        assert lay > 0 or fbdone[0]
        left = [w2_piece(par, p[1], p[2]) for p in pend]
        lates = [w2_piece(par, 4, i) for i in range(6*(1-par))] + [w2_piece(par, 5, i) for i in range(2)]
        if o.verbose: print("layer", lay, "left", len(left), "ysh", len(ysh))
        A.label(f"L_epi{lay}")
        e("s_waitcnt lgkmcnt(0)"); e("s_barrier")
        stamp(1)
        qm = [mma(step, c, i) for step in range(32-nd, 32) for c in range(2) for i in (range(4) if c == 0 else reversed(range(4)))]

        if par == 0:
            def feat_head(c0, tmp, hook=None):
                MX, MN = tmp, tmp+4
                for i in (3, 2, 1, 0):
                    p0, p1 = acc(c0,i), acc(c0+1,i)
                    for op, op2, d in (("v_max3_f32", "v_max_f32", MX+i), ("v_min3_f32", "v_min_f32", MN+i)):
                        e(f"{op} v{d}, v{p0}, v{p0+1}, v{p0+2}"); e(f"{op} v{d}, v{d}, v{p0+3}, v{p1}")
                        e(f"{op} v{d}, v{d}, v{p1+1}, v{p1+2}"); e(f"{op2} v{d}, v{d}, v{p1+3}")
                if hook: hook()
                xreduce([("v_max_f32", [MX, MX+1, MX+2, MX+3]), ("v_min_f32", [MN, MN+1, MN+2, MN+3])])
                for i in range(4):
                    e(f"v_mul_f32 v{MX+i}, -v{MX+i}, v{CI+i}"); e(f"v_mul_f32 v{MN+i}, v{MN+i}, v{CI+i}")
                for i in range(4):
                    for fb in range(2):
                        for h in range(2):
                            pk_fma(224+8*i+4*fb+2*h, acc(c0+fb,i)+2*h, CI+i, MX+i)
                            pk_fma(acc(c0+fb,i)+2*h, acc(c0+fb,i)+2*h, CI+i, MN+i, negx=True)
            def feat_tail(c0, F, G_, S0, S1, post, mid=None, hooks={}):
                def norm_(i):
                    sq = S0 if i % 2 == 0 else S1
                    e(f"v_rcp_f32 v{184+2*i}, v{sq}"); e(f"v_rcp_f32 v{185+2*i}, v{sq+4}")
                    for r in range(0, 8, 2): pk_mul(224+8*i+r, 224+8*i+r, 184+2*i)
                    cvt4(F+4*i, 224+8*i, 224+8*i+4)
                    if post: e(post(i, 0))
                    for fb in range(2):
                        for h in range(2): pk_mul(acc(c0+fb,i)+2*h, acc(c0+fb,i)+2*h, 185+2*i)
                    cvt4(G_+4*i, acc(c0,i), acc(c0+1,i))
                    if post: e(post(i, 1))
                for i in range(4):
                    if i in hooks: hooks[i]()
                    for r in range(8): e(f"v_exp_f32 v{224+8*i+r}, v{224+8*i+r}")
                    for fb in range(2):
                        for r in range(4): e(f"v_exp_f32 v{acc(c0+fb,i)+r}, v{acc(c0+fb,i)+r}")
                    if 0 < i < 3: norm_(i-1)
                    sq = S0 if i % 2 == 0 else S1
                    cvt4(F+4*i, 224+8*i, 224+8*i+4); cvt4(G_+4*i, acc(c0,i), acc(c0+1,i))
                    e(f"{MF} {v(sq,4)}, {v(ONES,4)}, {v(F+4*i,4)}, 0"); e(f"{MF} {v(sq+4,4)}, {v(ONES,4)}, {v(G_+4*i,4)}, 0")
                if 4 in hooks: hooks[4]()
                if mid: mid()
                norm_(2)
                if 5 in hooks: hooks[5]()
                norm_(3)
            dl = []
            if lay == 0:
                dl = [[f"s_add_u32 s{D2}, s{ROTW}, {WS_W1[1]}", f"s_add_u32 s{D4}, s{D2}, 4096", w1st(a(RB,4), 0, D2, D4)]] + [[w1st(a(RB+4*b_,4), b_, D2, D4)] for b_ in range(1, 6)]
                dl += [[f"s_add_u32 s{D1}, s{sW2s}, {WS_W2[1] - WS_W2[0]}", f"buffer_store_dwordx4 {a(HW2,4)}, v{vL16}, {SRD}, s{D1} offen sc1"],
                       [f"buffer_store_dwordx4 {a(HW2+4,4)}, v{vL16}, {SRD}, s{D1} offen offset:1024 sc1", f"s_add_u32 s{D1}, s{sCL0}, {CS_SZ}"] + csst(a(HCS,4), D1),
                       [f"buffer_store_dwordx4 a[252:255], v{vL16}, {SRD}, s{sCL2} offen sc1"],
                       [f"s_add_u32 s{D1}, s{sKV}, s{ROTA}", f"s_add_u32 s{D1}, s{D1}, 0x100000", f"buffer_store_dwordx4 a[252:255], v{vL16}, {SRD}, s{D1} offen sc1",
                        f"s_add_u32 s{D1}, s{sZo}, 0x10000", f"s_mov_b64 exec, {sm(mM0)}", f"buffer_store_dwordx4 a[252:255], v{vG16}, {SRD}, s{D1} offen sc1 ;@b2", "s_mov_b64 exec, -1"]]
            if o.kt:
                allp = left + lates; nk = max(0, len(left) + o.kl); left, lates = allp[:nk], allp[nk:]
            dl2 = dl[o.dk:]; dl = dl[:o.dk]; mix = []
            for j_ in range(max(len(left), len(dl))): mix += left[j_:j_+1] + dl[j_:j_+1]
            per = o.aper0 if dl else o.aper
            A.bgset(mix, per, per)
            SEL = 160 if o.kt else 128
            def mksel():
                e(f"s_andn2_b64 {sm(T1)}, {sm(mDIAG)}, {sm(mB1)}"); e(f"s_and_b64 {sm(T3)}, {sm(mDIAG)}, {sm(mB1)}")
                e(f"v_or_b32 v{SEL}, v{MO0}, v{MP0}"); e(f"v_and_b32 v{SEL}, v{SEL}, v{ONES}")
                e(f"v_cndmask_b32 v{SEL+2}, 0, v{SEL}, {sm(T1)}"); e(f"v_cndmask_b32 v{SEL+3}, 0, v{SEL}, {sm(T3)}")
                for r in (0, 1, 4, 5): e(f"v_mov_b32 v{SEL+r}, 0")
            if o.kt:
                def vprep():
                    for db in range(2):
                        for i in range(4):
                            for h in range(2): e(f"v_pk_mul_f32 {v(acc(4+db,i)+2*h,2)}, {v(acc(4+db,i)+2*h,2)}, {v(224+4*i+2*h,2)}")
                        for p in range(2): cvt4(acc(4+db,2*p), acc(4+db,2*p), acc(4+db,2*p+1))
                    mksel()
                feat_head(2, 208, vprep)
                TT = lambda t, fb, i: 224+8*i+4*fb if t == 0 else acc(2+fb, i)
                FF = lambda t, i: 192+8*(i%2)+4*t
                SS = lambda t, i: 176+8*(i%2)+4*t
                ET = lambda t, fb: 132+16*t+8*fb
                KV = lambda t, fb, db: TT(t, fb, db)
                ZZ = lambda t, fb: (168, 208)[t] + 4*fb
                def ex(i): return [f"v_exp_f32 v{TT(t,fb,i)+r}, v{TT(t,fb,i)+r}" for t in range(2) for fb in range(2) for r in range(4)]
                def tr(i):
                    for t in range(2): cvt4(FF(t,i), TT(t,0,i), TT(t,1,i))
                    r = []
                    for t in range(2):
                        r += [f"{MF} {v(SS(t,i),4)}, {v(FF(t,i),4)}, {v(ONES,4)}, 0"] + [f"{MF} {v(TT(t,fb,i),4)}, {v(FF(t,i),4)}, {v(SEL+2-2*fb,4)}, 0" for fb in range(2)]
                    return r
                def ecv(i, t): return [f"v_cvt_pk_bf16_f32 v{ET(t,fb)+2*(i%2)+h}, v{TT(t,fb,i)+2*h}, v{TT(t,fb,i)+2*h+1}" for fb in range(2) for h in range(2)]
                def nrm(i, ms=[]):
                    mix2(list(ms), [f"v_rcp_f32 v{SS(t,i)+r}, v{SS(t,i)+r}" for t in range(2) for r in range(4)], 1)
                    for t in range(2):
                        for fb in range(2):
                            for h in range(2): e(f"v_pk_mul_f32 {v(TT(t,fb,i)+2*h,2)}, {v(TT(t,fb,i)+2*h,2)}, {v(SS(t,i)+2*h,2)}")
                def kvm(p, t):
                    r = [f"{MF} {v(KV(t,fb,db),4)}, {v(ET(t,fb),4)}, {v(acc(4+db,2*p),4)}, {v(KV(t,fb,db),4) if p else 0}" for db in range(2) for fb in range(2)]
                    return r + [f"{MF} {v(ZZ(t,fb),4)}, {v(ET(t,fb),4)}, {v(ONES,4)}, {v(ZZ(t,fb),4) if p else 0}" for fb in range(2)]
                def mix2(ms, fs, n):
                    while ms or fs:
                        if ms: e(ms.pop(0))
                        E(fs[:n]); fs = fs[n:]
                E(ex(0))
                mix2(tr(0), ex(1), 1); nrm(0); E(ecv(0,0) + ecv(0,1))
                mix2(tr(1), ex(2), 1); nrm(1); E(ecv(1,0) + ecv(1,1))
                k0 = kvm(0,0) + kvm(0,1)
                mix2(tr(2) + k0[:10], ex(3), 1)
                nrm(2, k0[10:] + tr(3)); E(ecv(2,0) + ecv(2,1)); nrm(3); E(ecv(3,0) + ecv(3,1)[:2])
                A.bgflush()
                def fr(t, db): return cvt4l(192+8*t+4*db, KV(t,0,db), KV(t,1,db)) + [f"ds_write_b128 v{vXW}, {v(192+8*t+4*db,4)} offset:{VB_LDS + (2*t+db)*1024}"]
                mix2(kvm(1,0), ecv(3,1)[2:], 1)
                m1 = kvm(1,1); E(m1[:2]); mix2(m1[2:], fr(0,0) + fr(0,1), 2)
                E(fr(1,0))
                for r in range(4): e(f"v_cndmask_b32 v{168+r}, v{168+r}, v{172+r}, {sm(mPAR)}")
                E(fr(1,1))
                for r in range(4): e(f"v_cndmask_b32 v{208+r}, v{208+r}, v{212+r}, {sm(mPAR)}")
                for r in range(4): e(f"v_cndmask_b32 v{168+r}, v{168+r}, v{208+r}, {sm(mB1)}")
                e(f"ds_write_b128 v{vE1}, v[168:171]")
                e(f"s_add_u32 s{T2}, s{sKV}, s{ROTA}")
                for j in range(2): e(qm.pop(0))
                e("s_waitcnt lgkmcnt(0)"); e("s_barrier")
                stamp(2)
                for j in range(4): e(f"ds_read_b128 {v(96+4*j,4)}, v{vE0} offset:{j*4096} ;@kf{j}")
                e(f"ds_read_b128 v[200:203], v{vVr} ;@kz")
                for j in range(3): e(qm.pop(0))
                for j in range(4):
                    e(f"WAITL kf{j}")
                    for fb in range(2): e(f"{MF} {v(168+4*fb,4)}, {v(SEL+2-2*fb,4)}, {v(96+4*j,4)}, {v(168+4*fb,4) if j else 0}")
                e("WAITL kz")
                for qp in ("[1,0,3,2]", "[2,3,0,1]"):
                    for r in range(4): e(f"v_add_f32_dpp v{200+r}, v{200+r}, v{200+r} quad_perm:{qp} row_mask:0xf bank_mask:0xf")
                cvt4(192, 168, 172)
                e(f"buffer_store_dwordx4 v[192:195], v{vL16}, {SRD}, s{T2} offen sc1"); e(qm.pop(0))
                E([f"s_mov_b64 exec, {sm(mM0)}", f"buffer_store_dwordx4 v[200:203], v{vG16}, {SRD}, s{sZo} offen sc1", "s_mov_b64 exec, -1"])
            else:
                def vall():
                    for i in range(4):
                        for b in range(2):
                            for h in range(2): pk_mul(acc(4+b,i)+2*h, acc(4+b,i)+2*h, STP+2*i)
                        cvt4(acc(4,i), acc(4,i), acc(5,i))
                        e(xw(acc(4,i), VB_LDS//1024 + i))
                feat_head(2, 208, vall)
                feat_tail(2, 192, 144, 168, 176, lambda i, sg: xw((192 if sg == 0 else 144)+4*i, 24 + 16*sg + i))
                A.bgflush()
                e(f"s_add_u32 s{T2}, s{sKV}, s{ROTA}")
                e("s_waitcnt lgkmcnt(0)"); e("s_barrier")
                stamp(2)
                def kvreads(p):
                    b = 96 + 16*(p % 4); r = []
                    for t in range(2):
                        r += [f"ds_read_b64_tr_b16 {v(b+2*t,2)}, v{vE0} offset:{SLOT + (2*p+t)*1024}", f"ds_read_b64_tr_b16 {v(b+8+2*t,2)}, v{vVr} offset:{(2*p+t)*1024} ;@ka{p}"]
                    return r + [f"ds_read_b64_tr_b16 {v(b+4+2*t,2)}, v{vE1} offset:{SLOT + (2*p+t)*1024} ;@kb{p}" for t in range(2)]
                rd = sum((kvreads(p) for p in range(8)), [])
                E(rd[:14]); rd = rd[14:]
                for j in range(4 if o.kq else 2): e(qm.pop(0))
                for p in range(8):
                    b = 96 + 16*(p % 4); z_ = p == 0
                    e(f"WAITL ka{p}")
                    e(f"{MF} v[168:171], {v(b,4)}, {v(b+8,4)}, {'0' if z_ else 'v[168:171]'}"); E(rd[0:2])
                    e(f"{MF} v[200:203], {v(b,4)}, {v(ONES,4)}, {'0' if z_ else 'v[200:203]'}"); E(rd[2:4])
                    e(f"WAITL kb{p}")
                    e(f"{MF} v[172:175], {v(b+4,4)}, {v(b+8,4)}, {'0' if z_ else 'v[172:175]'}"); E(rd[4:6]); rd = rd[6:]
                cv = cvt4l(192, 168, 172)
                zst = [f"s_mov_b64 exec, {sm(mM0)}", f"buffer_store_dwordx4 v[200:203], v{vG16}, {SRD}, s{sZo} offen sc1", "s_mov_b64 exec, -1"]
                kst = f"buffer_store_dwordx4 v[192:195], v{vL16}, {SRD}, s{T2} offen sc1"
                if o.kq:
                    for j in range(2): e(qm.pop(0))
                    e("s_barrier")
                    for j in range(2): e(qm.pop(0))
                    E(cv[:2]); e(qm.pop(0)); E(cv[2:]); e(qm.pop(0))
                    e(kst); e(qm.pop(0)); E(zst)
                else:
                    e(qm.pop(0)); E(cv); e(kst); e(qm.pop(0)); E(zst); e("s_barrier")
            stamp(3)
            A.bgset(lates, o.aper2, 0)
            E(qm)
            def g1(p): return [f"s_add_u32 s{T0}, s{sKV}, s{ROTA+1+p}", f"buffer_load_dwordx4 {v(96+4*p,4)}, v{vL16}, {SRD}, s{T0} offen sc1 ;@g{p}"]
            gz = f"buffer_load_dwordx4 v[192:195], v{vZL}, {SRD}, s{sZP} offen sc1 ;@gz"
            def gather():
                A.bgflush()
                if o.zf: e(gz)
                for p in range(7): E(g1(p))
                if not o.zf: e(gz)
                A.bgset(dl2, o.aper3, 0)
            if gpos == 0: gather()
            feat_head(0, 196, gather if gpos == 1 else None)
            qmid = None if o.kt else mksel
            feat_tail(0, 204, 136, 152, 176, None, qmid, {gpos - 2: gather})
            A.bgflush()
            nafter = A.after("g6" if o.zf else "gz")
            stamp(4)
            e(f"s_mov_b32 s{sTMO}, {LIM}")
            def kvw():
                cvt4(196, 168, 172)
                if o.kt: e(f"ds_write_b128 v{vKX}, v[196:199]")
                else: e(f"ds_write_b64 v{vKX0}, v[196:197]"); e(f"ds_write_b64 v{vKX1}, v[198:199]")
            def zred(mid=None):
                for s_ in (4, 2, 1):
                    for r in range(4): e(f"v_add_f32_dpp v{192+r}, v{192+r}, v{192+r} row_ror:{s_} row_mask:0xf bank_mask:0xf")
                    if s_ == 2 and mid: mid()
                e("v_cvt_pk_bf16_f32 v192, v192, v193"); e("v_cvt_pk_bf16_f32 v193, v194, v195")
                e(f"s_mov_b64 exec, {sm(mM0)}"); e(f"ds_write_b64 v{vZW}, v[192:193] offset:{M_ZF-M}"); e("s_mov_b64 exec, -1")
            for p in ([7] + list(range(7)) if o.zf else range(8)):
                r0 = 96+4*p if p < 7 else 192; L = f"{lay}_{p}"
                e(f"WAITV g{p if p < 7 else 'z'}")
                A.label(f"L_kvc{L}")
                e(f"v_cmp_eq_u32 vcc, -1, v{r0}"); e(f"s_cbranch_vccnz L_kvs{L}")
                A.label(f"L_kvo{L}")
                if p < 7:
                    e(f"{MF} v[168:171], {v(SEL+2,4)}, {v(r0,4)}, v[168:171]"); e(f"{MF} v[172:175], {v(SEL,4)}, {v(r0,4)}, v[172:175]")
                elif o.zf: zred()
                def kvslow(p=p, L=L, nafter=nafter, g1=g1, gz=gz):
                    A.label(f"L_kvs{L}")
                    e(f"s_sub_u32 s{sTMO}, s{sTMO}, 1"); e(f"s_cbranch_scc1 L_kvt{L}")
                    if o.ksl: e(f"s_sleep {o.ksl}")
                    e(f"s_waitcnt vmcnt({nafter})")
                    if o.kgate:
                        e("v_mov_b32 v197, 0"); e("s_mov_b64 exec, 0xff"); e(f"buffer_atomic_or v197, v{vZL}, {SRD}, s{sZP} offen sc0 sc1"); e("s_mov_b64 exec, -1")
                        e("s_waitcnt vmcnt(0)"); e("v_cmp_eq_u32 vcc, -1, v197"); e(f"s_cbranch_vccnz L_kvs{L}")
                    for p2 in range(0 if (o.zf and p == 7) else p, 7):
                        if p2 != p: e(f"v_cmp_eq_u32 vcc, -1, v{96+4*p2}"); e(f"s_cbranch_vccz L_kvn{L}_{p2}")
                        E(g1(p2))
                        if p2 != p: A.label(f"L_kvn{L}_{p2}")
                    if p == 7 or not o.zf: e(gz)
                    e("s_waitcnt vmcnt(0)"); e(f"s_branch L_kvc{L}")
                    A.label(f"L_kvt{L}"); e(f"s_mov_b32 s{sTMO}, 0"); e(f"s_branch L_kvo{L}")
                ool.append(kvslow)
            if o.zf: kvw()
            else: zred(kvw)
            fb2 = lay == 0 and not A.pending("b2")
            e("s_waitcnt lgkmcnt(0)"); e("s_barrier")
            stamp(5)
            for t in range(2): e(f"ds_read_b128 {v(184+4*t,4)}, v{vGM} offset:{M_ZF-M + t*64} ;@zf")
            for j in range(4): e(ldsrd(v(168+4*j,4), M_KX + j*1024))
            if fb2: E(fb_set(1))
            if lay == 0: e(f"s_add_u32 s{sKV}, s{sKV}, 0x100000"); e(f"s_add_u32 s{sZP}, s{sZP}, 0x10000"); e(f"s_add_u32 s{sZo}, s{sZo}, 0x10000")
            e("WAITL zf")
            for t in range(2):
                for i in range(4): e(f"{MF} {v(64+4*i,4)}, {v(184+4*t,4)}, {v((204 if t == 0 else 136)+4*i,4)}, {'0' if t == 0 else v(64+4*i,4)}")
            e("s_waitcnt lgkmcnt(0)")
            def fin(i):
                r = [f"v_mul_f32 v{96+8*i+j}, v{96+8*i+j}, v{64+4*i}" for j in range(8)] + cvt4l(224+4*i, 96+8*i, 100+8*i)
                return [r[j:j+3] for j in range(0, 12, 3)]
            sc = [[f"v_add_f32 v{64+4*i}, {f32hex(1e-6)}, v{64+4*i}", f"v_rcp_f32 v{64+4*i}, v{64+4*i}"] for i in range(4)]
            fills = [[[]]*4, sc, fin(0), fin(1)]
            for i in range(4):
                for t in range(2):
                    for db in range(2):
                        d = v(96+8*i+4*db, 4)
                        e(f"{MF} {d}, {v(168+8*t+4*db,4)}, {v((204 if t == 0 else 136)+4*i,4)}, {'0' if t == 0 else d}")
                        E(fills[i][2*t+db])
                if i >= 2: ostore(i-2, o.oa or lay == 0)
            for i in (2, 3):
                for r in range(0, 8, 2): pk_mul(96+8*i+r, 96+8*i+r, 64+4*i)
                cvt4(224+4*i, 96+8*i, 100+8*i)
                ostore(i, o.oa or lay == 0)
        else:
            fb2 = True
            A.bgset(left + lates, o.bper, o.bper)
            while ysh: Y()
            for i in (1, 0):
                for c in (2, 3):
                    for h in range(2): pk_mul(acc(c,i)+2*h, acc(c,i)+2*h, STP+2*i)
            for i in (1, 0):
                for c in (4, 5):
                    for h in range(2): e(f"v_pk_mul_f32 {v(acc(c,i)+2*h,2)}, {v(acc(c,i)+2*h,2)}, {v(224+4*i+2*h,2)}")
            E(kcvt(1) + qcvt(1)); e(sprev(2)); E(kcvt(0)[:2]); e(sown(1)); E(kcvt(0)[2:] + qcvt(0)); e(sprev(1)); E(vcvt(1, VT(0,1), VT(1,1))[:2]); e(sown(0))
            E(vcvt(1, VT(0,1), VT(1,1))[2:] + vcvt(0, VT(0,0), VT(1,0)))
            E(sel(2))
            keep = A.bg; A.bg = []
            e("s_waitcnt lgkmcnt(0)")
            e(f"s_cmp_lg_u32 s{SW}, 0"); e(f"s_cbranch_scc1 L_halod{lay}")
            A.track = False
            hc = ["v_max_u32 v218, v240, v244", "v_cmp_eq_u32 vcc, -1, v218"]
            if A.pending("hl"): e(f"s_waitcnt vmcnt({A.after('hl')})")
            E(hc); e(f"s_cbranch_vccz L_halow{lay}")
            spin(hl, hc)
            A.label(f"L_halow{lay}")
            for r in range(4): e(f"v_mov_b32 v{KP+r}, v{240+r}"); e(f"v_mov_b32 v{VT(r//2,-1)+r%2}, v{244+r}")
            A.track = True
            A.label(f"L_halod{lay}")
            e(sprev(0))
            A.bg = keep
            stamp(2)
            if lay == 1: e(f"s_add_u32 s{sHst}, s{sHst}, 0x80000"); e(f"s_add_u32 s{sHld}, s{sHld}, 0x80000")
            E(sel(1)); E(sel(0))
            xreduce([("v_max_f32", [acc(5,i)+2 for i in range(4)])])
            E(soft((2, 1, 0)))
            A.bgflush()
            E(pv(2) + pv(1) + pv(0))
            for i in (2, 1, 0):
                e(f"v_rcp_f32 v{acc(5,i)}, v{acc(5,i)}")
                for db in range(2):
                    for h in range(2): pk_mul(acc(1+2*db,i)+2*h, acc(1+2*db,i)+2*h, acc(5,i))
                cvt4(224+4*i, acc(1,i), acc(3,i))
                ostore(i, o.oall or (o.o4 and last))

        stamp(6)
        pre = [f"v_mov_b32 v{vVal}, {lay+1}"]
        OB = WS_O
        if o.alias:
            OB = (WS_X, WS_O)[par]
            pre += [f"s_xor_b32 s{r}, s{r}, {WS_X ^ WS_O}" for r in [sO, sXs] + list(range(ROTA, ROTA+8))]
        for i in range(2):
            for kk in range(2):
                for r in range(4):
                    d = acc2(2*kk + (r >> 1), i) + 2*(r & 1); x = RES+8*i+4*kk+r
                    pre += [f"v_lshlrev_b32 v{d}, 16, v{x}", f"v_and_b32 v{d+1}, 0xffff0000, v{x}"]
        omask = (1 << (o.g2depth - 1)) - 1 if o.lazy & 2 else None
        if o.early & 2: handoff(sFOp, sFOc, lay+1, omask, mEO, pre, [])
        else:
            E(pre); signal(sFOp); stamp(7); poll(sFOc, lay+1, None, omask)
        stamp(8)
        W2F = RING; AF2 = RING + 32; GD = o.g2depth; T2_ = o.TG
        assert AF2 + 8*GD <= 240 - 48*o.NRES
        gun = [(st, (0, 1)) for st in range(32 - T2_)] + [(st, (i,)) for i in range(2) for st in range(32 - T2_, 32)]
        bn = [(st, i) for st, bl in gun for i in bl]
        bidx = {k: n for n, k in enumerate(bn)}
        def bfr(step, i): return a(AF2 + 4*(bidx[(step, i)] % (2*GD)), 4)
        def w2rd(u, b):
            step = gun[u][0]
            return ldsrd(a(W2F + 16*(u % 2) + 4*b, 4), (step*4096 if step < 14 else 3*SLOT + (step-14)*4096) + b*1024) + f" ;@u{u}_{b}"
        cur4 = [-1]
        def bload(step, i):
            r = [f"s_mov_b32 s{sAo}, {OB + (step//4)*4096}"] if step//4 != cur4[0] else []
            cur4[0] = step//4
            return r + [f"buffer_load_dwordx4 {bfr(step, i)}, v{vB+i}, {SRD}, s{sAo} offen offset:{(step%4)*1024} sc1 ;@B{step}_{i}"]
        for j in range(min(o.bpos, 2*GD-2)):
            if o.lazy & 2 and j == o.p2pos: poll2(sFOc)
            E(bload(*bn.pop(0)))
        e("s_barrier")
        for st in range(2):
            for b in range(4): e(w2rd(st, b))
        while bn[0][0] < GD-1: E(bload(*bn.pop(0)))
        lv = [x for x in (o.lv1, o.lv2) if x] + [32]
        okh = 32
        if o.lazy & 2: okh = lv.pop(0); poll2chk(sFOc, lay+1, hex((1 << okh) - 1) if okh < 32 else None)
        if lay == 0 and not fb2: E(fb_set(1))
        w1n = [] if last or (o.nopf and lay >= 1) else list(range(6))
        nres = 0 if last else (1 + (o.NRES if lay >= 1 else 0))
        def oparts(i):
            return [[f"ds_write_b128 v{200+kk}, {v(RES+8*i+4*kk,4)} offset:{i*2048}"] for kk in range(2)] + \
                   [[f"ds_read_b128 {v(96+4*j,4)}, v{vLW} offset:{j*1024} ;@o{j}"] for j in (2*i, 2*i+1)] + [[], []] + \
                   [[f"WAITL o{j}", f"buffer_store_dwordx4 {v(96+4*j,4)}, v202, {SRT}, s{T0} offen" + (" sc1" if o.outsc else ""), f"s_add_u32 s{T0}, s{T0}, 16384"] for j in (2*i, 2*i+1)]
        gsh = []
        if last:
            gsh = [[f"v_bfe_u32 v200, v{vL16}, 4, 4", f"v_and_b32 v201, 0x70, v{vL16}"], [f"v_xor_b32 v201, v201, v{vG16}", "v_lshl_add_u32 v200, v200, 7, v201"],
                   [f"v_add_u32 v200, s{sLW}, v200", f"v_lshrrev_b32 v202, 7, v{vL16}"], [f"v_and_b32 v203, 0x70, v{vL16}", "v_lshlrev_b32 v204, 4, v202"],
                   ["v_xor_b32 v201, 64, v200", "v_xor_b32 v203, v203, v204"], ["v_lshl_add_u32 v202, v202, 11, v203"],
                   [f"s_mov_b32 s8, s{P_OUT}", f"s_mov_b32 s9, s{P_OUT+1}"], ["s_mov_b32 s10, 0x400000", "s_mov_b32 s11, 0x20000"],
                   [f"s_lshl_b32 s{T0}, s{SRB}, 2", f"s_add_u32 s{T0}, s{T0}, s{SW}"], [f"s_lshl_b32 s{T0}, s{T0}, 16", f"s_lshl_b32 s{T1}, s{SCB}, 7"], [f"s_add_u32 s{T0}, s{T0}, s{T1}"]]
        def xcvt(i): return sum((cvt4l(RES+8*i+4*kk, acc2(2*kk,i), acc2(2*kk+1,i)) for kk in range(2)), [])
        fbchk = not (lay == 0 and not last)
        rw = [f"ds_write_b128 v{vLW if k == 0 else vLW3}, {a(RS(1-par, k)+4*b_,4)} offset:{(SLOT if k == 0 else (k-1)*SLOT) + b_*1024}" for k in range(nres) for b_ in range(6)]
        rslot = [1 if k == 0 else 2 + k - o.nopf for k in range(nres) for b_ in range(6)]
        freeslot = -1
        for u, (step, bl) in enumerate(gun):
            e("WAITV " + " ".join(f"B{step}_{i}" for i in bl))
            if okh < 32:
                if bn[0][0] == okh - GD + 1: poll2(sFOc)
                if bn[0][0] == okh: okh = lv.pop(0); poll2chk(sFOc, lay+1, hex((1 << okh) - 1) if okh < 32 else None)
                assert bn[1][0] < okh
            if o.jit and u % 7 == 3: stamp(2)
            nsl = nres - 1 - o.nopf if nres > 1 else 0
            if u in [15 + 6*j for j in range(nsl + 1) if o.rin or j == nsl or (j == 0 and w1n)]:
                freeslot = 2 + (u - 15)//6
                assert min(st for st, _ in gun[u-1:]) >= u - 1
                e("s_barrier")
            if lay == 0 and not last and u == 19: assert okh == 32; E([t + (" ;@F" if t.startswith("buffer") else "") for t in fb_body(1)])
            if not fbchk and len(bn) <= 2: e("WAITV F"); E(fb_cond + retry(fb_body(1), fb_cond)); fbchk = True
            if bl == (1,) and step == 32 - T2_:
                assert not gsh
                c_ = xcvt(0); gsh = [[]] + [c_[j:j+2] for j in range(0, 8, 2)]
                if last: gsh += oparts(0)
                else:
                    p_ = xparts(0); gsh += p_[0] + [[], []] + p_[1]
            for b in range(4):
                e(f"WAITL u{u}_{b}")
                for p, i in enumerate(bl if b % 2 == 0 else bl[::-1]):
                    e(f"{MF} {v(acc2(b,i),4)}, {a(W2F+16*(u%2)+4*b,4)}, {bfr(step, i)}, {v(acc2(b,i),4)}")
                    if p == 0:
                        if bn and b % (4//len(bl)) == 0: E(bload(*bn.pop(0)))
                        elif not bn and w1n and b % (o.g2w*2//len(bl)) == 0: E(w1_piece(1-par, 1, w1n.pop(0)))
                        elif gsh and (len(bl) == 1 or b % 2):
                            g_ = gsh.pop(0)
                            if ((o.xall and lay >= 1) or (o.alias and lay == 0)) and not last: E([wt(t) for t in g_])
                            elif any(t.startswith("buffer_store") for t in g_) and not last: st_mode(g_)
                            else: E(g_)
                if o.rin and rw and rslot[0] <= freeslot and b % (4//o.rin) == 4//o.rin - 1 and (len(bl) == 2 or (bl == (0,) and b == 3 and (u % 2 or o.rin > 1))):
                    e(rw.pop(0)); rslot.pop(0)
                if u + 2 < len(gun): e(w2rd(u+2, b))
                if b == 1 and not last:
                    for j_ in range(o.xf):
                        if u == o.xt0 + 3*j_: e(f"buffer_load_dword v{vJUNK}, v{vTCH}, {SRD}, s{ROTA+j_} offen sc1")
                    if o.cpf and u == o.xt0 + 4: E(codepf(f"L_layer{lay+1}"))
        assert not w1n
        stamp(9)
        rest = sum(gsh, [])
        if last or not any(t.startswith("buffer_store") for t in rest): E(rest)
        elif (o.xall and lay >= 1) or (o.alias and lay == 0): E([wt(t) for t in rest])
        else: st_mode(rest)
        todo = (1,) if T2_ else (0, 1)
        for i in todo: E(xcvt(i))
        if last:
            for i in todo: E(sum(oparts(i)[:4], []))
            for i in todo: E(sum(oparts(i)[4:], []))
            break
        xtile((o.xall and lay >= 1) or (o.alias and lay == 0), todo)
        assert not rw or max(rslot) <= freeslot
        if o.verbose: print("layer", lay, "resident writes left", len(rw))
        if o.early & 1: handoff(sFXp, sFXc, lay+1, sm(mX) if o.lazy & 1 else None, mEX, rw[:o.rw], rw[o.rw:])
        else:
            E(rw[:o.rw]); signal(sFXp); stamp(10); poll(sFXc, lay+1, rw[o.rw:], sm(mX) if o.lazy & 1 else None)

    if o.stamps:
        e("s_waitcnt vmcnt(0)")
        stamp(11)
        e(f"s_lshl_b32 s{T0}, s{SIDX}, 2"); e(f"s_add_u32 s{T0}, s{T0}, s{SW}")
        e(f"s_lshl_b32 s{T0}, s{T0}, 8"); e(f"s_add_u32 s{T0}, s{T0}, {WS_STAMPS}")
        e(f"v_lshrrev_b32 v200, 2, v{vL16}")
        e(f"buffer_store_dword v{vSTAMP}, v200, {SRD}, s{T0} offen")
        if o.echo_a >= 0:
            e(f"v_readlane_b32 s{T1}, v{vSTAMP}, {o.echo_a}"); e(f"v_readlane_b32 s{T2}, v{vSTAMP}, {o.echo_b}"); e(f"v_readlane_b32 s{T3}, v{vSTAMP}, 59")
            e(f"s_sub_u32 s{T2}, s{T2}, s{T1}"); e(f"s_mul_i32 s{T2}, s{T2}, {o.echo_mul}"); e(f"s_min_u32 s{T2}, s{T2}, 20000")
            if o.echo_idx >= 0: e(f"s_cmp_eq_u32 s{SIDX}, {o.echo_idx}"); e(f"s_cselect_b32 s{T2}, s{T2}, 0")
            A.label("L_echo")
            e(f"s_memrealtime s[{sSTAMP}:{sSTAMP+1}]"); e("s_waitcnt lgkmcnt(0)")
            e(f"s_sub_u32 s{T4}, s{sSTAMP}, s{T3}"); e(f"s_cmp_lt_u32 s{T4}, s{T2}"); e("s_cbranch_scc1 L_echo")
    e("s_endpgm")
    A.track = False
    A.label("L_ool")
    for blk in ool: blk()
    A.label("L_exit")
    e("s_endpgm")
    A.raw(f".fill (16384 + 256 - (. - L_ool))/4, 4, 0xbf810000")
    A.raw('.section .rodata,"a"'); A.raw(".p2align 6"); A.raw(f".amdhsa_kernel {KNAME}")
    for t in ("next_free_vgpr 512", "next_free_sgpr 102", "accum_offset 256", "group_segment_fixed_size 0", "kernarg_size 80",
              "user_sgpr_count 2", "user_sgpr_kernarg_segment_ptr 1", "system_sgpr_workgroup_id_x 1"):
        A.raw("  .amdhsa_" + t)
    A.raw(".end_amdhsa_kernel")
    return A.text()

if __name__ == "__main__":
    o = Opts()
    out = sys.argv[1]
    for kv in sys.argv[2:]:
        k, val = kv.split("=")
        assert hasattr(o, k), k
        setattr(o, k, int(val))
    open(out, "w").write(gen(o))
```

```python
import sys, struct
from asmlib import *

KNAME = "interleave_layers__linear_kernel_hedgehog__sliding_local_dilated__prompt_kernel"

WS_FLAGA = 0x0000000
WS_FLAGB = 0x0008000
WS_FLAGO = 0x0009000
WS_FLAGX = 0x000A000
WS_CS    = 0x0010000
CS_SZ    = 393216
WS_ST    = 0x0100000
WS_ZP    = 0x0140000
WS_STAMPS= 0x0180000
WS_HALO  = 0x0200000
WS_KVP   = 0x0400000
WS_W1    = (0x0800000, 0x0E00000)
WS_W2    = (0x1400000, 0x1600000)
WS_X     = 0x1800000
WS_X0    = WS_X
WS_O     = 0x1C00000
WS_SIZE  = 0x2000000
OOR      = 0x40000000

SLOT = 24576
M      = 147456
M_CS   = M + 64
M_ST   = M + 1024
M_ZX   = M + 3072
M_KX   = M + 4096
M_VX   = M + 11264
M_ZF   = M + 10240
LDS_SIZE = 163840
VB_LDS = 57344
RAW1A, RAW1B, RAW2 = 3*SLOT, 4*SLOT, 5*SLOT

SRD = "s[4:7]"; SRT = "s[8:11]"
SW, SGRP, SMEM, SMODE, SCB, SRB = 12, 13, 14, 15, 17, 18
T0, T1, T2, T3, T4, T5, T6, T7 = 19, 20, 21, 22, 23, 24, 25, 26
SIDX, SXCC = 27, 29
sFOc, sFOp, sFXc, sFXp = 30, 31, 32, 33
sO, sXs = 34, 35
mPAR, mB1, mDIAG, mM0, mOWN0, mOWN1, sPC, mFIRST = 36, 38, 40, 42, 44, 46, 48, 50
sCSa, sCSb, sZo, sFBp, sSTs, sLW, sKV, sZP, sHALO, sTMO, sAo, sWo = 52, 53, 54, 55, 56, 57, 58, 59, 60, 61, 62, 63
P_AX, P_AW1, P_PHI, P_AW2, P_BX, P_BW1, P_BW2, P_OUT, P_DBG, P_WS = 64, 66, 68, 70, 72, 74, 76, 78, 80, 82
sCL0, sCL2, sL8, sW2l, sW2s, sHst, sHld = 72, 73, 2, 0, 3, 16, 28
D1, D2, D4 = 64, 65, 1
mX, mEO, mEX = 68, 82, 66
sSTAMP = 84
ROTA, ROTW = 86, 94

vLW = 0; vL16, vL64, vL128 = 1, 2, 3
vA = 4; vB = 8; vW1 = 10; vW2 = 11; vFP = 12; vSTl = 13; vSTs = 14; vSTAMP = 15
RES = 16; PHI = 32; ONES = 40; MP0, MP1, MO0, MO1 = 44, 45, 46, 47
vE1, vVr, vLW3, vCPF, vKX0, vKX1, vCSa, vCSb = range(32, 40)
vXW, vE0, vTCH, vSQ, vJUNK, vCV, vFree, vKX, vGM, vZW, vSW, vSR, vG16, vOut, vZL, vVal = range(48, 64)
ACC = 64
def acc(c, i): return ACC + 16*c + 4*i
def acc2(b, i): return ACC + 8*b + 4*i
STP = 160; CSR = 168; WFV = 192; FBV = 216; CI = 220
RING, HW2, HCS = 48, 240, 248
def RS(par, k): return 24*par if k == 0 else 240 - 48*k + 24*par
MF = "v_mfma_f32_16x16x32_bf16"
def f32hex(x): return "0x%08x" % struct.unpack("<I", struct.pack("<f", x))[0]
CK = (f32hex(1.4426950408889634), f32hex(1.4426950408889634 * 32 ** -0.5))
LIM = 0x100000

HEADER = """
Kernarg (80 bytes, pointers): A_x, A_wqkv, A_w_phi, A_wo, B_x, B_wqkv, B_wo, d_out, d_debug, d_ws.
One persistent launch, 256 workgroups (one per CU) x 4 waves; written by gen/gen2.py, straight-line code per layer.
Roles: group = id & 7 owns 256 rows; member = id >> 3 is the head in the QKV GEMM (256 x 96 tile) and
the (row half, column block) in the output GEMM (128 x 64 tile, residual kept in registers).
P0     x and all weights are re-tiled into MFMA fragment order in d_ws (w_phi folded into the q/k columns),
       with column sums of the QKV weights and per-row (sum, sum of squares) partials for the LayerNorm.
G1     QKV GEMM on raw x: x fragments go straight to registers, weights through an LDS ring;
       LayerNorm is applied as rstd * (acc - mean * colsum).
Epi A  dual softmax features (true row max / min), kv and z partials exchanged between the 8 groups, o = num / den.
Epi B  dilated window attention with MFMA; the 16-row halo comes from the previous group.
G2     output GEMM + residual.
Hand-offs inside a group use plain stores only after the members have checked (XCC id in the start-up flags) that
they share one L2; otherwise, and between groups, stores are write-through. Every flag and sentinel is cleared inside
the launch before it is used; every wait is bounded.
"""

class Opts:
    prune = 3; jit = 0; jitn = 1; verbose = 0; stamps = 0; last = 3; force_slow = 0; echo_a = -1; echo_b = -1; echo_mul = 1; echo_idx = -1; g1prof = 0
    NRES = 2
    TA0 = 0; TA2 = 0; ramp = 14
    ND0 = 6; ND2 = 8
    LA0 = 3; LA2 = 3; LA3 = 3
    APRE = 3
    wrE = 150; wrL = 110; w1sE = 1; w1sL = 2; wr0 = 150; w1s0 = 1; n1pre = 6
    w2E = 300; w2L = 200; w2sE = 25; w2sL = 20
    sper = 1; s0 = 0
    g2depth = 7; g2w = 2; bpos = 12; TG = 3
    w2BE = 450; w2sBE = 24; w2BL = 400; w2sBL = 20; wrBL = 110
    bper = 90; TB = 6; LAB = 3; hpos = 12
    aper = 150; aper0 = 110; aper2 = 90; aper3 = 200; gpos = 4; gpos2 = 3; dg = 0; dg0 = 2; dgp = 30; dk = 6
    rw = 12
    xf = 1; xt0 = 14
    bin = 0; bs0 = 1; w2e = 1; w2t = 0; of = 1; ot0 = 27
    rt = 3; rtb = 2; bbar = 1; tlb = 1; apoll = 0; ksl = 0; kgate = 0; psl = 0; dtouch = 1
    outsc = 1; oall = 0; o4 = 0; alias = 0; x0wt = 0; dlay = -1; dn = 0; oa = 0; kt = 0; kl = 0; of2 = 0; kq = 1; zf = 0; nopf = 0; xall = 0; rin = 0; lazy = 3; p2pos = 3; lv1 = 0; lv2 = 0; early = 3; epos = 4
    sf = 0; sfp = 0; sfu = 2; gop = 1; gown = 0; gow = 0; et = 0; cp0 = 0; CPL = 10; cpf = 1; cpf2 = 24; cpf3 = 26

def gen(o):
    A = Asm2()
    nb = [0]
    drop = {1: (17, 24, 26, 31, 32, 34, 42, 46, 47, 49, 53, 55), 2: (17, 31, 32, 34, 46, 47, 49), 3: (24, 26, 42, 53, 55)}.get(o.prune if o.last == 3 else 0, ())
    def e(t):
        if t == "s_barrier":
            nb[0] += 1
            if nb[0] - 1 in drop: return
        A.e(t)
    ool = []
    assert not (o.gown and o.bin)
    lay = 0
    o.CPL = min(o.CPL, 5*o.last + 7)
    def E(lst):
        for t in lst: e(t)
    def stamp(name, force=0):
        if o.jit and name not in (11, 28):
            l = A.new("jit")
            e(f"s_memtime s[{sSTAMP}:{sSTAMP+1}]"); e("s_waitcnt lgkmcnt(0)")
            e(f"s_lshr_b32 s{sSTAMP}, s{sSTAMP}, 2"); e(f"s_mul_i32 s{sSTAMP}, s{sSTAMP}, 0x9e3779b1"); e(f"s_lshr_b32 s{sSTAMP}, s{sSTAMP}, {32 - o.jit}")
            e(f"s_cmp_lg_u32 s{sSTAMP}, 0"); e(f"s_cbranch_scc1 {l}")
            for j in range(o.jitn): e("s_sleep 100")
            A.label(l)
        if not o.stamps: return
        if o.g1prof and name in range(2, 11) and not force: return
        idx = name + 16*lay
        if o.stamps == 2 and name != 11 and idx not in (o.echo_a, o.echo_b): return
        e(f"{'s_memtime' if o.stamps == 3 else 's_memrealtime'} s[{sSTAMP}:{sSTAMP+1}]")
        e("s_waitcnt lgkmcnt(0)")
        e(f"v_writelane_b32 v{vSTAMP}, s{sSTAMP}, {59 if name == 11 else idx}")
    def srt(p, size):
        e(f"s_mov_b32 s8, s{p}"); e(f"s_mov_b32 s9, s{p+1}"); e(f"s_mov_b32 s10, {size}"); e("s_mov_b32 s11, 0x20000")
    def mask64(r, val):
        e(f"s_mov_b32 s{r}, 0x{val & 0xffffffff:08x}"); e(f"s_mov_b32 s{r+1}, 0x{val >> 32:08x}")
    def sm(r): return f"s[{r}:{r+1}]"
    def bc(r): return (v(r & ~1, 2), r & 1)
    def pk_fma(d, x, y, z, negx=False):
        yp, ys = bc(y); zp, zs = bc(z)
        e(f"v_pk_fma_f32 {v(d,2)}, {v(x,2)}, {yp}, {zp} op_sel:[0,{ys},{zs}] op_sel_hi:[1,{ys},{zs}]" + (" neg_lo:[1,0,0] neg_hi:[1,0,0]" if negx else ""))
    def pk_mul(d, x, y):
        yp, ys = bc(y)
        e(f"v_pk_mul_f32 {v(d,2)}, {v(x,2)}, {yp} op_sel:[0,{ys}] op_sel_hi:[1,{ys}]")
    def cvt4l(d, x0, x1):
        return [f"v_cvt_pk_bf16_f32 v{d}, v{x0}, v{x0+1}", f"v_cvt_pk_bf16_f32 v{d+1}, v{x0+2}, v{x0+3}",
                f"v_cvt_pk_bf16_f32 v{d+2}, v{x1}, v{x1+1}", f"v_cvt_pk_bf16_f32 v{d+3}, v{x1+2}, v{x1+3}"]
    def cvt4(d, x0, x1): E(cvt4l(d, x0, x1))
    def wt(t): return t + (" sc1" if t.startswith("buffer_store") else "")
    def st_mode(lines):
        ls, ld = A.new("slow"), A.new("done")
        e(f"s_cmp_lg_u32 s{SMODE}, 0"); e(f"s_cbranch_scc1 {ls}")
        E(lines); A.label(ld)
        def blk():
            A.label(ls); A.fence(); E([wt(t) for t in lines]); e("s_nop 7"); e(f"s_branch {ld}")
        ool.append(blk)
    def spin(body, cond, first=None):
        l, d = A.new("spin"), A.new("spind")
        e(f"s_mov_b32 s{sTMO}, {LIM}")
        if first:
            E(body); E(first); e("s_waitcnt vmcnt(0)"); E(cond); e(f"s_cbranch_vccz {d}")
        A.label(l); E(body); e(f"s_sub_u32 s{sTMO}, s{sTMO}, 1"); e("s_waitcnt vmcnt(0)"); E(cond)
        e(f"s_cbranch_scc1 {d}"); e(f"s_cbranch_vccnz {l}"); A.label(d)
    def retry(body, cond):
        l, d = A.new("rt"), A.new("rtd")
        def blk():
            A.label(l); spin(body, cond); e(f"s_branch {d}")
        ool.append(blk)
        return [f"s_cbranch_vccnz {l}", d + ":"]
    def signal(sreg):
        e("s_mov_b64 exec, 1"); e("s_waitcnt vmcnt(0)")
        st_mode([f"buffer_store_dword v{vVal}, off, {SRD}, s{sreg}"])
        e("s_mov_b64 exec, -1")
    def poll(sreg, val, first=None, mask=None):
        cond = [f"v_cmp_gt_u32 vcc, {val}, v{FBV}"]
        if mask: cond = [f"s_mov_b64 exec, {mask}"] + cond + ["s_mov_b64 exec, -1"]
        spin([f"buffer_load_dword v{FBV}, v{vFP}, {SRD}, s{sreg} offen sc1"], cond, first)
    def handoff(sp, sc, val, mask, emask, pre, first):
        ld = f"buffer_load_dword v{FBV}, v{vFP}, {SRD}, s{sc} offen sc1"
        d = A.new("hd")
        E(pre[:o.epos]); e(ld + " ;@PE"); E(pre[o.epos:])
        if o.jit: stamp(7)
        e("s_mov_b64 exec, 1"); e("s_waitcnt vmcnt(1)")
        st_mode([f"buffer_store_dword v{vVal}, off, {SRD}, s{sp}"])
        e("s_mov_b64 exec, -1")
        E(first)
        e("WAITV PE"); e(f"s_mov_b64 exec, {sm(emask)}"); e(f"v_cmp_gt_u32 vcc, {val}, v{FBV}"); e("s_mov_b64 exec, -1"); e(f"s_cbranch_vccz {d}")
        A.track = False; poll(sc, val, None, mask); A.track = True
        A.label(d)
    def poll2(sreg): e(f"buffer_load_dword v{FBV}, v{vFP}, {SRD}, s{sreg} offen sc1 ;@P2")
    def poll2chk(sreg, val, mask=None):
        l = A.new("p2")
        e("WAITV P2")
        if mask: e(f"s_mov_b64 exec, {mask}")
        e(f"v_cmp_gt_u32 vcc, {val}, v{FBV}")
        if mask: e("s_mov_b64 exec, -1")
        e(f"s_cbranch_vccnz {l}"); A.label(l + "_r")
        def blk(): A.label(l); poll(sreg, val, None, mask); e(f"s_branch {l}_r")
        ool.append(blk)
    def xreduce(groups, aslist=False):
        out = []; e = out.append
        for op, q in groups: e(f"v_permlane32_swap_b32 v{q[0]}, v{q[1]}"); e(f"v_permlane32_swap_b32 v{q[2]}, v{q[3]}")
        for op, q in groups: e(f"{op} v{q[0]}, v{q[0]}, v{q[1]}"); e(f"{op} v{q[2]}, v{q[2]}, v{q[3]}")
        for op, q in groups: e(f"v_permlane16_swap_b32 v{q[0]}, v{q[2]}")
        for op, q in groups: e(f"{op} v{q[1]}, v{q[0]}, v{q[2]}"); e(f"{op} v{q[2]}, v{q[0]}, v{q[2]}")
        for op, q in groups: e(f"v_permlane16_swap_b32 v{q[1]}, v{q[2]}")
        for op, q in groups: e(f"v_mov_b32 v{q[0]}, v{q[1]}"); e(f"v_mov_b32 v{q[3]}, v{q[2]}")
        for op, q in groups: e(f"v_permlane32_swap_b32 v{q[0]}, v{q[1]}"); e(f"v_permlane32_swap_b32 v{q[2]}, v{q[3]}")
        if aslist: return out
        E(out)
    def xparts(i):
        t = 160+8*i; g0 = t+4; st = []
        for kk in range(2):
            f = v(RES+8*i+4*kk, 4)
            st += [[f"{MF} {v(g0,4)}, {f}, {f}, {'0' if kk == 0 else v(g0,4)}"],
                   [f"buffer_store_dwordx4 {f}, v{vB+i}, {SRD}, s{sXs} offen offset:{kk*1024}"],
                   [f"{MF} {v(t,4)}, {v(ONES,4)}, {f}, {'0' if kk == 0 else v(t,4)}"]]
        return st, [[f"v_cndmask_b32 v{g0}, v{g0}, v{g0+1}, {sm(mPAR)}", f"v_cndmask_b32 v{g0+2}, v{g0+2}, v{g0+3}, {sm(mPAR)}"],
                    [f"v_cndmask_b32 v{t+1}, v{g0}, v{g0+2}, {sm(mB1)}"],
                    [f"s_mov_b64 exec, {sm(mDIAG)}", f"buffer_store_dwordx2 {v(t,2)}, v{vSTs}, {SRD}, s{sSTs} offen offset:{i*128}", "s_mov_b64 exec, -1"]]
    def xtile(through, blocks=(0, 1)):
        ps = [xparts(i) for i in blocks]
        st = sum((sum(p[0], []) for p in ps), []) + sum((sum(p[1], []) for p in ps), [])
        if through: E([wt(t) for t in st])
        else: st_mode(st)
    def w1_piece(par, stage, i):
        r = []; slot = (stage + 1) % 6
        if i % 4 == 0: r += [f"s_add_u32 m0, s{sLW}, {slot*SLOT + i*1024}", f"s_add_u32 s{sWo}, s{ROTW+stage}, {WS_W1[par] + i*1024}"]
        return r + [f"buffer_load_dwordx4 v{vW1}, {SRD}, s{sWo} offen offset:{(i%4)*1024} lds ;@W{stage}"]
    def w2_piece(par, part, i):
        r = []
        if i % 4 == 0:
            if part < 5:
                lb, sb = ((3+part)*SLOT, 57344 + part*SLOT) if part < 3 else ((part-3)*SLOT, (part-3)*SLOT)
                r += [f"s_add_u32 m0, s{sLW}, {lb + i*1024}", f"s_mov_b32 s{sWo}, {WS_W2[par] + sb + i*1024}"]
            else: r += [f"s_add_u32 m0, s{sL8}, {2*SLOT}", f"s_sub_u32 s{sWo}, {WS_W2[par] + 2*SLOT}, s{sW2l}"]
        return r + [f"buffer_load_dwordx4 v{vW2}, {SRD}, s{sWo} offen offset:{(i%4)*1024} lds"]
    def ldsrd(dst, addr):
        base = {0: vL16, 1: vL64, 2: vL128}[addr >> 16]
        return f"ds_read_b128 {dst}, v{base} offset:{addr & 0xffff}"
    def w1st(R, blk, sa, sb): return f"buffer_store_dwordx4 {R}, v{vW1}, {SRD}, s{sa if blk < 4 else sb} offen offset:{(blk%4)*1024} sc1"
    def csst(C, sreg): return ["s_mov_b32 exec_lo, 0x003f003f", "s_mov_b32 exec_hi, 0x003f003f", f"buffer_store_dwordx4 {C}, v{vOut}, {SRD}, s{sreg} offen sc1", "s_mov_b64 exec, -1"]
    def fb_body(k): return [f"s_mov_b32 s{T1}, {WS_FLAGB + 1024*k}", f"buffer_load_dwordx4 {v(FBV,4)}, v{vL16}, {SRD}, s{T1} offen sc1"]
    fb_cond = [f"v_and_b32 v{FBV}, v{FBV}, v{FBV+1}", f"v_and_b32 v{FBV+2}, v{FBV+2}, v{FBV+3}", f"v_and_b32 v{FBV}, v{FBV}, v{FBV+2}", f"v_cmp_ne_u32 vcc, 1, v{FBV}"]
    def fb_set(k): return ["s_mov_b64 exec, 1", f"buffer_store_dword v{vVal}, off, {SRD}, s{sFBp} offset:{1024*k} sc1", "s_mov_b64 exec, -1"]
    def xw(r, kb, ad=vXW): return f"ds_write2st64_b64 v{ad}, {v(r,2)}, {v(r+2,2)} offset0:{2*kb} offset1:{2*kb+1}"

    for t in HEADER.strip("\n").split("\n"): A.raw(("; " + t).rstrip())
    A.raw(f"; @launch grid=(256,1,1) block=(256,1,1) lds={LDS_SIZE}")
    A.raw('.amdgcn_target "amdgcn-amd-amdhsa--gfx950"'); A.raw(".text")
    A.raw(f".globl {KNAME}"); A.raw(".p2align 8"); A.raw(f".type {KNAME},@function"); A.label(KNAME)
    if o.stamps: e("s_memrealtime s[86:87]")
    e("s_cmp_ge_u32 s2, 256"); e("s_cbranch_scc1 L_exit")
    e(f"s_getpc_b64 {sm(sPC)}"); A.label("L_pc")
    e(f"s_lshr_b32 s{T0}, s2, 3"); e(f"s_mulk_i32 s{T0}, {o.CPL*128}"); e(f"v_min_u32 v252, {o.CPL-1}, v0"); e(f"v_lshl_add_u32 v252, v252, 7, s{T0}")
    cpv = f"global_load_dword v{vJUNK}, v252, {sm(sPC)}"
    if o.cp0 == 0: e(cpv)
    if o.cp0 == 3: e(f"s_and_b32 s{T1}, s2, 0xf8"); e(f"s_lshl_b32 s{T1}, s{T1}, 4"); e(f"s_add_u32 s{T1}, s{T1}, 256"); e(f"s_load_dword s{sTMO}, {sm(sPC)}, s{T1}")
    e("s_load_dwordx16 s[64:79], s[0:1], 0"); e("s_load_dwordx4 s[80:83], s[0:1], 64")
    if o.force_slow: e(f"s_lshr_b32 s{SGRP}, s2, 5"); e(f"s_and_b32 s{SMEM}, s2, 31")
    else: e(f"s_and_b32 s{SGRP}, s2, 7"); e(f"s_lshr_b32 s{SMEM}, s2, 3")
    VM = 215
    e(f"s_lshl_b32 s{SIDX}, s{SGRP}, 5"); e(f"s_add_u32 s{SIDX}, s{SIDX}, s{SMEM}")
    if o.et:
        e(f"s_lshl_b32 s{T1}, s{SIDX}, 14"); e(f"v_lshl_add_u32 v250, v0, 6, s{T1}")
        if o.et > 1: e(f"s_mul_i32 s{T1}, s{SIDX}, 24576"); e(f"v_mul_u32_u24 v251, 96, v0"); e(f"v_add_u32 v251, s{T1}, v251")
        e("s_waitcnt lgkmcnt(0)")
        if o.et != 3: e(f"global_load_dword v{vJUNK}, v250, {sm(P_AX)}")
        if o.et > 1: e(f"global_load_dword v{vJUNK}, v251, {sm(P_AW1)}")
    e("v_lshrrev_b32 v1, 6, v0"); e("v_and_b32 v254, 63, v0"); e(f"v_readfirstlane_b32 s{SW}, v1")
    e(f"s_lshr_b32 s{SRB}, s{SIDX}, 4"); e(f"s_and_b32 s{SCB}, s{SIDX}, 15")
    e(f"s_mul_i32 s{sLW}, s{SW}, 6144")
    e("v_lshrrev_b32 v203, 3, v254"); e("v_and_b32 v204, 7, v254"); e("v_lshlrev_b32 v204, 4, v204"); e("v_lshl_add_u32 v210, v203, 11, v204")
    e("v_lshrrev_b32 v200, 2, v254"); e("v_and_b32 v201, 3, v254")
    e("v_mul_u32_u24 v202, 6144, v200"); e("v_lshl_add_u32 v202, v201, 4, v202")
    e(f"s_lshl_b32 s{T2}, s{SRB}, 2"); e(f"s_add_u32 s{T2}, s{T2}, s{SW}"); e(f"s_lshl_b32 s{T2}, s{T2}, 16")
    e(f"s_lshl_b32 s{T4}, s{SCB}, 7"); e(f"s_add_u32 s{T3}, s{T2}, s{T4}")
    e(f"s_lshl_b32 s{T6}, s{SGRP}, 2"); e(f"s_add_u32 s{T6}, s{T6}, s{SW}")
    e(f"s_mul_i32 s{T5}, s{T6}, {32*6144}"); e(f"s_lshl_b32 s{T4}, s{SMEM}, 6"); e(f"s_add_u32 s{T5}, s{T5}, s{T4}")
    e(f"v_lshlrev_b32 v{vL16}, 4, v254"); e(f"v_and_b32 v{vG16}, 48, v254"); e(f"v_and_b32 v{VM}, 15, v254")
    e(f"s_lshl_b32 s{T1}, s{SCB}, 11"); e(f"s_add_u32 s{sXs}, s{T1}, {WS_X}")
    e(f"s_mul_i32 s{sAo}, s{SMEM}, 196608"); e(f"s_add_u32 s{sAo}, s{sAo}, s{sLW}"); e(f"s_mul_i32 s{ROTW}, s{SGRP}, {SLOT}")
    e("v_lshlrev_b32 v249, 7, v254")
    e(f"s_lshl_b32 s{T0}, s{SIDX}, 2"); e(f"s_add_u32 s{T0}, s{T0}, s{SW}"); e(f"s_mul_i32 s{sWo}, s{T0}, 6144")
    if o.stamps == 1: e("s_memrealtime s[88:89]")
    e("s_waitcnt lgkmcnt(0)")
    if o.stamps == 1: e("s_memrealtime s[90:91]")
    e(f"s_mov_b32 s4, s{P_WS}"); e(f"s_mov_b32 s5, s{P_WS+1}"); e(f"s_mov_b32 s6, {WS_SIZE}"); e("s_mov_b32 s7, 0x20000")
    if o.cp0 in (2, 4):
        e(f"s_lshl_b32 s{T0}, s{SMEM}, 2"); e(f"s_add_u32 s{T0}, s{T0}, s{SW}"); e(f"s_lshl_b32 s{T0}, s{T0}, 7")
        for j in range((o.CPL + 3)//4 if o.cp0 == 2 else 1):
            e(f"s_load_dword s{sTMO}, {sm(sPC)}, s{T0}"); e(f"s_add_u32 s{T0}, s{T0}, 16384")
    e(f"s_xor_b32 s{T7}, s{SW}, {o.gow}")
    e(f"s_or_b32 s{T0}, s{SMEM}, s{T7}"); e(f"s_cmp_lg_u32 s{T0}, 0"); e("s_cbranch_scc1 L_p0a")
    A.track = False
    for r in range(4): e(f"v_mov_b32 v{204+r}, 0")
    e(f"s_lshl_b32 s{T0}, s{SGRP}, 12")
    for j in range(4): e(f"buffer_store_dwordx4 v[204:207], v{vL16}, {SRD}, s{T0} offen offset:{j*1024} sc1")
    e(f"s_lshl_b32 s{T0}, s{SGRP}, 7"); e(f"s_add_u32 s{T0}, s{T0}, {WS_FLAGB}")
    e("s_mov_b64 exec, 0xff")
    for j in range(2 + o.sf): e(f"buffer_store_dwordx4 v[204:207], v{vL16}, {SRD}, s{T0} offen offset:{j*1024} sc1")
    e("s_mov_b64 exec, -1")
    A.track = True
    A.label("L_p0a")
    n0 = len(A.vq)
    def setgo():
        e(f"s_or_b32 s{T0}, s{SMEM}, s{T7}"); e(f"s_cmp_lg_u32 s{T0}, 0"); e("s_cbranch_scc1 L_p0b")
        A.track = False
        srt(P_DBG, 256); e("v_mov_b32 v204, 1"); e(f"s_lshl_b32 s{T0}, s{SGRP}, {4 if o.dtouch else 5}")
        e(f"s_waitcnt vmcnt({len(A.vq) - n0})")
        e("s_mov_b64 exec, 1"); e(f"buffer_store_dword v204, off, {SRT}, s{T0} sc1"); e("s_mov_b64 exec, -1")
        A.track = True
        A.label("L_p0b")
    if o.gop == 2: setgo()
    def rowtouch(p, few=False):
        srt(p, 0x600000)
        if few: e("s_mov_b32 exec_lo, 0x08080808")
        e("s_mov_b32 exec_hi, 0x0808" if few else "s_mov_b32 exec_hi, 0xffff"); e(f"buffer_load_dword v{vJUNK}, v249, {SRT}, s{sWo} offen"); e("s_mov_b64 exec, -1")
    if o.rt in (1, 3): rowtouch(P_AW1, o.rt == 3)
    srt(P_AX, 0x400000)
    for i in range(4):
        e(f"s_add_u32 m0, s{sLW}, {i*1024}"); e(f"s_add_u32 s{T0}, s{T3}, {i*16384}")
        e(f"buffer_load_dwordx4 v210, {SRT}, s{T0} offen lds ;@x")
    if o.rt == 2: rowtouch(P_AW1)
    if o.stamps == 1: e("s_memrealtime s[92:93]")
    def touch(p, *calc):
        if o.tlb: E(list(calc)); e(f"s_load_dword s{sTMO}, s[{p}:{p+1}], s{T0}")
    if o.dtouch: touch(P_DBG, f"s_movk_i32 s{T0}, 128")
    touch(P_WS, f"s_add_u32 s{T0}, s{T2}, s{sXs}")
    touch(P_WS, f"s_add_u32 s{T0}, s{sAo}, s{ROTW}", f"s_add_u32 s{T0}, s{T0}, {WS_W1[0]}")
    touch(P_WS, f"s_mov_b32 s{T0}, 0x1f0000")
    touch(P_BW1, f"s_mov_b32 s{T0}, s{T5}"); touch(P_AW2, f"s_lshl_b32 s{T0}, s{SRB}, 17"); touch(P_BW2)
    if o.gop == 1: setgo()
    srt(P_PHI, 0x10000)
    e(f"s_add_u32 m0, s{sLW}, 4096"); e(f"s_lshl_b32 s{T0}, s{SMEM}, 11")
    for j in range(2): e(f"buffer_load_dwordx4 v{vL16}, {SRT}, s{T0} offen offset:{j*1024} lds ;@phi")
    def raw1(p, ldsb, tag):
        srt(p, 0x600000)
        for seg in range(3):
            for hf in range(2):
                e(f"s_add_u32 m0, s{sLW}, {ldsb + seg*2048 + hf*1024}"); e(f"s_add_u32 s{T0}, s{T5}, {seg*2048 + hf*16*6144}")
                e(f"buffer_load_dwordx4 v202, {SRT}, s{T0} offen lds ;@{tag}")
    raw1(P_AW1, RAW1A, "ra")
    if o.rtb == 5: rowtouch(P_BW1)
    if o.cp0 in (1, 3): e(cpv)
    if o.gop == 0: setgo()
    e(f"v_lshl_add_u32 v214, v{VM}, 7, v{vG16}"); e(f"v_add_u32 v214, s{sLW}, v214")
    e(f"v_add_u32 v{vB}, s{T2}, v{vL16}"); e(f"v_add_u32 v{vB+1}, 0x8000, v{vB}")
    e(f"s_lshr_b32 s{T2}, s{T2}, 8"); e(f"v_lshl_add_u32 v{vSTs}, v{VM}, 3, s{T2}")
    e(f"s_lshl_b32 s{T0}, s{SCB}, 14"); e(f"s_add_u32 s{sSTs}, s{T0}, {WS_ST}")
    mask64(mPAR, 0xAAAAAAAAAAAAAAAA); mask64(mB1, 0xCCCCCCCCCCCCCCCC); mask64(mDIAG, 0xF0000F0000F0000F)
    for r in range(4): e(f"v_mov_b32 v{ONES+r}, 0x3f803f80")
    if o.stamps:
        e(f"v_mov_b32 v{vSTAMP}, 0"); e(f"v_writelane_b32 v{vSTAMP}, s86, 12"); e(f"v_writelane_b32 v{vSTAMP}, s{sPC}, 63")
    stamp(28)
    if o.stamps == 1:
        for j in range(3): e(f"v_writelane_b32 v{vSTAMP}, s{88+2*j}, {60+j}")
    e("WAITV x")
    for i in range(2):
        for kk in range(2): e(f"ds_read_b128 {v(RES+8*i+4*kk,4)}, v214 offset:{i*2048 + kk*64}")
    e(f"v_add_u32 v{vW1}, s{sAo}, v{vL16}"); e(f"v_add_u32 v{vLW}, s{sLW}, v{vL16}")
    e("v_and_b32 v209, 3, v200"); e(f"v_lshrrev_b32 v203, 1, v{vG16}"); e("v_add_u32 v209, v209, v203")
    e("v_lshlrev_b32 v203, 6, v209"); e("v_lshl_add_u32 v205, v201, 3, v203"); e(f"v_add_u32 v205, s{sLW}, v205")
    e("v_lshl_add_u32 v206, v201, 4, v203"); e(f"s_add_u32 s{T1}, s{sLW}, {RAW1A}"); e(f"v_add_u32 v206, s{T1}, v206")
    e(f"v_lshrrev_b32 v203, 2, v{VM}"); e("v_lshl_add_u32 v203, v203, 3, v201"); e(f"v_lshl_add_u32 v203, v203, 6, v{vG16}"); e(f"v_add_u32 v208, s{T1}, v203")
    e(f"v_lshl_add_u32 v{vOut}, v{VM}, 11, v{vG16}")
    e("s_waitcnt lgkmcnt(0)")
    stamp(29)
    if o.cp0 == 4: e(cpv)
    if o.rtb == 1: rowtouch(P_BW1)
    xtile(True)
    def goload():
        srt(P_DBG, 256)
        e("v_and_b32 v253, 7, v254"); e(f"v_lshlrev_b32 v253, {4 if o.dtouch else 5}, v253"); e(f"s_cmp_eq_u32 s{SW}, 0"); e(f"s_cselect_b32 s{T0}, 0, {OOR}")
        e(f"buffer_load_dword v212, v253, {SRT}, s{T0} offen sc1 ;@go")
    gm = ([f"s_lshl_b64 exec, 1, s{SGRP}"], ["s_mov_b64 exec, -1"]) if o.gown else ([], [])
    def gocheck():
        e(f"s_cmp_eq_u32 s{SW}, 0"); e(f"s_cselect_b32 s{T0}, 1, 0")
        e("WAITV go")
        stamp(31)
        E(gm[0]); e(f"v_cmp_ne_u32 vcc, s{T0}, v212"); E(gm[1]); e("s_cbranch_vccnz L_goslow")
        A.label("L_gook")
        def goslow():
            A.label("L_goslow"); srt(P_DBG, 256); e("s_waitcnt lgkmcnt(0)")
            E(gm[0]); spin([f"buffer_load_dword v212, v253, {SRT}, 0 offen sc1"], ["v_cmp_ne_u32 vcc, 1, v212"]); E(gm[1]); e("s_branch L_gook")
        ool.append(goslow)
    def xcc():
        e(f"s_getreg_b32 s{SXCC}, hwreg(HW_REG_XCC_ID, 0, 4)"); e(f"s_or_b32 s{SXCC}, s{SXCC}, 0x100"); e(f"v_mov_b32 v{vVal}, s{SXCC}")
        e(f"s_lshl_b32 s{T1}, s{SIDX}, 2"); e(f"s_add_u32 s{T1}, s{T1}, {WS_FLAGB}"); e(f"s_cmp_eq_u32 s{SW}, 0"); e(f"s_cselect_b32 s{sFBp}, s{T1}, {OOR}")
    def flagx():
        gocheck(); e("s_barrier"); E(fb_set(2))
    SB = 224 if o.sf else 96
    if o.sf: goload(); xcc()
    if o.rtb == 2: rowtouch(P_BW1)
    if o.w2t:
        e(f"s_lshl_b32 s{T0}, s{SIDX}, 2"); e(f"s_add_u32 s{T0}, s{T0}, s{SW}"); e(f"s_lshl_b32 s{T0}, s{T0}, 11"); e("s_mov_b64 exec, 0xffff")
        for p in (P_BW2, P_AW2)[:o.w2t]:
            srt(p, 0x200000); e(f"buffer_load_dword v{vJUNK}, v249, {SRT}, s{T0} offen")
        e("s_mov_b64 exec, -1")
    for blk in range(6):
        mask64(T1, 0x0001000100010001 << blk)
        for r in range(4): e(f"v_cndmask_b32 v{SB+4*blk+r}, 0, v{ONES}, {sm(T1)}")
    e(f"s_add_u32 s{T2}, s{ROTW}, {WS_W1[0]}"); e(f"s_add_u32 s{T4}, s{T2}, 4096")
    e(f"s_lshl_b32 s{T0}, s{T6}, 6"); e(f"s_mul_i32 s{T1}, s{SMEM}, 12288"); e(f"s_add_u32 s{T0}, s{T0}, s{T1}"); e(f"s_add_u32 s{sCL0}, s{T0}, {WS_CS}")
    e("WAITV phi")
    for fb in range(2):
        for t in range(2): e(f"ds_read_b64_tr_b16 {v(PHI+4*fb+2*t,2)}, v205 offset:{4096 + fb*32 + t*256}")
    e("WAITV ra")
    if o.rtb == 6: rowtouch(P_BW1)
    stamp(13)
    if o.sf and o.sfp == 0: flagx()
    RA, RB = RS(0, 0), RS(1, 0)
    for seg in range(2):
        for kb in range(2): e(f"ds_read_b128 {v(120+8*seg+4*kb,4)}, v208 offset:{seg*2048 + kb*256} ;@s{seg}")
    for blk in (4, 5):
        for t in range(2): e(f"ds_read_b64_tr_b16 {a(RA+4*blk+2*t,2)}, v206 offset:{4096 + t*256 + (blk&1)*8}")
    for seg in range(2):
        e(f"WAITL s{seg}")
        for fb in range(2):
            for kb in range(2): e(f"{MF} {v(160+16*seg+8*fb+4*kb,4)}, {v(120+8*seg+4*kb,4)}, {v(PHI+4*fb,4)}, 0")
    e("s_waitcnt lgkmcnt(0)")
    for blk in (4, 5):
        e(w1st(a(RA+4*blk,4), blk, T2, T4))
        e(f"{MF} v[64:67], {a(RA+4*blk,4)}, {v(SB+4*blk,4)}, {'0' if blk == 4 else 'v[64:67]'}")
    for blk in range(4):
        cvt4(136+4*blk, 160+8*blk, 164+8*blk)
        e(w1st(v(136+4*blk,4), blk, T2, T4))
        e(f"{MF} v[64:67], {v(136+4*blk,4)}, {v(SB+4*blk,4)}, v[64:67]")
    for r in range(16): e(f"v_accvgpr_write_b32 a{RA+r}, v{136+r}")
    E(csst(v(64,4), sCL0))
    if not o.sf: goload()
    if o.sf and o.sfp == 1: flagx()
    elif o.bbar: e("s_barrier")
    if o.rtb == 3: rowtouch(P_BW1)
    e(f"s_lshl_b32 s{T0}, s{SRB}, 1"); e(f"s_and_b32 s{T3}, s{SW}, 1"); e(f"s_add_u32 s{T0}, s{T0}, s{T3}")
    e(f"s_lshl_b32 s{T1}, s{SCB}, 1"); e(f"s_lshr_b32 s{T4}, s{SW}, 1"); e(f"s_add_u32 s{T1}, s{T1}, s{T4}"); e(f"s_lshl_b32 s{T1}, s{T1}, 6")
    e(f"s_lshl_b32 s{sW2s}, s{T0}, 12"); e(f"s_lshl_b32 s{T0}, s{T0}, 16"); e(f"s_add_u32 s{T0}, s{T0}, s{T1}"); e(f"s_add_u32 s{T1}, s{T0}, 0x8000")
    e("v_lshlrev_b32 v203, 11, v200"); e("v_lshl_add_u32 v207, v201, 4, v203")
    e(f"s_mov_b32 s{D1}, s{T0}"); e(f"s_mov_b32 s{D2}, s{T1}")
    def raw2(wt_):
        srt((P_AW2, P_BW2)[wt_], 0x200000)
        for i in range(2):
            e(f"s_add_u32 m0, s{sLW}, {RAW2 + wt_*2048 + i*1024}")
            e(f"buffer_load_dwordx4 v207, {SRT}, s{D1 + i} offen lds ;@r2{wt_}")
    for wt_ in range(o.w2e): raw2(wt_)
    for blk in range(6): e(f"ds_write_b128 v{vLW}, {a(RA+4*blk,4)} offset:{SLOT + blk*1024}")
    stamp(30)
    if not o.sf: xcc()
    e(f"s_lshl_b32 s{T0}, s{T4}, 11"); e(f"s_add_u32 s{sW2s}, s{sW2s}, s{T0}"); e(f"s_lshl_b32 s{T0}, s{SCB}, 17")
    e(f"s_add_u32 s{sW2s}, s{sW2s}, s{T0}"); e(f"s_add_u32 s{sW2s}, s{sW2s}, {WS_W2[0]}")
    e(f"s_lshl_b32 s{T1}, s{SMEM}, 15"); e(f"s_lshl_b32 s{T2}, s{SW}, 10"); e(f"s_add_u32 s{T1}, s{T1}, s{T2}"); e(f"s_add_u32 s{sKV}, s{T1}, {WS_KVP - WS_X + (1<<32)}")
    e(f"s_lshr_b32 s{T1}, s{T1}, 4"); e(f"s_add_u32 s{sZP}, s{T1}, {WS_ZP}")
    for s_ in range(8):
        e(f"s_add_u32 s{T1}, s{SGRP}, {s_}"); e(f"s_and_b32 s{T1}, s{T1}, 7")
        e(f"s_mul_i32 s{ROTW+s_}, s{T1}, {SLOT}"); e(f"s_lshl_b32 s{T1}, s{T1}, 12"); e(f"s_add_u32 s{ROTA+s_}, s{T1}, {WS_X}")
    e(f"s_lshl_b32 s{T1}, s{SIDX}, 11"); e(f"s_add_u32 s{sHALO}, s{T1}, {WS_HALO}")
    e(f"s_lshl_b32 s{T1}, s{SMEM}, 10"); e(f"s_add_u32 s{sO}, s{T1}, {WS_X if o.alias else WS_O}")
    touch(P_WS, f"s_mov_b32 s{T0}, s{sW2s}")
    touch(P_WS, f"s_add_u32 s{T0}, s{sKV}, s{ROTA}")
    touch(P_WS, f"s_add_u32 s{T0}, s{sW2s}, {WS_W2[1] - WS_W2[0]}")
    touch(P_WS, f"s_add_u32 s{T0}, s{sAo}, s{ROTW}", f"s_add_u32 s{T0}, s{T0}, {WS_W1[1]}")
    touch(P_WS, f"s_mov_b32 s{T0}, s{sHALO}")
    touch(P_WS, f"s_lshl_b32 s{T0}, s{T6}, 17", f"s_add_u32 s{T0}, s{T0}, s{sO}")
    touch(P_OUT, f"s_lshl_b32 s{T0}, s{SRB}, 18", f"s_lshl_b32 s{T1}, s{SCB}, 7", f"s_add_u32 s{T0}, s{T0}, s{T1}")
    e(f"s_lshl_b32 s{T0}, s{SGRP}, 5"); e(f"v_add_u32 v203, s{T0}, v254")
    e("v_and_b32 v204, 7, v254"); e(f"v_lshl_add_u32 v204, v204, 5, s{SMEM}")
    mask64(T1, 0x00000000FFFFFFFF); e(f"v_cndmask_b32 v211, v204, v203, {sm(T1)}"); e("v_lshlrev_b32 v211, 7, v211")
    if o.sf: e("v_lshlrev_b32 v250, 7, v204")
    def flaga():
        e(f"s_lshl_b32 s{T0}, s{SIDX}, 7"); e(f"s_cmp_eq_u32 s{SW}, 0"); e(f"s_cselect_b32 s{T0}, s{T0}, {OOR}")
        e("s_barrier")
        e("s_mov_b64 exec, 1"); e(f"buffer_{'atomic_or' if o.apoll else 'store_dword'} v{vVal}, off, {SRD}, s{T0} sc1"); e("s_mov_b64 exec, -1")
        stamp(14)
    def bloads():
        for wt_ in range(o.w2e, 2): raw2(wt_)
        if o.rtb == 4: rowtouch(P_BW1)
        if not o.bin: raw1(P_BW1, RAW1B, "rb")
        else: srt(P_BW1, 0x600000)
    if not o.sf: gocheck(); flaga(); bloads()
    e(f"s_cmp_eq_u32 s{SW}, 0"); e(f"s_cselect_b32 s{T7}, 0, {OOR}")
    if o.gown: srt(P_DBG, 256); e(f"buffer_load_dword v250, v253, {SRT}, s{T7} offen sc1 ;@go2")
    mask64(mM0, 0x0001000100010001)
    mask64(mOWN0, sum(1 << l for l in range(64) if 4*(l >> 4) + (l & 1) <= (l & 15)))
    mask64(mOWN1, sum(1 << l for l in range(64) if 4*(l >> 4) + 2 + (l & 1) <= (l & 15)))
    e(f"s_lshl_b32 s{T1}, s{T6}, 7"); e(f"s_add_u32 s{sFXc}, s{T1}, {WS_FLAGX}")
    e(f"s_lshl_b32 s{T2}, s{SMEM}, 2"); e(f"s_add_u32 s{T1}, s{T1}, s{T2}"); e(f"s_add_u32 s{sFOp}, s{T1}, {WS_FLAGO}")
    e(f"s_lshl_b32 s{T1}, s{SRB}, 1"); e(f"s_add_u32 s{T1}, s{T1}, s{T4}"); e(f"s_lshl_b32 s{T1}, s{T1}, 7")
    e(f"s_add_u32 s{sFOc}, s{T1}, {WS_FLAGO}")
    e(f"s_lshl_b32 s{T2}, s{SCB}, 3"); e(f"s_lshl_b32 s{T0}, s{T3}, 2")
    e(f"s_add_u32 s{T1}, s{T1}, s{T2}"); e(f"s_add_u32 s{T1}, s{T1}, s{T0}"); e(f"s_add_u32 s{sFXp}, s{T1}, {WS_FLAGX}")
    e(f"s_lshl_b32 s{T0}, s{SGRP}, 8"); e(f"s_add_u32 s{sZo}, s{T0}, s{sZP}")
    e(f"s_lshl_b32 s{T1}, s{T3}, 10"); e(f"s_lshl_b32 s{T2}, s{T4}, 19")
    e(f"s_add_u32 s{T1}, s{T1}, s{T2}"); e(f"s_add_u32 s{sCL2}, s{T1}, s{sHALO}")
    e(f"s_cmp_eq_u32 s{SW}, 3"); e(f"s_cselect_b32 s{sHst}, s{sHALO}, {OOR}")
    e(f"s_sub_u32 s{T1}, s{sHALO}, 0x10000"); e(f"s_cmp_eq_u32 s{SW}, 0"); e(f"s_cselect_b32 s{T1}, s{T1}, {OOR}")
    e(f"s_cmp_eq_u32 s{SGRP}, 0"); e(f"s_cselect_b32 s{sHld}, {OOR}, s{T1}")
    e(f"s_lshl_b32 s{T0}, s{SGRP}, 2"); e(f"s_lshl_b32 s{mX}, 15, s{T0}"); e(f"s_mov_b32 s{mX+1}, 0")
    e(f"s_sub_u32 s{T0}, s{sFOp}, s{sFOc}"); e(f"s_lshr_b32 s{T1}, s{T0}, 2"); e(f"s_lshl_b32 s{T1}, 1, s{T1}"); e(f"s_cmp_lt_u32 s{T0}, 128"); e(f"s_cselect_b32 s{T1}, s{T1}, 0")
    e(f"s_andn2_b32 s{mEO}, {(1 << (o.g2depth - 1)) - 1 if o.lazy & 2 else -1}, s{T1}"); e(f"s_mov_b32 s{mEO+1}, 0")
    e(f"s_sub_u32 s{T0}, s{sFXp}, s{sFXc}"); e(f"s_lshr_b32 s{T1}, s{T0}, 2"); e(f"s_lshl_b32 s{T1}, 1, s{T1}"); e(f"s_cmp_lt_u32 s{T0}, 128"); e(f"s_cselect_b32 s{T1}, s{T1}, 0")
    e(f"s_andn2_b32 s{mEX}, {'s%d' % mX if o.lazy & 1 else -1}, s{T1}"); e(f"s_mov_b32 s{mEX+1}, 0")
    e(f"s_lshl_b32 s{sL8}, s{SW}, 11"); e(f"s_lshl_b32 s{sW2l}, s{SW}, 12")
    e(f"s_or_b32 s{T0}, s{SGRP}, s{SW}"); e(f"s_cmp_eq_u32 s{T0}, 0"); e(f"s_cselect_b64 {sm(mFIRST)}, -1, 0")
    e(f"v_add_u32 v{vL64}, 0x10000, v{vL16}"); e(f"v_add_u32 v{vL128}, 0x20000, v{vL16}"); e(f"v_add_u32 v{vLW3}, {(3-o.nopf)*SLOT}, v{vLW}")
    e(f"v_and_b32 v{vFP}, 31, v254"); e(f"v_lshlrev_b32 v{vFP}, 2, v{vFP}")
    e(f"s_lshl_b32 s{T1}, s{T6}, 17"); e(f"v_add_u32 v{vA}, s{T1}, v{vL16}")
    for i in range(1, 4): e(f"v_add_u32 v{vA+i}, {i*0x8000}, v{vA}")
    e(f"s_lshl_b32 s{T1}, s{T6}, 9"); e("v_lshrrev_b32 v213, 5, v254"); e(f"v_lshl_add_u32 v{vSTl}, v213, 17, s{T1}"); e(f"v_lshl_add_u32 v{vSTl}, v{vFP}, 2, v{vSTl}")
    e(f"s_lshl_b32 s{T1}, s{SCB}, 17"); e(f"s_add_u32 s{T1}, s{T1}, s{sLW}"); e(f"v_add_u32 v{vW2}, s{T1}, v{vL16}")
    e("v_lshrrev_b32 v203, 4, v254"); e("v_xor_b32 v204, v203, v201"); e("v_lshlrev_b32 v204, 3, v204"); e("v_lshl_add_u32 v208, v200, 5, v204")
    e(f"s_lshl_b32 s{T2}, s{SW}, 12")
    e(f"v_lshrrev_b32 v204, 2, v{VM}"); e("v_xor_b32 v203, v203, v204"); e("v_lshlrev_b32 v203, 3, v203")
    e(f"v_lshl_add_u32 v203, v{VM}, 5, v203"); e(f"v_add_u32 v{vXW}, s{T2}, v203")
    e(f"s_lshl_b32 s{T0}, s{T4}, 14"); e(f"s_lshl_b32 s{T1}, s{T3}, 9"); e(f"s_add_u32 s{T2}, s{T0}, s{T1}"); e(f"v_add_u32 v{vE0}, s{T2}, v208")
    e(f"v_xor_b32 v{vE1}, 512, v{vE0}"); e(f"s_add_u32 s{T1}, s{T1}, {VB_LDS}"); e(f"v_add_u32 v{vVr}, s{T1}, v208")
    if o.kt:
        e(f"s_lshl_b32 s{T0}, s{SW}, 12"); e(f"v_add_u32 v{vXW}, s{T0}, v{vL16}")
        e(f"s_lshl_b32 s{T0}, s{SW}, 10"); e(f"s_add_u32 s{T0}, s{T0}, {VB_LDS}"); e(f"v_add_u32 v{vE0}, s{T0}, v{vL16}")
        e(f"s_lshl_b32 s{T0}, s{SW}, 8"); e(f"s_add_u32 s{T0}, s{T0}, {M_ZX}"); e(f"v_lshl_add_u32 v203, v201, 6, v{vG16}"); e(f"v_add_u32 v{vE1}, s{T0}, v203")
        e(f"s_lshl_b32 s{T0}, s{SW}, 6"); e(f"s_add_u32 s{T0}, s{T0}, {M_ZX}"); e(f"v_lshl_add_u32 v203, v201, 8, v{vG16}"); e(f"v_add_u32 v{vVr}, s{T0}, v203")
    e(f"s_lshl_b32 s{T1}, s{T3}, 3")
    e(f"v_add_u32 v{vGM}, {M}, v{vG16}")
    e(f"s_lshl_b32 s{T0}, s{T4}, 6"); e(f"s_add_u32 s{T0}, s{T0}, s{T1}"); e(f"v_add_u32 v{vZW}, s{T0}, v{vGM}")
    e(f"s_lshl_b32 s{T0}, s{SW}, 10"); e(f"s_add_u32 s{T0}, s{T0}, {M_KX}"); e(f"v_add_u32 v{vKX}, s{T0}, v{vL16}")
    e(f"v_add_u32 v{vKX0}, s{T1}, v{vKX}"); e(f"v_xor_b32 v{vKX1}, 8, v{vKX0}")
    e(f"s_lshl_b32 s{T0}, s{SW}, 9"); e(f"s_add_u32 s{T0}, s{T0}, {M_ST}")
    e(f"v_lshl_add_u32 v203, v213, 2, s{T0}"); e(f"v_lshl_add_u32 v{vSW}, v{vFP}, 1, v203"); e(f"v_lshl_add_u32 v{vSR}, v{VM}, 2, s{T0}")
    e(f"v_add_u32 v{vSQ}, s{T0}, v{vG16}"); e(f"v_lshlrev_b32 v203, 2, v{VM}"); e(f"v_add_u32 v{vCV}, {M_CS}, v203")
    e(f"v_and_b32 v203, 7, v{VM}"); e(f"v_lshl_add_u32 v{vZL}, v203, 8, v{vG16}")
    e("v_mov_b32 v203, 0xffff"); e("v_mov_b32 v204, 0xffff0000"); e(f"v_cndmask_b32 v203, v203, v204, {sm(mPAR)}")
    e(f"v_cndmask_b32 v{MO0}, 0, v203, {sm(mOWN0)}"); e(f"v_cndmask_b32 v{MO1}, 0, v203, {sm(mOWN1)}")
    e(f"v_xor_b32 v{MP0}, v203, v{MO0}"); e(f"v_xor_b32 v{MP1}, v203, v{MO1}")
    e(f"s_add_u32 s{T2}, s{SW}, 4"); e(f"s_min_u32 s{T2}, s{T2}, 5"); e(f"s_mul_i32 s{T0}, s{SMEM}, 12288"); e(f"s_add_u32 s{T0}, s{T0}, {WS_CS}")
    e(f"s_lshl_b32 s{T1}, s{SW}, 11"); e(f"s_add_u32 s{sCSa}, s{T0}, s{T1}"); e(f"s_lshl_b32 s{T1}, s{T2}, 11"); e(f"s_add_u32 s{sCSb}, s{T0}, s{T1}")
    e("v_bfe_u32 v203, v254, 4, 1"); e("v_lshlrev_b32 v203, 3, v203"); e("v_lshl_add_u32 v203, v213, 2, v203"); e("v_lshl_add_u32 v203, v201, 4, v203"); e(f"v_add_u32 v203, {M_CS}, v203")
    e(f"s_lshl_b32 s{T1}, s{SW}, 6"); e(f"v_add_u32 v{vCSa}, s{T1}, v203"); e(f"s_lshl_b32 s{T1}, s{T2}, 6"); e(f"v_add_u32 v{vCSb}, s{T1}, v203")
    e(f"s_lshl_b32 s{T0}, s{SMEM}, 2"); e(f"s_add_u32 s{T0}, s{T0}, s{SW}"); e(f"s_lshl_b32 s{T2}, s{T0}, 7"); e(f"v_mov_b32 v{vCPF}, s{T2}")
    e(f"s_lshr_b32 s{T1}, s{T0}, 3"); e(f"s_and_b32 s{T0}, s{T0}, 7")
    e(f"s_lshl_b32 s{T2}, s{SGRP}, 4"); e(f"s_add_u32 s{T1}, s{T1}, s{T2}"); e(f"s_lshl_b32 s{T1}, s{T1}, 15"); e(f"s_lshl_b32 s{T0}, s{T0}, 9"); e(f"s_add_u32 s{T0}, s{T0}, s{T1}")
    e(f"v_lshl_add_u32 v{vTCH}, v{vG16}, 3, s{T0}")
    for r in range(4): e(f"v_accvgpr_write_b32 a{252+r}, -1")
    def clears():
        e(f"v_mov_b32 v{vVal}, 0"); e(f"s_add_u32 s{T0}, s{sKV}, s{ROTA}")
        e(f"buffer_store_dwordx4 a[252:255], v{vL16}, {SRD}, s{T0} offen sc1")
        e(f"s_mov_b64 exec, {sm(mM0)}"); e(f"buffer_store_dwordx4 a[252:255], v{vG16}, {SRD}, s{sZo} offen sc1")
        e("s_mov_b64 exec, 1"); e(f"buffer_store_dword v{vVal}, off, {SRD}, s{sFOp} sc1"); e(f"buffer_store_dword v{vVal}, off, {SRD}, s{sFXp} sc1"); e("s_mov_b64 exec, -1")
    if not o.sf: clears()
    pl = [f"buffer_load_dword v212, v211, {SRD}, s{T7} offen sc1"]
    if o.apoll: pl = ["v_mov_b32 v212, -1", "s_mov_b32 exec_hi, 0xff", "v_mov_b32 v212, 0", f"buffer_atomic_or v212, v211, {SRD}, s{T7} offen sc0 sc1", "s_mov_b64 exec, -1"]
    W2T, vTRB = (160, 249) if o.sf else (224, 206)
    def w2tr(wt_):
        e(f"WAITV r2{wt_}")
        for b_ in range(2):
            for t in range(2):
                d_ = v(W2T+4*b_+2*t, 2) if wt_ == 0 else a(HW2+4*b_+2*t, 2)
                e(f"ds_read_b64_tr_b16 {d_}, v{vTRB} offset:{2*SLOT + wt_*2048 + t*256 + b_*8}")
    def w2ast():
        e("s_waitcnt lgkmcnt(0)")
        for b_ in range(2): e(f"buffer_store_dwordx4 {v(W2T+4*b_,4)}, v{vL16}, {SRD}, s{sW2s} offen offset:{b_*1024} sc1 ;@b1")
    def retb():
        for blk in range(6):
            for t in range(2): e(f"ds_read_b64_tr_b16 {a(RB+4*blk+2*t,2)}, v{vTRB} offset:{SLOT + (blk>>1)*2048 + t*256 + (blk&1)*8} ;@r{blk}")
        for blk in range(6):
            e(f"WAITL r{blk}")
            e(f"{MF} {a(HCS,4)}, {a(RB+4*blk,4)}, {v(SB+4*blk,4)}, {'0' if blk == 0 else a(HCS,4)}")
    if o.sf:
        assert o.w2e >= 1 and not o.bin and not o.gown and not o.apoll
        e(f"s_lshl_b32 s{T0}, s{SGRP}, 7"); e(f"s_add_u32 s{T0}, s{T0}, {WS_FLAGB + 2048}"); e(f"v_add_u32 v211, s{T0}, v{vFP}")
        e("v_mov_b32 v249, v206")
        stamp(44)
        e(pl[0] + " ;@poll")
        w2tr(0); e("s_waitcnt lgkmcnt(0)")
    elif o.bin:
        w2tr(0); w2ast()
        e("v_mov_b32 v248, v202"); e(f"v_subrev_u32 v249, {RAW1A}, v206")
        stamp(44)
        E([t + (" ;@poll" if t.startswith("buffer") else "") for t in pl])
        w2tr(1); e("s_waitcnt lgkmcnt(0)")
    else:
        e("WAITV rb")
        if o.gown:
            e(f"s_cmp_eq_u32 s{SW}, 0"); e(f"s_cselect_b32 s{T0}, 1, 0"); e("WAITV go2"); e("s_waitcnt lgkmcnt(0)"); e(f"v_cmp_ne_u32 vcc, s{T0}, v250")
            E(retry([f"buffer_load_dword v250, v253, {SRT}, 0 offen sc1"], ["v_cmp_ne_u32 vcc, 1, v250"]))
        stamp(44)
        E([t + (" ;@poll" if t.startswith("buffer") else "") for t in pl])
        w2tr(0); w2tr(1); w2ast()
        retb()
    if not o.sf: e(f"v_mov_b32 v{vVal}, 1")
    stamp(45)
    e("WAITV poll")
    e(f"s_cmp_lg_u32 s{SW}, 0"); e("s_cbranch_scc1 L_faok")
    A.track = False
    e("v_cmp_eq_u32 vcc, 0, v212"); e("s_cbranch_vccz L_fad")
    spin(([f"s_sleep {o.psl}"] if o.psl else []) + pl, ["v_cmp_eq_u32 vcc, 0, v212"])
    A.label("L_fad")
    e(f"v_cmp_ne_u32 {sm(T1)}, s{SXCC}, v212"); e(f"v_mov_b32 v212, s{T1}")
    e(f"ds_write_b32 v{vGM}, v212"); e("s_waitcnt lgkmcnt(0)")
    A.track = True
    A.label("L_faok")
    if o.sf: flaga()
    else: e("s_barrier")
    stamp(15)
    e(f"ds_read_b32 v{FBV}, v{vGM} ;@mode")

    for lay in range(o.last + 1):
        par = lay & 1; early = lay < 2; li = lay >> 1; last = lay == o.last
        A.label(f"L_layer{lay}")
        if lay == o.dlay:
            for j in range(o.dn): e("s_sleep 127")
        stamp(0)
        pool = list(range(RING, 240 - 48*o.NRES, 4))
        if lay == 0: pool += [RS(1, k) + 4*j for k in range(1, o.NRES + 1) for j in range(6)]
        if lay >= 2: pool += [RS(0, k) + 4*j for k in range(o.NRES + 1) for j in range(6)] + [240, 244, 248, 252]
        nd = (o.ND0, 0, o.ND2, 0)[lay]; TB = o.TB if par else 0
        LAF = 4*(o.LA0, o.LAB, o.LA2, o.LA3)[lay]; NF = max(4*nd, LAF + 4)
        assert NF + 2*nd - 2 <= len(pool) and o.kq and not o.kt
        gpos = o.gpos if lay == 0 else o.gpos2
        vn = par or o.kt
        TA = (o.TA0, 0, o.TA2, 0)[lay]
        assert TA % 2 == 0 and TA <= nd
        units = [([(st, c) for c in range(2 if st >= 32 - nd else 0, 6)], (0, 1, 2, 3), "") for st in range(32 - TB - TA)]
        units += [([(st, c) for c in range(6)], bl, k) for bl, k in (((2, 3), "X"), ((0, 1), "Y")) for st in range(32 - TB, 32)]
        units += [([(st+j, c) for j in range(2) for c in cc], (0, 1, 2, 3), k) for cc, k in (((2, 3), "K"), ((4, 5), "V")) for st in range(32 - TA, 32, 2)]
        anext = []
        for gr, bl, k in units:
            for st, c in gr:
                anext += [(st, i) for i in bl if (st, i) not in anext]
        fidx = {k: n for n, k in enumerate(anext)}
        def afr(step, i): return a(pool[fidx[(step, i)] % NF], 4)
        def wq(step, c): return a(pool[NF + 2*(step - (33-nd)) + c], 4) if step > 32 - nd else v(WFV + 4*c, 4)
        def wreg(u, gi): return v(WFV + 4*(gi + 6 - len(units[u][0])), 4)
        def wrd(dst, step, c): return ldsrd(dst, ((step//4 + 1) % 6)*SLOT + (step % 4)*6144 + c*1024)
        def w1rd(u, gi): return wrd(wreg(u, gi), *units[u][0][gi]) + f" ;@w{u}_{gi}"
        wqq = [(st, c) for st in range(32 - nd, 32) for c in range(2)]
        def aload(step, i):
            return f"buffer_load_dwordx4 {afr(step, i)}, v{vA+i}, {SRD}, s{ROTA + step//4} offen offset:{(step%4)*1024} sc1 ;@A{step}_{i}"
        def mma(w, step, c, i):
            x, y = (afr(step, i), w) if (vn and c >= 4) else (w, afr(step, i))
            return f"{MF} {v(acc(c,i),4)}, {x}, {y}, {'0' if step == 0 else v(acc(c,i),4)}"
        def ostore(i, through):
            t = f"buffer_store_dwordx4 {v(224+4*i,4)}, v{vA+i}, {SRD}, s{sO} offen"
            if through: e(wt(t))
            else: st_mode([t])
        if lay == 0 and not o.sf:
            for c in range(6): e(w1rd(0, c))
        for j in range(4*o.APRE): e(aload(*anext.pop(0)))
        nbar = 0
        if lay == 0 and o.sf:
            bloads(); clears(); w2ast(); e(f"v_mov_b32 v{vVal}, 1")
            e(f"v_readfirstlane_b32 s{SMODE}, v{FBV}")
            for c in range(6): e(w1rd(0, c))
        elif lay == 0:
            for i in range(6): E(w1_piece(par, 1, i))
            e("WAITL mode"); e(f"v_readfirstlane_b32 s{SMODE}, v{FBV}")
        else:
            if o.lazy & 1: poll2(sFXc)
            e("s_waitcnt lgkmcnt(0)"); e("s_barrier")
            for c in range(6): e(w1rd(0, c))
        wr, w1s, w2r, w2s = (o.wrE, o.w1sE, o.w2E, o.w2sE) if early else (o.wrL, o.w1sL, o.w2L, o.w2sL)
        if par: w2r, w2s = (o.w2BE, o.w2sBE) if early else (o.w2BL, o.w2sBL)
        if lay == 3: wr = o.wrBL
        if lay == 0: wr, w1s = o.wr0, max(o.w1s0, o.sfu*o.sf)
        pend = [("W", st, i) for st in range(2 if early else 2 + o.NRES - o.nopf, 8) for i in range(6)] + [("W2", p, i) for p in range(4 + par) for i in range(6)]
        def allowed(p, t):
            if p[0] == "W" and p[1] == 5 and lay == 0 and o.bin and not ready("r5"): return False
            if p[0] == "W": return p[1] < 6 or nbar >= p[1] - 4
            return nbar >= p[1] + 4 and t >= w2s and (lay > 0 or fbdone[0])
        fbdone = [False]
        misc = [(max(o.s0 + o.sper*j, o.lazy & 1), [f"s_mov_b32 s{T0}, {WS_ST + j*16384}", f"buffer_load_dwordx4 {v(160+4*j,4)}, v{vSTl}, {SRD}, s{T0} offen sc1 ;@S{j}"]) for j in range(8)]
        extra = []
        extra2 = []; sh2 = []
        sh = []
        if early:
            for j in range(4):
                extra.append((4 + j, [f"buffer_load_dwordx4 {v(224+8*(j//2)+4*(j%2),4)}, v{vL16}, {SRD}, s{(sCSa, sCSb)[j%2]} offen offset:{(j//2)*1024} sc1 ;@CS{j}"]))
            d = 224
            r = [f"v_add_f32 v{d+j}, v{d+j}, v{d+8+j}" for j in range(8)]
            for s_ in (8, 4): r += [f"v_add_f32_dpp v{d+j}, v{d+j}, v{d+j} row_ror:{s_} row_mask:0xf bank_mask:0xf" for j in range(8)]
            r = [r[j:j+2] for j in range(0, len(r), 2)] + [[f"v_permlane32_swap_b32 v{d+j}, v{d+j+1}"] for j in range(0, 8, 2)]
            r += [[f"v_add_f32 v{d+j}, v{d+j}, v{d+j+1}", f"v_add_f32 v{d+j+2}, v{d+j+2}, v{d+j+3}"] for j in (0, 4)]
            r += [[f"v_permlane16_swap_b32 v{d}, v{d+2}"], [f"v_permlane16_swap_b32 v{d+4}, v{d+6}"], [f"v_add_f32 v{d}, v{d}, v{d+2}", f"v_add_f32 v{d+4}, v{d+4}, v{d+6}"],
                  ["s_mov_b32 exec_lo, 0x000f000f", "s_mov_b32 exec_hi, 0x000f000f", f"ds_write_b32 v{vCSa}, v{d} offset:{par*384}", f"ds_write_b32 v{vCSb}, v{d+4} offset:{par*384} ;@csw",
                   "s_mov_b64 exec, -1"], [f"s_add_u32 s{sCSa}, s{sCSa}, {CS_SZ}", f"s_add_u32 s{sCSb}, s{sCSb}, {CS_SZ}"]]
            caps = [[(8 + 4*k - 4*o.nopf, None, [f"ds_read_b128 {a(RS(par, k+1)+4*b_,4)}, v{vLW3} offset:{k*SLOT + b_*1024}"]) for b_ in range(6)] for k in range(o.NRES)]
            sh += (caps[0] if caps else []) + [(8, "CS3", x) for x in r] + sum(caps[1:], [])
        if lay == 0 and o.bin:
            rbl = [[f"s_mov_b32 s{T2}, m0", f"s_add_u32 m0, s{sLW}, {j*1024}", f"s_add_u32 s{T1}, s{T5}, {(j>>1)*2048 + (j&1)*16*6144}",
                    f"buffer_load_dwordx4 v248, {SRT}, s{T1} offen lds ;@rb{j}", f"s_mov_b32 m0, s{T2}"] for j in range(6)]
            extra2 = [(o.bs0 + j, x) for j, x in enumerate(rbl)]
            r = [[f"ds_read_b64_tr_b16 {a(RB+4*blk+2*t,2)}, v249 offset:{(blk>>1)*2048 + t*256 + (blk&1)*8} ;@r{blk}" for t in range(2)] for blk in range(6)]
            for blk in range(6):
                q_ = 240 + 4*(blk & 1); mk = 0x00010001 << blk
                r += [[f"s_mov_b32 s{T3}, {mk}", f"s_mov_b32 s{T4}, {mk}"]] + [[f"v_cndmask_b32 v{q_+j}, 0, v{ONES}, {sm(T3)}" for j in jj] for jj in ((0, 1), (2, 3))]
                r += [[f"WAITL r{blk}", f"{MF} {a(HCS,4)}, {a(RB+4*blk,4)}, {v(q_,4)}, {'0' if blk == 0 else a(HCS,4)}"]]
            sh = [x for x in sh if x[0] <= 8 and x[1] is None] + [(0, "rb5", x) for x in r[:6]] + [x for x in sh if not (x[0] <= 8 and x[1] is None)]
            sh2 = r[6:]
        if lay == 0:
            extra.insert(0, (4, fb_set(0)))
            extra.append((w2s - 8, [t + (" ;@F" if t.startswith("buffer") else "") for t in fb_body(0)]))
        dl = []
        if lay == 0:
            dl = [[f"s_add_u32 s{D2}, s{ROTW}, {WS_W1[1]}", f"s_add_u32 s{D4}, s{D2}, 4096", w1st(a(RB,4), 0, D2, D4)]] + [[w1st(a(RB+4*b_,4), b_, D2, D4)] for b_ in range(1, 6)]
            dl += [[f"s_add_u32 s{D1}, s{sW2s}, {WS_W2[1] - WS_W2[0]}", f"buffer_store_dwordx4 {a(HW2,4)}, v{vL16}, {SRD}, s{D1} offen sc1"],
                   [f"buffer_store_dwordx4 {a(HW2+4,4)}, v{vL16}, {SRD}, s{D1} offen offset:1024 sc1", f"s_add_u32 s{D1}, s{sCL0}, {CS_SZ}"] + csst(a(HCS,4), D1),
                   [f"buffer_store_dwordx4 a[252:255], v{vL16}, {SRD}, s{sCL2} offen sc1"],
                   [f"s_add_u32 s{D1}, s{sKV}, s{ROTA}", f"s_add_u32 s{D1}, s{D1}, 0x100000", f"buffer_store_dwordx4 a[252:255], v{vL16}, {SRD}, s{D1} offen sc1",
                    f"s_add_u32 s{D1}, s{sZo}, 0x10000", f"s_mov_b64 exec, {sm(mM0)}", f"buffer_store_dwordx4 a[252:255], v{vG16}, {SRD}, s{D1} offen sc1 ;@b2", "s_mov_b64 exec, -1"]]
        if dl and o.dg:
            assert not o.bin and not o.sf
            extra2 = [(o.dg0 + j_*o.dgp/10, x) for j_, x in enumerate(dl[:o.dg])]; dl = dl[o.dg:]
        def codepf(lbl): return [f"s_add_u32 s{T1}, s{sPC}, {lbl}-L_pc", f"s_addc_u32 s{T2}, s{sPC+1}, 0", f"global_load_dword v{vJUNK}, v{vCPF}, {sm(T1)}"]
        if o.cpf2: extra.append((o.cpf2, codepf(f"L_epi{lay}")))
        if o.cpf3 and not last: extra.append((o.cpf3, codepf("L_ool")))
        if lay > 0:
            for j_ in range(0 if (o.o4 and last) else o.of if par else o.of2): extra.append((o.ot0 + j_, [f"s_mov_b32 s{T1}, {WS_O + 4096*j_}", f"buffer_load_dword v{vJUNK}, v{vTCH}, {SRD}, s{T1} offen sc1"]))
            extra.sort(key=lambda x: x[0])
        r = []
        for st in (16, 8, 4):
            r += [[f"v_add_f32 v{160+j}, v{160+j}, v{160+j+st}", f"v_add_f32 v{161+j}, v{161+j}, v{161+j+st}"] for j in range(0, st, 2)]
        r += [["s_nop 0"], ["v_permlane32_swap_b32 v160, v162"], ["v_permlane32_swap_b32 v161, v163"], ["v_add_f32 v160, v160, v162", "v_add_f32 v161, v161, v163"],
              [f"v_mul_f32 v163, {f32hex(-1.0/1024)}, v160", f"v_mul_f32 v161, {f32hex(1.0/1024)}, v161"], ["v_fma_f32 v161, -v163, v163, v161", "v_max_f32 v161, 0, v161"],
              [f"v_add_f32 v161, {f32hex(1e-5)}, v161"], ["v_rsq_f32 v162, v161"], [f"ds_write2_b32 v{vSW}, v162, v163 offset0:0 offset1:64"]]
        r += [[f"ds_read2_b32 {v(STP+2*i,2)}, v{vSR} offset0:{16*i} offset1:{64+16*i}"] for i in range(4)]
        if vn: r += [[f"ds_read_b128 {v(224+16*j+4*i,4)}, v{vSQ} offset:{256*j + 64*i}"] for j in range(2) for i in range(4)]
        sh += [(0, "S7", x) for x in r]
        sh += [(0, "csbar", [f"ds_read_b128 {v(CSR+4*c,4)}, v{vGM} offset:{M_CS-M+par*384+c*64} ;@cs"]) for c in range(4 if vn else 6)]
        if vn: sh += [(0, "csbar", [f"ds_read2_b32 {v(CSR+16,2)}, v{vCV} offset0:{64+96*par} offset1:{80+96*par} ;@cs"])]
        for t_ in ["S7", "CS3", "F", "csw", "cs"] + [f"W{j}" for j in range(2, 8)]: A.seen.discard(t_)
        csbar = not early
        def ready(tag):
            if tag is None: return True
            if tag == "csbar": return csbar
            return tag in A.seen and not A.pending(tag)
        fix = {(cc, ii): [f"v_fmac_f32 v{acc(cc,ii)+j}, v{CSR+12+cc}, v{240+4*ii+j}" if vn and cc >= 4 else
                          f"v_fmac_f32 v{acc(cc,ii)+j}, v{CSR+4*cc+j}, v{STP+2*ii+1}" for j in range(4)] for cc in range(6) for ii in range(4)}
        fix["ci"] = [f"v_mul_f32 v{CI+ii}, {CK[par]}, v{STP+2*ii}" for ii in range(4)]
        ysh = []
        if par:
            VT = lambda db, i: 168 + 10*db + 2*(i+1)
            KP = 188
            def two(l): return [l[j:j+2] for j in range(0, len(l), 2)]
            def vcvt(i, d0, d1): return [f"v_cvt_pk_bf16_f32 v{d+h}, v{acc(4+db,i)+2*h}, v{acc(4+db,i)+2*h+1}" for db, d in enumerate((d0, d1)) for h in range(2)]
            def kmul(i): return [f"v_mul_f32 v{acc(c,i)+j}, v{acc(c,i)+j}, v{STP+2*i}" for c in (2, 3) for j in range(4)]
            def vmul(i): return [f"v_mul_f32 v{acc(c,i)+j}, v{acc(c,i)+j}, v{224+4*i+j}" for c in (4, 5) for j in range(4)]
            def kcvt(i): return cvt4l(acc(2,i), acc(2,i), acc(3,i))
            def qcvt(i): return cvt4l(acc(0,i), acc(0,i), acc(1,i))
            def sown(i): return f"{MF} {v(acc(3,i),4)}, {v(acc(2,i),4)}, {v(acc(0,i),4)}, 0"
            def sprev(i): return f"{MF} {v(acc(1,i),4)}, {v(acc(2,i-1) if i else KP,4)}, {v(acc(0,i),4)}, 0"
            def sel(i):
                so, sp, z = acc(3,i), acc(1,i), acc(5,i)
                r = [f"v_cndmask_b32 v{b}, v{b}, v{b+1}, {sm(mPAR)}" for b in (so, so+2, sp, sp+2)]
                if i == 0: r += [f"v_cndmask_b32 v{b}, v{b}, v217, {sm(mFIRST)}" for b in (sp, sp+2)]
                return r + [f"v_cndmask_b32 v{z}, v{sp}, v{so}, {sm(mOWN0)}", f"v_cndmask_b32 v{z+1}, v{sp+2}, v{so+2}, {sm(mOWN1)}", f"v_max_f32 v{z+2}, v{z}, v{z+1}"]
            def soft(blks):
                Z = [(acc(5,i), i) for i in blks]
                r = [f"v_sub_f32 v{z+h}, v{z+h}, v{z+2}" for z, i in Z for h in range(2)] + [f"v_mul_f32 v{z+h}, v{z+h}, v{CI+i}" for z, i in Z for h in range(2)]
                r += [f"v_exp_f32 v{z+h}, v{z+h}" for z, i in Z for h in range(2)] + [f"v_cvt_pk_bf16_f32 v{z+h}, v{z+h}, v{z+h}" for z, i in Z for h in range(2)]
                for z, i in Z: r += [f"v_and_b32 v{acc(4,i)+j}, v{z+(j&1)}, v{mk}" for j, mk in enumerate((MP0, MP1, MO0, MO1))]
                return r
            def pv(i): return [f"{MF} {v(acc(5,i),4)}, {v(ONES,4)}, {v(acc(4,i),4)}, 0"] + [f"{MF} {v(acc(1+2*db,i),4)}, {v(VT(db,i-1),4)}, {v(acc(4,i),4)}, 0" for db in range(2)]
            hl = [f"buffer_load_dwordx4 v[240:243], v{vL16}, {SRD}, s{sHld} offen sc1", f"buffer_load_dwordx4 v[244:247], v{vL16}, {SRD}, s{sHld} offen offset:1024 sc1"]
            z3 = acc(5,3)
            ysh += two(kmul(3) + kcvt(3)) + [[f"buffer_store_dwordx4 {v(acc(2,3),4)}, v{vL16}, {SRD}, s{sHst} offen sc1"]]
            ysh += two(vmul(3) + vcvt(3, 248, 250)) + [[f"buffer_store_dwordx4 v[248:251], v{vL16}, {SRD}, s{sHst} offen offset:1024 sc1"]]
            ysh += [[f"ds_write_b128 v{vKX}, {v(acc(2,3),4)} offset:1024"]] + two(vcvt(3, VT(0,3), VT(1,3)))
            ysh += [[f"ds_write_b128 v{vKX}, v[248:251] offset:{M_VX-M_KX+1024} ;@xw"]]
            ysh += two(kmul(2) + kcvt(2) + qcvt(3)) + [[sown(3)], [sprev(3)]] + two(vmul(2) + vcvt(2, VT(0,2), VT(1,2)))
            ysh += [["WAITL xw", "s_barrier"], [f"ds_read_b128 {v(KP,4)}, v{vKX}"]] + [[f"ds_read_b64 {v(VT(db,-1),2)}, v{vKX} offset:{M_VX-M_KX+8*db}"] for db in range(2)]
            ysh += two(sel(3)) + [[f"v_mov_b32 v{z3+3}, v{z3+2}"]] + two(qcvt(2))[:1] + [[f"v_permlane32_swap_b32 v{z3+2}, v{z3+3}"], [f"v_max_f32 v{z3+2}, v{z3+2}, v{z3+3}", f"v_mov_b32 v{z3+3}, v{z3+2}"]]
            ysh += two(qcvt(2))[1:] + [[f"v_permlane16_swap_b32 v{z3+2}, v{z3+3}"], [f"v_max_f32 v{z3+2}, v{z3+2}, v{z3+3}"], [sown(2)]]
            s3 = soft((3,))
            ysh += two(s3[:4]) + [s3[4:5], s3[5:6]] + two(s3[6:]) + [[f"v_mov_b32 v217, {f32hex(-3.0e38)}"]] + [[x] for x in pv(3)] + [[], []]
            ysh += [[f"v_rcp_f32 v{z3}, v{z3}"]] + two([f"v_mul_f32 v{acc(1+2*db,3)+j}, v{acc(1+2*db,3)+j}, v{z3}" for db in range(2) for j in range(4)] + cvt4l(236, acc(1,3), acc(3,3)))
            ysh += [lambda: ostore(3, o.oall or (o.o4 and last))]
            ysh.insert(len(ysh) - o.hpos, [hl[0]]); ysh.insert(len(ysh) - o.hpos, [hl[1] + " ;@hl"])
        def trees(c0, MX, MN):
            r = []
            for i in (3, 2, 1, 0):
                p0, p1 = acc(c0,i), acc(c0+1,i)
                for op, op2, d in (("v_max3_f32", "v_max_f32", MX+i), ("v_min3_f32", "v_min_f32", MN+i)):
                    r += [f"{op} v{d}, v{p0}, v{p0+1}, v{p0+2}", f"{op} v{d}, v{d}, v{p0+3}, v{p1}", f"{op} v{d}, v{d}, v{p1+1}, v{p1+2}", f"{op2} v{d}, v{d}, v{p1+3}"]
            return r
        def scal(MX, MN): return sum(([f"v_mul_f32 v{MX+i}, -v{MX+i}, v{CI+i}", f"v_mul_f32 v{MN+i}, v{MN+i}, v{CI+i}"] for i in range(4)), [])
        fdone = []
        if TA:
            assert not o.kt
            MX, MN = 168, 172
            r = trees(2, MX, MN); ysh += [[]] + [r[j:j+2] for j in range(0, len(r), 2)]
            r = xreduce([("v_max_f32", [MX, MX+1, MX+2, MX+3]), ("v_min_f32", [MN, MN+1, MN+2, MN+3])], True)
            while r:
                n_ = 1 if "permlane" in r[0] or len(r) < 2 or "permlane" in r[1] else 2
                ysh.append(r[:n_]); r = r[n_:]
            r = scal(MX, MN); ysh += [r[j:j+2] for j in range(0, len(r), 2)]
            for i in range(4):
                for fb in range(2):
                    for j in range(4):
                        x = acc(2+fb,i)+j
                        ysh.append(lambda i=i, fb=fb, j=j, x=x: (E([f"v_fma_f32 v{224+8*i+4*fb+j}, v{x}, v{CI+i}, v{MX+i}", f"v_fma_f32 v{x}, -v{x}, v{CI+i}, v{MN+i}"]), fdone.append((i, fb, j))))
        def Y():
            x = ysh.pop(0)
            if callable(x): x()
            else: E(x)
        credit = 0.5 if (lay == 1 and o.lazy & 1) else 0.0; t = 0.0; nbar = 0
        def waita(st, bl):
            assert not any((st, i) in anext for i in bl), (lay, st)
            e("WAITV " + " ".join(f"A{st}_{i}" for i in bl))
        for u, (gr, bl, kind) in enumerate(units):
            step = gr[0][0]; cs_ = [c for st, c in gr]
            half = len(bl) == 2; ng = len(gr); inY = kind in ("Y", "V")
            waita(step, bl)
            if lay == 0 and o.sf:
                pw = f"buffer_load_dword v{FBV}, v250, {SRD}, s{T7} offen sc1"
                if u == o.sfu - 1: e(pw + " ;@pw")
                if u == o.sfu:
                    e("WAITV pw rb"); e(f"s_cmp_lg_u32 s{SW}, 0"); e("s_cbranch_scc1 L_pwok")
                    A.track = False
                    e(f"v_cmp_eq_u32 vcc, 0, v{FBV}"); e("s_cbranch_vccz L_pwok"); spin([pw], [f"v_cmp_eq_u32 vcc, 0, v{FBV}"])
                    A.track = True
                    A.label("L_pwok"); e("s_barrier")
                    for i in range(6): E(w1_piece(par, 1, i))
                    e("s_waitcnt lgkmcnt(0)"); w2tr(1); e("s_waitcnt lgkmcnt(0)"); retb()
            if u == 1 and lay > 0 and o.lazy & 1:
                assert anext[0] <= (4, 0) and len(misc) == 8
                poll2chk(sFXc, lay)
            if o.jit and u % 5 == 2: stamp(2)
            if o.g1prof and u == 0: stamp(2, 1)
            if u + 1 < len(units) and units[u+1][0][-1][0]//4 > nbar:
                nbar += 1
                assert not any(p[0] == "W" and p[1] <= nbar for p in pend), (lay, u)
                if f"W{nbar}" in A.seen: e(f"WAITV W{nbar}")
                if lay == 0 and nbar == 1: assert not A.pending("b1")
                e("s_barrier")
                if ready("csw"): csbar = True
                if o.g1prof: stamp(2 + nbar, 1)
            if kind == "Y" and step == max(28, 32 - TB):
                e("s_barrier"); nbar = 8
            if inY or kind == "K": assert not sh and all(not x for x in fix.values()), (lay, len(sh), {k: len(x) for k, x in fix.items() if x})
            nslot = 3 if half else ng
            cur = fidx[(step, bl[0])]
            laf = 4*o.APRE if u == 0 else NF - 4 if (TA and t >= o.ramp) else LAF
            ahead = lambda n: n < len(anext) and fidx[anext[n]] < cur + len(bl) + laf
            plan = []; na = nw = nm = 0
            while len(plan) < nslot and ahead(na) and na < len(bl):
                plan.append("A"); na += 1
            if t >= w1s: credit = min(credit + (wr if (pend and pend[0][0] == "W") else w2r) * len(bl) / 400.0, max(3.0, w2r/100.0))
            while len(plan) < nslot and nw < len(pend) and allowed(pend[nw], t) and credit >= 1:
                plan.append("W"); nw += 1; credit -= 1
            while len(plan) < nslot and nm < len(misc) and misc[nm][0] <= t:
                plan.append("M"); nm += 1
            while len(plan) < nslot and ahead(na):
                plan.append("A"); na += 1
            oth = [p for p in plan if p != "A"]; aa = [p for p in plan if p == "A"]; plan = []
            while oth or aa:
                if aa: plan.append(aa.pop())
                if aa and len(aa) >= 2*len(oth): plan.append(aa.pop())
                if oth: plan.append(oth.pop(0))
            if half: plan = sum(([p, None] for p in plan), [])
            for gi, (st_, c) in enumerate(gr):
                vm = None
                if gi and st_ != gr[gi-1][0]: waita(st_, bl)
                for p, i in enumerate(bl if c % 2 == 0 else bl[::-1]):
                    if p == 0: e(f"WAITL w{u}_{gi}")
                    e(mma(wreg(u, gi), st_, c, i))
                    busy = False
                    if p == 0 and gi < len(plan) and plan[gi]:
                        k = plan[gi]
                        if k == "A": vm = [aload(*anext.pop(0))]
                        elif k == "W":
                            pc = pend.pop(0); vm = w1_piece(par, pc[1], pc[2]) if pc[0] == "W" else w2_piece(par, pc[1], pc[2])
                        else: vm = misc.pop(0)[1]
                        E(vm[:-1]); busy = len(vm) > 1
                    if p == (0 if half else 1) and vm: e(vm[-1]); busy = True
                    if p == len(bl) - 1:
                        busy = not half and kind != "V"
                        if u + 1 < len(units):
                            g2 = gi + len(units[u+1][0]) - ng
                            if g2 >= 0: e(w1rd(u+1, g2))
                            else: e(wrd(wq(*wqq[0]), *wqq.pop(0)))
                    if p == 2 and ng == 4 and wqq and wqq[0][0]//4 <= nbar and wqq[0][0] <= gr[-1][0] + (2 if kind else 1):
                        e(wrd(wq(*wqq[0]), *wqq.pop(0))); busy = True
                    if busy: continue
                    if inY and not (kind == "V" and p == 2 and gi == 3 and extra):
                        if ysh: Y()
                    elif p == (0 if half else 2) and gi == 3 and extra and extra[0][0] <= t: E(extra.pop(0)[1])
                    elif p == 2 and gi == 0 and extra2 and extra2[0][0] <= t: E(extra2.pop(0)[1])
                    elif p == 2 and lay == 0 and not fbdone[0] and ready("F"):
                        E(fb_cond + retry(fb_body(0), fb_cond)); fbdone[0] = True
                    elif sh:
                        if sh[0][0] <= t and ready(sh[0][1]): E(sh.pop(0)[2])
                        elif sh2 and ready("r5"): E(sh2.pop(0))
                    elif ready("cs"):
                        cc = cs_[(gi + ng//2) % ng]
                        cand = [(cc, ii) for ii in (3, 2, 1, 0)]
                        if step > 32 - nd: cand += [(c2, ii) for c2 in (0, 1) for ii in range(4)]
                        if half and step > 32 - TB: cand += [(c2, ii) for c2 in range(6) for ii in (0, 1)]
                        for k in cand + ["ci"]:
                            if fix[k]:
                                E(fix[k][:2]); fix[k] = fix[k][2:]; break
                        else:
                            if sh2: E(sh2.pop(0))
            t += len(bl) / 4
        assert not wqq and not anext and not misc and not sh and not extra and not extra2 and not sh2 and all(p[0] == "W2" for p in pend), (lay, pend, anext, misc, len(sh), extra)
        assert all(not x for x in fix.values()), (lay, {k: len(x) for k, x in fix.items()})
        assert lay > 0 or fbdone[0]
        left = [w2_piece(par, p[1], p[2]) for p in pend]
        lates = [w2_piece(par, 4, i) for i in range(6*(1-par))] + [w2_piece(par, 5, i) for i in range(2)]
        if o.verbose: print("layer", lay, "left", len(left), "ysh", len(ysh))
        A.label(f"L_epi{lay}")
        e("s_waitcnt lgkmcnt(0)"); e("s_barrier")
        stamp(1)
        qm = [mma(wq(step, c), step, c, i) for step in range(32-nd, 32) for c in range(2) for i in (range(4) if c == 0 else reversed(range(4)))]

        if par == 0:
            def feat_head(c0, tmp, hook=None):
                MX, MN = tmp, tmp+4
                if c0 == 2 and TA:
                    MX, MN = 168, 172
                    while ysh and (not callable(ysh[0]) or len(fdone) % 2): Y()
                    ysh.clear()
                else:
                    E(trees(c0, MX, MN))
                    if hook: hook()
                    xreduce([("v_max_f32", [MX, MX+1, MX+2, MX+3]), ("v_min_f32", [MN, MN+1, MN+2, MN+3])])
                    E(scal(MX, MN))
                for i in range(4):
                    for fb in range(2):
                        for h in range(2):
                            if c0 == 2 and (i, fb, 2*h) in fdone: continue
                            pk_fma(224+8*i+4*fb+2*h, acc(c0+fb,i)+2*h, CI+i, MX+i)
                            pk_fma(acc(c0+fb,i)+2*h, acc(c0+fb,i)+2*h, CI+i, MN+i, negx=True)
                if c0 == 2 and TA: hook()
            def feat_tail(c0, F, G_, S0, S1, post, mid=None, hooks={}):
                def norm_(i):
                    sq = S0 if i % 2 == 0 else S1
                    e(f"v_rcp_f32 v{184+2*i}, v{sq}"); e(f"v_rcp_f32 v{185+2*i}, v{sq+4}")
                    for r in range(0, 8, 2): pk_mul(224+8*i+r, 224+8*i+r, 184+2*i)
                    cvt4(F+4*i, 224+8*i, 224+8*i+4)
                    if post: e(post(i, 0))
                    for fb in range(2):
                        for h in range(2): pk_mul(acc(c0+fb,i)+2*h, acc(c0+fb,i)+2*h, 185+2*i)
                    cvt4(G_+4*i, acc(c0,i), acc(c0+1,i))
                    if post: e(post(i, 1))
                for i in range(4):
                    if i in hooks: hooks[i]()
                    for r in range(8): e(f"v_exp_f32 v{224+8*i+r}, v{224+8*i+r}")
                    for fb in range(2):
                        for r in range(4): e(f"v_exp_f32 v{acc(c0+fb,i)+r}, v{acc(c0+fb,i)+r}")
                    if 0 < i < 3: norm_(i-1)
                    sq = S0 if i % 2 == 0 else S1
                    cvt4(F+4*i, 224+8*i, 224+8*i+4); cvt4(G_+4*i, acc(c0,i), acc(c0+1,i))
                    e(f"{MF} {v(sq,4)}, {v(ONES,4)}, {v(F+4*i,4)}, 0"); e(f"{MF} {v(sq+4,4)}, {v(ONES,4)}, {v(G_+4*i,4)}, 0")
                if 4 in hooks: hooks[4]()
                if mid: mid()
                norm_(2)
                if 5 in hooks: hooks[5]()
                norm_(3)
            if o.kt:
                allp = left + lates; nk = max(0, len(left) + o.kl); left, lates = allp[:nk], allp[nk:]
            dl2 = dl[o.dk:]; dl = dl[:o.dk]; mix = []
            for j_ in range(max(len(left), len(dl))): mix += left[j_:j_+1] + dl[j_:j_+1]
            per = o.aper0 if dl else o.aper
            A.bgset(mix, per, per)
            SEL = 160 if o.kt else 128
            def mksel():
                e(f"s_andn2_b64 {sm(T1)}, {sm(mDIAG)}, {sm(mB1)}"); e(f"s_and_b64 {sm(T3)}, {sm(mDIAG)}, {sm(mB1)}")
                e(f"v_or_b32 v{SEL}, v{MO0}, v{MP0}"); e(f"v_and_b32 v{SEL}, v{SEL}, v{ONES}")
                e(f"v_cndmask_b32 v{SEL+2}, 0, v{SEL}, {sm(T1)}"); e(f"v_cndmask_b32 v{SEL+3}, 0, v{SEL}, {sm(T3)}")
                for r in (0, 1, 4, 5): e(f"v_mov_b32 v{SEL+r}, 0")
            if o.kt:
                def vprep():
                    for db in range(2):
                        for i in range(4):
                            for h in range(2): e(f"v_pk_mul_f32 {v(acc(4+db,i)+2*h,2)}, {v(acc(4+db,i)+2*h,2)}, {v(224+4*i+2*h,2)}")
                        for p in range(2): cvt4(acc(4+db,2*p), acc(4+db,2*p), acc(4+db,2*p+1))
                    mksel()
                feat_head(2, 208, vprep)
                TT = lambda t, fb, i: 224+8*i+4*fb if t == 0 else acc(2+fb, i)
                FF = lambda t, i: 192+8*(i%2)+4*t
                SS = lambda t, i: 176+8*(i%2)+4*t
                ET = lambda t, fb: 132+16*t+8*fb
                KV = lambda t, fb, db: TT(t, fb, db)
                ZZ = lambda t, fb: (168, 208)[t] + 4*fb
                def ex(i): return [f"v_exp_f32 v{TT(t,fb,i)+r}, v{TT(t,fb,i)+r}" for t in range(2) for fb in range(2) for r in range(4)]
                def tr(i):
                    for t in range(2): cvt4(FF(t,i), TT(t,0,i), TT(t,1,i))
                    r = []
                    for t in range(2):
                        r += [f"{MF} {v(SS(t,i),4)}, {v(FF(t,i),4)}, {v(ONES,4)}, 0"] + [f"{MF} {v(TT(t,fb,i),4)}, {v(FF(t,i),4)}, {v(SEL+2-2*fb,4)}, 0" for fb in range(2)]
                    return r
                def ecv(i, t): return [f"v_cvt_pk_bf16_f32 v{ET(t,fb)+2*(i%2)+h}, v{TT(t,fb,i)+2*h}, v{TT(t,fb,i)+2*h+1}" for fb in range(2) for h in range(2)]
                def nrm(i, ms=[]):
                    mix2(list(ms), [f"v_rcp_f32 v{SS(t,i)+r}, v{SS(t,i)+r}" for t in range(2) for r in range(4)], 1)
                    for t in range(2):
                        for fb in range(2):
                            for h in range(2): e(f"v_pk_mul_f32 {v(TT(t,fb,i)+2*h,2)}, {v(TT(t,fb,i)+2*h,2)}, {v(SS(t,i)+2*h,2)}")
                def kvm(p, t):
                    r = [f"{MF} {v(KV(t,fb,db),4)}, {v(ET(t,fb),4)}, {v(acc(4+db,2*p),4)}, {v(KV(t,fb,db),4) if p else 0}" for db in range(2) for fb in range(2)]
                    return r + [f"{MF} {v(ZZ(t,fb),4)}, {v(ET(t,fb),4)}, {v(ONES,4)}, {v(ZZ(t,fb),4) if p else 0}" for fb in range(2)]
                def mix2(ms, fs, n):
                    while ms or fs:
                        if ms: e(ms.pop(0))
                        E(fs[:n]); fs = fs[n:]
                E(ex(0))
                mix2(tr(0), ex(1), 1); nrm(0); E(ecv(0,0) + ecv(0,1))
                mix2(tr(1), ex(2), 1); nrm(1); E(ecv(1,0) + ecv(1,1))
                k0 = kvm(0,0) + kvm(0,1)
                mix2(tr(2) + k0[:10], ex(3), 1)
                nrm(2, k0[10:] + tr(3)); E(ecv(2,0) + ecv(2,1)); nrm(3); E(ecv(3,0) + ecv(3,1)[:2])
                A.bgflush()
                def fr(t, db): return cvt4l(192+8*t+4*db, KV(t,0,db), KV(t,1,db)) + [f"ds_write_b128 v{vXW}, {v(192+8*t+4*db,4)} offset:{VB_LDS + (2*t+db)*1024}"]
                mix2(kvm(1,0), ecv(3,1)[2:], 1)
                m1 = kvm(1,1); E(m1[:2]); mix2(m1[2:], fr(0,0) + fr(0,1), 2)
                E(fr(1,0))
                for r in range(4): e(f"v_cndmask_b32 v{168+r}, v{168+r}, v{172+r}, {sm(mPAR)}")
                E(fr(1,1))
                for r in range(4): e(f"v_cndmask_b32 v{208+r}, v{208+r}, v{212+r}, {sm(mPAR)}")
                for r in range(4): e(f"v_cndmask_b32 v{168+r}, v{168+r}, v{208+r}, {sm(mB1)}")
                e(f"ds_write_b128 v{vE1}, v[168:171]")
                e(f"s_add_u32 s{T2}, s{sKV}, s{ROTA}")
                for j in range(2): e(qm.pop(0))
                e("s_waitcnt lgkmcnt(0)"); e("s_barrier")
                stamp(2)
                for j in range(4): e(f"ds_read_b128 {v(96+4*j,4)}, v{vE0} offset:{j*4096} ;@kf{j}")
                e(f"ds_read_b128 v[200:203], v{vVr} ;@kz")
                for j in range(3): e(qm.pop(0))
                for j in range(4):
                    e(f"WAITL kf{j}")
                    for fb in range(2): e(f"{MF} {v(168+4*fb,4)}, {v(SEL+2-2*fb,4)}, {v(96+4*j,4)}, {v(168+4*fb,4) if j else 0}")
                e("WAITL kz")
                for qp in ("[1,0,3,2]", "[2,3,0,1]"):
                    for r in range(4): e(f"v_add_f32_dpp v{200+r}, v{200+r}, v{200+r} quad_perm:{qp} row_mask:0xf bank_mask:0xf")
                cvt4(192, 168, 172)
                e(f"buffer_store_dwordx4 v[192:195], v{vL16}, {SRD}, s{T2} offen sc1"); e(qm.pop(0))
                E([f"s_mov_b64 exec, {sm(mM0)}", f"buffer_store_dwordx4 v[200:203], v{vG16}, {SRD}, s{sZo} offen sc1", "s_mov_b64 exec, -1"])
            else:
                def vall():
                    for i in range(4):
                        for b in range(2):
                            for h in range(2): pk_mul(acc(4+b,i)+2*h, acc(4+b,i)+2*h, STP+2*i)
                        cvt4(acc(4,i), acc(4,i), acc(5,i))
                        e(xw(acc(4,i), VB_LDS//1024 + i))
                feat_head(2, 168, vall)
                feat_tail(2, 200, 144, 168, 176, lambda i, sg: xw((200 if sg == 0 else 144)+4*i, 24 + 16*sg + i))
                A.bgflush()
                e(f"s_add_u32 s{T2}, s{sKV}, s{ROTA}")
                e("s_waitcnt lgkmcnt(0)"); e("s_barrier")
                stamp(2)
                def kvreads(p):
                    b = 96 + 16*(p % 4); r = []
                    for t in range(2):
                        r += [f"ds_read_b64_tr_b16 {v(b+2*t,2)}, v{vE0} offset:{SLOT + (2*p+t)*1024}", f"ds_read_b64_tr_b16 {v(b+8+2*t,2)}, v{vVr} offset:{(2*p+t)*1024} ;@ka{p}"]
                    return r + [f"ds_read_b64_tr_b16 {v(b+4+2*t,2)}, v{vE1} offset:{SLOT + (2*p+t)*1024} ;@kb{p}" for t in range(2)]
                rd = sum((kvreads(p) for p in range(8)), [])
                E(rd[:14]); rd = rd[14:]
                for j in range(4 if o.kq else 2): e(qm.pop(0))
                for p in range(8):
                    b = 96 + 16*(p % 4); z_ = p == 0
                    e(f"WAITL ka{p}")
                    e(f"{MF} v[168:171], {v(b,4)}, {v(b+8,4)}, {'0' if z_ else 'v[168:171]'}"); E(rd[0:2])
                    e(f"{MF} v[200:203], {v(b,4)}, {v(ONES,4)}, {'0' if z_ else 'v[200:203]'}"); E(rd[2:4])
                    e(f"WAITL kb{p}")
                    e(f"{MF} v[172:175], {v(b+4,4)}, {v(b+8,4)}, {'0' if z_ else 'v[172:175]'}"); E(rd[4:6]); rd = rd[6:]
                cv = cvt4l(192, 168, 172)
                zst = [f"s_mov_b64 exec, {sm(mM0)}", f"buffer_store_dwordx4 v[200:203], v{vG16}, {SRD}, s{sZo} offen sc1", "s_mov_b64 exec, -1"]
                kst = f"buffer_store_dwordx4 v[192:195], v{vL16}, {SRD}, s{T2} offen sc1"
                if o.kq:
                    for j in range(2): e(qm.pop(0))
                    e("s_barrier")
                    for j in range(2): e(qm.pop(0))
                    E(cv[:2]); e(qm.pop(0)); E(cv[2:]); e(qm.pop(0))
                    e(kst); e(qm.pop(0)); E(zst)
                else:
                    e(qm.pop(0)); E(cv); e(kst); e(qm.pop(0)); E(zst); e("s_barrier")
            stamp(3)
            A.bgset(lates, o.aper2, 0)
            E(qm)
            def g1(p): return [f"s_add_u32 s{T0}, s{sKV}, s{ROTA+1+p}", f"buffer_load_dwordx4 {v(96+4*p,4)}, v{vL16}, {SRD}, s{T0} offen sc1 ;@g{p}"]
            gz = f"buffer_load_dwordx4 v[192:195], v{vZL}, {SRD}, s{sZP} offen sc1 ;@gz"
            def gather():
                A.bgflush()
                if o.zf: e(gz)
                for p in range(7): E(g1(p))
                if not o.zf: e(gz)
                A.bgset(dl2, o.aper3, 0)
            if gpos == 0: gather()
            feat_head(0, 196, gather if gpos == 1 else None)
            qmid = None if o.kt else mksel
            feat_tail(0, 204, 136, 152, 176, None, qmid, {gpos - 2: gather})
            A.bgflush()
            nafter = A.after("g6" if o.zf else "gz")
            stamp(4)
            e(f"s_mov_b32 s{sTMO}, {LIM}")
            def kvw():
                cvt4(196, 168, 172)
                if o.kt: e(f"ds_write_b128 v{vKX}, v[196:199]")
                else: e(f"ds_write_b64 v{vKX0}, v[196:197]"); e(f"ds_write_b64 v{vKX1}, v[198:199]")
            def zred(mid=None):
                for s_ in (4, 2, 1):
                    for r in range(4): e(f"v_add_f32_dpp v{192+r}, v{192+r}, v{192+r} row_ror:{s_} row_mask:0xf bank_mask:0xf")
                    if s_ == 2 and mid: mid()
                e("v_cvt_pk_bf16_f32 v192, v192, v193"); e("v_cvt_pk_bf16_f32 v193, v194, v195")
                e(f"s_mov_b64 exec, {sm(mM0)}"); e(f"ds_write_b64 v{vZW}, v[192:193] offset:{M_ZF-M}"); e("s_mov_b64 exec, -1")
            for p in ([7] + list(range(7)) if o.zf else range(8)):
                r0 = 96+4*p if p < 7 else 192; L = f"{lay}_{p}"
                e(f"WAITV g{p if p < 7 else 'z'}")
                A.label(f"L_kvc{L}")
                e(f"v_cmp_eq_u32 vcc, -1, v{r0}"); e(f"s_cbranch_vccnz L_kvs{L}")
                A.label(f"L_kvo{L}")
                if p < 7:
                    e(f"{MF} v[168:171], {v(SEL+2,4)}, {v(r0,4)}, v[168:171]"); e(f"{MF} v[172:175], {v(SEL,4)}, {v(r0,4)}, v[172:175]")
                elif o.zf: zred()
                def kvslow(p=p, L=L, nafter=nafter, g1=g1, gz=gz):
                    A.label(f"L_kvs{L}")
                    e(f"s_sub_u32 s{sTMO}, s{sTMO}, 1"); e(f"s_cbranch_scc1 L_kvt{L}")
                    if o.ksl: e(f"s_sleep {o.ksl}")
                    e(f"s_waitcnt vmcnt({nafter})")
                    if o.kgate:
                        e("v_mov_b32 v197, 0"); e("s_mov_b64 exec, 0xff"); e(f"buffer_atomic_or v197, v{vZL}, {SRD}, s{sZP} offen sc0 sc1"); e("s_mov_b64 exec, -1")
                        e("s_waitcnt vmcnt(0)"); e("v_cmp_eq_u32 vcc, -1, v197"); e(f"s_cbranch_vccnz L_kvs{L}")
                    for p2 in range(0 if (o.zf and p == 7) else p, 7):
                        if p2 != p: e(f"v_cmp_eq_u32 vcc, -1, v{96+4*p2}"); e(f"s_cbranch_vccz L_kvn{L}_{p2}")
                        E(g1(p2))
                        if p2 != p: A.label(f"L_kvn{L}_{p2}")
                    if p == 7 or not o.zf: e(gz)
                    e("s_waitcnt vmcnt(0)"); e(f"s_branch L_kvc{L}")
                    A.label(f"L_kvt{L}"); e(f"s_mov_b32 s{sTMO}, 0"); e(f"s_branch L_kvo{L}")
                ool.append(kvslow)
            if o.zf: kvw()
            else: zred(kvw)
            fb2 = lay == 0 and not A.pending("b2")
            e("s_waitcnt lgkmcnt(0)"); e("s_barrier")
            stamp(5)
            for t in range(2): e(f"ds_read_b128 {v(184+4*t,4)}, v{vGM} offset:{M_ZF-M + t*64} ;@zf")
            for j in range(4): e(ldsrd(v(168+4*j,4), M_KX + j*1024))
            if fb2: E(fb_set(1))
            if lay == 0: e(f"s_add_u32 s{sKV}, s{sKV}, 0x100000"); e(f"s_add_u32 s{sZP}, s{sZP}, 0x10000"); e(f"s_add_u32 s{sZo}, s{sZo}, 0x10000")
            e("WAITL zf")
            for t in range(2):
                for i in range(4): e(f"{MF} {v(64+4*i,4)}, {v(184+4*t,4)}, {v((204 if t == 0 else 136)+4*i,4)}, {'0' if t == 0 else v(64+4*i,4)}")
            e("s_waitcnt lgkmcnt(0)")
            def fin(i):
                r = [f"v_mul_f32 v{96+8*i+j}, v{96+8*i+j}, v{64+4*i}" for j in range(8)] + cvt4l(224+4*i, 96+8*i, 100+8*i)
                return [r[j:j+3] for j in range(0, 12, 3)]
            sc = [[f"v_add_f32 v{64+4*i}, {f32hex(1e-6)}, v{64+4*i}", f"v_rcp_f32 v{64+4*i}, v{64+4*i}"] for i in range(4)]
            fills = [[[]]*4, sc, fin(0), fin(1)]
            for i in range(4):
                for t in range(2):
                    for db in range(2):
                        d = v(96+8*i+4*db, 4)
                        e(f"{MF} {d}, {v(168+8*t+4*db,4)}, {v((204 if t == 0 else 136)+4*i,4)}, {'0' if t == 0 else d}")
                        E(fills[i][2*t+db])
                if i >= 2: ostore(i-2, o.oa or lay == 0)
            for i in (2, 3):
                for r in range(0, 8, 2): pk_mul(96+8*i+r, 96+8*i+r, 64+4*i)
                cvt4(224+4*i, 96+8*i, 100+8*i)
                ostore(i, o.oa or lay == 0)
        else:
            fb2 = True
            A.bgset(left + lates, o.bper, o.bper)
            while ysh: Y()
            for i in (1, 0):
                for c in (2, 3):
                    for h in range(2): pk_mul(acc(c,i)+2*h, acc(c,i)+2*h, STP+2*i)
            for i in (1, 0):
                for c in (4, 5):
                    for h in range(2): e(f"v_pk_mul_f32 {v(acc(c,i)+2*h,2)}, {v(acc(c,i)+2*h,2)}, {v(224+4*i+2*h,2)}")
            E(kcvt(1) + qcvt(1)); e(sprev(2)); E(kcvt(0)[:2]); e(sown(1)); E(kcvt(0)[2:] + qcvt(0)); e(sprev(1)); E(vcvt(1, VT(0,1), VT(1,1))[:2]); e(sown(0))
            E(vcvt(1, VT(0,1), VT(1,1))[2:] + vcvt(0, VT(0,0), VT(1,0)))
            E(sel(2))
            keep = A.bg; A.bg = []
            e("s_waitcnt lgkmcnt(0)")
            e(f"s_cmp_lg_u32 s{SW}, 0"); e(f"s_cbranch_scc1 L_halod{lay}")
            A.track = False
            hc = ["v_max_u32 v218, v240, v244", "v_cmp_eq_u32 vcc, -1, v218"]
            if A.pending("hl"): e(f"s_waitcnt vmcnt({A.after('hl')})")
            E(hc); e(f"s_cbranch_vccz L_halow{lay}")
            spin(hl, hc)
            A.label(f"L_halow{lay}")
            for r in range(4): e(f"v_mov_b32 v{KP+r}, v{240+r}"); e(f"v_mov_b32 v{VT(r//2,-1)+r%2}, v{244+r}")
            A.track = True
            A.label(f"L_halod{lay}")
            e(sprev(0))
            A.bg = keep
            stamp(2)
            if lay == 1: e(f"s_add_u32 s{sHst}, s{sHst}, 0x80000"); e(f"s_add_u32 s{sHld}, s{sHld}, 0x80000")
            E(sel(1)); E(sel(0))
            xreduce([("v_max_f32", [acc(5,i)+2 for i in range(4)])])
            E(soft((2, 1, 0)))
            A.bgflush()
            E(pv(2) + pv(1) + pv(0))
            for i in (2, 1, 0):
                e(f"v_rcp_f32 v{acc(5,i)}, v{acc(5,i)}")
                for db in range(2):
                    for h in range(2): pk_mul(acc(1+2*db,i)+2*h, acc(1+2*db,i)+2*h, acc(5,i))
                cvt4(224+4*i, acc(1,i), acc(3,i))
                ostore(i, o.oall or (o.o4 and last))

        stamp(6)
        pre = [f"v_mov_b32 v{vVal}, {lay+1}"]
        OB = WS_O
        if o.alias:
            OB = (WS_X, WS_O)[par]
            pre += [f"s_xor_b32 s{r}, s{r}, {WS_X ^ WS_O}" for r in [sO, sXs] + list(range(ROTA, ROTA+8))]
        for i in range(2):
            for kk in range(2):
                for r in range(4):
                    d = acc2(2*kk + (r >> 1), i) + 2*(r & 1); x = RES+8*i+4*kk+r
                    pre += [f"v_lshlrev_b32 v{d}, 16, v{x}", f"v_and_b32 v{d+1}, 0xffff0000, v{x}"]
        omask = (1 << (o.g2depth - 1)) - 1 if o.lazy & 2 else None
        if o.early & 2: handoff(sFOp, sFOc, lay+1, omask, mEO, pre, [])
        else:
            E(pre); signal(sFOp); stamp(7); poll(sFOc, lay+1, None, omask)
        stamp(8)
        W2F = RING; AF2 = RING + 32; GD = o.g2depth; T2_ = o.TG
        assert AF2 + 8*GD <= 240 - 48*o.NRES
        gun = [(st, (0, 1)) for st in range(32 - T2_)] + [(st, (i,)) for i in range(2) for st in range(32 - T2_, 32)]
        bn = [(st, i) for st, bl in gun for i in bl]
        bidx = {k: n for n, k in enumerate(bn)}
        def bfr(step, i): return a(AF2 + 4*(bidx[(step, i)] % (2*GD)), 4)
        def w2rd(u, b):
            step = gun[u][0]
            return ldsrd(a(W2F + 16*(u % 2) + 4*b, 4), (step*4096 if step < 14 else 3*SLOT + (step-14)*4096) + b*1024) + f" ;@u{u}_{b}"
        cur4 = [-1]
        def bload(step, i):
            r = [f"s_mov_b32 s{sAo}, {OB + (step//4)*4096}"] if step//4 != cur4[0] else []
            cur4[0] = step//4
            return r + [f"buffer_load_dwordx4 {bfr(step, i)}, v{vB+i}, {SRD}, s{sAo} offen offset:{(step%4)*1024} sc1 ;@B{step}_{i}"]
        for j in range(min(o.bpos, 2*GD-2)):
            if o.lazy & 2 and j == o.p2pos: poll2(sFOc)
            E(bload(*bn.pop(0)))
        e("s_barrier")
        for st in range(2):
            for b in range(4): e(w2rd(st, b))
        while bn[0][0] < GD-1: E(bload(*bn.pop(0)))
        lv = [x for x in (o.lv1, o.lv2) if x] + [32]
        okh = 32
        if o.lazy & 2: okh = lv.pop(0); poll2chk(sFOc, lay+1, hex((1 << okh) - 1) if okh < 32 else None)
        if lay == 0 and not fb2: E(fb_set(1))
        w1n = [] if last or (o.nopf and lay >= 1) else list(range(6))
        nres = 0 if last else (1 + (o.NRES if lay >= 1 else 0))
        def oparts(i):
            return [[f"ds_write_b128 v{200+kk}, {v(RES+8*i+4*kk,4)} offset:{i*2048}"] for kk in range(2)] + \
                   [[f"ds_read_b128 {v(96+4*j,4)}, v{vLW} offset:{j*1024} ;@o{j}"] for j in (2*i, 2*i+1)] + [[], []] + \
                   [[f"WAITL o{j}", f"buffer_store_dwordx4 {v(96+4*j,4)}, v202, {SRT}, s{T0} offen" + (" sc1" if o.outsc else ""), f"s_add_u32 s{T0}, s{T0}, 16384"] for j in (2*i, 2*i+1)]
        gsh = []
        if last:
            gsh = [[f"v_bfe_u32 v200, v{vL16}, 4, 4", f"v_and_b32 v201, 0x70, v{vL16}"], [f"v_xor_b32 v201, v201, v{vG16}", "v_lshl_add_u32 v200, v200, 7, v201"],
                   [f"v_add_u32 v200, s{sLW}, v200", f"v_lshrrev_b32 v202, 7, v{vL16}"], [f"v_and_b32 v203, 0x70, v{vL16}", "v_lshlrev_b32 v204, 4, v202"],
                   ["v_xor_b32 v201, 64, v200", "v_xor_b32 v203, v203, v204"], ["v_lshl_add_u32 v202, v202, 11, v203"],
                   [f"s_mov_b32 s8, s{P_OUT}", f"s_mov_b32 s9, s{P_OUT+1}"], ["s_mov_b32 s10, 0x400000", "s_mov_b32 s11, 0x20000"],
                   [f"s_lshl_b32 s{T0}, s{SRB}, 2", f"s_add_u32 s{T0}, s{T0}, s{SW}"], [f"s_lshl_b32 s{T0}, s{T0}, 16", f"s_lshl_b32 s{T1}, s{SCB}, 7"], [f"s_add_u32 s{T0}, s{T0}, s{T1}"]]
        def xcvt(i): return sum((cvt4l(RES+8*i+4*kk, acc2(2*kk,i), acc2(2*kk+1,i)) for kk in range(2)), [])
        fbchk = not (lay == 0 and not last)
        rw = [f"ds_write_b128 v{vLW if k == 0 else vLW3}, {a(RS(1-par, k)+4*b_,4)} offset:{(SLOT if k == 0 else (k-1)*SLOT) + b_*1024}" for k in range(nres) for b_ in range(6)]
        rslot = [1 if k == 0 else 2 + k - o.nopf for k in range(nres) for b_ in range(6)]
        freeslot = -1
        for u, (step, bl) in enumerate(gun):
            e("WAITV " + " ".join(f"B{step}_{i}" for i in bl))
            if okh < 32:
                if bn[0][0] == okh - GD + 1: poll2(sFOc)
                if bn[0][0] == okh: okh = lv.pop(0); poll2chk(sFOc, lay+1, hex((1 << okh) - 1) if okh < 32 else None)
                assert bn[1][0] < okh
            if o.jit and u % 7 == 3: stamp(2)
            nsl = nres - 1 - o.nopf if nres > 1 else 0
            if u in [15 + 6*j for j in range(nsl + 1) if o.rin or j == nsl or (j == 0 and w1n)]:
                freeslot = 2 + (u - 15)//6
                assert min(st for st, _ in gun[u-1:]) >= u - 1
                e("s_barrier")
            if lay == 0 and not last and u == 19: assert okh == 32; E([t + (" ;@F" if t.startswith("buffer") else "") for t in fb_body(1)])
            if not fbchk and len(bn) <= 2: e("WAITV F"); E(fb_cond + retry(fb_body(1), fb_cond)); fbchk = True
            if bl == (1,) and step == 32 - T2_:
                assert not gsh
                c_ = xcvt(0); gsh = [[]] + [c_[j:j+2] for j in range(0, 8, 2)]
                if last: gsh += oparts(0)
                else:
                    p_ = xparts(0); gsh += p_[0] + [[], []] + p_[1]
            for b in range(4):
                e(f"WAITL u{u}_{b}")
                for p, i in enumerate(bl if b % 2 == 0 else bl[::-1]):
                    e(f"{MF} {v(acc2(b,i),4)}, {a(W2F+16*(u%2)+4*b,4)}, {bfr(step, i)}, {v(acc2(b,i),4)}")
                    if p == 0:
                        if bn and b % (4//len(bl)) == 0: E(bload(*bn.pop(0)))
                        elif not bn and w1n and b % (o.g2w*2//len(bl)) == 0: E(w1_piece(1-par, 1, w1n.pop(0)))
                        elif gsh and (len(bl) == 1 or b % 2):
                            g_ = gsh.pop(0)
                            if ((o.xall and lay >= 1) or ((o.alias or o.x0wt) and lay == 0)) and not last: E([wt(t) for t in g_])
                            elif any(t.startswith("buffer_store") for t in g_) and not last: st_mode(g_)
                            else: E(g_)
                if o.rin and rw and rslot[0] <= freeslot and b % (4//o.rin) == 4//o.rin - 1 and (len(bl) == 2 or (bl == (0,) and b == 3 and (u % 2 or o.rin > 1))):
                    e(rw.pop(0)); rslot.pop(0)
                if u + 2 < len(gun): e(w2rd(u+2, b))
                if b == 1 and not last:
                    for j_ in range(o.xf):
                        if u == o.xt0 + 3*j_: e(f"buffer_load_dword v{vJUNK}, v{vTCH}, {SRD}, s{ROTA+j_} offen sc1")
                    if o.cpf and u == o.xt0 + 4: E(codepf(f"L_layer{lay+1}"))
        assert not w1n
        stamp(9)
        rest = sum(gsh, [])
        if last or not any(t.startswith("buffer_store") for t in rest): E(rest)
        elif (o.xall and lay >= 1) or ((o.alias or o.x0wt) and lay == 0): E([wt(t) for t in rest])
        else: st_mode(rest)
        todo = (1,) if T2_ else (0, 1)
        for i in todo: E(xcvt(i))
        if last:
            for i in todo: E(sum(oparts(i)[:4], []))
            for i in todo: E(sum(oparts(i)[4:], []))
            break
        xtile((o.xall and lay >= 1) or ((o.alias or o.x0wt) and lay == 0), todo)
        assert not rw or max(rslot) <= freeslot
        if o.verbose: print("layer", lay, "resident writes left", len(rw))
        if o.early & 1: handoff(sFXp, sFXc, lay+1, sm(mX) if o.lazy & 1 else None, mEX, rw[:o.rw], rw[o.rw:])
        else:
            E(rw[:o.rw]); signal(sFXp); stamp(10); poll(sFXc, lay+1, rw[o.rw:], sm(mX) if o.lazy & 1 else None)

    if o.stamps:
        e("s_waitcnt vmcnt(0)")
        stamp(11)
        e(f"s_lshl_b32 s{T0}, s{SIDX}, 2"); e(f"s_add_u32 s{T0}, s{T0}, s{SW}")
        e(f"s_lshl_b32 s{T0}, s{T0}, 8"); e(f"s_add_u32 s{T0}, s{T0}, {WS_STAMPS}")
        e(f"v_lshrrev_b32 v200, 2, v{vL16}")
        e(f"buffer_store_dword v{vSTAMP}, v200, {SRD}, s{T0} offen")
        if o.echo_a >= 0:
            e(f"v_readlane_b32 s{T1}, v{vSTAMP}, {o.echo_a}"); e(f"v_readlane_b32 s{T2}, v{vSTAMP}, {o.echo_b}"); e(f"v_readlane_b32 s{T3}, v{vSTAMP}, 59")
            e(f"s_sub_u32 s{T2}, s{T2}, s{T1}"); e(f"s_mul_i32 s{T2}, s{T2}, {o.echo_mul}"); e(f"s_min_u32 s{T2}, s{T2}, 20000")
            if o.echo_idx >= 0: e(f"s_cmp_eq_u32 s{SIDX}, {o.echo_idx}"); e(f"s_cselect_b32 s{T2}, s{T2}, 0")
            A.label("L_echo")
            e(f"s_memrealtime s[{sSTAMP}:{sSTAMP+1}]"); e("s_waitcnt lgkmcnt(0)")
            e(f"s_sub_u32 s{T4}, s{sSTAMP}, s{T3}"); e(f"s_cmp_lt_u32 s{T4}, s{T2}"); e("s_cbranch_scc1 L_echo")
    e("s_endpgm")
    A.track = False
    A.label("L_ool")
    for blk in ool: blk()
    A.label("L_exit")
    e("s_endpgm")
    A.raw(f".fill (16384 + 256 - (. - L_ool))/4, 4, 0xbf810000")
    A.raw('.section .rodata,"a"'); A.raw(".p2align 6"); A.raw(f".amdhsa_kernel {KNAME}")
    for t in ("next_free_vgpr 512", "next_free_sgpr 102", "accum_offset 256", "group_segment_fixed_size 0", "kernarg_size 80",
              "user_sgpr_count 2", "user_sgpr_kernarg_segment_ptr 1", "system_sgpr_workgroup_id_x 1"):
        A.raw("  .amdhsa_" + t)
    A.raw(".end_amdhsa_kernel")
    return A.text()

if __name__ == "__main__":
    o = Opts()
    out = sys.argv[1]
    for kv in sys.argv[2:]:
        k, val = kv.split("=")
        assert hasattr(o, k), k
        setattr(o, k, int(val))
    open(out, "w").write(gen(o))
```

```python
import sys, re
sys.path.insert(0, "gen")
from asmlib import Ins
import gen2 as G
lines = [l.strip() for l in open(sys.argv[1]) if l.strip() and not l.strip().startswith((";", "."))]
end = lines.index("L_ool:")
lines = lines[:end]
lab = {l[:-1]: i for i, l in enumerate(lines) if l.endswith(":")}
M, SLOT = G.M, G.SLOT
NOPF = any(l.startswith(f'v_add_u32 v{G.vLW3}, 49152') for l in lines)
def rng(vreg, off, w, mn, phase0):
    t, db = w >> 1, w & 1
    T = {G.vL16: (0, 1024), G.vL64: (65536, 1024), G.vL128: (131072, 1024), G.vLW: (w*6144, 1024), G.vLW3: ((2 if NOPF else 3)*SLOT + w*6144, 1024),
         G.vXW: (w*4096, 512), G.vE0: (t*16384 + db*512, 512), G.vE1: (t*16384 + (1-db)*512, 512), G.vVr: (G.VB_LDS + db*512, 512),
         G.vKX: (G.M_KX + w*1024, 1024), G.vKX0: (G.M_KX + w*1024, 1024), G.vKX1: (G.M_KX + w*1024, 1024),
         G.vGM: (M, 64), G.vZW: (M + t*64, 64), G.vSW: (G.M_ST + w*512, 256), G.vSR: (G.M_ST + w*512, 64), G.vSQ: (G.M_ST + w*512, 64),
         G.vCV: (G.M_CS, 64), G.vCSa: (G.M_CS + w*64, 64), G.vCSb: (G.M_CS + min(w+4, 5)*64, 64),
         214: (w*6144, 1984), 205: (w*6144, 1760), 206: (G.RAW1A + w*6144, 1784), 208: (G.RAW1A + w*6144, 1792), 200: (w*6144, 2048), 201: (w*6144, 2048)}
    b, n = T[vreg]
    if vreg == G.vKX and "b64" in mn: off &= ~15
    return (b + off, b + off + n)
def check(take):
    errs = 0; vq = []; lq = []; m0 = None; epoch = 0; smem = False
    acc = []
    i = 0; n = 0
    def err(msg):
        nonlocal errs; errs += 1
        if errs < 20: print(f"  take={take} line {i}: {lines[i]} :: {msg}")
    while i < len(lines):
        l = lines[i]
        if l.endswith(":"): i += 1; continue
        c = Ins(l)
        if c.mn.startswith("s_cbranch") and c.ops[0] in lab and lab[c.ops[0]] > i and take: i = lab[c.ops[0]]; continue
        regs = {x for x in (c.r | c.w) if x[0] in "va"}
        for q, name in ((vq, "vm"), (lq, "lgkm")):
            for e in q:
                hit = e["dst"] & regs
                if hit and hit != {("v", G.vJUNK)}:
                    if c.kind in ("vmem", "ds") and name == {"vmem": "vm", "ds": "lgkm"}[c.kind] and not (hit & c.r): continue
                    err(f"touches {sorted(hit)[:2]} while a {name} result is pending")
        if c.mn == "s_waitcnt":
            for name, k in re.findall(r"(vmcnt|lgkmcnt)\((\d+)\)", l):
                k = int(k); q = vq if name == "vmcnt" else lq
                if name == "lgkmcnt":
                    if k and smem: err("counted lgkm with smem in flight")
                    if not k: smem = False
                while len(q) > k:
                    e = q.pop(0)
                    if e.get("a"): e["a"]["done"] = epoch
        elif c.mn == "s_barrier": epoch += 1
        elif c.mn.startswith("s_load"): smem = True
        elif ("s", "m0") in c.w:
            mm = re.match(r"s_add_u32 m0, s(\d+), (\d+)", l); assert mm, l
            m0 = ({G.sLW: 6144, G.sL8: 2048}[int(mm.group(1))], int(mm.group(2)))
        a = None
        off = re.search(r"offset:(\d+)", l); off = int(off.group(1)) if off else 0
        if c.kind == "dma": a = dict(k="w", dma=True, r=[[(m0[0]*w + m0[1] + off, m0[0]*w + m0[1] + off + 1024)] for w in range(4)])
        elif c.kind == "ds":
            rd = c.mn.startswith("ds_read"); vr = int(c.ops[1 if rd else 0][1:])
            o2 = re.search(r"offset0:(\d+) offset1:(\d+)", l)
            offs = [int(o2.group(j)) * (512 if "st64" in c.mn else 4) for j in (1, 2)] if o2 else [off]
            a = dict(k="r" if rd else "w", dma=False, r=[[rng(vr, o_, w, c.mn, 0) for o_ in offs] for w in range(4)], z=(vr in (G.vZW, G.vKX0, G.vKX1, G.vCSa, G.vCSb, G.vGM) and not rd))
        if a:
            a["done"] = None; a["line"] = i
            for p in acc:
                if p["k"] == "r" and a["k"] == "r": continue
                if p["done"] is not None and p["done"] < epoch: continue
                for w in range(4):
                    for w2 in range(4):
                        if not any(x[0] < y[1] and y[0] < x[1] for x in a["r"][w] for y in p["r"][w2]): continue
                        if w != w2:
                            if p["k"] == "w" and a["k"] == "w" and p.get("z") and a.get("z"): continue
                            err(f"cross-wave LDS {p['k']}->{a['k']} with line {p['line']} ({lines[p['line']]}) without completion + barrier")
                        elif p["done"] is None and (p["dma"] or a["dma"]): err(f"same-wave LDS {p['k']}->{a['k']} with line {p['line']} not waited")
                        else: continue
                        break
                    else: continue
                    break
            acc = [p for p in acc if p["done"] is None or p["done"] >= epoch - 1] + [a]
        if c.kind in ("vmem", "dma"): vq.append(dict(dst={x for x in c.w}, a=a))
        elif c.kind == "ds": lq.append(dict(dst={x for x in c.w}, a=a))
        if len(vq) > 63: err("more than 63 vm ops outstanding")
        i += 1; n += 1
    print(f"take={take}: {n} instructions, {epoch} barriers, {errs} findings")
check(False); check(True)
```

```python
import sys, struct
from asmlib import *

KNAME = "interleave_layers__linear_kernel_hedgehog__sliding_local_dilated__prompt_kernel"

WS_FLAGA = 0x0000000
WS_FLAGB = 0x0008000
WS_FLAGO = 0x0009000
WS_FLAGX = 0x000A000
WS_CS    = 0x0010000
CS_SZ    = 393216
WS_ST    = 0x0100000
WS_ZP    = 0x0140000
WS_STAMPS= 0x0180000
WS_HALO  = 0x0200000
WS_KVP   = 0x0400000
WS_W1    = (0x0800000, 0x0E00000)
WS_W2    = (0x1400000, 0x1600000)
WS_X     = 0x1800000
WS_X0    = WS_X
WS_O     = 0x1C00000
WS_SIZE  = 0x2000000
OOR      = 0x40000000

SLOT = 24576
M      = 147456
M_CS   = M + 64
M_ST   = M + 1024
M_ZX   = M + 3072
M_KX   = M + 4096
M_VX   = M + 11264
M_ZF   = M + 10240
LDS_SIZE = 163840
VB_LDS = 57344
RAW1A, RAW1B, RAW2 = 3*SLOT, 4*SLOT, 5*SLOT

SRD = "s[4:7]"; SRT = "s[8:11]"
SW, SGRP, SMEM, SMODE, SCB, SRB = 12, 13, 14, 15, 17, 18
T0, T1, T2, T3, T4, T5, T6, T7 = 19, 20, 21, 22, 23, 24, 25, 26
SIDX, SXCC = 27, 29
sFOc, sFOp, sFXc, sFXp = 30, 31, 32, 33
sO, sXs = 34, 35
mPAR, mB1, mDIAG, mM0, mOWN0, mOWN1, sPC, mFIRST = 36, 38, 40, 42, 44, 46, 48, 50
sCSa, sCSb, sZo, sFBp, sSTs, sLW, sKV, sZP, sHALO, sTMO, sAo, sWo = 52, 53, 54, 55, 56, 57, 58, 59, 60, 61, 62, 63
P_AX, P_AW1, P_PHI, P_AW2, P_BX, P_BW1, P_BW2, P_OUT, P_DBG, P_WS = 64, 66, 68, 70, 72, 74, 76, 78, 80, 82
sCL0, sCL2, sL8, sW2l, sW2s, sHst, sHld = 72, 73, 2, 0, 3, 16, 28
D1, D2, D4 = 64, 65, 1
mX, mEO, mEX = 68, 82, 66
sSTAMP = 84
ROTA, ROTW = 86, 94

vLW = 0; vL16, vL64, vL128 = 1, 2, 3
vA = 4; vB = 8; vW1 = 10; vW2 = 11; vFP = 12; vSTl = 13; vSTs = 14; vSTAMP = 15
RES = 16; PHI = 32; ONES = 40; MP0, MP1, MO0, MO1 = 44, 45, 46, 47
vE1, vVr, vLW3, vCPF, vKX0, vKX1, vCSa, vCSb = range(32, 40)
vXW, vE0, vTCH, vSQ, vJUNK, vCV, vFree, vKX, vGM, vZW, vSW, vSR, vG16, vOut, vZL, vVal = range(48, 64)
ACC = 64
def acc(c, i): return ACC + 16*c + 4*i
def acc2(b, i): return ACC + 8*b + 4*i
STP = 160; CSR = 168; WFV = 192; FBV = 216; CI = 220
RING, HW2, HCS = 48, 240, 248
def RS(par, k): return 24*par if k == 0 else 240 - 48*k + 24*par
MF = "v_mfma_f32_16x16x32_bf16"
def f32hex(x): return "0x%08x" % struct.unpack("<I", struct.pack("<f", x))[0]
CK = (f32hex(1.4426950408889634), f32hex(1.4426950408889634 * 32 ** -0.5))
LIM = 0x100000

HEADER = """
Kernarg (80 bytes, pointers): A_x, A_wqkv, A_w_phi, A_wo, B_x, B_wqkv, B_wo, d_out, d_debug, d_ws.
One persistent launch, 256 workgroups (one per CU) x 4 waves; written by gen/gen2.py, straight-line code per layer.
Roles: group = id & 7 owns 256 rows; member = id >> 3 is the head in the QKV GEMM (256 x 96 tile) and
the (row half, column block) in the output GEMM (128 x 64 tile, residual kept in registers).
P0     x and all weights are re-tiled into MFMA fragment order in d_ws (w_phi folded into the q/k columns),
       with column sums of the QKV weights and per-row (sum, sum of squares) partials for the LayerNorm.
G1     QKV GEMM on raw x: x fragments go straight to registers, weights through an LDS ring;
       LayerNorm is applied as rstd * (acc - mean * colsum).
Epi A  dual softmax features (true row max / min), kv and z partials exchanged between the 8 groups, o = num / den.
Epi B  dilated window attention with MFMA; the 16-row halo comes from the previous group.
G2     output GEMM + residual.
Hand-offs inside a group use plain stores only after the members have checked (XCC id in the start-up flags) that
they share one L2; otherwise, and between groups, stores are write-through. Every flag and sentinel is cleared inside
the launch before it is used; every wait is bounded.
"""

class Opts:
    sx = 0; TG2 = 11; k0 = 6; k1 = 8; TS = 8; f1 = 1; p1 = 2; c1 = 4; r0 = 6; sx0 = 5; sxp = 10; prune = 3; jit = 0; jitn = 1; verbose = 0; stamps = 0; last = 3; force_slow = 0; echo_a = -1; echo_b = -1; echo_mul = 1; echo_idx = -1; g1prof = 0
    NRES = 2
    TA0 = 0; TA2 = 0; ramp = 14
    ND0 = 6; ND2 = 8
    LA0 = 3; LA2 = 3; LA3 = 3
    APRE = 3
    wrE = 150; wrL = 110; w1sE = 1; w1sL = 2; wr0 = 150; w1s0 = 1; n1pre = 6
    w2E = 300; w2L = 200; w2sE = 25; w2sL = 20
    sper = 1; s0 = 0
    g2depth = 7; g2w = 2; bpos = 12; TG = 3
    w2BE = 450; w2sBE = 24; w2BL = 400; w2sBL = 20; wrBL = 110
    bper = 90; TB = 6; LAB = 3; hpos = 12
    aper = 150; aper0 = 110; aper2 = 90; aper3 = 200; gpos = 4; gpos2 = 3; dg = 0; dg0 = 2; dgp = 30; dk = 6
    rw = 12
    xf = 1; xt0 = 14
    bin = 0; bs0 = 1; w2e = 1; w2t = 0; of = 1; ot0 = 27
    rt = 3; rtb = 2; bbar = 1; tlb = 1; apoll = 0; ksl = 0; kgate = 0; psl = 0; dtouch = 1
    outsc = 1; oall = 0; o4 = 0; alias = 0; x0wt = 0; dlay = -1; dn = 0; oa = 0; kt = 0; kl = 0; of2 = 0; kq = 1; zf = 0; nopf = 0; xall = 0; rin = 0; lazy = 3; p2pos = 3; lv1 = 0; lv2 = 0; early = 3; epos = 4
    sf = 0; sfp = 0; sfu = 2; gop = 1; gown = 0; gow = 0; et = 0; cp0 = 0; CPL = 10; cpf = 1; cpf2 = 24; cpf3 = 26

def gen(o):
    A = Asm2()
    nb = [0]
    drop = {1: (17, 24, 26, 31, 32, 34, 42, 46, 47, 49, 53, 55), 2: (17, 31, 32, 34, 46, 47, 49), 3: (24, 26, 42, 53, 55)}.get(o.prune if o.last == 3 else 0, ())
    def e(t):
        if t == "s_barrier":
            nb[0] += 1
            if nb[0] - 1 in drop: return
        A.e(t)
    ool = []
    assert not (o.gown and o.bin)
    lay = 0
    o.CPL = min(o.CPL, 5*o.last + 7)
    def E(lst):
        for t in lst: e(t)
    def stamp(name, force=0):
        if o.jit and name not in (11, 28):
            l = A.new("jit")
            e(f"s_memtime s[{sSTAMP}:{sSTAMP+1}]"); e("s_waitcnt lgkmcnt(0)")
            e(f"s_lshr_b32 s{sSTAMP}, s{sSTAMP}, 2"); e(f"s_mul_i32 s{sSTAMP}, s{sSTAMP}, 0x9e3779b1"); e(f"s_lshr_b32 s{sSTAMP}, s{sSTAMP}, {32 - o.jit}")
            e(f"s_cmp_lg_u32 s{sSTAMP}, 0"); e(f"s_cbranch_scc1 {l}")
            for j in range(o.jitn): e("s_sleep 100")
            A.label(l)
        if not o.stamps: return
        if o.g1prof and name in range(2, 11) and not force: return
        idx = name + 16*lay
        if o.stamps == 2 and name != 11 and idx not in (o.echo_a, o.echo_b): return
        e(f"{'s_memtime' if o.stamps == 3 else 's_memrealtime'} s[{sSTAMP}:{sSTAMP+1}]")
        e("s_waitcnt lgkmcnt(0)")
        e(f"v_writelane_b32 v{vSTAMP}, s{sSTAMP}, {59 if name == 11 else idx}")
    def srt(p, size):
        e(f"s_mov_b32 s8, s{p}"); e(f"s_mov_b32 s9, s{p+1}"); e(f"s_mov_b32 s10, {size}"); e("s_mov_b32 s11, 0x20000")
    def mask64(r, val):
        e(f"s_mov_b32 s{r}, 0x{val & 0xffffffff:08x}"); e(f"s_mov_b32 s{r+1}, 0x{val >> 32:08x}")
    def sm(r): return f"s[{r}:{r+1}]"
    def bc(r): return (v(r & ~1, 2), r & 1)
    def pk_fma(d, x, y, z, negx=False):
        yp, ys = bc(y); zp, zs = bc(z)
        e(f"v_pk_fma_f32 {v(d,2)}, {v(x,2)}, {yp}, {zp} op_sel:[0,{ys},{zs}] op_sel_hi:[1,{ys},{zs}]" + (" neg_lo:[1,0,0] neg_hi:[1,0,0]" if negx else ""))
    def pk_mul(d, x, y):
        yp, ys = bc(y)
        e(f"v_pk_mul_f32 {v(d,2)}, {v(x,2)}, {yp} op_sel:[0,{ys}] op_sel_hi:[1,{ys}]")
    def cvt4l(d, x0, x1):
        return [f"v_cvt_pk_bf16_f32 v{d}, v{x0}, v{x0+1}", f"v_cvt_pk_bf16_f32 v{d+1}, v{x0+2}, v{x0+3}",
                f"v_cvt_pk_bf16_f32 v{d+2}, v{x1}, v{x1+1}", f"v_cvt_pk_bf16_f32 v{d+3}, v{x1+2}, v{x1+3}"]
    def cvt4(d, x0, x1): E(cvt4l(d, x0, x1))
    def wt(t):
        if not t.startswith("buffer_store"): return t
        a_, sep, b_ = t.partition(" ;@")
        return a_ + " sc1" + sep + b_
    def st_mode(lines):
        ls, ld = A.new("slow"), A.new("done")
        e(f"s_cmp_lg_u32 s{SMODE}, 0"); e(f"s_cbranch_scc1 {ls}")
        E(lines); A.label(ld)
        def blk():
            A.label(ls); A.fence(); E([wt(t) for t in lines]); e("s_nop 7"); e(f"s_branch {ld}")
        ool.append(blk)
    def spin(body, cond, first=None):
        l, d = A.new("spin"), A.new("spind")
        e(f"s_mov_b32 s{sTMO}, {LIM}")
        if first:
            E(body); E(first); e("s_waitcnt vmcnt(0)"); E(cond); e(f"s_cbranch_vccz {d}")
        A.label(l); E(body); e(f"s_sub_u32 s{sTMO}, s{sTMO}, 1"); e("s_waitcnt vmcnt(0)"); E(cond)
        e(f"s_cbranch_scc1 {d}"); e(f"s_cbranch_vccnz {l}"); A.label(d)
    def retry(body, cond):
        l, d = A.new("rt"), A.new("rtd")
        def blk():
            A.label(l); spin(body, cond); e(f"s_branch {d}")
        ool.append(blk)
        return [f"s_cbranch_vccnz {l}", d + ":"]
    def signal(sreg):
        e("s_mov_b64 exec, 1"); e("s_waitcnt vmcnt(0)")
        st_mode([f"buffer_store_dword v{vVal}, off, {SRD}, s{sreg}"])
        e("s_mov_b64 exec, -1")
    def poll(sreg, val, first=None, mask=None):
        cond = [f"v_cmp_gt_u32 vcc, {val}, v{FBV}"]
        if mask: cond = [f"s_mov_b64 exec, {mask}"] + cond + ["s_mov_b64 exec, -1"]
        spin([f"buffer_load_dword v{FBV}, v{vFP}, {SRD}, s{sreg} offen sc1"], cond, first)
    def handoff(sp, sc, val, mask, emask, pre, first):
        ld = f"buffer_load_dword v{FBV}, v{vFP}, {SRD}, s{sc} offen sc1"
        d = A.new("hd")
        E(pre[:o.epos]); e(ld + " ;@PE"); E(pre[o.epos:])
        if o.jit: stamp(7)
        e("s_mov_b64 exec, 1"); e("s_waitcnt vmcnt(1)")
        st_mode([f"buffer_store_dword v{vVal}, off, {SRD}, s{sp}"])
        e("s_mov_b64 exec, -1")
        E(first)
        e("WAITV PE"); e(f"s_mov_b64 exec, {sm(emask)}"); e(f"v_cmp_gt_u32 vcc, {val}, v{FBV}"); e("s_mov_b64 exec, -1"); e(f"s_cbranch_vccz {d}")
        A.track = False; poll(sc, val, None, mask); A.track = True
        A.label(d)
    def sig(sreg, val, tag):
        e(f"v_mov_b32 v{vVal}, {val}"); e("s_mov_b64 exec, 1"); e(f"WAITV {tag}")
        st_mode([f"buffer_store_dword v{vVal}, off, {SRD}, s{sreg}"])
        e("s_mov_b64 exec, -1")
    def poll2(sreg): e(f"buffer_load_dword v{FBV}, v{vFP}, {SRD}, s{sreg} offen sc1 ;@P2")
    def poll2chk(sreg, val, mask=None):
        l = A.new("p2")
        e("WAITV P2")
        if mask: e(f"s_mov_b64 exec, {mask}")
        e(f"v_cmp_gt_u32 vcc, {val}, v{FBV}")
        if mask: e("s_mov_b64 exec, -1")
        e(f"s_cbranch_vccnz {l}"); A.label(l + "_r")
        def blk(): A.label(l); poll(sreg, val, None, mask); e(f"s_branch {l}_r")
        ool.append(blk)
    def xreduce(groups, aslist=False):
        out = []; e = out.append
        for op, q in groups: e(f"v_permlane32_swap_b32 v{q[0]}, v{q[1]}"); e(f"v_permlane32_swap_b32 v{q[2]}, v{q[3]}")
        for op, q in groups: e(f"{op} v{q[0]}, v{q[0]}, v{q[1]}"); e(f"{op} v{q[2]}, v{q[2]}, v{q[3]}")
        for op, q in groups: e(f"v_permlane16_swap_b32 v{q[0]}, v{q[2]}")
        for op, q in groups: e(f"{op} v{q[1]}, v{q[0]}, v{q[2]}"); e(f"{op} v{q[2]}, v{q[0]}, v{q[2]}")
        for op, q in groups: e(f"v_permlane16_swap_b32 v{q[1]}, v{q[2]}")
        for op, q in groups: e(f"v_mov_b32 v{q[0]}, v{q[1]}"); e(f"v_mov_b32 v{q[3]}, v{q[2]}")
        for op, q in groups: e(f"v_permlane32_swap_b32 v{q[0]}, v{q[1]}"); e(f"v_permlane32_swap_b32 v{q[2]}, v{q[3]}")
        if aslist: return out
        E(out)
    def xparts(i):
        t = 160+8*i; g0 = t+4; st = []
        for kk in range(2):
            f = v(RES+8*i+4*kk, 4)
            st += [[f"{MF} {v(g0,4)}, {f}, {f}, {'0' if kk == 0 else v(g0,4)}"],
                   [f"buffer_store_dwordx4 {f}, v{vB+i}, {SRD}, s{sXs} offen offset:{kk*1024}"],
                   [f"{MF} {v(t,4)}, {v(ONES,4)}, {f}, {'0' if kk == 0 else v(t,4)}"]]
        return st, [[f"v_cndmask_b32 v{g0}, v{g0}, v{g0+1}, {sm(mPAR)}", f"v_cndmask_b32 v{g0+2}, v{g0+2}, v{g0+3}, {sm(mPAR)}"],
                    [f"v_cndmask_b32 v{t+1}, v{g0}, v{g0+2}, {sm(mB1)}"],
                    [f"s_mov_b64 exec, {sm(mDIAG)}", f"buffer_store_dwordx2 {v(t,2)}, v{vSTs}, {SRD}, s{sSTs} offen offset:{i*128} ;@xs{i}", "s_mov_b64 exec, -1"]]
    def xtile(through, blocks=(0, 1)):
        ps = [xparts(i) for i in blocks]
        st = sum((sum(p[0], []) for p in ps), []) + sum((sum(p[1], []) for p in ps), [])
        if through: E([wt(t) for t in st])
        else: st_mode(st)
    def w1_piece(par, stage, i):
        r = []; slot = (stage + 1) % 6
        if i % 4 == 0: r += [f"s_add_u32 m0, s{sLW}, {slot*SLOT + i*1024}", f"s_add_u32 s{sWo}, s{ROTW+stage}, {WS_W1[par] + i*1024}"]
        return r + [f"buffer_load_dwordx4 v{vW1}, {SRD}, s{sWo} offen offset:{(i%4)*1024} lds ;@W{stage}"]
    def w2_piece(par, part, i):
        r = []
        if i % 4 == 0:
            if part < 5:
                lb, sb = ((3+part)*SLOT, 57344 + part*SLOT) if part < 3 else ((part-3)*SLOT, (part-3)*SLOT)
                r += [f"s_add_u32 m0, s{sLW}, {lb + i*1024}", f"s_mov_b32 s{sWo}, {WS_W2[par] + sb + i*1024}"]
            else: r += [f"s_add_u32 m0, s{sL8}, {2*SLOT}", f"s_sub_u32 s{sWo}, {WS_W2[par] + 2*SLOT}, s{sW2l}"]
        return r + [f"buffer_load_dwordx4 v{vW2}, {SRD}, s{sWo} offen offset:{(i%4)*1024} lds"]
    def ldsrd(dst, addr):
        base = {0: vL16, 1: vL64, 2: vL128}[addr >> 16]
        return f"ds_read_b128 {dst}, v{base} offset:{addr & 0xffff}"
    def w1st(R, blk, sa, sb): return f"buffer_store_dwordx4 {R}, v{vW1}, {SRD}, s{sa if blk < 4 else sb} offen offset:{(blk%4)*1024} sc1"
    def csst(C, sreg): return ["s_mov_b32 exec_lo, 0x003f003f", "s_mov_b32 exec_hi, 0x003f003f", f"buffer_store_dwordx4 {C}, v{vOut}, {SRD}, s{sreg} offen sc1", "s_mov_b64 exec, -1"]
    def fb_body(k): return [f"s_mov_b32 s{T1}, {WS_FLAGB + 1024*k}", f"buffer_load_dwordx4 {v(FBV,4)}, v{vL16}, {SRD}, s{T1} offen sc1"]
    fb_cond = [f"v_and_b32 v{FBV}, v{FBV}, v{FBV+1}", f"v_and_b32 v{FBV+2}, v{FBV+2}, v{FBV+3}", f"v_and_b32 v{FBV}, v{FBV}, v{FBV+2}", f"v_cmp_ne_u32 vcc, 1, v{FBV}"]
    def fb_set(k): return ["s_mov_b64 exec, 1", f"buffer_store_dword v{vVal}, off, {SRD}, s{sFBp} offset:{1024*k} sc1", "s_mov_b64 exec, -1"]
    def xw(r, kb, ad=vXW): return f"ds_write2st64_b64 v{ad}, {v(r,2)}, {v(r+2,2)} offset0:{2*kb} offset1:{2*kb+1}"

    for t in HEADER.strip("\n").split("\n"): A.raw(("; " + t).rstrip())
    A.raw(f"; @launch grid=(256,1,1) block=(256,1,1) lds={LDS_SIZE}")
    A.raw('.amdgcn_target "amdgcn-amd-amdhsa--gfx950"'); A.raw(".text")
    A.raw(f".globl {KNAME}"); A.raw(".p2align 8"); A.raw(f".type {KNAME},@function"); A.label(KNAME)
    if o.stamps: e("s_memrealtime s[86:87]")
    e("s_cmp_ge_u32 s2, 256"); e("s_cbranch_scc1 L_exit")
    e(f"s_getpc_b64 {sm(sPC)}"); A.label("L_pc")
    e(f"s_lshr_b32 s{T0}, s2, 3"); e(f"s_mulk_i32 s{T0}, {o.CPL*128}"); e(f"v_min_u32 v252, {o.CPL-1}, v0"); e(f"v_lshl_add_u32 v252, v252, 7, s{T0}")
    cpv = f"global_load_dword v{vJUNK}, v252, {sm(sPC)}"
    if o.cp0 == 0: e(cpv)
    if o.cp0 == 3: e(f"s_and_b32 s{T1}, s2, 0xf8"); e(f"s_lshl_b32 s{T1}, s{T1}, 4"); e(f"s_add_u32 s{T1}, s{T1}, 256"); e(f"s_load_dword s{sTMO}, {sm(sPC)}, s{T1}")
    e("s_load_dwordx16 s[64:79], s[0:1], 0"); e("s_load_dwordx4 s[80:83], s[0:1], 64")
    if o.force_slow: e(f"s_lshr_b32 s{SGRP}, s2, 5"); e(f"s_and_b32 s{SMEM}, s2, 31")
    else: e(f"s_and_b32 s{SGRP}, s2, 7"); e(f"s_lshr_b32 s{SMEM}, s2, 3")
    VM = 215
    e(f"s_lshl_b32 s{SIDX}, s{SGRP}, 5"); e(f"s_add_u32 s{SIDX}, s{SIDX}, s{SMEM}")
    if o.et:
        e(f"s_lshl_b32 s{T1}, s{SIDX}, 14"); e(f"v_lshl_add_u32 v250, v0, 6, s{T1}")
        if o.et > 1: e(f"s_mul_i32 s{T1}, s{SIDX}, 24576"); e(f"v_mul_u32_u24 v251, 96, v0"); e(f"v_add_u32 v251, s{T1}, v251")
        e("s_waitcnt lgkmcnt(0)")
        if o.et != 3: e(f"global_load_dword v{vJUNK}, v250, {sm(P_AX)}")
        if o.et > 1: e(f"global_load_dword v{vJUNK}, v251, {sm(P_AW1)}")
    e("v_lshrrev_b32 v1, 6, v0"); e("v_and_b32 v254, 63, v0"); e(f"v_readfirstlane_b32 s{SW}, v1")
    e(f"s_lshr_b32 s{SRB}, s{SIDX}, 4"); e(f"s_and_b32 s{SCB}, s{SIDX}, 15")
    e(f"s_mul_i32 s{sLW}, s{SW}, 6144")
    e("v_lshrrev_b32 v203, 3, v254"); e("v_and_b32 v204, 7, v254"); e("v_lshlrev_b32 v204, 4, v204"); e("v_lshl_add_u32 v210, v203, 11, v204")
    e("v_lshrrev_b32 v200, 2, v254"); e("v_and_b32 v201, 3, v254")
    e("v_mul_u32_u24 v202, 6144, v200"); e("v_lshl_add_u32 v202, v201, 4, v202")
    e(f"s_lshl_b32 s{T2}, s{SRB}, 2"); e(f"s_add_u32 s{T2}, s{T2}, s{SW}"); e(f"s_lshl_b32 s{T2}, s{T2}, 16")
    e(f"s_lshl_b32 s{T4}, s{SCB}, 7"); e(f"s_add_u32 s{T3}, s{T2}, s{T4}")
    e(f"s_lshl_b32 s{T6}, s{SGRP}, 2"); e(f"s_add_u32 s{T6}, s{T6}, s{SW}")
    e(f"s_mul_i32 s{T5}, s{T6}, {32*6144}"); e(f"s_lshl_b32 s{T4}, s{SMEM}, 6"); e(f"s_add_u32 s{T5}, s{T5}, s{T4}")
    e(f"v_lshlrev_b32 v{vL16}, 4, v254"); e(f"v_and_b32 v{vG16}, 48, v254"); e(f"v_and_b32 v{VM}, 15, v254")
    e(f"s_lshl_b32 s{T1}, s{SCB}, 11"); e(f"s_add_u32 s{sXs}, s{T1}, {WS_X}")
    e(f"s_mul_i32 s{sAo}, s{SMEM}, 196608"); e(f"s_add_u32 s{sAo}, s{sAo}, s{sLW}"); e(f"s_mul_i32 s{ROTW}, s{SGRP}, {SLOT}")
    e("v_lshlrev_b32 v249, 7, v254")
    e(f"s_lshl_b32 s{T0}, s{SIDX}, 2"); e(f"s_add_u32 s{T0}, s{T0}, s{SW}"); e(f"s_mul_i32 s{sWo}, s{T0}, 6144")
    if o.stamps == 1: e("s_memrealtime s[88:89]")
    e("s_waitcnt lgkmcnt(0)")
    if o.stamps == 1: e("s_memrealtime s[90:91]")
    e(f"s_mov_b32 s4, s{P_WS}"); e(f"s_mov_b32 s5, s{P_WS+1}"); e(f"s_mov_b32 s6, {WS_SIZE}"); e("s_mov_b32 s7, 0x20000")
    if o.cp0 in (2, 4):
        e(f"s_lshl_b32 s{T0}, s{SMEM}, 2"); e(f"s_add_u32 s{T0}, s{T0}, s{SW}"); e(f"s_lshl_b32 s{T0}, s{T0}, 7")
        for j in range((o.CPL + 3)//4 if o.cp0 == 2 else 1):
            e(f"s_load_dword s{sTMO}, {sm(sPC)}, s{T0}"); e(f"s_add_u32 s{T0}, s{T0}, 16384")
    e(f"s_xor_b32 s{T7}, s{SW}, {o.gow}")
    e(f"s_or_b32 s{T0}, s{SMEM}, s{T7}"); e(f"s_cmp_lg_u32 s{T0}, 0"); e("s_cbranch_scc1 L_p0a")
    A.track = False
    for r in range(4): e(f"v_mov_b32 v{204+r}, 0")
    e(f"s_lshl_b32 s{T0}, s{SGRP}, 12")
    for j in range(4): e(f"buffer_store_dwordx4 v[204:207], v{vL16}, {SRD}, s{T0} offen offset:{j*1024} sc1")
    e(f"s_lshl_b32 s{T0}, s{SGRP}, 7"); e(f"s_add_u32 s{T0}, s{T0}, {WS_FLAGB}")
    e("s_mov_b64 exec, 0xff")
    for j in range(2 + o.sf): e(f"buffer_store_dwordx4 v[204:207], v{vL16}, {SRD}, s{T0} offen offset:{j*1024} sc1")
    e("s_mov_b64 exec, -1")
    A.track = True
    A.label("L_p0a")
    n0 = len(A.vq)
    def setgo():
        e(f"s_or_b32 s{T0}, s{SMEM}, s{T7}"); e(f"s_cmp_lg_u32 s{T0}, 0"); e("s_cbranch_scc1 L_p0b")
        A.track = False
        srt(P_DBG, 256); e("v_mov_b32 v204, 1"); e(f"s_lshl_b32 s{T0}, s{SGRP}, {4 if o.dtouch else 5}")
        e(f"s_waitcnt vmcnt({len(A.vq) - n0})")
        e("s_mov_b64 exec, 1"); e(f"buffer_store_dword v204, off, {SRT}, s{T0} sc1"); e("s_mov_b64 exec, -1")
        A.track = True
        A.label("L_p0b")
    if o.gop == 2: setgo()
    def rowtouch(p, few=False):
        srt(p, 0x600000)
        if few: e("s_mov_b32 exec_lo, 0x08080808")
        e("s_mov_b32 exec_hi, 0x0808" if few else "s_mov_b32 exec_hi, 0xffff"); e(f"buffer_load_dword v{vJUNK}, v249, {SRT}, s{sWo} offen"); e("s_mov_b64 exec, -1")
    if o.rt in (1, 3): rowtouch(P_AW1, o.rt == 3)
    srt(P_AX, 0x400000)
    for i in range(4):
        e(f"s_add_u32 m0, s{sLW}, {i*1024}"); e(f"s_add_u32 s{T0}, s{T3}, {i*16384}")
        e(f"buffer_load_dwordx4 v210, {SRT}, s{T0} offen lds ;@x")
    if o.rt == 2: rowtouch(P_AW1)
    if o.stamps == 1: e("s_memrealtime s[92:93]")
    def touch(p, *calc):
        if o.tlb: E(list(calc)); e(f"s_load_dword s{sTMO}, s[{p}:{p+1}], s{T0}")
    if o.dtouch: touch(P_DBG, f"s_movk_i32 s{T0}, 128")
    touch(P_WS, f"s_add_u32 s{T0}, s{T2}, s{sXs}")
    touch(P_WS, f"s_add_u32 s{T0}, s{sAo}, s{ROTW}", f"s_add_u32 s{T0}, s{T0}, {WS_W1[0]}")
    touch(P_WS, f"s_mov_b32 s{T0}, 0x1f0000")
    touch(P_BW1, f"s_mov_b32 s{T0}, s{T5}"); touch(P_AW2, f"s_lshl_b32 s{T0}, s{SRB}, 17"); touch(P_BW2)
    if o.gop == 1: setgo()
    srt(P_PHI, 0x10000)
    e(f"s_add_u32 m0, s{sLW}, 4096"); e(f"s_lshl_b32 s{T0}, s{SMEM}, 11")
    for j in range(2): e(f"buffer_load_dwordx4 v{vL16}, {SRT}, s{T0} offen offset:{j*1024} lds ;@phi")
    def raw1(p, ldsb, tag):
        srt(p, 0x600000)
        for seg in range(3):
            for hf in range(2):
                e(f"s_add_u32 m0, s{sLW}, {ldsb + seg*2048 + hf*1024}"); e(f"s_add_u32 s{T0}, s{T5}, {seg*2048 + hf*16*6144}")
                e(f"buffer_load_dwordx4 v202, {SRT}, s{T0} offen lds ;@{tag}")
    raw1(P_AW1, RAW1A, "ra")
    if o.rtb == 5: rowtouch(P_BW1)
    if o.cp0 in (1, 3): e(cpv)
    if o.gop == 0: setgo()
    e(f"v_lshl_add_u32 v214, v{VM}, 7, v{vG16}"); e(f"v_add_u32 v214, s{sLW}, v214")
    e(f"v_add_u32 v{vB}, s{T2}, v{vL16}"); e(f"v_add_u32 v{vB+1}, 0x8000, v{vB}")
    e(f"s_lshr_b32 s{T2}, s{T2}, 8"); e(f"v_lshl_add_u32 v{vSTs}, v{VM}, 3, s{T2}")
    e(f"s_lshl_b32 s{T0}, s{SCB}, 14"); e(f"s_add_u32 s{sSTs}, s{T0}, {WS_ST}")
    mask64(mPAR, 0xAAAAAAAAAAAAAAAA); mask64(mB1, 0xCCCCCCCCCCCCCCCC); mask64(mDIAG, 0xF0000F0000F0000F)
    for r in range(4): e(f"v_mov_b32 v{ONES+r}, 0x3f803f80")
    if o.stamps:
        e(f"v_mov_b32 v{vSTAMP}, 0"); e(f"v_writelane_b32 v{vSTAMP}, s86, 12"); e(f"v_writelane_b32 v{vSTAMP}, s{sPC}, 63")
    stamp(28)
    if o.stamps == 1:
        for j in range(3): e(f"v_writelane_b32 v{vSTAMP}, s{88+2*j}, {60+j}")
    e("WAITV x")
    for i in range(2):
        for kk in range(2): e(f"ds_read_b128 {v(RES+8*i+4*kk,4)}, v214 offset:{i*2048 + kk*64}")
    e(f"v_add_u32 v{vW1}, s{sAo}, v{vL16}"); e(f"v_add_u32 v{vLW}, s{sLW}, v{vL16}")
    e("v_and_b32 v209, 3, v200"); e(f"v_lshrrev_b32 v203, 1, v{vG16}"); e("v_add_u32 v209, v209, v203")
    e("v_lshlrev_b32 v203, 6, v209"); e("v_lshl_add_u32 v205, v201, 3, v203"); e(f"v_add_u32 v205, s{sLW}, v205")
    e("v_lshl_add_u32 v206, v201, 4, v203"); e(f"s_add_u32 s{T1}, s{sLW}, {RAW1A}"); e(f"v_add_u32 v206, s{T1}, v206")
    e(f"v_lshrrev_b32 v203, 2, v{VM}"); e("v_lshl_add_u32 v203, v203, 3, v201"); e(f"v_lshl_add_u32 v203, v203, 6, v{vG16}"); e(f"v_add_u32 v208, s{T1}, v203")
    e(f"v_lshl_add_u32 v{vOut}, v{VM}, 11, v{vG16}")
    e("s_waitcnt lgkmcnt(0)")
    stamp(29)
    if o.cp0 == 4: e(cpv)
    if o.rtb == 1: rowtouch(P_BW1)
    xtile(True)
    def goload():
        srt(P_DBG, 256)
        e("v_and_b32 v253, 7, v254"); e(f"v_lshlrev_b32 v253, {4 if o.dtouch else 5}, v253"); e(f"s_cmp_eq_u32 s{SW}, 0"); e(f"s_cselect_b32 s{T0}, 0, {OOR}")
        e(f"buffer_load_dword v212, v253, {SRT}, s{T0} offen sc1 ;@go")
    gm = ([f"s_lshl_b64 exec, 1, s{SGRP}"], ["s_mov_b64 exec, -1"]) if o.gown else ([], [])
    def gocheck():
        e(f"s_cmp_eq_u32 s{SW}, 0"); e(f"s_cselect_b32 s{T0}, 1, 0")
        e("WAITV go")
        stamp(31)
        E(gm[0]); e(f"v_cmp_ne_u32 vcc, s{T0}, v212"); E(gm[1]); e("s_cbranch_vccnz L_goslow")
        A.label("L_gook")
        def goslow():
            A.label("L_goslow"); srt(P_DBG, 256); e("s_waitcnt lgkmcnt(0)")
            E(gm[0]); spin([f"buffer_load_dword v212, v253, {SRT}, 0 offen sc1"], ["v_cmp_ne_u32 vcc, 1, v212"]); E(gm[1]); e("s_branch L_gook")
        ool.append(goslow)
    def xcc():
        e(f"s_getreg_b32 s{SXCC}, hwreg(HW_REG_XCC_ID, 0, 4)"); e(f"s_or_b32 s{SXCC}, s{SXCC}, 0x100"); e(f"v_mov_b32 v{vVal}, s{SXCC}")
        e(f"s_lshl_b32 s{T1}, s{SIDX}, 2"); e(f"s_add_u32 s{T1}, s{T1}, {WS_FLAGB}"); e(f"s_cmp_eq_u32 s{SW}, 0"); e(f"s_cselect_b32 s{sFBp}, s{T1}, {OOR}")
    def flagx():
        gocheck(); e("s_barrier"); E(fb_set(2))
    SB = 224 if o.sf else 96
    if o.sf: goload(); xcc()
    if o.rtb == 2: rowtouch(P_BW1)
    if o.w2t:
        e(f"s_lshl_b32 s{T0}, s{SIDX}, 2"); e(f"s_add_u32 s{T0}, s{T0}, s{SW}"); e(f"s_lshl_b32 s{T0}, s{T0}, 11"); e("s_mov_b64 exec, 0xffff")
        for p in (P_BW2, P_AW2)[:o.w2t]:
            srt(p, 0x200000); e(f"buffer_load_dword v{vJUNK}, v249, {SRT}, s{T0} offen")
        e("s_mov_b64 exec, -1")
    for blk in range(6):
        mask64(T1, 0x0001000100010001 << blk)
        for r in range(4): e(f"v_cndmask_b32 v{SB+4*blk+r}, 0, v{ONES}, {sm(T1)}")
    e(f"s_add_u32 s{T2}, s{ROTW}, {WS_W1[0]}"); e(f"s_add_u32 s{T4}, s{T2}, 4096")
    e(f"s_lshl_b32 s{T0}, s{T6}, 6"); e(f"s_mul_i32 s{T1}, s{SMEM}, 12288"); e(f"s_add_u32 s{T0}, s{T0}, s{T1}"); e(f"s_add_u32 s{sCL0}, s{T0}, {WS_CS}")
    e("WAITV phi")
    for fb in range(2):
        for t in range(2): e(f"ds_read_b64_tr_b16 {v(PHI+4*fb+2*t,2)}, v205 offset:{4096 + fb*32 + t*256}")
    e("WAITV ra")
    if o.rtb == 6: rowtouch(P_BW1)
    stamp(13)
    if o.sf and o.sfp == 0: flagx()
    RA, RB = RS(0, 0), RS(1, 0)
    for seg in range(2):
        for kb in range(2): e(f"ds_read_b128 {v(120+8*seg+4*kb,4)}, v208 offset:{seg*2048 + kb*256} ;@s{seg}")
    for blk in (4, 5):
        for t in range(2): e(f"ds_read_b64_tr_b16 {a(RA+4*blk+2*t,2)}, v206 offset:{4096 + t*256 + (blk&1)*8}")
    for seg in range(2):
        e(f"WAITL s{seg}")
        for fb in range(2):
            for kb in range(2): e(f"{MF} {v(160+16*seg+8*fb+4*kb,4)}, {v(120+8*seg+4*kb,4)}, {v(PHI+4*fb,4)}, 0")
    e("s_waitcnt lgkmcnt(0)")
    for blk in (4, 5):
        e(w1st(a(RA+4*blk,4), blk, T2, T4))
        e(f"{MF} v[64:67], {a(RA+4*blk,4)}, {v(SB+4*blk,4)}, {'0' if blk == 4 else 'v[64:67]'}")
    for blk in range(4):
        cvt4(136+4*blk, 160+8*blk, 164+8*blk)
        e(w1st(v(136+4*blk,4), blk, T2, T4))
        e(f"{MF} v[64:67], {v(136+4*blk,4)}, {v(SB+4*blk,4)}, v[64:67]")
    for r in range(16): e(f"v_accvgpr_write_b32 a{RA+r}, v{136+r}")
    E(csst(v(64,4), sCL0))
    if not o.sf: goload()
    if o.sf and o.sfp == 1: flagx()
    elif o.bbar: e("s_barrier")
    if o.rtb == 3: rowtouch(P_BW1)
    e(f"s_lshl_b32 s{T0}, s{SRB}, 1"); e(f"s_and_b32 s{T3}, s{SW}, 1"); e(f"s_add_u32 s{T0}, s{T0}, s{T3}")
    e(f"s_lshl_b32 s{T1}, s{SCB}, 1"); e(f"s_lshr_b32 s{T4}, s{SW}, 1"); e(f"s_add_u32 s{T1}, s{T1}, s{T4}"); e(f"s_lshl_b32 s{T1}, s{T1}, 6")
    e(f"s_lshl_b32 s{sW2s}, s{T0}, 12"); e(f"s_lshl_b32 s{T0}, s{T0}, 16"); e(f"s_add_u32 s{T0}, s{T0}, s{T1}"); e(f"s_add_u32 s{T1}, s{T0}, 0x8000")
    e("v_lshlrev_b32 v203, 11, v200"); e("v_lshl_add_u32 v207, v201, 4, v203")
    e(f"s_mov_b32 s{D1}, s{T0}"); e(f"s_mov_b32 s{D2}, s{T1}")
    def raw2(wt_):
        srt((P_AW2, P_BW2)[wt_], 0x200000)
        for i in range(2):
            e(f"s_add_u32 m0, s{sLW}, {RAW2 + wt_*2048 + i*1024}")
            e(f"buffer_load_dwordx4 v207, {SRT}, s{D1 + i} offen lds ;@r2{wt_}")
    for wt_ in range(o.w2e): raw2(wt_)
    for blk in range(6): e(f"ds_write_b128 v{vLW}, {a(RA+4*blk,4)} offset:{SLOT + blk*1024}")
    stamp(30)
    if not o.sf: xcc()
    e(f"s_lshl_b32 s{T0}, s{T4}, 11"); e(f"s_add_u32 s{sW2s}, s{sW2s}, s{T0}"); e(f"s_lshl_b32 s{T0}, s{SCB}, 17")
    e(f"s_add_u32 s{sW2s}, s{sW2s}, s{T0}"); e(f"s_add_u32 s{sW2s}, s{sW2s}, {WS_W2[0]}")
    e(f"s_lshl_b32 s{T1}, s{SMEM}, 15"); e(f"s_lshl_b32 s{T2}, s{SW}, 10"); e(f"s_add_u32 s{T1}, s{T1}, s{T2}"); e(f"s_add_u32 s{sKV}, s{T1}, {WS_KVP - WS_X + (1<<32)}")
    e(f"s_lshr_b32 s{T1}, s{T1}, 4"); e(f"s_add_u32 s{sZP}, s{T1}, {WS_ZP}")
    for s_ in range(8):
        e(f"s_add_u32 s{T1}, s{SGRP}, {s_}"); e(f"s_and_b32 s{T1}, s{T1}, 7")
        e(f"s_mul_i32 s{ROTW+s_}, s{T1}, {SLOT}"); e(f"s_lshl_b32 s{T1}, s{T1}, 12"); e(f"s_add_u32 s{ROTA+s_}, s{T1}, {WS_X}")
    e(f"s_lshl_b32 s{T1}, s{SIDX}, 11"); e(f"s_add_u32 s{sHALO}, s{T1}, {WS_HALO}")
    e(f"s_lshl_b32 s{T1}, s{SMEM}, 10"); e(f"s_add_u32 s{sO}, s{T1}, {WS_X if o.alias else WS_O}")
    touch(P_WS, f"s_mov_b32 s{T0}, s{sW2s}")
    touch(P_WS, f"s_add_u32 s{T0}, s{sKV}, s{ROTA}")
    touch(P_WS, f"s_add_u32 s{T0}, s{sW2s}, {WS_W2[1] - WS_W2[0]}")
    touch(P_WS, f"s_add_u32 s{T0}, s{sAo}, s{ROTW}", f"s_add_u32 s{T0}, s{T0}, {WS_W1[1]}")
    touch(P_WS, f"s_mov_b32 s{T0}, s{sHALO}")
    touch(P_WS, f"s_lshl_b32 s{T0}, s{T6}, 17", f"s_add_u32 s{T0}, s{T0}, s{sO}")
    touch(P_OUT, f"s_lshl_b32 s{T0}, s{SRB}, 18", f"s_lshl_b32 s{T1}, s{SCB}, 7", f"s_add_u32 s{T0}, s{T0}, s{T1}")
    e(f"s_lshl_b32 s{T0}, s{SGRP}, 5"); e(f"v_add_u32 v203, s{T0}, v254")
    e("v_and_b32 v204, 7, v254"); e(f"v_lshl_add_u32 v204, v204, 5, s{SMEM}")
    mask64(T1, 0x00000000FFFFFFFF); e(f"v_cndmask_b32 v211, v204, v203, {sm(T1)}"); e("v_lshlrev_b32 v211, 7, v211")
    if o.sf: e("v_lshlrev_b32 v250, 7, v204")
    def flaga():
        e(f"s_lshl_b32 s{T0}, s{SIDX}, 7"); e(f"s_cmp_eq_u32 s{SW}, 0"); e(f"s_cselect_b32 s{T0}, s{T0}, {OOR}")
        e("s_barrier")
        e("s_mov_b64 exec, 1"); e(f"buffer_{'atomic_or' if o.apoll else 'store_dword'} v{vVal}, off, {SRD}, s{T0} sc1"); e("s_mov_b64 exec, -1")
        stamp(14)
    def bloads():
        for wt_ in range(o.w2e, 2): raw2(wt_)
        if o.rtb == 4: rowtouch(P_BW1)
        if not o.bin: raw1(P_BW1, RAW1B, "rb")
        else: srt(P_BW1, 0x600000)
    if not o.sf: gocheck(); flaga(); bloads()
    e(f"s_cmp_eq_u32 s{SW}, 0"); e(f"s_cselect_b32 s{T7}, 0, {OOR}")
    if o.gown: srt(P_DBG, 256); e(f"buffer_load_dword v250, v253, {SRT}, s{T7} offen sc1 ;@go2")
    mask64(mM0, 0x0001000100010001)
    mask64(mOWN0, sum(1 << l for l in range(64) if 4*(l >> 4) + (l & 1) <= (l & 15)))
    mask64(mOWN1, sum(1 << l for l in range(64) if 4*(l >> 4) + 2 + (l & 1) <= (l & 15)))
    e(f"s_lshl_b32 s{T1}, s{T6}, 7"); e(f"s_add_u32 s{sFXc}, s{T1}, {WS_FLAGX}")
    e(f"s_lshl_b32 s{T2}, s{SMEM}, 2"); e(f"s_add_u32 s{T1}, s{T1}, s{T2}"); e(f"s_add_u32 s{sFOp}, s{T1}, {WS_FLAGO}")
    e(f"s_lshl_b32 s{T1}, s{SRB}, 1"); e(f"s_add_u32 s{T1}, s{T1}, s{T4}"); e(f"s_lshl_b32 s{T1}, s{T1}, 7")
    e(f"s_add_u32 s{sFOc}, s{T1}, {WS_FLAGO}")
    e(f"s_lshl_b32 s{T2}, s{SCB}, 3"); e(f"s_lshl_b32 s{T0}, s{T3}, 2")
    e(f"s_add_u32 s{T1}, s{T1}, s{T2}"); e(f"s_add_u32 s{T1}, s{T1}, s{T0}"); e(f"s_add_u32 s{sFXp}, s{T1}, {WS_FLAGX}")
    e(f"s_lshl_b32 s{T0}, s{SGRP}, 8"); e(f"s_add_u32 s{sZo}, s{T0}, s{sZP}")
    e(f"s_lshl_b32 s{T1}, s{T3}, 10"); e(f"s_lshl_b32 s{T2}, s{T4}, 19")
    e(f"s_add_u32 s{T1}, s{T1}, s{T2}"); e(f"s_add_u32 s{sCL2}, s{T1}, s{sHALO}")
    e(f"s_cmp_eq_u32 s{SW}, 3"); e(f"s_cselect_b32 s{sHst}, s{sHALO}, {OOR}")
    e(f"s_sub_u32 s{T1}, s{sHALO}, 0x10000"); e(f"s_cmp_eq_u32 s{SW}, 0"); e(f"s_cselect_b32 s{T1}, s{T1}, {OOR}")
    e(f"s_cmp_eq_u32 s{SGRP}, 0"); e(f"s_cselect_b32 s{sHld}, {OOR}, s{T1}")
    e(f"s_lshl_b32 s{T0}, s{SGRP}, 2"); e(f"s_lshl_b64 {sm(mX)}, {255 if o.sx else 15}, s{T0}"); e(f"s_or_b32 s{mX}, s{mX}, s{mX+1}"); e(f"s_mov_b32 s{mX+1}, 0")
    e(f"s_sub_u32 s{T0}, s{sFOp}, s{sFOc}"); e(f"s_lshr_b32 s{T1}, s{T0}, 2"); e(f"s_lshl_b32 s{T1}, 1, s{T1}"); e(f"s_cmp_lt_u32 s{T0}, 128"); e(f"s_cselect_b32 s{T1}, s{T1}, 0")
    e(f"s_andn2_b32 s{mEO}, {(1 << (o.g2depth - 1)) - 1 if o.lazy & 2 else -1}, s{T1}"); e(f"s_mov_b32 s{mEO+1}, 0")
    e(f"s_sub_u32 s{T0}, s{sFXp}, s{sFXc}"); e(f"s_lshr_b32 s{T1}, s{T0}, 2"); e(f"s_lshl_b32 s{T1}, 1, s{T1}"); e(f"s_cmp_lt_u32 s{T0}, 128"); e(f"s_cselect_b32 s{T1}, s{T1}, 0")
    e(f"s_andn2_b32 s{mEX}, {'s%d' % mX if o.lazy & 1 else -1}, s{T1}"); e(f"s_mov_b32 s{mEX+1}, 0")
    e(f"s_lshl_b32 s{sL8}, s{SW}, 11"); e(f"s_lshl_b32 s{sW2l}, s{SW}, 12")
    e(f"s_or_b32 s{T0}, s{SGRP}, s{SW}"); e(f"s_cmp_eq_u32 s{T0}, 0"); e(f"s_cselect_b64 {sm(mFIRST)}, -1, 0")
    e(f"v_add_u32 v{vL64}, 0x10000, v{vL16}"); e(f"v_add_u32 v{vL128}, 0x20000, v{vL16}"); e(f"v_add_u32 v{vLW3}, {(3-o.nopf)*SLOT}, v{vLW}")
    e(f"v_and_b32 v{vFP}, 31, v254"); e(f"v_lshlrev_b32 v{vFP}, 2, v{vFP}")
    e(f"s_lshl_b32 s{T1}, s{T6}, 17"); e(f"v_add_u32 v{vA}, s{T1}, v{vL16}")
    for i in range(1, 4): e(f"v_add_u32 v{vA+i}, {i*0x8000}, v{vA}")
    e(f"s_lshl_b32 s{T1}, s{T6}, 9"); e("v_lshrrev_b32 v213, 5, v254"); e(f"v_lshl_add_u32 v{vSTl}, v213, 17, s{T1}"); e(f"v_lshl_add_u32 v{vSTl}, v{vFP}, 2, v{vSTl}")
    e(f"s_lshl_b32 s{T1}, s{SCB}, 17"); e(f"s_add_u32 s{T1}, s{T1}, s{sLW}"); e(f"v_add_u32 v{vW2}, s{T1}, v{vL16}")
    e("v_lshrrev_b32 v203, 4, v254"); e("v_xor_b32 v204, v203, v201"); e("v_lshlrev_b32 v204, 3, v204"); e("v_lshl_add_u32 v208, v200, 5, v204")
    e(f"s_lshl_b32 s{T2}, s{SW}, 12")
    e(f"v_lshrrev_b32 v204, 2, v{VM}"); e("v_xor_b32 v203, v203, v204"); e("v_lshlrev_b32 v203, 3, v203")
    e(f"v_lshl_add_u32 v203, v{VM}, 5, v203"); e(f"v_add_u32 v{vXW}, s{T2}, v203")
    e(f"s_lshl_b32 s{T0}, s{T4}, 14"); e(f"s_lshl_b32 s{T1}, s{T3}, 9"); e(f"s_add_u32 s{T2}, s{T0}, s{T1}"); e(f"v_add_u32 v{vE0}, s{T2}, v208")
    e(f"v_xor_b32 v{vE1}, 512, v{vE0}"); e(f"s_add_u32 s{T1}, s{T1}, {VB_LDS}"); e(f"v_add_u32 v{vVr}, s{T1}, v208")
    if o.kt:
        e(f"s_lshl_b32 s{T0}, s{SW}, 12"); e(f"v_add_u32 v{vXW}, s{T0}, v{vL16}")
        e(f"s_lshl_b32 s{T0}, s{SW}, 10"); e(f"s_add_u32 s{T0}, s{T0}, {VB_LDS}"); e(f"v_add_u32 v{vE0}, s{T0}, v{vL16}")
        e(f"s_lshl_b32 s{T0}, s{SW}, 8"); e(f"s_add_u32 s{T0}, s{T0}, {M_ZX}"); e(f"v_lshl_add_u32 v203, v201, 6, v{vG16}"); e(f"v_add_u32 v{vE1}, s{T0}, v203")
        e(f"s_lshl_b32 s{T0}, s{SW}, 6"); e(f"s_add_u32 s{T0}, s{T0}, {M_ZX}"); e(f"v_lshl_add_u32 v203, v201, 8, v{vG16}"); e(f"v_add_u32 v{vVr}, s{T0}, v203")
    e(f"s_lshl_b32 s{T1}, s{T3}, 3")
    e(f"v_add_u32 v{vGM}, {M}, v{vG16}")
    e(f"s_lshl_b32 s{T0}, s{T4}, 6"); e(f"s_add_u32 s{T0}, s{T0}, s{T1}"); e(f"v_add_u32 v{vZW}, s{T0}, v{vGM}")
    e(f"s_lshl_b32 s{T0}, s{SW}, 10"); e(f"s_add_u32 s{T0}, s{T0}, {M_KX}"); e(f"v_add_u32 v{vKX}, s{T0}, v{vL16}")
    e(f"v_add_u32 v{vKX0}, s{T1}, v{vKX}"); e(f"v_xor_b32 v{vKX1}, 8, v{vKX0}")
    e(f"s_lshl_b32 s{T0}, s{SW}, 9"); e(f"s_add_u32 s{T0}, s{T0}, {M_ST}")
    e(f"v_lshl_add_u32 v203, v213, 2, s{T0}"); e(f"v_lshl_add_u32 v{vSW}, v{vFP}, 1, v203"); e(f"v_lshl_add_u32 v{vSR}, v{VM}, 2, s{T0}")
    e(f"v_add_u32 v{vSQ}, s{T0}, v{vG16}"); e(f"v_lshlrev_b32 v203, 2, v{VM}"); e(f"v_add_u32 v{vCV}, {M_CS}, v203")
    e(f"v_and_b32 v203, 7, v{VM}"); e(f"v_lshl_add_u32 v{vZL}, v203, 8, v{vG16}")
    e("v_mov_b32 v203, 0xffff"); e("v_mov_b32 v204, 0xffff0000"); e(f"v_cndmask_b32 v203, v203, v204, {sm(mPAR)}")
    e(f"v_cndmask_b32 v{MO0}, 0, v203, {sm(mOWN0)}"); e(f"v_cndmask_b32 v{MO1}, 0, v203, {sm(mOWN1)}")
    e(f"v_xor_b32 v{MP0}, v203, v{MO0}"); e(f"v_xor_b32 v{MP1}, v203, v{MO1}")
    e(f"s_add_u32 s{T2}, s{SW}, 4"); e(f"s_min_u32 s{T2}, s{T2}, 5"); e(f"s_mul_i32 s{T0}, s{SMEM}, 12288"); e(f"s_add_u32 s{T0}, s{T0}, {WS_CS}")
    e(f"s_lshl_b32 s{T1}, s{SW}, 11"); e(f"s_add_u32 s{sCSa}, s{T0}, s{T1}"); e(f"s_lshl_b32 s{T1}, s{T2}, 11"); e(f"s_add_u32 s{sCSb}, s{T0}, s{T1}")
    e("v_bfe_u32 v203, v254, 4, 1"); e("v_lshlrev_b32 v203, 3, v203"); e("v_lshl_add_u32 v203, v213, 2, v203"); e("v_lshl_add_u32 v203, v201, 4, v203"); e(f"v_add_u32 v203, {M_CS}, v203")
    e(f"s_lshl_b32 s{T1}, s{SW}, 6"); e(f"v_add_u32 v{vCSa}, s{T1}, v203"); e(f"s_lshl_b32 s{T1}, s{T2}, 6"); e(f"v_add_u32 v{vCSb}, s{T1}, v203")
    e(f"s_lshl_b32 s{T0}, s{SMEM}, 2"); e(f"s_add_u32 s{T0}, s{T0}, s{SW}"); e(f"s_lshl_b32 s{T2}, s{T0}, 7"); e(f"v_mov_b32 v{vCPF}, s{T2}")
    e(f"s_lshr_b32 s{T1}, s{T0}, 3"); e(f"s_and_b32 s{T0}, s{T0}, 7")
    e(f"s_lshl_b32 s{T2}, s{SGRP}, 4"); e(f"s_add_u32 s{T1}, s{T1}, s{T2}"); e(f"s_lshl_b32 s{T1}, s{T1}, 15"); e(f"s_lshl_b32 s{T0}, s{T0}, 9"); e(f"s_add_u32 s{T0}, s{T0}, s{T1}")
    e(f"v_lshl_add_u32 v{vTCH}, v{vG16}, 3, s{T0}")
    for r in range(4): e(f"v_accvgpr_write_b32 a{252+r}, -1")
    def clears():
        e(f"v_mov_b32 v{vVal}, 0"); e(f"s_add_u32 s{T0}, s{sKV}, s{ROTA}")
        e(f"buffer_store_dwordx4 a[252:255], v{vL16}, {SRD}, s{T0} offen sc1")
        e(f"s_mov_b64 exec, {sm(mM0)}"); e(f"buffer_store_dwordx4 a[252:255], v{vG16}, {SRD}, s{sZo} offen sc1")
        e("s_mov_b64 exec, 1"); e(f"buffer_store_dword v{vVal}, off, {SRD}, s{sFOp} sc1"); e(f"buffer_store_dword v{vVal}, off, {SRD}, s{sFXp} sc1"); e("s_mov_b64 exec, -1")
    if not o.sf: clears()
    pl = [f"buffer_load_dword v212, v211, {SRD}, s{T7} offen sc1"]
    if o.apoll: pl = ["v_mov_b32 v212, -1", "s_mov_b32 exec_hi, 0xff", "v_mov_b32 v212, 0", f"buffer_atomic_or v212, v211, {SRD}, s{T7} offen sc0 sc1", "s_mov_b64 exec, -1"]
    W2T, vTRB = (160, 249) if o.sf else (224, 206)
    def w2tr(wt_):
        e(f"WAITV r2{wt_}")
        for b_ in range(2):
            for t in range(2):
                d_ = v(W2T+4*b_+2*t, 2) if wt_ == 0 else a(HW2+4*b_+2*t, 2)
                e(f"ds_read_b64_tr_b16 {d_}, v{vTRB} offset:{2*SLOT + wt_*2048 + t*256 + b_*8}")
    def w2ast():
        e("s_waitcnt lgkmcnt(0)")
        for b_ in range(2): e(f"buffer_store_dwordx4 {v(W2T+4*b_,4)}, v{vL16}, {SRD}, s{sW2s} offen offset:{b_*1024} sc1 ;@b1")
    def retb():
        for blk in range(6):
            for t in range(2): e(f"ds_read_b64_tr_b16 {a(RB+4*blk+2*t,2)}, v{vTRB} offset:{SLOT + (blk>>1)*2048 + t*256 + (blk&1)*8} ;@r{blk}")
        for blk in range(6):
            e(f"WAITL r{blk}")
            e(f"{MF} {a(HCS,4)}, {a(RB+4*blk,4)}, {v(SB+4*blk,4)}, {'0' if blk == 0 else a(HCS,4)}")
    if o.sf:
        assert o.w2e >= 1 and not o.bin and not o.gown and not o.apoll
        e(f"s_lshl_b32 s{T0}, s{SGRP}, 7"); e(f"s_add_u32 s{T0}, s{T0}, {WS_FLAGB + 2048}"); e(f"v_add_u32 v211, s{T0}, v{vFP}")
        e("v_mov_b32 v249, v206")
        stamp(44)
        e(pl[0] + " ;@poll")
        w2tr(0); e("s_waitcnt lgkmcnt(0)")
    elif o.bin:
        w2tr(0); w2ast()
        e("v_mov_b32 v248, v202"); e(f"v_subrev_u32 v249, {RAW1A}, v206")
        stamp(44)
        E([t + (" ;@poll" if t.startswith("buffer") else "") for t in pl])
        w2tr(1); e("s_waitcnt lgkmcnt(0)")
    else:
        e("WAITV rb")
        if o.gown:
            e(f"s_cmp_eq_u32 s{SW}, 0"); e(f"s_cselect_b32 s{T0}, 1, 0"); e("WAITV go2"); e("s_waitcnt lgkmcnt(0)"); e(f"v_cmp_ne_u32 vcc, s{T0}, v250")
            E(retry([f"buffer_load_dword v250, v253, {SRT}, 0 offen sc1"], ["v_cmp_ne_u32 vcc, 1, v250"]))
        stamp(44)
        E([t + (" ;@poll" if t.startswith("buffer") else "") for t in pl])
        w2tr(0); w2tr(1); w2ast()
        retb()
    if not o.sf: e(f"v_mov_b32 v{vVal}, 1")
    stamp(45)
    e("WAITV poll")
    e(f"s_cmp_lg_u32 s{SW}, 0"); e("s_cbranch_scc1 L_faok")
    A.track = False
    e("v_cmp_eq_u32 vcc, 0, v212"); e("s_cbranch_vccz L_fad")
    spin(([f"s_sleep {o.psl}"] if o.psl else []) + pl, ["v_cmp_eq_u32 vcc, 0, v212"])
    A.label("L_fad")
    e(f"v_cmp_ne_u32 {sm(T1)}, s{SXCC}, v212"); e(f"v_mov_b32 v212, s{T1}")
    e(f"ds_write_b32 v{vGM}, v212"); e("s_waitcnt lgkmcnt(0)")
    A.track = True
    A.label("L_faok")
    if o.sf: flaga()
    else: e("s_barrier")
    stamp(15)
    e(f"ds_read_b32 v{FBV}, v{vGM} ;@mode")

    for lay in range(o.last + 1):
        par = lay & 1; early = lay < 2; li = lay >> 1; last = lay == o.last
        A.label(f"L_layer{lay}")
        if lay == o.dlay:
            for j in range(o.dn): e("s_sleep 127")
        stamp(0)
        pool = list(range(RING, 240 - 48*o.NRES, 4))
        if lay == 0: pool += [RS(1, k) + 4*j for k in range(1, o.NRES + 1) for j in range(6)]
        if lay >= 2: pool += [RS(0, k) + 4*j for k in range(o.NRES + 1) for j in range(6)] + [240, 244, 248, 252]
        nd = (o.ND0, 0, o.ND2, 0)[lay]; TB = o.TB if par else 0
        LAF = 4*(o.LA0, o.LAB, o.LA2, o.LA3)[lay]; NF = max(4*nd, LAF + 4)
        assert NF + 2*nd - 2 <= len(pool) and o.kq and not o.kt
        gpos = o.gpos if lay == 0 else o.gpos2
        vn = par or o.kt
        TA = (o.TA0, 0, o.TA2, 0)[lay]
        assert TA % 2 == 0 and TA <= nd
        sxi = lay > 0 and o.sx >> (lay-1) & 1
        sxo = not last and o.sx >> lay & 1
        TS = o.TS if sxi else 0
        units = [([(st, c) for c in range(6)], bl, k) for bl, k in (((0, 2), "S"), ((1, 3), "R")) for st in range(TS)]
        units += [([(st, c) for c in range(2 if st >= 32 - nd else 0, 6)], (0, 1, 2, 3), "") for st in range(TS, 32 - TB - TA)]
        units += [([(st, c) for c in range(6)], bl, k) for bl, k in (((2, 3), "X"), ((0, 1), "Y")) for st in range(32 - TB, 32)]
        units += [([(st+j, c) for j in range(2) for c in cc], (0, 1, 2, 3), k) for cc, k in (((2, 3), "K"), ((4, 5), "V")) for st in range(32 - TA, 32, 2)]
        anext = []
        for gr, bl, k in units:
            for st, c in gr:
                anext += [(st, i) for i in bl if (st, i) not in anext]
        fidx = {k: n for n, k in enumerate(anext)}
        def afr(step, i): return a(pool[fidx[(step, i)] % NF], 4)
        def wq(step, c): return a(pool[NF + 2*(step - (33-nd)) + c], 4) if step > 32 - nd else v(WFV + 4*c, 4)
        def wreg(u, gi): return v(WFV + 4*(gi + 6 - len(units[u][0])), 4)
        def wrd(dst, step, c): return ldsrd(dst, ((step//4 + 1) % 6)*SLOT + (step % 4)*6144 + c*1024)
        def w1rd(u, gi): return wrd(wreg(u, gi), *units[u][0][gi]) + f" ;@w{u}_{gi}"
        wqq = [(st, c) for st in range(32 - nd, 32) for c in range(2)]
        def aload(step, i):
            return f"buffer_load_dwordx4 {afr(step, i)}, v{vA+i}, {SRD}, s{ROTA + step//4} offen offset:{(step%4)*1024} sc1 ;@A{step}_{i}"
        def mma(w, step, c, i):
            x, y = (afr(step, i), w) if (vn and c >= 4) else (w, afr(step, i))
            return f"{MF} {v(acc(c,i),4)}, {x}, {y}, {'0' if step == 0 else v(acc(c,i),4)}"
        def ostore(i, through):
            t = f"buffer_store_dwordx4 {v(224+4*i,4)}, v{vA+i}, {SRD}, s{sO} offen"
            if through: e(wt(t))
            else: st_mode([t])
        if lay == 0 and not o.sf:
            for c in range(6): e(w1rd(0, c))
        for j in range(4*o.APRE): e(aload(*anext.pop(0)))
        nbar = 0
        if lay == 0 and o.sf:
            bloads(); clears(); w2ast(); e(f"v_mov_b32 v{vVal}, 1")
            e(f"v_readfirstlane_b32 s{SMODE}, v{FBV}")
            for c in range(6): e(w1rd(0, c))
        elif lay == 0:
            for i in range(6): E(w1_piece(par, 1, i))
            e("WAITL mode"); e(f"v_readfirstlane_b32 s{SMODE}, v{FBV}")
        elif sxi:
            E(xcvt(1)); xtile(False, (1,))
            if lay == 1:
                for i in range(6): E(w1_piece(par, 1, i))
            while rslot and rslot[0] <= 2: e(rw.pop(0)); rslot.pop(0)
            e("s_waitcnt lgkmcnt(0)"); e("s_barrier")
            for c in range(6): e(w1rd(0, c))
        else:
            if o.lazy & 1: poll2(sFXc)
            e("s_waitcnt lgkmcnt(0)"); e("s_barrier")
            for c in range(6): e(w1rd(0, c))
        wr, w1s, w2r, w2s = (o.wrE, o.w1sE, o.w2E, o.w2sE) if early else (o.wrL, o.w1sL, o.w2L, o.w2sL)
        if par: w2r, w2s = (o.w2BE, o.w2sBE) if early else (o.w2BL, o.w2sBL)
        if lay == 3: wr = o.wrBL
        if lay == 0: wr, w1s = o.wr0, max(o.w1s0, o.sfu*o.sf)
        pend = [("W", st, i) for st in range(2 if early else 2 + o.NRES - o.nopf, 8) for i in range(6)] + [("W2", p, i) for p in range(4 + par) for i in range(6)]
        def allowed(p, t):
            if p[0] == "W" and p[1] == 5 and lay == 0 and o.bin and not ready("r5"): return False
            if p[0] == "W": return p[1] < 6 or nbar >= p[1] - 4
            return nbar >= p[1] + 4 and t >= w2s and (lay > 0 or fbdone[0])
        fbdone = [False]
        misc = [(max(o.s0 + o.sper*j, o.lazy & 1), [f"s_mov_b32 s{T0}, {WS_ST + j*16384}", f"buffer_load_dwordx4 {v(160+4*j,4)}, v{vSTl}, {SRD}, s{T0} offen sc1 ;@S{j}"]) for j in range(8)]
        extra = []
        extra2 = []; sh2 = []
        sh = []
        if sxi: sh += sum(([(1, None, [x + " ;@rs"]), (1, None, []), (1, None, [])] for x in rw), [])
        xok = [not sxi]
        if sxi: extra2 = [(o.sx0 + j*o.sxp/10, x[1]) for j, x in enumerate(misc)]; misc = []
        if early:
            for j in range(4):
                extra.append((4 + j, [f"buffer_load_dwordx4 {v(224+8*(j//2)+4*(j%2),4)}, v{vL16}, {SRD}, s{(sCSa, sCSb)[j%2]} offen offset:{(j//2)*1024} sc1 ;@CS{j}"]))
            d = 224
            r = [f"v_add_f32 v{d+j}, v{d+j}, v{d+8+j}" for j in range(8)]
            for s_ in (8, 4): r += [f"v_add_f32_dpp v{d+j}, v{d+j}, v{d+j} row_ror:{s_} row_mask:0xf bank_mask:0xf" for j in range(8)]
            r = [r[j:j+2] for j in range(0, len(r), 2)] + [[f"v_permlane32_swap_b32 v{d+j}, v{d+j+1}"] for j in range(0, 8, 2)]
            r += [[f"v_add_f32 v{d+j}, v{d+j}, v{d+j+1}", f"v_add_f32 v{d+j+2}, v{d+j+2}, v{d+j+3}"] for j in (0, 4)]
            r += [[f"v_permlane16_swap_b32 v{d}, v{d+2}"], [f"v_permlane16_swap_b32 v{d+4}, v{d+6}"], [f"v_add_f32 v{d}, v{d}, v{d+2}", f"v_add_f32 v{d+4}, v{d+4}, v{d+6}"],
                  ["s_mov_b32 exec_lo, 0x000f000f", "s_mov_b32 exec_hi, 0x000f000f", f"ds_write_b32 v{vCSa}, v{d} offset:{par*384}", f"ds_write_b32 v{vCSb}, v{d+4} offset:{par*384} ;@csw",
                   "s_mov_b64 exec, -1"], [f"s_add_u32 s{sCSa}, s{sCSa}, {CS_SZ}", f"s_add_u32 s{sCSb}, s{sCSb}, {CS_SZ}"]]
            caps = [[(8 + 4*k - 4*o.nopf, None, [f"ds_read_b128 {a(RS(par, k+1)+4*b_,4)}, v{vLW3} offset:{k*SLOT + b_*1024}"]) for b_ in range(6)] for k in range(o.NRES)]
            sh += (caps[0] if caps else []) + [(8, "CS3", x) for x in r] + sum(caps[1:], [])
        if lay == 0 and o.bin:
            rbl = [[f"s_mov_b32 s{T2}, m0", f"s_add_u32 m0, s{sLW}, {j*1024}", f"s_add_u32 s{T1}, s{T5}, {(j>>1)*2048 + (j&1)*16*6144}",
                    f"buffer_load_dwordx4 v248, {SRT}, s{T1} offen lds ;@rb{j}", f"s_mov_b32 m0, s{T2}"] for j in range(6)]
            extra2 = [(o.bs0 + j, x) for j, x in enumerate(rbl)]
            r = [[f"ds_read_b64_tr_b16 {a(RB+4*blk+2*t,2)}, v249 offset:{(blk>>1)*2048 + t*256 + (blk&1)*8} ;@r{blk}" for t in range(2)] for blk in range(6)]
            for blk in range(6):
                q_ = 240 + 4*(blk & 1); mk = 0x00010001 << blk
                r += [[f"s_mov_b32 s{T3}, {mk}", f"s_mov_b32 s{T4}, {mk}"]] + [[f"v_cndmask_b32 v{q_+j}, 0, v{ONES}, {sm(T3)}" for j in jj] for jj in ((0, 1), (2, 3))]
                r += [[f"WAITL r{blk}", f"{MF} {a(HCS,4)}, {a(RB+4*blk,4)}, {v(q_,4)}, {'0' if blk == 0 else a(HCS,4)}"]]
            sh = [x for x in sh if x[0] <= 8 and x[1] is None] + [(0, "rb5", x) for x in r[:6]] + [x for x in sh if not (x[0] <= 8 and x[1] is None)]
            sh2 = r[6:]
        if lay == 0:
            extra.insert(0, (4, fb_set(0)))
            extra.append((w2s - 8, [t + (" ;@F" if t.startswith("buffer") else "") for t in fb_body(0)]))
        dl = []
        if lay == 0:
            dl = [[f"s_add_u32 s{D2}, s{ROTW}, {WS_W1[1]}", f"s_add_u32 s{D4}, s{D2}, 4096", w1st(a(RB,4), 0, D2, D4)]] + [[w1st(a(RB+4*b_,4), b_, D2, D4)] for b_ in range(1, 6)]
            dl += [[f"s_add_u32 s{D1}, s{sW2s}, {WS_W2[1] - WS_W2[0]}", f"buffer_store_dwordx4 {a(HW2,4)}, v{vL16}, {SRD}, s{D1} offen sc1"],
                   [f"buffer_store_dwordx4 {a(HW2+4,4)}, v{vL16}, {SRD}, s{D1} offen offset:1024 sc1", f"s_add_u32 s{D1}, s{sCL0}, {CS_SZ}"] + csst(a(HCS,4), D1),
                   [f"buffer_store_dwordx4 a[252:255], v{vL16}, {SRD}, s{sCL2} offen sc1"],
                   [f"s_add_u32 s{D1}, s{sKV}, s{ROTA}", f"s_add_u32 s{D1}, s{D1}, 0x100000", f"buffer_store_dwordx4 a[252:255], v{vL16}, {SRD}, s{D1} offen sc1",
                    f"s_add_u32 s{D1}, s{sZo}, 0x10000", f"s_mov_b64 exec, {sm(mM0)}", f"buffer_store_dwordx4 a[252:255], v{vG16}, {SRD}, s{D1} offen sc1 ;@b2", "s_mov_b64 exec, -1"]]
        if dl and o.dg:
            assert not o.bin and not o.sf
            extra2 = [(o.dg0 + j_*o.dgp/10, x) for j_, x in enumerate(dl[:o.dg])]; dl = dl[o.dg:]
        def codepf(lbl): return [f"s_add_u32 s{T1}, s{sPC}, {lbl}-L_pc", f"s_addc_u32 s{T2}, s{sPC+1}, 0", f"global_load_dword v{vJUNK}, v{vCPF}, {sm(T1)}"]
        if o.cpf2: extra.append((o.cpf2, codepf(f"L_epi{lay}")))
        if o.cpf3 and not last: extra.append((o.cpf3, codepf("L_ool")))
        if lay > 0:
            for j_ in range(0 if (o.o4 and last) else o.of if par else o.of2): extra.append((o.ot0 + j_, [f"s_mov_b32 s{T1}, {WS_O + 4096*j_}", f"buffer_load_dword v{vJUNK}, v{vTCH}, {SRD}, s{T1} offen sc1"]))
            extra.sort(key=lambda x: x[0])
        r = []
        for st in (16, 8, 4):
            r += [[f"v_add_f32 v{160+j}, v{160+j}, v{160+j+st}", f"v_add_f32 v{161+j}, v{161+j}, v{161+j+st}"] for j in range(0, st, 2)]
        r += [["s_nop 0"], ["v_permlane32_swap_b32 v160, v162"], ["v_permlane32_swap_b32 v161, v163"], ["v_add_f32 v160, v160, v162", "v_add_f32 v161, v161, v163"],
              [f"v_mul_f32 v163, {f32hex(-1.0/1024)}, v160", f"v_mul_f32 v161, {f32hex(1.0/1024)}, v161"], ["v_fma_f32 v161, -v163, v163, v161", "v_max_f32 v161, 0, v161"],
              [f"v_add_f32 v161, {f32hex(1e-5)}, v161"], ["v_rsq_f32 v162, v161"], [f"ds_write2_b32 v{vSW}, v162, v163 offset0:0 offset1:64"]]
        r += [[f"ds_read2_b32 {v(STP+2*i,2)}, v{vSR} offset0:{16*i} offset1:{64+16*i}"] for i in range(4)]
        if vn: r += [[f"ds_read_b128 {v(224+16*j+4*i,4)}, v{vSQ} offset:{256*j + 64*i}"] for j in range(2) for i in range(4)]
        sh += [(0, "S7", x) for x in r]
        sh += [(0, "csbar", [f"ds_read_b128 {v(CSR+4*c,4)}, v{vGM} offset:{M_CS-M+par*384+c*64} ;@cs"]) for c in range(4 if vn else 6)]
        if vn: sh += [(0, "csbar", [f"ds_read2_b32 {v(CSR+16,2)}, v{vCV} offset0:{64+96*par} offset1:{80+96*par} ;@cs"])]
        for t_ in ["S7", "CS3", "F", "csw", "cs"] + [f"W{j}" for j in range(2, 8)]: A.seen.discard(t_)
        csbar = not early
        def ready(tag):
            if tag is None: return True
            if tag == "csbar": return csbar
            return tag in A.seen and not A.pending(tag)
        fix = {(cc, ii): [f"v_fmac_f32 v{acc(cc,ii)+j}, v{CSR+12+cc}, v{240+4*ii+j}" if vn and cc >= 4 else
                          f"v_fmac_f32 v{acc(cc,ii)+j}, v{CSR+4*cc+j}, v{STP+2*ii+1}" for j in range(4)] for cc in range(6) for ii in range(4)}
        fix["ci"] = [f"v_mul_f32 v{CI+ii}, {CK[par]}, v{STP+2*ii}" for ii in range(4)]
        ysh = []
        if par:
            VT = lambda db, i: 168 + 10*db + 2*(i+1)
            KP = 188
            def two(l): return [l[j:j+2] for j in range(0, len(l), 2)]
            def vcvt(i, d0, d1): return [f"v_cvt_pk_bf16_f32 v{d+h}, v{acc(4+db,i)+2*h}, v{acc(4+db,i)+2*h+1}" for db, d in enumerate((d0, d1)) for h in range(2)]
            def kmul(i): return [f"v_mul_f32 v{acc(c,i)+j}, v{acc(c,i)+j}, v{STP+2*i}" for c in (2, 3) for j in range(4)]
            def vmul(i): return [f"v_mul_f32 v{acc(c,i)+j}, v{acc(c,i)+j}, v{224+4*i+j}" for c in (4, 5) for j in range(4)]
            def kcvt(i): return cvt4l(acc(2,i), acc(2,i), acc(3,i))
            def qcvt(i): return cvt4l(acc(0,i), acc(0,i), acc(1,i))
            def sown(i): return f"{MF} {v(acc(3,i),4)}, {v(acc(2,i),4)}, {v(acc(0,i),4)}, 0"
            def sprev(i): return f"{MF} {v(acc(1,i),4)}, {v(acc(2,i-1) if i else KP,4)}, {v(acc(0,i),4)}, 0"
            def sel(i):
                so, sp, z = acc(3,i), acc(1,i), acc(5,i)
                r = [f"v_cndmask_b32 v{b}, v{b}, v{b+1}, {sm(mPAR)}" for b in (so, so+2, sp, sp+2)]
                if i == 0: r += [f"v_cndmask_b32 v{b}, v{b}, v217, {sm(mFIRST)}" for b in (sp, sp+2)]
                return r + [f"v_cndmask_b32 v{z}, v{sp}, v{so}, {sm(mOWN0)}", f"v_cndmask_b32 v{z+1}, v{sp+2}, v{so+2}, {sm(mOWN1)}", f"v_max_f32 v{z+2}, v{z}, v{z+1}"]
            def soft(blks):
                Z = [(acc(5,i), i) for i in blks]
                r = [f"v_sub_f32 v{z+h}, v{z+h}, v{z+2}" for z, i in Z for h in range(2)] + [f"v_mul_f32 v{z+h}, v{z+h}, v{CI+i}" for z, i in Z for h in range(2)]
                r += [f"v_exp_f32 v{z+h}, v{z+h}" for z, i in Z for h in range(2)] + [f"v_cvt_pk_bf16_f32 v{z+h}, v{z+h}, v{z+h}" for z, i in Z for h in range(2)]
                for z, i in Z: r += [f"v_and_b32 v{acc(4,i)+j}, v{z+(j&1)}, v{mk}" for j, mk in enumerate((MP0, MP1, MO0, MO1))]
                return r
            def pv(i): return [f"{MF} {v(acc(5,i),4)}, {v(ONES,4)}, {v(acc(4,i),4)}, 0"] + [f"{MF} {v(acc(1+2*db,i),4)}, {v(VT(db,i-1),4)}, {v(acc(4,i),4)}, 0" for db in range(2)]
            hl = [f"buffer_load_dwordx4 v[240:243], v{vL16}, {SRD}, s{sHld} offen sc1", f"buffer_load_dwordx4 v[244:247], v{vL16}, {SRD}, s{sHld} offen offset:1024 sc1"]
            z3 = acc(5,3)
            ysh += two(kmul(3) + kcvt(3)) + [[f"buffer_store_dwordx4 {v(acc(2,3),4)}, v{vL16}, {SRD}, s{sHst} offen sc1"]]
            ysh += two(vmul(3) + vcvt(3, 248, 250)) + [[f"buffer_store_dwordx4 v[248:251], v{vL16}, {SRD}, s{sHst} offen offset:1024 sc1"]]
            ysh += [[f"ds_write_b128 v{vKX}, {v(acc(2,3),4)} offset:1024"]] + two(vcvt(3, VT(0,3), VT(1,3)))
            ysh += [[f"ds_write_b128 v{vKX}, v[248:251] offset:{M_VX-M_KX+1024} ;@xw"]]
            ysh += two(kmul(2) + kcvt(2) + qcvt(3)) + [[sown(3)], [sprev(3)]] + two(vmul(2) + vcvt(2, VT(0,2), VT(1,2)))
            ysh += [["WAITL xw", "s_barrier"], [f"ds_read_b128 {v(KP,4)}, v{vKX}"]] + [[f"ds_read_b64 {v(VT(db,-1),2)}, v{vKX} offset:{M_VX-M_KX+8*db}"] for db in range(2)]
            ysh += two(sel(3)) + [[f"v_mov_b32 v{z3+3}, v{z3+2}"]] + two(qcvt(2))[:1] + [[f"v_permlane32_swap_b32 v{z3+2}, v{z3+3}"], [f"v_max_f32 v{z3+2}, v{z3+2}, v{z3+3}", f"v_mov_b32 v{z3+3}, v{z3+2}"]]
            ysh += two(qcvt(2))[1:] + [[f"v_permlane16_swap_b32 v{z3+2}, v{z3+3}"], [f"v_max_f32 v{z3+2}, v{z3+2}, v{z3+3}"], [sown(2)]]
            s3 = soft((3,))
            ysh += two(s3[:4]) + [s3[4:5], s3[5:6]] + two(s3[6:]) + [[f"v_mov_b32 v217, {f32hex(-3.0e38)}"]] + [[x] for x in pv(3)] + [[], []]
            ysh += [[f"v_rcp_f32 v{z3}, v{z3}"]] + two([f"v_mul_f32 v{acc(1+2*db,3)+j}, v{acc(1+2*db,3)+j}, v{z3}" for db in range(2) for j in range(4)] + cvt4l(236, acc(1,3), acc(3,3)))
            ysh += [lambda: ostore(3, o.oall or (o.o4 and last))]
            ysh.insert(len(ysh) - o.hpos, [hl[0]]); ysh.insert(len(ysh) - o.hpos, [hl[1] + " ;@hl"])
        def trees(c0, MX, MN):
            r = []
            for i in (3, 2, 1, 0):
                p0, p1 = acc(c0,i), acc(c0+1,i)
                for op, op2, d in (("v_max3_f32", "v_max_f32", MX+i), ("v_min3_f32", "v_min_f32", MN+i)):
                    r += [f"{op} v{d}, v{p0}, v{p0+1}, v{p0+2}", f"{op} v{d}, v{d}, v{p0+3}, v{p1}", f"{op} v{d}, v{d}, v{p1+1}, v{p1+2}", f"{op2} v{d}, v{d}, v{p1+3}"]
            return r
        def scal(MX, MN): return sum(([f"v_mul_f32 v{MX+i}, -v{MX+i}, v{CI+i}", f"v_mul_f32 v{MN+i}, v{MN+i}, v{CI+i}"] for i in range(4)), [])
        fdone = []
        if TA:
            assert not o.kt
            MX, MN = 168, 172
            r = trees(2, MX, MN); ysh += [[]] + [r[j:j+2] for j in range(0, len(r), 2)]
            r = xreduce([("v_max_f32", [MX, MX+1, MX+2, MX+3]), ("v_min_f32", [MN, MN+1, MN+2, MN+3])], True)
            while r:
                n_ = 1 if "permlane" in r[0] or len(r) < 2 or "permlane" in r[1] else 2
                ysh.append(r[:n_]); r = r[n_:]
            r = scal(MX, MN); ysh += [r[j:j+2] for j in range(0, len(r), 2)]
            for i in range(4):
                for fb in range(2):
                    for j in range(4):
                        x = acc(2+fb,i)+j
                        ysh.append(lambda i=i, fb=fb, j=j, x=x: (E([f"v_fma_f32 v{224+8*i+4*fb+j}, v{x}, v{CI+i}, v{MX+i}", f"v_fma_f32 v{x}, -v{x}, v{CI+i}, v{MN+i}"]), fdone.append((i, fb, j))))
        def Y():
            x = ysh.pop(0)
            if callable(x): x()
            else: E(x)
        credit = 0.5 if (lay == 1 and o.lazy & 1) else 0.0; t = 0.0; nbar = 0
        def waita(st, bl):
            assert not any((st, i) in anext for i in bl), (lay, st)
            e("WAITV " + " ".join(f"A{st}_{i}" for i in bl))
        for u, (gr, bl, kind) in enumerate(units):
            step = gr[0][0]; cs_ = [c for st, c in gr]
            half = len(bl) == 2; ng = len(gr); inY = kind in ("Y", "V")
            waita(step, bl)
            if lay == 0 and o.sf:
                pw = f"buffer_load_dword v{FBV}, v250, {SRD}, s{T7} offen sc1"
                if u == o.sfu - 1: e(pw + " ;@pw")
                if u == o.sfu:
                    e("WAITV pw rb"); e(f"s_cmp_lg_u32 s{SW}, 0"); e("s_cbranch_scc1 L_pwok")
                    A.track = False
                    e(f"v_cmp_eq_u32 vcc, 0, v{FBV}"); e("s_cbranch_vccz L_pwok"); spin([pw], [f"v_cmp_eq_u32 vcc, 0, v{FBV}"])
                    A.track = True
                    A.label("L_pwok"); e("s_barrier")
                    for i in range(6): E(w1_piece(par, 1, i))
                    e("s_waitcnt lgkmcnt(0)"); w2tr(1); e("s_waitcnt lgkmcnt(0)"); retb()
            if sxi:
                if u == o.f1: sig(sFXp, 2*lay, "xs1")
                if u == o.p1: poll2(sFXc)
                if u == o.c1: poll2chk(sFXc, 2*lay); xok[0] = True
            elif u == 1 and lay > 0 and o.lazy & 1:
                assert anext[0] <= (4, 0) and len(misc) == 8
                poll2chk(sFXc, 2*lay if o.sx else lay)
            if o.jit and u % 5 == 2: stamp(2)
            if o.g1prof and u == 0: stamp(2, 1)
            if u + 1 < len(units) and units[u+1][0][-1][0]//4 > nbar:
                nbar += 1
                assert not any(p[0] == "W" and p[1] <= nbar for p in pend), (lay, u)
                if f"W{nbar}" in A.seen: e(f"WAITV W{nbar}")
                if sxi and nbar == 2 and rw:
                    assert not any(" ;@rs" in y for x in sh for y in x[2]); e("WAITL rs")
                if lay == 0 and nbar == 1: assert not A.pending("b1")
                e("s_barrier")
                if ready("csw"): csbar = True
                if o.g1prof: stamp(2 + nbar, 1)
            if kind == "Y" and step == max(28, 32 - TB):
                e("s_barrier"); nbar = 8
            if inY or kind == "K": assert not sh and all(not x for x in fix.values()), (lay, len(sh), {k: len(x) for k, x in fix.items() if x})
            nslot = 3 if half else ng
            cur = fidx[(step, bl[0])]
            laf = 4*o.APRE if u == 0 else NF - 4 if (TA and t >= o.ramp) else LAF
            ahead = lambda n: n < len(anext) and fidx[anext[n]] < cur + len(bl) + laf and (xok[0] or fidx[anext[n]] < 2*TS)
            plan = []; na = nw = nm = 0
            while len(plan) < nslot and ahead(na) and na < len(bl):
                plan.append("A"); na += 1
            if t >= w1s: credit = min(credit + (wr if (pend and pend[0][0] == "W") else w2r) * len(bl) / 400.0, max(3.0, w2r/100.0))
            while len(plan) < nslot and nw < len(pend) and allowed(pend[nw], t) and credit >= 1:
                plan.append("W"); nw += 1; credit -= 1
            while len(plan) < nslot and nm < len(misc) and misc[nm][0] <= t and xok[0] and not (half and ahead(na)):
                plan.append("M"); nm += 1
            while len(plan) < nslot and ahead(na):
                plan.append("A"); na += 1
            oth = [p for p in plan if p != "A"]; aa = [p for p in plan if p == "A"]; plan = []
            while oth or aa:
                if aa: plan.append(aa.pop())
                if aa and len(aa) >= 2*len(oth): plan.append(aa.pop())
                if oth: plan.append(oth.pop(0))
            if half: plan = sum(([p, None] for p in plan), [])
            for gi, (st_, c) in enumerate(gr):
                vm = None
                if gi and st_ != gr[gi-1][0]: waita(st_, bl)
                for p, i in enumerate(bl if c % 2 == 0 else bl[::-1]):
                    if p == 0: e(f"WAITL w{u}_{gi}")
                    e(mma(wreg(u, gi), st_, c, i))
                    busy = False
                    if p == 0 and gi < len(plan) and plan[gi]:
                        k = plan[gi]
                        if k == "A": vm = [aload(*anext.pop(0))]
                        elif k == "W":
                            pc = pend.pop(0); vm = w1_piece(par, pc[1], pc[2]) if pc[0] == "W" else w2_piece(par, pc[1], pc[2])
                        else: vm = misc.pop(0)[1]
                        E(vm[:-1]); busy = len(vm) > 1
                    if p == (0 if half else 1) and vm: e(vm[-1]); busy = True
                    if p == len(bl) - 1:
                        busy = not half and kind != "V"
                        if u + 1 < len(units):
                            g2 = gi + len(units[u+1][0]) - ng
                            if g2 >= 0: e(w1rd(u+1, g2))
                            else: e(wrd(wq(*wqq[0]), *wqq.pop(0)))
                    if p == 2 and ng == 4 and wqq and wqq[0][0]//4 <= nbar and wqq[0][0] <= gr[-1][0] + (2 if kind else 1):
                        e(wrd(wq(*wqq[0]), *wqq.pop(0))); busy = True
                    if busy: continue
                    if inY and not (kind == "V" and p == 2 and gi == 3 and extra):
                        if ysh: Y()
                    elif p == (0 if half else 2) and gi == 3 and extra and extra[0][0] <= t: E(extra.pop(0)[1])
                    elif (p, gi) == ((0, 1) if half else (2, 0)) and extra2 and extra2[0][0] <= t and xok[0]: E(extra2.pop(0)[1])
                    elif p == 2 and lay == 0 and not fbdone[0] and ready("F"):
                        E(fb_cond + retry(fb_body(0), fb_cond)); fbdone[0] = True
                    elif sh:
                        if sh[0][0] <= t and ready(sh[0][1]): E(sh.pop(0)[2])
                        elif sh2 and ready("r5"): E(sh2.pop(0))
                    elif ready("cs"):
                        cc = cs_[(gi + ng//2) % ng]
                        cand = [(cc, ii) for ii in (3, 2, 1, 0)]
                        if step > 32 - nd: cand += [(c2, ii) for c2 in (0, 1) for ii in range(4)]
                        if half and step > 32 - TB: cand += [(c2, ii) for c2 in range(6) for ii in (0, 1)]
                        for k in cand + ["ci"]:
                            if fix[k]:
                                E(fix[k][:2]); fix[k] = fix[k][2:]; break
                        else:
                            if sh2: E(sh2.pop(0))
            t += len(bl) / 4
        assert not wqq and not anext and not misc and not sh and not extra and not extra2 and not sh2 and all(p[0] == "W2" for p in pend), (lay, pend, anext, misc, len(sh), extra)
        assert all(not x for x in fix.values()), (lay, {k: len(x) for k, x in fix.items()})
        assert lay > 0 or fbdone[0]
        left = [w2_piece(par, p[1], p[2]) for p in pend]
        lates = [w2_piece(par, 4, i) for i in range(6*(1-par))] + [w2_piece(par, 5, i) for i in range(2)]
        if o.verbose: print("layer", lay, "left", len(left), "ysh", len(ysh))
        A.label(f"L_epi{lay}")
        e("s_waitcnt lgkmcnt(0)"); e("s_barrier")
        stamp(1)
        qm = [mma(wq(step, c), step, c, i) for step in range(32-nd, 32) for c in range(2) for i in (range(4) if c == 0 else reversed(range(4)))]

        if par == 0:
            def feat_head(c0, tmp, hook=None):
                MX, MN = tmp, tmp+4
                if c0 == 2 and TA:
                    MX, MN = 168, 172
                    while ysh and (not callable(ysh[0]) or len(fdone) % 2): Y()
                    ysh.clear()
                else:
                    E(trees(c0, MX, MN))
                    if hook: hook()
                    xreduce([("v_max_f32", [MX, MX+1, MX+2, MX+3]), ("v_min_f32", [MN, MN+1, MN+2, MN+3])])
                    E(scal(MX, MN))
                for i in range(4):
                    for fb in range(2):
                        for h in range(2):
                            if c0 == 2 and (i, fb, 2*h) in fdone: continue
                            pk_fma(224+8*i+4*fb+2*h, acc(c0+fb,i)+2*h, CI+i, MX+i)
                            pk_fma(acc(c0+fb,i)+2*h, acc(c0+fb,i)+2*h, CI+i, MN+i, negx=True)
                if c0 == 2 and TA: hook()
            def feat_tail(c0, F, G_, S0, S1, post, mid=None, hooks={}):
                def norm_(i):
                    sq = S0 if i % 2 == 0 else S1
                    e(f"v_rcp_f32 v{184+2*i}, v{sq}"); e(f"v_rcp_f32 v{185+2*i}, v{sq+4}")
                    for r in range(0, 8, 2): pk_mul(224+8*i+r, 224+8*i+r, 184+2*i)
                    cvt4(F+4*i, 224+8*i, 224+8*i+4)
                    if post: e(post(i, 0))
                    for fb in range(2):
                        for h in range(2): pk_mul(acc(c0+fb,i)+2*h, acc(c0+fb,i)+2*h, 185+2*i)
                    cvt4(G_+4*i, acc(c0,i), acc(c0+1,i))
                    if post: e(post(i, 1))
                for i in range(4):
                    if i in hooks: hooks[i]()
                    for r in range(8): e(f"v_exp_f32 v{224+8*i+r}, v{224+8*i+r}")
                    for fb in range(2):
                        for r in range(4): e(f"v_exp_f32 v{acc(c0+fb,i)+r}, v{acc(c0+fb,i)+r}")
                    if 0 < i < 3: norm_(i-1)
                    sq = S0 if i % 2 == 0 else S1
                    cvt4(F+4*i, 224+8*i, 224+8*i+4); cvt4(G_+4*i, acc(c0,i), acc(c0+1,i))
                    e(f"{MF} {v(sq,4)}, {v(ONES,4)}, {v(F+4*i,4)}, 0"); e(f"{MF} {v(sq+4,4)}, {v(ONES,4)}, {v(G_+4*i,4)}, 0")
                if 4 in hooks: hooks[4]()
                if mid: mid()
                norm_(2)
                if 5 in hooks: hooks[5]()
                norm_(3)
            if o.kt:
                allp = left + lates; nk = max(0, len(left) + o.kl); left, lates = allp[:nk], allp[nk:]
            dl2 = dl[o.dk:]; dl = dl[:o.dk]; mix = []
            for j_ in range(max(len(left), len(dl))): mix += left[j_:j_+1] + dl[j_:j_+1]
            per = o.aper0 if dl else o.aper
            A.bgset(mix, per, per)
            SEL = 160 if o.kt else 128
            def mksel():
                e(f"s_andn2_b64 {sm(T1)}, {sm(mDIAG)}, {sm(mB1)}"); e(f"s_and_b64 {sm(T3)}, {sm(mDIAG)}, {sm(mB1)}")
                e(f"v_or_b32 v{SEL}, v{MO0}, v{MP0}"); e(f"v_and_b32 v{SEL}, v{SEL}, v{ONES}")
                e(f"v_cndmask_b32 v{SEL+2}, 0, v{SEL}, {sm(T1)}"); e(f"v_cndmask_b32 v{SEL+3}, 0, v{SEL}, {sm(T3)}")
                for r in (0, 1, 4, 5): e(f"v_mov_b32 v{SEL+r}, 0")
            if o.kt:
                def vprep():
                    for db in range(2):
                        for i in range(4):
                            for h in range(2): e(f"v_pk_mul_f32 {v(acc(4+db,i)+2*h,2)}, {v(acc(4+db,i)+2*h,2)}, {v(224+4*i+2*h,2)}")
                        for p in range(2): cvt4(acc(4+db,2*p), acc(4+db,2*p), acc(4+db,2*p+1))
                    mksel()
                feat_head(2, 208, vprep)
                TT = lambda t, fb, i: 224+8*i+4*fb if t == 0 else acc(2+fb, i)
                FF = lambda t, i: 192+8*(i%2)+4*t
                SS = lambda t, i: 176+8*(i%2)+4*t
                ET = lambda t, fb: 132+16*t+8*fb
                KV = lambda t, fb, db: TT(t, fb, db)
                ZZ = lambda t, fb: (168, 208)[t] + 4*fb
                def ex(i): return [f"v_exp_f32 v{TT(t,fb,i)+r}, v{TT(t,fb,i)+r}" for t in range(2) for fb in range(2) for r in range(4)]
                def tr(i):
                    for t in range(2): cvt4(FF(t,i), TT(t,0,i), TT(t,1,i))
                    r = []
                    for t in range(2):
                        r += [f"{MF} {v(SS(t,i),4)}, {v(FF(t,i),4)}, {v(ONES,4)}, 0"] + [f"{MF} {v(TT(t,fb,i),4)}, {v(FF(t,i),4)}, {v(SEL+2-2*fb,4)}, 0" for fb in range(2)]
                    return r
                def ecv(i, t): return [f"v_cvt_pk_bf16_f32 v{ET(t,fb)+2*(i%2)+h}, v{TT(t,fb,i)+2*h}, v{TT(t,fb,i)+2*h+1}" for fb in range(2) for h in range(2)]
                def nrm(i, ms=[]):
                    mix2(list(ms), [f"v_rcp_f32 v{SS(t,i)+r}, v{SS(t,i)+r}" for t in range(2) for r in range(4)], 1)
                    for t in range(2):
                        for fb in range(2):
                            for h in range(2): e(f"v_pk_mul_f32 {v(TT(t,fb,i)+2*h,2)}, {v(TT(t,fb,i)+2*h,2)}, {v(SS(t,i)+2*h,2)}")
                def kvm(p, t):
                    r = [f"{MF} {v(KV(t,fb,db),4)}, {v(ET(t,fb),4)}, {v(acc(4+db,2*p),4)}, {v(KV(t,fb,db),4) if p else 0}" for db in range(2) for fb in range(2)]
                    return r + [f"{MF} {v(ZZ(t,fb),4)}, {v(ET(t,fb),4)}, {v(ONES,4)}, {v(ZZ(t,fb),4) if p else 0}" for fb in range(2)]
                def mix2(ms, fs, n):
                    while ms or fs:
                        if ms: e(ms.pop(0))
                        E(fs[:n]); fs = fs[n:]
                E(ex(0))
                mix2(tr(0), ex(1), 1); nrm(0); E(ecv(0,0) + ecv(0,1))
                mix2(tr(1), ex(2), 1); nrm(1); E(ecv(1,0) + ecv(1,1))
                k0 = kvm(0,0) + kvm(0,1)
                mix2(tr(2) + k0[:10], ex(3), 1)
                nrm(2, k0[10:] + tr(3)); E(ecv(2,0) + ecv(2,1)); nrm(3); E(ecv(3,0) + ecv(3,1)[:2])
                A.bgflush()
                def fr(t, db): return cvt4l(192+8*t+4*db, KV(t,0,db), KV(t,1,db)) + [f"ds_write_b128 v{vXW}, {v(192+8*t+4*db,4)} offset:{VB_LDS + (2*t+db)*1024}"]
                mix2(kvm(1,0), ecv(3,1)[2:], 1)
                m1 = kvm(1,1); E(m1[:2]); mix2(m1[2:], fr(0,0) + fr(0,1), 2)
                E(fr(1,0))
                for r in range(4): e(f"v_cndmask_b32 v{168+r}, v{168+r}, v{172+r}, {sm(mPAR)}")
                E(fr(1,1))
                for r in range(4): e(f"v_cndmask_b32 v{208+r}, v{208+r}, v{212+r}, {sm(mPAR)}")
                for r in range(4): e(f"v_cndmask_b32 v{168+r}, v{168+r}, v{208+r}, {sm(mB1)}")
                e(f"ds_write_b128 v{vE1}, v[168:171]")
                e(f"s_add_u32 s{T2}, s{sKV}, s{ROTA}")
                for j in range(2): e(qm.pop(0))
                e("s_waitcnt lgkmcnt(0)"); e("s_barrier")
                stamp(2)
                for j in range(4): e(f"ds_read_b128 {v(96+4*j,4)}, v{vE0} offset:{j*4096} ;@kf{j}")
                e(f"ds_read_b128 v[200:203], v{vVr} ;@kz")
                for j in range(3): e(qm.pop(0))
                for j in range(4):
                    e(f"WAITL kf{j}")
                    for fb in range(2): e(f"{MF} {v(168+4*fb,4)}, {v(SEL+2-2*fb,4)}, {v(96+4*j,4)}, {v(168+4*fb,4) if j else 0}")
                e("WAITL kz")
                for qp in ("[1,0,3,2]", "[2,3,0,1]"):
                    for r in range(4): e(f"v_add_f32_dpp v{200+r}, v{200+r}, v{200+r} quad_perm:{qp} row_mask:0xf bank_mask:0xf")
                cvt4(192, 168, 172)
                e(f"buffer_store_dwordx4 v[192:195], v{vL16}, {SRD}, s{T2} offen sc1"); e(qm.pop(0))
                E([f"s_mov_b64 exec, {sm(mM0)}", f"buffer_store_dwordx4 v[200:203], v{vG16}, {SRD}, s{sZo} offen sc1", "s_mov_b64 exec, -1"])
            else:
                def vall():
                    for i in range(4):
                        for b in range(2):
                            for h in range(2): pk_mul(acc(4+b,i)+2*h, acc(4+b,i)+2*h, STP+2*i)
                        cvt4(acc(4,i), acc(4,i), acc(5,i))
                        e(xw(acc(4,i), VB_LDS//1024 + i))
                feat_head(2, 168, vall)
                feat_tail(2, 200, 144, 168, 176, lambda i, sg: xw((200 if sg == 0 else 144)+4*i, 24 + 16*sg + i))
                A.bgflush()
                e(f"s_add_u32 s{T2}, s{sKV}, s{ROTA}")
                e("s_waitcnt lgkmcnt(0)"); e("s_barrier")
                stamp(2)
                def kvreads(p):
                    b = 96 + 16*(p % 4); r = []
                    for t in range(2):
                        r += [f"ds_read_b64_tr_b16 {v(b+2*t,2)}, v{vE0} offset:{SLOT + (2*p+t)*1024}", f"ds_read_b64_tr_b16 {v(b+8+2*t,2)}, v{vVr} offset:{(2*p+t)*1024} ;@ka{p}"]
                    return r + [f"ds_read_b64_tr_b16 {v(b+4+2*t,2)}, v{vE1} offset:{SLOT + (2*p+t)*1024} ;@kb{p}" for t in range(2)]
                rd = sum((kvreads(p) for p in range(8)), [])
                E(rd[:14]); rd = rd[14:]
                for j in range(4 if o.kq else 2): e(qm.pop(0))
                for p in range(8):
                    b = 96 + 16*(p % 4); z_ = p == 0
                    e(f"WAITL ka{p}")
                    e(f"{MF} v[168:171], {v(b,4)}, {v(b+8,4)}, {'0' if z_ else 'v[168:171]'}"); E(rd[0:2])
                    e(f"{MF} v[200:203], {v(b,4)}, {v(ONES,4)}, {'0' if z_ else 'v[200:203]'}"); E(rd[2:4])
                    e(f"WAITL kb{p}")
                    e(f"{MF} v[172:175], {v(b+4,4)}, {v(b+8,4)}, {'0' if z_ else 'v[172:175]'}"); E(rd[4:6]); rd = rd[6:]
                cv = cvt4l(192, 168, 172)
                zst = [f"s_mov_b64 exec, {sm(mM0)}", f"buffer_store_dwordx4 v[200:203], v{vG16}, {SRD}, s{sZo} offen sc1", "s_mov_b64 exec, -1"]
                kst = f"buffer_store_dwordx4 v[192:195], v{vL16}, {SRD}, s{T2} offen sc1"
                if o.kq:
                    for j in range(2): e(qm.pop(0))
                    e("s_barrier")
                    for j in range(2): e(qm.pop(0))
                    E(cv[:2]); e(qm.pop(0)); E(cv[2:]); e(qm.pop(0))
                    e(kst); e(qm.pop(0)); E(zst)
                else:
                    e(qm.pop(0)); E(cv); e(kst); e(qm.pop(0)); E(zst); e("s_barrier")
            stamp(3)
            A.bgset(lates, o.aper2, 0)
            E(qm)
            def g1(p): return [f"s_add_u32 s{T0}, s{sKV}, s{ROTA+1+p}", f"buffer_load_dwordx4 {v(96+4*p,4)}, v{vL16}, {SRD}, s{T0} offen sc1 ;@g{p}"]
            gz = f"buffer_load_dwordx4 v[192:195], v{vZL}, {SRD}, s{sZP} offen sc1 ;@gz"
            def gather():
                A.bgflush()
                if o.zf: e(gz)
                for p in range(7): E(g1(p))
                if not o.zf: e(gz)
                A.bgset(dl2, o.aper3, 0)
            if gpos == 0: gather()
            feat_head(0, 196, gather if gpos == 1 else None)
            qmid = None if o.kt else mksel
            feat_tail(0, 204, 136, 152, 176, None, qmid, {gpos - 2: gather})
            A.bgflush()
            nafter = A.after("g6" if o.zf else "gz")
            stamp(4)
            e(f"s_mov_b32 s{sTMO}, {LIM}")
            def kvw():
                cvt4(196, 168, 172)
                if o.kt: e(f"ds_write_b128 v{vKX}, v[196:199]")
                else: e(f"ds_write_b64 v{vKX0}, v[196:197]"); e(f"ds_write_b64 v{vKX1}, v[198:199]")
            def zred(mid=None):
                for s_ in (4, 2, 1):
                    for r in range(4): e(f"v_add_f32_dpp v{192+r}, v{192+r}, v{192+r} row_ror:{s_} row_mask:0xf bank_mask:0xf")
                    if s_ == 2 and mid: mid()
                e("v_cvt_pk_bf16_f32 v192, v192, v193"); e("v_cvt_pk_bf16_f32 v193, v194, v195")
                e(f"s_mov_b64 exec, {sm(mM0)}"); e(f"ds_write_b64 v{vZW}, v[192:193] offset:{M_ZF-M}"); e("s_mov_b64 exec, -1")
            for p in ([7] + list(range(7)) if o.zf else range(8)):
                r0 = 96+4*p if p < 7 else 192; L = f"{lay}_{p}"
                e(f"WAITV g{p if p < 7 else 'z'}")
                A.label(f"L_kvc{L}")
                e(f"v_cmp_eq_u32 vcc, -1, v{r0}"); e(f"s_cbranch_vccnz L_kvs{L}")
                A.label(f"L_kvo{L}")
                if p < 7:
                    e(f"{MF} v[168:171], {v(SEL+2,4)}, {v(r0,4)}, v[168:171]"); e(f"{MF} v[172:175], {v(SEL,4)}, {v(r0,4)}, v[172:175]")
                elif o.zf: zred()
                def kvslow(p=p, L=L, nafter=nafter, g1=g1, gz=gz):
                    A.label(f"L_kvs{L}")
                    e(f"s_sub_u32 s{sTMO}, s{sTMO}, 1"); e(f"s_cbranch_scc1 L_kvt{L}")
                    if o.ksl: e(f"s_sleep {o.ksl}")
                    e(f"s_waitcnt vmcnt({nafter})")
                    if o.kgate:
                        e("v_mov_b32 v197, 0"); e("s_mov_b64 exec, 0xff"); e(f"buffer_atomic_or v197, v{vZL}, {SRD}, s{sZP} offen sc0 sc1"); e("s_mov_b64 exec, -1")
                        e("s_waitcnt vmcnt(0)"); e("v_cmp_eq_u32 vcc, -1, v197"); e(f"s_cbranch_vccnz L_kvs{L}")
                    for p2 in range(0 if (o.zf and p == 7) else p, 7):
                        if p2 != p: e(f"v_cmp_eq_u32 vcc, -1, v{96+4*p2}"); e(f"s_cbranch_vccz L_kvn{L}_{p2}")
                        E(g1(p2))
                        if p2 != p: A.label(f"L_kvn{L}_{p2}")
                    if p == 7 or not o.zf: e(gz)
                    e("s_waitcnt vmcnt(0)"); e(f"s_branch L_kvc{L}")
                    A.label(f"L_kvt{L}"); e(f"s_mov_b32 s{sTMO}, 0"); e(f"s_branch L_kvo{L}")
                ool.append(kvslow)
            if o.zf: kvw()
            else: zred(kvw)
            fb2 = lay == 0 and not A.pending("b2")
            e("s_waitcnt lgkmcnt(0)"); e("s_barrier")
            stamp(5)
            for t in range(2): e(f"ds_read_b128 {v(184+4*t,4)}, v{vGM} offset:{M_ZF-M + t*64} ;@zf")
            for j in range(4): e(ldsrd(v(168+4*j,4), M_KX + j*1024))
            if fb2: E(fb_set(1))
            if lay == 0: e(f"s_add_u32 s{sKV}, s{sKV}, 0x100000"); e(f"s_add_u32 s{sZP}, s{sZP}, 0x10000"); e(f"s_add_u32 s{sZo}, s{sZo}, 0x10000")
            e("WAITL zf")
            for t in range(2):
                for i in range(4): e(f"{MF} {v(64+4*i,4)}, {v(184+4*t,4)}, {v((204 if t == 0 else 136)+4*i,4)}, {'0' if t == 0 else v(64+4*i,4)}")
            e("s_waitcnt lgkmcnt(0)")
            def fin(i):
                r = [f"v_mul_f32 v{96+8*i+j}, v{96+8*i+j}, v{64+4*i}" for j in range(8)] + cvt4l(224+4*i, 96+8*i, 100+8*i)
                return [r[j:j+3] for j in range(0, 12, 3)]
            sc = [[f"v_add_f32 v{64+4*i}, {f32hex(1e-6)}, v{64+4*i}", f"v_rcp_f32 v{64+4*i}, v{64+4*i}"] for i in range(4)]
            fills = [[[]]*4, sc, fin(0), fin(1)]
            for i in range(4):
                for t in range(2):
                    for db in range(2):
                        d = v(96+8*i+4*db, 4)
                        e(f"{MF} {d}, {v(168+8*t+4*db,4)}, {v((204 if t == 0 else 136)+4*i,4)}, {'0' if t == 0 else d}")
                        E(fills[i][2*t+db])
                if i >= 2: ostore(i-2, o.oa or lay == 0)
            for i in (2, 3):
                for r in range(0, 8, 2): pk_mul(96+8*i+r, 96+8*i+r, 64+4*i)
                cvt4(224+4*i, 96+8*i, 100+8*i)
                ostore(i, o.oa or lay == 0)
        else:
            fb2 = True
            A.bgset(left + lates, o.bper, o.bper)
            while ysh: Y()
            for i in (1, 0):
                for c in (2, 3):
                    for h in range(2): pk_mul(acc(c,i)+2*h, acc(c,i)+2*h, STP+2*i)
            for i in (1, 0):
                for c in (4, 5):
                    for h in range(2): e(f"v_pk_mul_f32 {v(acc(c,i)+2*h,2)}, {v(acc(c,i)+2*h,2)}, {v(224+4*i+2*h,2)}")
            E(kcvt(1) + qcvt(1)); e(sprev(2)); E(kcvt(0)[:2]); e(sown(1)); E(kcvt(0)[2:] + qcvt(0)); e(sprev(1)); E(vcvt(1, VT(0,1), VT(1,1))[:2]); e(sown(0))
            E(vcvt(1, VT(0,1), VT(1,1))[2:] + vcvt(0, VT(0,0), VT(1,0)))
            E(sel(2))
            keep = A.bg; A.bg = []
            e("s_waitcnt lgkmcnt(0)")
            e(f"s_cmp_lg_u32 s{SW}, 0"); e(f"s_cbranch_scc1 L_halod{lay}")
            A.track = False
            hc = ["v_max_u32 v218, v240, v244", "v_cmp_eq_u32 vcc, -1, v218"]
            if A.pending("hl"): e(f"s_waitcnt vmcnt({A.after('hl')})")
            E(hc); e(f"s_cbranch_vccz L_halow{lay}")
            spin(hl, hc)
            A.label(f"L_halow{lay}")
            for r in range(4): e(f"v_mov_b32 v{KP+r}, v{240+r}"); e(f"v_mov_b32 v{VT(r//2,-1)+r%2}, v{244+r}")
            A.track = True
            A.label(f"L_halod{lay}")
            e(sprev(0))
            A.bg = keep
            stamp(2)
            if lay == 1: e(f"s_add_u32 s{sHst}, s{sHst}, 0x80000"); e(f"s_add_u32 s{sHld}, s{sHld}, 0x80000")
            E(sel(1)); E(sel(0))
            xreduce([("v_max_f32", [acc(5,i)+2 for i in range(4)])])
            E(soft((2, 1, 0)))
            A.bgflush()
            E(pv(2) + pv(1) + pv(0))
            for i in (2, 1, 0):
                e(f"v_rcp_f32 v{acc(5,i)}, v{acc(5,i)}")
                for db in range(2):
                    for h in range(2): pk_mul(acc(1+2*db,i)+2*h, acc(1+2*db,i)+2*h, acc(5,i))
                cvt4(224+4*i, acc(1,i), acc(3,i))
                ostore(i, o.oall or (o.o4 and last))

        stamp(6)
        pre = [f"v_mov_b32 v{vVal}, {lay+1}"]
        OB = WS_O
        if o.alias:
            OB = (WS_X, WS_O)[par]
            pre += [f"s_xor_b32 s{r}, s{r}, {WS_X ^ WS_O}" for r in [sO, sXs] + list(range(ROTA, ROTA+8))]
        for i in range(2):
            for kk in range(2):
                for r in range(4):
                    d = acc2(2*kk + (r >> 1), i) + 2*(r & 1); x = RES+8*i+4*kk+r
                    pre += [f"v_lshlrev_b32 v{d}, 16, v{x}", f"v_and_b32 v{d+1}, 0xffff0000, v{x}"]
        omask = (1 << (o.g2depth - 1)) - 1 if o.lazy & 2 else None
        if o.early & 2: handoff(sFOp, sFOc, lay+1, omask, mEO, pre, [])
        else:
            E(pre); signal(sFOp); stamp(7); poll(sFOc, lay+1, None, omask)
        stamp(8)
        W2F = RING; AF2 = RING + 32; GD = o.g2depth; T2_ = o.TG2 if sxo else o.TG
        assert AF2 + 8*GD <= 240 - 48*o.NRES
        gun = [(st, (0, 1)) for st in range(32 - T2_)] + [(st, (i,)) for i in range(2) for st in range(32 - T2_, 32)]
        bn = [(st, i) for st, bl in gun for i in bl]
        bidx = {k: n for n, k in enumerate(bn)}
        def bfr(step, i): return a(AF2 + 4*(bidx[(step, i)] % (2*GD)), 4)
        def w2rd(u, b):
            step = gun[u][0]
            return ldsrd(a(W2F + 16*(u % 2) + 4*b, 4), (step*4096 if step < 14 else 3*SLOT + (step-14)*4096) + b*1024) + f" ;@u{u}_{b}"
        cur4 = [-1]
        def bload(step, i):
            r = [f"s_mov_b32 s{sAo}, {OB + (step//4)*4096}"] if step//4 != cur4[0] else []
            cur4[0] = step//4
            return r + [f"buffer_load_dwordx4 {bfr(step, i)}, v{vB+i}, {SRD}, s{sAo} offen offset:{(step%4)*1024} sc1 ;@B{step}_{i}"]
        for j in range(min(o.bpos, 2*GD-2)):
            if o.lazy & 2 and j == o.p2pos: poll2(sFOc)
            E(bload(*bn.pop(0)))
        e("s_barrier")
        for st in range(2):
            for b in range(4): e(w2rd(st, b))
        while bn[0][0] < GD-1: E(bload(*bn.pop(0)))
        lv = [x for x in (o.lv1, o.lv2) if x] + [32]
        okh = 32
        if o.lazy & 2: okh = lv.pop(0); poll2chk(sFOc, lay+1, hex((1 << okh) - 1) if okh < 32 else None)
        if lay == 0 and not fb2: E(fb_set(1))
        w1n = [] if last or sxo or (o.nopf and lay >= 1) else list(range(6))
        assert not o.sx or o.nopf
        nres = 0 if last else (1 + (o.NRES if lay >= 1 else 0))
        def oparts(i):
            return [[f"ds_write_b128 v{200+kk}, {v(RES+8*i+4*kk,4)} offset:{i*2048}"] for kk in range(2)] + \
                   [[f"ds_read_b128 {v(96+4*j,4)}, v{vLW} offset:{j*1024} ;@o{j}"] for j in (2*i, 2*i+1)] + [[], []] + \
                   [[f"WAITL o{j}", f"buffer_store_dwordx4 {v(96+4*j,4)}, v202, {SRT}, s{T0} offen" + (" sc1" if o.outsc else ""), f"s_add_u32 s{T0}, s{T0}, 16384"] for j in (2*i, 2*i+1)]
        gsh = []
        if last:
            gsh = [[f"v_bfe_u32 v200, v{vL16}, 4, 4", f"v_and_b32 v201, 0x70, v{vL16}"], [f"v_xor_b32 v201, v201, v{vG16}", "v_lshl_add_u32 v200, v200, 7, v201"],
                   [f"v_add_u32 v200, s{sLW}, v200", f"v_lshrrev_b32 v202, 7, v{vL16}"], [f"v_and_b32 v203, 0x70, v{vL16}", "v_lshlrev_b32 v204, 4, v202"],
                   ["v_xor_b32 v201, 64, v200", "v_xor_b32 v203, v203, v204"], ["v_lshl_add_u32 v202, v202, 11, v203"],
                   [f"s_mov_b32 s8, s{P_OUT}", f"s_mov_b32 s9, s{P_OUT+1}"], ["s_mov_b32 s10, 0x400000", "s_mov_b32 s11, 0x20000"],
                   [f"s_lshl_b32 s{T0}, s{SRB}, 2", f"s_add_u32 s{T0}, s{T0}, s{SW}"], [f"s_lshl_b32 s{T0}, s{T0}, 16", f"s_lshl_b32 s{T1}, s{SCB}, 7"], [f"s_add_u32 s{T0}, s{T0}, s{T1}"]]
        def xcvt(i): return sum((cvt4l(RES+8*i+4*kk, acc2(2*kk,i), acc2(2*kk+1,i)) for kk in range(2)), [])
        fbchk = not (lay == 0 and not last)
        rw = [f"ds_write_b128 v{vLW if k == 0 else vLW3}, {a(RS(1-par, k)+4*b_,4)} offset:{(SLOT if k == 0 else (k-1)*SLOT) + b_*1024}" for k in range(nres) for b_ in range(6)]
        rslot = [1 if k == 0 else 2 + k - o.nopf for k in range(nres) for b_ in range(6)]
        freeslot = -1; nin = 0
        for u, (step, bl) in enumerate(gun):
            e("WAITV " + " ".join(f"B{step}_{i}" for i in bl))
            if okh < 32:
                if bn[0][0] == okh - GD + 1: poll2(sFOc)
                if bn[0][0] == okh: okh = lv.pop(0); poll2chk(sFOc, lay+1, hex((1 << okh) - 1) if okh < 32 else None)
                assert bn[1][0] < okh
            if o.jit and u % 7 == 3: stamp(2)
            nsl = nres - 1 - o.nopf if nres > 1 else 0
            if u in ([15] if sxo else [15 + 6*j for j in range(nsl + 1) if o.rin or j == nsl or (j == 0 and w1n)]):
                freeslot = 2 + (u - 15)//6
                assert min(st for st, _ in gun[u-1:]) >= u - 1
                e("s_barrier")
            if lay == 0 and not last and u == 19: assert okh == 32; E([t + (" ;@F" if t.startswith("buffer") else "") for t in fb_body(1)])
            if not fbchk and len(bn) <= 2: e("WAITV F"); E(fb_cond + retry(fb_body(1), fb_cond)); fbchk = True
            if bl == (1,) and step == 32 - T2_:
                assert not gsh
                c_ = xcvt(0); gsh = [[]] + [c_[j:j+2] for j in range(0, 8, 2)]
                if last: gsh += oparts(0)
                else:
                    p_ = xparts(0); gsh += p_[0] + [[], []] + p_[1]
                    if sxo: gsh += [[]]*o.k0 + [lambda: sig(sFXp, 2*lay+1, "xs0")] + [[]]*o.k1 + [lambda: poll2(sFXc)]
            for b in range(4):
                e(f"WAITL u{u}_{b}")
                for p, i in enumerate(bl if b % 2 == 0 else bl[::-1]):
                    e(f"{MF} {v(acc2(b,i),4)}, {a(W2F+16*(u%2)+4*b,4)}, {bfr(step, i)}, {v(acc2(b,i),4)}")
                    if p == 0:
                        if bn and b % (4//len(bl)) == 0: E(bload(*bn.pop(0)))
                        elif not bn and w1n and b % (o.g2w*2//len(bl)) == 0: E(w1_piece(1-par, 1, w1n.pop(0)))
                        elif gsh and (len(bl) == 1 or b % 2):
                            g_ = gsh.pop(0)
                            if callable(g_): g_()
                            elif ((o.xall and lay >= 1) or ((o.alias or o.x0wt) and lay == 0)) and not last: E([wt(t) for t in g_])
                            elif any(t.startswith("buffer_store") for t in g_) and not last: st_mode(g_)
                            else: E(g_)
                if sxo and nin < o.r0 and rw and rslot[0] <= freeslot and b == 3 and (len(bl) == 2 or u % 2):
                    e(rw.pop(0)); rslot.pop(0); nin += 1
                if o.rin and not sxo and rw and rslot[0] <= freeslot and b % (4//o.rin) == 4//o.rin - 1 and (len(bl) == 2 or (bl == (0,) and b == 3 and (u % 2 or o.rin > 1))):
                    e(rw.pop(0)); rslot.pop(0)
                if u + 2 < len(gun): e(w2rd(u+2, b))
                if b == 1 and not last:
                    for j_ in range(o.xf):
                        if u == o.xt0 + 3*j_: e(f"buffer_load_dword v{vJUNK}, v{vTCH}, {SRD}, s{ROTA+j_} offen sc1")
                    if o.cpf and u == o.xt0 + 4: E(codepf(f"L_layer{lay+1}"))
        assert not w1n
        stamp(9)
        if sxo:
            for g_ in gsh:
                assert callable(g_) or not g_
                if g_: g_()
            poll2chk(sFXc, 2*lay+1, sm(mX))
            continue
        rest = sum(gsh, [])
        if last or not any(t.startswith("buffer_store") for t in rest): E(rest)
        elif (o.xall and lay >= 1) or ((o.alias or o.x0wt) and lay == 0): E([wt(t) for t in rest])
        else: st_mode(rest)
        todo = (1,) if T2_ else (0, 1)
        for i in todo: E(xcvt(i))
        if last:
            for i in todo: E(sum(oparts(i)[:4], []))
            for i in todo: E(sum(oparts(i)[4:], []))
            break
        xtile((o.xall and lay >= 1) or ((o.alias or o.x0wt) and lay == 0), todo)
        assert not rw or max(rslot) <= freeslot
        if o.verbose: print("layer", lay, "resident writes left", len(rw))
        if o.sx: e(f"v_mov_b32 v{vVal}, {2*lay+2}")
        if o.early & 1: handoff(sFXp, sFXc, 2*lay+2 if o.sx else lay+1, sm(mX) if o.lazy & 1 else None, mEX, rw[:o.rw], rw[o.rw:])
        else:
            E(rw[:o.rw]); signal(sFXp); stamp(10); poll(sFXc, lay+1, rw[o.rw:], sm(mX) if o.lazy & 1 else None)

    if o.stamps:
        e("s_waitcnt vmcnt(0)")
        stamp(11)
        e(f"s_lshl_b32 s{T0}, s{SIDX}, 2"); e(f"s_add_u32 s{T0}, s{T0}, s{SW}")
        e(f"s_lshl_b32 s{T0}, s{T0}, 8"); e(f"s_add_u32 s{T0}, s{T0}, {WS_STAMPS}")
        e(f"v_lshrrev_b32 v200, 2, v{vL16}")
        e(f"buffer_store_dword v{vSTAMP}, v200, {SRD}, s{T0} offen")
        if o.echo_a >= 0:
            e(f"v_readlane_b32 s{T1}, v{vSTAMP}, {o.echo_a}"); e(f"v_readlane_b32 s{T2}, v{vSTAMP}, {o.echo_b}"); e(f"v_readlane_b32 s{T3}, v{vSTAMP}, 59")
            e(f"s_sub_u32 s{T2}, s{T2}, s{T1}"); e(f"s_mul_i32 s{T2}, s{T2}, {o.echo_mul}"); e(f"s_min_u32 s{T2}, s{T2}, 20000")
            if o.echo_idx >= 0: e(f"s_cmp_eq_u32 s{SIDX}, {o.echo_idx}"); e(f"s_cselect_b32 s{T2}, s{T2}, 0")
            A.label("L_echo")
            e(f"s_memrealtime s[{sSTAMP}:{sSTAMP+1}]"); e("s_waitcnt lgkmcnt(0)")
            e(f"s_sub_u32 s{T4}, s{sSTAMP}, s{T3}"); e(f"s_cmp_lt_u32 s{T4}, s{T2}"); e("s_cbranch_scc1 L_echo")
    e("s_endpgm")
    A.track = False
    A.label("L_ool")
    for blk in ool: blk()
    A.label("L_exit")
    e("s_endpgm")
    A.raw(f".fill (16384 + 256 - (. - L_ool))/4, 4, 0xbf810000")
    A.raw('.section .rodata,"a"'); A.raw(".p2align 6"); A.raw(f".amdhsa_kernel {KNAME}")
    for t in ("next_free_vgpr 512", "next_free_sgpr 102", "accum_offset 256", "group_segment_fixed_size 0", "kernarg_size 80",
              "user_sgpr_count 2", "user_sgpr_kernarg_segment_ptr 1", "system_sgpr_workgroup_id_x 1"):
        A.raw("  .amdhsa_" + t)
    A.raw(".end_amdhsa_kernel")
    return A.text()

if __name__ == "__main__":
    o = Opts()
    out = sys.argv[1]
    for kv in sys.argv[2:]:
        k, val = kv.split("=")
        assert hasattr(o, k), k
        setattr(o, k, int(val))
    open(out, "w").write(gen(o))
```

```python
import sys, struct
from asmlib import *

KNAME = "interleave_layers__linear_kernel_hedgehog__sliding_local_dilated__prompt_kernel"

WS_FLAGA = 0x0000000
WS_FLAGB = 0x0008000
WS_FLAGO = 0x0009000
WS_FLAGX = 0x000A000
WS_CS    = 0x0010000
CS_SZ    = 393216
WS_ST    = 0x0100000
WS_ZP    = 0x0140000
WS_STAMPS= 0x0180000
WS_HALO  = 0x0200000
WS_KVP   = 0x0400000
WS_W1    = (0x0800000, 0x0E00000)
WS_W2    = (0x1400000, 0x1600000)
WS_X     = 0x1800000
WS_X0    = WS_X
WS_O     = 0x1C00000
WS_SIZE  = 0x2000000
OOR      = 0x40000000

SLOT = 24576
M      = 147456
M_CS   = M + 64
M_ST   = M + 1024
M_ZX   = M + 3072
M_KX   = M + 4096
M_VX   = M + 11264
M_ZF   = M + 10240
LDS_SIZE = 163840
VB_LDS = 57344
RAW1A, RAW1B, RAW2 = 3*SLOT, 4*SLOT, 5*SLOT

SRD = "s[4:7]"; SRT = "s[8:11]"
SW, SGRP, SMEM, SMODE, SCB, SRB = 12, 13, 14, 15, 17, 18
T0, T1, T2, T3, T4, T5, T6, T7 = 19, 20, 21, 22, 23, 24, 25, 26
SIDX, SXCC = 27, 29
sFOc, sFOp, sFXc, sFXp = 30, 31, 32, 33
sO, sXs = 34, 35
mPAR, mB1, mDIAG, mM0, mOWN0, mOWN1, sPC, mFIRST = 36, 38, 40, 42, 44, 46, 48, 50
sCSa, sCSb, sZo, sFBp, sSTs, sLW, sKV, sZP, sHALO, sTMO, sAo, sWo = 52, 53, 54, 55, 56, 57, 58, 59, 60, 61, 62, 63
P_AX, P_AW1, P_PHI, P_AW2, P_BX, P_BW1, P_BW2, P_OUT, P_DBG, P_WS = 64, 66, 68, 70, 72, 74, 76, 78, 80, 82
sCL0, sCL2, sL8, sW2l, sW2s, sHst, sHld = 72, 73, 2, 0, 3, 16, 28
D1, D2, D4 = 64, 65, 1
mX, mEO, mEX = 68, 82, 66
sSTAMP = 84
ROTA, ROTW = 86, 94

vLW = 0; vL16, vL64, vL128 = 1, 2, 3
vA = 4; vB = 8; vW1 = 10; vW2 = 11; vFP = 12; vSTl = 13; vSTs = 14; vSTAMP = 15
RES = 16; PHI = 32; ONES = 40; MP0, MP1, MO0, MO1 = 44, 45, 46, 47
vE1, vVr, vLW3, vCPF, vKX0, vKX1, vCSa, vCSb = range(32, 40)
vXW, vE0, vTCH, vSQ, vJUNK, vCV, vFree, vKX, vGM, vZW, vSW, vSR, vG16, vOut, vZL, vVal = range(48, 64)
ACC = 64
def acc(c, i): return ACC + 16*c + 4*i
def acc2(b, i): return ACC + 8*b + 4*i
STP = 160; CSR = 168; WFV = 192; FBV = 216; CI = 220
RING, HW2, HCS = 48, 240, 248
def RS(par, k): return 24*par if k == 0 else 240 - 48*k + 24*par
MF = "v_mfma_f32_16x16x32_bf16"
def f32hex(x): return "0x%08x" % struct.unpack("<I", struct.pack("<f", x))[0]
CK = (f32hex(1.4426950408889634), f32hex(1.4426950408889634 * 32 ** -0.5))
LIM = 0x100000

HEADER = """
Kernarg (80 bytes, pointers): A_x, A_wqkv, A_w_phi, A_wo, B_x, B_wqkv, B_wo, d_out, d_debug, d_ws.
One persistent launch, 256 workgroups (one per CU) x 4 waves; written by gen/gen2.py, straight-line code per layer.
Roles: group = id & 7 owns 256 rows; member = id >> 3 is the head in the QKV GEMM (256 x 96 tile) and
the (row half, column block) in the output GEMM (128 x 64 tile, residual kept in registers).
P0     x and all weights are re-tiled into MFMA fragment order in d_ws (w_phi folded into the q/k columns),
       with column sums of the QKV weights and per-row (sum, sum of squares) partials for the LayerNorm.
G1     QKV GEMM on raw x: x fragments go straight to registers, weights through an LDS ring;
       LayerNorm is applied as rstd * (acc - mean * colsum).
Epi A  dual softmax features (true row max / min), kv and z partials exchanged between the 8 groups, o = num / den.
Epi B  dilated window attention with MFMA; the 16-row halo comes from the previous group.
G2     output GEMM + residual.
Hand-offs inside a group use plain stores only after the members have checked (XCC id in the start-up flags) that
they share one L2; otherwise, and between groups, stores are write-through. Every flag and sentinel is cleared inside
the launch before it is used; every wait is bounded.
Loads into s61 and v52 only prefetch (address translations, cache lines, code); their values are never used.
"""

class Opts:
    w2c2 = 0; w2c3 = 0; w2c0 = 15; pf3 = 0; pfp = 60; pft = 1; pfg = 3; sx = 0; TG2 = 11; k0 = 6; k1 = 8; TS = 8; f1 = 1; p1 = 2; c1 = 4; r0 = 6; sx0 = 5; sxp = 10; prune = 3; jit = 0; jitn = 1; verbose = 0; stamps = 0; last = 3; force_slow = 0; echo_a = -1; echo_b = -1; echo_mul = 1; echo_idx = -1; g1prof = 0
    NRES = 2
    TA0 = 0; TA2 = 0; ramp = 14
    ND0 = 6; ND2 = 8
    LA0 = 3; LA2 = 3; LA3 = 3
    APRE = 3
    wrE = 150; wrL = 110; w1sE = 1; w1sL = 2; wr0 = 150; w1s0 = 1; n1pre = 6
    w2E = 300; w2L = 200; w2sE = 25; w2sL = 20
    sper = 1; s0 = 0
    g2depth = 7; g2w = 2; bpos = 12; TG = 3
    w2BE = 450; w2sBE = 24; w2BL = 400; w2sBL = 20; wrBL = 110
    bper = 90; TB = 6; LAB = 3; hpos = 12
    aper = 150; aper0 = 110; aper2 = 90; aper3 = 200; gpos = 4; gpos2 = 3; dg = 0; dg0 = 2; dgp = 30; dk = 6
    rw = 12
    xf = 1; xt0 = 14
    bin = 0; bs0 = 1; w2e = 1; w2t = 0; of = 1; ot0 = 27
    rt = 3; rtb = 2; bbar = 1; tlb = 1; apoll = 0; ksl = 0; kgate = 0; psl = 0; dtouch = 1
    outsc = 1; oall = 0; o4 = 0; alias = 0; x0wt = 0; dlay = -1; dn = 0; oa = 0; kt = 0; kl = 0; of2 = 0; kq = 1; zf = 0; nopf = 0; xall = 0; rin = 0; lazy = 3; p2pos = 3; lv1 = 0; lv2 = 0; early = 3; epos = 4
    sf = 0; sfp = 0; sfu = 2; gop = 1; gown = 0; gow = 0; et = 0; cp0 = 0; CPL = 10; cpf = 1; cpf2 = 24; cpf3 = 26

def gen(o):
    A = Asm2()
    nb = [0]
    drop = {1: (17, 24, 26, 31, 32, 34, 42, 46, 47, 49, 53, 55), 2: (17, 31, 32, 34, 46, 47, 49), 3: (24, 26, 42, 53, 55)}.get(o.prune if o.last == 3 else 0, ())
    def e(t):
        if t == "s_barrier":
            nb[0] += 1
            if nb[0] - 1 in drop: return
        A.e(t)
    ool = []
    assert not (o.gown and o.bin)
    lay = 0
    o.CPL = min(o.CPL, 5*o.last + 7)
    def E(lst):
        for t in lst: e(t)
    def stamp(name, force=0):
        if o.jit and name not in (11, 28):
            l = A.new("jit")
            e(f"s_memtime s[{sSTAMP}:{sSTAMP+1}]"); e("s_waitcnt lgkmcnt(0)")
            e(f"s_lshr_b32 s{sSTAMP}, s{sSTAMP}, 2"); e(f"s_mul_i32 s{sSTAMP}, s{sSTAMP}, 0x9e3779b1"); e(f"s_lshr_b32 s{sSTAMP}, s{sSTAMP}, {32 - o.jit}")
            e(f"s_cmp_lg_u32 s{sSTAMP}, 0"); e(f"s_cbranch_scc1 {l}")
            for j in range(o.jitn): e("s_sleep 100")
            A.label(l)
        if not o.stamps: return
        if o.g1prof and name in range(2, 11) and not force: return
        idx = name + 16*lay
        if o.stamps == 2 and name != 11 and idx not in (o.echo_a, o.echo_b): return
        e(f"{'s_memtime' if o.stamps == 3 else 's_memrealtime'} s[{sSTAMP}:{sSTAMP+1}]")
        e("s_waitcnt lgkmcnt(0)")
        e(f"v_writelane_b32 v{vSTAMP}, s{sSTAMP}, {59 if name == 11 else idx}")
    def srt(p, size):
        e(f"s_mov_b32 s8, s{p}"); e(f"s_mov_b32 s9, s{p+1}"); e(f"s_mov_b32 s10, {size}"); e("s_mov_b32 s11, 0x20000")
    def mask64(r, val):
        e(f"s_mov_b32 s{r}, 0x{val & 0xffffffff:08x}"); e(f"s_mov_b32 s{r+1}, 0x{val >> 32:08x}")
    def sm(r): return f"s[{r}:{r+1}]"
    def bc(r): return (v(r & ~1, 2), r & 1)
    def pk_fma(d, x, y, z, negx=False):
        yp, ys = bc(y); zp, zs = bc(z)
        e(f"v_pk_fma_f32 {v(d,2)}, {v(x,2)}, {yp}, {zp} op_sel:[0,{ys},{zs}] op_sel_hi:[1,{ys},{zs}]" + (" neg_lo:[1,0,0] neg_hi:[1,0,0]" if negx else ""))
    def pk_mul(d, x, y):
        yp, ys = bc(y)
        e(f"v_pk_mul_f32 {v(d,2)}, {v(x,2)}, {yp} op_sel:[0,{ys}] op_sel_hi:[1,{ys}]")
    def cvt4l(d, x0, x1):
        return [f"v_cvt_pk_bf16_f32 v{d}, v{x0}, v{x0+1}", f"v_cvt_pk_bf16_f32 v{d+1}, v{x0+2}, v{x0+3}",
                f"v_cvt_pk_bf16_f32 v{d+2}, v{x1}, v{x1+1}", f"v_cvt_pk_bf16_f32 v{d+3}, v{x1+2}, v{x1+3}"]
    def cvt4(d, x0, x1): E(cvt4l(d, x0, x1))
    def wt(t):
        if not t.startswith("buffer_store"): return t
        a_, sep, b_ = t.partition(" ;@")
        return a_ + " sc1" + sep + b_
    def st_mode(lines):
        ls, ld = A.new("slow"), A.new("done")
        e(f"s_cmp_lg_u32 s{SMODE}, 0"); e(f"s_cbranch_scc1 {ls}")
        E(lines); A.label(ld)
        def blk():
            A.label(ls); A.fence(); E([wt(t) for t in lines]); e("s_nop 7"); e(f"s_branch {ld}")
        ool.append(blk)
    def spin(body, cond, first=None):
        l, d = A.new("spin"), A.new("spind")
        e(f"s_mov_b32 s{sTMO}, {LIM}")
        if first:
            E(body); E(first); e("s_waitcnt vmcnt(0)"); E(cond); e(f"s_cbranch_vccz {d}")
        A.label(l); E(body); e(f"s_sub_u32 s{sTMO}, s{sTMO}, 1"); e("s_waitcnt vmcnt(0)"); E(cond)
        e(f"s_cbranch_scc1 {d}"); e(f"s_cbranch_vccnz {l}"); A.label(d)
    def retry(body, cond):
        l, d = A.new("rt"), A.new("rtd")
        def blk():
            A.label(l); spin(body, cond); e(f"s_branch {d}")
        ool.append(blk)
        return [f"s_cbranch_vccnz {l}", d + ":"]
    def signal(sreg):
        e("s_mov_b64 exec, 1"); e("s_waitcnt vmcnt(0)")
        st_mode([f"buffer_store_dword v{vVal}, off, {SRD}, s{sreg}"])
        e("s_mov_b64 exec, -1")
    def poll(sreg, val, first=None, mask=None):
        cond = [f"v_cmp_gt_u32 vcc, {val}, v{FBV}"]
        if mask: cond = [f"s_mov_b64 exec, {mask}"] + cond + ["s_mov_b64 exec, -1"]
        spin([f"buffer_load_dword v{FBV}, v{vFP}, {SRD}, s{sreg} offen sc1"], cond, first)
    def handoff(sp, sc, val, mask, emask, pre, first):
        ld = f"buffer_load_dword v{FBV}, v{vFP}, {SRD}, s{sc} offen sc1"
        d = A.new("hd")
        E(pre[:o.epos]); e(ld + " ;@PE"); E(pre[o.epos:])
        if o.jit: stamp(7)
        e("s_mov_b64 exec, 1"); e("s_waitcnt vmcnt(1)")
        st_mode([f"buffer_store_dword v{vVal}, off, {SRD}, s{sp}"])
        e("s_mov_b64 exec, -1")
        E(first)
        e("WAITV PE"); e(f"s_mov_b64 exec, {sm(emask)}"); e(f"v_cmp_gt_u32 vcc, {val}, v{FBV}"); e("s_mov_b64 exec, -1"); e(f"s_cbranch_vccz {d}")
        A.track = False; poll(sc, val, None, mask); A.track = True
        A.label(d)
    def sig(sreg, val, tag):
        e(f"v_mov_b32 v{vVal}, {val}"); e("s_mov_b64 exec, 1"); e(f"WAITV {tag}")
        st_mode([f"buffer_store_dword v{vVal}, off, {SRD}, s{sreg}"])
        e("s_mov_b64 exec, -1")
    def poll2(sreg): e(f"buffer_load_dword v{FBV}, v{vFP}, {SRD}, s{sreg} offen sc1 ;@P2")
    def poll2chk(sreg, val, mask=None):
        l = A.new("p2")
        e("WAITV P2")
        if mask: e(f"s_mov_b64 exec, {mask}")
        e(f"v_cmp_gt_u32 vcc, {val}, v{FBV}")
        if mask: e("s_mov_b64 exec, -1")
        e(f"s_cbranch_vccnz {l}"); A.label(l + "_r")
        def blk(): A.label(l); poll(sreg, val, None, mask); e(f"s_branch {l}_r")
        ool.append(blk)
    def xreduce(groups, aslist=False):
        out = []; e = out.append
        for op, q in groups: e(f"v_permlane32_swap_b32 v{q[0]}, v{q[1]}"); e(f"v_permlane32_swap_b32 v{q[2]}, v{q[3]}")
        for op, q in groups: e(f"{op} v{q[0]}, v{q[0]}, v{q[1]}"); e(f"{op} v{q[2]}, v{q[2]}, v{q[3]}")
        for op, q in groups: e(f"v_permlane16_swap_b32 v{q[0]}, v{q[2]}")
        for op, q in groups: e(f"{op} v{q[1]}, v{q[0]}, v{q[2]}"); e(f"{op} v{q[2]}, v{q[0]}, v{q[2]}")
        for op, q in groups: e(f"v_permlane16_swap_b32 v{q[1]}, v{q[2]}")
        for op, q in groups: e(f"v_mov_b32 v{q[0]}, v{q[1]}"); e(f"v_mov_b32 v{q[3]}, v{q[2]}")
        for op, q in groups: e(f"v_permlane32_swap_b32 v{q[0]}, v{q[1]}"); e(f"v_permlane32_swap_b32 v{q[2]}, v{q[3]}")
        if aslist: return out
        E(out)
    def xparts(i):
        t = 160+8*i; g0 = t+4; st = []
        for kk in range(2):
            f = v(RES+8*i+4*kk, 4)
            st += [[f"{MF} {v(g0,4)}, {f}, {f}, {'0' if kk == 0 else v(g0,4)}"],
                   [f"buffer_store_dwordx4 {f}, v{vB+i}, {SRD}, s{sXs} offen offset:{kk*1024}"],
                   [f"{MF} {v(t,4)}, {v(ONES,4)}, {f}, {'0' if kk == 0 else v(t,4)}"]]
        return st, [[f"v_cndmask_b32 v{g0}, v{g0}, v{g0+1}, {sm(mPAR)}", f"v_cndmask_b32 v{g0+2}, v{g0+2}, v{g0+3}, {sm(mPAR)}"],
                    [f"v_cndmask_b32 v{t+1}, v{g0}, v{g0+2}, {sm(mB1)}"],
                    [f"s_mov_b64 exec, {sm(mDIAG)}", f"buffer_store_dwordx2 {v(t,2)}, v{vSTs}, {SRD}, s{sSTs} offen offset:{i*128} ;@xs{i}", "s_mov_b64 exec, -1"]]
    def xtile(through, blocks=(0, 1)):
        ps = [xparts(i) for i in blocks]
        st = sum((sum(p[0], []) for p in ps), []) + sum((sum(p[1], []) for p in ps), [])
        if through: E([wt(t) for t in st])
        else: st_mode(st)
    def w1_piece(par, stage, i, force=False):
        r = []; slot = (stage + 1) % 6
        if i % 4 == 0 or force: r += [f"s_add_u32 m0, s{sLW}, {slot*SLOT + (i & 4)*1024}", f"s_add_u32 s{sWo}, s{ROTW+stage}, {WS_W1[par] + (i & 4)*1024}"]
        return r + [f"buffer_load_dwordx4 v{vW1}, {SRD}, s{sWo} offen offset:{(i%4)*1024} lds ;@W{stage}"]
    def w2_piece(par, part, i, force=False):
        r = []
        if i % 4 == 0 or force:
            if part < 5:
                lb, sb = ((3+part)*SLOT, 57344 + part*SLOT) if part < 3 else ((part-3)*SLOT, (part-3)*SLOT)
                r += [f"s_add_u32 m0, s{sLW}, {lb + (i & 4)*1024}", f"s_mov_b32 s{sWo}, {WS_W2[par] + sb + (i & 4)*1024}"]
            else: r += [f"s_add_u32 m0, s{sL8}, {2*SLOT}", f"s_sub_u32 s{sWo}, {WS_W2[par] + 2*SLOT}, s{sW2l}"]
        return r + [f"buffer_load_dwordx4 v{vW2}, {SRD}, s{sWo} offen offset:{(i%4)*1024} lds"]
    def ldsrd(dst, addr):
        base = {0: vL16, 1: vL64, 2: vL128}[addr >> 16]
        return f"ds_read_b128 {dst}, v{base} offset:{addr & 0xffff}"
    def w1st(R, blk, sa, sb): return f"buffer_store_dwordx4 {R}, v{vW1}, {SRD}, s{sa if blk < 4 else sb} offen offset:{(blk%4)*1024} sc1"
    def csst(C, sreg): return ["s_mov_b32 exec_lo, 0x003f003f", "s_mov_b32 exec_hi, 0x003f003f", f"buffer_store_dwordx4 {C}, v{vOut}, {SRD}, s{sreg} offen sc1", "s_mov_b64 exec, -1"]
    def fb_body(k): return [f"s_mov_b32 s{T1}, {WS_FLAGB + 1024*k}", f"buffer_load_dwordx4 {v(FBV,4)}, v{vL16}, {SRD}, s{T1} offen sc1"]
    fb_cond = [f"v_and_b32 v{FBV}, v{FBV}, v{FBV+1}", f"v_and_b32 v{FBV+2}, v{FBV+2}, v{FBV+3}", f"v_and_b32 v{FBV}, v{FBV}, v{FBV+2}", f"v_cmp_ne_u32 vcc, 1, v{FBV}"]
    def fb_set(k): return ["s_mov_b64 exec, 1", f"buffer_store_dword v{vVal}, off, {SRD}, s{sFBp} offset:{1024*k} sc1", "s_mov_b64 exec, -1"]
    def xw(r, kb, ad=vXW): return f"ds_write2st64_b64 v{ad}, {v(r,2)}, {v(r+2,2)} offset0:{2*kb} offset1:{2*kb+1}"

    for t in HEADER.strip("\n").split("\n"): A.raw(("; " + t).rstrip())
    A.raw(f"; @launch grid=(256,1,1) block=(256,1,1) lds={LDS_SIZE}")
    A.raw('.amdgcn_target "amdgcn-amd-amdhsa--gfx950"'); A.raw(".text")
    A.raw(f".globl {KNAME}"); A.raw(".p2align 8"); A.raw(f".type {KNAME},@function"); A.label(KNAME)
    if o.stamps: e("s_memrealtime s[86:87]")
    e("s_cmp_ge_u32 s2, 256"); e("s_cbranch_scc1 L_exit")
    e(f"s_getpc_b64 {sm(sPC)}"); A.label("L_pc")
    e(f"s_lshr_b32 s{T0}, s2, 3"); e(f"s_mulk_i32 s{T0}, {o.CPL*128}"); e(f"v_min_u32 v252, {o.CPL-1}, v0"); e(f"v_lshl_add_u32 v252, v252, 7, s{T0}")
    cpv = f"global_load_dword v{vJUNK}, v252, {sm(sPC)}"
    if o.cp0 == 0: e(cpv)
    if o.cp0 == 3: e(f"s_and_b32 s{T1}, s2, 0xf8"); e(f"s_lshl_b32 s{T1}, s{T1}, 4"); e(f"s_add_u32 s{T1}, s{T1}, 256"); e(f"s_load_dword s{sTMO}, {sm(sPC)}, s{T1}")
    e("s_load_dwordx16 s[64:79], s[0:1], 0"); e("s_load_dwordx4 s[80:83], s[0:1], 64")
    if o.force_slow == 2:
        e("s_xor_b32 s3, s2, 1"); e(f"s_lshr_b32 s{T1}, s2, 1"); e(f"s_cmp_eq_u32 s{T1}, 45"); e("s_cselect_b32 s2, s3, s2")
    if o.force_slow == 1: e(f"s_lshr_b32 s{SGRP}, s2, 5"); e(f"s_and_b32 s{SMEM}, s2, 31")
    else: e(f"s_and_b32 s{SGRP}, s2, 7"); e(f"s_lshr_b32 s{SMEM}, s2, 3")
    VM = 215
    e(f"s_lshl_b32 s{SIDX}, s{SGRP}, 5"); e(f"s_add_u32 s{SIDX}, s{SIDX}, s{SMEM}")
    if o.et:
        e(f"s_lshl_b32 s{T1}, s{SIDX}, 14"); e(f"v_lshl_add_u32 v250, v0, 6, s{T1}")
        if o.et > 1: e(f"s_mul_i32 s{T1}, s{SIDX}, 24576"); e(f"v_mul_u32_u24 v251, 96, v0"); e(f"v_add_u32 v251, s{T1}, v251")
        e("s_waitcnt lgkmcnt(0)")
        if o.et != 3: e(f"global_load_dword v{vJUNK}, v250, {sm(P_AX)}")
        if o.et > 1: e(f"global_load_dword v{vJUNK}, v251, {sm(P_AW1)}")
    e("v_lshrrev_b32 v1, 6, v0"); e("v_and_b32 v254, 63, v0"); e(f"v_readfirstlane_b32 s{SW}, v1")
    e(f"s_lshr_b32 s{SRB}, s{SIDX}, 4"); e(f"s_and_b32 s{SCB}, s{SIDX}, 15")
    e(f"s_mul_i32 s{sLW}, s{SW}, 6144")
    e("v_lshrrev_b32 v203, 3, v254"); e("v_and_b32 v204, 7, v254"); e("v_lshlrev_b32 v204, 4, v204"); e("v_lshl_add_u32 v210, v203, 11, v204")
    e("v_lshrrev_b32 v200, 2, v254"); e("v_and_b32 v201, 3, v254")
    e("v_mul_u32_u24 v202, 6144, v200"); e("v_lshl_add_u32 v202, v201, 4, v202")
    e(f"s_lshl_b32 s{T2}, s{SRB}, 2"); e(f"s_add_u32 s{T2}, s{T2}, s{SW}"); e(f"s_lshl_b32 s{T2}, s{T2}, 16")
    e(f"s_lshl_b32 s{T4}, s{SCB}, 7"); e(f"s_add_u32 s{T3}, s{T2}, s{T4}")
    e(f"s_lshl_b32 s{T6}, s{SGRP}, 2"); e(f"s_add_u32 s{T6}, s{T6}, s{SW}")
    e(f"s_mul_i32 s{T5}, s{T6}, {32*6144}"); e(f"s_lshl_b32 s{T4}, s{SMEM}, 6"); e(f"s_add_u32 s{T5}, s{T5}, s{T4}")
    e(f"v_lshlrev_b32 v{vL16}, 4, v254"); e(f"v_and_b32 v{vG16}, 48, v254"); e(f"v_and_b32 v{VM}, 15, v254")
    e(f"s_lshl_b32 s{T1}, s{SCB}, 11"); e(f"s_add_u32 s{sXs}, s{T1}, {WS_X}")
    e(f"s_mul_i32 s{sAo}, s{SMEM}, 196608"); e(f"s_add_u32 s{sAo}, s{sAo}, s{sLW}"); e(f"s_mul_i32 s{ROTW}, s{SGRP}, {SLOT}")
    e("v_lshlrev_b32 v249, 7, v254")
    e(f"s_lshl_b32 s{T0}, s{SIDX}, 2"); e(f"s_add_u32 s{T0}, s{T0}, s{SW}"); e(f"s_mul_i32 s{sWo}, s{T0}, 6144")
    if o.stamps == 1: e("s_memrealtime s[88:89]")
    e("s_waitcnt lgkmcnt(0)")
    if o.stamps == 1: e("s_memrealtime s[90:91]")
    e(f"s_mov_b32 s4, s{P_WS}"); e(f"s_mov_b32 s5, s{P_WS+1}"); e(f"s_mov_b32 s6, {WS_SIZE}"); e("s_mov_b32 s7, 0x20000")
    if o.cp0 in (2, 4):
        e(f"s_lshl_b32 s{T0}, s{SMEM}, 2"); e(f"s_add_u32 s{T0}, s{T0}, s{SW}"); e(f"s_lshl_b32 s{T0}, s{T0}, 7")
        for j in range((o.CPL + 3)//4 if o.cp0 == 2 else 1):
            e(f"s_load_dword s{sTMO}, {sm(sPC)}, s{T0}"); e(f"s_add_u32 s{T0}, s{T0}, 16384")
    if o.jit: stamp(13)
    e(f"s_xor_b32 s{T7}, s{SW}, {o.gow}")
    e(f"s_or_b32 s{T0}, s{SMEM}, s{T7}"); e(f"s_cmp_lg_u32 s{T0}, 0"); e("s_cbranch_scc1 L_p0a")
    A.track = False
    for r in range(4): e(f"v_mov_b32 v{204+r}, 0")
    e(f"s_lshl_b32 s{T0}, s{SGRP}, 12")
    for j in range(4): e(f"buffer_store_dwordx4 v[204:207], v{vL16}, {SRD}, s{T0} offen offset:{j*1024} sc1")
    e(f"s_lshl_b32 s{T0}, s{SGRP}, 7"); e(f"s_add_u32 s{T0}, s{T0}, {WS_FLAGB}")
    e("s_mov_b64 exec, 0xff")
    for j in range(2 + o.sf): e(f"buffer_store_dwordx4 v[204:207], v{vL16}, {SRD}, s{T0} offen offset:{j*1024} sc1")
    e("s_mov_b64 exec, -1")
    A.track = True
    A.label("L_p0a")
    n0 = len(A.vq)
    def setgo():
        e(f"s_or_b32 s{T0}, s{SMEM}, s{T7}"); e(f"s_cmp_lg_u32 s{T0}, 0"); e("s_cbranch_scc1 L_p0b")
        A.track = False
        srt(P_DBG, 256); e("v_mov_b32 v204, 1"); e(f"s_lshl_b32 s{T0}, s{SGRP}, {4 if o.dtouch else 5}")
        e(f"s_waitcnt vmcnt({len(A.vq) - n0})")
        e("s_mov_b64 exec, 1"); e(f"buffer_store_dword v204, off, {SRT}, s{T0} sc1"); e("s_mov_b64 exec, -1")
        A.track = True
        A.label("L_p0b")
    if o.gop == 2: setgo()
    def rowtouch(p, few=False):
        srt(p, 0x600000)
        if few: e("s_mov_b32 exec_lo, 0x08080808")
        e("s_mov_b32 exec_hi, 0x0808" if few else "s_mov_b32 exec_hi, 0xffff"); e(f"buffer_load_dword v{vJUNK}, v249, {SRT}, s{sWo} offen"); e("s_mov_b64 exec, -1")
    if o.rt in (1, 3): rowtouch(P_AW1, o.rt == 3)
    srt(P_AX, 0x400000)
    for i in range(4):
        e(f"s_add_u32 m0, s{sLW}, {i*1024}"); e(f"s_add_u32 s{T0}, s{T3}, {i*16384}")
        e(f"buffer_load_dwordx4 v210, {SRT}, s{T0} offen lds ;@x")
    if o.rt == 2: rowtouch(P_AW1)
    if o.stamps == 1: e("s_memrealtime s[92:93]")
    def touch(p, *calc):
        if o.tlb: E(list(calc)); e(f"s_load_dword s{sTMO}, s[{p}:{p+1}], s{T0}")
    if o.dtouch: touch(P_DBG, f"s_movk_i32 s{T0}, 128")
    touch(P_WS, f"s_add_u32 s{T0}, s{T2}, s{sXs}")
    touch(P_WS, f"s_add_u32 s{T0}, s{sAo}, s{ROTW}", f"s_add_u32 s{T0}, s{T0}, {WS_W1[0]}")
    touch(P_WS, f"s_mov_b32 s{T0}, 0x1f0000")
    touch(P_BW1, f"s_mov_b32 s{T0}, s{T5}"); touch(P_AW2, f"s_lshl_b32 s{T0}, s{SRB}, 17"); touch(P_BW2)
    if o.gop == 1: setgo()
    srt(P_PHI, 0x10000)
    e(f"s_add_u32 m0, s{sLW}, 4096"); e(f"s_lshl_b32 s{T0}, s{SMEM}, 11")
    for j in range(2): e(f"buffer_load_dwordx4 v{vL16}, {SRT}, s{T0} offen offset:{j*1024} lds ;@phi")
    def raw1(p, ldsb, tag):
        srt(p, 0x600000)
        for seg in range(3):
            for hf in range(2):
                e(f"s_add_u32 m0, s{sLW}, {ldsb + seg*2048 + hf*1024}"); e(f"s_add_u32 s{T0}, s{T5}, {seg*2048 + hf*16*6144}")
                e(f"buffer_load_dwordx4 v202, {SRT}, s{T0} offen lds ;@{tag}")
    raw1(P_AW1, RAW1A, "ra")
    if o.rtb == 5: rowtouch(P_BW1)
    if o.cp0 in (1, 3): e(cpv)
    if o.gop == 0: setgo()
    e(f"v_lshl_add_u32 v214, v{VM}, 7, v{vG16}"); e(f"v_add_u32 v214, s{sLW}, v214")
    e(f"v_add_u32 v{vB}, s{T2}, v{vL16}"); e(f"v_add_u32 v{vB+1}, 0x8000, v{vB}")
    e(f"s_lshr_b32 s{T2}, s{T2}, 8"); e(f"v_lshl_add_u32 v{vSTs}, v{VM}, 3, s{T2}")
    e(f"s_lshl_b32 s{T0}, s{SCB}, 14"); e(f"s_add_u32 s{sSTs}, s{T0}, {WS_ST}")
    mask64(mPAR, 0xAAAAAAAAAAAAAAAA); mask64(mB1, 0xCCCCCCCCCCCCCCCC); mask64(mDIAG, 0xF0000F0000F0000F)
    for r in range(4): e(f"v_mov_b32 v{ONES+r}, 0x3f803f80")
    if o.stamps:
        e(f"v_mov_b32 v{vSTAMP}, 0"); e(f"v_writelane_b32 v{vSTAMP}, s86, 12"); e(f"v_writelane_b32 v{vSTAMP}, s{sPC}, 63")
    stamp(28)
    if o.stamps == 1:
        for j in range(3): e(f"v_writelane_b32 v{vSTAMP}, s{88+2*j}, {60+j}")
    e("WAITV x")
    for i in range(2):
        for kk in range(2): e(f"ds_read_b128 {v(RES+8*i+4*kk,4)}, v214 offset:{i*2048 + kk*64}")
    e(f"v_add_u32 v{vW1}, s{sAo}, v{vL16}"); e(f"v_add_u32 v{vLW}, s{sLW}, v{vL16}")
    e("v_and_b32 v209, 3, v200"); e(f"v_lshrrev_b32 v203, 1, v{vG16}"); e("v_add_u32 v209, v209, v203")
    e("v_lshlrev_b32 v203, 6, v209"); e("v_lshl_add_u32 v205, v201, 3, v203"); e(f"v_add_u32 v205, s{sLW}, v205")
    e("v_lshl_add_u32 v206, v201, 4, v203"); e(f"s_add_u32 s{T1}, s{sLW}, {RAW1A}"); e(f"v_add_u32 v206, s{T1}, v206")
    e(f"v_lshrrev_b32 v203, 2, v{VM}"); e("v_lshl_add_u32 v203, v203, 3, v201"); e(f"v_lshl_add_u32 v203, v203, 6, v{vG16}"); e(f"v_add_u32 v208, s{T1}, v203")
    e(f"v_lshl_add_u32 v{vOut}, v{VM}, 11, v{vG16}")
    e("s_waitcnt lgkmcnt(0)")
    stamp(29)
    if o.cp0 == 4: e(cpv)
    if o.rtb == 1: rowtouch(P_BW1)
    xtile(True)
    def goload():
        srt(P_DBG, 256)
        e("v_and_b32 v253, 7, v254"); e(f"v_lshlrev_b32 v253, {4 if o.dtouch else 5}, v253"); e(f"s_cmp_eq_u32 s{SW}, 0"); e(f"s_cselect_b32 s{T0}, 0, {OOR}")
        e(f"buffer_load_dword v212, v253, {SRT}, s{T0} offen sc1 ;@go")
    gm = ([f"s_lshl_b64 exec, 1, s{SGRP}"], ["s_mov_b64 exec, -1"]) if o.gown else ([], [])
    def gocheck():
        e(f"s_cmp_eq_u32 s{SW}, 0"); e(f"s_cselect_b32 s{T0}, 1, 0")
        e("WAITV go")
        stamp(31)
        E(gm[0]); e(f"v_cmp_ne_u32 vcc, s{T0}, v212"); E(gm[1]); e("s_cbranch_vccnz L_goslow")
        A.label("L_gook")
        def goslow():
            A.label("L_goslow"); srt(P_DBG, 256); e("s_waitcnt lgkmcnt(0)")
            E(gm[0]); spin([f"buffer_load_dword v212, v253, {SRT}, 0 offen sc1"], ["v_cmp_ne_u32 vcc, 1, v212"]); E(gm[1]); e("s_branch L_gook")
        ool.append(goslow)
    def xcc():
        e(f"s_getreg_b32 s{SXCC}, hwreg(HW_REG_XCC_ID, 0, 4)"); e(f"s_or_b32 s{SXCC}, s{SXCC}, 0x100"); e(f"v_mov_b32 v{vVal}, s{SXCC}")
        e(f"s_lshl_b32 s{T1}, s{SIDX}, 2"); e(f"s_add_u32 s{T1}, s{T1}, {WS_FLAGB}"); e(f"s_cmp_eq_u32 s{SW}, 0"); e(f"s_cselect_b32 s{sFBp}, s{T1}, {OOR}")
    def flagx():
        gocheck(); e("s_barrier"); E(fb_set(2))
    SB = 224 if o.sf else 96
    if o.sf: goload(); xcc()
    if o.rtb == 2: rowtouch(P_BW1)
    if o.w2t:
        e(f"s_lshl_b32 s{T0}, s{SIDX}, 2"); e(f"s_add_u32 s{T0}, s{T0}, s{SW}"); e(f"s_lshl_b32 s{T0}, s{T0}, 11"); e("s_mov_b64 exec, 0xffff")
        for p in (P_BW2, P_AW2)[:o.w2t]:
            srt(p, 0x200000); e(f"buffer_load_dword v{vJUNK}, v249, {SRT}, s{T0} offen")
        e("s_mov_b64 exec, -1")
    for blk in range(6):
        mask64(T1, 0x0001000100010001 << blk)
        for r in range(4): e(f"v_cndmask_b32 v{SB+4*blk+r}, 0, v{ONES}, {sm(T1)}")
    e(f"s_add_u32 s{T2}, s{ROTW}, {WS_W1[0]}"); e(f"s_add_u32 s{T4}, s{T2}, 4096")
    e(f"s_lshl_b32 s{T0}, s{T6}, 6"); e(f"s_mul_i32 s{T1}, s{SMEM}, 12288"); e(f"s_add_u32 s{T0}, s{T0}, s{T1}"); e(f"s_add_u32 s{sCL0}, s{T0}, {WS_CS}")
    e("WAITV phi")
    for fb in range(2):
        for t in range(2): e(f"ds_read_b64_tr_b16 {v(PHI+4*fb+2*t,2)}, v205 offset:{4096 + fb*32 + t*256}")
    e("WAITV ra")
    if o.rtb == 6: rowtouch(P_BW1)
    stamp(13)
    if o.sf and o.sfp == 0: flagx()
    RA, RB = RS(0, 0), RS(1, 0)
    for seg in range(2):
        for kb in range(2): e(f"ds_read_b128 {v(120+8*seg+4*kb,4)}, v208 offset:{seg*2048 + kb*256} ;@s{seg}")
    for blk in (4, 5):
        for t in range(2): e(f"ds_read_b64_tr_b16 {a(RA+4*blk+2*t,2)}, v206 offset:{4096 + t*256 + (blk&1)*8}")
    for seg in range(2):
        e(f"WAITL s{seg}")
        for fb in range(2):
            for kb in range(2): e(f"{MF} {v(160+16*seg+8*fb+4*kb,4)}, {v(120+8*seg+4*kb,4)}, {v(PHI+4*fb,4)}, 0")
    e("s_waitcnt lgkmcnt(0)")
    for blk in (4, 5):
        e(w1st(a(RA+4*blk,4), blk, T2, T4))
        e(f"{MF} v[64:67], {a(RA+4*blk,4)}, {v(SB+4*blk,4)}, {'0' if blk == 4 else 'v[64:67]'}")
    for blk in range(4):
        cvt4(136+4*blk, 160+8*blk, 164+8*blk)
        e(w1st(v(136+4*blk,4), blk, T2, T4))
        e(f"{MF} v[64:67], {v(136+4*blk,4)}, {v(SB+4*blk,4)}, v[64:67]")
    for r in range(16): e(f"v_accvgpr_write_b32 a{RA+r}, v{136+r}")
    E(csst(v(64,4), sCL0))
    if not o.sf: goload()
    if o.sf and o.sfp == 1: flagx()
    elif o.bbar: e("s_barrier")
    if o.rtb == 3: rowtouch(P_BW1)
    e(f"s_lshl_b32 s{T0}, s{SRB}, 1"); e(f"s_and_b32 s{T3}, s{SW}, 1"); e(f"s_add_u32 s{T0}, s{T0}, s{T3}")
    e(f"s_lshl_b32 s{T1}, s{SCB}, 1"); e(f"s_lshr_b32 s{T4}, s{SW}, 1"); e(f"s_add_u32 s{T1}, s{T1}, s{T4}"); e(f"s_lshl_b32 s{T1}, s{T1}, 6")
    e(f"s_lshl_b32 s{sW2s}, s{T0}, 12"); e(f"s_lshl_b32 s{T0}, s{T0}, 16"); e(f"s_add_u32 s{T0}, s{T0}, s{T1}"); e(f"s_add_u32 s{T1}, s{T0}, 0x8000")
    e("v_lshlrev_b32 v203, 11, v200"); e("v_lshl_add_u32 v207, v201, 4, v203")
    e(f"s_mov_b32 s{D1}, s{T0}"); e(f"s_mov_b32 s{D2}, s{T1}")
    def raw2(wt_):
        srt((P_AW2, P_BW2)[wt_], 0x200000)
        for i in range(2):
            e(f"s_add_u32 m0, s{sLW}, {RAW2 + wt_*2048 + i*1024}")
            e(f"buffer_load_dwordx4 v207, {SRT}, s{D1 + i} offen lds ;@r2{wt_}")
    for wt_ in range(o.w2e): raw2(wt_)
    for blk in range(6): e(f"ds_write_b128 v{vLW}, {a(RA+4*blk,4)} offset:{SLOT + blk*1024}")
    stamp(30)
    if not o.sf: xcc()
    e(f"s_lshl_b32 s{T0}, s{T4}, 11"); e(f"s_add_u32 s{sW2s}, s{sW2s}, s{T0}"); e(f"s_lshl_b32 s{T0}, s{SCB}, 17")
    e(f"s_add_u32 s{sW2s}, s{sW2s}, s{T0}"); e(f"s_add_u32 s{sW2s}, s{sW2s}, {WS_W2[0]}")
    e(f"s_lshl_b32 s{T1}, s{SMEM}, 15"); e(f"s_lshl_b32 s{T2}, s{SW}, 10"); e(f"s_add_u32 s{T1}, s{T1}, s{T2}"); e(f"s_add_u32 s{sKV}, s{T1}, {WS_KVP - WS_X + (1<<32)}")
    e(f"s_lshr_b32 s{T1}, s{T1}, 4"); e(f"s_add_u32 s{sZP}, s{T1}, {WS_ZP}")
    for s_ in range(8):
        e(f"s_add_u32 s{T1}, s{SGRP}, {s_}"); e(f"s_and_b32 s{T1}, s{T1}, 7")
        e(f"s_mul_i32 s{ROTW+s_}, s{T1}, {SLOT}"); e(f"s_lshl_b32 s{T1}, s{T1}, 12"); e(f"s_add_u32 s{ROTA+s_}, s{T1}, {WS_X}")
    e(f"s_lshl_b32 s{T1}, s{SIDX}, 11"); e(f"s_add_u32 s{sHALO}, s{T1}, {WS_HALO}")
    e(f"s_lshl_b32 s{T1}, s{SMEM}, 10"); e(f"s_add_u32 s{sO}, s{T1}, {WS_X if o.alias else WS_O}")
    touch(P_WS, f"s_mov_b32 s{T0}, s{sW2s}")
    touch(P_WS, f"s_add_u32 s{T0}, s{sKV}, s{ROTA}")
    touch(P_WS, f"s_add_u32 s{T0}, s{sW2s}, {WS_W2[1] - WS_W2[0]}")
    touch(P_WS, f"s_add_u32 s{T0}, s{sAo}, s{ROTW}", f"s_add_u32 s{T0}, s{T0}, {WS_W1[1]}")
    touch(P_WS, f"s_mov_b32 s{T0}, s{sHALO}")
    touch(P_WS, f"s_lshl_b32 s{T0}, s{T6}, 17", f"s_add_u32 s{T0}, s{T0}, s{sO}")
    touch(P_OUT, f"s_lshl_b32 s{T0}, s{SRB}, 18", f"s_lshl_b32 s{T1}, s{SCB}, 7", f"s_add_u32 s{T0}, s{T0}, s{T1}")
    e(f"s_lshl_b32 s{T0}, s{SGRP}, 5"); e(f"v_add_u32 v203, s{T0}, v254")
    e("v_and_b32 v204, 7, v254"); e(f"v_lshl_add_u32 v204, v204, 5, s{SMEM}")
    mask64(T1, 0x00000000FFFFFFFF); e(f"v_cndmask_b32 v211, v204, v203, {sm(T1)}"); e("v_lshlrev_b32 v211, 7, v211")
    if o.sf: e("v_lshlrev_b32 v250, 7, v204")
    def flaga():
        e(f"s_lshl_b32 s{T0}, s{SIDX}, 7"); e(f"s_cmp_eq_u32 s{SW}, 0"); e(f"s_cselect_b32 s{T0}, s{T0}, {OOR}")
        e("s_barrier")
        e("s_mov_b64 exec, 1"); e(f"buffer_{'atomic_or' if o.apoll else 'store_dword'} v{vVal}, off, {SRD}, s{T0} sc1"); e("s_mov_b64 exec, -1")
        stamp(14)
    def bloads():
        for wt_ in range(o.w2e, 2): raw2(wt_)
        if o.rtb == 4: rowtouch(P_BW1)
        if not o.bin: raw1(P_BW1, RAW1B, "rb")
        else: srt(P_BW1, 0x600000)
    if not o.sf: gocheck(); flaga(); bloads()
    e(f"s_cmp_eq_u32 s{SW}, 0"); e(f"s_cselect_b32 s{T7}, 0, {OOR}")
    if o.gown: srt(P_DBG, 256); e(f"buffer_load_dword v250, v253, {SRT}, s{T7} offen sc1 ;@go2")
    mask64(mM0, 0x0001000100010001)
    mask64(mOWN0, sum(1 << l for l in range(64) if 4*(l >> 4) + (l & 1) <= (l & 15)))
    mask64(mOWN1, sum(1 << l for l in range(64) if 4*(l >> 4) + 2 + (l & 1) <= (l & 15)))
    e(f"s_lshl_b32 s{T1}, s{T6}, 7"); e(f"s_add_u32 s{sFXc}, s{T1}, {WS_FLAGX}")
    e(f"s_lshl_b32 s{T2}, s{SMEM}, 2"); e(f"s_add_u32 s{T1}, s{T1}, s{T2}"); e(f"s_add_u32 s{sFOp}, s{T1}, {WS_FLAGO}")
    e(f"s_lshl_b32 s{T1}, s{SRB}, 1"); e(f"s_add_u32 s{T1}, s{T1}, s{T4}"); e(f"s_lshl_b32 s{T1}, s{T1}, 7")
    e(f"s_add_u32 s{sFOc}, s{T1}, {WS_FLAGO}")
    e(f"s_lshl_b32 s{T2}, s{SCB}, 3"); e(f"s_lshl_b32 s{T0}, s{T3}, 2")
    e(f"s_add_u32 s{T1}, s{T1}, s{T2}"); e(f"s_add_u32 s{T1}, s{T1}, s{T0}"); e(f"s_add_u32 s{sFXp}, s{T1}, {WS_FLAGX}")
    e(f"s_lshl_b32 s{T0}, s{SGRP}, 8"); e(f"s_add_u32 s{sZo}, s{T0}, s{sZP}")
    e(f"s_lshl_b32 s{T1}, s{T3}, 10"); e(f"s_lshl_b32 s{T2}, s{T4}, 19")
    e(f"s_add_u32 s{T1}, s{T1}, s{T2}"); e(f"s_add_u32 s{sCL2}, s{T1}, s{sHALO}")
    e(f"s_cmp_eq_u32 s{SW}, 3"); e(f"s_cselect_b32 s{sHst}, s{sHALO}, {OOR}")
    e(f"s_sub_u32 s{T1}, s{sHALO}, 0x10000"); e(f"s_cmp_eq_u32 s{SW}, 0"); e(f"s_cselect_b32 s{T1}, s{T1}, {OOR}")
    e(f"s_cmp_eq_u32 s{SGRP}, 0"); e(f"s_cselect_b32 s{sHld}, {OOR}, s{T1}")
    e(f"s_lshl_b32 s{T0}, s{SGRP}, 2"); e(f"s_lshl_b64 {sm(mX)}, {255 if o.sx else 15}, s{T0}"); e(f"s_or_b32 s{mX}, s{mX}, s{mX+1}"); e(f"s_mov_b32 s{mX+1}, 0")
    e(f"s_sub_u32 s{T0}, s{sFOp}, s{sFOc}"); e(f"s_lshr_b32 s{T1}, s{T0}, 2"); e(f"s_lshl_b32 s{T1}, 1, s{T1}"); e(f"s_cmp_lt_u32 s{T0}, 128"); e(f"s_cselect_b32 s{T1}, s{T1}, 0")
    e(f"s_andn2_b32 s{mEO}, {(1 << (o.g2depth - 1)) - 1 if o.lazy & 2 else -1}, s{T1}"); e(f"s_mov_b32 s{mEO+1}, 0")
    e(f"s_sub_u32 s{T0}, s{sFXp}, s{sFXc}"); e(f"s_lshr_b32 s{T1}, s{T0}, 2"); e(f"s_lshl_b32 s{T1}, 1, s{T1}"); e(f"s_cmp_lt_u32 s{T0}, 128"); e(f"s_cselect_b32 s{T1}, s{T1}, 0")
    e(f"s_andn2_b32 s{mEX}, {'s%d' % mX if o.lazy & 1 else -1}, s{T1}"); e(f"s_mov_b32 s{mEX+1}, 0")
    e(f"s_lshl_b32 s{sL8}, s{SW}, 11"); e(f"s_lshl_b32 s{sW2l}, s{SW}, 12")
    e(f"s_or_b32 s{T0}, s{SGRP}, s{SW}"); e(f"s_cmp_eq_u32 s{T0}, 0"); e(f"s_cselect_b64 {sm(mFIRST)}, -1, 0")
    e(f"v_add_u32 v{vL64}, 0x10000, v{vL16}"); e(f"v_add_u32 v{vL128}, 0x20000, v{vL16}"); e(f"v_add_u32 v{vLW3}, {(3-o.nopf)*SLOT}, v{vLW}")
    e(f"v_and_b32 v{vFP}, 31, v254"); e(f"v_lshlrev_b32 v{vFP}, 2, v{vFP}")
    e(f"s_lshl_b32 s{T1}, s{T6}, 17"); e(f"v_add_u32 v{vA}, s{T1}, v{vL16}")
    for i in range(1, 4): e(f"v_add_u32 v{vA+i}, {i*0x8000}, v{vA}")
    e(f"s_lshl_b32 s{T1}, s{T6}, 9"); e("v_lshrrev_b32 v213, 5, v254"); e(f"v_lshl_add_u32 v{vSTl}, v213, 17, s{T1}"); e(f"v_lshl_add_u32 v{vSTl}, v{vFP}, 2, v{vSTl}")
    e(f"s_lshl_b32 s{T1}, s{SCB}, 17"); e(f"s_add_u32 s{T1}, s{T1}, s{sLW}"); e(f"v_add_u32 v{vW2}, s{T1}, v{vL16}")
    e("v_lshrrev_b32 v203, 4, v254"); e("v_xor_b32 v204, v203, v201"); e("v_lshlrev_b32 v204, 3, v204"); e("v_lshl_add_u32 v208, v200, 5, v204")
    e(f"s_lshl_b32 s{T2}, s{SW}, 12")
    e(f"v_lshrrev_b32 v204, 2, v{VM}"); e("v_xor_b32 v203, v203, v204"); e("v_lshlrev_b32 v203, 3, v203")
    e(f"v_lshl_add_u32 v203, v{VM}, 5, v203"); e(f"v_add_u32 v{vXW}, s{T2}, v203")
    e(f"s_lshl_b32 s{T0}, s{T4}, 14"); e(f"s_lshl_b32 s{T1}, s{T3}, 9"); e(f"s_add_u32 s{T2}, s{T0}, s{T1}"); e(f"v_add_u32 v{vE0}, s{T2}, v208")
    e(f"v_xor_b32 v{vE1}, 512, v{vE0}"); e(f"s_add_u32 s{T1}, s{T1}, {VB_LDS}"); e(f"v_add_u32 v{vVr}, s{T1}, v208")
    if o.kt:
        e(f"s_lshl_b32 s{T0}, s{SW}, 12"); e(f"v_add_u32 v{vXW}, s{T0}, v{vL16}")
        e(f"s_lshl_b32 s{T0}, s{SW}, 10"); e(f"s_add_u32 s{T0}, s{T0}, {VB_LDS}"); e(f"v_add_u32 v{vE0}, s{T0}, v{vL16}")
        e(f"s_lshl_b32 s{T0}, s{SW}, 8"); e(f"s_add_u32 s{T0}, s{T0}, {M_ZX}"); e(f"v_lshl_add_u32 v203, v201, 6, v{vG16}"); e(f"v_add_u32 v{vE1}, s{T0}, v203")
        e(f"s_lshl_b32 s{T0}, s{SW}, 6"); e(f"s_add_u32 s{T0}, s{T0}, {M_ZX}"); e(f"v_lshl_add_u32 v203, v201, 8, v{vG16}"); e(f"v_add_u32 v{vVr}, s{T0}, v203")
    e(f"s_lshl_b32 s{T1}, s{T3}, 3")
    e(f"v_add_u32 v{vGM}, {M}, v{vG16}")
    e(f"s_lshl_b32 s{T0}, s{T4}, 6"); e(f"s_add_u32 s{T0}, s{T0}, s{T1}"); e(f"v_add_u32 v{vZW}, s{T0}, v{vGM}")
    e(f"s_lshl_b32 s{T0}, s{SW}, 10"); e(f"s_add_u32 s{T0}, s{T0}, {M_KX}"); e(f"v_add_u32 v{vKX}, s{T0}, v{vL16}")
    e(f"v_add_u32 v{vKX0}, s{T1}, v{vKX}"); e(f"v_xor_b32 v{vKX1}, 8, v{vKX0}")
    e(f"s_lshl_b32 s{T0}, s{SW}, 9"); e(f"s_add_u32 s{T0}, s{T0}, {M_ST}")
    e(f"v_lshl_add_u32 v203, v213, 2, s{T0}"); e(f"v_lshl_add_u32 v{vSW}, v{vFP}, 1, v203"); e(f"v_lshl_add_u32 v{vSR}, v{VM}, 2, s{T0}")
    e(f"v_add_u32 v{vSQ}, s{T0}, v{vG16}"); e(f"v_lshlrev_b32 v203, 2, v{VM}"); e(f"v_add_u32 v{vCV}, {M_CS}, v203")
    e(f"v_and_b32 v203, 7, v{VM}"); e(f"v_lshl_add_u32 v{vZL}, v203, 8, v{vG16}")
    e("v_mov_b32 v203, 0xffff"); e("v_mov_b32 v204, 0xffff0000"); e(f"v_cndmask_b32 v203, v203, v204, {sm(mPAR)}")
    e(f"v_cndmask_b32 v{MO0}, 0, v203, {sm(mOWN0)}"); e(f"v_cndmask_b32 v{MO1}, 0, v203, {sm(mOWN1)}")
    e(f"v_xor_b32 v{MP0}, v203, v{MO0}"); e(f"v_xor_b32 v{MP1}, v203, v{MO1}")
    e(f"s_add_u32 s{T2}, s{SW}, 4"); e(f"s_min_u32 s{T2}, s{T2}, 5"); e(f"s_mul_i32 s{T0}, s{SMEM}, 12288"); e(f"s_add_u32 s{T0}, s{T0}, {WS_CS}")
    e(f"s_lshl_b32 s{T1}, s{SW}, 11"); e(f"s_add_u32 s{sCSa}, s{T0}, s{T1}"); e(f"s_lshl_b32 s{T1}, s{T2}, 11"); e(f"s_add_u32 s{sCSb}, s{T0}, s{T1}")
    e("v_bfe_u32 v203, v254, 4, 1"); e("v_lshlrev_b32 v203, 3, v203"); e("v_lshl_add_u32 v203, v213, 2, v203"); e("v_lshl_add_u32 v203, v201, 4, v203"); e(f"v_add_u32 v203, {M_CS}, v203")
    e(f"s_lshl_b32 s{T1}, s{SW}, 6"); e(f"v_add_u32 v{vCSa}, s{T1}, v203"); e(f"s_lshl_b32 s{T1}, s{T2}, 6"); e(f"v_add_u32 v{vCSb}, s{T1}, v203")
    e(f"s_lshl_b32 s{T0}, s{SMEM}, 2"); e(f"s_add_u32 s{T0}, s{T0}, s{SW}"); e(f"s_lshl_b32 s{T2}, s{T0}, 7"); e(f"v_mov_b32 v{vCPF}, s{T2}")
    e(f"s_lshr_b32 s{T1}, s{T0}, 3"); e(f"s_and_b32 s{T0}, s{T0}, 7")
    e(f"s_lshl_b32 s{T2}, s{SGRP}, 4"); e(f"s_add_u32 s{T1}, s{T1}, s{T2}"); e(f"s_lshl_b32 s{T1}, s{T1}, 15"); e(f"s_lshl_b32 s{T0}, s{T0}, 9"); e(f"s_add_u32 s{T0}, s{T0}, s{T1}")
    e(f"v_lshl_add_u32 v{vTCH}, v{vG16}, 3, s{T0}")
    for r in range(4): e(f"v_accvgpr_write_b32 a{252+r}, -1")
    def clears():
        e(f"v_mov_b32 v{vVal}, 0"); e(f"s_add_u32 s{T0}, s{sKV}, s{ROTA}")
        e(f"buffer_store_dwordx4 a[252:255], v{vL16}, {SRD}, s{T0} offen sc1")
        e(f"s_mov_b64 exec, {sm(mM0)}"); e(f"buffer_store_dwordx4 a[252:255], v{vG16}, {SRD}, s{sZo} offen sc1")
        e("s_mov_b64 exec, 1"); e(f"buffer_store_dword v{vVal}, off, {SRD}, s{sFOp} sc1"); e(f"buffer_store_dword v{vVal}, off, {SRD}, s{sFXp} sc1"); e("s_mov_b64 exec, -1")
    if not o.sf: clears()
    pl = [f"buffer_load_dword v212, v211, {SRD}, s{T7} offen sc1"]
    if o.apoll: pl = ["v_mov_b32 v212, -1", "s_mov_b32 exec_hi, 0xff", "v_mov_b32 v212, 0", f"buffer_atomic_or v212, v211, {SRD}, s{T7} offen sc0 sc1", "s_mov_b64 exec, -1"]
    W2T, vTRB = (160, 249) if o.sf else (224, 206)
    def w2tr(wt_):
        e(f"WAITV r2{wt_}")
        for b_ in range(2):
            for t in range(2):
                d_ = v(W2T+4*b_+2*t, 2) if wt_ == 0 else a(HW2+4*b_+2*t, 2)
                e(f"ds_read_b64_tr_b16 {d_}, v{vTRB} offset:{2*SLOT + wt_*2048 + t*256 + b_*8}")
    def w2ast():
        e("s_waitcnt lgkmcnt(0)")
        for b_ in range(2): e(f"buffer_store_dwordx4 {v(W2T+4*b_,4)}, v{vL16}, {SRD}, s{sW2s} offen offset:{b_*1024} sc1 ;@b1")
    def retb():
        for blk in range(6):
            for t in range(2): e(f"ds_read_b64_tr_b16 {a(RB+4*blk+2*t,2)}, v{vTRB} offset:{SLOT + (blk>>1)*2048 + t*256 + (blk&1)*8} ;@r{blk}")
        for blk in range(6):
            e(f"WAITL r{blk}")
            e(f"{MF} {a(HCS,4)}, {a(RB+4*blk,4)}, {v(SB+4*blk,4)}, {'0' if blk == 0 else a(HCS,4)}")
    if o.sf:
        assert o.w2e >= 1 and not o.bin and not o.gown and not o.apoll
        e(f"s_lshl_b32 s{T0}, s{SGRP}, 7"); e(f"s_add_u32 s{T0}, s{T0}, {WS_FLAGB + 2048}"); e(f"v_add_u32 v211, s{T0}, v{vFP}")
        e("v_mov_b32 v249, v206")
        stamp(44)
        e(pl[0] + " ;@poll")
        w2tr(0); e("s_waitcnt lgkmcnt(0)")
    elif o.bin:
        w2tr(0); w2ast()
        e("v_mov_b32 v248, v202"); e(f"v_subrev_u32 v249, {RAW1A}, v206")
        stamp(44)
        E([t + (" ;@poll" if t.startswith("buffer") else "") for t in pl])
        w2tr(1); e("s_waitcnt lgkmcnt(0)")
    else:
        e("WAITV rb")
        if o.gown:
            e(f"s_cmp_eq_u32 s{SW}, 0"); e(f"s_cselect_b32 s{T0}, 1, 0"); e("WAITV go2"); e("s_waitcnt lgkmcnt(0)"); e(f"v_cmp_ne_u32 vcc, s{T0}, v250")
            E(retry([f"buffer_load_dword v250, v253, {SRT}, 0 offen sc1"], ["v_cmp_ne_u32 vcc, 1, v250"]))
        stamp(44)
        E([t + (" ;@poll" if t.startswith("buffer") else "") for t in pl])
        w2tr(0); w2tr(1); w2ast()
        retb()
    if not o.sf: e(f"v_mov_b32 v{vVal}, 1")
    stamp(45)
    e("WAITV poll")
    e(f"s_cmp_lg_u32 s{SW}, 0"); e("s_cbranch_scc1 L_faok")
    A.track = False
    e("v_cmp_eq_u32 vcc, 0, v212"); e("s_cbranch_vccz L_fad")
    spin(([f"s_sleep {o.psl}"] if o.psl else []) + pl, ["v_cmp_eq_u32 vcc, 0, v212"])
    A.label("L_fad")
    e(f"v_cmp_ne_u32 {sm(T1)}, s{SXCC}, v212"); e(f"v_mov_b32 v212, s{T1}")
    e(f"ds_write_b32 v{vGM}, v212"); e("s_waitcnt lgkmcnt(0)")
    A.track = True
    A.label("L_faok")
    if o.sf: flaga()
    else: e("s_barrier")
    stamp(15)
    e(f"ds_read_b32 v{FBV}, v{vGM} ;@mode")

    for lay in range(o.last + 1):
        par = lay & 1; early = lay < 2; li = lay >> 1; last = lay == o.last
        A.label(f"L_layer{lay}")
        if lay == o.dlay:
            for j in range(o.dn): e("s_sleep 127")
        stamp(0)
        pool = list(range(RING, 240 - 48*o.NRES, 4))
        if lay == 0: pool += [RS(1, k) + 4*j for k in range(1, o.NRES + 1) for j in range(6)]
        if lay == 2 or (lay == 3 and not o.pf3): pool += [RS(0, k) + 4*j for k in range(o.NRES + 1) for j in range(6)] + [240, 244, 248, 252]
        nd = (o.ND0, 0, o.ND2, 0)[lay]; TB = o.TB if par else 0
        LAF = 4*(o.LA0, o.LAB, o.LA2, o.LA3)[lay]; NF = max(4*nd, LAF + 4)
        assert NF + 2*nd - 2 <= len(pool) and o.kq and not o.kt
        gpos = o.gpos if lay == 0 else o.gpos2
        vn = par or o.kt
        TA = (o.TA0, 0, o.TA2, 0)[lay]
        assert TA % 2 == 0 and TA <= nd
        sxi = lay > 0 and o.sx >> (lay-1) & 1
        sxo = not last and o.sx >> lay & 1
        TS = o.TS if sxi else 0
        units = [([(st, c) for c in range(6)], bl, k) for bl, k in (((0, 2), "S"), ((1, 3), "R")) for st in range(TS)]
        units += [([(st, c) for c in range(2 if st >= 32 - nd else 0, 6)], (0, 1, 2, 3), "") for st in range(TS, 32 - TB - TA)]
        units += [([(st, c) for c in range(6)], bl, k) for bl, k in (((2, 3), "X"), ((0, 1), "Y")) for st in range(32 - TB, 32)]
        units += [([(st+j, c) for j in range(2) for c in cc], (0, 1, 2, 3), k) for cc, k in (((2, 3), "K"), ((4, 5), "V")) for st in range(32 - TA, 32, 2)]
        anext = []
        for gr, bl, k in units:
            for st, c in gr:
                anext += [(st, i) for i in bl if (st, i) not in anext]
        fidx = {k: n for n, k in enumerate(anext)}
        def afr(step, i): return a(pool[fidx[(step, i)] % NF], 4)
        def wq(step, c): return a(pool[NF + 2*(step - (33-nd)) + c], 4) if step > 32 - nd else v(WFV + 4*c, 4)
        def wreg(u, gi): return v(WFV + 4*(gi + 6 - len(units[u][0])), 4)
        def wrd(dst, step, c): return ldsrd(dst, ((step//4 + 1) % 6)*SLOT + (step % 4)*6144 + c*1024)
        def w1rd(u, gi): return wrd(wreg(u, gi), *units[u][0][gi]) + f" ;@w{u}_{gi}"
        wqq = [(st, c) for st in range(32 - nd, 32) for c in range(2)]
        def aload(step, i):
            return f"buffer_load_dwordx4 {afr(step, i)}, v{vA+i}, {SRD}, s{ROTA + step//4} offen offset:{(step%4)*1024} sc1 ;@A{step}_{i}"
        def mma(w, step, c, i):
            x, y = (afr(step, i), w) if (vn and c >= 4) else (w, afr(step, i))
            return f"{MF} {v(acc(c,i),4)}, {x}, {y}, {'0' if step == 0 else v(acc(c,i),4)}"
        def ostore(i, through):
            t = f"buffer_store_dwordx4 {v(224+4*i,4)}, v{vA+i}, {SRD}, s{sO} offen"
            if through: e(wt(t))
            else: st_mode([t])
        if lay == 0 and not o.sf:
            for c in range(6): e(w1rd(0, c))
        for j in range(4*o.APRE): e(aload(*anext.pop(0)))
        nbar = 0
        if lay == 0 and o.sf:
            bloads(); clears(); w2ast(); e(f"v_mov_b32 v{vVal}, 1")
            e(f"v_readfirstlane_b32 s{SMODE}, v{FBV}")
            for c in range(6): e(w1rd(0, c))
        elif lay == 0:
            for i in range(6): E(w1_piece(par, 1, i))
            e("WAITL mode"); e(f"v_readfirstlane_b32 s{SMODE}, v{FBV}")
        elif sxi:
            E(xcvt(1)); xtile(False, (1,))
            if lay == 1:
                for i in range(6): E(w1_piece(par, 1, i))
            while rslot and rslot[0] <= 2: e(rw.pop(0)); rslot.pop(0)
            e("s_waitcnt lgkmcnt(0)"); e("s_barrier")
            for c in range(6): e(w1rd(0, c))
        else:
            if o.lazy & 1: poll2(sFXc)
            e("s_waitcnt lgkmcnt(0)"); e("s_barrier")
            for c in range(6): e(w1rd(0, c))
        wr, w1s, w2r, w2s = (o.wrE, o.w1sE, o.w2E, o.w2sE) if early else (o.wrL, o.w1sL, o.w2L, o.w2sL)
        if par: w2r, w2s = (o.w2BE, o.w2sBE) if early else (o.w2BL, o.w2sBL)
        if lay == 3: wr = o.wrBL
        if lay == 0: wr, w1s = o.wr0, max(o.w1s0, o.sfu*o.sf)
        pend = [("W", st, i) for st in range(2 if early else 2 + o.NRES - o.nopf + (o.pf3 if lay == 3 else 0), 8) for i in range(6)] + [("W2", p, i) for p in range(4 + par) for i in range(6)]
        def allowed(p, t):
            if p[0] == "W" and p[1] == 5 and lay == 0 and o.bin and not ready("r5"): return False
            if p[0] == "W": return p[1] < 6 or nbar >= p[1] - 4
            return nbar >= p[1] + 4 and t >= w2s and (lay > 0 or fbdone[0])
        fbdone = [False]
        misc = [(max(o.s0 + o.sper*j, o.lazy & 1), [f"s_mov_b32 s{T0}, {WS_ST + j*16384}", f"buffer_load_dwordx4 {v(160+4*j,4)}, v{vSTl}, {SRD}, s{T0} offen sc1 ;@S{j}"]) for j in range(8)]
        extra = []
        extra2 = []; sh2 = []
        sh = []
        if sxi: sh += sum(([(1, None, [x + " ;@rs"]), (1, None, []), (1, None, [])] for x in rw), [])
        if lay == 3 and o.pf3:
            assert o.NRES == 2 and not o.nopf
            for k in range(o.pf3):
                ad, off = ((vLW3, 2*SLOT), (vLW, 0))[k]
                sh += sum(([(o.pft, None, [f"ds_write_b128 v{ad}, {a(RS(0, k)+4*b_,4)} offset:{off + b_*1024} ;@rs"])] + [(o.pft, None, [])]*o.pfg for b_ in range(6)), [])
        xok = [not sxi]
        if sxi: extra2 = [(o.sx0 + j*o.sxp/10, x[1]) for j, x in enumerate(misc)]; misc = []
        if early:
            for j in range(4):
                extra.append((4 + j, [f"buffer_load_dwordx4 {v(224+8*(j//2)+4*(j%2),4)}, v{vL16}, {SRD}, s{(sCSa, sCSb)[j%2]} offen offset:{(j//2)*1024} sc1 ;@CS{j}"]))
            d = 224
            r = [f"v_add_f32 v{d+j}, v{d+j}, v{d+8+j}" for j in range(8)]
            for s_ in (8, 4): r += [f"v_add_f32_dpp v{d+j}, v{d+j}, v{d+j} row_ror:{s_} row_mask:0xf bank_mask:0xf" for j in range(8)]
            r = [r[j:j+2] for j in range(0, len(r), 2)] + [[f"v_permlane32_swap_b32 v{d+j}, v{d+j+1}"] for j in range(0, 8, 2)]
            r += [[f"v_add_f32 v{d+j}, v{d+j}, v{d+j+1}", f"v_add_f32 v{d+j+2}, v{d+j+2}, v{d+j+3}"] for j in (0, 4)]
            r += [[f"v_permlane16_swap_b32 v{d}, v{d+2}"], [f"v_permlane16_swap_b32 v{d+4}, v{d+6}"], [f"v_add_f32 v{d}, v{d}, v{d+2}", f"v_add_f32 v{d+4}, v{d+4}, v{d+6}"],
                  ["s_mov_b32 exec_lo, 0x000f000f", "s_mov_b32 exec_hi, 0x000f000f", f"ds_write_b32 v{vCSa}, v{d} offset:{par*384}", f"ds_write_b32 v{vCSb}, v{d+4} offset:{par*384} ;@csw",
                   "s_mov_b64 exec, -1"], [f"s_add_u32 s{sCSa}, s{sCSa}, {CS_SZ}", f"s_add_u32 s{sCSb}, s{sCSb}, {CS_SZ}"]]
            caps = [[(8 + 4*k - 4*o.nopf, None, [f"ds_read_b128 {a(RS(par, k+1)+4*b_,4)}, v{vLW3} offset:{k*SLOT + b_*1024}"]) for b_ in range(6)] for k in range(o.NRES)]
            sh += (caps[0] if caps else []) + [(8, "CS3", x) for x in r] + sum(caps[1:], [])
        if lay == 0 and o.bin:
            rbl = [[f"s_mov_b32 s{T2}, m0", f"s_add_u32 m0, s{sLW}, {j*1024}", f"s_add_u32 s{T1}, s{T5}, {(j>>1)*2048 + (j&1)*16*6144}",
                    f"buffer_load_dwordx4 v248, {SRT}, s{T1} offen lds ;@rb{j}", f"s_mov_b32 m0, s{T2}"] for j in range(6)]
            extra2 = [(o.bs0 + j, x) for j, x in enumerate(rbl)]
            r = [[f"ds_read_b64_tr_b16 {a(RB+4*blk+2*t,2)}, v249 offset:{(blk>>1)*2048 + t*256 + (blk&1)*8} ;@r{blk}" for t in range(2)] for blk in range(6)]
            for blk in range(6):
                q_ = 240 + 4*(blk & 1); mk = 0x00010001 << blk
                r += [[f"s_mov_b32 s{T3}, {mk}", f"s_mov_b32 s{T4}, {mk}"]] + [[f"v_cndmask_b32 v{q_+j}, 0, v{ONES}, {sm(T3)}" for j in jj] for jj in ((0, 1), (2, 3))]
                r += [[f"WAITL r{blk}", f"{MF} {a(HCS,4)}, {a(RB+4*blk,4)}, {v(q_,4)}, {'0' if blk == 0 else a(HCS,4)}"]]
            sh = [x for x in sh if x[0] <= 8 and x[1] is None] + [(0, "rb5", x) for x in r[:6]] + [x for x in sh if not (x[0] <= 8 and x[1] is None)]
            sh2 = r[6:]
        if lay == 0:
            extra.insert(0, (4, fb_set(0)))
            extra.append((w2s - 8, [t + (" ;@F" if t.startswith("buffer") else "") for t in fb_body(0)]))
        dl = []
        if lay == 0:
            dl = [[f"s_add_u32 s{D2}, s{ROTW}, {WS_W1[1]}", f"s_add_u32 s{D4}, s{D2}, 4096", w1st(a(RB,4), 0, D2, D4)]] + [[w1st(a(RB+4*b_,4), b_, D2, D4)] for b_ in range(1, 6)]
            dl += [[f"s_add_u32 s{D1}, s{sW2s}, {WS_W2[1] - WS_W2[0]}", f"buffer_store_dwordx4 {a(HW2,4)}, v{vL16}, {SRD}, s{D1} offen sc1"],
                   [f"buffer_store_dwordx4 {a(HW2+4,4)}, v{vL16}, {SRD}, s{D1} offen offset:1024 sc1", f"s_add_u32 s{D1}, s{sCL0}, {CS_SZ}"] + csst(a(HCS,4), D1),
                   [f"buffer_store_dwordx4 a[252:255], v{vL16}, {SRD}, s{sCL2} offen sc1"],
                   [f"s_add_u32 s{D1}, s{sKV}, s{ROTA}", f"s_add_u32 s{D1}, s{D1}, 0x100000", f"buffer_store_dwordx4 a[252:255], v{vL16}, {SRD}, s{D1} offen sc1",
                    f"s_add_u32 s{D1}, s{sZo}, 0x10000", f"s_mov_b64 exec, {sm(mM0)}", f"buffer_store_dwordx4 a[252:255], v{vG16}, {SRD}, s{D1} offen sc1 ;@b2", "s_mov_b64 exec, -1"]]
        if dl and o.dg:
            assert not o.bin and not o.sf
            extra2 = [(o.dg0 + j_*o.dgp/10, x) for j_, x in enumerate(dl[:o.dg])]; dl = dl[o.dg:]
        def codepf(lbl): return [f"s_add_u32 s{T1}, s{sPC}, {lbl}-L_pc", f"s_addc_u32 s{T2}, s{sPC+1}, 0", f"global_load_dword v{vJUNK}, v{vCPF}, {sm(T1)}"]
        if o.cpf2: extra.append((o.cpf2, codepf(f"L_epi{lay}")))
        if o.cpf3 and not last: extra.append((o.cpf3, codepf("L_ool")))
        if lay > 0:
            for j_ in range(0 if (o.o4 and last) else o.of if par else o.of2): extra.append((o.ot0 + j_, [f"s_mov_b32 s{T1}, {WS_O + 4096*j_}", f"buffer_load_dword v{vJUNK}, v{vTCH}, {SRD}, s{T1} offen sc1"]))
            extra.sort(key=lambda x: x[0])
        r = []
        for st in (16, 8, 4):
            r += [[f"v_add_f32 v{160+j}, v{160+j}, v{160+j+st}", f"v_add_f32 v{161+j}, v{161+j}, v{161+j+st}"] for j in range(0, st, 2)]
        r += [["s_nop 0"], ["v_permlane32_swap_b32 v160, v162"], ["v_permlane32_swap_b32 v161, v163"], ["v_add_f32 v160, v160, v162", "v_add_f32 v161, v161, v163"],
              [f"v_mul_f32 v163, {f32hex(-1.0/1024)}, v160", f"v_mul_f32 v161, {f32hex(1.0/1024)}, v161"], ["v_fma_f32 v161, -v163, v163, v161", "v_max_f32 v161, 0, v161"],
              [f"v_add_f32 v161, {f32hex(1e-5)}, v161"], ["v_rsq_f32 v162, v161"], [f"ds_write2_b32 v{vSW}, v162, v163 offset0:0 offset1:64"]]
        r += [[f"ds_read2_b32 {v(STP+2*i,2)}, v{vSR} offset0:{16*i} offset1:{64+16*i}"] for i in range(4)]
        if vn: r += [[f"ds_read_b128 {v(224+16*j+4*i,4)}, v{vSQ} offset:{256*j + 64*i}"] for j in range(2) for i in range(4)]
        sh += [(0, "S7", x) for x in r]
        sh += [(0, "csbar", [f"ds_read_b128 {v(CSR+4*c,4)}, v{vGM} offset:{M_CS-M+par*384+c*64} ;@cs"]) for c in range(4 if vn else 6)]
        if vn: sh += [(0, "csbar", [f"ds_read2_b32 {v(CSR+16,2)}, v{vCV} offset0:{64+96*par} offset1:{80+96*par} ;@cs"])]
        for t_ in ["S7", "CS3", "F", "csw", "cs"] + [f"W{j}" for j in range(2, 8)]: A.seen.discard(t_)
        csbar = not early
        def ready(tag):
            if tag is None: return True
            if tag == "csbar": return csbar
            return tag in A.seen and not A.pending(tag)
        fix = {(cc, ii): [f"v_fmac_f32 v{acc(cc,ii)+j}, v{CSR+12+cc}, v{240+4*ii+j}" if vn and cc >= 4 else
                          f"v_fmac_f32 v{acc(cc,ii)+j}, v{CSR+4*cc+j}, v{STP+2*ii+1}" for j in range(4)] for cc in range(6) for ii in range(4)}
        fix["ci"] = [f"v_mul_f32 v{CI+ii}, {CK[par]}, v{STP+2*ii}" for ii in range(4)]
        ysh = []
        if par:
            VT = lambda db, i: 168 + 10*db + 2*(i+1)
            KP = 188
            def two(l): return [l[j:j+2] for j in range(0, len(l), 2)]
            def vcvt(i, d0, d1): return [f"v_cvt_pk_bf16_f32 v{d+h}, v{acc(4+db,i)+2*h}, v{acc(4+db,i)+2*h+1}" for db, d in enumerate((d0, d1)) for h in range(2)]
            def kmul(i): return [f"v_mul_f32 v{acc(c,i)+j}, v{acc(c,i)+j}, v{STP+2*i}" for c in (2, 3) for j in range(4)]
            def vmul(i): return [f"v_mul_f32 v{acc(c,i)+j}, v{acc(c,i)+j}, v{224+4*i+j}" for c in (4, 5) for j in range(4)]
            def kcvt(i): return cvt4l(acc(2,i), acc(2,i), acc(3,i))
            def qcvt(i): return cvt4l(acc(0,i), acc(0,i), acc(1,i))
            def sown(i): return f"{MF} {v(acc(3,i),4)}, {v(acc(2,i),4)}, {v(acc(0,i),4)}, 0"
            def sprev(i): return f"{MF} {v(acc(1,i),4)}, {v(acc(2,i-1) if i else KP,4)}, {v(acc(0,i),4)}, 0"
            def sel(i):
                so, sp, z = acc(3,i), acc(1,i), acc(5,i)
                r = [f"v_cndmask_b32 v{b}, v{b}, v{b+1}, {sm(mPAR)}" for b in (so, so+2, sp, sp+2)]
                if i == 0: r += [f"v_cndmask_b32 v{b}, v{b}, v217, {sm(mFIRST)}" for b in (sp, sp+2)]
                return r + [f"v_cndmask_b32 v{z}, v{sp}, v{so}, {sm(mOWN0)}", f"v_cndmask_b32 v{z+1}, v{sp+2}, v{so+2}, {sm(mOWN1)}", f"v_max_f32 v{z+2}, v{z}, v{z+1}"]
            def soft(blks):
                Z = [(acc(5,i), i) for i in blks]
                r = [f"v_sub_f32 v{z+h}, v{z+h}, v{z+2}" for z, i in Z for h in range(2)] + [f"v_mul_f32 v{z+h}, v{z+h}, v{CI+i}" for z, i in Z for h in range(2)]
                r += [f"v_exp_f32 v{z+h}, v{z+h}" for z, i in Z for h in range(2)] + [f"v_cvt_pk_bf16_f32 v{z+h}, v{z+h}, v{z+h}" for z, i in Z for h in range(2)]
                for z, i in Z: r += [f"v_and_b32 v{acc(4,i)+j}, v{z+(j&1)}, v{mk}" for j, mk in enumerate((MP0, MP1, MO0, MO1))]
                return r
            def pv(i): return [f"{MF} {v(acc(5,i),4)}, {v(ONES,4)}, {v(acc(4,i),4)}, 0"] + [f"{MF} {v(acc(1+2*db,i),4)}, {v(VT(db,i-1),4)}, {v(acc(4,i),4)}, 0" for db in range(2)]
            hl = [f"buffer_load_dwordx4 v[240:243], v{vL16}, {SRD}, s{sHld} offen sc1", f"buffer_load_dwordx4 v[244:247], v{vL16}, {SRD}, s{sHld} offen offset:1024 sc1"]
            z3 = acc(5,3)
            ysh += two(kmul(3) + kcvt(3)) + [[f"buffer_store_dwordx4 {v(acc(2,3),4)}, v{vL16}, {SRD}, s{sHst} offen sc1"]]
            ysh += two(vmul(3) + vcvt(3, 248, 250)) + [[f"buffer_store_dwordx4 v[248:251], v{vL16}, {SRD}, s{sHst} offen offset:1024 sc1"]]
            ysh += [[f"ds_write_b128 v{vKX}, {v(acc(2,3),4)} offset:1024"]] + two(vcvt(3, VT(0,3), VT(1,3)))
            ysh += [[f"ds_write_b128 v{vKX}, v[248:251] offset:{M_VX-M_KX+1024} ;@xw"]]
            ysh += two(kmul(2) + kcvt(2) + qcvt(3)) + [[sown(3)], [sprev(3)]] + two(vmul(2) + vcvt(2, VT(0,2), VT(1,2)))
            ysh += [["WAITL xw", "s_barrier"], [f"ds_read_b128 {v(KP,4)}, v{vKX}"]] + [[f"ds_read_b64 {v(VT(db,-1),2)}, v{vKX} offset:{M_VX-M_KX+8*db}"] for db in range(2)]
            ysh += two(sel(3)) + [[f"v_mov_b32 v{z3+3}, v{z3+2}"]] + two(qcvt(2))[:1] + [[f"v_permlane32_swap_b32 v{z3+2}, v{z3+3}"], [f"v_max_f32 v{z3+2}, v{z3+2}, v{z3+3}", f"v_mov_b32 v{z3+3}, v{z3+2}"]]
            ysh += two(qcvt(2))[1:] + [[f"v_permlane16_swap_b32 v{z3+2}, v{z3+3}"], [f"v_max_f32 v{z3+2}, v{z3+2}, v{z3+3}"], [sown(2)]]
            s3 = soft((3,))
            ysh += two(s3[:4]) + [s3[4:5], s3[5:6]] + two(s3[6:]) + [[f"v_mov_b32 v217, {f32hex(-3.0e38)}"]] + [[x] for x in pv(3)] + [[], []]
            ysh += [[f"v_rcp_f32 v{z3}, v{z3}"]] + two([f"v_mul_f32 v{acc(1+2*db,3)+j}, v{acc(1+2*db,3)+j}, v{z3}" for db in range(2) for j in range(4)] + cvt4l(236, acc(1,3), acc(3,3)))
            ysh += [lambda: ostore(3, o.oall or (o.o4 and last))]
            ysh.insert(len(ysh) - o.hpos, [hl[0]]); ysh.insert(len(ysh) - o.hpos, [hl[1] + " ;@hl"])
        def trees(c0, MX, MN):
            r = []
            for i in (3, 2, 1, 0):
                p0, p1 = acc(c0,i), acc(c0+1,i)
                for op, op2, d in (("v_max3_f32", "v_max_f32", MX+i), ("v_min3_f32", "v_min_f32", MN+i)):
                    r += [f"{op} v{d}, v{p0}, v{p0+1}, v{p0+2}", f"{op} v{d}, v{d}, v{p0+3}, v{p1}", f"{op} v{d}, v{d}, v{p1+1}, v{p1+2}", f"{op2} v{d}, v{d}, v{p1+3}"]
            return r
        def scal(MX, MN): return sum(([f"v_mul_f32 v{MX+i}, -v{MX+i}, v{CI+i}", f"v_mul_f32 v{MN+i}, v{MN+i}, v{CI+i}"] for i in range(4)), [])
        fdone = []
        if TA:
            assert not o.kt
            MX, MN = 168, 172
            r = trees(2, MX, MN); ysh += [[]] + [r[j:j+2] for j in range(0, len(r), 2)]
            r = xreduce([("v_max_f32", [MX, MX+1, MX+2, MX+3]), ("v_min_f32", [MN, MN+1, MN+2, MN+3])], True)
            while r:
                n_ = 1 if "permlane" in r[0] or len(r) < 2 or "permlane" in r[1] else 2
                ysh.append(r[:n_]); r = r[n_:]
            r = scal(MX, MN); ysh += [r[j:j+2] for j in range(0, len(r), 2)]
            for i in range(4):
                for fb in range(2):
                    for j in range(4):
                        x = acc(2+fb,i)+j
                        ysh.append(lambda i=i, fb=fb, j=j, x=x: (E([f"v_fma_f32 v{224+8*i+4*fb+j}, v{x}, v{CI+i}, v{MX+i}", f"v_fma_f32 v{x}, -v{x}, v{CI+i}, v{MN+i}"]), fdone.append((i, fb, j))))
        def Y():
            x = ysh.pop(0)
            if callable(x): x()
            else: E(x)
        credit = 0.5 if (lay == 1 and o.lazy & 1) else 0.0; t = 0.0; nbar = 0; credit2 = 0.0; lastk = "W"
        def waita(st, bl):
            assert not any((st, i) in anext for i in bl), (lay, st)
            e("WAITV " + " ".join(f"A{st}_{i}" for i in bl))
        for u, (gr, bl, kind) in enumerate(units):
            step = gr[0][0]; cs_ = [c for st, c in gr]
            half = len(bl) == 2; ng = len(gr); inY = kind in ("Y", "V")
            waita(step, bl)
            if lay == 0 and o.sf:
                pw = f"buffer_load_dword v{FBV}, v250, {SRD}, s{T7} offen sc1"
                if u == o.sfu - 1: e(pw + " ;@pw")
                if u == o.sfu:
                    e("WAITV pw rb"); e(f"s_cmp_lg_u32 s{SW}, 0"); e("s_cbranch_scc1 L_pwok")
                    A.track = False
                    e(f"v_cmp_eq_u32 vcc, 0, v{FBV}"); e("s_cbranch_vccz L_pwok"); spin([pw], [f"v_cmp_eq_u32 vcc, 0, v{FBV}"])
                    A.track = True
                    A.label("L_pwok"); e("s_barrier")
                    for i in range(6): E(w1_piece(par, 1, i))
                    e("s_waitcnt lgkmcnt(0)"); w2tr(1); e("s_waitcnt lgkmcnt(0)"); retb()
            if sxi:
                if u == o.f1: sig(sFXp, 2*lay, "xs1")
                if u == o.p1: poll2(sFXc)
                if u == o.c1: poll2chk(sFXc, 2*lay); xok[0] = True
            elif u == 1 and lay > 0 and o.lazy & 1:
                assert anext[0] <= (4, 0) and len(misc) == 8
                poll2chk(sFXc, 2*lay if o.sx else lay)
            if o.jit and u % 5 == 2: stamp(2)
            if o.g1prof and u == 0: stamp(2, 1)
            if u + 1 < len(units) and units[u+1][0][-1][0]//4 > nbar:
                nbar += 1
                assert not any(p[0] == "W" and p[1] <= nbar for p in pend), (lay, u)
                if f"W{nbar}" in A.seen: e(f"WAITV W{nbar}")
                if (sxi and nbar == 2 and rw) or (lay == 3 and o.pf3 and nbar == 4):
                    assert not any(" ;@rs" in y for x in sh for y in x[2]); e("WAITL rs")
                if lay == 0 and nbar == 1: assert not A.pending("b1")
                e("s_barrier")
                if ready("csw"): csbar = True
                if o.g1prof: stamp(2 + nbar, 1)
            if kind == "Y" and step == max(28, 32 - TB):
                e("s_barrier"); nbar = 8
            if inY or kind == "K": assert not sh and all(not x for x in fix.values()), (lay, len(sh), {k: len(x) for k, x in fix.items() if x})
            nslot = 3 if half else ng
            cur = fidx[(step, bl[0])]
            laf = 4*o.APRE if u == 0 else NF - 4 if (TA and t >= o.ramp) else LAF
            ahead = lambda n: n < len(anext) and fidx[anext[n]] < cur + len(bl) + laf and (xok[0] or fidx[anext[n]] < 2*TS)
            plan = []; na = nw = nm = 0
            while len(plan) < nslot and ahead(na) and na < len(bl):
                plan.append("A"); na += 1
            if t >= w1s: credit = min(credit + (wr if (pend and pend[0][0] == "W") else w2r) * len(bl) / 400.0, max(3.0, w2r/100.0))
            while len(plan) < nslot and nw < len(pend) and allowed(pend[nw], t) and credit >= 1:
                plan.append("W"); nw += 1; credit -= 1
            while len(plan) < nslot and nm < len(misc) and misc[nm][0] <= t and xok[0] and not (half and ahead(na)):
                plan.append("M"); nm += 1
            w2c = (0, 0, o.w2c2, o.w2c3)[lay]
            if w2c and nw < len(pend) and pend[nw][0] == "W" and t >= o.w2c0:
                credit2 = min(credit2 + w2c * len(bl) / 400.0, 1.5)
                f2 = next(p for p in pend if p[0] == "W2")
                if len(plan) < nslot and credit2 >= 1 and nbar >= f2[1] + 4: plan.append("C"); credit2 -= 1
            while len(plan) < nslot and ahead(na):
                plan.append("A"); na += 1
            oth = [p for p in plan if p != "A"]; aa = [p for p in plan if p == "A"]; plan = []
            while oth or aa:
                if aa: plan.append(aa.pop())
                if aa and len(aa) >= 2*len(oth): plan.append(aa.pop())
                if oth: plan.append(oth.pop(0))
            if half: plan = sum(([p, None] for p in plan), [])
            for gi, (st_, c) in enumerate(gr):
                vm = None
                if gi and st_ != gr[gi-1][0]: waita(st_, bl)
                for p, i in enumerate(bl if c % 2 == 0 else bl[::-1]):
                    if p == 0: e(f"WAITL w{u}_{gi}")
                    e(mma(wreg(u, gi), st_, c, i))
                    busy = False
                    if p == 0 and gi < len(plan) and plan[gi]:
                        k = plan[gi]
                        if k == "A": vm = [aload(*anext.pop(0))]
                        elif k in "WC":
                            pc = pend[0] if k == "W" else next(p_ for p_ in pend if p_[0] == "W2")
                            pend.remove(pc); vm = (w1_piece if pc[0] == "W" else w2_piece)(par, pc[1], pc[2], pc[0] != lastk); lastk = pc[0]
                        else: vm = misc.pop(0)[1]
                        E(vm[:-1]); busy = len(vm) > 1
                    if p == (0 if half else 1) and vm: e(vm[-1]); busy = True
                    if p == len(bl) - 1:
                        busy = not half and kind != "V"
                        if u + 1 < len(units):
                            g2 = gi + len(units[u+1][0]) - ng
                            if g2 >= 0: e(w1rd(u+1, g2))
                            else: e(wrd(wq(*wqq[0]), *wqq.pop(0)))
                    if p == 2 and ng == 4 and wqq and wqq[0][0]//4 <= nbar and wqq[0][0] <= gr[-1][0] + (2 if kind else 1):
                        e(wrd(wq(*wqq[0]), *wqq.pop(0))); busy = True
                    if busy: continue
                    if inY and not (kind == "V" and p == 2 and gi == 3 and extra):
                        if ysh: Y()
                    elif p == (0 if half else 2) and gi == 3 and extra and extra[0][0] <= t: E(extra.pop(0)[1])
                    elif (p, gi) == ((0, 1) if half else (2, 0)) and extra2 and extra2[0][0] <= t and xok[0]: E(extra2.pop(0)[1])
                    elif p == 2 and lay == 0 and not fbdone[0] and ready("F"):
                        E(fb_cond + retry(fb_body(0), fb_cond)); fbdone[0] = True
                    elif sh:
                        if sh[0][0] <= t and ready(sh[0][1]): E(sh.pop(0)[2])
                        elif sh2 and ready("r5"): E(sh2.pop(0))
                    elif ready("cs"):
                        cc = cs_[(gi + ng//2) % ng]
                        cand = [(cc, ii) for ii in (3, 2, 1, 0)]
                        if step > 32 - nd: cand += [(c2, ii) for c2 in (0, 1) for ii in range(4)]
                        if half and step > 32 - TB: cand += [(c2, ii) for c2 in range(6) for ii in (0, 1)]
                        for k in cand + ["ci"]:
                            if fix[k]:
                                E(fix[k][:2]); fix[k] = fix[k][2:]; break
                        else:
                            if sh2: E(sh2.pop(0))
            t += len(bl) / 4
        assert not wqq and not anext and not misc and not sh and not extra and not extra2 and not sh2 and all(p[0] == "W2" for p in pend), (lay, pend, anext, misc, len(sh), extra)
        assert all(not x for x in fix.values()), (lay, {k: len(x) for k, x in fix.items()})
        assert lay > 0 or fbdone[0]
        left = [w2_piece(par, p[1], p[2], j_ == 0 and lastk == "W") for j_, p in enumerate(pend)]
        lates = [w2_piece(par, 4, i) for i in range(6*(1-par))] + [w2_piece(par, 5, i) for i in range(2)]
        if o.verbose: print("layer", lay, "left", len(left), "ysh", len(ysh))
        A.label(f"L_epi{lay}")
        e("s_waitcnt lgkmcnt(0)"); e("s_barrier")
        stamp(1)
        qm = [mma(wq(step, c), step, c, i) for step in range(32-nd, 32) for c in range(2) for i in (range(4) if c == 0 else reversed(range(4)))]

        if par == 0:
            def feat_head(c0, tmp, hook=None):
                MX, MN = tmp, tmp+4
                if c0 == 2 and TA:
                    MX, MN = 168, 172
                    while ysh and (not callable(ysh[0]) or len(fdone) % 2): Y()
                    ysh.clear()
                else:
                    E(trees(c0, MX, MN))
                    if hook: hook()
                    xreduce([("v_max_f32", [MX, MX+1, MX+2, MX+3]), ("v_min_f32", [MN, MN+1, MN+2, MN+3])])
                    E(scal(MX, MN))
                for i in range(4):
                    for fb in range(2):
                        for h in range(2):
                            if c0 == 2 and (i, fb, 2*h) in fdone: continue
                            pk_fma(224+8*i+4*fb+2*h, acc(c0+fb,i)+2*h, CI+i, MX+i)
                            pk_fma(acc(c0+fb,i)+2*h, acc(c0+fb,i)+2*h, CI+i, MN+i, negx=True)
                if c0 == 2 and TA: hook()
            def feat_tail(c0, F, G_, S0, S1, post, mid=None, hooks={}):
                def norm_(i):
                    sq = S0 if i % 2 == 0 else S1
                    e(f"v_rcp_f32 v{184+2*i}, v{sq}"); e(f"v_rcp_f32 v{185+2*i}, v{sq+4}")
                    for r in range(0, 8, 2): pk_mul(224+8*i+r, 224+8*i+r, 184+2*i)
                    cvt4(F+4*i, 224+8*i, 224+8*i+4)
                    if post: e(post(i, 0))
                    for fb in range(2):
                        for h in range(2): pk_mul(acc(c0+fb,i)+2*h, acc(c0+fb,i)+2*h, 185+2*i)
                    cvt4(G_+4*i, acc(c0,i), acc(c0+1,i))
                    if post: e(post(i, 1))
                for i in range(4):
                    if i in hooks: hooks[i]()
                    for r in range(8): e(f"v_exp_f32 v{224+8*i+r}, v{224+8*i+r}")
                    for fb in range(2):
                        for r in range(4): e(f"v_exp_f32 v{acc(c0+fb,i)+r}, v{acc(c0+fb,i)+r}")
                    if 0 < i < 3: norm_(i-1)
                    sq = S0 if i % 2 == 0 else S1
                    cvt4(F+4*i, 224+8*i, 224+8*i+4); cvt4(G_+4*i, acc(c0,i), acc(c0+1,i))
                    e(f"{MF} {v(sq,4)}, {v(ONES,4)}, {v(F+4*i,4)}, 0"); e(f"{MF} {v(sq+4,4)}, {v(ONES,4)}, {v(G_+4*i,4)}, 0")
                if 4 in hooks: hooks[4]()
                if mid: mid()
                norm_(2)
                if 5 in hooks: hooks[5]()
                norm_(3)
            if o.kt:
                allp = left + lates; nk = max(0, len(left) + o.kl); left, lates = allp[:nk], allp[nk:]
            dl2 = dl[o.dk:]; dl = dl[:o.dk]; mix = []
            for j_ in range(max(len(left), len(dl))): mix += left[j_:j_+1] + dl[j_:j_+1]
            per = o.aper0 if dl else o.aper
            A.bgset(mix, per, per)
            SEL = 160 if o.kt else 128
            def mksel():
                e(f"s_andn2_b64 {sm(T1)}, {sm(mDIAG)}, {sm(mB1)}"); e(f"s_and_b64 {sm(T3)}, {sm(mDIAG)}, {sm(mB1)}")
                e(f"v_or_b32 v{SEL}, v{MO0}, v{MP0}"); e(f"v_and_b32 v{SEL}, v{SEL}, v{ONES}")
                e(f"v_cndmask_b32 v{SEL+2}, 0, v{SEL}, {sm(T1)}"); e(f"v_cndmask_b32 v{SEL+3}, 0, v{SEL}, {sm(T3)}")
                for r in (0, 1, 4, 5): e(f"v_mov_b32 v{SEL+r}, 0")
            if o.kt:
                def vprep():
                    for db in range(2):
                        for i in range(4):
                            for h in range(2): e(f"v_pk_mul_f32 {v(acc(4+db,i)+2*h,2)}, {v(acc(4+db,i)+2*h,2)}, {v(224+4*i+2*h,2)}")
                        for p in range(2): cvt4(acc(4+db,2*p), acc(4+db,2*p), acc(4+db,2*p+1))
                    mksel()
                feat_head(2, 208, vprep)
                TT = lambda t, fb, i: 224+8*i+4*fb if t == 0 else acc(2+fb, i)
                FF = lambda t, i: 192+8*(i%2)+4*t
                SS = lambda t, i: 176+8*(i%2)+4*t
                ET = lambda t, fb: 132+16*t+8*fb
                KV = lambda t, fb, db: TT(t, fb, db)
                ZZ = lambda t, fb: (168, 208)[t] + 4*fb
                def ex(i): return [f"v_exp_f32 v{TT(t,fb,i)+r}, v{TT(t,fb,i)+r}" for t in range(2) for fb in range(2) for r in range(4)]
                def tr(i):
                    for t in range(2): cvt4(FF(t,i), TT(t,0,i), TT(t,1,i))
                    r = []
                    for t in range(2):
                        r += [f"{MF} {v(SS(t,i),4)}, {v(FF(t,i),4)}, {v(ONES,4)}, 0"] + [f"{MF} {v(TT(t,fb,i),4)}, {v(FF(t,i),4)}, {v(SEL+2-2*fb,4)}, 0" for fb in range(2)]
                    return r
                def ecv(i, t): return [f"v_cvt_pk_bf16_f32 v{ET(t,fb)+2*(i%2)+h}, v{TT(t,fb,i)+2*h}, v{TT(t,fb,i)+2*h+1}" for fb in range(2) for h in range(2)]
                def nrm(i, ms=[]):
                    mix2(list(ms), [f"v_rcp_f32 v{SS(t,i)+r}, v{SS(t,i)+r}" for t in range(2) for r in range(4)], 1)
                    for t in range(2):
                        for fb in range(2):
                            for h in range(2): e(f"v_pk_mul_f32 {v(TT(t,fb,i)+2*h,2)}, {v(TT(t,fb,i)+2*h,2)}, {v(SS(t,i)+2*h,2)}")
                def kvm(p, t):
                    r = [f"{MF} {v(KV(t,fb,db),4)}, {v(ET(t,fb),4)}, {v(acc(4+db,2*p),4)}, {v(KV(t,fb,db),4) if p else 0}" for db in range(2) for fb in range(2)]
                    return r + [f"{MF} {v(ZZ(t,fb),4)}, {v(ET(t,fb),4)}, {v(ONES,4)}, {v(ZZ(t,fb),4) if p else 0}" for fb in range(2)]
                def mix2(ms, fs, n):
                    while ms or fs:
                        if ms: e(ms.pop(0))
                        E(fs[:n]); fs = fs[n:]
                E(ex(0))
                mix2(tr(0), ex(1), 1); nrm(0); E(ecv(0,0) + ecv(0,1))
                mix2(tr(1), ex(2), 1); nrm(1); E(ecv(1,0) + ecv(1,1))
                k0 = kvm(0,0) + kvm(0,1)
                mix2(tr(2) + k0[:10], ex(3), 1)
                nrm(2, k0[10:] + tr(3)); E(ecv(2,0) + ecv(2,1)); nrm(3); E(ecv(3,0) + ecv(3,1)[:2])
                A.bgflush()
                def fr(t, db): return cvt4l(192+8*t+4*db, KV(t,0,db), KV(t,1,db)) + [f"ds_write_b128 v{vXW}, {v(192+8*t+4*db,4)} offset:{VB_LDS + (2*t+db)*1024}"]
                mix2(kvm(1,0), ecv(3,1)[2:], 1)
                m1 = kvm(1,1); E(m1[:2]); mix2(m1[2:], fr(0,0) + fr(0,1), 2)
                E(fr(1,0))
                for r in range(4): e(f"v_cndmask_b32 v{168+r}, v{168+r}, v{172+r}, {sm(mPAR)}")
                E(fr(1,1))
                for r in range(4): e(f"v_cndmask_b32 v{208+r}, v{208+r}, v{212+r}, {sm(mPAR)}")
                for r in range(4): e(f"v_cndmask_b32 v{168+r}, v{168+r}, v{208+r}, {sm(mB1)}")
                e(f"ds_write_b128 v{vE1}, v[168:171]")
                e(f"s_add_u32 s{T2}, s{sKV}, s{ROTA}")
                for j in range(2): e(qm.pop(0))
                e("s_waitcnt lgkmcnt(0)"); e("s_barrier")
                stamp(2)
                for j in range(4): e(f"ds_read_b128 {v(96+4*j,4)}, v{vE0} offset:{j*4096} ;@kf{j}")
                e(f"ds_read_b128 v[200:203], v{vVr} ;@kz")
                for j in range(3): e(qm.pop(0))
                for j in range(4):
                    e(f"WAITL kf{j}")
                    for fb in range(2): e(f"{MF} {v(168+4*fb,4)}, {v(SEL+2-2*fb,4)}, {v(96+4*j,4)}, {v(168+4*fb,4) if j else 0}")
                e("WAITL kz")
                for qp in ("[1,0,3,2]", "[2,3,0,1]"):
                    for r in range(4): e(f"v_add_f32_dpp v{200+r}, v{200+r}, v{200+r} quad_perm:{qp} row_mask:0xf bank_mask:0xf")
                cvt4(192, 168, 172)
                e(f"buffer_store_dwordx4 v[192:195], v{vL16}, {SRD}, s{T2} offen sc1"); e(qm.pop(0))
                E([f"s_mov_b64 exec, {sm(mM0)}", f"buffer_store_dwordx4 v[200:203], v{vG16}, {SRD}, s{sZo} offen sc1", "s_mov_b64 exec, -1"])
            else:
                def vall():
                    for i in range(4):
                        for b in range(2):
                            for h in range(2): pk_mul(acc(4+b,i)+2*h, acc(4+b,i)+2*h, STP+2*i)
                        cvt4(acc(4,i), acc(4,i), acc(5,i))
                        e(xw(acc(4,i), VB_LDS//1024 + i))
                feat_head(2, 168, vall)
                feat_tail(2, 200, 144, 168, 176, lambda i, sg: xw((200 if sg == 0 else 144)+4*i, 24 + 16*sg + i))
                A.bgflush()
                e(f"s_add_u32 s{T2}, s{sKV}, s{ROTA}")
                e("s_waitcnt lgkmcnt(0)"); e("s_barrier")
                stamp(2)
                def kvreads(p):
                    b = 96 + 16*(p % 4); r = []
                    for t in range(2):
                        r += [f"ds_read_b64_tr_b16 {v(b+2*t,2)}, v{vE0} offset:{SLOT + (2*p+t)*1024}", f"ds_read_b64_tr_b16 {v(b+8+2*t,2)}, v{vVr} offset:{(2*p+t)*1024} ;@ka{p}"]
                    return r + [f"ds_read_b64_tr_b16 {v(b+4+2*t,2)}, v{vE1} offset:{SLOT + (2*p+t)*1024} ;@kb{p}" for t in range(2)]
                rd = sum((kvreads(p) for p in range(8)), [])
                E(rd[:14]); rd = rd[14:]
                for j in range(4 if o.kq else 2): e(qm.pop(0))
                for p in range(8):
                    b = 96 + 16*(p % 4); z_ = p == 0
                    e(f"WAITL ka{p}")
                    e(f"{MF} v[168:171], {v(b,4)}, {v(b+8,4)}, {'0' if z_ else 'v[168:171]'}"); E(rd[0:2])
                    e(f"{MF} v[200:203], {v(b,4)}, {v(ONES,4)}, {'0' if z_ else 'v[200:203]'}"); E(rd[2:4])
                    e(f"WAITL kb{p}")
                    e(f"{MF} v[172:175], {v(b+4,4)}, {v(b+8,4)}, {'0' if z_ else 'v[172:175]'}"); E(rd[4:6]); rd = rd[6:]
                cv = cvt4l(192, 168, 172)
                zst = [f"s_mov_b64 exec, {sm(mM0)}", f"buffer_store_dwordx4 v[200:203], v{vG16}, {SRD}, s{sZo} offen sc1", "s_mov_b64 exec, -1"]
                kst = f"buffer_store_dwordx4 v[192:195], v{vL16}, {SRD}, s{T2} offen sc1"
                if o.kq:
                    for j in range(2): e(qm.pop(0))
                    e("s_barrier")
                    for j in range(2): e(qm.pop(0))
                    E(cv[:2]); e(qm.pop(0)); E(cv[2:]); e(qm.pop(0))
                    e(kst); e(qm.pop(0)); E(zst)
                else:
                    e(qm.pop(0)); E(cv); e(kst); e(qm.pop(0)); E(zst); e("s_barrier")
            stamp(3)
            A.bgset(lates, o.aper2, 0)
            E(qm)
            def g1(p): return [f"s_add_u32 s{T0}, s{sKV}, s{ROTA+1+p}", f"buffer_load_dwordx4 {v(96+4*p,4)}, v{vL16}, {SRD}, s{T0} offen sc1 ;@g{p}"]
            gz = f"buffer_load_dwordx4 v[192:195], v{vZL}, {SRD}, s{sZP} offen sc1 ;@gz"
            def gather():
                A.bgflush()
                if o.zf: e(gz)
                for p in range(7): E(g1(p))
                if not o.zf: e(gz)
                if lay == 2 and o.pf3 and not last:
                    pf = [([f"s_add_u32 s{D1}, s{ROTW+4+k}, {WS_W1[1] + (b_//4)*4096}"] if b_ % 4 == 0 else []) +
                          [f"buffer_load_dwordx4 {a(RS(0, k)+4*b_,4)}, v{vW1}, {SRD}, s{D1} offen offset:{(b_%4)*1024}"] for k in range(o.pf3) for b_ in range(6)]
                    A.bgset(pf, o.pfp, 0)
                else: A.bgset(dl2, o.aper3, 0)
            if gpos == 0: gather()
            feat_head(0, 196, gather if gpos == 1 else None)
            qmid = None if o.kt else mksel
            feat_tail(0, 204, 136, 152, 176, None, qmid, {gpos - 2: gather})
            A.bgflush()
            nafter = A.after("g6" if o.zf else "gz")
            stamp(4)
            e(f"s_mov_b32 s{sTMO}, {LIM}")
            def kvw():
                cvt4(196, 168, 172)
                if o.kt: e(f"ds_write_b128 v{vKX}, v[196:199]")
                else: e(f"ds_write_b64 v{vKX0}, v[196:197]"); e(f"ds_write_b64 v{vKX1}, v[198:199]")
            def zred(mid=None):
                for s_ in (4, 2, 1):
                    for r in range(4): e(f"v_add_f32_dpp v{192+r}, v{192+r}, v{192+r} row_ror:{s_} row_mask:0xf bank_mask:0xf")
                    if s_ == 2 and mid: mid()
                e("v_cvt_pk_bf16_f32 v192, v192, v193"); e("v_cvt_pk_bf16_f32 v193, v194, v195")
                e(f"s_mov_b64 exec, {sm(mM0)}"); e(f"ds_write_b64 v{vZW}, v[192:193] offset:{M_ZF-M}"); e("s_mov_b64 exec, -1")
            for p in ([7] + list(range(7)) if o.zf else range(8)):
                r0 = 96+4*p if p < 7 else 192; L = f"{lay}_{p}"
                e(f"WAITV g{p if p < 7 else 'z'}")
                A.label(f"L_kvc{L}")
                e(f"v_cmp_eq_u32 vcc, -1, v{r0}"); e(f"s_cbranch_vccnz L_kvs{L}")
                A.label(f"L_kvo{L}")
                if p < 7:
                    e(f"{MF} v[168:171], {v(SEL+2,4)}, {v(r0,4)}, v[168:171]"); e(f"{MF} v[172:175], {v(SEL,4)}, {v(r0,4)}, v[172:175]")
                elif o.zf: zred()
                def kvslow(p=p, L=L, nafter=nafter, g1=g1, gz=gz):
                    A.label(f"L_kvs{L}")
                    e(f"s_sub_u32 s{sTMO}, s{sTMO}, 1"); e(f"s_cbranch_scc1 L_kvt{L}")
                    if o.ksl: e(f"s_sleep {o.ksl}")
                    e(f"s_waitcnt vmcnt({nafter})")
                    if o.kgate:
                        e("v_mov_b32 v197, 0"); e("s_mov_b64 exec, 0xff"); e(f"buffer_atomic_or v197, v{vZL}, {SRD}, s{sZP} offen sc0 sc1"); e("s_mov_b64 exec, -1")
                        e("s_waitcnt vmcnt(0)"); e("v_cmp_eq_u32 vcc, -1, v197"); e(f"s_cbranch_vccnz L_kvs{L}")
                    for p2 in range(0 if (o.zf and p == 7) else p, 7):
                        if p2 != p: e(f"v_cmp_eq_u32 vcc, -1, v{96+4*p2}"); e(f"s_cbranch_vccz L_kvn{L}_{p2}")
                        E(g1(p2))
                        if p2 != p: A.label(f"L_kvn{L}_{p2}")
                    if p == 7 or not o.zf: e(gz)
                    e("s_waitcnt vmcnt(0)"); e(f"s_branch L_kvc{L}")
                    A.label(f"L_kvt{L}"); e(f"s_mov_b32 s{sTMO}, 0"); e(f"s_branch L_kvo{L}")
                ool.append(kvslow)
            if o.zf: kvw()
            else: zred(kvw)
            fb2 = lay == 0 and not A.pending("b2")
            e("s_waitcnt lgkmcnt(0)"); e("s_barrier")
            stamp(5)
            for t in range(2): e(f"ds_read_b128 {v(184+4*t,4)}, v{vGM} offset:{M_ZF-M + t*64} ;@zf")
            for j in range(4): e(ldsrd(v(168+4*j,4), M_KX + j*1024))
            if fb2: E(fb_set(1))
            if lay == 0: e(f"s_add_u32 s{sKV}, s{sKV}, 0x100000"); e(f"s_add_u32 s{sZP}, s{sZP}, 0x10000"); e(f"s_add_u32 s{sZo}, s{sZo}, 0x10000")
            e("WAITL zf")
            for t in range(2):
                for i in range(4): e(f"{MF} {v(64+4*i,4)}, {v(184+4*t,4)}, {v((204 if t == 0 else 136)+4*i,4)}, {'0' if t == 0 else v(64+4*i,4)}")
            e("s_waitcnt lgkmcnt(0)")
            def fin(i):
                r = [f"v_mul_f32 v{96+8*i+j}, v{96+8*i+j}, v{64+4*i}" for j in range(8)] + cvt4l(224+4*i, 96+8*i, 100+8*i)
                return [r[j:j+3] for j in range(0, 12, 3)]
            sc = [[f"v_add_f32 v{64+4*i}, {f32hex(1e-6)}, v{64+4*i}", f"v_rcp_f32 v{64+4*i}, v{64+4*i}"] for i in range(4)]
            fills = [[[]]*4, sc, fin(0), fin(1)]
            for i in range(4):
                for t in range(2):
                    for db in range(2):
                        d = v(96+8*i+4*db, 4)
                        e(f"{MF} {d}, {v(168+8*t+4*db,4)}, {v((204 if t == 0 else 136)+4*i,4)}, {'0' if t == 0 else d}")
                        E(fills[i][2*t+db])
                if i >= 2: ostore(i-2, o.oa or lay == 0)
            for i in (2, 3):
                for r in range(0, 8, 2): pk_mul(96+8*i+r, 96+8*i+r, 64+4*i)
                cvt4(224+4*i, 96+8*i, 100+8*i)
                ostore(i, o.oa or lay == 0)
        else:
            fb2 = True
            A.bgset(left + lates, o.bper, o.bper)
            while ysh: Y()
            for i in (1, 0):
                for c in (2, 3):
                    for h in range(2): pk_mul(acc(c,i)+2*h, acc(c,i)+2*h, STP+2*i)
            for i in (1, 0):
                for c in (4, 5):
                    for h in range(2): e(f"v_pk_mul_f32 {v(acc(c,i)+2*h,2)}, {v(acc(c,i)+2*h,2)}, {v(224+4*i+2*h,2)}")
            E(kcvt(1) + qcvt(1)); e(sprev(2)); E(kcvt(0)[:2]); e(sown(1)); E(kcvt(0)[2:] + qcvt(0)); e(sprev(1)); E(vcvt(1, VT(0,1), VT(1,1))[:2]); e(sown(0))
            E(vcvt(1, VT(0,1), VT(1,1))[2:] + vcvt(0, VT(0,0), VT(1,0)))
            E(sel(2))
            keep = A.bg; A.bg = []
            e("s_waitcnt lgkmcnt(0)")
            e(f"s_cmp_lg_u32 s{SW}, 0"); e(f"s_cbranch_scc1 L_halod{lay}")
            A.track = False
            hc = ["v_max_u32 v218, v240, v244", "v_cmp_eq_u32 vcc, -1, v218"]
            if A.pending("hl"): e(f"s_waitcnt vmcnt({A.after('hl')})")
            E(hc); e(f"s_cbranch_vccz L_halow{lay}")
            spin(hl, hc)
            A.label(f"L_halow{lay}")
            for r in range(4): e(f"v_mov_b32 v{KP+r}, v{240+r}"); e(f"v_mov_b32 v{VT(r//2,-1)+r%2}, v{244+r}")
            A.track = True
            A.label(f"L_halod{lay}")
            e(sprev(0))
            A.bg = keep
            stamp(2)
            if lay == 1: e(f"s_add_u32 s{sHst}, s{sHst}, 0x80000"); e(f"s_add_u32 s{sHld}, s{sHld}, 0x80000")
            E(sel(1)); E(sel(0))
            xreduce([("v_max_f32", [acc(5,i)+2 for i in range(4)])])
            E(soft((2, 1, 0)))
            A.bgflush()
            E(pv(2) + pv(1) + pv(0))
            for i in (2, 1, 0):
                e(f"v_rcp_f32 v{acc(5,i)}, v{acc(5,i)}")
                for db in range(2):
                    for h in range(2): pk_mul(acc(1+2*db,i)+2*h, acc(1+2*db,i)+2*h, acc(5,i))
                cvt4(224+4*i, acc(1,i), acc(3,i))
                ostore(i, o.oall or (o.o4 and last))

        stamp(6)
        pre = [f"v_mov_b32 v{vVal}, {lay+1}"]
        OB = WS_O
        if o.alias:
            OB = (WS_X, WS_O)[par]
            pre += [f"s_xor_b32 s{r}, s{r}, {WS_X ^ WS_O}" for r in [sO, sXs] + list(range(ROTA, ROTA+8))]
        for i in range(2):
            for kk in range(2):
                for r in range(4):
                    d = acc2(2*kk + (r >> 1), i) + 2*(r & 1); x = RES+8*i+4*kk+r
                    pre += [f"v_lshlrev_b32 v{d}, 16, v{x}", f"v_and_b32 v{d+1}, 0xffff0000, v{x}"]
        omask = (1 << (o.g2depth - 1)) - 1 if o.lazy & 2 else None
        if o.early & 2: handoff(sFOp, sFOc, lay+1, omask, mEO, pre, [])
        else:
            E(pre); signal(sFOp); stamp(7); poll(sFOc, lay+1, None, omask)
        stamp(8)
        W2F = RING; AF2 = RING + 32; GD = o.g2depth; T2_ = o.TG2 if sxo else o.TG
        assert AF2 + 8*GD <= 240 - 48*o.NRES
        gun = [(st, (0, 1)) for st in range(32 - T2_)] + [(st, (i,)) for i in range(2) for st in range(32 - T2_, 32)]
        bn = [(st, i) for st, bl in gun for i in bl]
        bidx = {k: n for n, k in enumerate(bn)}
        def bfr(step, i): return a(AF2 + 4*(bidx[(step, i)] % (2*GD)), 4)
        def w2rd(u, b):
            step = gun[u][0]
            return ldsrd(a(W2F + 16*(u % 2) + 4*b, 4), (step*4096 if step < 14 else 3*SLOT + (step-14)*4096) + b*1024) + f" ;@u{u}_{b}"
        cur4 = [-1]
        def bload(step, i):
            r = [f"s_mov_b32 s{sAo}, {OB + (step//4)*4096}"] if step//4 != cur4[0] else []
            cur4[0] = step//4
            return r + [f"buffer_load_dwordx4 {bfr(step, i)}, v{vB+i}, {SRD}, s{sAo} offen offset:{(step%4)*1024} sc1 ;@B{step}_{i}"]
        for j in range(min(o.bpos, 2*GD-2)):
            if o.lazy & 2 and j == o.p2pos: poll2(sFOc)
            E(bload(*bn.pop(0)))
        e("s_barrier")
        for st in range(2):
            for b in range(4): e(w2rd(st, b))
        while bn[0][0] < GD-1: E(bload(*bn.pop(0)))
        lv = [x for x in (o.lv1, o.lv2) if x] + [32]
        okh = 32
        if o.lazy & 2: okh = lv.pop(0); poll2chk(sFOc, lay+1, hex((1 << okh) - 1) if okh < 32 else None)
        if lay == 0 and not fb2: E(fb_set(1))
        w1n = [] if last or sxo or (o.nopf and lay >= 1) else list(range(6))
        assert not o.sx or o.nopf
        nres = 0 if last else (1 + (o.NRES if lay >= 1 else 0))
        def oparts(i):
            return [[f"ds_write_b128 v{200+kk}, {v(RES+8*i+4*kk,4)} offset:{i*2048}"] for kk in range(2)] + \
                   [[f"ds_read_b128 {v(96+4*j,4)}, v{vLW} offset:{j*1024} ;@o{j}"] for j in (2*i, 2*i+1)] + [[], []] + \
                   [[f"WAITL o{j}", f"buffer_store_dwordx4 {v(96+4*j,4)}, v202, {SRT}, s{T0} offen" + (" sc1" if o.outsc else ""), f"s_add_u32 s{T0}, s{T0}, 16384"] for j in (2*i, 2*i+1)]
        gsh = []
        if last:
            gsh = [[f"v_bfe_u32 v200, v{vL16}, 4, 4", f"v_and_b32 v201, 0x70, v{vL16}"], [f"v_xor_b32 v201, v201, v{vG16}", "v_lshl_add_u32 v200, v200, 7, v201"],
                   [f"v_add_u32 v200, s{sLW}, v200", f"v_lshrrev_b32 v202, 7, v{vL16}"], [f"v_and_b32 v203, 0x70, v{vL16}", "v_lshlrev_b32 v204, 4, v202"],
                   ["v_xor_b32 v201, 64, v200", "v_xor_b32 v203, v203, v204"], ["v_lshl_add_u32 v202, v202, 11, v203"],
                   [f"s_mov_b32 s8, s{P_OUT}", f"s_mov_b32 s9, s{P_OUT+1}"], ["s_mov_b32 s10, 0x400000", "s_mov_b32 s11, 0x20000"],
                   [f"s_lshl_b32 s{T0}, s{SRB}, 2", f"s_add_u32 s{T0}, s{T0}, s{SW}"], [f"s_lshl_b32 s{T0}, s{T0}, 16", f"s_lshl_b32 s{T1}, s{SCB}, 7"], [f"s_add_u32 s{T0}, s{T0}, s{T1}"]]
        def xcvt(i): return sum((cvt4l(RES+8*i+4*kk, acc2(2*kk,i), acc2(2*kk+1,i)) for kk in range(2)), [])
        fbchk = not (lay == 0 and not last)
        rw = [f"ds_write_b128 v{vLW if k == 0 else vLW3}, {a(RS(1-par, k)+4*b_,4)} offset:{(SLOT if k == 0 else (k-1)*SLOT) + b_*1024}" for k in range(nres) for b_ in range(6)]
        rslot = [1 if k == 0 else 2 + k - o.nopf for k in range(nres) for b_ in range(6)]
        freeslot = -1; nin = 0
        for u, (step, bl) in enumerate(gun):
            e("WAITV " + " ".join(f"B{step}_{i}" for i in bl))
            if okh < 32:
                if bn[0][0] == okh - GD + 1: poll2(sFOc)
                if bn[0][0] == okh: okh = lv.pop(0); poll2chk(sFOc, lay+1, hex((1 << okh) - 1) if okh < 32 else None)
                assert bn[1][0] < okh
            if o.jit and u % 7 == 3: stamp(2)
            nsl = nres - 1 - o.nopf if nres > 1 else 0
            if u in ([15] if sxo else [15 + 6*j for j in range(nsl + 1) if o.rin or j == nsl or (j == 0 and w1n)]):
                freeslot = 2 + (u - 15)//6
                assert min(st for st, _ in gun[u-1:]) >= u - 1
                e("s_barrier")
            if lay == 0 and not last and u == 19: assert okh == 32; E([t + (" ;@F" if t.startswith("buffer") else "") for t in fb_body(1)])
            if not fbchk and len(bn) <= 2: e("WAITV F"); E(fb_cond + retry(fb_body(1), fb_cond)); fbchk = True
            if bl == (1,) and step == 32 - T2_:
                assert not gsh
                c_ = xcvt(0); gsh = [[]] + [c_[j:j+2] for j in range(0, 8, 2)]
                if last: gsh += oparts(0)
                else:
                    p_ = xparts(0); gsh += p_[0] + [[], []] + p_[1]
                    if sxo: gsh += [[]]*o.k0 + [lambda: sig(sFXp, 2*lay+1, "xs0")] + [[]]*o.k1 + [lambda: poll2(sFXc)]
            for b in range(4):
                e(f"WAITL u{u}_{b}")
                for p, i in enumerate(bl if b % 2 == 0 else bl[::-1]):
                    e(f"{MF} {v(acc2(b,i),4)}, {a(W2F+16*(u%2)+4*b,4)}, {bfr(step, i)}, {v(acc2(b,i),4)}")
                    if p == 0:
                        if bn and b % (4//len(bl)) == 0: E(bload(*bn.pop(0)))
                        elif not bn and w1n and b % (o.g2w*2//len(bl)) == 0: E(w1_piece(1-par, 1, w1n.pop(0)))
                        elif gsh and (len(bl) == 1 or b % 2):
                            g_ = gsh.pop(0)
                            if callable(g_): g_()
                            elif ((o.xall and lay >= 1) or ((o.alias or o.x0wt) and lay == 0)) and not last: E([wt(t) for t in g_])
                            elif any(t.startswith("buffer_store") for t in g_) and not last: st_mode(g_)
                            else: E(g_)
                if sxo and nin < o.r0 and rw and rslot[0] <= freeslot and b == 3 and (len(bl) == 2 or u % 2):
                    e(rw.pop(0)); rslot.pop(0); nin += 1
                if o.rin and not sxo and rw and rslot[0] <= freeslot and b % (4//o.rin) == 4//o.rin - 1 and (len(bl) == 2 or (bl == (0,) and b == 3 and (u % 2 or o.rin > 1))):
                    e(rw.pop(0)); rslot.pop(0)
                if u + 2 < len(gun): e(w2rd(u+2, b))
                if b == 1 and not last:
                    for j_ in range(o.xf):
                        if u == o.xt0 + 3*j_: e(f"buffer_load_dword v{vJUNK}, v{vTCH}, {SRD}, s{ROTA+j_} offen sc1")
                    if o.cpf and u == o.xt0 + 4: E(codepf(f"L_layer{lay+1}"))
        assert not w1n
        stamp(9)
        if sxo:
            for g_ in gsh:
                assert callable(g_) or not g_
                if g_: g_()
            poll2chk(sFXc, 2*lay+1, sm(mX))
            continue
        rest = sum(gsh, [])
        if last or not any(t.startswith("buffer_store") for t in rest): E(rest)
        elif (o.xall and lay >= 1) or ((o.alias or o.x0wt) and lay == 0): E([wt(t) for t in rest])
        else: st_mode(rest)
        todo = (1,) if T2_ else (0, 1)
        for i in todo: E(xcvt(i))
        if last:
            for i in todo: E(sum(oparts(i)[:4], []))
            for i in todo: E(sum(oparts(i)[4:], []))
            break
        xtile((o.xall and lay >= 1) or ((o.alias or o.x0wt) and lay == 0), todo)
        assert not rw or max(rslot) <= freeslot
        if o.verbose: print("layer", lay, "resident writes left", len(rw))
        if o.sx: e(f"v_mov_b32 v{vVal}, {2*lay+2}")
        if o.early & 1: handoff(sFXp, sFXc, 2*lay+2 if o.sx else lay+1, sm(mX) if o.lazy & 1 else None, mEX, rw[:o.rw], rw[o.rw:])
        else:
            E(rw[:o.rw]); signal(sFXp); stamp(10); poll(sFXc, lay+1, rw[o.rw:], sm(mX) if o.lazy & 1 else None)

    if o.stamps:
        e("s_waitcnt vmcnt(0)")
        stamp(11)
        e(f"s_lshl_b32 s{T0}, s{SIDX}, 2"); e(f"s_add_u32 s{T0}, s{T0}, s{SW}")
        e(f"s_lshl_b32 s{T0}, s{T0}, 8"); e(f"s_add_u32 s{T0}, s{T0}, {WS_STAMPS}")
        e(f"v_lshrrev_b32 v200, 2, v{vL16}")
        e(f"buffer_store_dword v{vSTAMP}, v200, {SRD}, s{T0} offen")
        if o.echo_a >= 0:
            e(f"v_readlane_b32 s{T1}, v{vSTAMP}, {o.echo_a}"); e(f"v_readlane_b32 s{T2}, v{vSTAMP}, {o.echo_b}"); e(f"v_readlane_b32 s{T3}, v{vSTAMP}, 59")
            e(f"s_sub_u32 s{T2}, s{T2}, s{T1}"); e(f"s_mul_i32 s{T2}, s{T2}, {o.echo_mul}"); e(f"s_min_u32 s{T2}, s{T2}, 20000")
            if o.echo_idx >= 0: e(f"s_cmp_eq_u32 s{SIDX}, {o.echo_idx}"); e(f"s_cselect_b32 s{T2}, s{T2}, 0")
            A.label("L_echo")
            e(f"s_memrealtime s[{sSTAMP}:{sSTAMP+1}]"); e("s_waitcnt lgkmcnt(0)")
            e(f"s_sub_u32 s{T4}, s{sSTAMP}, s{T3}"); e(f"s_cmp_lt_u32 s{T4}, s{T2}"); e("s_cbranch_scc1 L_echo")
    e("s_endpgm")
    A.track = False
    A.label("L_ool")
    for blk in ool: blk()
    A.label("L_exit")
    e("s_endpgm")
    A.raw(f".fill (16384 + 256 - (. - L_ool))/4, 4, 0xbf810000")
    A.raw('.section .rodata,"a"'); A.raw(".p2align 6"); A.raw(f".amdhsa_kernel {KNAME}")
    for t in ("next_free_vgpr 512", "next_free_sgpr 102", "accum_offset 256", "group_segment_fixed_size 0", "kernarg_size 80",
              "user_sgpr_count 2", "user_sgpr_kernarg_segment_ptr 1", "system_sgpr_workgroup_id_x 1"):
        A.raw("  .amdhsa_" + t)
    A.raw(".end_amdhsa_kernel")
    return A.text()

if __name__ == "__main__":
    o = Opts()
    out = sys.argv[1]
    for kv in sys.argv[2:]:
        k, val = kv.split("=")
        assert hasattr(o, k), k
        setattr(o, k, int(val))
    open(out, "w").write(gen(o))
```
